```python
import torch

def _softmax(x, axis=-1):
    return torch.softmax(x, dim=axis)
def _gelu(x):
    return torch.nn.functional.gelu(x, approximate="tanh")
def _silu(x):
    return torch.nn.functional.silu(x)
def _sigmoid(x):
    return torch.sigmoid(x)
def _layernorm(x, axis=-1, eps=1e-5):
    m = x.mean(dim=axis, keepdim=True)
    v = x.var(dim=axis, keepdim=True, unbiased=False)
    return (x - m) / torch.sqrt(v + eps)
def _scatter_add(tgt, idx, src, axis=0):
    return tgt.clone().index_add_(axis, idx, src)
def _segment_sum(src, seg, n):
    out = torch.zeros((n,) + src.shape[1:], dtype=src.dtype)
    return out.index_add_(0, seg, src)
def _pad(x, pw):
    flat = tuple(v for pair in reversed(pw) for v in pair)
    return torch.nn.functional.pad(x, flat)

kernel_name = 'interleave_layers__sliding_block_cached__glu_gated_swiglu__decode'

def setup_inputs():

    _w = (lambda a: (lambda t: t.to(torch.bfloat16) if t.is_floating_point() else t)(torch.as_tensor(a)))
    def _A_setup():
        B, Sq, D = 1, 1, 640
        Hq, Hkv, Sk, Dh = 32, 32, 32768, 192
        assert Hq % Hkv == 0, (Hq, Hkv)
        return {
            "x": _w((lambda *s: torch.randn(*s, dtype=torch.bfloat16) * 0.05)(B, Sq, D)),
            "k_cache": _w((lambda *s: torch.randn(*s, dtype=torch.bfloat16) * 0.8)(B, Hkv, Sk, Dh)),
            "v_cache": _w((lambda *s: torch.randn(*s, dtype=torch.bfloat16) * 1.6)(B, Hkv, Sk, Dh)),
            "wq": _w((lambda *s: torch.randn(*s, dtype=torch.bfloat16) * 0.8)(D, Hq * Dh) * (D ** -0.5)),
            "wo": _w((lambda *s: torch.randn(*s, dtype=torch.bfloat16) * 1.6)(Hq * Dh, D) * ((Hq * Dh) ** -0.5)),
        }
    _A_in = _A_setup()

    def _B_setup():
        B, S, D, F = 1, 1, 640, 1536
        return {
            "x": _w((lambda *s: torch.randn(*s, dtype=torch.bfloat16) * 0.05)(B, S, D)),
            "w1": _w((lambda *s: torch.randn(*s, dtype=torch.bfloat16) * 0.4)(D, F) * (2.0 / D) ** 0.5),
            "w3": _w((lambda *s: torch.randn(*s, dtype=torch.bfloat16) * 0.4)(D, F) * (2.0 / D) ** 0.5),
            "w2": _w((lambda *s: torch.randn(*s, dtype=torch.bfloat16) * 0.4)(F, D) * (2.0 / F) ** 0.5),
        }
    _B_in = _B_setup()

    return {
        "A_x": _A_in["x"],
        "A_k_cache": _A_in["k_cache"],
        "A_v_cache": _A_in["v_cache"],
        "A_wq": _A_in["wq"],
        "A_wo": _A_in["wo"],
        "B_x": _B_in["x"],
        "B_w1": _B_in["w1"],
        "B_w3": _B_in["w3"],
        "B_w2": _B_in["w2"],
    }

def reference(A_x, A_k_cache, A_v_cache, A_wq, A_wo, B_x, B_w1, B_w3, B_w2):
    def _A_ref(x, k_cache, v_cache, wq, wo):
        B, Sq, D = x.shape
        Hq, Dh = 32, 192
        Hkv, Sk = k_cache.shape[1], k_cache.shape[2]
        W = min(4096, max(256, Sk // 4))
        rep = Hq // Hkv
        q = (lambda x, *d: x.permute(*d))((x @ wq).reshape(B, Sq, Hq, Dh), 0, 2, 1, 3)
        k = (lambda x, n, axis: torch.repeat_interleave(x, n, dim=axis))(k_cache[:, :, Sk - W:, :], rep, axis=1)
        v = (lambda x, n, axis: torch.repeat_interleave(x, n, dim=axis))(v_cache[:, :, Sk - W:, :], rep, axis=1)
        scores = torch.einsum("bhqd,bhkd->bhqk", q, k) * (Dh ** -0.5)
        p = _softmax(scores, axis=-1)
        o = torch.einsum("bhqk,bhkd->bhqd", p, v)
        return (lambda x, *d: x.permute(*d))(o, 0, 2, 1, 3).reshape(B, Sq, Hq * Dh) @ wo

    def _B_ref(x, w1, w3, w2):
        gate = torch.einsum("bsd,df->bsf", x, w1)
        up = torch.einsum("bsd,df->bsf", x, w3)
        h = _silu(gate) * up
        out = torch.einsum("bsf,fd->bsd", h, w2)
        return out

    x = A_x
    x = x + _A_ref(_layernorm(x, axis=-1), A_k_cache, A_v_cache, A_wq, A_wo)
    x = x + _B_ref(_layernorm(x, axis=-1), B_w1, B_w3, B_w2)
    x = x + _A_ref(_layernorm(x, axis=-1), A_k_cache, A_v_cache, A_wq, A_wo)
    x = x + _B_ref(_layernorm(x, axis=-1), B_w1, B_w3, B_w2)
    return x
```

```python
import re
REG = re.compile(r'^(-|\|)?(v|a|s)(\d+)\|?$')
RNG = re.compile(r'^(v|a|s)\[(\d+):(\d+)\]$')
TRANS = ("v_exp_f32","v_log_f32","v_rcp_f32","v_rsq_f32","v_sqrt_f32","v_sin_f32","v_cos_f32")
def regs(tok):
    tok = tok.strip()
    if tok == "vcc": return {("s",106),("s",107)}
    if tok == "exec": return {("s",126),("s",127)}
    if tok == "m0": return {("s",124)}
    m = REG.match(tok)
    if m: return {(m.group(2), int(m.group(3)))}
    m = RNG.match(tok)
    if m: return {(m.group(1), i) for i in range(int(m.group(2)), int(m.group(3))+1)}
    return set()
class I:
    def __init__(s, text):
        s.text = text
        t = text.split(";")[0].strip()
        p = t.split(None, 1)
        s.mn = p[0]
        rest = p[1] if len(p) > 1 else ""
        ops = []; depth = 0; cur = ""
        for ch in rest:
            if ch in "[(": depth += 1
            if ch in "])": depth -= 1
            if ch == "," and depth == 0: ops.append(cur.strip()); cur = ""
            else: cur += ch
        if cur.strip(): ops.append(cur.strip())
        s.mods = ""
        if ops:
            q = ops[-1].split(None, 1)
            ops[-1] = q[0]; s.mods = q[1] if len(q) > 1 else ""
        s.ops = ops
        mn = s.mn
        s.mfma = mn.startswith("v_mfma")
        s.valu = mn.startswith("v_") and not s.mfma
        s.salu = mn.startswith("s_")
        s.vmem = mn.startswith(("buffer_", "global_"))
        s.ds = mn.startswith("ds_")
        s.dpp = "_dpp" in mn
        s.perm = mn.startswith("v_permlane")
        s.rdlane = mn.startswith(("v_readlane", "v_readfirstlane"))
        s.trans = mn.replace("_e32","").replace("_e64","") in TRANS
        s.ldsdma = s.vmem and re.search(r'\blds\b', s.mods) is not None
        s.branch = mn.startswith(("s_branch", "s_cbranch"))
        s.uncond = mn in ("s_branch", "s_endpgm", "s_setpc_b64")
        R = [regs(o) for o in ops]
        allr = set().union(*R) if R else set()
        s.w = set(); s.r = set(); s.srcC = set(); s.srcAB = set(); s.stdata = set()
        if s.mfma:
            s.w = R[0]; s.srcAB = R[1] | R[2]; s.srcC = R[3]; s.r = s.srcAB | s.srcC
        elif s.valu:
            s.w = set(R[0]); s.r = set().union(*R[1:]) if len(R) > 1 else set()
            if s.perm: s.w = R[0] | R[1]; s.r = R[0] | R[1]
            if mn.startswith(("v_fmac", "v_dot2c", "v_writelane")) or s.dpp: s.r |= R[0]
            if mn.startswith(("v_add_co", "v_sub_co", "v_addc_co")): s.w |= R[1]
            if mn.startswith("v_cndmask") and len(ops) == 3: s.r |= regs("vcc")
        elif s.vmem:
            isload = "_load" in mn and not s.ldsdma
            atomic_ret = "_atomic" in mn and "sc0" in s.mods
            if isload: s.w = R[0]; s.r = set().union(*R[1:])
            elif atomic_ret and mn.startswith("global"): s.w = R[0]; s.r = set().union(*R[1:])
            else:
                s.r = allr
                if "store" in mn and ("x3" in mn or "x4" in mn):
                    s.stdata = R[0] if mn.startswith("buffer") else R[1]
            if s.ldsdma: s.r |= regs("m0")
        elif s.ds:
            if mn.startswith(("ds_read", "ds_bpermute", "ds_permute", "ds_swizzle")) or "_rtn" in mn:
                s.w = R[0]; s.r = set().union(*R[1:])
            else: s.r = allr
        elif s.salu:
            if mn.startswith(("s_cmp", "s_cbranch", "s_branch", "s_waitcnt", "s_nop", "s_barrier", "s_sleep", "s_setprio", "s_endpgm", "s_bitcmp")):
                s.r = allr
            elif R:
                s.w = set(R[0]); s.r = set().union(*R[1:]) if len(R) > 1 else set()
                if "saveexec" in mn: s.w |= regs("exec")
        s.states = 1
        if mn == "s_nop": s.states = int(ops[0], 0) + 1
def need(P, C):
    n = 0
    vw = {x for x in P.w if x[0] != "s"}; sw = {x for x in P.w if x[0] == "s"}
    if P.valu:
        if C.mfma and vw & C.r: n = max(n, 2)
        if C.valu and (C.dpp or C.perm) and vw & C.r: n = max(n, 2)
        if C.rdlane and vw & C.r: n = max(n, 1)
        if P.trans and vw & C.r and not C.trans: n = max(n, 1)
        if sw:
            if C.valu and sw & C.r: n = max(n, 4 if C.rdlane or C.mn.startswith("v_writelane") else 2)
            if C.mfma and sw & C.r: n = max(n, 2)
            if C.vmem and sw & C.r: n = max(n, 5)
            if C.salu and sw & C.r: n = max(n, 1)
    if P.mfma:
        assert "16x16" in P.mn
        if C.mfma:
            if P.w & C.srcAB: n = max(n, 8)
            if P.w & C.srcC and P.w != C.srcC: n = max(n, 6)
            if P.w & C.w and P.w != C.srcC: n = max(n, 6)
        elif C.valu or C.vmem or C.ds:
            if P.w & (C.r | C.w): n = max(n, 8)
            if C.valu and P.srcC & C.w: n = max(n, 3)
    if P.salu and ("s",124) in P.w and C.ldsdma: n = max(n, 1)
    if P.stdata and P.stdata & C.w: n = max(n, 2)
    return n
class Asm:
    def __init__(s):
        s.items = []
        s.tail = []
        s.vm = []
    def e(s, t):
        for x in t.split("\n"):
            x = x.strip()
            if x: s.items.append(("I", I(x)))
    def lab(s, n): s.items.append(("L", n))
    def raw(s, t): s.items.append(("R", t))
    def vmem(s, t, tag, counted=True):
        s.e(t)
        if counted: s.vm.append(tag)
    def wait(s, tag, extra=""):
        if tag not in s.vm: return
        idx = max(i for i, x in enumerate(s.vm) if x == tag)
        n = len(s.vm) - 1 - idx
        assert n <= 63, n
        s.e(f"s_waitcnt vmcnt({n}){extra}")
        s.vm = s.vm[idx+1:]
    def drained(s): s.vm = []
    def pad(s):
        items = s.items
        labpos = {}
        for i, it in enumerate(items):
            if it[0] == "L": labpos[it[1]] = i
        srcs = {}
        for i, it in enumerate(items):
            if it[0] == "I" and it[1].branch and it[1].ops[0] in labpos:
                srcs.setdefault(labpos[it[1].ops[0]], []).append(i)
        ins = {}
        def deficit(ci):
            C = items[ci][1]; worst = 0
            stack = [(ci - 1, 0, True)]; seen = set()
            while stack:
                i, dist, fall = stack.pop()
                if i < 0 or dist >= 8 or (i, dist, fall) in seen: continue
                seen.add((i, dist, fall))
                it = items[i]
                if it[0] == "L":
                    for b in srcs.get(i, []): stack.append((b, dist, False))
                    stack.append((i - 1, dist, True)); continue
                if it[0] == "R": stack.append((i - 1, dist, True)); continue
                P = it[1]
                if fall and P.uncond: continue
                worst = max(worst, need(P, C) - dist)
                stack.append((i - 1, dist + P.states + ins.get(i, 0), True))
            return worst
        for n_pass in range(2):
            for i, it in enumerate(items):
                if it[0] == "I":
                    d = deficit(i) - ins.get(i, 0)
                    if d > 0: ins[i] = ins.get(i, 0) + d
        out = []
        for i, it in enumerate(items):
            if it[0] == "L": out.append(it[1] + ":")
            elif it[0] == "R": out.append(it[1])
            else:
                if ins.get(i, 0): out.append(f"    s_nop {ins[i]-1}")
                out.append("    " + it[1].text)
        return out
```

```python
import os, sys
sys.path.insert(0, os.path.dirname(os.path.abspath(__file__)))
from asmlib import Asm
NAME = "interleave_layers__sliding_block_cached__glu_gated_swiglu__decode"
OPT = dict(a.split("=") for a in sys.argv[2:])
OUT = sys.argv[1] if len(sys.argv) > 1 else f"/code/{NAME}.s"
STAMP = int(OPT.get("stamp", 0))
NT = OPT.get("nt", "nt").replace("x", "")
NTW = OPT.get("ntw", "nt").replace("x", "")
FORCESLOW = int(OPT.get("slow", 0))
A = Asm(); e = A.e; lab = A.lab
tail = []

RS = 416; SCRW = 16 * RS
SCR = 0; WQ = 4 * SCRW; ROLE = WQ + 30720
WO = ROLE; W1 = ROLE; W3 = ROLE + 20480; W2 = ROLE + 40960
MISC = ROLE + 61440; QB = MISC; ACC = MISC + 512; ACCS = 1536
OACC = 0; YACC = 768; FACC = 1024
LDSSZ = ACC + 2 * ACCS
GB = 81920; oQ = 0; oO = 32768; oML = 45056; oFP = 46080; oYL = 76800; oFL = 78080; oBA = 79360; oBB = 80640
GOFF = 8 * GB; oYG = GOFF; oFG = GOFF + 10240; LS = 0xA8000
OOB = 0x7FFFFFF0
sK, sV, sW, sWQ, sRA, sRB, sRC, sX, sO = 8, 12, 16, 20, 24, 28, 32, 36, 40
sG, sJ, sHH, sS, sWV, sKV, sLay, sFast, sCnt = 68, 69, 70, 71, 72, 73, 74, 75, 76
sT0, sT1, sT2 = 77, 78, 79
sLG = 3
sClr = 4
sXcc = 5
sTL = 6
sT3 = 7
sMq = 80
sMf = 44
def sr(b): return f"s[{b}:{b+3}]"
def sp(b): return f"s[{b}:{b+1}]"
def vr(b, n=4): return f"v[{b}:{b+n-1}]" if n > 1 else f"v{b}"
def ar(b, n=4): return f"a[{b}:{b+n-1}]"
def srd(d, lo, nbytes):
    e(f"s_mov_b32 s{d}, s{lo}"); e(f"s_and_b32 s{d+1}, s{lo+1}, 0xffff")
    e(f"s_mov_b32 s{d+2}, {nbytes}"); e(f"s_mov_b32 s{d+3}, 0x20000")
def setexec(mask):
    lo, hi = mask & 0xffffffff, mask >> 32
    if mask == (1 << 64) - 1: e("s_mov_b64 exec, -1")
    elif hi == 0 and lo <= 64: e(f"s_mov_b64 exec, {lo}")
    else: e(f"s_mov_b32 exec_lo, {lo:#x}"); e(f"s_mov_b32 exec_hi, {hi:#x}")
FULL = (1 << 64) - 1
ROWS9 = 0x01FF01FF01FF01FF
vL, vLin, vWr, vKrd, vVrd, vCS, vAq, vAq16, vQst, vQld, vQBw, vQBr, vML, vAcc, vTq1, vTq2, vSC, vM = 0, 1, 2, 5, 6, 7, 8, 9, 10, 11, 12, 13, 14, 15, 16, 17, 18, 19
vC1, vC2, vXR = 20, 21, 22
T = 24
F = 40
SPARE = 88
def vblock(b):
    if b < 2: return ("a", 192 + 24 * b)
    if b == 8: return ("v", SPARE)
    return ("v", 112 + 24 * (b - 2))
def rg(f, b, n): return f"{f}[{b}:{b+n-1}]"

uid = [0]
def nid(): uid[0] += 1; return uid[0]
stamps = [0]
def stamp(i):
    if not STAMP: return
    e("s_memrealtime s[100:101]"); e("v_accvgpr_write_b32 a254, v38"); e("v_accvgpr_write_b32 a255, v39")
    e(f"s_lshl_b32 s98, s2, 2"); e(f"s_add_u32 s98, s98, s{sWV}"); e("s_lshl_b32 s98, s98, 7")
    e(f"s_cmp_eq_u32 s{sLay}, 0"); e(f"s_cselect_b32 s99, 0, 64"); e(f"s_add_u32 s99, s99, {4*i}"); e("s_add_u32 s98, s98, s99"); e("s_add_u32 s98, s98, 0x40000000")
    e("s_waitcnt lgkmcnt(0)"); e("v_mov_b32 v38, s100"); e("v_mov_b32 v39, 0")
    e("s_mov_b64 s[100:101], exec"); e("s_mov_b64 exec, 1")
    A.vmem(f"buffer_store_dword v38, v39, {sr(sW)}, s98 offen", "stamp")
    e("s_mov_b64 exec, s[100:101]"); e("s_nop 1"); e("v_accvgpr_read_b32 v38, a254"); e("v_accvgpr_read_b32 v39, a255")
def lstore(instr, counted=None):
    k = nid()
    e(f"s_cmp_eq_u32 s{sFast}, 1"); e(f"s_cbranch_scc0 SLOW{k}")
    if counted: A.vmem(instr, counted)
    else: e(instr)
    lab(f"BACK{k}")
    def t(): lab(f"SLOW{k}"); e(instr + " sc1"); e(f"s_branch BACK{k}")
    tail.append(t)
def check(regs_, tmp):
    r = list(regs_)
    if len(r) == 1: e(f"v_cmp_eq_u32 vcc, -1, v{r[0]}"); return
    cur = r.pop(0)
    while r:
        if len(r) >= 2: e(f"v_max3_u32 v{tmp}, v{cur}, v{r[0]}, v{r[1]}"); r = r[2:]
        else: e(f"v_max_u32 v{tmp}, v{cur}, v{r[0]}"); r = r[1:]
        cur = tmp
    e(f"v_cmp_eq_u32 vcc, -1, v{tmp}")
LIMIT = 0x8000
def poll(loads, regs_, tmp):
    k = nid()
    e(f"s_mov_b32 s{sCnt}, 0")
    lab(f"POLL{k}")
    for l in loads: e(l)
    e(f"s_add_u32 s{sCnt}, s{sCnt}, 1"); e(f"s_cmp_ge_u32 s{sCnt}, {LIMIT}")
    e("s_waitcnt vmcnt(0)")
    check(regs_, tmp)
    e(f"s_cbranch_scc1 POLLX{k}")
    e(f"s_cbranch_vccnz POLL{k}")
    lab(f"POLLX{k}")
    A.drained()
def late_check(tag, loads, regs_, tmp, pre=None, post=None):
    k = nid()
    A.wait(tag)
    check(regs_, tmp)
    e(f"s_cbranch_vccnz RETRY{k}")
    lab(f"OK{k}")
    def t():
        lab(f"RETRY{k}")
        if pre: pre()
        save = A.vm; poll(loads, regs_, tmp); A.vm = save
        if post: post()
        e(f"s_branch OK{k}")
    tail.append(t)

e("s_cmp_ge_u32 s2, 256"); e("s_cbranch_scc1 DONE")
e("s_load_dwordx16 s[44:59], s[0:1], 0"); e("s_load_dwordx8 s[60:67], s[0:1], 64")
if STAMP: e("s_memrealtime s[96:97]")
e("v_lshrrev_b32 v2, 6, v0"); e("v_and_b32 v24, 63, v0"); e(f"v_readfirstlane_b32 s{sWV}, v2")
e(f"s_and_b32 s{sG}, s2, 7"); e(f"s_lshr_b32 s{sJ}, s2, 3"); e(f"s_lshr_b32 s{sHH}, s{sJ}, 3"); e(f"s_and_b32 s{sS}, s{sJ}, 7")
e(f"v_lshlrev_b32 v{vLin}, 4, v24")
e(f"s_lshl_b32 s{sT0}, s{sHH}, 3"); e(f"s_add_u32 s{sT0}, s{sT0}, s{sG}")
e(f"s_mul_i32 s{sKV}, s{sT0}, 12582912"); e(f"s_lshl_b32 s{sT1}, s{sS}, 2"); e(f"s_add_u32 s{sT1}, s{sT1}, s{sWV}")
e(f"s_mul_i32 s{sT1}, s{sT1}, 6144"); e(f"s_add_u32 s{sKV}, s{sKV}, s{sT1}"); e(f"s_add_u32 s{sKV}, s{sKV}, 11010048")
e(f"s_mul_i32 s{sT2}, s{sT0}, 384")
e(f"s_mov_b32 s{sLay}, 0"); e(f"s_mul_i32 s{sLG}, s{sG}, {GB}"); e(f"s_mov_b32 s{sFast}, 0")
e(f"v_mov_b32 v32, -1"); e(f"v_mov_b32 v33, -1"); e(f"v_mov_b32 v34, -1"); e(f"v_mov_b32 v35, -1")
e(f"s_mul_i32 s{sT0}, s{sJ}, 2560"); e(f"s_add_u32 s{sT0}, s{sT0}, s{sLG}")
e(f"v_lshl_add_u32 v{vC1}, v0, 4, s{sT0}"); e("v_cmp_le_u32 vcc, 160, v0"); e(f"v_add_u32 v25, {LS-2560}, v{vC1}"); e(f"v_cndmask_b32 v{vC1}, v{vC1}, v25, vcc")
e(f"s_add_u32 s{sT0}, s{sT0}, {LS+16*96}")
e(f"s_lshl_b32 s{sT1}, s{sJ}, 10"); e(f"s_add_u32 s{sT1}, s{sT1}, s{sLG}"); e(f"s_add_u32 s{sT1}, s{sT1}, {2*LS}")
e(f"s_cmp_eq_u32 s{sWV}, 0"); e(f"s_cselect_b32 s{sClr}, s{sT0}, s{sT1}")
e(f"s_mul_i32 s{sT0}, s2, 80"); e(f"s_add_u32 s{sT0}, s{sT0}, {GOFF}")
e(f"s_cmp_ge_u32 s{sWV}, 2"); e(f"s_cselect_b32 s{sClr}, s{sT0}, s{sClr}")
e(f"v_add_u32 v25, {LS-80}, v{vLin}"); e("v_cmp_le_u32 vcc, 133, v0"); e(f"v_cndmask_b32 v{vC2}, v{vLin}, v25, vcc")
e(f"v_mov_b32 v25, {OOB-0x10000000}"); e("v_cmp_le_u32 vcc, 138, v0"); e(f"v_cndmask_b32 v{vC2}, v{vC2}, v25, vcc")
e("s_waitcnt lgkmcnt(0)")
srd(sK, 46, 402653184)
def tile_loads(srdn, t, f, base, tag):
    for i in range(6):
        if i == 0: e(f"s_add_u32 s{sTL}, s{sKV}, {t*196608}")
        if i == 4: e(f"s_add_u32 s{sTL}, s{sTL}, 4096")
        A.vmem(f"buffer_load_dwordx4 {rg(f, base+4*i, 4)}, v{vLin}, {sr(srdn)}, s{sTL} offen offset:{1024*(i%4)} {NT}", tag)
def Kld(t): tile_loads(sK, t, "a", 24 * t, f"K{t}")
def Vld(t): f, b = vblock(t + 1); tile_loads(sV, t, f, b, f"V{t}")
Kld(0)
srd(sW, 66, 1610612736)
A.vmem(f"buffer_store_dwordx4 v[32:35], v{vC1}, {sr(sW)}, 0 offen sc1", "clr")
A.vmem(f"buffer_store_dwordx4 v[32:35], v{vC2}, {sr(sW)}, s{sClr} offen sc1", "clr")
e("s_getpc_b64 s[100:101]"); lab("PCREF")
e(f"s_sub_u32 s100, s100, PCREF-{NAME}_kernel"); e("s_subb_u32 s101, s101, 0")
e("v_lshlrev_b32 v25, 4, v0")
NPF = int(OPT.get("npf", 4))
for i in range(NPF):
    e(f"v_min_u32 v26, CODE_END-{NAME}_kernel-16, v25")
    A.vmem(f"global_load_dwordx4 a[240:243], v26, s[100:101]", "pf")
    if i + 1 < NPF: e("v_add_u32 v25, 4096, v25")
Kld(1)
srd(sV, 48, 402653184); srd(sWQ, 50, 7864320); srd(sX, 44, 1280); srd(sO, 62, 1280)
srd(sRB, 58, 1966080); srd(sRC, 60, 1966080)
e(f"s_cmp_lt_u32 s{sJ}, 20"); e(f"s_cselect_b32 s{sRA}, s52, s56"); e(f"s_cselect_b32 s{sRA+1}, s53, s57"); e(f"s_cselect_b32 s{sRA+2}, s{sWQ+2}, s{sRB+2}")
e(f"s_and_b32 s{sRA+1}, s{sRA+1}, 0xffff"); e(f"s_mov_b32 s{sRA+3}, 0x20000")
if STAMP:
    e(f"s_lshl_b32 s98, s2, 2"); e(f"s_add_u32 s98, s98, s{sWV}"); e("s_lshl_b32 s98, s98, 7"); e("s_add_u32 s98, s98, 0x40000000")
    e("v_mov_b32 v38, s96"); e("v_mov_b32 v39, 0"); e("s_mov_b64 exec, 1")
    A.vmem(f"buffer_store_dword v38, v39, {sr(sW)}, s98 offen", "stamp"); e("s_mov_b64 exec, -1")
A.wait("clr"); e("s_barrier")
e(f"s_getreg_b32 s{sXcc}, hwreg(HW_REG_XCC_ID, 0, 4)")
e(f"s_lshr_b32 s{sT0}, s{sXcc}, 2"); e(f"s_lshl_b32 s{sT1}, s{sG}, 2"); e(f"s_add_u32 s{sT0}, s{sT0}, s{sT1}")
e(f"s_and_b32 s{sT1}, s{sXcc}, 3"); e(f"s_lshl_b32 s{sT1}, s{sT1}, 3"); e(f"s_lshl_b32 s{sT3}, 1, s{sT1}")
e(f"s_lshl_b32 s96, 32, s{sT1}"); e(f"s_mov_b32 s{sXcc}, s{sT0}")
e(f"s_cmp_lg_u32 s{sWV}, 0"); e("s_cbranch_scc1 NOATOM")
e(f"s_lshl_b32 s{sT0}, s{sT0}, 2"); e(f"v_mov_b32 v36, s{sT0}"); e(f"v_mov_b32 v37, s{sT3}")
setexec(1); e("global_atomic_add v36, v37, s[64:65] sc1"); setexec(FULL)
lab("NOATOM")
for q in range(4): e(f"v_mov_b32 v{36+q}, 0")
e("v_min_u32 v25, 191, v0"); e(f"v_lshlrev_b32 v25, 4, v25"); e(f"v_add_u32 v25, {ACC}, v25"); e("ds_write_b128 v25, v[36:39]")
e(f"v_mov_b32 v{vL}, v24")
e(f"s_mul_i32 s{sT0}, s{sWV}, {SCRW}")
for r in range(3):
    e(f"v_add_u32 v25, {64*r}, v{vL}"); e("v_mul_u32_u24 v26, 171, v25"); e("v_lshrrev_b32 v26, 12, v26")
    e("v_mul_u32_u24 v27, 24, v26"); e("v_sub_u32 v27, v25, v27"); e("v_lshlrev_b32 v27, 4, v27")
    e(f"v_mul_u32_u24 v25, {RS}, v26"); e(f"v_add3_u32 v{vWr+r}, v25, v27, s{sT0}")
    e(f"v_mul_u32_u24 v25, 12288, v26"); e(f"v_add_u32 v{F+r}, v25, v27")
assert all((c * 171) >> 12 == c // 24 for c in range(192))
e(f"s_mul_i32 s{sT1}, s{sS}, {80*12288}"); e(f"s_add_u32 s{sT2}, s{sT2}, s{sT1}")
e(f"s_mul_i32 s{sT1}, s{sWV}, {8*12288}"); e(f"s_add_u32 s{sT2}, s{sT2}, s{sT1}")
e(f"s_mul_i32 s{sT1}, s{sWV}, 3072"); e(f"s_add_u32 s{sT1}, s{sT1}, {WQ}")
for gi in range(3):
    if gi == 2: e(f"s_cmp_ge_u32 s{sWV}, 2"); e("s_cbranch_scc1 NOWQ3")
    for r in range(3):
        e(f"s_add_u32 m0, s{sT1}, {gi*4*3072 + r*1024}")
        A.vmem(f"buffer_load_dwordx4 v{F+r}, {sr(sWQ)}, s{sT2} offen {NTW} lds", "wq", counted=(gi < 2))
    if gi < 2: e(f"s_add_u32 s{sT2}, s{sT2}, {32*12288}")
lab("NOWQ3")
e(f"v_and_b32 v25, 15, v{vL}"); e(f"v_lshrrev_b32 v26, 4, v{vL}")
e(f"v_bfe_u32 v27, v{vL}, 2, 2"); e(f"v_and_b32 v28, 3, v{vL}")
e("v_cmp_eq_u32 vcc, 12, v25"); e("v_mov_b32 v36, 0x3f803f80"); e(f"v_cndmask_b32 v70, 0, v36, vcc")
for q in range(1, 10): e(f"v_mov_b32 v{70+q}, v70")
for q in range(10): e(f"v_mov_b32 v{SPARE+q}, v70")
e(f"s_mul_i32 s{sT1}, s{sS}, 160")
e(f"v_lshlrev_b32 v36, 4, v26"); e(f"v_lshlrev_b32 v37, 3, v26")
setexec(0x0100010001000100)
A.vmem(f"buffer_load_dwordx4 {vr(SPARE)}, v36, {sr(sX)}, s{sT1} offen", "x")
A.vmem(f"buffer_load_dwordx4 {vr(SPARE+4)}, v36, {sr(sX)}, s{sT1} offen offset:64", "x")
A.vmem(f"buffer_load_dwordx2 {vr(SPARE+8,2)}, v37, {sr(sX)}, s{sT1} offen offset:128", "x")
setexec(FULL)
e(f"s_lshl_b32 s{sT2}, s{sJ}, 6"); e(f"v_lshlrev_b32 v38, 2, v25")
A.vmem(f"buffer_load_dword v{vXR}, v38, {sr(sX)}, s{sT2} offen", "x")
Kld(2)
e(f"v_mul_u32_u24 v29, {RS}, v25"); e(f"v_lshl_add_u32 v29, v26, 4, v29"); e(f"v_add_u32 v{vKrd}, s{sT0}, v29")
e(f"v_lshrrev_b32 v29, 2, v{vL}"); e(f"v_mul_u32_u24 v29, {RS}, v29"); e(f"v_lshl_add_u32 v29, v28, 3, v29"); e(f"v_add_u32 v{vVrd}, s{sT0}, v29")
e(f"s_mul_i32 s{sT2}, s{sWV}, 96"); e(f"s_add_u32 s{sT2}, s{sT2}, {WQ}")
e("v_lshl_add_u32 v29, v26, 3, v27"); e("v_mul_u32_u24 v29, 384, v29"); e("v_lshl_add_u32 v29, v28, 3, v29"); e(f"v_add_u32 v{vTq1}, s{sT2}, v29")
e("v_lshl_add_u32 v29, v26, 2, v27"); e("v_mul_u32_u24 v29, 384, v29"); e("v_lshl_add_u32 v29, v28, 3, v29"); e(f"v_add_u32 v{vTq2}, s{sT2}, v29")
def rowbase(dst, m, og, ol, ob, tmp):
    e(f"v_mul_u32_u24 v{dst}, 1280, v{m}"); e(f"v_add_u32 v{dst}, {og}, v{dst}")
    e(f"s_mul_i32 s{sT3}, s{sG}, {GB}"); e(f"s_add_u32 s{sT3}, s{sT3}, {ol}"); e(f"v_mov_b32 v{tmp}, s{sT3}")
    e(f"v_cmp_eq_u32 vcc, s{sG}, v{m}"); e(f"v_cndmask_b32 v{dst}, v{dst}, v{tmp}, vcc")
    if ob is not None:
        e(f"v_add_u32 v{tmp}, {ob-ol}, v{tmp}"); e(f"v_cmp_le_u32 vcc, 8, v{m}"); e(f"v_cndmask_b32 v{dst}, v{dst}, v{tmp}, vcc")
rowbase(29, 25, oFG, oFL, oBB, 30)
e(f"v_add_u32 v29, s{sT1}, v29")
e(f"v_lshl_add_u32 v{vAq}, v26, 4, v29"); e(f"v_lshl_add_u32 v{vAq16}, v26, 3, v29")
e(f"s_lshl_b32 s{sT1}, s{sJ}, 10"); e(f"s_lshl_b32 s{sT2}, s{sWV}, 8"); e(f"s_add_u32 s{sT1}, s{sT1}, s{sT2}")
e(f"v_lshl_add_u32 v{vQst}, v{vL}, 2, s{sT1}")
e(f"s_lshl_b32 s{sT1}, s{sHH}, 13"); e(f"s_add_u32 s{sT1}, s{sT1}, s{sT2}")
e(f"v_lshlrev_b32 v29, 10, v26"); e(f"v_lshl_add_u32 v29, v25, 4, v29"); e(f"v_add_u32 v{vQld}, s{sT1}, v29")
e(f"s_mul_i32 s{sT1}, s{sWV}, 96"); e(f"s_add_u32 s{sT1}, s{sT1}, {QB}")
e("v_lshl_add_u32 v29, v25, 2, v26"); e(f"v_lshl_add_u32 v29, v29, 1, s{sT1}"); e(f"v_mov_b32 v30, {QB+384}")
e("v_cmp_le_u32 vcc, 12, v25"); e(f"v_cndmask_b32 v{vQBw}, v29, v30, vcc")
e(f"v_lshlrev_b32 v29, 4, v26"); e(f"v_add_u32 v{vQBr}, {QB}, v29")
e(f"s_lshl_b32 s{sT1}, s{sHH}, 8"); e(f"s_add_u32 s{sT1}, s{sT1}, {oML}"); e(f"v_and_b32 v29, 31, v{vL}"); e(f"v_lshl_add_u32 v{vML}, v29, 3, s{sT1}")
e(f"v_lshlrev_b32 v29, 2, v{vL}"); e(f"v_add_u32 v{vAcc}, {ACC}, v29")
for t in range(8):
    m = 0x01010101 << t
    e(f"s_mov_b32 s{sMq+2*t}, {m:#x}"); e(f"s_mov_b32 s{sMq+2*t+1}, {m:#x}")
for t in range(10):
    m = 0x00010001 << t
    e(f"s_mov_b32 s{sMf+2*t}, {m:#x}"); e(f"s_mov_b32 s{sMf+2*t+1}, {m:#x}")

def Krel(t):
    A.wait(f"K{t}")
    for i in range(6): e(f"ds_write_b128 v{vWr+i%3}, {ar(24*t+4*i)} offset:{(i//3)*8*RS}")
    for ks in range(6): e(f"ds_read_b128 {ar(24*t+4*ks)}, v{vKrd} offset:{64*ks}")
def Vrel(t):
    A.wait(f"V{t}")
    f, b = vblock(t + 1)
    for i in range(6): e(f"ds_write_b128 v{vWr+i%3}, {rg(f, b+4*i, 4)} offset:{(i//3)*8*RS}")
    f, b = vblock(t & ~1)
    for dt in range(12): e(f"ds_read_b64_tr_b16 {rg(f, b+4*dt+2*(t&1), 2)}, v{vVrd} offset:{32*dt}")
def wq_frags():
    for t in range(3):
        b = F + 10 * t
        for kk in range(2):
            for h in range(2): e(f"ds_read_b64_tr_b16 {vr(b+4*kk+2*h,2)}, v{vTq1} offset:{(32*kk+4*h)*384+32*t}")
        e(f"ds_read_b64_tr_b16 {vr(b+8,2)}, v{vTq2} offset:{64*384+32*t}")
def qstage(a, soff, tag=None):
    for kk in range(3):
        for t in range(4):
            n = 4 if kk < 2 else 2
            bb = vr(F + 10 * t + 4 * kk, n) if t < 3 else vr(a + 4 * kk, n)
            c = "0" if kk == 0 else vr(T + 4 * t)
            e(f"v_mfma_f32_16x16x{32 if kk<2 else 16}_bf16 {vr(T+4*t)}, {vr(a+4*kk,n)}, {bb}, {c}")
    for t in range(4): e(f"v_add_f32 v{T+4*t}, v{T+4*t}, v{T+4*t+1}"); e(f"v_add_f32 v{T+4*t+2}, v{T+4*t+2}, v{T+4*t+3}")
    for t in range(4): e(f"v_add_f32 v{T+4*t}, v{T+4*t}, v{T+4*t+2}")
    xreduce(T, T + 4, T + 8, T + 12)
    lstore(f"buffer_store_dword v{T}, v{vQst}, {sr(sW)}, {soff} offen", tag)
def xreduce(r0, r1, r2, r3):
    e(f"v_permlane32_swap_b32 v{r0}, v{r2}"); e(f"v_permlane32_swap_b32 v{r1}, v{r3}")
    e(f"v_add_f32 v{r0}, v{r0}, v{r2}"); e(f"v_add_f32 v{r1}, v{r1}, v{r3}")
    e(f"v_permlane16_swap_b32 v{r0}, v{r1}"); e(f"v_add_f32 v{r0}, v{r0}, v{r1}")
def qloads(b, s0, s1): return [f"buffer_load_dwordx4 {vr(b)}, v{vQld}, {sr(sW)}, {s0} offen sc1", f"buffer_load_dwordx4 {vr(b+4)}, v{vQld}, {sr(sW)}, {s1} offen sc1"]
def qsum(b):
    for q in range(4): e(f"v_add_f32 v{b+q}, v{b+q}, v{b+4+q}")
    xreduce(b, b + 1, b + 2, b + 3)
def rowred(op, v, tmp, steps):
    for sft in steps: e(f"v_{op}_f32_dpp v{v}, v{v}, v{v} row_ror:{sft} row_mask:0xf bank_mask:0xf")
def xrow(op, v, tmp, both=True):
    if both:
        e(f"v_mov_b32 v{tmp}, v{v}"); e(f"v_permlane32_swap_b32 v{v}, v{tmp}"); e(f"v_{op}_f32 v{v}, v{v}, v{tmp}")
    e(f"v_mov_b32 v{tmp}, v{v}"); e(f"v_permlane16_swap_b32 v{v}, v{tmp}"); e(f"v_{op}_f32 v{v}, v{v}, v{tmp}")
X = 80; P = 32; DQ = 64; PA = T
def q_finish(b):
    e(f"v_readlane_b32 s{sT0}, v{b}, 15")
    e(f"v_fma_f32 v{b+1}, -s{sT0}, v{vCS}, v{b}")
    e(f"v_cvt_pk_bf16_f32 v{b+1}, v{b+1}, v{b+1}")
    e(f"ds_write_b16 v{vQBw}, v{b+1}")
    e(f"s_mov_b32 vcc_lo, 0x70007000"); e(f"s_mov_b32 vcc_hi, 0x70007000"); e(f"v_cndmask_b32 v{b+2}, 0, v{b}, vcc")
    e("s_waitcnt lgkmcnt(0)"); e("s_barrier")
    for ks in range(6): e(f"ds_read_b128 {vr(F+4*ks)}, v{vQBr} offset:{64*ks}")
    rowred("add", b + 2, None, (8, 4, 2, 1)); xrow("add", b + 2, b + 3)
    e(f"v_mov_b32 v{b+3}, s{sT0}"); e(f"v_subrev_f32 v{b+3}, 0x44200000, v{b+3}")
    e(f"v_sub_f32 v{b+2}, v{b+2}, v{b+3}")
    e(f"v_mul_f32 v{b+3}, 0x3acccccd, v{b+3}"); e(f"v_mul_f32 v{b+2}, 0x3acccccd, v{b+2}")
    e(f"v_fma_f32 v{b+2}, -v{b+3}, v{b+3}, v{b+2}"); e(f"v_max_f32 v{b+2}, 0, v{b+2}"); e(f"v_add_f32 v{b+2}, 0x3727c5ac, v{b+2}")
    e(f"v_rsq_f32 v{b+2}, v{b+2}"); e(f"v_mul_f32 v{vSC}, 0x3dd53b94, v{b+2}")
    e("s_waitcnt lgkmcnt(0)")
def qk_softmax():
    def dreg(t): return X if t == 0 else DQ + 4 * (t % 4)
    def sel(t):
        return [f"v_cndmask_b32 v{X+q}, v{X+q}, v{dreg(t)+q}, {sp(sMq+2*t)}" for q in range(4)]
    pend = []
    for t in range(8):
        if t >= 3: pend = sel(t - 2)
        for ks in range(6):
            c = "0" if ks == 0 else vr(dreg(t))
            e(f"v_mfma_f32_16x16x32_bf16 {vr(dreg(t))}, {ar(24*t+4*ks)}, {vr(F+4*ks)}, {c}")
            if pend and ks >= 2: e(pend.pop(0))
    for s_ in sel(6) + sel(7): e(s_)
    e(f"v_max3_f32 v{vM}, v{X}, v{X+1}, v{X+2}"); e(f"v_max_f32 v{vM}, v{vM}, v{X+3}")
    rowred("max", vM, None, (4, 2, 1)); xrow("max", vM, DQ)
    e(f"v_mul_f32 v{vM}, v{vM}, v{vSC}")
    for q in range(4): e(f"v_fma_f32 v{X+q}, v{X+q}, v{vSC}, -v{vM}")
    for q in range(4): e(f"v_exp_f32 v{X+q}, v{X+q}")
    e(f"v_cvt_pk_bf16_f32 v{P}, v{X}, v{X+1}"); e(f"v_cvt_pk_bf16_f32 v{P+1}, v{X+2}, v{X+3}")
def lsum_publish(tag=None):
    e(f"v_add_f32 v37, v{X}, v{X+1}"); e(f"v_add_f32 v38, v{X+2}, v{X+3}"); e(f"v_add_f32 v37, v37, v38")
    rowred("add", 37, None, (4, 2, 1)); xrow("add", 37, 38)
    e(f"v_mov_b32 v36, v{vM}")
    e(f"s_lshl_b32 s{sT0}, s{sS}, 5"); e(f"s_lshl_b32 s{sT1}, s{sWV}, 3"); e(f"s_add_u32 s{sT0}, s{sT0}, s{sT1}"); e(f"s_add_u32 s{sT0}, s{sT0}, s{sLG}")
    setexec(1)
    lstore(f"buffer_store_dwordx2 v[36:37], v{vML}, {sr(sW)}, s{sT0} offen", tag)
    setexec(FULL)
PP = 32
def pv_bcast(u, dst):
    return [f"v_mov_b32_dpp v{dst+q}, v{PP+(q&1)} row_newbcast:{2*u+(q>>1)} row_mask:0xf bank_mask:0xf" for q in range(4)]
def pv_step(u, fill=()):
    fill = list(fill)
    f, b = vblock(2 * u); a = PA + 4 * (u & 1)
    for dt in range(12):
        c = "0" if u == 0 else vr(F + 4 * dt)
        e(f"v_mfma_f32_16x16x32_bf16 {vr(F+4*dt)}, {vr(a)}, {rg(f, b+4*dt, 4)}, {c}")
        if fill: e(fill.pop(0))
    for x in fill: e(x)

Krel(0); Kld(3); Krel(1); Kld(4); Krel(2)
e("s_waitcnt lgkmcnt(0)"); e("s_barrier")
stamp(1)
wq_frags()
Kld(5); Krel(3)
e(f"v_lshlrev_b32 v98, 2, v{vL}")
rdy = ["global_load_dword v99, v98, s[64:65] sc1"]
A.vmem(rdy[0], "rdy")
Kld(6); Krel(4); Kld(7); Krel(5)
def rdycheck():
    e("v_sad_u8 v100, v99, 0, 0")
    e("v_add_u32_dpp v100, v100, v100 quad_perm:[1,0,3,2] row_mask:0xf bank_mask:0xf")
    e("v_add_u32_dpp v100, v100, v100 quad_perm:[2,3,0,1] row_mask:0xf bank_mask:0xf")
    e("v_cmp_ne_u32 vcc, 32, v100"); e("s_mov_b32 vcc_hi, 0"); e("s_cmp_eq_u64 vcc, 0")
A.wait("rdy"); rdycheck(); e("s_cbranch_scc0 RDYLOOP"); lab("RDYOK")
def t_():
    lab("RDYLOOP"); e(f"s_mov_b32 s{sCnt}, 0"); lab("RDYL2"); e("s_sleep 8"); e(rdy[0]); e("s_waitcnt vmcnt(0)"); rdycheck(); e("s_cbranch_scc1 RDYOK")
    e(f"s_add_u32 s{sCnt}, s{sCnt}, 1"); e(f"s_cmp_lt_u32 s{sCnt}, {LIMIT}"); e("s_cbranch_scc1 RDYL2"); e("s_branch RDYOK")
tail.append(t_)
e(f"v_readlane_b32 s{sT0}, v99, s{sXcc}"); e(f"s_cmp_eq_u32 s{sT0}, s96"); e(f"s_cselect_b32 s{sFast}, {0 if FORCESLOW else 1}, 0")
stamp(2)
A.vmem(f"buffer_load_dwordx4 a[240:243], v{vC1}, {sr(sW)}, 0 offen sc1", "pre")
A.vmem(f"buffer_load_dwordx4 a[240:243], v{vC2}, {sr(sW)}, s{sClr} offen sc1", "pre")
e("s_waitcnt lgkmcnt(0)")
e(f"s_add_u32 s{sT2}, s{sLG}, {2*LS}")
qstage(70, f"s{sT2}", "qst"); qstage(SPARE, f"s{sLG}", "qst")
def pack_store16(d, instr_fn):
    for q in (1, 2, 3): e(f"v_mov_b32_dpp v{d+q}, v{d} quad_perm:[{q},{q},{q},{q}] row_mask:0xf bank_mask:0xf")
    setexec(0x1111); instr_fn(); setexec(FULL)
e(f"s_cmp_lg_u32 s{sWV}, 1"); e("s_cbranch_scc1 NOBASE0"); e(f"s_cmp_ge_u32 s{sJ}, 20"); e("s_cbranch_scc1 NOBASE0")
e(f"v_mov_b32 v28, v{vXR}"); e(f"s_lshl_b32 s{sT0}, s{sJ}, 6"); e(f"s_add_u32 s{sT0}, s{sT0}, s{sLG}"); e(f"s_add_u32 s{sT0}, s{sT0}, {oBA}"); e(f"v_lshlrev_b32 v27, 2, v{vL}")
pack_store16(28, lambda: lstore(f"buffer_store_dwordx4 v[28:31], v27, {sr(sW)}, s{sT0} offen"))
lab("NOBASE0")
e(f"v_and_b32 v{vXR+1}, 0xffff0000, v{vXR}"); e(f"v_lshlrev_b32 v{vXR}, 16, v{vXR}")
def role_dma():
    e(f"s_cmp_ge_u32 s{sJ}, 20"); e("s_cbranch_scc1 DMAF")
    e(f"v_lshrrev_b32 v24, 2, v{vL}"); e("v_mul_u32_u24 v24, 1280, v24"); e(f"v_and_b32 v25, 3, v{vL}"); e("v_lshl_add_u32 v24, v25, 4, v24")
    e(f"s_lshl_b32 s{sT0}, s{sWV}, 3"); e(f"s_add_u32 s{sT0}, s{sT0}, s{sG}"); e(f"s_mul_i32 s{sT0}, s{sT0}, {192*1280}"); e(f"s_lshl_b32 s{sT1}, s{sJ}, 6"); e(f"s_add_u32 s{sT0}, s{sT0}, s{sT1}")
    e(f"s_mul_i32 s{sT1}, s{sWV}, 12288"); e(f"s_add_u32 m0, s{sT1}, {WO}")
    for n in range(12):
        A.vmem(f"buffer_load_dwordx4 v24, {sr(sRA)}, s{sT0} offen {NTW} lds", "role")
        if n < 11: e(f"s_add_u32 m0, m0, 1024"); e(f"s_add_u32 s{sT0}, s{sT0}, {16*1280}")
    lab("DMAX")
    def t():
        lab("DMAF")
        e(f"v_lshrrev_b32 v24, 1, v{vL}"); e("v_mul_u32_u24 v24, 3072, v24"); e(f"v_and_b32 v25, 1, v{vL}"); e("v_lshl_add_u32 v24, v25, 4, v24")
        e(f"s_mul_i32 s{sT2}, s{sG}, 12"); e(f"s_add_u32 s{sT2}, s{sT2}, s{sJ}"); e(f"s_sub_u32 s{sT2}, s{sT2}, 20")
        e(f"s_mul_i32 s{sT0}, s{sWV}, {160*3072}"); e(f"s_lshl_b32 s{sT1}, s{sT2}, 5"); e(f"s_add_u32 s{sT0}, s{sT0}, s{sT1}")
        e(f"s_mul_i32 s{sT1}, s{sWV}, 5120")
        for n in range(5):
            e(f"s_add_u32 m0, s{sT1}, {W1+1024*n}"); e(f"buffer_load_dwordx4 v24, {sr(sRA)}, s{sT0} offen {NTW} lds")
            e(f"s_add_u32 m0, s{sT1}, {W3+1024*n}"); e(f"buffer_load_dwordx4 v24, {sr(sRB)}, s{sT0} offen {NTW} lds")
            if n < 4: e(f"s_add_u32 s{sT0}, s{sT0}, {32*3072}")
        e(f"s_mul_i32 s{sT0}, s{sT2}, 20480"); e(f"s_add_u32 s{sT0}, s{sT0}, s{sT1}")
        for n in range(5):
            e(f"s_add_u32 m0, s{sT1}, {W2+1024*n}"); e(f"buffer_load_dwordx4 v{vLin}, {sr(sRC)}, s{sT0} offen {NTW} lds")
            if n < 4: e(f"s_add_u32 s{sT0}, s{sT0}, 1024")
        e("s_branch DMAX")
    tail.append(t)
role_dma()
stamp(3)
Krel(6); Krel(7); Vld(0)
def cs_soffs():
    e(f"s_add_u32 s{sT0}, s{sLG}, {2*LS}"); e(f"s_add_u32 s{sT1}, s{sLG}, {2*LS+4096}"); e(f"s_add_u32 s{sT2}, s{sLG}, 4096")
cs_soffs()
gl = qloads(64, f"s{sT0}", f"s{sT1}") + qloads(72, f"s{sLG}", f"s{sT2}")
for l in gl: A.vmem(l, "qg")
Vld(1); Vld(2); Vrel(0)
late_check("qg", gl, range(64, 80), 24, pre=cs_soffs)
qsum(64); qsum(72)
e(f"v_mul_f32 v{vCS}, 0x3acccccd, v64")
for q in range(1): e(f"v_mov_b32 v{T}, v72")
stamp(4)
q_finish(T)
qk_softmax()
lsum_publish("ml")
stamp(5)
Vld(3); Vrel(1); Vld(4)
for x in pv_bcast(0, PA): e(x)
e("s_waitcnt lgkmcnt(0)"); pv_step(0)
Vrel(2); Vld(5); Vrel(3); Vld(6)
for x in pv_bcast(1, PA + 4): e(x)
e("s_waitcnt lgkmcnt(0)"); pv_step(1)
Vrel(4); Vld(7)
mll = [f"buffer_load_dwordx2 v[34:35], v{vML}, {sr(sW)}, s{sLG} offen sc1"]
Vrel(5)
for x in pv_bcast(2, PA): e(x)
e("s_waitcnt lgkmcnt(0)"); pv_step(2)
Vrel(6)
for x in pv_bcast(3, PA + 4): e(x)
Vrel(7)
e(mll[0])
e("s_waitcnt lgkmcnt(0)"); pv_step(3)
A.drained()
e("s_branch ATT_END")

lab("LOOP")
wq_frags()
e(f"v_and_b32 v25, 15, v{vL}"); e("v_cmp_eq_u32 vcc, 12, v25"); e("v_mov_b32 v36, 0x3f803f80"); e(f"v_cndmask_b32 v70, 0, v36, vcc")
for q in range(1, 10): e(f"v_mov_b32 v{70+q}, v70")
setexec(ROWS9)
poll([f"buffer_load_dwordx4 v[70:73], v{vAq}, {sr(sW)}, 0 offen sc1", f"buffer_load_dwordx4 v[74:77], v{vAq}, {sr(sW)}, 0 offen offset:64 sc1",
      f"buffer_load_dwordx2 v[78:79], v{vAq16}, {sr(sW)}, 0 offen offset:128 sc1"], [70, 74, 78], 24)
setexec(FULL)
e("s_waitcnt lgkmcnt(0)")
stamp(1)
qstage(70, f"s{sLG}")
stamp(2)
e(f"s_add_u32 s{sT2}, s{sLG}, 4096")
poll(qloads(T, f"s{sLG}", f"s{sT2}"), range(T, T + 8), T + 8)
stamp(3)
qsum(T)
q_finish(T)
stamp(4)
qk_softmax()
lsum_publish()
stamp(5)
for x in pv_bcast(0, PA): e(x)
pv_step(0, pv_bcast(1, PA + 4)); pv_step(1, pv_bcast(2, PA)); pv_step(2, pv_bcast(3, PA + 4))
e(mll[0])
pv_step(3)
lab("ATT_END")
A.vm = ["ml"]
late_check("ml", mll, [34, 35], 36)
stamp(6)
e("v_mov_b32 v36, v34"); rowred("max", 36, None, (8, 4, 2, 1)); xrow("max", 36, 37, both=False)
e("v_sub_f32 v34, v34, v36"); e(f"v_sub_f32 v36, v{vM}, v36"); e("v_exp_f32 v34, v34"); e("v_exp_f32 v36, v36"); e("v_mul_f32 v34, v34, v35")
for q in range(3):
    for r in (1, 2, 3):
        e(f"v_mov_b32_dpp v{F+16*q}, v{F+16*q+4*r} quad_perm:[0,1,2,3] row_mask:{1<<r:#x} bank_mask:0xf")
rowred("add", 34, None, (8, 4, 2, 1)); xrow("add", 34, 37, both=False)
e("v_rcp_f32 v34, v34"); e("v_mul_f32 v34, v34, v36")
for q in range(3): e(f"v_mul_f32 v{F+16*q}, v{F+16*q}, v34")
for q in range(3): e(f"ds_add_f32 v{vAcc}, v{F+16*q} offset:{OACC+256*q}")
e(f"v_lshlrev_b32 v24, 5, v{vL}"); e(f"s_cmp_eq_u32 s{sLay}, 0"); e(f"s_cselect_b32 s{sT2}, 0, {ACCS}"); e(f"s_add_u32 s{sT2}, s{sT2}, {ACC}"); e(f"v_add_u32 v24, s{sT2}, v24")
e(f"s_mul_i32 s{sT0}, s{sJ}, 384"); e(f"s_add_u32 s{sT0}, s{sT0}, s{sLG}"); e(f"s_add_u32 s{sT0}, s{sT0}, {oO}")
e("s_waitcnt lgkmcnt(0)"); e("s_barrier")
e(f"s_cmp_lg_u32 s{sWV}, 0"); e("s_cbranch_scc1 NOOPUB")
setexec((1 << 24) - 1)
e(f"ds_read_b128 v[28:31], v24 offset:{OACC}"); e(f"ds_read_b128 v[32:35], v24 offset:{OACC+16}"); e("s_waitcnt lgkmcnt(0)")
for q in range(4): e(f"v_cvt_pk_bf16_f32 v{28+q}, v{28+2*q}, v{29+2*q}")
lstore(f"buffer_store_dwordx4 v[28:31], v{vLin}, {sr(sW)}, s{sT0} offen")
setexec(FULL)
lab("NOOPUB")
stamp(7)
e(f"v_and_b32 v25, 15, v{vL}"); e(f"v_lshrrev_b32 v26, 4, v{vL}"); e(f"v_bfe_u32 v27, v{vL}, 2, 2"); e(f"v_and_b32 v36, 3, v{vL}")
e(f"s_cmp_ge_u32 s{sJ}, 20"); e("s_cbranch_scc1 ROLEF")
def owner(og, ol, soff, fin):
    rowbase(37, 26, og, ol, None, 38); e("v_add_u32 v39, 4, v26"); rowbase(38, 39, og, ol, None, 28)
    e(f"s_lshl_b32 s{sT0}, s{sJ}, 6"); e(f"s_add_u32 s{sT0}, s{sT0}, {soff}")
    e("v_lshl_add_u32 v37, v25, 2, v37"); e("v_lshl_add_u32 v38, v25, 2, v38")
    poll([f"buffer_load_dword v28, v37, {sr(sW)}, s{sT0} offen sc1", f"buffer_load_dword v29, v38, {sr(sW)}, s{sT0} offen sc1"], [28, 29], 30)
    e("v_lshlrev_b32 v30, 16, v28"); e("v_and_b32 v28, 0xffff0000, v28"); e("v_lshlrev_b32 v31, 16, v29"); e("v_and_b32 v29, 0xffff0000, v29")
    e("v_add_f32 v30, v30, v31"); e("v_add_f32 v28, v28, v29")
    xrow("add", 30, 31); xrow("add", 28, 29)
    e(f"v_add_f32 v{vXR}, v{vXR}, v30"); e(f"v_add_f32 v{vXR+1}, v{vXR+1}, v28")
    e(f"v_cvt_pk_bf16_f32 v28, v{vXR}, v{vXR+1}")
def base_store(ob):
    e(f"s_lshl_b32 s{sT0}, s{sJ}, 6"); e(f"s_add_u32 s{sT0}, s{sT0}, s{sLG}"); e(f"s_add_u32 s{sT0}, s{sT0}, {ob}"); e(f"v_lshlrev_b32 v37, 2, v{vL}")
    pack_store16(28, lambda: lstore(f"buffer_store_dwordx4 v[28:31], v37, {sr(sW)}, s{sT0} offen"))
e(f"s_mul_i32 s{sT0}, s{sWV}, 12288"); e(f"s_add_u32 s{sT0}, s{sT0}, {WO}")
e("v_lshl_add_u32 v37, v26, 3, v27"); e("v_lshlrev_b32 v37, 6, v37"); e("v_lshl_add_u32 v37, v36, 3, v37"); e(f"v_add_u32 v37, s{sT0}, v37")
for t in range(2):
    for kk in range(6):
        for h in range(2): e(f"ds_read_b64_tr_b16 {vr(F+24*t+4*kk+2*h,2)}, v37 offset:{(32*kk+4*h)*64+32*t}")
e(f"s_cmp_lg_u32 s{sWV}, 1"); e("s_cbranch_scc1 NOOWN0"); e(f"s_cmp_eq_u32 s{sLay}, 0"); e("s_cbranch_scc1 NOOWN0")
owner(oFG, oFL, "0", False); base_store(oBA)
lab("NOOWN0")
e("v_and_b32 v37, 7, v25"); e("v_mul_u32_u24 v37, 384, v37"); e("v_lshl_add_u32 v37, v26, 4, v37")
e(f"s_mul_i32 s{sT0}, s{sWV}, 3072"); e(f"s_add_u32 s{sT0}, s{sT0}, s{sLG}"); e(f"s_add_u32 s{sT0}, s{sT0}, {oO}")
poll([f"buffer_load_dwordx4 {vr(SPARE+4*kk)}, v37, {sr(sW)}, s{sT0} offen offset:{64*kk} sc1" for kk in range(6)], [SPARE + 4 * kk for kk in range(6)], 38)
e("s_waitcnt lgkmcnt(0)")
stamp(8)
for kk in range(6):
    for t in range(2):
        c = "0" if kk == 0 else vr(28 + 4 * t)
        e(f"v_mfma_f32_16x16x32_bf16 {vr(28+4*t)}, {vr(SPARE+4*kk)}, {vr(F+24*t+4*kk)}, {c}")
e(f"s_lshl_b32 s{sT0}, s{sJ}, 6"); e(f"s_mul_i32 s{sT1}, s{sG}, 1280"); e(f"s_add_u32 s{sT1}, s{sT1}, s{sT0}"); e(f"s_add_u32 s{sT1}, s{sT1}, s{sLay}")
e(f"s_add_u32 s{sT0}, s{sT0}, s{sLG}")
e(f"s_add_u32 s96, s{sT1}, {oYG}"); e(f"s_add_u32 s97, s{sT0}, {oYL}")
for t in range(2): e(f"v_add_f32 v{28+4*t}, v{28+4*t}, v{29+4*t}"); e(f"v_add_f32 v{30+4*t}, v{30+4*t}, v{31+4*t}")
for t in range(2): e(f"v_add_f32 v{28+4*t}, v{28+4*t}, v{30+4*t}")
e("v_permlane16_swap_b32 v28, v32"); e("v_add_f32 v28, v28, v32")
e(f"ds_add_f32 v{vAcc}, v28 offset:{YACC}")
e("s_waitcnt lgkmcnt(0)"); e("s_barrier")
e(f"s_cmp_lg_u32 s{sWV}, 0"); e("s_cbranch_scc1 WNOT0")
setexec(15)
e(f"ds_read_b128 v[28:31], v24 offset:{YACC}"); e(f"ds_read_b128 v[32:35], v24 offset:{YACC+16}"); e("s_waitcnt lgkmcnt(0)")
for q in range(4): e(f"v_cvt_pk_bf16_f32 v{28+q}, v{28+2*q}, v{29+2*q}")
e(f"buffer_store_dwordx4 v[28:31], v{vLin}, {sr(sW)}, s96 offen sc1")
lstore(f"buffer_store_dwordx4 v[28:31], v{vLin}, {sr(sW)}, s97 offen")
setexec(FULL)
stamp(9)
e(f"v_lshrrev_b32 v37, 5, v{vL}"); e("v_mul_u32_u24 v37, 2560, v37"); e(f"v_and_b32 v38, 31, v{vL}"); e("v_lshl_add_u32 v37, v38, 2, v37")
for k in range(1, 6): e(f"v_add_u32 v{F+k}, {5120*k}, v37")
e(f"s_lshl_b32 s{sT2}, s{sJ}, 7"); e(f"s_add_u32 s{sT2}, s{sT2}, s{sLG}"); e(f"s_add_u32 s{sT2}, s{sT2}, {oFP}")
e(f"s_add_u32 s96, s{sT1}, {oFG}"); e(f"s_add_u32 s97, s{sT0}, {oFL}"); e(f"v_lshlrev_b32 v39, 1, v{vL}")
poll([f"buffer_load_dword v{28+k}, v{37 if k==0 else F+k}, {sr(sW)}, s{sT2} offen sc1" for k in range(6)], range(28, 34), 38)
stamp(10)
e("v_add_f32 v28, v28, v29"); e("v_add_f32 v30, v30, v31"); e("v_add_f32 v32, v32, v33"); e("v_add_f32 v28, v28, v30"); e("v_add_f32 v28, v28, v32")
e("v_mov_b32 v29, v28"); e("v_permlane32_swap_b32 v28, v29"); e("v_add_f32 v28, v28, v29")
e("v_mov_b32_dpp v29, v28 row_shl:1 row_mask:0xf bank_mask:0xf"); e("v_cvt_pk_bf16_f32 v28, v28, v29")
for q in (1, 2, 3): e(f"v_mov_b32_dpp v{28+q}, v28 row_shl:{2*q} row_mask:0xf bank_mask:0xf")
setexec(0x01010101)
e(f"buffer_store_dwordx4 v[28:31], v39, {sr(sW)}, s96 offen sc1")
lstore(f"buffer_store_dwordx4 v[28:31], v39, {sr(sW)}, s97 offen")
setexec(FULL)
stamp(11)
e("s_branch NEXT")
lab("WNOT0")
e(f"s_cmp_lg_u32 s{sWV}, 1"); e("s_cbranch_scc1 NEXT")
owner(oYG, oYL, f"s{sLay}", False)
e(f"s_cmp_lg_u32 s{sLay}, 0"); e("s_cbranch_scc1 FINAL")
base_store(oBB)
e("s_branch NEXT")
lab("FINAL")
e(f"s_cmp_lg_u32 s{sG}, 0"); e("s_cbranch_scc1 DONE")
owner(oFG, oFL, f"s{sLay}", True)
e(f"s_lshl_b32 s{sT0}, s{sJ}, 6"); e(f"v_lshlrev_b32 v37, 2, v{vL}")
setexec(0xffff)
e(f"buffer_store_dword v28, v37, {sr(sO)}, s{sT0} offen")
setexec(FULL)
stamp(12)
e("s_endpgm")
lab("ROLEF")
FA = SPARE
e(f"s_mul_i32 s{sT0}, s{sWV}, 5120"); e(f"s_add_u32 s{sT0}, s{sT0}, {W1}")
e("v_lshl_add_u32 v37, v26, 3, v27"); e("v_lshlrev_b32 v37, 5, v37"); e("v_lshl_add_u32 v37, v36, 3, v37"); e(f"v_add_u32 v37, s{sT0}, v37")
for t in range(2):
    for kk in range(5):
        for h in range(2): e(f"ds_read_b64_tr_b16 {vr(F+20*t+4*kk+2*h,2)}, v37 offset:{(32*kk+4*h)*32+20480*t}")
e(f"s_mul_i32 s{sT0}, s{sWV}, 320"); e(f"s_add_u32 s{sT0}, s{sT0}, {W2}")
e(f"v_lshrrev_b32 v80, 2, v{vL}"); e("v_mul_u32_u24 v80, 1280, v80"); e("v_lshl_add_u32 v80, v36, 3, v80"); e(f"v_add_u32 v80, s{sT0}, v80")
e(f"s_add_u32 s{sT2}, s{sT2}, {FACC}")
e(f"v_lshl_add_u32 v81, v25, 2, s{sT2}"); e("v_add_u32 v38, 128, v81"); e("v_cmp_eq_u32 vcc, 3, v26"); e("v_cndmask_b32 v81, v81, v38, vcc")
e(f"v_mov_b32 v82, s{sT2}"); e("v_add_u32 v82, 256, v82"); e("v_add_u32 v38, 4, v82"); e("v_cndmask_b32 v82, v82, v38, vcc")
e(f"v_lshl_add_u32 v83, v26, 4, s{sT2}"); e(f"v_mov_b32 v85, s{sT2}")
e("v_lshlrev_b32 v84, 6, v25"); e("v_lshl_add_u32 v84, v26, 4, v84")
e("v_cmp_eq_u32 vcc, 12, v25"); e("v_mov_b32 v38, 0x3f803f80"); e(f"v_cndmask_b32 v{FA}, 0, v38, vcc")
for q in range(1, 20): e(f"v_mov_b32 v{FA+q}, v{FA}")
rowbase(37, 25, oYG, oYL, oBA, 38); e("v_lshl_add_u32 v37, v26, 4, v37")
e(f"s_mul_i32 s{sT0}, s{sWV}, 320"); e(f"s_add_u32 s{sT0}, s{sT0}, s{sLay}")
e(f"s_sub_u32 s{sT1}, s{sJ}, 20"); e(f"s_mul_i32 s{sT1}, s{sT1}, 2560"); e(f"s_mul_i32 s{sT3}, s{sWV}, 640"); e(f"s_add_u32 s{sT1}, s{sT1}, s{sT3}")
e(f"s_add_u32 s{sT1}, s{sT1}, s{sLG}"); e(f"s_add_u32 s{sT1}, s{sT1}, {oFP}")
setexec(ROWS9)
poll([f"buffer_load_dwordx4 {vr(FA+4*kk)}, v37, {sr(sW)}, s{sT0} offen offset:{64*kk} sc1" for kk in range(5)], [FA + 4 * kk for kk in range(5)], 38)
setexec(FULL)
e("s_waitcnt lgkmcnt(0)")
stamp(8)
for kk in range(5):
    for t in range(3):
        c = "0" if kk == 0 else vr(T + 4 * t)
        bb = vr(F + 20 * t + 4 * kk) if t < 2 else vr(FA + 4 * kk)
        e(f"v_mfma_f32_16x16x32_bf16 {vr(T+4*t)}, {vr(FA+4*kk)}, {bb}, {c}")
for t in range(3): e(f"v_add_f32 v{T+4*t}, v{T+4*t}, v{T+4*t+1}"); e(f"v_add_f32 v{T+4*t+2}, v{T+4*t+2}, v{T+4*t+3}")
for t in range(3): e(f"v_add_f32 v{T+4*t}, v{T+4*t}, v{T+4*t+2}")
e(f"ds_add_f32 v81, v{T}"); e(f"ds_add_f32 v81, v{T+4} offset:64")
setexec(ROWS9); e(f"ds_add_f32 v82, v{T+8}"); setexec(FULL)
e("s_waitcnt lgkmcnt(0)"); e("s_barrier")
e("ds_read_b64 v[36:37], v85 offset:256")
for q in range(4): e(f"ds_read_b128 {vr(FA+4*q)}, v83 offset:{64*q}")
for t in range(10): e(f"ds_read_b64_tr_b16 {vr(F+2*t,2)}, v80 offset:{32*t}")
e("s_waitcnt lgkmcnt(14)")
e("v_mul_f32 v37, 0x3acccccd, v37"); e("v_mul_f32 v36, 0x3acccccd, v36")
e("v_fma_f32 v36, -v37, v37, v36"); e("v_max_f32 v36, 0, v36"); e("v_add_f32 v36, 0x3727c5ac, v36"); e("v_rsq_f32 v36, v36")
e("s_waitcnt lgkmcnt(10)")
for q in range(8): e(f"v_fma_f32 v{FA+q}, -v37, v{FA+8+q}, v{FA+q}")
e("v_mul_f32 v38, 0xbfb8aa3b, v36"); e("v_mul_f32 v39, v36, v36")
for q in range(4): e(f"v_mul_f32 v{FA+8+q}, v38, v{FA+q}")
for q in range(4): e(f"v_exp_f32 v{FA+8+q}, v{FA+8+q}")
for q in range(4): e(f"v_mul_f32 v{FA+q}, v{FA+q}, v{FA+4+q}")
for q in range(4): e(f"v_add_f32 v{FA+8+q}, 1.0, v{FA+8+q}")
for q in range(4): e(f"v_rcp_f32 v{FA+8+q}, v{FA+8+q}")
for q in range(4): e(f"v_mul_f32 v{FA+q}, v{FA+q}, v39")
for q in range(4): e(f"v_mul_f32 v{FA+q}, v{FA+q}, v{FA+8+q}")
e(f"v_cvt_pk_bf16_f32 v{FA}, v{FA}, v{FA+1}"); e(f"v_cvt_pk_bf16_f32 v{FA+1}, v{FA+2}, v{FA+3}")
HB = 60
def hm(t): return [f"v_cndmask_b32 v{HB+2*t+q}, 0, v{FA+q}, {sp(sMf+2*t)}" for q in range(2)]
for x in hm(0) + hm(1): e(x)
e("s_waitcnt lgkmcnt(0)")
for t in range(10):
    c = "0" if t == 0 else vr(T)
    e(f"v_mfma_f32_16x16x16_bf16 {vr(T)}, {vr(F+2*t,2)}, {vr(HB+2*t,2)}, {c}")
    if t + 2 < 10:
        for x in hm(t + 2): e(x)
setexec(0x03FF03FF03FF03FF)
lstore(f"buffer_store_dwordx4 {vr(T)}, v84, {sr(sW)}, s{sT1} offen")
setexec(FULL)
stamp(9)
lab("NEXT")
e(f"s_cmp_lg_u32 s{sLay}, 0"); e("s_cbranch_scc1 DONE")
e(f"s_mov_b32 s{sLay}, {LS}"); e(f"s_add_u32 s{sLG}, s{sLG}, {LS}"); e(f"v_add_u32 v{vAcc}, {ACCS}, v{vAcc}")
e("s_branch LOOP")
lab("DONE")
e("s_endpgm")
i = 0
while i < len(tail): tail[i](); i += 1
lab("CODE_END")
e("s_endpgm")

body = A.pad()
hdr = [f"; @launch grid=(256,1,1) block=(256,1,1) lds={LDSSZ}", '.amdgcn_target "amdgcn-amd-amdhsa--gfx950"', ".text",
       f".globl {NAME}_kernel", ".p2align 8", f".type {NAME}_kernel,@function", f"{NAME}_kernel:"]
ftr = ['.section .rodata,"a"', ".p2align 6", f".amdhsa_kernel {NAME}_kernel", "  .amdhsa_next_free_vgpr 512", "  .amdhsa_next_free_sgpr 102",
       "  .amdhsa_accum_offset 256", "  .amdhsa_group_segment_fixed_size 0", "  .amdhsa_kernarg_size 96", "  .amdhsa_user_sgpr_count 2",
       "  .amdhsa_user_sgpr_kernarg_segment_ptr 1", "  .amdhsa_system_sgpr_workgroup_id_x 1", ".end_amdhsa_kernel"]
src = "\n".join(hdr + body + ftr) + "\n"
import re
for m in re.finditer(r"buffer_\S+ .*offset:(\d+)", src): assert int(m.group(1)) < 4096, m.group(0)
for m in re.finditer(r"ds_\S+ .*offset:(\d+)", src): assert int(m.group(1)) < 65536, m.group(0)
open(OUT, "w").write(src)
```

```python
import os, sys
sys.path.insert(0, os.path.dirname(os.path.abspath(__file__)))
from asmlib import Asm
NAME = "interleave_layers__sliding_block_cached__glu_gated_swiglu__decode"
OPT = dict(a.split("=") for a in sys.argv[2:])
OUT = sys.argv[1] if len(sys.argv) > 1 else f"/code/{NAME}.s"
STAMP = int(OPT.get("stamp", 0))
NT = OPT.get("nt", "nt").replace("x", "")
NTW = OPT.get("ntw", "nt").replace("x", "")
FORCESLOW = int(OPT.get("slow", 0))
SPIN = int(OPT.get("spin", 0))
A = Asm(); e = A.e; lab = A.lab
tail = []

RS = 416; SCRW = 16 * RS
SCR = 0; WQ = 4 * SCRW; ROLE = WQ + 30720
WO = ROLE; W1 = ROLE; W3 = ROLE + 20480; W2 = ROLE + 40960
MISC = ROLE + 61440; QB = MISC; ACC = MISC + 512; ACCS = 1536
OACC = 0; YACC = 768; FACC = 1024
LDSSZ = ACC + 2 * ACCS
GB = 81920; oQ = 0; oO = 32768; oML = 45056; oFP = 46080; oYL = 76800; oFL = 78080; oBA = 79360; oBB = 80640
GOFF = 8 * GB; oYG = GOFF; oFG = GOFF + 10240; LS = 0xA8000
OOB = 0x7FFFFFF0
sK, sV, sW, sWQ, sRA, sRB, sRC, sX, sO = 8, 12, 16, 20, 24, 28, 32, 36, 40
sG, sJ, sHH, sS, sWV, sKV, sLay, sFast, sCnt = 68, 69, 70, 71, 72, 73, 74, 75, 76
sT0, sT1, sT2 = 77, 78, 79
sLG = 3
sClr = 4
sXcc = 5
sTL = 6
sT3 = 7
sMq = 80
sMf = 44
def sr(b): return f"s[{b}:{b+3}]"
def sp(b): return f"s[{b}:{b+1}]"
def vr(b, n=4): return f"v[{b}:{b+n-1}]" if n > 1 else f"v{b}"
def ar(b, n=4): return f"a[{b}:{b+n-1}]"
def srd(d, lo, nbytes):
    e(f"s_mov_b32 s{d}, s{lo}"); e(f"s_and_b32 s{d+1}, s{lo+1}, 0xffff")
    e(f"s_mov_b32 s{d+2}, {nbytes}"); e(f"s_mov_b32 s{d+3}, 0x20000")
def setexec(mask):
    lo, hi = mask & 0xffffffff, mask >> 32
    if mask == (1 << 64) - 1: e("s_mov_b64 exec, -1")
    elif hi == 0 and lo <= 64: e(f"s_mov_b64 exec, {lo}")
    else: e(f"s_mov_b32 exec_lo, {lo:#x}"); e(f"s_mov_b32 exec_hi, {hi:#x}")
FULL = (1 << 64) - 1
ROWS9 = 0x01FF01FF01FF01FF
vL, vLin, vWr, vKrd, vVrd, vCS, vAq, vAq16, vQst, vQld, vQBw, vQBr, vML, vAcc, vTq1, vTq2, vSC, vM = 0, 1, 2, 5, 6, 7, 8, 9, 10, 11, 12, 13, 14, 15, 16, 17, 18, 19
vC1, vC2, vXR = 20, 21, 22
T = 24
F = 40
SPARE = 88
def vblock(b):
    if b < 2: return ("a", 192 + 24 * b)
    if b == 8: return ("v", SPARE)
    return ("v", 112 + 24 * (b - 2))
def rg(f, b, n): return f"{f}[{b}:{b+n-1}]"

uid = [0]
def nid(): uid[0] += 1; return uid[0]
stamps = [0]
def stamp(i):
    if not STAMP: return
    e("s_memrealtime s[100:101]"); e("v_accvgpr_write_b32 a254, v38"); e("v_accvgpr_write_b32 a255, v39")
    e(f"s_lshl_b32 s98, s2, 2"); e(f"s_add_u32 s98, s98, s{sWV}"); e("s_lshl_b32 s98, s98, 7")
    e(f"s_cmp_eq_u32 s{sLay}, 0"); e(f"s_cselect_b32 s99, 0, 64"); e(f"s_add_u32 s99, s99, {4*i}"); e("s_add_u32 s98, s98, s99"); e("s_add_u32 s98, s98, 0x40000000")
    e("s_waitcnt lgkmcnt(0)"); e("v_mov_b32 v38, s100"); e("v_mov_b32 v39, 0")
    e("s_mov_b64 s[100:101], exec"); e("s_mov_b64 exec, 1")
    A.vmem(f"buffer_store_dword v38, v39, {sr(sW)}, s98 offen", "stamp")
    e("s_mov_b64 exec, s[100:101]"); e("s_nop 1"); e("v_accvgpr_read_b32 v38, a254"); e("v_accvgpr_read_b32 v39, a255")
def lstore(instr, counted=None):
    k = nid()
    e(f"s_cmp_eq_u32 s{sFast}, 1"); e(f"s_cbranch_scc0 SLOW{k}")
    if counted: A.vmem(instr, counted)
    else: e(instr)
    lab(f"BACK{k}")
    def t(): lab(f"SLOW{k}"); e(instr + " sc1"); e(f"s_branch BACK{k}")
    tail.append(t)
def check(regs_, tmp):
    r = list(regs_)
    if len(r) == 1: e(f"v_cmp_eq_u32 vcc, -1, v{r[0]}"); return
    cur = r.pop(0)
    while r:
        if len(r) >= 2: e(f"v_max3_u32 v{tmp}, v{cur}, v{r[0]}, v{r[1]}"); r = r[2:]
        else: e(f"v_max_u32 v{tmp}, v{cur}, v{r[0]}"); r = r[1:]
        cur = tmp
    e(f"v_cmp_eq_u32 vcc, -1, v{tmp}")
LIMIT = 0x8000
def poll(loads, regs_, tmp):
    k = nid()
    e(f"s_mov_b32 s{sCnt}, 0")
    lab(f"POLL{k}")
    for l in loads: e(l)
    e(f"s_add_u32 s{sCnt}, s{sCnt}, 1"); e(f"s_cmp_ge_u32 s{sCnt}, {LIMIT}")
    e("s_waitcnt vmcnt(0)")
    check(regs_, tmp)
    e(f"s_cbranch_scc1 POLLX{k}")
    e(f"s_cbranch_vccnz POLL{k}")
    lab(f"POLLX{k}")
    A.drained()
def late_check(tag, loads, regs_, tmp, pre=None, post=None):
    k = nid()
    A.wait(tag)
    check(regs_, tmp)
    e(f"s_cbranch_vccnz RETRY{k}")
    lab(f"OK{k}")
    def t():
        lab(f"RETRY{k}")
        if pre: pre()
        save = A.vm; poll(loads, regs_, tmp); A.vm = save
        if post: post()
        e(f"s_branch OK{k}")
    tail.append(t)

e("s_cmp_ge_u32 s2, 256"); e("s_cbranch_scc1 CODE_END")
e("s_load_dwordx16 s[44:59], s[0:1], 0"); e("s_load_dwordx8 s[60:67], s[0:1], 64")
if STAMP or SPIN: e("s_memrealtime s[96:97]")
e("v_lshrrev_b32 v2, 6, v0"); e("v_and_b32 v24, 63, v0"); e(f"v_readfirstlane_b32 s{sWV}, v2")
e(f"s_and_b32 s{sG}, s2, 7"); e(f"s_lshr_b32 s{sJ}, s2, 3"); e(f"s_lshr_b32 s{sHH}, s{sJ}, 3"); e(f"s_and_b32 s{sS}, s{sJ}, 7")
e(f"v_lshlrev_b32 v{vLin}, 4, v24")
e(f"s_lshl_b32 s{sT0}, s{sHH}, 3"); e(f"s_add_u32 s{sT0}, s{sT0}, s{sG}")
e(f"s_mul_i32 s{sKV}, s{sT0}, 12582912"); e(f"s_lshl_b32 s{sT1}, s{sS}, 2"); e(f"s_add_u32 s{sT1}, s{sT1}, s{sWV}")
e(f"s_mul_i32 s{sT1}, s{sT1}, 6144"); e(f"s_add_u32 s{sKV}, s{sKV}, s{sT1}"); e(f"s_add_u32 s{sKV}, s{sKV}, 11010048")
e(f"s_mul_i32 s{sT2}, s{sT0}, 384")
e(f"s_mov_b32 s{sLay}, 0"); e(f"s_mul_i32 s{sLG}, s{sG}, {GB}"); e(f"s_mov_b32 s{sFast}, 0")
e(f"v_mov_b32 v32, -1"); e(f"v_mov_b32 v33, -1"); e(f"v_mov_b32 v34, -1"); e(f"v_mov_b32 v35, -1")
e(f"s_mul_i32 s{sT0}, s{sJ}, 2560"); e(f"s_add_u32 s{sT0}, s{sT0}, s{sLG}")
e(f"v_lshl_add_u32 v{vC1}, v0, 4, s{sT0}"); e("v_cmp_le_u32 vcc, 160, v0"); e(f"v_add_u32 v25, {LS-2560}, v{vC1}"); e(f"v_cndmask_b32 v{vC1}, v{vC1}, v25, vcc")
e(f"s_add_u32 s{sT0}, s{sT0}, {LS+16*96}")
e(f"s_lshl_b32 s{sT1}, s{sJ}, 10"); e(f"s_add_u32 s{sT1}, s{sT1}, s{sLG}"); e(f"s_add_u32 s{sT1}, s{sT1}, {2*LS}")
e(f"s_cmp_eq_u32 s{sWV}, 0"); e(f"s_cselect_b32 s{sClr}, s{sT0}, s{sT1}")
e(f"s_mul_i32 s{sT0}, s2, 80"); e(f"s_add_u32 s{sT0}, s{sT0}, {GOFF}")
e(f"s_cmp_ge_u32 s{sWV}, 2"); e(f"s_cselect_b32 s{sClr}, s{sT0}, s{sClr}")
e(f"v_add_u32 v25, {LS-80}, v{vLin}"); e("v_cmp_le_u32 vcc, 133, v0"); e(f"v_cndmask_b32 v{vC2}, v{vLin}, v25, vcc")
e(f"v_mov_b32 v25, {OOB-0x10000000}"); e("v_cmp_le_u32 vcc, 138, v0"); e(f"v_cndmask_b32 v{vC2}, v{vC2}, v25, vcc")
e("s_waitcnt lgkmcnt(0)")
srd(sK, 46, 402653184)
if SPIN: e("v_mov_b32 v38, s96"); e("v_accvgpr_write_b32 a253, v38")
def tile_loads(srdn, t, f, base, tag):
    for i in range(6):
        if i == 0: e(f"s_add_u32 s{sTL}, s{sKV}, {t*196608}")
        if i == 4: e(f"s_add_u32 s{sTL}, s{sTL}, 4096")
        A.vmem(f"buffer_load_dwordx4 {rg(f, base+4*i, 4)}, v{vLin}, {sr(srdn)}, s{sTL} offen offset:{1024*(i%4)} {NT}", tag)
def Kld(t): tile_loads(sK, t, "a", 24 * t, f"K{t}")
def Vld(t): f, b = vblock(t + 1); tile_loads(sV, t, f, b, f"V{t}")
Kld(0)
srd(sW, 66, 1610612736)
A.vmem(f"buffer_store_dwordx4 v[32:35], v{vC1}, {sr(sW)}, 0 offen sc1", "clr")
A.vmem(f"buffer_store_dwordx4 v[32:35], v{vC2}, {sr(sW)}, s{sClr} offen sc1", "clr")
e("s_getpc_b64 s[100:101]"); lab("PCREF")
e(f"s_sub_u32 s100, s100, PCREF-{NAME}_kernel"); e("s_subb_u32 s101, s101, 0")
e("v_lshlrev_b32 v25, 4, v0")
NPF = int(OPT.get("npf", 4))
for i in range(NPF):
    e(f"v_min_u32 v26, CODE_END-{NAME}_kernel-16, v25")
    A.vmem(f"global_load_dwordx4 a[240:243], v26, s[100:101]", "pf")
    if i + 1 < NPF: e("v_add_u32 v25, 4096, v25")
Kld(1)
srd(sV, 48, 402653184); srd(sWQ, 50, 7864320); srd(sX, 44, 1280); srd(sO, 62, 1280)
srd(sRB, 58, 1966080); srd(sRC, 60, 1966080)
e(f"s_cmp_lt_u32 s{sJ}, 20"); e(f"s_cselect_b32 s{sRA}, s52, s56"); e(f"s_cselect_b32 s{sRA+1}, s53, s57"); e(f"s_cselect_b32 s{sRA+2}, s{sWQ+2}, s{sRB+2}")
e(f"s_and_b32 s{sRA+1}, s{sRA+1}, 0xffff"); e(f"s_mov_b32 s{sRA+3}, 0x20000")
if STAMP:
    e(f"s_lshl_b32 s98, s2, 2"); e(f"s_add_u32 s98, s98, s{sWV}"); e("s_lshl_b32 s98, s98, 7"); e("s_add_u32 s98, s98, 0x40000000")
    e("v_mov_b32 v38, s96"); e("v_mov_b32 v39, 0"); e("s_mov_b64 exec, 1")
    A.vmem(f"buffer_store_dword v38, v39, {sr(sW)}, s98 offen", "stamp"); e("s_mov_b64 exec, -1")
A.wait("clr"); e("s_barrier")
e(f"s_getreg_b32 s{sXcc}, hwreg(HW_REG_XCC_ID, 0, 4)")
e(f"s_lshr_b32 s{sT0}, s{sXcc}, 2"); e(f"s_lshl_b32 s{sT1}, s{sG}, 2"); e(f"s_add_u32 s{sT0}, s{sT0}, s{sT1}")
e(f"s_and_b32 s{sT1}, s{sXcc}, 3"); e(f"s_lshl_b32 s{sT1}, s{sT1}, 3"); e(f"s_lshl_b32 s{sT3}, 1, s{sT1}")
e(f"s_lshl_b32 s96, 32, s{sT1}"); e(f"s_mov_b32 s{sXcc}, s{sT0}")
e(f"s_cmp_lg_u32 s{sWV}, 0"); e("s_cbranch_scc1 NOATOM")
e(f"s_lshl_b32 s{sT0}, s{sT0}, 2"); e(f"v_mov_b32 v36, s{sT0}"); e(f"v_mov_b32 v37, s{sT3}")
setexec(1); e("global_atomic_add v36, v37, s[64:65] sc1"); setexec(FULL)
lab("NOATOM")
for q in range(4): e(f"v_mov_b32 v{36+q}, 0")
e("v_min_u32 v25, 191, v0"); e(f"v_lshlrev_b32 v25, 4, v25"); e(f"v_add_u32 v25, {ACC}, v25"); e("ds_write_b128 v25, v[36:39]")
e(f"v_mov_b32 v{vL}, v24")
e(f"s_mul_i32 s{sT0}, s{sWV}, {SCRW}")
for r in range(3):
    e(f"v_add_u32 v25, {64*r}, v{vL}"); e("v_mul_u32_u24 v26, 171, v25"); e("v_lshrrev_b32 v26, 12, v26")
    e("v_mul_u32_u24 v27, 24, v26"); e("v_sub_u32 v27, v25, v27"); e("v_lshlrev_b32 v27, 4, v27")
    e(f"v_mul_u32_u24 v25, {RS}, v26"); e(f"v_add3_u32 v{vWr+r}, v25, v27, s{sT0}")
    e(f"v_mul_u32_u24 v25, 12288, v26"); e(f"v_add_u32 v{F+r}, v25, v27")
assert all((c * 171) >> 12 == c // 24 for c in range(192))
e(f"s_mul_i32 s{sT1}, s{sS}, {80*12288}"); e(f"s_add_u32 s{sT2}, s{sT2}, s{sT1}")
e(f"s_mul_i32 s{sT1}, s{sWV}, {8*12288}"); e(f"s_add_u32 s{sT2}, s{sT2}, s{sT1}")
e(f"s_mul_i32 s{sT1}, s{sWV}, 3072"); e(f"s_add_u32 s{sT1}, s{sT1}, {WQ}")
for gi in range(3):
    if gi == 2: e(f"s_cmp_ge_u32 s{sWV}, 2"); e("s_cbranch_scc1 NOWQ3")
    for r in range(3):
        e(f"s_add_u32 m0, s{sT1}, {gi*4*3072 + r*1024}")
        A.vmem(f"buffer_load_dwordx4 v{F+r}, {sr(sWQ)}, s{sT2} offen {NTW} lds", "wq", counted=(gi < 2))
    if gi < 2: e(f"s_add_u32 s{sT2}, s{sT2}, {32*12288}")
lab("NOWQ3")
e(f"v_and_b32 v25, 15, v{vL}"); e(f"v_lshrrev_b32 v26, 4, v{vL}")
e(f"v_bfe_u32 v27, v{vL}, 2, 2"); e(f"v_and_b32 v28, 3, v{vL}")
e("v_cmp_eq_u32 vcc, 12, v25"); e("v_mov_b32 v36, 0x3f803f80"); e(f"v_cndmask_b32 v70, 0, v36, vcc")
for q in range(1, 10): e(f"v_mov_b32 v{70+q}, v70")
for q in range(10): e(f"v_mov_b32 v{SPARE+q}, v70")
e(f"s_mul_i32 s{sT1}, s{sS}, 160")
e(f"v_lshlrev_b32 v36, 4, v26"); e(f"v_lshlrev_b32 v37, 3, v26")
setexec(0x0100010001000100)
A.vmem(f"buffer_load_dwordx4 {vr(SPARE)}, v36, {sr(sX)}, s{sT1} offen", "x")
A.vmem(f"buffer_load_dwordx4 {vr(SPARE+4)}, v36, {sr(sX)}, s{sT1} offen offset:64", "x")
A.vmem(f"buffer_load_dwordx2 {vr(SPARE+8,2)}, v37, {sr(sX)}, s{sT1} offen offset:128", "x")
setexec(FULL)
e(f"s_lshl_b32 s{sT2}, s{sJ}, 6"); e(f"v_lshlrev_b32 v38, 2, v25")
A.vmem(f"buffer_load_dword v{vXR}, v38, {sr(sX)}, s{sT2} offen", "x")
Kld(2)
e(f"v_mul_u32_u24 v29, {RS}, v25"); e(f"v_lshl_add_u32 v29, v26, 4, v29"); e(f"v_add_u32 v{vKrd}, s{sT0}, v29")
e(f"v_lshrrev_b32 v29, 2, v{vL}"); e(f"v_mul_u32_u24 v29, {RS}, v29"); e(f"v_lshl_add_u32 v29, v28, 3, v29"); e(f"v_add_u32 v{vVrd}, s{sT0}, v29")
e(f"s_mul_i32 s{sT2}, s{sWV}, 96"); e(f"s_add_u32 s{sT2}, s{sT2}, {WQ}")
e("v_lshl_add_u32 v29, v26, 3, v27"); e("v_mul_u32_u24 v29, 384, v29"); e("v_lshl_add_u32 v29, v28, 3, v29"); e(f"v_add_u32 v{vTq1}, s{sT2}, v29")
e("v_lshl_add_u32 v29, v26, 2, v27"); e("v_mul_u32_u24 v29, 384, v29"); e("v_lshl_add_u32 v29, v28, 3, v29"); e(f"v_add_u32 v{vTq2}, s{sT2}, v29")
def rowbase(dst, m, og, ol, ob, tmp):
    e(f"v_mul_u32_u24 v{dst}, 1280, v{m}"); e(f"v_add_u32 v{dst}, {og}, v{dst}")
    e(f"s_mul_i32 s{sT3}, s{sG}, {GB}"); e(f"s_add_u32 s{sT3}, s{sT3}, {ol}"); e(f"v_mov_b32 v{tmp}, s{sT3}")
    e(f"v_cmp_eq_u32 vcc, s{sG}, v{m}"); e(f"v_cndmask_b32 v{dst}, v{dst}, v{tmp}, vcc")
    if ob is not None:
        e(f"v_add_u32 v{tmp}, {ob-ol}, v{tmp}"); e(f"v_cmp_le_u32 vcc, 8, v{m}"); e(f"v_cndmask_b32 v{dst}, v{dst}, v{tmp}, vcc")
rowbase(29, 25, oFG, oFL, oBB, 30)
e(f"v_add_u32 v29, s{sT1}, v29")
e(f"v_lshl_add_u32 v{vAq}, v26, 4, v29"); e(f"v_lshl_add_u32 v{vAq16}, v26, 3, v29")
e(f"s_lshl_b32 s{sT1}, s{sJ}, 10"); e(f"s_lshl_b32 s{sT2}, s{sWV}, 8"); e(f"s_add_u32 s{sT1}, s{sT1}, s{sT2}")
e(f"v_lshl_add_u32 v{vQst}, v{vL}, 2, s{sT1}")
e(f"s_lshl_b32 s{sT1}, s{sHH}, 13"); e(f"s_add_u32 s{sT1}, s{sT1}, s{sT2}")
e(f"v_lshlrev_b32 v29, 10, v26"); e(f"v_lshl_add_u32 v29, v25, 4, v29"); e(f"v_add_u32 v{vQld}, s{sT1}, v29")
e(f"s_mul_i32 s{sT1}, s{sWV}, 96"); e(f"s_add_u32 s{sT1}, s{sT1}, {QB}")
e("v_lshl_add_u32 v29, v25, 2, v26"); e(f"v_lshl_add_u32 v29, v29, 1, s{sT1}"); e(f"v_mov_b32 v30, {QB+384}")
e("v_cmp_le_u32 vcc, 12, v25"); e(f"v_cndmask_b32 v{vQBw}, v29, v30, vcc")
e(f"v_lshlrev_b32 v29, 4, v26"); e(f"v_add_u32 v{vQBr}, {QB}, v29")
e(f"s_lshl_b32 s{sT1}, s{sHH}, 8"); e(f"s_add_u32 s{sT1}, s{sT1}, {oML}"); e(f"v_and_b32 v29, 31, v{vL}"); e(f"v_lshl_add_u32 v{vML}, v29, 3, s{sT1}")
e(f"v_lshlrev_b32 v29, 2, v{vL}"); e(f"v_add_u32 v{vAcc}, {ACC}, v29")
for t in range(8):
    m = 0x01010101 << t
    e(f"s_mov_b32 s{sMq+2*t}, {m:#x}"); e(f"s_mov_b32 s{sMq+2*t+1}, {m:#x}")
for t in range(10):
    m = 0x00010001 << t
    e(f"s_mov_b32 s{sMf+2*t}, {m:#x}"); e(f"s_mov_b32 s{sMf+2*t+1}, {m:#x}")

def Krel(t):
    A.wait(f"K{t}")
    for i in range(6): e(f"ds_write_b128 v{vWr+i%3}, {ar(24*t+4*i)} offset:{(i//3)*8*RS}")
    for ks in range(6): e(f"ds_read_b128 {ar(24*t+4*ks)}, v{vKrd} offset:{64*ks}")
def Vrel(t):
    A.wait(f"V{t}")
    f, b = vblock(t + 1)
    for i in range(6): e(f"ds_write_b128 v{vWr+i%3}, {rg(f, b+4*i, 4)} offset:{(i//3)*8*RS}")
    f, b = vblock(t & ~1)
    for dt in range(12): e(f"ds_read_b64_tr_b16 {rg(f, b+4*dt+2*(t&1), 2)}, v{vVrd} offset:{32*dt}")
def wq_frags():
    for t in range(3):
        b = F + 10 * t
        for kk in range(2):
            for h in range(2): e(f"ds_read_b64_tr_b16 {vr(b+4*kk+2*h,2)}, v{vTq1} offset:{(32*kk+4*h)*384+32*t}")
        e(f"ds_read_b64_tr_b16 {vr(b+8,2)}, v{vTq2} offset:{64*384+32*t}")
def qstage(a, soff, tag=None):
    for kk in range(3):
        for t in range(4):
            n = 4 if kk < 2 else 2
            bb = vr(F + 10 * t + 4 * kk, n) if t < 3 else vr(a + 4 * kk, n)
            c = "0" if kk == 0 else vr(T + 4 * t)
            e(f"v_mfma_f32_16x16x{32 if kk<2 else 16}_bf16 {vr(T+4*t)}, {vr(a+4*kk,n)}, {bb}, {c}")
    for t in range(4): e(f"v_add_f32 v{T+4*t}, v{T+4*t}, v{T+4*t+1}"); e(f"v_add_f32 v{T+4*t+2}, v{T+4*t+2}, v{T+4*t+3}")
    for t in range(4): e(f"v_add_f32 v{T+4*t}, v{T+4*t}, v{T+4*t+2}")
    xreduce(T, T + 4, T + 8, T + 12)
    lstore(f"buffer_store_dword v{T}, v{vQst}, {sr(sW)}, {soff} offen", tag)
def xreduce(r0, r1, r2, r3):
    e(f"v_permlane32_swap_b32 v{r0}, v{r2}"); e(f"v_permlane32_swap_b32 v{r1}, v{r3}")
    e(f"v_add_f32 v{r0}, v{r0}, v{r2}"); e(f"v_add_f32 v{r1}, v{r1}, v{r3}")
    e(f"v_permlane16_swap_b32 v{r0}, v{r1}"); e(f"v_add_f32 v{r0}, v{r0}, v{r1}")
def qloads(b, s0, s1): return [f"buffer_load_dwordx4 {vr(b)}, v{vQld}, {sr(sW)}, {s0} offen sc1", f"buffer_load_dwordx4 {vr(b+4)}, v{vQld}, {sr(sW)}, {s1} offen sc1"]
def qsum(b):
    for q in range(4): e(f"v_add_f32 v{b+q}, v{b+q}, v{b+4+q}")
    xreduce(b, b + 1, b + 2, b + 3)
def rowred(op, v, tmp, steps):
    for sft in steps: e(f"v_{op}_f32_dpp v{v}, v{v}, v{v} row_ror:{sft} row_mask:0xf bank_mask:0xf")
def xrow(op, v, tmp, both=True):
    if both:
        e(f"v_mov_b32 v{tmp}, v{v}"); e(f"v_permlane32_swap_b32 v{v}, v{tmp}"); e(f"v_{op}_f32 v{v}, v{v}, v{tmp}")
    e(f"v_mov_b32 v{tmp}, v{v}"); e(f"v_permlane16_swap_b32 v{v}, v{tmp}"); e(f"v_{op}_f32 v{v}, v{v}, v{tmp}")
X = 80; P = 32; DQ = 64; PA = T
def q_finish(b):
    e(f"v_readlane_b32 s{sT0}, v{b}, 15")
    e(f"v_fma_f32 v{b+1}, -s{sT0}, v{vCS}, v{b}")
    e(f"v_cvt_pk_bf16_f32 v{b+1}, v{b+1}, v{b+1}")
    e(f"ds_write_b16 v{vQBw}, v{b+1}")
    e(f"s_mov_b32 vcc_lo, 0x70007000"); e(f"s_mov_b32 vcc_hi, 0x70007000"); e(f"v_cndmask_b32 v{b+2}, 0, v{b}, vcc")
    e("s_waitcnt lgkmcnt(0)"); e("s_barrier")
    for ks in range(6): e(f"ds_read_b128 {vr(F+4*ks)}, v{vQBr} offset:{64*ks}")
    rowred("add", b + 2, None, (8, 4, 2, 1)); xrow("add", b + 2, b + 3)
    e(f"v_mov_b32 v{b+3}, s{sT0}"); e(f"v_subrev_f32 v{b+3}, 0x44200000, v{b+3}")
    e(f"v_sub_f32 v{b+2}, v{b+2}, v{b+3}")
    e(f"v_mul_f32 v{b+3}, 0x3acccccd, v{b+3}"); e(f"v_mul_f32 v{b+2}, 0x3acccccd, v{b+2}")
    e(f"v_fma_f32 v{b+2}, -v{b+3}, v{b+3}, v{b+2}"); e(f"v_max_f32 v{b+2}, 0, v{b+2}"); e(f"v_add_f32 v{b+2}, 0x3727c5ac, v{b+2}")
    e(f"v_rsq_f32 v{b+2}, v{b+2}"); e(f"v_mul_f32 v{vSC}, 0x3dd53b94, v{b+2}")
    e("s_waitcnt lgkmcnt(0)")
def qk_softmax():
    def dreg(t): return X if t == 0 else DQ + 4 * (t % 4)
    def sel(t):
        return [f"v_cndmask_b32 v{X+q}, v{X+q}, v{dreg(t)+q}, {sp(sMq+2*t)}" for q in range(4)]
    pend = []
    for t in range(8):
        if t >= 3: pend = sel(t - 2)
        for ks in range(6):
            c = "0" if ks == 0 else vr(dreg(t))
            e(f"v_mfma_f32_16x16x32_bf16 {vr(dreg(t))}, {ar(24*t+4*ks)}, {vr(F+4*ks)}, {c}")
            if pend and ks >= 2: e(pend.pop(0))
    for s_ in sel(6) + sel(7): e(s_)
    e(f"v_max3_f32 v{vM}, v{X}, v{X+1}, v{X+2}"); e(f"v_max_f32 v{vM}, v{vM}, v{X+3}")
    rowred("max", vM, None, (4, 2, 1)); xrow("max", vM, DQ)
    e(f"v_mul_f32 v{vM}, v{vM}, v{vSC}")
    for q in range(4): e(f"v_fma_f32 v{X+q}, v{X+q}, v{vSC}, -v{vM}")
    for q in range(4): e(f"v_exp_f32 v{X+q}, v{X+q}")
    e(f"v_cvt_pk_bf16_f32 v{P}, v{X}, v{X+1}"); e(f"v_cvt_pk_bf16_f32 v{P+1}, v{X+2}, v{X+3}")
def lsum_publish(tag=None):
    e(f"v_add_f32 v37, v{X}, v{X+1}"); e(f"v_add_f32 v38, v{X+2}, v{X+3}"); e(f"v_add_f32 v37, v37, v38")
    rowred("add", 37, None, (4, 2, 1)); xrow("add", 37, 38)
    e(f"v_mov_b32 v36, v{vM}")
    e(f"s_lshl_b32 s{sT0}, s{sS}, 5"); e(f"s_lshl_b32 s{sT1}, s{sWV}, 3"); e(f"s_add_u32 s{sT0}, s{sT0}, s{sT1}"); e(f"s_add_u32 s{sT0}, s{sT0}, s{sLG}")
    setexec(1)
    lstore(f"buffer_store_dwordx2 v[36:37], v{vML}, {sr(sW)}, s{sT0} offen", tag)
    setexec(FULL)
PP = 32
def pv_bcast(u, dst):
    return [f"v_mov_b32_dpp v{dst+q}, v{PP+(q&1)} row_newbcast:{2*u+(q>>1)} row_mask:0xf bank_mask:0xf" for q in range(4)]
def pv_step(u, fill=()):
    fill = list(fill)
    f, b = vblock(2 * u); a = PA + 4 * (u & 1)
    for dt in range(12):
        c = "0" if u == 0 else vr(F + 4 * dt)
        e(f"v_mfma_f32_16x16x32_bf16 {vr(F+4*dt)}, {vr(a)}, {rg(f, b+4*dt, 4)}, {c}")
        if fill: e(fill.pop(0))
    for x in fill: e(x)

Krel(0); Kld(3); Krel(1); Kld(4); Krel(2)
e("s_waitcnt lgkmcnt(0)"); e("s_barrier")
stamp(1)
wq_frags()
Kld(5); Krel(3)
e(f"v_lshlrev_b32 v98, 2, v{vL}")
rdy = ["global_load_dword v99, v98, s[64:65] sc1"]
A.vmem(rdy[0], "rdy")
Kld(6); Krel(4); Kld(7); Krel(5)
def rdycheck():
    e("v_sad_u8 v100, v99, 0, 0")
    e("v_add_u32_dpp v100, v100, v100 quad_perm:[1,0,3,2] row_mask:0xf bank_mask:0xf")
    e("v_add_u32_dpp v100, v100, v100 quad_perm:[2,3,0,1] row_mask:0xf bank_mask:0xf")
    e("v_cmp_gt_u32 vcc, 32, v100"); e("s_mov_b32 vcc_hi, 0"); e("s_cmp_eq_u64 vcc, 0")
A.wait("rdy"); rdycheck(); e("s_cbranch_scc0 RDYLOOP"); lab("RDYOK")
def t_():
    lab("RDYLOOP"); e(f"s_mov_b32 s{sCnt}, 0"); lab("RDYL2"); e("s_sleep 8"); e(rdy[0]); e("s_waitcnt vmcnt(0)"); rdycheck(); e("s_cbranch_scc1 RDYOK")
    e(f"s_add_u32 s{sCnt}, s{sCnt}, 1"); e(f"s_cmp_lt_u32 s{sCnt}, {LIMIT}"); e("s_cbranch_scc1 RDYL2"); e("s_branch RDYOK")
tail.append(t_)
e(f"v_readlane_b32 s{sT0}, v99, s{sXcc}"); e(f"s_cmp_eq_u32 s{sT0}, s96"); e(f"s_cselect_b32 s{sFast}, {0 if FORCESLOW else 1}, 0")
stamp(2)
A.vmem(f"buffer_load_dwordx4 a[240:243], v{vC1}, {sr(sW)}, 0 offen sc1", "pre")
A.vmem(f"buffer_load_dwordx4 a[240:243], v{vC2}, {sr(sW)}, s{sClr} offen sc1", "pre")
e("s_waitcnt lgkmcnt(0)")
e(f"s_add_u32 s{sT2}, s{sLG}, {2*LS}")
qstage(70, f"s{sT2}", "qst"); qstage(SPARE, f"s{sLG}", "qst")
def pack_store16(d, instr_fn):
    for q in (1, 2, 3): e(f"v_mov_b32_dpp v{d+q}, v{d} quad_perm:[{q},{q},{q},{q}] row_mask:0xf bank_mask:0xf")
    setexec(0x1111); instr_fn(); setexec(FULL)
e(f"s_cmp_lg_u32 s{sWV}, 1"); e("s_cbranch_scc1 NOBASE0"); e(f"s_cmp_ge_u32 s{sJ}, 20"); e("s_cbranch_scc1 NOBASE0")
e(f"v_mov_b32 v28, v{vXR}"); e(f"s_lshl_b32 s{sT0}, s{sJ}, 6"); e(f"s_add_u32 s{sT0}, s{sT0}, s{sLG}"); e(f"s_add_u32 s{sT0}, s{sT0}, {oBA}"); e(f"v_lshlrev_b32 v27, 2, v{vL}")
pack_store16(28, lambda: lstore(f"buffer_store_dwordx4 v[28:31], v27, {sr(sW)}, s{sT0} offen"))
lab("NOBASE0")
e(f"v_and_b32 v{vXR+1}, 0xffff0000, v{vXR}"); e(f"v_lshlrev_b32 v{vXR}, 16, v{vXR}")
def role_dma():
    e(f"s_cmp_ge_u32 s{sJ}, 20"); e("s_cbranch_scc1 DMAF")
    e(f"v_lshrrev_b32 v24, 2, v{vL}"); e("v_mul_u32_u24 v24, 1280, v24"); e(f"v_and_b32 v25, 3, v{vL}"); e("v_lshl_add_u32 v24, v25, 4, v24")
    e(f"s_lshl_b32 s{sT0}, s{sWV}, 3"); e(f"s_add_u32 s{sT0}, s{sT0}, s{sG}"); e(f"s_mul_i32 s{sT0}, s{sT0}, {192*1280}"); e(f"s_lshl_b32 s{sT1}, s{sJ}, 6"); e(f"s_add_u32 s{sT0}, s{sT0}, s{sT1}")
    e(f"s_mul_i32 s{sT1}, s{sWV}, 12288"); e(f"s_add_u32 m0, s{sT1}, {WO}")
    for n in range(12):
        A.vmem(f"buffer_load_dwordx4 v24, {sr(sRA)}, s{sT0} offen {NTW} lds", "role")
        if n < 11: e(f"s_add_u32 m0, m0, 1024"); e(f"s_add_u32 s{sT0}, s{sT0}, {16*1280}")
    lab("DMAX")
    def t():
        lab("DMAF")
        e(f"v_lshrrev_b32 v24, 1, v{vL}"); e("v_mul_u32_u24 v24, 3072, v24"); e(f"v_and_b32 v25, 1, v{vL}"); e("v_lshl_add_u32 v24, v25, 4, v24")
        e(f"s_mul_i32 s{sT2}, s{sG}, 12"); e(f"s_add_u32 s{sT2}, s{sT2}, s{sJ}"); e(f"s_sub_u32 s{sT2}, s{sT2}, 20")
        e(f"s_mul_i32 s{sT0}, s{sWV}, {160*3072}"); e(f"s_lshl_b32 s{sT1}, s{sT2}, 5"); e(f"s_add_u32 s{sT0}, s{sT0}, s{sT1}")
        e(f"s_mul_i32 s{sT1}, s{sWV}, 5120")
        for n in range(5):
            e(f"s_add_u32 m0, s{sT1}, {W1+1024*n}"); e(f"buffer_load_dwordx4 v24, {sr(sRA)}, s{sT0} offen {NTW} lds")
            e(f"s_add_u32 m0, s{sT1}, {W3+1024*n}"); e(f"buffer_load_dwordx4 v24, {sr(sRB)}, s{sT0} offen {NTW} lds")
            if n < 4: e(f"s_add_u32 s{sT0}, s{sT0}, {32*3072}")
        e(f"s_mul_i32 s{sT0}, s{sT2}, 20480"); e(f"s_add_u32 s{sT0}, s{sT0}, s{sT1}")
        for n in range(5):
            e(f"s_add_u32 m0, s{sT1}, {W2+1024*n}"); e(f"buffer_load_dwordx4 v{vLin}, {sr(sRC)}, s{sT0} offen {NTW} lds")
            if n < 4: e(f"s_add_u32 s{sT0}, s{sT0}, 1024")
        e("s_branch DMAX")
    tail.append(t)
role_dma()
stamp(3)
Krel(6); Krel(7); Vld(0)
def cs_soffs():
    e(f"s_add_u32 s{sT0}, s{sLG}, {2*LS}"); e(f"s_add_u32 s{sT1}, s{sLG}, {2*LS+4096}"); e(f"s_add_u32 s{sT2}, s{sLG}, 4096")
cs_soffs()
gl = qloads(64, f"s{sT0}", f"s{sT1}") + qloads(72, f"s{sLG}", f"s{sT2}")
for l in gl: A.vmem(l, "qg")
Vld(1); Vld(2); Vrel(0)
late_check("qg", gl, range(64, 80), 24, pre=cs_soffs)
qsum(64); qsum(72)
e(f"v_mul_f32 v{vCS}, 0x3acccccd, v64")
for q in range(1): e(f"v_mov_b32 v{T}, v72")
stamp(4)
q_finish(T)
qk_softmax()
lsum_publish("ml")
stamp(5)
Vld(3); Vrel(1); Vld(4)
for x in pv_bcast(0, PA): e(x)
e("s_waitcnt lgkmcnt(0)"); pv_step(0)
Vrel(2); Vld(5); Vrel(3); Vld(6)
for x in pv_bcast(1, PA + 4): e(x)
e("s_waitcnt lgkmcnt(0)"); pv_step(1)
Vrel(4); Vld(7)
mll = [f"buffer_load_dwordx2 v[34:35], v{vML}, {sr(sW)}, s{sLG} offen sc1"]
Vrel(5)
for x in pv_bcast(2, PA): e(x)
e("s_waitcnt lgkmcnt(0)"); pv_step(2)
Vrel(6)
for x in pv_bcast(3, PA + 4): e(x)
Vrel(7)
e(mll[0])
e("s_waitcnt lgkmcnt(0)"); pv_step(3)
A.drained()
e("s_branch ATT_END")

lab("LOOP")
wq_frags()
e(f"v_and_b32 v25, 15, v{vL}"); e("v_cmp_eq_u32 vcc, 12, v25"); e("v_mov_b32 v36, 0x3f803f80"); e(f"v_cndmask_b32 v70, 0, v36, vcc")
for q in range(1, 10): e(f"v_mov_b32 v{70+q}, v70")
setexec(ROWS9)
poll([f"buffer_load_dwordx4 v[70:73], v{vAq}, {sr(sW)}, 0 offen sc1", f"buffer_load_dwordx4 v[74:77], v{vAq}, {sr(sW)}, 0 offen offset:64 sc1",
      f"buffer_load_dwordx2 v[78:79], v{vAq16}, {sr(sW)}, 0 offen offset:128 sc1"], [70, 74, 78], 24)
setexec(FULL)
e("s_waitcnt lgkmcnt(0)")
stamp(1)
qstage(70, f"s{sLG}")
stamp(2)
e(f"s_add_u32 s{sT2}, s{sLG}, 4096")
poll(qloads(T, f"s{sLG}", f"s{sT2}"), range(T, T + 8), T + 8)
stamp(3)
qsum(T)
q_finish(T)
stamp(4)
qk_softmax()
lsum_publish()
stamp(5)
for x in pv_bcast(0, PA): e(x)
pv_step(0, pv_bcast(1, PA + 4)); pv_step(1, pv_bcast(2, PA)); pv_step(2, pv_bcast(3, PA + 4))
e(mll[0])
pv_step(3)
lab("ATT_END")
A.vm = ["ml"]
late_check("ml", mll, [34, 35], 36)
stamp(6)
e("v_mov_b32 v36, v34"); rowred("max", 36, None, (8, 4, 2, 1)); xrow("max", 36, 37, both=False)
e("v_sub_f32 v34, v34, v36"); e(f"v_sub_f32 v36, v{vM}, v36"); e("v_exp_f32 v34, v34"); e("v_exp_f32 v36, v36"); e("v_mul_f32 v34, v34, v35")
for q in range(3):
    for r in (1, 2, 3):
        e(f"v_mov_b32_dpp v{F+16*q}, v{F+16*q+4*r} quad_perm:[0,1,2,3] row_mask:{1<<r:#x} bank_mask:0xf")
rowred("add", 34, None, (8, 4, 2, 1)); xrow("add", 34, 37, both=False)
e("v_rcp_f32 v34, v34"); e("v_mul_f32 v34, v34, v36")
for q in range(3): e(f"v_mul_f32 v{F+16*q}, v{F+16*q}, v34")
for q in range(3): e(f"ds_add_f32 v{vAcc}, v{F+16*q} offset:{OACC+256*q}")
e(f"v_lshlrev_b32 v24, 5, v{vL}"); e(f"s_cmp_eq_u32 s{sLay}, 0"); e(f"s_cselect_b32 s{sT2}, 0, {ACCS}"); e(f"s_add_u32 s{sT2}, s{sT2}, {ACC}"); e(f"v_add_u32 v24, s{sT2}, v24")
e(f"s_mul_i32 s{sT0}, s{sJ}, 384"); e(f"s_add_u32 s{sT0}, s{sT0}, s{sLG}"); e(f"s_add_u32 s{sT0}, s{sT0}, {oO}")
e("s_waitcnt lgkmcnt(0)"); e("s_barrier")
e(f"s_cmp_lg_u32 s{sWV}, 0"); e("s_cbranch_scc1 NOOPUB")
setexec((1 << 24) - 1)
e(f"ds_read_b128 v[28:31], v24 offset:{OACC}"); e(f"ds_read_b128 v[32:35], v24 offset:{OACC+16}"); e("s_waitcnt lgkmcnt(0)")
for q in range(4): e(f"v_cvt_pk_bf16_f32 v{28+q}, v{28+2*q}, v{29+2*q}")
lstore(f"buffer_store_dwordx4 v[28:31], v{vLin}, {sr(sW)}, s{sT0} offen")
setexec(FULL)
lab("NOOPUB")
stamp(7)
e(f"v_and_b32 v25, 15, v{vL}"); e(f"v_lshrrev_b32 v26, 4, v{vL}"); e(f"v_bfe_u32 v27, v{vL}, 2, 2"); e(f"v_and_b32 v36, 3, v{vL}")
e(f"s_cmp_ge_u32 s{sJ}, 20"); e("s_cbranch_scc1 ROLEF")
def owner(og, ol, soff, fin):
    rowbase(37, 26, og, ol, None, 38); e("v_add_u32 v39, 4, v26"); rowbase(38, 39, og, ol, None, 28)
    e(f"s_lshl_b32 s{sT0}, s{sJ}, 6"); e(f"s_add_u32 s{sT0}, s{sT0}, {soff}")
    e("v_lshl_add_u32 v37, v25, 2, v37"); e("v_lshl_add_u32 v38, v25, 2, v38")
    poll([f"buffer_load_dword v28, v37, {sr(sW)}, s{sT0} offen sc1", f"buffer_load_dword v29, v38, {sr(sW)}, s{sT0} offen sc1"], [28, 29], 30)
    e("v_lshlrev_b32 v30, 16, v28"); e("v_and_b32 v28, 0xffff0000, v28"); e("v_lshlrev_b32 v31, 16, v29"); e("v_and_b32 v29, 0xffff0000, v29")
    e("v_add_f32 v30, v30, v31"); e("v_add_f32 v28, v28, v29")
    xrow("add", 30, 31); xrow("add", 28, 29)
    e(f"v_add_f32 v{vXR}, v{vXR}, v30"); e(f"v_add_f32 v{vXR+1}, v{vXR+1}, v28")
    e(f"v_cvt_pk_bf16_f32 v28, v{vXR}, v{vXR+1}")
def base_store(ob):
    e(f"s_lshl_b32 s{sT0}, s{sJ}, 6"); e(f"s_add_u32 s{sT0}, s{sT0}, s{sLG}"); e(f"s_add_u32 s{sT0}, s{sT0}, {ob}"); e(f"v_lshlrev_b32 v37, 2, v{vL}")
    pack_store16(28, lambda: lstore(f"buffer_store_dwordx4 v[28:31], v37, {sr(sW)}, s{sT0} offen"))
e(f"s_mul_i32 s{sT0}, s{sWV}, 12288"); e(f"s_add_u32 s{sT0}, s{sT0}, {WO}")
e("v_lshl_add_u32 v37, v26, 3, v27"); e("v_lshlrev_b32 v37, 6, v37"); e("v_lshl_add_u32 v37, v36, 3, v37"); e(f"v_add_u32 v37, s{sT0}, v37")
for t in range(2):
    for kk in range(6):
        for h in range(2): e(f"ds_read_b64_tr_b16 {vr(F+24*t+4*kk+2*h,2)}, v37 offset:{(32*kk+4*h)*64+32*t}")
e(f"s_cmp_lg_u32 s{sWV}, 1"); e("s_cbranch_scc1 NOOWN0"); e(f"s_cmp_eq_u32 s{sLay}, 0"); e("s_cbranch_scc1 NOOWN0")
owner(oFG, oFL, "0", False); base_store(oBA)
lab("NOOWN0")
e("v_and_b32 v37, 7, v25"); e("v_mul_u32_u24 v37, 384, v37"); e("v_lshl_add_u32 v37, v26, 4, v37")
e(f"s_mul_i32 s{sT0}, s{sWV}, 3072"); e(f"s_add_u32 s{sT0}, s{sT0}, s{sLG}"); e(f"s_add_u32 s{sT0}, s{sT0}, {oO}")
poll([f"buffer_load_dwordx4 {vr(SPARE+4*kk)}, v37, {sr(sW)}, s{sT0} offen offset:{64*kk} sc1" for kk in range(6)], [SPARE + 4 * kk for kk in range(6)], 38)
e("s_waitcnt lgkmcnt(0)")
stamp(8)
for kk in range(6):
    for t in range(2):
        c = "0" if kk == 0 else vr(28 + 4 * t)
        e(f"v_mfma_f32_16x16x32_bf16 {vr(28+4*t)}, {vr(SPARE+4*kk)}, {vr(F+24*t+4*kk)}, {c}")
e(f"s_lshl_b32 s{sT0}, s{sJ}, 6"); e(f"s_mul_i32 s{sT1}, s{sG}, 1280"); e(f"s_add_u32 s{sT1}, s{sT1}, s{sT0}"); e(f"s_add_u32 s{sT1}, s{sT1}, s{sLay}")
e(f"s_add_u32 s{sT0}, s{sT0}, s{sLG}")
e(f"s_add_u32 s96, s{sT1}, {oYG}"); e(f"s_add_u32 s97, s{sT0}, {oYL}")
for t in range(2): e(f"v_add_f32 v{28+4*t}, v{28+4*t}, v{29+4*t}"); e(f"v_add_f32 v{30+4*t}, v{30+4*t}, v{31+4*t}")
for t in range(2): e(f"v_add_f32 v{28+4*t}, v{28+4*t}, v{30+4*t}")
e("v_permlane16_swap_b32 v28, v32"); e("v_add_f32 v28, v28, v32")
e(f"ds_add_f32 v{vAcc}, v28 offset:{YACC}")
e("s_waitcnt lgkmcnt(0)"); e("s_barrier")
e(f"s_cmp_lg_u32 s{sWV}, 0"); e("s_cbranch_scc1 WNOT0")
setexec(15)
e(f"ds_read_b128 v[28:31], v24 offset:{YACC}"); e(f"ds_read_b128 v[32:35], v24 offset:{YACC+16}"); e("s_waitcnt lgkmcnt(0)")
for q in range(4): e(f"v_cvt_pk_bf16_f32 v{28+q}, v{28+2*q}, v{29+2*q}")
e(f"buffer_store_dwordx4 v[28:31], v{vLin}, {sr(sW)}, s96 offen sc1")
lstore(f"buffer_store_dwordx4 v[28:31], v{vLin}, {sr(sW)}, s97 offen")
setexec(FULL)
stamp(9)
e(f"v_lshrrev_b32 v37, 5, v{vL}"); e("v_mul_u32_u24 v37, 2560, v37"); e(f"v_and_b32 v38, 31, v{vL}"); e("v_lshl_add_u32 v37, v38, 2, v37")
for k in range(1, 6): e(f"v_add_u32 v{F+k}, {5120*k}, v37")
e(f"s_lshl_b32 s{sT2}, s{sJ}, 7"); e(f"s_add_u32 s{sT2}, s{sT2}, s{sLG}"); e(f"s_add_u32 s{sT2}, s{sT2}, {oFP}")
e(f"s_add_u32 s96, s{sT1}, {oFG}"); e(f"s_add_u32 s97, s{sT0}, {oFL}"); e(f"v_lshlrev_b32 v39, 1, v{vL}")
poll([f"buffer_load_dword v{28+k}, v{37 if k==0 else F+k}, {sr(sW)}, s{sT2} offen sc1" for k in range(6)], range(28, 34), 38)
stamp(10)
e("v_add_f32 v28, v28, v29"); e("v_add_f32 v30, v30, v31"); e("v_add_f32 v32, v32, v33"); e("v_add_f32 v28, v28, v30"); e("v_add_f32 v28, v28, v32")
e("v_mov_b32 v29, v28"); e("v_permlane32_swap_b32 v28, v29"); e("v_add_f32 v28, v28, v29")
e("v_mov_b32_dpp v29, v28 row_shl:1 row_mask:0xf bank_mask:0xf"); e("v_cvt_pk_bf16_f32 v28, v28, v29")
for q in (1, 2, 3): e(f"v_mov_b32_dpp v{28+q}, v28 row_shl:{2*q} row_mask:0xf bank_mask:0xf")
setexec(0x01010101)
e(f"buffer_store_dwordx4 v[28:31], v39, {sr(sW)}, s96 offen sc1")
lstore(f"buffer_store_dwordx4 v[28:31], v39, {sr(sW)}, s97 offen")
setexec(FULL)
stamp(11)
e("s_branch NEXT")
lab("WNOT0")
e(f"s_cmp_lg_u32 s{sWV}, 1"); e("s_cbranch_scc1 NEXT")
owner(oYG, oYL, f"s{sLay}", False)
e(f"s_cmp_lg_u32 s{sLay}, 0"); e("s_cbranch_scc1 FINAL")
base_store(oBB)
e("s_branch NEXT")
lab("FINAL")
e(f"s_cmp_lg_u32 s{sG}, 0"); e("s_cbranch_scc1 DONE")
owner(oFG, oFL, f"s{sLay}", True)
e(f"s_lshl_b32 s{sT0}, s{sJ}, 6"); e(f"v_lshlrev_b32 v37, 2, v{vL}")
setexec(0xffff)
e(f"buffer_store_dword v28, v37, {sr(sO)}, s{sT0} offen")
setexec(FULL)
stamp(12)
e("s_branch DONE") if SPIN else e("s_endpgm")
lab("ROLEF")
FA = SPARE
e(f"s_mul_i32 s{sT0}, s{sWV}, 5120"); e(f"s_add_u32 s{sT0}, s{sT0}, {W1}")
e("v_lshl_add_u32 v37, v26, 3, v27"); e("v_lshlrev_b32 v37, 5, v37"); e("v_lshl_add_u32 v37, v36, 3, v37"); e(f"v_add_u32 v37, s{sT0}, v37")
for t in range(2):
    for kk in range(5):
        for h in range(2): e(f"ds_read_b64_tr_b16 {vr(F+20*t+4*kk+2*h,2)}, v37 offset:{(32*kk+4*h)*32+20480*t}")
e(f"s_mul_i32 s{sT0}, s{sWV}, 320"); e(f"s_add_u32 s{sT0}, s{sT0}, {W2}")
e(f"v_lshrrev_b32 v80, 2, v{vL}"); e("v_mul_u32_u24 v80, 1280, v80"); e("v_lshl_add_u32 v80, v36, 3, v80"); e(f"v_add_u32 v80, s{sT0}, v80")
e(f"s_add_u32 s{sT2}, s{sT2}, {FACC}")
e(f"v_lshl_add_u32 v81, v25, 2, s{sT2}"); e("v_add_u32 v38, 128, v81"); e("v_cmp_eq_u32 vcc, 3, v26"); e("v_cndmask_b32 v81, v81, v38, vcc")
e(f"v_mov_b32 v82, s{sT2}"); e("v_add_u32 v82, 256, v82"); e("v_add_u32 v38, 4, v82"); e("v_cndmask_b32 v82, v82, v38, vcc")
e(f"v_lshl_add_u32 v83, v26, 4, s{sT2}"); e(f"v_mov_b32 v85, s{sT2}")
e("v_lshlrev_b32 v84, 6, v25"); e("v_lshl_add_u32 v84, v26, 4, v84")
e("v_cmp_eq_u32 vcc, 12, v25"); e("v_mov_b32 v38, 0x3f803f80"); e(f"v_cndmask_b32 v{FA}, 0, v38, vcc")
for q in range(1, 20): e(f"v_mov_b32 v{FA+q}, v{FA}")
rowbase(37, 25, oYG, oYL, oBA, 38); e("v_lshl_add_u32 v37, v26, 4, v37")
e(f"s_mul_i32 s{sT0}, s{sWV}, 320"); e(f"s_add_u32 s{sT0}, s{sT0}, s{sLay}")
e(f"s_sub_u32 s{sT1}, s{sJ}, 20"); e(f"s_mul_i32 s{sT1}, s{sT1}, 2560"); e(f"s_mul_i32 s{sT3}, s{sWV}, 640"); e(f"s_add_u32 s{sT1}, s{sT1}, s{sT3}")
e(f"s_add_u32 s{sT1}, s{sT1}, s{sLG}"); e(f"s_add_u32 s{sT1}, s{sT1}, {oFP}")
setexec(ROWS9)
poll([f"buffer_load_dwordx4 {vr(FA+4*kk)}, v37, {sr(sW)}, s{sT0} offen offset:{64*kk} sc1" for kk in range(5)], [FA + 4 * kk for kk in range(5)], 38)
setexec(FULL)
e("s_waitcnt lgkmcnt(0)")
stamp(8)
for kk in range(5):
    for t in range(3):
        c = "0" if kk == 0 else vr(T + 4 * t)
        bb = vr(F + 20 * t + 4 * kk) if t < 2 else vr(FA + 4 * kk)
        e(f"v_mfma_f32_16x16x32_bf16 {vr(T+4*t)}, {vr(FA+4*kk)}, {bb}, {c}")
for t in range(3): e(f"v_add_f32 v{T+4*t}, v{T+4*t}, v{T+4*t+1}"); e(f"v_add_f32 v{T+4*t+2}, v{T+4*t+2}, v{T+4*t+3}")
for t in range(3): e(f"v_add_f32 v{T+4*t}, v{T+4*t}, v{T+4*t+2}")
e(f"ds_add_f32 v81, v{T}"); e(f"ds_add_f32 v81, v{T+4} offset:64")
setexec(ROWS9); e(f"ds_add_f32 v82, v{T+8}"); setexec(FULL)
e("s_waitcnt lgkmcnt(0)"); e("s_barrier")
e("ds_read_b64 v[36:37], v85 offset:256")
for q in range(4): e(f"ds_read_b128 {vr(FA+4*q)}, v83 offset:{64*q}")
for t in range(10): e(f"ds_read_b64_tr_b16 {vr(F+2*t,2)}, v80 offset:{32*t}")
e("s_waitcnt lgkmcnt(14)")
e("v_mul_f32 v37, 0x3acccccd, v37"); e("v_mul_f32 v36, 0x3acccccd, v36")
e("v_fma_f32 v36, -v37, v37, v36"); e("v_max_f32 v36, 0, v36"); e("v_add_f32 v36, 0x3727c5ac, v36"); e("v_rsq_f32 v36, v36")
e("s_waitcnt lgkmcnt(10)")
for q in range(8): e(f"v_fma_f32 v{FA+q}, -v37, v{FA+8+q}, v{FA+q}")
e("v_mul_f32 v38, 0xbfb8aa3b, v36"); e("v_mul_f32 v39, v36, v36")
for q in range(4): e(f"v_mul_f32 v{FA+8+q}, v38, v{FA+q}")
for q in range(4): e(f"v_exp_f32 v{FA+8+q}, v{FA+8+q}")
for q in range(4): e(f"v_mul_f32 v{FA+q}, v{FA+q}, v{FA+4+q}")
for q in range(4): e(f"v_add_f32 v{FA+8+q}, 1.0, v{FA+8+q}")
for q in range(4): e(f"v_rcp_f32 v{FA+8+q}, v{FA+8+q}")
for q in range(4): e(f"v_mul_f32 v{FA+q}, v{FA+q}, v39")
for q in range(4): e(f"v_mul_f32 v{FA+q}, v{FA+q}, v{FA+8+q}")
e(f"v_cvt_pk_bf16_f32 v{FA}, v{FA}, v{FA+1}"); e(f"v_cvt_pk_bf16_f32 v{FA+1}, v{FA+2}, v{FA+3}")
HB = 60
def hm(t): return [f"v_cndmask_b32 v{HB+2*t+q}, 0, v{FA+q}, {sp(sMf+2*t)}" for q in range(2)]
for x in hm(0) + hm(1): e(x)
e("s_waitcnt lgkmcnt(0)")
for t in range(10):
    c = "0" if t == 0 else vr(T)
    e(f"v_mfma_f32_16x16x16_bf16 {vr(T)}, {vr(F+2*t,2)}, {vr(HB+2*t,2)}, {c}")
    if t + 2 < 10:
        for x in hm(t + 2): e(x)
setexec(0x03FF03FF03FF03FF)
lstore(f"buffer_store_dwordx4 {vr(T)}, v84, {sr(sW)}, s{sT1} offen")
setexec(FULL)
stamp(9)
lab("NEXT")
e(f"s_cmp_lg_u32 s{sLay}, 0"); e("s_cbranch_scc1 DONE")
e(f"s_mov_b32 s{sLay}, {LS}"); e(f"s_add_u32 s{sLG}, s{sLG}, {LS}"); e(f"v_add_u32 v{vAcc}, {ACCS}, v{vAcc}")
e("s_branch LOOP")
lab("DONE")
if SPIN:
    e("v_accvgpr_read_b32 v38, a253"); e("s_nop 1"); e("v_readfirstlane_b32 s96, v38")
    lab("SPINL"); e("s_memrealtime s[98:99]"); e("s_waitcnt lgkmcnt(0)"); e("s_sub_u32 s98, s98, s96"); e(f"s_cmp_lt_u32 s98, {SPIN*100}"); e("s_cbranch_scc1 SPINL")
e("s_endpgm")
i = 0
while i < len(tail): tail[i](); i += 1
lab("CODE_END")
e("s_endpgm")

body = A.pad()
hdr = [f"; @launch grid=(256,1,1) block=(256,1,1) lds={LDSSZ}", '.amdgcn_target "amdgcn-amd-amdhsa--gfx950"', ".text",
       f".globl {NAME}_kernel", ".p2align 8", f".type {NAME}_kernel,@function", f"{NAME}_kernel:"]
ftr = ['.section .rodata,"a"', ".p2align 6", f".amdhsa_kernel {NAME}_kernel", "  .amdhsa_next_free_vgpr 512", "  .amdhsa_next_free_sgpr 102",
       "  .amdhsa_accum_offset 256", "  .amdhsa_group_segment_fixed_size 0", "  .amdhsa_kernarg_size 96", "  .amdhsa_user_sgpr_count 2",
       "  .amdhsa_user_sgpr_kernarg_segment_ptr 1", "  .amdhsa_system_sgpr_workgroup_id_x 1", ".end_amdhsa_kernel"]
src = "\n".join(hdr + body + ftr) + "\n"
import re
for m in re.finditer(r"buffer_\S+ .*offset:(\d+)", src): assert int(m.group(1)) < 4096, m.group(0)
for m in re.finditer(r"ds_\S+ .*offset:(\d+)", src): assert int(m.group(1)) < 65536, m.group(0)
open(OUT, "w").write(src)
```

```python
import os, sys
sys.path.insert(0, os.path.dirname(os.path.abspath(__file__)))
from asmlib import Asm
NAME = "interleave_layers__sliding_block_cached__glu_gated_swiglu__decode"
OPT = dict(a.split("=") for a in sys.argv[2:])
OUT = sys.argv[1] if len(sys.argv) > 1 else f"/code/{NAME}.s"
STAMP = int(OPT.get("stamp", 0))
NT = OPT.get("nt", "nt").replace("x", "")
NTW = OPT.get("ntw", "nt").replace("x", "")
FORCESLOW = int(OPT.get("slow", 0))
SPIN = int(OPT.get("spin", 0))
A = Asm(); e = A.e; lab = A.lab
tail = []

RS = 416; SCRW = 16 * RS
SCR = 0; WQ = 4 * SCRW; ROLE = WQ + 30720
WO = ROLE; W1 = ROLE; W3 = ROLE + 20480; W2 = ROLE + 40960
MISC = ROLE + 61440; QB = MISC; ACC = MISC + 512
OACC = 0; YACC = 3072; FACC = 4096
LDSSZ = ACC + 5120
FDMA = OPT.get("fdma", "late")
OMASK = int(OPT.get("omask", 1))
WDMA = OPT.get("wdma", "mid")
PF = OPT.get("pf", "ow")
NTP = OPT.get("ntp", "x").replace("x", "")
NTR = OPT.get("ntr", "x").replace("x", "")
GB = 81920; oQ = 0; oO = 32768; oML = 45056; oFP = 46080; oYL = 76800; oFL = 78080; oBA = 79360; oBB = 80640
GOFF = 8 * GB; oYG = GOFF; oFG = GOFF + 10240; LS = 0xA8000
OOB = 0x7FFFFFF0
sK, sV, sW, sWQ, sRA, sRB, sRC, sX, sO = 8, 12, 16, 20, 24, 28, 32, 36, 40
sG, sJ, sHH, sS, sWV, sKV, sLay, sFast, sCnt = 68, 69, 70, 71, 72, 73, 74, 75, 76
sT0, sT1, sT2 = 77, 78, 79
sLG = 3
sClr = 4
sXcc = 5
sTL = 6
sT3 = 7
sMq = 80
sMf = 44
def sr(b): return f"s[{b}:{b+3}]"
def sp(b): return f"s[{b}:{b+1}]"
def vr(b, n=4): return f"v[{b}:{b+n-1}]" if n > 1 else f"v{b}"
def ar(b, n=4): return f"a[{b}:{b+n-1}]"
def srd(d, lo, nbytes):
    e(f"s_mov_b32 s{d}, s{lo}"); e(f"s_and_b32 s{d+1}, s{lo+1}, 0xffff")
    e(f"s_mov_b32 s{d+2}, {nbytes}"); e(f"s_mov_b32 s{d+3}, 0x20000")
def setexec(mask):
    lo, hi = mask & 0xffffffff, mask >> 32
    if mask == (1 << 64) - 1: e("s_mov_b64 exec, -1")
    elif hi == 0 and lo <= 64: e(f"s_mov_b64 exec, {lo}")
    else: e(f"s_mov_b32 exec_lo, {lo:#x}"); e(f"s_mov_b32 exec_hi, {hi:#x}")
FULL = (1 << 64) - 1
ROWS9 = 0x01FF01FF01FF01FF
vL, vLin, vWr, vKrd, vVrd, vCS, vAq, vAq16, vQst, vQld, vQBw, vQBr, vML, vAcc, vTq1, vTq2, vSC, vM = 0, 1, 2, 5, 6, 7, 8, 9, 10, 11, 12, 13, 14, 15, 16, 17, 18, 19
vC1, vC2, vXR = 20, 21, 22
T = 24
F = 40
SPARE = 88
def vblock(b):
    if b < 2: return ("a", 192 + 24 * b)
    if b == 8: return ("v", SPARE)
    return ("v", 112 + 24 * (b - 2))
def rg(f, b, n): return f"{f}[{b}:{b+n-1}]"

uid = [0]
def nid(): uid[0] += 1; return uid[0]
stamps = [0]
def stamp(i, val=None):
    if not STAMP: return
    if STAMP == 2 and val is None and i not in (0, 14): return
    if STAMP == 1 and (val is not None or i == 14): return
    e("s_memrealtime s[100:101]"); e("v_accvgpr_write_b32 a254, v38"); e("v_accvgpr_write_b32 a255, v39")
    e(f"s_lshl_b32 s98, s2, 2"); e(f"s_add_u32 s98, s98, s{sWV}"); e("s_lshl_b32 s98, s98, 7")
    e(f"s_cmp_eq_u32 s{sLay}, 0"); e(f"s_cselect_b32 s99, 0, 64"); e(f"s_add_u32 s99, s99, {4*i}"); e("s_add_u32 s98, s98, s99"); e("s_add_u32 s98, s98, 0x40000000")
    e("s_waitcnt lgkmcnt(0)"); e(f"v_mov_b32 v38, {val or 's100'}"); e("v_mov_b32 v39, 0")
    e("s_mov_b64 s[100:101], exec"); e("s_mov_b64 exec, 1")
    A.vmem(f"buffer_store_dword v38, v39, {sr(sW)}, s98 offen", "stamp")
    e("s_mov_b64 exec, s[100:101]"); e("s_nop 1"); e("v_accvgpr_read_b32 v38, a254"); e("v_accvgpr_read_b32 v39, a255")
def lstore(instr, counted=None):
    k = nid()
    e(f"s_cmp_eq_u32 s{sFast}, 1"); e(f"s_cbranch_scc0 SLOW{k}")
    if counted: A.vmem(instr, counted)
    else: e(instr)
    lab(f"BACK{k}")
    def t(): lab(f"SLOW{k}"); e(instr + " sc1"); e(f"s_branch BACK{k}")
    tail.append(t)
def check(regs_, tmp):
    r = list(regs_)
    if len(r) == 1: e(f"v_cmp_eq_u32 vcc, -1, v{r[0]}"); return
    cur = r.pop(0)
    while r:
        if len(r) >= 2: e(f"v_max3_u32 v{tmp}, v{cur}, v{r[0]}, v{r[1]}"); r = r[2:]
        else: e(f"v_max_u32 v{tmp}, v{cur}, v{r[0]}"); r = r[1:]
        cur = tmp
    e(f"v_cmp_eq_u32 vcc, -1, v{tmp}")
LIMIT = 0x8000
def poll(loads, regs_, tmp, pid=None, slp=0):
    k = nid()
    if pid is not None: stamp(pid, "s100")
    e(f"s_mov_b32 s{sCnt}, 0")
    lab(f"POLL{k}")
    for l in loads: e(l)
    e(f"s_add_u32 s{sCnt}, s{sCnt}, 1"); e(f"s_cmp_ge_u32 s{sCnt}, {LIMIT}")
    e("s_waitcnt vmcnt(0)")
    check(regs_, tmp)
    e(f"s_cbranch_scc1 POLLX{k}")
    if slp:
        e(f"s_cbranch_vccz POLLX{k}"); e(f"s_sleep {slp}"); e(f"s_branch POLL{k}")
    else: e(f"s_cbranch_vccnz POLL{k}")
    lab(f"POLLX{k}")
    if pid is not None: stamp(pid + 1, "s100"); stamp(pid + 2, f"s{sCnt}")
    A.drained()
def late_check(tag, loads, regs_, tmp, pre=None, post=None):
    k = nid()
    A.wait(tag)
    check(regs_, tmp)
    e(f"s_cbranch_vccnz RETRY{k}")
    lab(f"OK{k}")
    def t():
        lab(f"RETRY{k}")
        if pre: pre()
        save = A.vm; poll(loads, regs_, tmp); A.vm = save
        if post: post()
        e(f"s_branch OK{k}")
    tail.append(t)

e("s_cmp_ge_u32 s2, 256"); e("s_cbranch_scc1 CODE_END")
e("s_load_dwordx16 s[44:59], s[0:1], 0"); e("s_load_dwordx8 s[60:67], s[0:1], 64")
if STAMP or SPIN: e("s_memrealtime s[96:97]")
e("v_lshrrev_b32 v2, 6, v0"); e("v_and_b32 v24, 63, v0"); e(f"v_readfirstlane_b32 s{sWV}, v2")
e(f"s_and_b32 s{sG}, s2, 7"); e(f"s_lshr_b32 s{sJ}, s2, 3"); e(f"s_lshr_b32 s{sHH}, s{sJ}, 3"); e(f"s_and_b32 s{sS}, s{sJ}, 7")
e(f"v_lshlrev_b32 v{vLin}, 4, v24")
e(f"s_lshl_b32 s{sT0}, s{sHH}, 3"); e(f"s_add_u32 s{sT0}, s{sT0}, s{sG}")
e(f"s_mul_i32 s{sKV}, s{sT0}, 12582912"); e(f"s_lshl_b32 s{sT1}, s{sS}, 2"); e(f"s_add_u32 s{sT1}, s{sT1}, s{sWV}")
e(f"s_mul_i32 s{sT1}, s{sT1}, 6144"); e(f"s_add_u32 s{sKV}, s{sKV}, s{sT1}"); e(f"s_add_u32 s{sKV}, s{sKV}, 11010048")
e(f"s_mul_i32 s{sT2}, s{sT0}, 384")
e(f"s_mov_b32 s{sLay}, 0"); e(f"s_mul_i32 s{sLG}, s{sG}, {GB}"); e(f"s_mov_b32 s{sFast}, 0")
e(f"v_mov_b32 v32, -1"); e(f"v_mov_b32 v33, -1"); e(f"v_mov_b32 v34, -1"); e(f"v_mov_b32 v35, -1")
e(f"s_mul_i32 s{sT0}, s{sJ}, 2560"); e(f"s_add_u32 s{sT0}, s{sT0}, s{sLG}")
e(f"v_lshl_add_u32 v{vC1}, v0, 4, s{sT0}"); e("v_cmp_le_u32 vcc, 160, v0"); e(f"v_add_u32 v25, {LS-2560}, v{vC1}"); e(f"v_cndmask_b32 v{vC1}, v{vC1}, v25, vcc")
e(f"s_add_u32 s{sT0}, s{sT0}, {LS+16*96}")
e(f"s_lshl_b32 s{sT1}, s{sJ}, 10"); e(f"s_add_u32 s{sT1}, s{sT1}, s{sLG}"); e(f"s_add_u32 s{sT1}, s{sT1}, {2*LS}")
e(f"s_cmp_eq_u32 s{sWV}, 0"); e(f"s_cselect_b32 s{sClr}, s{sT0}, s{sT1}")
e(f"s_mul_i32 s{sT0}, s2, 80"); e(f"s_add_u32 s{sT0}, s{sT0}, {GOFF}")
e(f"s_cmp_ge_u32 s{sWV}, 2"); e(f"s_cselect_b32 s{sClr}, s{sT0}, s{sClr}")
e(f"v_add_u32 v25, {LS-80}, v{vLin}"); e("v_cmp_le_u32 vcc, 133, v0"); e(f"v_cndmask_b32 v{vC2}, v{vLin}, v25, vcc")
e(f"v_mov_b32 v25, {OOB-0x10000000}"); e("v_cmp_le_u32 vcc, 138, v0"); e(f"v_cndmask_b32 v{vC2}, v{vC2}, v25, vcc")
e("s_waitcnt lgkmcnt(0)")
srd(sK, 46, 402653184)
if SPIN: e("v_mov_b32 v38, s96"); e("v_accvgpr_write_b32 a253, v38")
def tile_loads(srdn, t, f, base, tag):
    for i in range(6):
        if i == 0: e(f"s_add_u32 s{sTL}, s{sKV}, {t*196608}")
        if i == 4: e(f"s_add_u32 s{sTL}, s{sTL}, 4096")
        A.vmem(f"buffer_load_dwordx4 {rg(f, base+4*i, 4)}, v{vLin}, {sr(srdn)}, s{sTL} offen offset:{1024*(i%4)} {NT}", tag)
def Kld(t): tile_loads(sK, t, "a", 24 * t, f"K{t}")
def Vld(t): f, b = vblock(t + 1); tile_loads(sV, t, f, b, f"V{t}")
Kld(0)
srd(sW, 66, 1610612736)
A.vmem(f"buffer_store_dwordx4 v[32:35], v{vC1}, {sr(sW)}, 0 offen sc1", "clr")
A.vmem(f"buffer_store_dwordx4 v[32:35], v{vC2}, {sr(sW)}, s{sClr} offen sc1", "clr")
e("s_getpc_b64 s[100:101]"); lab("PCREF")
e(f"s_sub_u32 s100, s100, PCREF-{NAME}_kernel"); e("s_subb_u32 s101, s101, 0")
e(f"s_and_b32 s{sT0}, s{sJ}, 7"); e(f"s_lshl_b32 s{sT0}, s{sT0}, 12"); e(f"v_lshl_add_u32 v25, v0, 4, s{sT0}")
e(f"v_cmp_gt_u32 vcc, CODE_END-{NAME}_kernel-16, v25"); e("s_and_saveexec_b64 s[98:99], vcc"); e("s_cbranch_execz NOCPF")
e(f"global_load_dwordx4 a[240:243], v25, s[100:101]")
lab("NOCPF"); e("s_mov_b64 exec, -1")
Kld(1)
srd(sV, 48, 402653184); srd(sWQ, 50, 7864320); srd(sX, 44, 1280); srd(sO, 62, 1280)
srd(sRB, 58, 1966080); srd(sRC, 60, 1966080)
e(f"s_cmp_lt_u32 s{sJ}, 20"); e(f"s_cselect_b32 s{sRA}, s52, s56"); e(f"s_cselect_b32 s{sRA+1}, s53, s57"); e(f"s_cselect_b32 s{sRA+2}, s{sWQ+2}, s{sRB+2}")
e(f"s_and_b32 s{sRA+1}, s{sRA+1}, 0xffff"); e(f"s_mov_b32 s{sRA+3}, 0x20000")
if STAMP:
    e(f"s_lshl_b32 s98, s2, 2"); e(f"s_add_u32 s98, s98, s{sWV}"); e("s_lshl_b32 s98, s98, 7"); e("s_add_u32 s98, s98, 0x40000000")
    e("v_mov_b32 v38, s96"); e("v_mov_b32 v39, 0"); e("s_mov_b64 exec, 1")
    A.vmem(f"buffer_store_dword v38, v39, {sr(sW)}, s98 offen", "stamp"); e("s_mov_b64 exec, -1")
A.wait("clr"); e("s_barrier")
e(f"s_getreg_b32 s{sXcc}, hwreg(HW_REG_XCC_ID, 0, 4)")
e(f"s_lshr_b32 s{sT0}, s{sXcc}, 2"); e(f"s_lshl_b32 s{sT1}, s{sG}, 2"); e(f"s_add_u32 s{sT0}, s{sT0}, s{sT1}")
e(f"s_and_b32 s{sT1}, s{sXcc}, 3"); e(f"s_lshl_b32 s{sT1}, s{sT1}, 3"); e(f"s_lshl_b32 s{sT3}, 1, s{sT1}")
e(f"s_lshl_b32 s96, 32, s{sT1}"); e(f"s_mov_b32 s{sXcc}, s{sT0}")
e(f"s_cmp_lg_u32 s{sWV}, 0"); e("s_cbranch_scc1 NOATOM")
e(f"s_lshl_b32 s{sT0}, s{sT0}, 2"); e(f"v_mov_b32 v36, s{sT0}"); e(f"v_mov_b32 v37, s{sT3}")
setexec(1); e("global_atomic_add v36, v37, s[64:65] sc1"); setexec(FULL)
lab("NOATOM")
e(f"v_mov_b32 v{vL}, v24")
e(f"s_mul_i32 s{sT0}, s{sWV}, {SCRW}")
for r in range(3):
    e(f"v_add_u32 v25, {64*r}, v{vL}"); e("v_mul_u32_u24 v26, 171, v25"); e("v_lshrrev_b32 v26, 12, v26")
    e("v_mul_u32_u24 v27, 24, v26"); e("v_sub_u32 v27, v25, v27"); e("v_lshlrev_b32 v27, 4, v27")
    e(f"v_mul_u32_u24 v25, {RS}, v26"); e(f"v_add3_u32 v{vWr+r}, v25, v27, s{sT0}")
    e(f"v_mul_u32_u24 v25, 12288, v26"); e(f"v_add_u32 v{F+r}, v25, v27")
assert all((c * 171) >> 12 == c // 24 for c in range(192))
e(f"s_mul_i32 s{sT1}, s{sS}, {80*12288}"); e(f"s_add_u32 s{sT2}, s{sT2}, s{sT1}")
e(f"s_mul_i32 s{sT1}, s{sWV}, {8*12288}"); e(f"s_add_u32 s{sT2}, s{sT2}, s{sT1}")
e(f"s_mul_i32 s{sT1}, s{sWV}, 3072"); e(f"s_add_u32 s{sT1}, s{sT1}, {WQ}")
for gi in range(3):
    if gi == 2: e(f"s_cmp_ge_u32 s{sWV}, 2"); e("s_cbranch_scc1 NOWQ3")
    for r in range(3):
        e(f"s_add_u32 m0, s{sT1}, {gi*4*3072 + r*1024}")
        A.vmem(f"buffer_load_dwordx4 v{F+r}, {sr(sWQ)}, s{sT2} offen {NTW} lds", "wq", counted=(gi < 2))
    if gi < 2: e(f"s_add_u32 s{sT2}, s{sT2}, {32*12288}")
lab("NOWQ3")
e(f"v_and_b32 v25, 15, v{vL}"); e(f"v_lshrrev_b32 v26, 4, v{vL}")
e(f"v_bfe_u32 v27, v{vL}, 2, 2"); e(f"v_and_b32 v28, 3, v{vL}")
e("v_cmp_eq_u32 vcc, 12, v25"); e("v_mov_b32 v36, 0x3f803f80"); e(f"v_cndmask_b32 v70, 0, v36, vcc")
for q in range(1, 10): e(f"v_mov_b32 v{70+q}, v70")
for q in range(10): e(f"v_mov_b32 v{SPARE+q}, v70")
e(f"s_mul_i32 s{sT1}, s{sS}, 160")
e(f"v_lshlrev_b32 v36, 4, v26"); e(f"v_lshlrev_b32 v37, 3, v26")
setexec(0x0100010001000100)
A.vmem(f"buffer_load_dwordx4 {vr(SPARE)}, v36, {sr(sX)}, s{sT1} offen", "x")
A.vmem(f"buffer_load_dwordx4 {vr(SPARE+4)}, v36, {sr(sX)}, s{sT1} offen offset:64", "x")
A.vmem(f"buffer_load_dwordx2 {vr(SPARE+8,2)}, v37, {sr(sX)}, s{sT1} offen offset:128", "x")
setexec(FULL)
e(f"s_lshl_b32 s{sT2}, s{sJ}, 6"); e(f"v_lshlrev_b32 v38, 2, v25")
A.vmem(f"buffer_load_dword v{vXR}, v38, {sr(sX)}, s{sT2} offen", "x")
srd(sWQ, 52, 7864320)
e(f"s_cmp_lt_u32 s{sWV}, 2"); e(f"s_cselect_b32 s{sX}, s56, s58"); e(f"s_cselect_b32 s{sX+1}, s57, s59"); e(f"s_and_b32 s{sX+1}, s{sX+1}, 0xffff"); e(f"s_mov_b32 s{sX+2}, 1966080")
Kld(2)
e(f"v_mul_u32_u24 v29, {RS}, v25"); e(f"v_lshl_add_u32 v29, v26, 4, v29"); e(f"v_add_u32 v{vKrd}, s{sT0}, v29")
e(f"v_lshrrev_b32 v29, 2, v{vL}"); e(f"v_mul_u32_u24 v29, {RS}, v29"); e(f"v_lshl_add_u32 v29, v28, 3, v29"); e(f"v_add_u32 v{vVrd}, s{sT0}, v29")
e(f"s_mul_i32 s{sT2}, s{sWV}, 96"); e(f"s_add_u32 s{sT2}, s{sT2}, {WQ}")
e("v_lshl_add_u32 v29, v26, 3, v27"); e("v_mul_u32_u24 v29, 384, v29"); e("v_lshl_add_u32 v29, v28, 3, v29"); e(f"v_add_u32 v{vTq1}, s{sT2}, v29")
e("v_lshl_add_u32 v29, v26, 2, v27"); e("v_mul_u32_u24 v29, 384, v29"); e("v_lshl_add_u32 v29, v28, 3, v29"); e(f"v_add_u32 v{vTq2}, s{sT2}, v29")
def rowbase(dst, m, og, ol, ob, tmp):
    e(f"v_mul_u32_u24 v{dst}, 1280, v{m}"); e(f"v_add_u32 v{dst}, {og}, v{dst}")
    e(f"s_mul_i32 s{sT3}, s{sG}, {GB}"); e(f"s_add_u32 s{sT3}, s{sT3}, {ol}"); e(f"v_mov_b32 v{tmp}, s{sT3}")
    e(f"v_cmp_eq_u32 vcc, s{sG}, v{m}"); e(f"v_cndmask_b32 v{dst}, v{dst}, v{tmp}, vcc")
    if ob is not None:
        e(f"v_add_u32 v{tmp}, {ob-ol}, v{tmp}"); e(f"v_cmp_le_u32 vcc, 8, v{m}"); e(f"v_cndmask_b32 v{dst}, v{dst}, v{tmp}, vcc")
e(f"v_mul_u32_u24 v31, 103, v{vL}"); e("v_lshrrev_b32 v31, 10, v31")
e(f"v_mul_u32_u24 v30, 10, v31"); e(f"v_sub_u32 v30, v{vL}, v30"); e(f"v_lshl_add_u32 v29, v30, 4, s{sT1}")
rowbase(vAq, 31, oFG, oFL, oBB, 30); e(f"v_add_u32 v{vAq}, v{vAq}, v29")
e("v_add_u32 v31, 6, v31"); rowbase(vAq16, 31, oFG, oFL, oBB, 30); e(f"v_add_u32 v{vAq16}, v{vAq16}, v29")
e(f"v_mov_b32 v30, {OOB}"); e(f"v_cmp_le_u32 vcc, 30, v{vL}"); e(f"v_cndmask_b32 v{vAq16}, v{vAq16}, v30, vcc")
assert all((c * 103) >> 10 == c // 10 for c in range(64))
e(f"s_lshl_b32 s{sT1}, s{sJ}, 10"); e(f"s_lshl_b32 s{sT2}, s{sWV}, 8"); e(f"s_add_u32 s{sT1}, s{sT1}, s{sT2}")
e(f"v_lshl_add_u32 v{vQst}, v{vL}, 2, s{sT1}")
e(f"s_lshl_b32 s{sT1}, s{sHH}, 13"); e(f"s_add_u32 s{sT1}, s{sT1}, s{sT2}")
e(f"v_lshlrev_b32 v29, 10, v26"); e(f"v_lshl_add_u32 v29, v25, 4, v29"); e(f"v_add_u32 v{vQld}, s{sT1}, v29")
e(f"s_mul_i32 s{sT1}, s{sWV}, 96"); e(f"s_add_u32 s{sT1}, s{sT1}, {QB}")
e("v_lshl_add_u32 v29, v25, 2, v26"); e(f"v_lshl_add_u32 v29, v29, 1, s{sT1}"); e(f"v_mov_b32 v30, {QB+384}")
e("v_cmp_le_u32 vcc, 12, v25"); e(f"v_cndmask_b32 v{vQBw}, v29, v30, vcc")
e(f"v_lshlrev_b32 v29, 4, v26"); e(f"v_add_u32 v{vQBr}, {QB}, v29")
e(f"s_lshl_b32 s{sT1}, s{sHH}, 8"); e(f"s_add_u32 s{sT1}, s{sT1}, {oML}"); e(f"v_and_b32 v29, 31, v{vL}"); e(f"v_lshl_add_u32 v{vML}, v29, 3, s{sT1}")
e(f"s_mul_i32 s{sT1}, s{sWV}, 768"); e(f"s_add_u32 s{sT1}, s{sT1}, {ACC}"); e(f"v_lshl_add_u32 v{vAcc}, v{vL}, 2, s{sT1}")
for t in range(8):
    m = 0x01010101 << t
    e(f"s_mov_b32 s{sMq+2*t}, {m:#x}"); e(f"s_mov_b32 s{sMq+2*t+1}, {m:#x}")
for t in range(10):
    m = 0x00010001 << t
    e(f"s_mov_b32 s{sMf+2*t}, {m:#x}"); e(f"s_mov_b32 s{sMf+2*t+1}, {m:#x}")

def Krel(t):
    A.wait(f"K{t}")
    for i in range(6): e(f"ds_write_b128 v{vWr+i%3}, {ar(24*t+4*i)} offset:{(i//3)*8*RS}")
    for ks in range(6): e(f"ds_read_b128 {ar(24*t+4*ks)}, v{vKrd} offset:{64*ks}")
latew = [0]
def Vrel(t):
    if latew[0]:
        idx = max(i for i, x in enumerate(A.vm) if x == f"V{t}"); n = len(A.vm) - 1 - idx; k = nid()
        e(f"s_cmp_lt_u32 s{sJ}, 20"); e(f"s_cbranch_scc1 LW{k}"); A.wait(f"V{t}"); lab(f"LW{k}"); e(f"s_waitcnt vmcnt({n+12})")
    A.wait(f"V{t}")
    f, b = vblock(t + 1)
    for i in range(6): e(f"ds_write_b128 v{vWr+i%3}, {rg(f, b+4*i, 4)} offset:{(i//3)*8*RS}")
    f, b = vblock(t & ~1)
    for dt in range(12): e(f"ds_read_b64_tr_b16 {rg(f, b+4*dt+2*(t&1), 2)}, v{vVrd} offset:{32*dt}")
def wq_frags():
    for t in range(3):
        b = F + 10 * t
        for kk in range(2):
            for h in range(2): e(f"ds_read_b64_tr_b16 {vr(b+4*kk+2*h,2)}, v{vTq1} offset:{(32*kk+4*h)*384+32*t}")
        e(f"ds_read_b64_tr_b16 {vr(b+8,2)}, v{vTq2} offset:{64*384+32*t}")
def qstage(a, soff, tag=None):
    for kk in range(3):
        for t in range(4):
            n = 4 if kk < 2 else 2
            bb = vr(F + 10 * t + 4 * kk, n) if t < 3 else vr(a + 4 * kk, n)
            c = "0" if kk == 0 else vr(T + 4 * t)
            e(f"v_mfma_f32_16x16x{32 if kk<2 else 16}_bf16 {vr(T+4*t)}, {vr(a+4*kk,n)}, {bb}, {c}")
    for t in range(4): e(f"v_add_f32 v{T+4*t}, v{T+4*t}, v{T+4*t+1}"); e(f"v_add_f32 v{T+4*t+2}, v{T+4*t+2}, v{T+4*t+3}")
    for t in range(4): e(f"v_add_f32 v{T+4*t}, v{T+4*t}, v{T+4*t+2}")
    xreduce(T, T + 4, T + 8, T + 12)
    lstore(f"buffer_store_dword v{T}, v{vQst}, {sr(sW)}, {soff} offen", tag)
def xreduce(r0, r1, r2, r3):
    e(f"v_permlane32_swap_b32 v{r0}, v{r2}"); e(f"v_permlane32_swap_b32 v{r1}, v{r3}")
    e(f"v_add_f32 v{r0}, v{r0}, v{r2}"); e(f"v_add_f32 v{r1}, v{r1}, v{r3}")
    e(f"v_permlane16_swap_b32 v{r0}, v{r1}"); e(f"v_add_f32 v{r0}, v{r0}, v{r1}")
def qloads(b, s0, s1): return [f"buffer_load_dwordx4 {vr(b)}, v{vQld}, {sr(sW)}, {s0} offen sc1", f"buffer_load_dwordx4 {vr(b+4)}, v{vQld}, {sr(sW)}, {s1} offen sc1"]
def qsum(b):
    for q in range(4): e(f"v_add_f32 v{b+q}, v{b+q}, v{b+4+q}")
    xreduce(b, b + 1, b + 2, b + 3)
def rowred(op, v, tmp, steps):
    for sft in steps: e(f"v_{op}_f32_dpp v{v}, v{v}, v{v} row_ror:{sft} row_mask:0xf bank_mask:0xf")
def xrow(op, v, tmp, both=True):
    if both:
        e(f"v_mov_b32 v{tmp}, v{v}"); e(f"v_permlane32_swap_b32 v{v}, v{tmp}"); e(f"v_{op}_f32 v{v}, v{v}, v{tmp}")
    e(f"v_mov_b32 v{tmp}, v{v}"); e(f"v_permlane16_swap_b32 v{v}, v{tmp}"); e(f"v_{op}_f32 v{v}, v{v}, v{tmp}")
X = 88; P = 32; DQ = 92; PA = T
def q_finish(b, mid=None):
    e(f"v_readlane_b32 s{sT0}, v{b}, 15")
    e(f"v_fma_f32 v{b+1}, -s{sT0}, v{vCS}, v{b}")
    e(f"v_cvt_pk_bf16_f32 v{b+1}, v{b+1}, v{b+1}")
    e(f"ds_write_b16 v{vQBw}, v{b+1}")
    e(f"s_mov_b32 vcc_lo, 0x70007000"); e(f"s_mov_b32 vcc_hi, 0x70007000"); e(f"v_cndmask_b32 v{b+2}, 0, v{b}, vcc")
    if mid: mid()
    e("s_waitcnt lgkmcnt(0)"); e("s_barrier")
    for ks in range(6): e(f"ds_read_b128 {vr(F+4*ks)}, v{vQBr} offset:{64*ks}")
    rowred("add", b + 2, None, (8, 4, 2, 1)); xrow("add", b + 2, b + 3)
    e(f"v_mov_b32 v{b+3}, s{sT0}"); e(f"v_subrev_f32 v{b+3}, 0x44200000, v{b+3}")
    e(f"v_sub_f32 v{b+2}, v{b+2}, v{b+3}")
    e(f"v_mul_f32 v{b+3}, 0x3acccccd, v{b+3}"); e(f"v_mul_f32 v{b+2}, 0x3acccccd, v{b+2}")
    e(f"v_fma_f32 v{b+2}, -v{b+3}, v{b+3}, v{b+2}"); e(f"v_max_f32 v{b+2}, 0, v{b+2}"); e(f"v_add_f32 v{b+2}, 0x3727c5ac, v{b+2}")
    e(f"v_rsq_f32 v{b+2}, v{b+2}"); e(f"v_mul_f32 v{vSC}, 0x3dd53b94, v{b+2}")
    e("s_waitcnt lgkmcnt(0)")
def qk_softmax():
    def dreg(t): return X if t == 0 else DQ + 4 * (t % 4)
    def sel(t):
        return [f"v_cndmask_b32 v{X+q}, v{X+q}, v{dreg(t)+q}, {sp(sMq+2*t)}" for q in range(4)]
    pend = []
    for t in range(8):
        if t >= 3: pend = sel(t - 2)
        for ks in range(6):
            c = "0" if ks == 0 else vr(dreg(t))
            e(f"v_mfma_f32_16x16x32_bf16 {vr(dreg(t))}, {ar(24*t+4*ks)}, {vr(F+4*ks)}, {c}")
            if pend and ks >= 2: e(pend.pop(0))
    for s_ in sel(6) + sel(7): e(s_)
    e(f"v_max3_f32 v{vM}, v{X}, v{X+1}, v{X+2}"); e(f"v_max_f32 v{vM}, v{vM}, v{X+3}")
    rowred("max", vM, None, (4, 2, 1)); xrow("max", vM, DQ)
    e(f"v_mul_f32 v{vM}, v{vM}, v{vSC}")
    for q in range(4): e(f"v_fma_f32 v{X+q}, v{X+q}, v{vSC}, -v{vM}")
    for q in range(4): e(f"v_exp_f32 v{X+q}, v{X+q}")
    e(f"v_cvt_pk_bf16_f32 v{P}, v{X}, v{X+1}"); e(f"v_cvt_pk_bf16_f32 v{P+1}, v{X+2}, v{X+3}")
def lsum_ops():
    d = lambda sft: f"v_add_f32_dpp v37, v37, v37 row_ror:{sft} row_mask:0xf bank_mask:0xf"
    return [f"v_add_f32 v37, v{X}, v{X+1}\nv_add_f32 v38, v{X+2}, v{X+3}", f"v_add_f32 v37, v37, v38\nv_mov_b32 v36, v{vM}",
            f"s_lshl_b32 s{sT0}, s{sS}, 5\n" + d(4), f"s_lshl_b32 s{sT1}, s{sWV}, 3\n" + d(2), f"s_add_u32 s{sT0}, s{sT0}, s{sT1}\n" + d(1),
            f"v_mov_b32 v38, v37", f"s_add_u32 s{sT0}, s{sT0}, s{sLG}\nv_permlane32_swap_b32 v37, v38", "v_add_f32 v37, v37, v38\nv_mov_b32 v38, v37",
            "s_nop 0\nv_permlane16_swap_b32 v37, v38", "v_add_f32 v37, v37, v38"]
def ml_store(tag=None):
    setexec(1)
    lstore(f"buffer_store_dwordx2 v[36:37], v{vML}, {sr(sW)}, s{sT0} offen", tag)
    setexec(FULL)
PP = 32
def pv_bcast(u, dst):
    return [f"v_mov_b32_dpp v{dst+q}, v{PP+(q&1)} row_newbcast:{2*u+(q>>1)} row_mask:0xf bank_mask:0xf" for q in range(4)]
def pv_step(u, fill=()):
    fill = list(fill)
    f, b = vblock(2 * u); a = PA + 4 * (u & 1)
    for dt in range(12):
        c = "0" if u == 0 else vr(F + 4 * dt)
        e(f"v_mfma_f32_16x16x32_bf16 {vr(F+4*dt)}, {vr(a)}, {rg(f, b+4*dt, 4)}, {c}")
        if fill: e(fill.pop(0))
    for x in fill: e(x)
def omov(dt): return f"v_mov_b32_dpp v{F+16*(dt//4)}, v{F+4*dt} quad_perm:[0,1,2,3] row_mask:{1<<(dt%4):#x} bank_mask:0xf"
def owr(q): return f"ds_write_b32 v{vAcc}, v{F+16*q} offset:{OACC+256*q}"
def pv_last():
    f, b = vblock(6); a = PA + 4
    post = {7: [omov(1)], 8: [omov(2), omov(3)], 9: [owr(0)], 10: [omov(5)], 11: [omov(6)]}
    for dt in range(12):
        e(f"v_mfma_f32_16x16x32_bf16 {vr(F+4*dt)}, {vr(a)}, {rg(f, b+4*dt, 4)}, {vr(F+4*dt)}")
        for x in post.get(dt, []): e(x)
    for x in [omov(7), owr(1), omov(9), omov(10), omov(11), owr(2)]: e(x)

def pf_wo():
    e(f"s_lshl_b32 s{sT0}, s{sHH}, 3"); e(f"s_add_u32 s{sT0}, s{sT0}, s{sG}"); e(f"s_lshl_b32 s{sT0}, s{sT0}, 3"); e(f"s_add_u32 s{sT0}, s{sT0}, s{sS}")
    e(f"s_lshl_b32 s{sT0}, s{sT0}, 2"); e(f"s_add_u32 s{sT0}, s{sT0}, s{sWV}"); e(f"s_mul_i32 s{sT0}, s{sT0}, 7680")
    for n in range(8):
        if n == 4: e(f"s_add_u32 s{sT0}, s{sT0}, 4096")
        if n == 7: setexec(0xffffffff)
        A.vmem(f"buffer_load_dwordx4 a[240:243], v{vLin}, {sr(sWQ)}, s{sT0} offen offset:{1024*(n%4)} {NTP}", "pfo")
    setexec(FULL)
Krel(0); Kld(3); Krel(1); pf_wo(); Krel(2)
e("s_waitcnt lgkmcnt(0)"); e("s_barrier")
stamp(1)
wq_frags()
Kld(4); Kld(5); Krel(3)
e(f"v_lshlrev_b32 v98, 2, v{vL}")
rdy = ["global_load_dword v99, v98, s[64:65] sc1"]
A.vmem(rdy[0], "rdy")
Kld(6); Krel(4); Kld(7); Krel(5)
def rdycheck():
    e("v_sad_u8 v100, v99, 0, 0")
    e("v_add_u32_dpp v100, v100, v100 quad_perm:[1,0,3,2] row_mask:0xf bank_mask:0xf")
    e("v_add_u32_dpp v100, v100, v100 quad_perm:[2,3,0,1] row_mask:0xf bank_mask:0xf")
    e("v_cmp_gt_u32 vcc, 32, v100"); e("s_mov_b32 vcc_hi, 0"); e("s_cmp_eq_u64 vcc, 0")
A.wait("rdy"); rdycheck(); e("s_cbranch_scc0 RDYLOOP"); lab("RDYOK")
def t_():
    lab("RDYLOOP"); e(f"s_mov_b32 s{sCnt}, 0"); lab("RDYL2"); e("s_sleep 8"); e(rdy[0]); e("s_waitcnt vmcnt(0)"); rdycheck(); e("s_cbranch_scc1 RDYOK")
    e(f"s_add_u32 s{sCnt}, s{sCnt}, 1"); e(f"s_cmp_lt_u32 s{sCnt}, {LIMIT}"); e("s_cbranch_scc1 RDYL2"); e("s_branch RDYOK")
tail.append(t_)
e(f"v_readlane_b32 s{sT0}, v99, s{sXcc}"); e(f"s_cmp_eq_u32 s{sT0}, s96"); e(f"s_cselect_b32 s{sFast}, {0 if FORCESLOW else 1}, 0")
stamp(2)
A.vmem(f"buffer_load_dwordx4 a[240:243], v{vC1}, {sr(sW)}, 0 offen sc1", "pre")
A.vmem(f"buffer_load_dwordx4 a[240:243], v{vC2}, {sr(sW)}, s{sClr} offen sc1", "pre")
e("s_waitcnt lgkmcnt(0)")
e(f"s_add_u32 s{sT2}, s{sLG}, {2*LS}")
qstage(70, f"s{sT2}", "qst"); qstage(SPARE, f"s{sLG}", "qst")
def pack_store16(d, instr_fn):
    for q in (1, 2, 3): e(f"v_mov_b32_dpp v{d+q}, v{d} quad_perm:[{q},{q},{q},{q}] row_mask:0xf bank_mask:0xf")
    setexec(0x1111); instr_fn(); setexec(FULL)
e(f"s_cmp_lg_u32 s{sWV}, 1"); e("s_cbranch_scc1 NOBASE0"); e(f"s_cmp_ge_u32 s{sJ}, 20"); e("s_cbranch_scc1 NOBASE0")
e(f"v_mov_b32 v28, v{vXR}"); e(f"s_lshl_b32 s{sT0}, s{sJ}, 6"); e(f"s_add_u32 s{sT0}, s{sT0}, s{sLG}"); e(f"s_add_u32 s{sT0}, s{sT0}, {oBA}"); e(f"v_lshlrev_b32 v27, 2, v{vL}")
pack_store16(28, lambda: lstore(f"buffer_store_dwordx4 v[28:31], v27, {sr(sW)}, s{sT0} offen"))
lab("NOBASE0")
e(f"v_and_b32 v{vXR+1}, 0xffff0000, v{vXR}"); e(f"v_lshlrev_b32 v{vXR}, 16, v{vXR}")
def pf_w13():
    e(f"s_sub_u32 s{sT0}, s{sJ}, 20"); e(f"s_lshl_b32 s{sT0}, s{sT0}, 1"); e(f"s_and_b32 s{sT1}, s{sWV}, 1"); e(f"s_add_u32 s{sT0}, s{sT0}, s{sT1}")
    e(f"s_mul_i32 s{sT0}, s{sT0}, 640"); e(f"v_add_u32 v36, s{sT0}, v{vL}"); e(f"s_mul_i32 s{sT1}, s{sG}, 384")
    for n in range(10):
        e("v_mul_u32_u24 v37, 43691, v36"); e("v_lshrrev_b32 v37, 20, v37"); e(f"v_mul_u32_u24 v37, {3072-384}, v37"); e("v_lshl_add_u32 v37, v36, 4, v37")
        e(f"buffer_load_dwordx4 a[240:243], v37, {sr(sX)}, s{sT1} offen {NTP}")
        if n < 9: e("v_add_u32 v36, 64, v36")
assert all((c * 43691) >> 20 == c // 24 for c in range(15360))
def role_dma():
    e(f"s_cmp_ge_u32 s{sJ}, 20"); e("s_cbranch_scc1 DMAF")
    e(f"v_lshrrev_b32 v38, 2, v{vL}"); e("v_mul_u32_u24 v38, 1280, v38"); e(f"v_and_b32 v39, 3, v{vL}"); e("v_lshl_add_u32 v38, v39, 4, v38")
    e(f"s_lshl_b32 s{sT0}, s{sWV}, 3"); e(f"s_add_u32 s{sT0}, s{sT0}, s{sG}"); e(f"s_mul_i32 s{sT0}, s{sT0}, {192*1280}"); e(f"s_lshl_b32 s{sT1}, s{sJ}, 6"); e(f"s_add_u32 s{sT0}, s{sT0}, s{sT1}")
    e(f"s_mul_i32 s{sT1}, s{sWV}, 12288"); e(f"s_add_u32 m0, s{sT1}, {WO}")
    for n in range(12):
        A.vmem(f"buffer_load_dwordx4 v38, {sr(sRA)}, s{sT0} offen {NTR} lds", "role", counted=(n < 10))
        if n < 11: e(f"s_add_u32 m0, m0, 1024"); e(f"s_add_u32 s{sT0}, s{sT0}, {16*1280}")
    lab("DMAX")
    def t():
        lab("DMAF"); pf_w13(); e("s_branch DMAX")
    tail.append(t)
def fdma():
    if True:
        e(f"v_lshrrev_b32 v24, 1, v{vL}"); e("v_mul_u32_u24 v24, 3072, v24"); e(f"v_and_b32 v25, 1, v{vL}"); e("v_lshl_add_u32 v24, v25, 4, v24")
        e(f"s_mul_i32 s{sT2}, s{sG}, 12"); e(f"s_add_u32 s{sT2}, s{sT2}, s{sJ}"); e(f"s_sub_u32 s{sT2}, s{sT2}, 20")
        e(f"s_mul_i32 s{sT0}, s{sWV}, {160*3072}"); e(f"s_lshl_b32 s{sT1}, s{sT2}, 5"); e(f"s_add_u32 s{sT0}, s{sT0}, s{sT1}")
        e(f"s_mul_i32 s{sT1}, s{sWV}, 5120")
        for n in range(5):
            e(f"s_add_u32 m0, s{sT1}, {W1+1024*n}"); e(f"buffer_load_dwordx4 v24, {sr(sRA)}, s{sT0} offen {NTR} lds")
            e(f"s_add_u32 m0, s{sT1}, {W3+1024*n}"); e(f"buffer_load_dwordx4 v24, {sr(sRB)}, s{sT0} offen {NTR} lds")
            if n < 4: e(f"s_add_u32 s{sT0}, s{sT0}, {32*3072}")
        e(f"s_mul_i32 s{sT0}, s{sT2}, 20480"); e(f"s_add_u32 s{sT0}, s{sT0}, s{sT1}")
        for n in range(5):
            e(f"s_add_u32 m0, s{sT1}, {W2+1024*n}"); e(f"buffer_load_dwordx4 v{vLin}, {sr(sRC)}, s{sT0} offen {NTW} lds")
            if n < 4: e(f"s_add_u32 s{sT0}, s{sT0}, 1024")
role_dma()
stamp(3)
Vld(0); Krel(6)
def cs_soffs():
    e(f"s_add_u32 s{sT0}, s{sLG}, {2*LS}"); e(f"s_add_u32 s{sT1}, s{sLG}, {2*LS+4096}"); e(f"s_add_u32 s{sT2}, s{sLG}, 4096")
cs_soffs()
gl = qloads(64, f"s{sT0}", f"s{sT1}") + qloads(72, f"s{sLG}", f"s{sT2}")
for l in gl: A.vmem(l, "qg")
Vld(1); Krel(7)
e(f"v_and_b32 v25, 15, v{vL}"); e(f"v_lshrrev_b32 v26, 4, v{vL}"); e("v_add_u32 v27, 4, v26")
rowbase(vC1, 26, oFG, oFL, None, 28); rowbase(vC2, 27, oFG, oFL, None, 28)
e(f"s_min_u32 s{sT3}, s{sJ}, 19"); e(f"s_lshl_b32 s{sT3}, s{sT3}, 6"); e(f"v_lshl_add_u32 v25, v25, 2, s{sT3}")
e(f"v_add_u32 v{vC1}, v{vC1}, v25"); e(f"v_add_u32 v{vC2}, v{vC2}, v25")
Vld(2); Vrel(0)
late_check("qg", gl, range(64, 80), 24, pre=cs_soffs)
qsum(64); qsum(72)
e(f"v_mul_f32 v{vCS}, 0x3acccccd, v64")
e(f"v_mov_b32 v{T}, v72")
stamp(4)
q_finish(T, lambda: Vld(3))
qk_softmax()
for x in lsum_ops(): e(x)
ml_store("mls")
stamp(5)
Vld(4); Vrel(1)
for x in pv_bcast(0, PA): e(x)
e("s_waitcnt lgkmcnt(0)"); pv_step(0)
Vld(5); Vrel(2); Vrel(3); Vld(6)
for x in pv_bcast(1, PA + 4): e(x)
e("s_waitcnt lgkmcnt(0)"); pv_step(1)
mll = [f"buffer_load_dwordx2 v[34:35], v{vML}, {sr(sW)}, s{sLG} offen sc1"]
Vrel(4); A.vmem(mll[0], "ml"); Vld(7)
Vrel(5)
for x in pv_bcast(2, PA): e(x)
e("s_waitcnt lgkmcnt(0)"); pv_step(2)
Vrel(6)
for x in pv_bcast(3, PA + 4): e(x)
Vrel(7)
e("s_waitcnt lgkmcnt(0)")
A.drained()
e("s_branch ATT_LAST")

lab("LOOP")
wq_frags()
e(f"v_and_b32 v25, 15, v{vL}"); e("v_cmp_eq_u32 vcc, 12, v25"); e("v_mov_b32 v36, 0x3f803f80"); e(f"v_cndmask_b32 v70, 0, v36, vcc")
for q in range(1, 10): e(f"v_mov_b32 v{70+q}, v70")
e(f"s_add_u32 s{sT2}, s{sLG}, 4096")
e(f"s_mul_i32 s{sT0}, s{sWV}, {SCRW}")
e(f"v_mul_u32_u24 v26, 103, v{vL}"); e("v_lshrrev_b32 v26, 10, v26"); e(f"v_lshl_add_u32 v26, v26, 4, v{vLin}"); e(f"v_add_u32 v26, s{sT0}, v26")
e(f"v_mul_u32_u24 v27, 176, v25"); e(f"v_add_u32 v27, s{sT0}, v27"); e(f"v_lshrrev_b32 v28, 4, v{vL}"); e("v_lshl_add_u32 v29, v28, 3, v27"); e("v_lshl_add_u32 v27, v28, 4, v27")
e("s_waitcnt lgkmcnt(0)")
setexec((1 << 60) - 1)
poll([f"buffer_load_dwordx4 v[80:83], v{vAq}, {sr(sW)}, 0 offen sc1", f"buffer_load_dwordx4 v[84:87], v{vAq16}, {sr(sW)}, 0 offen sc1"], [80, 84], 24, pid=1, slp=int(OPT.get("slpq", 0)))
e("ds_write_b128 v26, v[80:83]"); e(f"ds_write_b128 v26, v[84:87] offset:{6*176}")
setexec(ROWS9)
e("ds_read_b128 v[70:73], v27"); e("ds_read_b128 v[74:77], v27 offset:64"); e("ds_read_b64 v[78:79], v29 offset:128")
setexec(FULL)
stamp(1)
e(f"buffer_load_dword a244, v{vC1}, {sr(sW)}, 0 offen sc1"); e(f"buffer_load_dword a245, v{vC2}, {sr(sW)}, 0 offen sc1")
e("s_waitcnt lgkmcnt(0)")
qstage(70, f"s{sLG}")
stamp(2)
poll(qloads(T, f"s{sLG}", f"s{sT2}"), range(T, T + 8), T + 8, pid=4)
stamp(3)
qsum(T)
q_finish(T)
stamp(4)
qk_softmax()
stamp(5)
for x in pv_bcast(0, PA): e(x)
pv_step(0, lsum_ops() + ["\n".join(pv_bcast(1, PA + 4)[:2]), "\n".join(pv_bcast(1, PA + 4)[2:])])
ml_store()
pv_step(1, pv_bcast(2, PA)); pv_step(2, pv_bcast(3, PA + 4))
e(mll[0])
lab("ATT_LAST")
pv_last()
e(f"v_add_u32 v24, {ACC}, v{vLin}")
e(f"s_cmp_lg_u32 s{sWV}, 0"); e("s_cbranch_scc1 ONOT0")
e(f"s_cmp_eq_u32 s{sLay}, 0"); e("s_cbranch_scc1 MLHERE"); e("s_waitcnt vmcnt(0)"); lab("MLHERE")
late_check("none", mll, [34, 35], 36)
stamp(6)
e("v_mov_b32 v36, v34"); rowred("max", 36, None, (8, 4, 2, 1)); xrow("max", 36, 37, both=False)
e("v_sub_f32 v34, v34, v36"); e("v_exp_f32 v34, v34"); e("v_mul_f32 v35, v34, v35")
e("s_waitcnt lgkmcnt(0)"); e("s_barrier")
for w in range(4): e(f"ds_read_b128 {vr(F+4*w)}, v24 offset:{OACC+768*w}")
rowred("add", 35, None, (8, 4, 2, 1)); xrow("add", 35, 37, both=False)
e(f"s_lshl_b32 s{sT1}, s{sS}, 2"); e(f"s_add_u32 s{sT2}, s{sT1}, 1"); e(f"s_add_u32 s{sT3}, s{sT1}, 2"); e(f"s_add_u32 s{sCnt}, s{sT1}, 3")
e("v_rcp_f32 v35, v35"); e("v_mul_f32 v34, v34, v35")
for w, sx in enumerate((sT1, sT2, sT3, sCnt)): e(f"v_readlane_b32 s{96+w}, v34, s{sx}")
e(f"s_mul_i32 s{sT0}, s{sHH}, 3072"); e(f"s_lshl_b32 s{sT1}, s{sS}, 4"); e(f"s_add_u32 s{sT0}, s{sT0}, s{sT1}"); e(f"s_add_u32 s{sT0}, s{sT0}, s{sLG}"); e(f"s_add_u32 s{sT0}, s{sT0}, {oO}")
e(f"v_lshlrev_b32 v39, 6, v{vL}")
e("s_waitcnt lgkmcnt(0)")
for q in range(4): e(f"v_mul_f32 v{28+q}, s96, v{F+q}")
for w in range(1, 4):
    for q in range(4): e(f"v_fmac_f32 v{28+q}, s{96+w}, v{F+4*w+q}")
def pack_pairs():
    e("v_cvt_pk_bf16_f32 v28, v28, v29"); e("v_cvt_pk_bf16_f32 v29, v30, v31")
    e("v_mov_b32_dpp v30, v28 quad_perm:[1,1,3,3] row_mask:0xf bank_mask:0xf"); e("v_mov_b32_dpp v31, v29 quad_perm:[1,1,3,3] row_mask:0xf bank_mask:0xf")
pack_pairs()
setexec(0x5555555555555555 & ((1 << 48) - 1))
lstore(f"buffer_store_dwordx4 v[28:31], v39, {sr(sW)}, s{sT0} offen")
setexec(FULL)
stamp(7)
e(f"s_waitcnt vmcnt({2 if STAMP == 1 else 1})")
e("s_branch ODONE")
lab("ONOT0")
e("s_waitcnt lgkmcnt(0)"); e("s_barrier")
stamp(7)
e(f"s_waitcnt vmcnt({1 if STAMP == 1 else 0})")
lab("ODONE")
e(f"v_and_b32 v25, 15, v{vL}"); e(f"v_lshrrev_b32 v26, 4, v{vL}"); e(f"v_bfe_u32 v27, v{vL}, 2, 2"); e(f"v_and_b32 v36, 3, v{vL}")
e(f"s_cmp_ge_u32 s{sJ}, 20"); e("s_cbranch_scc1 ROLEF")
def owner_add():
    e("v_lshlrev_b32 v30, 16, v28"); e("v_and_b32 v28, 0xffff0000, v28"); e("v_lshlrev_b32 v31, 16, v29"); e("v_and_b32 v29, 0xffff0000, v29")
    e("v_add_f32 v30, v30, v31"); e("v_add_f32 v28, v28, v29")
    e("v_mov_b32 v31, v30"); e("v_mov_b32 v29, v28"); e("v_permlane32_swap_b32 v30, v31"); e("v_permlane32_swap_b32 v28, v29"); e("v_add_f32 v30, v30, v31"); e("v_add_f32 v28, v28, v29")
    e("v_mov_b32 v31, v30"); e("v_mov_b32 v29, v28"); e("v_permlane16_swap_b32 v30, v31"); e("v_permlane16_swap_b32 v28, v29"); e("v_add_f32 v30, v30, v31"); e("v_add_f32 v28, v28, v29")
    e(f"v_add_f32 v{vXR}, v{vXR}, v30"); e(f"v_add_f32 v{vXR+1}, v{vXR+1}, v28")
    e(f"v_cvt_pk_bf16_f32 v28, v{vXR}, v{vXR+1}")
def own_loads(a0, a1, soff): return [f"buffer_load_dword v28, v{a0}, {sr(sW)}, {soff} offen sc1", f"buffer_load_dword v29, v{a1}, {sr(sW)}, {soff} offen sc1"]
def base_store(ob):
    e(f"s_lshl_b32 s{sT0}, s{sJ}, 6"); e(f"s_add_u32 s{sT0}, s{sT0}, s{sLG}"); e(f"s_add_u32 s{sT0}, s{sT0}, {ob}"); e(f"v_lshlrev_b32 v37, 2, v{vL}")
    pack_store16(28, lambda: lstore(f"buffer_store_dwordx4 v[28:31], v37, {sr(sW)}, s{sT0} offen"))
e(f"s_mul_i32 s{sT0}, s{sWV}, 12288"); e(f"s_add_u32 s{sT0}, s{sT0}, {WO}")
e("v_lshl_add_u32 v37, v26, 3, v27"); e("v_lshlrev_b32 v37, 6, v37"); e("v_lshl_add_u32 v37, v36, 3, v37"); e(f"v_add_u32 v37, s{sT0}, v37")
stamp(13)
for t in range(2):
    for kk in range(6):
        for h in range(2): e(f"ds_read_b64_tr_b16 {vr(F+24*t+4*kk+2*h,2)}, v37 offset:{(32*kk+4*h)*64+32*t}")
e(f"s_cmp_lg_u32 s{sWV}, 1"); e("s_cbranch_scc1 NOOWN0"); e(f"s_cmp_eq_u32 s{sLay}, 0"); e("s_cbranch_scc1 NOOWN0")
e("v_accvgpr_read_b32 v28, a244"); e("v_accvgpr_read_b32 v29, a245")
late_check("none", own_loads(vC1, vC2, "0"), [28, 29], 30)
owner_add(); base_store(oBA)
lab("NOOWN0")
e("v_lshlrev_b32 v37, 4, v25"); e("v_lshl_add_u32 v37, v26, 7, v37")
e(f"s_mul_i32 s{sT2}, s{sWV}, 3072"); e(f"s_add_u32 s{sT2}, s{sT2}, s{sLG}"); e(f"s_add_u32 s{sT2}, s{sT2}, {oO}")
e(f"s_lshl_b32 s{sT0}, s{sJ}, 6"); e(f"s_mul_i32 s{sT1}, s{sG}, 1280"); e(f"s_add_u32 s{sT1}, s{sT1}, s{sT0}"); e(f"s_add_u32 s{sT1}, s{sT1}, s{sLay}")
e(f"s_add_u32 s{sT0}, s{sT0}, s{sLG}")
e(f"s_add_u32 s96, s{sT1}, {oYG}"); e(f"s_add_u32 s97, s{sT0}, {oYL}")
e(f"s_lshl_b32 s{sT3}, s{sWV}, 8"); e(f"s_add_u32 s{sT3}, s{sT3}, {ACC+YACC}"); e(f"v_lshl_add_u32 v27, v{vL}, 2, s{sT3}"); e(f"v_lshlrev_b32 v39, 3, v{vL}")
e("s_waitcnt lgkmcnt(0)")
if OMASK: setexec(0x00FF00FF00FF00FF)
poll([f"buffer_load_dwordx4 {vr(SPARE+4*kk)}, v37, {sr(sW)}, s{sT2} offen offset:{512*kk} sc1" for kk in range(6)], [SPARE + 4 * kk for kk in range(6)], 36, pid=7)
if OMASK: setexec(FULL)
stamp(8)
for kk in range(6):
    for t in range(2):
        c = "0" if kk == 0 else vr(28 + 4 * t)
        e(f"v_mfma_f32_16x16x32_bf16 {vr(28+4*t)}, {vr(SPARE+4*kk)}, {vr(F+24*t+4*kk)}, {c}")
for t in range(2): e(f"v_add_f32 v{28+4*t}, v{28+4*t}, v{29+4*t}"); e(f"v_add_f32 v{30+4*t}, v{30+4*t}, v{31+4*t}")
for t in range(2): e(f"v_add_f32 v{28+4*t}, v{28+4*t}, v{30+4*t}")
e("v_permlane16_swap_b32 v28, v32"); e("v_add_f32 v28, v28, v32")
e(f"ds_write_b32 v27, v28")
e(f"s_cmp_lg_u32 s{sWV}, 0")
e("s_waitcnt lgkmcnt(0)"); e("s_barrier")
e("s_cbranch_scc1 WNOT0")
for w in range(4): e(f"ds_read_b128 {vr(F+4*w)}, v24 offset:{YACC+256*w}")
e("s_waitcnt lgkmcnt(2)")
for q in range(4): e(f"v_add_f32 v{28+q}, v{F+q}, v{F+4+q}")
e("s_waitcnt lgkmcnt(0)")
for q in range(4): e(f"v_add_f32 v{32+q}, v{F+8+q}, v{F+12+q}")
for q in range(4): e(f"v_add_f32 v{28+q}, v{28+q}, v{32+q}")
pack_pairs()
setexec(0x55)
e(f"buffer_store_dwordx4 v[28:31], v39, {sr(sW)}, s96 offen sc1")
lstore(f"buffer_store_dwordx4 v[28:31], v39, {sr(sW)}, s97 offen")
setexec(FULL)
stamp(9)
e(f"v_lshrrev_b32 v37, 5, v{vL}"); e("v_mul_u32_u24 v37, 2560, v37"); e(f"v_and_b32 v38, 31, v{vL}"); e("v_lshl_add_u32 v37, v38, 2, v37")
for k in range(1, 6): e(f"v_add_u32 v{F+k}, {5120*k}, v37")
e(f"s_lshl_b32 s{sT2}, s{sJ}, 7"); e(f"s_add_u32 s{sT2}, s{sT2}, s{sLG}"); e(f"s_add_u32 s{sT2}, s{sT2}, {oFP}")
e(f"s_add_u32 s96, s{sT1}, {oFG}"); e(f"s_add_u32 s97, s{sT0}, {oFL}"); e(f"v_lshlrev_b32 v39, 1, v{vL}")
poll([f"buffer_load_dword v{28+k}, v{37 if k==0 else F+k}, {sr(sW)}, s{sT2} offen sc1" for k in range(6)], range(28, 34), 36, pid=10)
stamp(10)
e("v_add_f32 v28, v28, v29"); e("v_add_f32 v30, v30, v31"); e("v_add_f32 v32, v32, v33"); e("v_add_f32 v28, v28, v30"); e("v_add_f32 v28, v28, v32")
e("v_mov_b32 v29, v28"); e("v_permlane32_swap_b32 v28, v29"); e("v_add_f32 v28, v28, v29")
e("v_mov_b32_dpp v29, v28 row_shl:1 row_mask:0xf bank_mask:0xf"); e("v_cvt_pk_bf16_f32 v28, v28, v29")
for q in (1, 2, 3): e(f"v_mov_b32_dpp v{28+q}, v28 row_shl:{2*q} row_mask:0xf bank_mask:0xf")
setexec(0x01010101)
e(f"buffer_store_dwordx4 v[28:31], v39, {sr(sW)}, s96 offen sc1")
lstore(f"buffer_store_dwordx4 v[28:31], v39, {sr(sW)}, s97 offen")
setexec(FULL)
stamp(11)
e("s_branch NEXT")
lab("WNOT0")
e(f"s_cmp_lg_u32 s{sWV}, 1"); e("s_cbranch_scc1 NEXT")
rowbase(37, 26, oYG, oYL, None, 38); e("v_add_u32 v39, 4, v26"); rowbase(38, 39, oYG, oYL, None, 28)
e(f"s_lshl_b32 s{sT0}, s{sJ}, 6"); e(f"s_add_u32 s{sT0}, s{sT0}, s{sLay}")
e("v_lshl_add_u32 v37, v25, 2, v37"); e("v_lshl_add_u32 v38, v25, 2, v38")
poll(own_loads(37, 38, f"s{sT0}"), [28, 29], 30)
owner_add()
e(f"s_cmp_lg_u32 s{sLay}, 0"); e("s_cbranch_scc1 FINAL")
base_store(oBB)
e("s_branch NEXT")
lab("FINAL")
e(f"s_cmp_lg_u32 s{sG}, 0"); e("s_cbranch_scc1 DONE")
e(f"s_lshl_b32 s{sT0}, s{sJ}, 6"); e(f"v_lshlrev_b32 v37, 2, v{vL}")
poll(own_loads(vC1, vC2, f"s{sLay}"), [28, 29], 30)
owner_add()
setexec(0xffff)
e(f"buffer_store_dword v28, v37, {sr(sO)}, s{sT0} offen")
setexec(FULL)
stamp(12)
e("s_branch DONE") if SPIN else e("s_endpgm")
lab("ROLEF")
FA = SPARE
vCG, vCU = vXR, vXR + 1
sPass = sClr
e(f"s_mov_b32 s{sPass}, 1")
e(f"s_cmp_lg_u32 s{sLay}, 0"); e("s_cbranch_scc1 FW")
e(f"s_mov_b32 s{sPass}, 0")
if FDMA != "early":
    e("v_mov_b32 v86, v25"); fdma(); e("v_mov_b32 v25, v86"); e("s_waitcnt vmcnt(0)"); stamp(13)
lab("FW")
e(f"s_mul_i32 s{sT0}, s{sWV}, 5120"); e(f"s_add_u32 s{sT0}, s{sT0}, {W1}")
e("v_lshl_add_u32 v37, v26, 3, v27"); e("v_lshlrev_b32 v37, 5, v37"); e("v_lshl_add_u32 v37, v36, 3, v37"); e(f"v_add_u32 v37, s{sT0}, v37")
for t in range(2):
    for kk in range(5):
        for h in range(2): e(f"ds_read_b64_tr_b16 {vr(F+20*t+4*kk+2*h,2)}, v37 offset:{(32*kk+4*h)*32+20480*t}")
e(f"s_mul_i32 s{sT0}, s{sWV}, 320"); e(f"s_add_u32 s{sT0}, s{sT0}, {W2}")
e(f"v_lshrrev_b32 v80, 2, v{vL}"); e("v_mul_u32_u24 v80, 1280, v80"); e("v_lshl_add_u32 v80, v36, 3, v80"); e(f"v_add_u32 v80, s{sT0}, v80")
e(f"s_lshl_b32 s{sT2}, s{sWV}, 2"); e(f"s_add_u32 s{sT2}, s{sT2}, {ACC+FACC}"); e(f"v_add_u32 v81, s{sT2}, v{vLin}")
e("v_lshl_add_u32 v82, v26, 2, v36"); e("v_lshlrev_b32 v82, 4, v82"); e(f"v_add_u32 v82, {ACC+FACC}, v82")
e("v_cmp_eq_u32 vcc, 12, v25")
e("v_mov_b32 v38, 13"); e("v_cndmask_b32 v83, v25, v38, vcc"); e("v_lshlrev_b32 v83, 4, v83"); e(f"v_add_u32 v83, {ACC+FACC+512}, v83")
e(f"v_mov_b32 v85, {ACC+FACC+512+192}")
e("v_lshlrev_b32 v84, 6, v25"); e("v_lshl_add_u32 v84, v26, 4, v84")
e("v_mov_b32 v38, 0x3f803f80"); e(f"v_cndmask_b32 v{FA}, 0, v38, vcc")
for q in range(1, 20): e(f"v_mov_b32 v{FA+q}, v{FA}")
e(f"s_mul_i32 s{sT0}, s{sWV}, {SCRW}")
e(f"v_mul_u32_u24 v6, 336, v25"); e("v_lshl_add_u32 v6, v26, 4, v6"); e(f"v_add_u32 v6, s{sT0}, v6")
e(f"v_mul_u32_u24 v37, 52, v{vL}"); e("v_lshrrev_b32 v37, 10, v37")
e(f"v_lshl_add_u32 v87, v37, 4, v{vLin}"); e(f"v_add_u32 v87, s{sT0}, v87")
e(f"v_mul_u32_u24 v27, 320, v37"); e(f"v_sub_u32 v27, v{vLin}, v27")
assert all((c * 52) >> 10 == c // 20 for c in range(64))
FG = [86, 18, 19]
for i in range(3):
    rowbase(FG[i], 37, oYG, oYL, oBA, 38); e(f"v_add_u32 v{FG[i]}, v{FG[i]}, v27")
    if i < 2: e("v_add_u32 v37, 3, v37")
e(f"s_mul_i32 s{sT0}, s{sWV}, 320"); e(f"s_add_u32 s{sT0}, s{sT0}, s{sLay}")
e(f"s_sub_u32 s{sT1}, s{sJ}, 20"); e(f"s_mul_i32 s{sT1}, s{sT1}, 2560"); e(f"s_mul_i32 s{sT3}, s{sWV}, 640"); e(f"s_add_u32 s{sT1}, s{sT1}, s{sT3}")
e(f"s_add_u32 s{sT1}, s{sT1}, s{sLG}"); e(f"s_add_u32 s{sT1}, s{sT1}, {oFP}")
e("s_waitcnt lgkmcnt(0)")
e(f"s_cmp_eq_u32 s{sPass}, 0"); e("s_cbranch_scc1 FMM")
lab("FPOLL")
W2R = [f"a[{240+2*t}:{241+2*t}]" for t in range(6)] + ["v[108:109]", "v[110:111]", "v[2:3]", "v[4:5]"]
for t in range(10): e(f"ds_read_b64_tr_b16 {W2R[t]}, v80 offset:{32*t}")
e("s_waitcnt lgkmcnt(0)")
setexec((1 << 60) - 1)
poll([f"buffer_load_dwordx4 {vr(T+4*i)}, v{FG[i]}, {sr(sW)}, s{sT0} offen sc1" for i in range(3)], [T, T + 4, T + 8], 36, pid=7, slp=int(OPT.get("slpy", 0)))
for i in range(3): e(f"ds_write_b128 v87, {vr(T+4*i)} offset:{3*336*i}")
setexec(ROWS9)
for kk in range(5): e(f"ds_read_b128 {vr(FA+4*kk)}, v6 offset:{64*kk}")
setexec(FULL)
e("s_waitcnt lgkmcnt(0)")
stamp(8)
lab("FMM")
for kk in range(5):
    for t in range(3):
        c = "0" if kk == 0 else vr(T + 4 * t)
        bb = vr(F + 20 * t + 4 * kk) if t < 2 else vr(FA + 4 * kk)
        e(f"v_mfma_f32_16x16x32_bf16 {vr(T+4*t)}, {vr(FA+4*kk)}, {bb}, {c}")
for t in range(3): e(f"v_add_f32 v{T+4*t}, v{T+4*t}, v{T+4*t+1}"); e(f"v_add_f32 v{T+4*t+2}, v{T+4*t+2}, v{T+4*t+3}")
for t in range(3): e(f"v_add_f32 v{T+4*t}, v{T+4*t}, v{T+4*t+2}")
xreduce(T, T + 4, T + 8, T + 1)
e(f"ds_write_b32 v81, v{T}")
e(f"s_cmp_eq_u32 s{sPass}, 0")
e("s_waitcnt lgkmcnt(0)"); e("s_barrier")
e(f"ds_read_b128 {vr(T)}, v83"); e(f"ds_read_b128 {vr(T+4)}, v85"); e(f"ds_read_b128 {vr(T+8)}, v82"); e(f"ds_read_b128 {vr(T+12)}, v82 offset:256")
e("s_cbranch_scc1 FCS")
def sum4(b): e(f"v_add_f32 v{b}, v{b}, v{b+1}"); e(f"v_add_f32 v{b+2}, v{b+2}, v{b+3}"); e(f"v_add_f32 v{b}, v{b}, v{b+2}")
d = lambda sft: f"v_add_f32_dpp v{T}, v{T}, v{T} row_ror:{sft} row_mask:0xf bank_mask:0xf"
e("s_waitcnt lgkmcnt(3)"); sum4(T); e("s_waitcnt lgkmcnt(2)")
e(f"v_add_f32 v{T+4}, v{T+4}, v{T+5}"); e(d(8)); e(f"v_add_f32 v{T+6}, v{T+6}, v{T+7}"); e(f"v_add_f32 v{T+4}, v{T+4}, v{T+6}"); e(d(4))
e("s_waitcnt lgkmcnt(0)")
e(f"v_subrev_f32 v{T+5}, 0x44200000, v{T+4}"); e(d(2))
e(f"v_add_f32 v{T+8}, v{T+8}, v{T+9}"); e(f"v_mul_f32 v{T+6}, 0x3acccccd, v{T+5}"); e(d(1))
e(f"v_add_f32 v{T+10}, v{T+10}, v{T+11}"); e(f"v_sub_f32 v{T}, v{T}, v{T+5}")
e(f"v_add_f32 v{T+8}, v{T+8}, v{T+10}"); e(f"v_mul_f32 v{T}, 0x3acccccd, v{T}")
e(f"v_add_f32 v{T+12}, v{T+12}, v{T+13}"); e(f"v_fma_f32 v{T}, -v{T+6}, v{T+6}, v{T}")
e(f"v_add_f32 v{T+14}, v{T+14}, v{T+15}"); e(f"v_max_f32 v{T}, 0, v{T}")
e(f"v_fma_f32 v{T+8}, -v{T+4}, v{vCG}, v{T+8}"); e(f"v_add_f32 v{T}, 0x3727c5ac, v{T}")
e(f"v_add_f32 v{T+12}, v{T+12}, v{T+14}"); e(f"v_rsq_f32 v{T}, v{T}")
e(f"v_fma_f32 v{T+12}, -v{T+4}, v{vCU}, v{T+12}"); e(f"v_mul_f32 v{T+9}, 0xbfb8aa3b, v{T+8}")
e(f"v_mul_f32 v{T+9}, v{T+9}, v{T}"); e(f"v_mul_f32 v{T+12}, v{T+12}, v{T+8}"); e(f"v_exp_f32 v{T+9}, v{T+9}")
e(f"v_mul_f32 v{T+12}, v{T+12}, v{T}"); e(f"v_add_f32 v{T+9}, 1.0, v{T+9}"); e(f"v_mul_f32 v{T+12}, v{T+12}, v{T}"); e(f"v_rcp_f32 v{T+9}, v{T+9}")
e(f"v_mul_f32 v{T+12}, v{T+12}, v{T+9}")
for q in range(4): e(f"v_mov_b32_dpp v{T+4+q}, v{T+12} quad_perm:[{q},{q},{q},{q}] row_mask:0xf bank_mask:0xf")
e(f"v_cvt_pk_bf16_f32 v{T+4}, v{T+4}, v{T+5}"); e(f"v_cvt_pk_bf16_f32 v{T+5}, v{T+6}, v{T+7}")
HB = 60
def hm(t): return [f"v_cndmask_b32 v{HB+2*t+q}, 0, v{T+4+q}, {sp(sMf+2*t)}" for q in range(2)]
for x in hm(0) + hm(1): e(x)
for t in range(10):
    c = "0" if t == 0 else vr(T)
    e(f"v_mfma_f32_16x16x16_bf16 {vr(T)}, {W2R[t]}, {vr(HB+2*t,2)}, {c}")
    if t + 2 < 10:
        for x in hm(t + 2): e(x)
setexec(0x03FF03FF03FF03FF)
lstore(f"buffer_store_dwordx4 {vr(T)}, v84, {sr(sW)}, s{sT1} offen")
setexec(FULL)
stamp(9)
def t_():
    lab("FCS")
    e("s_waitcnt lgkmcnt(0)"); sum4(T + 8); sum4(T + 12)
    e(f"v_mul_f32 v{vCG}, 0x3acccccd, v{T+8}"); e(f"v_mul_f32 v{vCU}, 0x3acccccd, v{T+12}")
    e(f"s_mov_b32 s{sPass}, 1"); e("s_barrier"); e("s_branch FPOLL")
tail.append(t_)
lab("NEXT")
e(f"s_cmp_lg_u32 s{sLay}, 0"); e("s_cbranch_scc1 DONE")
e(f"s_mov_b32 s{sLay}, {LS}"); e(f"s_add_u32 s{sLG}, s{sLG}, {LS}")
e("s_branch LOOP")
lab("DONE")
if SPIN:
    e("v_accvgpr_read_b32 v38, a253"); e("s_nop 1"); e("v_readfirstlane_b32 s96, v38")
    lab("SPINL"); e("s_memrealtime s[98:99]"); e("s_waitcnt lgkmcnt(0)"); e("s_sub_u32 s98, s98, s96"); e(f"s_cmp_lt_u32 s98, {SPIN*100}"); e("s_cbranch_scc1 SPINL")
e("s_endpgm")
i = 0
while i < len(tail): tail[i](); i += 1
lab("CODE_END")
e("s_endpgm")

body = A.pad()
hdr = [f"; @launch grid=(256,1,1) block=(256,1,1) lds={LDSSZ}", '.amdgcn_target "amdgcn-amd-amdhsa--gfx950"', ".text",
       f".globl {NAME}_kernel", ".p2align 8", f".type {NAME}_kernel,@function", f"{NAME}_kernel:"]
ftr = ['.section .rodata,"a"', ".p2align 6", f".amdhsa_kernel {NAME}_kernel", "  .amdhsa_next_free_vgpr 512", "  .amdhsa_next_free_sgpr 102",
       "  .amdhsa_accum_offset 256", "  .amdhsa_group_segment_fixed_size 0", "  .amdhsa_kernarg_size 96", "  .amdhsa_user_sgpr_count 2",
       "  .amdhsa_user_sgpr_kernarg_segment_ptr 1", "  .amdhsa_system_sgpr_workgroup_id_x 1", ".end_amdhsa_kernel"]
src = "\n".join(hdr + body + ftr) + "\n"
import re
for m in re.finditer(r"buffer_\S+ .*offset:(\d+)", src): assert int(m.group(1)) < 4096, m.group(0)
for m in re.finditer(r"ds_\S+ .*offset:(\d+)", src): assert int(m.group(1)) < 65536, m.group(0)
open(OUT, "w").write(src)
```

```python
import os, sys
sys.path.insert(0, os.path.dirname(os.path.abspath(__file__)))
from asmlib import Asm
NAME = "interleave_layers__sliding_block_cached__glu_gated_swiglu__decode"
OPT = dict(a.split("=") for a in sys.argv[2:])
OUT = sys.argv[1] if len(sys.argv) > 1 else f"/code/{NAME}.s"
STAMP = int(OPT.get("stamp", 0))
NT = OPT.get("nt", "nt").replace("x", "")
NTW = OPT.get("ntw", "nt").replace("x", "")
FORCESLOW = int(OPT.get("slow", 0))
SPIN = int(OPT.get("spin", 0))
A = Asm(); e = A.e; lab = A.lab
tail = []

RS = 416; SCRW = 16 * RS
SCR = 0; WQ = 4 * SCRW; ROLE = WQ + 30720
WO = ROLE; W1 = ROLE; W3 = ROLE + 20480; W2 = ROLE + 40960
MISC = ROLE + 61440; QB = MISC; ACC = MISC + 512
OACC = 0; YACC = 3072; FACC = 4096
LDSSZ = ACC + 5120
FDMA = OPT.get("fdma", "late")
OMASK = int(OPT.get("omask", 1))
WDMA = OPT.get("wdma", "mid")
PF = OPT.get("pf", "ow")
NTP = OPT.get("ntp", "x").replace("x", "")
NTR = OPT.get("ntr", "x").replace("x", "")
GB = 81920; oQ = 0; oO = 32768; oML = 45056; oFP = 46080; oYL = 76800; oFL = 78080; oBA = 79360; oBB = 80640
GOFF = 8 * GB; oYG = GOFF; oFG = GOFF + 10240; LS = 0xA8000
OOB = 0x7FFFFFF0
sK, sV, sW, sWQ, sRA, sRB, sRC, sX, sO = 8, 12, 16, 20, 24, 28, 32, 36, 40
sG, sJ, sHH, sS, sWV, sKV, sLay, sFast, sCnt = 68, 69, 70, 71, 72, 73, 74, 75, 76
sT0, sT1, sT2 = 77, 78, 79
sLG = 3
sClr = 4
sXcc = 5
sTL = 6
sT3 = 7
sMq = 80
sMf = 44
def sr(b): return f"s[{b}:{b+3}]"
def sp(b): return f"s[{b}:{b+1}]"
def vr(b, n=4): return f"v[{b}:{b+n-1}]" if n > 1 else f"v{b}"
def ar(b, n=4): return f"a[{b}:{b+n-1}]"
def srd(d, lo, nbytes):
    e(f"s_mov_b32 s{d}, s{lo}"); e(f"s_and_b32 s{d+1}, s{lo+1}, 0xffff")
    e(f"s_mov_b32 s{d+2}, {nbytes}"); e(f"s_mov_b32 s{d+3}, 0x20000")
def setexec(mask):
    lo, hi = mask & 0xffffffff, mask >> 32
    if mask == (1 << 64) - 1: e("s_mov_b64 exec, -1")
    elif hi == 0 and lo <= 64: e(f"s_mov_b64 exec, {lo}")
    else: e(f"s_mov_b32 exec_lo, {lo:#x}"); e(f"s_mov_b32 exec_hi, {hi:#x}")
FULL = (1 << 64) - 1
ROWS9 = 0x01FF01FF01FF01FF
vL, vLin, vWr, vKrd, vVrd, vCS, vAq, vAq16, vQst, vQld, vQBw, vQBr, vML, vAcc, vTq1, vTq2, vSC, vM = 0, 1, 2, 5, 6, 7, 8, 9, 10, 11, 12, 13, 14, 15, 16, 17, 18, 19
vC1, vC2, vXR = 20, 21, 22
T = 24
F = 40
SPARE = 88
def vblock(b):
    if b < 2: return ("a", 192 + 24 * b)
    if b == 8: return ("v", SPARE)
    return ("v", 112 + 24 * (b - 2))
def rg(f, b, n): return f"{f}[{b}:{b+n-1}]"

uid = [0]
def nid(): uid[0] += 1; return uid[0]
stamps = [0]
SPINAT = int(OPT.get("spinat", -1))
def stamp(i, val=None):
    if SPIN and val is None and SPINAT % 16 == i:
        k = nid()
        e(f"s_cmp_lg_u32 s{sLay}, {LS*(SPINAT//16)}"); e(f"s_cbranch_scc1 NOSP{k}")
        e("s_memrealtime s[100:101]"); e("s_waitcnt lgkmcnt(0)"); e("v_accvgpr_write_b32 a253, s100"); lab(f"NOSP{k}")
    if not STAMP: return
    if STAMP == 2 and val is None and i not in (0, 14): return
    if STAMP == 1 and (val is not None or i == 14): return
    e("s_memrealtime s[100:101]"); e("v_accvgpr_write_b32 a254, v38"); e("v_accvgpr_write_b32 a255, v39")
    e(f"s_lshl_b32 s98, s2, 2"); e(f"s_add_u32 s98, s98, s{sWV}"); e("s_lshl_b32 s98, s98, 7")
    e(f"s_cmp_eq_u32 s{sLay}, 0"); e(f"s_cselect_b32 s99, 0, 64"); e(f"s_add_u32 s99, s99, {4*i}"); e("s_add_u32 s98, s98, s99"); e("s_add_u32 s98, s98, 0x40000000")
    e("s_waitcnt lgkmcnt(0)"); e(f"v_mov_b32 v38, {val or 's100'}"); e("v_mov_b32 v39, 0")
    e("s_mov_b64 s[100:101], exec"); e("s_mov_b64 exec, 1")
    A.vmem(f"buffer_store_dword v38, v39, {sr(sW)}, s98 offen", "stamp")
    e("s_mov_b64 exec, s[100:101]"); e("s_nop 1"); e("v_accvgpr_read_b32 v38, a254"); e("v_accvgpr_read_b32 v39, a255")
def lstore(instr, counted=None):
    k = nid()
    e(f"s_cmp_eq_u32 s{sFast}, 1"); e(f"s_cbranch_scc0 SLOW{k}")
    if counted: A.vmem(instr, counted)
    else: e(instr)
    lab(f"BACK{k}")
    def t(): lab(f"SLOW{k}"); e(instr + " sc1"); e(f"s_branch BACK{k}")
    tail.append(t)
def check(regs_, tmp):
    r = list(regs_)
    if len(r) == 1: e(f"v_cmp_eq_u32 vcc, -1, v{r[0]}"); return
    cur = r.pop(0)
    while r:
        if len(r) >= 2: e(f"v_max3_u32 v{tmp}, v{cur}, v{r[0]}, v{r[1]}"); r = r[2:]
        else: e(f"v_max_u32 v{tmp}, v{cur}, v{r[0]}"); r = r[1:]
        cur = tmp
    e(f"v_cmp_eq_u32 vcc, -1, v{tmp}")
LIMIT = 0x8000
def poll(loads, regs_, tmp, pid=None, slp=0):
    k = nid()
    if pid is not None: stamp(pid, "s100")
    e(f"s_mov_b32 s{sCnt}, 0")
    lab(f"POLL{k}")
    for l in loads: e(l)
    e(f"s_add_u32 s{sCnt}, s{sCnt}, 1"); e(f"s_cmp_ge_u32 s{sCnt}, {LIMIT}")
    e("s_waitcnt vmcnt(0)")
    check(regs_, tmp)
    e(f"s_cbranch_scc1 POLLX{k}")
    if slp:
        e(f"s_cbranch_vccz POLLX{k}"); e(f"s_sleep {slp}"); e(f"s_branch POLL{k}")
    else: e(f"s_cbranch_vccnz POLL{k}")
    lab(f"POLLX{k}")
    if pid is not None: stamp(pid + 1, "s100"); stamp(pid + 2, f"s{sCnt}")
    A.drained()
def late_check(tag, loads, regs_, tmp, pre=None, post=None):
    k = nid()
    A.wait(tag)
    check(regs_, tmp)
    e(f"s_cbranch_vccnz RETRY{k}")
    lab(f"OK{k}")
    def t():
        lab(f"RETRY{k}")
        if pre: pre()
        save = A.vm; poll(loads, regs_, tmp); A.vm = save
        if post: post()
        e(f"s_branch OK{k}")
    tail.append(t)

e("s_cmp_ge_u32 s2, 256"); e("s_cbranch_scc1 CODE_END")
e("s_load_dwordx16 s[44:59], s[0:1], 0"); e("s_load_dwordx8 s[60:67], s[0:1], 64")
if STAMP or SPIN: e("s_memrealtime s[96:97]")
e("v_lshrrev_b32 v2, 6, v0"); e("v_and_b32 v24, 63, v0"); e(f"v_readfirstlane_b32 s{sWV}, v2")
e(f"s_and_b32 s{sG}, s2, 7"); e(f"s_lshr_b32 s{sJ}, s2, 3"); e(f"s_lshr_b32 s{sHH}, s{sJ}, 3"); e(f"s_and_b32 s{sS}, s{sJ}, 7")
e(f"v_lshlrev_b32 v{vLin}, 4, v24")
e(f"s_lshl_b32 s{sT0}, s{sHH}, 3"); e(f"s_add_u32 s{sT0}, s{sT0}, s{sG}")
e(f"s_mul_i32 s{sKV}, s{sT0}, 12582912"); e(f"s_lshl_b32 s{sT1}, s{sS}, 2"); e(f"s_add_u32 s{sT1}, s{sT1}, s{sWV}")
e(f"s_mul_i32 s{sT1}, s{sT1}, 6144"); e(f"s_add_u32 s{sKV}, s{sKV}, s{sT1}"); e(f"s_add_u32 s{sKV}, s{sKV}, 11010048")
e(f"s_mul_i32 s{sT2}, s{sT0}, 384")
e(f"s_mov_b32 s{sLay}, 0"); e(f"s_mul_i32 s{sLG}, s{sG}, {GB}"); e(f"s_mov_b32 s{sFast}, 0")
e(f"v_mov_b32 v32, -1"); e(f"v_mov_b32 v33, -1"); e(f"v_mov_b32 v34, -1"); e(f"v_mov_b32 v35, -1")
e(f"s_mul_i32 s{sT0}, s{sJ}, 2560"); e(f"s_add_u32 s{sT0}, s{sT0}, s{sLG}")
e(f"v_lshl_add_u32 v{vC1}, v0, 4, s{sT0}"); e("v_cmp_le_u32 vcc, 160, v0"); e(f"v_add_u32 v25, {LS-2560}, v{vC1}"); e(f"v_cndmask_b32 v{vC1}, v{vC1}, v25, vcc")
e(f"s_add_u32 s{sT0}, s{sT0}, {LS+16*96}")
e(f"s_lshl_b32 s{sT1}, s{sJ}, 10"); e(f"s_add_u32 s{sT1}, s{sT1}, s{sLG}"); e(f"s_add_u32 s{sT1}, s{sT1}, {2*LS}")
e(f"s_cmp_eq_u32 s{sWV}, 0"); e(f"s_cselect_b32 s{sClr}, s{sT0}, s{sT1}")
e(f"s_mul_i32 s{sT0}, s2, 80"); e(f"s_add_u32 s{sT0}, s{sT0}, {GOFF}")
e(f"s_cmp_ge_u32 s{sWV}, 2"); e(f"s_cselect_b32 s{sClr}, s{sT0}, s{sClr}")
e(f"v_add_u32 v25, {LS-80}, v{vLin}"); e("v_cmp_le_u32 vcc, 133, v0"); e(f"v_cndmask_b32 v{vC2}, v{vLin}, v25, vcc")
e(f"v_mov_b32 v25, {OOB-0x10000000}"); e("v_cmp_le_u32 vcc, 138, v0"); e(f"v_cndmask_b32 v{vC2}, v{vC2}, v25, vcc")
e("s_waitcnt lgkmcnt(0)")
srd(sK, 46, 402653184)
if SPIN: e("v_mov_b32 v38, s96"); e("v_accvgpr_write_b32 a253, v38")
def tile_loads(srdn, t, f, base, tag):
    for i in range(6):
        if i == 0: e(f"s_add_u32 s{sTL}, s{sKV}, {t*196608}")
        if i == 4: e(f"s_add_u32 s{sTL}, s{sTL}, 4096")
        A.vmem(f"buffer_load_dwordx4 {rg(f, base+4*i, 4)}, v{vLin}, {sr(srdn)}, s{sTL} offen offset:{1024*(i%4)} {NT}", tag)
def Kld(t): tile_loads(sK, t, "a", 24 * t, f"K{t}")
def Vld(t): f, b = vblock(t + 1); tile_loads(sV, t, f, b, f"V{t}")
Kld(0)
srd(sW, 66, 1610612736)
A.vmem(f"buffer_store_dwordx4 v[32:35], v{vC1}, {sr(sW)}, 0 offen sc1", "clr")
A.vmem(f"buffer_store_dwordx4 v[32:35], v{vC2}, {sr(sW)}, s{sClr} offen sc1", "clr")
e("s_getpc_b64 s[100:101]"); lab("PCREF")
e(f"s_sub_u32 s100, s100, PCREF-{NAME}_kernel"); e("s_subb_u32 s101, s101, 0")
e(f"s_and_b32 s{sT0}, s{sJ}, 7"); e(f"s_lshl_b32 s{sT0}, s{sT0}, 12"); e(f"v_lshl_add_u32 v25, v0, 4, s{sT0}")
e(f"v_cmp_gt_u32 vcc, CODE_END-{NAME}_kernel-16, v25"); e("s_and_saveexec_b64 s[98:99], vcc"); e("s_cbranch_execz NOCPF")
e(f"global_load_dwordx4 a[240:243], v25, s[100:101]")
lab("NOCPF"); e("s_mov_b64 exec, -1")
Kld(1)
srd(sV, 48, 402653184); srd(sWQ, 50, 7864320); srd(sX, 44, 1280); srd(sO, 62, 1280)
srd(sRB, 58, 1966080); srd(sRC, 60, 1966080)
e(f"s_cmp_lt_u32 s{sJ}, 20"); e(f"s_cselect_b32 s{sRA}, s52, s56"); e(f"s_cselect_b32 s{sRA+1}, s53, s57"); e(f"s_cselect_b32 s{sRA+2}, s{sWQ+2}, s{sRB+2}")
e(f"s_and_b32 s{sRA+1}, s{sRA+1}, 0xffff"); e(f"s_mov_b32 s{sRA+3}, 0x20000")
if STAMP:
    e(f"s_lshl_b32 s98, s2, 2"); e(f"s_add_u32 s98, s98, s{sWV}"); e("s_lshl_b32 s98, s98, 7"); e("s_add_u32 s98, s98, 0x40000000")
    e("v_mov_b32 v38, s96"); e("v_mov_b32 v39, 0"); e("s_mov_b64 exec, 1")
    A.vmem(f"buffer_store_dword v38, v39, {sr(sW)}, s98 offen", "stamp"); e("s_mov_b64 exec, -1")
A.wait("clr"); e("s_barrier")
e(f"s_getreg_b32 s{sXcc}, hwreg(HW_REG_XCC_ID, 0, 4)")
e(f"s_lshr_b32 s{sT0}, s{sXcc}, 2"); e(f"s_lshl_b32 s{sT1}, s{sG}, 2"); e(f"s_add_u32 s{sT0}, s{sT0}, s{sT1}")
e(f"s_and_b32 s{sT1}, s{sXcc}, 3"); e(f"s_lshl_b32 s{sT1}, s{sT1}, 3"); e(f"s_lshl_b32 s{sT3}, 1, s{sT1}")
e(f"s_lshl_b32 s96, 32, s{sT1}"); e(f"s_mov_b32 s{sXcc}, s{sT0}")
e(f"s_cmp_lg_u32 s{sWV}, 0"); e("s_cbranch_scc1 NOATOM")
e(f"s_lshl_b32 s{sT0}, s{sT0}, 2"); e(f"v_mov_b32 v36, s{sT0}"); e(f"v_mov_b32 v37, s{sT3}")
setexec(1); e("global_atomic_add v36, v37, s[64:65] sc1"); setexec(FULL)
lab("NOATOM")
e(f"v_mov_b32 v{vL}, v24")
e(f"s_mul_i32 s{sT0}, s{sWV}, {SCRW}")
for r in range(3):
    e(f"v_add_u32 v25, {64*r}, v{vL}"); e("v_mul_u32_u24 v26, 171, v25"); e("v_lshrrev_b32 v26, 12, v26")
    e("v_mul_u32_u24 v27, 24, v26"); e("v_sub_u32 v27, v25, v27"); e("v_lshlrev_b32 v27, 4, v27")
    e(f"v_mul_u32_u24 v25, {RS}, v26"); e(f"v_add3_u32 v{vWr+r}, v25, v27, s{sT0}")
    e(f"v_mul_u32_u24 v25, 12288, v26"); e(f"v_add_u32 v{F+r}, v25, v27")
assert all((c * 171) >> 12 == c // 24 for c in range(192))
e(f"s_mul_i32 s{sT1}, s{sS}, {80*12288}"); e(f"s_add_u32 s{sT2}, s{sT2}, s{sT1}")
e(f"s_mul_i32 s{sT1}, s{sWV}, {8*12288}"); e(f"s_add_u32 s{sT2}, s{sT2}, s{sT1}")
e(f"s_mul_i32 s{sT1}, s{sWV}, 3072"); e(f"s_add_u32 s{sT1}, s{sT1}, {WQ}")
for gi in range(3):
    if gi == 2: e(f"s_cmp_ge_u32 s{sWV}, 2"); e("s_cbranch_scc1 NOWQ3")
    for r in range(3):
        e(f"s_add_u32 m0, s{sT1}, {gi*4*3072 + r*1024}")
        A.vmem(f"buffer_load_dwordx4 v{F+r}, {sr(sWQ)}, s{sT2} offen {NTW} lds", "wq", counted=(gi < 2))
    if gi < 2: e(f"s_add_u32 s{sT2}, s{sT2}, {32*12288}")
lab("NOWQ3")
e(f"v_and_b32 v25, 15, v{vL}"); e(f"v_lshrrev_b32 v26, 4, v{vL}")
e(f"v_bfe_u32 v27, v{vL}, 2, 2"); e(f"v_and_b32 v28, 3, v{vL}")
e("v_cmp_eq_u32 vcc, 12, v25"); e("v_mov_b32 v36, 0x3f803f80"); e(f"v_cndmask_b32 v70, 0, v36, vcc")
for q in range(1, 10): e(f"v_mov_b32 v{70+q}, v70")
for q in range(10): e(f"v_mov_b32 v{SPARE+q}, v70")
e(f"s_mul_i32 s{sT1}, s{sS}, 160")
e(f"v_lshlrev_b32 v36, 4, v26"); e(f"v_lshlrev_b32 v37, 3, v26")
setexec(0x0100010001000100)
A.vmem(f"buffer_load_dwordx4 {vr(SPARE)}, v36, {sr(sX)}, s{sT1} offen", "x")
A.vmem(f"buffer_load_dwordx4 {vr(SPARE+4)}, v36, {sr(sX)}, s{sT1} offen offset:64", "x")
A.vmem(f"buffer_load_dwordx2 {vr(SPARE+8,2)}, v37, {sr(sX)}, s{sT1} offen offset:128", "x")
setexec(FULL)
e(f"s_lshl_b32 s{sT2}, s{sJ}, 6"); e(f"v_lshlrev_b32 v38, 2, v25")
A.vmem(f"buffer_load_dword v{vXR}, v38, {sr(sX)}, s{sT2} offen", "x")
srd(sWQ, 52, 7864320)
e(f"s_cmp_lt_u32 s{sWV}, 2"); e(f"s_cselect_b32 s{sX}, s56, s58"); e(f"s_cselect_b32 s{sX+1}, s57, s59"); e(f"s_and_b32 s{sX+1}, s{sX+1}, 0xffff"); e(f"s_mov_b32 s{sX+2}, 1966080")
Kld(2)
e(f"v_mul_u32_u24 v29, {RS}, v25"); e(f"v_lshl_add_u32 v29, v26, 4, v29"); e(f"v_add_u32 v{vKrd}, s{sT0}, v29")
e(f"v_lshrrev_b32 v29, 2, v{vL}"); e(f"v_mul_u32_u24 v29, {RS}, v29"); e(f"v_lshl_add_u32 v29, v28, 3, v29"); e(f"v_add_u32 v{vVrd}, s{sT0}, v29")
e(f"s_mul_i32 s{sT2}, s{sWV}, 96"); e(f"s_add_u32 s{sT2}, s{sT2}, {WQ}")
e("v_lshl_add_u32 v29, v26, 3, v27"); e("v_mul_u32_u24 v29, 384, v29"); e("v_lshl_add_u32 v29, v28, 3, v29"); e(f"v_add_u32 v{vTq1}, s{sT2}, v29")
e("v_lshl_add_u32 v29, v26, 2, v27"); e("v_mul_u32_u24 v29, 384, v29"); e("v_lshl_add_u32 v29, v28, 3, v29"); e(f"v_add_u32 v{vTq2}, s{sT2}, v29")
def rowbase(dst, m, og, ol, ob, tmp):
    e(f"v_mul_u32_u24 v{dst}, 1280, v{m}"); e(f"v_add_u32 v{dst}, {og}, v{dst}")
    e(f"s_mul_i32 s{sT3}, s{sG}, {GB}"); e(f"s_add_u32 s{sT3}, s{sT3}, {ol}"); e(f"v_mov_b32 v{tmp}, s{sT3}")
    e(f"v_cmp_eq_u32 vcc, s{sG}, v{m}"); e(f"v_cndmask_b32 v{dst}, v{dst}, v{tmp}, vcc")
    if ob is not None:
        e(f"v_add_u32 v{tmp}, {ob-ol}, v{tmp}"); e(f"v_cmp_le_u32 vcc, 8, v{m}"); e(f"v_cndmask_b32 v{dst}, v{dst}, v{tmp}, vcc")
e(f"v_mul_u32_u24 v31, 103, v{vL}"); e("v_lshrrev_b32 v31, 10, v31")
e(f"v_mul_u32_u24 v30, 10, v31"); e(f"v_sub_u32 v30, v{vL}, v30"); e(f"v_lshl_add_u32 v29, v30, 4, s{sT1}")
rowbase(vAq, 31, oFG, oFL, oBB, 30); e(f"v_add_u32 v{vAq}, v{vAq}, v29")
e("v_add_u32 v31, 6, v31"); rowbase(vAq16, 31, oFG, oFL, oBB, 30); e(f"v_add_u32 v{vAq16}, v{vAq16}, v29")
e(f"v_mov_b32 v30, {OOB}"); e(f"v_cmp_le_u32 vcc, 30, v{vL}"); e(f"v_cndmask_b32 v{vAq16}, v{vAq16}, v30, vcc")
assert all((c * 103) >> 10 == c // 10 for c in range(64))
e(f"s_lshl_b32 s{sT1}, s{sJ}, 10"); e(f"s_lshl_b32 s{sT2}, s{sWV}, 8"); e(f"s_add_u32 s{sT1}, s{sT1}, s{sT2}")
e(f"v_lshl_add_u32 v{vQst}, v{vL}, 2, s{sT1}")
e(f"s_lshl_b32 s{sT1}, s{sHH}, 13"); e(f"s_add_u32 s{sT1}, s{sT1}, s{sT2}")
e(f"v_lshlrev_b32 v29, 10, v26"); e(f"v_lshl_add_u32 v29, v25, 4, v29"); e(f"v_add_u32 v{vQld}, s{sT1}, v29")
e(f"s_mul_i32 s{sT1}, s{sWV}, 96"); e(f"s_add_u32 s{sT1}, s{sT1}, {QB}")
e("v_lshl_add_u32 v29, v25, 2, v26"); e(f"v_lshl_add_u32 v29, v29, 1, s{sT1}"); e(f"v_mov_b32 v30, {QB+384}")
e("v_cmp_le_u32 vcc, 12, v25"); e(f"v_cndmask_b32 v{vQBw}, v29, v30, vcc")
e(f"v_lshlrev_b32 v29, 4, v26"); e(f"v_add_u32 v{vQBr}, {QB}, v29")
e(f"s_lshl_b32 s{sT1}, s{sHH}, 8"); e(f"s_add_u32 s{sT1}, s{sT1}, {oML}"); e(f"v_and_b32 v29, 31, v{vL}"); e(f"v_lshl_add_u32 v{vML}, v29, 3, s{sT1}")
e(f"s_mul_i32 s{sT1}, s{sWV}, 768"); e(f"s_add_u32 s{sT1}, s{sT1}, {ACC}"); e(f"v_lshl_add_u32 v{vAcc}, v{vL}, 2, s{sT1}")
for t in range(8):
    m = 0x01010101 << t
    e(f"s_mov_b32 s{sMq+2*t}, {m:#x}"); e(f"s_mov_b32 s{sMq+2*t+1}, {m:#x}")
for t in range(10):
    m = 0x00010001 << t
    e(f"s_mov_b32 s{sMf+2*t}, {m:#x}"); e(f"s_mov_b32 s{sMf+2*t+1}, {m:#x}")

def Krel(t):
    A.wait(f"K{t}")
    for i in range(6): e(f"ds_write_b128 v{vWr+i%3}, {ar(24*t+4*i)} offset:{(i//3)*8*RS}")
    for ks in range(6): e(f"ds_read_b128 {ar(24*t+4*ks)}, v{vKrd} offset:{64*ks}")
latew = [0]
def Vrel(t):
    if latew[0]:
        idx = max(i for i, x in enumerate(A.vm) if x == f"V{t}"); n = len(A.vm) - 1 - idx; k = nid()
        e(f"s_cmp_lt_u32 s{sJ}, 20"); e(f"s_cbranch_scc1 LW{k}"); A.wait(f"V{t}"); lab(f"LW{k}"); e(f"s_waitcnt vmcnt({n+12})")
    A.wait(f"V{t}")
    f, b = vblock(t + 1)
    for i in range(6): e(f"ds_write_b128 v{vWr+i%3}, {rg(f, b+4*i, 4)} offset:{(i//3)*8*RS}")
    f, b = vblock(t & ~1)
    for dt in range(12): e(f"ds_read_b64_tr_b16 {rg(f, b+4*dt+2*(t&1), 2)}, v{vVrd} offset:{32*dt}")
def wq_frags():
    for t in range(3):
        b = F + 10 * t
        for kk in range(2):
            for h in range(2): e(f"ds_read_b64_tr_b16 {vr(b+4*kk+2*h,2)}, v{vTq1} offset:{(32*kk+4*h)*384+32*t}")
        e(f"ds_read_b64_tr_b16 {vr(b+8,2)}, v{vTq2} offset:{64*384+32*t}")
def qstage(a, soff, tag=None):
    for kk in range(3):
        for t in range(4):
            n = 4 if kk < 2 else 2
            bb = vr(F + 10 * t + 4 * kk, n) if t < 3 else vr(a + 4 * kk, n)
            c = "0" if kk == 0 else vr(T + 4 * t)
            e(f"v_mfma_f32_16x16x{32 if kk<2 else 16}_bf16 {vr(T+4*t)}, {vr(a+4*kk,n)}, {bb}, {c}")
    for t in range(4): e(f"v_add_f32 v{T+4*t}, v{T+4*t}, v{T+4*t+1}"); e(f"v_add_f32 v{T+4*t+2}, v{T+4*t+2}, v{T+4*t+3}")
    for t in range(4): e(f"v_add_f32 v{T+4*t}, v{T+4*t}, v{T+4*t+2}")
    xreduce(T, T + 4, T + 8, T + 12)
    lstore(f"buffer_store_dword v{T}, v{vQst}, {sr(sW)}, {soff} offen", tag)
def xreduce(r0, r1, r2, r3):
    e(f"v_permlane32_swap_b32 v{r0}, v{r2}"); e(f"v_permlane32_swap_b32 v{r1}, v{r3}")
    e(f"v_add_f32 v{r0}, v{r0}, v{r2}"); e(f"v_add_f32 v{r1}, v{r1}, v{r3}")
    e(f"v_permlane16_swap_b32 v{r0}, v{r1}"); e(f"v_add_f32 v{r0}, v{r0}, v{r1}")
def qloads(b, s0, s1): return [f"buffer_load_dwordx4 {vr(b)}, v{vQld}, {sr(sW)}, {s0} offen sc1", f"buffer_load_dwordx4 {vr(b+4)}, v{vQld}, {sr(sW)}, {s1} offen sc1"]
def qsum(b):
    for q in range(4): e(f"v_add_f32 v{b+q}, v{b+q}, v{b+4+q}")
    xreduce(b, b + 1, b + 2, b + 3)
def rowred(op, v, tmp, steps):
    for sft in steps: e(f"v_{op}_f32_dpp v{v}, v{v}, v{v} row_ror:{sft} row_mask:0xf bank_mask:0xf")
def xrow(op, v, tmp, both=True):
    if both:
        e(f"v_mov_b32 v{tmp}, v{v}"); e(f"v_permlane32_swap_b32 v{v}, v{tmp}"); e(f"v_{op}_f32 v{v}, v{v}, v{tmp}")
    e(f"v_mov_b32 v{tmp}, v{v}"); e(f"v_permlane16_swap_b32 v{v}, v{tmp}"); e(f"v_{op}_f32 v{v}, v{v}, v{tmp}")
X = 88; P = 32; DQ = 92; PA = T
def q_finish(b, mid=None):
    e(f"v_readlane_b32 s{sT0}, v{b}, 15")
    e(f"v_fma_f32 v{b+1}, -s{sT0}, v{vCS}, v{b}")
    e(f"v_cvt_pk_bf16_f32 v{b+1}, v{b+1}, v{b+1}")
    e(f"ds_write_b16 v{vQBw}, v{b+1}")
    e(f"s_mov_b32 vcc_lo, 0x70007000"); e(f"s_mov_b32 vcc_hi, 0x70007000"); e(f"v_cndmask_b32 v{b+2}, 0, v{b}, vcc")
    if mid: mid()
    e("s_waitcnt lgkmcnt(0)"); e("s_barrier")
    for ks in range(6): e(f"ds_read_b128 {vr(F+4*ks)}, v{vQBr} offset:{64*ks}")
    rowred("add", b + 2, None, (8, 4, 2, 1)); xrow("add", b + 2, b + 3)
    e(f"v_mov_b32 v{b+3}, s{sT0}"); e(f"v_subrev_f32 v{b+3}, 0x44200000, v{b+3}")
    e(f"v_sub_f32 v{b+2}, v{b+2}, v{b+3}")
    e(f"v_mul_f32 v{b+3}, 0x3acccccd, v{b+3}"); e(f"v_mul_f32 v{b+2}, 0x3acccccd, v{b+2}")
    e(f"v_fma_f32 v{b+2}, -v{b+3}, v{b+3}, v{b+2}"); e(f"v_max_f32 v{b+2}, 0, v{b+2}"); e(f"v_add_f32 v{b+2}, 0x3727c5ac, v{b+2}")
    e(f"v_rsq_f32 v{b+2}, v{b+2}"); e(f"v_mul_f32 v{vSC}, 0x3dd53b94, v{b+2}")
    e("s_waitcnt lgkmcnt(0)")
def qk_softmax():
    def dreg(t): return X if t == 0 else DQ + 4 * (t % 4)
    def sel(t):
        return [f"v_cndmask_b32 v{X+q}, v{X+q}, v{dreg(t)+q}, {sp(sMq+2*t)}" for q in range(4)]
    pend = []
    for t in range(8):
        if t >= 3: pend = sel(t - 2)
        for ks in range(6):
            c = "0" if ks == 0 else vr(dreg(t))
            e(f"v_mfma_f32_16x16x32_bf16 {vr(dreg(t))}, {ar(24*t+4*ks)}, {vr(F+4*ks)}, {c}")
            if pend and ks >= 2: e(pend.pop(0))
    for s_ in sel(6) + sel(7): e(s_)
    e(f"v_max3_f32 v{vM}, v{X}, v{X+1}, v{X+2}"); e(f"v_max_f32 v{vM}, v{vM}, v{X+3}")
    rowred("max", vM, None, (4, 2, 1)); xrow("max", vM, DQ)
    e(f"v_mul_f32 v{vM}, v{vM}, v{vSC}")
    for q in range(4): e(f"v_fma_f32 v{X+q}, v{X+q}, v{vSC}, -v{vM}")
    for q in range(4): e(f"v_exp_f32 v{X+q}, v{X+q}")
    e(f"v_cvt_pk_bf16_f32 v{P}, v{X}, v{X+1}"); e(f"v_cvt_pk_bf16_f32 v{P+1}, v{X+2}, v{X+3}")
def lsum_ops():
    d = lambda sft: f"v_add_f32_dpp v37, v37, v37 row_ror:{sft} row_mask:0xf bank_mask:0xf"
    return [f"v_add_f32 v37, v{X}, v{X+1}\nv_add_f32 v38, v{X+2}, v{X+3}", f"v_add_f32 v37, v37, v38\nv_mov_b32 v36, v{vM}",
            f"s_lshl_b32 s{sT0}, s{sS}, 5\n" + d(4), f"s_lshl_b32 s{sT1}, s{sWV}, 3\n" + d(2), f"s_add_u32 s{sT0}, s{sT0}, s{sT1}\n" + d(1),
            f"v_mov_b32 v38, v37", f"s_add_u32 s{sT0}, s{sT0}, s{sLG}\nv_permlane32_swap_b32 v37, v38", "v_add_f32 v37, v37, v38\nv_mov_b32 v38, v37",
            "s_nop 0\nv_permlane16_swap_b32 v37, v38", "v_add_f32 v37, v37, v38"]
def ml_store(tag=None):
    setexec(1)
    lstore(f"buffer_store_dwordx2 v[36:37], v{vML}, {sr(sW)}, s{sT0} offen", tag)
    setexec(FULL)
PP = 32
def pv_bcast(u, dst):
    return [f"v_mov_b32_dpp v{dst+q}, v{PP+(q&1)} row_newbcast:{2*u+(q>>1)} row_mask:0xf bank_mask:0xf" for q in range(4)]
def pv_step(u, fill=()):
    fill = list(fill)
    f, b = vblock(2 * u); a = PA + 4 * (u & 1)
    for dt in range(12):
        c = "0" if u == 0 else vr(F + 4 * dt)
        e(f"v_mfma_f32_16x16x32_bf16 {vr(F+4*dt)}, {vr(a)}, {rg(f, b+4*dt, 4)}, {c}")
        if fill: e(fill.pop(0))
    for x in fill: e(x)
def omov(dt): return f"v_mov_b32_dpp v{F+16*(dt//4)}, v{F+4*dt} quad_perm:[0,1,2,3] row_mask:{1<<(dt%4):#x} bank_mask:0xf"
def owr(q): return f"ds_write_b32 v{vAcc}, v{F+16*q} offset:{OACC+256*q}"
def pv_last():
    f, b = vblock(6); a = PA + 4
    post = {7: [omov(1)], 8: [omov(2), omov(3)], 9: [owr(0)], 10: [omov(5)], 11: [omov(6)]}
    for dt in range(12):
        e(f"v_mfma_f32_16x16x32_bf16 {vr(F+4*dt)}, {vr(a)}, {rg(f, b+4*dt, 4)}, {vr(F+4*dt)}")
        for x in post.get(dt, []): e(x)
    for x in [omov(7), owr(1), omov(9), omov(10), omov(11), owr(2)]: e(x)

def pf_wo():
    e(f"s_lshl_b32 s{sT0}, s{sHH}, 3"); e(f"s_add_u32 s{sT0}, s{sT0}, s{sG}"); e(f"s_lshl_b32 s{sT0}, s{sT0}, 3"); e(f"s_add_u32 s{sT0}, s{sT0}, s{sS}")
    e(f"s_lshl_b32 s{sT0}, s{sT0}, 2"); e(f"s_add_u32 s{sT0}, s{sT0}, s{sWV}"); e(f"s_mul_i32 s{sT0}, s{sT0}, 7680")
    for n in range(8):
        if n == 4: e(f"s_add_u32 s{sT0}, s{sT0}, 4096")
        if n == 7: setexec(0xffffffff)
        A.vmem(f"buffer_load_dwordx4 a[240:243], v{vLin}, {sr(sWQ)}, s{sT0} offen offset:{1024*(n%4)} {NTP}", "pfo")
    setexec(FULL)
Krel(0); Kld(3); Krel(1); pf_wo(); Krel(2)
e("s_waitcnt lgkmcnt(0)"); e("s_barrier")
stamp(1)
wq_frags()
Kld(4); Kld(5); Krel(3)
e(f"v_lshlrev_b32 v98, 2, v{vL}")
rdy = ["global_load_dword v99, v98, s[64:65] sc1"]
A.vmem(rdy[0], "rdy")
Kld(6); Krel(4); Kld(7); Krel(5)
def rdycheck():
    e("v_sad_u8 v100, v99, 0, 0")
    e("v_add_u32_dpp v100, v100, v100 quad_perm:[1,0,3,2] row_mask:0xf bank_mask:0xf")
    e("v_add_u32_dpp v100, v100, v100 quad_perm:[2,3,0,1] row_mask:0xf bank_mask:0xf")
    e("v_cmp_gt_u32 vcc, 32, v100"); e("s_mov_b32 vcc_hi, 0"); e("s_cmp_eq_u64 vcc, 0")
A.wait("rdy"); rdycheck(); e("s_cbranch_scc0 RDYLOOP"); lab("RDYOK")
def t_():
    lab("RDYLOOP"); e(f"s_mov_b32 s{sCnt}, 0"); lab("RDYL2"); e("s_sleep 8"); e(rdy[0]); e("s_waitcnt vmcnt(0)"); rdycheck(); e("s_cbranch_scc1 RDYOK")
    e(f"s_add_u32 s{sCnt}, s{sCnt}, 1"); e(f"s_cmp_lt_u32 s{sCnt}, {LIMIT}"); e("s_cbranch_scc1 RDYL2"); e("s_branch RDYOK")
tail.append(t_)
e(f"v_readlane_b32 s{sT0}, v99, s{sXcc}"); e(f"s_cmp_eq_u32 s{sT0}, s96"); e(f"s_cselect_b32 s{sFast}, {0 if FORCESLOW else 1}, 0")
stamp(2)
A.vmem(f"buffer_load_dwordx4 a[240:243], v{vC1}, {sr(sW)}, 0 offen sc1", "pre")
A.vmem(f"buffer_load_dwordx4 a[240:243], v{vC2}, {sr(sW)}, s{sClr} offen sc1", "pre")
e("s_waitcnt lgkmcnt(0)")
e(f"s_add_u32 s{sT2}, s{sLG}, {2*LS}")
qstage(70, f"s{sT2}", "qst"); qstage(SPARE, f"s{sLG}", "qst")
def pack_store16(d, instr_fn):
    for q in (1, 2, 3): e(f"v_mov_b32_dpp v{d+q}, v{d} quad_perm:[{q},{q},{q},{q}] row_mask:0xf bank_mask:0xf")
    setexec(0x1111); instr_fn(); setexec(FULL)
e(f"s_cmp_lg_u32 s{sWV}, 1"); e("s_cbranch_scc1 NOBASE0"); e(f"s_cmp_ge_u32 s{sJ}, 20"); e("s_cbranch_scc1 NOBASE0")
e(f"v_mov_b32 v28, v{vXR}"); e(f"s_lshl_b32 s{sT0}, s{sJ}, 6"); e(f"s_add_u32 s{sT0}, s{sT0}, s{sLG}"); e(f"s_add_u32 s{sT0}, s{sT0}, {oBA}"); e(f"v_lshlrev_b32 v27, 2, v{vL}")
pack_store16(28, lambda: lstore(f"buffer_store_dwordx4 v[28:31], v27, {sr(sW)}, s{sT0} offen"))
lab("NOBASE0")
e(f"v_and_b32 v{vXR+1}, 0xffff0000, v{vXR}"); e(f"v_lshlrev_b32 v{vXR}, 16, v{vXR}")
def pf_w13():
    e(f"s_sub_u32 s{sT0}, s{sJ}, 20"); e(f"s_lshl_b32 s{sT0}, s{sT0}, 1"); e(f"s_and_b32 s{sT1}, s{sWV}, 1"); e(f"s_add_u32 s{sT0}, s{sT0}, s{sT1}")
    e(f"s_mul_i32 s{sT0}, s{sT0}, 640"); e(f"v_add_u32 v36, s{sT0}, v{vL}"); e(f"s_mul_i32 s{sT1}, s{sG}, 384")
    for n in range(10):
        e("v_mul_u32_u24 v37, 43691, v36"); e("v_lshrrev_b32 v37, 20, v37"); e(f"v_mul_u32_u24 v37, {3072-384}, v37"); e("v_lshl_add_u32 v37, v36, 4, v37")
        e(f"buffer_load_dwordx4 a[240:243], v37, {sr(sX)}, s{sT1} offen {NTP}")
        if n < 9: e("v_add_u32 v36, 64, v36")
assert all((c * 43691) >> 20 == c // 24 for c in range(15360))
def role_dma():
    e(f"s_cmp_ge_u32 s{sJ}, 20"); e("s_cbranch_scc1 DMAF")
    e(f"v_lshrrev_b32 v38, 2, v{vL}"); e("v_mul_u32_u24 v38, 1280, v38"); e(f"v_and_b32 v39, 3, v{vL}"); e("v_lshl_add_u32 v38, v39, 4, v38")
    e(f"s_lshl_b32 s{sT0}, s{sWV}, 3"); e(f"s_add_u32 s{sT0}, s{sT0}, s{sG}"); e(f"s_mul_i32 s{sT0}, s{sT0}, {192*1280}"); e(f"s_lshl_b32 s{sT1}, s{sJ}, 6"); e(f"s_add_u32 s{sT0}, s{sT0}, s{sT1}")
    e(f"s_mul_i32 s{sT1}, s{sWV}, 12288"); e(f"s_add_u32 m0, s{sT1}, {WO}")
    for n in range(12):
        A.vmem(f"buffer_load_dwordx4 v38, {sr(sRA)}, s{sT0} offen {NTR} lds", "role", counted=(n < 10))
        if n < 11: e(f"s_add_u32 m0, m0, 1024"); e(f"s_add_u32 s{sT0}, s{sT0}, {16*1280}")
    lab("DMAX")
    def t():
        lab("DMAF"); pf_w13(); e("s_branch DMAX")
    tail.append(t)
def fdma():
    if True:
        e(f"v_lshrrev_b32 v24, 1, v{vL}"); e("v_mul_u32_u24 v24, 3072, v24"); e(f"v_and_b32 v25, 1, v{vL}"); e("v_lshl_add_u32 v24, v25, 4, v24")
        e(f"s_mul_i32 s{sT2}, s{sG}, 12"); e(f"s_add_u32 s{sT2}, s{sT2}, s{sJ}"); e(f"s_sub_u32 s{sT2}, s{sT2}, 20")
        e(f"s_mul_i32 s{sT0}, s{sWV}, {160*3072}"); e(f"s_lshl_b32 s{sT1}, s{sT2}, 5"); e(f"s_add_u32 s{sT0}, s{sT0}, s{sT1}")
        e(f"s_mul_i32 s{sT1}, s{sWV}, 5120")
        for n in range(5):
            e(f"s_add_u32 m0, s{sT1}, {W1+1024*n}"); e(f"buffer_load_dwordx4 v24, {sr(sRA)}, s{sT0} offen {NTR} lds")
            e(f"s_add_u32 m0, s{sT1}, {W3+1024*n}"); e(f"buffer_load_dwordx4 v24, {sr(sRB)}, s{sT0} offen {NTR} lds")
            if n < 4: e(f"s_add_u32 s{sT0}, s{sT0}, {32*3072}")
        e(f"s_mul_i32 s{sT0}, s{sT2}, 20480"); e(f"s_add_u32 s{sT0}, s{sT0}, s{sT1}")
        for n in range(5):
            e(f"s_add_u32 m0, s{sT1}, {W2+1024*n}"); e(f"buffer_load_dwordx4 v{vLin}, {sr(sRC)}, s{sT0} offen {NTW} lds")
            if n < 4: e(f"s_add_u32 s{sT0}, s{sT0}, 1024")
role_dma()
stamp(3)
Vld(0); Krel(6)
def cs_soffs():
    e(f"s_add_u32 s{sT0}, s{sLG}, {2*LS}"); e(f"s_add_u32 s{sT1}, s{sLG}, {2*LS+4096}"); e(f"s_add_u32 s{sT2}, s{sLG}, 4096")
cs_soffs()
gl = qloads(64, f"s{sT0}", f"s{sT1}") + qloads(72, f"s{sLG}", f"s{sT2}")
for l in gl: A.vmem(l, "qg")
Vld(1); Krel(7)
e(f"v_and_b32 v25, 15, v{vL}"); e(f"v_lshrrev_b32 v26, 4, v{vL}"); e("v_add_u32 v27, 4, v26")
rowbase(vC1, 26, oFG, oFL, None, 28); rowbase(vC2, 27, oFG, oFL, None, 28)
e(f"s_min_u32 s{sT3}, s{sJ}, 19"); e(f"s_lshl_b32 s{sT3}, s{sT3}, 6"); e(f"v_lshl_add_u32 v25, v25, 2, s{sT3}")
e(f"v_add_u32 v{vC1}, v{vC1}, v25"); e(f"v_add_u32 v{vC2}, v{vC2}, v25")
Vld(2); Vrel(0)
late_check("qg", gl, range(64, 80), 24, pre=cs_soffs)
qsum(64); qsum(72)
e(f"v_mul_f32 v{vCS}, 0x3acccccd, v64")
e(f"v_mov_b32 v{T}, v72")
stamp(4)
q_finish(T, lambda: Vld(3))
qk_softmax()
for x in lsum_ops(): e(x)
ml_store("mls")
stamp(5)
Vld(4); Vrel(1)
for x in pv_bcast(0, PA): e(x)
e("s_waitcnt lgkmcnt(0)"); pv_step(0)
Vld(5); Vrel(2); Vrel(3); Vld(6)
for x in pv_bcast(1, PA + 4): e(x)
e("s_waitcnt lgkmcnt(0)"); pv_step(1)
mll = [f"buffer_load_dwordx2 v[34:35], v{vML}, {sr(sW)}, s{sLG} offen sc1"]
Vrel(4); A.vmem(mll[0], "ml"); Vld(7)
Vrel(5)
for x in pv_bcast(2, PA): e(x)
e("s_waitcnt lgkmcnt(0)"); pv_step(2)
Vrel(6)
for x in pv_bcast(3, PA + 4): e(x)
Vrel(7)
e("s_waitcnt lgkmcnt(0)")
A.drained()
e("s_branch ATT_LAST")

lab("LOOP")
wq_frags()
e(f"v_and_b32 v25, 15, v{vL}"); e("v_cmp_eq_u32 vcc, 12, v25"); e("v_mov_b32 v36, 0x3f803f80"); e(f"v_cndmask_b32 v70, 0, v36, vcc")
for q in range(1, 10): e(f"v_mov_b32 v{70+q}, v70")
e(f"s_add_u32 s{sT2}, s{sLG}, 4096")
e(f"s_mul_i32 s{sT0}, s{sWV}, {SCRW}")
e(f"v_mul_u32_u24 v26, 103, v{vL}"); e("v_lshrrev_b32 v26, 10, v26"); e(f"v_lshl_add_u32 v26, v26, 4, v{vLin}"); e(f"v_add_u32 v26, s{sT0}, v26")
e(f"v_mul_u32_u24 v27, 176, v25"); e(f"v_add_u32 v27, s{sT0}, v27"); e(f"v_lshrrev_b32 v28, 4, v{vL}"); e("v_lshl_add_u32 v29, v28, 3, v27"); e("v_lshl_add_u32 v27, v28, 4, v27")
e("s_waitcnt lgkmcnt(0)")
setexec((1 << 60) - 1)
poll([f"buffer_load_dwordx4 v[80:83], v{vAq}, {sr(sW)}, 0 offen sc1", f"buffer_load_dwordx4 v[84:87], v{vAq16}, {sr(sW)}, 0 offen sc1"], [80, 84], 24, pid=1, slp=int(OPT.get("slpq", 0)))
e("ds_write_b128 v26, v[80:83]"); e(f"ds_write_b128 v26, v[84:87] offset:{6*176}")
setexec(ROWS9)
e("ds_read_b128 v[70:73], v27"); e("ds_read_b128 v[74:77], v27 offset:64"); e("ds_read_b64 v[78:79], v29 offset:128")
setexec(FULL)
stamp(1)
e(f"buffer_load_dword a244, v{vC1}, {sr(sW)}, 0 offen sc1"); e(f"buffer_load_dword a245, v{vC2}, {sr(sW)}, 0 offen sc1")
e("s_waitcnt lgkmcnt(0)")
qstage(70, f"s{sLG}")
stamp(2)
poll(qloads(T, f"s{sLG}", f"s{sT2}"), range(T, T + 8), T + 8, pid=4)
stamp(3)
qsum(T)
q_finish(T)
stamp(4)
qk_softmax()
stamp(5)
for x in pv_bcast(0, PA): e(x)
pv_step(0, lsum_ops() + ["\n".join(pv_bcast(1, PA + 4)[:2]), "\n".join(pv_bcast(1, PA + 4)[2:])])
ml_store()
pv_step(1, pv_bcast(2, PA)); pv_step(2, pv_bcast(3, PA + 4))
e(mll[0])
lab("ATT_LAST")
pv_last()
e(f"v_add_u32 v24, {ACC}, v{vLin}")
e(f"s_cmp_lg_u32 s{sWV}, 0"); e("s_cbranch_scc1 ONOT0")
e(f"s_cmp_eq_u32 s{sLay}, 0"); e("s_cbranch_scc1 MLHERE"); e("s_waitcnt vmcnt(0)"); lab("MLHERE")
late_check("none", mll, [34, 35], 36)
stamp(6)
e("v_mov_b32 v36, v34"); rowred("max", 36, None, (8, 4, 2, 1)); xrow("max", 36, 37, both=False)
e("v_sub_f32 v34, v34, v36"); e("v_exp_f32 v34, v34"); e("v_mul_f32 v35, v34, v35")
e("s_waitcnt lgkmcnt(0)"); e("s_barrier")
for w in range(4): e(f"ds_read_b128 {vr(F+4*w)}, v24 offset:{OACC+768*w}")
rowred("add", 35, None, (8, 4, 2, 1)); xrow("add", 35, 37, both=False)
e(f"s_lshl_b32 s{sT1}, s{sS}, 2"); e(f"s_add_u32 s{sT2}, s{sT1}, 1"); e(f"s_add_u32 s{sT3}, s{sT1}, 2"); e(f"s_add_u32 s{sCnt}, s{sT1}, 3")
e("v_rcp_f32 v35, v35"); e("v_mul_f32 v34, v34, v35")
for w, sx in enumerate((sT1, sT2, sT3, sCnt)): e(f"v_readlane_b32 s{96+w}, v34, s{sx}")
e(f"s_mul_i32 s{sT0}, s{sHH}, 3072"); e(f"s_lshl_b32 s{sT1}, s{sS}, 4"); e(f"s_add_u32 s{sT0}, s{sT0}, s{sT1}"); e(f"s_add_u32 s{sT0}, s{sT0}, s{sLG}"); e(f"s_add_u32 s{sT0}, s{sT0}, {oO}")
e(f"v_lshlrev_b32 v39, 6, v{vL}")
e("s_waitcnt lgkmcnt(0)")
for q in range(4): e(f"v_mul_f32 v{28+q}, s96, v{F+q}")
for w in range(1, 4):
    for q in range(4): e(f"v_fmac_f32 v{28+q}, s{96+w}, v{F+4*w+q}")
def pack_pairs():
    e("v_cvt_pk_bf16_f32 v28, v28, v29"); e("v_cvt_pk_bf16_f32 v29, v30, v31")
    e("v_mov_b32_dpp v30, v28 quad_perm:[1,1,3,3] row_mask:0xf bank_mask:0xf"); e("v_mov_b32_dpp v31, v29 quad_perm:[1,1,3,3] row_mask:0xf bank_mask:0xf")
pack_pairs()
setexec(0x5555555555555555 & ((1 << 48) - 1))
lstore(f"buffer_store_dwordx4 v[28:31], v39, {sr(sW)}, s{sT0} offen")
setexec(FULL)
stamp(7)
e(f"s_waitcnt vmcnt({2 if STAMP == 1 else 1})")
e("s_branch ODONE")
lab("ONOT0")
e("s_waitcnt lgkmcnt(0)"); e("s_barrier")
stamp(7)
e(f"s_waitcnt vmcnt({1 if STAMP == 1 else 0})")
lab("ODONE")
e(f"v_and_b32 v25, 15, v{vL}"); e(f"v_lshrrev_b32 v26, 4, v{vL}"); e(f"v_bfe_u32 v27, v{vL}, 2, 2"); e(f"v_and_b32 v36, 3, v{vL}")
e(f"s_cmp_ge_u32 s{sJ}, 20"); e("s_cbranch_scc1 ROLEF")
def owner_add():
    e("v_lshlrev_b32 v30, 16, v28"); e("v_and_b32 v28, 0xffff0000, v28"); e("v_lshlrev_b32 v31, 16, v29"); e("v_and_b32 v29, 0xffff0000, v29")
    e("v_add_f32 v30, v30, v31"); e("v_add_f32 v28, v28, v29")
    e("v_mov_b32 v31, v30"); e("v_mov_b32 v29, v28"); e("v_permlane32_swap_b32 v30, v31"); e("v_permlane32_swap_b32 v28, v29"); e("v_add_f32 v30, v30, v31"); e("v_add_f32 v28, v28, v29")
    e("v_mov_b32 v31, v30"); e("v_mov_b32 v29, v28"); e("v_permlane16_swap_b32 v30, v31"); e("v_permlane16_swap_b32 v28, v29"); e("v_add_f32 v30, v30, v31"); e("v_add_f32 v28, v28, v29")
    e(f"v_add_f32 v{vXR}, v{vXR}, v30"); e(f"v_add_f32 v{vXR+1}, v{vXR+1}, v28")
    e(f"v_cvt_pk_bf16_f32 v28, v{vXR}, v{vXR+1}")
def own_loads(a0, a1, soff): return [f"buffer_load_dword v28, v{a0}, {sr(sW)}, {soff} offen sc1", f"buffer_load_dword v29, v{a1}, {sr(sW)}, {soff} offen sc1"]
def base_store(ob):
    e(f"s_lshl_b32 s{sT0}, s{sJ}, 6"); e(f"s_add_u32 s{sT0}, s{sT0}, s{sLG}"); e(f"s_add_u32 s{sT0}, s{sT0}, {ob}"); e(f"v_lshlrev_b32 v37, 2, v{vL}")
    pack_store16(28, lambda: lstore(f"buffer_store_dwordx4 v[28:31], v37, {sr(sW)}, s{sT0} offen"))
e(f"s_mul_i32 s{sT0}, s{sWV}, 12288"); e(f"s_add_u32 s{sT0}, s{sT0}, {WO}")
e("v_lshl_add_u32 v37, v26, 3, v27"); e("v_lshlrev_b32 v37, 6, v37"); e("v_lshl_add_u32 v37, v36, 3, v37"); e(f"v_add_u32 v37, s{sT0}, v37")
stamp(13)
for t in range(2):
    for kk in range(6):
        for h in range(2): e(f"ds_read_b64_tr_b16 {vr(F+24*t+4*kk+2*h,2)}, v37 offset:{(32*kk+4*h)*64+32*t}")
e(f"s_cmp_lg_u32 s{sWV}, 1"); e("s_cbranch_scc1 NOOWN0"); e(f"s_cmp_eq_u32 s{sLay}, 0"); e("s_cbranch_scc1 NOOWN0")
e("v_accvgpr_read_b32 v28, a244"); e("v_accvgpr_read_b32 v29, a245")
late_check("none", own_loads(vC1, vC2, "0"), [28, 29], 30)
owner_add(); base_store(oBA)
lab("NOOWN0")
e("v_lshlrev_b32 v37, 4, v25"); e("v_lshl_add_u32 v37, v26, 7, v37")
e(f"s_mul_i32 s{sT2}, s{sWV}, 3072"); e(f"s_add_u32 s{sT2}, s{sT2}, s{sLG}"); e(f"s_add_u32 s{sT2}, s{sT2}, {oO}")
e(f"s_lshl_b32 s{sT0}, s{sJ}, 6"); e(f"s_mul_i32 s{sT1}, s{sG}, 1280"); e(f"s_add_u32 s{sT1}, s{sT1}, s{sT0}"); e(f"s_add_u32 s{sT1}, s{sT1}, s{sLay}")
e(f"s_add_u32 s{sT0}, s{sT0}, s{sLG}")
e(f"s_add_u32 s96, s{sT1}, {oYG}"); e(f"s_add_u32 s97, s{sT0}, {oYL}")
e(f"s_lshl_b32 s{sT3}, s{sWV}, 8"); e(f"s_add_u32 s{sT3}, s{sT3}, {ACC+YACC}"); e(f"v_lshl_add_u32 v27, v{vL}, 2, s{sT3}"); e(f"v_lshlrev_b32 v39, 3, v{vL}")
e("s_waitcnt lgkmcnt(0)")
if OMASK: setexec(0x00FF00FF00FF00FF)
poll([f"buffer_load_dwordx4 {vr(SPARE+4*kk)}, v37, {sr(sW)}, s{sT2} offen offset:{512*kk} sc1" for kk in range(6)], [SPARE + 4 * kk for kk in range(6)], 36, pid=7)
if OMASK: setexec(FULL)
stamp(8)
for kk in range(6):
    for t in range(2):
        c = "0" if kk == 0 else vr(28 + 4 * t)
        e(f"v_mfma_f32_16x16x32_bf16 {vr(28+4*t)}, {vr(SPARE+4*kk)}, {vr(F+24*t+4*kk)}, {c}")
for t in range(2): e(f"v_add_f32 v{28+4*t}, v{28+4*t}, v{29+4*t}"); e(f"v_add_f32 v{30+4*t}, v{30+4*t}, v{31+4*t}")
for t in range(2): e(f"v_add_f32 v{28+4*t}, v{28+4*t}, v{30+4*t}")
e("v_permlane16_swap_b32 v28, v32"); e("v_add_f32 v28, v28, v32")
e(f"ds_write_b32 v27, v28")
e(f"s_cmp_lg_u32 s{sWV}, 0")
e("s_waitcnt lgkmcnt(0)"); e("s_barrier")
e("s_cbranch_scc1 WNOT0")
for w in range(4): e(f"ds_read_b128 {vr(F+4*w)}, v24 offset:{YACC+256*w}")
e("s_waitcnt lgkmcnt(2)")
for q in range(4): e(f"v_add_f32 v{28+q}, v{F+q}, v{F+4+q}")
e("s_waitcnt lgkmcnt(0)")
for q in range(4): e(f"v_add_f32 v{32+q}, v{F+8+q}, v{F+12+q}")
for q in range(4): e(f"v_add_f32 v{28+q}, v{28+q}, v{32+q}")
pack_pairs()
setexec(0x55)
e(f"buffer_store_dwordx4 v[28:31], v39, {sr(sW)}, s96 offen sc1")
lstore(f"buffer_store_dwordx4 v[28:31], v39, {sr(sW)}, s97 offen")
setexec(FULL)
stamp(9)
e(f"v_lshrrev_b32 v37, 5, v{vL}"); e("v_mul_u32_u24 v37, 2560, v37"); e(f"v_and_b32 v38, 31, v{vL}"); e("v_lshl_add_u32 v37, v38, 2, v37")
for k in range(1, 6): e(f"v_add_u32 v{F+k}, {5120*k}, v37")
e(f"s_lshl_b32 s{sT2}, s{sJ}, 7"); e(f"s_add_u32 s{sT2}, s{sT2}, s{sLG}"); e(f"s_add_u32 s{sT2}, s{sT2}, {oFP}")
e(f"s_add_u32 s96, s{sT1}, {oFG}"); e(f"s_add_u32 s97, s{sT0}, {oFL}"); e(f"v_lshlrev_b32 v39, 1, v{vL}")
poll([f"buffer_load_dword v{28+k}, v{37 if k==0 else F+k}, {sr(sW)}, s{sT2} offen sc1" for k in range(6)], range(28, 34), 36, pid=10)
stamp(10)
e("v_add_f32 v28, v28, v29"); e("v_add_f32 v30, v30, v31"); e("v_add_f32 v32, v32, v33"); e("v_add_f32 v28, v28, v30"); e("v_add_f32 v28, v28, v32")
e("v_mov_b32 v29, v28"); e("v_permlane32_swap_b32 v28, v29"); e("v_add_f32 v28, v28, v29")
e("v_mov_b32_dpp v29, v28 row_shl:1 row_mask:0xf bank_mask:0xf"); e("v_cvt_pk_bf16_f32 v28, v28, v29")
for q in (1, 2, 3): e(f"v_mov_b32_dpp v{28+q}, v28 row_shl:{2*q} row_mask:0xf bank_mask:0xf")
setexec(0x01010101)
e(f"buffer_store_dwordx4 v[28:31], v39, {sr(sW)}, s96 offen sc1")
lstore(f"buffer_store_dwordx4 v[28:31], v39, {sr(sW)}, s97 offen")
setexec(FULL)
stamp(11)
e("s_branch NEXT")
lab("WNOT0")
e(f"s_cmp_lg_u32 s{sWV}, 1"); e("s_cbranch_scc1 NEXT")
rowbase(37, 26, oYG, oYL, None, 38); e("v_add_u32 v39, 4, v26"); rowbase(38, 39, oYG, oYL, None, 28)
e(f"s_lshl_b32 s{sT0}, s{sJ}, 6"); e(f"s_add_u32 s{sT0}, s{sT0}, s{sLay}")
e("v_lshl_add_u32 v37, v25, 2, v37"); e("v_lshl_add_u32 v38, v25, 2, v38")
poll(own_loads(37, 38, f"s{sT0}"), [28, 29], 30)
owner_add()
e(f"s_cmp_lg_u32 s{sLay}, 0"); e("s_cbranch_scc1 FINAL")
base_store(oBB)
e("s_branch NEXT")
lab("FINAL")
e(f"s_cmp_lg_u32 s{sG}, 0"); e("s_cbranch_scc1 DONE")
e(f"s_lshl_b32 s{sT0}, s{sJ}, 6"); e(f"v_lshlrev_b32 v37, 2, v{vL}")
poll(own_loads(vC1, vC2, f"s{sLay}"), [28, 29], 30)
owner_add()
setexec(0xffff)
e(f"buffer_store_dword v28, v37, {sr(sO)}, s{sT0} offen")
setexec(FULL)
stamp(12)
e("s_branch DONE") if SPIN else e("s_endpgm")
lab("ROLEF")
FA = SPARE
vCG, vCU = vXR, vXR + 1
sPass = sClr
e(f"s_mov_b32 s{sPass}, 1")
e(f"s_cmp_lg_u32 s{sLay}, 0"); e("s_cbranch_scc1 FW")
e(f"s_mov_b32 s{sPass}, 0")
if FDMA != "early":
    e("v_mov_b32 v86, v25"); fdma(); e("v_mov_b32 v25, v86"); e("s_waitcnt vmcnt(0)"); stamp(13)
lab("FW")
e(f"s_mul_i32 s{sT0}, s{sWV}, 5120"); e(f"s_add_u32 s{sT0}, s{sT0}, {W1}")
e("v_lshl_add_u32 v37, v26, 3, v27"); e("v_lshlrev_b32 v37, 5, v37"); e("v_lshl_add_u32 v37, v36, 3, v37"); e(f"v_add_u32 v37, s{sT0}, v37")
for t in range(2):
    for kk in range(5):
        for h in range(2): e(f"ds_read_b64_tr_b16 {vr(F+20*t+4*kk+2*h,2)}, v37 offset:{(32*kk+4*h)*32+20480*t}")
e(f"s_mul_i32 s{sT0}, s{sWV}, 320"); e(f"s_add_u32 s{sT0}, s{sT0}, {W2}")
e(f"v_lshrrev_b32 v80, 2, v{vL}"); e("v_mul_u32_u24 v80, 1280, v80"); e("v_lshl_add_u32 v80, v36, 3, v80"); e(f"v_add_u32 v80, s{sT0}, v80")
e(f"s_lshl_b32 s{sT2}, s{sWV}, 2"); e(f"s_add_u32 s{sT2}, s{sT2}, {ACC+FACC}"); e(f"v_add_u32 v81, s{sT2}, v{vLin}")
e("v_lshl_add_u32 v82, v26, 2, v36"); e("v_lshlrev_b32 v82, 4, v82"); e(f"v_add_u32 v82, {ACC+FACC}, v82")
e("v_cmp_eq_u32 vcc, 12, v25")
e("v_mov_b32 v38, 13"); e("v_cndmask_b32 v83, v25, v38, vcc"); e("v_lshlrev_b32 v83, 4, v83"); e(f"v_add_u32 v83, {ACC+FACC+512}, v83")
e(f"v_mov_b32 v85, {ACC+FACC+512+192}")
e("v_lshlrev_b32 v84, 6, v25"); e("v_lshl_add_u32 v84, v26, 4, v84")
e("v_mov_b32 v38, 0x3f803f80"); e(f"v_cndmask_b32 v{FA}, 0, v38, vcc")
for q in range(1, 20): e(f"v_mov_b32 v{FA+q}, v{FA}")
e(f"s_mul_i32 s{sT0}, s{sWV}, {SCRW}")
e(f"v_mul_u32_u24 v6, 336, v25"); e("v_lshl_add_u32 v6, v26, 4, v6"); e(f"v_add_u32 v6, s{sT0}, v6")
e(f"v_mul_u32_u24 v37, 52, v{vL}"); e("v_lshrrev_b32 v37, 10, v37")
e(f"v_lshl_add_u32 v87, v37, 4, v{vLin}"); e(f"v_add_u32 v87, s{sT0}, v87")
e(f"v_mul_u32_u24 v27, 320, v37"); e(f"v_sub_u32 v27, v{vLin}, v27")
assert all((c * 52) >> 10 == c // 20 for c in range(64))
FG = [86, 18, 19]
for i in range(3):
    rowbase(FG[i], 37, oYG, oYL, oBA, 38); e(f"v_add_u32 v{FG[i]}, v{FG[i]}, v27")
    if i < 2: e("v_add_u32 v37, 3, v37")
e(f"s_mul_i32 s{sT0}, s{sWV}, 320"); e(f"s_add_u32 s{sT0}, s{sT0}, s{sLay}")
e(f"s_sub_u32 s{sT1}, s{sJ}, 20"); e(f"s_mul_i32 s{sT1}, s{sT1}, 2560"); e(f"s_mul_i32 s{sT3}, s{sWV}, 640"); e(f"s_add_u32 s{sT1}, s{sT1}, s{sT3}")
e(f"s_add_u32 s{sT1}, s{sT1}, s{sLG}"); e(f"s_add_u32 s{sT1}, s{sT1}, {oFP}")
e("s_waitcnt lgkmcnt(0)")
e(f"s_cmp_eq_u32 s{sPass}, 0"); e("s_cbranch_scc1 FMM")
lab("FPOLL")
W2R = [f"a[{240+2*t}:{241+2*t}]" for t in range(6)] + ["v[108:109]", "v[110:111]", "v[2:3]", "v[4:5]"]
for t in range(10): e(f"ds_read_b64_tr_b16 {W2R[t]}, v80 offset:{32*t}")
e("s_waitcnt lgkmcnt(0)")
setexec((1 << 60) - 1)
poll([f"buffer_load_dwordx4 {vr(T+4*i)}, v{FG[i]}, {sr(sW)}, s{sT0} offen sc1" for i in range(3)], [T, T + 4, T + 8], 36, pid=7, slp=int(OPT.get("slpy", 0)))
for i in range(3): e(f"ds_write_b128 v87, {vr(T+4*i)} offset:{3*336*i}")
setexec(ROWS9)
for kk in range(5): e(f"ds_read_b128 {vr(FA+4*kk)}, v6 offset:{64*kk}")
setexec(FULL)
e("s_waitcnt lgkmcnt(0)")
stamp(8)
lab("FMM")
for kk in range(5):
    for t in range(3):
        c = "0" if kk == 0 else vr(T + 4 * t)
        bb = vr(F + 20 * t + 4 * kk) if t < 2 else vr(FA + 4 * kk)
        e(f"v_mfma_f32_16x16x32_bf16 {vr(T+4*t)}, {vr(FA+4*kk)}, {bb}, {c}")
for t in range(3): e(f"v_add_f32 v{T+4*t}, v{T+4*t}, v{T+4*t+1}"); e(f"v_add_f32 v{T+4*t+2}, v{T+4*t+2}, v{T+4*t+3}")
for t in range(3): e(f"v_add_f32 v{T+4*t}, v{T+4*t}, v{T+4*t+2}")
xreduce(T, T + 4, T + 8, T + 1)
e(f"ds_write_b32 v81, v{T}")
e(f"s_cmp_eq_u32 s{sPass}, 0")
e("s_waitcnt lgkmcnt(0)"); e("s_barrier")
e(f"ds_read_b128 {vr(T)}, v83"); e(f"ds_read_b128 {vr(T+4)}, v85"); e(f"ds_read_b128 {vr(T+8)}, v82"); e(f"ds_read_b128 {vr(T+12)}, v82 offset:256")
e("s_cbranch_scc1 FCS")
def sum4(b): e(f"v_add_f32 v{b}, v{b}, v{b+1}"); e(f"v_add_f32 v{b+2}, v{b+2}, v{b+3}"); e(f"v_add_f32 v{b}, v{b}, v{b+2}")
d = lambda sft: f"v_add_f32_dpp v{T}, v{T}, v{T} row_ror:{sft} row_mask:0xf bank_mask:0xf"
e("s_waitcnt lgkmcnt(3)"); sum4(T); e("s_waitcnt lgkmcnt(2)")
e(f"v_add_f32 v{T+4}, v{T+4}, v{T+5}"); e(d(8)); e(f"v_add_f32 v{T+6}, v{T+6}, v{T+7}"); e(f"v_add_f32 v{T+4}, v{T+4}, v{T+6}"); e(d(4))
e("s_waitcnt lgkmcnt(0)")
e(f"v_subrev_f32 v{T+5}, 0x44200000, v{T+4}"); e(d(2))
e(f"v_add_f32 v{T+8}, v{T+8}, v{T+9}"); e(f"v_mul_f32 v{T+6}, 0x3acccccd, v{T+5}"); e(d(1))
e(f"v_add_f32 v{T+10}, v{T+10}, v{T+11}"); e(f"v_sub_f32 v{T}, v{T}, v{T+5}")
e(f"v_add_f32 v{T+8}, v{T+8}, v{T+10}"); e(f"v_mul_f32 v{T}, 0x3acccccd, v{T}")
e(f"v_add_f32 v{T+12}, v{T+12}, v{T+13}"); e(f"v_fma_f32 v{T}, -v{T+6}, v{T+6}, v{T}")
e(f"v_add_f32 v{T+14}, v{T+14}, v{T+15}"); e(f"v_max_f32 v{T}, 0, v{T}")
e(f"v_fma_f32 v{T+8}, -v{T+4}, v{vCG}, v{T+8}"); e(f"v_add_f32 v{T}, 0x3727c5ac, v{T}")
e(f"v_add_f32 v{T+12}, v{T+12}, v{T+14}"); e(f"v_rsq_f32 v{T}, v{T}")
e(f"v_fma_f32 v{T+12}, -v{T+4}, v{vCU}, v{T+12}"); e(f"v_mul_f32 v{T+9}, 0xbfb8aa3b, v{T+8}")
e(f"v_mul_f32 v{T+9}, v{T+9}, v{T}"); e(f"v_mul_f32 v{T+12}, v{T+12}, v{T+8}"); e(f"v_exp_f32 v{T+9}, v{T+9}")
e(f"v_mul_f32 v{T+12}, v{T+12}, v{T}"); e(f"v_add_f32 v{T+9}, 1.0, v{T+9}"); e(f"v_mul_f32 v{T+12}, v{T+12}, v{T}"); e(f"v_rcp_f32 v{T+9}, v{T+9}")
e(f"v_mul_f32 v{T+12}, v{T+12}, v{T+9}")
for q in range(4): e(f"v_mov_b32_dpp v{T+4+q}, v{T+12} quad_perm:[{q},{q},{q},{q}] row_mask:0xf bank_mask:0xf")
e(f"v_cvt_pk_bf16_f32 v{T+4}, v{T+4}, v{T+5}"); e(f"v_cvt_pk_bf16_f32 v{T+5}, v{T+6}, v{T+7}")
HB = 60
def hm(t): return [f"v_cndmask_b32 v{HB+2*t+q}, 0, v{T+4+q}, {sp(sMf+2*t)}" for q in range(2)]
for x in hm(0) + hm(1): e(x)
for t in range(10):
    c = "0" if t == 0 else vr(T)
    e(f"v_mfma_f32_16x16x16_bf16 {vr(T)}, {W2R[t]}, {vr(HB+2*t,2)}, {c}")
    if t + 2 < 10:
        for x in hm(t + 2): e(x)
setexec(0x03FF03FF03FF03FF)
lstore(f"buffer_store_dwordx4 {vr(T)}, v84, {sr(sW)}, s{sT1} offen")
setexec(FULL)
stamp(9)
def t_():
    lab("FCS")
    e("s_waitcnt lgkmcnt(0)"); sum4(T + 8); sum4(T + 12)
    e(f"v_mul_f32 v{vCG}, 0x3acccccd, v{T+8}"); e(f"v_mul_f32 v{vCU}, 0x3acccccd, v{T+12}")
    e(f"s_mov_b32 s{sPass}, 1"); e("s_barrier"); e("s_branch FPOLL")
tail.append(t_)
lab("NEXT")
e(f"s_cmp_lg_u32 s{sLay}, 0"); e("s_cbranch_scc1 DONE")
e(f"s_mov_b32 s{sLay}, {LS}"); e(f"s_add_u32 s{sLG}, s{sLG}, {LS}")
e("s_branch LOOP")
lab("DONE")
if SPIN:
    e("v_accvgpr_read_b32 v38, a253"); e("s_nop 1"); e("v_readfirstlane_b32 s96, v38")
    lab("SPINL"); e("s_memrealtime s[98:99]"); e("s_waitcnt lgkmcnt(0)"); e("s_sub_u32 s98, s98, s96"); e(f"s_cmp_lt_u32 s98, {SPIN*100}"); e("s_cbranch_scc1 SPINL")
e("s_endpgm")
i = 0
while i < len(tail): tail[i](); i += 1
lab("CODE_END")
e("s_endpgm")

body = A.pad()
hdr = [f"; @launch grid=(256,1,1) block=(256,1,1) lds={LDSSZ}", '.amdgcn_target "amdgcn-amd-amdhsa--gfx950"', ".text",
       f".globl {NAME}_kernel", ".p2align 8", f".type {NAME}_kernel,@function", f"{NAME}_kernel:"]
ftr = ['.section .rodata,"a"', ".p2align 6", f".amdhsa_kernel {NAME}_kernel", "  .amdhsa_next_free_vgpr 512", "  .amdhsa_next_free_sgpr 102",
       "  .amdhsa_accum_offset 256", "  .amdhsa_group_segment_fixed_size 0", "  .amdhsa_kernarg_size 96", "  .amdhsa_user_sgpr_count 2",
       "  .amdhsa_user_sgpr_kernarg_segment_ptr 1", "  .amdhsa_system_sgpr_workgroup_id_x 1", ".end_amdhsa_kernel"]
src = "\n".join(hdr + body + ftr) + "\n"
import re
for m in re.finditer(r"buffer_\S+ .*offset:(\d+)", src): assert int(m.group(1)) < 4096, m.group(0)
for m in re.finditer(r"ds_\S+ .*offset:(\d+)", src): assert int(m.group(1)) < 65536, m.group(0)
open(OUT, "w").write(src)
```

```python
import re
REG = re.compile(r'^(-|\|)?(v|a|s)(\d+)\|?$')
RNG = re.compile(r'^(v|a|s)\[(\d+):(\d+)\]$')
TRANS = ("v_exp_f32","v_log_f32","v_rcp_f32","v_rsq_f32","v_sqrt_f32","v_sin_f32","v_cos_f32")
def regs(tok):
    tok = tok.strip()
    if tok == "vcc": return {("s",106),("s",107)}
    if tok == "exec": return {("s",126),("s",127)}
    if tok == "m0": return {("s",124)}
    m = REG.match(tok)
    if m: return {(m.group(2), int(m.group(3)))}
    m = RNG.match(tok)
    if m: return {(m.group(1), i) for i in range(int(m.group(2)), int(m.group(3))+1)}
    return set()
class I:
    def __init__(s, text):
        s.text = text
        t = text.split(";")[0].strip()
        p = t.split(None, 1)
        s.mn = p[0]
        rest = p[1] if len(p) > 1 else ""
        ops = []; depth = 0; cur = ""
        for ch in rest:
            if ch in "[(": depth += 1
            if ch in "])": depth -= 1
            if ch == "," and depth == 0: ops.append(cur.strip()); cur = ""
            else: cur += ch
        if cur.strip(): ops.append(cur.strip())
        s.mods = ""
        if ops:
            q = ops[-1].split(None, 1)
            ops[-1] = q[0]; s.mods = q[1] if len(q) > 1 else ""
        s.ops = ops
        mn = s.mn
        s.mfma = mn.startswith(("v_mfma", "v_smfmac"))
        s.valu = mn.startswith("v_") and not s.mfma
        s.salu = mn.startswith("s_")
        s.vmem = mn.startswith(("buffer_", "global_"))
        s.ds = mn.startswith("ds_")
        s.dpp = "_dpp" in mn
        s.perm = mn.startswith("v_permlane")
        s.rdlane = mn.startswith(("v_readlane", "v_readfirstlane"))
        s.trans = mn.replace("_e32","").replace("_e64","") in TRANS
        s.ldsdma = s.vmem and re.search(r'\blds\b', s.mods) is not None
        s.branch = mn.startswith(("s_branch", "s_cbranch"))
        s.uncond = mn in ("s_branch", "s_endpgm", "s_setpc_b64")
        R = [regs(o) for o in ops]
        allr = set().union(*R) if R else set()
        s.w = set(); s.r = set(); s.srcC = set(); s.srcAB = set(); s.stdata = set()
        if mn.startswith("v_smfmac"):
            s.w = R[0]; s.srcAB = R[1] | R[2] | R[3]; s.srcC = R[0]; s.r = s.srcAB | s.srcC
        elif s.mfma:
            s.w = R[0]; s.srcAB = R[1] | R[2]; s.srcC = R[3]; s.r = s.srcAB | s.srcC
        elif s.valu:
            s.w = set(R[0]); s.r = set().union(*R[1:]) if len(R) > 1 else set()
            if s.perm: s.w = R[0] | R[1]; s.r = R[0] | R[1]
            if mn.startswith(("v_fmac", "v_dot2c", "v_writelane")) or s.dpp: s.r |= R[0]
            if mn.startswith(("v_add_co", "v_sub_co", "v_addc_co")): s.w |= R[1]
            if mn.startswith("v_cndmask") and len(ops) == 3: s.r |= regs("vcc")
        elif s.vmem:
            isload = "_load" in mn and not s.ldsdma
            atomic_ret = "_atomic" in mn and "sc0" in s.mods
            if isload: s.w = R[0]; s.r = set().union(*R[1:])
            elif atomic_ret and mn.startswith("global"): s.w = R[0]; s.r = set().union(*R[1:])
            else:
                s.r = allr
                if "store" in mn and ("x3" in mn or "x4" in mn):
                    s.stdata = R[0] if mn.startswith("buffer") else R[1]
            if s.ldsdma: s.r |= regs("m0")
        elif s.ds:
            if mn.startswith(("ds_read", "ds_bpermute", "ds_permute", "ds_swizzle")) or "_rtn" in mn:
                s.w = R[0]; s.r = set().union(*R[1:])
            else: s.r = allr
        elif s.salu:
            if mn.startswith(("s_cmp", "s_cbranch", "s_branch", "s_waitcnt", "s_nop", "s_barrier", "s_sleep", "s_setprio", "s_endpgm", "s_bitcmp")):
                s.r = allr
            elif R:
                s.w = set(R[0]); s.r = set().union(*R[1:]) if len(R) > 1 else set()
                if "saveexec" in mn: s.w |= regs("exec")
        s.states = 1
        if mn == "s_nop": s.states = int(ops[0], 0) + 1
def need(P, C):
    n = 0
    vw = {x for x in P.w if x[0] != "s"}; sw = {x for x in P.w if x[0] == "s"}
    if P.valu:
        if C.mfma and vw & C.r: n = max(n, 2)
        if C.valu and (C.dpp or C.perm) and vw & C.r: n = max(n, 2)
        if C.rdlane and vw & C.r: n = max(n, 1)
        if P.trans and vw & C.r and not C.trans: n = max(n, 1)
        if sw:
            if C.valu and sw & C.r: n = max(n, 4 if C.rdlane or C.mn.startswith("v_writelane") else 2)
            if C.mfma and sw & C.r: n = max(n, 2)
            if C.vmem and sw & C.r: n = max(n, 5)
            if C.salu and sw & C.r: n = max(n, 1)
    if P.mfma:
        assert "16x16" in P.mn
        if C.mfma:
            if P.w & C.srcAB: n = max(n, 8)
            if P.w & C.srcC and P.w != C.srcC: n = max(n, 6)
            if P.w & C.w and P.w != C.srcC: n = max(n, 6)
        elif C.valu or C.vmem or C.ds:
            if P.w & (C.r | C.w): n = max(n, 8)
            if C.valu and P.srcC & C.w: n = max(n, 3)
    if P.salu and ("s",124) in P.w and C.ldsdma: n = max(n, 1)
    if P.stdata and P.stdata & C.w: n = max(n, 2)
    return n
class Asm:
    def __init__(s):
        s.items = []
        s.tail = []
        s.vm = []
    def e(s, t):
        for x in t.split("\n"):
            x = x.strip()
            if x: s.items.append(("I", I(x)))
    def lab(s, n): s.items.append(("L", n))
    def raw(s, t): s.items.append(("R", t))
    def vmem(s, t, tag, counted=True):
        s.e(t)
        if counted: s.vm.append(tag)
    def wait(s, tag, extra=""):
        if tag not in s.vm: return
        idx = max(i for i, x in enumerate(s.vm) if x == tag)
        n = len(s.vm) - 1 - idx
        assert n <= 63, n
        s.e(f"s_waitcnt vmcnt({n}){extra}")
        s.vm = s.vm[idx+1:]
    def drained(s): s.vm = []
    def pad(s):
        items = s.items
        labpos = {}
        for i, it in enumerate(items):
            if it[0] == "L": labpos[it[1]] = i
        srcs = {}
        for i, it in enumerate(items):
            if it[0] == "I" and it[1].branch and it[1].ops[0] in labpos:
                srcs.setdefault(labpos[it[1].ops[0]], []).append(i)
        ins = {}
        def deficit(ci):
            C = items[ci][1]; worst = 0
            stack = [(ci - 1, 0, True)]; seen = set()
            while stack:
                i, dist, fall = stack.pop()
                if i < 0 or dist >= 8 or (i, dist, fall) in seen: continue
                seen.add((i, dist, fall))
                it = items[i]
                if it[0] == "L":
                    for b in srcs.get(i, []): stack.append((b, dist, False))
                    stack.append((i - 1, dist, True)); continue
                if it[0] == "R": stack.append((i - 1, dist, True)); continue
                P = it[1]
                if fall and P.uncond: continue
                worst = max(worst, need(P, C) - dist)
                stack.append((i - 1, dist + P.states + ins.get(i, 0), True))
            return worst
        for n_pass in range(2):
            for i, it in enumerate(items):
                if it[0] == "I":
                    d = deficit(i) - ins.get(i, 0)
                    if d > 0: ins[i] = ins.get(i, 0) + d
        out = []
        for i, it in enumerate(items):
            if it[0] == "L": out.append(it[1] + ":")
            elif it[0] == "R": out.append(it[1])
            else:
                if ins.get(i, 0): out.append(f"    s_nop {ins[i]-1}")
                out.append("    " + it[1].text)
        return out
```

```python
import os, sys
sys.path.insert(0, os.path.dirname(os.path.abspath(__file__)))
from asmlib import Asm
NAME = "interleave_layers__sliding_block_cached__glu_gated_swiglu__decode"
OPT = dict(a.split("=") for a in sys.argv[2:])
OUT = sys.argv[1] if len(sys.argv) > 1 else f"/code/{NAME}.s"
STAMP = int(OPT.get("stamp", 0))
NT = OPT.get("nt", "nt").replace("x", "")
NTW = OPT.get("ntw", "nt").replace("x", "")
FORCESLOW = int(OPT.get("slow", 0))
SPIN = int(OPT.get("spin", 0))
A = Asm(); e = A.e; lab = A.lab
tail = []

RS = 416; SCRW = 16 * RS
SCR = 0; WQ = 4 * SCRW; ROLE = WQ + 30720
WO = ROLE; W1 = ROLE; W3 = ROLE + 20480; W2 = ROLE + 40960
MISC = ROLE + 61440; QB = MISC; ACC = MISC + 512
OACC = 0; YACC = 3072; FACC = 4096
PT = ACC + 5120; ML4 = PT + 1024
LDSSZ = ML4 + 64
FDMA = OPT.get("fdma", "late")
OMASK = int(OPT.get("omask", 1))
WDMA = OPT.get("wdma", "mid")
PF = OPT.get("pf", "ow")
NTP = OPT.get("ntp", "x").replace("x", "")
NTR = OPT.get("ntr", "x").replace("x", "")
GB = 81920; oQ = 0; oO = 32768; oML = 45056; oFP = 46080; oYL = 76800; oFL = 78080; oBA = 79360; oBB = 80640
GOFF = 8 * GB; oYG = GOFF; oFG = GOFF + 10240; LS = 0xA8000
OOB = 0x7FFFFFF0
sK, sV, sW, sWQ, sRA, sRB, sRC, sX, sO = 8, 12, 16, 20, 24, 28, 32, 36, 40
sG, sJ, sHH, sS, sWV, sKV, sLay, sFast, sCnt = 68, 69, 70, 71, 72, 73, 74, 75, 76
sT0, sT1, sT2 = 77, 78, 79
sLG = 3
sClr = 4
sXcc = 5
sTL = 6
sT3 = 7
sYg, sYl = 80, 81
sMf = 44
def sr(b): return f"s[{b}:{b+3}]"
def sp(b): return f"s[{b}:{b+1}]"
def vr(b, n=4): return f"v[{b}:{b+n-1}]" if n > 1 else f"v{b}"
def ar(b, n=4): return f"a[{b}:{b+n-1}]"
def srd(d, lo, nbytes):
    e(f"s_mov_b32 s{d}, s{lo}"); e(f"s_and_b32 s{d+1}, s{lo+1}, 0xffff")
    e(f"s_mov_b32 s{d+2}, {nbytes}"); e(f"s_mov_b32 s{d+3}, 0x20000")
def setexec(mask):
    lo, hi = mask & 0xffffffff, mask >> 32
    if mask == (1 << 64) - 1: e("s_mov_b64 exec, -1")
    elif hi == 0 and lo <= 64: e(f"s_mov_b64 exec, {lo}")
    else: e(f"s_mov_b32 exec_lo, {lo:#x}"); e(f"s_mov_b32 exec_hi, {hi:#x}")
FULL = (1 << 64) - 1
ROWS9 = 0x01FF01FF01FF01FF
vL, vLin, vWr, vKrd, vVrd, vCS, vAq, vAq16, vQst, vQld, vQBw, vQBr, vIdx, vAcc, vTq1, vTq2, vSC, vPw = 0, 1, 2, 5, 6, 7, 8, 9, 10, 11, 12, 13, 14, 15, 16, 17, 18, 19
vC1, vC2, vXR = 20, 21, 22
T = 24
F = 40
SPARE = 88
def vblock(b):
    if b < 2: return ("a", 192 + 24 * b)
    if b == 8: return ("v", SPARE)
    return ("v", 112 + 24 * (b - 2))
def rg(f, b, n): return f"{f}[{b}:{b+n-1}]"

uid = [0]
def nid(): uid[0] += 1; return uid[0]
stamps = [0]
SPINAT = int(OPT.get("spinat", -1))
def stamp(i, val=None):
    if SPIN and val is None and SPINAT % 16 == i:
        k = nid()
        e(f"s_cmp_lg_u32 s{sLay}, {LS*(SPINAT//16)}"); e(f"s_cbranch_scc1 NOSP{k}")
        e("s_memrealtime s[100:101]"); e("s_waitcnt lgkmcnt(0)"); e("v_accvgpr_write_b32 a253, s100"); lab(f"NOSP{k}")
    if not STAMP: return
    if STAMP == 2 and val is None and i not in (0, 14): return
    if STAMP == 1 and (val is not None or i == 14): return
    e("s_memrealtime s[100:101]"); e("v_accvgpr_write_b32 a254, v38"); e("v_accvgpr_write_b32 a255, v39")
    e(f"s_lshl_b32 s98, s2, 2"); e(f"s_add_u32 s98, s98, s{sWV}"); e("s_lshl_b32 s98, s98, 7")
    e(f"s_cmp_eq_u32 s{sLay}, 0"); e(f"s_cselect_b32 s99, 0, 64"); e(f"s_add_u32 s99, s99, {4*i}"); e("s_add_u32 s98, s98, s99"); e("s_add_u32 s98, s98, 0x40000000")
    e("s_waitcnt lgkmcnt(0)"); e(f"v_mov_b32 v38, {val or 's100'}"); e("v_mov_b32 v39, 0")
    e("s_mov_b64 s[100:101], exec"); e("s_mov_b64 exec, 1")
    A.vmem(f"buffer_store_dword v38, v39, {sr(sW)}, s98 offen", "stamp")
    e("s_mov_b64 exec, s[100:101]"); e("s_nop 1"); e("v_accvgpr_read_b32 v38, a254"); e("v_accvgpr_read_b32 v39, a255")
def lstore(instr, counted=None):
    k = nid()
    e(f"s_cmp_eq_u32 s{sFast}, 1"); e(f"s_cbranch_scc0 SLOW{k}")
    if counted: A.vmem(instr, counted)
    else: e(instr)
    lab(f"BACK{k}")
    def t(): lab(f"SLOW{k}"); e(instr + " sc1"); e(f"s_branch BACK{k}")
    tail.append(t)
def check(regs_, tmp):
    r = list(regs_)
    if len(r) == 1: e(f"v_cmp_eq_u32 vcc, -1, v{r[0]}"); return
    cur = r.pop(0)
    while r:
        if len(r) >= 2: e(f"v_max3_u32 v{tmp}, v{cur}, v{r[0]}, v{r[1]}"); r = r[2:]
        else: e(f"v_max_u32 v{tmp}, v{cur}, v{r[0]}"); r = r[1:]
        cur = tmp
    e(f"v_cmp_eq_u32 vcc, -1, v{tmp}")
LIMIT = 0x8000
def poll(loads, regs_, tmp, pid=None, slp=0, first=None):
    k = nid()
    if pid is not None: stamp(pid, "s100")
    e(f"s_mov_b32 s{sCnt}, 1")
    if first:
        for l in loads: e(l)
        first(); e(f"s_branch POLLW{k}")
    lab(f"POLL{k}")
    for l in loads: e(l)
    lab(f"POLLW{k}")
    e("s_waitcnt vmcnt(0)")
    check(regs_, tmp)
    e(f"s_cbranch_vccnz AGAIN{k}")
    lab(f"POLLX{k}")
    def t():
        lab(f"AGAIN{k}")
        if slp: e(f"s_sleep {slp}")
        e(f"s_add_u32 s{sCnt}, s{sCnt}, 1"); e(f"s_cmp_lt_u32 s{sCnt}, {LIMIT}"); e(f"s_cbranch_scc1 POLL{k}"); e(f"s_branch POLLX{k}")
    near.append(t)
    if pid is not None: stamp(pid + 1, "s100"); stamp(pid + 2, f"s{sCnt}")
    A.drained()
near = []
def flush_near():
    while near: near.pop(0)()
GATE = int(OPT.get("gate", 1)); GDLY = int(OPT.get("gdly", 0)); ODLY = int(OPT.get("odly", 16))
def gate(sreg, nl, tmp):
    if not GATE: return
    setexec((1 << nl) - 1)
    poll([f"buffer_load_dword v{tmp}, v{vLin}, {sr(sW)}, s{sreg} offen sc1"], [tmp], tmp)
    if GDLY: e(f"s_sleep {GDLY}")
def late_check(tag, loads, regs_, tmp, pre=None, post=None):
    k = nid()
    A.wait(tag)
    check(regs_, tmp)
    e(f"s_cbranch_vccnz RETRY{k}")
    lab(f"OK{k}")
    def t():
        lab(f"RETRY{k}")
        if pre: pre()
        save = A.vm; poll(loads, regs_, tmp); A.vm = save
        if post: post()
        e(f"s_branch OK{k}")
    tail.append(t)

e("s_cmp_ge_u32 s2, 256"); e("s_cbranch_scc1 CODE_END")
e("s_load_dwordx16 s[44:59], s[0:1], 0"); e("s_load_dwordx8 s[60:67], s[0:1], 64")
if STAMP or SPIN: e("s_memrealtime s[96:97]")
e("v_lshrrev_b32 v2, 6, v0"); e("v_and_b32 v24, 63, v0"); e(f"v_readfirstlane_b32 s{sWV}, v2")
e(f"s_and_b32 s{sG}, s2, 7"); e(f"s_lshr_b32 s{sJ}, s2, 3"); e(f"s_lshr_b32 s{sHH}, s{sJ}, 3"); e(f"s_and_b32 s{sS}, s{sJ}, 7")
e(f"v_lshlrev_b32 v{vLin}, 4, v24")
e(f"s_lshl_b32 s{sT0}, s{sHH}, 3"); e(f"s_add_u32 s{sT0}, s{sT0}, s{sG}")
e(f"s_mul_i32 s{sKV}, s{sT0}, 12582912"); e(f"s_lshl_b32 s{sT1}, s{sS}, 2"); e(f"s_add_u32 s{sT1}, s{sT1}, s{sWV}")
e(f"s_mul_i32 s{sT1}, s{sT1}, 6144"); e(f"s_add_u32 s{sKV}, s{sKV}, s{sT1}"); e(f"s_add_u32 s{sKV}, s{sKV}, 11010048")
e(f"s_mul_i32 s{sT2}, s{sT0}, 384")
e(f"s_mov_b32 s{sLay}, 0"); e(f"s_mul_i32 s{sLG}, s{sG}, {GB}"); e(f"s_mov_b32 s{sFast}, 0")
e(f"v_mov_b32 v32, -1"); e(f"v_mov_b32 v33, -1"); e(f"v_mov_b32 v34, -1"); e(f"v_mov_b32 v35, -1")
e(f"s_mul_i32 s{sT0}, s{sJ}, 2560"); e(f"s_add_u32 s{sT0}, s{sT0}, s{sLG}")
e(f"v_lshl_add_u32 v{vC1}, v0, 4, s{sT0}"); e("v_cmp_le_u32 vcc, 160, v0"); e(f"v_add_u32 v25, {LS-2560}, v{vC1}"); e(f"v_cndmask_b32 v{vC1}, v{vC1}, v25, vcc")
e(f"s_add_u32 s{sT0}, s{sT0}, {LS+16*96}")
e(f"s_lshl_b32 s{sT1}, s{sJ}, 10"); e(f"s_add_u32 s{sT1}, s{sT1}, s{sLG}"); e(f"s_add_u32 s{sT1}, s{sT1}, {2*LS}")
e(f"s_cmp_eq_u32 s{sWV}, 0"); e(f"s_cselect_b32 s{sClr}, s{sT0}, s{sT1}")
e(f"s_mul_i32 s{sT0}, s2, 80"); e(f"s_add_u32 s{sT0}, s{sT0}, {GOFF}")
e(f"s_cmp_ge_u32 s{sWV}, 2"); e(f"s_cselect_b32 s{sClr}, s{sT0}, s{sClr}")
e(f"v_add_u32 v25, {LS-80}, v{vLin}"); e("v_cmp_le_u32 vcc, 133, v0"); e(f"v_cndmask_b32 v{vC2}, v{vLin}, v25, vcc")
e(f"v_mov_b32 v25, {OOB-0x10000000}"); e("v_cmp_le_u32 vcc, 138, v0"); e(f"v_cndmask_b32 v{vC2}, v{vC2}, v25, vcc")
e("s_waitcnt lgkmcnt(0)")
srd(sK, 46, 402653184)
if SPIN: e("v_mov_b32 v38, s96"); e("v_accvgpr_write_b32 a253, v38")
def tile_loads(srdn, t, f, base, tag):
    for i in range(6):
        if i == 0: e(f"s_add_u32 s{sTL}, s{sKV}, {t*196608}")
        if i == 4: e(f"s_add_u32 s{sTL}, s{sTL}, 4096")
        A.vmem(f"buffer_load_dwordx4 {rg(f, base+4*i, 4)}, v{vLin}, {sr(srdn)}, s{sTL} offen offset:{1024*(i%4)} {NT}", tag)
def Kld(t): tile_loads(sK, t, "a", 24 * t, f"K{t}")
def Vld(t): f, b = vblock(t + 1); tile_loads(sV, t, f, b, f"V{t}")
Kld(0)
srd(sW, 66, 1610612736)
A.vmem(f"buffer_store_dwordx4 v[32:35], v{vC1}, {sr(sW)}, 0 offen sc1", "clr")
A.vmem(f"buffer_store_dwordx4 v[32:35], v{vC2}, {sr(sW)}, s{sClr} offen sc1", "clr")
e("s_getpc_b64 s[100:101]"); lab("PCREF")
e(f"s_sub_u32 s100, s100, PCREF-{NAME}_kernel"); e("s_subb_u32 s101, s101, 0")
e(f"s_and_b32 s{sT0}, s{sJ}, 7"); e(f"s_lshl_b32 s{sT0}, s{sT0}, 12"); e(f"v_lshl_add_u32 v25, v0, 4, s{sT0}")
e(f"v_cmp_gt_u32 vcc, CODE_END-{NAME}_kernel-16, v25"); e("s_and_saveexec_b64 s[98:99], vcc"); e("s_cbranch_execz NOCPF")
e(f"global_load_dwordx4 a[240:243], v25, s[100:101]")
lab("NOCPF"); e("s_mov_b64 exec, -1")
Kld(1)
srd(sV, 48, 402653184); srd(sWQ, 50, 7864320); srd(sX, 44, 1280); srd(sO, 62, 1280)
srd(sRB, 58, 1966080); srd(sRC, 60, 1966080)
e(f"s_cmp_lt_u32 s{sJ}, 20"); e(f"s_cselect_b32 s{sRA}, s52, s56"); e(f"s_cselect_b32 s{sRA+1}, s53, s57"); e(f"s_cselect_b32 s{sRA+2}, s{sWQ+2}, s{sRB+2}")
e(f"s_and_b32 s{sRA+1}, s{sRA+1}, 0xffff"); e(f"s_mov_b32 s{sRA+3}, 0x20000")
if STAMP:
    e(f"s_lshl_b32 s98, s2, 2"); e(f"s_add_u32 s98, s98, s{sWV}"); e("s_lshl_b32 s98, s98, 7"); e("s_add_u32 s98, s98, 0x40000000")
    e("v_mov_b32 v38, s96"); e("v_mov_b32 v39, 0"); e("s_mov_b64 exec, 1")
    A.vmem(f"buffer_store_dword v38, v39, {sr(sW)}, s98 offen", "stamp"); e("s_mov_b64 exec, -1")
A.wait("clr"); e("s_barrier")
e(f"s_getreg_b32 s{sXcc}, hwreg(HW_REG_XCC_ID, 0, 4)")
e(f"s_lshr_b32 s{sT0}, s{sXcc}, 2"); e(f"s_lshl_b32 s{sT1}, s{sG}, 2"); e(f"s_add_u32 s{sT0}, s{sT0}, s{sT1}")
e(f"s_and_b32 s{sT1}, s{sXcc}, 3"); e(f"s_lshl_b32 s{sT1}, s{sT1}, 3"); e(f"s_lshl_b32 s{sT3}, 1, s{sT1}")
e(f"s_lshl_b32 s96, 32, s{sT1}"); e(f"s_mov_b32 s{sXcc}, s{sT0}")
e(f"s_cmp_lg_u32 s{sWV}, 0"); e("s_cbranch_scc1 NOATOM")
e(f"s_lshl_b32 s{sT0}, s{sT0}, 2"); e(f"v_mov_b32 v36, s{sT0}"); e(f"v_mov_b32 v37, s{sT3}")
setexec(1); e("global_atomic_add v36, v37, s[64:65] sc1"); setexec(FULL)
lab("NOATOM")
e(f"v_mov_b32 v{vL}, v24")
e(f"s_mul_i32 s{sT0}, s{sWV}, {SCRW}")
for r in range(3):
    e(f"v_add_u32 v25, {64*r}, v{vL}"); e("v_mul_u32_u24 v26, 171, v25"); e("v_lshrrev_b32 v26, 12, v26")
    e("v_mul_u32_u24 v27, 24, v26"); e("v_sub_u32 v27, v25, v27"); e("v_lshlrev_b32 v27, 4, v27")
    e(f"v_mul_u32_u24 v25, {RS}, v26"); e(f"v_add3_u32 v{vWr+r}, v25, v27, s{sT0}")
    e(f"v_mul_u32_u24 v25, 12288, v26"); e(f"v_add_u32 v{F+r}, v25, v27")
assert all((c * 171) >> 12 == c // 24 for c in range(192))
e(f"s_mul_i32 s{sT1}, s{sS}, {80*12288}"); e(f"s_add_u32 s{sT2}, s{sT2}, s{sT1}")
e(f"s_mul_i32 s{sT1}, s{sWV}, {8*12288}"); e(f"s_add_u32 s{sT2}, s{sT2}, s{sT1}")
e(f"s_mul_i32 s{sT1}, s{sWV}, 3072"); e(f"s_add_u32 s{sT1}, s{sT1}, {WQ}")
for gi in range(3):
    if gi == 2: e(f"s_cmp_ge_u32 s{sWV}, 2"); e("s_cbranch_scc1 NOWQ3")
    for r in range(3):
        e(f"s_add_u32 m0, s{sT1}, {gi*4*3072 + r*1024}")
        A.vmem(f"buffer_load_dwordx4 v{F+r}, {sr(sWQ)}, s{sT2} offen {NTW} lds", "wq", counted=(gi < 2))
    if gi < 2: e(f"s_add_u32 s{sT2}, s{sT2}, {32*12288}")
lab("NOWQ3")
e(f"v_and_b32 v25, 15, v{vL}"); e(f"v_lshrrev_b32 v26, 4, v{vL}")
e(f"v_bfe_u32 v27, v{vL}, 2, 2"); e(f"v_and_b32 v28, 3, v{vL}")
e("v_cmp_eq_u32 vcc, 12, v25"); e("v_mov_b32 v36, 0x3f803f80"); e(f"v_cndmask_b32 v70, 0, v36, vcc")
for q in range(1, 10): e(f"v_mov_b32 v{70+q}, v70")
for q in range(10): e(f"v_mov_b32 v{SPARE+q}, v70")
e(f"s_mul_i32 s{sT1}, s{sS}, 160")
e(f"v_lshlrev_b32 v36, 4, v26"); e(f"v_lshlrev_b32 v37, 3, v26")
setexec(0x0100010001000100)
A.vmem(f"buffer_load_dwordx4 {vr(SPARE)}, v36, {sr(sX)}, s{sT1} offen", "x")
A.vmem(f"buffer_load_dwordx4 {vr(SPARE+4)}, v36, {sr(sX)}, s{sT1} offen offset:64", "x")
A.vmem(f"buffer_load_dwordx2 {vr(SPARE+8,2)}, v37, {sr(sX)}, s{sT1} offen offset:128", "x")
setexec(FULL)
e(f"s_lshl_b32 s{sT2}, s{sJ}, 6"); e(f"v_lshlrev_b32 v38, 2, v25")
A.vmem(f"buffer_load_dword v{vXR}, v38, {sr(sX)}, s{sT2} offen", "x")
srd(sWQ, 52, 7864320)
e(f"s_cmp_lt_u32 s{sWV}, 2"); e(f"s_cselect_b32 s{sX}, s56, s58"); e(f"s_cselect_b32 s{sX+1}, s57, s59"); e(f"s_and_b32 s{sX+1}, s{sX+1}, 0xffff"); e(f"s_mov_b32 s{sX+2}, 1966080")
Kld(2)
e(f"v_mul_u32_u24 v29, {RS}, v25"); e(f"v_lshl_add_u32 v29, v26, 4, v29"); e(f"v_add_u32 v{vKrd}, s{sT0}, v29")
e(f"v_lshrrev_b32 v29, 2, v{vL}"); e(f"v_mul_u32_u24 v29, {RS}, v29"); e(f"v_lshl_add_u32 v29, v28, 3, v29"); e(f"v_add_u32 v{vVrd}, s{sT0}, v29")
e(f"s_mul_i32 s{sT2}, s{sWV}, 96"); e(f"s_add_u32 s{sT2}, s{sT2}, {WQ}")
e("v_lshl_add_u32 v29, v26, 3, v27"); e("v_mul_u32_u24 v29, 384, v29"); e("v_lshl_add_u32 v29, v28, 3, v29"); e(f"v_add_u32 v{vTq1}, s{sT2}, v29")
e("v_lshl_add_u32 v29, v26, 2, v27"); e("v_mul_u32_u24 v29, 384, v29"); e("v_lshl_add_u32 v29, v28, 3, v29"); e(f"v_add_u32 v{vTq2}, s{sT2}, v29")
def rowbase(dst, m, og, ol, ob, tmp):
    e(f"v_mul_u32_u24 v{dst}, 1280, v{m}"); e(f"v_add_u32 v{dst}, {og}, v{dst}")
    e(f"s_mul_i32 s{sT3}, s{sG}, {GB}"); e(f"s_add_u32 s{sT3}, s{sT3}, {ol}"); e(f"v_mov_b32 v{tmp}, s{sT3}")
    e(f"v_cmp_eq_u32 vcc, s{sG}, v{m}"); e(f"v_cndmask_b32 v{dst}, v{dst}, v{tmp}, vcc")
    if ob is not None:
        e(f"v_add_u32 v{tmp}, {ob-ol}, v{tmp}"); e(f"v_cmp_le_u32 vcc, 8, v{m}"); e(f"v_cndmask_b32 v{dst}, v{dst}, v{tmp}, vcc")
e(f"v_mul_u32_u24 v31, 103, v{vL}"); e("v_lshrrev_b32 v31, 10, v31")
e(f"v_mul_u32_u24 v30, 10, v31"); e(f"v_sub_u32 v30, v{vL}, v30"); e(f"v_lshl_add_u32 v29, v30, 4, s{sT1}")
rowbase(vAq, 31, oFG, oFL, oBB, 30); e(f"v_add_u32 v{vAq}, v{vAq}, v29")
e("v_add_u32 v31, 6, v31"); rowbase(vAq16, 31, oFG, oFL, oBB, 30); e(f"v_add_u32 v{vAq16}, v{vAq16}, v29")
e(f"v_mov_b32 v30, {OOB}"); e(f"v_cmp_le_u32 vcc, 30, v{vL}"); e(f"v_cndmask_b32 v{vAq16}, v{vAq16}, v30, vcc")
assert all((c * 103) >> 10 == c // 10 for c in range(64))
e(f"s_lshl_b32 s{sT1}, s{sJ}, 10"); e(f"s_lshl_b32 s{sT2}, s{sWV}, 8"); e(f"s_add_u32 s{sT1}, s{sT1}, s{sT2}")
e(f"v_lshl_add_u32 v{vQst}, v{vL}, 2, s{sT1}")
e(f"s_lshl_b32 s{sT1}, s{sHH}, 13"); e(f"s_add_u32 s{sT1}, s{sT1}, s{sT2}")
e(f"v_lshlrev_b32 v29, 10, v26"); e(f"v_lshl_add_u32 v29, v25, 4, v29"); e(f"v_add_u32 v{vQld}, s{sT1}, v29")
e(f"s_mul_i32 s{sT1}, s{sWV}, 96"); e(f"s_add_u32 s{sT1}, s{sT1}, {QB}")
e(f"v_lshl_add_u32 v29, v27, 5, s{sT1}"); e("v_lshl_add_u32 v29, v28, 2, v29"); e("v_lshrrev_b32 v30, 1, v26"); e("v_lshl_add_u32 v29, v30, 4, v29")
e("v_and_b32 v30, 1, v26"); e("v_lshl_add_u32 v29, v30, 1, v29"); e(f"v_mov_b32 v30, {QB+384}")
e("v_cmp_le_u32 vcc, 12, v25"); e(f"v_cndmask_b32 v{vQBw}, v29, v30, vcc")
e(f"v_and_b32 v30, 1, v{vL}"); e(f"v_lshlrev_b32 v29, 5, v26"); e("v_lshl_add_u32 v29, v30, 4, v29"); e(f"v_add_u32 v{vQBr}, {QB}, v29")
e("v_mul_u32_u24 v30, 0xaaaa, v30"); e("v_and_b32 v29, 1, v27"); e("v_mul_u32_u24 v29, 0xaaaa, v29"); e("v_lshl_or_b32 v29, v29, 16, v30"); e(f"v_add_u32 v{vIdx}, 0x44444444, v29")
e(f"s_lshl_b32 s{sT1}, s{sWV}, 8"); e(f"s_add_u32 s{sT1}, s{sT1}, {PT}")
e(f"v_lshrrev_b32 v29, 5, v{vL}"); e(f"v_lshl_add_u32 v29, v29, 6, s{sT1}")
for bit, sh in ((3, 5), (1, 4), (2, 3), (4, 2), (0, 1)): e(f"v_bfe_u32 v30, v{vL}, {bit}, 1"); e(f"v_lshl_add_u32 v29, v30, {sh}, v29")
e(f"v_mov_b32 v{vPw}, v29")
e(f"s_mul_i32 s{sT1}, s{sWV}, 768"); e(f"s_add_u32 s{sT1}, s{sT1}, {ACC}"); e(f"v_lshl_add_u32 v29, v25, 2, s{sT1}")
e(f"v_bfe_u32 v30, v{vL}, 4, 1"); e("v_lshl_add_u32 v29, v30, 7, v29"); e(f"v_lshrrev_b32 v30, 5, v{vL}"); e(f"v_lshl_add_u32 v{vAcc}, v30, 6, v29")
for t in range(10):
    m = 0x00010001 << t
    e(f"s_mov_b32 s{sMf+2*t}, {m:#x}"); e(f"s_mov_b32 s{sMf+2*t+1}, {m:#x}")

def Krel(t):
    A.wait(f"K{t}")
    for i in range(6): e(f"ds_write_b128 v{vWr+i%3}, {ar(24*t+4*i)} offset:{(i//3)*8*RS}")
    for ks in range(6): e(f"ds_read_b128 {ar(24*t+4*ks)}, v{vKrd} offset:{64*ks}")
def Vrel(t):
    A.wait(f"V{t}")
    f, b = vblock(t + 1)
    for i in range(6): e(f"ds_write_b128 v{vWr+i%3}, {rg(f, b+4*i, 4)} offset:{(i//3)*8*RS}")
    f, b = vblock(t & ~1)
    for dt in range(12): e(f"ds_read_b64_tr_b16 {rg(f, b+4*dt+2*(t&1), 2)}, v{vVrd} offset:{32*dt}")
def wq_frags():
    for t in range(3):
        b = F + 10 * t
        for kk in range(2):
            for h in range(2): e(f"ds_read_b64_tr_b16 {vr(b+4*kk+2*h,2)}, v{vTq1} offset:{(32*kk+4*h)*384+32*t}")
        e(f"ds_read_b64_tr_b16 {vr(b+8,2)}, v{vTq2} offset:{64*384+32*t}")
def qstage(a, soff, tag=None, waits=False):
    def mm(t, kk):
        n = 4 if kk < 2 else 2
        bb = vr(F + 10 * t + 4 * kk, n) if t < 3 else vr(a + 4 * kk, n)
        c = "0" if kk == 0 else vr(T + 4 * t)
        e(f"v_mfma_f32_16x16x{32 if kk<2 else 16}_bf16 {vr(T+4*t)}, {vr(a+4*kk,n)}, {bb}, {c}")
    def s4(t): return [f"v_add_f32 v{T+4*t}, v{T+4*t}, v{T+4*t+1}", f"v_add_f32 v{T+4*t+2}, v{T+4*t+2}, v{T+4*t+3}", f"v_add_f32 v{T+4*t}, v{T+4*t}, v{T+4*t+2}"]
    if waits: e("s_waitcnt lgkmcnt(2)")
    mm(0, 0); mm(2, 0)
    if waits: e("s_waitcnt lgkmcnt(0)")
    mm(0, 1); mm(2, 1); mm(0, 2); mm(2, 2)
    mm(1, 0); mm(3, 0); mm(1, 1); mm(3, 1); mm(1, 2); mm(3, 2)
    for x in s4(0) + s4(2): e(x)
    e(f"v_permlane32_swap_b32 v{T}, v{T+8}")
    x1, x3 = s4(1), s4(3)
    for x in x1[:2] + x3[:2] + [f"v_add_f32 v{T}, v{T}, v{T+8}"] + x1[2:] + x3[2:]: e(x)
    e(f"v_permlane32_swap_b32 v{T+4}, v{T+12}"); e(f"v_add_f32 v{T+4}, v{T+4}, v{T+12}")
    e(f"v_permlane16_swap_b32 v{T}, v{T+4}"); e(f"v_add_f32 v{T}, v{T}, v{T+4}")
    lstore(f"buffer_store_dword v{T}, v{vQst}, {sr(sW)}, {soff} offen", tag)
def xreduce(r0, r1, r2, r3):
    e(f"v_permlane32_swap_b32 v{r0}, v{r2}"); e(f"v_permlane32_swap_b32 v{r1}, v{r3}")
    e(f"v_add_f32 v{r0}, v{r0}, v{r2}"); e(f"v_add_f32 v{r1}, v{r1}, v{r3}")
    e(f"v_permlane16_swap_b32 v{r0}, v{r1}"); e(f"v_add_f32 v{r0}, v{r0}, v{r1}")
def qloads(b, s0, s1): return [f"buffer_load_dwordx4 {vr(b)}, v{vQld}, {sr(sW)}, {s0} offen sc1", f"buffer_load_dwordx4 {vr(b+4)}, v{vQld}, {sr(sW)}, {s1} offen sc1"]
def qsum(b):
    for q in range(4): e(f"v_add_f32 v{b+q}, v{b+q}, v{b+4+q}")
    xreduce(b, b + 1, b + 2, b + 3)
def rowred(op, v, tmp, steps):
    for sft in steps: e(f"v_{op}_f32_dpp v{v}, v{v}, v{v} row_ror:{sft} row_mask:0xf bank_mask:0xf")
def xrow(op, v, tmp, both=True):
    if both:
        e(f"v_mov_b32 v{tmp}, v{v}"); e(f"v_permlane32_swap_b32 v{v}, v{tmp}"); e(f"v_{op}_f32 v{v}, v{v}, v{tmp}")
    e(f"v_mov_b32 v{tmp}, v{v}"); e(f"v_permlane16_swap_b32 v{v}, v{tmp}"); e(f"v_{op}_f32 v{v}, v{v}, v{tmp}")
QF = 28; DQ = 40; PA = 72; X = 24; vM = 26
def att_zero():
    for t in range(8): e(f"v_mov_b32 v{DQ+4*t}, 0"); e(f"v_mov_b32 v{DQ+4*t+1}, 0")
    for q in range(16): e(f"v_mov_b32 v{PA+q}, 0")
def q_finish(b, mid=None):
    e(f"v_readlane_b32 s{sT0}, v{b}, 15")
    e(f"s_mov_b32 vcc_lo, 0x70007000"); e(f"s_mov_b32 vcc_hi, 0x70007000")
    e(f"v_fma_f32 v{b+1}, -s{sT0}, v{vCS}, v{b}")
    e(f"v_cvt_pk_bf16_f32 v{b+1}, v{b+1}, v{b+1}")
    e(f"ds_write_b16 v{vQBw}, v{b+1}")
    e(f"v_cndmask_b32 v{b+2}, 0, v{b}, vcc")
    e(f"v_add_f32_dpp v{b+2}, v{b+2}, v{b+2} quad_perm:[1,0,3,2] row_mask:0xf bank_mask:0xf")
    e(f"v_add_f32_dpp v{b+2}, v{b+2}, v{b+2} quad_perm:[2,3,0,1] row_mask:0xf bank_mask:0xf")
    e(f"v_mov_b32 v{b+3}, v{b+2}"); e(f"v_permlane32_swap_b32 v{b+2}, v{b+3}"); e(f"v_add_f32 v{b+2}, v{b+2}, v{b+3}")
    if mid: mid()
    e("s_waitcnt lgkmcnt(0)"); e("s_barrier")
    for ks in range(3): e(f"ds_read_b128 {vr(QF+4*ks)}, v{vQBr} offset:{128*ks}")
    e(f"v_mov_b32 v{b+3}, v{b+2}"); e(f"v_mov_b32 v{b+1}, s{sT0}"); e(f"v_subrev_f32 v{b+1}, 0x44200000, v{b+1}")
    e(f"v_permlane16_swap_b32 v{b+2}, v{b+3}"); e(f"v_add_f32 v{b+2}, v{b+2}, v{b+3}")
    e(f"v_mul_f32 v{b}, 0x3acccccd, v{b+1}")
    e(f"v_readlane_b32 s{sT0}, v{b+2}, 15")
    e(f"v_mul_f32 v{b}, v{b}, v{b}"); e(f"s_mov_b32 s{sT1}, 0x3acccccd")
    e(f"v_sub_f32 v{b+2}, s{sT0}, v{b+1}")
    e(f"v_fma_f32 v{b+2}, v{b+2}, s{sT1}, -v{b}"); e(f"v_max_f32 v{b+2}, 0, v{b+2}"); e(f"v_add_f32 v{b+2}, 0x3727c5ac, v{b+2}")
    e(f"v_rsq_f32 v{b+2}, v{b+2}"); e(f"v_mul_f32 v{vSC}, 0x3dd53b94, v{b+2}")
def qk_softmax(mid=None):
    def fold(t): e(f"v_add_f32_dpp v{X+t//4}, v{DQ+4*t}, v{DQ+4*t+1} quad_perm:[0,1,2,3] row_mask:{1<<(t%4):#x} bank_mask:0xf")
    def mm(t, ks): e(f"v_smfmac_f32_16x16x64_bf16 {vr(DQ+4*t)}, {vr(QF+4*ks)}, {ar(24*t+8*ks, 8)}, v{vIdx}")
    for ks in range(3):
        e(f"s_waitcnt lgkmcnt({2-ks})")
        for t in (0, 4, 1, 5, 2, 6, 3, 7): mm(t, ks)
        if mid and ks == 1: mid()
    fill = [f"s_lshl_b32 s{sT1}, s{sWV}, 8", f"v_bfe_u32 v27, v{vL}, 4, 1", f"v_bfe_u32 v28, v{vL}, 2, 1", f"s_add_u32 s{sT1}, s{sT1}, {PT}"]
    for t in range(4): e(fill[t]); fold(t); fold(t + 4)
    e(f"v_max_f32 v{vM}, v{X}, v{X+1}")
    e(f"v_lshl_add_u32 v27, v27, 5, s{sT1}"); e("v_lshl_add_u32 v27, v28, 4, v27")
    rowred("max", vM, None, (8, 4, 2, 1)); xrow("max", vM, 28)
    e(f"v_mul_f32 v{vM}, v{vM}, v{vSC}")
    for q in range(2): e(f"v_fma_f32 v{X+q}, v{X+q}, v{vSC}, -v{vM}")
    for q in range(2): e(f"v_exp_f32 v{X+q}, v{X+q}")
    e(f"v_cvt_pk_bf16_f32 v28, v{X}, v{X+1}")
    e(f"ds_write_b16 v{vPw}, v28"); e(f"ds_write_b16_d16_hi v{vPw}, v28 offset:128")
    setexec(0xFF00FF0000FF00FF)
    for u in range(4): e(f"ds_read_b128 {vr(PA+4*u)}, v27 offset:{64*u}")
    setexec(FULL)
    e(f"v_add_f32 v27, v{X}, v{X+1}")
    z = [f"v_mov_b32 v{F+4*dp}, 0" for dp in range(6)] + [f"s_lshl_b32 s{sT1}, s{sWV}, 3", f"s_add_u32 s{sT1}, s{sT1}, {ML4}"]
    for sft in (8, 4, 2, 1):
        e(z.pop(0)); e(z.pop(0)); e(f"v_add_f32_dpp v27, v27, v27 row_ror:{sft} row_mask:0xf bank_mask:0xf")
    xrow("add", 27, 28)
    e(f"v_mov_b32 v28, s{sT1}"); e(f"ds_write_b64 v28, v[26:27]")
def pv_step(u, order=range(6)):
    f, b = vblock(2 * u)
    for dp in order: e(f"v_smfmac_f32_16x16x64_bf16 {vr(F+4*dp)}, {vr(PA+4*u)}, {rg(f, b+8*dp, 8)}, v{vIdx} abid:1")
def pv_post():
    for q in range(3): e(f"v_permlane16_swap_b32 v{F+8*q}, v{F+8*q+4}"); e(f"v_add_f32 v{F+8*q}, v{F+8*q}, v{F+8*q+4}"); e(f"ds_write_b32 v{vAcc}, v{F+8*q} offset:{OACC+256*q}")

def pf_wo():
    e(f"s_lshl_b32 s{sT0}, s{sHH}, 3"); e(f"s_add_u32 s{sT0}, s{sT0}, s{sG}"); e(f"s_lshl_b32 s{sT0}, s{sT0}, 3"); e(f"s_add_u32 s{sT0}, s{sT0}, s{sS}")
    e(f"s_lshl_b32 s{sT0}, s{sT0}, 2"); e(f"s_add_u32 s{sT0}, s{sT0}, s{sWV}"); e(f"s_mul_i32 s{sT0}, s{sT0}, 7680")
    for n in range(8):
        if n == 4: e(f"s_add_u32 s{sT0}, s{sT0}, 4096")
        if n == 7: setexec(0xffffffff)
        A.vmem(f"buffer_load_dwordx4 a[240:243], v{vLin}, {sr(sWQ)}, s{sT0} offen offset:{1024*(n%4)} {NTP}", "pfo")
    setexec(FULL)
Krel(0); Kld(3); Krel(1); pf_wo(); Krel(2)
e("s_waitcnt lgkmcnt(0)"); e("s_barrier")
stamp(1)
wq_frags()
Kld(4); Kld(5); Krel(3)
e(f"v_lshlrev_b32 v98, 2, v{vL}")
rdy = ["global_load_dword v99, v98, s[64:65] sc1"]
A.vmem(rdy[0], "rdy")
Kld(6); Krel(4); Kld(7); Krel(5)
def rdycheck():
    e("v_sad_u8 v100, v99, 0, 0")
    e("v_add_u32_dpp v100, v100, v100 quad_perm:[1,0,3,2] row_mask:0xf bank_mask:0xf")
    e("v_add_u32_dpp v100, v100, v100 quad_perm:[2,3,0,1] row_mask:0xf bank_mask:0xf")
    e("v_cmp_gt_u32 vcc, 32, v100"); e("s_mov_b32 vcc_hi, 0"); e("s_cmp_eq_u64 vcc, 0")
A.wait("rdy"); rdycheck(); e("s_cbranch_scc0 RDYLOOP"); lab("RDYOK")
def t_():
    lab("RDYLOOP"); e(f"s_mov_b32 s{sCnt}, 0"); lab("RDYL2"); e("s_sleep 8"); e(rdy[0]); e("s_waitcnt vmcnt(0)"); rdycheck(); e("s_cbranch_scc1 RDYOK")
    e(f"s_add_u32 s{sCnt}, s{sCnt}, 1"); e(f"s_cmp_lt_u32 s{sCnt}, {LIMIT}"); e("s_cbranch_scc1 RDYL2"); e("s_branch RDYOK")
tail.append(t_)
e(f"v_readlane_b32 s{sT0}, v99, s{sXcc}"); e(f"s_cmp_eq_u32 s{sT0}, s96"); e(f"s_cselect_b32 s{sFast}, {0 if FORCESLOW else 1}, 0")
stamp(2)
A.vmem(f"buffer_load_dwordx4 a[240:243], v{vC1}, {sr(sW)}, 0 offen sc1", "pre")
A.vmem(f"buffer_load_dwordx4 a[240:243], v{vC2}, {sr(sW)}, s{sClr} offen sc1", "pre")
e("s_waitcnt lgkmcnt(0)")
e(f"s_add_u32 s{sT2}, s{sLG}, {2*LS}")
qstage(70, f"s{sT2}", "qst"); qstage(SPARE, f"s{sLG}", "qst")
def pack_store16(d, instr_fn):
    for q in (1, 2, 3): e(f"v_mov_b32_dpp v{d+q}, v{d} quad_perm:[{q},{q},{q},{q}] row_mask:0xf bank_mask:0xf")
    setexec(0x1111); instr_fn(); setexec(FULL)
e(f"s_cmp_lg_u32 s{sWV}, 1"); e("s_cbranch_scc1 NOBASE0"); e(f"s_cmp_ge_u32 s{sJ}, 20"); e("s_cbranch_scc1 NOBASE0")
e(f"v_mov_b32 v28, v{vXR}"); e(f"s_lshl_b32 s{sT0}, s{sJ}, 6"); e(f"s_add_u32 s{sT0}, s{sT0}, s{sLG}"); e(f"s_add_u32 s{sT0}, s{sT0}, {oBA}"); e(f"v_lshlrev_b32 v27, 2, v{vL}")
pack_store16(28, lambda: lstore(f"buffer_store_dwordx4 v[28:31], v27, {sr(sW)}, s{sT0} offen"))
lab("NOBASE0")
e(f"v_and_b32 v{vXR+1}, 0xffff0000, v{vXR}"); e(f"v_lshlrev_b32 v{vXR}, 16, v{vXR}")
def pf_w13():
    e(f"s_sub_u32 s{sT0}, s{sJ}, 20"); e(f"s_lshl_b32 s{sT0}, s{sT0}, 1"); e(f"s_and_b32 s{sT1}, s{sWV}, 1"); e(f"s_add_u32 s{sT0}, s{sT0}, s{sT1}")
    e(f"s_mul_i32 s{sT0}, s{sT0}, 640"); e(f"v_add_u32 v36, s{sT0}, v{vL}"); e(f"s_mul_i32 s{sT1}, s{sG}, 384")
    for n in range(10):
        e("v_mul_u32_u24 v37, 43691, v36"); e("v_lshrrev_b32 v37, 20, v37"); e(f"v_mul_u32_u24 v37, {3072-384}, v37"); e("v_lshl_add_u32 v37, v36, 4, v37")
        e(f"buffer_load_dwordx4 a[240:243], v37, {sr(sX)}, s{sT1} offen {NTP}")
        if n < 9: e("v_add_u32 v36, 64, v36")
assert all((c * 43691) >> 20 == c // 24 for c in range(15360))
def role_dma():
    e(f"s_cmp_ge_u32 s{sJ}, 20"); e("s_cbranch_scc1 DMAF")
    e(f"v_lshrrev_b32 v38, 2, v{vL}"); e("v_mul_u32_u24 v38, 1280, v38"); e(f"v_and_b32 v39, 3, v{vL}"); e("v_lshl_add_u32 v38, v39, 4, v38")
    e(f"s_lshl_b32 s{sT0}, s{sWV}, 3"); e(f"s_add_u32 s{sT0}, s{sT0}, s{sG}"); e(f"s_mul_i32 s{sT0}, s{sT0}, {192*1280}"); e(f"s_lshl_b32 s{sT1}, s{sJ}, 6"); e(f"s_add_u32 s{sT0}, s{sT0}, s{sT1}")
    e(f"s_mul_i32 s{sT1}, s{sWV}, 12288"); e(f"s_add_u32 m0, s{sT1}, {WO}")
    for n in range(12):
        A.vmem(f"buffer_load_dwordx4 v38, {sr(sRA)}, s{sT0} offen {NTR} lds", "role", counted=(n < 10))
        if n < 11: e(f"s_add_u32 m0, m0, 1024"); e(f"s_add_u32 s{sT0}, s{sT0}, {16*1280}")
    lab("DMAX")
    def t():
        lab("DMAF"); pf_w13(); e("s_branch DMAX")
    tail.append(t)
def fdma():
    if True:
        e(f"v_lshrrev_b32 v24, 1, v{vL}"); e("v_mul_u32_u24 v24, 3072, v24"); e(f"v_and_b32 v25, 1, v{vL}"); e("v_lshl_add_u32 v24, v25, 4, v24")
        e(f"s_mul_i32 s{sT2}, s{sG}, 12"); e(f"s_add_u32 s{sT2}, s{sT2}, s{sJ}"); e(f"s_sub_u32 s{sT2}, s{sT2}, 20")
        e(f"s_mul_i32 s{sT0}, s{sWV}, {160*3072}"); e(f"s_lshl_b32 s{sT1}, s{sT2}, 5"); e(f"s_add_u32 s{sT0}, s{sT0}, s{sT1}")
        e(f"s_mul_i32 s{sT1}, s{sWV}, 5120")
        for n in range(5):
            e(f"s_add_u32 m0, s{sT1}, {W1+1024*n}"); e(f"buffer_load_dwordx4 v24, {sr(sRA)}, s{sT0} offen {NTR} lds")
            e(f"s_add_u32 m0, s{sT1}, {W3+1024*n}"); e(f"buffer_load_dwordx4 v24, {sr(sRB)}, s{sT0} offen {NTR} lds")
            if n < 4: e(f"s_add_u32 s{sT0}, s{sT0}, {32*3072}")
        e(f"s_mul_i32 s{sT0}, s{sT2}, 20480"); e(f"s_add_u32 s{sT0}, s{sT0}, s{sT1}")
        for n in range(5):
            e(f"s_add_u32 m0, s{sT1}, {W2+1024*n}"); e(f"buffer_load_dwordx4 v{vLin}, {sr(sRC)}, s{sT0} offen {NTW} lds")
            if n < 4: e(f"s_add_u32 s{sT0}, s{sT0}, 1024")
role_dma()
stamp(3)
Vld(0); Krel(6)
def cs_soffs():
    e(f"s_add_u32 s{sT0}, s{sLG}, {2*LS}"); e(f"s_add_u32 s{sT1}, s{sLG}, {2*LS+4096}"); e(f"s_add_u32 s{sT2}, s{sLG}, 4096")
cs_soffs()
gl = qloads(64, f"s{sT0}", f"s{sT1}") + qloads(72, f"s{sLG}", f"s{sT2}")
for l in gl: A.vmem(l, "qg")
Vld(1); Krel(7)
e(f"v_and_b32 v25, 15, v{vL}"); e(f"v_lshrrev_b32 v26, 4, v{vL}"); e("v_add_u32 v27, 4, v26")
rowbase(vC1, 26, oFG, oFL, None, 28); rowbase(vC2, 27, oFG, oFL, None, 28)
e(f"s_min_u32 s{sT3}, s{sJ}, 19"); e(f"s_lshl_b32 s{sT3}, s{sT3}, 6"); e(f"v_lshl_add_u32 v25, v25, 2, s{sT3}")
e(f"v_add_u32 v{vC1}, v{vC1}, v25"); e(f"v_add_u32 v{vC2}, v{vC2}, v25")
e(f"v_and_b32 v25, 15, v{vL}"); e(f"v_bfe_u32 v27, v{vL}, 2, 2"); e(f"v_and_b32 v28, 3, v{vL}")
e(f"s_mul_i32 s{sT3}, s{sWV}, 12288"); e(f"s_add_u32 s{sT3}, s{sT3}, {WO}")
e("v_lshl_add_u32 v29, v26, 3, v27"); e("v_lshlrev_b32 v29, 6, v29"); e("v_lshl_add_u32 v29, v28, 3, v29"); e(f"v_add_u32 v29, s{sT3}, v29"); e("v_accvgpr_write_b32 a246, v29")
e(f"s_mul_i32 s{sT3}, s{sWV}, 3072"); e(f"s_add_u32 s{sT3}, s{sT3}, {oO}")
e(f"v_lshl_add_u32 v29, v25, 4, s{sT3}"); e("v_lshl_add_u32 v29, v26, 7, v29"); e("v_accvgpr_write_b32 a247, v29")
e(f"s_lshl_b32 s{sT3}, s{sWV}, 6"); e(f"s_add_u32 s{sT3}, s{sT3}, {oML}"); e("v_and_b32 v29, 1, v26"); e(f"v_lshl_add_u32 v29, v29, 5, s{sT3}"); e("v_accvgpr_write_b32 a248, v29")
e(f"s_lshl_b32 s{sT3}, s{sWV}, 8"); e(f"s_add_u32 s{sT3}, s{sT3}, {ACC+YACC}"); e(f"v_lshl_add_u32 v29, v{vL}, 2, s{sT3}"); e("v_accvgpr_write_b32 a249, v29")
e(f"s_lshl_b32 s{sYl}, s{sJ}, 6"); e(f"s_mul_i32 s{sYg}, s{sG}, 1280"); e(f"s_add_u32 s{sYg}, s{sYg}, s{sYl}"); e(f"s_add_u32 s{sYg}, s{sYg}, {oYG}")
e(f"s_add_u32 s{sYl}, s{sYl}, s{sLG}"); e(f"s_add_u32 s{sYl}, s{sYl}, {oYL}")
Vld(2); Vrel(0)
late_check("qg", gl, range(64, 80), 24, pre=cs_soffs)
qsum(64); qsum(72)
e(f"v_mul_f32 v{vCS}, 0x3acccccd, v64")
e(f"v_mov_b32 v{T}, v72")
att_zero()
stamp(4)
q_finish(T, lambda: Vld(3))
qk_softmax()
stamp(5)
Vld(4); Vrel(1)
e("s_waitcnt lgkmcnt(0)"); pv_step(0)
Vld(5); Vrel(2); Vrel(3); Vld(6)
e("s_waitcnt lgkmcnt(0)"); pv_step(1)
Vrel(4); Vld(7); Vrel(5)
e("s_waitcnt lgkmcnt(0)"); pv_step(2)
Vrel(6); Vrel(7)
e("s_waitcnt lgkmcnt(0)")
A.drained()
e("s_branch ATT_LAST")
flush_near()

lab("LOOP")
wq_frags()
e(f"v_and_b32 v25, 15, v{vL}"); e("v_cmp_eq_u32 vcc, 12, v25"); e("v_mov_b32 v36, 0x3f803f80"); e(f"v_cndmask_b32 v70, 0, v36, vcc")
for q in range(1, 10): e(f"v_mov_b32 v{70+q}, v70")
e(f"s_add_u32 s{sT2}, s{sLG}, 4096")
e(f"s_mul_i32 s{sT0}, s{sWV}, {SCRW}")
e(f"v_mul_u32_u24 v26, 103, v{vL}"); e("v_lshrrev_b32 v26, 10, v26"); e(f"v_lshl_add_u32 v26, v26, 4, v{vLin}"); e(f"v_add_u32 v26, s{sT0}, v26")
e(f"v_mul_u32_u24 v27, 176, v25"); e(f"v_add_u32 v27, s{sT0}, v27"); e(f"v_lshrrev_b32 v28, 4, v{vL}"); e("v_lshl_add_u32 v29, v28, 3, v27"); e("v_lshl_add_u32 v27, v28, 4, v27")
e(f"s_mul_i32 s{sT0}, s{sS}, 160"); e(f"s_add_u32 s{sT0}, s{sT0}, s{sLG}"); e(f"s_sub_u32 s{sT0}, s{sT0}, {LS-oFL}")
e("s_waitcnt lgkmcnt(0)")
gate(sT0, 10, 24)
setexec((1 << 60) - 1)
poll([f"buffer_load_dwordx4 v[80:83], v{vAq}, {sr(sW)}, 0 offen sc1", f"buffer_load_dwordx4 v[84:87], v{vAq16}, {sr(sW)}, 0 offen sc1"], [80, 84], 24, pid=1, slp=int(OPT.get("slpq", 0)))
e("ds_write_b128 v26, v[80:83]"); e(f"ds_write_b128 v26, v[84:87] offset:{6*176}")
setexec(ROWS9)
e("ds_read_b128 v[70:73], v27"); e("ds_read_b128 v[74:77], v27 offset:64"); e("ds_read_b64 v[78:79], v29 offset:128")
setexec(FULL)
stamp(1)
e(f"buffer_load_dword a244, v{vC1}, {sr(sW)}, 0 offen sc1"); e(f"buffer_load_dword a245, v{vC2}, {sr(sW)}, 0 offen sc1")
qstage(70, f"s{sLG}", waits=True)
stamp(2)
att_zero()
poll(qloads(T, f"s{sLG}", f"s{sT2}"), range(T, T + 8), T + 8, pid=4)
stamp(3)
qsum(T)
q_finish(T)
stamp(4)
qk_softmax()
stamp(5)
for u in range(3):
    e(f"s_waitcnt lgkmcnt({4-u})"); pv_step(u)
lab("ATT_LAST")
e("s_waitcnt lgkmcnt(0)")
pv_step(3)
e(f"v_add_u32 v24, {ACC}, v{vLin}"); e(f"v_mov_b32 v25, {ML4}"); e(f"v_lshlrev_b32 v39, 6, v{vL}")
pv_post()
e(f"s_cmp_lg_u32 s{sWV}, 0")
e("s_waitcnt lgkmcnt(0)"); e("s_barrier")
e("s_cbranch_scc1 ODONE")
stamp(6)
e(f"ds_read_b128 v[64:67], v25"); e(f"ds_read_b128 v[68:71], v25 offset:16")
for w in range(4): e(f"ds_read_b128 {vr(F+4*w)}, v24 offset:{OACC+768*w}")
e(f"s_mul_i32 s{sT0}, s{sHH}, 3072"); e(f"s_lshl_b32 s{sT1}, s{sS}, 4"); e(f"s_add_u32 s{sT0}, s{sT0}, s{sT1}"); e(f"s_add_u32 s{sT0}, s{sT0}, s{sLG}"); e(f"s_add_u32 s{sT0}, s{sT0}, {oO}")
e(f"s_lshl_b32 s{sT1}, s{sJ}, 3"); e(f"s_add_u32 s{sT1}, s{sT1}, s{sLG}"); e(f"s_add_u32 s{sT1}, s{sT1}, {oML}")
e("s_waitcnt lgkmcnt(4)")
e("v_max3_f32 v32, v64, v66, v68"); e("v_max_f32 v32, v32, v70")
for w in range(4): e(f"v_sub_f32 v{64+2*w}, v{64+2*w}, v32")
for w in range(4): e(f"v_exp_f32 v{64+2*w}, v{64+2*w}")
e("s_waitcnt lgkmcnt(0)")
for q in range(4): e(f"v_mul_f32 v{28+q}, v64, v{F+q}")
for w in range(1, 4):
    for q in range(4): e(f"v_fmac_f32 v{28+q}, v{64+2*w}, v{F+4*w+q}")
def pack_pairs():
    e("v_cvt_pk_bf16_f32 v28, v28, v29"); e("v_cvt_pk_bf16_f32 v29, v30, v31")
    e("v_mov_b32_dpp v30, v28 quad_perm:[1,1,3,3] row_mask:0xf bank_mask:0xf"); e("v_mov_b32_dpp v31, v29 quad_perm:[1,1,3,3] row_mask:0xf bank_mask:0xf")
pack_pairs()
setexec(0x5555555555555555 & ((1 << 48) - 1))
lstore(f"buffer_store_dwordx4 v[28:31], v39, {sr(sW)}, s{sT0} offen")
e("v_mul_f32 v33, v64, v65")
for w in range(1, 4): e(f"v_fmac_f32 v33, v{64+2*w}, v{65+2*w}")
setexec(1)
lstore(f"buffer_store_dwordx2 v[32:33], v39, {sr(sW)}, s{sT1} offen")
setexec(FULL)
lab("ODONE")
stamp(7)
e(f"s_cmp_ge_u32 s{sJ}, 20"); e("s_cbranch_scc1 ROLEF")
def owner_add():
    e("v_lshlrev_b32 v30, 16, v28"); e("v_and_b32 v28, 0xffff0000, v28"); e("v_lshlrev_b32 v31, 16, v29"); e("v_and_b32 v29, 0xffff0000, v29")
    e("v_add_f32 v30, v30, v31"); e("v_add_f32 v28, v28, v29")
    e("v_mov_b32 v31, v30"); e("v_mov_b32 v29, v28"); e("v_permlane32_swap_b32 v30, v31"); e("v_permlane32_swap_b32 v28, v29"); e("v_add_f32 v30, v30, v31"); e("v_add_f32 v28, v28, v29")
    e("v_mov_b32 v31, v30"); e("v_mov_b32 v29, v28"); e("v_permlane16_swap_b32 v30, v31"); e("v_permlane16_swap_b32 v28, v29"); e("v_add_f32 v30, v30, v31"); e("v_add_f32 v28, v28, v29")
    e(f"v_add_f32 v{vXR}, v{vXR}, v30"); e(f"v_add_f32 v{vXR+1}, v{vXR+1}, v28")
    e(f"v_cvt_pk_bf16_f32 v28, v{vXR}, v{vXR+1}")
def own_loads(a0, a1, soff): return [f"buffer_load_dword v28, v{a0}, {sr(sW)}, {soff} offen sc1", f"buffer_load_dword v29, v{a1}, {sr(sW)}, {soff} offen sc1"]
def base_store(ob):
    e(f"s_lshl_b32 s{sT0}, s{sJ}, 6"); e(f"s_add_u32 s{sT0}, s{sT0}, s{sLG}"); e(f"s_add_u32 s{sT0}, s{sT0}, {ob}"); e(f"v_lshlrev_b32 v37, 2, v{vL}")
    pack_store16(28, lambda: lstore(f"buffer_store_dwordx4 v[28:31], v37, {sr(sW)}, s{sT0} offen"))
for q in range(3): e(f"v_accvgpr_read_b32 v{2+q}, a{246+q}")
for kk in range(6): e(f"v_mov_b32 v{SPARE+4*kk}, 0")
trs = [f"ds_read_b64_tr_b16 {vr(F+24*t+4*kk+2*h,2)}, v2 offset:{(32*kk+4*h)*64+32*t}" for kk in range(6) for t in range(2) for h in range(2)]
for x in trs[:10]: e(x)
e(f"s_cmp_lg_u32 s{sWV}, 1"); e("s_cbranch_scc1 NOOWN0"); e(f"s_cmp_eq_u32 s{sLay}, 0"); e("s_cbranch_scc1 NOOWN0")
e("v_accvgpr_read_b32 v28, a244"); e("v_accvgpr_read_b32 v29, a245")
late_check("none", own_loads(vC1, vC2, "0"), [28, 29], 30)
owner_add(); base_store(oBA)
lab("NOOWN0")
MLR = [24, 36]
def wfirst():
    for x in trs[10:]: e(x)
    e("v_accvgpr_read_b32 v5, a249"); e(f"v_add_u32 v6, {ACC}, v{vLin}"); e(f"v_lshrrev_b32 v18, 1, v{vLin}")
poll(["s_mov_b32 exec_lo, 0x00ff00ff", "s_mov_b32 exec_hi, 0x00ff00ff"] +
     [f"buffer_load_dwordx4 {vr(SPARE+4*kk)}, v3, {sr(sW)}, s{sLG} offen offset:{512*kk} sc1" for kk in range(6)] + ["s_mov_b64 exec, -1"] +
     [f"buffer_load_dwordx4 {vr(MLR[q])}, v4, {sr(sW)}, s{sLG} offen offset:{16*q} sc1" for q in range(2)],
     [SPARE + 4 * kk for kk in range(6)] + [25, 27, 37, 39], 28, pid=7, first=wfirst)
e("s_waitcnt lgkmcnt(0)")
stamp(8)
M_, U_, L_ = SPARE, SPARE + 1, SPARE + 2
mm_ = [24, 26, 36, 38]
co = [[], [f"v_max3_f32 v{M_}, v24, v26, v36", f"v_max_f32 v{M_}, v{M_}, v38"], [f"v_mov_b32 v{U_}, v{M_}"], [f"v_permlane16_swap_b32 v{M_}, v{U_}", f"v_max_f32 v{M_}, v{M_}, v{U_}"],
      [f"v_sub_f32 v24, v24, v{M_}", f"v_sub_f32 v26, v26, v{M_}"], [f"v_sub_f32 v36, v36, v{M_}", f"v_sub_f32 v38, v38, v{M_}"],
      ["v_exp_f32 v24, v24"], ["v_exp_f32 v26, v26"], ["v_exp_f32 v36, v36"], ["v_exp_f32 v38, v38"],
      [f"v_mul_f32 v{L_}, v24, v25", f"v_fmac_f32 v{L_}, v26, v27"], [f"v_fmac_f32 v{L_}, v36, v37", f"v_fmac_f32 v{L_}, v38, v39"]]
for kk in range(6):
    for t in range(2):
        c = "0" if kk == 0 else vr(28 + 4 * t)
        e(f"v_mfma_f32_16x16x32_bf16 {vr(28+4*t)}, {vr(SPARE+4*kk)}, {vr(F+24*t+4*kk)}, {c}")
        for x in co.pop(0): e(x)
e(f"v_mov_b32 v{U_}, v{L_}"); e(f"s_cmp_lg_u32 s{sWV}, 0"); e(f"v_permlane16_swap_b32 v{L_}, v{U_}"); e(f"v_add_f32 v{L_}, v{L_}, v{U_}"); e(f"v_rcp_f32 v{L_}, v{L_}")
for t in range(2): e(f"v_mul_f32 v{28+4*t}, v24, v{28+4*t}")
for q in range(1, 4):
    for t in range(2): e(f"v_fmac_f32 v{28+4*t}, v{mm_[q]}, v{28+4*t+q}")
e("v_permlane16_swap_b32 v28, v32"); e("v_add_f32 v28, v28, v32"); e(f"v_mul_f32 v28, v28, v{L_}")
e(f"ds_write_b32 v5, v28")
e("s_waitcnt lgkmcnt(0)"); e("s_barrier")
e("s_cbranch_scc1 WNOT0")
for w in range(4): e(f"ds_read_b128 {vr(F+4*w)}, v6 offset:{YACC+256*w}")
e("s_waitcnt lgkmcnt(2)")
for q in range(4): e(f"v_add_f32 v{28+q}, v{F+q}, v{F+4+q}")
e("s_waitcnt lgkmcnt(0)")
for q in range(4): e(f"v_add_f32 v{32+q}, v{F+8+q}, v{F+12+q}")
for q in range(4): e(f"v_add_f32 v{28+q}, v{28+q}, v{32+q}")
pack_pairs()
setexec(0x55)
e(f"buffer_store_dwordx4 v[28:31], v18, {sr(sW)}, s{sYg} offen sc1")
lstore(f"buffer_store_dwordx4 v[28:31], v18, {sr(sW)}, s{sYl} offen")
setexec(FULL)
stamp(9)
e(f"v_lshrrev_b32 v37, 5, v{vL}"); e("v_mul_u32_u24 v37, 2560, v37"); e(f"v_and_b32 v38, 31, v{vL}"); e("v_lshl_add_u32 v37, v38, 2, v37")
for k in range(1, 6): e(f"v_add_u32 v{F+k}, {5120*k}, v37")
e(f"s_lshl_b32 s{sT2}, s{sJ}, 7"); e(f"s_add_u32 s{sT2}, s{sT2}, s{sLG}"); e(f"s_add_u32 s{sT2}, s{sT2}, {oFP}")
e(f"s_add_u32 s96, s{sYg}, {oFG-oYG}"); e(f"s_add_u32 s97, s{sYl}, {oFL-oYL}"); e(f"v_lshlrev_b32 v39, 1, v{vL}")
poll([f"buffer_load_dword v{28+k}, v{37 if k==0 else F+k}, {sr(sW)}, s{sT2} offen sc1" for k in range(6)], range(28, 34), 36, pid=10)
stamp(10)
e("v_add_f32 v28, v28, v29"); e("v_add_f32 v30, v30, v31"); e("v_add_f32 v32, v32, v33"); e("v_add_f32 v28, v28, v30"); e("v_add_f32 v28, v28, v32")
e("v_mov_b32 v29, v28"); e("v_permlane32_swap_b32 v28, v29"); e("v_add_f32 v28, v28, v29")
e("v_mov_b32_dpp v29, v28 row_shl:1 row_mask:0xf bank_mask:0xf"); e("v_cvt_pk_bf16_f32 v28, v28, v29")
for q in (1, 2, 3): e(f"v_mov_b32_dpp v{28+q}, v28 row_shl:{2*q} row_mask:0xf bank_mask:0xf")
setexec(0x01010101)
e(f"buffer_store_dwordx4 v[28:31], v39, {sr(sW)}, s96 offen sc1")
lstore(f"buffer_store_dwordx4 v[28:31], v39, {sr(sW)}, s97 offen")
setexec(FULL)
stamp(11)
e("s_branch NEXT")
flush_near()
lab("WNOT0")
e(f"s_cmp_lg_u32 s{sWV}, 1"); e("s_cbranch_scc1 NEXT")
e(f"v_and_b32 v25, 15, v{vL}"); e(f"v_lshrrev_b32 v26, 4, v{vL}")
rowbase(37, 26, oYG, oYL, None, 38); e("v_add_u32 v39, 4, v26"); rowbase(38, 39, oYG, oYL, None, 28)
e(f"s_lshl_b32 s{sT0}, s{sJ}, 6"); e(f"s_add_u32 s{sT0}, s{sT0}, s{sLay}")
e("v_lshl_add_u32 v37, v25, 2, v37"); e("v_lshl_add_u32 v38, v25, 2, v38")
if GATE and ODLY: e(f"s_sleep {ODLY}")
poll(own_loads(37, 38, f"s{sT0}"), [28, 29], 30, slp=(4 if GATE else 0))
owner_add()
e(f"s_cmp_lg_u32 s{sLay}, 0"); e("s_cbranch_scc1 FINAL")
base_store(oBB)
e("s_branch NEXT")
lab("FINAL")
e(f"s_cmp_lg_u32 s{sG}, 0"); e("s_cbranch_scc1 DONE")
e(f"s_lshl_b32 s{sT0}, s{sJ}, 6"); e(f"v_lshlrev_b32 v37, 2, v{vL}")
e(f"s_add_u32 s{sT2}, s{sT0}, s{sLG}"); e(f"s_add_u32 s{sT2}, s{sT2}, {oFL}")
gate(sT2, 4, 28); setexec(FULL)
poll(own_loads(vC1, vC2, f"s{sLay}"), [28, 29], 30)
owner_add()
setexec(0xffff)
e(f"buffer_store_dword v28, v37, {sr(sO)}, s{sT0} offen")
setexec(FULL)
stamp(12)
e("s_branch DONE") if SPIN else e("s_endpgm")
flush_near()
lab("ROLEF")
e(f"v_and_b32 v25, 15, v{vL}"); e(f"v_lshrrev_b32 v26, 4, v{vL}"); e(f"v_bfe_u32 v27, v{vL}, 2, 2"); e(f"v_and_b32 v36, 3, v{vL}")
FA = SPARE
vCG, vCU = vXR, vXR + 1
sPass = sClr
e(f"s_mov_b32 s{sPass}, 1")
e(f"s_cmp_lg_u32 s{sLay}, 0"); e("s_cbranch_scc1 FW")
e(f"s_mov_b32 s{sPass}, 0")
if FDMA != "early":
    e("v_mov_b32 v86, v25"); fdma(); e("v_mov_b32 v25, v86"); e("s_waitcnt vmcnt(0)"); stamp(13)
lab("FW")
e(f"s_mul_i32 s{sT0}, s{sWV}, 5120"); e(f"s_add_u32 s{sT0}, s{sT0}, {W1}")
e("v_lshl_add_u32 v37, v26, 3, v27"); e("v_lshlrev_b32 v37, 5, v37"); e("v_lshl_add_u32 v37, v36, 3, v37"); e(f"v_add_u32 v37, s{sT0}, v37")
for t in range(2):
    for kk in range(5):
        for h in range(2): e(f"ds_read_b64_tr_b16 {vr(F+20*t+4*kk+2*h,2)}, v37 offset:{(32*kk+4*h)*32+20480*t}")
e(f"s_mul_i32 s{sT0}, s{sWV}, 320"); e(f"s_add_u32 s{sT0}, s{sT0}, {W2}")
e(f"v_lshrrev_b32 v80, 2, v{vL}"); e("v_mul_u32_u24 v80, 1280, v80"); e("v_lshl_add_u32 v80, v36, 3, v80"); e(f"v_add_u32 v80, s{sT0}, v80")
e(f"s_lshl_b32 s{sT2}, s{sWV}, 2"); e(f"s_add_u32 s{sT2}, s{sT2}, {ACC+FACC}"); e(f"v_add_u32 v81, s{sT2}, v{vLin}")
e("v_lshl_add_u32 v82, v26, 2, v36"); e("v_lshlrev_b32 v82, 4, v82"); e(f"v_add_u32 v82, {ACC+FACC}, v82")
e("v_cmp_eq_u32 vcc, 12, v25")
e("v_mov_b32 v38, 13"); e("v_cndmask_b32 v83, v25, v38, vcc"); e("v_lshlrev_b32 v83, 4, v83"); e(f"v_add_u32 v83, {ACC+FACC+512}, v83")
e(f"v_mov_b32 v85, {ACC+FACC+512+192}")
e("v_lshlrev_b32 v84, 6, v25"); e("v_lshl_add_u32 v84, v26, 4, v84")
e("v_mov_b32 v38, 0x3f803f80"); e(f"v_cndmask_b32 v{FA}, 0, v38, vcc")
for q in range(1, 20): e(f"v_mov_b32 v{FA+q}, v{FA}")
e(f"s_mul_i32 s{sT0}, s{sWV}, {SCRW}")
e(f"v_mul_u32_u24 v6, 336, v25"); e("v_lshl_add_u32 v6, v26, 4, v6"); e(f"v_add_u32 v6, s{sT0}, v6")
e(f"v_mul_u32_u24 v37, 52, v{vL}"); e("v_lshrrev_b32 v37, 10, v37")
e(f"v_lshl_add_u32 v87, v37, 4, v{vLin}"); e(f"v_add_u32 v87, s{sT0}, v87")
e(f"v_mul_u32_u24 v27, 320, v37"); e(f"v_sub_u32 v27, v{vLin}, v27")
assert all((c * 52) >> 10 == c // 20 for c in range(64))
FG = [86, 18, 20]
for i in range(3):
    rowbase(FG[i], 37, oYG, oYL, oBA, 38); e(f"v_add_u32 v{FG[i]}, v{FG[i]}, v27")
    if i < 2: e("v_add_u32 v37, 3, v37")
e(f"s_mul_i32 s{sT0}, s{sWV}, 320"); e(f"s_add_u32 s{sT0}, s{sT0}, s{sLay}")
e(f"s_sub_u32 s{sT1}, s{sJ}, 20"); e(f"s_mul_i32 s{sT1}, s{sT1}, 2560"); e(f"s_mul_i32 s{sT3}, s{sWV}, 640"); e(f"s_add_u32 s{sT1}, s{sT1}, s{sT3}")
e(f"s_add_u32 s{sT1}, s{sT1}, s{sLG}"); e(f"s_add_u32 s{sT1}, s{sT1}, {oFP}")
e("s_waitcnt lgkmcnt(0)")
e(f"s_cmp_eq_u32 s{sPass}, 0"); e("s_cbranch_scc1 FMM")
lab("FPOLL")
W2R = [f"a[{240+2*t}:{241+2*t}]" for t in range(6)] + ["v[108:109]", "v[110:111]", "v[2:3]", "v[4:5]"]
for t in range(10): e(f"ds_read_b64_tr_b16 {W2R[t]}, v80 offset:{32*t}")
e("s_waitcnt lgkmcnt(0)")
e(f"s_mul_i32 s{sT2}, s{sWV}, 320"); e(f"s_add_u32 s{sT2}, s{sT2}, s{sLG}"); e(f"s_add_u32 s{sT2}, s{sT2}, {oYL}")
gate(sT2, 20, 36)
setexec((1 << 60) - 1)
poll([f"buffer_load_dwordx4 {vr(T+4*i)}, v{FG[i]}, {sr(sW)}, s{sT0} offen sc1" for i in range(3)], [T, T + 4, T + 8], 36, pid=7, slp=int(OPT.get("slpy", 0)))
for i in range(3): e(f"ds_write_b128 v87, {vr(T+4*i)} offset:{3*336*i}")
setexec(ROWS9)
for kk in range(5): e(f"ds_read_b128 {vr(FA+4*kk)}, v6 offset:{64*kk}")
setexec(FULL)
stamp(8)
lab("FMM")
for kk in range(5):
    e(f"s_waitcnt lgkmcnt({4-kk})")
    for t in range(3):
        c = "0" if kk == 0 else vr(T + 4 * t)
        bb = vr(F + 20 * t + 4 * kk) if t < 2 else vr(FA + 4 * kk)
        e(f"v_mfma_f32_16x16x32_bf16 {vr(T+4*t)}, {vr(FA+4*kk)}, {bb}, {c}")
for t in range(3): e(f"v_add_f32 v{T+4*t}, v{T+4*t}, v{T+4*t+1}"); e(f"v_add_f32 v{T+4*t+2}, v{T+4*t+2}, v{T+4*t+3}")
for t in range(3): e(f"v_add_f32 v{T+4*t}, v{T+4*t}, v{T+4*t+2}")
xreduce(T, T + 4, T + 8, T + 1)
e(f"ds_write_b32 v81, v{T}")
e(f"s_cmp_eq_u32 s{sPass}, 0")
e("s_waitcnt lgkmcnt(0)"); e("s_barrier")
e(f"ds_read_b128 {vr(T)}, v83"); e(f"ds_read_b128 {vr(T+4)}, v85"); e(f"ds_read_b128 {vr(T+8)}, v82"); e(f"ds_read_b128 {vr(T+12)}, v82 offset:256")
e("s_cbranch_scc1 FCS")
def sum4(b): e(f"v_add_f32 v{b}, v{b}, v{b+1}"); e(f"v_add_f32 v{b+2}, v{b+2}, v{b+3}"); e(f"v_add_f32 v{b}, v{b}, v{b+2}")
d = lambda sft: f"v_add_f32_dpp v{T}, v{T}, v{T} row_ror:{sft} row_mask:0xf bank_mask:0xf"
e("s_waitcnt lgkmcnt(3)"); sum4(T); e("s_waitcnt lgkmcnt(2)")
e(f"v_add_f32 v{T+4}, v{T+4}, v{T+5}"); e(d(8)); e(f"v_add_f32 v{T+6}, v{T+6}, v{T+7}"); e(f"v_add_f32 v{T+4}, v{T+4}, v{T+6}"); e(d(4))
e("s_waitcnt lgkmcnt(0)")
e(f"v_subrev_f32 v{T+5}, 0x44200000, v{T+4}"); e(d(2))
e(f"v_add_f32 v{T+8}, v{T+8}, v{T+9}"); e(f"v_mul_f32 v{T+6}, 0x3acccccd, v{T+5}"); e(d(1))
e(f"v_add_f32 v{T+10}, v{T+10}, v{T+11}"); e(f"v_sub_f32 v{T}, v{T}, v{T+5}")
e(f"v_add_f32 v{T+8}, v{T+8}, v{T+10}"); e(f"v_mul_f32 v{T}, 0x3acccccd, v{T}")
e(f"v_add_f32 v{T+12}, v{T+12}, v{T+13}"); e(f"v_fma_f32 v{T}, -v{T+6}, v{T+6}, v{T}")
e(f"v_add_f32 v{T+14}, v{T+14}, v{T+15}"); e(f"v_max_f32 v{T}, 0, v{T}")
e(f"v_fma_f32 v{T+8}, -v{T+4}, v{vCG}, v{T+8}"); e(f"v_add_f32 v{T}, 0x3727c5ac, v{T}")
e(f"v_add_f32 v{T+12}, v{T+12}, v{T+14}"); e(f"v_rsq_f32 v{T}, v{T}")
e(f"v_fma_f32 v{T+12}, -v{T+4}, v{vCU}, v{T+12}"); e(f"v_mul_f32 v{T+9}, 0xbfb8aa3b, v{T+8}")
e(f"v_mul_f32 v{T+9}, v{T+9}, v{T}"); e(f"v_mul_f32 v{T+12}, v{T+12}, v{T+8}"); e(f"v_exp_f32 v{T+9}, v{T+9}")
e(f"v_mul_f32 v{T+12}, v{T+12}, v{T}"); e(f"v_add_f32 v{T+9}, 1.0, v{T+9}"); e(f"v_mul_f32 v{T+12}, v{T+12}, v{T}"); e(f"v_rcp_f32 v{T+9}, v{T+9}")
e(f"v_mul_f32 v{T+12}, v{T+12}, v{T+9}")
for q in range(4): e(f"v_mov_b32_dpp v{T+4+q}, v{T+12} quad_perm:[{q},{q},{q},{q}] row_mask:0xf bank_mask:0xf")
e(f"v_cvt_pk_bf16_f32 v{T+4}, v{T+4}, v{T+5}"); e(f"v_cvt_pk_bf16_f32 v{T+5}, v{T+6}, v{T+7}")
HB = 60
def hm(t): return [f"v_cndmask_b32 v{HB+2*t+q}, 0, v{T+4+q}, {sp(sMf+2*t)}" for q in range(2)]
W2Q = ["a[240:243]", "a[244:247]", "a[248:251]", "v[108:111]", "v[2:5]"]
for x in hm(0) + hm(1) + hm(2): e(x)
for t in range(5):
    c = "0" if t == 0 else vr(T)
    e(f"v_mfma_f32_16x16x32_bf16 {vr(T)}, {W2Q[t]}, {vr(HB+4*t)}, {c}")
    for k in (2 * t + 3, 2 * t + 4):
        if k < 10:
            for x in hm(k): e(x)
setexec(0x03FF03FF03FF03FF)
lstore(f"buffer_store_dwordx4 {vr(T)}, v84, {sr(sW)}, s{sT1} offen")
setexec(FULL)
stamp(9)
def t_():
    lab("FCS")
    e("s_waitcnt lgkmcnt(0)"); sum4(T + 8); sum4(T + 12)
    e(f"v_mul_f32 v{vCG}, 0x3acccccd, v{T+8}"); e(f"v_mul_f32 v{vCU}, 0x3acccccd, v{T+12}")
    e(f"s_mov_b32 s{sPass}, 1"); e("s_barrier"); e("s_branch FPOLL")
tail.append(t_)
lab("NEXT")
e(f"s_cmp_lg_u32 s{sLay}, 0"); e("s_cbranch_scc1 DONE")
e(f"s_mov_b32 s{sLay}, {LS}"); e(f"s_add_u32 s{sLG}, s{sLG}, {LS}"); e(f"s_add_u32 s{sYg}, s{sYg}, {LS}"); e(f"s_add_u32 s{sYl}, s{sYl}, {LS}")
e("s_branch LOOP")
flush_near()
lab("DONE")
if SPIN:
    e("v_accvgpr_read_b32 v38, a253"); e("s_nop 1"); e("v_readfirstlane_b32 s96, v38")
    lab("SPINL"); e("s_memrealtime s[98:99]"); e("s_waitcnt lgkmcnt(0)"); e("s_sub_u32 s98, s98, s96"); e(f"s_cmp_lt_u32 s98, {SPIN*100}"); e("s_cbranch_scc1 SPINL")
e("s_endpgm")
i = 0
while i < len(tail): tail[i](); flush_near(); i += 1
lab("CODE_END")
e("s_endpgm")

body = A.pad()
hdr = [f"; @launch grid=(256,1,1) block=(256,1,1) lds={LDSSZ}", '.amdgcn_target "amdgcn-amd-amdhsa--gfx950"', ".text",
       f".globl {NAME}_kernel", ".p2align 8", f".type {NAME}_kernel,@function", f"{NAME}_kernel:"]
ftr = ['.section .rodata,"a"', ".p2align 6", f".amdhsa_kernel {NAME}_kernel", "  .amdhsa_next_free_vgpr 512", "  .amdhsa_next_free_sgpr 102",
       "  .amdhsa_accum_offset 256", "  .amdhsa_group_segment_fixed_size 0", "  .amdhsa_kernarg_size 96", "  .amdhsa_user_sgpr_count 2",
       "  .amdhsa_user_sgpr_kernarg_segment_ptr 1", "  .amdhsa_system_sgpr_workgroup_id_x 1", ".end_amdhsa_kernel"]
src = "\n".join(hdr + body + ftr) + "\n"
import re
for m in re.finditer(r"buffer_\S+ .*offset:(\d+)", src): assert int(m.group(1)) < 4096, m.group(0)
for m in re.finditer(r"ds_\S+ .*offset:(\d+)", src): assert int(m.group(1)) < 65536, m.group(0)
open(OUT, "w").write(src)
```

```python
import os, sys
sys.path.insert(0, os.path.dirname(os.path.abspath(__file__)))
from asmlib import Asm
NAME = "interleave_layers__sliding_block_cached__glu_gated_swiglu__decode"
OPT = dict(a.split("=") for a in sys.argv[2:])
OUT = sys.argv[1] if len(sys.argv) > 1 else f"/code/{NAME}.s"
STAMP = int(OPT.get("stamp", 0))
NT = OPT.get("nt", "nt").replace("x", "")
NTW = OPT.get("ntw", "nt").replace("x", "")
FORCESLOW = int(OPT.get("slow", 0))
SPIN = int(OPT.get("spin", 0))
A = Asm(); e = A.e; lab = A.lab
tail = []

RS = 416; SCRW = 16 * RS
SCR = 0; WQ = 4 * SCRW; ROLE = WQ + 30720
WO = ROLE; W1 = ROLE; W3 = ROLE + 20480; W2 = ROLE + 40960
MISC = ROLE + 61440; QB = MISC; ACC = MISC + 512
OACC = 0; YACC = 3072; FACC = 4096
PT = ACC + 5120; ML4 = PT + 1024
FLG = ML4 + 64
LDSSZ = FLG + 64
FDMA = OPT.get("fdma", "late")
OMASK = int(OPT.get("omask", 1))
WDMA = OPT.get("wdma", "mid")
PF = OPT.get("pf", "ow")
NTP = OPT.get("ntp", "x").replace("x", "")
NTR = OPT.get("ntr", "x").replace("x", "")
GB = 81920; oQ = 0; oO = 32768; oML = 45056; oFP = 46080; oYL = 76800; oFL = 78080; oBA = 79360; oBB = 80640
GOFF = 8 * GB; oYG = GOFF; oFG = GOFF + 10240; LS = 0xA8000
OOB = 0x7FFFFFF0
sK, sV, sW, sWQ, sRA, sRB, sRC, sX, sO = 8, 12, 16, 20, 24, 28, 32, 36, 40
sG, sJ, sHH, sS, sWV, sKV, sLay, sFast, sCnt = 68, 69, 70, 71, 72, 73, 74, 75, 76
sT0, sT1, sT2 = 77, 78, 79
sLG = 3
sClr = 4
sXcc = 5
sTL = 6
sT3 = 7
sYg, sYl = 80, 81
sMf = 44
def sr(b): return f"s[{b}:{b+3}]"
def sp(b): return f"s[{b}:{b+1}]"
def vr(b, n=4): return f"v[{b}:{b+n-1}]" if n > 1 else f"v{b}"
def ar(b, n=4): return f"a[{b}:{b+n-1}]"
def srd(d, lo, nbytes):
    e(f"s_mov_b32 s{d}, s{lo}"); e(f"s_and_b32 s{d+1}, s{lo+1}, 0xffff")
    e(f"s_mov_b32 s{d+2}, {nbytes}"); e(f"s_mov_b32 s{d+3}, 0x20000")
def setexec(mask):
    lo, hi = mask & 0xffffffff, mask >> 32
    if mask == (1 << 64) - 1: e("s_mov_b64 exec, -1")
    elif hi == 0 and lo <= 64: e(f"s_mov_b64 exec, {lo}")
    else: e(f"s_mov_b32 exec_lo, {lo:#x}"); e(f"s_mov_b32 exec_hi, {hi:#x}")
FULL = (1 << 64) - 1
ROWS9 = 0x01FF01FF01FF01FF
vL, vLin, vWr, vKrd, vVrd, vCS, vAq, vAq16, vQst, vQld, vQBw, vQBr, vIdx, vAcc, vTq1, vTq2, vSC, vPw = 0, 1, 2, 5, 6, 7, 8, 9, 10, 11, 12, 13, 14, 15, 16, 17, 18, 19
vC1, vC2, vXR = 20, 21, 22
T = 24
F = 40
SPARE = 88
def vblock(b):
    if b < 2: return ("a", 192 + 24 * b)
    if b == 8: return ("v", SPARE)
    return ("v", 112 + 24 * (b - 2))
def rg(f, b, n): return f"{f}[{b}:{b+n-1}]"

uid = [0]
def nid(): uid[0] += 1; return uid[0]
stamps = [0]
SPINAT = int(OPT.get("spinat", -1))
def stamp(i, val=None):
    if SPIN and val is None and SPINAT % 16 == i:
        k = nid()
        e(f"s_cmp_lg_u32 s{sLay}, {LS*(SPINAT//16)}"); e(f"s_cbranch_scc1 NOSP{k}")
        e("s_memrealtime s[100:101]"); e("s_waitcnt lgkmcnt(0)"); e("v_accvgpr_write_b32 a253, s100"); lab(f"NOSP{k}")
    if not STAMP: return
    if STAMP == 2 and val is None and i not in (0, 14): return
    if STAMP == 1 and (val is not None or i == 14): return
    e("s_memrealtime s[100:101]"); e("v_accvgpr_write_b32 a254, v38"); e("v_accvgpr_write_b32 a255, v39")
    e(f"s_lshl_b32 s98, s2, 2"); e(f"s_add_u32 s98, s98, s{sWV}"); e("s_lshl_b32 s98, s98, 7")
    e(f"s_cmp_eq_u32 s{sLay}, 0"); e(f"s_cselect_b32 s99, 0, 64"); e(f"s_add_u32 s99, s99, {4*i}"); e("s_add_u32 s98, s98, s99"); e("s_add_u32 s98, s98, 0x40000000")
    e("s_waitcnt lgkmcnt(0)"); e(f"v_mov_b32 v38, {val or 's100'}"); e("v_mov_b32 v39, 0")
    e("s_mov_b64 s[100:101], exec"); e("s_mov_b64 exec, 1")
    A.vmem(f"buffer_store_dword v38, v39, {sr(sW)}, s98 offen", "stamp")
    e("s_mov_b64 exec, s[100:101]"); e("s_nop 1"); e("v_accvgpr_read_b32 v38, a254"); e("v_accvgpr_read_b32 v39, a255")
def lstore(instr, counted=None):
    k = nid()
    e(f"s_cmp_eq_u32 s{sFast}, 1"); e(f"s_cbranch_scc0 SLOW{k}")
    if counted: A.vmem(instr, counted)
    else: e(instr)
    lab(f"BACK{k}")
    def t(): lab(f"SLOW{k}"); e(instr + " sc1"); e(f"s_branch BACK{k}")
    tail.append(t)
def check(regs_, tmp):
    r = list(regs_)
    if len(r) == 1: e(f"v_cmp_eq_u32 vcc, -1, v{r[0]}"); return
    cur = r.pop(0)
    while r:
        if len(r) >= 2: e(f"v_max3_u32 v{tmp}, v{cur}, v{r[0]}, v{r[1]}"); r = r[2:]
        else: e(f"v_max_u32 v{tmp}, v{cur}, v{r[0]}"); r = r[1:]
        cur = tmp
    e(f"v_cmp_eq_u32 vcc, -1, v{tmp}")
LIMIT = 0x8000
def poll(loads, regs_, tmp, pid=None, slp=0, first=None):
    k = nid()
    if pid is not None: stamp(pid, "s100")
    e(f"s_mov_b32 s{sCnt}, 1")
    if first:
        for l in loads: e(l)
        first(); e(f"s_branch POLLW{k}")
    lab(f"POLL{k}")
    for l in loads: e(l)
    lab(f"POLLW{k}")
    e("s_waitcnt vmcnt(0)")
    check(regs_, tmp)
    e(f"s_cbranch_vccnz AGAIN{k}")
    lab(f"POLLX{k}")
    def t():
        lab(f"AGAIN{k}")
        if slp: e(f"s_sleep {slp}")
        e(f"s_add_u32 s{sCnt}, s{sCnt}, 1"); e(f"s_cmp_lt_u32 s{sCnt}, {LIMIT}"); e(f"s_cbranch_scc1 POLL{k}"); e(f"s_branch POLLX{k}")
    near.append(t)
    if pid is not None: stamp(pid + 1, "s100"); stamp(pid + 2, f"s{sCnt}")
    A.drained()
near = []
def flush_near():
    while near: near.pop(0)()
GATE = int(OPT.get("gate", 1)); GDLY = int(OPT.get("gdly", 0)); ODLY = int(OPT.get("odly", 16))
def gate(sreg, nl, tmp):
    if not GATE: return
    setexec((1 << nl) - 1)
    poll([f"buffer_load_dword v{tmp}, v{vLin}, {sr(sW)}, s{sreg} offen sc1"], [tmp], tmp)
    if GDLY: e(f"s_sleep {GDLY}")
def late_check(tag, loads, regs_, tmp, pre=None, post=None):
    k = nid()
    A.wait(tag)
    check(regs_, tmp)
    e(f"s_cbranch_vccnz RETRY{k}")
    lab(f"OK{k}")
    def t():
        lab(f"RETRY{k}")
        if pre: pre()
        save = A.vm; poll(loads, regs_, tmp); A.vm = save
        if post: post()
        e(f"s_branch OK{k}")
    tail.append(t)

sTO = 82
sPo, sPw = 90, 91
vLin2 = vXR + 1
e("s_load_dwordx16 s[44:59], s[0:1], 0"); e("s_load_dwordx8 s[60:67], s[0:1], 64")
e("s_cmp_ge_u32 s2, 256"); e("s_cbranch_scc1 CODE_END")
if STAMP or SPIN: e("s_memrealtime s[96:97]")
e("v_lshrrev_b32 v2, 6, v0"); e("v_and_b32 v24, 63, v0"); e(f"v_readfirstlane_b32 s{sWV}, v2")
e(f"s_and_b32 s{sG}, s2, 7"); e(f"s_lshr_b32 s{sJ}, s2, 3"); e(f"s_lshr_b32 s{sHH}, s{sJ}, 3"); e(f"s_and_b32 s{sS}, s{sJ}, 7")
e(f"v_lshlrev_b32 v{vLin}, 4, v24")
e(f"s_lshl_b32 s{sT0}, s{sHH}, 3"); e(f"s_add_u32 s{sT0}, s{sT0}, s{sG}")
e(f"s_mul_i32 s{sKV}, s{sT0}, 12582912"); e(f"s_lshl_b32 s{sT1}, s{sS}, 2"); e(f"s_add_u32 s{sT1}, s{sT1}, s{sWV}")
e(f"s_mul_i32 s{sT1}, s{sT1}, 6144"); e(f"s_add_u32 s{sKV}, s{sKV}, s{sT1}"); e(f"s_add_u32 s{sKV}, s{sKV}, 11010048")
e(f"v_add_u32 v{vLin2}, 4096, v{vLin}"); e(f"s_mov_b32 s{sK+2}, 402653184"); e(f"s_mov_b32 s{sK+3}, 0x20000")
e("s_getpc_b64 s[100:101]"); lab("PCREF")
e(f"s_sub_u32 s100, s100, PCREF-{NAME}_kernel"); e("s_subb_u32 s101, s101, 0")
e(f"s_lshl_b32 s{sT1}, s{sS}, 12"); e(f"v_lshl_add_u32 v25, v0, 4, s{sT1}")
e(f"v_cmp_gt_u32 vcc, CODE_END-{NAME}_kernel-16, v25"); e("s_and_saveexec_b64 s[98:99], vcc"); e("s_cbranch_execz NOCPF")
e(f"global_load_dwordx4 a[240:243], v25, s[100:101]")
lab("NOCPF"); e("s_mov_b64 exec, -1")
e("s_waitcnt lgkmcnt(0)")
e(f"s_mov_b32 s{sK}, s46"); e(f"s_and_b32 s{sK+1}, s47, 0xffff")
if SPIN: e("v_mov_b32 v38, s96"); e("v_accvgpr_write_b32 a253, v38")
RW = int(OPT.get("rw", 16)); RF = (320 - 20 * RW) // 12
assert 20 * RW + 12 * RF == 320
NPW = -(-max(RW, RF) * 24 // 64)
pend = []
vFl = 110
def signal(k):
    setexec(1); e(f"ds_add_u32 v{vFl}, v{vFl+1} offset:{4*k}"); setexec(FULL)
def arrive_all(k, tmp):
    n = nid()
    lab(f"AW{n}"); e(f"ds_read_b32 v{tmp}, v{vFl} offset:{4*k}"); e("s_waitcnt lgkmcnt(0)"); e(f"v_cmp_gt_u32 vcc, 4, v{tmp}"); e(f"s_cbranch_vccnz AW{n}")
def q_tile(srdn, t, f, base, tag):
    so = sKV if t == 0 else sTO + t
    for i in range(6):
        pend.append((f"buffer_load_dwordx4 {rg(f, base+4*i, 4)}, v{vLin if i < 4 else vLin2}, {sr(srdn)}, s{so} offen offset:{1024*(i%4)} {NT}", tag))
def qK(t): q_tile(sK, t, "a", 24 * t, f"K{t}")
def qV(t): f, b = vblock(t + 1); q_tile(sV, t, f, b, f"V{t}")
def q_pfo():
    for n in range(9): pend.append((f"buffer_load_dwordx4 a[240:243], v{[vLin, vLin, vLin2, 108, 109][n//2]}, {sr(sWQ)}, s{sPo} offen offset:{1024*(n%4)} {NTP}", "pfo"))
def q_pfw():
    for n in range(NPW): pend.append((f"buffer_load_dwordx4 a[240:243], v{101+n}, {sr(sX)}, s{sPw} offen {NTP}", "pfw"))
nfill = [0]; BARN = int(OPT.get("barn", 6)); THR = int(OPT.get("thr", 0)); THRE = int(OPT.get("thre", 0))
hold = {"V7", "pfw", "pfo"}; LA = int(OPT.get("la", 12))
def ahead(tag):
    while tag in A.vm and pend and pend[0][1] not in hold and len(A.vm) - 1 - max(i for i, x in enumerate(A.vm) if x == tag) < LA: fill()
def fill(n=1):
    for _ in range(n):
        if pend and not (pend[0][1] in hold):
            if THR and nfill[0] >= THR and len(pend) > THRE: e(f"s_waitcnt vmcnt({THR-1})")
            x, tag = pend.pop(0); A.vmem(x, tag); nfill[0] += 1
            if BARN and nfill[0] > 12 and nfill[0] % BARN == 0 and len(pend) >= 3: e("s_barrier")
BARS = OPT.get("bar", "").split(",")
def upto(tag):
    while any(t == tag for _, t in pend): fill()
    if tag in BARS or "every" in BARS and tag not in ("K0", "K1", "V7"): e("s_barrier")
def Kld(t): upto(f"K{t}")
def Vld(t): upto(f"V{t}")
for it in OPT.get("order", "K0 K1 K2 K3 w o K4 K5 K6 K7 V0 V1 V2 V3 V4 V5 V6 V7").replace(",", " ").split():
    if it == "w": q_pfw()
    elif it == "o": q_pfo()
    elif it[0] == "K": qK(int(it[1]))
    else: qV(int(it[1]))
Kld(0)
if STAMP == 1: e("s_memrealtime s[94:95]")
e(f"v_mov_b32 v{vFl}, {FLG}"); e(f"v_mov_b32 v{vFl+1}, 1")
for q in range(4): e(f"v_mov_b32 v{28+q}, 0")
e(f"ds_write_b128 v{vFl}, v[28:31]"); e(f"s_add_u32 s{sTO+1}, s{sKV}, 196608")
fill(2)
e(f"s_mul_i32 s{sT2}, s{sT0}, 384")
e(f"s_mov_b32 s{sLay}, 0"); e(f"s_mul_i32 s{sLG}, s{sG}, {GB}"); e(f"s_mov_b32 s{sFast}, 0")
e(f"v_mov_b32 v32, -1"); e(f"v_mov_b32 v33, -1"); e(f"v_mov_b32 v34, -1"); e(f"v_mov_b32 v35, -1")
e(f"s_mul_i32 s{sT0}, s{sJ}, 2560"); e(f"s_add_u32 s{sT0}, s{sT0}, s{sLG}")
e(f"v_lshl_add_u32 v{vC1}, v0, 4, s{sT0}"); e("v_cmp_le_u32 vcc, 160, v0"); e(f"v_add_u32 v25, {LS-2560}, v{vC1}"); e(f"v_cndmask_b32 v{vC1}, v{vC1}, v25, vcc")
e(f"s_add_u32 s{sT0}, s{sT0}, {LS+16*96}")
e(f"s_lshl_b32 s{sT1}, s{sJ}, 10"); e(f"s_add_u32 s{sT1}, s{sT1}, s{sLG}"); e(f"s_add_u32 s{sT1}, s{sT1}, {2*LS}")
e(f"s_cmp_eq_u32 s{sWV}, 0"); e(f"s_cselect_b32 s{sClr}, s{sT0}, s{sT1}")
e(f"s_mul_i32 s{sT0}, s2, 80"); e(f"s_add_u32 s{sT0}, s{sT0}, {GOFF}")
e(f"s_cmp_ge_u32 s{sWV}, 2"); e(f"s_cselect_b32 s{sClr}, s{sT0}, s{sClr}")
e(f"v_add_u32 v25, {LS-80}, v{vLin}"); e("v_cmp_le_u32 vcc, 133, v0"); e(f"v_cndmask_b32 v{vC2}, v{vLin}, v25, vcc")
e(f"v_mov_b32 v25, {OOB-0x10000000}"); e("v_cmp_le_u32 vcc, 138, v0"); e(f"v_cndmask_b32 v{vC2}, v{vC2}, v25, vcc")
e("s_waitcnt lgkmcnt(0)"); e("s_barrier")
srd(sW, 66, 1610612736)
A.vmem(f"buffer_store_dwordx4 v[32:35], v{vC1}, {sr(sW)}, 0 offen sc1", "clr")
A.vmem(f"buffer_store_dwordx4 v[32:35], v{vC2}, {sr(sW)}, s{sClr} offen sc1", "clr")
Kld(1)
srd(sV, 48, 402653184); srd(sWQ, 50, 7864320); srd(sX, 44, 1280); srd(sO, 62, 1280)
srd(sRB, 58, 1966080); srd(sRC, 60, 1966080)
e(f"s_cmp_lt_u32 s{sJ}, 20"); e(f"s_cselect_b32 s{sRA}, s52, s56"); e(f"s_cselect_b32 s{sRA+1}, s53, s57"); e(f"s_cselect_b32 s{sRA+2}, s{sWQ+2}, s{sRB+2}")
e(f"s_and_b32 s{sRA+1}, s{sRA+1}, 0xffff"); e(f"s_mov_b32 s{sRA+3}, 0x20000")
if STAMP:
    e(f"s_lshl_b32 s98, s2, 2"); e(f"s_add_u32 s98, s98, s{sWV}"); e("s_lshl_b32 s98, s98, 7"); e("s_add_u32 s98, s98, 0x40000000")
    e("v_mov_b32 v38, s96"); e("v_mov_b32 v39, 0"); e("s_mov_b64 exec, 1")
    A.vmem(f"buffer_store_dword v38, v39, {sr(sW)}, s98 offen", "stamp")
    if STAMP == 1: e("s_waitcnt lgkmcnt(0)"); e("v_mov_b32 v37, s94"); A.vmem(f"buffer_store_dword v37, v39, {sr(sW)}, s98 offen offset:56", "stamp")
    e("s_mov_b64 exec, -1")
for t in range(2, 8): e(f"s_add_u32 s{sTO+t}, s{sTO+t-1}, 196608")
e(f"v_mov_b32 v{vL}, v24")
e(f"s_mul_i32 s{sT0}, s{sWV}, {SCRW}")
for r in range(3):
    e(f"v_add_u32 v25, {64*r}, v{vL}"); e("v_mul_u32_u24 v26, 171, v25"); e("v_lshrrev_b32 v26, 12, v26")
    e("v_mul_u32_u24 v27, 24, v26"); e("v_sub_u32 v27, v25, v27"); e("v_lshlrev_b32 v27, 4, v27")
    e(f"v_mul_u32_u24 v25, {RS}, v26"); e(f"v_add3_u32 v{vWr+r}, v25, v27, s{sT0}")
    e(f"v_mul_u32_u24 v25, 12288, v26"); e(f"v_add_u32 v{F+r}, v25, v27")
    e(f"v_mul_u32_u24 v25, 3072, v26"); e(f"v_add_u32 v{101+r}, v25, v27")
assert all((c * 171) >> 12 == c // 24 for c in range(192))
e(f"s_mul_i32 s{sT1}, s{sS}, {80*12288}"); e(f"s_add_u32 s{sT2}, s{sT2}, s{sT1}")
e(f"s_mul_i32 s{sT1}, s{sWV}, {8*12288}"); e(f"s_add_u32 s{sT2}, s{sT2}, s{sT1}")
e(f"s_mul_i32 s{sT1}, s{sWV}, 3072"); e(f"s_add_u32 s{sT1}, s{sT1}, {WQ}")
for gi in range(3):
    if gi == 2: e(f"s_cmp_ge_u32 s{sWV}, 2"); e("s_cbranch_scc1 NOWQ3")
    for r in range(3):
        e(f"s_add_u32 m0, s{sT1}, {gi*4*3072 + r*1024}")
        A.vmem(f"buffer_load_dwordx4 v{F+r}, {sr(sWQ)}, s{sT2} offen {NTW} lds", "wq", counted=(gi < 2))
    if gi < 2: e(f"s_add_u32 s{sT2}, s{sT2}, {32*12288}")
lab("NOWQ3")
e(f"v_and_b32 v25, 15, v{vL}"); e(f"v_lshrrev_b32 v26, 4, v{vL}")
e(f"v_bfe_u32 v27, v{vL}, 2, 2"); e(f"v_and_b32 v28, 3, v{vL}")
e("v_cmp_eq_u32 vcc, 12, v25"); e("v_mov_b32 v36, 0x3f803f80"); e(f"v_cndmask_b32 v70, 0, v36, vcc")
for q in range(1, 10): e(f"v_mov_b32 v{70+q}, v70")
for q in range(10): e(f"v_mov_b32 v{SPARE+q}, v70")
e(f"s_mul_i32 s{sT1}, s{sS}, 160")
e(f"v_lshlrev_b32 v36, 4, v26"); e(f"v_lshlrev_b32 v37, 3, v26")
setexec(0x0100010001000100)
A.vmem(f"buffer_load_dwordx4 {vr(SPARE)}, v36, {sr(sX)}, s{sT1} offen", "x")
A.vmem(f"buffer_load_dwordx4 {vr(SPARE+4)}, v36, {sr(sX)}, s{sT1} offen offset:64", "x")
A.vmem(f"buffer_load_dwordx2 {vr(SPARE+8,2)}, v37, {sr(sX)}, s{sT1} offen offset:128", "x")
setexec(FULL)
e(f"s_lshl_b32 s{sT2}, s{sJ}, 6"); e(f"v_lshlrev_b32 v38, 2, v25")
A.vmem(f"buffer_load_dword v{vXR}, v38, {sr(sX)}, s{sT2} offen", "x")
srd(sWQ, 52, 7864320)
e(f"s_cmp_lt_u32 s{sWV}, 2"); e(f"s_cselect_b32 s{sX}, s56, s58"); e(f"s_cselect_b32 s{sX+1}, s57, s59"); e(f"s_and_b32 s{sX+1}, s{sX+1}, 0xffff"); e(f"s_mov_b32 s{sX+2}, 1966080")
e(f"s_lshl_b32 s{sPo}, s{sHH}, 3"); e(f"s_add_u32 s{sPo}, s{sPo}, s{sG}"); e(f"s_lshl_b32 s{sPo}, s{sPo}, 3"); e(f"s_add_u32 s{sPo}, s{sPo}, s{sS}")
e(f"s_mul_i32 s{sPo}, s{sPo}, 30720"); e(f"s_mul_i32 s{sT2}, s{sWV}, 6144"); e(f"s_add_u32 s{sPo}, s{sPo}, s{sT2}")
e(f"s_cmp_eq_u32 s{sWV}, 3"); e(f"s_cselect_b32 s{sT2}, 3072, 0"); e(f"s_add_u32 s{sPo}, s{sPo}, s{sT2}")
e(f"s_cmp_lt_u32 s{sWV}, 2"); e(f"s_cselect_b32 s{sT2}, {OOB-0x10000000}, 0"); e(f"v_add_u32 v108, s{sT2}, v{vLin2}"); e(f"v_add_u32 v109, 4096, v108")
e(f"s_and_b32 s{sPw}, s{sWV}, 1"); e(f"s_lshl_b32 s{sT2}, s{sJ}, 1"); e(f"s_add_u32 s{sPw}, s{sPw}, s{sT2}")
e(f"s_mul_i32 s{sT2}, s{sPw}, {RF}"); e(f"s_add_u32 s{sT2}, s{sT2}, {40*(RW-RF)}"); e(f"s_mul_i32 s{sPw}, s{sPw}, {RW}")
e(f"s_cmp_lt_u32 s{sJ}, 20"); e(f"s_cselect_b32 s{sPw}, s{sPw}, s{sT2}"); e(f"s_mov_b32 s{sT3}, {RW*3072}"); e(f"s_cselect_b32 s{sT3}, s{sT3}, {RF*3072}")
e(f"s_mul_i32 s{sPw}, s{sPw}, 3072"); e(f"s_mul_i32 s{sT2}, s{sG}, 384"); e(f"s_add_u32 s{sPw}, s{sPw}, s{sT2}")
e(f"v_mov_b32 v29, {OOB-0x10000000}")
for n in range(3, NPW): e(f"v_add_u32 v{101+n}, {8*3072}, v{98+n}")
for n in range(NPW): e(f"v_cmp_gt_u32 vcc, s{sT3}, v{101+n}"); e(f"v_cndmask_b32 v{101+n}, v29, v{101+n}, vcc")
hold -= {"pfw", "pfo"}
fill(3)
sA0, sA1, sA2 = 92, 93, 94
A.wait("clr")
setexec(1); e(f"ds_add_rtn_u32 v36, v{vFl}, v{vFl+1}"); setexec(FULL)
e(f"s_getreg_b32 s{sXcc}, hwreg(HW_REG_XCC_ID, 0, 4)")
e(f"s_lshr_b32 s{sA0}, s{sXcc}, 2"); e(f"s_lshl_b32 s{sA1}, s{sG}, 2"); e(f"s_add_u32 s{sA0}, s{sA0}, s{sA1}")
e(f"s_and_b32 s{sA1}, s{sXcc}, 3"); e(f"s_lshl_b32 s{sA1}, s{sA1}, 3"); e(f"s_lshl_b32 s{sA2}, 1, s{sA1}")
e(f"s_lshl_b32 s96, 32, s{sA1}"); e(f"s_mov_b32 s{sXcc}, s{sA0}")
e("s_waitcnt lgkmcnt(0)"); e(f"v_readfirstlane_b32 s{sA1}, v36"); e(f"s_cmp_lg_u32 s{sA1}, 3"); e("s_cbranch_scc1 NOATOM")
e(f"s_lshl_b32 s{sA0}, s{sA0}, 2"); e(f"v_mov_b32 v36, s{sA0}"); e(f"v_mov_b32 v37, s{sA2}")
setexec(1); e("global_atomic_add v36, v37, s[64:65] sc1"); setexec(FULL)
lab("NOATOM")
e(f"v_mul_u32_u24 v29, {RS}, v25"); e(f"v_lshl_add_u32 v29, v26, 4, v29"); e(f"v_add_u32 v{vKrd}, s{sT0}, v29")
e(f"v_lshrrev_b32 v29, 2, v{vL}"); e(f"v_mul_u32_u24 v29, {RS}, v29"); e(f"v_lshl_add_u32 v29, v28, 3, v29"); e(f"v_add_u32 v{vVrd}, s{sT0}, v29")
e(f"s_mul_i32 s{sT2}, s{sWV}, 96"); e(f"s_add_u32 s{sT2}, s{sT2}, {WQ}")
e("v_lshl_add_u32 v29, v26, 3, v27"); e("v_mul_u32_u24 v29, 384, v29"); e("v_lshl_add_u32 v29, v28, 3, v29"); e(f"v_add_u32 v{vTq1}, s{sT2}, v29")
e("v_lshl_add_u32 v29, v26, 2, v27"); e("v_mul_u32_u24 v29, 384, v29"); e("v_lshl_add_u32 v29, v28, 3, v29"); e(f"v_add_u32 v{vTq2}, s{sT2}, v29")
def rowbase(dst, m, og, ol, ob, tmp):
    e(f"v_mul_u32_u24 v{dst}, 1280, v{m}"); e(f"v_add_u32 v{dst}, {og}, v{dst}")
    e(f"s_mul_i32 s{sT3}, s{sG}, {GB}"); e(f"s_add_u32 s{sT3}, s{sT3}, {ol}"); e(f"v_mov_b32 v{tmp}, s{sT3}")
    e(f"v_cmp_eq_u32 vcc, s{sG}, v{m}"); e(f"v_cndmask_b32 v{dst}, v{dst}, v{tmp}, vcc")
    if ob is not None:
        e(f"v_add_u32 v{tmp}, {ob-ol}, v{tmp}"); e(f"v_cmp_le_u32 vcc, 8, v{m}"); e(f"v_cndmask_b32 v{dst}, v{dst}, v{tmp}, vcc")
fill()
e(f"v_mul_u32_u24 v31, 103, v{vL}"); e("v_lshrrev_b32 v31, 10, v31")
e(f"v_mul_u32_u24 v30, 10, v31"); e(f"v_sub_u32 v30, v{vL}, v30"); e(f"v_lshl_add_u32 v29, v30, 4, s{sT1}")
rowbase(vAq, 31, oFG, oFL, oBB, 30); e(f"v_add_u32 v{vAq}, v{vAq}, v29")
e("v_add_u32 v31, 6, v31"); rowbase(vAq16, 31, oFG, oFL, oBB, 30); e(f"v_add_u32 v{vAq16}, v{vAq16}, v29")
e(f"v_mov_b32 v30, {OOB}"); e(f"v_cmp_le_u32 vcc, 30, v{vL}"); e(f"v_cndmask_b32 v{vAq16}, v{vAq16}, v30, vcc")
assert all((c * 103) >> 10 == c // 10 for c in range(64))
e(f"s_lshl_b32 s{sT1}, s{sJ}, 10"); e(f"s_lshl_b32 s{sT2}, s{sWV}, 8"); e(f"s_add_u32 s{sT1}, s{sT1}, s{sT2}")
e(f"v_lshl_add_u32 v{vQst}, v{vL}, 2, s{sT1}")
e(f"s_lshl_b32 s{sT1}, s{sHH}, 13"); e(f"s_add_u32 s{sT1}, s{sT1}, s{sT2}")
e(f"v_lshlrev_b32 v29, 10, v26"); e(f"v_lshl_add_u32 v29, v25, 4, v29"); e(f"v_add_u32 v{vQld}, s{sT1}, v29")
fill()
e(f"s_mul_i32 s{sT1}, s{sWV}, 96"); e(f"s_add_u32 s{sT1}, s{sT1}, {QB}")
e(f"v_lshl_add_u32 v29, v27, 5, s{sT1}"); e("v_lshl_add_u32 v29, v28, 2, v29"); e("v_lshrrev_b32 v30, 1, v26"); e("v_lshl_add_u32 v29, v30, 4, v29")
e("v_and_b32 v30, 1, v26"); e("v_lshl_add_u32 v29, v30, 1, v29"); e(f"v_mov_b32 v30, {QB+384}")
e("v_cmp_le_u32 vcc, 12, v25"); e(f"v_cndmask_b32 v{vQBw}, v29, v30, vcc")
e(f"v_and_b32 v30, 1, v{vL}"); e(f"v_lshlrev_b32 v29, 5, v26"); e("v_lshl_add_u32 v29, v30, 4, v29"); e(f"v_add_u32 v{vQBr}, {QB}, v29")
e("v_mul_u32_u24 v30, 0xaaaa, v30"); e("v_and_b32 v29, 1, v27"); e("v_mul_u32_u24 v29, 0xaaaa, v29"); e("v_lshl_or_b32 v29, v29, 16, v30"); e(f"v_add_u32 v{vIdx}, 0x44444444, v29")
fill()
e(f"s_lshl_b32 s{sT1}, s{sWV}, 8"); e(f"s_add_u32 s{sT1}, s{sT1}, {PT}")
e(f"v_lshrrev_b32 v29, 5, v{vL}"); e(f"v_lshl_add_u32 v29, v29, 6, s{sT1}")
for bit, sh in ((3, 5), (1, 4), (2, 3), (4, 2), (0, 1)): e(f"v_bfe_u32 v30, v{vL}, {bit}, 1"); e(f"v_lshl_add_u32 v29, v30, {sh}, v29")
e(f"v_mov_b32 v{vPw}, v29")
e(f"s_mul_i32 s{sT1}, s{sWV}, 768"); e(f"s_add_u32 s{sT1}, s{sT1}, {ACC}"); e(f"v_lshl_add_u32 v29, v25, 2, s{sT1}")
e(f"v_bfe_u32 v30, v{vL}, 4, 1"); e("v_lshl_add_u32 v29, v30, 7, v29"); e(f"v_lshrrev_b32 v30, 5, v{vL}"); e(f"v_lshl_add_u32 v{vAcc}, v30, 6, v29")
for t in range(10):
    m = 0x00010001 << t
    e(f"s_mov_b32 s{sMf+2*t}, {m:#x}"); e(f"s_mov_b32 s{sMf+2*t+1}, {m:#x}")

def Krel(t):
    ahead(f"K{t}"); A.wait(f"K{t}")
    for i in range(6): e(f"ds_write_b128 v{vWr+i%3}, {ar(24*t+4*i)} offset:{(i//3)*8*RS}")
    for ks in range(6): e(f"ds_read_b128 {ar(24*t+4*ks)}, v{vKrd} offset:{64*ks}")
def Vrel(t):
    ahead(f"V{t}"); A.wait(f"V{t}")
    f, b = vblock(t + 1)
    for i in range(6): e(f"ds_write_b128 v{vWr+i%3}, {rg(f, b+4*i, 4)} offset:{(i//3)*8*RS}")
    f, b = vblock(t & ~1)
    for dt in range(12): e(f"ds_read_b64_tr_b16 {rg(f, b+4*dt+2*(t&1), 2)}, v{vVrd} offset:{32*dt}")
def wq_frags():
    for t in range(3):
        b = F + 10 * t
        for kk in range(2):
            for h in range(2): e(f"ds_read_b64_tr_b16 {vr(b+4*kk+2*h,2)}, v{vTq1} offset:{(32*kk+4*h)*384+32*t}")
        e(f"ds_read_b64_tr_b16 {vr(b+8,2)}, v{vTq2} offset:{64*384+32*t}")
def qstage(a, soff, tag=None, waits=False, fl=0):
    def mm(t, kk):
        n = 4 if kk < 2 else 2
        bb = vr(F + 10 * t + 4 * kk, n) if t < 3 else vr(a + 4 * kk, n)
        c = "0" if kk == 0 else vr(T + 4 * t)
        e(f"v_mfma_f32_16x16x{32 if kk<2 else 16}_bf16 {vr(T+4*t)}, {vr(a+4*kk,n)}, {bb}, {c}")
    def s4(t): return [f"v_add_f32 v{T+4*t}, v{T+4*t}, v{T+4*t+1}", f"v_add_f32 v{T+4*t+2}, v{T+4*t+2}, v{T+4*t+3}", f"v_add_f32 v{T+4*t}, v{T+4*t}, v{T+4*t+2}"]
    if waits: e("s_waitcnt lgkmcnt(2)")
    mm(0, 0); mm(2, 0)
    if waits: e("s_waitcnt lgkmcnt(0)")
    mm(0, 1); mm(2, 1); mm(0, 2); mm(2, 2)
    mm(1, 0); mm(3, 0); mm(1, 1); mm(3, 1); mm(1, 2); mm(3, 2)
    fill(fl)
    for x in s4(0) + s4(2): e(x)
    e(f"v_permlane32_swap_b32 v{T}, v{T+8}")
    x1, x3 = s4(1), s4(3)
    for x in x1[:2] + x3[:2] + [f"v_add_f32 v{T}, v{T}, v{T+8}"] + x1[2:] + x3[2:]: e(x)
    e(f"v_permlane32_swap_b32 v{T+4}, v{T+12}"); e(f"v_add_f32 v{T+4}, v{T+4}, v{T+12}")
    e(f"v_permlane16_swap_b32 v{T}, v{T+4}"); e(f"v_add_f32 v{T}, v{T}, v{T+4}")
    lstore(f"buffer_store_dword v{T}, v{vQst}, {sr(sW)}, {soff} offen", tag)
def xreduce(r0, r1, r2, r3):
    e(f"v_permlane32_swap_b32 v{r0}, v{r2}"); e(f"v_permlane32_swap_b32 v{r1}, v{r3}")
    e(f"v_add_f32 v{r0}, v{r0}, v{r2}"); e(f"v_add_f32 v{r1}, v{r1}, v{r3}")
    e(f"v_permlane16_swap_b32 v{r0}, v{r1}"); e(f"v_add_f32 v{r0}, v{r0}, v{r1}")
def qloads(b, s0, s1): return [f"buffer_load_dwordx4 {vr(b)}, v{vQld}, {sr(sW)}, {s0} offen sc1", f"buffer_load_dwordx4 {vr(b+4)}, v{vQld}, {sr(sW)}, {s1} offen sc1"]
def qsum(b):
    for q in range(4): e(f"v_add_f32 v{b+q}, v{b+q}, v{b+4+q}")
    xreduce(b, b + 1, b + 2, b + 3)
def rowred(op, v, tmp, steps):
    for sft in steps: e(f"v_{op}_f32_dpp v{v}, v{v}, v{v} row_ror:{sft} row_mask:0xf bank_mask:0xf")
def xrow(op, v, tmp, both=True):
    if both:
        e(f"v_mov_b32 v{tmp}, v{v}"); e(f"v_permlane32_swap_b32 v{v}, v{tmp}"); e(f"v_{op}_f32 v{v}, v{v}, v{tmp}")
    e(f"v_mov_b32 v{tmp}, v{v}"); e(f"v_permlane16_swap_b32 v{v}, v{tmp}"); e(f"v_{op}_f32 v{v}, v{v}, v{tmp}")
QF = 28; DQ = 40; PA = 72; X = 24; vM = 26
def att_zero():
    for t in range(8): e(f"v_mov_b32 v{DQ+4*t}, 0"); e(f"v_mov_b32 v{DQ+4*t+1}, 0")
    for q in range(16): e(f"v_mov_b32 v{PA+q}, 0")
def q_finish(b, mid=None):
    e(f"v_readlane_b32 s{sT0}, v{b}, 15")
    e(f"s_mov_b32 vcc_lo, 0x70007000"); e(f"s_mov_b32 vcc_hi, 0x70007000")
    e(f"v_fma_f32 v{b+1}, -s{sT0}, v{vCS}, v{b}")
    e(f"v_cvt_pk_bf16_f32 v{b+1}, v{b+1}, v{b+1}")
    e(f"ds_write_b16 v{vQBw}, v{b+1}")
    e(f"v_cndmask_b32 v{b+2}, 0, v{b}, vcc")
    e(f"v_add_f32_dpp v{b+2}, v{b+2}, v{b+2} quad_perm:[1,0,3,2] row_mask:0xf bank_mask:0xf")
    e(f"v_add_f32_dpp v{b+2}, v{b+2}, v{b+2} quad_perm:[2,3,0,1] row_mask:0xf bank_mask:0xf")
    e(f"v_mov_b32 v{b+3}, v{b+2}"); e(f"v_permlane32_swap_b32 v{b+2}, v{b+3}"); e(f"v_add_f32 v{b+2}, v{b+2}, v{b+3}")
    if mid: mid()
    else: e("s_waitcnt lgkmcnt(0)"); e("s_barrier")
    for ks in range(3): e(f"ds_read_b128 {vr(QF+4*ks)}, v{vQBr} offset:{128*ks}")
    e(f"v_mov_b32 v{b+3}, v{b+2}"); e(f"v_mov_b32 v{b+1}, s{sT0}"); e(f"v_subrev_f32 v{b+1}, 0x44200000, v{b+1}")
    e(f"v_permlane16_swap_b32 v{b+2}, v{b+3}"); e(f"v_add_f32 v{b+2}, v{b+2}, v{b+3}")
    e(f"v_mul_f32 v{b}, 0x3acccccd, v{b+1}")
    e(f"v_readlane_b32 s{sT0}, v{b+2}, 15")
    e(f"v_mul_f32 v{b}, v{b}, v{b}"); e(f"s_mov_b32 s{sT1}, 0x3acccccd")
    e(f"v_sub_f32 v{b+2}, s{sT0}, v{b+1}")
    e(f"v_fma_f32 v{b+2}, v{b+2}, s{sT1}, -v{b}"); e(f"v_max_f32 v{b+2}, 0, v{b+2}"); e(f"v_add_f32 v{b+2}, 0x3727c5ac, v{b+2}")
    e(f"v_rsq_f32 v{b+2}, v{b+2}"); e(f"v_mul_f32 v{vSC}, 0x3dd53b94, v{b+2}")
def qk_softmax(fl=0):
    def fold(t): e(f"v_add_f32_dpp v{X+t//4}, v{DQ+4*t}, v{DQ+4*t+1} quad_perm:[0,1,2,3] row_mask:{1<<(t%4):#x} bank_mask:0xf")
    def mm(t, ks): e(f"v_smfmac_f32_16x16x64_bf16 {vr(DQ+4*t)}, {vr(QF+4*ks)}, {ar(24*t+8*ks, 8)}, v{vIdx}")
    for ks in range(3):
        e(f"s_waitcnt lgkmcnt({2-ks})")
        for t in (0, 4, 1, 5, 2, 6, 3, 7): mm(t, ks)
        if ks != 1: fill(fl)
    fx = [f"s_lshl_b32 s{sT1}, s{sWV}, 8", f"v_bfe_u32 v27, v{vL}, 4, 1", f"v_bfe_u32 v28, v{vL}, 2, 1", f"s_add_u32 s{sT1}, s{sT1}, {PT}"]
    for t in range(4): e(fx[t]); fold(t); fold(t + 4)
    e(f"v_max_f32 v{vM}, v{X}, v{X+1}")
    e(f"v_lshl_add_u32 v27, v27, 5, s{sT1}"); e("v_lshl_add_u32 v27, v28, 4, v27")
    rowred("max", vM, None, (8, 4, 2, 1)); xrow("max", vM, 28)
    fill(fl)
    e(f"v_mul_f32 v{vM}, v{vM}, v{vSC}")
    for q in range(2): e(f"v_fma_f32 v{X+q}, v{X+q}, v{vSC}, -v{vM}")
    for q in range(2): e(f"v_exp_f32 v{X+q}, v{X+q}")
    e(f"v_cvt_pk_bf16_f32 v28, v{X}, v{X+1}")
    e(f"ds_write_b16 v{vPw}, v28"); e(f"ds_write_b16_d16_hi v{vPw}, v28 offset:128")
    setexec(0xFF00FF0000FF00FF)
    for u in range(4): e(f"ds_read_b128 {vr(PA+4*u)}, v27 offset:{64*u}")
    setexec(FULL)
    e(f"v_add_f32 v27, v{X}, v{X+1}")
    z = [f"v_mov_b32 v{F+4*dp}, 0" for dp in range(6)] + [f"s_lshl_b32 s{sT1}, s{sWV}, 3", f"s_add_u32 s{sT1}, s{sT1}, {ML4}"]
    for sft in (8, 4, 2, 1):
        e(z.pop(0)); e(z.pop(0)); e(f"v_add_f32_dpp v27, v27, v27 row_ror:{sft} row_mask:0xf bank_mask:0xf")
    xrow("add", 27, 28)
    e(f"v_mov_b32 v28, s{sT1}"); e(f"ds_write_b64 v28, v[26:27]")
def pv_step(u, order=range(6)):
    f, b = vblock(2 * u)
    for dp in order: e(f"v_smfmac_f32_16x16x64_bf16 {vr(F+4*dp)}, {vr(PA+4*u)}, {rg(f, b+8*dp, 8)}, v{vIdx} abid:1")
def pv_post():
    for q in range(3): e(f"v_permlane16_swap_b32 v{F+8*q}, v{F+8*q+4}"); e(f"v_add_f32 v{F+8*q}, v{F+8*q}, v{F+8*q+4}"); e(f"ds_write_b32 v{vAcc}, v{F+8*q} offset:{OACC+256*q}")

def role_dma():
    e(f"s_cmp_ge_u32 s{sJ}, 20"); e("s_cbranch_scc1 DMAF")
    e(f"v_lshrrev_b32 v38, 2, v{vL}"); e("v_mul_u32_u24 v38, 1280, v38"); e(f"v_and_b32 v39, 3, v{vL}"); e("v_lshl_add_u32 v38, v39, 4, v38")
    e(f"s_lshl_b32 s{sT0}, s{sWV}, 3"); e(f"s_add_u32 s{sT0}, s{sT0}, s{sG}"); e(f"s_mul_i32 s{sT0}, s{sT0}, {192*1280}"); e(f"s_lshl_b32 s{sT1}, s{sJ}, 6"); e(f"s_add_u32 s{sT0}, s{sT0}, s{sT1}")
    e(f"s_mul_i32 s{sT1}, s{sWV}, 12288"); e(f"s_add_u32 m0, s{sT1}, {WO}")
    for n in range(12):
        A.vmem(f"buffer_load_dwordx4 v38, {sr(sRA)}, s{sT0} offen {NTR} lds", "role", counted=(n < 10))
        if n < 11: e(f"s_add_u32 m0, m0, 1024"); e(f"s_add_u32 s{sT0}, s{sT0}, {16*1280}")
    lab("DMAX")
    def t():
        lab("DMAF"); fdma(); e("s_branch DMAX")
    tail.append(t)
def fdma():
    if True:
        e(f"v_lshrrev_b32 v38, 1, v{vL}"); e("v_mul_u32_u24 v38, 3072, v38"); e(f"v_and_b32 v39, 1, v{vL}"); e("v_lshl_add_u32 v38, v39, 4, v38")
        e(f"s_mul_i32 s{sT2}, s{sG}, 12"); e(f"s_add_u32 s{sT2}, s{sT2}, s{sJ}"); e(f"s_sub_u32 s{sT2}, s{sT2}, 20")
        e(f"s_mul_i32 s{sT0}, s{sWV}, {160*3072}"); e(f"s_lshl_b32 s{sT1}, s{sT2}, 5"); e(f"s_add_u32 s{sT0}, s{sT0}, s{sT1}")
        e(f"s_mul_i32 s{sT1}, s{sWV}, 5120")
        for n in range(5):
            e(f"s_add_u32 m0, s{sT1}, {W1+1024*n}"); e(f"buffer_load_dwordx4 v38, {sr(sRA)}, s{sT0} offen {NTR} lds")
            e(f"s_add_u32 m0, s{sT1}, {W3+1024*n}"); e(f"buffer_load_dwordx4 v38, {sr(sRB)}, s{sT0} offen {NTR} lds")
            if n < 4: e(f"s_add_u32 s{sT0}, s{sT0}, {32*3072}")
def w2dma():
    e(f"s_mul_i32 s{sT2}, s{sG}, 12"); e(f"s_add_u32 s{sT2}, s{sT2}, s{sJ}"); e(f"s_sub_u32 s{sT2}, s{sT2}, 20"); e(f"s_mul_i32 s97, s{sWV}, 5120")
    e(f"s_mul_i32 s96, s{sT2}, 20480"); e(f"s_add_u32 s96, s96, s97")
    for n in range(5):
        e(f"s_add_u32 m0, s97, {W2+1024*n}"); e(f"buffer_load_dwordx4 v{vLin}, {sr(sRC)}, s96 offen {NTW} lds")
        if n < 4: e(f"s_add_u32 s96, s96, 1024")
Kld(2); Krel(0); Kld(3); Krel(1); fill(6); Krel(2)
signal(1)
stamp(1)
upto("pfw"); upto("pfo"); Krel(3)
e(f"v_lshlrev_b32 v98, 2, v{vL}")
rdy = ["global_load_dword v99, v98, s[64:65] sc1"]
A.vmem(rdy[0], "rdy")
Kld(4); fill(3)
arrive_all(1, 24); wq_frags()
Kld(5); fill(3)
def rdycheck():
    e("v_sad_u8 v100, v99, 0, 0")
    e("v_add_u32_dpp v100, v100, v100 quad_perm:[1,0,3,2] row_mask:0xf bank_mask:0xf")
    e("v_add_u32_dpp v100, v100, v100 quad_perm:[2,3,0,1] row_mask:0xf bank_mask:0xf")
    e("v_cmp_gt_u32 vcc, 32, v100"); e("s_mov_b32 vcc_hi, 0"); e("s_cmp_eq_u64 vcc, 0")
ahead("rdy"); A.wait("rdy"); rdycheck(); e("s_cbranch_scc0 RDYLOOP"); lab("RDYOK")
def t_():
    lab("RDYLOOP"); e(f"s_mov_b32 s{sCnt}, 0"); lab("RDYL2"); e("s_sleep 8"); e(rdy[0]); e("s_waitcnt vmcnt(0)"); rdycheck(); e("s_cbranch_scc1 RDYOK")
    e(f"s_add_u32 s{sCnt}, s{sCnt}, 1"); e(f"s_cmp_lt_u32 s{sCnt}, {LIMIT}"); e("s_cbranch_scc1 RDYL2"); e("s_branch RDYOK")
tail.append(t_)
e(f"v_readlane_b32 s{sT0}, v99, s{sXcc}"); e(f"s_cmp_eq_u32 s{sT0}, s96"); e(f"s_cselect_b32 s{sFast}, {0 if FORCESLOW else 1}, 0")
stamp(2)
A.vmem(f"buffer_load_dwordx4 a[240:243], v{vC1}, {sr(sW)}, 0 offen sc1", "pre")
A.vmem(f"buffer_load_dwordx4 a[240:243], v{vC2}, {sr(sW)}, s{sClr} offen sc1", "pre")
e("s_waitcnt lgkmcnt(0)")
e(f"s_add_u32 s{sT2}, s{sLG}, {2*LS}")
qstage(70, f"s{sT2}", "qst", fl=1); fill(); qstage(SPARE, f"s{sLG}", "qst", fl=1)
def pack_store16(d, instr_fn):
    for q in (1, 2, 3): e(f"v_mov_b32_dpp v{d+q}, v{d} quad_perm:[{q},{q},{q},{q}] row_mask:0xf bank_mask:0xf")
    setexec(0x1111); instr_fn(); setexec(FULL)
e(f"s_cmp_lg_u32 s{sWV}, 1"); e("s_cbranch_scc1 NOBASE0"); e(f"s_cmp_ge_u32 s{sJ}, 20"); e("s_cbranch_scc1 NOBASE0")
e(f"v_mov_b32 v28, v{vXR}"); e(f"s_lshl_b32 s{sT0}, s{sJ}, 6"); e(f"s_add_u32 s{sT0}, s{sT0}, s{sLG}"); e(f"s_add_u32 s{sT0}, s{sT0}, {oBA}"); e(f"v_lshlrev_b32 v27, 2, v{vL}")
pack_store16(28, lambda: lstore(f"buffer_store_dwordx4 v[28:31], v27, {sr(sW)}, s{sT0} offen"))
lab("NOBASE0")
stamp(3)
Kld(6); Krel(4); Kld(7); Krel(5); stamp(12); role_dma(); stamp(15); Krel(6)
def cs_soffs():
    e(f"s_add_u32 s{sT0}, s{sLG}, {2*LS}"); e(f"s_add_u32 s{sT1}, s{sLG}, {2*LS+4096}"); e(f"s_add_u32 s{sT2}, s{sLG}, 4096")
cs_soffs()
gl = qloads(64, f"s{sT0}", f"s{sT1}") + qloads(72, f"s{sLG}", f"s{sT2}")
for l in gl: A.vmem(l, "qg")
fill(3)
e(f"v_and_b32 v25, 15, v{vL}"); e(f"v_lshrrev_b32 v26, 4, v{vL}"); e("v_add_u32 v27, 4, v26")
rowbase(vC1, 26, oFG, oFL, None, 28); rowbase(vC2, 27, oFG, oFL, None, 28)
e(f"s_min_u32 s{sT3}, s{sJ}, 19"); e(f"s_lshl_b32 s{sT3}, s{sT3}, 6"); e(f"v_lshl_add_u32 v25, v25, 2, s{sT3}")
e(f"v_add_u32 v{vC1}, v{vC1}, v25"); e(f"v_add_u32 v{vC2}, v{vC2}, v25")
fill()
e(f"v_and_b32 v25, 15, v{vL}"); e(f"v_bfe_u32 v27, v{vL}, 2, 2"); e(f"v_and_b32 v28, 3, v{vL}")
e(f"s_mul_i32 s{sT3}, s{sWV}, 12288"); e(f"s_add_u32 s{sT3}, s{sT3}, {WO}")
e("v_lshl_add_u32 v29, v26, 3, v27"); e("v_lshlrev_b32 v29, 6, v29"); e("v_lshl_add_u32 v29, v28, 3, v29"); e(f"v_add_u32 v29, s{sT3}, v29"); e("v_accvgpr_write_b32 a246, v29")
e(f"s_mul_i32 s{sT3}, s{sWV}, 3072"); e(f"s_add_u32 s{sT3}, s{sT3}, {oO}")
e(f"v_lshl_add_u32 v29, v25, 4, s{sT3}"); e("v_lshl_add_u32 v29, v26, 7, v29"); e("v_accvgpr_write_b32 a247, v29")
e(f"s_lshl_b32 s{sT3}, s{sWV}, 6"); e(f"s_add_u32 s{sT3}, s{sT3}, {oML}"); e("v_and_b32 v29, 1, v26"); e(f"v_lshl_add_u32 v29, v29, 5, s{sT3}"); e("v_accvgpr_write_b32 a248, v29")
e(f"s_lshl_b32 s{sT3}, s{sWV}, 8"); e(f"s_add_u32 s{sT3}, s{sT3}, {ACC+YACC}"); e(f"v_lshl_add_u32 v29, v{vL}, 2, s{sT3}"); e("v_accvgpr_write_b32 a249, v29")
e(f"s_lshl_b32 s{sYl}, s{sJ}, 6"); e(f"s_mul_i32 s{sYg}, s{sG}, 1280"); e(f"s_add_u32 s{sYg}, s{sYg}, s{sYl}"); e(f"s_add_u32 s{sYg}, s{sYg}, {oYG}")
e(f"s_add_u32 s{sYl}, s{sYl}, s{sLG}"); e(f"s_add_u32 s{sYl}, s{sYl}, {oYL}")
Vld(0); Krel(7); Vld(1)
ahead("qg")
late_check("qg", gl, range(64, 80), 24, pre=cs_soffs)
qsum(64); qsum(72)
e(f"v_mul_f32 v{vCS}, 0x3acccccd, v64")
e(f"v_mov_b32 v{T}, v72")
fill(); att_zero()
stamp(4)
def qmid():
    signal(2); Vld(2); Vrel(0); Vld(3); Vrel(1); fill(2); arrive_all(2, 28)
q_finish(T, qmid)
qk_softmax(fl=1)
stamp(5)
hold.clear()
Vld(4); Vrel(2)
e("s_waitcnt lgkmcnt(0)"); pv_step(0)
Vld(5); Vrel(3); Vld(6)
e("s_waitcnt lgkmcnt(0)"); pv_step(1)
Vrel(4); Vld(7); Vrel(5)
e(f"v_and_b32 v{vXR+1}, 0xffff0000, v{vXR}"); e(f"v_lshlrev_b32 v{vXR}, 16, v{vXR}")
e("s_waitcnt lgkmcnt(0)"); pv_step(2)
Vrel(6)
f_, b_ = vblock(8)
for i in range(6):
    e(f"s_waitcnt vmcnt({5-i})"); e(f"ds_write_b128 v{vWr+i%3}, {rg(f_, b_+4*i, 4)} offset:{(i//3)*8*RS}")
f_, b_ = vblock(6)
for dt in range(12): e(f"ds_read_b64_tr_b16 {rg(f_, b_+4*dt+2, 2)}, v{vVrd} offset:{32*dt}")
A.drained()
e("s_branch ATT_LAST")
flush_near()

lab("LOOP")
wq_frags()
e(f"v_and_b32 v25, 15, v{vL}"); e("v_cmp_eq_u32 vcc, 12, v25"); e("v_mov_b32 v36, 0x3f803f80"); e(f"v_cndmask_b32 v70, 0, v36, vcc")
for q in range(1, 10): e(f"v_mov_b32 v{70+q}, v70")
e(f"s_add_u32 s{sT2}, s{sLG}, 4096")
e(f"s_mul_i32 s{sT0}, s{sWV}, {SCRW}")
e(f"v_mul_u32_u24 v26, 103, v{vL}"); e("v_lshrrev_b32 v26, 10, v26"); e(f"v_lshl_add_u32 v26, v26, 4, v{vLin}"); e(f"v_add_u32 v26, s{sT0}, v26")
e(f"v_mul_u32_u24 v27, 176, v25"); e(f"v_add_u32 v27, s{sT0}, v27"); e(f"v_lshrrev_b32 v28, 4, v{vL}"); e("v_lshl_add_u32 v29, v28, 3, v27"); e("v_lshl_add_u32 v27, v28, 4, v27")
e(f"s_mul_i32 s{sT0}, s{sS}, 160"); e(f"s_add_u32 s{sT0}, s{sT0}, s{sLG}"); e(f"s_sub_u32 s{sT0}, s{sT0}, {LS-oFL}")
e("s_waitcnt lgkmcnt(0)")
gate(sT0, 10, 24)
setexec((1 << 60) - 1)
poll([f"buffer_load_dwordx4 v[80:83], v{vAq}, {sr(sW)}, 0 offen sc1", f"buffer_load_dwordx4 v[84:87], v{vAq16}, {sr(sW)}, 0 offen sc1"], [80, 84], 24, pid=1, slp=int(OPT.get("slpq", 0)))
e("ds_write_b128 v26, v[80:83]"); e(f"ds_write_b128 v26, v[84:87] offset:{6*176}")
setexec(ROWS9)
e("ds_read_b128 v[70:73], v27"); e("ds_read_b128 v[74:77], v27 offset:64"); e("ds_read_b64 v[78:79], v29 offset:128")
setexec(FULL)
stamp(1)
e(f"buffer_load_dword a244, v{vC1}, {sr(sW)}, 0 offen sc1"); e(f"buffer_load_dword a245, v{vC2}, {sr(sW)}, 0 offen sc1")
qstage(70, f"s{sLG}", waits=True)
stamp(2)
att_zero()
poll(qloads(T, f"s{sLG}", f"s{sT2}"), range(T, T + 8), T + 8, pid=4)
stamp(3)
qsum(T)
q_finish(T)
stamp(4)
qk_softmax()
stamp(5)
for u in range(3):
    e(f"s_waitcnt lgkmcnt({4-u})"); pv_step(u)
e("s_waitcnt lgkmcnt(0)")
lab("ATT_LAST")
for dp in range(6):
    if dp % 2 == 0: e(f"s_waitcnt lgkmcnt({8-2*dp})")
    pv_step(3, [dp])
e(f"v_add_u32 v24, {ACC}, v{vLin}"); e(f"v_mov_b32 v25, {ML4}"); e(f"v_lshlrev_b32 v39, 6, v{vL}")
pv_post()
e(f"s_cmp_lg_u32 s{sWV}, 0")
e("s_waitcnt lgkmcnt(0)"); e("s_barrier")
e("s_cbranch_scc1 ODONE")
stamp(6)
e(f"ds_read_b128 v[64:67], v25"); e(f"ds_read_b128 v[68:71], v25 offset:16")
for w in range(4): e(f"ds_read_b128 {vr(F+4*w)}, v24 offset:{OACC+768*w}")
e(f"s_mul_i32 s{sT0}, s{sHH}, 3072"); e(f"s_lshl_b32 s{sT1}, s{sS}, 4"); e(f"s_add_u32 s{sT0}, s{sT0}, s{sT1}"); e(f"s_add_u32 s{sT0}, s{sT0}, s{sLG}"); e(f"s_add_u32 s{sT0}, s{sT0}, {oO}")
e(f"s_lshl_b32 s{sT1}, s{sJ}, 3"); e(f"s_add_u32 s{sT1}, s{sT1}, s{sLG}"); e(f"s_add_u32 s{sT1}, s{sT1}, {oML}")
e("s_waitcnt lgkmcnt(4)")
e("v_max3_f32 v32, v64, v66, v68"); e("v_max_f32 v32, v32, v70")
for w in range(4): e(f"v_sub_f32 v{64+2*w}, v{64+2*w}, v32")
for w in range(4): e(f"v_exp_f32 v{64+2*w}, v{64+2*w}")
e("s_waitcnt lgkmcnt(0)")
for q in range(4): e(f"v_mul_f32 v{28+q}, v64, v{F+q}")
for w in range(1, 4):
    for q in range(4): e(f"v_fmac_f32 v{28+q}, v{64+2*w}, v{F+4*w+q}")
def pack_pairs():
    e("v_cvt_pk_bf16_f32 v28, v28, v29"); e("v_cvt_pk_bf16_f32 v29, v30, v31")
    e("v_mov_b32_dpp v30, v28 quad_perm:[1,1,3,3] row_mask:0xf bank_mask:0xf"); e("v_mov_b32_dpp v31, v29 quad_perm:[1,1,3,3] row_mask:0xf bank_mask:0xf")
pack_pairs()
setexec(0x5555555555555555 & ((1 << 48) - 1))
lstore(f"buffer_store_dwordx4 v[28:31], v39, {sr(sW)}, s{sT0} offen")
e("v_mul_f32 v33, v64, v65")
for w in range(1, 4): e(f"v_fmac_f32 v33, v{64+2*w}, v{65+2*w}")
setexec(1)
lstore(f"buffer_store_dwordx2 v[32:33], v39, {sr(sW)}, s{sT1} offen")
setexec(FULL)
lab("ODONE")
stamp(7)
e(f"s_cmp_ge_u32 s{sJ}, 20"); e("s_cbranch_scc1 ROLEF")
def owner_add():
    e("v_lshlrev_b32 v30, 16, v28"); e("v_and_b32 v28, 0xffff0000, v28"); e("v_lshlrev_b32 v31, 16, v29"); e("v_and_b32 v29, 0xffff0000, v29")
    e("v_add_f32 v30, v30, v31"); e("v_add_f32 v28, v28, v29")
    e("v_mov_b32 v31, v30"); e("v_mov_b32 v29, v28"); e("v_permlane32_swap_b32 v30, v31"); e("v_permlane32_swap_b32 v28, v29"); e("v_add_f32 v30, v30, v31"); e("v_add_f32 v28, v28, v29")
    e("v_mov_b32 v31, v30"); e("v_mov_b32 v29, v28"); e("v_permlane16_swap_b32 v30, v31"); e("v_permlane16_swap_b32 v28, v29"); e("v_add_f32 v30, v30, v31"); e("v_add_f32 v28, v28, v29")
    e(f"v_add_f32 v{vXR}, v{vXR}, v30"); e(f"v_add_f32 v{vXR+1}, v{vXR+1}, v28")
    e(f"v_cvt_pk_bf16_f32 v28, v{vXR}, v{vXR+1}")
def own_loads(a0, a1, soff): return [f"buffer_load_dword v28, v{a0}, {sr(sW)}, {soff} offen sc1", f"buffer_load_dword v29, v{a1}, {sr(sW)}, {soff} offen sc1"]
def base_store(ob):
    e(f"s_lshl_b32 s{sT0}, s{sJ}, 6"); e(f"s_add_u32 s{sT0}, s{sT0}, s{sLG}"); e(f"s_add_u32 s{sT0}, s{sT0}, {ob}"); e(f"v_lshlrev_b32 v37, 2, v{vL}")
    pack_store16(28, lambda: lstore(f"buffer_store_dwordx4 v[28:31], v37, {sr(sW)}, s{sT0} offen"))
for q in range(3): e(f"v_accvgpr_read_b32 v{2+q}, a{246+q}")
for kk in range(6): e(f"v_mov_b32 v{SPARE+4*kk}, 0")
trs = [f"ds_read_b64_tr_b16 {vr(F+24*t+4*kk+2*h,2)}, v2 offset:{(32*kk+4*h)*64+32*t}" for kk in range(6) for t in range(2) for h in range(2)]
for x in trs[:10]: e(x)
e(f"s_cmp_lg_u32 s{sWV}, 1"); e("s_cbranch_scc1 NOOWN0"); e(f"s_cmp_eq_u32 s{sLay}, 0"); e("s_cbranch_scc1 NOOWN0")
e("v_accvgpr_read_b32 v28, a244"); e("v_accvgpr_read_b32 v29, a245")
late_check("none", own_loads(vC1, vC2, "0"), [28, 29], 30)
owner_add(); base_store(oBA)
lab("NOOWN0")
MLR = [24, 36]
for q in (25, 27, 37, 39): e(f"v_mov_b32 v{q}, 0")
def wfirst():
    for x in trs[10:]: e(x)
    e("v_accvgpr_read_b32 v5, a249"); e(f"v_add_u32 v6, {ACC}, v{vLin}"); e(f"v_lshrrev_b32 v18, 1, v{vLin}")
poll(["s_mov_b32 exec_lo, 0x00ff00ff", "s_mov_b32 exec_hi, 0x00ff00ff"] +
     [f"buffer_load_dwordx4 {vr(SPARE+4*kk)}, v3, {sr(sW)}, s{sLG} offen offset:{512*kk} sc1" for kk in range(6)] + ["s_mov_b32 exec_lo, -1", "s_mov_b32 exec_hi, 0"] +
     [f"buffer_load_dwordx4 {vr(MLR[q])}, v4, {sr(sW)}, s{sLG} offen offset:{16*q} sc1" for q in range(2)] + ["s_mov_b64 exec, -1"],
     [SPARE + 4 * kk for kk in range(6)] + [25, 27, 37, 39], 28, pid=7, first=wfirst)
e("s_waitcnt lgkmcnt(0)")
stamp(8)
M_, U_, L_ = SPARE, SPARE + 1, SPARE + 2
mm_ = [24, 26, 36, 38]
co = [[], [f"v_max3_f32 v{M_}, v24, v26, v36", f"v_max_f32 v{M_}, v{M_}, v38"], [f"v_mov_b32 v{U_}, v{M_}"], [f"v_permlane16_swap_b32 v{M_}, v{U_}", f"v_max_f32 v{M_}, v{M_}, v{U_}"],
      [f"v_sub_f32 v24, v24, v{M_}", f"v_sub_f32 v26, v26, v{M_}"], [f"v_sub_f32 v36, v36, v{M_}", f"v_sub_f32 v38, v38, v{M_}"],
      ["v_exp_f32 v24, v24"], ["v_exp_f32 v26, v26"], ["v_exp_f32 v36, v36"], ["v_exp_f32 v38, v38"],
      [f"v_mul_f32 v{L_}, v24, v25", f"v_fmac_f32 v{L_}, v26, v27"], [f"v_fmac_f32 v{L_}, v36, v37", f"v_fmac_f32 v{L_}, v38, v39"]]
for kk in range(6):
    for t in range(2):
        c = "0" if kk == 0 else vr(28 + 4 * t)
        e(f"v_mfma_f32_16x16x32_bf16 {vr(28+4*t)}, {vr(SPARE+4*kk)}, {vr(F+24*t+4*kk)}, {c}")
        for x in co.pop(0): e(x)
e(f"v_mov_b32 v{U_}, v{L_}"); e(f"s_cmp_lg_u32 s{sWV}, 0"); e(f"v_permlane16_swap_b32 v{L_}, v{U_}"); e(f"v_add_f32 v{L_}, v{L_}, v{U_}"); e(f"v_rcp_f32 v{L_}, v{L_}")
for t in range(2): e(f"v_mul_f32 v{28+4*t}, v24, v{28+4*t}")
for q in range(1, 4):
    for t in range(2): e(f"v_fmac_f32 v{28+4*t}, v{mm_[q]}, v{28+4*t+q}")
e("v_permlane16_swap_b32 v28, v32"); e("v_add_f32 v28, v28, v32"); e(f"v_mul_f32 v28, v28, v{L_}")
e(f"ds_write_b32 v5, v28")
e("s_waitcnt lgkmcnt(0)"); e("s_barrier")
e("s_cbranch_scc1 WNOT0")
for w in range(4): e(f"ds_read_b128 {vr(F+4*w)}, v6 offset:{YACC+256*w}")
e("s_waitcnt lgkmcnt(2)")
for q in range(4): e(f"v_add_f32 v{28+q}, v{F+q}, v{F+4+q}")
e("s_waitcnt lgkmcnt(0)")
for q in range(4): e(f"v_add_f32 v{32+q}, v{F+8+q}, v{F+12+q}")
for q in range(4): e(f"v_add_f32 v{28+q}, v{28+q}, v{32+q}")
pack_pairs()
setexec(0x55)
e(f"buffer_store_dwordx4 v[28:31], v18, {sr(sW)}, s{sYg} offen sc1")
lstore(f"buffer_store_dwordx4 v[28:31], v18, {sr(sW)}, s{sYl} offen")
setexec(FULL)
stamp(9)
e(f"v_lshrrev_b32 v37, 5, v{vL}"); e("v_mul_u32_u24 v37, 2560, v37"); e(f"v_and_b32 v38, 31, v{vL}"); e("v_lshl_add_u32 v37, v38, 2, v37")
for k in range(1, 6): e(f"v_add_u32 v{F+k}, {5120*k}, v37")
e(f"s_lshl_b32 s{sT2}, s{sJ}, 7"); e(f"s_add_u32 s{sT2}, s{sT2}, s{sLG}"); e(f"s_add_u32 s{sT2}, s{sT2}, {oFP}")
e(f"s_add_u32 s96, s{sYg}, {oFG-oYG}"); e(f"s_add_u32 s97, s{sYl}, {oFL-oYL}"); e(f"v_lshlrev_b32 v39, 1, v{vL}")
poll([f"buffer_load_dword v{28+k}, v{37 if k==0 else F+k}, {sr(sW)}, s{sT2} offen sc1" for k in range(6)], range(28, 34), 36, pid=10)
stamp(10)
e("v_add_f32 v28, v28, v29"); e("v_add_f32 v30, v30, v31"); e("v_add_f32 v32, v32, v33"); e("v_add_f32 v28, v28, v30"); e("v_add_f32 v28, v28, v32")
e("v_mov_b32 v29, v28"); e("v_permlane32_swap_b32 v28, v29"); e("v_add_f32 v28, v28, v29")
e("v_mov_b32_dpp v29, v28 row_shl:1 row_mask:0xf bank_mask:0xf"); e("v_cvt_pk_bf16_f32 v28, v28, v29")
for q in (1, 2, 3): e(f"v_mov_b32_dpp v{28+q}, v28 row_shl:{2*q} row_mask:0xf bank_mask:0xf")
setexec(0x01010101)
e(f"buffer_store_dwordx4 v[28:31], v39, {sr(sW)}, s96 offen sc1")
lstore(f"buffer_store_dwordx4 v[28:31], v39, {sr(sW)}, s97 offen")
setexec(FULL)
stamp(11)
e("s_branch NEXT")
flush_near()
lab("WNOT0")
e(f"s_cmp_lg_u32 s{sWV}, 1"); e("s_cbranch_scc1 NEXT")
e(f"v_and_b32 v25, 15, v{vL}"); e(f"v_lshrrev_b32 v26, 4, v{vL}")
rowbase(37, 26, oYG, oYL, None, 38); e("v_add_u32 v39, 4, v26"); rowbase(38, 39, oYG, oYL, None, 28)
e(f"s_lshl_b32 s{sT0}, s{sJ}, 6"); e(f"s_add_u32 s{sT0}, s{sT0}, s{sLay}")
e("v_lshl_add_u32 v37, v25, 2, v37"); e("v_lshl_add_u32 v38, v25, 2, v38")
if GATE and ODLY: e(f"s_sleep {ODLY}")
poll(own_loads(37, 38, f"s{sT0}"), [28, 29], 30, slp=(4 if GATE else 0))
owner_add()
e(f"s_cmp_lg_u32 s{sLay}, 0"); e("s_cbranch_scc1 FINAL")
base_store(oBB)
e("s_branch NEXT")
lab("FINAL")
e(f"s_cmp_lg_u32 s{sG}, 0"); e("s_cbranch_scc1 DONE")
e(f"s_lshl_b32 s{sT0}, s{sJ}, 6"); e(f"v_lshlrev_b32 v37, 2, v{vL}")
e(f"s_add_u32 s{sT2}, s{sT0}, s{sLG}"); e(f"s_add_u32 s{sT2}, s{sT2}, {oFL}")
gate(sT2, 4, 28); setexec(FULL)
poll(own_loads(vC1, vC2, f"s{sLay}"), [28, 29], 30)
owner_add()
setexec(0xffff)
e(f"buffer_store_dword v28, v37, {sr(sO)}, s{sT0} offen")
setexec(FULL)
stamp(12)
e("s_branch DONE") if SPIN else e("s_endpgm")
flush_near()
lab("ROLEF")
e(f"v_and_b32 v25, 15, v{vL}"); e(f"v_lshrrev_b32 v26, 4, v{vL}"); e(f"v_bfe_u32 v27, v{vL}, 2, 2"); e(f"v_and_b32 v36, 3, v{vL}")
FA = SPARE
vCG, vCU = vXR, vXR + 1
sPass = sClr
e(f"s_mov_b32 s{sPass}, 1")
e(f"s_cmp_lg_u32 s{sLay}, 0"); e("s_cbranch_scc1 FW")
e(f"s_mov_b32 s{sPass}, 0")
lab("FW")
e(f"s_mul_i32 s{sT0}, s{sWV}, 5120"); e(f"s_add_u32 s{sT0}, s{sT0}, {W1}")
e("v_lshl_add_u32 v37, v26, 3, v27"); e("v_lshlrev_b32 v37, 5, v37"); e("v_lshl_add_u32 v37, v36, 3, v37"); e(f"v_add_u32 v37, s{sT0}, v37")
for t in range(2):
    for kk in range(5):
        for h in range(2): e(f"ds_read_b64_tr_b16 {vr(F+20*t+4*kk+2*h,2)}, v37 offset:{(32*kk+4*h)*32+20480*t}")
e(f"s_mul_i32 s{sT0}, s{sWV}, 320"); e(f"s_add_u32 s{sT0}, s{sT0}, {W2}")
e(f"v_lshrrev_b32 v80, 2, v{vL}"); e("v_mul_u32_u24 v80, 1280, v80"); e("v_lshl_add_u32 v80, v36, 3, v80"); e(f"v_add_u32 v80, s{sT0}, v80")
e(f"s_lshl_b32 s{sT2}, s{sWV}, 2"); e(f"s_add_u32 s{sT2}, s{sT2}, {ACC+FACC}"); e(f"v_add_u32 v81, s{sT2}, v{vLin}")
e("v_lshl_add_u32 v82, v26, 2, v36"); e("v_lshlrev_b32 v82, 4, v82"); e(f"v_add_u32 v82, {ACC+FACC}, v82")
e("v_cmp_eq_u32 vcc, 12, v25")
e("v_mov_b32 v38, 13"); e("v_cndmask_b32 v83, v25, v38, vcc"); e("v_lshlrev_b32 v83, 4, v83"); e(f"v_add_u32 v83, {ACC+FACC+512}, v83")
e(f"v_mov_b32 v85, {ACC+FACC+512+192}")
e("v_lshlrev_b32 v84, 6, v25"); e("v_lshl_add_u32 v84, v26, 4, v84")
e("v_mov_b32 v38, 0x3f803f80"); e(f"v_cndmask_b32 v{FA}, 0, v38, vcc")
for q in range(1, 20): e(f"v_mov_b32 v{FA+q}, v{FA}")
e(f"s_mul_i32 s{sT0}, s{sWV}, {SCRW}")
e(f"v_mul_u32_u24 v6, 336, v25"); e("v_lshl_add_u32 v6, v26, 4, v6"); e(f"v_add_u32 v6, s{sT0}, v6")
e(f"v_mul_u32_u24 v37, 52, v{vL}"); e("v_lshrrev_b32 v37, 10, v37")
e(f"v_lshl_add_u32 v87, v37, 4, v{vLin}"); e(f"v_add_u32 v87, s{sT0}, v87")
e(f"v_mul_u32_u24 v27, 320, v37"); e(f"v_sub_u32 v27, v{vLin}, v27")
assert all((c * 52) >> 10 == c // 20 for c in range(64))
FG = [86, 18, 20]
for i in range(3):
    rowbase(FG[i], 37, oYG, oYL, oBA, 38); e(f"v_add_u32 v{FG[i]}, v{FG[i]}, v27")
    if i < 2: e("v_add_u32 v37, 3, v37")
e(f"s_mul_i32 s{sT0}, s{sWV}, 320"); e(f"s_add_u32 s{sT0}, s{sT0}, s{sLay}")
e(f"s_sub_u32 s{sT1}, s{sJ}, 20"); e(f"s_mul_i32 s{sT1}, s{sT1}, 2560"); e(f"s_mul_i32 s{sT3}, s{sWV}, 640"); e(f"s_add_u32 s{sT1}, s{sT1}, s{sT3}")
e(f"s_add_u32 s{sT1}, s{sT1}, s{sLG}"); e(f"s_add_u32 s{sT1}, s{sT1}, {oFP}")
e("s_waitcnt lgkmcnt(0)")
e(f"s_cmp_eq_u32 s{sPass}, 0"); e("s_cbranch_scc1 FW2")
def t_(): lab("FW2"); w2dma(); e("s_branch FMM")
tail.append(t_)
lab("FPOLL")
W2R = [f"a[{240+2*t}:{241+2*t}]" for t in range(6)] + ["v[108:109]", "v[110:111]", "v[2:3]", "v[4:5]"]
for t in range(10): e(f"ds_read_b64_tr_b16 {W2R[t]}, v80 offset:{32*t}")
e("s_waitcnt lgkmcnt(0)")
e(f"s_mul_i32 s{sT2}, s{sWV}, 320"); e(f"s_add_u32 s{sT2}, s{sT2}, s{sLG}"); e(f"s_add_u32 s{sT2}, s{sT2}, {oYL}")
gate(sT2, 20, 36)
setexec((1 << 60) - 1)
poll([f"buffer_load_dwordx4 {vr(T+4*i)}, v{FG[i]}, {sr(sW)}, s{sT0} offen sc1" for i in range(3)], [T, T + 4, T + 8], 36, pid=7, slp=int(OPT.get("slpy", 0)))
for i in range(3): e(f"ds_write_b128 v87, {vr(T+4*i)} offset:{3*336*i}")
setexec(ROWS9)
for kk in range(5): e(f"ds_read_b128 {vr(FA+4*kk)}, v6 offset:{64*kk}")
setexec(FULL)
stamp(8)
lab("FMM")
for kk in range(5):
    e(f"s_waitcnt lgkmcnt({4-kk})")
    for t in range(3):
        c = "0" if kk == 0 else vr(T + 4 * t)
        bb = vr(F + 20 * t + 4 * kk) if t < 2 else vr(FA + 4 * kk)
        e(f"v_mfma_f32_16x16x32_bf16 {vr(T+4*t)}, {vr(FA+4*kk)}, {bb}, {c}")
for t in range(3): e(f"v_add_f32 v{T+4*t}, v{T+4*t}, v{T+4*t+1}"); e(f"v_add_f32 v{T+4*t+2}, v{T+4*t+2}, v{T+4*t+3}")
for t in range(3): e(f"v_add_f32 v{T+4*t}, v{T+4*t}, v{T+4*t+2}")
xreduce(T, T + 4, T + 8, T + 1)
e(f"ds_write_b32 v81, v{T}")
e(f"s_cmp_eq_u32 s{sPass}, 0")
e("s_waitcnt lgkmcnt(0)"); e("s_barrier")
e(f"ds_read_b128 {vr(T)}, v83"); e(f"ds_read_b128 {vr(T+4)}, v85"); e(f"ds_read_b128 {vr(T+8)}, v82"); e(f"ds_read_b128 {vr(T+12)}, v82 offset:256")
e("s_cbranch_scc1 FCS")
def sum4(b): e(f"v_add_f32 v{b}, v{b}, v{b+1}"); e(f"v_add_f32 v{b+2}, v{b+2}, v{b+3}"); e(f"v_add_f32 v{b}, v{b}, v{b+2}")
d = lambda sft: f"v_add_f32_dpp v{T}, v{T}, v{T} row_ror:{sft} row_mask:0xf bank_mask:0xf"
e("s_waitcnt lgkmcnt(3)"); sum4(T); e("s_waitcnt lgkmcnt(2)")
e(f"v_add_f32 v{T+4}, v{T+4}, v{T+5}"); e(d(8)); e(f"v_add_f32 v{T+6}, v{T+6}, v{T+7}"); e(f"v_add_f32 v{T+4}, v{T+4}, v{T+6}"); e(d(4))
e("s_waitcnt lgkmcnt(0)")
e(f"v_subrev_f32 v{T+5}, 0x44200000, v{T+4}"); e(d(2))
e(f"v_add_f32 v{T+8}, v{T+8}, v{T+9}"); e(f"v_mul_f32 v{T+6}, 0x3acccccd, v{T+5}"); e(d(1))
e(f"v_add_f32 v{T+10}, v{T+10}, v{T+11}"); e(f"v_sub_f32 v{T}, v{T}, v{T+5}")
e(f"v_add_f32 v{T+8}, v{T+8}, v{T+10}"); e(f"v_mul_f32 v{T}, 0x3acccccd, v{T}")
e(f"v_add_f32 v{T+12}, v{T+12}, v{T+13}"); e(f"v_fma_f32 v{T}, -v{T+6}, v{T+6}, v{T}")
e(f"v_add_f32 v{T+14}, v{T+14}, v{T+15}"); e(f"v_max_f32 v{T}, 0, v{T}")
e(f"v_fma_f32 v{T+8}, -v{T+4}, v{vCG}, v{T+8}"); e(f"v_add_f32 v{T}, 0x3727c5ac, v{T}")
e(f"v_add_f32 v{T+12}, v{T+12}, v{T+14}"); e(f"v_rsq_f32 v{T}, v{T}")
e(f"v_fma_f32 v{T+12}, -v{T+4}, v{vCU}, v{T+12}"); e(f"v_mul_f32 v{T+9}, 0xbfb8aa3b, v{T+8}")
e(f"v_mul_f32 v{T+9}, v{T+9}, v{T}"); e(f"v_mul_f32 v{T+12}, v{T+12}, v{T+8}"); e(f"v_exp_f32 v{T+9}, v{T+9}")
e(f"v_mul_f32 v{T+12}, v{T+12}, v{T}"); e(f"v_add_f32 v{T+9}, 1.0, v{T+9}"); e(f"v_mul_f32 v{T+12}, v{T+12}, v{T}"); e(f"v_rcp_f32 v{T+9}, v{T+9}")
e(f"v_mul_f32 v{T+12}, v{T+12}, v{T+9}")
for q in range(4): e(f"v_mov_b32_dpp v{T+4+q}, v{T+12} quad_perm:[{q},{q},{q},{q}] row_mask:0xf bank_mask:0xf")
e(f"v_cvt_pk_bf16_f32 v{T+4}, v{T+4}, v{T+5}"); e(f"v_cvt_pk_bf16_f32 v{T+5}, v{T+6}, v{T+7}")
HB = 60
def hm(t): return [f"v_cndmask_b32 v{HB+2*t+q}, 0, v{T+4+q}, {sp(sMf+2*t)}" for q in range(2)]
W2Q = ["a[240:243]", "a[244:247]", "a[248:251]", "v[108:111]", "v[2:5]"]
for x in hm(0) + hm(1) + hm(2): e(x)
for t in range(5):
    c = "0" if t == 0 else vr(T)
    e(f"v_mfma_f32_16x16x32_bf16 {vr(T)}, {W2Q[t]}, {vr(HB+4*t)}, {c}")
    for k in (2 * t + 3, 2 * t + 4):
        if k < 10:
            for x in hm(k): e(x)
setexec(0x03FF03FF03FF03FF)
lstore(f"buffer_store_dwordx4 {vr(T)}, v84, {sr(sW)}, s{sT1} offen")
setexec(FULL)
stamp(9)
def t_():
    lab("FCS")
    e("s_waitcnt lgkmcnt(0)"); sum4(T + 8); sum4(T + 12)
    e(f"v_mul_f32 v{vCG}, 0x3acccccd, v{T+8}"); e(f"v_mul_f32 v{vCU}, 0x3acccccd, v{T+12}")
    e(f"s_mov_b32 s{sPass}, 1"); e("s_waitcnt vmcnt(0)"); e("s_barrier"); stamp(13); e("s_branch FPOLL")
tail.append(t_)
lab("NEXT")
e(f"s_cmp_lg_u32 s{sLay}, 0"); e("s_cbranch_scc1 DONE")
e(f"s_mov_b32 s{sLay}, {LS}"); e(f"s_add_u32 s{sLG}, s{sLG}, {LS}"); e(f"s_add_u32 s{sYg}, s{sYg}, {LS}"); e(f"s_add_u32 s{sYl}, s{sYl}, {LS}")
e("s_branch LOOP")
flush_near()
lab("DONE")
if SPIN:
    e("v_accvgpr_read_b32 v38, a253"); e("s_nop 1"); e("v_readfirstlane_b32 s96, v38")
    lab("SPINL"); e("s_memrealtime s[98:99]"); e("s_waitcnt lgkmcnt(0)"); e("s_sub_u32 s98, s98, s96"); e(f"s_cmp_lt_u32 s98, {SPIN*100}"); e("s_cbranch_scc1 SPINL")
e("s_endpgm")
i = 0
while i < len(tail): tail[i](); flush_near(); i += 1
lab("CODE_END")
e("s_endpgm")

body = A.pad()
hdr = [f"; @launch grid=(256,1,1) block=(256,1,1) lds={LDSSZ}", '.amdgcn_target "amdgcn-amd-amdhsa--gfx950"', ".text",
       f".globl {NAME}_kernel", ".p2align 8", f".type {NAME}_kernel,@function", f"{NAME}_kernel:"]
ftr = ['.section .rodata,"a"', ".p2align 6", f".amdhsa_kernel {NAME}_kernel", "  .amdhsa_next_free_vgpr 512", "  .amdhsa_next_free_sgpr 102",
       "  .amdhsa_accum_offset 256", "  .amdhsa_group_segment_fixed_size 0", "  .amdhsa_kernarg_size 96", "  .amdhsa_user_sgpr_count 2",
       "  .amdhsa_user_sgpr_kernarg_segment_ptr 1", "  .amdhsa_system_sgpr_workgroup_id_x 1", ".end_amdhsa_kernel"]
src = "\n".join(hdr + body + ftr) + "\n"
import re
for m in re.finditer(r"buffer_\S+ .*offset:(\d+)", src): assert int(m.group(1)) < 4096, m.group(0)
for m in re.finditer(r"ds_\S+ .*offset:(\d+)", src): assert int(m.group(1)) < 65536, m.group(0)
open(OUT, "w").write(src)
```

```python
import os, sys
sys.path.insert(0, os.path.dirname(os.path.abspath(__file__)))
from asmlib import Asm
NAME = "interleave_layers__sliding_block_cached__glu_gated_swiglu__decode"
OPT = dict(a.split("=") for a in sys.argv[2:])
OUT = sys.argv[1] if len(sys.argv) > 1 else f"/code/{NAME}.s"
STAMP = int(OPT.get("stamp", 0))
NT = OPT.get("nt", "nt").replace("x", "")
NTW = OPT.get("ntw", "nt").replace("x", "")
FORCESLOW = int(OPT.get("slow", 0))
SPIN = int(OPT.get("spin", 0))
A = Asm(); e = A.e; lab = A.lab
tail = []

RS = 416; SCRW = 16 * RS
SCR = 0; WQ = 4 * SCRW; ROLE = WQ + 30720
WO = ROLE; W1 = ROLE; W3 = ROLE + 20480; W2 = ROLE + 40960
MISC = ROLE + 61440; QB = MISC; ACC = MISC + 512
OACC = 0; YACC = 3072; FACC = 4096
PT = ACC + 5120; ML4 = PT + 1024
FLG = ML4 + 64
LDSSZ = FLG + 64
FDMA = OPT.get("fdma", "late")
OMASK = int(OPT.get("omask", 1))
WDMA = OPT.get("wdma", "mid")
PF = OPT.get("pf", "ow")
NTP = OPT.get("ntp", "x").replace("x", "")
NTR = OPT.get("ntr", "x").replace("x", "")
GB = 81920; oQ = 0; oO = 32768; oML = 45056; oFP = 46080; oYL = 76800; oFL = 78080; oBA = 79360; oBB = 80640
GOFF = 8 * GB; oYG = GOFF; oFG = GOFF + 10240; LS = 0xA8000
OOB = 0x7FFFFFF0
sK, sV, sW, sWQ, sRA, sRB, sRC, sX, sO = 8, 12, 16, 20, 24, 28, 32, 36, 40
sG, sJ, sHH, sS, sWV, sKV, sLay, sFast, sCnt = 68, 69, 70, 71, 72, 73, 74, 75, 76
sT0, sT1, sT2 = 77, 78, 79
sLG = 3
sClr = 4
sXcc = 5
sTL = 6
sT3 = 7
sYg, sYl = 80, 81
sMf = 44
def sr(b): return f"s[{b}:{b+3}]"
def sp(b): return f"s[{b}:{b+1}]"
def vr(b, n=4): return f"v[{b}:{b+n-1}]" if n > 1 else f"v{b}"
def ar(b, n=4): return f"a[{b}:{b+n-1}]"
def srd(d, lo, nbytes):
    e(f"s_mov_b32 s{d}, s{lo}"); e(f"s_and_b32 s{d+1}, s{lo+1}, 0xffff")
    e(f"s_mov_b32 s{d+2}, {nbytes}"); e(f"s_mov_b32 s{d+3}, 0x20000")
def setexec(mask):
    lo, hi = mask & 0xffffffff, mask >> 32
    if mask == (1 << 64) - 1: e("s_mov_b64 exec, -1")
    elif hi == 0 and lo <= 64: e(f"s_mov_b64 exec, {lo}")
    else: e(f"s_mov_b32 exec_lo, {lo:#x}"); e(f"s_mov_b32 exec_hi, {hi:#x}")
FULL = (1 << 64) - 1
ROWS9 = 0x01FF01FF01FF01FF
vL, vLin, vWr, vKrd, vVrd, vCS, vAq, vAq16, vQst, vQld, vQBw, vQBr, vIdx, vAcc, vTq1, vTq2, vSC, vPw = 0, 1, 2, 5, 6, 7, 8, 9, 10, 11, 12, 13, 14, 15, 16, 17, 18, 19
vC1, vC2, vXR = 20, 21, 22
T = 24
F = 40
SPARE = 88
def vblock(b):
    if b < 2: return ("a", 192 + 24 * b)
    if b == 8: return ("v", SPARE)
    return ("v", 112 + 24 * (b - 2))
def rg(f, b, n): return f"{f}[{b}:{b+n-1}]"

uid = [0]
def nid(): uid[0] += 1; return uid[0]
stamps = [0]
SPINAT = int(OPT.get("spinat", -1))
def stamp(i, val=None):
    if SPIN and val is None and SPINAT % 16 == i:
        k = nid()
        e(f"s_cmp_lg_u32 s{sLay}, {LS*(SPINAT//16)}"); e(f"s_cbranch_scc1 NOSP{k}")
        e("s_memrealtime s[100:101]"); e("s_waitcnt lgkmcnt(0)"); e("v_accvgpr_write_b32 a253, s100"); lab(f"NOSP{k}")
    if not STAMP: return
    if STAMP == 2 and val is None and i not in (0, 14): return
    if STAMP == 1 and (val is not None or i == 14): return
    e("s_memrealtime s[100:101]"); e("v_accvgpr_write_b32 a254, v38"); e("v_accvgpr_write_b32 a255, v39")
    e(f"s_lshl_b32 s98, s2, 2"); e(f"s_add_u32 s98, s98, s{sWV}"); e("s_lshl_b32 s98, s98, 7")
    e(f"s_cmp_eq_u32 s{sLay}, 0"); e(f"s_cselect_b32 s99, 0, 64"); e(f"s_add_u32 s99, s99, {4*i}"); e("s_add_u32 s98, s98, s99"); e("s_add_u32 s98, s98, 0x40000000")
    e("s_waitcnt lgkmcnt(0)"); e(f"v_mov_b32 v38, {val or 's100'}"); e("v_mov_b32 v39, 0")
    e("s_mov_b64 s[100:101], exec"); e("s_mov_b64 exec, 1")
    A.vmem(f"buffer_store_dword v38, v39, {sr(sW)}, s98 offen", "stamp")
    e("s_mov_b64 exec, s[100:101]"); e("s_nop 1"); e("v_accvgpr_read_b32 v38, a254"); e("v_accvgpr_read_b32 v39, a255")
def lstore(instr, counted=None):
    k = nid()
    e(f"s_cmp_eq_u32 s{sFast}, 1"); e(f"s_cbranch_scc0 SLOW{k}")
    if counted: A.vmem(instr, counted)
    else: e(instr)
    lab(f"BACK{k}")
    def t(): lab(f"SLOW{k}"); e(instr + " sc1"); e(f"s_branch BACK{k}")
    tail.append(t)
def check(regs_, tmp):
    r = list(regs_)
    if len(r) == 1: e(f"v_cmp_eq_u32 vcc, -1, v{r[0]}"); return
    cur = r.pop(0)
    while r:
        if len(r) >= 2: e(f"v_max3_u32 v{tmp}, v{cur}, v{r[0]}, v{r[1]}"); r = r[2:]
        else: e(f"v_max_u32 v{tmp}, v{cur}, v{r[0]}"); r = r[1:]
        cur = tmp
    e(f"v_cmp_eq_u32 vcc, -1, v{tmp}")
LIMIT = 0x8000
def poll(loads, regs_, tmp, pid=None, slp=0, first=None):
    k = nid()
    if pid is not None: stamp(pid, "s100")
    e(f"s_mov_b32 s{sCnt}, 1")
    if first:
        for l in loads: e(l)
        first(); e(f"s_branch POLLW{k}")
    lab(f"POLL{k}")
    for l in loads: e(l)
    lab(f"POLLW{k}")
    e("s_waitcnt vmcnt(0)")
    check(regs_, tmp)
    e(f"s_cbranch_vccnz AGAIN{k}")
    lab(f"POLLX{k}")
    def t():
        lab(f"AGAIN{k}")
        if slp: e(f"s_sleep {slp}")
        e(f"s_add_u32 s{sCnt}, s{sCnt}, 1"); e(f"s_cmp_lt_u32 s{sCnt}, {LIMIT}"); e(f"s_cbranch_scc1 POLL{k}"); e(f"s_branch POLLX{k}")
    near.append(t)
    if pid is not None: stamp(pid + 1, "s100"); stamp(pid + 2, f"s{sCnt}")
    A.drained()
near = []
def flush_near():
    while near: near.pop(0)()
GATE = int(OPT.get("gate", 1)); GDLY = int(OPT.get("gdly", 0)); ODLY = int(OPT.get("odly", 16))
def gate(sreg, nl, tmp):
    if not GATE: return
    setexec((1 << nl) - 1)
    poll([f"buffer_load_dword v{tmp}, v{vLin}, {sr(sW)}, s{sreg} offen sc1"], [tmp], tmp)
    if GDLY: e(f"s_sleep {GDLY}")
def late_check(tag, loads, regs_, tmp, pre=None, post=None):
    k = nid()
    A.wait(tag)
    check(regs_, tmp)
    e(f"s_cbranch_vccnz RETRY{k}")
    lab(f"OK{k}")
    def t():
        lab(f"RETRY{k}")
        if pre: pre()
        save = A.vm; poll(loads, regs_, tmp); A.vm = save
        if post: post()
        e(f"s_branch OK{k}")
    tail.append(t)

sTO = 82
sPo, sPw = 90, 91
vLin2 = vXR + 1
e("s_load_dwordx16 s[44:59], s[0:1], 0"); e("s_load_dwordx8 s[60:67], s[0:1], 64")
e("s_cmp_ge_u32 s2, 256"); e("s_cbranch_scc1 CODE_END")
if STAMP or SPIN: e("s_memrealtime s[96:97]")
e("v_lshrrev_b32 v2, 6, v0"); e("v_and_b32 v24, 63, v0"); e(f"v_readfirstlane_b32 s{sWV}, v2")
e(f"s_and_b32 s{sG}, s2, 7"); e(f"s_lshr_b32 s{sJ}, s2, 3"); e(f"s_lshr_b32 s{sHH}, s{sJ}, 3"); e(f"s_and_b32 s{sS}, s{sJ}, 7")
e(f"v_lshlrev_b32 v{vLin}, 4, v24")
e(f"s_lshl_b32 s{sT0}, s{sHH}, 3"); e(f"s_add_u32 s{sT0}, s{sT0}, s{sG}")
e(f"s_mul_i32 s{sKV}, s{sT0}, 12582912"); e(f"s_lshl_b32 s{sT1}, s{sS}, 2"); e(f"s_add_u32 s{sT1}, s{sT1}, s{sWV}")
e(f"s_mul_i32 s{sT1}, s{sT1}, 6144"); e(f"s_add_u32 s{sKV}, s{sKV}, s{sT1}"); e(f"s_add_u32 s{sKV}, s{sKV}, 11010048")
e(f"v_add_u32 v{vLin2}, 4096, v{vLin}"); e(f"s_mov_b32 s{sK+2}, 402653184"); e(f"s_mov_b32 s{sK+3}, 0x20000")
e("s_getpc_b64 s[100:101]"); lab("PCREF")
e(f"s_sub_u32 s100, s100, PCREF-{NAME}_kernel"); e("s_subb_u32 s101, s101, 0")
e(f"s_lshl_b32 s{sT1}, s{sS}, 12"); e(f"v_lshl_add_u32 v25, v0, 4, s{sT1}")
e(f"v_cmp_gt_u32 vcc, CODE_END-{NAME}_kernel-16, v25"); e("s_and_saveexec_b64 s[98:99], vcc"); e("s_cbranch_execz NOCPF")
e(f"global_load_dwordx4 a[240:243], v25, s[100:101]")
lab("NOCPF"); e("s_mov_b64 exec, -1")
e("s_waitcnt lgkmcnt(0)")
e(f"s_mov_b32 s{sK}, s46"); e(f"s_and_b32 s{sK+1}, s47, 0xffff")
if SPIN: e("v_mov_b32 v38, s96"); e("v_accvgpr_write_b32 a253, v38")
RW = int(OPT.get("rw", 16)); RF = (320 - 20 * RW) // 12
assert 20 * RW + 12 * RF == 320
NPW = -(-max(RW, RF) * 24 // 64)
pend = []
vFl = 110
def signal(k):
    setexec(1); e(f"ds_add_u32 v{vFl}, v{vFl+1} offset:{4*k}"); setexec(FULL)
def arrive_all(k, tmp):
    n = nid()
    lab(f"AW{n}"); e(f"ds_read_b32 v{tmp}, v{vFl} offset:{4*k}"); e("s_waitcnt lgkmcnt(0)"); e(f"v_cmp_gt_u32 vcc, 4, v{tmp}"); e(f"s_cbranch_vccnz AW{n}")
def q_tile(srdn, t, f, base, tag):
    so = sKV if t == 0 else sTO + t
    for i in range(6):
        pend.append((f"buffer_load_dwordx4 {rg(f, base+4*i, 4)}, v{vLin if i < 4 else vLin2}, {sr(srdn)}, s{so} offen offset:{1024*(i%4)} {NT}", tag))
def qK(t): q_tile(sK, t, "a", 24 * t, f"K{t}")
def qV(t): f, b = vblock(t + 1); q_tile(sV, t, f, b, f"V{t}")
def q_pfo():
    for n in range(9): pend.append((f"buffer_load_dwordx4 a[240:243], v{[vLin, vLin, vLin2, 108, 109][n//2]}, {sr(sWQ)}, s{sPo} offen offset:{1024*(n%4)} {NTP}", "pfo"))
def q_pfw():
    for n in range(NPW): pend.append((f"buffer_load_dwordx4 a[240:243], v{101+n}, {sr(sX)}, s{sPw} offen {NTP}", "pfw"))
nfill = [0]; BARN = int(OPT.get("barn", 6)); THR = int(OPT.get("thr", 0)); THRE = int(OPT.get("thre", 0))
hold = {"V7", "pfw", "pfo"}; LA = int(OPT.get("la", 12))
def ahead(tag):
    while tag in A.vm and pend and pend[0][1] not in hold and len(A.vm) - 1 - max(i for i, x in enumerate(A.vm) if x == tag) < LA: fill()
def fill(n=1):
    for _ in range(n):
        if pend and not (pend[0][1] in hold):
            if THR and nfill[0] >= THR and len(pend) > THRE: e(f"s_waitcnt vmcnt({THR-1})")
            x, tag = pend.pop(0); A.vmem(x, tag); nfill[0] += 1
            if BARN and nfill[0] > 12 and nfill[0] % BARN == 0 and len(pend) >= 3: e("s_barrier")
BARS = OPT.get("bar", "").split(",")
def upto(tag):
    while any(t == tag for _, t in pend): fill()
    if tag in BARS or "every" in BARS and tag not in ("K0", "K1", "V7"): e("s_barrier")
def Kld(t): upto(f"K{t}")
def Vld(t): upto(f"V{t}")
for it in OPT.get("order", "K0 K1 K2 K3 w o K4 K5 K6 K7 V0 V1 V2 V3 V4 V5 V6 V7").replace(",", " ").split():
    if it == "w": q_pfw()
    elif it == "o": q_pfo()
    elif it[0] == "K": qK(int(it[1]))
    else: qV(int(it[1]))
Kld(0)
if STAMP == 1: e("s_memrealtime s[94:95]")
e(f"v_mov_b32 v{vFl}, {FLG}"); e(f"v_mov_b32 v{vFl+1}, 1")
for q in range(4): e(f"v_mov_b32 v{28+q}, 0")
e(f"ds_write_b128 v{vFl}, v[28:31]"); e(f"s_add_u32 s{sTO+1}, s{sKV}, 196608")
fill(2)
e(f"s_mul_i32 s{sT2}, s{sT0}, 384")
e(f"s_mov_b32 s{sLay}, 0"); e(f"s_mul_i32 s{sLG}, s{sG}, {GB}"); e(f"s_mov_b32 s{sFast}, 0")
e(f"v_mov_b32 v32, -1"); e(f"v_mov_b32 v33, -1"); e(f"v_mov_b32 v34, -1"); e(f"v_mov_b32 v35, -1")
e(f"s_mul_i32 s{sT0}, s{sJ}, 2560"); e(f"s_add_u32 s{sT0}, s{sT0}, s{sLG}")
e(f"v_lshl_add_u32 v{vC1}, v0, 4, s{sT0}"); e("v_cmp_le_u32 vcc, 160, v0"); e(f"v_add_u32 v25, {LS-2560}, v{vC1}"); e(f"v_cndmask_b32 v{vC1}, v{vC1}, v25, vcc")
e(f"s_add_u32 s{sT0}, s{sT0}, {LS+16*96}")
e(f"s_lshl_b32 s{sT1}, s{sJ}, 10"); e(f"s_add_u32 s{sT1}, s{sT1}, s{sLG}"); e(f"s_add_u32 s{sT1}, s{sT1}, {2*LS}")
e(f"s_cmp_eq_u32 s{sWV}, 0"); e(f"s_cselect_b32 s{sClr}, s{sT0}, s{sT1}")
e(f"s_mul_i32 s{sT0}, s2, 80"); e(f"s_add_u32 s{sT0}, s{sT0}, {GOFF}")
e(f"s_cmp_ge_u32 s{sWV}, 2"); e(f"s_cselect_b32 s{sClr}, s{sT0}, s{sClr}")
e(f"v_add_u32 v25, {LS-80}, v{vLin}"); e("v_cmp_le_u32 vcc, 133, v0"); e(f"v_cndmask_b32 v{vC2}, v{vLin}, v25, vcc")
e(f"v_mov_b32 v25, {OOB-0x10000000}"); e("v_cmp_le_u32 vcc, 138, v0"); e(f"v_cndmask_b32 v{vC2}, v{vC2}, v25, vcc")
e("s_waitcnt lgkmcnt(0)"); e("s_barrier")
srd(sW, 66, 1610612736)
A.vmem(f"buffer_store_dwordx4 v[32:35], v{vC1}, {sr(sW)}, 0 offen sc1", "clr")
A.vmem(f"buffer_store_dwordx4 v[32:35], v{vC2}, {sr(sW)}, s{sClr} offen sc1", "clr")
Kld(1)
srd(sV, 48, 402653184); srd(sWQ, 50, 7864320); srd(sX, 44, 1280); srd(sO, 62, 1280)
srd(sRB, 58, 1966080); srd(sRC, 60, 1966080)
e(f"s_cmp_lt_u32 s{sJ}, 20"); e(f"s_cselect_b32 s{sRA}, s52, s56"); e(f"s_cselect_b32 s{sRA+1}, s53, s57"); e(f"s_cselect_b32 s{sRA+2}, s{sWQ+2}, s{sRB+2}")
e(f"s_and_b32 s{sRA+1}, s{sRA+1}, 0xffff"); e(f"s_mov_b32 s{sRA+3}, 0x20000")
TLBW = int(OPT.get("tlbw", 0))
if TLBW:
    e("v_mul_u32_u24 v26, 196608, v24"); e("v_lshlrev_b32 v27, 17, v24")
    if TLBW == 2: e(f"s_cmp_lg_u32 s{sWV}, 3"); e("s_cbranch_scc1 NOTLB")
    setexec(0xff)
    e(f"buffer_load_dword a243, v26, {sr(sV)}, s{sKV} offen nt"); e(f"buffer_load_dword a243, v26, {sr(sK)}, s{sKV} offen nt")
    setexec(0x0101010101010101)
    e(f"global_load_dword a243, v27, s[52:53]"); e(f"buffer_load_dword a243, v27, {sr(sWQ)}, 0 offen")
    setexec(0x0101)
    e(f"global_load_dword a243, v27, s[56:57]"); e(f"buffer_load_dword a243, v27, {sr(sRB)}, 0 offen"); e(f"buffer_load_dword a243, v27, {sr(sRC)}, 0 offen")
    setexec(1)
    e(f"buffer_load_dword a243, v27, {sr(sO)}, 0 offen"); e(f"global_load_dword a243, v27, s[64:65]")
    setexec(FULL)
    lab("NOTLB")
if STAMP:
    e(f"s_lshl_b32 s98, s2, 2"); e(f"s_add_u32 s98, s98, s{sWV}"); e("s_lshl_b32 s98, s98, 7"); e("s_add_u32 s98, s98, 0x40000000")
    e("v_mov_b32 v38, s96"); e("v_mov_b32 v39, 0"); e("s_mov_b64 exec, 1")
    A.vmem(f"buffer_store_dword v38, v39, {sr(sW)}, s98 offen", "stamp")
    if STAMP == 1: e("s_waitcnt lgkmcnt(0)"); e("v_mov_b32 v37, s94"); A.vmem(f"buffer_store_dword v37, v39, {sr(sW)}, s98 offen offset:56", "stamp")
    e("s_mov_b64 exec, -1")
for t in range(2, 8): e(f"s_add_u32 s{sTO+t}, s{sTO+t-1}, 196608")
e(f"v_mov_b32 v{vL}, v24")
e(f"s_mul_i32 s{sT0}, s{sWV}, {SCRW}")
for r in range(3):
    e(f"v_add_u32 v25, {64*r}, v{vL}"); e("v_mul_u32_u24 v26, 171, v25"); e("v_lshrrev_b32 v26, 12, v26")
    e("v_mul_u32_u24 v27, 24, v26"); e("v_sub_u32 v27, v25, v27"); e("v_lshlrev_b32 v27, 4, v27")
    e(f"v_mul_u32_u24 v25, {RS}, v26"); e(f"v_add3_u32 v{vWr+r}, v25, v27, s{sT0}")
    e(f"v_mul_u32_u24 v25, 12288, v26"); e(f"v_add_u32 v{F+r}, v25, v27")
    e(f"v_mul_u32_u24 v25, 3072, v26"); e(f"v_add_u32 v{101+r}, v25, v27")
assert all((c * 171) >> 12 == c // 24 for c in range(192))
e(f"s_mul_i32 s{sT1}, s{sS}, {80*12288}"); e(f"s_add_u32 s{sT2}, s{sT2}, s{sT1}")
e(f"s_mul_i32 s{sT1}, s{sWV}, {8*12288}"); e(f"s_add_u32 s{sT2}, s{sT2}, s{sT1}")
e(f"s_mul_i32 s{sT1}, s{sWV}, 3072"); e(f"s_add_u32 s{sT1}, s{sT1}, {WQ}")
for gi in range(3):
    if gi == 2: e(f"s_cmp_ge_u32 s{sWV}, 2"); e("s_cbranch_scc1 NOWQ3")
    for r in range(3):
        e(f"s_add_u32 m0, s{sT1}, {gi*4*3072 + r*1024}")
        A.vmem(f"buffer_load_dwordx4 v{F+r}, {sr(sWQ)}, s{sT2} offen {NTW} lds", "wq", counted=(gi < 2))
    if gi < 2: e(f"s_add_u32 s{sT2}, s{sT2}, {32*12288}")
lab("NOWQ3")
e(f"v_and_b32 v25, 15, v{vL}"); e(f"v_lshrrev_b32 v26, 4, v{vL}")
e(f"v_bfe_u32 v27, v{vL}, 2, 2"); e(f"v_and_b32 v28, 3, v{vL}")
e("v_cmp_eq_u32 vcc, 12, v25"); e("v_mov_b32 v36, 0x3f803f80"); e(f"v_cndmask_b32 v70, 0, v36, vcc")
for q in range(1, 10): e(f"v_mov_b32 v{70+q}, v70")
for q in range(10): e(f"v_mov_b32 v{SPARE+q}, v70")
e(f"s_mul_i32 s{sT1}, s{sS}, 160")
e(f"v_lshlrev_b32 v36, 4, v26"); e(f"v_lshlrev_b32 v37, 3, v26")
setexec(0x0100010001000100)
A.vmem(f"buffer_load_dwordx4 {vr(SPARE)}, v36, {sr(sX)}, s{sT1} offen", "x")
A.vmem(f"buffer_load_dwordx4 {vr(SPARE+4)}, v36, {sr(sX)}, s{sT1} offen offset:64", "x")
A.vmem(f"buffer_load_dwordx2 {vr(SPARE+8,2)}, v37, {sr(sX)}, s{sT1} offen offset:128", "x")
setexec(FULL)
e(f"s_lshl_b32 s{sT2}, s{sJ}, 6"); e(f"v_lshlrev_b32 v38, 2, v25")
A.vmem(f"buffer_load_dword v{vXR}, v38, {sr(sX)}, s{sT2} offen", "x")
srd(sWQ, 52, 7864320)
e(f"s_cmp_lt_u32 s{sWV}, 2"); e(f"s_cselect_b32 s{sX}, s56, s58"); e(f"s_cselect_b32 s{sX+1}, s57, s59"); e(f"s_and_b32 s{sX+1}, s{sX+1}, 0xffff"); e(f"s_mov_b32 s{sX+2}, 1966080")
e(f"s_lshl_b32 s{sPo}, s{sHH}, 3"); e(f"s_add_u32 s{sPo}, s{sPo}, s{sG}"); e(f"s_lshl_b32 s{sPo}, s{sPo}, 3"); e(f"s_add_u32 s{sPo}, s{sPo}, s{sS}")
e(f"s_mul_i32 s{sPo}, s{sPo}, 30720"); e(f"s_mul_i32 s{sT2}, s{sWV}, 6144"); e(f"s_add_u32 s{sPo}, s{sPo}, s{sT2}")
e(f"s_cmp_eq_u32 s{sWV}, 3"); e(f"s_cselect_b32 s{sT2}, 3072, 0"); e(f"s_add_u32 s{sPo}, s{sPo}, s{sT2}")
e(f"s_cmp_lt_u32 s{sWV}, 2"); e(f"s_cselect_b32 s{sT2}, {OOB-0x10000000}, 0"); e(f"v_add_u32 v108, s{sT2}, v{vLin2}"); e(f"v_add_u32 v109, 4096, v108")
e(f"s_and_b32 s{sPw}, s{sWV}, 1"); e(f"s_lshl_b32 s{sT2}, s{sJ}, 1"); e(f"s_add_u32 s{sPw}, s{sPw}, s{sT2}")
e(f"s_mul_i32 s{sT2}, s{sPw}, {RF}"); e(f"s_add_u32 s{sT2}, s{sT2}, {40*(RW-RF)}"); e(f"s_mul_i32 s{sPw}, s{sPw}, {RW}")
e(f"s_cmp_lt_u32 s{sJ}, 20"); e(f"s_cselect_b32 s{sPw}, s{sPw}, s{sT2}"); e(f"s_mov_b32 s{sT3}, {RW*3072}"); e(f"s_cselect_b32 s{sT3}, s{sT3}, {RF*3072}")
e(f"s_mul_i32 s{sPw}, s{sPw}, 3072"); e(f"s_mul_i32 s{sT2}, s{sG}, 384"); e(f"s_add_u32 s{sPw}, s{sPw}, s{sT2}")
e(f"v_mov_b32 v29, {OOB-0x10000000}")
for n in range(3, NPW): e(f"v_add_u32 v{101+n}, {8*3072}, v{98+n}")
for n in range(NPW): e(f"v_cmp_gt_u32 vcc, s{sT3}, v{101+n}"); e(f"v_cndmask_b32 v{101+n}, v29, v{101+n}, vcc")
hold -= {"pfw", "pfo"}
fill(3)
sA0, sA1, sA2 = 92, 93, 94
A.wait("clr")
setexec(1); e(f"ds_add_rtn_u32 v36, v{vFl}, v{vFl+1}"); setexec(FULL)
e(f"s_getreg_b32 s{sXcc}, hwreg(HW_REG_XCC_ID, 0, 4)")
e(f"s_lshr_b32 s{sA0}, s{sXcc}, 2"); e(f"s_lshl_b32 s{sA1}, s{sG}, 2"); e(f"s_add_u32 s{sA0}, s{sA0}, s{sA1}")
e(f"s_and_b32 s{sA1}, s{sXcc}, 3"); e(f"s_lshl_b32 s{sA1}, s{sA1}, 3"); e(f"s_lshl_b32 s{sA2}, 1, s{sA1}")
e(f"s_lshl_b32 s96, 32, s{sA1}"); e(f"s_mov_b32 s{sXcc}, s{sA0}")
e("s_waitcnt lgkmcnt(0)"); e(f"v_readfirstlane_b32 s{sA1}, v36"); e(f"s_cmp_lg_u32 s{sA1}, 3"); e("s_cbranch_scc1 NOATOM")
e(f"s_lshl_b32 s{sA0}, s{sA0}, 2"); e(f"v_mov_b32 v36, s{sA0}"); e(f"v_mov_b32 v37, s{sA2}")
setexec(1); e("global_atomic_add v36, v37, s[64:65] sc1"); setexec(FULL)
lab("NOATOM")
e(f"v_mul_u32_u24 v29, {RS}, v25"); e(f"v_lshl_add_u32 v29, v26, 4, v29"); e(f"v_add_u32 v{vKrd}, s{sT0}, v29")
e(f"v_lshrrev_b32 v29, 2, v{vL}"); e(f"v_mul_u32_u24 v29, {RS}, v29"); e(f"v_lshl_add_u32 v29, v28, 3, v29"); e(f"v_add_u32 v{vVrd}, s{sT0}, v29")
e(f"s_mul_i32 s{sT2}, s{sWV}, 96"); e(f"s_add_u32 s{sT2}, s{sT2}, {WQ}")
e("v_lshl_add_u32 v29, v26, 3, v27"); e("v_mul_u32_u24 v29, 384, v29"); e("v_lshl_add_u32 v29, v28, 3, v29"); e(f"v_add_u32 v{vTq1}, s{sT2}, v29")
e("v_lshl_add_u32 v29, v26, 2, v27"); e("v_mul_u32_u24 v29, 384, v29"); e("v_lshl_add_u32 v29, v28, 3, v29"); e(f"v_add_u32 v{vTq2}, s{sT2}, v29")
def rowbase(dst, m, og, ol, ob, tmp):
    e(f"v_mul_u32_u24 v{dst}, 1280, v{m}"); e(f"v_add_u32 v{dst}, {og}, v{dst}")
    e(f"s_mul_i32 s{sT3}, s{sG}, {GB}"); e(f"s_add_u32 s{sT3}, s{sT3}, {ol}"); e(f"v_mov_b32 v{tmp}, s{sT3}")
    e(f"v_cmp_eq_u32 vcc, s{sG}, v{m}"); e(f"v_cndmask_b32 v{dst}, v{dst}, v{tmp}, vcc")
    if ob is not None:
        e(f"v_add_u32 v{tmp}, {ob-ol}, v{tmp}"); e(f"v_cmp_le_u32 vcc, 8, v{m}"); e(f"v_cndmask_b32 v{dst}, v{dst}, v{tmp}, vcc")
fill()
e(f"v_mul_u32_u24 v31, 103, v{vL}"); e("v_lshrrev_b32 v31, 10, v31")
e(f"v_mul_u32_u24 v30, 10, v31"); e(f"v_sub_u32 v30, v{vL}, v30"); e(f"v_lshl_add_u32 v29, v30, 4, s{sT1}")
rowbase(vAq, 31, oFG, oFL, oBB, 30); e(f"v_add_u32 v{vAq}, v{vAq}, v29")
e("v_add_u32 v31, 6, v31"); rowbase(vAq16, 31, oFG, oFL, oBB, 30); e(f"v_add_u32 v{vAq16}, v{vAq16}, v29")
e(f"v_mov_b32 v30, {OOB}"); e(f"v_cmp_le_u32 vcc, 30, v{vL}"); e(f"v_cndmask_b32 v{vAq16}, v{vAq16}, v30, vcc")
assert all((c * 103) >> 10 == c // 10 for c in range(64))
e(f"s_lshl_b32 s{sT1}, s{sJ}, 10"); e(f"s_lshl_b32 s{sT2}, s{sWV}, 8"); e(f"s_add_u32 s{sT1}, s{sT1}, s{sT2}")
e(f"v_lshl_add_u32 v{vQst}, v{vL}, 2, s{sT1}")
e(f"s_lshl_b32 s{sT1}, s{sHH}, 13"); e(f"s_add_u32 s{sT1}, s{sT1}, s{sT2}")
e(f"v_lshlrev_b32 v29, 10, v26"); e(f"v_lshl_add_u32 v29, v25, 4, v29"); e(f"v_add_u32 v{vQld}, s{sT1}, v29")
fill()
e(f"s_mul_i32 s{sT1}, s{sWV}, 96"); e(f"s_add_u32 s{sT1}, s{sT1}, {QB}")
e(f"v_lshl_add_u32 v29, v27, 5, s{sT1}"); e("v_lshl_add_u32 v29, v28, 2, v29"); e("v_lshrrev_b32 v30, 1, v26"); e("v_lshl_add_u32 v29, v30, 4, v29")
e("v_and_b32 v30, 1, v26"); e("v_lshl_add_u32 v29, v30, 1, v29"); e(f"v_mov_b32 v30, {QB+384}")
e("v_cmp_le_u32 vcc, 12, v25"); e(f"v_cndmask_b32 v{vQBw}, v29, v30, vcc")
e(f"v_and_b32 v30, 1, v{vL}"); e(f"v_lshlrev_b32 v29, 5, v26"); e("v_lshl_add_u32 v29, v30, 4, v29"); e(f"v_add_u32 v{vQBr}, {QB}, v29")
e("v_mul_u32_u24 v30, 0xaaaa, v30"); e("v_and_b32 v29, 1, v27"); e("v_mul_u32_u24 v29, 0xaaaa, v29"); e("v_lshl_or_b32 v29, v29, 16, v30"); e(f"v_add_u32 v{vIdx}, 0x44444444, v29")
fill()
e(f"s_lshl_b32 s{sT1}, s{sWV}, 8"); e(f"s_add_u32 s{sT1}, s{sT1}, {PT}")
e(f"v_lshrrev_b32 v29, 5, v{vL}"); e(f"v_lshl_add_u32 v29, v29, 6, s{sT1}")
for bit, sh in ((3, 5), (1, 4), (2, 3), (4, 2), (0, 1)): e(f"v_bfe_u32 v30, v{vL}, {bit}, 1"); e(f"v_lshl_add_u32 v29, v30, {sh}, v29")
e(f"v_mov_b32 v{vPw}, v29")
e(f"s_mul_i32 s{sT1}, s{sWV}, 768"); e(f"s_add_u32 s{sT1}, s{sT1}, {ACC}"); e(f"v_lshl_add_u32 v29, v25, 2, s{sT1}")
e(f"v_bfe_u32 v30, v{vL}, 4, 1"); e("v_lshl_add_u32 v29, v30, 7, v29"); e(f"v_lshrrev_b32 v30, 5, v{vL}"); e(f"v_lshl_add_u32 v{vAcc}, v30, 6, v29")
for t in range(10):
    m = 0x00010001 << t
    e(f"s_mov_b32 s{sMf+2*t}, {m:#x}"); e(f"s_mov_b32 s{sMf+2*t+1}, {m:#x}")

def Krel(t):
    ahead(f"K{t}"); A.wait(f"K{t}")
    for i in range(6): e(f"ds_write_b128 v{vWr+i%3}, {ar(24*t+4*i)} offset:{(i//3)*8*RS}")
    for ks in range(6): e(f"ds_read_b128 {ar(24*t+4*ks)}, v{vKrd} offset:{64*ks}")
def Vrel(t):
    ahead(f"V{t}"); A.wait(f"V{t}")
    f, b = vblock(t + 1)
    for i in range(6): e(f"ds_write_b128 v{vWr+i%3}, {rg(f, b+4*i, 4)} offset:{(i//3)*8*RS}")
    f, b = vblock(t & ~1)
    for dt in range(12): e(f"ds_read_b64_tr_b16 {rg(f, b+4*dt+2*(t&1), 2)}, v{vVrd} offset:{32*dt}")
def wq_frags():
    for t in range(3):
        b = F + 10 * t
        for kk in range(2):
            for h in range(2): e(f"ds_read_b64_tr_b16 {vr(b+4*kk+2*h,2)}, v{vTq1} offset:{(32*kk+4*h)*384+32*t}")
        e(f"ds_read_b64_tr_b16 {vr(b+8,2)}, v{vTq2} offset:{64*384+32*t}")
def qstage(a, soff, tag=None, waits=False, fl=0):
    def mm(t, kk):
        n = 4 if kk < 2 else 2
        bb = vr(F + 10 * t + 4 * kk, n) if t < 3 else vr(a + 4 * kk, n)
        c = "0" if kk == 0 else vr(T + 4 * t)
        e(f"v_mfma_f32_16x16x{32 if kk<2 else 16}_bf16 {vr(T+4*t)}, {vr(a+4*kk,n)}, {bb}, {c}")
    def s4(t): return [f"v_add_f32 v{T+4*t}, v{T+4*t}, v{T+4*t+1}", f"v_add_f32 v{T+4*t+2}, v{T+4*t+2}, v{T+4*t+3}", f"v_add_f32 v{T+4*t}, v{T+4*t}, v{T+4*t+2}"]
    if waits: e("s_waitcnt lgkmcnt(2)")
    mm(0, 0); mm(2, 0)
    if waits: e("s_waitcnt lgkmcnt(0)")
    mm(0, 1); mm(2, 1); mm(0, 2); mm(2, 2)
    mm(1, 0); mm(3, 0); mm(1, 1); mm(3, 1); mm(1, 2); mm(3, 2)
    fill(fl)
    for x in s4(0) + s4(2): e(x)
    e(f"v_permlane32_swap_b32 v{T}, v{T+8}")
    x1, x3 = s4(1), s4(3)
    for x in x1[:2] + x3[:2] + [f"v_add_f32 v{T}, v{T}, v{T+8}"] + x1[2:] + x3[2:]: e(x)
    e(f"v_permlane32_swap_b32 v{T+4}, v{T+12}"); e(f"v_add_f32 v{T+4}, v{T+4}, v{T+12}")
    e(f"v_permlane16_swap_b32 v{T}, v{T+4}"); e(f"v_add_f32 v{T}, v{T}, v{T+4}")
    lstore(f"buffer_store_dword v{T}, v{vQst}, {sr(sW)}, {soff} offen", tag)
def xreduce(r0, r1, r2, r3):
    e(f"v_permlane32_swap_b32 v{r0}, v{r2}"); e(f"v_permlane32_swap_b32 v{r1}, v{r3}")
    e(f"v_add_f32 v{r0}, v{r0}, v{r2}"); e(f"v_add_f32 v{r1}, v{r1}, v{r3}")
    e(f"v_permlane16_swap_b32 v{r0}, v{r1}"); e(f"v_add_f32 v{r0}, v{r0}, v{r1}")
def qloads(b, s0, s1): return [f"buffer_load_dwordx4 {vr(b)}, v{vQld}, {sr(sW)}, {s0} offen sc1", f"buffer_load_dwordx4 {vr(b+4)}, v{vQld}, {sr(sW)}, {s1} offen sc1"]
def qsum(b):
    for q in range(4): e(f"v_add_f32 v{b+q}, v{b+q}, v{b+4+q}")
    xreduce(b, b + 1, b + 2, b + 3)
def rowred(op, v, tmp, steps):
    for sft in steps: e(f"v_{op}_f32_dpp v{v}, v{v}, v{v} row_ror:{sft} row_mask:0xf bank_mask:0xf")
def xrow(op, v, tmp, both=True):
    if both:
        e(f"v_mov_b32 v{tmp}, v{v}"); e(f"v_permlane32_swap_b32 v{v}, v{tmp}"); e(f"v_{op}_f32 v{v}, v{v}, v{tmp}")
    e(f"v_mov_b32 v{tmp}, v{v}"); e(f"v_permlane16_swap_b32 v{v}, v{tmp}"); e(f"v_{op}_f32 v{v}, v{v}, v{tmp}")
QF = 28; DQ = 40; PA = 72; X = 24; vM = 26
def att_zero():
    for t in range(8): e(f"v_mov_b32 v{DQ+4*t}, 0"); e(f"v_mov_b32 v{DQ+4*t+1}, 0")
    for q in range(16): e(f"v_mov_b32 v{PA+q}, 0")
def q_finish(b, mid=None):
    e(f"v_readlane_b32 s{sT0}, v{b}, 15")
    e(f"s_mov_b32 vcc_lo, 0x70007000"); e(f"s_mov_b32 vcc_hi, 0x70007000")
    e(f"v_fma_f32 v{b+1}, -s{sT0}, v{vCS}, v{b}")
    e(f"v_cvt_pk_bf16_f32 v{b+1}, v{b+1}, v{b+1}")
    e(f"ds_write_b16 v{vQBw}, v{b+1}")
    e(f"v_cndmask_b32 v{b+2}, 0, v{b}, vcc")
    e(f"v_add_f32_dpp v{b+2}, v{b+2}, v{b+2} quad_perm:[1,0,3,2] row_mask:0xf bank_mask:0xf")
    e(f"v_add_f32_dpp v{b+2}, v{b+2}, v{b+2} quad_perm:[2,3,0,1] row_mask:0xf bank_mask:0xf")
    e(f"v_mov_b32 v{b+3}, v{b+2}"); e(f"v_permlane32_swap_b32 v{b+2}, v{b+3}"); e(f"v_add_f32 v{b+2}, v{b+2}, v{b+3}")
    if mid: mid()
    else: e("s_waitcnt lgkmcnt(0)"); e("s_barrier")
    for ks in range(3): e(f"ds_read_b128 {vr(QF+4*ks)}, v{vQBr} offset:{128*ks}")
    e(f"v_mov_b32 v{b+3}, v{b+2}"); e(f"v_mov_b32 v{b+1}, s{sT0}"); e(f"v_subrev_f32 v{b+1}, 0x44200000, v{b+1}")
    e(f"v_permlane16_swap_b32 v{b+2}, v{b+3}"); e(f"v_add_f32 v{b+2}, v{b+2}, v{b+3}")
    e(f"v_mul_f32 v{b}, 0x3acccccd, v{b+1}")
    e(f"v_readlane_b32 s{sT0}, v{b+2}, 15")
    e(f"v_mul_f32 v{b}, v{b}, v{b}"); e(f"s_mov_b32 s{sT1}, 0x3acccccd")
    e(f"v_sub_f32 v{b+2}, s{sT0}, v{b+1}")
    e(f"v_fma_f32 v{b+2}, v{b+2}, s{sT1}, -v{b}"); e(f"v_max_f32 v{b+2}, 0, v{b+2}"); e(f"v_add_f32 v{b+2}, 0x3727c5ac, v{b+2}")
    e(f"v_rsq_f32 v{b+2}, v{b+2}"); e(f"v_mul_f32 v{vSC}, 0x3dd53b94, v{b+2}")
def qk_softmax(fl=0):
    def fold(t): e(f"v_add_f32_dpp v{X+t//4}, v{DQ+4*t}, v{DQ+4*t+1} quad_perm:[0,1,2,3] row_mask:{1<<(t%4):#x} bank_mask:0xf")
    def mm(t, ks): e(f"v_smfmac_f32_16x16x64_bf16 {vr(DQ+4*t)}, {vr(QF+4*ks)}, {ar(24*t+8*ks, 8)}, v{vIdx}")
    for ks in range(3):
        e(f"s_waitcnt lgkmcnt({2-ks})")
        for t in (0, 4, 1, 5, 2, 6, 3, 7): mm(t, ks)
        if ks != 1: fill(fl)
    fx = [f"s_lshl_b32 s{sT1}, s{sWV}, 8", f"v_bfe_u32 v27, v{vL}, 4, 1", f"v_bfe_u32 v28, v{vL}, 2, 1", f"s_add_u32 s{sT1}, s{sT1}, {PT}"]
    for t in range(4): e(fx[t]); fold(t); fold(t + 4)
    e(f"v_max_f32 v{vM}, v{X}, v{X+1}")
    e(f"v_lshl_add_u32 v27, v27, 5, s{sT1}"); e("v_lshl_add_u32 v27, v28, 4, v27")
    rowred("max", vM, None, (8, 4, 2, 1)); xrow("max", vM, 28)
    fill(fl)
    e(f"v_mul_f32 v{vM}, v{vM}, v{vSC}")
    for q in range(2): e(f"v_fma_f32 v{X+q}, v{X+q}, v{vSC}, -v{vM}")
    for q in range(2): e(f"v_exp_f32 v{X+q}, v{X+q}")
    e(f"v_cvt_pk_bf16_f32 v28, v{X}, v{X+1}")
    e(f"ds_write_b16 v{vPw}, v28"); e(f"ds_write_b16_d16_hi v{vPw}, v28 offset:128")
    setexec(0xFF00FF0000FF00FF)
    for u in range(4): e(f"ds_read_b128 {vr(PA+4*u)}, v27 offset:{64*u}")
    setexec(FULL)
    e(f"v_add_f32 v27, v{X}, v{X+1}")
    z = [f"v_mov_b32 v{F+4*dp}, 0" for dp in range(6)] + [f"s_lshl_b32 s{sT1}, s{sWV}, 3", f"s_add_u32 s{sT1}, s{sT1}, {ML4}"]
    for sft in (8, 4, 2, 1):
        e(z.pop(0)); e(z.pop(0)); e(f"v_add_f32_dpp v27, v27, v27 row_ror:{sft} row_mask:0xf bank_mask:0xf")
    xrow("add", 27, 28)
    e(f"v_mov_b32 v28, s{sT1}"); e(f"ds_write_b64 v28, v[26:27]")
def pv_step(u, order=range(6)):
    f, b = vblock(2 * u)
    for dp in order: e(f"v_smfmac_f32_16x16x64_bf16 {vr(F+4*dp)}, {vr(PA+4*u)}, {rg(f, b+8*dp, 8)}, v{vIdx} abid:1")
def pv_post():
    for q in range(3): e(f"v_permlane16_swap_b32 v{F+8*q}, v{F+8*q+4}"); e(f"v_add_f32 v{F+8*q}, v{F+8*q}, v{F+8*q+4}"); e(f"ds_write_b32 v{vAcc}, v{F+8*q} offset:{OACC+256*q}")

def role_dma():
    e(f"s_cmp_ge_u32 s{sJ}, 20"); e("s_cbranch_scc1 DMAF")
    e(f"v_lshrrev_b32 v38, 2, v{vL}"); e("v_mul_u32_u24 v38, 1280, v38"); e(f"v_and_b32 v39, 3, v{vL}"); e("v_lshl_add_u32 v38, v39, 4, v38")
    e(f"s_lshl_b32 s{sT0}, s{sWV}, 3"); e(f"s_add_u32 s{sT0}, s{sT0}, s{sG}"); e(f"s_mul_i32 s{sT0}, s{sT0}, {192*1280}"); e(f"s_lshl_b32 s{sT1}, s{sJ}, 6"); e(f"s_add_u32 s{sT0}, s{sT0}, s{sT1}")
    e(f"s_mul_i32 s{sT1}, s{sWV}, 12288"); e(f"s_add_u32 m0, s{sT1}, {WO}")
    for n in range(12):
        A.vmem(f"buffer_load_dwordx4 v38, {sr(sRA)}, s{sT0} offen {NTR} lds", "role", counted=(n < 10))
        if n < 11: e(f"s_add_u32 m0, m0, 1024"); e(f"s_add_u32 s{sT0}, s{sT0}, {16*1280}")
    lab("DMAX")
    def t():
        lab("DMAF"); fdma(); e("s_branch DMAX")
    tail.append(t)
def fdma():
    if True:
        e(f"v_lshrrev_b32 v38, 1, v{vL}"); e("v_mul_u32_u24 v38, 3072, v38"); e(f"v_and_b32 v39, 1, v{vL}"); e("v_lshl_add_u32 v38, v39, 4, v38")
        e(f"s_mul_i32 s{sT2}, s{sG}, 12"); e(f"s_add_u32 s{sT2}, s{sT2}, s{sJ}"); e(f"s_sub_u32 s{sT2}, s{sT2}, 20")
        e(f"s_mul_i32 s{sT0}, s{sWV}, {160*3072}"); e(f"s_lshl_b32 s{sT1}, s{sT2}, 5"); e(f"s_add_u32 s{sT0}, s{sT0}, s{sT1}")
        e(f"s_mul_i32 s{sT1}, s{sWV}, 5120")
        for n in range(5):
            e(f"s_add_u32 m0, s{sT1}, {W1+1024*n}"); e(f"buffer_load_dwordx4 v38, {sr(sRA)}, s{sT0} offen {NTR} lds")
            e(f"s_add_u32 m0, s{sT1}, {W3+1024*n}"); e(f"buffer_load_dwordx4 v38, {sr(sRB)}, s{sT0} offen {NTR} lds")
            if n < 4: e(f"s_add_u32 s{sT0}, s{sT0}, {32*3072}")
def w2dma():
    e(f"s_mul_i32 s{sT2}, s{sG}, 12"); e(f"s_add_u32 s{sT2}, s{sT2}, s{sJ}"); e(f"s_sub_u32 s{sT2}, s{sT2}, 20"); e(f"s_mul_i32 s97, s{sWV}, 5120")
    e(f"s_mul_i32 s96, s{sT2}, 20480"); e(f"s_add_u32 s96, s96, s97")
    for n in range(5):
        e(f"s_add_u32 m0, s97, {W2+1024*n}"); e(f"buffer_load_dwordx4 v{vLin}, {sr(sRC)}, s96 offen {NTW} lds")
        if n < 4: e(f"s_add_u32 s96, s96, 1024")
Kld(2); Krel(0); Kld(3); Krel(1); fill(6); Krel(2)
signal(1)
stamp(1)
upto("pfw"); upto("pfo"); Krel(3)
e(f"v_lshlrev_b32 v98, 2, v{vL}")
rdy = ["global_load_dword v99, v98, s[64:65] sc1"]
A.vmem(rdy[0], "rdy")
Kld(4); fill(3)
arrive_all(1, 24); wq_frags()
Kld(5); fill(3)
def rdycheck():
    e("v_sad_u8 v100, v99, 0, 0")
    e("v_add_u32_dpp v100, v100, v100 quad_perm:[1,0,3,2] row_mask:0xf bank_mask:0xf")
    e("v_add_u32_dpp v100, v100, v100 quad_perm:[2,3,0,1] row_mask:0xf bank_mask:0xf")
    e("v_cmp_gt_u32 vcc, 32, v100"); e("s_mov_b32 vcc_hi, 0"); e("s_cmp_eq_u64 vcc, 0")
ahead("rdy"); A.wait("rdy"); rdycheck(); e("s_cbranch_scc0 RDYLOOP"); lab("RDYOK")
def t_():
    lab("RDYLOOP"); e(f"s_mov_b32 s{sCnt}, 0"); lab("RDYL2"); e("s_sleep 8"); e(rdy[0]); e("s_waitcnt vmcnt(0)"); rdycheck(); e("s_cbranch_scc1 RDYOK")
    e(f"s_add_u32 s{sCnt}, s{sCnt}, 1"); e(f"s_cmp_lt_u32 s{sCnt}, {LIMIT}"); e("s_cbranch_scc1 RDYL2"); e("s_branch RDYOK")
tail.append(t_)
e(f"v_readlane_b32 s{sT0}, v99, s{sXcc}"); e(f"s_cmp_eq_u32 s{sT0}, s96"); e(f"s_cselect_b32 s{sFast}, {0 if FORCESLOW else 1}, 0")
stamp(2)
A.vmem(f"buffer_load_dwordx4 a[240:243], v{vC1}, {sr(sW)}, 0 offen sc1", "pre")
A.vmem(f"buffer_load_dwordx4 a[240:243], v{vC2}, {sr(sW)}, s{sClr} offen sc1", "pre")
e("s_waitcnt lgkmcnt(0)")
e(f"s_add_u32 s{sT2}, s{sLG}, {2*LS}")
qstage(70, f"s{sT2}", "qst", fl=1); fill(); qstage(SPARE, f"s{sLG}", "qst", fl=1)
def pack_store16(d, instr_fn):
    for q in (1, 2, 3): e(f"v_mov_b32_dpp v{d+q}, v{d} quad_perm:[{q},{q},{q},{q}] row_mask:0xf bank_mask:0xf")
    setexec(0x1111); instr_fn(); setexec(FULL)
e(f"s_cmp_lg_u32 s{sWV}, 1"); e("s_cbranch_scc1 NOBASE0"); e(f"s_cmp_ge_u32 s{sJ}, 20"); e("s_cbranch_scc1 NOBASE0")
e(f"v_mov_b32 v28, v{vXR}"); e(f"s_lshl_b32 s{sT0}, s{sJ}, 6"); e(f"s_add_u32 s{sT0}, s{sT0}, s{sLG}"); e(f"s_add_u32 s{sT0}, s{sT0}, {oBA}"); e(f"v_lshlrev_b32 v27, 2, v{vL}")
pack_store16(28, lambda: lstore(f"buffer_store_dwordx4 v[28:31], v27, {sr(sW)}, s{sT0} offen"))
lab("NOBASE0")
stamp(3)
Kld(6); Krel(4); Kld(7); Krel(5); stamp(12); role_dma(); stamp(15); Krel(6)
def cs_soffs():
    e(f"s_add_u32 s{sT0}, s{sLG}, {2*LS}"); e(f"s_add_u32 s{sT1}, s{sLG}, {2*LS+4096}"); e(f"s_add_u32 s{sT2}, s{sLG}, 4096")
cs_soffs()
gl = qloads(64, f"s{sT0}", f"s{sT1}") + qloads(72, f"s{sLG}", f"s{sT2}")
for l in gl: A.vmem(l, "qg")
fill(3)
e(f"v_and_b32 v25, 15, v{vL}"); e(f"v_lshrrev_b32 v26, 4, v{vL}"); e("v_add_u32 v27, 4, v26")
rowbase(vC1, 26, oFG, oFL, None, 28); rowbase(vC2, 27, oFG, oFL, None, 28)
e(f"s_min_u32 s{sT3}, s{sJ}, 19"); e(f"s_lshl_b32 s{sT3}, s{sT3}, 6"); e(f"v_lshl_add_u32 v25, v25, 2, s{sT3}")
e(f"v_add_u32 v{vC1}, v{vC1}, v25"); e(f"v_add_u32 v{vC2}, v{vC2}, v25")
fill()
e(f"v_and_b32 v25, 15, v{vL}"); e(f"v_bfe_u32 v27, v{vL}, 2, 2"); e(f"v_and_b32 v28, 3, v{vL}")
e(f"s_mul_i32 s{sT3}, s{sWV}, 12288"); e(f"s_add_u32 s{sT3}, s{sT3}, {WO}")
e("v_lshl_add_u32 v29, v26, 3, v27"); e("v_lshlrev_b32 v29, 6, v29"); e("v_lshl_add_u32 v29, v28, 3, v29"); e(f"v_add_u32 v29, s{sT3}, v29"); e("v_accvgpr_write_b32 a246, v29")
e(f"s_mul_i32 s{sT3}, s{sWV}, 3072"); e(f"s_add_u32 s{sT3}, s{sT3}, {oO}")
e(f"v_lshl_add_u32 v29, v25, 4, s{sT3}"); e("v_lshl_add_u32 v29, v26, 7, v29"); e("v_accvgpr_write_b32 a247, v29")
e(f"s_lshl_b32 s{sT3}, s{sWV}, 6"); e(f"s_add_u32 s{sT3}, s{sT3}, {oML}"); e("v_and_b32 v29, 1, v26"); e(f"v_lshl_add_u32 v29, v29, 5, s{sT3}"); e("v_accvgpr_write_b32 a248, v29")
e(f"s_lshl_b32 s{sT3}, s{sWV}, 8"); e(f"s_add_u32 s{sT3}, s{sT3}, {ACC+YACC}"); e(f"v_lshl_add_u32 v29, v{vL}, 2, s{sT3}"); e("v_accvgpr_write_b32 a249, v29")
e(f"s_lshl_b32 s{sYl}, s{sJ}, 6"); e(f"s_mul_i32 s{sYg}, s{sG}, 1280"); e(f"s_add_u32 s{sYg}, s{sYg}, s{sYl}"); e(f"s_add_u32 s{sYg}, s{sYg}, {oYG}")
e(f"s_add_u32 s{sYl}, s{sYl}, s{sLG}"); e(f"s_add_u32 s{sYl}, s{sYl}, {oYL}")
Vld(0); Krel(7); Vld(1)
ahead("qg")
late_check("qg", gl, range(64, 80), 24, pre=cs_soffs)
qsum(64); qsum(72)
e(f"v_mul_f32 v{vCS}, 0x3acccccd, v64")
e(f"v_mov_b32 v{T}, v72")
fill(); att_zero()
stamp(4)
def qmid():
    signal(2); Vld(2); Vrel(0); Vld(3); Vrel(1); fill(2); arrive_all(2, 28)
q_finish(T, qmid)
qk_softmax(fl=1)
stamp(5)
hold.clear()
Vld(4); Vrel(2)
e("s_waitcnt lgkmcnt(0)"); pv_step(0)
Vld(5); Vrel(3); Vld(6)
e("s_waitcnt lgkmcnt(0)"); pv_step(1)
Vrel(4); Vld(7); Vrel(5)
e(f"v_and_b32 v{vXR+1}, 0xffff0000, v{vXR}"); e(f"v_lshlrev_b32 v{vXR}, 16, v{vXR}")
e("s_waitcnt lgkmcnt(0)"); pv_step(2)
Vrel(6)
f_, b_ = vblock(8)
for i in range(6):
    e(f"s_waitcnt vmcnt({5-i})"); e(f"ds_write_b128 v{vWr+i%3}, {rg(f_, b_+4*i, 4)} offset:{(i//3)*8*RS}")
f_, b_ = vblock(6)
for dt in range(12): e(f"ds_read_b64_tr_b16 {rg(f_, b_+4*dt+2, 2)}, v{vVrd} offset:{32*dt}")
A.drained()
e("s_branch ATT_LAST")
flush_near()

lab("LOOP")
wq_frags()
e(f"v_and_b32 v25, 15, v{vL}"); e("v_cmp_eq_u32 vcc, 12, v25"); e("v_mov_b32 v36, 0x3f803f80"); e(f"v_cndmask_b32 v70, 0, v36, vcc")
for q in range(1, 10): e(f"v_mov_b32 v{70+q}, v70")
e(f"s_add_u32 s{sT2}, s{sLG}, 4096")
e(f"s_mul_i32 s{sT0}, s{sWV}, {SCRW}")
e(f"v_mul_u32_u24 v26, 103, v{vL}"); e("v_lshrrev_b32 v26, 10, v26"); e(f"v_lshl_add_u32 v26, v26, 4, v{vLin}"); e(f"v_add_u32 v26, s{sT0}, v26")
e(f"v_mul_u32_u24 v27, 176, v25"); e(f"v_add_u32 v27, s{sT0}, v27"); e(f"v_lshrrev_b32 v28, 4, v{vL}"); e("v_lshl_add_u32 v29, v28, 3, v27"); e("v_lshl_add_u32 v27, v28, 4, v27")
e(f"s_mul_i32 s{sT0}, s{sS}, 160"); e(f"s_add_u32 s{sT0}, s{sT0}, s{sLG}"); e(f"s_sub_u32 s{sT0}, s{sT0}, {LS-oFL}")
e("s_waitcnt lgkmcnt(0)")
gate(sT0, 10, 24)
setexec((1 << 60) - 1)
poll([f"buffer_load_dwordx4 v[80:83], v{vAq}, {sr(sW)}, 0 offen sc1", f"buffer_load_dwordx4 v[84:87], v{vAq16}, {sr(sW)}, 0 offen sc1"], [80, 84], 24, pid=1, slp=int(OPT.get("slpq", 0)))
e("ds_write_b128 v26, v[80:83]"); e(f"ds_write_b128 v26, v[84:87] offset:{6*176}")
setexec(ROWS9)
e("ds_read_b128 v[70:73], v27"); e("ds_read_b128 v[74:77], v27 offset:64"); e("ds_read_b64 v[78:79], v29 offset:128")
setexec(FULL)
stamp(1)
e(f"buffer_load_dword a244, v{vC1}, {sr(sW)}, 0 offen sc1"); e(f"buffer_load_dword a245, v{vC2}, {sr(sW)}, 0 offen sc1")
qstage(70, f"s{sLG}", waits=True)
stamp(2)
att_zero()
poll(qloads(T, f"s{sLG}", f"s{sT2}"), range(T, T + 8), T + 8, pid=4)
stamp(3)
qsum(T)
q_finish(T)
stamp(4)
qk_softmax()
stamp(5)
for u in range(3):
    e(f"s_waitcnt lgkmcnt({4-u})"); pv_step(u)
e("s_waitcnt lgkmcnt(0)")
lab("ATT_LAST")
for dp in range(6):
    if dp % 2 == 0: e(f"s_waitcnt lgkmcnt({8-2*dp})")
    pv_step(3, [dp])
e(f"v_add_u32 v24, {ACC}, v{vLin}"); e(f"v_mov_b32 v25, {ML4}"); e(f"v_lshlrev_b32 v39, 6, v{vL}")
pv_post()
e(f"s_cmp_lg_u32 s{sWV}, 0")
e("s_waitcnt lgkmcnt(0)"); e("s_barrier")
e("s_cbranch_scc1 ODONE")
stamp(6)
e(f"ds_read_b128 v[64:67], v25"); e(f"ds_read_b128 v[68:71], v25 offset:16")
for w in range(4): e(f"ds_read_b128 {vr(F+4*w)}, v24 offset:{OACC+768*w}")
e(f"s_mul_i32 s{sT0}, s{sHH}, 3072"); e(f"s_lshl_b32 s{sT1}, s{sS}, 4"); e(f"s_add_u32 s{sT0}, s{sT0}, s{sT1}"); e(f"s_add_u32 s{sT0}, s{sT0}, s{sLG}"); e(f"s_add_u32 s{sT0}, s{sT0}, {oO}")
e(f"s_lshl_b32 s{sT1}, s{sJ}, 3"); e(f"s_add_u32 s{sT1}, s{sT1}, s{sLG}"); e(f"s_add_u32 s{sT1}, s{sT1}, {oML}")
e("s_waitcnt lgkmcnt(4)")
e("v_max3_f32 v32, v64, v66, v68"); e("v_max_f32 v32, v32, v70")
for w in range(4): e(f"v_sub_f32 v{64+2*w}, v{64+2*w}, v32")
for w in range(4): e(f"v_exp_f32 v{64+2*w}, v{64+2*w}")
e("s_waitcnt lgkmcnt(0)")
for q in range(4): e(f"v_mul_f32 v{28+q}, v64, v{F+q}")
for w in range(1, 4):
    for q in range(4): e(f"v_fmac_f32 v{28+q}, v{64+2*w}, v{F+4*w+q}")
def pack_pairs():
    e("v_cvt_pk_bf16_f32 v28, v28, v29"); e("v_cvt_pk_bf16_f32 v29, v30, v31")
    e("v_mov_b32_dpp v30, v28 quad_perm:[1,1,3,3] row_mask:0xf bank_mask:0xf"); e("v_mov_b32_dpp v31, v29 quad_perm:[1,1,3,3] row_mask:0xf bank_mask:0xf")
pack_pairs()
setexec(0x5555555555555555 & ((1 << 48) - 1))
lstore(f"buffer_store_dwordx4 v[28:31], v39, {sr(sW)}, s{sT0} offen")
e("v_mul_f32 v33, v64, v65")
for w in range(1, 4): e(f"v_fmac_f32 v33, v{64+2*w}, v{65+2*w}")
setexec(1)
lstore(f"buffer_store_dwordx2 v[32:33], v39, {sr(sW)}, s{sT1} offen")
setexec(FULL)
lab("ODONE")
stamp(7)
e(f"s_cmp_ge_u32 s{sJ}, 20"); e("s_cbranch_scc1 ROLEF")
def owner_add():
    e("v_lshlrev_b32 v30, 16, v28"); e("v_and_b32 v28, 0xffff0000, v28"); e("v_lshlrev_b32 v31, 16, v29"); e("v_and_b32 v29, 0xffff0000, v29")
    e("v_add_f32 v30, v30, v31"); e("v_add_f32 v28, v28, v29")
    e("v_mov_b32 v31, v30"); e("v_mov_b32 v29, v28"); e("v_permlane32_swap_b32 v30, v31"); e("v_permlane32_swap_b32 v28, v29"); e("v_add_f32 v30, v30, v31"); e("v_add_f32 v28, v28, v29")
    e("v_mov_b32 v31, v30"); e("v_mov_b32 v29, v28"); e("v_permlane16_swap_b32 v30, v31"); e("v_permlane16_swap_b32 v28, v29"); e("v_add_f32 v30, v30, v31"); e("v_add_f32 v28, v28, v29")
    e(f"v_add_f32 v{vXR}, v{vXR}, v30"); e(f"v_add_f32 v{vXR+1}, v{vXR+1}, v28")
    e(f"v_cvt_pk_bf16_f32 v28, v{vXR}, v{vXR+1}")
def own_loads(a0, a1, soff): return [f"buffer_load_dword v28, v{a0}, {sr(sW)}, {soff} offen sc1", f"buffer_load_dword v29, v{a1}, {sr(sW)}, {soff} offen sc1"]
def base_store(ob):
    e(f"s_lshl_b32 s{sT0}, s{sJ}, 6"); e(f"s_add_u32 s{sT0}, s{sT0}, s{sLG}"); e(f"s_add_u32 s{sT0}, s{sT0}, {ob}"); e(f"v_lshlrev_b32 v37, 2, v{vL}")
    pack_store16(28, lambda: lstore(f"buffer_store_dwordx4 v[28:31], v37, {sr(sW)}, s{sT0} offen"))
for q in range(3): e(f"v_accvgpr_read_b32 v{2+q}, a{246+q}")
for kk in range(6): e(f"v_mov_b32 v{SPARE+4*kk}, 0")
trs = [f"ds_read_b64_tr_b16 {vr(F+24*t+4*kk+2*h,2)}, v2 offset:{(32*kk+4*h)*64+32*t}" for kk in range(6) for t in range(2) for h in range(2)]
for x in trs[:10]: e(x)
e(f"s_cmp_lg_u32 s{sWV}, 1"); e("s_cbranch_scc1 NOOWN0"); e(f"s_cmp_eq_u32 s{sLay}, 0"); e("s_cbranch_scc1 NOOWN0")
e("v_accvgpr_read_b32 v28, a244"); e("v_accvgpr_read_b32 v29, a245")
late_check("none", own_loads(vC1, vC2, "0"), [28, 29], 30)
owner_add(); base_store(oBA)
lab("NOOWN0")
MLR = [24, 36]
for q in (25, 27, 37, 39): e(f"v_mov_b32 v{q}, 0")
def wfirst():
    for x in trs[10:]: e(x)
    e("v_accvgpr_read_b32 v5, a249"); e(f"v_add_u32 v6, {ACC}, v{vLin}"); e(f"v_lshrrev_b32 v18, 1, v{vLin}")
poll(["s_mov_b32 exec_lo, 0x00ff00ff", "s_mov_b32 exec_hi, 0x00ff00ff"] +
     [f"buffer_load_dwordx4 {vr(SPARE+4*kk)}, v3, {sr(sW)}, s{sLG} offen offset:{512*kk} sc1" for kk in range(6)] + ["s_mov_b32 exec_lo, -1", "s_mov_b32 exec_hi, 0"] +
     [f"buffer_load_dwordx4 {vr(MLR[q])}, v4, {sr(sW)}, s{sLG} offen offset:{16*q} sc1" for q in range(2)] + ["s_mov_b64 exec, -1"],
     [SPARE + 4 * kk for kk in range(6)] + [25, 27, 37, 39], 28, pid=7, first=wfirst)
e("s_waitcnt lgkmcnt(0)")
stamp(8)
M_, U_, L_ = SPARE, SPARE + 1, SPARE + 2
mm_ = [24, 26, 36, 38]
co = [[], [f"v_max3_f32 v{M_}, v24, v26, v36", f"v_max_f32 v{M_}, v{M_}, v38"], [f"v_mov_b32 v{U_}, v{M_}"], [f"v_permlane16_swap_b32 v{M_}, v{U_}", f"v_max_f32 v{M_}, v{M_}, v{U_}"],
      [f"v_sub_f32 v24, v24, v{M_}", f"v_sub_f32 v26, v26, v{M_}"], [f"v_sub_f32 v36, v36, v{M_}", f"v_sub_f32 v38, v38, v{M_}"],
      ["v_exp_f32 v24, v24"], ["v_exp_f32 v26, v26"], ["v_exp_f32 v36, v36"], ["v_exp_f32 v38, v38"],
      [f"v_mul_f32 v{L_}, v24, v25", f"v_fmac_f32 v{L_}, v26, v27"], [f"v_fmac_f32 v{L_}, v36, v37", f"v_fmac_f32 v{L_}, v38, v39"]]
for kk in range(6):
    for t in range(2):
        c = "0" if kk == 0 else vr(28 + 4 * t)
        e(f"v_mfma_f32_16x16x32_bf16 {vr(28+4*t)}, {vr(SPARE+4*kk)}, {vr(F+24*t+4*kk)}, {c}")
        for x in co.pop(0): e(x)
e(f"v_mov_b32 v{U_}, v{L_}"); e(f"s_cmp_lg_u32 s{sWV}, 0"); e(f"v_permlane16_swap_b32 v{L_}, v{U_}"); e(f"v_add_f32 v{L_}, v{L_}, v{U_}"); e(f"v_rcp_f32 v{L_}, v{L_}")
for t in range(2): e(f"v_mul_f32 v{28+4*t}, v24, v{28+4*t}")
for q in range(1, 4):
    for t in range(2): e(f"v_fmac_f32 v{28+4*t}, v{mm_[q]}, v{28+4*t+q}")
e("v_permlane16_swap_b32 v28, v32"); e("v_add_f32 v28, v28, v32"); e(f"v_mul_f32 v28, v28, v{L_}")
e(f"ds_write_b32 v5, v28")
e("s_waitcnt lgkmcnt(0)"); e("s_barrier")
e("s_cbranch_scc1 WNOT0")
for w in range(4): e(f"ds_read_b128 {vr(F+4*w)}, v6 offset:{YACC+256*w}")
e("s_waitcnt lgkmcnt(2)")
for q in range(4): e(f"v_add_f32 v{28+q}, v{F+q}, v{F+4+q}")
e("s_waitcnt lgkmcnt(0)")
for q in range(4): e(f"v_add_f32 v{32+q}, v{F+8+q}, v{F+12+q}")
for q in range(4): e(f"v_add_f32 v{28+q}, v{28+q}, v{32+q}")
pack_pairs()
setexec(0x55)
e(f"buffer_store_dwordx4 v[28:31], v18, {sr(sW)}, s{sYg} offen sc1")
lstore(f"buffer_store_dwordx4 v[28:31], v18, {sr(sW)}, s{sYl} offen")
setexec(FULL)
stamp(9)
e(f"v_lshrrev_b32 v37, 5, v{vL}"); e("v_mul_u32_u24 v37, 2560, v37"); e(f"v_and_b32 v38, 31, v{vL}"); e("v_lshl_add_u32 v37, v38, 2, v37")
for k in range(1, 6): e(f"v_add_u32 v{F+k}, {5120*k}, v37")
e(f"s_lshl_b32 s{sT2}, s{sJ}, 7"); e(f"s_add_u32 s{sT2}, s{sT2}, s{sLG}"); e(f"s_add_u32 s{sT2}, s{sT2}, {oFP}")
e(f"s_add_u32 s96, s{sYg}, {oFG-oYG}"); e(f"s_add_u32 s97, s{sYl}, {oFL-oYL}"); e(f"v_lshlrev_b32 v39, 1, v{vL}")
poll([f"buffer_load_dword v{28+k}, v{37 if k==0 else F+k}, {sr(sW)}, s{sT2} offen sc1" for k in range(6)], range(28, 34), 36, pid=10)
stamp(10)
e("v_add_f32 v28, v28, v29"); e("v_add_f32 v30, v30, v31"); e("v_add_f32 v32, v32, v33"); e("v_add_f32 v28, v28, v30"); e("v_add_f32 v28, v28, v32")
e("v_mov_b32 v29, v28"); e("v_permlane32_swap_b32 v28, v29"); e("v_add_f32 v28, v28, v29")
e("v_mov_b32_dpp v29, v28 row_shl:1 row_mask:0xf bank_mask:0xf"); e("v_cvt_pk_bf16_f32 v28, v28, v29")
for q in (1, 2, 3): e(f"v_mov_b32_dpp v{28+q}, v28 row_shl:{2*q} row_mask:0xf bank_mask:0xf")
setexec(0x01010101)
e(f"buffer_store_dwordx4 v[28:31], v39, {sr(sW)}, s96 offen sc1")
lstore(f"buffer_store_dwordx4 v[28:31], v39, {sr(sW)}, s97 offen")
setexec(FULL)
stamp(11)
e("s_branch NEXT")
flush_near()
lab("WNOT0")
e(f"s_cmp_lg_u32 s{sWV}, 1"); e("s_cbranch_scc1 NEXT")
e(f"v_and_b32 v25, 15, v{vL}"); e(f"v_lshrrev_b32 v26, 4, v{vL}")
rowbase(37, 26, oYG, oYL, None, 38); e("v_add_u32 v39, 4, v26"); rowbase(38, 39, oYG, oYL, None, 28)
e(f"s_lshl_b32 s{sT0}, s{sJ}, 6"); e(f"s_add_u32 s{sT0}, s{sT0}, s{sLay}")
e("v_lshl_add_u32 v37, v25, 2, v37"); e("v_lshl_add_u32 v38, v25, 2, v38")
if GATE and ODLY: e(f"s_sleep {ODLY}")
poll(own_loads(37, 38, f"s{sT0}"), [28, 29], 30, slp=(4 if GATE else 0))
owner_add()
e(f"s_cmp_lg_u32 s{sLay}, 0"); e("s_cbranch_scc1 FINAL")
base_store(oBB)
e("s_branch NEXT")
lab("FINAL")
e(f"s_cmp_lg_u32 s{sG}, 0"); e("s_cbranch_scc1 DONE")
e(f"s_lshl_b32 s{sT0}, s{sJ}, 6"); e(f"v_lshlrev_b32 v37, 2, v{vL}")
e(f"s_add_u32 s{sT2}, s{sT0}, s{sLG}"); e(f"s_add_u32 s{sT2}, s{sT2}, {oFL}")
gate(sT2, 4, 28); setexec(FULL)
poll(own_loads(vC1, vC2, f"s{sLay}"), [28, 29], 30)
owner_add()
setexec(0xffff)
e(f"buffer_store_dword v28, v37, {sr(sO)}, s{sT0} offen")
setexec(FULL)
stamp(12)
e("s_branch DONE") if SPIN else e("s_endpgm")
flush_near()
lab("ROLEF")
e(f"v_and_b32 v25, 15, v{vL}"); e(f"v_lshrrev_b32 v26, 4, v{vL}"); e(f"v_bfe_u32 v27, v{vL}, 2, 2"); e(f"v_and_b32 v36, 3, v{vL}")
FA = SPARE
vCG, vCU = vXR, vXR + 1
sPass = sClr
e(f"s_mov_b32 s{sPass}, 1")
e(f"s_cmp_lg_u32 s{sLay}, 0"); e("s_cbranch_scc1 FW")
e(f"s_mov_b32 s{sPass}, 0")
lab("FW")
e(f"s_mul_i32 s{sT0}, s{sWV}, 5120"); e(f"s_add_u32 s{sT0}, s{sT0}, {W1}")
e("v_lshl_add_u32 v37, v26, 3, v27"); e("v_lshlrev_b32 v37, 5, v37"); e("v_lshl_add_u32 v37, v36, 3, v37"); e(f"v_add_u32 v37, s{sT0}, v37")
for t in range(2):
    for kk in range(5):
        for h in range(2): e(f"ds_read_b64_tr_b16 {vr(F+20*t+4*kk+2*h,2)}, v37 offset:{(32*kk+4*h)*32+20480*t}")
e(f"s_mul_i32 s{sT0}, s{sWV}, 320"); e(f"s_add_u32 s{sT0}, s{sT0}, {W2}")
e(f"v_lshrrev_b32 v80, 2, v{vL}"); e("v_mul_u32_u24 v80, 1280, v80"); e("v_lshl_add_u32 v80, v36, 3, v80"); e(f"v_add_u32 v80, s{sT0}, v80")
e(f"s_lshl_b32 s{sT2}, s{sWV}, 2"); e(f"s_add_u32 s{sT2}, s{sT2}, {ACC+FACC}"); e(f"v_add_u32 v81, s{sT2}, v{vLin}")
e("v_lshl_add_u32 v82, v26, 2, v36"); e("v_lshlrev_b32 v82, 4, v82"); e(f"v_add_u32 v82, {ACC+FACC}, v82")
e("v_cmp_eq_u32 vcc, 12, v25")
e("v_mov_b32 v38, 13"); e("v_cndmask_b32 v83, v25, v38, vcc"); e("v_lshlrev_b32 v83, 4, v83"); e(f"v_add_u32 v83, {ACC+FACC+512}, v83")
e(f"v_mov_b32 v85, {ACC+FACC+512+192}")
e("v_lshlrev_b32 v84, 6, v25"); e("v_lshl_add_u32 v84, v26, 4, v84")
e("v_mov_b32 v38, 0x3f803f80"); e(f"v_cndmask_b32 v{FA}, 0, v38, vcc")
for q in range(1, 20): e(f"v_mov_b32 v{FA+q}, v{FA}")
e(f"s_mul_i32 s{sT0}, s{sWV}, {SCRW}")
e(f"v_mul_u32_u24 v6, 336, v25"); e("v_lshl_add_u32 v6, v26, 4, v6"); e(f"v_add_u32 v6, s{sT0}, v6")
e(f"v_mul_u32_u24 v37, 52, v{vL}"); e("v_lshrrev_b32 v37, 10, v37")
e(f"v_lshl_add_u32 v87, v37, 4, v{vLin}"); e(f"v_add_u32 v87, s{sT0}, v87")
e(f"v_mul_u32_u24 v27, 320, v37"); e(f"v_sub_u32 v27, v{vLin}, v27")
assert all((c * 52) >> 10 == c // 20 for c in range(64))
FG = [86, 18, 20]
for i in range(3):
    rowbase(FG[i], 37, oYG, oYL, oBA, 38); e(f"v_add_u32 v{FG[i]}, v{FG[i]}, v27")
    if i < 2: e("v_add_u32 v37, 3, v37")
e(f"s_mul_i32 s{sT0}, s{sWV}, 320"); e(f"s_add_u32 s{sT0}, s{sT0}, s{sLay}")
e(f"s_sub_u32 s{sT1}, s{sJ}, 20"); e(f"s_mul_i32 s{sT1}, s{sT1}, 2560"); e(f"s_mul_i32 s{sT3}, s{sWV}, 640"); e(f"s_add_u32 s{sT1}, s{sT1}, s{sT3}")
e(f"s_add_u32 s{sT1}, s{sT1}, s{sLG}"); e(f"s_add_u32 s{sT1}, s{sT1}, {oFP}")
e("s_waitcnt lgkmcnt(0)")
e(f"s_cmp_eq_u32 s{sPass}, 0"); e("s_cbranch_scc1 FW2")
def t_(): lab("FW2"); w2dma(); e("s_branch FMM")
tail.append(t_)
lab("FPOLL")
W2R = [f"a[{240+2*t}:{241+2*t}]" for t in range(6)] + ["v[108:109]", "v[110:111]", "v[2:3]", "v[4:5]"]
for t in range(10): e(f"ds_read_b64_tr_b16 {W2R[t]}, v80 offset:{32*t}")
e("s_waitcnt lgkmcnt(0)")
e(f"s_mul_i32 s{sT2}, s{sWV}, 320"); e(f"s_add_u32 s{sT2}, s{sT2}, s{sLG}"); e(f"s_add_u32 s{sT2}, s{sT2}, {oYL}")
gate(sT2, 20, 36)
setexec((1 << 60) - 1)
poll([f"buffer_load_dwordx4 {vr(T+4*i)}, v{FG[i]}, {sr(sW)}, s{sT0} offen sc1" for i in range(3)], [T, T + 4, T + 8], 36, pid=7, slp=int(OPT.get("slpy", 0)))
for i in range(3): e(f"ds_write_b128 v87, {vr(T+4*i)} offset:{3*336*i}")
setexec(ROWS9)
for kk in range(5): e(f"ds_read_b128 {vr(FA+4*kk)}, v6 offset:{64*kk}")
setexec(FULL)
stamp(8)
lab("FMM")
for kk in range(5):
    e(f"s_waitcnt lgkmcnt({4-kk})")
    for t in range(3):
        c = "0" if kk == 0 else vr(T + 4 * t)
        bb = vr(F + 20 * t + 4 * kk) if t < 2 else vr(FA + 4 * kk)
        e(f"v_mfma_f32_16x16x32_bf16 {vr(T+4*t)}, {vr(FA+4*kk)}, {bb}, {c}")
for t in range(3): e(f"v_add_f32 v{T+4*t}, v{T+4*t}, v{T+4*t+1}"); e(f"v_add_f32 v{T+4*t+2}, v{T+4*t+2}, v{T+4*t+3}")
for t in range(3): e(f"v_add_f32 v{T+4*t}, v{T+4*t}, v{T+4*t+2}")
xreduce(T, T + 4, T + 8, T + 1)
e(f"ds_write_b32 v81, v{T}")
e(f"s_cmp_eq_u32 s{sPass}, 0")
e("s_waitcnt lgkmcnt(0)"); e("s_barrier")
e(f"ds_read_b128 {vr(T)}, v83"); e(f"ds_read_b128 {vr(T+4)}, v85"); e(f"ds_read_b128 {vr(T+8)}, v82"); e(f"ds_read_b128 {vr(T+12)}, v82 offset:256")
e("s_cbranch_scc1 FCS")
def sum4(b): e(f"v_add_f32 v{b}, v{b}, v{b+1}"); e(f"v_add_f32 v{b+2}, v{b+2}, v{b+3}"); e(f"v_add_f32 v{b}, v{b}, v{b+2}")
d = lambda sft: f"v_add_f32_dpp v{T}, v{T}, v{T} row_ror:{sft} row_mask:0xf bank_mask:0xf"
e("s_waitcnt lgkmcnt(3)"); sum4(T); e("s_waitcnt lgkmcnt(2)")
e(f"v_add_f32 v{T+4}, v{T+4}, v{T+5}"); e(d(8)); e(f"v_add_f32 v{T+6}, v{T+6}, v{T+7}"); e(f"v_add_f32 v{T+4}, v{T+4}, v{T+6}"); e(d(4))
e("s_waitcnt lgkmcnt(0)")
e(f"v_subrev_f32 v{T+5}, 0x44200000, v{T+4}"); e(d(2))
e(f"v_add_f32 v{T+8}, v{T+8}, v{T+9}"); e(f"v_mul_f32 v{T+6}, 0x3acccccd, v{T+5}"); e(d(1))
e(f"v_add_f32 v{T+10}, v{T+10}, v{T+11}"); e(f"v_sub_f32 v{T}, v{T}, v{T+5}")
e(f"v_add_f32 v{T+8}, v{T+8}, v{T+10}"); e(f"v_mul_f32 v{T}, 0x3acccccd, v{T}")
e(f"v_add_f32 v{T+12}, v{T+12}, v{T+13}"); e(f"v_fma_f32 v{T}, -v{T+6}, v{T+6}, v{T}")
e(f"v_add_f32 v{T+14}, v{T+14}, v{T+15}"); e(f"v_max_f32 v{T}, 0, v{T}")
e(f"v_fma_f32 v{T+8}, -v{T+4}, v{vCG}, v{T+8}"); e(f"v_add_f32 v{T}, 0x3727c5ac, v{T}")
e(f"v_add_f32 v{T+12}, v{T+12}, v{T+14}"); e(f"v_rsq_f32 v{T}, v{T}")
e(f"v_fma_f32 v{T+12}, -v{T+4}, v{vCU}, v{T+12}"); e(f"v_mul_f32 v{T+9}, 0xbfb8aa3b, v{T+8}")
e(f"v_mul_f32 v{T+9}, v{T+9}, v{T}"); e(f"v_mul_f32 v{T+12}, v{T+12}, v{T+8}"); e(f"v_exp_f32 v{T+9}, v{T+9}")
e(f"v_mul_f32 v{T+12}, v{T+12}, v{T}"); e(f"v_add_f32 v{T+9}, 1.0, v{T+9}"); e(f"v_mul_f32 v{T+12}, v{T+12}, v{T}"); e(f"v_rcp_f32 v{T+9}, v{T+9}")
e(f"v_mul_f32 v{T+12}, v{T+12}, v{T+9}")
for q in range(4): e(f"v_mov_b32_dpp v{T+4+q}, v{T+12} quad_perm:[{q},{q},{q},{q}] row_mask:0xf bank_mask:0xf")
e(f"v_cvt_pk_bf16_f32 v{T+4}, v{T+4}, v{T+5}"); e(f"v_cvt_pk_bf16_f32 v{T+5}, v{T+6}, v{T+7}")
HB = 60
def hm(t): return [f"v_cndmask_b32 v{HB+2*t+q}, 0, v{T+4+q}, {sp(sMf+2*t)}" for q in range(2)]
W2Q = ["a[240:243]", "a[244:247]", "a[248:251]", "v[108:111]", "v[2:5]"]
for x in hm(0) + hm(1) + hm(2): e(x)
for t in range(5):
    c = "0" if t == 0 else vr(T)
    e(f"v_mfma_f32_16x16x32_bf16 {vr(T)}, {W2Q[t]}, {vr(HB+4*t)}, {c}")
    for k in (2 * t + 3, 2 * t + 4):
        if k < 10:
            for x in hm(k): e(x)
setexec(0x03FF03FF03FF03FF)
lstore(f"buffer_store_dwordx4 {vr(T)}, v84, {sr(sW)}, s{sT1} offen")
setexec(FULL)
stamp(9)
def t_():
    lab("FCS")
    e("s_waitcnt lgkmcnt(0)"); sum4(T + 8); sum4(T + 12)
    e(f"v_mul_f32 v{vCG}, 0x3acccccd, v{T+8}"); e(f"v_mul_f32 v{vCU}, 0x3acccccd, v{T+12}")
    e(f"s_mov_b32 s{sPass}, 1"); e("s_waitcnt vmcnt(0)"); e("s_barrier"); stamp(13); e("s_branch FPOLL")
tail.append(t_)
lab("NEXT")
e(f"s_cmp_lg_u32 s{sLay}, 0"); e("s_cbranch_scc1 DONE")
e(f"s_mov_b32 s{sLay}, {LS}"); e(f"s_add_u32 s{sLG}, s{sLG}, {LS}"); e(f"s_add_u32 s{sYg}, s{sYg}, {LS}"); e(f"s_add_u32 s{sYl}, s{sYl}, {LS}")
e("s_branch LOOP")
flush_near()
lab("DONE")
if SPIN:
    e("v_accvgpr_read_b32 v38, a253"); e("s_nop 1"); e("v_readfirstlane_b32 s96, v38")
    lab("SPINL"); e("s_memrealtime s[98:99]"); e("s_waitcnt lgkmcnt(0)"); e("s_sub_u32 s98, s98, s96"); e(f"s_cmp_lt_u32 s98, {SPIN*100}"); e("s_cbranch_scc1 SPINL")
e("s_endpgm")
i = 0
while i < len(tail): tail[i](); flush_near(); i += 1
lab("CODE_END")
e("s_endpgm")

body = A.pad()
hdr = [f"; @launch grid=(256,1,1) block=(256,1,1) lds={LDSSZ}", '.amdgcn_target "amdgcn-amd-amdhsa--gfx950"', ".text",
       f".globl {NAME}_kernel", ".p2align 8", f".type {NAME}_kernel,@function", f"{NAME}_kernel:"]
ftr = ['.section .rodata,"a"', ".p2align 6", f".amdhsa_kernel {NAME}_kernel", "  .amdhsa_next_free_vgpr 512", "  .amdhsa_next_free_sgpr 102",
       "  .amdhsa_accum_offset 256", "  .amdhsa_group_segment_fixed_size 0", "  .amdhsa_kernarg_size 96", "  .amdhsa_user_sgpr_count 2",
       "  .amdhsa_user_sgpr_kernarg_segment_ptr 1", "  .amdhsa_system_sgpr_workgroup_id_x 1", ".end_amdhsa_kernel"]
src = "\n".join(hdr + body + ftr) + "\n"
import re
for m in re.finditer(r"buffer_\S+ .*offset:(\d+)", src): assert int(m.group(1)) < 4096, m.group(0)
for m in re.finditer(r"ds_\S+ .*offset:(\d+)", src): assert int(m.group(1)) < 65536, m.group(0)
open(OUT, "w").write(src)
```

```python
import os, sys
sys.path.insert(0, os.path.dirname(os.path.abspath(__file__)))
from asmlib import Asm
NAME = "interleave_layers__sliding_block_cached__glu_gated_swiglu__decode"
OPT = dict(a.split("=") for a in sys.argv[2:])
OUT = sys.argv[1] if len(sys.argv) > 1 else f"/code/{NAME}.s"
STAMP = int(OPT.get("stamp", 0))
NT = OPT.get("nt", "nt").replace("x", "")
NTW = OPT.get("ntw", "nt").replace("x", "")
SKIP = OPT.get("skip", "").split(",")
FORCESLOW = int(OPT.get("slow", 0))
SPIN = int(OPT.get("spin", 0))
A = Asm(); e = A.e; lab = A.lab
tail = []

RS = 416; SCRW = 16 * RS
SCR = 0; WQ = 4 * SCRW; ROLE = WQ + 30720
WO = ROLE; W1 = ROLE; W3 = ROLE + 20480; W2 = ROLE + 40960
MISC = ROLE + 61440; QB = MISC; ACC = MISC + 512
OACC = 0; YACC = 3072; FACC = 4096
PT = ACC + 5120; ML4 = PT + 1024
FLG = ML4 + 64
LDSSZ = FLG + 64
FDMA = OPT.get("fdma", "late")
OMASK = int(OPT.get("omask", 1))
WDMA = OPT.get("wdma", "mid")
PF = OPT.get("pf", "ow")
NTP = OPT.get("ntp", "x").replace("x", "")
NTR = OPT.get("ntr", "x").replace("x", "")
GB = 81920; oQ = 0; oO = 32768; oML = 45056; oQF = 45312; oYL = 46080; oFL = 47360; oBA = 48640; oBB = 49920; oFP = 51200
GOFF = 8 * GB; oYG = GOFF; oFG = GOFF + 10240; LS = 0xA8000
OOB = 0x7FFFFFF0
sK, sV, sW, sWQ, sRA, sRB, sRC, sX, sO = 8, 12, 16, 20, 24, 28, 32, 36, 40
sG, sJ, sHH, sS, sWV, sKV, sLay, sFast, sCnt = 68, 69, 70, 71, 72, 73, 74, 75, 76
sT0, sT1, sT2 = 77, 78, 79
sLG = 3
sClr = 4
sXcc = 5
sTL = 6
sT3 = 7
sYg, sYl = 80, 81
sMf = 44
def sr(b): return f"s[{b}:{b+3}]"
def sp(b): return f"s[{b}:{b+1}]"
def vr(b, n=4): return f"v[{b}:{b+n-1}]" if n > 1 else f"v{b}"
def ar(b, n=4): return f"a[{b}:{b+n-1}]"
def srd(d, lo, nbytes):
    e(f"s_mov_b32 s{d}, s{lo}"); e(f"s_and_b32 s{d+1}, s{lo+1}, 0xffff")
    e(f"s_mov_b32 s{d+2}, {nbytes}"); e(f"s_mov_b32 s{d+3}, 0x20000")
def setexec(mask):
    lo, hi = mask & 0xffffffff, mask >> 32
    if mask == (1 << 64) - 1: e("s_mov_b64 exec, -1")
    elif hi == 0 and lo <= 64: e(f"s_mov_b64 exec, {lo}")
    else: e(f"s_mov_b32 exec_lo, {lo:#x}"); e(f"s_mov_b32 exec_hi, {hi:#x}")
FULL = (1 << 64) - 1
ROWS9 = 0x01FF01FF01FF01FF
vL, vLin, vWr, vKrd, vVrd, vCS, vAq, vAq16, vQst, vQld, vQBw, vQBr, vIdx, vAcc, vTq1, vTq2, vSC, vPw = 0, 1, 2, 5, 6, 7, 8, 9, 10, 11, 12, 13, 14, 15, 16, 17, 18, 19
vC1, vC2, vXR = 20, 21, 22
T = 24
F = 40
SPARE = 88
def vblock(b):
    if b < 2: return ("a", 192 + 24 * b)
    if b == 8: return ("v", SPARE)
    return ("v", 112 + 24 * (b - 2))
def rg(f, b, n): return f"{f}[{b}:{b+n-1}]"

uid = [0]
def nid(): uid[0] += 1; return uid[0]
stamps = [0]
SPINAT = int(OPT.get("spinat", -1))
def stamp(i, val=None):
    if SPIN and val is None and SPINAT % 16 == i:
        k = nid()
        e(f"s_cmp_lg_u32 s{sLay}, {LS*(SPINAT//16)}"); e(f"s_cbranch_scc1 NOSP{k}")
        e("s_memrealtime s[100:101]"); e("s_waitcnt lgkmcnt(0)"); e("v_accvgpr_write_b32 a253, s100"); lab(f"NOSP{k}")
    if not STAMP: return
    if STAMP == 3 and (val is not None or i != 7): return
    if STAMP == 2 and val is None and i not in (0, 14): return
    if STAMP == 1 and (val is not None or i == 14): return
    e("s_memrealtime s[100:101]"); e("v_accvgpr_write_b32 a254, v38"); e("v_accvgpr_write_b32 a255, v39")
    e(f"s_lshl_b32 s98, s2, 2"); e(f"s_add_u32 s98, s98, s{sWV}"); e("s_lshl_b32 s98, s98, 7")
    e(f"s_cmp_eq_u32 s{sLay}, 0"); e(f"s_cselect_b32 s99, 0, 64"); e(f"s_add_u32 s99, s99, {4*i}"); e("s_add_u32 s98, s98, s99"); e("s_add_u32 s98, s98, 0x40000000")
    e("s_waitcnt lgkmcnt(0)"); e(f"v_mov_b32 v38, {val or 's100'}"); e("v_mov_b32 v39, 0")
    e("s_mov_b64 s[100:101], exec"); e("s_mov_b64 exec, 1")
    A.vmem(f"buffer_store_dword v38, v39, {sr(sW)}, s98 offen", "stamp")
    e("s_mov_b64 exec, s[100:101]"); e("s_nop 1"); e("v_accvgpr_read_b32 v38, a254"); e("v_accvgpr_read_b32 v39, a255")
def lstore(instr, counted=None):
    k = nid()
    e(f"s_cmp_eq_u32 s{sFast}, 1"); e(f"s_cbranch_scc0 SLOW{k}")
    if counted: A.vmem(instr, counted)
    else: e(instr)
    lab(f"BACK{k}")
    def t(): lab(f"SLOW{k}"); e(instr + " sc1"); e(f"s_branch BACK{k}")
    tail.append(t)
def check(regs_, tmp):
    r = list(regs_)
    if len(r) == 1: e(f"v_cmp_eq_u32 vcc, -1, v{r[0]}"); return
    cur = r.pop(0)
    while r:
        if len(r) >= 2: e(f"v_max3_u32 v{tmp}, v{cur}, v{r[0]}, v{r[1]}"); r = r[2:]
        else: e(f"v_max_u32 v{tmp}, v{cur}, v{r[0]}"); r = r[1:]
        cur = tmp
    e(f"v_cmp_eq_u32 vcc, -1, v{tmp}")
LIMIT = 0x8000
def poll(loads, regs_, tmp, pid=None, slp=0, first=None):
    k = nid()
    if pid is not None: stamp(pid, "s100")
    e(f"s_mov_b32 s{sCnt}, 1")
    if first:
        for l in loads: e(l)
        first(); e(f"s_branch POLLW{k}")
    lab(f"POLL{k}")
    for l in loads: e(l)
    lab(f"POLLW{k}")
    e("s_waitcnt vmcnt(0)")
    check(regs_, tmp)
    e(f"s_cbranch_vccnz AGAIN{k}")
    lab(f"POLLX{k}")
    def t():
        lab(f"AGAIN{k}")
        if slp: e(f"s_sleep {slp}")
        e(f"s_add_u32 s{sCnt}, s{sCnt}, 1"); e(f"s_cmp_lt_u32 s{sCnt}, {LIMIT}"); e(f"s_cbranch_scc1 POLL{k}"); e(f"s_branch POLLX{k}")
    near.append(t)
    if pid is not None: stamp(pid + 1, "s100"); stamp(pid + 2, f"s{sCnt}")
    A.drained()
SEL = int(OPT.get("sel", 1))
def poll_sel(groups, tmp, pid=None, first=None, firstloads=None):
    allr = [r for g in groups for r in g[1]]
    loads = firstloads or [l for g in groups for l in g[0]]
    if not SEL: return poll(loads, allr, tmp, pid=pid, first=first)
    k = nid()
    if pid is not None: stamp(pid, "s100")
    for l in loads: e(l)
    if first: first()
    if pid is not None and STAMP == 2: e(f"s_mov_b32 s{sCnt}, 1")
    e("s_waitcnt vmcnt(0)")
    check(allr, tmp)
    e(f"s_cbranch_vccnz AGAIN{k}")
    lab(f"POLLX{k}")
    def t():
        lab(f"AGAIN{k}")
        e("s_mov_b64 s[94:95], exec"); e(f"s_mov_b32 s{sCnt}, 1")
        lab(f"AG2{k}")
        for gi, (ls, rs) in enumerate(groups):
            if len(groups) > 1: check(rs, tmp)
            e("s_mov_b64 exec, vcc")
            if len(groups) > 1: e(f"s_cbranch_execz AG3{k}_{gi}")
            for l in ls: e(l)
            lab(f"AG3{k}_{gi}"); e("s_mov_b64 exec, s[94:95]")
        e(f"s_add_u32 s{sCnt}, s{sCnt}, 1"); e(f"s_cmp_ge_u32 s{sCnt}, {LIMIT}")
        e("s_waitcnt vmcnt(0)")
        check(allr, tmp)
        e(f"s_cbranch_vccz POLLX{k}"); e(f"s_cbranch_scc0 AG2{k}"); e(f"s_branch POLLX{k}")
    near.append(t)
    if pid is not None: stamp(pid + 1, "s100"); stamp(pid + 2, f"s{sCnt}")
    A.drained()
near = []
def flush_near():
    while near: near.pop(0)()
GATE = int(OPT.get("gate", 1)); GDLY = int(OPT.get("gdly", 0)); ODLY = int(OPT.get("odly", 16))
def gate(sreg, nl, tmp):
    if not GATE: return
    setexec((1 << nl) - 1)
    poll([f"buffer_load_dword v{tmp}, v{vLin}, {sr(sW)}, s{sreg} offen sc1"], [tmp], tmp)
    if GDLY: e(f"s_sleep {GDLY}")
def late_check(tag, loads, regs_, tmp, pre=None, post=None):
    k = nid()
    A.wait(tag)
    check(regs_, tmp)
    e(f"s_cbranch_vccnz RETRY{k}")
    lab(f"OK{k}")
    def t():
        lab(f"RETRY{k}")
        if pre: pre()
        save = A.vm; poll(loads, regs_, tmp); A.vm = save
        if post: post()
        e(f"s_branch OK{k}")
    tail.append(t)

sTO = 82
sPo, sPw = 90, 91
vLin2 = vXR + 1
e("s_load_dwordx16 s[44:59], s[0:1], 0"); e("s_load_dwordx8 s[60:67], s[0:1], 64")
e("s_cmp_ge_u32 s2, 256"); e("s_cbranch_scc1 CODE_END")
if STAMP or SPIN: e("s_memrealtime s[96:97]")
e("v_lshrrev_b32 v2, 6, v0"); e("v_and_b32 v24, 63, v0"); e(f"v_readfirstlane_b32 s{sWV}, v2")
e(f"s_and_b32 s{sG}, s2, 7"); e(f"s_lshr_b32 s{sJ}, s2, 3"); e(f"s_lshr_b32 s{sHH}, s{sJ}, 3"); e(f"s_and_b32 s{sS}, s{sJ}, 7")
e(f"v_lshlrev_b32 v{vLin}, 4, v24")
e(f"s_lshl_b32 s{sT0}, s{sHH}, 3"); e(f"s_add_u32 s{sT0}, s{sT0}, s{sG}")
e(f"s_mul_i32 s{sKV}, s{sT0}, 12582912"); e(f"s_lshl_b32 s{sT1}, s{sS}, 2"); e(f"s_add_u32 s{sT1}, s{sT1}, s{sWV}")
e(f"s_mul_i32 s{sT1}, s{sT1}, 6144"); e(f"s_add_u32 s{sKV}, s{sKV}, s{sT1}"); e(f"s_add_u32 s{sKV}, s{sKV}, 11010048")
e(f"v_add_u32 v{vLin2}, 4096, v{vLin}"); e(f"s_mov_b32 s{sK+2}, 402653184"); e(f"s_mov_b32 s{sK+3}, 0x20000")
e("s_getpc_b64 s[100:101]"); lab("PCREF")
e(f"s_sub_u32 s100, s100, PCREF-{NAME}_kernel"); e("s_subb_u32 s101, s101, 0")
e(f"s_lshl_b32 s{sT1}, s{sS}, 12"); e(f"v_lshl_add_u32 v25, v0, 4, s{sT1}")
e(f"v_cmp_gt_u32 vcc, CODE_END-{NAME}_kernel-16, v25"); e("s_and_saveexec_b64 s[98:99], vcc"); e("s_cbranch_execz NOCPF")
e(f"global_load_dwordx4 a[240:243], v25, s[100:101]")
lab("NOCPF"); e("s_mov_b64 exec, -1")
e(f"s_mul_i32 s{sT2}, s{sT0}, 384")
e(f"s_mov_b32 s{sLay}, 0"); e(f"s_mul_i32 s{sLG}, s{sG}, {GB}"); e(f"s_mov_b32 s{sFast}, 0")
e(f"v_mov_b32 v32, -1"); e(f"v_mov_b32 v33, -1"); e(f"v_mov_b32 v34, -1"); e(f"v_mov_b32 v35, -1")
e(f"s_mul_i32 s{sT0}, s{sJ}, 576"); e(f"s_add_u32 s{sT0}, s{sT0}, s{sLG}"); e(f"s_add_u32 s{sT0}, s{sT0}, {oO}"); e(f"v_add_u32 v{vC1}, s{sT0}, v{vLin}")
e(f"s_mul_i32 s{sT0}, s2, 80"); e(f"s_add_u32 s{sT0}, s{sT0}, {GOFF-576}"); e(f"v_add_u32 v25, s{sT0}, v{vLin}")
e("v_cmp_le_u32 vcc, 36, v0"); e(f"v_cndmask_b32 v{vC2}, v{vC1}, v25, vcc"); e(f"v_mov_b32 v25, {OOB}"); e(f"v_cndmask_b32 v{vC1}, v{vC1}, v25, vcc")
e("v_cmp_le_u32 vcc, 41, v0"); e(f"v_cndmask_b32 v{vC2}, v{vC2}, v25, vcc")
e(f"s_mov_b32 s{sW+2}, 1610612736"); e(f"s_mov_b32 s{sW+3}, 0x20000")
e("s_waitcnt lgkmcnt(0)")
e(f"s_mov_b32 s{sK}, s46"); e(f"s_and_b32 s{sK+1}, s47, 0xffff"); e(f"s_mov_b32 s{sW}, s66"); e(f"s_and_b32 s{sW+1}, s67, 0xffff")
CLRPOS = int(OPT.get("clrpos", 0))
def clears():
    if "clr" in SKIP: return
    A.vmem(f"buffer_store_dwordx4 v[32:35], v{vC2}, {sr(sW)}, 0 offen sc1", "clr")
if SPIN: e("v_mov_b32 v38, s96"); e("v_accvgpr_write_b32 a253, v38")
RW = int(OPT.get("rw", 16)); RF = (320 - 20 * RW) // 12
assert 20 * RW + 12 * RF == 320
NPW = -(-max(RW, RF) * 24 // 64)
pend = []
def q_tile(srdn, t, f, base, tag):
    so = sKV if t == 0 else sTO + t
    for i in range(6):
        pend.append((f"buffer_load_dwordx4 {rg(f, base+4*i, 4)}, v{vLin if i < 4 else vLin2}, {sr(srdn)}, s{so} offen offset:{1024*(i%4)} {NT}", tag))
def qK(t): q_tile(sK, t, "a", 24 * t, f"K{t}")
def qV(t): f, b = vblock(t + 1); q_tile(sV, t, f, b, f"V{t}")
def q_pfo():
    for n in range(9): pend.append((f"buffer_load_dwordx4 a[240:243], v{[vLin, vLin, vLin2, 108, 109][n//2]}, {sr(sWQ)}, s{sPo} offen offset:{1024*(n%4)} {NTP}", "pfo"))
def q_pfw():
    for n in range(NPW): pend.append((f"buffer_load_dwordx4 a[240:243], v{101+n}, {sr(sX)}, s{sPw} offen {NTP}", "pfw"))
nfill = [0]; BARN = int(OPT.get("barn", 6)); THR = int(OPT.get("thr", 0)); THRE = int(OPT.get("thre", 0))
hold = {"V7", "pfw", "pfo"}; LA = int(OPT.get("la", 12))
def ahead(tag):
    while tag in A.vm and pend and pend[0][1] not in hold and len(A.vm) - 1 - max(i for i, x in enumerate(A.vm) if x == tag) < LA: fill()
def fill(n=1):
    for _ in range(n):
        if pend and not (pend[0][1] in hold):
            if THR and nfill[0] >= THR and len(pend) > THRE: e(f"s_waitcnt vmcnt({THR-1})")
            x, tag = pend.pop(0); A.vmem(x, tag); nfill[0] += 1
            if BARN and nfill[0] > 12 and nfill[0] % BARN == 0 and len(pend) >= 3: e("s_barrier")
BARS = OPT.get("bar", "").split(",")
def upto(tag):
    while any(t == tag for _, t in pend): fill()
    if tag in BARS or "every" in BARS and tag not in ("K0", "K1", "V7"): e("s_barrier")
def Kld(t): upto(f"K{t}")
def Vld(t): upto(f"V{t}")
for it in OPT.get("order", "K0 K1 K2 K3 w o K4 K5 K6 K7 V0 V1 V2 V3 V4 V5 V6 V7").replace(",", " ").split():
    if it == "w":
        if "pfw" not in SKIP: q_pfw()
    elif it == "o":
        if "pfo" not in SKIP: q_pfo()
    elif it[0] == "K": qK(int(it[1]))
    else: qV(int(it[1]))
fill(CLRPOS); clears(); Kld(0)
if STAMP == 1: e("s_memrealtime s[94:95]")
e(f"s_add_u32 s{sTO+1}, s{sKV}, 196608")
Kld(1)
srd(sV, 48, 402653184); srd(sWQ, 50, 7864320); srd(sX, 44, 1280); srd(sO, 62, 1280)
srd(sRB, 58, 1966080); srd(sRC, 60, 1966080)
e(f"s_cmp_lt_u32 s{sJ}, 20"); e(f"s_cselect_b32 s{sRA}, s52, s56"); e(f"s_cselect_b32 s{sRA+1}, s53, s57"); e(f"s_cselect_b32 s{sRA+2}, s{sWQ+2}, s{sRB+2}")
e(f"s_and_b32 s{sRA+1}, s{sRA+1}, 0xffff"); e(f"s_mov_b32 s{sRA+3}, 0x20000")
if STAMP:
    e(f"s_lshl_b32 s98, s2, 2"); e(f"s_add_u32 s98, s98, s{sWV}"); e("s_lshl_b32 s98, s98, 7"); e("s_add_u32 s98, s98, 0x40000000")
    e("v_mov_b32 v38, s96"); e("v_mov_b32 v39, 0"); e("s_mov_b64 exec, 1")
    A.vmem(f"buffer_store_dword v38, v39, {sr(sW)}, s98 offen", "stamp")
    if STAMP == 1: e("s_waitcnt lgkmcnt(0)"); e("v_mov_b32 v37, s94"); A.vmem(f"buffer_store_dword v37, v39, {sr(sW)}, s98 offen offset:56", "stamp")
    e("s_mov_b64 exec, -1")
for t in range(2, 8): e(f"s_add_u32 s{sTO+t}, s{sTO+t-1}, 196608")
e(f"v_mov_b32 v{vL}, v24")
e(f"s_mul_i32 s{sT0}, s{sWV}, {SCRW}")
for r in range(3):
    e(f"v_add_u32 v25, {64*r}, v{vL}"); e("v_mul_u32_u24 v26, 171, v25"); e("v_lshrrev_b32 v26, 12, v26")
    e("v_mul_u32_u24 v27, 24, v26"); e("v_sub_u32 v27, v25, v27"); e("v_lshlrev_b32 v27, 4, v27")
    e(f"v_mul_u32_u24 v25, {RS}, v26"); e(f"v_add3_u32 v{vWr+r}, v25, v27, s{sT0}")
    e(f"v_mul_u32_u24 v25, 12288, v26"); e(f"v_add_u32 v{F+r}, v25, v27")
    e(f"v_mul_u32_u24 v25, 3072, v26"); e(f"v_add_u32 v{101+r}, v25, v27")
assert all((c * 171) >> 12 == c // 24 for c in range(192))
ATP = int(OPT.get("atp", 0))
def atomic_block():
    sA0, sA1, sA2 = 92, 93, 94
    e(f"s_getreg_b32 s{sXcc}, hwreg(HW_REG_XCC_ID, 0, 4)")
    e(f"s_lshr_b32 s{sA0}, s{sXcc}, 2"); e(f"s_lshl_b32 s{sA1}, s{sG}, 2"); e(f"s_add_u32 s{sA0}, s{sA0}, s{sA1}")
    e(f"s_and_b32 s{sA1}, s{sXcc}, 3"); e(f"s_lshl_b32 s{sA1}, s{sA1}, 3"); e(f"s_lshl_b32 s{sA2}, 1, s{sA1}")
    e(f"s_lshl_b32 s96, 32, s{sA1}"); e(f"s_mov_b32 s{sXcc}, s{sA0}")
    e(f"s_cmp_lg_u32 s{sWV}, 0"); e("s_cbranch_scc1 NOATOM")
    save = list(A.vm); A.wait("clr"); A.vm = save
    e(f"s_lshl_b32 s{sA0}, s{sA0}, 2"); e(f"v_mov_b32 v36, s{sA0}"); e(f"v_mov_b32 v37, s{sA2}")
    if "atom" not in SKIP: setexec(1); e("global_atomic_add v36, v37, s[64:65] sc1"); setexec(FULL)
    lab("NOATOM")
    stamp(1, "s100")
if ATP == 0: atomic_block()
e(f"s_mul_i32 s{sT1}, s{sS}, {80*12288}"); e(f"s_add_u32 s{sT2}, s{sT2}, s{sT1}")
e(f"s_mul_i32 s{sT1}, s{sWV}, {8*12288}"); e(f"s_add_u32 s{sT2}, s{sT2}, s{sT1}")
e(f"s_mul_i32 s{sT1}, s{sWV}, 3072"); e(f"s_add_u32 s{sT1}, s{sT1}, {WQ}")
for gi in range(3):
    if gi == 2: e(f"s_cmp_ge_u32 s{sWV}, 2"); e("s_cbranch_scc1 NOWQ3")
    for r in range(3):
        e(f"s_add_u32 m0, s{sT1}, {gi*4*3072 + r*1024}")
        if "wq" not in SKIP: A.vmem(f"buffer_load_dwordx4 v{F+r}, {sr(sWQ)}, s{sT2} offen {NTW} lds", "wq", counted=(gi < 2))
    if gi < 2: e(f"s_add_u32 s{sT2}, s{sT2}, {32*12288}")
    if ATP == gi + 1: atomic_block()
lab("NOWQ3")
e(f"v_and_b32 v25, 15, v{vL}"); e(f"v_lshrrev_b32 v26, 4, v{vL}")
e(f"v_bfe_u32 v27, v{vL}, 2, 2"); e(f"v_and_b32 v28, 3, v{vL}")
e("v_cmp_eq_u32 vcc, 12, v25"); e("v_mov_b32 v36, 0x3f803f80"); e(f"v_cndmask_b32 v70, 0, v36, vcc")
for q in range(1, 10): e(f"v_mov_b32 v{70+q}, v70")
for q in range(10): e(f"v_mov_b32 v{SPARE+q}, v70")
e(f"s_mul_i32 s{sT1}, s{sS}, 160")
e(f"v_lshlrev_b32 v36, 4, v26"); e(f"v_lshlrev_b32 v37, 3, v26")
setexec(0x0100010001000100)
A.vmem(f"buffer_load_dwordx4 {vr(SPARE)}, v36, {sr(sX)}, s{sT1} offen", "x")
A.vmem(f"buffer_load_dwordx4 {vr(SPARE+4)}, v36, {sr(sX)}, s{sT1} offen offset:64", "x")
A.vmem(f"buffer_load_dwordx2 {vr(SPARE+8,2)}, v37, {sr(sX)}, s{sT1} offen offset:128", "x")
setexec(FULL)
e(f"s_lshl_b32 s{sT2}, s{sJ}, 6"); e(f"v_lshlrev_b32 v38, 2, v25")
A.vmem(f"buffer_load_dword v{vXR}, v38, {sr(sX)}, s{sT2} offen", "x")
srd(sWQ, 52, 7864320)
e(f"s_cmp_lt_u32 s{sWV}, 2"); e(f"s_cselect_b32 s{sX}, s56, s58"); e(f"s_cselect_b32 s{sX+1}, s57, s59"); e(f"s_and_b32 s{sX+1}, s{sX+1}, 0xffff"); e(f"s_mov_b32 s{sX+2}, 1966080")
e(f"s_lshl_b32 s{sPo}, s{sHH}, 3"); e(f"s_add_u32 s{sPo}, s{sPo}, s{sG}"); e(f"s_lshl_b32 s{sPo}, s{sPo}, 3"); e(f"s_add_u32 s{sPo}, s{sPo}, s{sS}")
e(f"s_mul_i32 s{sPo}, s{sPo}, 30720"); e(f"s_mul_i32 s{sT2}, s{sWV}, 6144"); e(f"s_add_u32 s{sPo}, s{sPo}, s{sT2}")
e(f"s_cmp_eq_u32 s{sWV}, 3"); e(f"s_cselect_b32 s{sT2}, 3072, 0"); e(f"s_add_u32 s{sPo}, s{sPo}, s{sT2}")
e(f"s_cmp_lt_u32 s{sWV}, 2"); e(f"s_cselect_b32 s{sT2}, {OOB-0x10000000}, 0"); e(f"v_add_u32 v108, s{sT2}, v{vLin2}"); e(f"v_add_u32 v109, 4096, v108")
e(f"s_and_b32 s{sPw}, s{sWV}, 1"); e(f"s_lshl_b32 s{sT2}, s{sJ}, 1"); e(f"s_add_u32 s{sPw}, s{sPw}, s{sT2}")
e(f"s_mul_i32 s{sT2}, s{sPw}, {RF}"); e(f"s_add_u32 s{sT2}, s{sT2}, {40*(RW-RF)}"); e(f"s_mul_i32 s{sPw}, s{sPw}, {RW}")
e(f"s_cmp_lt_u32 s{sJ}, 20"); e(f"s_cselect_b32 s{sPw}, s{sPw}, s{sT2}"); e(f"s_mov_b32 s{sT3}, {RW*3072}"); e(f"s_cselect_b32 s{sT3}, s{sT3}, {RF*3072}")
e(f"s_mul_i32 s{sPw}, s{sPw}, 3072"); e(f"s_mul_i32 s{sT2}, s{sG}, 384"); e(f"s_add_u32 s{sPw}, s{sPw}, s{sT2}")
e(f"v_mov_b32 v29, {OOB-0x10000000}")
for n in range(3, NPW): e(f"v_add_u32 v{101+n}, {8*3072}, v{98+n}")
for n in range(NPW): e(f"v_cmp_gt_u32 vcc, s{sT3}, v{101+n}"); e(f"v_cndmask_b32 v{101+n}, v29, v{101+n}, vcc")
hold -= {"pfw", "pfo"}
fill(3)
e(f"v_mul_u32_u24 v29, {RS}, v25"); e(f"v_lshl_add_u32 v29, v26, 4, v29"); e(f"v_add_u32 v{vKrd}, s{sT0}, v29")
e(f"v_lshrrev_b32 v29, 2, v{vL}"); e(f"v_mul_u32_u24 v29, {RS}, v29"); e(f"v_lshl_add_u32 v29, v28, 3, v29"); e(f"v_add_u32 v{vVrd}, s{sT0}, v29")
e(f"s_mul_i32 s{sT2}, s{sWV}, 96"); e(f"s_add_u32 s{sT2}, s{sT2}, {WQ}")
e("v_lshl_add_u32 v29, v26, 3, v27"); e("v_mul_u32_u24 v29, 384, v29"); e("v_lshl_add_u32 v29, v28, 3, v29"); e(f"v_add_u32 v{vTq1}, s{sT2}, v29")
e("v_lshl_add_u32 v29, v26, 2, v27"); e("v_mul_u32_u24 v29, 384, v29"); e("v_lshl_add_u32 v29, v28, 3, v29"); e(f"v_add_u32 v{vTq2}, s{sT2}, v29")
def rowbase(dst, m, og, ol, ob, tmp):
    e(f"v_mul_u32_u24 v{dst}, 1280, v{m}"); e(f"v_add_u32 v{dst}, {og}, v{dst}")
    e(f"s_mul_i32 s{sT3}, s{sG}, {GB}"); e(f"s_add_u32 s{sT3}, s{sT3}, {ol}"); e(f"v_mov_b32 v{tmp}, s{sT3}")
    e(f"v_cmp_eq_u32 vcc, s{sG}, v{m}"); e(f"v_cndmask_b32 v{dst}, v{dst}, v{tmp}, vcc")
    if ob is not None:
        e(f"v_add_u32 v{tmp}, {ob-ol}, v{tmp}"); e(f"v_cmp_le_u32 vcc, 8, v{m}"); e(f"v_cndmask_b32 v{dst}, v{dst}, v{tmp}, vcc")
fill()
e(f"v_mul_u32_u24 v31, 103, v{vL}"); e("v_lshrrev_b32 v31, 10, v31")
e(f"v_mul_u32_u24 v30, 10, v31"); e(f"v_sub_u32 v30, v{vL}, v30"); e(f"v_lshl_add_u32 v29, v30, 4, s{sT1}")
rowbase(vAq, 31, oFG, oFL, oBB, 30); e(f"v_add_u32 v{vAq}, v{vAq}, v29")
e("v_add_u32 v31, 6, v31"); rowbase(vAq16, 31, oFG, oFL, oBB, 30); e(f"v_add_u32 v{vAq16}, v{vAq16}, v29")
e(f"v_mov_b32 v30, {OOB}"); e(f"v_cmp_le_u32 vcc, 30, v{vL}"); e(f"v_cndmask_b32 v{vAq16}, v{vAq16}, v30, vcc")
assert all((c * 103) >> 10 == c // 10 for c in range(64))
e(f"s_lshl_b32 s{sT1}, s{sJ}, 10"); e(f"s_lshl_b32 s{sT2}, s{sWV}, 8"); e(f"s_add_u32 s{sT1}, s{sT1}, s{sT2}")
e(f"v_lshl_add_u32 v{vQst}, v{vL}, 2, s{sT1}")
e(f"s_lshl_b32 s{sT1}, s{sHH}, 13"); e(f"s_add_u32 s{sT1}, s{sT1}, s{sT2}")
e(f"v_lshlrev_b32 v29, 10, v26"); e(f"v_lshl_add_u32 v29, v25, 4, v29"); e(f"v_add_u32 v{vQld}, s{sT1}, v29")
fill()
e(f"s_mul_i32 s{sT1}, s{sWV}, 96"); e(f"s_add_u32 s{sT1}, s{sT1}, {QB}")
e(f"v_lshl_add_u32 v29, v27, 5, s{sT1}"); e("v_lshl_add_u32 v29, v28, 2, v29"); e("v_lshrrev_b32 v30, 1, v26"); e("v_lshl_add_u32 v29, v30, 4, v29")
e("v_and_b32 v30, 1, v26"); e("v_lshl_add_u32 v29, v30, 1, v29"); e(f"v_mov_b32 v30, {QB+384}")
e("v_cmp_le_u32 vcc, 12, v25"); e(f"v_cndmask_b32 v{vQBw}, v29, v30, vcc")
e(f"v_and_b32 v30, 1, v{vL}"); e(f"v_lshlrev_b32 v29, 5, v26"); e("v_lshl_add_u32 v29, v30, 4, v29"); e(f"v_add_u32 v{vQBr}, {QB}, v29")
e("v_mul_u32_u24 v30, 0xaaaa, v30"); e("v_and_b32 v29, 1, v27"); e("v_mul_u32_u24 v29, 0xaaaa, v29"); e("v_lshl_or_b32 v29, v29, 16, v30"); e(f"v_add_u32 v{vIdx}, 0x44444444, v29")
fill()
e(f"s_lshl_b32 s{sT1}, s{sWV}, 8"); e(f"s_add_u32 s{sT1}, s{sT1}, {PT}")
e(f"v_lshrrev_b32 v29, 5, v{vL}"); e(f"v_lshl_add_u32 v29, v29, 6, s{sT1}")
for bit, sh in ((3, 5), (1, 4), (2, 3), (4, 2), (0, 1)): e(f"v_bfe_u32 v30, v{vL}, {bit}, 1"); e(f"v_lshl_add_u32 v29, v30, {sh}, v29")
e(f"v_mov_b32 v{vPw}, v29")
e(f"s_mul_i32 s{sT1}, s{sWV}, 768"); e(f"s_add_u32 s{sT1}, s{sT1}, {ACC}"); e(f"v_lshl_add_u32 v29, v25, 2, s{sT1}")
e(f"v_bfe_u32 v30, v{vL}, 4, 1"); e("v_lshl_add_u32 v29, v30, 7, v29"); e(f"v_lshrrev_b32 v30, 5, v{vL}"); e(f"v_lshl_add_u32 v{vAcc}, v30, 6, v29")
for t in range(10):
    m = 0x00010001 << t
    e(f"s_mov_b32 s{sMf+2*t}, {m:#x}"); e(f"s_mov_b32 s{sMf+2*t+1}, {m:#x}")

def Krel(t):
    upto(f"K{t}"); ahead(f"K{t}"); A.wait(f"K{t}")
    if "rel" in SKIP: return
    for i in range(6): e(f"ds_write_b128 v{vWr+i%3}, {ar(24*t+4*i)} offset:{(i//3)*8*RS}")
    for ks in range(6): e(f"ds_read_b128 {ar(24*t+4*ks)}, v{vKrd} offset:{64*ks}")
def Vrel(t):
    upto(f"V{t}"); ahead(f"V{t}"); A.wait(f"V{t}")
    if "rel" in SKIP: return
    f, b = vblock(t + 1)
    for i in range(6): e(f"ds_write_b128 v{vWr+i%3}, {rg(f, b+4*i, 4)} offset:{(i//3)*8*RS}")
    f, b = vblock(t & ~1)
    for dt in range(12): e(f"ds_read_b64_tr_b16 {rg(f, b+4*dt+2*(t&1), 2)}, v{vVrd} offset:{32*dt}")
def wq_frags():
    for t in range(3):
        b = F + 10 * t
        for kk in range(2):
            for h in range(2): e(f"ds_read_b64_tr_b16 {vr(b+4*kk+2*h,2)}, v{vTq1} offset:{(32*kk+4*h)*384+32*t}")
        e(f"ds_read_b64_tr_b16 {vr(b+8,2)}, v{vTq2} offset:{64*384+32*t}")
def qstage(a, soff, tag=None, waits=False, fl=0):
    def mm(t, kk):
        n = 4 if kk < 2 else 2
        bb = vr(F + 10 * t + 4 * kk, n) if t < 3 else vr(a + 4 * kk, n)
        c = "0" if kk == 0 else vr(T + 4 * t)
        e(f"v_mfma_f32_16x16x{32 if kk<2 else 16}_bf16 {vr(T+4*t)}, {vr(a+4*kk,n)}, {bb}, {c}")
    def s4(t): return [f"v_add_f32 v{T+4*t}, v{T+4*t}, v{T+4*t+1}", f"v_add_f32 v{T+4*t+2}, v{T+4*t+2}, v{T+4*t+3}", f"v_add_f32 v{T+4*t}, v{T+4*t}, v{T+4*t+2}"]
    if waits: e("s_waitcnt lgkmcnt(2)")
    mm(0, 0); mm(2, 0)
    if waits: e("s_waitcnt lgkmcnt(0)")
    mm(0, 1); mm(2, 1); mm(0, 2); mm(2, 2)
    mm(1, 0); mm(3, 0); mm(1, 1); mm(3, 1); mm(1, 2); mm(3, 2)
    fill(fl)
    for x in s4(0) + s4(2): e(x)
    e(f"v_permlane32_swap_b32 v{T}, v{T+8}")
    x1, x3 = s4(1), s4(3)
    for x in x1[:2] + x3[:2] + [f"v_add_f32 v{T}, v{T}, v{T+8}"] + x1[2:] + x3[2:]: e(x)
    e(f"v_permlane32_swap_b32 v{T+4}, v{T+12}"); e(f"v_add_f32 v{T+4}, v{T+4}, v{T+12}")
    e(f"v_permlane16_swap_b32 v{T}, v{T+4}"); e(f"v_add_f32 v{T}, v{T}, v{T+4}")
    lstore(f"buffer_store_dword v{T}, v{vQst}, {sr(sW)}, {soff} offen", tag)
def xreduce(r0, r1, r2, r3):
    e(f"v_permlane32_swap_b32 v{r0}, v{r2}"); e(f"v_permlane32_swap_b32 v{r1}, v{r3}")
    e(f"v_add_f32 v{r0}, v{r0}, v{r2}"); e(f"v_add_f32 v{r1}, v{r1}, v{r3}")
    e(f"v_permlane16_swap_b32 v{r0}, v{r1}"); e(f"v_add_f32 v{r0}, v{r0}, v{r1}")
def qloads(b, s0, s1): return [f"buffer_load_dwordx4 {vr(b)}, v{vQld}, {sr(sW)}, {s0} offen sc1", f"buffer_load_dwordx4 {vr(b+4)}, v{vQld}, {sr(sW)}, {s1} offen sc1"]
def qsum(b):
    for q in range(4): e(f"v_add_f32 v{b+q}, v{b+q}, v{b+4+q}")
    xreduce(b, b + 1, b + 2, b + 3)
def rowred(op, v, tmp, steps):
    for sft in steps: e(f"v_{op}_f32_dpp v{v}, v{v}, v{v} row_ror:{sft} row_mask:0xf bank_mask:0xf")
def xrow(op, v, tmp, both=True):
    if both:
        e(f"v_mov_b32 v{tmp}, v{v}"); e(f"v_permlane32_swap_b32 v{v}, v{tmp}"); e(f"v_{op}_f32 v{v}, v{v}, v{tmp}")
    e(f"v_mov_b32 v{tmp}, v{v}"); e(f"v_permlane16_swap_b32 v{v}, v{tmp}"); e(f"v_{op}_f32 v{v}, v{v}, v{tmp}")
QF = 28; DQ = 40; PA = 72; X = 24; vM = 26
def att_zero():
    for t in range(8): e(f"v_mov_b32 v{DQ+4*t}, 0"); e(f"v_mov_b32 v{DQ+4*t+1}, 0")
    for q in range(16): e(f"v_mov_b32 v{PA+q}, 0")
def q_finish(b, mid=None):
    e(f"v_readlane_b32 s{sT0}, v{b}, 15")
    e(f"s_mov_b32 vcc_lo, 0x70007000"); e(f"s_mov_b32 vcc_hi, 0x70007000")
    e(f"v_fma_f32 v{b+1}, -s{sT0}, v{vCS}, v{b}")
    e(f"v_cvt_pk_bf16_f32 v{b+1}, v{b+1}, v{b+1}")
    e(f"ds_write_b16 v{vQBw}, v{b+1}")
    e(f"v_cndmask_b32 v{b+2}, 0, v{b}, vcc")
    e(f"v_add_f32_dpp v{b+2}, v{b+2}, v{b+2} quad_perm:[1,0,3,2] row_mask:0xf bank_mask:0xf")
    e(f"v_add_f32_dpp v{b+2}, v{b+2}, v{b+2} quad_perm:[2,3,0,1] row_mask:0xf bank_mask:0xf")
    e(f"v_mov_b32 v{b+3}, v{b+2}"); e(f"v_permlane32_swap_b32 v{b+2}, v{b+3}"); e(f"v_add_f32 v{b+2}, v{b+2}, v{b+3}")
    if mid: mid()
    else: e("s_waitcnt lgkmcnt(0)"); e("s_barrier")
    for ks in range(3): e(f"ds_read_b128 {vr(QF+4*ks)}, v{vQBr} offset:{128*ks}")
    e(f"v_mov_b32 v{b+3}, v{b+2}"); e(f"v_mov_b32 v{b+1}, s{sT0}"); e(f"v_subrev_f32 v{b+1}, 0x44200000, v{b+1}")
    e(f"v_permlane16_swap_b32 v{b+2}, v{b+3}"); e(f"v_add_f32 v{b+2}, v{b+2}, v{b+3}")
    e(f"v_mul_f32 v{b}, 0x3acccccd, v{b+1}")
    e(f"v_readlane_b32 s{sT0}, v{b+2}, 15")
    e(f"v_mul_f32 v{b}, v{b}, v{b}"); e(f"s_mov_b32 s{sT1}, 0x3acccccd")
    e(f"v_sub_f32 v{b+2}, s{sT0}, v{b+1}")
    e(f"v_fma_f32 v{b+2}, v{b+2}, s{sT1}, -v{b}"); e(f"v_max_f32 v{b+2}, 0, v{b+2}"); e(f"v_add_f32 v{b+2}, 0x3727c5ac, v{b+2}")
    e(f"v_rsq_f32 v{b+2}, v{b+2}"); e(f"v_mul_f32 v{vSC}, 0x3dd53b94, v{b+2}")
def qk_softmax(fl=0):
    def fold(t): e(f"v_add_f32_dpp v{X+t//4}, v{DQ+4*t}, v{DQ+4*t+1} quad_perm:[0,1,2,3] row_mask:{1<<(t%4):#x} bank_mask:0xf")
    def mm(t, ks): e(f"v_smfmac_f32_16x16x64_bf16 {vr(DQ+4*t)}, {vr(QF+4*ks)}, {ar(24*t+8*ks, 8)}, v{vIdx}")
    for ks in range(3):
        e(f"s_waitcnt lgkmcnt({2-ks})")
        for t in (0, 4, 1, 5, 2, 6, 3, 7): mm(t, ks)
        if ks != 1: fill(fl)
    fx = [f"s_lshl_b32 s{sT1}, s{sWV}, 8", f"v_bfe_u32 v27, v{vL}, 4, 1", f"v_bfe_u32 v28, v{vL}, 2, 1", f"s_add_u32 s{sT1}, s{sT1}, {PT}"]
    for t in range(4): e(fx[t]); fold(t); fold(t + 4)
    e(f"v_max_f32 v{vM}, v{X}, v{X+1}")
    e(f"v_lshl_add_u32 v27, v27, 5, s{sT1}"); e("v_lshl_add_u32 v27, v28, 4, v27")
    rowred("max", vM, None, (8, 4, 2, 1)); xrow("max", vM, 28)
    fill(fl)
    e(f"v_mul_f32 v{vM}, v{vM}, v{vSC}")
    for q in range(2): e(f"v_fma_f32 v{X+q}, v{X+q}, v{vSC}, -v{vM}")
    for q in range(2): e(f"v_exp_f32 v{X+q}, v{X+q}")
    e(f"v_cvt_pk_bf16_f32 v28, v{X}, v{X+1}")
    e(f"ds_write_b16 v{vPw}, v28"); e(f"ds_write_b16_d16_hi v{vPw}, v28 offset:128")
    setexec(0xFF00FF0000FF00FF)
    for u in range(4): e(f"ds_read_b128 {vr(PA+4*u)}, v27 offset:{64*u}")
    setexec(FULL)
    e(f"v_add_f32 v27, v{X}, v{X+1}")
    z = [f"v_mov_b32 v{F+4*dp}, 0" for dp in range(6)] + [f"s_lshl_b32 s{sT1}, s{sWV}, 3", f"s_add_u32 s{sT1}, s{sT1}, {ML4}"]
    for sft in (8, 4, 2, 1):
        e(z.pop(0)); e(z.pop(0)); e(f"v_add_f32_dpp v27, v27, v27 row_ror:{sft} row_mask:0xf bank_mask:0xf")
    xrow("add", 27, 28)
    e(f"v_mov_b32 v28, s{sT1}"); e(f"ds_write_b64 v28, v[26:27]")
def pv_step(u, order=range(6)):
    f, b = vblock(2 * u)
    for dp in order: e(f"v_smfmac_f32_16x16x64_bf16 {vr(F+4*dp)}, {vr(PA+4*u)}, {rg(f, b+8*dp, 8)}, v{vIdx} abid:1")
def pv_post():
    for q in range(3): e(f"v_permlane16_swap_b32 v{F+8*q}, v{F+8*q+4}"); e(f"v_add_f32 v{F+8*q}, v{F+8*q}, v{F+8*q+4}"); e(f"ds_write_b32 v{vAcc}, v{F+8*q} offset:{OACC+256*q}")

def role_dma():
    if "dma" in SKIP: return
    e(f"s_cmp_ge_u32 s{sJ}, 20"); e("s_cbranch_scc1 DMAF")
    e(f"v_lshrrev_b32 v38, 2, v{vL}"); e("v_mul_u32_u24 v38, 1280, v38"); e(f"v_and_b32 v39, 3, v{vL}"); e("v_lshl_add_u32 v38, v39, 4, v38")
    e(f"s_lshl_b32 s{sT0}, s{sWV}, 3"); e(f"s_add_u32 s{sT0}, s{sT0}, s{sG}"); e(f"s_mul_i32 s{sT0}, s{sT0}, {192*1280}"); e(f"s_lshl_b32 s{sT1}, s{sJ}, 6"); e(f"s_add_u32 s{sT0}, s{sT0}, s{sT1}")
    e(f"s_mul_i32 s{sT1}, s{sWV}, 12288"); e(f"s_add_u32 m0, s{sT1}, {WO}")
    for n in range(12):
        A.vmem(f"buffer_load_dwordx4 v38, {sr(sRA)}, s{sT0} offen {NTR} lds", "role", counted=(n < 10))
        if n < 11: e(f"s_add_u32 m0, m0, 1024"); e(f"s_add_u32 s{sT0}, s{sT0}, {16*1280}")
    lab("DMAX")
    def t():
        lab("DMAF"); fdma(); e("s_branch DMAX")
    tail.append(t)
def fdma():
    if True:
        e(f"v_lshrrev_b32 v38, 1, v{vL}"); e("v_mul_u32_u24 v38, 3072, v38"); e(f"v_and_b32 v39, 1, v{vL}"); e("v_lshl_add_u32 v38, v39, 4, v38")
        e(f"s_mul_i32 s{sT2}, s{sG}, 12"); e(f"s_add_u32 s{sT2}, s{sT2}, s{sJ}"); e(f"s_sub_u32 s{sT2}, s{sT2}, 20")
        e(f"s_mul_i32 s{sT0}, s{sWV}, {160*3072}"); e(f"s_lshl_b32 s{sT1}, s{sT2}, 5"); e(f"s_add_u32 s{sT0}, s{sT0}, s{sT1}")
        e(f"s_mul_i32 s{sT1}, s{sWV}, 5120")
        for n in range(5):
            e(f"s_add_u32 m0, s{sT1}, {W1+1024*n}"); e(f"buffer_load_dwordx4 v38, {sr(sRA)}, s{sT0} offen {NTR} lds")
            e(f"s_add_u32 m0, s{sT1}, {W3+1024*n}"); e(f"buffer_load_dwordx4 v38, {sr(sRB)}, s{sT0} offen {NTR} lds")
            if n < 4: e(f"s_add_u32 s{sT0}, s{sT0}, {32*3072}")
def w2dma():
    e(f"s_mul_i32 s{sT2}, s{sG}, 12"); e(f"s_add_u32 s{sT2}, s{sT2}, s{sJ}"); e(f"s_sub_u32 s{sT2}, s{sT2}, 20"); e(f"s_mul_i32 s97, s{sWV}, 5120")
    e(f"s_mul_i32 s96, s{sT2}, 20480"); e(f"s_add_u32 s96, s96, s97")
    for n in range(5):
        e(f"s_add_u32 m0, s97, {W2+1024*n}"); e(f"buffer_load_dwordx4 v{vLin}, {sr(sRC)}, s96 offen {NTW} lds")
        if n < 4: e(f"s_add_u32 s96, s96, 1024")
Kld(2); Krel(0); Kld(3); Krel(1); fill(6); Krel(2)
stamp(1)
RP = int(OPT.get("rp", 9))
fill(RP)
e(f"v_lshlrev_b32 v98, 2, v{vL}")
rdy = ["global_load_dword v99, v98, s[64:65] sc1"]
if "atom" not in SKIP: A.vmem(rdy[0], "rdy")
stamp(2, "s100")
upto("pfw"); upto("pfo"); e("s_barrier"); wq_frags(); Krel(3)
def rdycheck():
    e("v_sad_u8 v100, v99, 0, 0")
    e("v_add_u32_dpp v100, v100, v100 quad_perm:[1,0,3,2] row_mask:0xf bank_mask:0xf")
    e("v_add_u32_dpp v100, v100, v100 quad_perm:[2,3,0,1] row_mask:0xf bank_mask:0xf")
    e("v_cmp_gt_u32 vcc, 32, v100"); e("s_mov_b32 vcc_hi, 0"); e("s_cmp_eq_u64 vcc, 0")
ahead("rdy"); A.wait("rdy"); e(f"s_mov_b32 s{sCnt}, -1"); rdycheck(); e("s_cbranch_scc0 RDYLOOP") if "rdy" not in SKIP else None; lab("RDYOK")
stamp(13, f"s{sCnt}")
def t_():
    lab("RDYLOOP"); e(f"s_mov_b32 s{sCnt}, 0"); lab("RDYL2"); e("s_sleep 24"); e(rdy[0]); e("s_waitcnt vmcnt(0)"); rdycheck(); e("s_cbranch_scc1 RDYOK")
    e(f"s_add_u32 s{sCnt}, s{sCnt}, 1"); e(f"s_cmp_lt_u32 s{sCnt}, {LIMIT}"); e("s_cbranch_scc1 RDYL2"); e("s_branch RDYOK")
tail.append(t_)
e(f"v_readlane_b32 s{sT0}, v99, s{sXcc}"); e(f"s_cmp_eq_u32 s{sT0}, s96"); e(f"s_cselect_b32 s{sFast}, {0 if FORCESLOW else 1}, 0")
stamp(2)
if "pre" not in SKIP:
    A.vmem(f"buffer_load_dwordx4 a[240:243], v{vC1}, {sr(sW)}, 0 offen sc1", "pre")
e(f"v_lshrrev_b32 v106, 3, v{vL}"); e("v_mul_u32_u24 v106, 2560, v106"); e(f"v_and_b32 v107, 7, v{vL}"); e("v_lshl_add_u32 v106, v107, 4, v106")
e(f"s_lshl_b32 s{sT0}, s{sJ}, 7"); e(f"s_add_u32 s{sT0}, s{sT0}, s{sLG}"); e(f"s_add_u32 s{sT0}, s{sT0}, {oFP}")
e(f"s_cmp_lt_u32 s{sJ}, 20"); e(f"s_cselect_b32 s{sT0}, s{sT0}, {OOB-0x10000000}"); e(f"s_cmp_eq_u32 s{sWV}, 0"); e(f"s_cselect_b32 s{sT0}, s{sT0}, {OOB-0x10000000}")
e(f"v_add_u32 v106, s{sT0}, v106"); e(f"v_add_u32 v107, {8*2560}, v106"); e(f"v_mov_b32 v108, {OOB}"); e(f"v_cmp_le_u32 vcc, 32, v{vL}"); e("v_cndmask_b32 v107, v107, v108, vcc")
for q in range(2): A.vmem(f"buffer_load_dwordx4 a[240:243], v{106+q}, {sr(sW)}, 0 offen sc1", "pre")
e("s_waitcnt lgkmcnt(0)")
e(f"s_add_u32 s{sT2}, s{sLG}, {2*LS}")
qstage(70, f"s{sT2}", "qst", fl=1); fill(); qstage(SPARE, f"s{sLG}", "qst", fl=1)
def pack_store16(d, instr_fn):
    for q in (1, 2, 3): e(f"v_mov_b32_dpp v{d+q}, v{d} quad_perm:[{q},{q},{q},{q}] row_mask:0xf bank_mask:0xf")
    setexec(0x1111); instr_fn(); setexec(FULL)
e(f"s_cmp_lg_u32 s{sWV}, 1"); e("s_cbranch_scc1 NOBASE0"); e(f"s_cmp_ge_u32 s{sJ}, 20"); e("s_cbranch_scc1 NOBASE0")
e(f"v_mov_b32 v28, v{vXR}"); e(f"s_lshl_b32 s{sT0}, s{sJ}, 6"); e(f"s_add_u32 s{sT0}, s{sT0}, s{sLG}"); e(f"s_add_u32 s{sT0}, s{sT0}, {oBA}"); e(f"v_lshlrev_b32 v27, 2, v{vL}")
pack_store16(28, lambda: lstore(f"buffer_store_dwordx4 v[28:31], v27, {sr(sW)}, s{sT0} offen"))
lab("NOBASE0")
stamp(3)
Krel(4)
ahead("qst"); A.wait("qst")
for q in range(4): e(f"v_mov_b32 v{24+q}, -1")
for q in range(2): lstore(f"buffer_store_dwordx4 v[24:27], v{106+q}, {sr(sW)}, 0 offen", "fpc")
e(f"s_lshl_b32 s{sT0}, s{sHH}, 7"); e(f"s_lshl_b32 s{sT1}, s{sWV}, 5"); e(f"s_add_u32 s{sT0}, s{sT0}, s{sT1}"); e(f"s_add_u32 s{sT0}, s{sT0}, s{sLG}"); e(f"s_add_u32 s{sClr}, s{sT0}, {oQF}")
e(f"s_lshl_b32 s{sT1}, s{sS}, 2"); e(f"s_add_u32 s{sT1}, s{sT1}, s{sClr}")
setexec(1); lstore(f"buffer_store_dword v{vLin}, v{vLin}, {sr(sW)}, s{sT1} offen", "fpc"); setexec(FULL)
Krel(5); Kld(7)
stamp(12); role_dma(); stamp(15)
e(f"v_and_b32 v98, 7, v{vL}"); e("v_lshlrev_b32 v98, 2, v98")
qf = [f"buffer_load_dword v99, v98, {sr(sW)}, s{sClr} offen sc1"]
A.vmem(qf[0], "qf")
Krel(6)
fill(3)
e(f"v_and_b32 v25, 15, v{vL}"); e(f"v_lshrrev_b32 v26, 4, v{vL}"); e("v_add_u32 v27, 4, v26")
rowbase(vC1, 26, oFG, oFL, None, 28); rowbase(vC2, 27, oFG, oFL, None, 28)
e(f"s_min_u32 s{sT3}, s{sJ}, 19"); e(f"s_lshl_b32 s{sT3}, s{sT3}, 6"); e(f"v_lshl_add_u32 v25, v25, 2, s{sT3}")
e(f"v_add_u32 v{vC1}, v{vC1}, v25"); e(f"v_add_u32 v{vC2}, v{vC2}, v25")
fill()
e(f"v_and_b32 v25, 15, v{vL}"); e(f"v_bfe_u32 v27, v{vL}, 2, 2"); e(f"v_and_b32 v28, 3, v{vL}")
e(f"s_mul_i32 s{sT3}, s{sWV}, 12288"); e(f"s_add_u32 s{sT3}, s{sT3}, {WO}")
e("v_lshl_add_u32 v29, v26, 3, v27"); e("v_lshlrev_b32 v29, 6, v29"); e("v_lshl_add_u32 v29, v28, 3, v29"); e(f"v_add_u32 v29, s{sT3}, v29"); e("v_accvgpr_write_b32 a246, v29")
e(f"s_mul_i32 s{sT3}, s{sWV}, 3072"); e(f"s_add_u32 s{sT3}, s{sT3}, {oO}")
e(f"v_lshl_add_u32 v29, v25, 4, s{sT3}"); e("v_lshl_add_u32 v29, v26, 7, v29"); e("v_accvgpr_write_b32 a247, v29")
e(f"s_lshl_b32 s{sT3}, s{sWV}, 6"); e(f"s_add_u32 s{sT3}, s{sT3}, {oML}"); e("v_and_b32 v29, 1, v26"); e(f"v_lshl_add_u32 v29, v29, 5, s{sT3}"); e("v_accvgpr_write_b32 a248, v29")
e(f"s_lshl_b32 s{sT3}, s{sWV}, 8"); e(f"s_add_u32 s{sT3}, s{sT3}, {ACC+YACC}"); e(f"v_lshl_add_u32 v29, v{vL}, 2, s{sT3}"); e("v_accvgpr_write_b32 a249, v29")
e(f"s_lshl_b32 s{sYl}, s{sJ}, 6"); e(f"s_mul_i32 s{sYg}, s{sG}, 1280"); e(f"s_add_u32 s{sYg}, s{sYg}, s{sYl}"); e(f"s_add_u32 s{sYg}, s{sYg}, {oYG}")
e(f"s_add_u32 s{sYl}, s{sYl}, s{sLG}"); e(f"s_add_u32 s{sYl}, s{sYl}, {oYL}")
Vld(0); Krel(7)
ahead("qf"); late_check("qf", qf, [99], 99)
e(f"s_add_u32 s{sT0}, s{sLG}, {2*LS}"); e(f"s_add_u32 s{sT1}, s{sLG}, {2*LS+4096}"); e(f"s_add_u32 s{sT2}, s{sLG}, 4096")
for l in qloads(64, f"s{sT0}", f"s{sT1}") + qloads(72, f"s{sLG}", f"s{sT2}"): A.vmem(l, "qg")
Vld(2); Vrel(0); Vld(3); Vrel(1)
ahead("qg"); A.wait("qg")
qsum(64); qsum(72)
e(f"v_mul_f32 v{vCS}, 0x3acccccd, v64")
e(f"v_mov_b32 v{T}, v72")
fill(); att_zero()
stamp(4)
def qmid(): fill(2); e("s_waitcnt lgkmcnt(0)"); e("s_barrier")
q_finish(T, qmid)
qk_softmax(fl=1)
stamp(5)
hold.clear()
Vld(4); Vrel(2)
e("s_waitcnt lgkmcnt(0)"); pv_step(0)
Vld(5); Vrel(3); Vld(6)
e("s_waitcnt lgkmcnt(0)"); pv_step(1)
Vrel(4); Vld(7); Vrel(5)
e(f"v_and_b32 v{vXR+1}, 0xffff0000, v{vXR}"); e(f"v_lshlrev_b32 v{vXR}, 16, v{vXR}")
e("s_waitcnt lgkmcnt(0)"); pv_step(2)
Vrel(6)
f_, b_ = vblock(8)
for i in range(6):
    e(f"s_waitcnt vmcnt({5-i})"); e(f"ds_write_b128 v{vWr+i%3}, {rg(f_, b_+4*i, 4)} offset:{(i//3)*8*RS}")
f_, b_ = vblock(6)
for dt in range(12): e(f"ds_read_b64_tr_b16 {rg(f_, b_+4*dt+2, 2)}, v{vVrd} offset:{32*dt}")
A.drained()
e("s_branch ATT_LAST")
flush_near()

lab("LOOP")
wq_frags()
e(f"v_and_b32 v25, 15, v{vL}"); e("v_cmp_eq_u32 vcc, 12, v25"); e("v_mov_b32 v36, 0x3f803f80"); e(f"v_cndmask_b32 v70, 0, v36, vcc")
for q in range(1, 10): e(f"v_mov_b32 v{70+q}, v70")
e(f"s_cmp_lt_u32 s{sJ}, 20"); e(f"s_cselect_b32 s{sXcc}, s{sWV}, 0")
e(f"s_add_u32 s{sT2}, s{sLG}, 4096")
e(f"s_mul_i32 s{sT0}, s{sWV}, {SCRW}")
e(f"v_mul_u32_u24 v26, 103, v{vL}"); e("v_lshrrev_b32 v26, 10, v26"); e(f"v_lshl_add_u32 v26, v26, 4, v{vLin}"); e(f"v_add_u32 v26, s{sT0}, v26")
e(f"v_mul_u32_u24 v27, 176, v25"); e(f"v_add_u32 v27, s{sT0}, v27"); e(f"v_lshrrev_b32 v28, 4, v{vL}"); e("v_lshl_add_u32 v29, v28, 3, v27"); e("v_lshl_add_u32 v27, v28, 4, v27")
e(f"s_mul_i32 s{sT0}, s{sS}, 160"); e(f"s_add_u32 s{sT0}, s{sT0}, s{sLG}"); e(f"s_sub_u32 s{sT0}, s{sT0}, {LS-oFL}")
e("s_waitcnt lgkmcnt(0)")
gate(sT0, 10, 24)
setexec((1 << 60) - 1)
poll_sel([([f"buffer_load_dwordx4 v[80:83], v{vAq}, {sr(sW)}, 0 offen sc1"], [80]), ([f"buffer_load_dwordx4 v[84:87], v{vAq16}, {sr(sW)}, 0 offen sc1"], [84])], 24, pid=1)
e("ds_write_b128 v26, v[80:83]"); e(f"ds_write_b128 v26, v[84:87] offset:{6*176}")
setexec(ROWS9)
e("ds_read_b128 v[70:73], v27"); e("ds_read_b128 v[74:77], v27 offset:64"); e("ds_read_b64 v[78:79], v29 offset:128")
setexec(FULL)
stamp(1)
e(f"s_cmp_lg_u32 s{sXcc}, 1"); e("s_cbranch_scc1 NOOWL")
e(f"buffer_load_dword a244, v{vC1}, {sr(sW)}, 0 offen sc1"); e(f"buffer_load_dword a245, v{vC2}, {sr(sW)}, 0 offen sc1")
lab("NOOWL")
qstage(70, f"s{sLG}", waits=True)
stamp(2)
att_zero()
poll(qloads(T, f"s{sLG}", f"s{sT2}"), range(T, T + 8), T + 8, pid=4)
stamp(3)
qsum(T)
q_finish(T)
stamp(4)
qk_softmax()
stamp(5)
for u in range(3):
    e(f"s_waitcnt lgkmcnt({4-u})"); pv_step(u)
e("s_waitcnt lgkmcnt(0)")
lab("ATT_LAST")
for dp in range(6):
    if dp % 2 == 0: e(f"s_waitcnt lgkmcnt({8-2*dp})")
    pv_step(3, [dp])
e(f"v_add_u32 v24, {ACC}, v{vLin}"); e(f"v_mov_b32 v25, {ML4}"); e(f"v_lshlrev_b32 v39, 6, v{vL}")
pv_post()
e(f"s_cmp_lg_u32 s{sWV}, 0")
e("s_waitcnt lgkmcnt(0)"); e("s_barrier")
e("s_cbranch_scc1 ODONE")
stamp(6)
e(f"ds_read_b128 v[64:67], v25"); e(f"ds_read_b128 v[68:71], v25 offset:16")
for w in range(4): e(f"ds_read_b128 {vr(F+4*w)}, v24 offset:{OACC+768*w}")
e(f"s_mul_i32 s{sT0}, s{sHH}, 3072"); e(f"s_lshl_b32 s{sT1}, s{sS}, 4"); e(f"s_add_u32 s{sT0}, s{sT0}, s{sT1}"); e(f"s_add_u32 s{sT0}, s{sT0}, s{sLG}"); e(f"s_add_u32 s{sT0}, s{sT0}, {oO}")
e(f"s_lshl_b32 s{sT1}, s{sJ}, 3"); e(f"s_add_u32 s{sT1}, s{sT1}, s{sLG}"); e(f"s_add_u32 s{sT1}, s{sT1}, {oML}")
e("s_waitcnt lgkmcnt(4)")
e("v_max3_f32 v32, v64, v66, v68"); e("v_max_f32 v32, v32, v70")
for w in range(4): e(f"v_sub_f32 v{64+2*w}, v{64+2*w}, v32")
for w in range(4): e(f"v_exp_f32 v{64+2*w}, v{64+2*w}")
e("s_waitcnt lgkmcnt(0)")
for q in range(4): e(f"v_mul_f32 v{28+q}, v64, v{F+q}")
for w in range(1, 4):
    for q in range(4): e(f"v_fmac_f32 v{28+q}, v{64+2*w}, v{F+4*w+q}")
def pack_pairs():
    e("v_cvt_pk_bf16_f32 v28, v28, v29"); e("v_cvt_pk_bf16_f32 v29, v30, v31")
    e("v_mov_b32_dpp v30, v28 quad_perm:[1,1,3,3] row_mask:0xf bank_mask:0xf"); e("v_mov_b32_dpp v31, v29 quad_perm:[1,1,3,3] row_mask:0xf bank_mask:0xf")
pack_pairs()
setexec(0x5555555555555555 & ((1 << 48) - 1))
lstore(f"buffer_store_dwordx4 v[28:31], v39, {sr(sW)}, s{sT0} offen")
e("v_mul_f32 v33, v64, v65")
for w in range(1, 4): e(f"v_fmac_f32 v33, v{64+2*w}, v{65+2*w}")
setexec(1)
lstore(f"buffer_store_dwordx2 v[32:33], v39, {sr(sW)}, s{sT1} offen")
setexec(FULL)
lab("ODONE")
stamp(7)
if STAMP == 3: e("s_endpgm")
e(f"s_cmp_ge_u32 s{sJ}, 20"); e("s_cbranch_scc1 ROLEF")
def owner_add():
    e("v_lshlrev_b32 v30, 16, v28"); e("v_and_b32 v28, 0xffff0000, v28"); e("v_lshlrev_b32 v31, 16, v29"); e("v_and_b32 v29, 0xffff0000, v29")
    e("v_add_f32 v30, v30, v31"); e("v_add_f32 v28, v28, v29")
    e("v_mov_b32 v31, v30"); e("v_mov_b32 v29, v28"); e("v_permlane32_swap_b32 v30, v31"); e("v_permlane32_swap_b32 v28, v29"); e("v_add_f32 v30, v30, v31"); e("v_add_f32 v28, v28, v29")
    e("v_mov_b32 v31, v30"); e("v_mov_b32 v29, v28"); e("v_permlane16_swap_b32 v30, v31"); e("v_permlane16_swap_b32 v28, v29"); e("v_add_f32 v30, v30, v31"); e("v_add_f32 v28, v28, v29")
    e(f"v_add_f32 v{vXR}, v{vXR}, v30"); e(f"v_add_f32 v{vXR+1}, v{vXR+1}, v28")
    e(f"v_cvt_pk_bf16_f32 v28, v{vXR}, v{vXR+1}")
def own_loads(a0, a1, soff): return [f"buffer_load_dword v28, v{a0}, {sr(sW)}, {soff} offen sc1", f"buffer_load_dword v29, v{a1}, {sr(sW)}, {soff} offen sc1"]
def base_store(ob):
    e(f"s_lshl_b32 s{sT0}, s{sJ}, 6"); e(f"s_add_u32 s{sT0}, s{sT0}, s{sLG}"); e(f"s_add_u32 s{sT0}, s{sT0}, {ob}"); e(f"v_lshlrev_b32 v37, 2, v{vL}")
    pack_store16(28, lambda: lstore(f"buffer_store_dwordx4 v[28:31], v37, {sr(sW)}, s{sT0} offen"))
for q in range(3): e(f"v_accvgpr_read_b32 v{2+q}, a{246+q}")
for kk in range(6): e(f"v_mov_b32 v{SPARE+4*kk}, 0")
trs = [f"ds_read_b64_tr_b16 {vr(F+24*t+4*kk+2*h,2)}, v2 offset:{(32*kk+4*h)*64+32*t}" for kk in range(6) for t in range(2) for h in range(2)]
for x in trs[:10]: e(x)
e(f"s_cmp_lg_u32 s{sWV}, 1"); e("s_cbranch_scc1 NOOWN0"); e(f"s_cmp_eq_u32 s{sLay}, 0"); e("s_cbranch_scc1 NOOWN0")
e("v_accvgpr_read_b32 v28, a244"); e("v_accvgpr_read_b32 v29, a245")
late_check("none", own_loads(vC1, vC2, "0"), [28, 29], 30)
owner_add(); base_store(oBA)
lab("NOOWN0")
MLR = [24, 36]
for q in (25, 27, 37, 39): e(f"v_mov_b32 v{q}, 0")
def wfirst():
    for x in trs[10:]: e(x)
    e("v_accvgpr_read_b32 v5, a249"); e(f"v_add_u32 v6, {ACC}, v{vLin}"); e(f"v_lshrrev_b32 v18, 1, v{vLin}")
ol = [f"buffer_load_dwordx4 {vr(SPARE+4*kk)}, v3, {sr(sW)}, s{sLG} offen offset:{512*kk} sc1" for kk in range(6)]
ml = [f"buffer_load_dwordx4 {vr(MLR[q])}, v4, {sr(sW)}, s{sLG} offen offset:{16*q} sc1" for q in range(2)]
poll_sel([(ol, [SPARE + 4 * kk for kk in range(6)]), (ml, [25, 27, 37, 39])], 28, pid=7, first=wfirst,
         firstloads=["s_mov_b32 exec_lo, 0x00ff00ff", "s_mov_b32 exec_hi, 0x00ff00ff"] + ol + ["s_mov_b32 exec_lo, -1", "s_mov_b32 exec_hi, 0"] + ml + ["s_mov_b64 exec, -1"])
e("s_waitcnt lgkmcnt(0)")
stamp(8)
M_, U_, L_ = SPARE, SPARE + 1, SPARE + 2
mm_ = [24, 26, 36, 38]
co = [[], [f"v_max3_f32 v{M_}, v24, v26, v36", f"v_max_f32 v{M_}, v{M_}, v38"], [f"v_mov_b32 v{U_}, v{M_}"], [f"v_permlane16_swap_b32 v{M_}, v{U_}", f"v_max_f32 v{M_}, v{M_}, v{U_}"],
      [f"v_sub_f32 v24, v24, v{M_}", f"v_sub_f32 v26, v26, v{M_}"], [f"v_sub_f32 v36, v36, v{M_}", f"v_sub_f32 v38, v38, v{M_}"],
      ["v_exp_f32 v24, v24"], ["v_exp_f32 v26, v26"], ["v_exp_f32 v36, v36"], ["v_exp_f32 v38, v38"],
      [f"v_mul_f32 v{L_}, v24, v25", f"v_fmac_f32 v{L_}, v26, v27"], [f"v_fmac_f32 v{L_}, v36, v37", f"v_fmac_f32 v{L_}, v38, v39"]]
for kk in range(6):
    for t in range(2):
        c = "0" if kk == 0 else vr(28 + 4 * t)
        e(f"v_mfma_f32_16x16x32_bf16 {vr(28+4*t)}, {vr(SPARE+4*kk)}, {vr(F+24*t+4*kk)}, {c}")
        for x in co.pop(0): e(x)
e(f"v_mov_b32 v{U_}, v{L_}"); e(f"s_cmp_lg_u32 s{sWV}, 0"); e(f"v_permlane16_swap_b32 v{L_}, v{U_}"); e(f"v_add_f32 v{L_}, v{L_}, v{U_}"); e(f"v_rcp_f32 v{L_}, v{L_}")
for t in range(2): e(f"v_mul_f32 v{28+4*t}, v24, v{28+4*t}")
for q in range(1, 4):
    for t in range(2): e(f"v_fmac_f32 v{28+4*t}, v{mm_[q]}, v{28+4*t+q}")
e("v_permlane16_swap_b32 v28, v32"); e("v_add_f32 v28, v28, v32"); e(f"v_mul_f32 v28, v28, v{L_}")
e(f"ds_write_b32 v5, v28")
e("s_waitcnt lgkmcnt(0)"); e("s_barrier")
e("s_cbranch_scc1 WNOT0")
for w in range(4): e(f"ds_read_b128 {vr(F+4*w)}, v6 offset:{YACC+256*w}")
e("s_waitcnt lgkmcnt(2)")
for q in range(4): e(f"v_add_f32 v{28+q}, v{F+q}, v{F+4+q}")
e("s_waitcnt lgkmcnt(0)")
for q in range(4): e(f"v_add_f32 v{32+q}, v{F+8+q}, v{F+12+q}")
for q in range(4): e(f"v_add_f32 v{28+q}, v{28+q}, v{32+q}")
pack_pairs()
setexec(0x55)
e(f"buffer_store_dwordx4 v[28:31], v18, {sr(sW)}, s{sYg} offen sc1")
lstore(f"buffer_store_dwordx4 v[28:31], v18, {sr(sW)}, s{sYl} offen")
setexec(FULL)
stamp(9)
e(f"v_lshrrev_b32 v37, 5, v{vL}"); e("v_mul_u32_u24 v37, 2560, v37"); e(f"v_and_b32 v38, 31, v{vL}"); e("v_lshl_add_u32 v37, v38, 2, v37")
for k in range(1, 6): e(f"v_add_u32 v{F+k}, {5120*k}, v37")
e(f"s_lshl_b32 s{sT2}, s{sJ}, 7"); e(f"s_add_u32 s{sT2}, s{sT2}, s{sLG}"); e(f"s_add_u32 s{sT2}, s{sT2}, {oFP}")
e(f"s_add_u32 s96, s{sYg}, {oFG-oYG}"); e(f"s_add_u32 s97, s{sYl}, {oFL-oYL}"); e(f"v_lshlrev_b32 v39, 1, v{vL}")
e(f"s_cmp_lg_u32 s{sLay}, 0"); e("s_cbranch_scc1 NOLC")
e(f"s_mul_i32 s{sT0}, s{sJ}, {154*16}"); e(f"s_add_u32 s{sT1}, s{sLG}, {LS+oO}")
for q in range(3): e(f"v_add_u32 v{F+8+q}, s{sT0}, v{vLin}"); e(f"v_min_u32 v{F+8+q}, {GB-oO-16}, v{F+8+q}"); e(f"s_add_u32 s{sT0}, s{sT0}, 1024")
for q in range(3): e(f"buffer_load_dwordx4 a[240:243], v{F+8+q}, {sr(sW)}, s{sT1} offen sc1")
for q in range(4): e(f"v_mov_b32 v{F+12+q}, -1")
e(f"s_add_u32 s{sT0}, s{sYg}, {LS}"); e(f"s_add_u32 s{sT3}, s96, {LS}")
e("s_waitcnt vmcnt(0)")
for q in range(3): lstore(f"buffer_store_dwordx4 {vr(F+12)}, v{F+8+q}, {sr(sW)}, s{sT1} offen")
setexec(15)
e(f"buffer_store_dwordx4 {vr(F+12)}, v{vLin}, {sr(sW)}, s{sT0} offen sc1"); e(f"buffer_store_dwordx4 {vr(F+12)}, v{vLin}, {sr(sW)}, s{sT3} offen sc1")
setexec(FULL)
lab("NOLC")
poll([f"buffer_load_dword v{28+k}, v{37 if k==0 else F+k}, {sr(sW)}, s{sT2} offen sc1" for k in range(6)], range(28, 34), 36, pid=10)
stamp(10)
e("v_add_f32 v28, v28, v29"); e("v_add_f32 v30, v30, v31"); e("v_add_f32 v32, v32, v33"); e("v_add_f32 v28, v28, v30"); e("v_add_f32 v28, v28, v32")
e("v_mov_b32 v29, v28"); e("v_permlane32_swap_b32 v28, v29"); e("v_add_f32 v28, v28, v29")
e("v_mov_b32_dpp v29, v28 row_shl:1 row_mask:0xf bank_mask:0xf"); e("v_cvt_pk_bf16_f32 v28, v28, v29")
for q in (1, 2, 3): e(f"v_mov_b32_dpp v{28+q}, v28 row_shl:{2*q} row_mask:0xf bank_mask:0xf")
setexec(0x01010101)
e(f"buffer_store_dwordx4 v[28:31], v39, {sr(sW)}, s96 offen sc1")
lstore(f"buffer_store_dwordx4 v[28:31], v39, {sr(sW)}, s97 offen")
setexec(FULL)
stamp(11)
e("s_branch NEXT")
flush_near()
lab("WNOT0")
e(f"s_cmp_lg_u32 s{sWV}, 1"); e("s_cbranch_scc1 NEXT")
e(f"v_and_b32 v25, 15, v{vL}"); e(f"v_lshrrev_b32 v26, 4, v{vL}")
rowbase(37, 26, oYG, oYL, None, 38); e("v_add_u32 v39, 4, v26"); rowbase(38, 39, oYG, oYL, None, 28)
e(f"s_lshl_b32 s{sT0}, s{sJ}, 6"); e(f"s_add_u32 s{sT0}, s{sT0}, s{sLay}")
e("v_lshl_add_u32 v37, v25, 2, v37"); e("v_lshl_add_u32 v38, v25, 2, v38")
if GATE and ODLY: e(f"s_sleep {ODLY}")
poll(own_loads(37, 38, f"s{sT0}"), [28, 29], 30, slp=(4 if GATE else 0))
owner_add()
e(f"s_cmp_lg_u32 s{sLay}, 0"); e("s_cbranch_scc1 FINAL")
base_store(oBB)
e("s_branch NEXT")
lab("FINAL")
e(f"s_cmp_lg_u32 s{sG}, 0"); e("s_cbranch_scc1 DONE")
e(f"s_lshl_b32 s{sT0}, s{sJ}, 6"); e(f"v_lshlrev_b32 v37, 2, v{vL}")
e(f"s_add_u32 s{sT2}, s{sT0}, s{sLG}"); e(f"s_add_u32 s{sT2}, s{sT2}, {oFL}")
gate(sT2, 4, 28); setexec(FULL)
poll(own_loads(vC1, vC2, f"s{sLay}"), [28, 29], 30)
owner_add()
setexec(0xffff)
e(f"buffer_store_dword v28, v37, {sr(sO)}, s{sT0} offen")
setexec(FULL)
stamp(12)
e("s_branch DONE") if SPIN else e("s_endpgm")
flush_near()
lab("ROLEF")
e(f"v_and_b32 v25, 15, v{vL}"); e(f"v_lshrrev_b32 v26, 4, v{vL}"); e(f"v_bfe_u32 v27, v{vL}, 2, 2"); e(f"v_and_b32 v36, 3, v{vL}")
FA = SPARE
vCG, vCU = vXR, vXR + 1
sPass = sClr
e(f"s_mov_b32 s{sPass}, 1")
e(f"s_cmp_lg_u32 s{sLay}, 0"); e("s_cbranch_scc1 FW")
e(f"s_mov_b32 s{sPass}, 0")
lab("FW")
e(f"s_mul_i32 s{sT0}, s{sWV}, 5120"); e(f"s_add_u32 s{sT0}, s{sT0}, {W1}")
e("v_lshl_add_u32 v37, v26, 3, v27"); e("v_lshlrev_b32 v37, 5, v37"); e("v_lshl_add_u32 v37, v36, 3, v37"); e(f"v_add_u32 v37, s{sT0}, v37")
for t in range(2):
    for kk in range(5):
        for h in range(2): e(f"ds_read_b64_tr_b16 {vr(F+20*t+4*kk+2*h,2)}, v37 offset:{(32*kk+4*h)*32+20480*t}")
e(f"s_mul_i32 s{sT0}, s{sWV}, 320"); e(f"s_add_u32 s{sT0}, s{sT0}, {W2}")
e(f"v_lshrrev_b32 v80, 2, v{vL}"); e("v_mul_u32_u24 v80, 1280, v80"); e("v_lshl_add_u32 v80, v36, 3, v80"); e(f"v_add_u32 v80, s{sT0}, v80")
e(f"s_lshl_b32 s{sT2}, s{sWV}, 2"); e(f"s_add_u32 s{sT2}, s{sT2}, {ACC+FACC}"); e(f"v_add_u32 v81, s{sT2}, v{vLin}")
e("v_lshl_add_u32 v82, v26, 2, v36"); e("v_lshlrev_b32 v82, 4, v82"); e(f"v_add_u32 v82, {ACC+FACC}, v82")
e("v_cmp_eq_u32 vcc, 12, v25")
e("v_mov_b32 v38, 13"); e("v_cndmask_b32 v83, v25, v38, vcc"); e("v_lshlrev_b32 v83, 4, v83"); e(f"v_add_u32 v83, {ACC+FACC+512}, v83")
e(f"v_mov_b32 v85, {ACC+FACC+512+192}")
e("v_lshlrev_b32 v84, 6, v25"); e("v_lshl_add_u32 v84, v26, 4, v84")
e("v_mov_b32 v38, 0x3f803f80"); e(f"v_cndmask_b32 v{FA}, 0, v38, vcc")
for q in range(1, 20): e(f"v_mov_b32 v{FA+q}, v{FA}")
e(f"s_mul_i32 s{sT0}, s{sWV}, {SCRW}")
e(f"v_mul_u32_u24 v6, 336, v25"); e("v_lshl_add_u32 v6, v26, 4, v6"); e(f"v_add_u32 v6, s{sT0}, v6")
e(f"v_mul_u32_u24 v37, 52, v{vL}"); e("v_lshrrev_b32 v37, 10, v37")
e(f"v_lshl_add_u32 v87, v37, 4, v{vLin}"); e(f"v_add_u32 v87, s{sT0}, v87")
e(f"v_mul_u32_u24 v27, 320, v37"); e(f"v_sub_u32 v27, v{vLin}, v27")
assert all((c * 52) >> 10 == c // 20 for c in range(64))
FG = [86, 18, 20]
for i in range(3):
    rowbase(FG[i], 37, oYG, oYL, oBA, 38); e(f"v_add_u32 v{FG[i]}, v{FG[i]}, v27")
    if i < 2: e("v_add_u32 v37, 3, v37")
e(f"s_mul_i32 s{sT0}, s{sWV}, 320"); e(f"s_add_u32 s{sT0}, s{sT0}, s{sLay}")
e(f"s_sub_u32 s{sT1}, s{sJ}, 20"); e(f"s_mul_i32 s{sT1}, s{sT1}, 2560"); e(f"s_mul_i32 s{sT3}, s{sWV}, 640"); e(f"s_add_u32 s{sT1}, s{sT1}, s{sT3}")
e(f"s_add_u32 s{sT1}, s{sT1}, s{sLG}"); e(f"s_add_u32 s{sT1}, s{sT1}, {oFP}")
e("s_waitcnt lgkmcnt(0)")
e(f"s_cmp_eq_u32 s{sPass}, 0"); e("s_cbranch_scc1 FW2")
def t_():
    lab("FW2"); w2dma()
    e(f"s_sub_u32 s96, s{sJ}, 20"); e("s_lshl_b32 s96, s96, 2"); e(f"s_add_u32 s96, s96, s{sWV}"); e(f"s_mul_i32 s96, s96, {43*16}")
    e(f"v_add_u32 v21, s96, v{vLin}"); e(f"v_min_u32 v21, {32768-16}, v21"); e(f"s_add_u32 s97, s{sLG}, {LS+oQ}")
    e(f"buffer_load_dwordx4 a[240:243], v21, {sr(sW)}, s97 offen sc1")
    e("s_branch FMM")
tail.append(t_)
lab("FPOLL")
W2R = [f"a[{240+2*t}:{241+2*t}]" for t in range(6)] + ["v[108:109]", "v[110:111]", "v[2:3]", "v[4:5]"]
for t in range(10): e(f"ds_read_b64_tr_b16 {W2R[t]}, v80 offset:{32*t}")
e("s_waitcnt lgkmcnt(0)")
e(f"s_mul_i32 s{sT2}, s{sWV}, 320"); e(f"s_add_u32 s{sT2}, s{sT2}, s{sLG}"); e(f"s_add_u32 s{sT2}, s{sT2}, {oYL}")
gate(sT2, 20, 36)
setexec((1 << 60) - 1)
poll_sel([([f"buffer_load_dwordx4 {vr(T+4*i)}, v{FG[i]}, {sr(sW)}, s{sT0} offen sc1"], [T + 4 * i]) for i in range(3)], 36, pid=7)
for i in range(3): e(f"ds_write_b128 v87, {vr(T+4*i)} offset:{3*336*i}")
setexec(ROWS9)
for kk in range(5): e(f"ds_read_b128 {vr(FA+4*kk)}, v6 offset:{64*kk}")
setexec(FULL)
stamp(8)
lab("FMM")
for kk in range(5):
    e(f"s_waitcnt lgkmcnt({4-kk})")
    for t in range(3):
        c = "0" if kk == 0 else vr(T + 4 * t)
        bb = vr(F + 20 * t + 4 * kk) if t < 2 else vr(FA + 4 * kk)
        e(f"v_mfma_f32_16x16x32_bf16 {vr(T+4*t)}, {vr(FA+4*kk)}, {bb}, {c}")
for t in range(3): e(f"v_add_f32 v{T+4*t}, v{T+4*t}, v{T+4*t+1}"); e(f"v_add_f32 v{T+4*t+2}, v{T+4*t+2}, v{T+4*t+3}")
for t in range(3): e(f"v_add_f32 v{T+4*t}, v{T+4*t}, v{T+4*t+2}")
xreduce(T, T + 4, T + 8, T + 1)
e(f"ds_write_b32 v81, v{T}")
e(f"s_cmp_eq_u32 s{sPass}, 0")
e("s_waitcnt lgkmcnt(0)"); e("s_barrier")
e(f"ds_read_b128 {vr(T)}, v83"); e(f"ds_read_b128 {vr(T+4)}, v85"); e(f"ds_read_b128 {vr(T+8)}, v82"); e(f"ds_read_b128 {vr(T+12)}, v82 offset:256")
e("s_cbranch_scc1 FCS")
def sum4(b): e(f"v_add_f32 v{b}, v{b}, v{b+1}"); e(f"v_add_f32 v{b+2}, v{b+2}, v{b+3}"); e(f"v_add_f32 v{b}, v{b}, v{b+2}")
d = lambda sft: f"v_add_f32_dpp v{T}, v{T}, v{T} row_ror:{sft} row_mask:0xf bank_mask:0xf"
e("s_waitcnt lgkmcnt(3)"); sum4(T); e("s_waitcnt lgkmcnt(2)")
e(f"v_add_f32 v{T+4}, v{T+4}, v{T+5}"); e(d(8)); e(f"v_add_f32 v{T+6}, v{T+6}, v{T+7}"); e(f"v_add_f32 v{T+4}, v{T+4}, v{T+6}"); e(d(4))
e("s_waitcnt lgkmcnt(0)")
e(f"v_subrev_f32 v{T+5}, 0x44200000, v{T+4}"); e(d(2))
e(f"v_add_f32 v{T+8}, v{T+8}, v{T+9}"); e(f"v_mul_f32 v{T+6}, 0x3acccccd, v{T+5}"); e(d(1))
e(f"v_add_f32 v{T+10}, v{T+10}, v{T+11}"); e(f"v_sub_f32 v{T}, v{T}, v{T+5}")
e(f"v_add_f32 v{T+8}, v{T+8}, v{T+10}"); e(f"v_mul_f32 v{T}, 0x3acccccd, v{T}")
e(f"v_add_f32 v{T+12}, v{T+12}, v{T+13}"); e(f"v_fma_f32 v{T}, -v{T+6}, v{T+6}, v{T}")
e(f"v_add_f32 v{T+14}, v{T+14}, v{T+15}"); e(f"v_max_f32 v{T}, 0, v{T}")
e(f"v_fma_f32 v{T+8}, -v{T+4}, v{vCG}, v{T+8}"); e(f"v_add_f32 v{T}, 0x3727c5ac, v{T}")
e(f"v_add_f32 v{T+12}, v{T+12}, v{T+14}"); e(f"v_rsq_f32 v{T}, v{T}")
e(f"v_fma_f32 v{T+12}, -v{T+4}, v{vCU}, v{T+12}"); e(f"v_mul_f32 v{T+9}, 0xbfb8aa3b, v{T+8}")
e(f"v_mul_f32 v{T+9}, v{T+9}, v{T}"); e(f"v_mul_f32 v{T+12}, v{T+12}, v{T+8}"); e(f"v_exp_f32 v{T+9}, v{T+9}")
e(f"v_mul_f32 v{T+12}, v{T+12}, v{T}"); e(f"v_add_f32 v{T+9}, 1.0, v{T+9}"); e(f"v_mul_f32 v{T+12}, v{T+12}, v{T}"); e(f"v_rcp_f32 v{T+9}, v{T+9}")
e(f"v_mul_f32 v{T+12}, v{T+12}, v{T+9}")
for q in range(4): e(f"v_mov_b32_dpp v{T+4+q}, v{T+12} quad_perm:[{q},{q},{q},{q}] row_mask:0xf bank_mask:0xf")
e(f"v_cvt_pk_bf16_f32 v{T+4}, v{T+4}, v{T+5}"); e(f"v_cvt_pk_bf16_f32 v{T+5}, v{T+6}, v{T+7}")
HB = 60
def hm(t): return [f"v_cndmask_b32 v{HB+2*t+q}, 0, v{T+4+q}, {sp(sMf+2*t)}" for q in range(2)]
W2Q = ["a[240:243]", "a[244:247]", "a[248:251]", "v[108:111]", "v[2:5]"]
for x in hm(0) + hm(1) + hm(2): e(x)
for t in range(5):
    c = "0" if t == 0 else vr(T)
    e(f"v_mfma_f32_16x16x32_bf16 {vr(T)}, {W2Q[t]}, {vr(HB+4*t)}, {c}")
    for k in (2 * t + 3, 2 * t + 4):
        if k < 10:
            for x in hm(k): e(x)
setexec(0x03FF03FF03FF03FF)
lstore(f"buffer_store_dwordx4 {vr(T)}, v84, {sr(sW)}, s{sT1} offen")
setexec(FULL)
stamp(9)
def t_():
    lab("FCS")
    e("s_waitcnt lgkmcnt(0)"); sum4(T + 8); sum4(T + 12)
    e(f"v_mul_f32 v{vCG}, 0x3acccccd, v{T+8}"); e(f"v_mul_f32 v{vCU}, 0x3acccccd, v{T+12}")
    e(f"s_mov_b32 s{sPass}, 1"); e("s_waitcnt vmcnt(0)")
    for q in range(4): e(f"v_mov_b32 v{T+q}, -1")
    lstore(f"buffer_store_dwordx4 {vr(T)}, v21, {sr(sW)}, s97 offen")
    e("s_barrier"); stamp(13); e("s_branch FPOLL")
tail.append(t_)
lab("NEXT")
e(f"s_cmp_lg_u32 s{sLay}, 0"); e("s_cbranch_scc1 DONE")
e(f"s_mov_b32 s{sLay}, {LS}"); e(f"s_add_u32 s{sLG}, s{sLG}, {LS}"); e(f"s_add_u32 s{sYg}, s{sYg}, {LS}"); e(f"s_add_u32 s{sYl}, s{sYl}, {LS}")
e("s_branch LOOP")
flush_near()
lab("DONE")
if SPIN:
    e("v_accvgpr_read_b32 v38, a253"); e("s_nop 1"); e("v_readfirstlane_b32 s96, v38")
    lab("SPINL"); e("s_memrealtime s[98:99]"); e("s_waitcnt lgkmcnt(0)"); e("s_sub_u32 s98, s98, s96"); e(f"s_cmp_lt_u32 s98, {SPIN*100}"); e("s_cbranch_scc1 SPINL")
e("s_endpgm")
i = 0
while i < len(tail): tail[i](); flush_near(); i += 1
lab("CODE_END")
e("s_endpgm")

body = A.pad()
hdr = [f"; @launch grid=(256,1,1) block=(256,1,1) lds={LDSSZ}", '.amdgcn_target "amdgcn-amd-amdhsa--gfx950"', ".text",
       f".globl {NAME}_kernel", ".p2align 8", f".type {NAME}_kernel,@function", f"{NAME}_kernel:"]
ftr = ['.section .rodata,"a"', ".p2align 6", f".amdhsa_kernel {NAME}_kernel", "  .amdhsa_next_free_vgpr 512", "  .amdhsa_next_free_sgpr 102",
       "  .amdhsa_accum_offset 256", "  .amdhsa_group_segment_fixed_size 0", "  .amdhsa_kernarg_size 96", "  .amdhsa_user_sgpr_count 2",
       "  .amdhsa_user_sgpr_kernarg_segment_ptr 1", "  .amdhsa_system_sgpr_workgroup_id_x 1", ".end_amdhsa_kernel"]
src = "\n".join(hdr + body + ftr) + "\n"
import re
for m in re.finditer(r"buffer_\S+ .*offset:(\d+)", src): assert int(m.group(1)) < 4096, m.group(0)
for m in re.finditer(r"ds_\S+ .*offset:(\d+)", src): assert int(m.group(1)) < 65536, m.group(0)
open(OUT, "w").write(src)
```

```python
import os, sys
sys.path.insert(0, os.path.dirname(os.path.abspath(__file__)))
from asmlib import Asm
NAME = "interleave_layers__sliding_block_cached__glu_gated_swiglu__decode"
OPT = dict(a.split("=") for a in sys.argv[2:])
OUT = sys.argv[1] if len(sys.argv) > 1 else f"/code/{NAME}.s"
STAMP = int(OPT.get("stamp", 0))
NT = OPT.get("nt", "nt").replace("x", "")
NTW = OPT.get("ntw", "nt").replace("x", "")
SKIP = OPT.get("skip", "").split(",")
FORCESLOW = int(OPT.get("slow", 0))
SPIN = int(OPT.get("spin", 0))
A = Asm(); e = A.e; lab = A.lab
tail = []

RS = 416; SCRW = 16 * RS
SCR = 0; WQ = 4 * SCRW; ROLE = WQ + 30720
WO = ROLE; W1 = ROLE; W3 = ROLE + 20480; W2 = ROLE + 40960
MISC = ROLE + 61440; QB = MISC; ACC = MISC + 512
OACC = 0; YACC = 3072; FACC = 4096
PT = ACC + 5120; ML4 = PT + 1024
FLG = ML4 + 64
LDSSZ = FLG + 64
FDMA = OPT.get("fdma", "late")
OMASK = int(OPT.get("omask", 1))
WDMA = OPT.get("wdma", "mid")
PF = OPT.get("pf", "ow")
NTP = OPT.get("ntp", "x").replace("x", "")
NTR = OPT.get("ntr", "x").replace("x", "")
GB = 81920; oQ = 0; oO = 32768; oML = 45056; oQF = 45312; oYL = 46080; oFL = 47360; oBA = 48640; oBB = 49920; oFP = 51200
GOFF = 8 * GB; oYG = GOFF; oFG = GOFF + 10240; LS = 0xA8000
OOB = 0x7FFFFFF0
sK, sV, sW, sWQ, sRA, sRB, sRC, sX, sO = 8, 12, 16, 20, 24, 28, 32, 36, 40
sG, sJ, sHH, sS, sWV, sKV, sLay, sFast, sCnt = 68, 69, 70, 71, 72, 73, 74, 75, 76
sT0, sT1, sT2 = 77, 78, 79
sLG = 3
sClr = 4
sXcc = 5
sTL = 6
sT3 = 7
sYg, sYl = 80, 81
sMf = 44
def sr(b): return f"s[{b}:{b+3}]"
def sp(b): return f"s[{b}:{b+1}]"
def vr(b, n=4): return f"v[{b}:{b+n-1}]" if n > 1 else f"v{b}"
def ar(b, n=4): return f"a[{b}:{b+n-1}]"
def srd(d, lo, nbytes):
    e(f"s_mov_b32 s{d}, s{lo}"); e(f"s_and_b32 s{d+1}, s{lo+1}, 0xffff")
    e(f"s_mov_b32 s{d+2}, {nbytes}"); e(f"s_mov_b32 s{d+3}, 0x20000")
def setexec(mask):
    lo, hi = mask & 0xffffffff, mask >> 32
    if mask == (1 << 64) - 1: e("s_mov_b64 exec, -1")
    elif hi == 0 and lo <= 64: e(f"s_mov_b64 exec, {lo}")
    else: e(f"s_mov_b32 exec_lo, {lo:#x}"); e(f"s_mov_b32 exec_hi, {hi:#x}")
FULL = (1 << 64) - 1
ROWS9 = 0x01FF01FF01FF01FF
vL, vLin, vWr, vKrd, vVrd, vCS, vAq, vAq16, vQst, vQld, vQBw, vQBr, vIdx, vAcc, vTq1, vTq2, vSC, vPw = 0, 1, 2, 5, 6, 7, 8, 9, 10, 11, 12, 13, 14, 15, 16, 17, 18, 19
vC1, vC2, vXR = 20, 21, 22
T = 24
F = 40
SPARE = 88
def vblock(b):
    if b < 2: return ("a", 192 + 24 * b)
    if b == 8: return ("v", SPARE)
    return ("v", 112 + 24 * (b - 2))
def rg(f, b, n): return f"{f}[{b}:{b+n-1}]"

uid = [0]
def nid(): uid[0] += 1; return uid[0]
stamps = [0]
SPINAT = int(OPT.get("spinat", -1))
def stamp(i, val=None):
    if SPIN and val is None and SPINAT % 16 == i:
        k = nid()
        e(f"s_cmp_lg_u32 s{sLay}, {LS*(SPINAT//16)}"); e(f"s_cbranch_scc1 NOSP{k}")
        e("s_memrealtime s[100:101]"); e("s_waitcnt lgkmcnt(0)"); e("v_accvgpr_write_b32 a253, s100"); lab(f"NOSP{k}")
    if not STAMP: return
    if STAMP == 3 and (val is not None or i != 7): return
    if STAMP == 4 and val != "c": return
    if val == "c":
        if STAMP != 4: return
        val = None
    if STAMP == 2 and val is None and i not in (0, 14): return
    if STAMP == 1 and (val is not None or i == 14): return
    e("s_memrealtime s[100:101]"); e("v_accvgpr_write_b32 a254, v38"); e("v_accvgpr_write_b32 a255, v39")
    e(f"s_lshl_b32 s98, s2, 2"); e(f"s_add_u32 s98, s98, s{sWV}"); e("s_lshl_b32 s98, s98, 7")
    e(f"s_cmp_eq_u32 s{sLay}, 0"); e(f"s_cselect_b32 s99, 0, 64"); e(f"s_add_u32 s99, s99, {4*i}"); e("s_add_u32 s98, s98, s99"); e("s_add_u32 s98, s98, 0x40000000")
    e("s_waitcnt lgkmcnt(0)"); e(f"v_mov_b32 v38, {val or 's100'}"); e("v_mov_b32 v39, 0")
    e("s_mov_b64 s[100:101], exec"); e("s_mov_b64 exec, 1")
    A.vmem(f"buffer_store_dword v38, v39, {sr(sW)}, s98 offen", "stamp")
    e("s_mov_b64 exec, s[100:101]"); e("s_nop 1"); e("v_accvgpr_read_b32 v38, a254"); e("v_accvgpr_read_b32 v39, a255")
def lstore(instr, counted=None):
    k = nid()
    e(f"s_cmp_eq_u32 s{sFast}, 1"); e(f"s_cbranch_scc0 SLOW{k}")
    if counted: A.vmem(instr, counted)
    else: e(instr)
    lab(f"BACK{k}")
    def t(): lab(f"SLOW{k}"); e(instr + " sc1"); e(f"s_branch BACK{k}")
    tail.append(t)
def check(regs_, tmp):
    r = list(regs_)
    if len(r) == 1: e(f"v_cmp_eq_u32 vcc, -1, v{r[0]}"); return
    cur = r.pop(0)
    while r:
        if len(r) >= 2: e(f"v_max3_u32 v{tmp}, v{cur}, v{r[0]}, v{r[1]}"); r = r[2:]
        else: e(f"v_max_u32 v{tmp}, v{cur}, v{r[0]}"); r = r[1:]
        cur = tmp
    e(f"v_cmp_eq_u32 vcc, -1, v{tmp}")
LIMIT = 0x8000
def poll(loads, regs_, tmp, pid=None, slp=0, first=None):
    k = nid()
    if pid is not None: stamp(pid, "s100")
    e(f"s_mov_b32 s{sCnt}, 1")
    if first:
        for l in loads: e(l)
        first(); e(f"s_branch POLLW{k}")
    lab(f"POLL{k}")
    for l in loads: e(l)
    lab(f"POLLW{k}")
    e("s_waitcnt vmcnt(0)")
    check(regs_, tmp)
    e(f"s_cbranch_vccnz AGAIN{k}")
    lab(f"POLLX{k}")
    def t():
        lab(f"AGAIN{k}")
        if slp: e(f"s_sleep {slp}")
        e(f"s_add_u32 s{sCnt}, s{sCnt}, 1"); e(f"s_cmp_lt_u32 s{sCnt}, {LIMIT}"); e(f"s_cbranch_scc1 POLL{k}"); e(f"s_branch POLLX{k}")
    near.append(t)
    if pid is not None: stamp(pid + 1, "s100"); stamp(pid + 2, f"s{sCnt}")
    A.drained()
SEL = int(OPT.get("sel", 1)); XF = " " + OPT.get("xf", "").replace("+", " "); XF1 = int(OPT.get("xf1", 0))
def poll_sel(groups, tmp, pid=None, first=None, firstloads=None, xf=""):
    allr = [r for g in groups for r in g[1]]
    loads = firstloads or [l for g in groups for l in g[0]]
    if not SEL: return poll(loads, allr, tmp, pid=pid, first=first)
    k = nid()
    if pid is not None: stamp(pid, "s100")
    for l in loads: e(l + (xf if XF1 else ""))
    if first: first()
    if pid is not None and STAMP == 2: e(f"s_mov_b32 s{sCnt}, 1")
    e("s_waitcnt vmcnt(0)")
    check(allr, tmp)
    e(f"s_cbranch_vccnz AGAIN{k}")
    lab(f"POLLX{k}")
    def t():
        lab(f"AGAIN{k}")
        e("s_mov_b64 s[94:95], exec"); e(f"s_mov_b32 s{sCnt}, 1")
        lab(f"AG2{k}")
        for gi, (ls, rs) in enumerate(groups):
            if len(groups) > 1: check(rs, tmp)
            e("s_mov_b64 exec, vcc")
            if len(groups) > 1: e(f"s_cbranch_execz AG3{k}_{gi}")
            for l in ls: e(l + xf)
            lab(f"AG3{k}_{gi}"); e("s_mov_b64 exec, s[94:95]")
        e(f"s_add_u32 s{sCnt}, s{sCnt}, 1"); e(f"s_cmp_ge_u32 s{sCnt}, {LIMIT}")
        e("s_waitcnt vmcnt(0)")
        check(allr, tmp)
        e(f"s_cbranch_vccz POLLX{k}"); e(f"s_cbranch_scc0 AG2{k}"); e(f"s_branch POLLX{k}")
    near.append(t)
    if pid is not None: stamp(pid + 1, "s100"); stamp(pid + 2, f"s{sCnt}")
    A.drained()
near = []
def flush_near():
    while near: near.pop(0)()
GATE = int(OPT.get("gate", 1)); GDLY = int(OPT.get("gdly", 0)); ODLY = int(OPT.get("odly", 16))
def gate(sreg, nl, tmp):
    if not GATE: return
    setexec((1 << nl) - 1)
    poll([f"buffer_load_dword v{tmp}, v{vLin}, {sr(sW)}, s{sreg} offen sc1"], [tmp], tmp)
    if GDLY: e(f"s_sleep {GDLY}")
def late_check(tag, loads, regs_, tmp, pre=None, post=None):
    k = nid()
    A.wait(tag)
    check(regs_, tmp)
    e(f"s_cbranch_vccnz RETRY{k}")
    lab(f"OK{k}")
    def t():
        lab(f"RETRY{k}")
        if pre: pre()
        save = A.vm; poll(loads, regs_, tmp); A.vm = save
        if post: post()
        e(f"s_branch OK{k}")
    tail.append(t)

sTO = 82
sPo, sPw = 90, 91
vLin2 = vXR + 1
e("s_load_dwordx16 s[44:59], s[0:1], 0"); e("s_load_dwordx8 s[60:67], s[0:1], 64")
e("s_cmp_ge_u32 s2, 256"); e("s_cbranch_scc1 CODE_END")
if STAMP or SPIN: e("s_memrealtime s[96:97]")
e("v_lshrrev_b32 v2, 6, v0"); e("v_and_b32 v24, 63, v0"); e(f"v_readfirstlane_b32 s{sWV}, v2")
e(f"s_and_b32 s{sG}, s2, 7"); e(f"s_lshr_b32 s{sJ}, s2, 3"); e(f"s_lshr_b32 s{sHH}, s{sJ}, 3"); e(f"s_and_b32 s{sS}, s{sJ}, 7")
e(f"v_lshlrev_b32 v{vLin}, 4, v24")
e(f"s_lshl_b32 s{sT0}, s{sHH}, 3"); e(f"s_add_u32 s{sT0}, s{sT0}, s{sG}")
e(f"s_mul_i32 s{sKV}, s{sT0}, 12582912"); e(f"s_lshl_b32 s{sT1}, s{sS}, 2"); e(f"s_add_u32 s{sT1}, s{sT1}, s{sWV}")
e(f"s_mul_i32 s{sT1}, s{sT1}, 6144"); e(f"s_add_u32 s{sKV}, s{sKV}, s{sT1}"); e(f"s_add_u32 s{sKV}, s{sKV}, 11010048")
e(f"v_add_u32 v{vLin2}, 4096, v{vLin}"); e(f"s_mov_b32 s{sK+2}, 402653184"); e(f"s_mov_b32 s{sK+3}, 0x20000")
e("s_getpc_b64 s[100:101]"); lab("PCREF")
e(f"s_sub_u32 s100, s100, PCREF-{NAME}_kernel"); e("s_subb_u32 s101, s101, 0")
e(f"s_lshl_b32 s{sT1}, s{sS}, 12"); e(f"v_lshl_add_u32 v25, v0, 4, s{sT1}")
e(f"v_cmp_gt_u32 vcc, CODE_END-{NAME}_kernel-16, v25"); e("s_and_saveexec_b64 s[98:99], vcc"); e("s_cbranch_execz NOCPF")
e(f"global_load_dwordx4 a[240:243], v25, s[100:101]")
lab("NOCPF"); e("s_mov_b64 exec, -1")
e(f"s_mul_i32 s{sT2}, s{sT0}, 384")
e(f"s_mov_b32 s{sLay}, 0"); e(f"s_mul_i32 s{sLG}, s{sG}, {GB}"); e(f"s_mov_b32 s{sFast}, 0")
e(f"v_mov_b32 v32, -1"); e(f"v_mov_b32 v33, -1"); e(f"v_mov_b32 v34, -1"); e(f"v_mov_b32 v35, -1")
e(f"s_mul_i32 s{sT0}, s{sJ}, 576"); e(f"s_add_u32 s{sT0}, s{sT0}, s{sLG}"); e(f"s_add_u32 s{sT0}, s{sT0}, {oO}"); e(f"v_add_u32 v{vC1}, s{sT0}, v{vLin}")
e(f"s_mul_i32 s{sT0}, s2, 80"); e(f"s_add_u32 s{sT0}, s{sT0}, {GOFF-576}"); e(f"v_add_u32 v25, s{sT0}, v{vLin}")
e("v_cmp_le_u32 vcc, 36, v0"); e(f"v_cndmask_b32 v{vC2}, v{vC1}, v25, vcc"); e(f"v_mov_b32 v25, {OOB}"); e(f"v_cndmask_b32 v{vC1}, v{vC1}, v25, vcc")
e("v_cmp_le_u32 vcc, 41, v0"); e(f"v_cndmask_b32 v{vC2}, v{vC2}, v25, vcc")
e(f"s_mov_b32 s{sW+2}, 1610612736"); e(f"s_mov_b32 s{sW+3}, 0x20000")
e("s_waitcnt lgkmcnt(0)")
e(f"s_mov_b32 s{sK}, s46"); e(f"s_and_b32 s{sK+1}, s47, 0xffff"); e(f"s_mov_b32 s{sW}, s66"); e(f"s_and_b32 s{sW+1}, s67, 0xffff")
CLRPOS = int(OPT.get("clrpos", 0))
def clears():
    if "clr" in SKIP: return
    A.vmem(f"buffer_store_dwordx4 v[32:35], v{vC2}, {sr(sW)}, 0 offen sc1", "clr")
if SPIN: e("v_mov_b32 v38, s96"); e("v_accvgpr_write_b32 a253, v38")
RW = int(OPT.get("rw", 16)); RF = (320 - 20 * RW) // 12
assert 20 * RW + 12 * RF == 320
NPW = -(-max(RW, RF) * 24 // 64)
pend = []
def q_tile(srdn, t, f, base, tag):
    so = sKV if t == 0 else sTO + t
    for i in range(6):
        pend.append((f"buffer_load_dwordx4 {rg(f, base+4*i, 4)}, v{vLin if i < 4 else vLin2}, {sr(srdn)}, s{so} offen offset:{1024*(i%4)} {NT}", tag))
def qK(t): q_tile(sK, t, "a", 24 * t, f"K{t}")
def qV(t): f, b = vblock(t + 1); q_tile(sV, t, f, b, f"V{t}")
def q_pfo():
    for n in range(9): pend.append((f"buffer_load_dwordx4 a[240:243], v{[vLin, vLin, vLin2, 108, 109][n//2]}, {sr(sWQ)}, s{sPo} offen offset:{1024*(n%4)} {NTP}", "pfo"))
def q_pfw():
    for n in range(NPW): pend.append((f"buffer_load_dwordx4 a[240:243], v{101+n}, {sr(sX)}, s{sPw} offen {NTP}", "pfw"))
nfill = [0]; BARN = int(OPT.get("barn", 6)); THR = int(OPT.get("thr", 0)); THRE = int(OPT.get("thre", 0))
hold = {"V7", "pfw", "pfo"}; LA = int(OPT.get("la", 12))
def ahead(tag, LA=LA):
    while tag in A.vm and pend and pend[0][1] not in hold and len(A.vm) - 1 - max(i for i, x in enumerate(A.vm) if x == tag) < LA: fill()
def fill(n=1):
    for _ in range(n):
        if pend and not (pend[0][1] in hold):
            if THR and nfill[0] >= THR and len(pend) > THRE: e(f"s_waitcnt vmcnt({THR-1})")
            x, tag = pend.pop(0); A.vmem(x, tag); nfill[0] += 1
            if BARN and nfill[0] > 12 and nfill[0] % BARN == 0 and len(pend) >= 3: e("s_barrier")
BARS = OPT.get("bar", "").split(",")
def upto(tag):
    while any(t == tag for _, t in pend): fill()
    if tag in BARS or "every" in BARS and tag not in ("K0", "K1", "V7"): e("s_barrier")
def Kld(t): upto(f"K{t}")
def Vld(t): upto(f"V{t}")
for it in OPT.get("order", "K0 K1 K2 K3 w K4 K5 K6 K7 V0 V1 V2 V3 V4 V5 V6 V7").replace(",", " ").split():
    if it == "w":
        if "pfw" not in SKIP: q_pfw()
    elif it == "o":
        if "pfo" not in SKIP: q_pfo()
    elif it[0] == "K": qK(int(it[1]))
    else: qV(int(it[1]))
clears(); fill(int(OPT.get("k0e", 2)))
if STAMP == 1: e("s_memrealtime s[94:95]")
e(f"s_add_u32 s{sTO+1}, s{sKV}, 196608")
srd(sV, 48, 402653184); srd(sWQ, 50, 7864320); srd(sX, 44, 1280); srd(sO, 62, 1280)
srd(sRB, 58, 1966080); srd(sRC, 60, 1966080)
e(f"s_cmp_lt_u32 s{sJ}, 20"); e(f"s_cselect_b32 s{sRA}, s52, s56"); e(f"s_cselect_b32 s{sRA+1}, s53, s57"); e(f"s_cselect_b32 s{sRA+2}, s{sWQ+2}, s{sRB+2}")
e(f"s_and_b32 s{sRA+1}, s{sRA+1}, 0xffff"); e(f"s_mov_b32 s{sRA+3}, 0x20000")
if STAMP:
    e(f"s_lshl_b32 s98, s2, 2"); e(f"s_add_u32 s98, s98, s{sWV}"); e("s_lshl_b32 s98, s98, 7"); e("s_add_u32 s98, s98, 0x40000000")
    e("v_mov_b32 v38, s96"); e("v_mov_b32 v39, 0"); e("s_mov_b64 exec, 1")
    A.vmem(f"buffer_store_dword v38, v39, {sr(sW)}, s98 offen", "stamp")
    if STAMP == 1: e("s_waitcnt lgkmcnt(0)"); e("v_mov_b32 v37, s94"); A.vmem(f"buffer_store_dword v37, v39, {sr(sW)}, s98 offen offset:56", "stamp")
    e("s_mov_b64 exec, -1")
for t in range(2, 8): e(f"s_add_u32 s{sTO+t}, s{sTO+t-1}, 196608")
e(f"v_mov_b32 v{vL}, v24")
e(f"s_mul_i32 s{sT0}, s{sWV}, {SCRW}")
for r in range(3):
    e(f"v_add_u32 v25, {64*r}, v{vL}"); e("v_mul_u32_u24 v26, 171, v25"); e("v_lshrrev_b32 v26, 12, v26")
    e("v_mul_u32_u24 v27, 24, v26"); e("v_sub_u32 v27, v25, v27"); e("v_lshlrev_b32 v27, 4, v27")
    e(f"v_mul_u32_u24 v25, {RS}, v26"); e(f"v_add3_u32 v{vWr+r}, v25, v27, s{sT0}")
    e(f"v_mul_u32_u24 v25, 12288, v26"); e(f"v_add_u32 v{F+r}, v25, v27")
    e(f"v_mul_u32_u24 v25, 3072, v26"); e(f"v_add_u32 v{101+r}, v25, v27")
assert all((c * 171) >> 12 == c // 24 for c in range(192))
ATP = int(OPT.get("atp", 0))
def atomic_block():
    sA0, sA1, sA2 = 92, 93, 94
    e(f"s_getreg_b32 s{sXcc}, hwreg(HW_REG_XCC_ID, 0, 4)")
    e(f"s_lshr_b32 s{sA0}, s{sXcc}, 2"); e(f"s_lshl_b32 s{sA1}, s{sG}, 2"); e(f"s_add_u32 s{sA0}, s{sA0}, s{sA1}")
    e(f"s_and_b32 s{sA1}, s{sXcc}, 3"); e(f"s_lshl_b32 s{sA1}, s{sA1}, 3"); e(f"s_lshl_b32 s{sA2}, 1, s{sA1}")
    e(f"s_lshl_b32 s96, 32, s{sA1}"); e(f"s_mov_b32 s{sXcc}, s{sA0}")
    e(f"s_cmp_lg_u32 s{sWV}, 0"); e("s_cbranch_scc1 NOATOM")
    e(f"s_lshl_b32 s{sA0}, s{sA0}, 2"); e(f"v_mov_b32 v36, s{sA0}"); e(f"v_mov_b32 v37, s{sA2}")
    if "atom" not in SKIP: setexec(1); e("global_atomic_add v36, v37, s[64:65] sc1"); setexec(FULL)
    lab("NOATOM")
    stamp(1, "s100")
e(f"s_mul_i32 s{sT1}, s{sS}, {80*12288}"); e(f"s_add_u32 s{sT2}, s{sT2}, s{sT1}")
e(f"s_mul_i32 s{sT1}, s{sWV}, {8*12288}"); e(f"s_add_u32 s{sT2}, s{sT2}, s{sT1}")
e(f"s_mul_i32 s{sT1}, s{sWV}, 3072"); e(f"s_add_u32 s{sT1}, s{sT1}, {WQ}")
for gi in range(3):
    if gi == 2: e(f"s_cmp_ge_u32 s{sWV}, 2"); e("s_cbranch_scc1 NOWQ3")
    for r in range(3):
        e(f"s_add_u32 m0, s{sT1}, {gi*4*3072 + r*1024}")
        if "wq" not in SKIP: A.vmem(f"buffer_load_dwordx4 v{F+r}, {sr(sWQ)}, s{sT2} offen {NTW} lds", "wq", counted=(gi < 2))
    if gi < 2: e(f"s_add_u32 s{sT2}, s{sT2}, {32*12288}")
lab("NOWQ3")
e(f"v_and_b32 v25, 15, v{vL}"); e(f"v_lshrrev_b32 v26, 4, v{vL}")
e(f"v_bfe_u32 v27, v{vL}, 2, 2"); e(f"v_and_b32 v28, 3, v{vL}")
e("v_cmp_eq_u32 vcc, 12, v25"); e("v_mov_b32 v36, 0x3f803f80"); e(f"v_cndmask_b32 v70, 0, v36, vcc")
for q in range(1, 10): e(f"v_mov_b32 v{70+q}, v70")
for q in range(10): e(f"v_mov_b32 v{SPARE+q}, v70")
e(f"s_mul_i32 s{sT1}, s{sS}, 160")
e(f"v_lshlrev_b32 v36, 4, v26"); e(f"v_lshlrev_b32 v37, 3, v26")
setexec(0x0100010001000100)
A.vmem(f"buffer_load_dwordx4 {vr(SPARE)}, v36, {sr(sX)}, s{sT1} offen", "x")
A.vmem(f"buffer_load_dwordx4 {vr(SPARE+4)}, v36, {sr(sX)}, s{sT1} offen offset:64", "x")
A.vmem(f"buffer_load_dwordx2 {vr(SPARE+8,2)}, v37, {sr(sX)}, s{sT1} offen offset:128", "x")
setexec(FULL)
e(f"s_lshl_b32 s{sT2}, s{sJ}, 6"); e(f"v_lshlrev_b32 v38, 2, v25")
A.vmem(f"buffer_load_dword v{vXR}, v38, {sr(sX)}, s{sT2} offen", "x")
srd(sWQ, 52, 7864320)
e(f"s_cmp_lt_u32 s{sWV}, 2"); e(f"s_cselect_b32 s{sX}, s56, s58"); e(f"s_cselect_b32 s{sX+1}, s57, s59"); e(f"s_and_b32 s{sX+1}, s{sX+1}, 0xffff"); e(f"s_mov_b32 s{sX+2}, 1966080")
e(f"s_lshl_b32 s{sPo}, s{sHH}, 3"); e(f"s_add_u32 s{sPo}, s{sPo}, s{sG}"); e(f"s_lshl_b32 s{sPo}, s{sPo}, 3"); e(f"s_add_u32 s{sPo}, s{sPo}, s{sS}")
e(f"s_mul_i32 s{sPo}, s{sPo}, 30720"); e(f"s_mul_i32 s{sT2}, s{sWV}, 6144"); e(f"s_add_u32 s{sPo}, s{sPo}, s{sT2}")
e(f"s_cmp_eq_u32 s{sWV}, 3"); e(f"s_cselect_b32 s{sT2}, 3072, 0"); e(f"s_add_u32 s{sPo}, s{sPo}, s{sT2}")
e(f"s_cmp_lt_u32 s{sWV}, 2"); e(f"s_cselect_b32 s{sT2}, {OOB-0x10000000}, 0"); e(f"v_add_u32 v108, s{sT2}, v{vLin2}"); e(f"v_add_u32 v109, 4096, v108")
e(f"s_and_b32 s{sPw}, s{sWV}, 1"); e(f"s_lshl_b32 s{sT2}, s{sJ}, 1"); e(f"s_add_u32 s{sPw}, s{sPw}, s{sT2}")
e(f"s_mul_i32 s{sT2}, s{sPw}, {RF}"); e(f"s_add_u32 s{sT2}, s{sT2}, {40*(RW-RF)}"); e(f"s_mul_i32 s{sPw}, s{sPw}, {RW}")
e(f"s_cmp_lt_u32 s{sJ}, 20"); e(f"s_cselect_b32 s{sPw}, s{sPw}, s{sT2}"); e(f"s_mov_b32 s{sT3}, {RW*3072}"); e(f"s_cselect_b32 s{sT3}, s{sT3}, {RF*3072}")
e(f"s_mul_i32 s{sPw}, s{sPw}, 3072"); e(f"s_mul_i32 s{sT2}, s{sG}, 384"); e(f"s_add_u32 s{sPw}, s{sPw}, s{sT2}")
e(f"v_mov_b32 v29, {OOB-0x10000000}")
for n in range(3, NPW): e(f"v_add_u32 v{101+n}, {8*3072}, v{98+n}")
for n in range(NPW): e(f"v_cmp_gt_u32 vcc, s{sT3}, v{101+n}"); e(f"v_cndmask_b32 v{101+n}, v29, v{101+n}, vcc")
hold -= {"pfw", "pfo"}
fill(3)
e(f"v_mul_u32_u24 v29, {RS}, v25"); e(f"v_lshl_add_u32 v29, v26, 4, v29"); e(f"v_add_u32 v{vKrd}, s{sT0}, v29")
e(f"v_lshrrev_b32 v29, 2, v{vL}"); e(f"v_mul_u32_u24 v29, {RS}, v29"); e(f"v_lshl_add_u32 v29, v28, 3, v29"); e(f"v_add_u32 v{vVrd}, s{sT0}, v29")
e(f"s_mul_i32 s{sT2}, s{sWV}, 96"); e(f"s_add_u32 s{sT2}, s{sT2}, {WQ}")
e("v_lshl_add_u32 v29, v26, 3, v27"); e("v_mul_u32_u24 v29, 384, v29"); e("v_lshl_add_u32 v29, v28, 3, v29"); e(f"v_add_u32 v{vTq1}, s{sT2}, v29")
e("v_lshl_add_u32 v29, v26, 2, v27"); e("v_mul_u32_u24 v29, 384, v29"); e("v_lshl_add_u32 v29, v28, 3, v29"); e(f"v_add_u32 v{vTq2}, s{sT2}, v29")
def rowbase(dst, m, og, ol, ob, tmp):
    e(f"v_mul_u32_u24 v{dst}, 1280, v{m}"); e(f"v_add_u32 v{dst}, {og}, v{dst}")
    e(f"s_mul_i32 s{sT3}, s{sG}, {GB}"); e(f"s_add_u32 s{sT3}, s{sT3}, {ol}"); e(f"v_mov_b32 v{tmp}, s{sT3}")
    e(f"v_cmp_eq_u32 vcc, s{sG}, v{m}"); e(f"v_cndmask_b32 v{dst}, v{dst}, v{tmp}, vcc")
    if ob is not None:
        e(f"v_add_u32 v{tmp}, {ob-ol}, v{tmp}"); e(f"v_cmp_le_u32 vcc, 8, v{m}"); e(f"v_cndmask_b32 v{dst}, v{dst}, v{tmp}, vcc")
fill()
e(f"v_mul_u32_u24 v31, 103, v{vL}"); e("v_lshrrev_b32 v31, 10, v31")
e(f"v_mul_u32_u24 v30, 10, v31"); e(f"v_sub_u32 v30, v{vL}, v30"); e(f"v_lshl_add_u32 v29, v30, 4, s{sT1}")
rowbase(vAq, 31, oFG, oFL, oBB, 30); e(f"v_add_u32 v{vAq}, v{vAq}, v29")
e("v_add_u32 v31, 6, v31"); rowbase(vAq16, 31, oFG, oFL, oBB, 30); e(f"v_add_u32 v{vAq16}, v{vAq16}, v29")
e(f"v_mov_b32 v30, {OOB}"); e(f"v_cmp_le_u32 vcc, 30, v{vL}"); e(f"v_cndmask_b32 v{vAq16}, v{vAq16}, v30, vcc")
assert all((c * 103) >> 10 == c // 10 for c in range(64))
e(f"s_lshl_b32 s{sT1}, s{sJ}, 10"); e(f"s_lshl_b32 s{sT2}, s{sWV}, 8"); e(f"s_add_u32 s{sT1}, s{sT1}, s{sT2}")
e(f"v_lshl_add_u32 v{vQst}, v{vL}, 2, s{sT1}")
e(f"s_lshl_b32 s{sT1}, s{sHH}, 13"); e(f"s_add_u32 s{sT1}, s{sT1}, s{sT2}")
e(f"v_lshlrev_b32 v29, 10, v26"); e(f"v_lshl_add_u32 v29, v25, 4, v29"); e(f"v_add_u32 v{vQld}, s{sT1}, v29")
fill()
e(f"s_mul_i32 s{sT1}, s{sWV}, 96"); e(f"s_add_u32 s{sT1}, s{sT1}, {QB}")
e(f"v_lshl_add_u32 v29, v27, 5, s{sT1}"); e("v_lshl_add_u32 v29, v28, 2, v29"); e("v_lshrrev_b32 v30, 1, v26"); e("v_lshl_add_u32 v29, v30, 4, v29")
e("v_and_b32 v30, 1, v26"); e("v_lshl_add_u32 v29, v30, 1, v29"); e(f"v_mov_b32 v30, {QB+384}")
e("v_cmp_le_u32 vcc, 12, v25"); e(f"v_cndmask_b32 v{vQBw}, v29, v30, vcc")
e(f"v_and_b32 v30, 1, v{vL}"); e(f"v_lshlrev_b32 v29, 5, v26"); e("v_lshl_add_u32 v29, v30, 4, v29"); e(f"v_add_u32 v{vQBr}, {QB}, v29")
e("v_mul_u32_u24 v30, 0xaaaa, v30"); e("v_and_b32 v29, 1, v27"); e("v_mul_u32_u24 v29, 0xaaaa, v29"); e("v_lshl_or_b32 v29, v29, 16, v30"); e(f"v_add_u32 v{vIdx}, 0x44444444, v29")
fill()
e(f"s_lshl_b32 s{sT1}, s{sWV}, 8"); e(f"s_add_u32 s{sT1}, s{sT1}, {PT}")
e(f"v_lshrrev_b32 v29, 5, v{vL}"); e(f"v_lshl_add_u32 v29, v29, 6, s{sT1}")
for bit, sh in ((3, 5), (1, 4), (2, 3), (4, 2), (0, 1)): e(f"v_bfe_u32 v30, v{vL}, {bit}, 1"); e(f"v_lshl_add_u32 v29, v30, {sh}, v29")
e(f"v_mov_b32 v{vPw}, v29")
e(f"s_mul_i32 s{sT1}, s{sWV}, 768"); e(f"s_add_u32 s{sT1}, s{sT1}, {ACC}"); e(f"v_lshl_add_u32 v29, v25, 2, s{sT1}")
e(f"v_bfe_u32 v30, v{vL}, 4, 1"); e("v_lshl_add_u32 v29, v30, 7, v29"); e(f"v_lshrrev_b32 v30, 5, v{vL}"); e(f"v_lshl_add_u32 v{vAcc}, v30, 6, v29")
for t in range(10):
    m = 0x00010001 << t
    e(f"s_mov_b32 s{sMf+2*t}, {m:#x}"); e(f"s_mov_b32 s{sMf+2*t+1}, {m:#x}")

def Krel(t):
    upto(f"K{t}"); ahead(f"K{t}"); A.wait(f"K{t}")
    if "rel" in SKIP: return
    for i in range(6): e(f"ds_write_b128 v{vWr+i%3}, {ar(24*t+4*i)} offset:{(i//3)*8*RS}")
    for ks in range(6): e(f"ds_read_b128 {ar(24*t+4*ks)}, v{vKrd} offset:{64*ks}")
def Vrel(t):
    upto(f"V{t}"); ahead(f"V{t}"); A.wait(f"V{t}")
    if "rel" in SKIP: return
    f, b = vblock(t + 1)
    for i in range(6): e(f"ds_write_b128 v{vWr+i%3}, {rg(f, b+4*i, 4)} offset:{(i//3)*8*RS}")
    f, b = vblock(t & ~1)
    for dt in range(12): e(f"ds_read_b64_tr_b16 {rg(f, b+4*dt+2*(t&1), 2)}, v{vVrd} offset:{32*dt}")
def wq_frags():
    for t in range(3):
        b = F + 10 * t
        for kk in range(2):
            for h in range(2): e(f"ds_read_b64_tr_b16 {vr(b+4*kk+2*h,2)}, v{vTq1} offset:{(32*kk+4*h)*384+32*t}")
        e(f"ds_read_b64_tr_b16 {vr(b+8,2)}, v{vTq2} offset:{64*384+32*t}")
def qstage(a, soff, tag=None, waits=False, fl=0):
    def mm(t, kk):
        n = 4 if kk < 2 else 2
        bb = vr(F + 10 * t + 4 * kk, n) if t < 3 else vr(a + 4 * kk, n)
        c = "0" if kk == 0 else vr(T + 4 * t)
        e(f"v_mfma_f32_16x16x{32 if kk<2 else 16}_bf16 {vr(T+4*t)}, {vr(a+4*kk,n)}, {bb}, {c}")
    def s4(t): return [f"v_add_f32 v{T+4*t}, v{T+4*t}, v{T+4*t+1}", f"v_add_f32 v{T+4*t+2}, v{T+4*t+2}, v{T+4*t+3}", f"v_add_f32 v{T+4*t}, v{T+4*t}, v{T+4*t+2}"]
    if waits: e("s_waitcnt lgkmcnt(2)")
    mm(0, 0); mm(2, 0)
    if waits: e("s_waitcnt lgkmcnt(0)")
    mm(0, 1); mm(2, 1); mm(0, 2); mm(2, 2)
    mm(1, 0); mm(3, 0); mm(1, 1); mm(3, 1); mm(1, 2); mm(3, 2)
    fill(fl)
    for x in s4(0) + s4(2): e(x)
    e(f"v_permlane32_swap_b32 v{T}, v{T+8}")
    x1, x3 = s4(1), s4(3)
    for x in x1[:2] + x3[:2] + [f"v_add_f32 v{T}, v{T}, v{T+8}"] + x1[2:] + x3[2:]: e(x)
    e(f"v_permlane32_swap_b32 v{T+4}, v{T+12}"); e(f"v_add_f32 v{T+4}, v{T+4}, v{T+12}")
    e(f"v_permlane16_swap_b32 v{T}, v{T+4}"); e(f"v_add_f32 v{T}, v{T}, v{T+4}")
    if tag:
        for q in (1, 2, 3): e(f"v_mov_b32_dpp v{T+q}, v{T} quad_perm:[{q},{q},{q},{q}] row_mask:0xf bank_mask:0xf")
        setexec(0x1111111111111111); A.vmem(f"buffer_store_dwordx4 {vr(T)}, v{vQst}, {sr(sW)}, {soff} offen sc1", tag); setexec(FULL)
    else: lstore(f"buffer_store_dword v{T}, v{vQst}, {sr(sW)}, {soff} offen")
def xreduce(r0, r1, r2, r3):
    e(f"v_permlane32_swap_b32 v{r0}, v{r2}"); e(f"v_permlane32_swap_b32 v{r1}, v{r3}")
    e(f"v_add_f32 v{r0}, v{r0}, v{r2}"); e(f"v_add_f32 v{r1}, v{r1}, v{r3}")
    e(f"v_permlane16_swap_b32 v{r0}, v{r1}"); e(f"v_add_f32 v{r0}, v{r0}, v{r1}")
def qloads(b, s0, s1): return [f"buffer_load_dwordx4 {vr(b)}, v{vQld}, {sr(sW)}, {s0} offen sc1", f"buffer_load_dwordx4 {vr(b+4)}, v{vQld}, {sr(sW)}, {s1} offen sc1"]
def qsum(b):
    for q in range(4): e(f"v_add_f32 v{b+q}, v{b+q}, v{b+4+q}")
    xreduce(b, b + 1, b + 2, b + 3)
def rowred(op, v, tmp, steps):
    for sft in steps: e(f"v_{op}_f32_dpp v{v}, v{v}, v{v} row_ror:{sft} row_mask:0xf bank_mask:0xf")
def xrow(op, v, tmp, both=True):
    if both:
        e(f"v_mov_b32 v{tmp}, v{v}"); e(f"v_permlane32_swap_b32 v{v}, v{tmp}"); e(f"v_{op}_f32 v{v}, v{v}, v{tmp}")
    e(f"v_mov_b32 v{tmp}, v{v}"); e(f"v_permlane16_swap_b32 v{v}, v{tmp}"); e(f"v_{op}_f32 v{v}, v{v}, v{tmp}")
QF = 28; DQ = 40; PA = 72; X = 24; vM = 26
def att_zero():
    for t in range(8): e(f"v_mov_b32 v{DQ+4*t}, 0"); e(f"v_mov_b32 v{DQ+4*t+1}, 0")
    for q in range(16): e(f"v_mov_b32 v{PA+q}, 0")
def q_finish(b, mid=None):
    e(f"v_readlane_b32 s{sT0}, v{b}, 15")
    e(f"s_mov_b32 vcc_lo, 0x70007000"); e(f"s_mov_b32 vcc_hi, 0x70007000")
    e(f"v_fma_f32 v{b+1}, -s{sT0}, v{vCS}, v{b}")
    e(f"v_cvt_pk_bf16_f32 v{b+1}, v{b+1}, v{b+1}")
    e(f"ds_write_b16 v{vQBw}, v{b+1}")
    e(f"v_cndmask_b32 v{b+2}, 0, v{b}, vcc")
    e(f"v_add_f32_dpp v{b+2}, v{b+2}, v{b+2} quad_perm:[1,0,3,2] row_mask:0xf bank_mask:0xf")
    e(f"v_add_f32_dpp v{b+2}, v{b+2}, v{b+2} quad_perm:[2,3,0,1] row_mask:0xf bank_mask:0xf")
    e(f"v_mov_b32 v{b+3}, v{b+2}"); e(f"v_permlane32_swap_b32 v{b+2}, v{b+3}"); e(f"v_add_f32 v{b+2}, v{b+2}, v{b+3}")
    if mid: mid()
    else: e("s_waitcnt lgkmcnt(0)"); e("s_barrier")
    for ks in range(3): e(f"ds_read_b128 {vr(QF+4*ks)}, v{vQBr} offset:{128*ks}")
    e(f"v_mov_b32 v{b+3}, v{b+2}"); e(f"v_mov_b32 v{b+1}, s{sT0}"); e(f"v_subrev_f32 v{b+1}, 0x44200000, v{b+1}")
    e(f"v_permlane16_swap_b32 v{b+2}, v{b+3}"); e(f"v_add_f32 v{b+2}, v{b+2}, v{b+3}")
    e(f"v_mul_f32 v{b}, 0x3acccccd, v{b+1}")
    e(f"v_readlane_b32 s{sT0}, v{b+2}, 15")
    e(f"v_mul_f32 v{b}, v{b}, v{b}"); e(f"s_mov_b32 s{sT1}, 0x3acccccd")
    e(f"v_sub_f32 v{b+2}, s{sT0}, v{b+1}")
    e(f"v_fma_f32 v{b+2}, v{b+2}, s{sT1}, -v{b}"); e(f"v_max_f32 v{b+2}, 0, v{b+2}"); e(f"v_add_f32 v{b+2}, 0x3727c5ac, v{b+2}")
    e(f"v_rsq_f32 v{b+2}, v{b+2}"); e(f"v_mul_f32 v{vSC}, 0x3dd53b94, v{b+2}")
def qk_softmax(fl=0):
    def fold(t): e(f"v_add_f32_dpp v{X+t//4}, v{DQ+4*t}, v{DQ+4*t+1} quad_perm:[0,1,2,3] row_mask:{1<<(t%4):#x} bank_mask:0xf")
    def mm(t, ks): e(f"v_smfmac_f32_16x16x64_bf16 {vr(DQ+4*t)}, {vr(QF+4*ks)}, {ar(24*t+8*ks, 8)}, v{vIdx}")
    for ks in range(3):
        e(f"s_waitcnt lgkmcnt({2-ks})")
        for t in (0, 4, 1, 5, 2, 6, 3, 7): mm(t, ks)
        if ks != 1: fill(fl)
    fx = [f"s_lshl_b32 s{sT1}, s{sWV}, 8", f"v_bfe_u32 v27, v{vL}, 4, 1", f"v_bfe_u32 v28, v{vL}, 2, 1", f"s_add_u32 s{sT1}, s{sT1}, {PT}"]
    for t in range(4): e(fx[t]); fold(t); fold(t + 4)
    e(f"v_max_f32 v{vM}, v{X}, v{X+1}")
    e(f"v_lshl_add_u32 v27, v27, 5, s{sT1}"); e("v_lshl_add_u32 v27, v28, 4, v27")
    rowred("max", vM, None, (8, 4, 2, 1)); xrow("max", vM, 28)
    fill(fl)
    e(f"v_mul_f32 v{vM}, v{vM}, v{vSC}")
    for q in range(2): e(f"v_fma_f32 v{X+q}, v{X+q}, v{vSC}, -v{vM}")
    for q in range(2): e(f"v_exp_f32 v{X+q}, v{X+q}")
    e(f"v_cvt_pk_bf16_f32 v28, v{X}, v{X+1}")
    e(f"ds_write_b16 v{vPw}, v28"); e(f"ds_write_b16_d16_hi v{vPw}, v28 offset:128")
    setexec(0xFF00FF0000FF00FF)
    for u in range(4): e(f"ds_read_b128 {vr(PA+4*u)}, v27 offset:{64*u}")
    setexec(FULL)
    e(f"v_add_f32 v27, v{X}, v{X+1}")
    z = [f"v_mov_b32 v{F+4*dp}, 0" for dp in range(6)] + [f"s_lshl_b32 s{sT1}, s{sWV}, 3", f"s_add_u32 s{sT1}, s{sT1}, {ML4}"]
    for sft in (8, 4, 2, 1):
        e(z.pop(0)); e(z.pop(0)); e(f"v_add_f32_dpp v27, v27, v27 row_ror:{sft} row_mask:0xf bank_mask:0xf")
    xrow("add", 27, 28)
    e(f"v_mov_b32 v28, s{sT1}"); e(f"ds_write_b64 v28, v[26:27]")
def pv_step(u, order=range(6)):
    f, b = vblock(2 * u)
    for dp in order: e(f"v_smfmac_f32_16x16x64_bf16 {vr(F+4*dp)}, {vr(PA+4*u)}, {rg(f, b+8*dp, 8)}, v{vIdx} abid:1")
def pv_post():
    for q in range(3): e(f"v_permlane16_swap_b32 v{F+8*q}, v{F+8*q+4}"); e(f"v_add_f32 v{F+8*q}, v{F+8*q}, v{F+8*q+4}"); e(f"ds_write_b32 v{vAcc}, v{F+8*q} offset:{OACC+256*q}")

WT = [int(x) for x in OPT.get("wt", "0,3,3,2,4").split(",")]
assert sum(WT) == 12
sDo, sDm = 66, 67
ROT = int(OPT.get("rot", 0)); nwd = [0]
def wdma(n, tag=None):
    for _ in range(n):
        if ROT and nwd[0] == 6:
            e(f"s_bitcmp1_b32 s{sJ}, 0"); e(f"s_cselect_b32 s{sT1}, 12288, 0"); e(f"s_sub_u32 s{sDm}, s{sDm}, s{sT1}"); e(f"s_mul_i32 s{sT1}, s{sT1}, 20"); e(f"s_sub_u32 s{sDo}, s{sDo}, s{sT1}")
        nwd[0] += 1
        e(f"s_mov_b32 m0, s{sDm}"); e(f"s_add_u32 s{sDm}, s{sDm}, 1024")
        A.vmem(f"buffer_load_dwordx4 v39, {sr(sRA)}, s{sDo} offen {NTR} lds", tag, counted=tag is not None)
        e(f"s_add_u32 s{sDo}, s{sDo}, {16*1280}")
def wdma_addr():
    e(f"v_lshrrev_b32 v38, 2, v{vL}"); e("v_mul_u32_u24 v38, 1280, v38"); e(f"v_and_b32 v39, 3, v{vL}"); e("v_lshl_add_u32 v39, v39, 4, v38")
def role_dma():
    if "dma" in SKIP: return
    e(f"s_cmp_ge_u32 s{sJ}, 20"); e("s_cbranch_scc1 DMAF")
    e(f"s_lshl_b32 s{sDo}, s{sWV}, 3"); e(f"s_add_u32 s{sDo}, s{sDo}, s{sG}"); e(f"s_mul_i32 s{sDo}, s{sDo}, {192*1280}"); e(f"s_lshl_b32 s{sT1}, s{sJ}, 6"); e(f"s_add_u32 s{sDo}, s{sDo}, s{sT1}")
    e(f"s_mul_i32 s{sDm}, s{sWV}, 12288"); e(f"s_add_u32 s{sDm}, s{sDm}, {WO}")
    if ROT: e(f"s_bitcmp1_b32 s{sJ}, 0"); e(f"s_cselect_b32 s{sT1}, 6144, 0"); e(f"s_add_u32 s{sDm}, s{sDm}, s{sT1}"); e(f"s_mul_i32 s{sT1}, s{sT1}, 20"); e(f"s_add_u32 s{sDo}, s{sDo}, s{sT1}")
    if WT[0]: wdma_addr(); wdma(WT[0])
    lab("DMAX")
    def t():
        lab("DMAF"); fdma(); e("s_branch DMAX")
    tail.append(t)
def fdma():
    if True:
        e(f"v_lshrrev_b32 v38, 1, v{vL}"); e("v_mul_u32_u24 v38, 3072, v38"); e(f"v_and_b32 v39, 1, v{vL}"); e("v_lshl_add_u32 v38, v39, 4, v38")
        e(f"s_mul_i32 s{sT2}, s{sG}, 12"); e(f"s_add_u32 s{sT2}, s{sT2}, s{sJ}"); e(f"s_sub_u32 s{sT2}, s{sT2}, 20")
        e(f"s_mul_i32 s{sT0}, s{sWV}, {160*3072}"); e(f"s_lshl_b32 s{sT1}, s{sT2}, 5"); e(f"s_add_u32 s{sT0}, s{sT0}, s{sT1}")
        e(f"s_mul_i32 s{sT1}, s{sWV}, 5120")
        for n in range(5):
            e(f"s_add_u32 m0, s{sT1}, {W1+1024*n}"); e(f"buffer_load_dwordx4 v38, {sr(sRA)}, s{sT0} offen {NTR} lds")
            e(f"s_add_u32 m0, s{sT1}, {W3+1024*n}"); e(f"buffer_load_dwordx4 v38, {sr(sRB)}, s{sT0} offen {NTR} lds")
            if n < 4: e(f"s_add_u32 s{sT0}, s{sT0}, {32*3072}")
W2P = int(OPT.get("w2p", 0))
def w2dma(tag=None):
    e(f"s_mul_i32 s{sT2}, s{sG}, 12"); e(f"s_add_u32 s{sT2}, s{sT2}, s{sJ}"); e(f"s_sub_u32 s{sT2}, s{sT2}, 20"); e(f"s_mul_i32 s97, s{sWV}, 5120")
    e(f"s_mul_i32 s96, s{sT2}, 20480"); e(f"s_add_u32 s96, s96, s97")
    for n in range(5):
        e(f"s_add_u32 m0, s97, {W2+1024*n}"); A.vmem(f"buffer_load_dwordx4 v{vLin}, {sr(sRC)}, s96 offen {NTW} lds", tag, counted=tag is not None)
        if n < 4: e(f"s_add_u32 s96, s96, 1024")
def addr_block():
    e(f"v_mov_b32 v109, v{vC1}")
    e(f"v_and_b32 v25, 15, v{vL}"); e(f"v_lshrrev_b32 v26, 4, v{vL}"); e("v_add_u32 v27, 4, v26")
    rowbase(vC1, 26, oFG, oFL, None, 28); rowbase(vC2, 27, oFG, oFL, None, 28)
    e(f"s_min_u32 s{sT3}, s{sJ}, 19"); e(f"s_lshl_b32 s{sT3}, s{sT3}, 6"); e(f"v_lshl_add_u32 v25, v25, 2, s{sT3}")
    e(f"v_add_u32 v{vC1}, v{vC1}, v25"); e(f"v_add_u32 v{vC2}, v{vC2}, v25")
    fill()
    e(f"v_and_b32 v25, 15, v{vL}"); e(f"v_bfe_u32 v27, v{vL}, 2, 2"); e(f"v_and_b32 v28, 3, v{vL}")
    e(f"s_mul_i32 s{sT3}, s{sWV}, 12288"); e(f"s_add_u32 s{sT3}, s{sT3}, {WO}")
    e("v_lshl_add_u32 v29, v26, 3, v27"); e("v_lshlrev_b32 v29, 6, v29"); e("v_lshl_add_u32 v29, v28, 3, v29"); e(f"v_add_u32 v29, s{sT3}, v29"); e("v_accvgpr_write_b32 a246, v29")
    e(f"s_mul_i32 s{sT3}, s{sWV}, 3072"); e(f"s_add_u32 s{sT3}, s{sT3}, {oO}")
    e(f"v_lshl_add_u32 v29, v25, 4, s{sT3}"); e("v_lshl_add_u32 v29, v26, 7, v29"); e("v_accvgpr_write_b32 a247, v29")
    e(f"s_lshl_b32 s{sT3}, s{sWV}, 6"); e(f"s_add_u32 s{sT3}, s{sT3}, {oML}"); e("v_and_b32 v29, 1, v26"); e(f"v_lshl_add_u32 v29, v29, 5, s{sT3}"); e("v_accvgpr_write_b32 a248, v29")
    e(f"s_lshl_b32 s{sT3}, s{sWV}, 8"); e(f"s_add_u32 s{sT3}, s{sT3}, {ACC+YACC}"); e(f"v_lshl_add_u32 v29, v{vL}, 2, s{sT3}"); e("v_accvgpr_write_b32 a249, v29")
    e(f"s_lshl_b32 s{sYl}, s{sJ}, 6"); e(f"s_mul_i32 s{sYg}, s{sG}, 1280"); e(f"s_add_u32 s{sYg}, s{sYg}, s{sYl}"); e(f"s_add_u32 s{sYg}, s{sYg}, {oYG}")
    e(f"s_add_u32 s{sYl}, s{sYl}, s{sLG}"); e(f"s_add_u32 s{sYl}, s{sYl}, {oYL}")
ahead("x", int(OPT.get("lax", 6))); A.wait("x"); e("s_barrier"); wq_frags(); fill(2)
stamp(1)
e("s_waitcnt lgkmcnt(0)")
e(f"s_add_u32 s{sT2}, s{sLG}, {2*LS}")
qstage(70, f"s{sT2}", "qst", fl=1); fill(); qstage(SPARE, f"s{sLG}", "qst", fl=1)
Krel(0)
ahead("qst", int(OPT.get("laq", 6))); A.wait("qst"); e("s_barrier"); atomic_block()
Krel(1); Krel(2)
RT = int(OPT.get("rt", 8))
DT = int(OPT.get("dt", 7))
rdy = ["global_load_dword v99, v98, s[64:65] sc1"]
e(f"v_lshlrev_b32 v98, 2, v{vL}")
def ld(t): Kld(t) if t < 8 else Vld(t - 8)
def rel(t): Krel(t) if t < 8 else Vrel(t - 8)
for t in range(5, RT + 2):
    ld(t)
    if t == DT: stamp(12); role_dma()
    if t == RT: A.vmem(rdy[0], "rdy"); stamp(2, "s100")
    if t == 7: addr_block()
    rel(t - 2)
def rdycheck():
    e("v_sad_u8 v100, v99, 0, 0")
    e("v_add_u32_dpp v100, v100, v100 quad_perm:[1,0,3,2] row_mask:0xf bank_mask:0xf")
    e("v_add_u32_dpp v100, v100, v100 quad_perm:[2,3,0,1] row_mask:0xf bank_mask:0xf")
    e("v_cmp_gt_u32 vcc, 32, v100"); e("s_mov_b32 vcc_hi, 0"); e("s_cmp_eq_u64 vcc, 0")
ahead("rdy"); A.wait("rdy"); e(f"s_mov_b32 s{sCnt}, -1"); rdycheck(); e("s_cbranch_scc0 RDYLOOP") if "rdy" not in SKIP else None; lab("RDYOK")
stamp(13, f"s{sCnt}")
def t_():
    lab("RDYLOOP"); e(f"s_mov_b32 s{sCnt}, 0"); lab("RDYL2"); e("s_sleep 24"); e(rdy[0]); e("s_waitcnt vmcnt(0)"); rdycheck(); e("s_cbranch_scc1 RDYOK")
    e(f"s_add_u32 s{sCnt}, s{sCnt}, 1"); e(f"s_cmp_lt_u32 s{sCnt}, {LIMIT}"); e("s_cbranch_scc1 RDYL2"); e("s_branch RDYOK")
tail.append(t_)
e(f"v_readlane_b32 s{sT0}, v99, s{sXcc}"); e(f"s_cmp_eq_u32 s{sT0}, s96"); e(f"s_cselect_b32 s{sFast}, {0 if FORCESLOW else 1}, 0")
stamp(2)
if "pre" not in SKIP:
    A.vmem(f"buffer_load_dwordx4 a[240:243], v109, {sr(sW)}, 0 offen sc1", "pre")
e(f"v_lshrrev_b32 v106, 3, v{vL}"); e("v_mul_u32_u24 v106, 2560, v106"); e(f"v_and_b32 v107, 7, v{vL}"); e("v_lshl_add_u32 v106, v107, 4, v106")
e(f"s_lshl_b32 s{sT0}, s{sJ}, 7"); e(f"s_add_u32 s{sT0}, s{sT0}, s{sLG}"); e(f"s_add_u32 s{sT0}, s{sT0}, {oFP}")
e(f"s_cmp_lt_u32 s{sJ}, 20"); e(f"s_cselect_b32 s{sT0}, s{sT0}, {OOB-0x10000000}"); e(f"s_cmp_eq_u32 s{sWV}, 0"); e(f"s_cselect_b32 s{sT0}, s{sT0}, {OOB-0x10000000}")
e(f"v_add_u32 v106, s{sT0}, v106"); e(f"v_add_u32 v107, {8*2560}, v106"); e(f"v_mov_b32 v108, {OOB}"); e(f"v_cmp_le_u32 vcc, 32, v{vL}"); e("v_cndmask_b32 v107, v107, v108, vcc")
for q in range(2): A.vmem(f"buffer_load_dwordx4 a[240:243], v{106+q}, {sr(sW)}, 0 offen sc1", "pre")
e(f"s_add_u32 s{sT0}, s{sLG}, {2*LS}"); e(f"s_add_u32 s{sT1}, s{sLG}, {2*LS+4096}"); e(f"s_add_u32 s{sT2}, s{sLG}, 4096")
for l in qloads(64, f"s{sT0}", f"s{sT1}") + qloads(72, f"s{sLG}", f"s{sT2}"): A.vmem(l, "qg")
def pack_store16(d, instr_fn):
    for q in (1, 2, 3): e(f"v_mov_b32_dpp v{d+q}, v{d} quad_perm:[{q},{q},{q},{q}] row_mask:0xf bank_mask:0xf")
    setexec(0x1111); instr_fn(); setexec(FULL)
e(f"s_cmp_lg_u32 s{sWV}, 1"); e("s_cbranch_scc1 NOBASE0"); e(f"s_cmp_ge_u32 s{sJ}, 20"); e("s_cbranch_scc1 NOBASE0")
e(f"v_mov_b32 v28, v{vXR}"); e(f"s_lshl_b32 s{sT0}, s{sJ}, 6"); e(f"s_add_u32 s{sT0}, s{sT0}, s{sLG}"); e(f"s_add_u32 s{sT0}, s{sT0}, {oBA}"); e(f"v_lshlrev_b32 v27, 2, v{vL}")
pack_store16(28, lambda: lstore(f"buffer_store_dwordx4 v[28:31], v27, {sr(sW)}, s{sT0} offen"))
lab("NOBASE0")
stamp(3)
for t in range(RT, RT + 3): rel(t)
ahead("qg"); A.wait("qg")
for q in range(4): e(f"v_mov_b32 v{24+q}, -1")
for q in range(2): lstore(f"buffer_store_dwordx4 v[24:27], v{106+q}, {sr(sW)}, 0 offen", "fpc")
qsum(64); qsum(72)
e(f"v_mul_f32 v{vCS}, 0x3acccccd, v64")
e(f"v_mov_b32 v{T}, v72")
fill(); att_zero()
stamp(4)
def qmid(): fill(2); e("s_waitcnt lgkmcnt(0)"); e("s_barrier")
q_finish(T, qmid)
qk_softmax(fl=1)
stamp(5)
hold.clear()
for t in range(RT + 3, 12): rel(t)
fill(2)
e("s_waitcnt lgkmcnt(0)"); pv_step(0); fill(); pv_step(1)
Vrel(4); Vld(7); Vrel(5)
e(f"v_and_b32 v{vXR+1}, 0xffff0000, v{vXR}"); e(f"v_lshlrev_b32 v{vXR}, 16, v{vXR}")
PT_ = [int(x) for x in OPT.get("pt", "7,3").split(",")]
PTF = int(OPT.get("ptf", 1))
def late_pf(w, k0, n):
    for k in range(k0, k0 + n):
        if k % 4 == 0 and k: e(f"s_add_u32 s{sPo}, s{sPo}, 4096")
        A.vmem(f"buffer_load_dwordx4 a[240:243], v{vLin}, {sr(sWQ)}, s{sPo} offen offset:{1024*(k%4)} {NTP}", "pfo")
def stream_tail(w):
    save = list(A.vm)
    pf = sum(PT_) and not (PTF and w)
    if pf and not PTF:
        e(f"s_lshl_b32 s{sPo}, s{sHH}, 3"); e(f"s_add_u32 s{sPo}, s{sPo}, s{sG}"); e(f"s_lshl_b32 s{sPo}, s{sPo}, 3"); e(f"s_add_u32 s{sPo}, s{sPo}, s{sS}")
        e(f"s_lshl_b32 s{sPo}, s{sPo}, 2"); e(f"s_add_u32 s{sPo}, s{sPo}, s{sWV}"); e(f"s_mul_i32 s{sPo}, s{sPo}, 7680")
    if pf and PTF:
        e(f"s_lshl_b32 s{sPo}, s{sWV}, 3"); e(f"s_add_u32 s{sPo}, s{sPo}, s{sG}"); e(f"s_mul_i32 s{sPo}, s{sPo}, 24"); e(f"s_add_u32 s{sPo}, s{sPo}, s{sJ}")
        e(f"s_sub_u32 s{sPo}, s{sPo}, 8"); e(f"s_mul_i32 s{sPo}, s{sPo}, 10240")
    if pf: late_pf(w, 0, PT_[0])
    if w: wdma_addr(); wdma(WT[1], "wo")
    e("s_waitcnt lgkmcnt(0)"); pv_step(2)
    Vrel(6)
    if pf: late_pf(w, PT_[0], PT_[1])
    if w: wdma(WT[2], "wo")
    if not w and W2P == 1: w2dma("w2")
    x = len(A.vm) - 6
    f_, b_ = vblock(8)
    for i in range(6):
        e(f"s_waitcnt vmcnt({5-i+x})"); e(f"ds_write_b128 v{vWr+i%3}, {rg(f_, b_+4*i, 4)} offset:{(i//3)*8*RS}")
    f_, b_ = vblock(6)
    for dt in range(12): e(f"ds_read_b64_tr_b16 {rg(f_, b_+4*dt+2, 2)}, v{vVrd} offset:{32*dt}")
    if w: wdma(WT[3], "wo")
    if not w and W2P == 2: w2dma("w2")
    e("s_branch ATT_LAST")
    A.vm = save
e(f"s_cmp_ge_u32 s{sJ}, 20"); e("s_cbranch_scc1 TAILF")
stream_tail(True)
lab("TAILF")
stream_tail(False)
A.drained()
flush_near()

lab("LOOP")
wq_frags()
e(f"v_and_b32 v25, 15, v{vL}"); e("v_cmp_eq_u32 vcc, 12, v25"); e("v_mov_b32 v36, 0x3f803f80"); e(f"v_cndmask_b32 v70, 0, v36, vcc")
for q in range(1, 10): e(f"v_mov_b32 v{70+q}, v70")
e(f"s_cmp_lt_u32 s{sJ}, 20"); e(f"s_cselect_b32 s{sXcc}, s{sWV}, 0")
e(f"s_add_u32 s{sT2}, s{sLG}, 4096")
e(f"s_mul_i32 s{sT0}, s{sWV}, {SCRW}")
e(f"v_mul_u32_u24 v26, 103, v{vL}"); e("v_lshrrev_b32 v26, 10, v26"); e(f"v_lshl_add_u32 v26, v26, 4, v{vLin}"); e(f"v_add_u32 v26, s{sT0}, v26")
e(f"v_mul_u32_u24 v27, 176, v25"); e(f"v_add_u32 v27, s{sT0}, v27"); e(f"v_lshrrev_b32 v28, 4, v{vL}"); e("v_lshl_add_u32 v29, v28, 3, v27"); e("v_lshl_add_u32 v27, v28, 4, v27")
e(f"s_mul_i32 s{sT0}, s{sS}, 160"); e(f"s_add_u32 s{sT0}, s{sT0}, s{sLG}"); e(f"s_sub_u32 s{sT0}, s{sT0}, {LS-oFL}")
e("s_waitcnt lgkmcnt(0)")
gate(sT0, 10, 24)
setexec((1 << 60) - 1)
poll_sel([([f"buffer_load_dwordx4 v[80:83], v{vAq}, {sr(sW)}, 0 offen sc1"], [80]), ([f"buffer_load_dwordx4 v[84:87], v{vAq16}, {sr(sW)}, 0 offen sc1"], [84])], 24, pid=1, xf=XF)
e("ds_write_b128 v26, v[80:83]"); e(f"ds_write_b128 v26, v[84:87] offset:{6*176}")
setexec(ROWS9)
e("ds_read_b128 v[70:73], v27"); e("ds_read_b128 v[74:77], v27 offset:64"); e("ds_read_b64 v[78:79], v29 offset:128")
setexec(FULL)
stamp(1)
e(f"s_cmp_lg_u32 s{sXcc}, 1"); e("s_cbranch_scc1 NOOWL")
e(f"buffer_load_dword a244, v{vC1}, {sr(sW)}, 0 offen sc1"); e(f"buffer_load_dword a245, v{vC2}, {sr(sW)}, 0 offen sc1")
lab("NOOWL")
qstage(70, f"s{sLG}", waits=True)
stamp(2)
att_zero()
poll(qloads(T, f"s{sLG}", f"s{sT2}"), range(T, T + 8), T + 8, pid=4)
stamp(3)
qsum(T)
q_finish(T)
stamp(4)
qk_softmax()
stamp(5)
for u in range(3):
    e(f"s_waitcnt lgkmcnt({4-u})"); pv_step(u)
e("s_waitcnt lgkmcnt(0)")
lab("ATT_LAST")
for dp in range(6):
    if dp % 2 == 0: e(f"s_waitcnt lgkmcnt({8-2*dp})")
    pv_step(3, [dp])
e(f"v_add_u32 v24, {ACC}, v{vLin}"); e(f"v_mov_b32 v25, {ML4}"); e(f"v_lshlrev_b32 v39, 6, v{vL}")
pv_post()
e(f"s_cmp_lg_u32 s{sWV}, 0")
e("s_waitcnt lgkmcnt(0)"); e("s_barrier")
e("s_cbranch_scc1 ODONE")
stamp(6)
e(f"ds_read_b128 v[64:67], v25"); e(f"ds_read_b128 v[68:71], v25 offset:16")
for w in range(4): e(f"ds_read_b128 {vr(F+4*w)}, v24 offset:{OACC+768*w}")
e(f"s_mul_i32 s{sT0}, s{sHH}, 3072"); e(f"s_lshl_b32 s{sT1}, s{sS}, 4"); e(f"s_add_u32 s{sT0}, s{sT0}, s{sT1}"); e(f"s_add_u32 s{sT0}, s{sT0}, s{sLG}"); e(f"s_add_u32 s{sT0}, s{sT0}, {oO}")
e(f"s_lshl_b32 s{sT1}, s{sJ}, 3"); e(f"s_add_u32 s{sT1}, s{sT1}, s{sLG}"); e(f"s_add_u32 s{sT1}, s{sT1}, {oML}")
e("s_waitcnt lgkmcnt(4)")
e("v_max3_f32 v32, v64, v66, v68"); e("v_max_f32 v32, v32, v70")
for w in range(4): e(f"v_sub_f32 v{64+2*w}, v{64+2*w}, v32")
for w in range(4): e(f"v_exp_f32 v{64+2*w}, v{64+2*w}")
e("s_waitcnt lgkmcnt(0)")
for q in range(4): e(f"v_mul_f32 v{28+q}, v64, v{F+q}")
for w in range(1, 4):
    for q in range(4): e(f"v_fmac_f32 v{28+q}, v{64+2*w}, v{F+4*w+q}")
def pack_pairs():
    e("v_cvt_pk_bf16_f32 v28, v28, v29"); e("v_cvt_pk_bf16_f32 v29, v30, v31")
    e("v_mov_b32_dpp v30, v28 quad_perm:[1,1,3,3] row_mask:0xf bank_mask:0xf"); e("v_mov_b32_dpp v31, v29 quad_perm:[1,1,3,3] row_mask:0xf bank_mask:0xf")
pack_pairs()
setexec(0x5555555555555555 & ((1 << 48) - 1))
lstore(f"buffer_store_dwordx4 v[28:31], v39, {sr(sW)}, s{sT0} offen")
e("v_mul_f32 v33, v64, v65")
for w in range(1, 4): e(f"v_fmac_f32 v33, v{64+2*w}, v{65+2*w}")
setexec(1)
lstore(f"buffer_store_dwordx2 v[32:33], v39, {sr(sW)}, s{sT1} offen")
setexec(FULL)
lab("ODONE")
stamp(7)
if STAMP == 3: e("s_endpgm")
e(f"s_cmp_ge_u32 s{sJ}, 20"); e("s_cbranch_scc1 ROLEF")
def owner_add():
    e("v_lshlrev_b32 v30, 16, v28"); e("v_and_b32 v28, 0xffff0000, v28"); e("v_lshlrev_b32 v31, 16, v29"); e("v_and_b32 v29, 0xffff0000, v29")
    e("v_add_f32 v30, v30, v31"); e("v_add_f32 v28, v28, v29")
    e("v_mov_b32 v31, v30"); e("v_mov_b32 v29, v28"); e("v_permlane32_swap_b32 v30, v31"); e("v_permlane32_swap_b32 v28, v29"); e("v_add_f32 v30, v30, v31"); e("v_add_f32 v28, v28, v29")
    e("v_mov_b32 v31, v30"); e("v_mov_b32 v29, v28"); e("v_permlane16_swap_b32 v30, v31"); e("v_permlane16_swap_b32 v28, v29"); e("v_add_f32 v30, v30, v31"); e("v_add_f32 v28, v28, v29")
    e(f"v_add_f32 v{vXR}, v{vXR}, v30"); e(f"v_add_f32 v{vXR+1}, v{vXR+1}, v28")
    e(f"v_cvt_pk_bf16_f32 v28, v{vXR}, v{vXR+1}")
def own_loads(a0, a1, soff): return [f"buffer_load_dword v28, v{a0}, {sr(sW)}, {soff} offen sc1", f"buffer_load_dword v29, v{a1}, {sr(sW)}, {soff} offen sc1"]
def base_store(ob):
    e(f"s_lshl_b32 s{sT0}, s{sJ}, 6"); e(f"s_add_u32 s{sT0}, s{sT0}, s{sLG}"); e(f"s_add_u32 s{sT0}, s{sT0}, {ob}"); e(f"v_lshlrev_b32 v37, 2, v{vL}")
    pack_store16(28, lambda: lstore(f"buffer_store_dwordx4 v[28:31], v37, {sr(sW)}, s{sT0} offen"))
e(f"s_cmp_eq_u32 s{sLay}, 0"); e("s_cbranch_scc1 WLATE"); lab("WGO")
def t_():
    lab("WLATE")
    if WT[4]: wdma_addr(); wdma(WT[4])
    e("s_waitcnt vmcnt(0)"); stamp(13); e("s_branch WGO")
near.append(t_)
for q in range(3): e(f"v_accvgpr_read_b32 v{2+q}, a{246+q}")
for kk in range(6): e(f"v_mov_b32 v{SPARE+4*kk}, 0")
trs = [f"ds_read_b64_tr_b16 {vr(F+24*t+4*kk+2*h,2)}, v2 offset:{(32*kk+4*h)*64+32*t}" for kk in range(6) for t in range(2) for h in range(2)]
for x in trs[:10]: e(x)
e(f"s_cmp_lg_u32 s{sWV}, 1"); e("s_cbranch_scc1 NOOWN0"); e(f"s_cmp_eq_u32 s{sLay}, 0"); e("s_cbranch_scc1 NOOWN0")
e("v_accvgpr_read_b32 v28, a244"); e("v_accvgpr_read_b32 v29, a245")
late_check("none", own_loads(vC1, vC2, "0"), [28, 29], 30)
owner_add(); base_store(oBA)
lab("NOOWN0")
MLR = [24, 36]
for q in (25, 27, 37, 39): e(f"v_mov_b32 v{q}, 0")
def wfirst():
    for x in trs[10:]: e(x)
    e("v_accvgpr_read_b32 v5, a249"); e(f"v_add_u32 v6, {ACC}, v{vLin}"); e(f"v_lshrrev_b32 v18, 1, v{vLin}")
ol = [f"buffer_load_dwordx4 {vr(SPARE+4*kk)}, v3, {sr(sW)}, s{sLG} offen offset:{512*kk} sc1" for kk in range(6)]
ml = [f"buffer_load_dwordx4 {vr(MLR[q])}, v4, {sr(sW)}, s{sLG} offen offset:{16*q} sc1" for q in range(2)]
poll_sel([(ol, [SPARE + 4 * kk for kk in range(6)]), (ml, [25, 27, 37, 39])], 28, pid=7, first=wfirst,
         firstloads=["s_mov_b32 exec_lo, 0x00ff00ff", "s_mov_b32 exec_hi, 0x00ff00ff"] + ol + ["s_mov_b32 exec_lo, -1", "s_mov_b32 exec_hi, 0"] + ml + ["s_mov_b64 exec, -1"])
e("s_waitcnt lgkmcnt(0)")
stamp(8)
M_, U_, L_ = SPARE, SPARE + 1, SPARE + 2
mm_ = [24, 26, 36, 38]
co = [[], [f"v_max3_f32 v{M_}, v24, v26, v36", f"v_max_f32 v{M_}, v{M_}, v38"], [f"v_mov_b32 v{U_}, v{M_}"], [f"v_permlane16_swap_b32 v{M_}, v{U_}", f"v_max_f32 v{M_}, v{M_}, v{U_}"],
      [f"v_sub_f32 v24, v24, v{M_}", f"v_sub_f32 v26, v26, v{M_}"], [f"v_sub_f32 v36, v36, v{M_}", f"v_sub_f32 v38, v38, v{M_}"],
      ["v_exp_f32 v24, v24"], ["v_exp_f32 v26, v26"], ["v_exp_f32 v36, v36"], ["v_exp_f32 v38, v38"],
      [f"v_mul_f32 v{L_}, v24, v25", f"v_fmac_f32 v{L_}, v26, v27"], [f"v_fmac_f32 v{L_}, v36, v37", f"v_fmac_f32 v{L_}, v38, v39"]]
for kk in range(6):
    for t in range(2):
        c = "0" if kk == 0 else vr(28 + 4 * t)
        e(f"v_mfma_f32_16x16x32_bf16 {vr(28+4*t)}, {vr(SPARE+4*kk)}, {vr(F+24*t+4*kk)}, {c}")
        for x in co.pop(0): e(x)
e(f"v_mov_b32 v{U_}, v{L_}"); e(f"s_cmp_lg_u32 s{sWV}, 0"); e(f"v_permlane16_swap_b32 v{L_}, v{U_}"); e(f"v_add_f32 v{L_}, v{L_}, v{U_}"); e(f"v_rcp_f32 v{L_}, v{L_}")
for t in range(2): e(f"v_mul_f32 v{28+4*t}, v24, v{28+4*t}")
for q in range(1, 4):
    for t in range(2): e(f"v_fmac_f32 v{28+4*t}, v{mm_[q]}, v{28+4*t+q}")
e("v_permlane16_swap_b32 v28, v32"); e("v_add_f32 v28, v28, v32"); e(f"v_mul_f32 v28, v28, v{L_}")
e(f"ds_write_b32 v5, v28")
e("s_waitcnt lgkmcnt(0)"); e("s_barrier")
e("s_cbranch_scc1 WNOT0")
for w in range(4): e(f"ds_read_b128 {vr(F+4*w)}, v6 offset:{YACC+256*w}")
e("s_waitcnt lgkmcnt(2)")
for q in range(4): e(f"v_add_f32 v{28+q}, v{F+q}, v{F+4+q}")
e("s_waitcnt lgkmcnt(0)")
for q in range(4): e(f"v_add_f32 v{32+q}, v{F+8+q}, v{F+12+q}")
for q in range(4): e(f"v_add_f32 v{28+q}, v{28+q}, v{32+q}")
pack_pairs()
setexec(0x55)
e(f"buffer_store_dwordx4 v[28:31], v18, {sr(sW)}, s{sYg} offen sc1")
lstore(f"buffer_store_dwordx4 v[28:31], v18, {sr(sW)}, s{sYl} offen")
setexec(FULL)
stamp(9); stamp(9, "c")
e(f"v_lshrrev_b32 v37, 5, v{vL}"); e("v_mul_u32_u24 v37, 2560, v37"); e(f"v_and_b32 v38, 31, v{vL}"); e("v_lshl_add_u32 v37, v38, 2, v37")
for k in range(1, 6): e(f"v_add_u32 v{F+k}, {5120*k}, v37")
e(f"s_lshl_b32 s{sT2}, s{sJ}, 7"); e(f"s_add_u32 s{sT2}, s{sT2}, s{sLG}"); e(f"s_add_u32 s{sT2}, s{sT2}, {oFP}")
e(f"s_add_u32 s96, s{sYg}, {oFG-oYG}"); e(f"s_add_u32 s97, s{sYl}, {oFL-oYL}"); e(f"v_lshlrev_b32 v39, 1, v{vL}")
e(f"s_cmp_lg_u32 s{sLay}, 0"); e("s_cbranch_scc1 NOLC")
e(f"s_mul_i32 s{sT0}, s{sJ}, {154*16}"); e(f"s_add_u32 s{sT1}, s{sLG}, {LS+oO}")
for q in range(3): e(f"v_add_u32 v{F+8+q}, s{sT0}, v{vLin}"); e(f"v_min_u32 v{F+8+q}, {GB-oO-16}, v{F+8+q}"); e(f"s_add_u32 s{sT0}, s{sT0}, 1024")
for q in range(3): e(f"buffer_load_dwordx4 a[240:243], v{F+8+q}, {sr(sW)}, s{sT1} offen sc1")
for q in range(4): e(f"v_mov_b32 v{F+12+q}, -1")
e(f"s_add_u32 s{sT0}, s{sYg}, {LS}"); e(f"s_add_u32 s{sT3}, s96, {LS}")
e("s_waitcnt vmcnt(0)")
for q in range(3): lstore(f"buffer_store_dwordx4 {vr(F+12)}, v{F+8+q}, {sr(sW)}, s{sT1} offen")
setexec(15)
e(f"buffer_store_dwordx4 {vr(F+12)}, v{vLin}, {sr(sW)}, s{sT0} offen sc1"); e(f"buffer_store_dwordx4 {vr(F+12)}, v{vLin}, {sr(sW)}, s{sT3} offen sc1")
setexec(FULL)
lab("NOLC")
poll([f"buffer_load_dword v{28+k}, v{37 if k==0 else F+k}, {sr(sW)}, s{sT2} offen sc1" for k in range(6)], range(28, 34), 36, pid=10)
stamp(10)
e("v_add_f32 v28, v28, v29"); e("v_add_f32 v30, v30, v31"); e("v_add_f32 v32, v32, v33"); e("v_add_f32 v28, v28, v30"); e("v_add_f32 v28, v28, v32")
e("v_mov_b32 v29, v28"); e("v_permlane32_swap_b32 v28, v29"); e("v_add_f32 v28, v28, v29")
e("v_mov_b32_dpp v29, v28 row_shl:1 row_mask:0xf bank_mask:0xf"); e("v_cvt_pk_bf16_f32 v28, v28, v29")
for q in (1, 2, 3): e(f"v_mov_b32_dpp v{28+q}, v28 row_shl:{2*q} row_mask:0xf bank_mask:0xf")
setexec(0x01010101)
e(f"buffer_store_dwordx4 v[28:31], v39, {sr(sW)}, s96 offen sc1")
lstore(f"buffer_store_dwordx4 v[28:31], v39, {sr(sW)}, s97 offen")
setexec(FULL)
stamp(11)
e("s_branch NEXT")
flush_near()
lab("WNOT0")
e(f"s_cmp_lg_u32 s{sWV}, 1"); e("s_cbranch_scc1 NEXT")
e(f"v_and_b32 v25, 15, v{vL}"); e(f"v_lshrrev_b32 v26, 4, v{vL}")
rowbase(37, 26, oYG, oYL, None, 38); e("v_add_u32 v39, 4, v26"); rowbase(38, 39, oYG, oYL, None, 28)
e(f"s_lshl_b32 s{sT0}, s{sJ}, 6"); e(f"s_add_u32 s{sT0}, s{sT0}, s{sLay}")
e("v_lshl_add_u32 v37, v25, 2, v37"); e("v_lshl_add_u32 v38, v25, 2, v38")
if GATE and ODLY: e(f"s_sleep {ODLY}")
poll(own_loads(37, 38, f"s{sT0}"), [28, 29], 30, slp=(4 if GATE else 0))
owner_add()
e(f"s_cmp_lg_u32 s{sLay}, 0"); e("s_cbranch_scc1 FINAL")
base_store(oBB)
e("s_branch NEXT")
lab("FINAL")
e(f"s_cmp_lg_u32 s{sG}, 0"); e("s_cbranch_scc1 DONE")
e(f"s_lshl_b32 s{sT0}, s{sJ}, 6"); e(f"v_lshlrev_b32 v37, 2, v{vL}")
e(f"s_add_u32 s{sT2}, s{sT0}, s{sLG}"); e(f"s_add_u32 s{sT2}, s{sT2}, {oFL}")
gate(sT2, 4, 28); setexec(FULL)
poll(own_loads(vC1, vC2, f"s{sLay}"), [28, 29], 30)
owner_add()
setexec(0xffff)
e(f"buffer_store_dword v28, v37, {sr(sO)}, s{sT0} offen")
setexec(FULL)
stamp(12); stamp(12, "c")
e("s_branch DONE") if SPIN else e("s_endpgm")
flush_near()
lab("ROLEF")
e(f"v_and_b32 v25, 15, v{vL}"); e(f"v_lshrrev_b32 v26, 4, v{vL}"); e(f"v_bfe_u32 v27, v{vL}, 2, 2"); e(f"v_and_b32 v36, 3, v{vL}")
FA = SPARE
vCG, vCU = vXR, vXR + 1
sPass = sClr
e(f"s_mov_b32 s{sPass}, 1")
e(f"s_cmp_lg_u32 s{sLay}, 0"); e("s_cbranch_scc1 FW")
e(f"s_mov_b32 s{sPass}, 0")
lab("FW")
e(f"s_mul_i32 s{sT0}, s{sWV}, 5120"); e(f"s_add_u32 s{sT0}, s{sT0}, {W1}")
e("v_lshl_add_u32 v37, v26, 3, v27"); e("v_lshlrev_b32 v37, 5, v37"); e("v_lshl_add_u32 v37, v36, 3, v37"); e(f"v_add_u32 v37, s{sT0}, v37")
for t in range(2):
    for kk in range(5):
        for h in range(2): e(f"ds_read_b64_tr_b16 {vr(F+20*t+4*kk+2*h,2)}, v37 offset:{(32*kk+4*h)*32+20480*t}")
e(f"s_mul_i32 s{sT0}, s{sWV}, 320"); e(f"s_add_u32 s{sT0}, s{sT0}, {W2}")
e(f"v_lshrrev_b32 v80, 2, v{vL}"); e("v_mul_u32_u24 v80, 1280, v80"); e("v_lshl_add_u32 v80, v36, 3, v80"); e(f"v_add_u32 v80, s{sT0}, v80")
e(f"s_lshl_b32 s{sT2}, s{sWV}, 2"); e(f"s_add_u32 s{sT2}, s{sT2}, {ACC+FACC}"); e(f"v_add_u32 v81, s{sT2}, v{vLin}")
e("v_lshl_add_u32 v82, v26, 2, v36"); e("v_lshlrev_b32 v82, 4, v82"); e(f"v_add_u32 v82, {ACC+FACC}, v82")
e("v_cmp_eq_u32 vcc, 12, v25")
e("v_mov_b32 v38, 13"); e("v_cndmask_b32 v83, v25, v38, vcc"); e("v_lshlrev_b32 v83, 4, v83"); e(f"v_add_u32 v83, {ACC+FACC+512}, v83")
e(f"v_mov_b32 v85, {ACC+FACC+512+192}")
e("v_lshlrev_b32 v84, 6, v25"); e("v_lshl_add_u32 v84, v26, 4, v84")
e("v_mov_b32 v38, 0x3f803f80"); e(f"v_cndmask_b32 v{FA}, 0, v38, vcc")
for q in range(1, 20): e(f"v_mov_b32 v{FA+q}, v{FA}")
e(f"s_mul_i32 s{sT0}, s{sWV}, {SCRW}")
e(f"v_mul_u32_u24 v6, 336, v25"); e("v_lshl_add_u32 v6, v26, 4, v6"); e(f"v_add_u32 v6, s{sT0}, v6")
e(f"v_mul_u32_u24 v37, 52, v{vL}"); e("v_lshrrev_b32 v37, 10, v37")
e(f"v_lshl_add_u32 v87, v37, 4, v{vLin}"); e(f"v_add_u32 v87, s{sT0}, v87")
e(f"v_mul_u32_u24 v27, 320, v37"); e(f"v_sub_u32 v27, v{vLin}, v27")
assert all((c * 52) >> 10 == c // 20 for c in range(64))
FG = [86, 18, 20]
for i in range(3):
    rowbase(FG[i], 37, oYG, oYL, oBA, 38); e(f"v_add_u32 v{FG[i]}, v{FG[i]}, v27")
    if i < 2: e("v_add_u32 v37, 3, v37")
e(f"s_mul_i32 s{sT0}, s{sWV}, 320"); e(f"s_add_u32 s{sT0}, s{sT0}, s{sLay}")
e(f"s_sub_u32 s{sT1}, s{sJ}, 20"); e(f"s_mul_i32 s{sT1}, s{sT1}, 2560"); e(f"s_mul_i32 s{sT3}, s{sWV}, 640"); e(f"s_add_u32 s{sT1}, s{sT1}, s{sT3}")
e(f"s_add_u32 s{sT1}, s{sT1}, s{sLG}"); e(f"s_add_u32 s{sT1}, s{sT1}, {oFP}")
e("s_waitcnt lgkmcnt(0)")
e(f"s_cmp_eq_u32 s{sPass}, 0"); e("s_cbranch_scc1 FW2")
def t_():
    lab("FW2")
    if W2P == 0: w2dma()
    e(f"s_sub_u32 s96, s{sJ}, 20"); e("s_lshl_b32 s96, s96, 2"); e(f"s_add_u32 s96, s96, s{sWV}"); e(f"s_mul_i32 s96, s96, {43*16}")
    e(f"v_add_u32 v21, s96, v{vLin}"); e(f"v_min_u32 v21, {32768-16}, v21"); e(f"s_add_u32 s97, s{sLG}, {LS+oQ}")
    e(f"buffer_load_dwordx4 a[240:243], v21, {sr(sW)}, s97 offen sc1")
    e("s_branch FMM")
tail.append(t_)
lab("FPOLL")
W2R = [f"a[{240+2*t}:{241+2*t}]" for t in range(6)] + ["v[108:109]", "v[110:111]", "v[2:3]", "v[4:5]"]
for t in range(10): e(f"ds_read_b64_tr_b16 {W2R[t]}, v80 offset:{32*t}")
e("s_waitcnt lgkmcnt(0)")
e(f"s_mul_i32 s{sT2}, s{sWV}, 320"); e(f"s_add_u32 s{sT2}, s{sT2}, s{sLG}"); e(f"s_add_u32 s{sT2}, s{sT2}, {oYL}")
gate(sT2, 20, 36)
setexec((1 << 60) - 1)
poll_sel([([f"buffer_load_dwordx4 {vr(T+4*i)}, v{FG[i]}, {sr(sW)}, s{sT0} offen sc1"], [T + 4 * i]) for i in range(3)], 36, pid=7, xf=XF)
for i in range(3): e(f"ds_write_b128 v87, {vr(T+4*i)} offset:{3*336*i}")
setexec(ROWS9)
for kk in range(5): e(f"ds_read_b128 {vr(FA+4*kk)}, v6 offset:{64*kk}")
setexec(FULL)
stamp(8)
lab("FMM")
for kk in range(5):
    e(f"s_waitcnt lgkmcnt({4-kk})")
    for t in range(3):
        c = "0" if kk == 0 else vr(T + 4 * t)
        bb = vr(F + 20 * t + 4 * kk) if t < 2 else vr(FA + 4 * kk)
        e(f"v_mfma_f32_16x16x32_bf16 {vr(T+4*t)}, {vr(FA+4*kk)}, {bb}, {c}")
for t in range(3): e(f"v_add_f32 v{T+4*t}, v{T+4*t}, v{T+4*t+1}"); e(f"v_add_f32 v{T+4*t+2}, v{T+4*t+2}, v{T+4*t+3}")
for t in range(3): e(f"v_add_f32 v{T+4*t}, v{T+4*t}, v{T+4*t+2}")
xreduce(T, T + 4, T + 8, T + 1)
e(f"ds_write_b32 v81, v{T}")
e(f"s_cmp_eq_u32 s{sPass}, 0")
e("s_waitcnt lgkmcnt(0)"); e("s_barrier")
e(f"ds_read_b128 {vr(T)}, v83"); e(f"ds_read_b128 {vr(T+4)}, v85"); e(f"ds_read_b128 {vr(T+8)}, v82"); e(f"ds_read_b128 {vr(T+12)}, v82 offset:256")
e("s_cbranch_scc1 FCS")
def sum4(b): e(f"v_add_f32 v{b}, v{b}, v{b+1}"); e(f"v_add_f32 v{b+2}, v{b+2}, v{b+3}"); e(f"v_add_f32 v{b}, v{b}, v{b+2}")
d = lambda sft: f"v_add_f32_dpp v{T}, v{T}, v{T} row_ror:{sft} row_mask:0xf bank_mask:0xf"
e("s_waitcnt lgkmcnt(3)"); sum4(T); e("s_waitcnt lgkmcnt(2)")
e(f"v_add_f32 v{T+4}, v{T+4}, v{T+5}"); e(d(8)); e(f"v_add_f32 v{T+6}, v{T+6}, v{T+7}"); e(f"v_add_f32 v{T+4}, v{T+4}, v{T+6}"); e(d(4))
e("s_waitcnt lgkmcnt(0)")
e(f"v_subrev_f32 v{T+5}, 0x44200000, v{T+4}"); e(d(2))
e(f"v_add_f32 v{T+8}, v{T+8}, v{T+9}"); e(f"v_mul_f32 v{T+6}, 0x3acccccd, v{T+5}"); e(d(1))
e(f"v_add_f32 v{T+10}, v{T+10}, v{T+11}"); e(f"v_sub_f32 v{T}, v{T}, v{T+5}")
e(f"v_add_f32 v{T+8}, v{T+8}, v{T+10}"); e(f"v_mul_f32 v{T}, 0x3acccccd, v{T}")
e(f"v_add_f32 v{T+12}, v{T+12}, v{T+13}"); e(f"v_fma_f32 v{T}, -v{T+6}, v{T+6}, v{T}")
e(f"v_add_f32 v{T+14}, v{T+14}, v{T+15}"); e(f"v_max_f32 v{T}, 0, v{T}")
e(f"v_fma_f32 v{T+8}, -v{T+4}, v{vCG}, v{T+8}"); e(f"v_add_f32 v{T}, 0x3727c5ac, v{T}")
e(f"v_add_f32 v{T+12}, v{T+12}, v{T+14}"); e(f"v_rsq_f32 v{T}, v{T}")
e(f"v_fma_f32 v{T+12}, -v{T+4}, v{vCU}, v{T+12}"); e(f"v_mul_f32 v{T+9}, 0xbfb8aa3b, v{T+8}")
e(f"v_mul_f32 v{T+9}, v{T+9}, v{T}"); e(f"v_mul_f32 v{T+12}, v{T+12}, v{T+8}"); e(f"v_exp_f32 v{T+9}, v{T+9}")
e(f"v_mul_f32 v{T+12}, v{T+12}, v{T}"); e(f"v_add_f32 v{T+9}, 1.0, v{T+9}"); e(f"v_mul_f32 v{T+12}, v{T+12}, v{T}"); e(f"v_rcp_f32 v{T+9}, v{T+9}")
e(f"v_mul_f32 v{T+12}, v{T+12}, v{T+9}")
for q in range(4): e(f"v_mov_b32_dpp v{T+4+q}, v{T+12} quad_perm:[{q},{q},{q},{q}] row_mask:0xf bank_mask:0xf")
e(f"v_cvt_pk_bf16_f32 v{T+4}, v{T+4}, v{T+5}"); e(f"v_cvt_pk_bf16_f32 v{T+5}, v{T+6}, v{T+7}")
HB = 60
def hm(t): return [f"v_cndmask_b32 v{HB+2*t+q}, 0, v{T+4+q}, {sp(sMf+2*t)}" for q in range(2)]
W2Q = ["a[240:243]", "a[244:247]", "a[248:251]", "v[108:111]", "v[2:5]"]
for x in hm(0) + hm(1) + hm(2): e(x)
for t in range(5):
    c = "0" if t == 0 else vr(T)
    e(f"v_mfma_f32_16x16x32_bf16 {vr(T)}, {W2Q[t]}, {vr(HB+4*t)}, {c}")
    for k in (2 * t + 3, 2 * t + 4):
        if k < 10:
            for x in hm(k): e(x)
setexec(0x03FF03FF03FF03FF)
lstore(f"buffer_store_dwordx4 {vr(T)}, v84, {sr(sW)}, s{sT1} offen")
setexec(FULL)
stamp(9)
def t_():
    lab("FCS")
    e("s_waitcnt lgkmcnt(0)"); sum4(T + 8); sum4(T + 12)
    e(f"v_mul_f32 v{vCG}, 0x3acccccd, v{T+8}"); e(f"v_mul_f32 v{vCU}, 0x3acccccd, v{T+12}")
    e(f"s_mov_b32 s{sPass}, 1"); e("s_waitcnt vmcnt(0)")
    for q in range(4): e(f"v_mov_b32 v{T+q}, -1")
    lstore(f"buffer_store_dwordx4 {vr(T)}, v21, {sr(sW)}, s97 offen")
    e("s_barrier"); stamp(13); e("s_branch FPOLL")
tail.append(t_)
lab("NEXT")
e(f"s_cmp_lg_u32 s{sLay}, 0"); e("s_cbranch_scc1 DONE")
e(f"s_mov_b32 s{sLay}, {LS}"); e(f"s_add_u32 s{sLG}, s{sLG}, {LS}"); e(f"s_add_u32 s{sYg}, s{sYg}, {LS}"); e(f"s_add_u32 s{sYl}, s{sYl}, {LS}")
e("s_branch LOOP")
flush_near()
lab("DONE")
if SPIN:
    e("v_accvgpr_read_b32 v38, a253"); e("s_nop 1"); e("v_readfirstlane_b32 s96, v38")
    lab("SPINL"); e("s_memrealtime s[98:99]"); e("s_waitcnt lgkmcnt(0)"); e("s_sub_u32 s98, s98, s96"); e(f"s_cmp_lt_u32 s98, {SPIN*100}"); e("s_cbranch_scc1 SPINL")
e("s_endpgm")
i = 0
while i < len(tail): tail[i](); flush_near(); i += 1
lab("CODE_END")
e("s_endpgm")

body = A.pad()
hdr = [f"; @launch grid=(256,1,1) block=(256,1,1) lds={LDSSZ}", '.amdgcn_target "amdgcn-amd-amdhsa--gfx950"', ".text",
       f".globl {NAME}_kernel", ".p2align 8", f".type {NAME}_kernel,@function", f"{NAME}_kernel:"]
ftr = ['.section .rodata,"a"', ".p2align 6", f".amdhsa_kernel {NAME}_kernel", "  .amdhsa_next_free_vgpr 512", "  .amdhsa_next_free_sgpr 102",
       "  .amdhsa_accum_offset 256", "  .amdhsa_group_segment_fixed_size 0", "  .amdhsa_kernarg_size 96", "  .amdhsa_user_sgpr_count 2",
       "  .amdhsa_user_sgpr_kernarg_segment_ptr 1", "  .amdhsa_system_sgpr_workgroup_id_x 1", ".end_amdhsa_kernel"]
src = "\n".join(hdr + body + ftr) + "\n"
import re
for m in re.finditer(r"buffer_\S+ .*offset:(\d+)", src): assert int(m.group(1)) < 4096, m.group(0)
for m in re.finditer(r"ds_\S+ .*offset:(\d+)", src): assert int(m.group(1)) < 65536, m.group(0)
open(OUT, "w").write(src)
```

```python
import os, sys
sys.path.insert(0, os.path.dirname(os.path.abspath(__file__)))
from asmlib import Asm
NAME = "interleave_layers__sliding_block_cached__glu_gated_swiglu__decode"
OPT = dict(a.split("=") for a in sys.argv[2:])
OUT = sys.argv[1] if len(sys.argv) > 1 else f"/code/{NAME}.s"
STAMP = int(OPT.get("stamp", 0))
NT = OPT.get("nt", "nt").replace("x", "")
NTW = OPT.get("ntw", "nt").replace("x", "")
SKIP = OPT.get("skip", "").split(",")
FORCESLOW = int(OPT.get("slow", 0))
SPIN = int(OPT.get("spin", 0))
A = Asm(); e = A.e; lab = A.lab
tail = []

RS = 416; SCRW = 16 * RS
SCR = 0; WQ = 4 * SCRW; ROLE = WQ + 30720
WO = ROLE; W1 = ROLE; W3 = ROLE + 20480; W2 = ROLE + 40960
MISC = ROLE + 61440; QB = MISC; ACC = MISC + 512
OACC = 0; YACC = 3072; FACC = 4096
PT = ACC + 5120; ML4 = PT + 1024
FLG = ML4 + 64
LDSSZ = FLG + 64
FDMA = OPT.get("fdma", "late")
OMASK = int(OPT.get("omask", 1))
WDMA = OPT.get("wdma", "mid")
PF = OPT.get("pf", "ow")
NTP = OPT.get("ntp", "x").replace("x", "")
NTR = OPT.get("ntr", "x").replace("x", "")
GB = 81920; oQ = 0; oO = 32768; oML = 45056; oQF = 45312; oYL = 46080; oFL = 47360; oBA = 48640; oBB = 49920; oFP = 51200
GOFF = 8 * GB; oYG = GOFF; oFG = GOFF + 10240; LS = 0xA8000
OOB = 0x7FFFFFF0
sK, sV, sW, sWQ, sRA, sRB, sRC, sX, sO = 8, 12, 16, 20, 24, 28, 32, 36, 40
sG, sJ, sHH, sS, sWV, sKV, sLay, sFast, sCnt = 68, 69, 70, 71, 72, 73, 74, 75, 76
sT0, sT1, sT2 = 77, 78, 79
sLG = 3
sClr = 4
sXcc = 5
sTL = 6
sT3 = 7
sYg, sYl = 80, 81
sMf = 44
def sr(b): return f"s[{b}:{b+3}]"
def sp(b): return f"s[{b}:{b+1}]"
def vr(b, n=4): return f"v[{b}:{b+n-1}]" if n > 1 else f"v{b}"
def ar(b, n=4): return f"a[{b}:{b+n-1}]"
def srd(d, lo, nbytes):
    e(f"s_mov_b32 s{d}, s{lo}"); e(f"s_and_b32 s{d+1}, s{lo+1}, 0xffff")
    e(f"s_mov_b32 s{d+2}, {nbytes}"); e(f"s_mov_b32 s{d+3}, 0x20000")
def setexec(mask):
    lo, hi = mask & 0xffffffff, mask >> 32
    if mask == (1 << 64) - 1: e("s_mov_b64 exec, -1")
    elif hi == 0 and lo <= 64: e(f"s_mov_b64 exec, {lo}")
    else: e(f"s_mov_b32 exec_lo, {lo:#x}"); e(f"s_mov_b32 exec_hi, {hi:#x}")
FULL = (1 << 64) - 1
ROWS9 = 0x01FF01FF01FF01FF
vL, vLin, vWr, vKrd, vVrd, vCS, vAq, vAq16, vQst, vQld, vQBw, vQBr, vIdx, vAcc, vTq1, vTq2, vSC, vPw = 0, 1, 2, 5, 6, 7, 8, 9, 10, 11, 12, 13, 14, 15, 16, 17, 18, 19
vC1, vC2, vXR = 20, 21, 22
T = 24
F = 40
SPARE = 88
def vblock(b):
    if b < 2: return ("a", 192 + 24 * b)
    if b == 8: return ("v", SPARE)
    return ("v", 112 + 24 * (b - 2))
def rg(f, b, n): return f"{f}[{b}:{b+n-1}]"

uid = [0]
def nid(): uid[0] += 1; return uid[0]
stamps = [0]
SPINAT = int(OPT.get("spinat", -1))
def stamp(i, val=None):
    if SPIN and val is None and SPINAT % 16 == i:
        k = nid()
        e(f"s_cmp_lg_u32 s{sLay}, {LS*(SPINAT//16)}"); e(f"s_cbranch_scc1 NOSP{k}")
        e("s_memrealtime s[100:101]"); e("s_waitcnt lgkmcnt(0)"); e("v_accvgpr_write_b32 a253, s100"); lab(f"NOSP{k}")
    if not STAMP: return
    if STAMP == 3 and (val is not None or i != 7): return
    if STAMP == 4 and val != "c": return
    if val == "c":
        if STAMP != 4: return
        val = None
    if STAMP == 2 and val is None and i not in (0, 14): return
    if STAMP == 1 and (val is not None or i == 14): return
    e("s_memrealtime s[100:101]"); e("v_accvgpr_write_b32 a254, v38"); e("v_accvgpr_write_b32 a255, v39")
    e(f"s_lshl_b32 s98, s2, 2"); e(f"s_add_u32 s98, s98, s{sWV}"); e("s_lshl_b32 s98, s98, 7")
    e(f"s_cmp_eq_u32 s{sLay}, 0"); e(f"s_cselect_b32 s99, 0, 64"); e(f"s_add_u32 s99, s99, {4*i}"); e("s_add_u32 s98, s98, s99"); e("s_add_u32 s98, s98, 0x40000000")
    e("s_waitcnt lgkmcnt(0)"); e(f"v_mov_b32 v38, {val or 's100'}"); e("v_mov_b32 v39, 0")
    e("s_mov_b64 s[100:101], exec"); e("s_mov_b64 exec, 1")
    A.vmem(f"buffer_store_dword v38, v39, {sr(sW)}, s98 offen", "stamp")
    e("s_mov_b64 exec, s[100:101]"); e("s_nop 1"); e("v_accvgpr_read_b32 v38, a254"); e("v_accvgpr_read_b32 v39, a255")
def lstore(instr, counted=None):
    k = nid()
    e(f"s_cmp_eq_u32 s{sFast}, 1"); e(f"s_cbranch_scc0 SLOW{k}")
    if counted: A.vmem(instr, counted)
    else: e(instr)
    lab(f"BACK{k}")
    def t(): lab(f"SLOW{k}"); e(instr + " sc1"); e(f"s_branch BACK{k}")
    tail.append(t)
def check(regs_, tmp):
    r = list(regs_)
    if len(r) == 1: e(f"v_cmp_eq_u32 vcc, -1, v{r[0]}"); return
    cur = r.pop(0)
    while r:
        if len(r) >= 2: e(f"v_max3_u32 v{tmp}, v{cur}, v{r[0]}, v{r[1]}"); r = r[2:]
        else: e(f"v_max_u32 v{tmp}, v{cur}, v{r[0]}"); r = r[1:]
        cur = tmp
    e(f"v_cmp_eq_u32 vcc, -1, v{tmp}")
LIMIT = 0x8000
def poll(loads, regs_, tmp, pid=None, slp=0, first=None):
    k = nid()
    if pid is not None: stamp(pid, "s100")
    e(f"s_mov_b32 s{sCnt}, 1")
    if first:
        for l in loads: e(l)
        first(); e(f"s_branch POLLW{k}")
    lab(f"POLL{k}")
    for l in loads: e(l)
    lab(f"POLLW{k}")
    e("s_waitcnt vmcnt(0)")
    check(regs_, tmp)
    e(f"s_cbranch_vccnz AGAIN{k}")
    lab(f"POLLX{k}")
    def t():
        lab(f"AGAIN{k}")
        if slp: e(f"s_sleep {slp}")
        e(f"s_add_u32 s{sCnt}, s{sCnt}, 1"); e(f"s_cmp_lt_u32 s{sCnt}, {LIMIT}"); e(f"s_cbranch_scc1 POLL{k}"); e(f"s_branch POLLX{k}")
    near.append(t)
    if pid is not None: stamp(pid + 1, "s100"); stamp(pid + 2, f"s{sCnt}")
    A.drained()
SEL = int(OPT.get("sel", 1)); XF = " " + OPT.get("xf", "").replace("+", " "); XF1 = int(OPT.get("xf1", 0))
def poll_sel(groups, tmp, pid=None, first=None, firstloads=None, xf=""):
    allr = [r for g in groups for r in g[1]]
    loads = firstloads or [l for g in groups for l in g[0]]
    if not SEL: return poll(loads, allr, tmp, pid=pid, first=first)
    k = nid()
    if pid is not None: stamp(pid, "s100")
    for l in loads: e(l + (xf if XF1 else ""))
    if first: first()
    if pid is not None and STAMP == 2: e(f"s_mov_b32 s{sCnt}, 1")
    e("s_waitcnt vmcnt(0)")
    check(allr, tmp)
    e(f"s_cbranch_vccnz AGAIN{k}")
    lab(f"POLLX{k}")
    def t():
        lab(f"AGAIN{k}")
        e("s_mov_b64 s[94:95], exec"); e(f"s_mov_b32 s{sCnt}, 1")
        lab(f"AG2{k}")
        for gi, (ls, rs) in enumerate(groups):
            if len(groups) > 1: check(rs, tmp)
            e("s_mov_b64 exec, vcc")
            if len(groups) > 1: e(f"s_cbranch_execz AG3{k}_{gi}")
            for l in ls: e(l + xf)
            lab(f"AG3{k}_{gi}"); e("s_mov_b64 exec, s[94:95]")
        e(f"s_add_u32 s{sCnt}, s{sCnt}, 1"); e(f"s_cmp_ge_u32 s{sCnt}, {LIMIT}")
        e("s_waitcnt vmcnt(0)")
        check(allr, tmp)
        e(f"s_cbranch_vccz POLLX{k}"); e(f"s_cbranch_scc0 AG2{k}"); e(f"s_branch POLLX{k}")
    near.append(t)
    if pid is not None: stamp(pid + 1, "s100"); stamp(pid + 2, f"s{sCnt}")
    A.drained()
near = []
def flush_near():
    while near: near.pop(0)()
GATE = int(OPT.get("gate", 1)); GDLY = int(OPT.get("gdly", 0)); ODLY = int(OPT.get("odly", 16))
def gate(sreg, nl, tmp):
    if not GATE: return
    setexec((1 << nl) - 1)
    poll([f"buffer_load_dword v{tmp}, v{vLin}, {sr(sW)}, s{sreg} offen sc1"], [tmp], tmp)
    if GDLY: e(f"s_sleep {GDLY}")
def late_check(tag, loads, regs_, tmp, pre=None, post=None):
    k = nid()
    A.wait(tag)
    check(regs_, tmp)
    e(f"s_cbranch_vccnz RETRY{k}")
    lab(f"OK{k}")
    def t():
        lab(f"RETRY{k}")
        if pre: pre()
        save = A.vm; poll(loads, regs_, tmp); A.vm = save
        if post: post()
        e(f"s_branch OK{k}")
    tail.append(t)

sTO = 82
sPo, sPw = 90, 91
vLin2 = vXR + 1
e("s_load_dwordx16 s[44:59], s[0:1], 0"); e("s_load_dwordx8 s[60:67], s[0:1], 64")
e("s_cmp_ge_u32 s2, 256"); e("s_cbranch_scc1 CODE_END")
if STAMP or SPIN: e("s_memrealtime s[96:97]")
e("v_lshrrev_b32 v2, 6, v0"); e("v_and_b32 v24, 63, v0"); e(f"v_readfirstlane_b32 s{sWV}, v2")
e(f"s_and_b32 s{sG}, s2, 7"); e(f"s_lshr_b32 s{sJ}, s2, 3"); e(f"s_lshr_b32 s{sHH}, s{sJ}, 3"); e(f"s_and_b32 s{sS}, s{sJ}, 7")
e(f"v_lshlrev_b32 v{vLin}, 4, v24")
e(f"s_lshl_b32 s{sT0}, s{sHH}, 3"); e(f"s_add_u32 s{sT0}, s{sT0}, s{sG}")
e(f"s_mul_i32 s{sKV}, s{sT0}, 12582912"); e(f"s_lshl_b32 s{sT1}, s{sS}, 2"); e(f"s_add_u32 s{sT1}, s{sT1}, s{sWV}")
e(f"s_mul_i32 s{sT1}, s{sT1}, 6144"); e(f"s_add_u32 s{sKV}, s{sKV}, s{sT1}"); e(f"s_add_u32 s{sKV}, s{sKV}, 11010048")
e(f"v_add_u32 v{vLin2}, 4096, v{vLin}"); e(f"s_mov_b32 s{sK+2}, 402653184"); e(f"s_mov_b32 s{sK+3}, 0x20000")
e("s_getpc_b64 s[100:101]"); lab("PCREF")
e(f"s_sub_u32 s100, s100, PCREF-{NAME}_kernel"); e("s_subb_u32 s101, s101, 0")
e(f"s_lshl_b32 s{sT1}, s{sS}, 12"); e(f"v_lshl_add_u32 v25, v0, 4, s{sT1}")
e(f"v_cmp_gt_u32 vcc, CODE_END-{NAME}_kernel-16, v25"); e("s_and_saveexec_b64 s[98:99], vcc"); e("s_cbranch_execz NOCPF")
e(f"global_load_dwordx4 a[240:243], v25, s[100:101]")
lab("NOCPF"); e("s_mov_b64 exec, -1")
e(f"s_mul_i32 s{sT2}, s{sT0}, 384")
e(f"s_mov_b32 s{sLay}, 0"); e(f"s_mul_i32 s{sLG}, s{sG}, {GB}"); e(f"s_mov_b32 s{sFast}, 0")
e(f"v_mov_b32 v32, -1"); e(f"v_mov_b32 v33, -1"); e(f"v_mov_b32 v34, -1"); e(f"v_mov_b32 v35, -1")
e(f"s_mul_i32 s{sT0}, s{sJ}, 576"); e(f"s_add_u32 s{sT0}, s{sT0}, s{sLG}"); e(f"s_add_u32 s{sT0}, s{sT0}, {oO}"); e(f"v_add_u32 v{vC1}, s{sT0}, v{vLin}")
e(f"s_mul_i32 s{sT0}, s2, 80"); e(f"s_add_u32 s{sT0}, s{sT0}, {GOFF-576}"); e(f"v_add_u32 v25, s{sT0}, v{vLin}")
e("v_cmp_le_u32 vcc, 36, v0"); e(f"v_cndmask_b32 v{vC2}, v{vC1}, v25, vcc"); e(f"v_mov_b32 v25, {OOB}"); e(f"v_cndmask_b32 v{vC1}, v{vC1}, v25, vcc")
e("v_cmp_le_u32 vcc, 41, v0"); e(f"v_cndmask_b32 v{vC2}, v{vC2}, v25, vcc")
e(f"s_mov_b32 s{sW+2}, 1610612736"); e(f"s_mov_b32 s{sW+3}, 0x20000")
e("s_waitcnt lgkmcnt(0)")
e(f"s_mov_b32 s{sK}, s46"); e(f"s_and_b32 s{sK+1}, s47, 0xffff"); e(f"s_mov_b32 s{sW}, s66"); e(f"s_and_b32 s{sW+1}, s67, 0xffff")
CLRPOS = int(OPT.get("clrpos", 0))
def clears():
    if "clr" in SKIP: return
    A.vmem(f"buffer_store_dwordx4 v[32:35], v{vC2}, {sr(sW)}, 0 offen sc1", "clr")
if SPIN: e("v_mov_b32 v38, s96"); e("v_accvgpr_write_b32 a253, v38")
SPM = OPT.get("spm", "")
RW = int(OPT.get("rw", 16)); RF = (320 - 20 * RW) // 12
assert 20 * RW + 12 * RF == 320
NPW = -(-max(RW, RF) * 24 // 64)
pend = []
def q_tile(srdn, t, f, base, tag):
    so = sKV if t == 0 else sTO + t
    for i in range(6):
        pend.append((f"buffer_load_dwordx4 {rg(f, base+4*i, 4)}, v{vLin if i < 4 else vLin2}, {sr(srdn)}, s{so} offen offset:{1024*(i%4)} {NT}", tag))
def qK(t): q_tile(sK, t, "a", 24 * t, f"K{t}")
def qV(t): f, b = vblock(t + 1); q_tile(sV, t, f, b, f"V{t}")
def q_pfo():
    for n in range(9): pend.append((f"buffer_load_dwordx4 a[240:243], v{[vLin, vLin, vLin2, 108, 109][n//2]}, {sr(sWQ)}, s{sPo} offen offset:{1024*(n%4)} {NTP}", "pfo"))
def q_pfw():
    for n in range(NPW): pend.append((f"buffer_load_dwordx4 a[240:243], v{101+n}, {sr(sX)}, s{sPw} offen {NTP}", "pfw"))
nfill = [0]; BARN = int(OPT.get("barn", 6)); THR = int(OPT.get("thr", 0)); THRE = int(OPT.get("thre", 0))
hold = {"V7", "pfw", "pfo"}; LA = int(OPT.get("la", 12))
def ahead(tag, LA=LA):
    while tag in A.vm and pend and pend[0][1] not in hold and len(A.vm) - 1 - max(i for i, x in enumerate(A.vm) if x == tag) < LA: fill()
def fill(n=1):
    for _ in range(n):
        if pend and not (pend[0][1] in hold):
            if THR and nfill[0] >= THR and len(pend) > THRE: e(f"s_waitcnt vmcnt({THR-1})")
            x, tag = pend.pop(0); A.vmem(x, tag); nfill[0] += 1
            if BARN and nfill[0] > 12 and nfill[0] % BARN == 0 and len(pend) >= 3: e("s_barrier")
BARS = OPT.get("bar", "").split(",")
def upto(tag):
    while any(t == tag for _, t in pend): fill()
    if tag in BARS or "every" in BARS and tag not in ("K0", "K1", "V7"): e("s_barrier")
def Kld(t): upto(f"K{t}")
def Vld(t): upto(f"V{t}")
for it in OPT.get("order", "K0 K1 K2 K3 w K4 K5 K6 K7 V0 V1 V2 V3 V4 V5 V6 V7").replace(",", " ").split():
    if it == "w":
        if "pfw" not in SKIP: q_pfw()
    elif it == "o":
        if "pfo" not in SKIP: q_pfo()
    elif it[0] == "K": qK(int(it[1]))
    else: qV(int(it[1]))
clears(); fill(int(OPT.get("k0e", 2)))
if STAMP == 1: e("s_memrealtime s[94:95]")
e(f"s_add_u32 s{sTO+1}, s{sKV}, 196608")
srd(sV, 48, 402653184); srd(sWQ, 50, 7864320); srd(sX, 44, 1280); srd(sO, 62, 1280)
srd(sRB, 58, 1966080); srd(sRC, 60, 1966080)
e(f"s_cmp_lt_u32 s{sJ}, 20"); e(f"s_cselect_b32 s{sRA}, s52, s56"); e(f"s_cselect_b32 s{sRA+1}, s53, s57"); e(f"s_cselect_b32 s{sRA+2}, s{sWQ+2}, s{sRB+2}")
e(f"s_and_b32 s{sRA+1}, s{sRA+1}, 0xffff"); e(f"s_mov_b32 s{sRA+3}, 0x20000")
if STAMP:
    e(f"s_lshl_b32 s98, s2, 2"); e(f"s_add_u32 s98, s98, s{sWV}"); e("s_lshl_b32 s98, s98, 7"); e("s_add_u32 s98, s98, 0x40000000")
    e("v_mov_b32 v38, s96"); e("v_mov_b32 v39, 0"); e("s_mov_b64 exec, 1")
    A.vmem(f"buffer_store_dword v38, v39, {sr(sW)}, s98 offen", "stamp")
    if STAMP == 1: e("s_waitcnt lgkmcnt(0)"); e("v_mov_b32 v37, s94"); A.vmem(f"buffer_store_dword v37, v39, {sr(sW)}, s98 offen offset:56", "stamp")
    e("s_mov_b64 exec, -1")
for t in range(2, 8): e(f"s_add_u32 s{sTO+t}, s{sTO+t-1}, 196608")
e(f"v_mov_b32 v{vL}, v24")
e(f"s_mul_i32 s{sT0}, s{sWV}, {SCRW}")
for r in range(3):
    e(f"v_add_u32 v25, {64*r}, v{vL}"); e("v_mul_u32_u24 v26, 171, v25"); e("v_lshrrev_b32 v26, 12, v26")
    e("v_mul_u32_u24 v27, 24, v26"); e("v_sub_u32 v27, v25, v27"); e("v_lshlrev_b32 v27, 4, v27")
    e(f"v_mul_u32_u24 v25, {RS}, v26"); e(f"v_add3_u32 v{vWr+r}, v25, v27, s{sT0}")
    e(f"v_mul_u32_u24 v25, 12288, v26"); e(f"v_add_u32 v{F+r}, v25, v27")
    e(f"v_mul_u32_u24 v25, 3072, v26"); e(f"v_add_u32 v{101+r}, v25, v27")
assert all((c * 171) >> 12 == c // 24 for c in range(192))
ATP = int(OPT.get("atp", 0))
def atomic_block():
    sA0, sA1, sA2 = 92, 93, 94
    e(f"s_getreg_b32 s{sXcc}, hwreg(HW_REG_XCC_ID, 0, 4)")
    e(f"s_lshr_b32 s{sA0}, s{sXcc}, 2"); e(f"s_lshl_b32 s{sA1}, s{sG}, 2"); e(f"s_add_u32 s{sA0}, s{sA0}, s{sA1}")
    e(f"s_and_b32 s{sA1}, s{sXcc}, 3"); e(f"s_lshl_b32 s{sA1}, s{sA1}, 3"); e(f"s_lshl_b32 s{sA2}, 1, s{sA1}")
    e(f"s_lshl_b32 s96, 32, s{sA1}"); e(f"s_mov_b32 s{sXcc}, s{sA0}")
    e(f"s_cmp_lg_u32 s{sWV}, 0"); e("s_cbranch_scc1 NOATOM")
    e(f"s_lshl_b32 s{sA0}, s{sA0}, 2"); e(f"v_mov_b32 v36, s{sA0}"); e(f"v_mov_b32 v37, s{sA2}")
    if "atom" not in SKIP: setexec(1); e("global_atomic_add v36, v37, s[64:65] sc1"); setexec(FULL)
    lab("NOATOM")
    stamp(1, "s100")
e(f"s_mul_i32 s{sT1}, s{sS}, {80*12288}"); e(f"s_add_u32 s{sT2}, s{sT2}, s{sT1}")
e(f"s_mul_i32 s{sT1}, s{sWV}, {8*12288}"); e(f"s_add_u32 s{sT2}, s{sT2}, s{sT1}")
e(f"s_mul_i32 s{sT1}, s{sWV}, 3072"); e(f"s_add_u32 s{sT1}, s{sT1}, {WQ}")
for gi in range(3):
    if gi == 2: e(f"s_cmp_ge_u32 s{sWV}, 2"); e("s_cbranch_scc1 NOWQ3")
    for r in range(3):
        e(f"s_add_u32 m0, s{sT1}, {gi*4*3072 + r*1024}")
        if "wq" not in SKIP: A.vmem(f"buffer_load_dwordx4 v{F+r}, {sr(sWQ)}, s{sT2} offen {NTW} lds", "wq", counted=(gi < 2))
    if gi < 2: e(f"s_add_u32 s{sT2}, s{sT2}, {32*12288}")
lab("NOWQ3")
e(f"v_and_b32 v25, 15, v{vL}"); e(f"v_lshrrev_b32 v26, 4, v{vL}")
e(f"v_bfe_u32 v27, v{vL}, 2, 2"); e(f"v_and_b32 v28, 3, v{vL}")
e("v_cmp_eq_u32 vcc, 12, v25"); e("v_mov_b32 v36, 0x3f803f80"); e(f"v_cndmask_b32 v70, 0, v36, vcc")
for q in range(1, 10): e(f"v_mov_b32 v{70+q}, v70")
for q in range(10): e(f"v_mov_b32 v{SPARE+q}, v70")
e(f"s_mul_i32 s{sT1}, s{sS}, 160")
e(f"v_lshlrev_b32 v36, 4, v26"); e(f"v_lshlrev_b32 v37, 3, v26")
setexec(0x0100010001000100)
A.vmem(f"buffer_load_dwordx4 {vr(SPARE)}, v36, {sr(sX)}, s{sT1} offen", "x")
A.vmem(f"buffer_load_dwordx4 {vr(SPARE+4)}, v36, {sr(sX)}, s{sT1} offen offset:64", "x")
A.vmem(f"buffer_load_dwordx2 {vr(SPARE+8,2)}, v37, {sr(sX)}, s{sT1} offen offset:128", "x")
setexec(FULL)
e(f"s_lshl_b32 s{sT2}, s{sJ}, 6"); e(f"v_lshlrev_b32 v38, 2, v25")
A.vmem(f"buffer_load_dword v{vXR}, v38, {sr(sX)}, s{sT2} offen", "x")
srd(sWQ, 52, 7864320)
e(f"s_cmp_lt_u32 s{sWV}, 2"); e(f"s_cselect_b32 s{sX}, s56, s58"); e(f"s_cselect_b32 s{sX+1}, s57, s59"); e(f"s_and_b32 s{sX+1}, s{sX+1}, 0xffff"); e(f"s_mov_b32 s{sX+2}, 1966080")
e(f"s_lshl_b32 s{sPo}, s{sHH}, 3"); e(f"s_add_u32 s{sPo}, s{sPo}, s{sG}"); e(f"s_lshl_b32 s{sPo}, s{sPo}, 3"); e(f"s_add_u32 s{sPo}, s{sPo}, s{sS}")
e(f"s_mul_i32 s{sPo}, s{sPo}, 30720"); e(f"s_mul_i32 s{sT2}, s{sWV}, 6144"); e(f"s_add_u32 s{sPo}, s{sPo}, s{sT2}")
e(f"s_cmp_eq_u32 s{sWV}, 3"); e(f"s_cselect_b32 s{sT2}, 3072, 0"); e(f"s_add_u32 s{sPo}, s{sPo}, s{sT2}")
e(f"s_cmp_lt_u32 s{sWV}, 2"); e(f"s_cselect_b32 s{sT2}, {OOB-0x10000000}, 0"); e(f"v_add_u32 v108, s{sT2}, v{vLin2}"); e(f"v_add_u32 v109, 4096, v108")
e(f"s_and_b32 s{sPw}, s{sWV}, 1"); e(f"s_lshl_b32 s{sT2}, s{sJ}, 1"); e(f"s_add_u32 s{sPw}, s{sPw}, s{sT2}")
e(f"s_mul_i32 s{sT2}, s{sPw}, {RF}"); e(f"s_add_u32 s{sT2}, s{sT2}, {40*(RW-RF)}"); e(f"s_mul_i32 s{sPw}, s{sPw}, {RW}")
e(f"s_cmp_lt_u32 s{sJ}, 20"); e(f"s_cselect_b32 s{sPw}, s{sPw}, s{sT2}"); e(f"s_mov_b32 s{sT3}, {RW*3072}"); e(f"s_cselect_b32 s{sT3}, s{sT3}, {RF*3072}")
e(f"s_mul_i32 s{sPw}, s{sPw}, 3072"); e(f"s_mul_i32 s{sT2}, s{sG}, 384"); e(f"s_add_u32 s{sPw}, s{sPw}, s{sT2}")
e(f"v_mov_b32 v29, {OOB-0x10000000}")
for n in range(3, NPW): e(f"v_add_u32 v{101+n}, {8*3072}, v{98+n}")
for n in range(NPW): e(f"v_cmp_gt_u32 vcc, s{sT3}, v{101+n}"); e(f"v_cndmask_b32 v{101+n}, v29, v{101+n}, vcc")
hold -= {"pfw", "pfo"}
fill(3)
e(f"v_mul_u32_u24 v29, {RS}, v25"); e(f"v_lshl_add_u32 v29, v26, 4, v29"); e(f"v_add_u32 v{vKrd}, s{sT0}, v29")
e(f"v_lshrrev_b32 v29, 2, v{vL}"); e(f"v_mul_u32_u24 v29, {RS}, v29"); e(f"v_lshl_add_u32 v29, v28, 3, v29"); e(f"v_add_u32 v{vVrd}, s{sT0}, v29")
e(f"s_mul_i32 s{sT2}, s{sWV}, 96"); e(f"s_add_u32 s{sT2}, s{sT2}, {WQ}")
e("v_lshl_add_u32 v29, v26, 3, v27"); e("v_mul_u32_u24 v29, 384, v29"); e("v_lshl_add_u32 v29, v28, 3, v29"); e(f"v_add_u32 v{vTq1}, s{sT2}, v29")
e("v_lshl_add_u32 v29, v26, 2, v27"); e("v_mul_u32_u24 v29, 384, v29"); e("v_lshl_add_u32 v29, v28, 3, v29"); e(f"v_add_u32 v{vTq2}, s{sT2}, v29")
def rowbase(dst, m, og, ol, ob, tmp):
    e(f"v_mul_u32_u24 v{dst}, 1280, v{m}"); e(f"v_add_u32 v{dst}, {og}, v{dst}")
    e(f"s_mul_i32 s{sT3}, s{sG}, {GB}"); e(f"s_add_u32 s{sT3}, s{sT3}, {ol}"); e(f"v_mov_b32 v{tmp}, s{sT3}")
    e(f"v_cmp_eq_u32 vcc, s{sG}, v{m}"); e(f"v_cndmask_b32 v{dst}, v{dst}, v{tmp}, vcc")
    if ob is not None:
        e(f"v_add_u32 v{tmp}, {ob-ol}, v{tmp}"); e(f"v_cmp_le_u32 vcc, 8, v{m}"); e(f"v_cndmask_b32 v{dst}, v{dst}, v{tmp}, vcc")
fill()
e(f"v_mul_u32_u24 v31, 103, v{vL}"); e("v_lshrrev_b32 v31, 10, v31")
e(f"v_mul_u32_u24 v30, 10, v31"); e(f"v_sub_u32 v30, v{vL}, v30"); e(f"v_lshl_add_u32 v29, v30, 4, s{sT1}")
rowbase(vAq, 31, oFG, oFL, oBB, 30); e(f"v_add_u32 v{vAq}, v{vAq}, v29")
e("v_add_u32 v31, 6, v31"); rowbase(vAq16, 31, oFG, oFL, oBB, 30); e(f"v_add_u32 v{vAq16}, v{vAq16}, v29")
e(f"v_mov_b32 v30, {OOB}"); e(f"v_cmp_le_u32 vcc, 30, v{vL}"); e(f"v_cndmask_b32 v{vAq16}, v{vAq16}, v30, vcc")
assert all((c * 103) >> 10 == c // 10 for c in range(64))
e(f"s_lshl_b32 s{sT1}, s{sJ}, 10"); e(f"s_lshl_b32 s{sT2}, s{sWV}, 8"); e(f"s_add_u32 s{sT1}, s{sT1}, s{sT2}")
e(f"v_lshl_add_u32 v{vQst}, v{vL}, 2, s{sT1}")
e(f"s_lshl_b32 s{sT1}, s{sHH}, 13"); e(f"s_add_u32 s{sT1}, s{sT1}, s{sT2}")
e(f"v_lshlrev_b32 v29, 10, v26"); e(f"v_lshl_add_u32 v29, v25, 4, v29"); e(f"v_add_u32 v{vQld}, s{sT1}, v29")
fill()
e(f"s_mul_i32 s{sT1}, s{sWV}, 96"); e(f"s_add_u32 s{sT1}, s{sT1}, {QB}")
e(f"v_lshl_add_u32 v29, v27, 5, s{sT1}"); e("v_lshl_add_u32 v29, v28, 2, v29"); e("v_lshrrev_b32 v30, 1, v26"); e("v_lshl_add_u32 v29, v30, 4, v29")
e("v_and_b32 v30, 1, v26"); e("v_lshl_add_u32 v29, v30, 1, v29"); e(f"v_mov_b32 v30, {QB+384}")
e("v_cmp_le_u32 vcc, 12, v25"); e(f"v_cndmask_b32 v{vQBw}, v29, v30, vcc")
e(f"v_and_b32 v30, 1, v{vL}"); e(f"v_lshlrev_b32 v29, 5, v26"); e("v_lshl_add_u32 v29, v30, 4, v29"); e(f"v_add_u32 v{vQBr}, {QB}, v29")
e("v_mul_u32_u24 v30, 0xaaaa, v30"); e("v_and_b32 v29, 1, v27"); e("v_mul_u32_u24 v29, 0xaaaa, v29"); e("v_lshl_or_b32 v29, v29, 16, v30"); e(f"v_add_u32 v{vIdx}, 0x44444444, v29")
fill()
e(f"s_lshl_b32 s{sT1}, s{sWV}, 8"); e(f"s_add_u32 s{sT1}, s{sT1}, {PT}")
e(f"v_lshrrev_b32 v29, 5, v{vL}"); e(f"v_lshl_add_u32 v29, v29, 6, s{sT1}")
for bit, sh in ((3, 5), (1, 4), (2, 3), (4, 2), (0, 1)): e(f"v_bfe_u32 v30, v{vL}, {bit}, 1"); e(f"v_lshl_add_u32 v29, v30, {sh}, v29")
e(f"v_mov_b32 v{vPw}, v29")
e(f"s_mul_i32 s{sT1}, s{sWV}, 768"); e(f"s_add_u32 s{sT1}, s{sT1}, {ACC}"); e(f"v_lshl_add_u32 v29, v25, 2, s{sT1}")
e(f"v_bfe_u32 v30, v{vL}, 4, 1"); e("v_lshl_add_u32 v29, v30, 7, v29"); e(f"v_lshrrev_b32 v30, 5, v{vL}"); e(f"v_lshl_add_u32 v{vAcc}, v30, 6, v29")
for t in range(10):
    m = 0x00010001 << t
    e(f"s_mov_b32 s{sMf+2*t}, {m:#x}"); e(f"s_mov_b32 s{sMf+2*t+1}, {m:#x}")

def Krel(t):
    upto(f"K{t}"); ahead(f"K{t}"); A.wait(f"K{t}")
    if "rel" in SKIP: return
    for i in range(6): e(f"ds_write_b128 v{vWr+i%3}, {ar(24*t+4*i)} offset:{(i//3)*8*RS}")
    for ks in range(6): e(f"ds_read_b128 {ar(24*t+4*ks)}, v{vKrd} offset:{64*ks}")
def Vrel(t):
    upto(f"V{t}"); ahead(f"V{t}"); A.wait(f"V{t}")
    if "rel" in SKIP: return
    f, b = vblock(t + 1)
    for i in range(6): e(f"ds_write_b128 v{vWr+i%3}, {rg(f, b+4*i, 4)} offset:{(i//3)*8*RS}")
    f, b = vblock(t & ~1)
    for dt in range(12): e(f"ds_read_b64_tr_b16 {rg(f, b+4*dt+2*(t&1), 2)}, v{vVrd} offset:{32*dt}")
def wq_frags():
    for t in range(3):
        b = F + 10 * t
        for kk in range(2):
            for h in range(2): e(f"ds_read_b64_tr_b16 {vr(b+4*kk+2*h,2)}, v{vTq1} offset:{(32*kk+4*h)*384+32*t}")
        e(f"ds_read_b64_tr_b16 {vr(b+8,2)}, v{vTq2} offset:{64*384+32*t}")
def qstage(a, soff, tag=None, waits=False, fl=0):
    def mm(t, kk):
        n = 4 if kk < 2 else 2
        bb = vr(F + 10 * t + 4 * kk, n) if t < 3 else vr(a + 4 * kk, n)
        c = "0" if kk == 0 else vr(T + 4 * t)
        e(f"v_mfma_f32_16x16x{32 if kk<2 else 16}_bf16 {vr(T+4*t)}, {vr(a+4*kk,n)}, {bb}, {c}")
    def s4(t): return [f"v_add_f32 v{T+4*t}, v{T+4*t}, v{T+4*t+1}", f"v_add_f32 v{T+4*t+2}, v{T+4*t+2}, v{T+4*t+3}", f"v_add_f32 v{T+4*t}, v{T+4*t}, v{T+4*t+2}"]
    if waits: e("s_waitcnt lgkmcnt(2)")
    mm(0, 0); mm(2, 0)
    if waits: e("s_waitcnt lgkmcnt(0)")
    mm(0, 1); mm(2, 1); mm(0, 2); mm(2, 2)
    mm(1, 0); mm(3, 0); mm(1, 1); mm(3, 1); mm(1, 2); mm(3, 2)
    fill(fl)
    for x in s4(0) + s4(2): e(x)
    e(f"v_permlane32_swap_b32 v{T}, v{T+8}")
    x1, x3 = s4(1), s4(3)
    for x in x1[:2] + x3[:2] + [f"v_add_f32 v{T}, v{T}, v{T+8}"] + x1[2:] + x3[2:]: e(x)
    e(f"v_permlane32_swap_b32 v{T+4}, v{T+12}"); e(f"v_add_f32 v{T+4}, v{T+4}, v{T+12}")
    e(f"v_permlane16_swap_b32 v{T}, v{T+4}"); e(f"v_add_f32 v{T}, v{T}, v{T+4}")
    if tag:
        for q in (1, 2, 3): e(f"v_mov_b32_dpp v{T+q}, v{T} quad_perm:[{q},{q},{q},{q}] row_mask:0xf bank_mask:0xf")
        setexec(0x1111111111111111); A.vmem(f"buffer_store_dwordx4 {vr(T)}, v{vQst}, {sr(sW)}, {soff} offen sc1", tag); setexec(FULL)
    else: lstore(f"buffer_store_dword v{T}, v{vQst}, {sr(sW)}, {soff} offen")
def xreduce(r0, r1, r2, r3):
    e(f"v_permlane32_swap_b32 v{r0}, v{r2}"); e(f"v_permlane32_swap_b32 v{r1}, v{r3}")
    e(f"v_add_f32 v{r0}, v{r0}, v{r2}"); e(f"v_add_f32 v{r1}, v{r1}, v{r3}")
    e(f"v_permlane16_swap_b32 v{r0}, v{r1}"); e(f"v_add_f32 v{r0}, v{r0}, v{r1}")
def qloads(b, s0, s1): return [f"buffer_load_dwordx4 {vr(b)}, v{vQld}, {sr(sW)}, {s0} offen sc1", f"buffer_load_dwordx4 {vr(b+4)}, v{vQld}, {sr(sW)}, {s1} offen sc1"]
def qsum(b):
    for q in range(4): e(f"v_add_f32 v{b+q}, v{b+q}, v{b+4+q}")
    xreduce(b, b + 1, b + 2, b + 3)
def rowred(op, v, tmp, steps):
    for sft in steps: e(f"v_{op}_f32_dpp v{v}, v{v}, v{v} row_ror:{sft} row_mask:0xf bank_mask:0xf")
def xrow(op, v, tmp, both=True):
    if both:
        e(f"v_mov_b32 v{tmp}, v{v}"); e(f"v_permlane32_swap_b32 v{v}, v{tmp}"); e(f"v_{op}_f32 v{v}, v{v}, v{tmp}")
    e(f"v_mov_b32 v{tmp}, v{v}"); e(f"v_permlane16_swap_b32 v{v}, v{tmp}"); e(f"v_{op}_f32 v{v}, v{v}, v{tmp}")
QF = 28; DQ = 40; PA = 72; X = 24; vM = 26
def att_zero():
    for t in range(8): e(f"v_mov_b32 v{DQ+4*t}, 0"); e(f"v_mov_b32 v{DQ+4*t+1}, 0")
    for q in range(16): e(f"v_mov_b32 v{PA+q}, 0")
def q_finish(b, mid=None):
    e(f"v_readlane_b32 s{sT0}, v{b}, 15")
    e(f"s_mov_b32 vcc_lo, 0x70007000"); e(f"s_mov_b32 vcc_hi, 0x70007000")
    e(f"v_fma_f32 v{b+1}, -s{sT0}, v{vCS}, v{b}")
    e(f"v_cvt_pk_bf16_f32 v{b+1}, v{b+1}, v{b+1}")
    e(f"ds_write_b16 v{vQBw}, v{b+1}")
    e(f"v_cndmask_b32 v{b+2}, 0, v{b}, vcc")
    e(f"v_add_f32_dpp v{b+2}, v{b+2}, v{b+2} quad_perm:[1,0,3,2] row_mask:0xf bank_mask:0xf")
    e(f"v_add_f32_dpp v{b+2}, v{b+2}, v{b+2} quad_perm:[2,3,0,1] row_mask:0xf bank_mask:0xf")
    e(f"v_mov_b32 v{b+3}, v{b+2}"); e(f"v_permlane32_swap_b32 v{b+2}, v{b+3}"); e(f"v_add_f32 v{b+2}, v{b+2}, v{b+3}")
    if mid: mid()
    else: e("s_waitcnt lgkmcnt(0)"); e("s_barrier")
    for ks in range(3): e(f"ds_read_b128 {vr(QF+4*ks)}, v{vQBr} offset:{128*ks}")
    e(f"v_mov_b32 v{b+3}, v{b+2}"); e(f"v_mov_b32 v{b+1}, s{sT0}"); e(f"v_subrev_f32 v{b+1}, 0x44200000, v{b+1}")
    e(f"v_permlane16_swap_b32 v{b+2}, v{b+3}"); e(f"v_add_f32 v{b+2}, v{b+2}, v{b+3}")
    e(f"v_mul_f32 v{b}, 0x3acccccd, v{b+1}")
    e(f"v_readlane_b32 s{sT0}, v{b+2}, 15")
    e(f"v_mul_f32 v{b}, v{b}, v{b}"); e(f"s_mov_b32 s{sT1}, 0x3acccccd")
    e(f"v_sub_f32 v{b+2}, s{sT0}, v{b+1}")
    e(f"v_fma_f32 v{b+2}, v{b+2}, s{sT1}, -v{b}"); e(f"v_max_f32 v{b+2}, 0, v{b+2}"); e(f"v_add_f32 v{b+2}, 0x3727c5ac, v{b+2}")
    e(f"v_rsq_f32 v{b+2}, v{b+2}"); e(f"v_mul_f32 v{vSC}, 0x3dd53b94, v{b+2}")
def qk_softmax(fl=0):
    def fold(t): e(f"v_add_f32_dpp v{X+t//4}, v{DQ+4*t}, v{DQ+4*t+1} quad_perm:[0,1,2,3] row_mask:{1<<(t%4):#x} bank_mask:0xf")
    def mm(t, ks): e(f"v_smfmac_f32_16x16x64_bf16 {vr(DQ+4*t)}, {vr(QF+4*ks)}, {ar(24*t+8*ks, 8)}, v{vIdx}")
    for ks in range(3):
        e(f"s_waitcnt lgkmcnt({2-ks})")
        for t in (0, 4, 1, 5, 2, 6, 3, 7): mm(t, ks)
        if ks != 1: fill(fl)
    fx = [f"s_lshl_b32 s{sT1}, s{sWV}, 8", f"v_bfe_u32 v27, v{vL}, 4, 1", f"v_bfe_u32 v28, v{vL}, 2, 1", f"s_add_u32 s{sT1}, s{sT1}, {PT}"]
    for t in range(4): e(fx[t]); fold(t); fold(t + 4)
    e(f"v_max_f32 v{vM}, v{X}, v{X+1}")
    e(f"v_lshl_add_u32 v27, v27, 5, s{sT1}"); e("v_lshl_add_u32 v27, v28, 4, v27")
    rowred("max", vM, None, (8, 4, 2, 1)); xrow("max", vM, 28)
    fill(fl)
    e(f"v_mul_f32 v{vM}, v{vM}, v{vSC}")
    for q in range(2): e(f"v_fma_f32 v{X+q}, v{X+q}, v{vSC}, -v{vM}")
    for q in range(2): e(f"v_exp_f32 v{X+q}, v{X+q}")
    e(f"v_cvt_pk_bf16_f32 v28, v{X}, v{X+1}")
    e(f"ds_write_b16 v{vPw}, v28"); e(f"ds_write_b16_d16_hi v{vPw}, v28 offset:128")
    setexec(0xFF00FF0000FF00FF)
    for u in range(4): e(f"ds_read_b128 {vr(PA+4*u)}, v27 offset:{64*u}")
    setexec(FULL)
    e(f"v_add_f32 v27, v{X}, v{X+1}")
    z = [f"v_mov_b32 v{F+4*dp}, 0" for dp in range(6)] + [f"s_lshl_b32 s{sT1}, s{sWV}, 3", f"s_add_u32 s{sT1}, s{sT1}, {ML4}"]
    for sft in (8, 4, 2, 1):
        e(z.pop(0)); e(z.pop(0)); e(f"v_add_f32_dpp v27, v27, v27 row_ror:{sft} row_mask:0xf bank_mask:0xf")
    xrow("add", 27, 28)
    e(f"v_mov_b32 v28, s{sT1}"); e(f"ds_write_b64 v28, v[26:27]")
def pv_step(u, order=range(6)):
    f, b = vblock(2 * u)
    for dp in order: e(f"v_smfmac_f32_16x16x64_bf16 {vr(F+4*dp)}, {vr(PA+4*u)}, {rg(f, b+8*dp, 8)}, v{vIdx} abid:1")
def pv_post():
    for q in range(3): e(f"v_permlane16_swap_b32 v{F+8*q}, v{F+8*q+4}"); e(f"v_add_f32 v{F+8*q}, v{F+8*q}, v{F+8*q+4}"); e(f"ds_write_b32 v{vAcc}, v{F+8*q} offset:{OACC+256*q}")

WT = [int(x) for x in OPT.get("wt", "0,3,3,2,4").split(",")]
assert sum(WT) == 12
sDo, sDm = 66, 67
ROT = int(OPT.get("rot", 0)); nwd = [0]
def wdma(n, tag=None):
    for _ in range(n):
        if ROT and nwd[0] == 6:
            e(f"s_bitcmp1_b32 s{sJ}, 0"); e(f"s_cselect_b32 s{sT1}, 12288, 0"); e(f"s_sub_u32 s{sDm}, s{sDm}, s{sT1}"); e(f"s_mul_i32 s{sT1}, s{sT1}, 20"); e(f"s_sub_u32 s{sDo}, s{sDo}, s{sT1}")
        nwd[0] += 1
        e(f"s_mov_b32 m0, s{sDm}"); e(f"s_add_u32 s{sDm}, s{sDm}, 1024")
        A.vmem(f"buffer_load_dwordx4 v39, {sr(sRA)}, s{sDo} offen {NTR} lds", tag, counted=tag is not None)
        e(f"s_add_u32 s{sDo}, s{sDo}, {16*1280}")
def wdma_addr():
    e(f"v_lshrrev_b32 v38, 2, v{vL}"); e("v_mul_u32_u24 v38, 1280, v38"); e(f"v_and_b32 v39, 3, v{vL}"); e("v_lshl_add_u32 v39, v39, 4, v38")
def role_dma():
    if "dma" in SKIP: return
    e(f"s_cmp_ge_u32 s{sJ}, 20"); e("s_cbranch_scc1 DMAF")
    e(f"s_lshl_b32 s{sDo}, s{sWV}, 3"); e(f"s_add_u32 s{sDo}, s{sDo}, s{sG}"); e(f"s_mul_i32 s{sDo}, s{sDo}, {192*1280}"); e(f"s_lshl_b32 s{sT1}, s{sJ}, 6"); e(f"s_add_u32 s{sDo}, s{sDo}, s{sT1}")
    e(f"s_mul_i32 s{sDm}, s{sWV}, 12288"); e(f"s_add_u32 s{sDm}, s{sDm}, {WO}")
    if ROT: e(f"s_bitcmp1_b32 s{sJ}, 0"); e(f"s_cselect_b32 s{sT1}, 6144, 0"); e(f"s_add_u32 s{sDm}, s{sDm}, s{sT1}"); e(f"s_mul_i32 s{sT1}, s{sT1}, 20"); e(f"s_add_u32 s{sDo}, s{sDo}, s{sT1}")
    if WT[0]: wdma_addr(); wdma(WT[0])
    lab("DMAX")
    def t():
        lab("DMAF"); fdma(); e("s_branch DMAX")
    tail.append(t)
def fdma():
    if True:
        e(f"v_lshrrev_b32 v38, 1, v{vL}"); e("v_mul_u32_u24 v38, 3072, v38"); e(f"v_and_b32 v39, 1, v{vL}"); e("v_lshl_add_u32 v38, v39, 4, v38")
        e(f"s_mul_i32 s{sT2}, s{sG}, 12"); e(f"s_add_u32 s{sT2}, s{sT2}, s{sJ}"); e(f"s_sub_u32 s{sT2}, s{sT2}, 20")
        e(f"s_mul_i32 s{sT0}, s{sWV}, {160*3072}"); e(f"s_lshl_b32 s{sT1}, s{sT2}, 5"); e(f"s_add_u32 s{sT0}, s{sT0}, s{sT1}")
        e(f"s_mul_i32 s{sT1}, s{sWV}, 5120")
        for n in range(5):
            e(f"s_add_u32 m0, s{sT1}, {W1+1024*n}"); e(f"buffer_load_dwordx4 v38, {sr(sRA)}, s{sT0} offen {NTR} lds")
            e(f"s_add_u32 m0, s{sT1}, {W3+1024*n}"); e(f"buffer_load_dwordx4 v38, {sr(sRB)}, s{sT0} offen {NTR} lds")
            if n < 4: e(f"s_add_u32 s{sT0}, s{sT0}, {32*3072}")
W2P = int(OPT.get("w2p", 0))
def w2dma(tag=None):
    e(f"s_mul_i32 s{sT2}, s{sG}, 12"); e(f"s_add_u32 s{sT2}, s{sT2}, s{sJ}"); e(f"s_sub_u32 s{sT2}, s{sT2}, 20"); e(f"s_mul_i32 s97, s{sWV}, 5120")
    e(f"s_mul_i32 s96, s{sT2}, 20480"); e(f"s_add_u32 s96, s96, s97")
    for n in range(5):
        e(f"s_add_u32 m0, s97, {W2+1024*n}"); A.vmem(f"buffer_load_dwordx4 v{vLin}, {sr(sRC)}, s96 offen {NTW} lds", tag, counted=tag is not None)
        if n < 4: e(f"s_add_u32 s96, s96, 1024")
def addr_block():
    e(f"v_mov_b32 v109, v{vC1}")
    e(f"v_and_b32 v25, 15, v{vL}"); e(f"v_lshrrev_b32 v26, 4, v{vL}"); e("v_add_u32 v27, 4, v26")
    rowbase(vC1, 26, oFG, oFL, None, 28); rowbase(vC2, 27, oFG, oFL, None, 28)
    e(f"s_min_u32 s{sT3}, s{sJ}, 19"); e(f"s_lshl_b32 s{sT3}, s{sT3}, 6"); e(f"v_lshl_add_u32 v25, v25, 2, s{sT3}")
    e(f"v_add_u32 v{vC1}, v{vC1}, v25"); e(f"v_add_u32 v{vC2}, v{vC2}, v25")
    fill()
    e(f"v_and_b32 v25, 15, v{vL}"); e(f"v_bfe_u32 v27, v{vL}, 2, 2"); e(f"v_and_b32 v28, 3, v{vL}")
    e(f"s_mul_i32 s{sT3}, s{sWV}, 12288"); e(f"s_add_u32 s{sT3}, s{sT3}, {WO}")
    e("v_lshl_add_u32 v29, v26, 3, v27"); e("v_lshlrev_b32 v29, 6, v29"); e("v_lshl_add_u32 v29, v28, 3, v29"); e(f"v_add_u32 v29, s{sT3}, v29"); e("v_accvgpr_write_b32 a246, v29")
    e(f"s_mul_i32 s{sT3}, s{sWV}, 3072"); e(f"s_add_u32 s{sT3}, s{sT3}, {oO}")
    e(f"v_lshl_add_u32 v29, v25, 4, s{sT3}"); e("v_lshl_add_u32 v29, v26, 7, v29"); e("v_accvgpr_write_b32 a247, v29")
    e(f"s_lshl_b32 s{sT3}, s{sWV}, 6"); e(f"s_add_u32 s{sT3}, s{sT3}, {oML}"); e("v_and_b32 v29, 1, v26"); e(f"v_lshl_add_u32 v29, v29, 5, s{sT3}"); e("v_accvgpr_write_b32 a248, v29")
    e(f"s_lshl_b32 s{sT3}, s{sWV}, 8"); e(f"s_add_u32 s{sT3}, s{sT3}, {ACC+YACC}"); e(f"v_lshl_add_u32 v29, v{vL}, 2, s{sT3}"); e("v_accvgpr_write_b32 a249, v29")
    e(f"s_lshl_b32 s{sYl}, s{sJ}, 6"); e(f"s_mul_i32 s{sYg}, s{sG}, 1280"); e(f"s_add_u32 s{sYg}, s{sYg}, s{sYl}"); e(f"s_add_u32 s{sYg}, s{sYg}, {oYG}")
    e(f"s_add_u32 s{sYl}, s{sYl}, s{sLG}"); e(f"s_add_u32 s{sYl}, s{sYl}, {oYL}")
ahead("x", int(OPT.get("lax", 6))); A.wait("x"); e("s_barrier"); wq_frags(); fill(2)
stamp(1)
e("s_waitcnt lgkmcnt(0)")
e(f"s_add_u32 s{sT2}, s{sLG}, {2*LS}")
qstage(70, f"s{sT2}", "qst", fl=1); fill(); qstage(SPARE, f"s{sLG}", "qst", fl=1)
Krel(0)
ahead("qst", int(OPT.get("laq", 6))); A.wait("qst"); e("s_barrier"); atomic_block()
Krel(1); Krel(2)
RT = int(OPT.get("rt", 8))
DT = int(OPT.get("dt", 7))
rdy = ["global_load_dword v99, v98, s[64:65] sc1"]
e(f"v_lshlrev_b32 v98, 2, v{vL}")
def ld(t): Kld(t) if t < 8 else Vld(t - 8)
def rel(t): Krel(t) if t < 8 else Vrel(t - 8)
for t in range(5, RT + 2):
    ld(t)
    if t == DT: stamp(12); role_dma()
    if t == RT: A.vmem(rdy[0], "rdy"); stamp(2, "s100")
    if t == 7: addr_block()
    rel(t - 2)
def rdycheck():
    e("v_sad_u8 v100, v99, 0, 0")
    e("v_add_u32_dpp v100, v100, v100 quad_perm:[1,0,3,2] row_mask:0xf bank_mask:0xf")
    e("v_add_u32_dpp v100, v100, v100 quad_perm:[2,3,0,1] row_mask:0xf bank_mask:0xf")
    e("v_cmp_gt_u32 vcc, 32, v100"); e("s_mov_b32 vcc_hi, 0"); e("s_cmp_eq_u64 vcc, 0")
ahead("rdy"); A.wait("rdy"); e(f"s_mov_b32 s{sCnt}, -1"); rdycheck(); e("s_cbranch_scc0 RDYLOOP") if "rdy" not in SKIP else None; lab("RDYOK")
stamp(13, f"s{sCnt}")
def t_():
    lab("RDYLOOP")
    if SPM == "rdy": e("v_accvgpr_read_b32 v100, a253"); e("v_add_u32 v100, 2000, v100"); e("v_accvgpr_write_b32 a253, v100")
    e(f"s_mov_b32 s{sCnt}, 0"); lab("RDYL2"); e("s_sleep 24"); e(rdy[0]); e("s_waitcnt vmcnt(0)"); rdycheck(); e("s_cbranch_scc1 RDYOK")
    e(f"s_add_u32 s{sCnt}, s{sCnt}, 1"); e(f"s_cmp_lt_u32 s{sCnt}, {LIMIT}"); e("s_cbranch_scc1 RDYL2"); e("s_branch RDYOK")
tail.append(t_)
e(f"v_readlane_b32 s{sT0}, v99, s{sXcc}"); e(f"s_cmp_eq_u32 s{sT0}, s96"); e(f"s_cselect_b32 s{sFast}, {0 if FORCESLOW else 1}, 0")
stamp(2)
if "pre" not in SKIP:
    A.vmem(f"buffer_load_dwordx4 a[240:243], v109, {sr(sW)}, 0 offen sc1", "pre")
e(f"v_lshrrev_b32 v106, 3, v{vL}"); e("v_mul_u32_u24 v106, 2560, v106"); e(f"v_and_b32 v107, 7, v{vL}"); e("v_lshl_add_u32 v106, v107, 4, v106")
e(f"s_lshl_b32 s{sT0}, s{sJ}, 7"); e(f"s_add_u32 s{sT0}, s{sT0}, s{sLG}"); e(f"s_add_u32 s{sT0}, s{sT0}, {oFP}")
e(f"s_cmp_lt_u32 s{sJ}, 20"); e(f"s_cselect_b32 s{sT0}, s{sT0}, {OOB-0x10000000}"); e(f"s_cmp_eq_u32 s{sWV}, 0"); e(f"s_cselect_b32 s{sT0}, s{sT0}, {OOB-0x10000000}")
e(f"v_add_u32 v106, s{sT0}, v106"); e(f"v_add_u32 v107, {8*2560}, v106"); e(f"v_mov_b32 v108, {OOB}"); e(f"v_cmp_le_u32 vcc, 32, v{vL}"); e("v_cndmask_b32 v107, v107, v108, vcc")
for q in range(2): A.vmem(f"buffer_load_dwordx4 a[240:243], v{106+q}, {sr(sW)}, 0 offen sc1", "pre")
e(f"s_add_u32 s{sT0}, s{sLG}, {2*LS}"); e(f"s_add_u32 s{sT1}, s{sLG}, {2*LS+4096}"); e(f"s_add_u32 s{sT2}, s{sLG}, 4096")
for l in qloads(64, f"s{sT0}", f"s{sT1}") + qloads(72, f"s{sLG}", f"s{sT2}"): A.vmem(l, "qg")
def pack_store16(d, instr_fn):
    for q in (1, 2, 3): e(f"v_mov_b32_dpp v{d+q}, v{d} quad_perm:[{q},{q},{q},{q}] row_mask:0xf bank_mask:0xf")
    setexec(0x1111); instr_fn(); setexec(FULL)
e(f"s_cmp_lg_u32 s{sWV}, 1"); e("s_cbranch_scc1 NOBASE0"); e(f"s_cmp_ge_u32 s{sJ}, 20"); e("s_cbranch_scc1 NOBASE0")
e(f"v_mov_b32 v28, v{vXR}"); e(f"s_lshl_b32 s{sT0}, s{sJ}, 6"); e(f"s_add_u32 s{sT0}, s{sT0}, s{sLG}"); e(f"s_add_u32 s{sT0}, s{sT0}, {oBA}"); e(f"v_lshlrev_b32 v27, 2, v{vL}")
pack_store16(28, lambda: lstore(f"buffer_store_dwordx4 v[28:31], v27, {sr(sW)}, s{sT0} offen"))
lab("NOBASE0")
stamp(3)
for t in range(RT, RT + 3): rel(t)
ahead("qg"); A.wait("qg")
for q in range(4): e(f"v_mov_b32 v{24+q}, -1")
for q in range(2): lstore(f"buffer_store_dwordx4 v[24:27], v{106+q}, {sr(sW)}, 0 offen", "fpc")
qsum(64); qsum(72)
e(f"v_mul_f32 v{vCS}, 0x3acccccd, v64")
e(f"v_mov_b32 v{T}, v72")
fill(); att_zero()
stamp(4)
def qmid(): fill(2); e("s_waitcnt lgkmcnt(0)"); e("s_barrier")
q_finish(T, qmid)
qk_softmax(fl=1)
stamp(5)
hold.clear()
for t in range(RT + 3, 12): rel(t)
fill(2)
e("s_waitcnt lgkmcnt(0)"); pv_step(0); fill(); pv_step(1)
Vrel(4); Vld(7); Vrel(5)
e(f"v_and_b32 v{vXR+1}, 0xffff0000, v{vXR}"); e(f"v_lshlrev_b32 v{vXR}, 16, v{vXR}")
PT_ = [int(x) for x in OPT.get("pt", "7,3").split(",")]
PTF = int(OPT.get("ptf", 1))
def late_pf(w, k0, n):
    for k in range(k0, k0 + n):
        if k % 4 == 0 and k: e(f"s_add_u32 s{sPo}, s{sPo}, 4096")
        A.vmem(f"buffer_load_dwordx4 a[240:243], v{vLin}, {sr(sWQ)}, s{sPo} offen offset:{1024*(k%4)} {NTP}", "pfo")
def stream_tail(w):
    save = list(A.vm)
    pf = sum(PT_) and not (PTF and w)
    if pf and not PTF:
        e(f"s_lshl_b32 s{sPo}, s{sHH}, 3"); e(f"s_add_u32 s{sPo}, s{sPo}, s{sG}"); e(f"s_lshl_b32 s{sPo}, s{sPo}, 3"); e(f"s_add_u32 s{sPo}, s{sPo}, s{sS}")
        e(f"s_lshl_b32 s{sPo}, s{sPo}, 2"); e(f"s_add_u32 s{sPo}, s{sPo}, s{sWV}"); e(f"s_mul_i32 s{sPo}, s{sPo}, 7680")
    if pf and PTF:
        e(f"s_lshl_b32 s{sPo}, s{sWV}, 3"); e(f"s_add_u32 s{sPo}, s{sPo}, s{sG}"); e(f"s_mul_i32 s{sPo}, s{sPo}, 24"); e(f"s_add_u32 s{sPo}, s{sPo}, s{sJ}")
        e(f"s_sub_u32 s{sPo}, s{sPo}, 8"); e(f"s_mul_i32 s{sPo}, s{sPo}, 10240")
    if pf: late_pf(w, 0, PT_[0])
    if w: wdma_addr(); wdma(WT[1], "wo")
    e("s_waitcnt lgkmcnt(0)"); pv_step(2)
    Vrel(6)
    if pf: late_pf(w, PT_[0], PT_[1])
    if w: wdma(WT[2], "wo")
    if not w and W2P == 1: w2dma("w2")
    x = len(A.vm) - 6
    f_, b_ = vblock(8)
    for i in range(6):
        e(f"s_waitcnt vmcnt({5-i+x})"); e(f"ds_write_b128 v{vWr+i%3}, {rg(f_, b_+4*i, 4)} offset:{(i//3)*8*RS}")
    f_, b_ = vblock(6)
    for dt in range(12): e(f"ds_read_b64_tr_b16 {rg(f_, b_+4*dt+2, 2)}, v{vVrd} offset:{32*dt}")
    if w: wdma(WT[3], "wo")
    if not w and W2P == 2: w2dma("w2")
    e("s_branch ATT_LAST")
    A.vm = save
e(f"s_cmp_ge_u32 s{sJ}, 20"); e("s_cbranch_scc1 TAILF")
stream_tail(True)
lab("TAILF")
stream_tail(False)
A.drained()
flush_near()

lab("LOOP")
wq_frags()
e(f"v_and_b32 v25, 15, v{vL}"); e("v_cmp_eq_u32 vcc, 12, v25"); e("v_mov_b32 v36, 0x3f803f80"); e(f"v_cndmask_b32 v70, 0, v36, vcc")
for q in range(1, 10): e(f"v_mov_b32 v{70+q}, v70")
e(f"s_cmp_lt_u32 s{sJ}, 20"); e(f"s_cselect_b32 s{sXcc}, s{sWV}, 0")
e(f"s_add_u32 s{sT2}, s{sLG}, 4096")
e(f"s_mul_i32 s{sT0}, s{sWV}, {SCRW}")
e(f"v_mul_u32_u24 v26, 103, v{vL}"); e("v_lshrrev_b32 v26, 10, v26"); e(f"v_lshl_add_u32 v26, v26, 4, v{vLin}"); e(f"v_add_u32 v26, s{sT0}, v26")
e(f"v_mul_u32_u24 v27, 176, v25"); e(f"v_add_u32 v27, s{sT0}, v27"); e(f"v_lshrrev_b32 v28, 4, v{vL}"); e("v_lshl_add_u32 v29, v28, 3, v27"); e("v_lshl_add_u32 v27, v28, 4, v27")
e(f"s_mul_i32 s{sT0}, s{sS}, 160"); e(f"s_add_u32 s{sT0}, s{sT0}, s{sLG}"); e(f"s_sub_u32 s{sT0}, s{sT0}, {LS-oFL}")
e("s_waitcnt lgkmcnt(0)")
gate(sT0, 10, 24)
setexec((1 << 60) - 1)
poll_sel([([f"buffer_load_dwordx4 v[80:83], v{vAq}, {sr(sW)}, 0 offen sc1"], [80]), ([f"buffer_load_dwordx4 v[84:87], v{vAq16}, {sr(sW)}, 0 offen sc1"], [84])], 24, pid=1, xf=XF)
e("ds_write_b128 v26, v[80:83]"); e(f"ds_write_b128 v26, v[84:87] offset:{6*176}")
setexec(ROWS9)
e("ds_read_b128 v[70:73], v27"); e("ds_read_b128 v[74:77], v27 offset:64"); e("ds_read_b64 v[78:79], v29 offset:128")
setexec(FULL)
stamp(1)
e(f"s_cmp_lg_u32 s{sXcc}, 1"); e("s_cbranch_scc1 NOOWL")
e(f"buffer_load_dword a244, v{vC1}, {sr(sW)}, 0 offen sc1"); e(f"buffer_load_dword a245, v{vC2}, {sr(sW)}, 0 offen sc1")
lab("NOOWL")
qstage(70, f"s{sLG}", waits=True)
stamp(2)
att_zero()
poll(qloads(T, f"s{sLG}", f"s{sT2}"), range(T, T + 8), T + 8, pid=4)
stamp(3)
qsum(T)
q_finish(T)
stamp(4)
qk_softmax()
stamp(5)
for u in range(3):
    e(f"s_waitcnt lgkmcnt({4-u})"); pv_step(u)
e("s_waitcnt lgkmcnt(0)")
lab("ATT_LAST")
for dp in range(6):
    if dp % 2 == 0: e(f"s_waitcnt lgkmcnt({8-2*dp})")
    pv_step(3, [dp])
e(f"v_add_u32 v24, {ACC}, v{vLin}"); e(f"v_mov_b32 v25, {ML4}"); e(f"v_lshlrev_b32 v39, 6, v{vL}")
pv_post()
e(f"s_cmp_lg_u32 s{sWV}, 0")
e("s_waitcnt lgkmcnt(0)"); e("s_barrier")
e("s_cbranch_scc1 ODONE")
stamp(6)
e(f"ds_read_b128 v[64:67], v25"); e(f"ds_read_b128 v[68:71], v25 offset:16")
for w in range(4): e(f"ds_read_b128 {vr(F+4*w)}, v24 offset:{OACC+768*w}")
e(f"s_mul_i32 s{sT0}, s{sHH}, 3072"); e(f"s_lshl_b32 s{sT1}, s{sS}, 4"); e(f"s_add_u32 s{sT0}, s{sT0}, s{sT1}"); e(f"s_add_u32 s{sT0}, s{sT0}, s{sLG}"); e(f"s_add_u32 s{sT0}, s{sT0}, {oO}")
e(f"s_lshl_b32 s{sT1}, s{sJ}, 3"); e(f"s_add_u32 s{sT1}, s{sT1}, s{sLG}"); e(f"s_add_u32 s{sT1}, s{sT1}, {oML}")
e("s_waitcnt lgkmcnt(4)")
e("v_max3_f32 v32, v64, v66, v68"); e("v_max_f32 v32, v32, v70")
for w in range(4): e(f"v_sub_f32 v{64+2*w}, v{64+2*w}, v32")
for w in range(4): e(f"v_exp_f32 v{64+2*w}, v{64+2*w}")
e("s_waitcnt lgkmcnt(0)")
for q in range(4): e(f"v_mul_f32 v{28+q}, v64, v{F+q}")
for w in range(1, 4):
    for q in range(4): e(f"v_fmac_f32 v{28+q}, v{64+2*w}, v{F+4*w+q}")
def pack_pairs():
    e("v_cvt_pk_bf16_f32 v28, v28, v29"); e("v_cvt_pk_bf16_f32 v29, v30, v31")
    e("v_mov_b32_dpp v30, v28 quad_perm:[1,1,3,3] row_mask:0xf bank_mask:0xf"); e("v_mov_b32_dpp v31, v29 quad_perm:[1,1,3,3] row_mask:0xf bank_mask:0xf")
pack_pairs()
setexec(0x5555555555555555 & ((1 << 48) - 1))
lstore(f"buffer_store_dwordx4 v[28:31], v39, {sr(sW)}, s{sT0} offen")
e("v_mul_f32 v33, v64, v65")
for w in range(1, 4): e(f"v_fmac_f32 v33, v{64+2*w}, v{65+2*w}")
setexec(1)
lstore(f"buffer_store_dwordx2 v[32:33], v39, {sr(sW)}, s{sT1} offen")
setexec(FULL)
lab("ODONE")
stamp(7)
if STAMP == 3: e("s_endpgm")
e(f"s_cmp_ge_u32 s{sJ}, 20"); e("s_cbranch_scc1 ROLEF")
def owner_add():
    e("v_lshlrev_b32 v30, 16, v28"); e("v_and_b32 v28, 0xffff0000, v28"); e("v_lshlrev_b32 v31, 16, v29"); e("v_and_b32 v29, 0xffff0000, v29")
    e("v_add_f32 v30, v30, v31"); e("v_add_f32 v28, v28, v29")
    e("v_mov_b32 v31, v30"); e("v_mov_b32 v29, v28"); e("v_permlane32_swap_b32 v30, v31"); e("v_permlane32_swap_b32 v28, v29"); e("v_add_f32 v30, v30, v31"); e("v_add_f32 v28, v28, v29")
    e("v_mov_b32 v31, v30"); e("v_mov_b32 v29, v28"); e("v_permlane16_swap_b32 v30, v31"); e("v_permlane16_swap_b32 v28, v29"); e("v_add_f32 v30, v30, v31"); e("v_add_f32 v28, v28, v29")
    e(f"v_add_f32 v{vXR}, v{vXR}, v30"); e(f"v_add_f32 v{vXR+1}, v{vXR+1}, v28")
    e(f"v_cvt_pk_bf16_f32 v28, v{vXR}, v{vXR+1}")
def own_loads(a0, a1, soff): return [f"buffer_load_dword v28, v{a0}, {sr(sW)}, {soff} offen sc1", f"buffer_load_dword v29, v{a1}, {sr(sW)}, {soff} offen sc1"]
def base_store(ob):
    e(f"s_lshl_b32 s{sT0}, s{sJ}, 6"); e(f"s_add_u32 s{sT0}, s{sT0}, s{sLG}"); e(f"s_add_u32 s{sT0}, s{sT0}, {ob}"); e(f"v_lshlrev_b32 v37, 2, v{vL}")
    pack_store16(28, lambda: lstore(f"buffer_store_dwordx4 v[28:31], v37, {sr(sW)}, s{sT0} offen"))
e(f"s_cmp_eq_u32 s{sLay}, 0"); e("s_cbranch_scc1 WLATE"); lab("WGO")
def t_():
    lab("WLATE")
    if WT[4]: wdma_addr(); wdma(WT[4])
    e("s_waitcnt vmcnt(0)"); stamp(13); e("s_branch WGO")
near.append(t_)
for q in range(3): e(f"v_accvgpr_read_b32 v{2+q}, a{246+q}")
for kk in range(6): e(f"v_mov_b32 v{SPARE+4*kk}, 0")
trs = [f"ds_read_b64_tr_b16 {vr(F+24*t+4*kk+2*h,2)}, v2 offset:{(32*kk+4*h)*64+32*t}" for kk in range(6) for t in range(2) for h in range(2)]
for x in trs[:10]: e(x)
e(f"s_cmp_lg_u32 s{sWV}, 1"); e("s_cbranch_scc1 NOOWN0"); e(f"s_cmp_eq_u32 s{sLay}, 0"); e("s_cbranch_scc1 NOOWN0")
e("v_accvgpr_read_b32 v28, a244"); e("v_accvgpr_read_b32 v29, a245")
late_check("none", own_loads(vC1, vC2, "0"), [28, 29], 30)
owner_add(); base_store(oBA)
lab("NOOWN0")
MLR = [24, 36]
for q in (25, 27, 37, 39): e(f"v_mov_b32 v{q}, 0")
def wfirst():
    for x in trs[10:]: e(x)
    e("v_accvgpr_read_b32 v5, a249"); e(f"v_add_u32 v6, {ACC}, v{vLin}"); e(f"v_lshrrev_b32 v18, 1, v{vLin}")
ol = [f"buffer_load_dwordx4 {vr(SPARE+4*kk)}, v3, {sr(sW)}, s{sLG} offen offset:{512*kk} sc1" for kk in range(6)]
ml = [f"buffer_load_dwordx4 {vr(MLR[q])}, v4, {sr(sW)}, s{sLG} offen offset:{16*q} sc1" for q in range(2)]
poll_sel([(ol, [SPARE + 4 * kk for kk in range(6)]), (ml, [25, 27, 37, 39])], 28, pid=7, first=wfirst,
         firstloads=["s_mov_b32 exec_lo, 0x00ff00ff", "s_mov_b32 exec_hi, 0x00ff00ff"] + ol + ["s_mov_b32 exec_lo, -1", "s_mov_b32 exec_hi, 0"] + ml + ["s_mov_b64 exec, -1"])
e("s_waitcnt lgkmcnt(0)")
stamp(8)
M_, U_, L_ = SPARE, SPARE + 1, SPARE + 2
mm_ = [24, 26, 36, 38]
co = [[], [f"v_max3_f32 v{M_}, v24, v26, v36", f"v_max_f32 v{M_}, v{M_}, v38"], [f"v_mov_b32 v{U_}, v{M_}"], [f"v_permlane16_swap_b32 v{M_}, v{U_}", f"v_max_f32 v{M_}, v{M_}, v{U_}"],
      [f"v_sub_f32 v24, v24, v{M_}", f"v_sub_f32 v26, v26, v{M_}"], [f"v_sub_f32 v36, v36, v{M_}", f"v_sub_f32 v38, v38, v{M_}"],
      ["v_exp_f32 v24, v24"], ["v_exp_f32 v26, v26"], ["v_exp_f32 v36, v36"], ["v_exp_f32 v38, v38"],
      [f"v_mul_f32 v{L_}, v24, v25", f"v_fmac_f32 v{L_}, v26, v27"], [f"v_fmac_f32 v{L_}, v36, v37", f"v_fmac_f32 v{L_}, v38, v39"]]
for kk in range(6):
    for t in range(2):
        c = "0" if kk == 0 else vr(28 + 4 * t)
        e(f"v_mfma_f32_16x16x32_bf16 {vr(28+4*t)}, {vr(SPARE+4*kk)}, {vr(F+24*t+4*kk)}, {c}")
        for x in co.pop(0): e(x)
e(f"v_mov_b32 v{U_}, v{L_}"); e(f"s_cmp_lg_u32 s{sWV}, 0"); e(f"v_permlane16_swap_b32 v{L_}, v{U_}"); e(f"v_add_f32 v{L_}, v{L_}, v{U_}"); e(f"v_rcp_f32 v{L_}, v{L_}")
for t in range(2): e(f"v_mul_f32 v{28+4*t}, v24, v{28+4*t}")
for q in range(1, 4):
    for t in range(2): e(f"v_fmac_f32 v{28+4*t}, v{mm_[q]}, v{28+4*t+q}")
e("v_permlane16_swap_b32 v28, v32"); e("v_add_f32 v28, v28, v32"); e(f"v_mul_f32 v28, v28, v{L_}")
e(f"ds_write_b32 v5, v28")
e("s_waitcnt lgkmcnt(0)"); e("s_barrier")
e("s_cbranch_scc1 WNOT0")
for w in range(4): e(f"ds_read_b128 {vr(F+4*w)}, v6 offset:{YACC+256*w}")
e("s_waitcnt lgkmcnt(2)")
for q in range(4): e(f"v_add_f32 v{28+q}, v{F+q}, v{F+4+q}")
e("s_waitcnt lgkmcnt(0)")
for q in range(4): e(f"v_add_f32 v{32+q}, v{F+8+q}, v{F+12+q}")
for q in range(4): e(f"v_add_f32 v{28+q}, v{28+q}, v{32+q}")
pack_pairs()
setexec(0x55)
e(f"buffer_store_dwordx4 v[28:31], v18, {sr(sW)}, s{sYg} offen sc1")
lstore(f"buffer_store_dwordx4 v[28:31], v18, {sr(sW)}, s{sYl} offen")
setexec(FULL)
stamp(9); stamp(9, "c")
e(f"v_lshrrev_b32 v37, 5, v{vL}"); e("v_mul_u32_u24 v37, 2560, v37"); e(f"v_and_b32 v38, 31, v{vL}"); e("v_lshl_add_u32 v37, v38, 2, v37")
for k in range(1, 6): e(f"v_add_u32 v{F+k}, {5120*k}, v37")
e(f"s_lshl_b32 s{sT2}, s{sJ}, 7"); e(f"s_add_u32 s{sT2}, s{sT2}, s{sLG}"); e(f"s_add_u32 s{sT2}, s{sT2}, {oFP}")
e(f"s_add_u32 s96, s{sYg}, {oFG-oYG}"); e(f"s_add_u32 s97, s{sYl}, {oFL-oYL}"); e(f"v_lshlrev_b32 v39, 1, v{vL}")
e(f"s_cmp_lg_u32 s{sLay}, 0"); e("s_cbranch_scc1 NOLC")
e(f"s_mul_i32 s{sT0}, s{sJ}, {154*16}"); e(f"s_add_u32 s{sT1}, s{sLG}, {LS+oO}")
for q in range(3): e(f"v_add_u32 v{F+8+q}, s{sT0}, v{vLin}"); e(f"v_min_u32 v{F+8+q}, {GB-oO-16}, v{F+8+q}"); e(f"s_add_u32 s{sT0}, s{sT0}, 1024")
for q in range(3): e(f"buffer_load_dwordx4 a[240:243], v{F+8+q}, {sr(sW)}, s{sT1} offen sc1")
for q in range(4): e(f"v_mov_b32 v{F+12+q}, -1")
e(f"s_add_u32 s{sT0}, s{sYg}, {LS}"); e(f"s_add_u32 s{sT3}, s96, {LS}")
e("s_waitcnt vmcnt(0)")
for q in range(3): lstore(f"buffer_store_dwordx4 {vr(F+12)}, v{F+8+q}, {sr(sW)}, s{sT1} offen")
setexec(15)
e(f"buffer_store_dwordx4 {vr(F+12)}, v{vLin}, {sr(sW)}, s{sT0} offen sc1"); e(f"buffer_store_dwordx4 {vr(F+12)}, v{vLin}, {sr(sW)}, s{sT3} offen sc1")
setexec(FULL)
lab("NOLC")
poll([f"buffer_load_dword v{28+k}, v{37 if k==0 else F+k}, {sr(sW)}, s{sT2} offen sc1" for k in range(6)], range(28, 34), 36, pid=10)
stamp(10)
e("v_add_f32 v28, v28, v29"); e("v_add_f32 v30, v30, v31"); e("v_add_f32 v32, v32, v33"); e("v_add_f32 v28, v28, v30"); e("v_add_f32 v28, v28, v32")
e("v_mov_b32 v29, v28"); e("v_permlane32_swap_b32 v28, v29"); e("v_add_f32 v28, v28, v29")
e("v_mov_b32_dpp v29, v28 row_shl:1 row_mask:0xf bank_mask:0xf"); e("v_cvt_pk_bf16_f32 v28, v28, v29")
for q in (1, 2, 3): e(f"v_mov_b32_dpp v{28+q}, v28 row_shl:{2*q} row_mask:0xf bank_mask:0xf")
setexec(0x01010101)
e(f"buffer_store_dwordx4 v[28:31], v39, {sr(sW)}, s96 offen sc1")
lstore(f"buffer_store_dwordx4 v[28:31], v39, {sr(sW)}, s97 offen")
setexec(FULL)
stamp(11)
e("s_branch NEXT")
flush_near()
lab("WNOT0")
e(f"s_cmp_lg_u32 s{sWV}, 1"); e("s_cbranch_scc1 NEXT")
e(f"v_and_b32 v25, 15, v{vL}"); e(f"v_lshrrev_b32 v26, 4, v{vL}")
rowbase(37, 26, oYG, oYL, None, 38); e("v_add_u32 v39, 4, v26"); rowbase(38, 39, oYG, oYL, None, 28)
e(f"s_lshl_b32 s{sT0}, s{sJ}, 6"); e(f"s_add_u32 s{sT0}, s{sT0}, s{sLay}")
e("v_lshl_add_u32 v37, v25, 2, v37"); e("v_lshl_add_u32 v38, v25, 2, v38")
if GATE and ODLY: e(f"s_sleep {ODLY}")
poll(own_loads(37, 38, f"s{sT0}"), [28, 29], 30, slp=(4 if GATE else 0))
owner_add()
e(f"s_cmp_lg_u32 s{sLay}, 0"); e("s_cbranch_scc1 FINAL")
base_store(oBB)
e("s_branch NEXT")
lab("FINAL")
e(f"s_cmp_lg_u32 s{sG}, 0"); e("s_cbranch_scc1 DONE")
e(f"s_lshl_b32 s{sT0}, s{sJ}, 6"); e(f"v_lshlrev_b32 v37, 2, v{vL}")
e(f"s_add_u32 s{sT2}, s{sT0}, s{sLG}"); e(f"s_add_u32 s{sT2}, s{sT2}, {oFL}")
gate(sT2, 4, 28); setexec(FULL)
poll(own_loads(vC1, vC2, f"s{sLay}"), [28, 29], 30)
owner_add()
setexec(0xffff)
e(f"buffer_store_dword v28, v37, {sr(sO)}, s{sT0} offen")
setexec(FULL)
stamp(12); stamp(12, "c")
e("s_branch DONE") if SPIN else e("s_endpgm")
flush_near()
lab("ROLEF")
e(f"v_and_b32 v25, 15, v{vL}"); e(f"v_lshrrev_b32 v26, 4, v{vL}"); e(f"v_bfe_u32 v27, v{vL}, 2, 2"); e(f"v_and_b32 v36, 3, v{vL}")
FA = SPARE
vCG, vCU = vXR, vXR + 1
sPass = sClr
e(f"s_mov_b32 s{sPass}, 1")
e(f"s_cmp_lg_u32 s{sLay}, 0"); e("s_cbranch_scc1 FW")
e(f"s_mov_b32 s{sPass}, 0")
lab("FW")
e(f"s_mul_i32 s{sT0}, s{sWV}, 5120"); e(f"s_add_u32 s{sT0}, s{sT0}, {W1}")
e("v_lshl_add_u32 v37, v26, 3, v27"); e("v_lshlrev_b32 v37, 5, v37"); e("v_lshl_add_u32 v37, v36, 3, v37"); e(f"v_add_u32 v37, s{sT0}, v37")
for t in range(2):
    for kk in range(5):
        for h in range(2): e(f"ds_read_b64_tr_b16 {vr(F+20*t+4*kk+2*h,2)}, v37 offset:{(32*kk+4*h)*32+20480*t}")
e(f"s_mul_i32 s{sT0}, s{sWV}, 320"); e(f"s_add_u32 s{sT0}, s{sT0}, {W2}")
e(f"v_lshrrev_b32 v80, 2, v{vL}"); e("v_mul_u32_u24 v80, 1280, v80"); e("v_lshl_add_u32 v80, v36, 3, v80"); e(f"v_add_u32 v80, s{sT0}, v80")
e(f"s_lshl_b32 s{sT2}, s{sWV}, 2"); e(f"s_add_u32 s{sT2}, s{sT2}, {ACC+FACC}"); e(f"v_add_u32 v81, s{sT2}, v{vLin}")
e("v_lshl_add_u32 v82, v26, 2, v36"); e("v_lshlrev_b32 v82, 4, v82"); e(f"v_add_u32 v82, {ACC+FACC}, v82")
e("v_cmp_eq_u32 vcc, 12, v25")
e("v_mov_b32 v38, 13"); e("v_cndmask_b32 v83, v25, v38, vcc"); e("v_lshlrev_b32 v83, 4, v83"); e(f"v_add_u32 v83, {ACC+FACC+512}, v83")
e(f"v_mov_b32 v85, {ACC+FACC+512+192}")
e("v_lshlrev_b32 v84, 6, v25"); e("v_lshl_add_u32 v84, v26, 4, v84")
e("v_mov_b32 v38, 0x3f803f80"); e(f"v_cndmask_b32 v{FA}, 0, v38, vcc")
for q in range(1, 20): e(f"v_mov_b32 v{FA+q}, v{FA}")
e(f"s_mul_i32 s{sT0}, s{sWV}, {SCRW}")
e(f"v_mul_u32_u24 v6, 336, v25"); e("v_lshl_add_u32 v6, v26, 4, v6"); e(f"v_add_u32 v6, s{sT0}, v6")
e(f"v_mul_u32_u24 v37, 52, v{vL}"); e("v_lshrrev_b32 v37, 10, v37")
e(f"v_lshl_add_u32 v87, v37, 4, v{vLin}"); e(f"v_add_u32 v87, s{sT0}, v87")
e(f"v_mul_u32_u24 v27, 320, v37"); e(f"v_sub_u32 v27, v{vLin}, v27")
assert all((c * 52) >> 10 == c // 20 for c in range(64))
FG = [86, 18, 20]
for i in range(3):
    rowbase(FG[i], 37, oYG, oYL, oBA, 38); e(f"v_add_u32 v{FG[i]}, v{FG[i]}, v27")
    if i < 2: e("v_add_u32 v37, 3, v37")
e(f"s_mul_i32 s{sT0}, s{sWV}, 320"); e(f"s_add_u32 s{sT0}, s{sT0}, s{sLay}")
e(f"s_sub_u32 s{sT1}, s{sJ}, 20"); e(f"s_mul_i32 s{sT1}, s{sT1}, 2560"); e(f"s_mul_i32 s{sT3}, s{sWV}, 640"); e(f"s_add_u32 s{sT1}, s{sT1}, s{sT3}")
e(f"s_add_u32 s{sT1}, s{sT1}, s{sLG}"); e(f"s_add_u32 s{sT1}, s{sT1}, {oFP}")
e("s_waitcnt lgkmcnt(0)")
e(f"s_cmp_eq_u32 s{sPass}, 0"); e("s_cbranch_scc1 FW2")
def t_():
    lab("FW2")
    if W2P == 0: w2dma()
    e(f"s_sub_u32 s96, s{sJ}, 20"); e("s_lshl_b32 s96, s96, 2"); e(f"s_add_u32 s96, s96, s{sWV}"); e(f"s_mul_i32 s96, s96, {43*16}")
    e(f"v_add_u32 v21, s96, v{vLin}"); e(f"v_min_u32 v21, {32768-16}, v21"); e(f"s_add_u32 s97, s{sLG}, {LS+oQ}")
    e(f"buffer_load_dwordx4 a[240:243], v21, {sr(sW)}, s97 offen sc1")
    e("s_branch FMM")
tail.append(t_)
lab("FPOLL")
W2R = [f"a[{240+2*t}:{241+2*t}]" for t in range(6)] + ["v[108:109]", "v[110:111]", "v[2:3]", "v[4:5]"]
for t in range(10): e(f"ds_read_b64_tr_b16 {W2R[t]}, v80 offset:{32*t}")
e("s_waitcnt lgkmcnt(0)")
e(f"s_mul_i32 s{sT2}, s{sWV}, 320"); e(f"s_add_u32 s{sT2}, s{sT2}, s{sLG}"); e(f"s_add_u32 s{sT2}, s{sT2}, {oYL}")
gate(sT2, 20, 36)
setexec((1 << 60) - 1)
poll_sel([([f"buffer_load_dwordx4 {vr(T+4*i)}, v{FG[i]}, {sr(sW)}, s{sT0} offen sc1"], [T + 4 * i]) for i in range(3)], 36, pid=7, xf=XF)
for i in range(3): e(f"ds_write_b128 v87, {vr(T+4*i)} offset:{3*336*i}")
setexec(ROWS9)
for kk in range(5): e(f"ds_read_b128 {vr(FA+4*kk)}, v6 offset:{64*kk}")
setexec(FULL)
stamp(8)
lab("FMM")
for kk in range(5):
    e(f"s_waitcnt lgkmcnt({4-kk})")
    for t in range(3):
        c = "0" if kk == 0 else vr(T + 4 * t)
        bb = vr(F + 20 * t + 4 * kk) if t < 2 else vr(FA + 4 * kk)
        e(f"v_mfma_f32_16x16x32_bf16 {vr(T+4*t)}, {vr(FA+4*kk)}, {bb}, {c}")
for t in range(3): e(f"v_add_f32 v{T+4*t}, v{T+4*t}, v{T+4*t+1}"); e(f"v_add_f32 v{T+4*t+2}, v{T+4*t+2}, v{T+4*t+3}")
for t in range(3): e(f"v_add_f32 v{T+4*t}, v{T+4*t}, v{T+4*t+2}")
xreduce(T, T + 4, T + 8, T + 1)
e(f"ds_write_b32 v81, v{T}")
e(f"s_cmp_eq_u32 s{sPass}, 0")
e("s_waitcnt lgkmcnt(0)"); e("s_barrier")
e(f"ds_read_b128 {vr(T)}, v83"); e(f"ds_read_b128 {vr(T+4)}, v85"); e(f"ds_read_b128 {vr(T+8)}, v82"); e(f"ds_read_b128 {vr(T+12)}, v82 offset:256")
e("s_cbranch_scc1 FCS")
def sum4(b): e(f"v_add_f32 v{b}, v{b}, v{b+1}"); e(f"v_add_f32 v{b+2}, v{b+2}, v{b+3}"); e(f"v_add_f32 v{b}, v{b}, v{b+2}")
d = lambda sft: f"v_add_f32_dpp v{T}, v{T}, v{T} row_ror:{sft} row_mask:0xf bank_mask:0xf"
e("s_waitcnt lgkmcnt(3)"); sum4(T); e("s_waitcnt lgkmcnt(2)")
e(f"v_add_f32 v{T+4}, v{T+4}, v{T+5}"); e(d(8)); e(f"v_add_f32 v{T+6}, v{T+6}, v{T+7}"); e(f"v_add_f32 v{T+4}, v{T+4}, v{T+6}"); e(d(4))
e("s_waitcnt lgkmcnt(0)")
e(f"v_subrev_f32 v{T+5}, 0x44200000, v{T+4}"); e(d(2))
e(f"v_add_f32 v{T+8}, v{T+8}, v{T+9}"); e(f"v_mul_f32 v{T+6}, 0x3acccccd, v{T+5}"); e(d(1))
e(f"v_add_f32 v{T+10}, v{T+10}, v{T+11}"); e(f"v_sub_f32 v{T}, v{T}, v{T+5}")
e(f"v_add_f32 v{T+8}, v{T+8}, v{T+10}"); e(f"v_mul_f32 v{T}, 0x3acccccd, v{T}")
e(f"v_add_f32 v{T+12}, v{T+12}, v{T+13}"); e(f"v_fma_f32 v{T}, -v{T+6}, v{T+6}, v{T}")
e(f"v_add_f32 v{T+14}, v{T+14}, v{T+15}"); e(f"v_max_f32 v{T}, 0, v{T}")
e(f"v_fma_f32 v{T+8}, -v{T+4}, v{vCG}, v{T+8}"); e(f"v_add_f32 v{T}, 0x3727c5ac, v{T}")
e(f"v_add_f32 v{T+12}, v{T+12}, v{T+14}"); e(f"v_rsq_f32 v{T}, v{T}")
e(f"v_fma_f32 v{T+12}, -v{T+4}, v{vCU}, v{T+12}"); e(f"v_mul_f32 v{T+9}, 0xbfb8aa3b, v{T+8}")
e(f"v_mul_f32 v{T+9}, v{T+9}, v{T}"); e(f"v_mul_f32 v{T+12}, v{T+12}, v{T+8}"); e(f"v_exp_f32 v{T+9}, v{T+9}")
e(f"v_mul_f32 v{T+12}, v{T+12}, v{T}"); e(f"v_add_f32 v{T+9}, 1.0, v{T+9}"); e(f"v_mul_f32 v{T+12}, v{T+12}, v{T}"); e(f"v_rcp_f32 v{T+9}, v{T+9}")
e(f"v_mul_f32 v{T+12}, v{T+12}, v{T+9}")
for q in range(4): e(f"v_mov_b32_dpp v{T+4+q}, v{T+12} quad_perm:[{q},{q},{q},{q}] row_mask:0xf bank_mask:0xf")
e(f"v_cvt_pk_bf16_f32 v{T+4}, v{T+4}, v{T+5}"); e(f"v_cvt_pk_bf16_f32 v{T+5}, v{T+6}, v{T+7}")
HB = 60
def hm(t): return [f"v_cndmask_b32 v{HB+2*t+q}, 0, v{T+4+q}, {sp(sMf+2*t)}" for q in range(2)]
W2Q = ["a[240:243]", "a[244:247]", "a[248:251]", "v[108:111]", "v[2:5]"]
for x in hm(0) + hm(1) + hm(2): e(x)
for t in range(5):
    c = "0" if t == 0 else vr(T)
    e(f"v_mfma_f32_16x16x32_bf16 {vr(T)}, {W2Q[t]}, {vr(HB+4*t)}, {c}")
    for k in (2 * t + 3, 2 * t + 4):
        if k < 10:
            for x in hm(k): e(x)
setexec(0x03FF03FF03FF03FF)
lstore(f"buffer_store_dwordx4 {vr(T)}, v84, {sr(sW)}, s{sT1} offen")
setexec(FULL)
stamp(9)
def t_():
    lab("FCS")
    e("s_waitcnt lgkmcnt(0)"); sum4(T + 8); sum4(T + 12)
    e(f"v_mul_f32 v{vCG}, 0x3acccccd, v{T+8}"); e(f"v_mul_f32 v{vCU}, 0x3acccccd, v{T+12}")
    e(f"s_mov_b32 s{sPass}, 1"); e("s_waitcnt vmcnt(0)")
    for q in range(4): e(f"v_mov_b32 v{T+q}, -1")
    lstore(f"buffer_store_dwordx4 {vr(T)}, v21, {sr(sW)}, s97 offen")
    e("s_barrier"); stamp(13); e("s_branch FPOLL")
tail.append(t_)
lab("NEXT")
e(f"s_cmp_lg_u32 s{sLay}, 0"); e("s_cbranch_scc1 DONE")
e(f"s_mov_b32 s{sLay}, {LS}"); e(f"s_add_u32 s{sLG}, s{sLG}, {LS}"); e(f"s_add_u32 s{sYg}, s{sYg}, {LS}"); e(f"s_add_u32 s{sYl}, s{sYl}, {LS}")
e("s_branch LOOP")
flush_near()
lab("DONE")
if SPIN:
    e("v_accvgpr_read_b32 v38, a253"); e("s_nop 1"); e("v_readfirstlane_b32 s96, v38")
    if SPM == "min":
        e("v_not_b32 v38, v38"); e("v_mov_b32 v39, 192"); e("s_mov_b64 exec, 1"); e("global_atomic_umax v39, v38, s[64:65] sc1"); e("s_waitcnt vmcnt(0)")
        lab("SPW"); e("s_sleep 20"); e("s_memrealtime s[98:99]"); e("s_waitcnt lgkmcnt(0)"); e("s_sub_u32 s98, s98, s96"); e(f"s_cmp_lt_u32 s98, {SPIN*100-1500}"); e("s_cbranch_scc1 SPW")
        e("global_load_dword v38, v39, s[64:65] sc1"); e("s_waitcnt vmcnt(0)"); e("v_not_b32 v38, v38"); e("s_nop 1"); e("v_readfirstlane_b32 s96, v38")
    lab("SPINL"); e("s_memrealtime s[98:99]"); e("s_waitcnt lgkmcnt(0)"); e("s_sub_u32 s98, s98, s96"); e(f"s_cmp_lt_u32 s98, {SPIN*100}"); e("s_cbranch_scc1 SPINL")
e("s_endpgm")
i = 0
while i < len(tail): tail[i](); flush_near(); i += 1
lab("CODE_END")
e("s_endpgm")

body = A.pad()
hdr = [f"; @launch grid=(256,1,1) block=(256,1,1) lds={LDSSZ}", '.amdgcn_target "amdgcn-amd-amdhsa--gfx950"', ".text",
       f".globl {NAME}_kernel", ".p2align 8", f".type {NAME}_kernel,@function", f"{NAME}_kernel:"]
ftr = ['.section .rodata,"a"', ".p2align 6", f".amdhsa_kernel {NAME}_kernel", "  .amdhsa_next_free_vgpr 512", "  .amdhsa_next_free_sgpr 102",
       "  .amdhsa_accum_offset 256", "  .amdhsa_group_segment_fixed_size 0", "  .amdhsa_kernarg_size 96", "  .amdhsa_user_sgpr_count 2",
       "  .amdhsa_user_sgpr_kernarg_segment_ptr 1", "  .amdhsa_system_sgpr_workgroup_id_x 1", ".end_amdhsa_kernel"]
src = "\n".join(hdr + body + ftr) + "\n"
import re
for m in re.finditer(r"buffer_\S+ .*offset:(\d+)", src): assert int(m.group(1)) < 4096, m.group(0)
for m in re.finditer(r"ds_\S+ .*offset:(\d+)", src): assert int(m.group(1)) < 65536, m.group(0)
open(OUT, "w").write(src)
```

```python
import os, sys
sys.path.insert(0, os.path.dirname(os.path.abspath(__file__)))
from asmlib import Asm
NAME = "interleave_layers__sliding_block_cached__glu_gated_swiglu__decode"
OPT = dict(a.split("=") for a in sys.argv[2:])
OUT = sys.argv[1] if len(sys.argv) > 1 else f"/code/{NAME}.s"
STAMP = int(OPT.get("stamp", 0))
NT = OPT.get("nt", "nt").replace("x", "")
NTW = OPT.get("ntw", "nt").replace("x", "")
SKIP = OPT.get("skip", "").split(",")
FORCESLOW = int(OPT.get("slow", 0))
SPIN = int(OPT.get("spin", 0))
A = Asm(); e = A.e; lab = A.lab
tail = []

RS = 416; SCRW = 16 * RS
SCR = 0; WQ = 4 * SCRW; ROLE = WQ + 30720
WO = ROLE; W1 = ROLE; W3 = ROLE + 20480; W2 = ROLE + 40960
MISC = ROLE + 61440; QB = MISC; ACC = MISC + 512
OACC = 0; YACC = 3072; FACC = 4096
PT = ACC + 5120; ML4 = PT + 1024
FLG = ML4 + 64
LDSSZ = FLG + 64
FDMA = OPT.get("fdma", "late")
OMASK = int(OPT.get("omask", 1))
WDMA = OPT.get("wdma", "mid")
PF = OPT.get("pf", "ow")
NTP = OPT.get("ntp", "x").replace("x", "")
NTR = OPT.get("ntr", "x").replace("x", "")
GB = 81920; oQ = 0; oO = 32768; oML = 45056; oQF = 45312; oYL = 46080; oFL = 47360; oBA = 48640; oBB = 49920; oFP = 51200
GOFF = 8 * GB; oYG = GOFF; oFG = GOFF + 10240; LS = 0xA8000
OOB = 0x7FFFFFF0
sK, sV, sW, sWQ, sRA, sRB, sRC, sX, sO = 8, 12, 16, 20, 24, 28, 32, 36, 40
sG, sJ, sHH, sS, sWV, sKV, sLay, sFast, sCnt = 68, 69, 70, 71, 72, 73, 74, 75, 76
sT0, sT1, sT2 = 77, 78, 79
sLG = 3
sClr = 4
sXcc = 5
sTL = 6
sT3 = 7
sYg, sYl = 80, 81
sMf = 44
def sr(b): return f"s[{b}:{b+3}]"
def sp(b): return f"s[{b}:{b+1}]"
def vr(b, n=4): return f"v[{b}:{b+n-1}]" if n > 1 else f"v{b}"
def ar(b, n=4): return f"a[{b}:{b+n-1}]"
def srd(d, lo, nbytes):
    e(f"s_mov_b32 s{d}, s{lo}"); e(f"s_and_b32 s{d+1}, s{lo+1}, 0xffff")
    e(f"s_mov_b32 s{d+2}, {nbytes}"); e(f"s_mov_b32 s{d+3}, 0x20000")
MASKS = {}
def setexec(mask):
    if mask in MASKS: e(f"s_mov_b64 exec, {sp(MASKS[mask])}"); return
    lo, hi = mask & 0xffffffff, mask >> 32
    if mask == (1 << 64) - 1: e("s_mov_b64 exec, -1")
    elif hi == 0 and lo <= 64: e(f"s_mov_b64 exec, {lo}")
    else: e(f"s_mov_b32 exec_lo, {lo:#x}"); e(f"s_mov_b32 exec_hi, {hi:#x}")
FULL = (1 << 64) - 1
ROWS9 = 0x01FF01FF01FF01FF
vL, vLin, vWr, vKrd, vVrd, vCS, vAq, vAq16, vQst, vQld, vQBw, vQBr, vIdx, vAcc, vTq1, vTq2, vSC, vPw = 0, 1, 2, 5, 6, 7, 8, 9, 10, 11, 12, 13, 14, 15, 16, 17, 18, 19
vC1, vC2, vXR = 20, 21, 22
T = 24
F = 40
SPARE = 88
def vblock(b):
    if b < 2: return ("a", 192 + 24 * b)
    if b == 8: return ("v", SPARE)
    return ("v", 112 + 24 * (b - 2))
def rg(f, b, n): return f"{f}[{b}:{b+n-1}]"

uid = [0]
def nid(): uid[0] += 1; return uid[0]
stamps = [0]
SPINAT = int(OPT.get("spinat", -1))
def stamp(i, val=None):
    if SPIN and val is None and SPINAT % 16 == i:
        k = nid()
        e(f"s_cmp_lg_u32 s{sLay}, {LS*(SPINAT//16)}"); e(f"s_cbranch_scc1 NOSP{k}")
        e("s_memrealtime s[100:101]"); e("s_waitcnt lgkmcnt(0)"); e("v_accvgpr_write_b32 a253, s100"); lab(f"NOSP{k}")
    if not STAMP: return
    if STAMP == 3 and (val is not None or i != 7): return
    if STAMP == 4 and val != "c": return
    if val == "c":
        if STAMP != 4: return
        val = None
    if STAMP == 2 and val is None and i not in (0, 14): return
    if STAMP == 1 and (val is not None or i == 14): return
    e("s_memrealtime s[100:101]"); e("v_accvgpr_write_b32 a254, v38"); e("v_accvgpr_write_b32 a255, v39")
    e(f"s_lshl_b32 s98, s2, 2"); e(f"s_add_u32 s98, s98, s{sWV}"); e("s_lshl_b32 s98, s98, 7")
    e(f"s_cmp_eq_u32 s{sLay}, 0"); e(f"s_cselect_b32 s99, 0, 64"); e(f"s_add_u32 s99, s99, {4*i}"); e("s_add_u32 s98, s98, s99"); e("s_add_u32 s98, s98, 0x40000000")
    e("s_waitcnt lgkmcnt(0)"); e(f"v_mov_b32 v38, {val or 's100'}"); e("v_mov_b32 v39, 0")
    e("s_mov_b64 s[100:101], exec"); e("s_mov_b64 exec, 1")
    A.vmem(f"buffer_store_dword v38, v39, {sr(sW)}, s98 offen", "stamp")
    e("s_mov_b64 exec, s[100:101]"); e("s_nop 1"); e("v_accvgpr_read_b32 v38, a254"); e("v_accvgpr_read_b32 v39, a255")
sWp = sK
def lstore(instr, counted=None):
    assert sr(sW) in instr and not counted
    k = nid()
    e(instr.replace(sr(sW), sr(sWp)))
    e(f"s_cmp_eq_u32 s{sWp+2}, 0"); e(f"s_cbranch_scc1 SLOW{k}")
    lab(f"BACK{k}")
    def t(): lab(f"SLOW{k}"); e(instr + " sc1"); e(f"s_branch BACK{k}")
    tail.append(t)
def check(regs_, tmp):
    r = list(regs_)
    if len(r) == 1: e(f"v_cmp_eq_u32 vcc, -1, v{r[0]}"); return
    cur = r.pop(0)
    while r:
        if len(r) >= 2: e(f"v_max3_u32 v{tmp}, v{cur}, v{r[0]}, v{r[1]}"); r = r[2:]
        else: e(f"v_max_u32 v{tmp}, v{cur}, v{r[0]}"); r = r[1:]
        cur = tmp
    e(f"v_cmp_eq_u32 vcc, -1, v{tmp}")
LIMIT = 0x8000
def poll(loads, regs_, tmp, pid=None, slp=0, first=None):
    k = nid()
    if pid is not None: stamp(pid, "s100")
    e(f"s_mov_b32 s{sCnt}, 1")
    if first:
        for l in loads: e(l)
        first(); e(f"s_branch POLLW{k}")
    lab(f"POLL{k}")
    for l in loads: e(l)
    lab(f"POLLW{k}")
    e("s_waitcnt vmcnt(0)")
    check(regs_, tmp)
    e(f"s_cbranch_vccnz AGAIN{k}")
    lab(f"POLLX{k}")
    def t():
        lab(f"AGAIN{k}")
        if slp: e(f"s_sleep {slp}")
        e(f"s_add_u32 s{sCnt}, s{sCnt}, 1"); e(f"s_cmp_lt_u32 s{sCnt}, {LIMIT}"); e(f"s_cbranch_scc1 POLL{k}"); e(f"s_branch POLLX{k}")
    near.append(t)
    if pid is not None: stamp(pid + 1, "s100"); stamp(pid + 2, f"s{sCnt}")
    A.drained()
SEL = int(OPT.get("sel", 1)); XF = " " + OPT.get("xf", "").replace("+", " "); XF1 = int(OPT.get("xf1", 0))
def poll_sel(groups, tmp, pid=None, first=None, firstloads=None, xf="", wl=None, w1=0):
    allr = [r for g in groups for r in g[1]]
    loads = firstloads or [l for g in groups for l in g[0]]
    if not SEL: return poll(loads, allr, tmp, pid=pid, first=first)
    k = nid()
    if pid is not None: stamp(pid, "s100")
    for l in loads: e(l + (xf if XF1 else ""))
    if first: first()
    if wl: lab(wl)
    if pid is not None and STAMP == 2: e(f"s_mov_b32 s{sCnt}, 1")
    e(f"s_waitcnt vmcnt({w1})")
    check(allr, tmp)
    e(f"s_cbranch_vccnz AGAIN{k}")
    lab(f"POLLX{k}")
    def t():
        lab(f"AGAIN{k}")
        e("s_mov_b64 s[94:95], exec"); e(f"s_mov_b32 s{sCnt}, 1")
        lab(f"AG2{k}")
        for gi, (ls, rs) in enumerate(groups):
            if len(groups) > 1: check(rs, tmp)
            e("s_mov_b64 exec, vcc")
            if len(groups) > 1: e(f"s_cbranch_execz AG3{k}_{gi}")
            for l in ls: e(l + xf)
            lab(f"AG3{k}_{gi}"); e("s_mov_b64 exec, s[94:95]")
        e(f"s_add_u32 s{sCnt}, s{sCnt}, 1"); e(f"s_cmp_ge_u32 s{sCnt}, {LIMIT}")
        e("s_waitcnt vmcnt(0)")
        check(allr, tmp)
        e(f"s_cbranch_vccz POLLX{k}"); e(f"s_cbranch_scc0 AG2{k}"); e(f"s_branch POLLX{k}")
    near.append(t)
    if pid is not None: stamp(pid + 1, "s100"); stamp(pid + 2, f"s{sCnt}")
    A.drained()
near = []
def flush_near():
    while near: near.pop(0)()
GATE = int(OPT.get("gate", 1)); GDLY = int(OPT.get("gdly", 0)); ODLY = int(OPT.get("odly", 16))
def gate(sreg, nl, tmp):
    if not GATE: return
    setexec((1 << nl) - 1)
    poll([f"buffer_load_dword v{tmp}, v{vLin}, {sr(sW)}, s{sreg} offen sc1"], [tmp], tmp)
    if GDLY: e(f"s_sleep {GDLY}")
def poll_nan(loads, body, res):
    k = nid()
    e(f"s_mov_b32 s{sCnt}, 1")
    lab(f"POLL{k}")
    for l in loads: e(l)
    e("s_waitcnt vmcnt(0)")
    body()
    e(f"v_cmp_u_f32 vcc, v{res}, v{res}"); e(f"s_cbranch_vccnz AGAIN{k}")
    lab(f"POLLX{k}")
    def t():
        lab(f"AGAIN{k}"); e(f"s_add_u32 s{sCnt}, s{sCnt}, 1"); e(f"s_cmp_lt_u32 s{sCnt}, {LIMIT}"); e(f"s_cbranch_scc1 POLL{k}"); e(f"s_branch POLLX{k}")
    near.append(t)
def late_check(tag, loads, regs_, tmp, pre=None, post=None):
    k = nid()
    A.wait(tag)
    check(regs_, tmp)
    e(f"s_cbranch_vccnz RETRY{k}")
    lab(f"OK{k}")
    def t():
        lab(f"RETRY{k}")
        if pre: pre()
        save = A.vm; poll(loads, regs_, tmp); A.vm = save
        if post: post()
        e(f"s_branch OK{k}")
    tail.append(t)

sTO = 82
sPo, sPw = 90, 91
vLin2 = vXR + 1
e("s_load_dwordx16 s[44:59], s[0:1], 0"); e("s_load_dwordx8 s[60:67], s[0:1], 64")
e("s_cmp_ge_u32 s2, 256"); e("s_cbranch_scc1 CODE_END")
if STAMP or SPIN: e("s_memrealtime s[96:97]")
e("v_lshrrev_b32 v2, 6, v0"); e("v_and_b32 v24, 63, v0"); e(f"v_readfirstlane_b32 s{sWV}, v2")
e(f"s_and_b32 s{sG}, s2, 7"); e(f"s_lshr_b32 s{sJ}, s2, 3"); e(f"s_lshr_b32 s{sHH}, s{sJ}, 3"); e(f"s_and_b32 s{sS}, s{sJ}, 7")
e(f"v_lshlrev_b32 v{vLin}, 4, v24")
e(f"s_lshl_b32 s{sT0}, s{sHH}, 3"); e(f"s_add_u32 s{sT0}, s{sT0}, s{sG}")
e(f"s_mul_i32 s{sKV}, s{sT0}, 12582912"); e(f"s_lshl_b32 s{sT1}, s{sS}, 2"); e(f"s_add_u32 s{sT1}, s{sT1}, s{sWV}")
e(f"s_mul_i32 s{sT1}, s{sT1}, 6144"); e(f"s_add_u32 s{sKV}, s{sKV}, s{sT1}"); e(f"s_add_u32 s{sKV}, s{sKV}, 11010048")
e(f"v_add_u32 v{vLin2}, 4096, v{vLin}"); e(f"s_mov_b32 s{sK+2}, 402653184"); e(f"s_mov_b32 s{sK+3}, 0x20000")
e("s_getpc_b64 s[100:101]"); lab("PCREF")
e(f"s_sub_u32 s100, s100, PCREF-{NAME}_kernel"); e("s_subb_u32 s101, s101, 0")
e(f"s_lshl_b32 s{sT1}, s{sS}, 12"); e(f"v_lshl_add_u32 v25, v0, 4, s{sT1}")
e(f"v_cmp_gt_u32 vcc, CODE_END-{NAME}_kernel-16, v25"); e("s_and_saveexec_b64 s[98:99], vcc"); e("s_cbranch_execz NOCPF")
e(f"global_load_dwordx4 a[240:243], v25, s[100:101]")
lab("NOCPF"); e("s_mov_b64 exec, -1")
e(f"s_mul_i32 s{sT2}, s{sT0}, 384")
e(f"s_mov_b32 s{sLay}, 0"); e(f"s_mul_i32 s{sLG}, s{sG}, {GB}"); e(f"s_mov_b32 s{sFast}, 0")
e(f"v_mov_b32 v32, -1"); e(f"v_mov_b32 v33, -1"); e(f"v_mov_b32 v34, -1"); e(f"v_mov_b32 v35, -1")
e(f"s_mul_i32 s{sT0}, s{sJ}, 576"); e(f"s_add_u32 s{sT0}, s{sT0}, s{sLG}"); e(f"s_add_u32 s{sT0}, s{sT0}, {oO}"); e(f"v_add_u32 v{vC1}, s{sT0}, v{vLin}")
e(f"s_mul_i32 s{sT0}, s2, 80"); e(f"s_add_u32 s{sT0}, s{sT0}, {GOFF-576}"); e(f"v_add_u32 v25, s{sT0}, v{vLin}")
e("v_cmp_le_u32 vcc, 36, v0"); e(f"v_cndmask_b32 v{vC2}, v{vC1}, v25, vcc"); e(f"v_mov_b32 v25, {OOB}"); e(f"v_cndmask_b32 v{vC1}, v{vC1}, v25, vcc")
e("v_cmp_le_u32 vcc, 41, v0"); e(f"v_cndmask_b32 v{vC2}, v{vC2}, v25, vcc")
e(f"s_mov_b32 s{sW+2}, 1610612736"); e(f"s_mov_b32 s{sW+3}, 0x20000")
e("s_waitcnt lgkmcnt(0)")
e(f"s_mov_b32 s{sK}, s46"); e(f"s_and_b32 s{sK+1}, s47, 0xffff"); e(f"s_mov_b32 s{sW}, s66"); e(f"s_and_b32 s{sW+1}, s67, 0xffff")
CLRPOS = int(OPT.get("clrpos", 0))
def clears():
    if "clr" in SKIP: return
    A.vmem(f"buffer_store_dwordx4 v[32:35], v{vC2}, {sr(sW)}, 0 offen sc1", "clr")
if SPIN: e("v_mov_b32 v38, s96"); e("v_accvgpr_write_b32 a253, v38")
SPM = OPT.get("spm", "")
RW = int(OPT.get("rw", 16)); RF = (320 - 20 * RW) // 12
assert 20 * RW + 12 * RF == 320
NPW = -(-max(RW, RF) * 24 // 64)
pend = []
def q_tile(srdn, t, f, base, tag):
    so = sKV if t == 0 else sTO + t
    for i in range(6):
        pend.append((f"buffer_load_dwordx4 {rg(f, base+4*i, 4)}, v{vLin if i < 4 else vLin2}, {sr(srdn)}, s{so} offen offset:{1024*(i%4)} {NT}", tag))
def qK(t): q_tile(sK, t, "a", 24 * t, f"K{t}")
def qV(t): f, b = vblock(t + 1); q_tile(sV, t, f, b, f"V{t}")
def q_pfo():
    for n in range(9): pend.append((f"buffer_load_dwordx4 a[240:243], v{[vLin, vLin, vLin2, 108, 109][n//2]}, {sr(sWQ)}, s{sPo} offen offset:{1024*(n%4)} {NTP}", "pfo"))
def q_pfw():
    for n in range(NPW): pend.append((f"buffer_load_dwordx4 a[240:243], v{101+n}, {sr(sX)}, s{sPw} offen {NTP}", "pfw"))
nfill = [0]; BARN = int(OPT.get("barn", 6)); THR = int(OPT.get("thr", 0)); THRE = int(OPT.get("thre", 0))
hold = {"V7", "pfw", "pfo"}; LA = int(OPT.get("la", 12))
def ahead(tag, LA=LA):
    while tag in A.vm and pend and pend[0][1] not in hold and len(A.vm) - 1 - max(i for i, x in enumerate(A.vm) if x == tag) < LA: fill()
def fill(n=1):
    for _ in range(n):
        if pend and not (pend[0][1] in hold):
            if THR and nfill[0] >= THR and len(pend) > THRE: e(f"s_waitcnt vmcnt({THR-1})")
            x, tag = pend.pop(0); A.vmem(x, tag); nfill[0] += 1
            if BARN and nfill[0] > 12 and nfill[0] % BARN == 0 and len(pend) >= 3: e("s_barrier")
BARS = OPT.get("bar", "").split(",")
def upto(tag):
    while any(t == tag for _, t in pend): fill()
    if tag in BARS or "every" in BARS and tag not in ("K0", "K1", "V7"): e("s_barrier")
def Kld(t): upto(f"K{t}")
def Vld(t): upto(f"V{t}")
for it in OPT.get("order", "K0 K1 K2 K3 w K4 K5 K6 K7 V0 V1 V2 V3 V4 V5 V6 V7").replace(",", " ").split():
    if it == "w":
        if "pfw" not in SKIP: q_pfw()
    elif it == "o":
        if "pfo" not in SKIP: q_pfo()
    elif it[0] == "K": qK(int(it[1]))
    else: qV(int(it[1]))
clears()
fill(int(OPT.get("k0e", 2)))
if STAMP == 1: e("s_memrealtime s[94:95]")
e(f"s_add_u32 s{sTO+1}, s{sKV}, 196608")
srd(sV, 48, 402653184); srd(sWQ, 50, 7864320); srd(sX, 44, 1280); srd(sO, 62, 1280)
srd(sRB, 58, 1966080); srd(sRC, 60, 1966080)
e(f"s_cmp_lt_u32 s{sJ}, 20"); e(f"s_cselect_b32 s{sRA}, s52, s56"); e(f"s_cselect_b32 s{sRA+1}, s53, s57"); e(f"s_cselect_b32 s{sRA+2}, s{sWQ+2}, s{sRB+2}")
e(f"s_and_b32 s{sRA+1}, s{sRA+1}, 0xffff"); e(f"s_mov_b32 s{sRA+3}, 0x20000")
if STAMP:
    e(f"s_lshl_b32 s98, s2, 2"); e(f"s_add_u32 s98, s98, s{sWV}"); e("s_lshl_b32 s98, s98, 7"); e("s_add_u32 s98, s98, 0x40000000")
    e("v_mov_b32 v38, s96"); e("v_mov_b32 v39, 0"); e("s_mov_b64 exec, 1")
    A.vmem(f"buffer_store_dword v38, v39, {sr(sW)}, s98 offen", "stamp")
    if STAMP == 1: e("s_waitcnt lgkmcnt(0)"); e("v_mov_b32 v37, s94"); A.vmem(f"buffer_store_dword v37, v39, {sr(sW)}, s98 offen offset:56", "stamp")
    e("s_mov_b64 exec, -1")
for t in range(2, 8): e(f"s_add_u32 s{sTO+t}, s{sTO+t-1}, 196608")
e(f"v_mov_b32 v{vL}, v24")
e(f"s_mul_i32 s{sT0}, s{sWV}, {SCRW}")
for r in range(3):
    e(f"v_add_u32 v25, {64*r}, v{vL}"); e("v_mul_u32_u24 v26, 171, v25"); e("v_lshrrev_b32 v26, 12, v26")
    e("v_mul_u32_u24 v27, 24, v26"); e("v_sub_u32 v27, v25, v27"); e("v_lshlrev_b32 v27, 4, v27")
    e(f"v_mul_u32_u24 v25, {RS}, v26"); e(f"v_add3_u32 v{vWr+r}, v25, v27, s{sT0}")
    e(f"v_mul_u32_u24 v25, 12288, v26"); e(f"v_add_u32 v{F+r}, v25, v27")
    e(f"v_mul_u32_u24 v25, 3072, v26"); e(f"v_add_u32 v{101+r}, v25, v27")
assert all((c * 171) >> 12 == c // 24 for c in range(192))
ATP = int(OPT.get("atp", 0))
def atomic_block():
    sA0, sA1, sA2 = 92, 93, 94
    e(f"s_getreg_b32 s{sXcc}, hwreg(HW_REG_XCC_ID, 0, 4)")
    e(f"s_lshr_b32 s{sA0}, s{sXcc}, 2"); e(f"s_lshl_b32 s{sA1}, s{sG}, 2"); e(f"s_add_u32 s{sA0}, s{sA0}, s{sA1}")
    e(f"s_and_b32 s{sA1}, s{sXcc}, 3"); e(f"s_lshl_b32 s{sA1}, s{sA1}, 3"); e(f"s_lshl_b32 s{sA2}, 1, s{sA1}")
    e(f"s_lshl_b32 s96, 32, s{sA1}"); e(f"s_mov_b32 s{sXcc}, s{sA0}")
    e(f"s_cmp_lg_u32 s{sWV}, 0"); e("s_cbranch_scc1 NOATOM")
    save = list(A.vm); A.wait("qst"); A.vm = save
    e(f"s_lshl_b32 s{sA0}, s{sA0}, 2"); e(f"v_mov_b32 v36, s{sA0}"); e(f"v_mov_b32 v37, s{sA2}")
    if "atom" not in SKIP: setexec(1); e("global_atomic_add v36, v37, s[64:65] sc1"); setexec(FULL)
    lab("NOATOM")
    stamp(1, "s100")
e(f"v_and_b32 v25, 15, v{vL}"); e(f"v_lshrrev_b32 v26, 4, v{vL}")
e(f"v_bfe_u32 v27, v{vL}, 2, 2"); e(f"v_and_b32 v28, 3, v{vL}")
e(f"s_mul_i32 s{sT1}, s{sS}, 160")
e(f"v_lshlrev_b32 v36, 4, v26"); e(f"v_lshlrev_b32 v37, 3, v26"); e(f"v_lshlrev_b32 v39, 2, v{vL}")
A.vmem(f"buffer_load_dwordx4 v[70:73], v36, {sr(sX)}, s{sT1} offen", "x")
A.vmem(f"buffer_load_dwordx4 v[74:77], v36, {sr(sX)}, s{sT1} offen offset:64", "x")
A.vmem(f"buffer_load_dwordx2 v[78:79], v37, {sr(sX)}, s{sT1} offen offset:128", "x")
A.vmem(f"buffer_load_dwordx4 v[80:83], v{vLin}, {sr(sX)}, 0 offen", "x")
A.vmem(f"buffer_load_dword v84, v39, {sr(sX)}, 0 offen offset:1024", "x")
e(f"s_lshl_b32 s{sT3}, s{sJ}, 6"); e(f"v_lshlrev_b32 v38, 2, v25")
A.vmem(f"buffer_load_dword v{vXR}, v38, {sr(sX)}, s{sT3} offen", "x")
e(f"s_mul_i32 s{sT1}, s{sS}, {80*12288}"); e(f"s_add_u32 s{sT2}, s{sT2}, s{sT1}")
e(f"s_mul_i32 s{sT1}, s{sWV}, {8*12288}"); e(f"s_add_u32 s{sT2}, s{sT2}, s{sT1}")
e(f"s_mul_i32 s{sT1}, s{sWV}, 3072"); e(f"s_add_u32 s{sT1}, s{sT1}, {WQ}")
for gi in range(3):
    if gi == 2: e(f"s_cmp_ge_u32 s{sWV}, 2"); e("s_cbranch_scc1 NOWQ3")
    for r in range(3):
        e(f"s_add_u32 m0, s{sT1}, {gi*4*3072 + r*1024}")
        if "wq" not in SKIP: A.vmem(f"buffer_load_dwordx4 v{F+r}, {sr(sWQ)}, s{sT2} offen {NTW} lds", "wq", counted=(gi < 2))
    if gi < 2: e(f"s_add_u32 s{sT2}, s{sT2}, {32*12288}")
lab("NOWQ3")
e(f"s_mul_i32 s{sT1}, s{sS}, 160")
srd(sWQ, 52, 7864320)
e(f"s_cmp_lt_u32 s{sWV}, 2"); e(f"s_cselect_b32 s{sX}, s56, s58"); e(f"s_cselect_b32 s{sX+1}, s57, s59"); e(f"s_and_b32 s{sX+1}, s{sX+1}, 0xffff"); e(f"s_mov_b32 s{sX+2}, 1966080")
e(f"s_lshl_b32 s{sPo}, s{sHH}, 3"); e(f"s_add_u32 s{sPo}, s{sPo}, s{sG}"); e(f"s_lshl_b32 s{sPo}, s{sPo}, 3"); e(f"s_add_u32 s{sPo}, s{sPo}, s{sS}")
e(f"s_mul_i32 s{sPo}, s{sPo}, 30720"); e(f"s_mul_i32 s{sT2}, s{sWV}, 6144"); e(f"s_add_u32 s{sPo}, s{sPo}, s{sT2}")
e(f"s_cmp_eq_u32 s{sWV}, 3"); e(f"s_cselect_b32 s{sT2}, 3072, 0"); e(f"s_add_u32 s{sPo}, s{sPo}, s{sT2}")
e(f"s_cmp_lt_u32 s{sWV}, 2"); e(f"s_cselect_b32 s{sT2}, {OOB-0x10000000}, 0"); e(f"v_add_u32 v108, s{sT2}, v{vLin2}"); e(f"v_add_u32 v109, 4096, v108")
e(f"s_and_b32 s{sPw}, s{sWV}, 1"); e(f"s_lshl_b32 s{sT2}, s{sJ}, 1"); e(f"s_add_u32 s{sPw}, s{sPw}, s{sT2}")
e(f"s_mul_i32 s{sT2}, s{sPw}, {RF}"); e(f"s_add_u32 s{sT2}, s{sT2}, {40*(RW-RF)}"); e(f"s_mul_i32 s{sPw}, s{sPw}, {RW}")
e(f"s_cmp_lt_u32 s{sJ}, 20"); e(f"s_cselect_b32 s{sPw}, s{sPw}, s{sT2}"); e(f"s_mov_b32 s{sT3}, {RW*3072}"); e(f"s_cselect_b32 s{sT3}, s{sT3}, {RF*3072}")
e(f"s_mul_i32 s{sPw}, s{sPw}, 3072"); e(f"s_mul_i32 s{sT2}, s{sG}, 384"); e(f"s_add_u32 s{sPw}, s{sPw}, s{sT2}")
e(f"v_mov_b32 v29, {OOB-0x10000000}")
for n in range(3, NPW): e(f"v_add_u32 v{101+n}, {8*3072}, v{98+n}")
for n in range(NPW): e(f"v_cmp_gt_u32 vcc, s{sT3}, v{101+n}"); e(f"v_cndmask_b32 v{101+n}, v29, v{101+n}, vcc")
hold -= {"pfw", "pfo"}
fill(3)
e(f"v_mul_u32_u24 v29, {RS}, v25"); e(f"v_lshl_add_u32 v29, v26, 4, v29"); e(f"v_add_u32 v{vKrd}, s{sT0}, v29")
e(f"v_lshrrev_b32 v29, 2, v{vL}"); e(f"v_mul_u32_u24 v29, {RS}, v29"); e(f"v_lshl_add_u32 v29, v28, 3, v29"); e(f"v_add_u32 v{vVrd}, s{sT0}, v29")
e(f"s_mul_i32 s{sT2}, s{sWV}, 96"); e(f"s_add_u32 s{sT2}, s{sT2}, {WQ}")
e("v_lshl_add_u32 v29, v26, 3, v27"); e("v_mul_u32_u24 v29, 384, v29"); e("v_lshl_add_u32 v29, v28, 3, v29"); e(f"v_add_u32 v{vTq1}, s{sT2}, v29")
e("v_lshl_add_u32 v29, v26, 2, v27"); e("v_mul_u32_u24 v29, 384, v29"); e("v_lshl_add_u32 v29, v28, 3, v29"); e(f"v_add_u32 v{vTq2}, s{sT2}, v29")
def rowbase(dst, m, og, ol, ob, tmp):
    e(f"v_mul_u32_u24 v{dst}, 1280, v{m}"); e(f"v_add_u32 v{dst}, {og}, v{dst}")
    e(f"s_mul_i32 s{sT3}, s{sG}, {GB}"); e(f"s_add_u32 s{sT3}, s{sT3}, {ol}"); e(f"v_mov_b32 v{tmp}, s{sT3}")
    e(f"v_cmp_eq_u32 vcc, s{sG}, v{m}"); e(f"v_cndmask_b32 v{dst}, v{dst}, v{tmp}, vcc")
    if ob is not None:
        e(f"v_add_u32 v{tmp}, {ob-ol}, v{tmp}"); e(f"v_cmp_le_u32 vcc, 8, v{m}"); e(f"v_cndmask_b32 v{dst}, v{dst}, v{tmp}, vcc")
fill()
e(f"v_mul_u32_u24 v31, 103, v{vL}"); e("v_lshrrev_b32 v31, 10, v31")
e(f"v_mul_u32_u24 v30, 10, v31"); e(f"v_sub_u32 v30, v{vL}, v30"); e(f"v_lshl_add_u32 v29, v30, 4, s{sT1}")
rowbase(vAq, 31, oFG, oFL, oBB, 30); e(f"v_add_u32 v{vAq}, v{vAq}, v29")
e("v_add_u32 v31, 6, v31"); rowbase(vAq16, 31, oFG, oFL, oBB, 30); e(f"v_add_u32 v{vAq16}, v{vAq16}, v29")
e(f"v_mov_b32 v30, {OOB}"); e(f"v_cmp_le_u32 vcc, 30, v{vL}"); e(f"v_cndmask_b32 v{vAq16}, v{vAq16}, v30, vcc")
assert all((c * 103) >> 10 == c // 10 for c in range(64))
e(f"s_lshl_b32 s{sT1}, s{sJ}, 10"); e(f"s_lshl_b32 s{sT2}, s{sWV}, 8"); e(f"s_add_u32 s{sT1}, s{sT1}, s{sT2}")
e(f"v_lshl_add_u32 v{vQst}, v{vL}, 2, s{sT1}")
e(f"s_lshl_b32 s{sT1}, s{sHH}, 13"); e(f"s_add_u32 s{sT1}, s{sT1}, s{sT2}")
e(f"v_lshlrev_b32 v29, 10, v26"); e(f"v_lshl_add_u32 v29, v25, 4, v29"); e(f"v_add_u32 v{vQld}, s{sT1}, v29")
fill()
e(f"s_mul_i32 s{sT1}, s{sWV}, 96"); e(f"s_add_u32 s{sT1}, s{sT1}, {QB}")
e(f"v_lshl_add_u32 v29, v27, 5, s{sT1}"); e("v_lshl_add_u32 v29, v28, 2, v29"); e("v_lshrrev_b32 v30, 1, v26"); e("v_lshl_add_u32 v29, v30, 4, v29")
e("v_and_b32 v30, 1, v26"); e("v_lshl_add_u32 v29, v30, 1, v29"); e(f"v_mov_b32 v30, {QB+384}")
e("v_cmp_le_u32 vcc, 12, v25"); e(f"v_cndmask_b32 v{vQBw}, v29, v30, vcc")
e(f"v_and_b32 v30, 1, v{vL}"); e(f"v_lshlrev_b32 v29, 5, v26"); e("v_lshl_add_u32 v29, v30, 4, v29"); e(f"v_add_u32 v{vQBr}, {QB}, v29")
e("v_mul_u32_u24 v30, 0xaaaa, v30"); e("v_and_b32 v29, 1, v27"); e("v_mul_u32_u24 v29, 0xaaaa, v29"); e("v_lshl_or_b32 v29, v29, 16, v30"); e(f"v_add_u32 v{vIdx}, 0x44444444, v29")
fill()
e(f"s_lshl_b32 s{sT1}, s{sWV}, 8"); e(f"s_add_u32 s{sT1}, s{sT1}, {PT}")
e(f"v_lshrrev_b32 v29, 5, v{vL}"); e(f"v_lshl_add_u32 v29, v29, 6, s{sT1}")
for bit, sh in ((3, 5), (1, 4), (2, 3), (4, 2), (0, 1)): e(f"v_bfe_u32 v30, v{vL}, {bit}, 1"); e(f"v_lshl_add_u32 v29, v30, {sh}, v29")
e(f"v_mov_b32 v{vPw}, v29")
e(f"v_bfe_u32 v29, v{vL}, 4, 1"); e(f"v_bfe_u32 v30, v{vL}, 2, 1"); e(f"v_lshl_add_u32 v29, v29, 5, s{sT1}"); e("v_lshl_add_u32 v29, v30, 4, v29"); e("v_accvgpr_write_b32 a252, v29")
e(f"s_mul_i32 s{sT1}, s{sWV}, 768"); e(f"s_add_u32 s{sT1}, s{sT1}, {ACC}"); e(f"v_lshl_add_u32 v29, v25, 2, s{sT1}")
e(f"v_bfe_u32 v30, v{vL}, 4, 1"); e("v_lshl_add_u32 v29, v30, 7, v29"); e(f"v_lshrrev_b32 v30, 5, v{vL}"); e(f"v_lshl_add_u32 v{vAcc}, v30, 6, v29")

def Krel(t):
    upto(f"K{t}"); ahead(f"K{t}"); A.wait(f"K{t}")
    if "rel" in SKIP: return
    for i in range(6): e(f"ds_write_b128 v{vWr+i%3}, {ar(24*t+4*i)} offset:{(i//3)*8*RS}")
    for ks in range(6): e(f"ds_read_b128 {ar(24*t+4*ks)}, v{vKrd} offset:{64*ks}")
def Vrel(t):
    upto(f"V{t}"); ahead(f"V{t}"); A.wait(f"V{t}")
    if "rel" in SKIP: return
    f, b = vblock(t + 1)
    for i in range(6): e(f"ds_write_b128 v{vWr+i%3}, {rg(f, b+4*i, 4)} offset:{(i//3)*8*RS}")
    f, b = vblock(t & ~1)
    for dt in range(12): e(f"ds_read_b64_tr_b16 {rg(f, b+4*dt+2*(t&1), 2)}, v{vVrd} offset:{32*dt}")
def wq_frags():
    for t in range(3):
        b = F + 10 * t
        for kk in range(2):
            for h in range(2): e(f"ds_read_b64_tr_b16 {vr(b+4*kk+2*h,2)}, v{vTq1} offset:{(32*kk+4*h)*384+32*t}")
        e(f"ds_read_b64_tr_b16 {vr(b+8,2)}, v{vTq2} offset:{64*384+32*t}")
def qstage(a, soff, tag=None, waits=False, fl=0):
    def mm(t, kk):
        n = 4 if kk < 2 else 2
        bb = vr(F + 10 * t + 4 * kk, n) if t < 3 else vr(a + 4 * kk, n)
        c = "0" if kk == 0 else vr(T + 4 * t)
        e(f"v_mfma_f32_16x16x{32 if kk<2 else 16}_bf16 {vr(T+4*t)}, {vr(a+4*kk,n)}, {bb}, {c}")
    def s4(t): return [f"v_add_f32 v{T+4*t}, v{T+4*t}, v{T+4*t+1}", f"v_add_f32 v{T+4*t+2}, v{T+4*t+2}, v{T+4*t+3}", f"v_add_f32 v{T+4*t}, v{T+4*t}, v{T+4*t+2}"]
    if waits: e("s_waitcnt lgkmcnt(2)")
    mm(0, 0); mm(2, 0)
    if waits: e("s_waitcnt lgkmcnt(0)")
    mm(0, 1); mm(2, 1); mm(0, 2); mm(2, 2)
    mm(1, 0); mm(3, 0); mm(1, 1); mm(3, 1); mm(1, 2); mm(3, 2)
    fill(fl)
    for x in s4(0) + s4(2): e(x)
    e(f"v_permlane32_swap_b32 v{T}, v{T+8}")
    x1, x3 = s4(1), s4(3)
    for x in x1[:2] + x3[:2] + [f"v_add_f32 v{T}, v{T}, v{T+8}"] + x1[2:] + x3[2:]: e(x)
    e(f"v_permlane32_swap_b32 v{T+4}, v{T+12}"); e(f"v_add_f32 v{T+4}, v{T+4}, v{T+12}")
    e(f"v_permlane16_swap_b32 v{T}, v{T+4}"); e(f"v_add_f32 v{T}, v{T}, v{T+4}")
    if tag and "qst" in SKIP: pass
    elif tag:
        for q in (1, 2, 3): e(f"v_mov_b32_dpp v{T+q}, v{T} quad_perm:[{q},{q},{q},{q}] row_mask:0xf bank_mask:0xf")
        setexec(0x1111111111111111); A.vmem(f"buffer_store_dwordx4 {vr(T)}, v{vQst}, {sr(sW)}, {soff} offen {'' if 'qplain' in SKIP else 'sc1'}", tag); setexec(FULL)
    else: lstore(f"buffer_store_dword v{T}, v{vQst}, {sr(sW)}, {soff} offen")
def xreduce(r0, r1, r2, r3):
    e(f"v_permlane32_swap_b32 v{r0}, v{r2}"); e(f"v_permlane32_swap_b32 v{r1}, v{r3}")
    e(f"v_add_f32 v{r0}, v{r0}, v{r2}"); e(f"v_add_f32 v{r1}, v{r1}, v{r3}")
    e(f"v_permlane16_swap_b32 v{r0}, v{r1}"); e(f"v_add_f32 v{r0}, v{r0}, v{r1}")
def qloads(b, s0, s1): return [f"buffer_load_dwordx4 {vr(b)}, v{vQld}, {sr(sW)}, {s0} offen sc1", f"buffer_load_dwordx4 {vr(b+4)}, v{vQld}, {sr(sW)}, {s1} offen sc1"]
def qsum(b):
    for q in range(4): e(f"v_add_f32 v{b+q}, v{b+q}, v{b+4+q}")
    xreduce(b, b + 1, b + 2, b + 3)
def rowred(op, v, tmp, steps):
    for sft in steps: e(f"v_{op}_f32_dpp v{v}, v{v}, v{v} row_ror:{sft} row_mask:0xf bank_mask:0xf")
def xrow(op, v, tmp, both=True):
    if both:
        e(f"v_mov_b32 v{tmp}, v{v}"); e(f"v_permlane32_swap_b32 v{v}, v{tmp}"); e(f"v_{op}_f32 v{v}, v{v}, v{tmp}")
    e(f"v_mov_b32 v{tmp}, v{v}"); e(f"v_permlane16_swap_b32 v{v}, v{tmp}"); e(f"v_{op}_f32 v{v}, v{v}, v{tmp}")
QF = 28; DQ = 40; PA = 72; X = 24; vM = 26
def att_zero():
    for t in range(8): e(f"v_mov_b32 v{DQ+4*t}, 0"); e(f"v_mov_b32 v{DQ+4*t+1}, 0")
    for q in range(16): e(f"v_mov_b32 v{PA+q}, 0")
def q_finish(b, mid=None):
    e(f"v_readlane_b32 s{sT0}, v{b}, 15")
    e(f"s_mov_b32 vcc_lo, 0x70007000"); e(f"s_mov_b32 vcc_hi, 0x70007000")
    e(f"v_fma_f32 v{b+1}, -s{sT0}, v{vCS}, v{b}")
    e(f"v_cvt_pk_bf16_f32 v{b+1}, v{b+1}, v{b+1}")
    e(f"ds_write_b16 v{vQBw}, v{b+1}")
    e(f"v_cndmask_b32 v{b+2}, 0, v{b}, vcc")
    e(f"v_add_f32_dpp v{b+2}, v{b+2}, v{b+2} quad_perm:[1,0,3,2] row_mask:0xf bank_mask:0xf")
    e(f"v_add_f32_dpp v{b+2}, v{b+2}, v{b+2} quad_perm:[2,3,0,1] row_mask:0xf bank_mask:0xf")
    e(f"v_mov_b32 v{b+3}, v{b+2}"); e(f"v_permlane32_swap_b32 v{b+2}, v{b+3}"); e(f"v_add_f32 v{b+2}, v{b+2}, v{b+3}")
    if mid: mid()
    else: e("s_waitcnt lgkmcnt(0)"); e("s_barrier")
    for ks in range(3): e(f"ds_read_b128 {vr(QF+4*ks)}, v{vQBr} offset:{128*ks}")
    e(f"v_mov_b32 v{b+3}, v{b+2}"); e(f"v_mov_b32 v{b+1}, s{sT0}"); e(f"v_subrev_f32 v{b+1}, 0x44200000, v{b+1}")
    e(f"v_permlane16_swap_b32 v{b+2}, v{b+3}"); e(f"v_add_f32 v{b+2}, v{b+2}, v{b+3}")
    e(f"v_mul_f32 v{b}, 0x3acccccd, v{b+1}")
    e(f"v_readlane_b32 s{sT0}, v{b+2}, 15")
    e(f"v_mul_f32 v{b}, v{b}, v{b}"); e(f"s_mov_b32 s{sT1}, 0x3acccccd")
    e(f"v_sub_f32 v{b+2}, s{sT0}, v{b+1}")
    e(f"v_fma_f32 v{b+2}, v{b+2}, s{sT1}, -v{b}"); e(f"v_max_f32 v{b+2}, 0, v{b+2}"); e(f"v_add_f32 v{b+2}, 0x3727c5ac, v{b+2}")
    e(f"v_rsq_f32 v{b+2}, v{b+2}"); e(f"v_mul_f32 v{vSC}, 0x3dd53b94, v{b+2}")
def qk_softmax(fl=0):
    def fold(t): e(f"v_add_f32_dpp v{X+t//4}, v{DQ+4*t}, v{DQ+4*t+1} quad_perm:[0,1,2,3] row_mask:{1<<(t%4):#x} bank_mask:0xf")
    def mm(t, ks): e(f"v_smfmac_f32_16x16x64_bf16 {vr(DQ+4*t)}, {vr(QF+4*ks)}, {ar(24*t+8*ks, 8)}, v{vIdx}")
    for ks in range(3):
        e(f"s_waitcnt lgkmcnt({2-ks})")
        for t in range(8): mm(t, ks)
        if ks != 1: fill(fl)
    S = lambda t: X + t // 4 if t % 4 == 0 else DQ + 4 * t
    for t in range(8):
        e(f"v_add_f32 v{S(t)}, v{DQ+4*t}, v{DQ+4*t+1}")
        if t == 2: e(f"v_max3_f32 v{vM}, v{S(0)}, v{S(1)}, v{S(2)}")
        if t in (4, 6): e(f"v_max3_f32 v{vM}, v{vM}, v{S(t-1)}, v{S(t)}")
    e(f"v_max_f32 v{vM}, v{vM}, v{S(7)}")
    mv = [f"v_mov_b32_dpp v{X+t//4}, v{S(t)} quad_perm:[0,1,2,3] row_mask:{1<<(t%4):#x} bank_mask:0xf" for t in (1, 5, 2, 6, 3, 7)] + ["v_accvgpr_read_b32 v27, a252", "s_nop 0"]
    for sft in (8, 4, 2, 1):
        e(mv.pop(0)); e(mv.pop(0)); e(f"v_max_f32_dpp v{vM}, v{vM}, v{vM} row_ror:{sft} row_mask:0xf bank_mask:0xf")
    fill(fl)
    e(f"v_mul_f32 v{vM}, v{vM}, v{vSC}")
    for q in range(2): e(f"v_fma_f32 v{X+q}, v{X+q}, v{vSC}, -v{vM}")
    for q in range(2): e(f"v_exp_f32 v{X+q}, v{X+q}")
    e(f"v_cvt_pk_bf16_f32 v28, v{X}, v{X+1}")
    e(f"ds_write_b16 v{vPw}, v28"); e(f"ds_write_b16_d16_hi v{vPw}, v28 offset:128")
    setexec(0xFF00FF0000FF00FF)
    for u in range(4): e(f"ds_read_b128 {vr(PA+4*u)}, v27 offset:{64*u}")
    setexec(FULL)
    e(f"v_add_f32 v27, v{X}, v{X+1}")
    z = [f"v_mov_b32 v{F+4*dp}, 0" for dp in range(6)] + [f"s_lshl_b32 s{sT1}, s{sWV}, 3", f"s_add_u32 s{sT1}, s{sT1}, {ML4}"]
    for sft in (8, 4, 2, 1):
        e(z.pop(0)); e(z.pop(0)); e(f"v_add_f32_dpp v27, v27, v27 row_ror:{sft} row_mask:0xf bank_mask:0xf")
    xrow("add", 27, 28)
    e(f"v_mov_b32 v28, s{sT1}"); e(f"ds_write_b64 v28, v[26:27]")
def pv_step(u, order=range(6)):
    f, b = vblock(2 * u)
    for dp in order: e(f"v_smfmac_f32_16x16x64_bf16 {vr(F+4*dp)}, {vr(PA+4*u)}, {rg(f, b+8*dp, 8)}, v{vIdx} abid:1")
def pv_post():
    for q in range(3): e(f"v_permlane16_swap_b32 v{F+8*q}, v{F+8*q+4}"); e(f"v_add_f32 v{F+8*q}, v{F+8*q}, v{F+8*q+4}"); e(f"ds_write_b32 v{vAcc}, v{F+8*q} offset:{OACC+256*q}")

WT = [int(x) for x in OPT.get("wt", "2,3,3,0,4").split(",")]
assert sum(WT) == 12
sDo, sDm = 66, 67
ROT = int(OPT.get("rot", 0)); nwd = [0]
def wdma(n, tag=None):
    if "wo" in SKIP: return
    for _ in range(n):
        if ROT and nwd[0] == 6:
            e(f"s_bitcmp1_b32 s{sJ}, 0"); e(f"s_cselect_b32 s{sT1}, 12288, 0"); e(f"s_sub_u32 s{sDm}, s{sDm}, s{sT1}"); e(f"s_mul_i32 s{sT1}, s{sT1}, 20"); e(f"s_sub_u32 s{sDo}, s{sDo}, s{sT1}")
        nwd[0] += 1
        e(f"s_mov_b32 m0, s{sDm}"); e(f"s_add_u32 s{sDm}, s{sDm}, 1024")
        A.vmem(f"buffer_load_dwordx4 v39, {sr(sRA)}, s{sDo} offen {NTR} lds", tag, counted=tag is not None)
        e(f"s_add_u32 s{sDo}, s{sDo}, {16*1280}")
def wdma_addr():
    e(f"v_lshrrev_b32 v38, 2, v{vL}"); e("v_mul_u32_u24 v38, 1280, v38"); e(f"v_and_b32 v39, 3, v{vL}"); e("v_lshl_add_u32 v39, v39, 4, v38")
def role_dma():
    if "dma" in SKIP: return
    e(f"s_cmp_ge_u32 s{sJ}, 20"); e("s_cbranch_scc1 DMAF")
    e(f"s_lshl_b32 s{sDo}, s{sWV}, 3"); e(f"s_add_u32 s{sDo}, s{sDo}, s{sG}"); e(f"s_mul_i32 s{sDo}, s{sDo}, {192*1280}"); e(f"s_lshl_b32 s{sT1}, s{sJ}, 6"); e(f"s_add_u32 s{sDo}, s{sDo}, s{sT1}")
    e(f"s_mul_i32 s{sDm}, s{sWV}, 12288"); e(f"s_add_u32 s{sDm}, s{sDm}, {WO}")
    if ROT: e(f"s_bitcmp1_b32 s{sJ}, 0"); e(f"s_cselect_b32 s{sT1}, 6144, 0"); e(f"s_add_u32 s{sDm}, s{sDm}, s{sT1}"); e(f"s_mul_i32 s{sT1}, s{sT1}, 20"); e(f"s_add_u32 s{sDo}, s{sDo}, s{sT1}")
    if WT[0]: wdma_addr(); wdma(WT[0])
    lab("DMAX")
    def t():
        lab("DMAF"); fdma(); e("s_branch DMAX")
    tail.append(t)
def fdma():
    if True:
        e(f"v_lshrrev_b32 v38, 1, v{vL}"); e("v_mul_u32_u24 v38, 3072, v38"); e(f"v_and_b32 v39, 1, v{vL}"); e("v_lshl_add_u32 v38, v39, 4, v38")
        e(f"s_mul_i32 s{sT2}, s{sG}, 12"); e(f"s_add_u32 s{sT2}, s{sT2}, s{sJ}"); e(f"s_sub_u32 s{sT2}, s{sT2}, 20")
        e(f"s_mul_i32 s{sT0}, s{sWV}, {160*3072}"); e(f"s_lshl_b32 s{sT1}, s{sT2}, 5"); e(f"s_add_u32 s{sT0}, s{sT0}, s{sT1}")
        e(f"s_mul_i32 s{sT1}, s{sWV}, 5120")
        for n in range(5):
            e(f"s_add_u32 m0, s{sT1}, {W1+1024*n}"); e(f"buffer_load_dwordx4 v38, {sr(sRA)}, s{sT0} offen {NTR} lds")
            e(f"s_add_u32 m0, s{sT1}, {W3+1024*n}"); e(f"buffer_load_dwordx4 v38, {sr(sRB)}, s{sT0} offen {NTR} lds")
            if n < 4: e(f"s_add_u32 s{sT0}, s{sT0}, {32*3072}")
W2P = int(OPT.get("w2p", 0))
def w2dma(tag=None):
    e(f"s_mul_i32 s{sT2}, s{sG}, 12"); e(f"s_add_u32 s{sT2}, s{sT2}, s{sJ}"); e(f"s_sub_u32 s{sT2}, s{sT2}, 20"); e(f"s_mul_i32 s97, s{sWV}, 5120")
    e(f"s_mul_i32 s96, s{sT2}, 20480"); e(f"s_add_u32 s96, s96, s97")
    for n in range(5):
        e(f"s_add_u32 m0, s97, {W2+1024*n}"); A.vmem(f"buffer_load_dwordx4 v{vLin}, {sr(sRC)}, s96 offen {NTW} lds", tag, counted=tag is not None)
        if n < 4: e(f"s_add_u32 s96, s96, 1024")
CSL = int(OPT.get("csl", 1))
def cs_store():
    e(f"s_add_u32 s{sT0}, s{sLG}, {2*LS}"); lstore(f"buffer_store_dword v{vCS}, v{vQst}, {sr(sW)}, s{sT0} offen")
def addr_block():
    e(f"v_mov_b32 v109, v{vC1}")
    e(f"v_and_b32 v25, 15, v{vL}"); e(f"v_lshrrev_b32 v26, 4, v{vL}"); e("v_add_u32 v27, 4, v26")
    rowbase(vC1, 26, oFG, oFL, None, 28); rowbase(vC2, 27, oFG, oFL, None, 28)
    e(f"s_min_u32 s{sT3}, s{sJ}, 19"); e(f"s_lshl_b32 s{sT3}, s{sT3}, 6"); e(f"v_lshl_add_u32 v25, v25, 2, s{sT3}")
    e(f"v_add_u32 v{vC1}, v{vC1}, v25"); e(f"v_add_u32 v{vC2}, v{vC2}, v25")
    fill()
    e(f"v_and_b32 v25, 15, v{vL}"); e(f"v_bfe_u32 v27, v{vL}, 2, 2"); e(f"v_and_b32 v28, 3, v{vL}")
    e(f"s_mul_i32 s{sT3}, s{sWV}, 12288"); e(f"s_add_u32 s{sT3}, s{sT3}, {WO}")
    e("v_lshl_add_u32 v29, v26, 3, v27"); e("v_lshlrev_b32 v29, 6, v29"); e("v_lshl_add_u32 v29, v28, 3, v29"); e(f"v_add_u32 v29, s{sT3}, v29"); e("v_accvgpr_write_b32 a246, v29")
    e(f"s_mul_i32 s{sT3}, s{sWV}, 3072"); e(f"s_add_u32 s{sT3}, s{sT3}, {oO}")
    e(f"v_lshl_add_u32 v29, v25, 4, s{sT3}"); e("v_lshl_add_u32 v29, v26, 7, v29"); e("v_accvgpr_write_b32 a247, v29")
    e(f"s_lshl_b32 s{sT3}, s{sWV}, 6"); e(f"s_add_u32 s{sT3}, s{sT3}, {oML}"); e("v_and_b32 v29, 1, v26"); e(f"v_lshl_add_u32 v29, v29, 5, s{sT3}"); e("v_accvgpr_write_b32 a248, v29")
    e(f"s_lshl_b32 s{sT3}, s{sWV}, 8"); e(f"s_add_u32 s{sT3}, s{sT3}, {ACC+YACC}"); e(f"v_lshl_add_u32 v29, v{vL}, 2, s{sT3}"); e("v_accvgpr_write_b32 a249, v29")
    e(f"s_lshl_b32 s{sYl}, s{sJ}, 6"); e(f"s_mul_i32 s{sYg}, s{sG}, 1280"); e(f"s_add_u32 s{sYg}, s{sYg}, s{sYl}"); e(f"s_add_u32 s{sYg}, s{sYg}, {oYG}")
    e(f"s_add_u32 s{sYl}, s{sYl}, s{sLG}"); e(f"s_add_u32 s{sYl}, s{sYl}, {oYL}")
A.wait("x")
for q in range(5): e(f"v_lshlrev_b32 v{88+2*q}, 16, v{80+q}"); e(f"v_and_b32 v{89+2*q}, 0xffff0000, v{80+q}")
e("v_add_f32 v80, v88, v89")
for q in range(2, 10): e(f"v_add_f32 v80, v80, v{88+q}")
rowred("add", 80, None, (8, 4, 2, 1)); xrow("add", 80, 81)
e("v_mul_f32 v80, 0x3acccccd, v80")
for q in range(10): e(f"v_sub_f32 v{88+q}, v{88+q}, v80")
e("v_mul_f32 v82, v88, v88")
for q in range(1, 10): e(f"v_fmac_f32 v82, v{88+q}, v{88+q}")
fill()
rowred("add", 82, None, (8, 4, 2, 1)); xrow("add", 82, 81)
e("v_mul_f32 v82, 0x3acccccd, v82"); e("v_add_f32 v82, 0x3727c5ac, v82"); e("v_rsq_f32 v82, v82")
e("s_mov_b32 vcc_lo, 0xaaaaaaaa"); e("s_mov_b32 vcc_hi, 0xaaaaaaaa"); e("v_mov_b32 v85, 0x3f803f80")
for q in range(10):
    e(f"v_lshlrev_b32 v83, 16, v{70+q}"); e(f"v_and_b32 v84, 0xffff0000, v{70+q}"); e("v_sub_f32 v83, v83, v80"); e("v_sub_f32 v84, v84, v80")
    e("v_mul_f32 v83, v83, v82"); e("v_mul_f32 v84, v84, v82"); e("v_cvt_pk_bf16_f32 v83, v83, v84"); e(f"v_cndmask_b32 v{70+q}, v83, v85, vcc")
    if q == 5: fill()
ahead("wq", int(OPT.get("lax", 6))); A.wait("wq"); e("s_barrier"); wq_frags(); fill(2)
stamp(1)
e(f"s_mul_i32 s{sT2}, s{sWV}, 96"); e(f"s_add_u32 s{sT2}, s{sT2}, {ACC}"); e(f"v_min_u32 v36, 48, v{vL}"); e(f"v_lshl_add_u32 v36, v36, 1, s{sT2}")
e(f"v_mov_b32 v37, {ACC+512}"); e(f"v_cmp_le_u32 vcc, 48, v{vL}"); e("v_cndmask_b32 v36, v36, v37, vcc"); e(f"v_add_u32 v37, {ACC}, v{vLin}")
e("s_waitcnt lgkmcnt(0)")
for kk in range(3):
    for t in range(3):
        n = 4 if kk < 2 else 2
        e(f"v_mfma_f32_16x16x{32 if kk<2 else 16}_bf16 {vr(T+4*t)}, {vr(70+4*kk,n)}, {vr(F+10*t+4*kk,n)}, " + ("0" if kk == 0 else vr(T + 4 * t)))
fill()
e(f"v_mov_b32 v{vCS}, v{T+1}")
for t in (1, 2):
    e(f"v_mov_b32_dpp v{T}, v{T+4*t} quad_perm:[0,1,2,3] row_mask:{1<<t:#x} bank_mask:0xf"); e(f"v_mov_b32_dpp v{vCS}, v{T+4*t+1} quad_perm:[0,1,2,3] row_mask:{1<<t:#x} bank_mask:0xf")
e(f"v_cvt_pk_bf16_f32 v{T}, v{T}, v{T}"); e(f"ds_write_b16 v36, v{T}")
fill(2)
e("s_waitcnt lgkmcnt(0)"); e("s_barrier")
e(f"ds_read_b128 v[28:31], v37"); e(f"s_mul_i32 s{sT2}, s{sJ}, 384"); e(f"s_add_u32 s{sT2}, s{sT2}, s{sLG}")
e(f"s_cmp_eq_u32 s{sWV}, 0"); e(f"s_cselect_b32 exec_lo, 0xffffff, 1"); e("s_mov_b32 exec_hi, 0"); e(f"s_cselect_b32 s{sT1}, 0, {OOB-0x10000000}"); e(f"v_add_u32 v37, s{sT1}, v{vLin}")
e("s_waitcnt lgkmcnt(0)")
if "qst" not in SKIP: A.vmem(f"buffer_store_dwordx4 v[28:31], v37, {sr(sW)}, s{sT2} offen sc1", "qst")
setexec(FULL)
Krel(0)
ahead("qst", int(OPT.get("laq", 9))); atomic_block()
Krel(1); Krel(2)
RT = int(OPT.get("rt", 8))
DT = int(OPT.get("dt", 7))
rdy = ["global_load_dword v99, v98, s[64:65] sc1"]
e(f"v_lshlrev_b32 v98, 2, v{vL}")
def ld(t): Kld(t) if t < 8 else Vld(t - 8)
def rel(t): Krel(t) if t < 8 else Vrel(t - 8)
for t in range(5, RT + 2):
    ld(t)
    if t == DT: stamp(12); role_dma()
    if t == RT and "atom" not in SKIP: A.vmem(rdy[0], "rdy"); stamp(2, "s100")
    if t == 7: addr_block()
    rel(t - 2)
def rdycheck():
    e("v_sad_u8 v100, v99, 0, 0")
    e("v_add_u32_dpp v100, v100, v100 quad_perm:[1,0,3,2] row_mask:0xf bank_mask:0xf")
    e("v_add_u32_dpp v100, v100, v100 quad_perm:[2,3,0,1] row_mask:0xf bank_mask:0xf")
    e("v_cmp_gt_u32 vcc, 32, v100"); e("s_mov_b32 vcc_hi, 0"); e("s_cmp_eq_u64 vcc, 0")
ahead("rdy"); A.wait("rdy"); e(f"s_mov_b32 s{sCnt}, -1"); rdycheck(); e("s_cbranch_scc0 RDYLOOP") if "rdy" not in SKIP else None; lab("RDYOK")
stamp(13, f"s{sCnt}")
def t_():
    lab("RDYLOOP")
    if SPM == "rdy": e("v_accvgpr_read_b32 v100, a253"); e("v_add_u32 v100, 2000, v100"); e("v_accvgpr_write_b32 a253, v100")
    e(f"s_mov_b32 s{sCnt}, 0"); lab("RDYL2"); e("s_sleep 24"); e(rdy[0]); e("s_waitcnt vmcnt(0)"); rdycheck(); e("s_cbranch_scc1 RDYOK")
    e(f"s_add_u32 s{sCnt}, s{sCnt}, 1"); e(f"s_cmp_lt_u32 s{sCnt}, {LIMIT}"); e("s_cbranch_scc1 RDYL2"); e("s_branch RDYOK")
tail.append(t_)
e(f"v_readlane_b32 s{sT0}, v99, s{sXcc}"); e(f"s_cmp_eq_u32 s{sT0}, s96"); e(f"s_cselect_b32 s{sWp+2}, s{sW+2}, 0")
assert not any(t[0] == "K" for _, t in pend) and DT <= RT + 1
if FORCESLOW: e(f"s_mov_b32 s{sWp+2}, 0")
for d_ in (sWp,): e(f"s_mov_b32 s{d_}, s{sW}"); e(f"s_mov_b32 s{d_+1}, s{sW+1}"); e(f"s_mov_b32 s{d_+3}, 0x20000")
stamp(2)
if "pre" not in SKIP:
    A.vmem(f"buffer_load_dwordx4 a[240:243], v109, {sr(sW)}, 0 offen sc1", "pre")
def fp_addr(d):
    e(f"v_lshrrev_b32 v{d}, 3, v{vL}"); e(f"v_mul_u32_u24 v{d}, 2560, v{d}"); e(f"v_and_b32 v{d+1}, 7, v{vL}"); e(f"v_lshl_add_u32 v{d}, v{d+1}, 4, v{d}")
    e(f"s_lshl_b32 s{sT0}, s{sJ}, 7"); e(f"s_add_u32 s{sT0}, s{sT0}, s{sLG}"); e(f"s_add_u32 s{sT0}, s{sT0}, {oFP}")
    e(f"s_cmp_lt_u32 s{sJ}, 20"); e(f"s_cselect_b32 s{sT0}, s{sT0}, {OOB-0x10000000}"); e(f"s_cmp_eq_u32 s{sWV}, 3"); e(f"s_cselect_b32 s{sT0}, s{sT0}, {OOB-0x10000000}")
    e(f"v_add_u32 v{d}, s{sT0}, v{d}"); e(f"v_add_u32 v{d+1}, {8*2560}, v{d}"); e(f"v_mov_b32 v{d+2}, {OOB}"); e(f"v_cmp_le_u32 vcc, 32, v{vL}"); e(f"v_cndmask_b32 v{d+1}, v{d+1}, v{d+2}, vcc")
fp_addr(106)
for q in range(2):
    if "pre" not in SKIP: A.vmem(f"buffer_load_dwordx4 a[240:243], v{106+q}, {sr(sW)}, 0 offen sc1", "pre")
    e(f"v_accvgpr_write_b32 a{250+q}, v{106+q}")
e(f"s_mul_i32 s{sT0}, s{sHH}, 3072"); e(f"s_mul_i32 s{sT1}, s{sWV}, 96"); e(f"s_add_u32 s{sT0}, s{sT0}, s{sT1}"); e(f"s_add_u32 s{sT0}, s{sT0}, s{sLG}")
e(f"v_lshrrev_b32 v24, 4, v{vL}"); e("v_mul_u32_u24 v24, 384, v24"); e(f"v_and_b32 v25, 15, v{vL}"); e("v_min_u32 v25, 11, v25"); e("v_lshl_add_u32 v24, v25, 3, v24")
for q in range(2):
    if "qg" not in SKIP: A.vmem(f"buffer_load_dwordx2 v[{64+2*q}:{65+2*q}], v24, {sr(sW)}, s{sT0} offen offset:{1536*q} sc1", "qg")
def pack_store16(d, instr_fn):
    for q in (1, 2, 3): e(f"v_mov_b32_dpp v{d+q}, v{d} quad_perm:[{q},{q},{q},{q}] row_mask:0xf bank_mask:0xf")
    setexec(0x1111); instr_fn(); setexec(FULL)
e(f"s_cmp_lg_u32 s{sWV}, 1"); e("s_cbranch_scc1 NOBASE0"); e(f"s_cmp_ge_u32 s{sJ}, 20"); e("s_cbranch_scc1 NOBASE0")
e(f"v_mov_b32 v28, v{vXR}"); e(f"s_lshl_b32 s{sT0}, s{sJ}, 6"); e(f"s_add_u32 s{sT0}, s{sT0}, s{sLG}"); e(f"s_add_u32 s{sT0}, s{sT0}, {oBA}"); e(f"v_lshlrev_b32 v27, 2, v{vL}")
pack_store16(28, lambda: lstore(f"buffer_store_dwordx4 v[28:31], v27, {sr(sW)}, s{sT0} offen"))
lab("NOBASE0")
stamp(3)
for t in range(RT, RT + 3): rel(t)
ahead("qg"); A.wait("qg")
for q in range(4): e(f"v_lshlrev_b32 v{T+2*q}, 16, v{64+q}"); e(f"v_and_b32 v{T+2*q+1}, 0xffff0000, v{64+q}")
qsum(T)
e(f"v_cvt_pk_bf16_f32 v{T}, v{T}, v{T}"); e(f"ds_write_b16 v{vQBw}, v{T}")
fill(); att_zero()
stamp(4)
fill(2); e("s_waitcnt lgkmcnt(0)"); e("s_barrier")
for ks in range(3): e(f"ds_read_b128 {vr(QF+4*ks)}, v{vQBr} offset:{128*ks}")
e(f"v_mov_b32 v{vSC}, 0x3dd53b94")
qk_softmax(fl=1)
stamp(5)
hold.clear()
for t in range(RT + 3, 12): rel(t)
fill(2)
e("s_waitcnt lgkmcnt(0)"); pv_step(0); fill(); pv_step(1)
Vrel(4); Vld(7); Vrel(5)
e(f"v_and_b32 v{vXR+1}, 0xffff0000, v{vXR}"); e(f"v_lshlrev_b32 v{vXR}, 16, v{vXR}")
PT_ = [int(x) for x in OPT.get("pt", "7,3").split(",")]
PTF = int(OPT.get("ptf", 1))
def late_pf(w, k0, n):
    if "wo" in SKIP: return
    for k in range(k0, k0 + n):
        if k % 4 == 0 and k: e(f"s_add_u32 s{sPo}, s{sPo}, 4096")
        A.vmem(f"buffer_load_dwordx4 a[240:243], v{vLin}, {sr(sWQ)}, s{sPo} offen offset:{1024*(k%4)} {NTP}", "pfo")
for m_, r_ in ((0x0101010101010101, 82), (ROWS9, 84), ((1 << 60) - 1, 86), (0xFF00FF0000FF00FF, 88), (0x01010101, 92)):
    e(f"s_mov_b32 s{r_}, {m_ & 0xffffffff:#x}"); e(f"s_mov_b32 s{r_+1}, {m_ >> 32:#x}"); MASKS[m_] = r_
def stream_tail(w):
    save = list(A.vm)
    pf = sum(PT_) and not (PTF and w)
    if pf and not PTF:
        e(f"s_lshl_b32 s{sPo}, s{sHH}, 3"); e(f"s_add_u32 s{sPo}, s{sPo}, s{sG}"); e(f"s_lshl_b32 s{sPo}, s{sPo}, 3"); e(f"s_add_u32 s{sPo}, s{sPo}, s{sS}")
        e(f"s_lshl_b32 s{sPo}, s{sPo}, 2"); e(f"s_add_u32 s{sPo}, s{sPo}, s{sWV}"); e(f"s_mul_i32 s{sPo}, s{sPo}, 7680")
    if pf and PTF:
        e(f"s_lshl_b32 s{sPo}, s{sWV}, 3"); e(f"s_add_u32 s{sPo}, s{sPo}, s{sG}"); e(f"s_mul_i32 s{sPo}, s{sPo}, 24"); e(f"s_add_u32 s{sPo}, s{sPo}, s{sJ}")
        e(f"s_sub_u32 s{sPo}, s{sPo}, 8"); e(f"s_mul_i32 s{sPo}, s{sPo}, 10240")
    if pf: late_pf(w, 0, PT_[0])
    if w: wdma_addr(); wdma(WT[1], "wo")
    e("s_waitcnt lgkmcnt(0)"); pv_step(2)
    Vrel(6)
    if pf: late_pf(w, PT_[0], PT_[1])
    if w: wdma(WT[2], "wo")
    if not w and W2P == 1: w2dma("w2")
    x = len(A.vm) - 6
    f_, b_ = vblock(8)
    for i in range(6):
        e(f"s_waitcnt vmcnt({5-i+x})"); e(f"ds_write_b128 v{vWr+i%3}, {rg(f_, b_+4*i, 4)} offset:{(i//3)*8*RS}")
    f_, b_ = vblock(6)
    for dt in range(12): e(f"ds_read_b64_tr_b16 {rg(f_, b_+4*dt+2, 2)}, v{vVrd} offset:{32*dt}")
    if w: wdma(WT[3], "wo")
    if not w and W2P == 2: w2dma("w2")
    e("s_branch ATT_LAST")
    A.vm = save
e(f"s_cmp_ge_u32 s{sJ}, 20"); e("s_cbranch_scc1 TAILF")
stream_tail(True)
lab("TAILF")
stream_tail(False)
A.drained()
flush_near()

lab("LOOP")
e(f"s_cmp_lt_u32 s{sJ}, 20"); e(f"s_cselect_b32 s{sXcc}, s{sWV}, 4")
e(f"s_add_u32 s96, s{sLG}, {LS}"); e("s_add_u32 s97, s96, 4096")
if int(OPT.get("cspl", 1)):
    for l in qloads(88, "s96", "s97"): e(l)
wq_frags()
e(f"v_and_b32 v25, 15, v{vL}"); e("v_cmp_eq_u32 vcc, 12, v25"); e("v_mov_b32 v36, 0x3f803f80"); e(f"v_cndmask_b32 v70, 0, v36, vcc")
for q in range(1, 10): e(f"v_mov_b32 v{70+q}, v70")
e(f"s_add_u32 s{sT2}, s{sLG}, 4096")
e(f"s_mul_i32 s{sT0}, s{sWV}, {SCRW}")
e(f"v_mul_u32_u24 v26, 103, v{vL}"); e("v_lshrrev_b32 v26, 10, v26"); e(f"v_lshl_add_u32 v26, v26, 4, v{vLin}"); e(f"v_add_u32 v26, s{sT0}, v26")
e(f"v_mul_u32_u24 v27, 176, v25"); e(f"v_add_u32 v27, s{sT0}, v27"); e(f"v_lshrrev_b32 v28, 4, v{vL}"); e("v_lshl_add_u32 v29, v28, 3, v27"); e("v_lshl_add_u32 v27, v28, 4, v27")
e(f"s_mul_i32 s{sT0}, s{sS}, 160"); e(f"s_add_u32 s{sT0}, s{sT0}, s{sLG}"); e(f"s_sub_u32 s{sT0}, s{sT0}, {LS-oFL}")
e("s_waitcnt lgkmcnt(0)")
gate(sT0, 10, 24)
setexec((1 << 60) - 1)
def bounce(groups, tmp, writes, reads, first=None, w1=0):
    k = nid(); allr = [r for g in groups for r in g[1]]
    for g in groups:
        for l in g[0]: e(l)
    if first: first()
    e(f"s_waitcnt vmcnt({w1})")
    lab(f"BW{k}")
    for x in writes: e(x)
    check(allr, tmp)
    setexec(ROWS9)
    for x in reads: e(x)
    setexec(FULL)
    e(f"s_cbranch_vccnz BR{k}")
    lab(f"BX{k}")
    def t():
        lab(f"BR{k}")
        e(f"s_cmp_ge_u32 s{sCnt}, {LIMIT}"); e(f"s_cbranch_scc1 BX{k}")
        lab(f"BL{k}")
        for gi, (ls, rs) in enumerate(groups):
            setexec((1 << 60) - 1); check(rs, tmp); e("s_mov_b64 exec, vcc"); e(f"s_cbranch_execz BS{k}_{gi}")
            for l in ls: e(l)
            lab(f"BS{k}_{gi}")
        setexec((1 << 60) - 1)
        e(f"s_add_u32 s{sCnt}, s{sCnt}, 1"); e(f"s_cmp_ge_u32 s{sCnt}, {LIMIT}")
        e("s_waitcnt vmcnt(0)")
        check(allr, tmp)
        e(f"s_cbranch_vccz BW{k}"); e(f"s_cbranch_scc0 BL{k}"); e(f"s_branch BW{k}")
    near.append(t)
assert GATE
bounce([([f"buffer_load_dwordx4 v[80:83], v{vAq}, {sr(sW)}, 0 offen sc1"], [80]), ([f"buffer_load_dwordx4 v[84:87], v{vAq16}, {sr(sW)}, 0 offen sc1"], [84])], 24,
       ["ds_write_b128 v26, v[80:83]", f"ds_write_b128 v26, v[84:87] offset:{6*176}"],
       ["ds_read_b128 v[70:73], v27", "ds_read_b128 v[74:77], v27 offset:64", "ds_read_b64 v[78:79], v29 offset:128"],
       first=lambda: [e(l) for l in qloads(88, "s96", "s97")], w1=2)
stamp(1)
e(f"s_cmp_lg_u32 s{sXcc}, 1"); e("s_cbranch_scc1 NOOWL")
e(f"buffer_load_dword a244, v{vC1}, {sr(sW)}, 0 offen sc1"); e(f"buffer_load_dword a245, v{vC2}, {sr(sW)}, 0 offen sc1")
lab("NOOWL")
qstage(70, f"s{sLG}", waits=True)
stamp(2)
att_zero()
e(f"s_waitcnt vmcnt({2 if STAMP == 1 else 1})"); qsum(88); e(f"v_mul_f32 v{vCS}, 0x3acccccd, v88")
poll_nan(qloads(T, f"s{sLG}", f"s{sT2}"), lambda: qsum(T), T)
stamp(3)
q_finish(T)
stamp(4)
qk_softmax()
stamp(5)
for u in range(3):
    e(f"s_waitcnt lgkmcnt({4-u})"); pv_step(u)
e("s_waitcnt lgkmcnt(0)")
lab("ATT_LAST")
for dp in range(6):
    if dp % 2 == 0: e(f"s_waitcnt lgkmcnt({8-2*dp})")
    pv_step(3, [dp])
def pack8(v):
    e(f"v_mov_b32_dpp v{v+1}, v{v} row_shl:1 row_mask:0xf bank_mask:0xf"); e(f"v_cvt_pk_bf16_f32 v{v}, v{v}, v{v+1}")
    for q in (1, 2, 3): e(f"v_mov_b32_dpp v{v+q}, v{v} row_shl:{2*q} row_mask:0xf bank_mask:0xf")
e(f"s_lshl_b32 s{sT0}, s{sWV}, 8"); e(f"s_add_u32 s{sT0}, s{sT0}, {ACC+OACC}"); e(f"v_lshl_add_u32 v24, v{vL}, 2, s{sT0}")
pv_post()
e(f"v_and_b32 v25, 3, v{vL}"); e(f"v_lshlrev_b32 v25, 3, v25"); e(f"v_add_u32 v25, {ML4}, v25")
e("s_waitcnt lgkmcnt(0)"); e("s_barrier")
stamp(6)
e("ds_read_b64 v[32:33], v25"); e("ds_read2st64_b32 v[40:41], v24 offset0:0 offset1:3"); e("ds_read2st64_b32 v[42:43], v24 offset0:6 offset1:9")
e(f"s_mul_i32 s{sT0}, s{sHH}, 3072"); e(f"s_lshl_b32 s{sT1}, s{sS}, 4"); e(f"s_add_u32 s{sT0}, s{sT0}, s{sT1}"); e(f"s_lshl_b32 s{sT1}, s{sWV}, 10"); e(f"s_add_u32 s{sT0}, s{sT0}, s{sT1}")
e(f"s_add_u32 s{sT0}, s{sT0}, s{sLG}"); e(f"s_add_u32 s{sT0}, s{sT0}, {oO}")
e(f"s_lshl_b32 s{sT1}, s{sJ}, 3"); e(f"s_add_u32 s{sT1}, s{sT1}, s{sLG}"); e(f"s_add_u32 s{sT1}, s{sT1}, {oML}"); e(f"s_cmp_eq_u32 s{sWV}, 3")
e("s_waitcnt lgkmcnt(2)")
e("v_max_f32_dpp v34, v32, v32 quad_perm:[1,0,3,2] row_mask:0xf bank_mask:0xf"); e("v_max_f32_dpp v34, v34, v34 quad_perm:[2,3,0,1] row_mask:0xf bank_mask:0xf")
e("v_sub_f32 v32, v32, v34"); e("v_exp_f32 v32, v32")
e("s_cbranch_scc1 OML"); e("s_waitcnt lgkmcnt(0)")
e("v_mul_f32_dpp v28, v32, v40 quad_perm:[0,0,0,0] row_mask:0xf bank_mask:0xf"); e("v_mul_f32_dpp v29, v32, v41 quad_perm:[1,1,1,1] row_mask:0xf bank_mask:0xf")
e("v_mul_f32_dpp v30, v32, v42 quad_perm:[2,2,2,2] row_mask:0xf bank_mask:0xf"); e("v_fmac_f32_dpp v28, v32, v43 quad_perm:[3,3,3,3] row_mask:0xf bank_mask:0xf")
e("v_add_f32 v29, v29, v30"); e("v_add_f32 v28, v28, v29")
pack8(28)
setexec(0x0101010101010101)
lstore(f"buffer_store_dwordx4 v[28:31], v{vLin}, {sr(sW)}, s{sT0} offen")
setexec(FULL)
def t_():
    lab("OML")
    e("v_mul_f32 v35, v32, v33")
    e("v_add_f32_dpp v35, v35, v35 quad_perm:[1,0,3,2] row_mask:0xf bank_mask:0xf"); e("v_add_f32_dpp v35, v35, v35 quad_perm:[2,3,0,1] row_mask:0xf bank_mask:0xf")
    setexec(1); lstore(f"buffer_store_dwordx2 v[34:35], v{vLin}, {sr(sW)}, s{sT1} offen"); setexec(FULL)
    e("s_waitcnt lgkmcnt(0)"); e("s_branch ODONE")
near.append(t_)
lab("ODONE")
if STAMP == 3 and "land" in SKIP:
    e(f"s_cmp_ge_u32 s{sJ}, 20"); e("s_cbranch_scc1 LND"); wdma_addr(); wdma(WT[4]); lab("LND"); e("s_waitcnt vmcnt(0)")
stamp(7)
if STAMP == 3: e("s_endpgm")
e(f"s_cmp_ge_u32 s{sJ}, 20"); e("s_cbranch_scc1 ROLEF")
def owner_add():
    e("v_lshlrev_b32 v30, 16, v28"); e("v_and_b32 v28, 0xffff0000, v28"); e("v_lshlrev_b32 v31, 16, v29"); e("v_and_b32 v29, 0xffff0000, v29")
    e("v_add_f32 v30, v30, v31"); e("v_add_f32 v28, v28, v29")
    e("v_mov_b32 v31, v30"); e("v_mov_b32 v29, v28"); e("v_permlane32_swap_b32 v30, v31"); e("v_permlane32_swap_b32 v28, v29"); e("v_add_f32 v30, v30, v31"); e("v_add_f32 v28, v28, v29")
    e("v_mov_b32 v31, v30"); e("v_mov_b32 v29, v28"); e("v_permlane16_swap_b32 v30, v31"); e("v_permlane16_swap_b32 v28, v29"); e("v_add_f32 v30, v30, v31"); e("v_add_f32 v28, v28, v29")
    e(f"v_add_f32 v{vXR}, v{vXR}, v30"); e(f"v_add_f32 v{vXR+1}, v{vXR+1}, v28")
    e(f"v_cvt_pk_bf16_f32 v28, v{vXR}, v{vXR+1}")
def own_loads(a0, a1, soff): return [f"buffer_load_dword v28, v{a0}, {sr(sW)}, {soff} offen sc1", f"buffer_load_dword v29, v{a1}, {sr(sW)}, {soff} offen sc1"]
def base_store(ob):
    e(f"s_lshl_b32 s{sT0}, s{sJ}, 6"); e(f"s_add_u32 s{sT0}, s{sT0}, s{sLG}"); e(f"s_add_u32 s{sT0}, s{sT0}, {ob}"); e(f"v_lshlrev_b32 v37, 2, v{vL}")
    pack_store16(28, lambda: lstore(f"buffer_store_dwordx4 v[28:31], v37, {sr(sW)}, s{sT0} offen"))
e(f"s_cmp_eq_u32 s{sLay}, 0"); e("s_cbranch_scc1 WLATE")
def t_():
    lab("WLATE")
    if WT[4]: wdma_addr(); wdma(WT[4])
    if "cs" not in SKIP: cs_store()
    e(f"s_cmp_lg_u32 s{sWV}, 3"); e("s_cbranch_scc1 NOFPC")
    for q in range(4): e(f"v_mov_b32 v{24+q}, -1")
    for q in range(2 if "fpc" not in SKIP else 0): e(f"v_accvgpr_read_b32 v{28+q}, a{250+q}"); lstore(f"buffer_store_dwordx4 v[24:27], v{28+q}, {sr(sW)}, 0 offen")
    lab("NOFPC")
    for q in range(3): e(f"v_accvgpr_read_b32 v{2+q}, a{246+q}")
    for r_ in [SPARE + 4 * kk for kk in range(6)] + [25, 27, 37, 39]: e(f"v_mov_b32 v{r_}, 0")
    for x in fl0: e(x)
    e("s_waitcnt vmcnt(8)")
    for x in trs[:10]: e(x)
    wfirst(); e("s_branch WCHK")
near.append(t_)
for q in range(3): e(f"v_accvgpr_read_b32 v{2+q}, a{246+q}")
for kk in range(6): e(f"v_mov_b32 v{SPARE+4*kk}, 0")
trs = [f"ds_read_b64_tr_b16 {vr(F+24*t+4*kk+2*h,2)}, v2 offset:{(32*kk+4*h)*64+32*t}" for kk in range(6) for t in range(2) for h in range(2)]
for x in trs[:10]: e(x)
e(f"s_cmp_lg_u32 s{sWV}, 1"); e("s_cbranch_scc1 NOOWN0")
e("v_accvgpr_read_b32 v28, a244"); e("v_accvgpr_read_b32 v29, a245")
late_check("none", own_loads(vC1, vC2, "0"), [28, 29], 30)
owner_add(); base_store(oBA)
lab("NOOWN0")
MLR = [24, 36]
for q in (25, 27, 37, 39): e(f"v_mov_b32 v{q}, 0")
def wfirst():
    for x in trs[10:]: e(x)
    e("v_accvgpr_read_b32 v5, a249"); e(f"v_lshlrev_b32 v18, 1, v{vL}")
ol = [f"buffer_load_dwordx4 {vr(SPARE+4*kk)}, v3, {sr(sW)}, s{sLG} offen offset:{512*kk} sc1" for kk in range(6)]
ml = [f"buffer_load_dwordx4 {vr(MLR[q])}, v4, {sr(sW)}, s{sLG} offen offset:{16*q} sc1" for q in range(2)]
fl0 = ["s_mov_b32 exec_lo, 0x00ff00ff", "s_mov_b32 exec_hi, 0x00ff00ff"] + ol + ["s_mov_b32 exec_lo, -1", "s_mov_b32 exec_hi, 0"] + ml + ["s_mov_b64 exec, -1"]
poll_sel([(ol, [SPARE + 4 * kk for kk in range(6)]), (ml, [25, 27, 37, 39])], 28, pid=7, first=wfirst, firstloads=fl0, wl="WCHK")
e("s_waitcnt lgkmcnt(0)")
stamp(8)
M_, U_, L_ = SPARE, SPARE + 1, SPARE + 2
mm_ = [24, 26, 36, 38]
co = [[], [f"v_max3_f32 v{M_}, v24, v26, v36", f"v_max_f32 v{M_}, v{M_}, v38"], [f"v_mov_b32 v{U_}, v{M_}"], [f"v_permlane16_swap_b32 v{M_}, v{U_}", f"v_max_f32 v{M_}, v{M_}, v{U_}"],
      [f"v_sub_f32 v24, v24, v{M_}", f"v_sub_f32 v26, v26, v{M_}"], [f"v_sub_f32 v36, v36, v{M_}", f"v_sub_f32 v38, v38, v{M_}"],
      ["v_exp_f32 v24, v24"], ["v_exp_f32 v26, v26"], ["v_exp_f32 v36, v36"], ["v_exp_f32 v38, v38"],
      [f"v_mul_f32 v{L_}, v24, v25", f"v_fmac_f32 v{L_}, v26, v27"], [f"v_fmac_f32 v{L_}, v36, v37", f"v_fmac_f32 v{L_}, v38, v39"]]
for kk in range(6):
    for t in range(2):
        c = "0" if kk == 0 else vr(28 + 4 * t)
        e(f"v_mfma_f32_16x16x32_bf16 {vr(28+4*t)}, {vr(SPARE+4*kk)}, {vr(F+24*t+4*kk)}, {c}")
        for x in co.pop(0): e(x)
e(f"v_mov_b32 v{U_}, v{L_}"); e(f"s_cmp_lg_u32 s{sWV}, 0"); e(f"v_permlane16_swap_b32 v{L_}, v{U_}"); e(f"v_add_f32 v{L_}, v{L_}, v{U_}"); e(f"v_rcp_f32 v{L_}, v{L_}")
for t in range(2): e(f"v_mul_f32 v{28+4*t}, v24, v{28+4*t}")
for q in range(1, 4):
    for t in range(2): e(f"v_fmac_f32 v{28+4*t}, v{mm_[q]}, v{28+4*t+q}")
e("v_permlane16_swap_b32 v28, v32"); e("v_add_f32 v28, v28, v32"); e(f"v_mul_f32 v28, v28, v{L_}")
e(f"ds_write_b32 v5, v28")
e("s_waitcnt lgkmcnt(0)"); e("s_barrier")
e("s_cbranch_scc1 WNOT0")
e("ds_read2st64_b32 v[28:29], v5 offset0:0 offset1:1"); e("ds_read2st64_b32 v[30:31], v5 offset0:2 offset1:3")
e("s_waitcnt lgkmcnt(1)"); e("v_add_f32 v28, v28, v29"); e("s_waitcnt lgkmcnt(0)"); e("v_add_f32 v30, v30, v31"); e("v_add_f32 v28, v28, v30")
pack8(28)
setexec(0x01010101)
e(f"buffer_store_dwordx4 v[28:31], v18, {sr(sW)}, s{sYg} offen sc1")
lstore(f"buffer_store_dwordx4 v[28:31], v18, {sr(sW)}, s{sYl} offen")
setexec(FULL)
stamp(9); stamp(9, "c")
e(f"v_lshrrev_b32 v37, 5, v{vL}"); e("v_mul_u32_u24 v37, 2560, v37"); e(f"v_and_b32 v38, 31, v{vL}"); e("v_lshl_add_u32 v37, v38, 2, v37")
for k in range(1, 6): e(f"v_add_u32 v{F+k}, {5120*k}, v37")
e(f"s_lshl_b32 s{sT2}, s{sJ}, 7"); e(f"s_add_u32 s{sT2}, s{sT2}, s{sLG}"); e(f"s_add_u32 s{sT2}, s{sT2}, {oFP}")
e(f"s_add_u32 s96, s{sYg}, {oFG-oYG}"); e(f"s_add_u32 s97, s{sYl}, {oFL-oYL}"); e(f"v_lshlrev_b32 v39, 1, v{vL}")
e(f"s_cmp_lg_u32 s{sLay}, 0"); e("s_cbranch_scc1 NOLC")
if "lc" in SKIP: e("s_branch NOLC")
e(f"s_mul_i32 s{sT0}, s{sJ}, {154*16}"); e(f"s_add_u32 s{sT1}, s{sLG}, {LS+oO}")
for q in range(3): e(f"v_add_u32 v{F+8+q}, s{sT0}, v{vLin}"); e(f"v_min_u32 v{F+8+q}, {GB-oO-16}, v{F+8+q}"); e(f"s_add_u32 s{sT0}, s{sT0}, 1024")
for q in range(3): e(f"buffer_load_dwordx4 a[240:243], v{F+8+q}, {sr(sW)}, s{sT1} offen sc1")
for q in range(4): e(f"v_mov_b32 v{F+12+q}, -1")
e(f"s_add_u32 s{sT0}, s{sYg}, {LS}"); e(f"s_add_u32 s{sT3}, s96, {LS}")
e("s_waitcnt vmcnt(0)")
for q in range(3): lstore(f"buffer_store_dwordx4 {vr(F+12)}, v{F+8+q}, {sr(sW)}, s{sT1} offen")
setexec(15)
e(f"buffer_store_dwordx4 {vr(F+12)}, v{vLin}, {sr(sW)}, s{sT0} offen sc1"); e(f"buffer_store_dwordx4 {vr(F+12)}, v{vLin}, {sr(sW)}, s{sT3} offen sc1")
setexec(FULL)
lab("NOLC")
def fpsum():
    e("v_add_f32 v28, v28, v29"); e("v_add_f32 v30, v30, v31"); e("v_add_f32 v32, v32, v33"); e("v_add_f32 v28, v28, v30"); e("v_add_f32 v29, v28, v32"); e("v_add_f32 v28, v28, v32")
poll_nan([f"buffer_load_dword v{28+k}, v{37 if k==0 else F+k}, {sr(sW)}, s{sT2} offen sc1" for k in range(6)], fpsum, 28)
stamp(10)
e("v_permlane32_swap_b32 v28, v29"); e("v_add_f32 v28, v28, v29")
pack8(28)
setexec(0x01010101)
e(f"buffer_store_dwordx4 v[28:31], v39, {sr(sW)}, s96 offen sc1")
lstore(f"buffer_store_dwordx4 v[28:31], v39, {sr(sW)}, s97 offen")
setexec(FULL)
stamp(11)
e("s_branch NEXT")
flush_near()
lab("WNOT0")
e(f"s_cmp_lg_u32 s{sWV}, 1"); e("s_cbranch_scc1 NEXT")
e(f"v_and_b32 v25, 15, v{vL}"); e(f"v_lshrrev_b32 v26, 4, v{vL}")
rowbase(37, 26, oYG, oYL, None, 38); e("v_add_u32 v39, 4, v26"); rowbase(38, 39, oYG, oYL, None, 28)
e(f"s_lshl_b32 s{sT0}, s{sJ}, 6"); e(f"s_add_u32 s{sT0}, s{sT0}, s{sLay}")
e("v_lshl_add_u32 v37, v25, 2, v37"); e("v_lshl_add_u32 v38, v25, 2, v38")
if GATE and ODLY: e(f"s_sleep {ODLY}")
poll(own_loads(37, 38, f"s{sT0}"), [28, 29], 30, slp=(4 if GATE else 0))
owner_add()
e(f"s_cmp_lg_u32 s{sLay}, 0"); e("s_cbranch_scc1 FINAL")
base_store(oBB)
e("s_branch NEXT")
lab("FINAL")
e(f"s_cmp_lg_u32 s{sG}, 0"); e("s_cbranch_scc1 DONE")
e(f"s_lshl_b32 s{sT0}, s{sJ}, 6"); e(f"v_lshlrev_b32 v37, 2, v{vL}")
e(f"s_add_u32 s{sT2}, s{sT0}, s{sLG}"); e(f"s_add_u32 s{sT2}, s{sT2}, {oFL}")
if int(OPT.get("otouch", 1)): setexec(0xffff); e(f"buffer_load_dword v29, v37, {sr(sO)}, s{sT0} offen")
gate(sT2, 4, 28); setexec(FULL)
poll(own_loads(vC1, vC2, f"s{sLay}"), [28, 29], 30)
owner_add()
setexec(0xffff)
e(f"buffer_store_dword v28, v37, {sr(sO)}, s{sT0} offen {OPT.get('ost', '').replace('+', ' ')}")
setexec(FULL)
stamp(12); stamp(12, "c")
e("s_branch DONE") if SPIN else e("s_endpgm")
flush_near()
lab("ROLEF")
e(f"v_and_b32 v25, 15, v{vL}"); e(f"v_lshrrev_b32 v26, 4, v{vL}"); e(f"v_bfe_u32 v27, v{vL}, 2, 2"); e(f"v_and_b32 v36, 3, v{vL}")
FA = SPARE
vCG, vCU = vXR, vXR + 1
sPass = sClr
e(f"s_mov_b32 s{sPass}, 1")
e(f"s_cmp_lg_u32 s{sLay}, 0"); e("s_cbranch_scc1 FW")
e(f"s_mov_b32 s{sPass}, 0")
lab("FW")
e(f"s_mul_i32 s{sT0}, s{sWV}, 5120"); e(f"s_add_u32 s{sT0}, s{sT0}, {W1}")
e("v_lshl_add_u32 v37, v26, 3, v27"); e("v_lshlrev_b32 v37, 5, v37"); e("v_lshl_add_u32 v37, v36, 3, v37"); e(f"v_add_u32 v37, s{sT0}, v37")
for t in range(2):
    for kk in range(5):
        for h in range(2): e(f"ds_read_b64_tr_b16 {vr(F+20*t+4*kk+2*h,2)}, v37 offset:{(32*kk+4*h)*32+20480*t}")
e(f"s_mul_i32 s{sT0}, s{sWV}, 320"); e(f"s_add_u32 s{sT0}, s{sT0}, {W2}")
e(f"v_lshrrev_b32 v80, 2, v{vL}"); e("v_mul_u32_u24 v80, 1280, v80"); e("v_lshl_add_u32 v80, v36, 3, v80"); e(f"v_add_u32 v80, s{sT0}, v80")
e(f"s_lshl_b32 s{sT2}, s{sWV}, 2"); e(f"s_add_u32 s{sT2}, s{sT2}, {ACC+FACC}"); e(f"v_add_u32 v81, s{sT2}, v{vLin}")
e("v_lshl_add_u32 v82, v26, 2, v36"); e("v_lshlrev_b32 v82, 4, v82"); e(f"v_add_u32 v82, {ACC+FACC}, v82")
e("v_cmp_eq_u32 vcc, 12, v25")
e(f"v_mov_b32 v83, {ACC+FACC+512}"); e("v_mov_b32 v85, 0x3727c5ac")
e("v_lshlrev_b32 v84, 6, v25"); e("v_lshl_add_u32 v84, v26, 4, v84")
e("s_mov_b32 s64, 0x03ff03ff"); e("s_mov_b32 s65, 0x03ff03ff"); e("s_mov_b32 s66, 0x3acccccd"); MASKS[0x03FF03FF03FF03FF] = 64
for t in range(10): e(f"s_mov_b32 s{sMf+2*t}, {0x00010001 << t:#x}"); e(f"s_mov_b32 s{sMf+2*t+1}, {0x00010001 << t:#x}")
e("v_mov_b32 v38, 0x3f803f80"); e(f"v_cndmask_b32 v{FA}, 0, v38, vcc")
for q in range(1, 20): e(f"v_mov_b32 v{FA+q}, v{FA}")
e(f"s_mul_i32 s{sT0}, s{sWV}, {SCRW}")
e(f"v_mul_u32_u24 v6, 336, v25"); e("v_lshl_add_u32 v6, v26, 4, v6"); e(f"v_add_u32 v6, s{sT0}, v6")
e(f"v_mul_u32_u24 v37, 52, v{vL}"); e("v_lshrrev_b32 v37, 10, v37")
e(f"v_lshl_add_u32 v87, v37, 4, v{vLin}"); e(f"v_add_u32 v87, s{sT0}, v87")
e(f"v_mul_u32_u24 v27, 320, v37"); e(f"v_sub_u32 v27, v{vLin}, v27")
assert all((c * 52) >> 10 == c // 20 for c in range(64))
FG = [86, 18, 20]
for i in range(3):
    rowbase(FG[i], 37, oYG, oYL, oBA, 38); e(f"v_add_u32 v{FG[i]}, v{FG[i]}, v27")
    if i < 2: e("v_add_u32 v37, 3, v37")
e(f"s_mul_i32 s{sT0}, s{sWV}, 320"); e(f"s_add_u32 s{sT0}, s{sT0}, s{sLay}")
e(f"s_sub_u32 s{sT1}, s{sJ}, 20"); e(f"s_mul_i32 s{sT1}, s{sT1}, 2560"); e(f"s_mul_i32 s{sT3}, s{sWV}, 640"); e(f"s_add_u32 s{sT1}, s{sT1}, s{sT3}")
e(f"s_add_u32 s{sT1}, s{sT1}, s{sLG}"); e(f"s_add_u32 s{sT1}, s{sT1}, {oFP}")
e("s_waitcnt lgkmcnt(0)")
e(f"s_cmp_eq_u32 s{sPass}, 0"); e("s_cbranch_scc1 FW2")
def t_():
    lab("FW2")
    if "cs" not in SKIP: e(f"s_add_u32 s96, s{sLG}, {2*LS}"); lstore(f"buffer_store_dword v{vCS}, v{vQst}, {sr(sW)}, s96 offen")
    if W2P == 0 and "w2" not in SKIP: w2dma()
    e(f"s_sub_u32 s96, s{sJ}, 20"); e("s_lshl_b32 s96, s96, 2"); e(f"s_add_u32 s96, s96, s{sWV}"); e(f"s_mul_i32 s96, s96, {43*16}")
    e(f"v_add_u32 v21, s96, v{vLin}"); e(f"v_min_u32 v21, {32768-16}, v21"); e(f"s_add_u32 s97, s{sLG}, {LS+oQ}")
    e(f"buffer_load_dwordx4 a[240:243], v21, {sr(sW)}, s97 offen sc1")
    e("s_branch FMM")
tail.append(t_)
lab("FPOLL")
W2R = [f"a[{240+2*t}:{241+2*t}]" for t in range(6)] + ["v[108:109]", "v[110:111]", "v[2:3]", "v[4:5]"]
for t in range(10): e(f"ds_read_b64_tr_b16 {W2R[t]}, v80 offset:{32*t}")
e("s_waitcnt lgkmcnt(0)")
e(f"s_mul_i32 s{sT2}, s{sWV}, 320"); e(f"s_add_u32 s{sT2}, s{sT2}, s{sLG}"); e(f"s_add_u32 s{sT2}, s{sT2}, {oYL}")
gate(sT2, 20, 36)
setexec((1 << 60) - 1)
bounce([([f"buffer_load_dwordx4 {vr(T+4*i)}, v{FG[i]}, {sr(sW)}, s{sT0} offen sc1"], [T + 4 * i]) for i in range(3)], 36,
       [f"ds_write_b128 v87, {vr(T+4*i)} offset:{3*336*i}" for i in range(3)], [f"ds_read_b128 {vr(FA+4*kk)}, v6 offset:{64*kk}" for kk in range(5)])
stamp(8)
lab("FMM")
G_, R2, R3, HB = T + 12, T + 13, T + 14, 60
for kk in range(5):
    e(f"s_waitcnt lgkmcnt({4-kk})")
    e(f"v_mfma_f32_16x16x32_bf16 {vr(T+8)}, {vr(FA+4*kk)}, {vr(FA+4*kk)}, " + ("0" if kk == 0 else vr(T + 8)))
dp = lambda dst, sft, rm: f"v_add_f32_dpp v{dst}, v{G_}, v{G_} row_ror:{sft} row_mask:{rm:#x} bank_mask:0xf"
sh = [[f"v_mov_b32 v{G_}, 0", f"v_mov_b32 v{R2}, 0"], [f"v_mov_b32 v{R3}, 0", f"s_cmp_eq_u32 s{sPass}, 0"], [],
      [f"v_add_f32 v{T+8}, v{T+8}, v{T+9}", f"v_add_f32 v{T+10}, v{T+10}, v{T+11}"], [],
      [f"v_add_f32_dpp v{G_}, v{T+8}, v{T+10} quad_perm:[0,1,2,3] row_mask:0xf bank_mask:0x7"], ["s_nop 0", dp(G_, 8, 15)], ["s_nop 0", dp(G_, 4, 15)],
      ["s_nop 0", dp(G_, 2, 15)], []]
for t in range(2):
    for kk in range(5):
        e(f"v_mfma_f32_16x16x32_bf16 {vr(T+4*t)}, {vr(FA+4*kk)}, {vr(F+20*t+4*kk)}, " + ("0" if kk == 0 else vr(T + 4 * t)))
        for x in sh.pop(0): e(x)
e(f"v_add_f32 v{T}, v{T}, v{T+1}"); e(dp(R2, 1, 7)); e(dp(R3, 1, 8)); e(f"v_add_f32 v{T+2}, v{T+2}, v{T+3}"); e(f"v_add_f32 v{T}, v{T}, v{T+2}")
e(f"v_permlane32_swap_b32 v{T}, v{R2}")
e(f"v_add_f32 v{T+4}, v{T+4}, v{T+5}"); e(f"v_add_f32 v{T+6}, v{T+6}, v{T+7}"); e(f"v_add_f32 v{T+4}, v{T+4}, v{T+6}"); e(f"v_add_f32 v{T}, v{T}, v{R2}")
e(f"v_permlane32_swap_b32 v{T+4}, v{R3}"); e(f"v_add_f32 v{T+4}, v{T+4}, v{R3}")
e(f"v_permlane16_swap_b32 v{T}, v{T+4}"); e(f"v_add_f32 v{T}, v{T}, v{T+4}")
e(f"ds_write_b32 v81, v{T}")
e("s_waitcnt lgkmcnt(0)"); e("s_barrier")
e(f"ds_read_b128 {vr(T+4)}, v83 offset:256"); e(f"ds_read_b128 {vr(T)}, v83"); e(f"ds_read_b128 {vr(T+8)}, v82"); e(f"ds_read_b128 {vr(T+12)}, v82 offset:256")
e("s_cbranch_scc1 FCS")
def sum4(b): e(f"v_add_f32 v{b}, v{b}, v{b+1}"); e(f"v_add_f32 v{b+2}, v{b+2}, v{b+3}"); e(f"v_add_f32 v{b}, v{b}, v{b+2}")
e("s_waitcnt lgkmcnt(3)"); sum4(T + 4); e(f"v_mul_f32 v{T+4}, s66, v{T+4}")
e("s_waitcnt lgkmcnt(2)"); sum4(T); e(f"v_fma_f32 v{T}, v{T}, s66, v85")
e(f"v_fma_f32 v{T}, -v{T+4}, v{T+4}, v{T}"); e(f"v_add_f32 v{T+4}, 1.0, v{T+4}"); e(f"v_max_f32 v{T}, v{T}, v85")
e("s_waitcnt lgkmcnt(1)"); e(f"v_rsq_f32 v{T+1}, v{T}"); sum4(T + 8)
e(f"v_mul_f32 v{T+1}, 0xbfb8aa3b, v{T+1}"); e(f"v_fma_f32 v{T+8}, -v{T+4}, v{vCG}, v{T+8}"); e(f"v_mul_f32 v{T+9}, v{T+8}, v{T+1}"); e(f"v_exp_f32 v{T+9}, v{T+9}")
e("s_waitcnt lgkmcnt(0)"); e(f"v_add_f32 v{T+12}, v{T+12}, v{T+13}")
e(f"v_fma_f32 v{T+9}, v{T+9}, v{T}, v{T}"); e(f"v_rcp_f32 v{T+9}, v{T+9}")
e(f"v_add_f32 v{T+14}, v{T+14}, v{T+15}"); e(f"v_add_f32 v{T+12}, v{T+12}, v{T+14}"); e(f"v_mul_f32 v{T+9}, v{T+9}, v{T+8}")
e(f"v_fma_f32 v{T+12}, -v{T+4}, v{vCU}, v{T+12}"); e(f"v_mul_f32 v{T+12}, v{T+12}, v{T+9}")
for q in range(4): e(f"v_mov_b32_dpp v{T+4+q}, v{T+12} quad_perm:[{q},{q},{q},{q}] row_mask:0xf bank_mask:0xf")
e(f"v_cvt_pk_bf16_f32 v{T+4}, v{T+4}, v{T+5}"); e(f"v_cvt_pk_bf16_f32 v{T+5}, v{T+6}, v{T+7}")
def hm(t): return [f"v_cndmask_b32 v{HB+2*t+q}, 0, v{T+4+q}, {sp(sMf+2*t)}" for q in range(2)]
W2Q = ["a[240:243]", "a[244:247]", "a[248:251]", "v[108:111]", "v[2:5]"]
for x in hm(0) + hm(1) + hm(2): e(x)
for t in range(5):
    e(f"v_mfma_f32_16x16x32_bf16 {vr(T)}, {W2Q[t]}, {vr(HB+4*t)}, " + ("0" if t == 0 else vr(T)))
    for k in (2 * t + 3, 2 * t + 4):
        if k < 10:
            for x in hm(k): e(x)
setexec(0x03FF03FF03FF03FF)
lstore(f"buffer_store_dwordx4 {vr(T)}, v84, {sr(sW)}, s{sT1} offen")
setexec(FULL)
stamp(9)
def t_():
    lab("FCS")
    e("s_waitcnt lgkmcnt(0)"); sum4(T + 8); sum4(T + 12)
    e(f"v_mov_b32 v{vCG}, v{T+8}"); e(f"v_mov_b32 v{vCU}, v{T+12}")
    e(f"s_mov_b32 s{sPass}, 1"); e("s_waitcnt vmcnt(0)")
    for q in range(4): e(f"v_mov_b32 v{T+q}, -1")
    if "q1c" not in SKIP: lstore(f"buffer_store_dwordx4 {vr(T)}, v21, {sr(sW)}, s97 offen")
    e("s_barrier"); stamp(13); e("s_branch FPOLL")
tail.append(t_)
lab("NEXT")
e(f"s_cmp_lg_u32 s{sLay}, 0"); e("s_cbranch_scc1 DONE")
e(f"s_mov_b32 s{sLay}, {LS}"); e(f"s_add_u32 s{sLG}, s{sLG}, {LS}"); e(f"s_add_u32 s{sYg}, s{sYg}, {LS}"); e(f"s_add_u32 s{sYl}, s{sYl}, {LS}")
e("s_branch LOOP")
flush_near()
lab("DONE")
if SPIN:
    e("v_accvgpr_read_b32 v38, a253"); e("s_nop 1"); e("v_readfirstlane_b32 s96, v38")
    if SPM == "min":
        e("v_not_b32 v38, v38"); e("v_mov_b32 v39, 192"); e("s_mov_b64 exec, 1"); e("global_atomic_umax v39, v38, s[64:65] sc1"); e("s_waitcnt vmcnt(0)")
        lab("SPW"); e("s_sleep 20"); e("s_memrealtime s[98:99]"); e("s_waitcnt lgkmcnt(0)"); e("s_sub_u32 s98, s98, s96"); e(f"s_cmp_lt_u32 s98, {SPIN*100-1500}"); e("s_cbranch_scc1 SPW")
        e("global_load_dword v38, v39, s[64:65] sc1"); e("s_waitcnt vmcnt(0)"); e("v_not_b32 v38, v38"); e("s_nop 1"); e("v_readfirstlane_b32 s96, v38")
    lab("SPINL"); e("s_memrealtime s[98:99]"); e("s_waitcnt lgkmcnt(0)"); e("s_sub_u32 s98, s98, s96"); e(f"s_cmp_lt_u32 s98, {SPIN*100}"); e("s_cbranch_scc1 SPINL")
e("s_endpgm")
i = 0
while i < len(tail): tail[i](); flush_near(); i += 1
lab("CODE_END")
e("s_endpgm")

body = A.pad()
hdr = [f"; @launch grid=(256,1,1) block=(256,1,1) lds={LDSSZ}", '.amdgcn_target "amdgcn-amd-amdhsa--gfx950"', ".text",
       f".globl {NAME}_kernel", ".p2align 8", f".type {NAME}_kernel,@function", f"{NAME}_kernel:"]
ftr = ['.section .rodata,"a"', ".p2align 6", f".amdhsa_kernel {NAME}_kernel", "  .amdhsa_next_free_vgpr 512", "  .amdhsa_next_free_sgpr 102",
       "  .amdhsa_accum_offset 256", "  .amdhsa_group_segment_fixed_size 0", "  .amdhsa_kernarg_size 96", "  .amdhsa_user_sgpr_count 2",
       "  .amdhsa_user_sgpr_kernarg_segment_ptr 1", "  .amdhsa_system_sgpr_workgroup_id_x 1", ".end_amdhsa_kernel"]
src = "\n".join(hdr + body + ftr) + "\n"
import re
for m in re.finditer(r"buffer_\S+ .*offset:(\d+)", src): assert int(m.group(1)) < 4096, m.group(0)
for m in re.finditer(r"ds_\S+ .*offset:(\d+)", src): assert int(m.group(1)) < 65536, m.group(0)
open(OUT, "w").write(src)
```

```python
import os, sys
sys.path.insert(0, os.path.dirname(os.path.abspath(__file__)))
from asmlib import Asm
NAME = "interleave_layers__sliding_block_cached__glu_gated_swiglu__decode"
OPT = dict(a.split("=") for a in sys.argv[2:])
OUT = sys.argv[1] if len(sys.argv) > 1 else f"/code/{NAME}.s"
STAMP = int(OPT.get("stamp", 0))
NT = OPT.get("nt", "nt").replace("x", "")
NTW = OPT.get("ntw", "nt").replace("x", "")
SKIP = OPT.get("skip", "").split(",")
FORCESLOW = int(OPT.get("slow", 0))
SPIN = int(OPT.get("spin", 0))
A = Asm(); e = A.e; lab = A.lab
tail = []

RS = 416; SCRW = 16 * RS
SCR = 0; WQ = 4 * SCRW; ROLE = WQ + 30720
WO = ROLE; W1 = ROLE; W3 = ROLE + 20480; W2 = ROLE + 40960
MISC = ROLE + 61440; QB = MISC; ACC = MISC + 512
OACC = 0; YACC = 3072; FACC = 4096
PT = ACC + 5120; ML4 = PT + 1024
FLG = ML4 + 64
LDSSZ = FLG + 64
FDMA = OPT.get("fdma", "late")
OMASK = int(OPT.get("omask", 1))
WDMA = OPT.get("wdma", "mid")
PF = OPT.get("pf", "ow")
NTP = OPT.get("ntp", "x").replace("x", "")
NTR = OPT.get("ntr", "x").replace("x", "")
GB = 81920; oQ = 0; oO = 32768; oML = 45056; oYL = 45312; oFL = 46592; oBA = 47872; oBB = 49152; oFP = 51200
GOFF = 8 * GB; oYG = GOFF; oFG = GOFF + 10240; LS = 0xA8000
OOB = 0x7FFFFFF0
sK, sV, sW, sWQ, sRA, sRB, sRC, sX, sO = 8, 12, 16, 20, 24, 28, 32, 36, 40
sG, sJ, sHH, sS, sWV, sKV, sLay, sFast, sCnt = 68, 69, 70, 71, 72, 73, 74, 75, 76
sT0, sT1, sT2 = 77, 78, 79
sLG = 3
sClr = 4
sXcc = 5
sTL = 6
sT3 = 7
sYg, sYl = 80, 81
sMf = 44
def sr(b): return f"s[{b}:{b+3}]"
def sp(b): return f"s[{b}:{b+1}]"
def vr(b, n=4): return f"v[{b}:{b+n-1}]" if n > 1 else f"v{b}"
def ar(b, n=4): return f"a[{b}:{b+n-1}]"
def srd(d, lo, nbytes):
    e(f"s_mov_b32 s{d}, s{lo}"); e(f"s_and_b32 s{d+1}, s{lo+1}, 0xffff")
    e(f"s_mov_b32 s{d+2}, {nbytes}"); e(f"s_mov_b32 s{d+3}, 0x20000")
MASKS = {}
def setexec(mask):
    if mask in MASKS: e(f"s_mov_b64 exec, {sp(MASKS[mask])}"); return
    lo, hi = mask & 0xffffffff, mask >> 32
    if mask == (1 << 64) - 1: e("s_mov_b64 exec, -1")
    elif hi == 0 and lo <= 64: e(f"s_mov_b64 exec, {lo}")
    else: e(f"s_mov_b32 exec_lo, {lo:#x}"); e(f"s_mov_b32 exec_hi, {hi:#x}")
FULL = (1 << 64) - 1
ROWS9 = 0x01FF01FF01FF01FF
vL, vLin, vWr, vKrd, vVrd, vCS, vAq, vAq16, vQst, vQld, vQBw, vQBr, vIdx, vAcc, vTq1, vTq2, vSC, vPw = 0, 1, 2, 5, 6, 7, 8, 9, 10, 11, 12, 13, 14, 15, 16, 17, 18, 19
vC1, vC2, vXR = 20, 21, 22
T = 24
F = 40
SPARE = 88
def vblock(b):
    if b < 2: return ("a", 192 + 24 * b)
    if b == 8: return ("v", SPARE)
    return ("v", 112 + 24 * (b - 2))
def rg(f, b, n): return f"{f}[{b}:{b+n-1}]"

uid = [0]
def nid(): uid[0] += 1; return uid[0]
stamps = [0]
SPINAT = int(OPT.get("spinat", -1))
def stamp(i, val=None):
    if SPIN and val is None and SPINAT % 16 == i:
        k = nid()
        e(f"s_cmp_lg_u32 s{sLay}, {LS*(SPINAT//16)}"); e(f"s_cbranch_scc1 NOSP{k}")
        e("s_memrealtime s[100:101]"); e("s_waitcnt lgkmcnt(0)"); e("v_accvgpr_write_b32 a253, s100"); lab(f"NOSP{k}")
    if not STAMP: return
    if STAMP == 3 and (val is not None or i != 7): return
    if STAMP == 4 and val != "c": return
    if val == "c":
        if STAMP != 4: return
        val = None
    if STAMP == 2 and val is None and i not in (0, 14): return
    if STAMP == 1 and (val is not None or i == 14): return
    e("s_memrealtime s[100:101]"); e("v_accvgpr_write_b32 a254, v38"); e("v_accvgpr_write_b32 a255, v39")
    e(f"s_lshl_b32 s98, s2, 2"); e(f"s_add_u32 s98, s98, s{sWV}"); e("s_lshl_b32 s98, s98, 7")
    e(f"s_cmp_eq_u32 s{sLay}, 0"); e(f"s_cselect_b32 s99, 0, 64"); e(f"s_add_u32 s99, s99, {4*i}"); e("s_add_u32 s98, s98, s99"); e("s_add_u32 s98, s98, 0x40000000")
    e("s_waitcnt lgkmcnt(0)"); e(f"v_mov_b32 v38, {val or 's100'}"); e("v_mov_b32 v39, 0")
    e("s_mov_b64 s[100:101], exec"); e("s_mov_b64 exec, 1")
    A.vmem(f"buffer_store_dword v38, v39, {sr(sW)}, s98 offen", "stamp")
    e("s_mov_b64 exec, s[100:101]"); e("s_nop 1"); e("v_accvgpr_read_b32 v38, a254"); e("v_accvgpr_read_b32 v39, a255")
sWp = sK
def lstore(instr, counted=None):
    assert sr(sW) in instr and not counted
    k = nid()
    e(instr.replace(sr(sW), sr(sWp)))
    e(f"s_cmp_eq_u32 s{sWp+2}, 0"); e(f"s_cbranch_scc1 SLOW{k}")
    lab(f"BACK{k}")
    def t(): lab(f"SLOW{k}"); e(instr + " sc1"); e(f"s_branch BACK{k}")
    tail.append(t)
def check(regs_, tmp):
    r = list(regs_)
    if len(r) == 1: e(f"v_cmp_eq_u32 vcc, -1, v{r[0]}"); return
    cur = r.pop(0)
    while r:
        if len(r) >= 2: e(f"v_max3_u32 v{tmp}, v{cur}, v{r[0]}, v{r[1]}"); r = r[2:]
        else: e(f"v_max_u32 v{tmp}, v{cur}, v{r[0]}"); r = r[1:]
        cur = tmp
    e(f"v_cmp_eq_u32 vcc, -1, v{tmp}")
LIMIT = 0x8000
def poll(loads, regs_, tmp, pid=None, slp=0, first=None):
    k = nid()
    if pid is not None: stamp(pid, "s100")
    e(f"s_mov_b32 s{sCnt}, 1")
    if first:
        for l in loads: e(l)
        first(); e(f"s_branch POLLW{k}")
    lab(f"POLL{k}")
    for l in loads: e(l)
    lab(f"POLLW{k}")
    e("s_waitcnt vmcnt(0)")
    check(regs_, tmp)
    e(f"s_cbranch_vccnz AGAIN{k}")
    lab(f"POLLX{k}")
    def t():
        lab(f"AGAIN{k}")
        if slp: e(f"s_sleep {slp}")
        e(f"s_add_u32 s{sCnt}, s{sCnt}, 1"); e(f"s_cmp_lt_u32 s{sCnt}, {LIMIT}"); e(f"s_cbranch_scc1 POLL{k}"); e(f"s_branch POLLX{k}")
    near.append(t)
    if pid is not None: stamp(pid + 1, "s100"); stamp(pid + 2, f"s{sCnt}")
    A.drained()
SEL = int(OPT.get("sel", 1)); XF = " " + OPT.get("xf", "").replace("+", " "); XF1 = int(OPT.get("xf1", 0))
def poll_sel(groups, tmp, pid=None, first=None, firstloads=None, xf="", wl=None, w1=0):
    allr = [r for g in groups for r in g[1]]
    loads = firstloads or [l for g in groups for l in g[0]]
    if not SEL: return poll(loads, allr, tmp, pid=pid, first=first)
    k = nid()
    if pid is not None: stamp(pid, "s100")
    for l in loads: e(l + (xf if XF1 else ""))
    if first: first()
    if wl: lab(wl)
    if pid is not None and STAMP == 2: e(f"s_mov_b32 s{sCnt}, 1")
    e(f"s_waitcnt vmcnt({w1})")
    check(allr, tmp)
    e(f"s_cbranch_vccnz AGAIN{k}")
    lab(f"POLLX{k}")
    def t():
        lab(f"AGAIN{k}")
        e("s_mov_b64 s[94:95], exec"); e(f"s_mov_b32 s{sCnt}, 1")
        lab(f"AG2{k}")
        if int(OPT.get("osl", 0)): e(f"s_sleep {OPT['osl']}")
        for gi, (ls, rs) in enumerate(groups):
            if len(groups) > 1: check(rs, tmp)
            e("s_mov_b64 exec, vcc")
            if len(groups) > 1: e(f"s_cbranch_execz AG3{k}_{gi}")
            for l in ls: e(l + xf)
            lab(f"AG3{k}_{gi}"); e("s_mov_b64 exec, s[94:95]")
        e(f"s_add_u32 s{sCnt}, s{sCnt}, 1"); e(f"s_cmp_ge_u32 s{sCnt}, {LIMIT}")
        e("s_waitcnt vmcnt(0)")
        check(allr, tmp)
        e(f"s_cbranch_vccz POLLX{k}"); e(f"s_cbranch_scc0 AG2{k}"); e(f"s_branch POLLX{k}")
    near.append(t)
    if pid is not None: stamp(pid + 1, "s100"); stamp(pid + 2, f"s{sCnt}")
    A.drained()
near = []
def flush_near():
    while near: near.pop(0)()
GATE = int(OPT.get("gate", 1)); GDLY = int(OPT.get("gdly", 0)); ODLY = int(OPT.get("odly", 16))
def gate(sreg, nl, tmp):
    if not GATE: return
    setexec((1 << nl) - 1)
    poll([f"buffer_load_dword v{tmp}, v{vLin}, {sr(sW)}, s{sreg} offen sc1"], [tmp], tmp, slp=int(OPT.get("gsl", 0)))
    if GDLY: e(f"s_sleep {GDLY}")
def poll_nan(loads, body, res):
    k = nid()
    e(f"s_mov_b32 s{sCnt}, 1")
    lab(f"POLL{k}")
    for l in loads: e(l)
    e("s_waitcnt vmcnt(0)")
    body()
    e(f"v_cmp_u_f32 vcc, v{res}, v{res}"); e(f"s_cbranch_vccnz AGAIN{k}")
    lab(f"POLLX{k}")
    def t():
        lab(f"AGAIN{k}"); e(f"s_add_u32 s{sCnt}, s{sCnt}, 1"); e(f"s_cmp_lt_u32 s{sCnt}, {LIMIT}"); e(f"s_cbranch_scc1 POLL{k}"); e(f"s_branch POLLX{k}")
    near.append(t)
def late_check(tag, loads, regs_, tmp, pre=None, post=None):
    k = nid()
    A.wait(tag)
    check(regs_, tmp)
    e(f"s_cbranch_vccnz RETRY{k}")
    lab(f"OK{k}")
    def t():
        lab(f"RETRY{k}")
        if pre: pre()
        save = A.vm; poll(loads, regs_, tmp); A.vm = save
        if post: post()
        e(f"s_branch OK{k}")
    tail.append(t)

sTO = 82
sPo, sPw = 90, 91
vLin2 = vXR + 1
e("s_load_dwordx16 s[44:59], s[0:1], 0"); e("s_load_dwordx8 s[60:67], s[0:1], 64")
e("s_cmp_ge_u32 s2, 256"); e("s_cbranch_scc1 CODE_END")
e("s_memrealtime s[96:97]")
e("v_lshrrev_b32 v2, 6, v0"); e("v_and_b32 v24, 63, v0"); e(f"v_readfirstlane_b32 s{sWV}, v2")
e(f"s_and_b32 s{sG}, s2, 7"); e(f"s_lshr_b32 s{sJ}, s2, 3"); e(f"s_lshr_b32 s{sHH}, s{sJ}, 3"); e(f"s_and_b32 s{sS}, s{sJ}, 7")
e(f"v_lshlrev_b32 v{vLin}, 4, v24")
e(f"s_lshl_b32 s{sT0}, s{sHH}, 3"); e(f"s_add_u32 s{sT0}, s{sT0}, s{sG}")
e(f"s_mul_i32 s{sKV}, s{sT0}, 12582912"); e(f"s_lshl_b32 s{sT1}, s{sS}, 2"); e(f"s_add_u32 s{sT1}, s{sT1}, s{sWV}")
e(f"s_mul_i32 s{sT1}, s{sT1}, 6144"); e(f"s_add_u32 s{sKV}, s{sKV}, s{sT1}"); e(f"s_add_u32 s{sKV}, s{sKV}, 11010048")
e(f"v_add_u32 v{vLin2}, 4096, v{vLin}"); e(f"s_mov_b32 s{sK+2}, 402653184"); e(f"s_mov_b32 s{sK+3}, 0x20000")
e("s_getpc_b64 s[100:101]"); lab("PCREF")
e(f"s_sub_u32 s100, s100, PCREF-{NAME}_kernel"); e("s_subb_u32 s101, s101, 0")
e(f"s_lshl_b32 s{sT1}, s{sS}, 12"); e(f"v_lshl_add_u32 v25, v0, 4, s{sT1}")
e(f"v_cmp_gt_u32 vcc, CODE_END-{NAME}_kernel-16, v25"); e("s_and_saveexec_b64 s[98:99], vcc"); e("s_cbranch_execz NOCPF")
e(f"global_load_dwordx4 a[240:243], v25, s[100:101]")
lab("NOCPF"); e("s_mov_b64 exec, -1")
e(f"s_mul_i32 s{sT2}, s{sT0}, 384")
e(f"s_mov_b32 s{sLay}, 0"); e(f"s_mul_i32 s{sLG}, s{sG}, {GB}"); e(f"s_mov_b32 s{sFast}, 0")
e(f"s_lshl_b32 s{sT0}, s{sJ}, 9"); e(f"s_add_u32 s{sT0}, s{sT0}, s{sLG}"); e(f"s_add_u32 s{sT0}, s{sT0}, {oO}"); e(f"v_add_u32 v{vC1}, s{sT0}, v{vLin}")
e(f"s_lshl_b32 s{sT0}, s{sG}, 2"); e(f"s_add_u32 s{sT0}, s{sT0}, s{sJ}"); e(f"s_mul_i32 s{sT0}, s{sT0}, 320"); e(f"s_add_u32 s{sT0}, s{sT0}, {oYG-512}"); e(f"v_add_u32 v25, s{sT0}, v{vLin}")
e("v_cmp_le_u32 vcc, 32, v0"); e(f"v_cndmask_b32 v{vC2}, v{vC1}, v25, vcc"); e(f"v_mov_b32 v25, {OOB}"); e(f"v_cndmask_b32 v{vC1}, v{vC1}, v25, vcc")
e(f"s_cmp_lt_u32 s{sJ}, 4"); e(f"s_cselect_b32 s{sT0}, 52, 32"); e(f"v_cmp_le_u32 vcc, s{sT0}, v0"); e(f"v_cndmask_b32 v{vC2}, v{vC2}, v25, vcc")
e(f"s_mov_b32 s{sW+2}, 1610612736"); e(f"s_mov_b32 s{sW+3}, 0x20000")
e("s_waitcnt lgkmcnt(0)")
e(f"s_mov_b32 s{sK}, s46"); e(f"s_and_b32 s{sK+1}, s47, 0xffff"); e(f"s_mov_b32 s{sW}, s66"); e(f"s_and_b32 s{sW+1}, s67, 0xffff")
if SPIN: e("v_mov_b32 v38, s96"); e("v_accvgpr_write_b32 a253, v38")
SPM = OPT.get("spm", "")
RW = int(OPT.get("rw", 16)); RF = (320 - 20 * RW) // 12
assert 20 * RW + 12 * RF == 320
NPW = -(-max(RW, RF) * 24 // 64)
pend = []
def q_tile(srdn, t, f, base, tag):
    so = sKV if t == 0 else sTO + t
    for i in range(6):
        pend.append((f"buffer_load_dwordx4 {rg(f, base+4*i, 4)}, v{vLin if i < 4 else vLin2}, {sr(srdn)}, s{so} offen offset:{1024*(i%4)} {NT}", tag))
def qK(t): q_tile(sK, t, "a", 24 * t, f"K{t}")
def qV(t): f, b = vblock(t + 1); q_tile(sV, t, f, b, f"V{t}")
def q_pfo():
    for n in range(9): pend.append((f"buffer_load_dwordx4 a[240:243], v{[vLin, vLin, vLin2, 108, 109][n//2]}, {sr(sWQ)}, s{sPo} offen offset:{1024*(n%4)} {NTP}", "pfo"))
def q_pfw():
    for n in range(NPW): pend.append((f"buffer_load_dwordx4 a[240:243], v{101+n}, {sr(sX)}, s{sPw} offen {NTP}", "pfw"))
nfill = [0]; BARN = int(OPT.get("barn", 6)); THR = int(OPT.get("thr", 0)); THRE = int(OPT.get("thre", 0))
hold = {"V7", "pfw", "pfo"}; LA = int(OPT.get("la", 12))
def ahead(tag, LA=LA):
    while tag in A.vm and pend and pend[0][1] not in hold and len(A.vm) - 1 - max(i for i, x in enumerate(A.vm) if x == tag) < LA: fill()
def fill(n=1):
    for _ in range(n):
        if pend and not (pend[0][1] in hold):
            if THR and nfill[0] >= THR and len(pend) > THRE: e(f"s_waitcnt vmcnt({THR-1})")
            x, tag = pend.pop(0); A.vmem(x, tag); nfill[0] += 1
            if BARN and nfill[0] > 12 and nfill[0] % BARN == 0 and len(pend) >= 3: e("s_barrier")
BARS = OPT.get("bar", "").split(",")
def upto(tag):
    while any(t == tag for _, t in pend): fill()
    if tag in BARS or "every" in BARS and tag not in ("K0", "K1", "V7"): e("s_barrier")
def Kld(t): upto(f"K{t}")
def Vld(t): upto(f"V{t}")
for it in OPT.get("order", "K0 K1 K2 K3 w K4 K5 K6 K7 V0 V1 V2 V3 V4 V5 V6 V7").replace(",", " ").split():
    if it == "w":
        if "pfw" not in SKIP: q_pfw()
    elif it == "o":
        if "pfo" not in SKIP: q_pfo()
    elif it[0] == "K": qK(int(it[1]))
    else: qV(int(it[1]))
fill(int(OPT.get("k0e", 2)))
e(f"s_or_b32 s{sT0}, s2, s{sWV}"); e("s_cbranch_scc1 NOTAG")
e(f"s_or_b32 s{sT0}, s96, 1"); e(f"v_mov_b32 v26, s{sT0}"); setexec(1); e(f"global_store_dword v{vLin}, v26, s[64:65] sc1"); setexec(FULL)
lab("NOTAG")
if STAMP == 1: e("s_memrealtime s[94:95]")
e(f"s_add_u32 s{sTO+1}, s{sKV}, 196608")
srd(sV, 48, 402653184); srd(sWQ, 50, 7864320); srd(sX, 44, 1280); srd(sO, 62, 1280)
srd(sRB, 58, 1966080); srd(sRC, 60, 1966080)
e(f"s_cmp_lt_u32 s{sJ}, 20"); e(f"s_cselect_b32 s{sRA}, s52, s56"); e(f"s_cselect_b32 s{sRA+1}, s53, s57"); e(f"s_cselect_b32 s{sRA+2}, s{sWQ+2}, s{sRB+2}")
e(f"s_and_b32 s{sRA+1}, s{sRA+1}, 0xffff"); e(f"s_mov_b32 s{sRA+3}, 0x20000")
TLBW = OPT.get("tlbw", "")
def tlb_touch():
    e(f"s_cmp_lg_u32 s{sWV}, 3"); e("s_cbranch_scc1 NOTLB")
    if "j" in TLBW: e(f"s_cmp_lg_u32 s{sS}, 0"); e("s_cbranch_scc1 NOTLB")
    e("v_mul_u32_u24 v26, 1376256, v24"); e("v_lshlrev_b32 v27, 20, v24")
    setexec(3)
    if "v" in TLBW: e(f"buffer_load_dword a243, v26, {sr(sV)}, s{sKV} offen nt"); e(f"buffer_load_dword a243, v26, {sr(sK)}, s{sKV} offen nt")
    if "w" in TLBW:
        e(f"global_load_dword a243, v27, s[56:57] nt"); e(f"buffer_load_dword a243, v27, {sr(sRB)}, 0 offen nt"); e(f"buffer_load_dword a243, v27, {sr(sRC)}, 0 offen nt")
        setexec(0xff); e(f"global_load_dword a243, v27, s[52:53] nt")
    setexec(FULL)
    lab("NOTLB")
if TLBW: tlb_touch()
if STAMP:
    e(f"s_lshl_b32 s98, s2, 2"); e(f"s_add_u32 s98, s98, s{sWV}"); e("s_lshl_b32 s98, s98, 7"); e("s_add_u32 s98, s98, 0x40000000")
    e("v_mov_b32 v38, s96"); e("v_mov_b32 v39, 0"); e("s_mov_b64 exec, 1")
    A.vmem(f"buffer_store_dword v38, v39, {sr(sW)}, s98 offen", "stamp")
    if STAMP == 1: e("s_waitcnt lgkmcnt(0)"); e("v_mov_b32 v37, s94"); A.vmem(f"buffer_store_dword v37, v39, {sr(sW)}, s98 offen offset:56", "stamp")
    e("s_mov_b64 exec, -1")
for t in range(2, 8): e(f"s_add_u32 s{sTO+t}, s{sTO+t-1}, 196608")
e(f"v_mov_b32 v{vL}, v24")
e(f"s_mul_i32 s{sT0}, s{sWV}, {SCRW}")
for r in range(3):
    e(f"v_add_u32 v25, {64*r}, v{vL}"); e("v_mul_u32_u24 v26, 171, v25"); e("v_lshrrev_b32 v26, 12, v26")
    e("v_mul_u32_u24 v27, 24, v26"); e("v_sub_u32 v27, v25, v27"); e("v_lshlrev_b32 v27, 4, v27")
    e(f"v_mul_u32_u24 v25, {RS}, v26"); e(f"v_add3_u32 v{vWr+r}, v25, v27, s{sT0}")
    e(f"v_mul_u32_u24 v25, 12288, v26"); e(f"v_add_u32 v{F+r}, v25, v27")
    e(f"v_mul_u32_u24 v25, 3072, v26"); e(f"v_add_u32 v{101+r}, v25, v27")
assert all((c * 171) >> 12 == c // 24 for c in range(192))
e(f"v_and_b32 v25, 15, v{vL}"); e(f"v_lshrrev_b32 v26, 4, v{vL}")
e(f"v_bfe_u32 v27, v{vL}, 2, 2"); e(f"v_and_b32 v28, 3, v{vL}")
e(f"s_mul_i32 s{sT1}, s{sS}, 160")
e(f"v_lshlrev_b32 v36, 4, v26"); e(f"v_lshlrev_b32 v37, 3, v26"); e(f"v_lshlrev_b32 v39, 2, v{vL}")
A.vmem(f"buffer_load_dwordx4 v[70:73], v36, {sr(sX)}, s{sT1} offen", "x")
A.vmem(f"buffer_load_dwordx4 v[74:77], v36, {sr(sX)}, s{sT1} offen offset:64", "x")
A.vmem(f"buffer_load_dwordx2 v[78:79], v37, {sr(sX)}, s{sT1} offen offset:128", "x")
A.vmem(f"buffer_load_dwordx4 v[80:83], v{vLin}, {sr(sX)}, 0 offen", "x")
A.vmem(f"buffer_load_dword v84, v39, {sr(sX)}, 0 offen offset:1024", "x")
e(f"s_lshl_b32 s{sT3}, s{sJ}, 6"); e(f"v_lshlrev_b32 v38, 2, v25")
A.vmem(f"buffer_load_dword v{vXR}, v38, {sr(sX)}, s{sT3} offen", "x")
e(f"s_mul_i32 s{sT1}, s{sS}, {80*12288}"); e(f"s_add_u32 s{sT2}, s{sT2}, s{sT1}")
e(f"s_mul_i32 s{sT1}, s{sWV}, {8*12288}"); e(f"s_add_u32 s{sT2}, s{sT2}, s{sT1}")
e(f"s_mul_i32 s{sT1}, s{sWV}, 3072"); e(f"s_add_u32 s{sT1}, s{sT1}, {WQ}")
for gi in range(3):
    if gi == 2: e(f"s_cmp_ge_u32 s{sWV}, 2"); e("s_cbranch_scc1 NOWQ3")
    for r in range(3):
        e(f"s_add_u32 m0, s{sT1}, {gi*4*3072 + r*1024}")
        if "wq" not in SKIP: A.vmem(f"buffer_load_dwordx4 v{F+r}, {sr(sWQ)}, s{sT2} offen {NTW} lds", "wq", counted=(gi < 2))
    if gi < 2: e(f"s_add_u32 s{sT2}, s{sT2}, {32*12288}")
lab("NOWQ3")
e(f"s_mul_i32 s{sT1}, s{sS}, 160")
srd(sWQ, 52, 7864320)
e(f"s_cmp_lt_u32 s{sWV}, 2"); e(f"s_cselect_b32 s{sX}, s56, s58"); e(f"s_cselect_b32 s{sX+1}, s57, s59"); e(f"s_and_b32 s{sX+1}, s{sX+1}, 0xffff"); e(f"s_mov_b32 s{sX+2}, 1966080")
e(f"s_lshl_b32 s{sPo}, s{sHH}, 3"); e(f"s_add_u32 s{sPo}, s{sPo}, s{sG}"); e(f"s_lshl_b32 s{sPo}, s{sPo}, 3"); e(f"s_add_u32 s{sPo}, s{sPo}, s{sS}")
e(f"s_mul_i32 s{sPo}, s{sPo}, 30720"); e(f"s_mul_i32 s{sT2}, s{sWV}, 6144"); e(f"s_add_u32 s{sPo}, s{sPo}, s{sT2}")
e(f"s_cmp_eq_u32 s{sWV}, 3"); e(f"s_cselect_b32 s{sT2}, 3072, 0"); e(f"s_add_u32 s{sPo}, s{sPo}, s{sT2}")
e(f"s_cmp_lt_u32 s{sWV}, 2"); e(f"s_cselect_b32 s{sT2}, {OOB-0x10000000}, 0"); e(f"v_add_u32 v108, s{sT2}, v{vLin2}"); e(f"v_add_u32 v109, 4096, v108")
e(f"s_and_b32 s{sPw}, s{sWV}, 1"); e(f"s_lshl_b32 s{sT2}, s{sJ}, 1"); e(f"s_add_u32 s{sPw}, s{sPw}, s{sT2}")
e(f"s_mul_i32 s{sT2}, s{sPw}, {RF}"); e(f"s_add_u32 s{sT2}, s{sT2}, {40*(RW-RF)}"); e(f"s_mul_i32 s{sPw}, s{sPw}, {RW}")
e(f"s_cmp_lt_u32 s{sJ}, 20"); e(f"s_cselect_b32 s{sPw}, s{sPw}, s{sT2}"); e(f"s_mov_b32 s{sT3}, {RW*3072}"); e(f"s_cselect_b32 s{sT3}, s{sT3}, {RF*3072}")
e(f"s_mul_i32 s{sPw}, s{sPw}, 3072"); e(f"s_mul_i32 s{sT2}, s{sG}, 384"); e(f"s_add_u32 s{sPw}, s{sPw}, s{sT2}")
e(f"v_mov_b32 v29, {OOB-0x10000000}")
for n in range(3, NPW): e(f"v_add_u32 v{101+n}, {8*3072}, v{98+n}")
for n in range(NPW): e(f"v_cmp_gt_u32 vcc, s{sT3}, v{101+n}"); e(f"v_cndmask_b32 v{101+n}, v29, v{101+n}, vcc")
hold -= {"pfw", "pfo"}
fill(3)
e(f"v_mul_u32_u24 v29, {RS}, v25"); e(f"v_lshl_add_u32 v29, v26, 4, v29"); e(f"v_add_u32 v{vKrd}, s{sT0}, v29")
e(f"v_lshrrev_b32 v29, 2, v{vL}"); e(f"v_mul_u32_u24 v29, {RS}, v29"); e(f"v_lshl_add_u32 v29, v28, 3, v29"); e(f"v_add_u32 v{vVrd}, s{sT0}, v29")
e(f"s_mul_i32 s{sT2}, s{sWV}, 96"); e(f"s_add_u32 s{sT2}, s{sT2}, {WQ}")
e("v_lshl_add_u32 v29, v26, 3, v27"); e("v_mul_u32_u24 v29, 384, v29"); e("v_lshl_add_u32 v29, v28, 3, v29"); e(f"v_add_u32 v{vTq1}, s{sT2}, v29")
e("v_lshl_add_u32 v29, v26, 2, v27"); e("v_mul_u32_u24 v29, 384, v29"); e("v_lshl_add_u32 v29, v28, 3, v29"); e(f"v_add_u32 v{vTq2}, s{sT2}, v29")
def rowbase(dst, m, og, ol, ob, tmp):
    e(f"v_mul_u32_u24 v{dst}, 1280, v{m}"); e(f"v_add_u32 v{dst}, {og}, v{dst}")
    e(f"s_mul_i32 s{sT3}, s{sG}, {GB}"); e(f"s_add_u32 s{sT3}, s{sT3}, {ol}"); e(f"v_mov_b32 v{tmp}, s{sT3}")
    e(f"v_cmp_eq_u32 vcc, s{sG}, v{m}"); e(f"v_cndmask_b32 v{dst}, v{dst}, v{tmp}, vcc")
    if ob is not None:
        e(f"v_add_u32 v{tmp}, {ob-ol}, v{tmp}"); e(f"v_cmp_le_u32 vcc, 8, v{m}"); e(f"v_cndmask_b32 v{dst}, v{dst}, v{tmp}, vcc")
fill()
e(f"v_mul_u32_u24 v31, 103, v{vL}"); e("v_lshrrev_b32 v31, 10, v31")
e(f"v_mul_u32_u24 v30, 10, v31"); e(f"v_sub_u32 v30, v{vL}, v30"); e(f"v_lshl_add_u32 v29, v30, 4, s{sT1}")
rowbase(vAq, 31, oFG, oFL, oBB, 30); e(f"v_add_u32 v{vAq}, v{vAq}, v29")
e("v_add_u32 v31, 6, v31"); rowbase(vAq16, 31, oFG, oFL, oBB, 30); e(f"v_add_u32 v{vAq16}, v{vAq16}, v29")
e(f"v_mov_b32 v30, {OOB}"); e(f"v_cmp_le_u32 vcc, 30, v{vL}"); e(f"v_cndmask_b32 v{vAq16}, v{vAq16}, v30, vcc")
assert all((c * 103) >> 10 == c // 10 for c in range(64))
e(f"s_lshl_b32 s{sT1}, s{sJ}, 10"); e(f"s_lshl_b32 s{sT2}, s{sWV}, 8"); e(f"s_add_u32 s{sT1}, s{sT1}, s{sT2}")
e(f"v_lshl_add_u32 v{vQst}, v{vL}, 2, s{sT1}")
e(f"s_lshl_b32 s{sT1}, s{sHH}, 13"); e(f"s_add_u32 s{sT1}, s{sT1}, s{sT2}")
e(f"v_lshlrev_b32 v29, 10, v26"); e(f"v_lshl_add_u32 v29, v25, 4, v29"); e(f"v_add_u32 v{vQld}, s{sT1}, v29")
fill()
e(f"s_mul_i32 s{sT1}, s{sWV}, 96"); e(f"s_add_u32 s{sT1}, s{sT1}, {QB}")
e(f"v_lshl_add_u32 v29, v27, 5, s{sT1}"); e("v_lshl_add_u32 v29, v28, 2, v29"); e("v_lshrrev_b32 v30, 1, v26"); e("v_lshl_add_u32 v29, v30, 4, v29")
e("v_and_b32 v30, 1, v26"); e("v_lshl_add_u32 v29, v30, 1, v29"); e(f"v_mov_b32 v30, {QB+384}")
e("v_cmp_le_u32 vcc, 12, v25"); e(f"v_cndmask_b32 v{vQBw}, v29, v30, vcc")
e(f"v_and_b32 v30, 1, v{vL}"); e(f"v_lshlrev_b32 v29, 5, v26"); e("v_lshl_add_u32 v29, v30, 4, v29"); e(f"v_add_u32 v{vQBr}, {QB}, v29")
e("v_mul_u32_u24 v30, 0xaaaa, v30"); e("v_and_b32 v29, 1, v27"); e("v_mul_u32_u24 v29, 0xaaaa, v29"); e("v_lshl_or_b32 v29, v29, 16, v30"); e(f"v_add_u32 v{vIdx}, 0x44444444, v29")
fill()
e(f"s_lshl_b32 s{sT1}, s{sWV}, 8"); e(f"s_add_u32 s{sT1}, s{sT1}, {PT}")
e(f"v_lshrrev_b32 v29, 5, v{vL}"); e(f"v_lshl_add_u32 v29, v29, 6, s{sT1}")
for bit, sh in ((3, 5), (1, 4), (2, 3), (4, 2), (0, 1)): e(f"v_bfe_u32 v30, v{vL}, {bit}, 1"); e(f"v_lshl_add_u32 v29, v30, {sh}, v29")
e(f"v_mov_b32 v{vPw}, v29")
e(f"v_bfe_u32 v29, v{vL}, 4, 1"); e(f"v_bfe_u32 v30, v{vL}, 2, 1"); e(f"v_lshl_add_u32 v29, v29, 5, s{sT1}"); e("v_lshl_add_u32 v29, v30, 4, v29"); e("v_accvgpr_write_b32 a252, v29")
e(f"s_mul_i32 s{sT1}, s{sWV}, 768"); e(f"s_add_u32 s{sT1}, s{sT1}, {ACC}"); e(f"v_lshl_add_u32 v29, v25, 2, s{sT1}")
e(f"v_bfe_u32 v30, v{vL}, 4, 1"); e("v_lshl_add_u32 v29, v30, 7, v29"); e(f"v_lshrrev_b32 v30, 5, v{vL}"); e(f"v_lshl_add_u32 v{vAcc}, v30, 6, v29")

def Krel(t):
    upto(f"K{t}"); ahead(f"K{t}"); A.wait(f"K{t}")
    if "rel" in SKIP: return
    for i in range(6): e(f"ds_write_b128 v{vWr+i%3}, {ar(24*t+4*i)} offset:{(i//3)*8*RS}")
    for ks in range(6): e(f"ds_read_b128 {ar(24*t+4*ks)}, v{vKrd} offset:{64*ks}")
def Vrel(t):
    upto(f"V{t}"); ahead(f"V{t}"); A.wait(f"V{t}")
    if "rel" in SKIP: return
    f, b = vblock(t + 1)
    for i in range(6): e(f"ds_write_b128 v{vWr+i%3}, {rg(f, b+4*i, 4)} offset:{(i//3)*8*RS}")
    f, b = vblock(t & ~1)
    for dt in range(12): e(f"ds_read_b64_tr_b16 {rg(f, b+4*dt+2*(t&1), 2)}, v{vVrd} offset:{32*dt}")
def wq_frags():
    for t in range(3):
        b = F + 10 * t
        for kk in range(2):
            for h in range(2): e(f"ds_read_b64_tr_b16 {vr(b+4*kk+2*h,2)}, v{vTq1} offset:{(32*kk+4*h)*384+32*t}")
        e(f"ds_read_b64_tr_b16 {vr(b+8,2)}, v{vTq2} offset:{64*384+32*t}")
def qstage(a, soff, tag=None, waits=False, fl=0):
    def mm(t, kk):
        n = 4 if kk < 2 else 2
        bb = vr(F + 10 * t + 4 * kk, n) if t < 3 else vr(a + 4 * kk, n)
        c = "0" if kk == 0 else vr(T + 4 * t)
        e(f"v_mfma_f32_16x16x{32 if kk<2 else 16}_bf16 {vr(T+4*t)}, {vr(a+4*kk,n)}, {bb}, {c}")
    def s4(t): return [f"v_add_f32 v{T+4*t}, v{T+4*t}, v{T+4*t+1}", f"v_add_f32 v{T+4*t+2}, v{T+4*t+2}, v{T+4*t+3}", f"v_add_f32 v{T+4*t}, v{T+4*t}, v{T+4*t+2}"]
    if waits: e("s_waitcnt lgkmcnt(2)")
    mm(0, 0); mm(2, 0)
    if waits: e("s_waitcnt lgkmcnt(0)")
    mm(0, 1); mm(2, 1); mm(0, 2); mm(2, 2)
    mm(1, 0); mm(3, 0); mm(1, 1); mm(3, 1); mm(1, 2); mm(3, 2)
    fill(fl)
    for x in s4(0) + s4(2): e(x)
    e(f"v_permlane32_swap_b32 v{T}, v{T+8}")
    x1, x3 = s4(1), s4(3)
    for x in x1[:2] + x3[:2] + [f"v_add_f32 v{T}, v{T}, v{T+8}"] + x1[2:] + x3[2:]: e(x)
    e(f"v_permlane32_swap_b32 v{T+4}, v{T+12}"); e(f"v_add_f32 v{T+4}, v{T+4}, v{T+12}")
    e(f"v_permlane16_swap_b32 v{T}, v{T+4}"); e(f"v_add_f32 v{T}, v{T}, v{T+4}")
    if tag and "qst" in SKIP: pass
    elif tag:
        for q in (1, 2, 3): e(f"v_mov_b32_dpp v{T+q}, v{T} quad_perm:[{q},{q},{q},{q}] row_mask:0xf bank_mask:0xf")
        setexec(0x1111111111111111); A.vmem(f"buffer_store_dwordx4 {vr(T)}, v{vQst}, {sr(sW)}, {soff} offen {'' if 'qplain' in SKIP else 'sc1'}", tag); setexec(FULL)
    else: lstore(f"buffer_store_dword v{T}, v{vQst}, {sr(sW)}, {soff} offen")
def xreduce(r0, r1, r2, r3):
    e(f"v_permlane32_swap_b32 v{r0}, v{r2}"); e(f"v_permlane32_swap_b32 v{r1}, v{r3}")
    e(f"v_add_f32 v{r0}, v{r0}, v{r2}"); e(f"v_add_f32 v{r1}, v{r1}, v{r3}")
    e(f"v_permlane16_swap_b32 v{r0}, v{r1}"); e(f"v_add_f32 v{r0}, v{r0}, v{r1}")
def qloads(b, s0, s1): return [f"buffer_load_dwordx4 {vr(b)}, v{vQld}, {sr(sW)}, {s0} offen sc1", f"buffer_load_dwordx4 {vr(b+4)}, v{vQld}, {sr(sW)}, {s1} offen sc1"]
def qsum(b):
    for q in range(4): e(f"v_add_f32 v{b+q}, v{b+q}, v{b+4+q}")
    xreduce(b, b + 1, b + 2, b + 3)
def rowred(op, v, tmp, steps):
    for sft in steps: e(f"v_{op}_f32_dpp v{v}, v{v}, v{v} row_ror:{sft} row_mask:0xf bank_mask:0xf")
def xrow(op, v, tmp, both=True):
    if both:
        e(f"v_mov_b32 v{tmp}, v{v}"); e(f"v_permlane32_swap_b32 v{v}, v{tmp}"); e(f"v_{op}_f32 v{v}, v{v}, v{tmp}")
    e(f"v_mov_b32 v{tmp}, v{v}"); e(f"v_permlane16_swap_b32 v{v}, v{tmp}"); e(f"v_{op}_f32 v{v}, v{v}, v{tmp}")
QF = 28; DQ = 40; PA = 72; X = 24; vM = 26
def att_zero():
    for t in range(8): e(f"v_mov_b32 v{DQ+4*t}, 0"); e(f"v_mov_b32 v{DQ+4*t+1}, 0")
    for q in range(16): e(f"v_mov_b32 v{PA+q}, 0")
def q_finish(b, mid=None):
    e(f"v_readlane_b32 s{sT0}, v{b}, 15")
    e(f"s_mov_b32 vcc_lo, 0x70007000"); e(f"s_mov_b32 vcc_hi, 0x70007000")
    e(f"v_fma_f32 v{b+1}, -s{sT0}, v{vCS}, v{b}")
    e(f"v_cvt_pk_bf16_f32 v{b+1}, v{b+1}, v{b+1}")
    e(f"ds_write_b16 v{vQBw}, v{b+1}")
    e(f"v_cndmask_b32 v{b+2}, 0, v{b}, vcc")
    e(f"v_add_f32_dpp v{b+2}, v{b+2}, v{b+2} quad_perm:[1,0,3,2] row_mask:0xf bank_mask:0xf")
    e(f"v_add_f32_dpp v{b+2}, v{b+2}, v{b+2} quad_perm:[2,3,0,1] row_mask:0xf bank_mask:0xf")
    e(f"v_mov_b32 v{b+3}, v{b+2}"); e(f"v_permlane32_swap_b32 v{b+2}, v{b+3}"); e(f"v_add_f32 v{b+2}, v{b+2}, v{b+3}")
    if mid: mid()
    else: e("s_waitcnt lgkmcnt(0)"); e("s_barrier")
    for ks in range(3): e(f"ds_read_b128 {vr(QF+4*ks)}, v{vQBr} offset:{128*ks}")
    e(f"v_mov_b32 v{b+3}, v{b+2}"); e(f"v_mov_b32 v{b+1}, s{sT0}"); e(f"v_subrev_f32 v{b+1}, 0x44200000, v{b+1}")
    e(f"v_permlane16_swap_b32 v{b+2}, v{b+3}"); e(f"v_add_f32 v{b+2}, v{b+2}, v{b+3}")
    e(f"v_mul_f32 v{b}, 0x3acccccd, v{b+1}")
    e(f"v_readlane_b32 s{sT0}, v{b+2}, 15")
    e(f"v_mul_f32 v{b}, v{b}, v{b}"); e(f"s_mov_b32 s{sT1}, 0x3acccccd")
    e(f"v_sub_f32 v{b+2}, s{sT0}, v{b+1}")
    e(f"v_fma_f32 v{b+2}, v{b+2}, s{sT1}, -v{b}"); e(f"v_max_f32 v{b+2}, 0, v{b+2}"); e(f"v_add_f32 v{b+2}, 0x3727c5ac, v{b+2}")
    e(f"v_rsq_f32 v{b+2}, v{b+2}"); e(f"v_mul_f32 v{vSC}, 0x3dd53b94, v{b+2}")
def qk_softmax(fl=0):
    def fold(t): e(f"v_add_f32_dpp v{X+t//4}, v{DQ+4*t}, v{DQ+4*t+1} quad_perm:[0,1,2,3] row_mask:{1<<(t%4):#x} bank_mask:0xf")
    def mm(t, ks): e(f"v_smfmac_f32_16x16x64_bf16 {vr(DQ+4*t)}, {vr(QF+4*ks)}, {ar(24*t+8*ks, 8)}, v{vIdx}")
    for ks in range(3):
        e(f"s_waitcnt lgkmcnt({2-ks})")
        for t in range(8): mm(t, ks)
        if ks != 1: fill(fl)
    S = lambda t: X + t // 4 if t % 4 == 0 else DQ + 4 * t
    for t in range(8):
        e(f"v_add_f32 v{S(t)}, v{DQ+4*t}, v{DQ+4*t+1}")
        if t == 2: e(f"v_max3_f32 v{vM}, v{S(0)}, v{S(1)}, v{S(2)}")
        if t in (4, 6): e(f"v_max3_f32 v{vM}, v{vM}, v{S(t-1)}, v{S(t)}")
    e(f"v_max_f32 v{vM}, v{vM}, v{S(7)}")
    mv = [f"v_mov_b32_dpp v{X+t//4}, v{S(t)} quad_perm:[0,1,2,3] row_mask:{1<<(t%4):#x} bank_mask:0xf" for t in (1, 5, 2, 6, 3, 7)] + ["v_accvgpr_read_b32 v27, a252", "s_nop 0"]
    for sft in (8, 4, 2, 1):
        e(mv.pop(0)); e(mv.pop(0)); e(f"v_max_f32_dpp v{vM}, v{vM}, v{vM} row_ror:{sft} row_mask:0xf bank_mask:0xf")
    fill(fl)
    e(f"v_mul_f32 v{vM}, v{vM}, v{vSC}")
    for q in range(2): e(f"v_fma_f32 v{X+q}, v{X+q}, v{vSC}, -v{vM}")
    for q in range(2): e(f"v_exp_f32 v{X+q}, v{X+q}")
    e(f"v_cvt_pk_bf16_f32 v28, v{X}, v{X+1}")
    e(f"ds_write_b16 v{vPw}, v28"); e(f"ds_write_b16_d16_hi v{vPw}, v28 offset:128")
    setexec(0xFF00FF0000FF00FF)
    for u in range(4): e(f"ds_read_b128 {vr(PA+4*u)}, v27 offset:{64*u}")
    setexec(FULL)
    e(f"v_add_f32 v27, v{X}, v{X+1}")
    z = [f"v_mov_b32 v{F+4*dp}, 0" for dp in range(6)] + [f"s_lshl_b32 s{sT1}, s{sWV}, 3", f"s_add_u32 s{sT1}, s{sT1}, {ML4}"]
    for sft in (8, 4, 2, 1):
        e(z.pop(0)); e(z.pop(0)); e(f"v_add_f32_dpp v27, v27, v27 row_ror:{sft} row_mask:0xf bank_mask:0xf")
    xrow("add", 27, 28)
    e(f"v_mov_b32 v28, s{sT1}"); e(f"ds_write_b64 v28, v[26:27]")
def pv_step(u, order=range(6)):
    f, b = vblock(2 * u)
    for dp in order: e(f"v_smfmac_f32_16x16x64_bf16 {vr(F+4*dp)}, {vr(PA+4*u)}, {rg(f, b+8*dp, 8)}, v{vIdx} abid:1")
def pv_post():
    for q in range(3): e(f"v_permlane16_swap_b32 v{F+8*q}, v{F+8*q+4}"); e(f"v_add_f32 v{F+8*q}, v{F+8*q}, v{F+8*q+4}"); e(f"ds_write_b32 v{vAcc}, v{F+8*q} offset:{OACC+256*q}")

WT = [int(x) for x in OPT.get("wt", "2,3,3,0,4").split(",")]
assert sum(WT) == 12
sDo, sDm = 66, 67
ROT = int(OPT.get("rot", 0)); nwd = [0]
def wdma(n, tag=None):
    if "wo" in SKIP: return
    for _ in range(n):
        if ROT and nwd[0] == 6:
            e(f"s_bitcmp1_b32 s{sJ}, 0"); e(f"s_cselect_b32 s{sT1}, 12288, 0"); e(f"s_sub_u32 s{sDm}, s{sDm}, s{sT1}"); e(f"s_mul_i32 s{sT1}, s{sT1}, 20"); e(f"s_sub_u32 s{sDo}, s{sDo}, s{sT1}")
        nwd[0] += 1
        e(f"s_mov_b32 m0, s{sDm}"); e(f"s_add_u32 s{sDm}, s{sDm}, 1024")
        A.vmem(f"buffer_load_dwordx4 v39, {sr(sRA)}, s{sDo} offen {NTR} lds", tag, counted=tag is not None)
        e(f"s_add_u32 s{sDo}, s{sDo}, {16*1280}")
def wdma_addr():
    e(f"v_lshrrev_b32 v38, 2, v{vL}"); e("v_mul_u32_u24 v38, 1280, v38"); e(f"v_and_b32 v39, 3, v{vL}"); e("v_lshl_add_u32 v39, v39, 4, v38")
def role_dma():
    if "dma" in SKIP: return
    e(f"s_cmp_ge_u32 s{sJ}, 20"); e("s_cbranch_scc1 DMAF")
    e(f"s_lshl_b32 s{sDo}, s{sWV}, 3"); e(f"s_add_u32 s{sDo}, s{sDo}, s{sG}"); e(f"s_mul_i32 s{sDo}, s{sDo}, {192*1280}"); e(f"s_lshl_b32 s{sT1}, s{sJ}, 6"); e(f"s_add_u32 s{sDo}, s{sDo}, s{sT1}")
    e(f"s_mul_i32 s{sDm}, s{sWV}, 12288"); e(f"s_add_u32 s{sDm}, s{sDm}, {WO}")
    if ROT: e(f"s_bitcmp1_b32 s{sJ}, 0"); e(f"s_cselect_b32 s{sT1}, 6144, 0"); e(f"s_add_u32 s{sDm}, s{sDm}, s{sT1}"); e(f"s_mul_i32 s{sT1}, s{sT1}, 20"); e(f"s_add_u32 s{sDo}, s{sDo}, s{sT1}")
    if WT[0]: wdma_addr(); wdma(WT[0])
    lab("DMAX")
    def t():
        lab("DMAF"); fdma(); e("s_branch DMAX")
    tail.append(t)
def fdma():
    if True:
        e(f"v_lshrrev_b32 v38, 1, v{vL}"); e("v_mul_u32_u24 v38, 3072, v38"); e(f"v_and_b32 v39, 1, v{vL}"); e("v_lshl_add_u32 v38, v39, 4, v38")
        e(f"s_mul_i32 s{sT2}, s{sG}, 12"); e(f"s_add_u32 s{sT2}, s{sT2}, s{sJ}"); e(f"s_sub_u32 s{sT2}, s{sT2}, 20")
        e(f"s_mul_i32 s{sT0}, s{sWV}, {160*3072}"); e(f"s_lshl_b32 s{sT1}, s{sT2}, 5"); e(f"s_add_u32 s{sT0}, s{sT0}, s{sT1}")
        e(f"s_mul_i32 s{sT1}, s{sWV}, 5120")
        for n in range(5):
            e(f"s_add_u32 m0, s{sT1}, {W1+1024*n}"); e(f"buffer_load_dwordx4 v38, {sr(sRA)}, s{sT0} offen {NTR} lds")
            e(f"s_add_u32 m0, s{sT1}, {W3+1024*n}"); e(f"buffer_load_dwordx4 v38, {sr(sRB)}, s{sT0} offen {NTR} lds")
            if n < 4: e(f"s_add_u32 s{sT0}, s{sT0}, {32*3072}")
W2P = int(OPT.get("w2p", 0))
def w2dma(tag=None):
    e(f"s_mul_i32 s{sT2}, s{sG}, 12"); e(f"s_add_u32 s{sT2}, s{sT2}, s{sJ}"); e(f"s_sub_u32 s{sT2}, s{sT2}, 20"); e(f"s_mul_i32 s97, s{sWV}, 5120")
    e(f"s_mul_i32 s96, s{sT2}, 20480"); e(f"s_add_u32 s96, s96, s97")
    for n in range(5):
        e(f"s_add_u32 m0, s97, {W2+1024*n}"); A.vmem(f"buffer_load_dwordx4 v{vLin}, {sr(sRC)}, s96 offen {NTW} lds", tag, counted=tag is not None)
        if n < 4: e(f"s_add_u32 s96, s96, 1024")
CSL = int(OPT.get("csl", 1))
def cs_store():
    e(f"s_add_u32 s{sT0}, s{sLG}, {2*LS}"); lstore(f"buffer_store_dword v{vCS}, v{vQst}, {sr(sW)}, s{sT0} offen")
def addr_block():
    e(f"v_mov_b32 v109, v{vC1}")
    e(f"v_and_b32 v25, 15, v{vL}"); e(f"v_lshrrev_b32 v26, 4, v{vL}"); e("v_add_u32 v27, 4, v26")
    rowbase(vC1, 26, oFG, oFL, None, 28); rowbase(vC2, 27, oFG, oFL, None, 28)
    e(f"s_min_u32 s{sT3}, s{sJ}, 19"); e(f"s_lshl_b32 s{sT3}, s{sT3}, 6"); e(f"v_lshl_add_u32 v25, v25, 2, s{sT3}")
    e(f"v_add_u32 v{vC1}, v{vC1}, v25"); e(f"v_add_u32 v{vC2}, v{vC2}, v25")
    fill()
    e(f"v_and_b32 v25, 15, v{vL}"); e(f"v_bfe_u32 v27, v{vL}, 2, 2"); e(f"v_and_b32 v28, 3, v{vL}")
    e(f"s_mul_i32 s{sT3}, s{sWV}, 12288"); e(f"s_add_u32 s{sT3}, s{sT3}, {WO}")
    e("v_lshl_add_u32 v29, v26, 3, v27"); e("v_lshlrev_b32 v29, 6, v29"); e("v_lshl_add_u32 v29, v28, 3, v29"); e(f"v_add_u32 v29, s{sT3}, v29"); e("v_accvgpr_write_b32 a246, v29")
    e(f"s_mul_i32 s{sT3}, s{sWV}, 3072"); e(f"s_add_u32 s{sT3}, s{sT3}, {oO}")
    e(f"v_lshl_add_u32 v29, v25, 4, s{sT3}"); e("v_lshl_add_u32 v29, v26, 7, v29"); e("v_accvgpr_write_b32 a247, v29")
    e(f"s_lshl_b32 s{sT3}, s{sWV}, 6"); e(f"s_add_u32 s{sT3}, s{sT3}, {oML}"); e("v_and_b32 v29, 1, v26"); e(f"v_lshl_add_u32 v29, v29, 5, s{sT3}"); e("v_accvgpr_write_b32 a248, v29")
    e(f"s_lshl_b32 s{sT3}, s{sWV}, 8"); e(f"s_add_u32 s{sT3}, s{sT3}, {ACC+YACC}"); e(f"v_lshl_add_u32 v29, v{vL}, 2, s{sT3}"); e("v_accvgpr_write_b32 a249, v29")
    e(f"s_lshl_b32 s{sYl}, s{sJ}, 6"); e(f"s_mul_i32 s{sYg}, s{sG}, 1280"); e(f"s_add_u32 s{sYg}, s{sYg}, s{sYl}"); e(f"s_add_u32 s{sYg}, s{sYg}, {oYG}")
    e(f"s_add_u32 s{sYl}, s{sYl}, s{sLG}"); e(f"s_add_u32 s{sYl}, s{sYl}, {oYL}")
A.wait("x")
for q in range(5): e(f"v_lshlrev_b32 v{88+2*q}, 16, v{80+q}"); e(f"v_and_b32 v{89+2*q}, 0xffff0000, v{80+q}")
e("v_add_f32 v80, v88, v89")
for q in range(2, 10): e(f"v_add_f32 v80, v80, v{88+q}")
rowred("add", 80, None, (8, 4, 2, 1)); xrow("add", 80, 81)
e("v_mul_f32 v80, 0x3acccccd, v80")
for q in range(10): e(f"v_sub_f32 v{88+q}, v{88+q}, v80")
e("v_mul_f32 v82, v88, v88")
for q in range(1, 10): e(f"v_fmac_f32 v82, v{88+q}, v{88+q}")
fill()
rowred("add", 82, None, (8, 4, 2, 1)); xrow("add", 82, 81)
e("v_mul_f32 v82, 0x3acccccd, v82"); e("v_add_f32 v82, 0x3727c5ac, v82"); e("v_rsq_f32 v82, v82")
e("s_mov_b32 vcc_lo, 0xaaaaaaaa"); e("s_mov_b32 vcc_hi, 0xaaaaaaaa"); e("v_mov_b32 v85, 0x3f803f80")
for q in range(10):
    e(f"v_lshlrev_b32 v83, 16, v{70+q}"); e(f"v_and_b32 v84, 0xffff0000, v{70+q}"); e("v_sub_f32 v83, v83, v80"); e("v_sub_f32 v84, v84, v80")
    e("v_mul_f32 v83, v83, v82"); e("v_mul_f32 v84, v84, v82"); e("v_cvt_pk_bf16_f32 v83, v83, v84"); e(f"v_cndmask_b32 v{70+q}, v83, v85, vcc")
    if q == 5: fill()
ahead("wq", int(OPT.get("lax", 6))); A.wait("wq"); e("s_barrier"); wq_frags()
tagl = "global_load_dword v98, v100, s[64:65] sc1"
e("v_mov_b32 v100, 0"); e(f"s_cmp_lg_u32 s{sWV}, 0"); e("s_cbranch_scc1 NOTL"); setexec(1); e(tagl); setexec(FULL); lab("NOTL")
fill(2)
stamp(1)
e(f"s_mul_i32 s{sT2}, s{sWV}, 96"); e(f"s_add_u32 s{sT2}, s{sT2}, {ACC}"); e(f"v_min_u32 v36, 48, v{vL}"); e(f"v_lshl_add_u32 v36, v36, 1, s{sT2}")
e(f"v_mov_b32 v37, {ACC+512}"); e(f"v_cmp_le_u32 vcc, 48, v{vL}"); e("v_cndmask_b32 v36, v36, v37, vcc"); e(f"v_add_u32 v37, {ACC}, v{vLin}")
e("s_waitcnt lgkmcnt(0)")
for kk in range(3):
    for t in range(3):
        n = 4 if kk < 2 else 2
        e(f"v_mfma_f32_16x16x{32 if kk<2 else 16}_bf16 {vr(T+4*t)}, {vr(70+4*kk,n)}, {vr(F+10*t+4*kk,n)}, " + ("0" if kk == 0 else vr(T + 4 * t)))
fill()
e(f"v_mov_b32 v{vCS}, v{T+1}")
for t in (1, 2):
    e(f"v_mov_b32_dpp v{T}, v{T+4*t} quad_perm:[0,1,2,3] row_mask:{1<<t:#x} bank_mask:0xf"); e(f"v_mov_b32_dpp v{vCS}, v{T+4*t+1} quad_perm:[0,1,2,3] row_mask:{1<<t:#x} bank_mask:0xf")
e(f"v_cvt_pk_bf16_f32 v{T}, v{T}, v{T}"); e(f"ds_write_b16 v36, v{T}")
fill(2)
e("s_waitcnt lgkmcnt(0)"); e("s_barrier")
e(f"ds_read_b128 v[28:31], v37"); e(f"s_lshl_b32 s{sT2}, s{sJ}, 9"); e(f"s_add_u32 s{sT2}, s{sT2}, s{sLG}")
e(f"s_cmp_eq_u32 s{sWV}, 0"); e(f"s_cselect_b32 exec_lo, 0xffffff, 1"); e("s_mov_b32 exec_hi, 0"); e(f"s_cselect_b32 s{sT1}, 0, {OOB-0x10000000}"); e(f"v_add_u32 v37, s{sT1}, v{vLin}")
e("s_waitcnt lgkmcnt(0)")
if "qst" not in SKIP: A.vmem(f"buffer_store_dwordx4 v[28:31], v37, {sr(sW)}, s{sT2} offen sc1", "qst")
setexec(FULL)
for q in range(4): e(f"v_mov_b32 v{32+q}, -1")
if "clr" not in SKIP: A.vmem(f"buffer_store_dwordx4 v[32:35], v{vC2}, {sr(sW)}, 0 offen sc1", "qst")
Krel(0)
ahead("qst", int(OPT.get("laq", 9)))
e(f"s_getreg_b32 s{sXcc}, hwreg(HW_REG_XCC_ID, 0, 4)")
e(f"s_cmp_lg_u32 s{sWV}, 0"); e("s_cbranch_scc1 NOHDR")
save = list(A.vm); A.wait("qst"); A.vm = save
e("v_readfirstlane_b32 s96, v98"); e("s_cmp_eq_u32 s96, 0"); e("s_cbranch_scc1 TAGLOOP"); lab("TAGOK")
def t_():
    lab("TAGLOOP"); e(f"s_mov_b32 s{sCnt}, 0"); lab("TAGL2"); e("s_sleep 8"); e(tagl); e("s_waitcnt vmcnt(0)"); e("v_readfirstlane_b32 s96, v98"); e("s_cmp_lg_u32 s96, 0"); e("s_cbranch_scc1 TAGOK")
    e(f"s_add_u32 s{sCnt}, s{sCnt}, 1"); e(f"s_cmp_lt_u32 s{sCnt}, {LIMIT}"); e("s_cbranch_scc1 TAGL2"); e("s_branch TAGOK")
tail.append(t_)
e(f"v_mov_b32 v99, s{sXcc}"); setexec(1); e(f"buffer_store_dwordx2 v[98:99], v{vLin}, {sr(sW)}, s{sT2} offen offset:384 sc1"); setexec(FULL)
lab("NOHDR")
stamp(1, "s100")
Krel(1); Krel(2)
RT = int(OPT.get("rt", 8))
DT = int(OPT.get("dt", 7))
rdy = [f"buffer_load_dwordx2 v[98:99], v100, {sr(sW)}, 0 offen offset:384 sc1"]
e(f"v_lshlrev_b32 v100, 9, v{vL}"); e(f"v_add_u32 v100, s{sLG}, v100"); e(f"v_bfe_u32 v96, v{vL}, 2, 3"); e(f"v_mul_u32_u24 v96, {GB}, v96"); e(f"v_and_b32 v97, 3, v{vL}"); e("v_lshl_add_u32 v96, v97, 9, v96")
e(f"v_cmp_le_u32 vcc, 32, v{vL}"); e("v_cndmask_b32 v100, v100, v96, vcc"); e(f"s_cmp_eq_u32 s{sWV}, 0"); e(f"s_cselect_b32 s{sT0}, 0, {OOB-0x10000000}"); e(f"v_add_u32 v100, s{sT0}, v100")
def ld(t): Kld(t) if t < 8 else Vld(t - 8)
def rel(t): Krel(t) if t < 8 else Vrel(t - 8)
for t in range(5, RT + 2):
    ld(t)
    if t == DT: stamp(12); role_dma()
    if t == RT: A.vmem(rdy[0], "rdy"); stamp(2, "s100")
    if t == 7: addr_block()
    rel(t - 2)
ahead("rdy"); A.wait("rdy"); e(f"s_mov_b32 s{sCnt}, -1"); e(f"v_mov_b32 v97, {FLG}")
e(f"s_cmp_lg_u32 s{sWV}, 0"); e("s_cbranch_scc1 RDYX")
e("v_cmp_ne_u32 vcc, s96, v98"); e("s_cbranch_vccnz RDYLOOP"); lab("RDYOK")
e(f"v_cmp_ne_u32 vcc, s{sXcc}, v99"); e("s_nop 1"); e(f"v_mov_b32 v96, vcc_lo"); e("ds_write_b32 v97, v96")
lab("RDYX")
stamp(13, f"s{sCnt}")
def t_():
    lab("RDYLOOP")
    if SPM == "rdy": e("v_accvgpr_read_b32 v96, a253"); e("v_add_u32 v96, 2000, v96"); e("v_accvgpr_write_b32 a253, v96")
    e(f"s_mov_b32 s{sCnt}, 0"); lab("RDYL2"); e("s_sleep 8"); e(rdy[0]); e("s_waitcnt vmcnt(0)"); e("v_cmp_ne_u32 vcc, s96, v98"); e("s_cbranch_vccz RDYOK")
    e(f"s_add_u32 s{sCnt}, s{sCnt}, 1"); e(f"s_cmp_lt_u32 s{sCnt}, {LIMIT}"); e("s_cbranch_scc1 RDYL2"); e("s_branch RDYOK")
tail.append(t_)
fill(2)
e("s_waitcnt lgkmcnt(0)"); e("s_barrier"); e("ds_read_b32 v96, v97"); e("s_waitcnt lgkmcnt(0)"); e(f"v_readfirstlane_b32 s{sT0}, v96")
e(f"s_cmp_eq_u32 s{sT0}, 0"); e(f"s_cselect_b32 s{sWp+2}, s{sW+2}, 0")
assert not any(t[0] == "K" for _, t in pend) and DT <= RT + 1
if FORCESLOW: e(f"s_mov_b32 s{sWp+2}, 0")
for d_ in (sWp,): e(f"s_mov_b32 s{d_}, s{sW}"); e(f"s_mov_b32 s{d_+1}, s{sW+1}"); e(f"s_mov_b32 s{d_+3}, 0x20000")
stamp(2)
if "pre" not in SKIP:
    A.vmem(f"buffer_load_dwordx4 a[240:243], v109, {sr(sW)}, 0 offen sc1", "pre")
def fp_addr(d):
    e(f"v_lshrrev_b32 v{d}, 3, v{vL}"); e(f"v_mul_u32_u24 v{d}, 2560, v{d}"); e(f"v_and_b32 v{d+1}, 7, v{vL}"); e(f"v_lshl_add_u32 v{d}, v{d+1}, 4, v{d}")
    e(f"s_lshl_b32 s{sT0}, s{sJ}, 7"); e(f"s_add_u32 s{sT0}, s{sT0}, s{sLG}"); e(f"s_add_u32 s{sT0}, s{sT0}, {oFP}")
    e(f"s_cmp_lt_u32 s{sJ}, 20"); e(f"s_cselect_b32 s{sT0}, s{sT0}, {OOB-0x10000000}"); e(f"s_cmp_eq_u32 s{sWV}, 3"); e(f"s_cselect_b32 s{sT0}, s{sT0}, {OOB-0x10000000}")
    e(f"v_add_u32 v{d}, s{sT0}, v{d}"); e(f"v_add_u32 v{d+1}, {8*2560}, v{d}"); e(f"v_mov_b32 v{d+2}, {OOB}"); e(f"v_cmp_le_u32 vcc, 32, v{vL}")
    e(f"s_lshl_b32 s{sT1}, s{sJ}, 6"); e(f"s_sub_u32 s{sT1}, s{sT0}, s{sT1}"); e(f"s_sub_u32 s{sT1}, s{sT1}, {oFP-oBB+512}"); e(f"v_add_u32 v24, s{sT1}, v{vLin}"); e(f"v_cndmask_b32 v{d+1}, v{d+1}, v24, vcc")
    e(f"v_cmp_le_u32 vcc, 36, v{vL}"); e(f"v_cndmask_b32 v{d+1}, v{d+1}, v{d+2}, vcc")
fp_addr(106)
for q in range(2):
    if "pre" not in SKIP: A.vmem(f"buffer_load_dwordx4 a[240:243], v{106+q}, {sr(sW)}, 0 offen sc1", "pre")
    e(f"v_accvgpr_write_b32 a{250+q}, v{106+q}")
e(f"s_lshl_b32 s{sT0}, s{sHH}, 12"); e(f"s_mul_i32 s{sT1}, s{sWV}, 96"); e(f"s_add_u32 s{sT0}, s{sT0}, s{sT1}"); e(f"s_add_u32 s{sT0}, s{sT0}, s{sLG}")
e(f"v_lshrrev_b32 v24, 4, v{vL}"); e("v_lshlrev_b32 v24, 9, v24"); e(f"v_and_b32 v25, 15, v{vL}"); e("v_min_u32 v25, 11, v25"); e("v_lshl_add_u32 v24, v25, 3, v24")
for q in range(2):
    if "qg" not in SKIP: A.vmem(f"buffer_load_dwordx2 v[{64+2*q}:{65+2*q}], v24, {sr(sW)}, s{sT0} offen offset:{2048*q} sc1", "qg")
def pack_store16(d, instr_fn):
    for q in (1, 2, 3): e(f"v_mov_b32_dpp v{d+q}, v{d} quad_perm:[{q},{q},{q},{q}] row_mask:0xf bank_mask:0xf")
    setexec(0x1111); instr_fn(); setexec(FULL)
e(f"s_cmp_lg_u32 s{sWV}, 1"); e("s_cbranch_scc1 NOBASE0"); e(f"s_cmp_ge_u32 s{sJ}, 20"); e("s_cbranch_scc1 NOBASE0")
e(f"v_mov_b32 v28, v{vXR}"); e(f"s_lshl_b32 s{sT0}, s{sJ}, 6"); e(f"s_add_u32 s{sT0}, s{sT0}, s{sLG}"); e(f"s_add_u32 s{sT0}, s{sT0}, {oBA}"); e(f"v_lshlrev_b32 v27, 2, v{vL}")
pack_store16(28, lambda: lstore(f"buffer_store_dwordx4 v[28:31], v27, {sr(sW)}, s{sT0} offen"))
lab("NOBASE0")
stamp(3)
for t in range(RT, RT + 3): rel(t)
ahead("qg"); A.wait("qg")
for q in range(4): e(f"v_lshlrev_b32 v{T+2*q}, 16, v{64+q}"); e(f"v_and_b32 v{T+2*q+1}, 0xffff0000, v{64+q}")
qsum(T)
e(f"v_cvt_pk_bf16_f32 v{T}, v{T}, v{T}"); e(f"ds_write_b16 v{vQBw}, v{T}")
fill(); att_zero()
stamp(4)
fill(2); e("s_waitcnt lgkmcnt(0)"); e("s_barrier")
for ks in range(3): e(f"ds_read_b128 {vr(QF+4*ks)}, v{vQBr} offset:{128*ks}")
e(f"v_mov_b32 v{vSC}, 0x3dd53b94")
qk_softmax(fl=1)
stamp(5)
hold.clear()
for t in range(RT + 3, 12): rel(t)
fill(2)
e("s_waitcnt lgkmcnt(0)"); pv_step(0); fill(); pv_step(1)
Vrel(4); Vld(7); Vrel(5)
e(f"v_and_b32 v{vXR+1}, 0xffff0000, v{vXR}"); e(f"v_lshlrev_b32 v{vXR}, 16, v{vXR}")
PT_ = [int(x) for x in OPT.get("pt", "7,3").split(",")]
PTF = int(OPT.get("ptf", 1))
def late_pf(w, k0, n):
    if "wo" in SKIP: return
    for k in range(k0, k0 + n):
        if k % 4 == 0 and k: e(f"s_add_u32 s{sPo}, s{sPo}, 4096")
        A.vmem(f"buffer_load_dwordx4 a[240:243], v{vLin}, {sr(sWQ)}, s{sPo} offen offset:{1024*(k%4)} {NTP}", "pfo")
for m_, r_ in ((0x0101010101010101, 82), (ROWS9, 84), ((1 << 60) - 1, 86), (0xFF00FF0000FF00FF, 88), (0x01010101, 92)):
    e(f"s_mov_b32 s{r_}, {m_ & 0xffffffff:#x}"); e(f"s_mov_b32 s{r_+1}, {m_ >> 32:#x}"); MASKS[m_] = r_
def stream_tail(w):
    save = list(A.vm)
    pf = sum(PT_) and not (PTF and w)
    if pf and not PTF:
        e(f"s_lshl_b32 s{sPo}, s{sHH}, 3"); e(f"s_add_u32 s{sPo}, s{sPo}, s{sG}"); e(f"s_lshl_b32 s{sPo}, s{sPo}, 3"); e(f"s_add_u32 s{sPo}, s{sPo}, s{sS}")
        e(f"s_lshl_b32 s{sPo}, s{sPo}, 2"); e(f"s_add_u32 s{sPo}, s{sPo}, s{sWV}"); e(f"s_mul_i32 s{sPo}, s{sPo}, 7680")
    if pf and PTF:
        e(f"s_lshl_b32 s{sPo}, s{sWV}, 3"); e(f"s_add_u32 s{sPo}, s{sPo}, s{sG}"); e(f"s_mul_i32 s{sPo}, s{sPo}, 24"); e(f"s_add_u32 s{sPo}, s{sPo}, s{sJ}")
        e(f"s_sub_u32 s{sPo}, s{sPo}, 8"); e(f"s_mul_i32 s{sPo}, s{sPo}, 10240")
    if pf: late_pf(w, 0, PT_[0])
    if w: wdma_addr(); wdma(WT[1], "wo")
    e("s_waitcnt lgkmcnt(0)"); pv_step(2)
    Vrel(6)
    if pf: late_pf(w, PT_[0], PT_[1])
    if w: wdma(WT[2], "wo")
    if not w and W2P == 1: w2dma("w2")
    x = len(A.vm) - 6
    f_, b_ = vblock(8)
    for i in range(6):
        e(f"s_waitcnt vmcnt({5-i+x})"); e(f"ds_write_b128 v{vWr+i%3}, {rg(f_, b_+4*i, 4)} offset:{(i//3)*8*RS}")
    f_, b_ = vblock(6)
    for dt in range(12): e(f"ds_read_b64_tr_b16 {rg(f_, b_+4*dt+2, 2)}, v{vVrd} offset:{32*dt}")
    if w: wdma(WT[3], "wo")
    if not w and W2P == 2: w2dma("w2")
    e("s_branch ATT_LAST")
    A.vm = save
e(f"s_cmp_ge_u32 s{sJ}, 20"); e("s_cbranch_scc1 TAILF")
stream_tail(True)
lab("TAILF")
stream_tail(False)
A.drained()
flush_near()

lab("LOOP")
e(f"s_cmp_lt_u32 s{sJ}, 20"); e(f"s_cselect_b32 s{sXcc}, s{sWV}, 4")
e(f"s_add_u32 s96, s{sLG}, {LS}"); e("s_add_u32 s97, s96, 4096")
if int(OPT.get("cspl", 1)):
    for l in qloads(88, "s96", "s97"): e(l)
wq_frags()
e(f"v_and_b32 v25, 15, v{vL}"); e("v_cmp_eq_u32 vcc, 12, v25"); e("v_mov_b32 v36, 0x3f803f80"); e(f"v_cndmask_b32 v70, 0, v36, vcc")
for q in range(1, 10): e(f"v_mov_b32 v{70+q}, v70")
e(f"s_add_u32 s{sT2}, s{sLG}, 4096")
e(f"s_mul_i32 s{sT0}, s{sWV}, {SCRW}")
e(f"v_mul_u32_u24 v26, 103, v{vL}"); e("v_lshrrev_b32 v26, 10, v26"); e(f"v_lshl_add_u32 v26, v26, 4, v{vLin}"); e(f"v_add_u32 v26, s{sT0}, v26")
e(f"v_mul_u32_u24 v27, 176, v25"); e(f"v_add_u32 v27, s{sT0}, v27"); e(f"v_lshrrev_b32 v28, 4, v{vL}"); e("v_lshl_add_u32 v29, v28, 3, v27"); e("v_lshl_add_u32 v27, v28, 4, v27")
e(f"s_mul_i32 s{sT0}, s{sS}, 160"); e(f"s_add_u32 s{sT0}, s{sT0}, s{sLG}"); e(f"s_sub_u32 s{sT0}, s{sT0}, {LS-oFL}")
e("s_waitcnt lgkmcnt(0)")
gate(sT0, 10, 24)
setexec((1 << 60) - 1)
def bounce(groups, tmp, writes, reads, first=None, w1=0):
    k = nid(); allr = [r for g in groups for r in g[1]]
    for g in groups:
        for l in g[0]: e(l)
    if first: first()
    e(f"s_waitcnt vmcnt({w1})")
    lab(f"BW{k}")
    for x in writes: e(x)
    check(allr, tmp)
    setexec(ROWS9)
    for x in reads: e(x)
    setexec(FULL)
    e(f"s_cbranch_vccnz BR{k}")
    lab(f"BX{k}")
    def t():
        lab(f"BR{k}")
        e(f"s_cmp_ge_u32 s{sCnt}, {LIMIT}"); e(f"s_cbranch_scc1 BX{k}")
        lab(f"BL{k}")
        for gi, (ls, rs) in enumerate(groups):
            setexec((1 << 60) - 1); check(rs, tmp); e("s_mov_b64 exec, vcc"); e(f"s_cbranch_execz BS{k}_{gi}")
            for l in ls: e(l)
            lab(f"BS{k}_{gi}")
        setexec((1 << 60) - 1)
        e(f"s_add_u32 s{sCnt}, s{sCnt}, 1"); e(f"s_cmp_ge_u32 s{sCnt}, {LIMIT}")
        e("s_waitcnt vmcnt(0)")
        check(allr, tmp)
        e(f"s_cbranch_vccz BW{k}"); e(f"s_cbranch_scc0 BL{k}"); e(f"s_branch BW{k}")
    near.append(t)
assert GATE
bounce([([f"buffer_load_dwordx4 v[80:83], v{vAq}, {sr(sW)}, 0 offen sc1"], [80]), ([f"buffer_load_dwordx4 v[84:87], v{vAq16}, {sr(sW)}, 0 offen sc1"], [84])], 24,
       ["ds_write_b128 v26, v[80:83]", f"ds_write_b128 v26, v[84:87] offset:{6*176}"],
       ["ds_read_b128 v[70:73], v27", "ds_read_b128 v[74:77], v27 offset:64", "ds_read_b64 v[78:79], v29 offset:128"],
       first=lambda: [e(l) for l in qloads(88, "s96", "s97")], w1=2)
stamp(1)
e(f"s_cmp_lg_u32 s{sXcc}, 1"); e("s_cbranch_scc1 NOOWL")
e(f"buffer_load_dword a244, v{vC1}, {sr(sW)}, 0 offen sc1"); e(f"buffer_load_dword a245, v{vC2}, {sr(sW)}, 0 offen sc1")
lab("NOOWL")
qstage(70, f"s{sLG}", waits=True)
stamp(2)
att_zero()
e(f"s_waitcnt vmcnt({2 if STAMP == 1 else 1})"); qsum(88); e(f"v_mul_f32 v{vCS}, 0x3acccccd, v88")
for _ in range(int(OPT.get("qd", 0))): e("s_nop 7")
poll_nan(qloads(T, f"s{sLG}", f"s{sT2}"), lambda: qsum(T), T)
stamp(3)
q_finish(T)
stamp(4)
qk_softmax()
stamp(5)
for u in range(3):
    e(f"s_waitcnt lgkmcnt({4-u})"); pv_step(u)
e("s_waitcnt lgkmcnt(0)")
lab("ATT_LAST")
for dp in range(6):
    if dp % 2 == 0: e(f"s_waitcnt lgkmcnt({8-2*dp})")
    pv_step(3, [dp])
def pack8(v):
    e(f"v_mov_b32_dpp v{v+1}, v{v} row_shl:1 row_mask:0xf bank_mask:0xf"); e(f"v_cvt_pk_bf16_f32 v{v}, v{v}, v{v+1}")
    for q in (1, 2, 3): e(f"v_mov_b32_dpp v{v+q}, v{v} row_shl:{2*q} row_mask:0xf bank_mask:0xf")
e(f"s_lshl_b32 s{sT0}, s{sWV}, 8"); e(f"s_add_u32 s{sT0}, s{sT0}, {ACC+OACC}"); e(f"v_lshl_add_u32 v24, v{vL}, 2, s{sT0}")
pv_post()
e(f"v_and_b32 v25, 3, v{vL}"); e(f"v_lshlrev_b32 v25, 3, v25"); e(f"v_add_u32 v25, {ML4}, v25")
e("s_waitcnt lgkmcnt(0)"); e("s_barrier")
stamp(6)
e("ds_read_b64 v[32:33], v25"); e("ds_read2st64_b32 v[40:41], v24 offset0:0 offset1:3"); e("ds_read2st64_b32 v[42:43], v24 offset0:6 offset1:9")
e(f"s_mul_i32 s{sT0}, s{sHH}, 3072"); e(f"s_lshl_b32 s{sT1}, s{sS}, 4"); e(f"s_add_u32 s{sT0}, s{sT0}, s{sT1}"); e(f"s_lshl_b32 s{sT1}, s{sWV}, 10"); e(f"s_add_u32 s{sT0}, s{sT0}, s{sT1}")
e(f"s_add_u32 s{sT0}, s{sT0}, s{sLG}"); e(f"s_add_u32 s{sT0}, s{sT0}, {oO}")
e(f"s_lshl_b32 s{sT1}, s{sJ}, 3"); e(f"s_add_u32 s{sT1}, s{sT1}, s{sLG}"); e(f"s_add_u32 s{sT1}, s{sT1}, {oML}"); e(f"s_cmp_eq_u32 s{sWV}, 3")
e("s_waitcnt lgkmcnt(2)")
e("v_max_f32_dpp v34, v32, v32 quad_perm:[1,0,3,2] row_mask:0xf bank_mask:0xf"); e("v_max_f32_dpp v34, v34, v34 quad_perm:[2,3,0,1] row_mask:0xf bank_mask:0xf")
e("v_sub_f32 v32, v32, v34"); e("v_exp_f32 v32, v32")
e("s_cbranch_scc1 OML"); e("s_waitcnt lgkmcnt(0)")
e("v_mul_f32_dpp v28, v32, v40 quad_perm:[0,0,0,0] row_mask:0xf bank_mask:0xf"); e("v_mul_f32_dpp v29, v32, v41 quad_perm:[1,1,1,1] row_mask:0xf bank_mask:0xf")
e("v_mul_f32_dpp v30, v32, v42 quad_perm:[2,2,2,2] row_mask:0xf bank_mask:0xf"); e("v_fmac_f32_dpp v28, v32, v43 quad_perm:[3,3,3,3] row_mask:0xf bank_mask:0xf")
e("v_add_f32 v29, v29, v30"); e("v_add_f32 v28, v28, v29")
pack8(28)
setexec(0x0101010101010101)
lstore(f"buffer_store_dwordx4 v[28:31], v{vLin}, {sr(sW)}, s{sT0} offen")
setexec(FULL)
def t_():
    lab("OML")
    e("v_mul_f32 v35, v32, v33")
    e("v_add_f32_dpp v35, v35, v35 quad_perm:[1,0,3,2] row_mask:0xf bank_mask:0xf"); e("v_add_f32_dpp v35, v35, v35 quad_perm:[2,3,0,1] row_mask:0xf bank_mask:0xf")
    setexec(1); lstore(f"buffer_store_dwordx2 v[34:35], v{vLin}, {sr(sW)}, s{sT1} offen"); setexec(FULL)
    e("s_waitcnt lgkmcnt(0)"); e("s_branch ODONE")
near.append(t_)
lab("ODONE")
if STAMP == 3 and "land" in SKIP:
    e(f"s_cmp_ge_u32 s{sJ}, 20"); e("s_cbranch_scc1 LND"); wdma_addr(); wdma(WT[4]); lab("LND"); e("s_waitcnt vmcnt(0)")
stamp(7)
if STAMP == 3: e("s_endpgm")
e(f"s_cmp_ge_u32 s{sJ}, 20"); e("s_cbranch_scc1 ROLEF")
def owner_add():
    e("v_lshlrev_b32 v30, 16, v28"); e("v_and_b32 v28, 0xffff0000, v28"); e("v_lshlrev_b32 v31, 16, v29"); e("v_and_b32 v29, 0xffff0000, v29")
    e("v_add_f32 v30, v30, v31"); e("v_add_f32 v28, v28, v29")
    e("v_mov_b32 v31, v30"); e("v_mov_b32 v29, v28"); e("v_permlane32_swap_b32 v30, v31"); e("v_permlane32_swap_b32 v28, v29"); e("v_add_f32 v30, v30, v31"); e("v_add_f32 v28, v28, v29")
    e("v_mov_b32 v31, v30"); e("v_mov_b32 v29, v28"); e("v_permlane16_swap_b32 v30, v31"); e("v_permlane16_swap_b32 v28, v29"); e("v_add_f32 v30, v30, v31"); e("v_add_f32 v28, v28, v29")
    e(f"v_add_f32 v{vXR}, v{vXR}, v30"); e(f"v_add_f32 v{vXR+1}, v{vXR+1}, v28")
    e(f"v_cvt_pk_bf16_f32 v28, v{vXR}, v{vXR+1}")
def own_loads(a0, a1, soff): return [f"buffer_load_dword v28, v{a0}, {sr(sW)}, {soff} offen sc1", f"buffer_load_dword v29, v{a1}, {sr(sW)}, {soff} offen sc1"]
def base_store(ob):
    e(f"s_lshl_b32 s{sT0}, s{sJ}, 6"); e(f"s_add_u32 s{sT0}, s{sT0}, s{sLG}"); e(f"s_add_u32 s{sT0}, s{sT0}, {ob}"); e(f"v_lshlrev_b32 v32, 2, v{vL}")
    pack_store16(28, lambda: lstore(f"buffer_store_dwordx4 v[28:31], v32, {sr(sW)}, s{sT0} offen"))
e(f"s_cmp_eq_u32 s{sLay}, 0"); e("s_cbranch_scc1 WLATE")
def t_():
    lab("WLATE")
    if WT[4]: wdma_addr(); wdma(WT[4])
    if "cs" not in SKIP: cs_store()
    e(f"s_cmp_lg_u32 s{sWV}, 3"); e("s_cbranch_scc1 NOFPC")
    for q in range(4): e(f"v_mov_b32 v{24+q}, -1")
    for q in range(2 if "fpc" not in SKIP else 0): e(f"v_accvgpr_read_b32 v{28+q}, a{250+q}"); lstore(f"buffer_store_dwordx4 v[24:27], v{28+q}, {sr(sW)}, 0 offen")
    e(f"s_add_u32 s{sT0}, s{sYg}, {oFG-oYG}"); setexec(15); e(f"buffer_store_dwordx4 v[24:27], v{vLin}, {sr(sW)}, s{sT0} offen sc1"); setexec(FULL)
    lab("NOFPC")
    for q in range(3): e(f"v_accvgpr_read_b32 v{2+q}, a{246+q}")
    for r_ in [SPARE + 4 * kk for kk in range(6)] + [25, 27, 37, 39]: e(f"v_mov_b32 v{r_}, 0")
    for x in fl0: e(x)
    e("s_waitcnt vmcnt(8)")
    for x in trs[:TRN]: e(x)
    wfirst(); e("s_branch WCHK")
near.append(t_)
for q in range(3): e(f"v_accvgpr_read_b32 v{2+q}, a{246+q}")
for kk in range(6): e(f"v_mov_b32 v{SPARE+4*kk}, 0")
TRN = int(OPT.get("trn", 10))
trs = [f"ds_read_b64_tr_b16 {vr(F+24*t+4*kk+2*h,2)}, v2 offset:{(32*kk+4*h)*64+32*t}" for kk in range(6) for t in range(2) for h in range(2)]
for x in trs[:TRN]: e(x)
def own0():
    e(f"s_cmp_lg_u32 s{sWV}, 1"); e("s_cbranch_scc1 NOOWN0")
    e("v_accvgpr_read_b32 v28, a244"); e("v_accvgpr_read_b32 v29, a245")
    late_check("none", own_loads(vC1, vC2, "0"), [28, 29], 30)
    owner_add()
    if OWP != 2: base_store(oBA)
    lab("NOOWN0")
OWP = int(OPT.get("owp", 0))
if not OWP: own0()
MLR = [24, 36]
for _ in range(int(OPT.get("od", 0))): e("s_nop 7")
for q in (25, 27, 37, 39): e(f"v_mov_b32 v{q}, 0")
def wfirst():
    for x in trs[TRN:]: e(x)
    e("v_accvgpr_read_b32 v5, a249"); e(f"v_lshlrev_b32 v18, 1, v{vL}")
ol = [f"buffer_load_dwordx4 {vr(SPARE+4*kk)}, v3, {sr(sW)}, s{sLG} offen offset:{512*kk} sc1" for kk in range(6)]
ml = [f"buffer_load_dwordx4 {vr(MLR[q])}, v4, {sr(sW)}, s{sLG} offen offset:{16*q} sc1" for q in range(2)]
fl0 = ["s_mov_b32 exec_lo, 0x00ff00ff", "s_mov_b32 exec_hi, 0x00ff00ff"] + ol + ["s_mov_b32 exec_lo, -1", "s_mov_b32 exec_hi, 0"] + ml + ["s_mov_b64 exec, -1"]
poll_sel([(ol, [SPARE + 4 * kk for kk in range(6)]), (ml, [25, 27, 37, 39])], 28, pid=7, first=lambda: (wfirst(), own0() if OWP else None), firstloads=fl0, wl="WCHK")
e("s_waitcnt lgkmcnt(0)")
stamp(8)
M_, U_, L_ = SPARE, SPARE + 1, SPARE + 2
mm_ = [24, 26, 36, 38]
co = [[], [f"v_max3_f32 v{M_}, v24, v26, v36", f"v_max_f32 v{M_}, v{M_}, v38"], [f"v_mov_b32 v{U_}, v{M_}"], [f"v_permlane16_swap_b32 v{M_}, v{U_}", f"v_max_f32 v{M_}, v{M_}, v{U_}"],
      [f"v_sub_f32 v24, v24, v{M_}", f"v_sub_f32 v26, v26, v{M_}"], [f"v_sub_f32 v36, v36, v{M_}", f"v_sub_f32 v38, v38, v{M_}"],
      ["v_exp_f32 v24, v24"], ["v_exp_f32 v26, v26"], ["v_exp_f32 v36, v36"], ["v_exp_f32 v38, v38"],
      [f"v_mul_f32 v{L_}, v24, v25", f"v_fmac_f32 v{L_}, v26, v27"], [f"v_fmac_f32 v{L_}, v36, v37", f"v_fmac_f32 v{L_}, v38, v39"]]
for kk in range(6):
    for t in range(2):
        c = "0" if kk == 0 else vr(28 + 4 * t)
        e(f"v_mfma_f32_16x16x32_bf16 {vr(28+4*t)}, {vr(SPARE+4*kk)}, {vr(F+24*t+4*kk)}, {c}")
        for x in co.pop(0): e(x)
e(f"v_mov_b32 v{U_}, v{L_}"); e(f"s_cmp_lg_u32 s{sWV}, 0"); e(f"v_permlane16_swap_b32 v{L_}, v{U_}"); e(f"v_add_f32 v{L_}, v{L_}, v{U_}"); e(f"v_rcp_f32 v{L_}, v{L_}")
for t in range(2): e(f"v_mul_f32 v{28+4*t}, v24, v{28+4*t}")
for q in range(1, 4):
    for t in range(2): e(f"v_fmac_f32 v{28+4*t}, v{mm_[q]}, v{28+4*t+q}")
e("v_permlane16_swap_b32 v28, v32"); e("v_add_f32 v28, v28, v32"); e(f"v_mul_f32 v28, v28, v{L_}")
e(f"ds_write_b32 v5, v28")
e("s_waitcnt lgkmcnt(0)"); e("s_barrier")
e("s_cbranch_scc1 WNOT0")
e("ds_read2st64_b32 v[28:29], v5 offset0:0 offset1:1"); e("ds_read2st64_b32 v[30:31], v5 offset0:2 offset1:3")
e("s_waitcnt lgkmcnt(1)"); e("v_add_f32 v28, v28, v29"); e("s_waitcnt lgkmcnt(0)"); e("v_add_f32 v30, v30, v31"); e("v_add_f32 v28, v28, v30")
pack8(28)
setexec(0x01010101)
e(f"buffer_store_dwordx4 v[28:31], v18, {sr(sW)}, s{sYg} offen sc1")
lstore(f"buffer_store_dwordx4 v[28:31], v18, {sr(sW)}, s{sYl} offen")
setexec(FULL)
stamp(9); stamp(9, "c")
e(f"v_lshrrev_b32 v37, 5, v{vL}"); e("v_mul_u32_u24 v37, 2560, v37"); e(f"v_and_b32 v38, 31, v{vL}"); e("v_lshl_add_u32 v37, v38, 2, v37")
for k in range(1, 6): e(f"v_add_u32 v{F+k}, {5120*k}, v37")
e(f"s_lshl_b32 s{sT2}, s{sJ}, 7"); e(f"s_add_u32 s{sT2}, s{sT2}, s{sLG}"); e(f"s_add_u32 s{sT2}, s{sT2}, {oFP}")
e(f"s_add_u32 s96, s{sYg}, {oFG-oYG}"); e(f"s_add_u32 s97, s{sYl}, {oFL-oYL}"); e(f"v_lshlrev_b32 v39, 1, v{vL}")
e(f"s_cmp_lg_u32 s{sLay}, 0"); e("s_cbranch_scc1 NOLC")
if "lc" in SKIP: e("s_branch NOLC")
e(f"s_mul_i32 s{sT0}, s{sJ}, {154*16}"); e(f"s_add_u32 s{sT1}, s{sLG}, {LS+oO}")
for q in range(3): e(f"v_add_u32 v{F+8+q}, s{sT0}, v{vLin}"); e(f"v_min_u32 v{F+8+q}, {GB-oO-16}, v{F+8+q}"); e(f"s_add_u32 s{sT0}, s{sT0}, 1024")
for q in range(3): e(f"buffer_load_dwordx4 a[240:243], v{F+8+q}, {sr(sW)}, s{sT1} offen sc1")
for q in range(4): e(f"v_mov_b32 v{F+12+q}, -1")
e(f"s_add_u32 s{sT0}, s{sYg}, {LS}"); e(f"s_add_u32 s{sT3}, s96, {LS}")
e("s_waitcnt vmcnt(0)")
for q in range(3): lstore(f"buffer_store_dwordx4 {vr(F+12)}, v{F+8+q}, {sr(sW)}, s{sT1} offen")
setexec(15)
e(f"buffer_store_dwordx4 {vr(F+12)}, v{vLin}, {sr(sW)}, s{sT0} offen sc1"); e(f"buffer_store_dwordx4 {vr(F+12)}, v{vLin}, {sr(sW)}, s{sT3} offen sc1")
setexec(FULL)
lab("NOLC")
def fpsum():
    e("v_add_f32 v28, v28, v29"); e("v_add_f32 v30, v30, v31"); e("v_add_f32 v32, v32, v33"); e("v_add_f32 v28, v28, v30"); e("v_add_f32 v29, v28, v32"); e("v_add_f32 v28, v28, v32")
poll_nan([f"buffer_load_dword v{28+k}, v{37 if k==0 else F+k}, {sr(sW)}, s{sT2} offen sc1" for k in range(6)], fpsum, 28)
stamp(10)
e("v_permlane32_swap_b32 v28, v29"); e("v_add_f32 v28, v28, v29")
pack8(28)
setexec(0x01010101)
e(f"buffer_store_dwordx4 v[28:31], v39, {sr(sW)}, s96 offen sc1")
lstore(f"buffer_store_dwordx4 v[28:31], v39, {sr(sW)}, s97 offen")
setexec(FULL)
stamp(11)
e("s_branch NEXT")
flush_near()
lab("WNOT0")
WB = int(OPT.get("wb", 0))
if WB:
    e(f"s_cmp_lg_u32 s{sWV}, 2"); e("s_cbranch_scc1 NOWB"); e(f"s_cmp_lg_u32 s{sJ}, 0"); e("s_cbranch_scc1 NOWB"); e(f"s_cmp_eq_u32 s{sLay}, 0"); e("s_cbranch_scc1 NOWB")
    if WB > 1: e(f"s_sleep {WB}")
    e("buffer_wbl2 sc1"); e("s_waitcnt vmcnt(0)"); lab("NOWB")
e(f"s_cmp_lg_u32 s{sWV}, 1"); e("s_cbranch_scc1 NEXT")
if OWP == 2:
    e(f"s_cmp_eq_u32 s{sLay}, 0"); e("s_cbranch_scc1 NOBA1"); e(f"v_cvt_pk_bf16_f32 v28, v{vXR}, v{vXR+1}"); base_store(oBA); lab("NOBA1")
e(f"v_and_b32 v25, 15, v{vL}"); e(f"v_lshrrev_b32 v26, 4, v{vL}")
rowbase(37, 26, oYG, oYL, None, 38); e("v_add_u32 v39, 4, v26"); rowbase(38, 39, oYG, oYL, None, 28)
e(f"s_lshl_b32 s{sT0}, s{sJ}, 6"); e(f"s_add_u32 s{sT0}, s{sT0}, s{sLay}")
e("v_lshl_add_u32 v37, v25, 2, v37"); e("v_lshl_add_u32 v38, v25, 2, v38")
if GATE and ODLY: e(f"s_sleep {ODLY}")
poll(own_loads(37, 38, f"s{sT0}"), [28, 29], 30, slp=(4 if GATE else 0))
owner_add()
e(f"s_cmp_lg_u32 s{sLay}, 0"); e("s_cbranch_scc1 FINAL")
base_store(oBB)
e("s_branch NEXT")
lab("FINAL")
e(f"s_cmp_lg_u32 s{sG}, 0"); e("s_cbranch_scc1 DONE")
e(f"s_lshl_b32 s{sT0}, s{sJ}, 6"); e(f"v_lshlrev_b32 v37, 2, v{vL}")
e(f"s_add_u32 s{sT2}, s{sT0}, s{sLG}"); e(f"s_add_u32 s{sT2}, s{sT2}, {oFL}")
if int(OPT.get("otouch", 0)): setexec(0xffff); e(f"buffer_load_dword v29, v37, {sr(sO)}, s{sT0} offen")
gate(sT2, 4, 28); setexec(FULL)
poll(own_loads(vC1, vC2, f"s{sLay}"), [28, 29], 30)
owner_add()
setexec(0xffff)
e(f"buffer_store_dword v28, v37, {sr(sO)}, s{sT0} offen {OPT.get('ost', '').replace('+', ' ')}")
setexec(FULL)
stamp(12); stamp(12, "c")
e("s_branch DONE") if SPIN else e("s_endpgm")
flush_near()
lab("ROLEF")
e(f"v_and_b32 v25, 15, v{vL}"); e(f"v_lshrrev_b32 v26, 4, v{vL}"); e(f"v_bfe_u32 v27, v{vL}, 2, 2"); e(f"v_and_b32 v36, 3, v{vL}")
FA = SPARE
vCG, vCU = vXR, vXR + 1
sPass = sClr
e(f"s_mov_b32 s{sPass}, 1")
e(f"s_cmp_lg_u32 s{sLay}, 0"); e("s_cbranch_scc1 FW")
e(f"s_mov_b32 s{sPass}, 0")
lab("FW")
e(f"s_mul_i32 s{sT0}, s{sWV}, 5120"); e(f"s_add_u32 s{sT0}, s{sT0}, {W1}")
e("v_lshl_add_u32 v37, v26, 3, v27"); e("v_lshlrev_b32 v37, 5, v37"); e("v_lshl_add_u32 v37, v36, 3, v37"); e(f"v_add_u32 v37, s{sT0}, v37")
for t in range(2):
    for kk in range(5):
        for h in range(2): e(f"ds_read_b64_tr_b16 {vr(F+20*t+4*kk+2*h,2)}, v37 offset:{(32*kk+4*h)*32+20480*t}")
e(f"s_mul_i32 s{sT0}, s{sWV}, 320"); e(f"s_add_u32 s{sT0}, s{sT0}, {W2}")
e(f"v_lshrrev_b32 v80, 2, v{vL}"); e("v_mul_u32_u24 v80, 1280, v80"); e("v_lshl_add_u32 v80, v36, 3, v80"); e(f"v_add_u32 v80, s{sT0}, v80")
e(f"s_lshl_b32 s{sT2}, s{sWV}, 2"); e(f"s_add_u32 s{sT2}, s{sT2}, {ACC+FACC}"); e(f"v_add_u32 v81, s{sT2}, v{vLin}")
e("v_lshl_add_u32 v82, v26, 2, v36"); e("v_lshlrev_b32 v82, 4, v82"); e(f"v_add_u32 v82, {ACC+FACC}, v82")
e("v_cmp_eq_u32 vcc, 12, v25")
e(f"v_mov_b32 v83, {ACC+FACC+512}"); e("v_mov_b32 v85, 0x3727c5ac")
e("v_lshlrev_b32 v84, 6, v25"); e("v_lshl_add_u32 v84, v26, 4, v84")
e("s_mov_b32 s64, 0x03ff03ff"); e("s_mov_b32 s65, 0x03ff03ff"); e("s_mov_b32 s66, 0x3acccccd"); MASKS[0x03FF03FF03FF03FF] = 64
for t in range(10): e(f"s_mov_b32 s{sMf+2*t}, {0x00010001 << t:#x}"); e(f"s_mov_b32 s{sMf+2*t+1}, {0x00010001 << t:#x}")
e("v_mov_b32 v38, 0x3f803f80"); e(f"v_cndmask_b32 v{FA}, 0, v38, vcc")
for q in range(1, 20): e(f"v_mov_b32 v{FA+q}, v{FA}")
e(f"s_mul_i32 s{sT0}, s{sWV}, {SCRW}")
e(f"v_mul_u32_u24 v6, 336, v25"); e("v_lshl_add_u32 v6, v26, 4, v6"); e(f"v_add_u32 v6, s{sT0}, v6")
e(f"v_mul_u32_u24 v37, 52, v{vL}"); e("v_lshrrev_b32 v37, 10, v37")
e(f"v_lshl_add_u32 v87, v37, 4, v{vLin}"); e(f"v_add_u32 v87, s{sT0}, v87")
e(f"v_mul_u32_u24 v27, 320, v37"); e(f"v_sub_u32 v27, v{vLin}, v27")
assert all((c * 52) >> 10 == c // 20 for c in range(64))
FG = [86, 18, 20]
for i in range(3):
    rowbase(FG[i], 37, oYG, oYL, oBA, 38); e(f"v_add_u32 v{FG[i]}, v{FG[i]}, v27")
    if i < 2: e("v_add_u32 v37, 3, v37")
e(f"s_mul_i32 s{sT0}, s{sWV}, 320"); e(f"s_add_u32 s{sT0}, s{sT0}, s{sLay}")
e(f"s_sub_u32 s{sT1}, s{sJ}, 20"); e(f"s_mul_i32 s{sT1}, s{sT1}, 2560"); e(f"s_mul_i32 s{sT3}, s{sWV}, 640"); e(f"s_add_u32 s{sT1}, s{sT1}, s{sT3}")
e(f"s_add_u32 s{sT1}, s{sT1}, s{sLG}"); e(f"s_add_u32 s{sT1}, s{sT1}, {oFP}")
e("s_waitcnt lgkmcnt(0)")
e(f"s_cmp_eq_u32 s{sPass}, 0"); e("s_cbranch_scc1 FW2")
def t_():
    lab("FW2")
    if "cs" not in SKIP: e(f"s_add_u32 s96, s{sLG}, {2*LS}"); lstore(f"buffer_store_dword v{vCS}, v{vQst}, {sr(sW)}, s96 offen")
    if W2P == 0 and "w2" not in SKIP: w2dma()
    e(f"s_sub_u32 s96, s{sJ}, 20"); e("s_lshl_b32 s96, s96, 2"); e(f"s_add_u32 s96, s96, s{sWV}"); e(f"s_mul_i32 s96, s96, {43*16}")
    e(f"v_add_u32 v21, s96, v{vLin}"); e(f"v_min_u32 v21, {32768-16}, v21"); e(f"s_add_u32 s97, s{sLG}, {LS+oQ}")
    e(f"buffer_load_dwordx4 a[240:243], v21, {sr(sW)}, s97 offen sc1")
    e("s_branch FMM")
tail.append(t_)
lab("FPOLL")
W2R = [f"a[{240+2*t}:{241+2*t}]" for t in range(6)] + ["v[108:109]", "v[110:111]", "v[2:3]", "v[4:5]"]
for t in range(10): e(f"ds_read_b64_tr_b16 {W2R[t]}, v80 offset:{32*t}")
e("s_waitcnt lgkmcnt(0)")
e(f"s_mul_i32 s{sT2}, s{sWV}, 320"); e(f"s_add_u32 s{sT2}, s{sT2}, s{sLG}"); e(f"s_add_u32 s{sT2}, s{sT2}, {oYL}")
gate(sT2, 20, 36)
setexec((1 << 60) - 1)
bounce([([f"buffer_load_dwordx4 {vr(T+4*i)}, v{FG[i]}, {sr(sW)}, s{sT0} offen sc1"], [T + 4 * i]) for i in range(3)], 36,
       [f"ds_write_b128 v87, {vr(T+4*i)} offset:{3*336*i}" for i in range(3)], [f"ds_read_b128 {vr(FA+4*kk)}, v6 offset:{64*kk}" for kk in range(5)])
stamp(8)
lab("FMM")
G_, R2, R3, HB = T + 12, T + 13, T + 14, 60
for kk in range(5):
    e(f"s_waitcnt lgkmcnt({4-kk})")
    e(f"v_mfma_f32_16x16x32_bf16 {vr(T+8)}, {vr(FA+4*kk)}, {vr(FA+4*kk)}, " + ("0" if kk == 0 else vr(T + 8)))
dp = lambda dst, sft, rm: f"v_add_f32_dpp v{dst}, v{G_}, v{G_} row_ror:{sft} row_mask:{rm:#x} bank_mask:0xf"
sh = [[f"v_mov_b32 v{G_}, 0", f"v_mov_b32 v{R2}, 0"], [f"v_mov_b32 v{R3}, 0", f"s_cmp_eq_u32 s{sPass}, 0"], [],
      [f"v_add_f32 v{T+8}, v{T+8}, v{T+9}", f"v_add_f32 v{T+10}, v{T+10}, v{T+11}"], [],
      [f"v_add_f32_dpp v{G_}, v{T+8}, v{T+10} quad_perm:[0,1,2,3] row_mask:0xf bank_mask:0x7"], ["s_nop 0", dp(G_, 8, 15)], ["s_nop 0", dp(G_, 4, 15)],
      ["s_nop 0", dp(G_, 2, 15)], []]
for t in range(2):
    for kk in range(5):
        e(f"v_mfma_f32_16x16x32_bf16 {vr(T+4*t)}, {vr(FA+4*kk)}, {vr(F+20*t+4*kk)}, " + ("0" if kk == 0 else vr(T + 4 * t)))
        for x in sh.pop(0): e(x)
e(f"v_add_f32 v{T}, v{T}, v{T+1}"); e(dp(R2, 1, 7)); e(dp(R3, 1, 8)); e(f"v_add_f32 v{T+2}, v{T+2}, v{T+3}"); e(f"v_add_f32 v{T}, v{T}, v{T+2}")
e(f"v_permlane32_swap_b32 v{T}, v{R2}")
e(f"v_add_f32 v{T+4}, v{T+4}, v{T+5}"); e(f"v_add_f32 v{T+6}, v{T+6}, v{T+7}"); e(f"v_add_f32 v{T+4}, v{T+4}, v{T+6}"); e(f"v_add_f32 v{T}, v{T}, v{R2}")
e(f"v_permlane32_swap_b32 v{T+4}, v{R3}"); e(f"v_add_f32 v{T+4}, v{T+4}, v{R3}")
e(f"v_permlane16_swap_b32 v{T}, v{T+4}"); e(f"v_add_f32 v{T}, v{T}, v{T+4}")
e(f"ds_write_b32 v81, v{T}")
e("s_waitcnt lgkmcnt(0)"); e("s_barrier")
e(f"ds_read_b128 {vr(T+4)}, v83 offset:256"); e(f"ds_read_b128 {vr(T)}, v83"); e(f"ds_read_b128 {vr(T+8)}, v82"); e(f"ds_read_b128 {vr(T+12)}, v82 offset:256")
e("s_cbranch_scc1 FCS")
def sum4(b): e(f"v_add_f32 v{b}, v{b}, v{b+1}"); e(f"v_add_f32 v{b+2}, v{b+2}, v{b+3}"); e(f"v_add_f32 v{b}, v{b}, v{b+2}")
e("s_waitcnt lgkmcnt(3)"); sum4(T + 4); e(f"v_mul_f32 v{T+4}, s66, v{T+4}")
e("s_waitcnt lgkmcnt(2)"); sum4(T); e(f"v_fma_f32 v{T}, v{T}, s66, v85")
e(f"v_fma_f32 v{T}, -v{T+4}, v{T+4}, v{T}"); e(f"v_add_f32 v{T+4}, 1.0, v{T+4}"); e(f"v_max_f32 v{T}, v{T}, v85")
e("s_waitcnt lgkmcnt(1)"); e(f"v_rsq_f32 v{T+1}, v{T}"); sum4(T + 8)
e(f"v_mul_f32 v{T+1}, 0xbfb8aa3b, v{T+1}"); e(f"v_fma_f32 v{T+8}, -v{T+4}, v{vCG}, v{T+8}"); e(f"v_mul_f32 v{T+9}, v{T+8}, v{T+1}"); e(f"v_exp_f32 v{T+9}, v{T+9}")
e("s_waitcnt lgkmcnt(0)"); e(f"v_add_f32 v{T+12}, v{T+12}, v{T+13}")
e(f"v_fma_f32 v{T+9}, v{T+9}, v{T}, v{T}"); e(f"v_rcp_f32 v{T+9}, v{T+9}")
e(f"v_add_f32 v{T+14}, v{T+14}, v{T+15}"); e(f"v_add_f32 v{T+12}, v{T+12}, v{T+14}"); e(f"v_mul_f32 v{T+9}, v{T+9}, v{T+8}")
e(f"v_fma_f32 v{T+12}, -v{T+4}, v{vCU}, v{T+12}"); e(f"v_mul_f32 v{T+12}, v{T+12}, v{T+9}")
for q in range(4): e(f"v_mov_b32_dpp v{T+4+q}, v{T+12} quad_perm:[{q},{q},{q},{q}] row_mask:0xf bank_mask:0xf")
e(f"v_cvt_pk_bf16_f32 v{T+4}, v{T+4}, v{T+5}"); e(f"v_cvt_pk_bf16_f32 v{T+5}, v{T+6}, v{T+7}")
def hm(t): return [f"v_cndmask_b32 v{HB+2*t+q}, 0, v{T+4+q}, {sp(sMf+2*t)}" for q in range(2)]
W2Q = ["a[240:243]", "a[244:247]", "a[248:251]", "v[108:111]", "v[2:5]"]
for x in hm(0) + hm(1) + hm(2): e(x)
for t in range(5):
    e(f"v_mfma_f32_16x16x32_bf16 {vr(T)}, {W2Q[t]}, {vr(HB+4*t)}, " + ("0" if t == 0 else vr(T)))
    for k in (2 * t + 3, 2 * t + 4):
        if k < 10:
            for x in hm(k): e(x)
setexec(0x03FF03FF03FF03FF)
lstore(f"buffer_store_dwordx4 {vr(T)}, v84, {sr(sW)}, s{sT1} offen")
setexec(FULL)
stamp(9)
def t_():
    lab("FCS")
    e("s_waitcnt lgkmcnt(0)"); sum4(T + 8); sum4(T + 12)
    e(f"v_mov_b32 v{vCG}, v{T+8}"); e(f"v_mov_b32 v{vCU}, v{T+12}")
    e(f"s_mov_b32 s{sPass}, 1"); e("s_waitcnt vmcnt(0)")
    for q in range(4): e(f"v_mov_b32 v{T+q}, -1")
    if "q1c" not in SKIP: lstore(f"buffer_store_dwordx4 {vr(T)}, v21, {sr(sW)}, s97 offen")
    e("s_barrier"); stamp(13); e("s_branch FPOLL")
tail.append(t_)
lab("NEXT")
e(f"s_cmp_lg_u32 s{sLay}, 0"); e("s_cbranch_scc1 DONE")
e(f"s_mov_b32 s{sLay}, {LS}"); e(f"s_add_u32 s{sLG}, s{sLG}, {LS}"); e(f"s_add_u32 s{sYg}, s{sYg}, {LS}"); e(f"s_add_u32 s{sYl}, s{sYl}, {LS}")
e("s_branch LOOP")
flush_near()
lab("DONE")
if SPIN:
    e("v_accvgpr_read_b32 v38, a253"); e("s_nop 1"); e("v_readfirstlane_b32 s96, v38")
    if SPM == "min":
        e("v_not_b32 v38, v38"); e("v_mov_b32 v39, 192"); e("s_mov_b64 exec, 1"); e("global_atomic_umax v39, v38, s[64:65] sc1"); e("s_waitcnt vmcnt(0)")
        lab("SPW"); e("s_sleep 20"); e("s_memrealtime s[98:99]"); e("s_waitcnt lgkmcnt(0)"); e("s_sub_u32 s98, s98, s96"); e(f"s_cmp_lt_u32 s98, {SPIN*100-1500}"); e("s_cbranch_scc1 SPW")
        e("global_load_dword v38, v39, s[64:65] sc1"); e("s_waitcnt vmcnt(0)"); e("v_not_b32 v38, v38"); e("s_nop 1"); e("v_readfirstlane_b32 s96, v38")
    lab("SPINL"); e("s_memrealtime s[98:99]"); e("s_waitcnt lgkmcnt(0)"); e("s_sub_u32 s98, s98, s96"); e(f"s_cmp_lt_u32 s98, {SPIN*100}"); e("s_cbranch_scc1 SPINL")
e("s_endpgm")
i = 0
while i < len(tail): tail[i](); flush_near(); i += 1
lab("CODE_END")
e("s_endpgm")

body = A.pad()
hdr = [f"; @launch grid=(256,1,1) block=(256,1,1) lds={LDSSZ}", '.amdgcn_target "amdgcn-amd-amdhsa--gfx950"', ".text",
       f".globl {NAME}_kernel", ".p2align 8", f".type {NAME}_kernel,@function", f"{NAME}_kernel:"]
ftr = ['.section .rodata,"a"', ".p2align 6", f".amdhsa_kernel {NAME}_kernel", "  .amdhsa_next_free_vgpr 512", "  .amdhsa_next_free_sgpr 102",
       "  .amdhsa_accum_offset 256", "  .amdhsa_group_segment_fixed_size 0", "  .amdhsa_kernarg_size 96", "  .amdhsa_user_sgpr_count 2",
       "  .amdhsa_user_sgpr_kernarg_segment_ptr 1", "  .amdhsa_system_sgpr_workgroup_id_x 1", ".end_amdhsa_kernel"]
src = "\n".join(hdr + body + ftr) + "\n"
import re
for m in re.finditer(r"buffer_\S+ .*offset:(\d+)", src): assert int(m.group(1)) < 4096, m.group(0)
for m in re.finditer(r"ds_\S+ .*offset:(\d+)", src): assert int(m.group(1)) < 65536, m.group(0)
open(OUT, "w").write(src)
```

```python
import os, sys
sys.path.insert(0, os.path.dirname(os.path.abspath(__file__)))
from asmlib import Asm
NAME = "interleave_layers__sliding_block_cached__glu_gated_swiglu__decode"
OPT = dict(a.split("=") for a in sys.argv[2:])
OUT = sys.argv[1] if len(sys.argv) > 1 else f"/code/{NAME}.s"
STAMP = int(OPT.get("stamp", 0))
NT = OPT.get("nt", "nt").replace("x", "")
NTW = OPT.get("ntw", "nt").replace("x", "")
SKIP = OPT.get("skip", "").split(",")
FORCESLOW = int(OPT.get("slow", 0))
SPIN = int(OPT.get("spin", 0))
A = Asm(); e = A.e; lab = A.lab
tail = []

RS = 416; SCRW = 16 * RS
SCR = 0; WQ = 4 * SCRW; ROLE = WQ + 30720
WO = ROLE; W1 = ROLE; W3 = ROLE + 20480; W2 = ROLE + 40960
MISC = ROLE + 61440; QB = MISC; ACC = MISC + 512
OACC = 0; YACC = 3072; FACC = 4096
PT = ACC + 5120; ML4 = PT + 1024
FLG = ML4 + 64
LDSSZ = FLG + 64
FDMA = OPT.get("fdma", "late")
OMASK = int(OPT.get("omask", 1))
WDMA = OPT.get("wdma", "mid")
PF = OPT.get("pf", "ow")
NTP = OPT.get("ntp", "x").replace("x", "")
NTR = OPT.get("ntr", "x").replace("x", "")
GB = 81920; oQ = 0; oO = 32768; oML = 45056; oYL = 45312; oFL = 46592; oBA = 47872; oBB = 49152; oFP = 51200
GOFF = 8 * GB; oYG = GOFF; oFG = GOFF + 81920; LS = 0xC8000
OOB = 0x7FFFFFF0
sK, sV, sW, sWQ, sRA, sRB, sRC, sX, sO = 8, 12, 16, 20, 24, 28, 32, 36, 40
sG, sJ, sHH, sS, sWV, sKV, sLay, sFast, sCnt = 68, 69, 70, 71, 72, 73, 74, 75, 76
sT0, sT1, sT2 = 77, 78, 79
sLG = 3
sClr = 4
sXcc = 5
sTL = 6
sT3 = 7
sYg, sYl = 80, 81
sMf = 44
def sr(b): return f"s[{b}:{b+3}]"
def sp(b): return f"s[{b}:{b+1}]"
def vr(b, n=4): return f"v[{b}:{b+n-1}]" if n > 1 else f"v{b}"
def ar(b, n=4): return f"a[{b}:{b+n-1}]"
def srd(d, lo, nbytes):
    e(f"s_mov_b32 s{d}, s{lo}"); e(f"s_and_b32 s{d+1}, s{lo+1}, 0xffff")
    e(f"s_mov_b32 s{d+2}, {nbytes}"); e(f"s_mov_b32 s{d+3}, 0x20000")
MASKS = {}
def setexec(mask):
    if mask in MASKS: e(f"s_mov_b64 exec, {sp(MASKS[mask])}"); return
    lo, hi = mask & 0xffffffff, mask >> 32
    if mask == (1 << 64) - 1: e("s_mov_b64 exec, -1")
    elif hi == 0 and lo <= 64: e(f"s_mov_b64 exec, {lo}")
    else: e(f"s_mov_b32 exec_lo, {lo:#x}"); e(f"s_mov_b32 exec_hi, {hi:#x}")
FULL = (1 << 64) - 1
ROWS9 = 0x01FF01FF01FF01FF
vL, vLin, vWr, vKrd, vVrd, vCS, vAq, vAq16, vQst, vQld, vQBw, vQBr, vIdx, vAcc, vTq1, vTq2, vSC, vPw = 0, 1, 2, 5, 6, 7, 8, 9, 10, 11, 12, 13, 14, 15, 16, 17, 18, 19
vC1, vC2, vXR = 20, 21, 22
T = 24
F = 40
SPARE = 88
def vblock(b):
    if b < 2: return ("a", 192 + 24 * b)
    if b == 8: return ("v", SPARE)
    return ("v", 112 + 24 * (b - 2))
def rg(f, b, n): return f"{f}[{b}:{b+n-1}]"

uid = [0]
def nid(): uid[0] += 1; return uid[0]
stamps = [0]
SPINAT = int(OPT.get("spinat", -1))
def stamp(i, val=None):
    if SPIN and val is None and SPINAT % 16 == i:
        k = nid()
        e(f"s_cmp_lg_u32 s{sLay}, {LS*(SPINAT//16)}"); e(f"s_cbranch_scc1 NOSP{k}")
        e("s_memrealtime s[100:101]"); e("s_waitcnt lgkmcnt(0)"); e("v_accvgpr_write_b32 a253, s100"); lab(f"NOSP{k}")
    if not STAMP: return
    if STAMP == 3 and (val is not None or i != 7): return
    if STAMP == 4 and val != "c": return
    if val == "c":
        if STAMP != 4: return
        val = None
    if STAMP == 2 and val is None and i not in (0, 14): return
    if STAMP == 1 and (val is not None or i == 14): return
    e("s_memrealtime s[100:101]"); e("v_accvgpr_write_b32 a254, v38"); e("v_accvgpr_write_b32 a255, v39")
    e(f"s_lshl_b32 s98, s2, 2"); e(f"s_add_u32 s98, s98, s{sWV}"); e("s_lshl_b32 s98, s98, 7")
    e(f"s_cmp_eq_u32 s{sLay}, 0"); e(f"s_cselect_b32 s99, 0, 64"); e(f"s_add_u32 s99, s99, {4*i}"); e("s_add_u32 s98, s98, s99"); e("s_add_u32 s98, s98, 0x40000000")
    e("s_waitcnt lgkmcnt(0)"); e(f"v_mov_b32 v38, {val or 's100'}"); e("v_mov_b32 v39, 0")
    e("s_mov_b64 s[100:101], exec"); e("s_mov_b64 exec, 1")
    A.vmem(f"buffer_store_dword v38, v39, {sr(sW)}, s98 offen", "stamp")
    e("s_mov_b64 exec, s[100:101]"); e("s_nop 1"); e("v_accvgpr_read_b32 v38, a254"); e("v_accvgpr_read_b32 v39, a255")
sWp = sK
def lstore(instr, counted=None):
    assert sr(sW) in instr and not counted
    k = nid()
    e(instr.replace(sr(sW), sr(sWp)))
    e(f"s_cmp_eq_u32 s{sWp+2}, 0"); e(f"s_cbranch_scc1 SLOW{k}")
    lab(f"BACK{k}")
    def t(): lab(f"SLOW{k}"); e(instr + " sc1"); e(f"s_branch BACK{k}")
    tail.append(t)
def check(regs_, tmp):
    r = list(regs_)
    if len(r) == 1: e(f"v_cmp_eq_u32 vcc, -1, v{r[0]}"); return
    cur = r.pop(0)
    while r:
        if len(r) >= 2: e(f"v_max3_u32 v{tmp}, v{cur}, v{r[0]}, v{r[1]}"); r = r[2:]
        else: e(f"v_max_u32 v{tmp}, v{cur}, v{r[0]}"); r = r[1:]
        cur = tmp
    e(f"v_cmp_eq_u32 vcc, -1, v{tmp}")
LIMIT = 0x8000
def poll(loads, regs_, tmp, pid=None, slp=0, first=None):
    k = nid()
    if pid is not None: stamp(pid, "s100")
    e(f"s_mov_b32 s{sCnt}, 1")
    if first:
        for l in loads: e(l)
        first(); e(f"s_branch POLLW{k}")
    lab(f"POLL{k}")
    for l in loads: e(l)
    lab(f"POLLW{k}")
    e("s_waitcnt vmcnt(0)")
    check(regs_, tmp)
    e(f"s_cbranch_vccnz AGAIN{k}")
    lab(f"POLLX{k}")
    def t():
        lab(f"AGAIN{k}")
        if slp: e(f"s_sleep {slp}")
        e(f"s_add_u32 s{sCnt}, s{sCnt}, 1"); e(f"s_cmp_lt_u32 s{sCnt}, {LIMIT}"); e(f"s_cbranch_scc1 POLL{k}"); e(f"s_branch POLLX{k}")
    near.append(t)
    if pid is not None: stamp(pid + 1, "s100"); stamp(pid + 2, f"s{sCnt}")
    A.drained()
SEL = int(OPT.get("sel", 1)); XF = " " + OPT.get("xf", "").replace("+", " "); XF1 = int(OPT.get("xf1", 0))
def poll_sel(groups, tmp, pid=None, first=None, firstloads=None, xf="", wl=None, w1=0):
    allr = [r for g in groups for r in g[1]]
    loads = firstloads or [l for g in groups for l in g[0]]
    if not SEL: return poll(loads, allr, tmp, pid=pid, first=first)
    k = nid()
    if pid is not None: stamp(pid, "s100")
    for l in loads: e(l + (xf if XF1 else ""))
    if first: first()
    if wl: lab(wl)
    if pid is not None and STAMP == 2: e(f"s_mov_b32 s{sCnt}, 1")
    e(f"s_waitcnt vmcnt({w1})")
    check(allr, tmp)
    e(f"s_cbranch_vccnz AGAIN{k}")
    lab(f"POLLX{k}")
    def t():
        lab(f"AGAIN{k}")
        e("s_mov_b64 s[94:95], exec"); e(f"s_mov_b32 s{sCnt}, 1")
        lab(f"AG2{k}")
        if int(OPT.get("osl", 0)): e(f"s_sleep {OPT['osl']}")
        for gi, (ls, rs) in enumerate(groups):
            if len(groups) > 1: check(rs, tmp)
            e("s_mov_b64 exec, vcc")
            if len(groups) > 1: e(f"s_cbranch_execz AG3{k}_{gi}")
            for l in ls: e(l + xf)
            lab(f"AG3{k}_{gi}"); e("s_mov_b64 exec, s[94:95]")
        e(f"s_add_u32 s{sCnt}, s{sCnt}, 1"); e(f"s_cmp_ge_u32 s{sCnt}, {LIMIT}")
        e("s_waitcnt vmcnt(0)")
        check(allr, tmp)
        e(f"s_cbranch_vccz POLLX{k}"); e(f"s_cbranch_scc0 AG2{k}"); e(f"s_branch POLLX{k}")
    near.append(t)
    if pid is not None: stamp(pid + 1, "s100"); stamp(pid + 2, f"s{sCnt}")
    A.drained()
near = []
def flush_near():
    while near: near.pop(0)()
GATE = int(OPT.get("gate", 1)); GDLY = int(OPT.get("gdly", 0)); ODLY = int(OPT.get("odly", 16))
def gate(sreg, nl, tmp):
    if not GATE: return
    setexec((1 << nl) - 1)
    poll([f"buffer_load_dword v{tmp}, v{vLin}, {sr(sW)}, s{sreg} offen sc1"], [tmp], tmp, slp=int(OPT.get("gsl", 0)))
    if GDLY: e(f"s_sleep {GDLY}")
def poll_nan(loads, body, res):
    k = nid()
    e(f"s_mov_b32 s{sCnt}, 1")
    lab(f"POLL{k}")
    for l in loads: e(l)
    e("s_waitcnt vmcnt(0)")
    body()
    e(f"v_cmp_u_f32 vcc, v{res}, v{res}"); e(f"s_cbranch_vccnz AGAIN{k}")
    lab(f"POLLX{k}")
    def t():
        lab(f"AGAIN{k}"); e(f"s_add_u32 s{sCnt}, s{sCnt}, 1"); e(f"s_cmp_lt_u32 s{sCnt}, {LIMIT}"); e(f"s_cbranch_scc1 POLL{k}"); e(f"s_branch POLLX{k}")
    near.append(t)
def late_check(tag, loads, regs_, tmp, pre=None, post=None):
    k = nid()
    A.wait(tag)
    check(regs_, tmp)
    e(f"s_cbranch_vccnz RETRY{k}")
    lab(f"OK{k}")
    def t():
        lab(f"RETRY{k}")
        if pre: pre()
        save = A.vm; poll(loads, regs_, tmp); A.vm = save
        if post: post()
        e(f"s_branch OK{k}")
    tail.append(t)

sTO = 82
sPo, sPw = 90, 91
vLin2 = vXR + 1
e("s_load_dwordx16 s[44:59], s[0:1], 0"); e("s_load_dwordx8 s[60:67], s[0:1], 64")
e("s_cmp_ge_u32 s2, 256"); e("s_cbranch_scc1 CODE_END")
e("s_memrealtime s[96:97]")
e("v_lshrrev_b32 v2, 6, v0"); e("v_and_b32 v24, 63, v0"); e(f"v_readfirstlane_b32 s{sWV}, v2")
e(f"s_and_b32 s{sG}, s2, 7"); e(f"s_lshr_b32 s{sJ}, s2, 3"); e(f"s_lshr_b32 s{sHH}, s{sJ}, 3"); e(f"s_and_b32 s{sS}, s{sJ}, 7")
e(f"v_lshlrev_b32 v{vLin}, 4, v24")
e(f"s_lshl_b32 s{sT0}, s{sHH}, 3"); e(f"s_add_u32 s{sT0}, s{sT0}, s{sG}")
e(f"s_mul_i32 s{sKV}, s{sT0}, 12582912"); e(f"s_lshl_b32 s{sT1}, s{sS}, 2"); e(f"s_add_u32 s{sT1}, s{sT1}, s{sWV}")
e(f"s_mul_i32 s{sT1}, s{sT1}, 6144"); e(f"s_add_u32 s{sKV}, s{sKV}, s{sT1}"); e(f"s_add_u32 s{sKV}, s{sKV}, 11010048")
e(f"v_add_u32 v{vLin2}, 4096, v{vLin}"); e(f"s_mov_b32 s{sK+2}, 402653184"); e(f"s_mov_b32 s{sK+3}, 0x20000")
e("s_getpc_b64 s[100:101]"); lab("PCREF")
e(f"s_sub_u32 s100, s100, PCREF-{NAME}_kernel"); e("s_subb_u32 s101, s101, 0")
e(f"s_lshl_b32 s{sT1}, s{sS}, 12"); e(f"v_lshl_add_u32 v25, v0, 4, s{sT1}")
e(f"v_cmp_gt_u32 vcc, CODE_END-{NAME}_kernel-16, v25"); e("s_and_saveexec_b64 s[98:99], vcc"); e("s_cbranch_execz NOCPF")
e(f"global_load_dwordx4 a[240:243], v25, s[100:101]")
lab("NOCPF"); e("s_mov_b64 exec, -1")
e(f"s_mul_i32 s{sT2}, s{sT0}, 384")
e(f"s_mov_b32 s{sLay}, 0"); e(f"s_mul_i32 s{sLG}, s{sG}, {GB}"); e(f"s_mov_b32 s{sFast}, 0")
e(f"s_lshl_b32 s{sT0}, s{sJ}, 9"); e(f"s_add_u32 s{sT0}, s{sT0}, s{sLG}"); e(f"s_add_u32 s{sT0}, s{sT0}, {oO}"); e(f"v_add_u32 v{vC1}, s{sT0}, v{vLin}")
e(f"s_lshl_b32 s{sT0}, s{sG}, 2"); e(f"s_add_u32 s{sT0}, s{sT0}, s{sJ}"); e(f"s_mul_i32 s{sT0}, s{sT0}, 320"); e(f"s_add_u32 s{sT0}, s{sT0}, {oYG-512}"); e(f"v_add_u32 v25, s{sT0}, v{vLin}")
e("v_cmp_le_u32 vcc, 32, v0"); e(f"v_cndmask_b32 v{vC2}, v{vC1}, v25, vcc"); e(f"v_mov_b32 v25, {OOB}"); e(f"v_cndmask_b32 v{vC1}, v{vC1}, v25, vcc")
e(f"s_cmp_lt_u32 s{sJ}, 4"); e(f"s_cselect_b32 s{sT0}, 52, 32"); e(f"v_cmp_le_u32 vcc, s{sT0}, v0"); e(f"v_cndmask_b32 v{vC2}, v{vC2}, v25, vcc")
e(f"s_mov_b32 s{sW+2}, 1610612736"); e(f"s_mov_b32 s{sW+3}, 0x20000")
e("s_waitcnt lgkmcnt(0)")
e(f"s_mov_b32 s{sK}, s46"); e(f"s_and_b32 s{sK+1}, s47, 0xffff"); e(f"s_mov_b32 s{sW}, s66"); e(f"s_and_b32 s{sW+1}, s67, 0xffff")
if SPIN: e("v_mov_b32 v38, s96"); e("v_accvgpr_write_b32 a253, v38")
SPM = OPT.get("spm", "")
RW = int(OPT.get("rw", 16)); RF = (320 - 20 * RW) // 12
assert 20 * RW + 12 * RF == 320
NPW = -(-max(RW, RF) * 24 // 64)
pend = []
def q_tile(srdn, t, f, base, tag):
    so = sKV if t == 0 else sTO + t
    for i in range(6):
        pend.append((f"buffer_load_dwordx4 {rg(f, base+4*i, 4)}, v{vLin if i < 4 else vLin2}, {sr(srdn)}, s{so} offen offset:{1024*(i%4)} {NT}", tag))
def qK(t): q_tile(sK, t, "a", 24 * t, f"K{t}")
def qV(t): f, b = vblock(t + 1); q_tile(sV, t, f, b, f"V{t}")
def q_pfo():
    for n in range(9): pend.append((f"buffer_load_dwordx4 a[240:243], v{[vLin, vLin, vLin2, 108, 109][n//2]}, {sr(sWQ)}, s{sPo} offen offset:{1024*(n%4)} {NTP}", "pfo"))
def q_pfw():
    for n in range(NPW): pend.append((f"buffer_load_dwordx4 a[240:243], v{101+n}, {sr(sX)}, s{sPw} offen {NTP}", "pfw"))
nfill = [0]; BARN = int(OPT.get("barn", 6)); THR = int(OPT.get("thr", 0)); THRE = int(OPT.get("thre", 0))
hold = {"V7", "pfw", "pfo"}; LA = int(OPT.get("la", 12))
def ahead(tag, LA=LA):
    while tag in A.vm and pend and pend[0][1] not in hold and len(A.vm) - 1 - max(i for i, x in enumerate(A.vm) if x == tag) < LA: fill()
def fill(n=1):
    for _ in range(n):
        if pend and not (pend[0][1] in hold):
            if THR and nfill[0] >= THR and len(pend) > THRE: e(f"s_waitcnt vmcnt({THR-1})")
            x, tag = pend.pop(0); A.vmem(x, tag); nfill[0] += 1
            if BARN and nfill[0] > 12 and nfill[0] % BARN == 0 and len(pend) >= 3: e("s_barrier")
BARS = OPT.get("bar", "").split(",")
def upto(tag):
    while any(t == tag for _, t in pend): fill()
    if tag in BARS or "every" in BARS and tag not in ("K0", "K1", "V7"): e("s_barrier")
def Kld(t): upto(f"K{t}")
def Vld(t): upto(f"V{t}")
for it in OPT.get("order", "K0 K1 K2 K3 w K4 K5 K6 K7 V0 V1 V2 V3 V4 V5 V6 V7").replace(",", " ").split():
    if it == "w":
        if "pfw" not in SKIP: q_pfw()
    elif it == "o":
        if "pfo" not in SKIP: q_pfo()
    elif it[0] == "K": qK(int(it[1]))
    else: qV(int(it[1]))
fill(int(OPT.get("k0e", 2)))
e(f"s_or_b32 s{sT0}, s2, s{sWV}"); e("s_cbranch_scc1 NOTAG")
e(f"s_or_b32 s{sT0}, s96, 1"); e(f"v_mov_b32 v26, s{sT0}"); setexec(1); e(f"global_store_dword v{vLin}, v26, s[64:65] sc1"); setexec(FULL)
lab("NOTAG")
if STAMP == 1: e("s_memrealtime s[94:95]")
e(f"s_add_u32 s{sTO+1}, s{sKV}, 196608")
srd(sV, 48, 402653184); srd(sWQ, 50, 7864320); srd(sX, 44, 1280); srd(sO, 62, 1280)
srd(sRB, 58, 1966080); srd(sRC, 60, 1966080)
e(f"s_cmp_lt_u32 s{sJ}, 20"); e(f"s_cselect_b32 s{sRA}, s52, s56"); e(f"s_cselect_b32 s{sRA+1}, s53, s57"); e(f"s_cselect_b32 s{sRA+2}, s{sWQ+2}, s{sRB+2}")
e(f"s_and_b32 s{sRA+1}, s{sRA+1}, 0xffff"); e(f"s_mov_b32 s{sRA+3}, 0x20000")
TLBW = OPT.get("tlbw", "")
def tlb_touch():
    e(f"s_cmp_lg_u32 s{sWV}, 3"); e("s_cbranch_scc1 NOTLB")
    if "j" in TLBW: e(f"s_cmp_lg_u32 s{sS}, 0"); e("s_cbranch_scc1 NOTLB")
    e("v_mul_u32_u24 v26, 1376256, v24"); e("v_lshlrev_b32 v27, 20, v24")
    setexec(3)
    if "v" in TLBW: e(f"buffer_load_dword a243, v26, {sr(sV)}, s{sKV} offen nt"); e(f"buffer_load_dword a243, v26, {sr(sK)}, s{sKV} offen nt")
    if "w" in TLBW:
        e(f"global_load_dword a243, v27, s[56:57] nt"); e(f"buffer_load_dword a243, v27, {sr(sRB)}, 0 offen nt"); e(f"buffer_load_dword a243, v27, {sr(sRC)}, 0 offen nt")
        setexec(0xff); e(f"global_load_dword a243, v27, s[52:53] nt")
    setexec(FULL)
    lab("NOTLB")
if TLBW: tlb_touch()
if STAMP:
    e(f"s_lshl_b32 s98, s2, 2"); e(f"s_add_u32 s98, s98, s{sWV}"); e("s_lshl_b32 s98, s98, 7"); e("s_add_u32 s98, s98, 0x40000000")
    e("v_mov_b32 v38, s96"); e("v_mov_b32 v39, 0"); e("s_mov_b64 exec, 1")
    A.vmem(f"buffer_store_dword v38, v39, {sr(sW)}, s98 offen", "stamp")
    if STAMP == 1: e("s_waitcnt lgkmcnt(0)"); e("v_mov_b32 v37, s94"); A.vmem(f"buffer_store_dword v37, v39, {sr(sW)}, s98 offen offset:56", "stamp")
    e("s_mov_b64 exec, -1")
for t in range(2, 8): e(f"s_add_u32 s{sTO+t}, s{sTO+t-1}, 196608")
e(f"v_mov_b32 v{vL}, v24")
e(f"s_mul_i32 s{sT0}, s{sWV}, {SCRW}")
for r in range(3):
    e(f"v_add_u32 v25, {64*r}, v{vL}"); e("v_mul_u32_u24 v26, 171, v25"); e("v_lshrrev_b32 v26, 12, v26")
    e("v_mul_u32_u24 v27, 24, v26"); e("v_sub_u32 v27, v25, v27"); e("v_lshlrev_b32 v27, 4, v27")
    e(f"v_mul_u32_u24 v25, {RS}, v26"); e(f"v_add3_u32 v{vWr+r}, v25, v27, s{sT0}")
    e(f"v_mul_u32_u24 v25, 12288, v26"); e(f"v_add_u32 v{F+r}, v25, v27")
    e(f"v_mul_u32_u24 v25, 3072, v26"); e(f"v_add_u32 v{101+r}, v25, v27")
assert all((c * 171) >> 12 == c // 24 for c in range(192))
e(f"v_and_b32 v25, 15, v{vL}"); e(f"v_lshrrev_b32 v26, 4, v{vL}")
e(f"v_bfe_u32 v27, v{vL}, 2, 2"); e(f"v_and_b32 v28, 3, v{vL}")
e(f"s_mul_i32 s{sT1}, s{sS}, 160")
e(f"v_lshlrev_b32 v36, 4, v26"); e(f"v_lshlrev_b32 v37, 3, v26"); e(f"v_lshlrev_b32 v39, 2, v{vL}")
A.vmem(f"buffer_load_dwordx4 v[70:73], v36, {sr(sX)}, s{sT1} offen", "x")
A.vmem(f"buffer_load_dwordx4 v[74:77], v36, {sr(sX)}, s{sT1} offen offset:64", "x")
A.vmem(f"buffer_load_dwordx2 v[78:79], v37, {sr(sX)}, s{sT1} offen offset:128", "x")
A.vmem(f"buffer_load_dwordx4 v[80:83], v{vLin}, {sr(sX)}, 0 offen", "x")
A.vmem(f"buffer_load_dword v84, v39, {sr(sX)}, 0 offen offset:1024", "x")
e(f"s_lshl_b32 s{sT3}, s{sJ}, 6"); e(f"v_lshlrev_b32 v38, 2, v25")
A.vmem(f"buffer_load_dword v{vXR}, v38, {sr(sX)}, s{sT3} offen", "x")
e(f"s_mul_i32 s{sT1}, s{sS}, {80*12288}"); e(f"s_add_u32 s{sT2}, s{sT2}, s{sT1}")
e(f"s_mul_i32 s{sT1}, s{sWV}, {8*12288}"); e(f"s_add_u32 s{sT2}, s{sT2}, s{sT1}")
e(f"s_mul_i32 s{sT1}, s{sWV}, 3072"); e(f"s_add_u32 s{sT1}, s{sT1}, {WQ}")
for gi in range(3):
    if gi == 2: e(f"s_cmp_ge_u32 s{sWV}, 2"); e("s_cbranch_scc1 NOWQ3")
    for r in range(3):
        e(f"s_add_u32 m0, s{sT1}, {gi*4*3072 + r*1024}")
        if "wq" not in SKIP: A.vmem(f"buffer_load_dwordx4 v{F+r}, {sr(sWQ)}, s{sT2} offen {NTW} lds", "wq", counted=(gi < 2))
    if gi < 2: e(f"s_add_u32 s{sT2}, s{sT2}, {32*12288}")
lab("NOWQ3")
e(f"s_mul_i32 s{sT1}, s{sS}, 160")
srd(sWQ, 52, 7864320)
e(f"s_cmp_lt_u32 s{sWV}, 2"); e(f"s_cselect_b32 s{sX}, s56, s58"); e(f"s_cselect_b32 s{sX+1}, s57, s59"); e(f"s_and_b32 s{sX+1}, s{sX+1}, 0xffff"); e(f"s_mov_b32 s{sX+2}, 1966080")
e(f"s_lshl_b32 s{sPo}, s{sHH}, 3"); e(f"s_add_u32 s{sPo}, s{sPo}, s{sG}"); e(f"s_lshl_b32 s{sPo}, s{sPo}, 3"); e(f"s_add_u32 s{sPo}, s{sPo}, s{sS}")
e(f"s_mul_i32 s{sPo}, s{sPo}, 30720"); e(f"s_mul_i32 s{sT2}, s{sWV}, 6144"); e(f"s_add_u32 s{sPo}, s{sPo}, s{sT2}")
e(f"s_cmp_eq_u32 s{sWV}, 3"); e(f"s_cselect_b32 s{sT2}, 3072, 0"); e(f"s_add_u32 s{sPo}, s{sPo}, s{sT2}")
e(f"s_cmp_lt_u32 s{sWV}, 2"); e(f"s_cselect_b32 s{sT2}, {OOB-0x10000000}, 0"); e(f"v_add_u32 v108, s{sT2}, v{vLin2}"); e(f"v_add_u32 v109, 4096, v108")
e(f"s_and_b32 s{sPw}, s{sWV}, 1"); e(f"s_lshl_b32 s{sT2}, s{sJ}, 1"); e(f"s_add_u32 s{sPw}, s{sPw}, s{sT2}")
e(f"s_mul_i32 s{sT2}, s{sPw}, {RF}"); e(f"s_add_u32 s{sT2}, s{sT2}, {40*(RW-RF)}"); e(f"s_mul_i32 s{sPw}, s{sPw}, {RW}")
e(f"s_cmp_lt_u32 s{sJ}, 20"); e(f"s_cselect_b32 s{sPw}, s{sPw}, s{sT2}"); e(f"s_mov_b32 s{sT3}, {RW*3072}"); e(f"s_cselect_b32 s{sT3}, s{sT3}, {RF*3072}")
e(f"s_mul_i32 s{sPw}, s{sPw}, 3072"); e(f"s_mul_i32 s{sT2}, s{sG}, 384"); e(f"s_add_u32 s{sPw}, s{sPw}, s{sT2}")
e(f"v_mov_b32 v29, {OOB-0x10000000}")
for n in range(3, NPW): e(f"v_add_u32 v{101+n}, {8*3072}, v{98+n}")
for n in range(NPW): e(f"v_cmp_gt_u32 vcc, s{sT3}, v{101+n}"); e(f"v_cndmask_b32 v{101+n}, v29, v{101+n}, vcc")
hold -= {"pfw", "pfo"}
fill(3)
e(f"v_mul_u32_u24 v29, {RS}, v25"); e(f"v_lshl_add_u32 v29, v26, 4, v29"); e(f"v_add_u32 v{vKrd}, s{sT0}, v29")
e(f"v_lshrrev_b32 v29, 2, v{vL}"); e(f"v_mul_u32_u24 v29, {RS}, v29"); e(f"v_lshl_add_u32 v29, v28, 3, v29"); e(f"v_add_u32 v{vVrd}, s{sT0}, v29")
e(f"s_mul_i32 s{sT2}, s{sWV}, 96"); e(f"s_add_u32 s{sT2}, s{sT2}, {WQ}")
e("v_lshl_add_u32 v29, v26, 3, v27"); e("v_mul_u32_u24 v29, 384, v29"); e("v_lshl_add_u32 v29, v28, 3, v29"); e(f"v_add_u32 v{vTq1}, s{sT2}, v29")
e("v_lshl_add_u32 v29, v26, 2, v27"); e("v_mul_u32_u24 v29, 384, v29"); e("v_lshl_add_u32 v29, v28, 3, v29"); e(f"v_add_u32 v{vTq2}, s{sT2}, v29")
REPL = int(OPT.get("repl", 1))
def rowbase(dst, m, og, ol, ob, tmp):
    e(f"s_mul_i32 s{sT3}, s{sG}, {10240 if REPL else 0}")
    if og == oYG: e(f"s_cmp_eq_u32 s{sLay}, 0"); e(f"s_cselect_b32 s{sT3}, 0, s{sT3}")
    e(f"s_add_u32 s{sT3}, s{sT3}, {og}")
    e(f"v_mul_u32_u24 v{dst}, 1280, v{m}"); e(f"v_add_u32 v{dst}, s{sT3}, v{dst}")
    e(f"s_mul_i32 s{sT3}, s{sG}, {GB}"); e(f"s_add_u32 s{sT3}, s{sT3}, {ol}"); e(f"v_mov_b32 v{tmp}, s{sT3}")
    e(f"v_cmp_eq_u32 vcc, s{sG}, v{m}"); e(f"v_cndmask_b32 v{dst}, v{dst}, v{tmp}, vcc")
    if ob is not None:
        e(f"v_add_u32 v{tmp}, {ob-ol}, v{tmp}"); e(f"v_cmp_le_u32 vcc, 8, v{m}"); e(f"v_cndmask_b32 v{dst}, v{dst}, v{tmp}, vcc")
fill()
e(f"v_mul_u32_u24 v31, 103, v{vL}"); e("v_lshrrev_b32 v31, 10, v31")
e(f"v_mul_u32_u24 v30, 10, v31"); e(f"v_sub_u32 v30, v{vL}, v30"); e(f"v_lshl_add_u32 v29, v30, 4, s{sT1}")
rowbase(vAq, 31, oFG, oFL, oBB, 30); e(f"v_add_u32 v{vAq}, v{vAq}, v29")
e("v_add_u32 v31, 6, v31"); rowbase(vAq16, 31, oFG, oFL, oBB, 30); e(f"v_add_u32 v{vAq16}, v{vAq16}, v29")
e(f"v_mov_b32 v30, {OOB}"); e(f"v_cmp_le_u32 vcc, 30, v{vL}"); e(f"v_cndmask_b32 v{vAq16}, v{vAq16}, v30, vcc")
assert all((c * 103) >> 10 == c // 10 for c in range(64))
e(f"s_lshl_b32 s{sT1}, s{sJ}, 10"); e(f"s_lshl_b32 s{sT2}, s{sWV}, 8"); e(f"s_add_u32 s{sT1}, s{sT1}, s{sT2}")
e(f"v_lshl_add_u32 v{vQst}, v{vL}, 2, s{sT1}")
e(f"s_lshl_b32 s{sT1}, s{sHH}, 13"); e(f"s_add_u32 s{sT1}, s{sT1}, s{sT2}")
e(f"v_lshlrev_b32 v29, 10, v26"); e(f"v_lshl_add_u32 v29, v25, 4, v29"); e(f"v_add_u32 v{vQld}, s{sT1}, v29")
fill()
e(f"s_mul_i32 s{sT1}, s{sWV}, 96"); e(f"s_add_u32 s{sT1}, s{sT1}, {QB}")
e(f"v_lshl_add_u32 v29, v27, 5, s{sT1}"); e("v_lshl_add_u32 v29, v28, 2, v29"); e("v_lshrrev_b32 v30, 1, v26"); e("v_lshl_add_u32 v29, v30, 4, v29")
e("v_and_b32 v30, 1, v26"); e("v_lshl_add_u32 v29, v30, 1, v29"); e(f"v_mov_b32 v30, {QB+384}")
e("v_cmp_le_u32 vcc, 12, v25"); e(f"v_cndmask_b32 v{vQBw}, v29, v30, vcc")
e(f"v_and_b32 v30, 1, v{vL}"); e(f"v_lshlrev_b32 v29, 5, v26"); e("v_lshl_add_u32 v29, v30, 4, v29"); e(f"v_add_u32 v{vQBr}, {QB}, v29")
e("v_mul_u32_u24 v30, 0xaaaa, v30"); e("v_and_b32 v29, 1, v27"); e("v_mul_u32_u24 v29, 0xaaaa, v29"); e("v_lshl_or_b32 v29, v29, 16, v30"); e(f"v_add_u32 v{vIdx}, 0x44444444, v29")
fill()
e(f"s_lshl_b32 s{sT1}, s{sWV}, 8"); e(f"s_add_u32 s{sT1}, s{sT1}, {PT}")
e(f"v_lshrrev_b32 v29, 5, v{vL}"); e(f"v_lshl_add_u32 v29, v29, 6, s{sT1}")
for bit, sh in ((3, 5), (1, 4), (2, 3), (4, 2), (0, 1)): e(f"v_bfe_u32 v30, v{vL}, {bit}, 1"); e(f"v_lshl_add_u32 v29, v30, {sh}, v29")
e(f"v_mov_b32 v{vPw}, v29")
e(f"v_bfe_u32 v29, v{vL}, 4, 1"); e(f"v_bfe_u32 v30, v{vL}, 2, 1"); e(f"v_lshl_add_u32 v29, v29, 5, s{sT1}"); e("v_lshl_add_u32 v29, v30, 4, v29"); e("v_accvgpr_write_b32 a252, v29")
e(f"s_mul_i32 s{sT1}, s{sWV}, 768"); e(f"s_add_u32 s{sT1}, s{sT1}, {ACC}"); e(f"v_lshl_add_u32 v29, v25, 2, s{sT1}")
e(f"v_bfe_u32 v30, v{vL}, 4, 1"); e("v_lshl_add_u32 v29, v30, 7, v29"); e(f"v_lshrrev_b32 v30, 5, v{vL}"); e(f"v_lshl_add_u32 v{vAcc}, v30, 6, v29")

def Krel(t):
    upto(f"K{t}"); ahead(f"K{t}"); A.wait(f"K{t}")
    if "rel" in SKIP: return
    for i in range(6): e(f"ds_write_b128 v{vWr+i%3}, {ar(24*t+4*i)} offset:{(i//3)*8*RS}")
    for ks in range(6): e(f"ds_read_b128 {ar(24*t+4*ks)}, v{vKrd} offset:{64*ks}")
def Vrel(t):
    upto(f"V{t}"); ahead(f"V{t}"); A.wait(f"V{t}")
    if "rel" in SKIP: return
    f, b = vblock(t + 1)
    for i in range(6): e(f"ds_write_b128 v{vWr+i%3}, {rg(f, b+4*i, 4)} offset:{(i//3)*8*RS}")
    f, b = vblock(t & ~1)
    for dt in range(12): e(f"ds_read_b64_tr_b16 {rg(f, b+4*dt+2*(t&1), 2)}, v{vVrd} offset:{32*dt}")
def wq_frags():
    for t in range(3):
        b = F + 10 * t
        for kk in range(2):
            for h in range(2): e(f"ds_read_b64_tr_b16 {vr(b+4*kk+2*h,2)}, v{vTq1} offset:{(32*kk+4*h)*384+32*t}")
        e(f"ds_read_b64_tr_b16 {vr(b+8,2)}, v{vTq2} offset:{64*384+32*t}")
def qstage(a, soff, tag=None, waits=False, fl=0):
    def mm(t, kk):
        n = 4 if kk < 2 else 2
        bb = vr(F + 10 * t + 4 * kk, n) if t < 3 else vr(a + 4 * kk, n)
        c = "0" if kk == 0 else vr(T + 4 * t)
        e(f"v_mfma_f32_16x16x{32 if kk<2 else 16}_bf16 {vr(T+4*t)}, {vr(a+4*kk,n)}, {bb}, {c}")
    def s4(t): return [f"v_add_f32 v{T+4*t}, v{T+4*t}, v{T+4*t+1}", f"v_add_f32 v{T+4*t+2}, v{T+4*t+2}, v{T+4*t+3}", f"v_add_f32 v{T+4*t}, v{T+4*t}, v{T+4*t+2}"]
    if waits: e("s_waitcnt lgkmcnt(2)")
    mm(0, 0); mm(2, 0)
    if waits: e("s_waitcnt lgkmcnt(0)")
    mm(0, 1); mm(2, 1); mm(0, 2); mm(2, 2)
    mm(1, 0); mm(3, 0); mm(1, 1); mm(3, 1); mm(1, 2); mm(3, 2)
    fill(fl)
    for x in s4(0) + s4(2): e(x)
    e(f"v_permlane32_swap_b32 v{T}, v{T+8}")
    x1, x3 = s4(1), s4(3)
    for x in x1[:2] + x3[:2] + [f"v_add_f32 v{T}, v{T}, v{T+8}"] + x1[2:] + x3[2:]: e(x)
    e(f"v_permlane32_swap_b32 v{T+4}, v{T+12}"); e(f"v_add_f32 v{T+4}, v{T+4}, v{T+12}")
    e(f"v_permlane16_swap_b32 v{T}, v{T+4}"); e(f"v_add_f32 v{T}, v{T}, v{T+4}")
    if tag and "qst" in SKIP: pass
    elif tag:
        for q in (1, 2, 3): e(f"v_mov_b32_dpp v{T+q}, v{T} quad_perm:[{q},{q},{q},{q}] row_mask:0xf bank_mask:0xf")
        setexec(0x1111111111111111); A.vmem(f"buffer_store_dwordx4 {vr(T)}, v{vQst}, {sr(sW)}, {soff} offen {'' if 'qplain' in SKIP else 'sc1'}", tag); setexec(FULL)
    else: lstore(f"buffer_store_dword v{T}, v{vQst}, {sr(sW)}, {soff} offen")
def xreduce(r0, r1, r2, r3):
    e(f"v_permlane32_swap_b32 v{r0}, v{r2}"); e(f"v_permlane32_swap_b32 v{r1}, v{r3}")
    e(f"v_add_f32 v{r0}, v{r0}, v{r2}"); e(f"v_add_f32 v{r1}, v{r1}, v{r3}")
    e(f"v_permlane16_swap_b32 v{r0}, v{r1}"); e(f"v_add_f32 v{r0}, v{r0}, v{r1}")
def qloads(b, s0, s1): return [f"buffer_load_dwordx4 {vr(b)}, v{vQld}, {sr(sW)}, {s0} offen sc1", f"buffer_load_dwordx4 {vr(b+4)}, v{vQld}, {sr(sW)}, {s1} offen sc1"]
def qsum(b):
    for q in range(4): e(f"v_add_f32 v{b+q}, v{b+q}, v{b+4+q}")
    xreduce(b, b + 1, b + 2, b + 3)
def rowred(op, v, tmp, steps):
    for sft in steps: e(f"v_{op}_f32_dpp v{v}, v{v}, v{v} row_ror:{sft} row_mask:0xf bank_mask:0xf")
def xrow(op, v, tmp, both=True):
    if both:
        e(f"v_mov_b32 v{tmp}, v{v}"); e(f"v_permlane32_swap_b32 v{v}, v{tmp}"); e(f"v_{op}_f32 v{v}, v{v}, v{tmp}")
    e(f"v_mov_b32 v{tmp}, v{v}"); e(f"v_permlane16_swap_b32 v{v}, v{tmp}"); e(f"v_{op}_f32 v{v}, v{v}, v{tmp}")
QF = 28; DQ = 40; PA = 72; X = 24; vM = 26
def att_zero():
    for t in range(8): e(f"v_mov_b32 v{DQ+4*t}, 0"); e(f"v_mov_b32 v{DQ+4*t+1}, 0")
    for q in range(16): e(f"v_mov_b32 v{PA+q}, 0")
def q_finish(b, mid=None):
    e(f"v_readlane_b32 s{sT0}, v{b}, 15")
    e(f"s_mov_b32 vcc_lo, 0x70007000"); e(f"s_mov_b32 vcc_hi, 0x70007000")
    e(f"v_fma_f32 v{b+1}, -s{sT0}, v{vCS}, v{b}")
    e(f"v_cvt_pk_bf16_f32 v{b+1}, v{b+1}, v{b+1}")
    e(f"ds_write_b16 v{vQBw}, v{b+1}")
    e(f"v_cndmask_b32 v{b+2}, 0, v{b}, vcc")
    e(f"v_add_f32_dpp v{b+2}, v{b+2}, v{b+2} quad_perm:[1,0,3,2] row_mask:0xf bank_mask:0xf")
    e(f"v_add_f32_dpp v{b+2}, v{b+2}, v{b+2} quad_perm:[2,3,0,1] row_mask:0xf bank_mask:0xf")
    e(f"v_mov_b32 v{b+3}, v{b+2}"); e(f"v_permlane32_swap_b32 v{b+2}, v{b+3}"); e(f"v_add_f32 v{b+2}, v{b+2}, v{b+3}")
    if mid: mid()
    else: e("s_waitcnt lgkmcnt(0)"); e("s_barrier")
    for ks in range(3): e(f"ds_read_b128 {vr(QF+4*ks)}, v{vQBr} offset:{128*ks}")
    e(f"v_mov_b32 v{b+3}, v{b+2}"); e(f"v_mov_b32 v{b+1}, s{sT0}"); e(f"v_subrev_f32 v{b+1}, 0x44200000, v{b+1}")
    e(f"v_permlane16_swap_b32 v{b+2}, v{b+3}"); e(f"v_add_f32 v{b+2}, v{b+2}, v{b+3}")
    e(f"v_mul_f32 v{b}, 0x3acccccd, v{b+1}")
    e(f"v_readlane_b32 s{sT0}, v{b+2}, 15")
    e(f"v_mul_f32 v{b}, v{b}, v{b}"); e(f"s_mov_b32 s{sT1}, 0x3acccccd")
    e(f"v_sub_f32 v{b+2}, s{sT0}, v{b+1}")
    e(f"v_fma_f32 v{b+2}, v{b+2}, s{sT1}, -v{b}"); e(f"v_max_f32 v{b+2}, 0, v{b+2}"); e(f"v_add_f32 v{b+2}, 0x3727c5ac, v{b+2}")
    e(f"v_rsq_f32 v{b+2}, v{b+2}"); e(f"v_mul_f32 v{vSC}, 0x3dd53b94, v{b+2}")
def qk_softmax(fl=0):
    def fold(t): e(f"v_add_f32_dpp v{X+t//4}, v{DQ+4*t}, v{DQ+4*t+1} quad_perm:[0,1,2,3] row_mask:{1<<(t%4):#x} bank_mask:0xf")
    def mm(t, ks): e(f"v_smfmac_f32_16x16x64_bf16 {vr(DQ+4*t)}, {vr(QF+4*ks)}, {ar(24*t+8*ks, 8)}, v{vIdx}")
    for ks in range(3):
        e(f"s_waitcnt lgkmcnt({2-ks})")
        for t in range(8): mm(t, ks)
        if ks != 1: fill(fl)
    S = lambda t: X + t // 4 if t % 4 == 0 else DQ + 4 * t
    for t in range(8):
        e(f"v_add_f32 v{S(t)}, v{DQ+4*t}, v{DQ+4*t+1}")
        if t == 2: e(f"v_max3_f32 v{vM}, v{S(0)}, v{S(1)}, v{S(2)}")
        if t in (4, 6): e(f"v_max3_f32 v{vM}, v{vM}, v{S(t-1)}, v{S(t)}")
    e(f"v_max_f32 v{vM}, v{vM}, v{S(7)}")
    mv = [f"v_mov_b32_dpp v{X+t//4}, v{S(t)} quad_perm:[0,1,2,3] row_mask:{1<<(t%4):#x} bank_mask:0xf" for t in (1, 5, 2, 6, 3, 7)] + ["v_accvgpr_read_b32 v27, a252", "s_nop 0"]
    for sft in (8, 4, 2, 1):
        e(mv.pop(0)); e(mv.pop(0)); e(f"v_max_f32_dpp v{vM}, v{vM}, v{vM} row_ror:{sft} row_mask:0xf bank_mask:0xf")
    fill(fl)
    e(f"v_mul_f32 v{vM}, v{vM}, v{vSC}")
    for q in range(2): e(f"v_fma_f32 v{X+q}, v{X+q}, v{vSC}, -v{vM}")
    for q in range(2): e(f"v_exp_f32 v{X+q}, v{X+q}")
    e(f"v_cvt_pk_bf16_f32 v28, v{X}, v{X+1}")
    e(f"ds_write_b16 v{vPw}, v28"); e(f"ds_write_b16_d16_hi v{vPw}, v28 offset:128")
    setexec(0xFF00FF0000FF00FF)
    for u in range(4): e(f"ds_read_b128 {vr(PA+4*u)}, v27 offset:{64*u}")
    setexec(FULL)
    e(f"v_add_f32 v27, v{X}, v{X+1}")
    z = [f"v_mov_b32 v{F+4*dp}, 0" for dp in range(6)] + [f"s_lshl_b32 s{sT1}, s{sWV}, 3", f"s_add_u32 s{sT1}, s{sT1}, {ML4}"]
    for sft in (8, 4, 2, 1):
        e(z.pop(0)); e(z.pop(0)); e(f"v_add_f32_dpp v27, v27, v27 row_ror:{sft} row_mask:0xf bank_mask:0xf")
    xrow("add", 27, 28)
    e(f"v_mov_b32 v28, s{sT1}"); e(f"ds_write_b64 v28, v[26:27]")
def pv_step(u, order=range(6)):
    f, b = vblock(2 * u)
    for dp in order: e(f"v_smfmac_f32_16x16x64_bf16 {vr(F+4*dp)}, {vr(PA+4*u)}, {rg(f, b+8*dp, 8)}, v{vIdx} abid:1")
def pv_post():
    for q in range(3): e(f"v_permlane16_swap_b32 v{F+8*q}, v{F+8*q+4}"); e(f"v_add_f32 v{F+8*q}, v{F+8*q}, v{F+8*q+4}"); e(f"ds_write_b32 v{vAcc}, v{F+8*q} offset:{OACC+256*q}")

WT = [int(x) for x in OPT.get("wt", "2,3,3,0,4").split(",")]
assert sum(WT) == 12
sDo, sDm = 66, 67
ROT = int(OPT.get("rot", 0)); nwd = [0]
def wdma(n, tag=None):
    if "wo" in SKIP: return
    for _ in range(n):
        if ROT and nwd[0] == 6:
            e(f"s_bitcmp1_b32 s{sJ}, 0"); e(f"s_cselect_b32 s{sT1}, 12288, 0"); e(f"s_sub_u32 s{sDm}, s{sDm}, s{sT1}"); e(f"s_mul_i32 s{sT1}, s{sT1}, 20"); e(f"s_sub_u32 s{sDo}, s{sDo}, s{sT1}")
        nwd[0] += 1
        e(f"s_mov_b32 m0, s{sDm}"); e(f"s_add_u32 s{sDm}, s{sDm}, 1024")
        A.vmem(f"buffer_load_dwordx4 v39, {sr(sRA)}, s{sDo} offen {NTR} lds", tag, counted=tag is not None)
        e(f"s_add_u32 s{sDo}, s{sDo}, {16*1280}")
def wdma_addr():
    e(f"v_lshrrev_b32 v38, 2, v{vL}"); e("v_mul_u32_u24 v38, 1280, v38"); e(f"v_and_b32 v39, 3, v{vL}"); e("v_lshl_add_u32 v39, v39, 4, v38")
def role_dma():
    if "dma" in SKIP: return
    e(f"s_cmp_ge_u32 s{sJ}, 20"); e("s_cbranch_scc1 DMAF")
    e(f"s_lshl_b32 s{sDo}, s{sWV}, 3"); e(f"s_add_u32 s{sDo}, s{sDo}, s{sG}"); e(f"s_mul_i32 s{sDo}, s{sDo}, {192*1280}"); e(f"s_lshl_b32 s{sT1}, s{sJ}, 6"); e(f"s_add_u32 s{sDo}, s{sDo}, s{sT1}")
    e(f"s_mul_i32 s{sDm}, s{sWV}, 12288"); e(f"s_add_u32 s{sDm}, s{sDm}, {WO}")
    if ROT: e(f"s_bitcmp1_b32 s{sJ}, 0"); e(f"s_cselect_b32 s{sT1}, 6144, 0"); e(f"s_add_u32 s{sDm}, s{sDm}, s{sT1}"); e(f"s_mul_i32 s{sT1}, s{sT1}, 20"); e(f"s_add_u32 s{sDo}, s{sDo}, s{sT1}")
    if WT[0]: wdma_addr(); wdma(WT[0])
    lab("DMAX")
    def t():
        lab("DMAF"); fdma(); e("s_branch DMAX")
    tail.append(t)
def fdma():
    if True:
        e(f"v_lshrrev_b32 v38, 1, v{vL}"); e("v_mul_u32_u24 v38, 3072, v38"); e(f"v_and_b32 v39, 1, v{vL}"); e("v_lshl_add_u32 v38, v39, 4, v38")
        e(f"s_mul_i32 s{sT2}, s{sG}, 12"); e(f"s_add_u32 s{sT2}, s{sT2}, s{sJ}"); e(f"s_sub_u32 s{sT2}, s{sT2}, 20")
        e(f"s_mul_i32 s{sT0}, s{sWV}, {160*3072}"); e(f"s_lshl_b32 s{sT1}, s{sT2}, 5"); e(f"s_add_u32 s{sT0}, s{sT0}, s{sT1}")
        e(f"s_mul_i32 s{sT1}, s{sWV}, 5120")
        for n in range(5):
            e(f"s_add_u32 m0, s{sT1}, {W1+1024*n}"); e(f"buffer_load_dwordx4 v38, {sr(sRA)}, s{sT0} offen {NTR} lds")
            e(f"s_add_u32 m0, s{sT1}, {W3+1024*n}"); e(f"buffer_load_dwordx4 v38, {sr(sRB)}, s{sT0} offen {NTR} lds")
            if n < 4: e(f"s_add_u32 s{sT0}, s{sT0}, {32*3072}")
W2P = int(OPT.get("w2p", 0))
def w2dma(tag=None):
    e(f"s_mul_i32 s{sT2}, s{sG}, 12"); e(f"s_add_u32 s{sT2}, s{sT2}, s{sJ}"); e(f"s_sub_u32 s{sT2}, s{sT2}, 20"); e(f"s_mul_i32 s97, s{sWV}, 5120")
    e(f"s_mul_i32 s96, s{sT2}, 20480"); e(f"s_add_u32 s96, s96, s97")
    for n in range(5):
        e(f"s_add_u32 m0, s97, {W2+1024*n}"); A.vmem(f"buffer_load_dwordx4 v{vLin}, {sr(sRC)}, s96 offen {NTW} lds", tag, counted=tag is not None)
        if n < 4: e(f"s_add_u32 s96, s96, 1024")
CSL = int(OPT.get("csl", 1))
def cs_store():
    e(f"s_add_u32 s{sT0}, s{sLG}, {2*LS}"); lstore(f"buffer_store_dword v{vCS}, v{vQst}, {sr(sW)}, s{sT0} offen")
def addr_block():
    e(f"v_mov_b32 v109, v{vC1}")
    e(f"v_and_b32 v25, 15, v{vL}"); e(f"v_lshrrev_b32 v26, 4, v{vL}"); e("v_add_u32 v27, 4, v26")
    rowbase(vC1, 26, oFG, oFL, None, 28); rowbase(vC2, 27, oFG, oFL, None, 28)
    e(f"s_min_u32 s{sT3}, s{sJ}, 19"); e(f"s_lshl_b32 s{sT3}, s{sT3}, 6"); e(f"v_lshl_add_u32 v25, v25, 2, s{sT3}")
    e(f"v_add_u32 v{vC1}, v{vC1}, v25"); e(f"v_add_u32 v{vC2}, v{vC2}, v25")
    fill()
    e(f"v_and_b32 v25, 15, v{vL}"); e(f"v_bfe_u32 v27, v{vL}, 2, 2"); e(f"v_and_b32 v28, 3, v{vL}")
    e(f"s_mul_i32 s{sT3}, s{sWV}, 12288"); e(f"s_add_u32 s{sT3}, s{sT3}, {WO}")
    e("v_lshl_add_u32 v29, v26, 3, v27"); e("v_lshlrev_b32 v29, 6, v29"); e("v_lshl_add_u32 v29, v28, 3, v29"); e(f"v_add_u32 v29, s{sT3}, v29"); e("v_accvgpr_write_b32 a246, v29")
    e(f"s_mul_i32 s{sT3}, s{sWV}, 3072"); e(f"s_add_u32 s{sT3}, s{sT3}, {oO}")
    e(f"v_lshl_add_u32 v29, v25, 4, s{sT3}"); e("v_lshl_add_u32 v29, v26, 7, v29"); e("v_accvgpr_write_b32 a247, v29")
    e(f"s_lshl_b32 s{sT3}, s{sWV}, 6"); e(f"s_add_u32 s{sT3}, s{sT3}, {oML}"); e("v_and_b32 v29, 1, v26"); e(f"v_lshl_add_u32 v29, v29, 5, s{sT3}"); e("v_accvgpr_write_b32 a248, v29")
    e(f"s_lshl_b32 s{sT3}, s{sWV}, 8"); e(f"s_add_u32 s{sT3}, s{sT3}, {ACC+YACC}"); e(f"v_lshl_add_u32 v29, v{vL}, 2, s{sT3}"); e("v_accvgpr_write_b32 a249, v29")
    e(f"s_lshl_b32 s{sYl}, s{sJ}, 6"); e(f"s_mul_i32 s{sYg}, s{sG}, 1280"); e(f"s_add_u32 s{sYg}, s{sYg}, s{sYl}"); e(f"s_add_u32 s{sYg}, s{sYg}, {oYG}")
    e(f"s_add_u32 s{sYl}, s{sYl}, s{sLG}"); e(f"s_add_u32 s{sYl}, s{sYl}, {oYL}")
A.wait("x")
for q in range(5): e(f"v_lshlrev_b32 v{88+2*q}, 16, v{80+q}"); e(f"v_and_b32 v{89+2*q}, 0xffff0000, v{80+q}")
e("v_add_f32 v80, v88, v89")
for q in range(2, 10): e(f"v_add_f32 v80, v80, v{88+q}")
rowred("add", 80, None, (8, 4, 2, 1)); xrow("add", 80, 81)
e("v_mul_f32 v80, 0x3acccccd, v80")
for q in range(10): e(f"v_sub_f32 v{88+q}, v{88+q}, v80")
e("v_mul_f32 v82, v88, v88")
for q in range(1, 10): e(f"v_fmac_f32 v82, v{88+q}, v{88+q}")
fill()
rowred("add", 82, None, (8, 4, 2, 1)); xrow("add", 82, 81)
e("v_mul_f32 v82, 0x3acccccd, v82"); e("v_add_f32 v82, 0x3727c5ac, v82"); e("v_rsq_f32 v82, v82")
e("s_mov_b32 vcc_lo, 0xaaaaaaaa"); e("s_mov_b32 vcc_hi, 0xaaaaaaaa"); e("v_mov_b32 v85, 0x3f803f80")
for q in range(10):
    e(f"v_lshlrev_b32 v83, 16, v{70+q}"); e(f"v_and_b32 v84, 0xffff0000, v{70+q}"); e("v_sub_f32 v83, v83, v80"); e("v_sub_f32 v84, v84, v80")
    e("v_mul_f32 v83, v83, v82"); e("v_mul_f32 v84, v84, v82"); e("v_cvt_pk_bf16_f32 v83, v83, v84"); e(f"v_cndmask_b32 v{70+q}, v83, v85, vcc")
    if q == 5: fill()
ahead("wq", int(OPT.get("lax", 6))); A.wait("wq"); e("s_barrier"); wq_frags()
tagl = "global_load_dword v98, v100, s[64:65] sc1"
e("v_mov_b32 v100, 0"); e(f"s_cmp_lg_u32 s{sWV}, 0"); e("s_cbranch_scc1 NOTL"); setexec(1); e(tagl); setexec(FULL); lab("NOTL")
fill(2)
stamp(1)
e(f"s_mul_i32 s{sT2}, s{sWV}, 96"); e(f"s_add_u32 s{sT2}, s{sT2}, {ACC}"); e(f"v_min_u32 v36, 48, v{vL}"); e(f"v_lshl_add_u32 v36, v36, 1, s{sT2}")
e(f"v_mov_b32 v37, {ACC+512}"); e(f"v_cmp_le_u32 vcc, 48, v{vL}"); e("v_cndmask_b32 v36, v36, v37, vcc"); e(f"v_add_u32 v37, {ACC}, v{vLin}")
e("s_waitcnt lgkmcnt(0)")
for kk in range(3):
    for t in range(3):
        n = 4 if kk < 2 else 2
        e(f"v_mfma_f32_16x16x{32 if kk<2 else 16}_bf16 {vr(T+4*t)}, {vr(70+4*kk,n)}, {vr(F+10*t+4*kk,n)}, " + ("0" if kk == 0 else vr(T + 4 * t)))
fill()
e(f"v_mov_b32 v{vCS}, v{T+1}")
for t in (1, 2):
    e(f"v_mov_b32_dpp v{T}, v{T+4*t} quad_perm:[0,1,2,3] row_mask:{1<<t:#x} bank_mask:0xf"); e(f"v_mov_b32_dpp v{vCS}, v{T+4*t+1} quad_perm:[0,1,2,3] row_mask:{1<<t:#x} bank_mask:0xf")
e(f"v_cvt_pk_bf16_f32 v{T}, v{T}, v{T}"); e(f"ds_write_b16 v36, v{T}")
fill(2)
e("s_waitcnt lgkmcnt(0)"); e("s_barrier")
e(f"ds_read_b128 v[28:31], v37"); e(f"s_lshl_b32 s{sT2}, s{sJ}, 9"); e(f"s_add_u32 s{sT2}, s{sT2}, s{sLG}")
e(f"s_cmp_eq_u32 s{sWV}, 0"); e(f"s_cselect_b32 exec_lo, 0xffffff, 1"); e("s_mov_b32 exec_hi, 0"); e(f"s_cselect_b32 s{sT1}, 0, {OOB-0x10000000}"); e(f"v_add_u32 v37, s{sT1}, v{vLin}")
e("s_waitcnt lgkmcnt(0)")
if "qst" not in SKIP: A.vmem(f"buffer_store_dwordx4 v[28:31], v37, {sr(sW)}, s{sT2} offen sc1", "qst")
setexec(FULL)
for q in range(4): e(f"v_mov_b32 v{32+q}, -1")
if "clr" not in SKIP: A.vmem(f"buffer_store_dwordx4 v[32:35], v{vC2}, {sr(sW)}, 0 offen sc1", "qst")
Krel(0)
ahead("qst", int(OPT.get("laq", 9)))
e(f"s_getreg_b32 s{sXcc}, hwreg(HW_REG_XCC_ID, 0, 4)")
e(f"s_cmp_lg_u32 s{sWV}, 0"); e("s_cbranch_scc1 NOHDR")
save = list(A.vm); A.wait("qst"); A.vm = save
e("v_readfirstlane_b32 s96, v98"); e("s_cmp_eq_u32 s96, 0"); e("s_cbranch_scc1 TAGLOOP"); lab("TAGOK")
def t_():
    lab("TAGLOOP"); e(f"s_mov_b32 s{sCnt}, 0"); lab("TAGL2"); e("s_sleep 8"); e(tagl); e("s_waitcnt vmcnt(0)"); e("v_readfirstlane_b32 s96, v98"); e("s_cmp_lg_u32 s96, 0"); e("s_cbranch_scc1 TAGOK")
    e(f"s_add_u32 s{sCnt}, s{sCnt}, 1"); e(f"s_cmp_lt_u32 s{sCnt}, {LIMIT}"); e("s_cbranch_scc1 TAGL2"); e("s_branch TAGOK")
tail.append(t_)
e(f"v_mov_b32 v99, s{sXcc}"); setexec(1); e(f"buffer_store_dwordx2 v[98:99], v{vLin}, {sr(sW)}, s{sT2} offen offset:384 sc1"); setexec(FULL)
lab("NOHDR")
stamp(1, "s100")
Krel(1); Krel(2)
RT = int(OPT.get("rt", 8))
DT = int(OPT.get("dt", 7))
rdy = [f"buffer_load_dwordx2 v[98:99], v100, {sr(sW)}, 0 offen offset:384 sc1"]
e(f"v_lshlrev_b32 v100, 9, v{vL}"); e(f"v_add_u32 v100, s{sLG}, v100"); e(f"v_bfe_u32 v96, v{vL}, 2, 3"); e(f"v_mul_u32_u24 v96, {GB}, v96"); e(f"v_and_b32 v97, 3, v{vL}"); e("v_lshl_add_u32 v96, v97, 9, v96")
e(f"v_cmp_le_u32 vcc, 32, v{vL}"); e("v_cndmask_b32 v100, v100, v96, vcc"); e(f"s_cmp_eq_u32 s{sWV}, 0"); e(f"s_cselect_b32 s{sT0}, 0, {OOB-0x10000000}"); e(f"v_add_u32 v100, s{sT0}, v100")
def ld(t): Kld(t) if t < 8 else Vld(t - 8)
def rel(t): Krel(t) if t < 8 else Vrel(t - 8)
for t in range(5, RT + 2):
    ld(t)
    if t == DT: stamp(12); role_dma()
    if t == RT: A.vmem(rdy[0], "rdy"); stamp(2, "s100")
    if t == 7: addr_block()
    rel(t - 2)
ahead("rdy"); A.wait("rdy"); e(f"s_mov_b32 s{sCnt}, -1"); e(f"v_mov_b32 v97, {FLG}")
e(f"s_cmp_lg_u32 s{sWV}, 0"); e("s_cbranch_scc1 RDYX")
e("v_cmp_ne_u32 vcc, s96, v98"); e("s_cbranch_vccnz RDYLOOP"); lab("RDYOK")
e(f"v_cmp_ne_u32 vcc, s{sXcc}, v99"); e("s_nop 1"); e(f"v_mov_b32 v96, vcc_lo"); e("ds_write_b32 v97, v96")
lab("RDYX")
stamp(13, f"s{sCnt}")
def t_():
    lab("RDYLOOP")
    if SPM == "rdy": e("v_accvgpr_read_b32 v96, a253"); e("v_add_u32 v96, 2000, v96"); e("v_accvgpr_write_b32 a253, v96")
    e(f"s_mov_b32 s{sCnt}, 0"); lab("RDYL2"); e("s_sleep 8"); e(rdy[0]); e("s_waitcnt vmcnt(0)"); e("v_cmp_ne_u32 vcc, s96, v98"); e("s_cbranch_vccz RDYOK")
    e(f"s_add_u32 s{sCnt}, s{sCnt}, 1"); e(f"s_cmp_lt_u32 s{sCnt}, {LIMIT}"); e("s_cbranch_scc1 RDYL2"); e("s_branch RDYOK")
tail.append(t_)
fill(2)
e("s_waitcnt lgkmcnt(0)"); e("s_barrier"); e("ds_read_b32 v96, v97"); e("s_waitcnt lgkmcnt(0)"); e(f"v_readfirstlane_b32 s{sT0}, v96")
e(f"s_cmp_eq_u32 s{sT0}, 0"); e(f"s_cselect_b32 s{sWp+2}, s{sW+2}, 0")
assert not any(t[0] == "K" for _, t in pend) and DT <= RT + 1
if FORCESLOW: e(f"s_mov_b32 s{sWp+2}, 0")
for d_ in (sWp,): e(f"s_mov_b32 s{d_}, s{sW}"); e(f"s_mov_b32 s{d_+1}, s{sW+1}"); e(f"s_mov_b32 s{d_+3}, 0x20000")
stamp(2)
if "pre" not in SKIP:
    A.vmem(f"buffer_load_dwordx4 a[240:243], v109, {sr(sW)}, 0 offen sc1", "pre")
def fp_addr(d):
    e(f"v_lshrrev_b32 v{d}, 3, v{vL}"); e(f"v_mul_u32_u24 v{d}, 2560, v{d}"); e(f"v_and_b32 v{d+1}, 7, v{vL}"); e(f"v_lshl_add_u32 v{d}, v{d+1}, 4, v{d}")
    e(f"s_lshl_b32 s{sT0}, s{sJ}, 7"); e(f"s_add_u32 s{sT0}, s{sT0}, s{sLG}"); e(f"s_add_u32 s{sT0}, s{sT0}, {oFP}")
    e(f"s_cmp_lt_u32 s{sJ}, 20"); e(f"s_cselect_b32 s{sT0}, s{sT0}, {OOB-0x10000000}"); e(f"s_cmp_eq_u32 s{sWV}, 3"); e(f"s_cselect_b32 s{sT0}, s{sT0}, {OOB-0x10000000}")
    e(f"v_add_u32 v{d}, s{sT0}, v{d}"); e(f"v_add_u32 v{d+1}, {8*2560}, v{d}"); e(f"v_mov_b32 v{d+2}, {OOB}"); e(f"v_cmp_le_u32 vcc, 32, v{vL}")
    e(f"s_lshl_b32 s{sT1}, s{sJ}, 6"); e(f"s_sub_u32 s{sT1}, s{sT0}, s{sT1}"); e(f"s_sub_u32 s{sT1}, s{sT1}, {oFP-oBB+512}"); e(f"v_add_u32 v24, s{sT1}, v{vLin}"); e(f"v_cndmask_b32 v{d+1}, v{d+1}, v24, vcc")
    e(f"v_cmp_le_u32 vcc, 36, v{vL}"); e(f"v_cndmask_b32 v{d+1}, v{d+1}, v{d+2}, vcc")
fp_addr(106)
for q in range(2):
    if "pre" not in SKIP: A.vmem(f"buffer_load_dwordx4 a[240:243], v{106+q}, {sr(sW)}, 0 offen sc1", "pre")
    e(f"v_accvgpr_write_b32 a{250+q}, v{106+q}")
e(f"s_lshl_b32 s{sT0}, s{sHH}, 12"); e(f"s_mul_i32 s{sT1}, s{sWV}, 96"); e(f"s_add_u32 s{sT0}, s{sT0}, s{sT1}"); e(f"s_add_u32 s{sT0}, s{sT0}, s{sLG}")
e(f"v_lshrrev_b32 v24, 4, v{vL}"); e("v_lshlrev_b32 v24, 9, v24"); e(f"v_and_b32 v25, 15, v{vL}"); e("v_min_u32 v25, 11, v25"); e("v_lshl_add_u32 v24, v25, 3, v24")
for q in range(2):
    if "qg" not in SKIP: A.vmem(f"buffer_load_dwordx2 v[{64+2*q}:{65+2*q}], v24, {sr(sW)}, s{sT0} offen offset:{2048*q} sc1", "qg")
def pack_store16(d, instr_fn):
    for q in (1, 2, 3): e(f"v_mov_b32_dpp v{d+q}, v{d} quad_perm:[{q},{q},{q},{q}] row_mask:0xf bank_mask:0xf")
    setexec(0x1111); instr_fn(); setexec(FULL)
e(f"s_cmp_lg_u32 s{sWV}, 1"); e("s_cbranch_scc1 NOBASE0"); e(f"s_cmp_ge_u32 s{sJ}, 20"); e("s_cbranch_scc1 NOBASE0")
e(f"v_mov_b32 v28, v{vXR}"); e(f"s_lshl_b32 s{sT0}, s{sJ}, 6"); e(f"s_add_u32 s{sT0}, s{sT0}, s{sLG}"); e(f"s_add_u32 s{sT0}, s{sT0}, {oBA}"); e(f"v_lshlrev_b32 v27, 2, v{vL}")
pack_store16(28, lambda: lstore(f"buffer_store_dwordx4 v[28:31], v27, {sr(sW)}, s{sT0} offen"))
lab("NOBASE0")
stamp(3)
for t in range(RT, RT + 3): rel(t)
ahead("qg"); A.wait("qg")
for q in range(4): e(f"v_lshlrev_b32 v{T+2*q}, 16, v{64+q}"); e(f"v_and_b32 v{T+2*q+1}, 0xffff0000, v{64+q}")
qsum(T)
e(f"v_cvt_pk_bf16_f32 v{T}, v{T}, v{T}"); e(f"ds_write_b16 v{vQBw}, v{T}")
fill(); att_zero()
stamp(4)
fill(2); e("s_waitcnt lgkmcnt(0)"); e("s_barrier")
for ks in range(3): e(f"ds_read_b128 {vr(QF+4*ks)}, v{vQBr} offset:{128*ks}")
e(f"v_mov_b32 v{vSC}, 0x3dd53b94")
qk_softmax(fl=1)
stamp(5)
hold.clear()
for t in range(RT + 3, 12): rel(t)
fill(2)
e("s_waitcnt lgkmcnt(0)"); pv_step(0); fill(); pv_step(1)
Vrel(4); Vld(7); Vrel(5)
e(f"v_and_b32 v{vXR+1}, 0xffff0000, v{vXR}"); e(f"v_lshlrev_b32 v{vXR}, 16, v{vXR}")
PT_ = [int(x) for x in OPT.get("pt", "7,3").split(",")]
PTF = int(OPT.get("ptf", 1))
def late_pf(w, k0, n):
    if "wo" in SKIP: return
    for k in range(k0, k0 + n):
        if k % 4 == 0 and k: e(f"s_add_u32 s{sPo}, s{sPo}, 4096")
        A.vmem(f"buffer_load_dwordx4 a[240:243], v{vLin}, {sr(sWQ)}, s{sPo} offen offset:{1024*(k%4)} {NTP}", "pfo")
for m_, r_ in ((0x0101010101010101, 82), (ROWS9, 84), ((1 << 60) - 1, 86), (0xFF00FF0000FF00FF, 88), (0x01010101, 92), (0x0F0F0F0F0F0F0F0F if REPL else 0x01010101 + (1 << 63), 44)):
    e(f"s_mov_b32 s{r_}, {m_ & 0xffffffff:#x}"); e(f"s_mov_b32 s{r_+1}, {m_ >> 32:#x}"); MASKS[m_] = r_
if not REPL: e("s_mov_b32 s45, 0")
e("s_mov_b64 s[46:47], s[92:93]"); e("s_mov_b64 s[48:49], s[44:45]")
FGE = int(OPT.get("fge", 1))
def rep_addr(d, t):
    e(f"v_and_b32 v{d}, 3, v{vL}"); e(f"v_lshrrev_b32 v{t}, 5, v{vL}"); e(f"v_lshl_add_u32 v{d}, v{t}, 2, v{d}"); e(f"v_mul_u32_u24 v{d}, 10240, v{d}")
    e(f"v_bfe_u32 v{t}, v{vL}, 3, 2"); e(f"v_lshl_add_u32 v{d}, v{t}, 4, v{d}")
def stream_tail(w):
    save = list(A.vm)
    pf = sum(PT_) and not (PTF and w)
    if pf and not PTF:
        e(f"s_lshl_b32 s{sPo}, s{sHH}, 3"); e(f"s_add_u32 s{sPo}, s{sPo}, s{sG}"); e(f"s_lshl_b32 s{sPo}, s{sPo}, 3"); e(f"s_add_u32 s{sPo}, s{sPo}, s{sS}")
        e(f"s_lshl_b32 s{sPo}, s{sPo}, 2"); e(f"s_add_u32 s{sPo}, s{sPo}, s{sWV}"); e(f"s_mul_i32 s{sPo}, s{sPo}, 7680")
    if pf and PTF:
        e(f"s_lshl_b32 s{sPo}, s{sWV}, 3"); e(f"s_add_u32 s{sPo}, s{sPo}, s{sG}"); e(f"s_mul_i32 s{sPo}, s{sPo}, 24"); e(f"s_add_u32 s{sPo}, s{sPo}, s{sJ}")
        e(f"s_sub_u32 s{sPo}, s{sPo}, 8"); e(f"s_mul_i32 s{sPo}, s{sPo}, 10240")
    if pf: late_pf(w, 0, PT_[0])
    if w and FGE:
        for q in range(4): e(f"v_mov_b32 v{24+q}, -1")
        rep_addr(28, 29); e(f"s_cmp_eq_u32 s{sWV}, 3"); e(f"s_cselect_b32 s{sT0}, 0, {OOB-0x10000000}"); e(f"v_add_u32 v28, s{sT0}, v28"); e(f"s_add_u32 s{sT0}, s{sYg}, {oFG-oYG}")
        e("s_mov_b64 exec, s[44:45]"); A.vmem(f"buffer_store_dwordx4 v[24:27], v28, {sr(sW)}, s{sT0} offen sc1", "fgc"); setexec(FULL)
    if w: wdma_addr(); wdma(WT[1], "wo")
    e("s_waitcnt lgkmcnt(0)"); pv_step(2)
    Vrel(6)
    if pf: late_pf(w, PT_[0], PT_[1])
    if w: wdma(WT[2], "wo")
    if not w and W2P == 1: w2dma("w2")
    x = len(A.vm) - 6
    f_, b_ = vblock(8)
    for i in range(6):
        e(f"s_waitcnt vmcnt({5-i+x})"); e(f"ds_write_b128 v{vWr+i%3}, {rg(f_, b_+4*i, 4)} offset:{(i//3)*8*RS}")
    f_, b_ = vblock(6)
    for dt in range(12): e(f"ds_read_b64_tr_b16 {rg(f_, b_+4*dt+2, 2)}, v{vVrd} offset:{32*dt}")
    if w: wdma(WT[3], "wo")
    if not w and W2P == 2: w2dma("w2")
    e("s_branch ATT_LAST")
    A.vm = save
e(f"s_cmp_ge_u32 s{sJ}, 20"); e("s_cbranch_scc1 TAILF")
stream_tail(True)
lab("TAILF")
stream_tail(False)
A.drained()
flush_near()

lab("LOOP")
e(f"s_cmp_lt_u32 s{sJ}, 20"); e(f"s_cselect_b32 s{sXcc}, s{sWV}, 4")
e(f"s_add_u32 s96, s{sLG}, {LS}"); e("s_add_u32 s97, s96, 4096")
if int(OPT.get("cspl", 1)):
    for l in qloads(88, "s96", "s97"): e(l)
wq_frags()
e(f"v_and_b32 v25, 15, v{vL}"); e("v_cmp_eq_u32 vcc, 12, v25"); e("v_mov_b32 v36, 0x3f803f80"); e(f"v_cndmask_b32 v70, 0, v36, vcc")
for q in range(1, 10): e(f"v_mov_b32 v{70+q}, v70")
e(f"s_add_u32 s{sT2}, s{sLG}, 4096")
e(f"s_mul_i32 s{sT0}, s{sWV}, {SCRW}")
e(f"v_mul_u32_u24 v26, 103, v{vL}"); e("v_lshrrev_b32 v26, 10, v26"); e(f"v_lshl_add_u32 v26, v26, 4, v{vLin}"); e(f"v_add_u32 v26, s{sT0}, v26")
e(f"v_mul_u32_u24 v27, 176, v25"); e(f"v_add_u32 v27, s{sT0}, v27"); e(f"v_lshrrev_b32 v28, 4, v{vL}"); e("v_lshl_add_u32 v29, v28, 3, v27"); e("v_lshl_add_u32 v27, v28, 4, v27")
e(f"s_mul_i32 s{sT0}, s{sS}, 160"); e(f"s_add_u32 s{sT0}, s{sT0}, s{sLG}"); e(f"s_sub_u32 s{sT0}, s{sT0}, {LS-oFL}")
e("s_waitcnt lgkmcnt(0)")
gate(sT0, 10, 24)
setexec((1 << 60) - 1)
def bounce(groups, tmp, writes, reads, first=None, w1=0):
    k = nid(); allr = [r for g in groups for r in g[1]]
    for g in groups:
        for l in g[0]: e(l)
    if first: first()
    e(f"s_waitcnt vmcnt({w1})")
    lab(f"BW{k}")
    for x in writes: e(x)
    check(allr, tmp)
    setexec(ROWS9)
    for x in reads: e(x)
    setexec(FULL)
    e(f"s_cbranch_vccnz BR{k}")
    lab(f"BX{k}")
    def t():
        lab(f"BR{k}")
        e(f"s_cmp_ge_u32 s{sCnt}, {LIMIT}"); e(f"s_cbranch_scc1 BX{k}")
        lab(f"BL{k}")
        for gi, (ls, rs) in enumerate(groups):
            setexec((1 << 60) - 1); check(rs, tmp); e("s_mov_b64 exec, vcc"); e(f"s_cbranch_execz BS{k}_{gi}")
            for l in ls: e(l)
            lab(f"BS{k}_{gi}")
        setexec((1 << 60) - 1)
        e(f"s_add_u32 s{sCnt}, s{sCnt}, 1"); e(f"s_cmp_ge_u32 s{sCnt}, {LIMIT}")
        e("s_waitcnt vmcnt(0)")
        check(allr, tmp)
        e(f"s_cbranch_vccz BW{k}"); e(f"s_cbranch_scc0 BL{k}"); e(f"s_branch BW{k}")
    near.append(t)
assert GATE
bounce([([f"buffer_load_dwordx4 v[80:83], v{vAq}, {sr(sW)}, 0 offen sc1"], [80]), ([f"buffer_load_dwordx4 v[84:87], v{vAq16}, {sr(sW)}, 0 offen sc1"], [84])], 24,
       ["ds_write_b128 v26, v[80:83]", f"ds_write_b128 v26, v[84:87] offset:{6*176}"],
       ["ds_read_b128 v[70:73], v27", "ds_read_b128 v[74:77], v27 offset:64", "ds_read_b64 v[78:79], v29 offset:128"],
       first=lambda: [e(l) for l in qloads(88, "s96", "s97")], w1=2)
stamp(1)
e(f"s_cmp_lg_u32 s{sXcc}, 1"); e("s_cbranch_scc1 NOOWL")
e(f"buffer_load_dword a244, v{vC1}, {sr(sW)}, 0 offen sc1"); e(f"buffer_load_dword a245, v{vC2}, {sr(sW)}, 0 offen sc1")
lab("NOOWL")
qstage(70, f"s{sLG}", waits=True)
stamp(2)
att_zero()
e(f"s_waitcnt vmcnt({2 if STAMP == 1 else 1})"); qsum(88); e(f"v_mul_f32 v{vCS}, 0x3acccccd, v88")
for _ in range(int(OPT.get("qd", 0))): e("s_nop 7")
poll_nan(qloads(T, f"s{sLG}", f"s{sT2}"), lambda: qsum(T), T)
stamp(3)
q_finish(T)
stamp(4)
qk_softmax()
stamp(5)
for u in range(3):
    e(f"s_waitcnt lgkmcnt({4-u})"); pv_step(u)
e("s_waitcnt lgkmcnt(0)")
lab("ATT_LAST")
for dp in range(6):
    if dp % 2 == 0: e(f"s_waitcnt lgkmcnt({8-2*dp})")
    pv_step(3, [dp])
def pack8(v):
    e(f"v_mov_b32_dpp v{v+1}, v{v} row_shl:1 row_mask:0xf bank_mask:0xf"); e(f"v_cvt_pk_bf16_f32 v{v}, v{v}, v{v+1}")
    for q in (1, 2, 3): e(f"v_mov_b32_dpp v{v+q}, v{v} row_shl:{2*q} row_mask:0xf bank_mask:0xf")
def pack8q(v):
    e(f"v_mov_b32_dpp v{v+1}, v{v} row_shl:1 row_mask:0xf bank_mask:0xf"); e(f"v_cvt_pk_bf16_f32 v{v+4}, v{v}, v{v+1}")
    e(f"v_mov_b32_dpp v{v}, v{v+4} quad_perm:[0,0,0,0] row_mask:0xf bank_mask:0xf"); e(f"v_mov_b32_dpp v{v+1}, v{v+4} quad_perm:[2,2,2,2] row_mask:0xf bank_mask:0xf")
    e(f"v_mov_b32_dpp v{v+2}, v{v} row_shl:4 row_mask:0xf bank_mask:0xf"); e(f"v_mov_b32_dpp v{v+3}, v{v+1} row_shl:4 row_mask:0xf bank_mask:0xf")
e(f"s_lshl_b32 s{sT0}, s{sWV}, 8"); e(f"s_add_u32 s{sT0}, s{sT0}, {ACC+OACC}"); e(f"v_lshl_add_u32 v24, v{vL}, 2, s{sT0}")
pv_post()
e(f"v_and_b32 v25, 3, v{vL}"); e(f"v_lshlrev_b32 v25, 3, v25"); e(f"v_add_u32 v25, {ML4}, v25")
e("s_waitcnt lgkmcnt(0)"); e("s_barrier")
stamp(6)
e("ds_read_b64 v[32:33], v25"); e("ds_read2st64_b32 v[40:41], v24 offset0:0 offset1:3"); e("ds_read2st64_b32 v[42:43], v24 offset0:6 offset1:9")
e(f"s_mul_i32 s{sT0}, s{sHH}, 3072"); e(f"s_lshl_b32 s{sT1}, s{sS}, 4"); e(f"s_add_u32 s{sT0}, s{sT0}, s{sT1}"); e(f"s_lshl_b32 s{sT1}, s{sWV}, 10"); e(f"s_add_u32 s{sT0}, s{sT0}, s{sT1}")
e(f"s_add_u32 s{sT0}, s{sT0}, s{sLG}"); e(f"s_add_u32 s{sT0}, s{sT0}, {oO}")
e(f"s_lshl_b32 s{sT1}, s{sJ}, 3"); e(f"s_add_u32 s{sT1}, s{sT1}, s{sLG}"); e(f"s_add_u32 s{sT1}, s{sT1}, {oML}"); e(f"s_cmp_eq_u32 s{sWV}, 3")
e("s_waitcnt lgkmcnt(2)")
e("v_max_f32_dpp v34, v32, v32 quad_perm:[1,0,3,2] row_mask:0xf bank_mask:0xf"); e("v_max_f32_dpp v34, v34, v34 quad_perm:[2,3,0,1] row_mask:0xf bank_mask:0xf")
e("v_sub_f32 v32, v32, v34"); e("v_exp_f32 v32, v32")
e("s_cbranch_scc1 OML"); e("s_waitcnt lgkmcnt(0)")
e("v_mul_f32_dpp v28, v32, v40 quad_perm:[0,0,0,0] row_mask:0xf bank_mask:0xf"); e("v_mul_f32_dpp v29, v32, v41 quad_perm:[1,1,1,1] row_mask:0xf bank_mask:0xf")
e("v_mul_f32_dpp v30, v32, v42 quad_perm:[2,2,2,2] row_mask:0xf bank_mask:0xf"); e("v_fmac_f32_dpp v28, v32, v43 quad_perm:[3,3,3,3] row_mask:0xf bank_mask:0xf")
e("v_add_f32 v29, v29, v30"); e("v_add_f32 v28, v28, v29")
pack8(28)
setexec(0x0101010101010101)
lstore(f"buffer_store_dwordx4 v[28:31], v{vLin}, {sr(sW)}, s{sT0} offen")
setexec(FULL)
def t_():
    lab("OML")
    e("v_mul_f32 v35, v32, v33")
    e("v_add_f32_dpp v35, v35, v35 quad_perm:[1,0,3,2] row_mask:0xf bank_mask:0xf"); e("v_add_f32_dpp v35, v35, v35 quad_perm:[2,3,0,1] row_mask:0xf bank_mask:0xf")
    setexec(1); lstore(f"buffer_store_dwordx2 v[34:35], v{vLin}, {sr(sW)}, s{sT1} offen"); setexec(FULL)
    e("s_waitcnt lgkmcnt(0)"); e("s_branch ODONE")
near.append(t_)
lab("ODONE")
if STAMP == 3 and "land" in SKIP:
    e(f"s_cmp_ge_u32 s{sJ}, 20"); e("s_cbranch_scc1 LND"); wdma_addr(); wdma(WT[4]); lab("LND"); e("s_waitcnt vmcnt(0)")
stamp(7)
if STAMP == 3: e("s_endpgm")
e(f"s_cmp_ge_u32 s{sJ}, 20"); e("s_cbranch_scc1 ROLEF")
def owner_add():
    e("v_lshlrev_b32 v30, 16, v28"); e("v_and_b32 v28, 0xffff0000, v28"); e("v_lshlrev_b32 v31, 16, v29"); e("v_and_b32 v29, 0xffff0000, v29")
    e("v_add_f32 v30, v30, v31"); e("v_add_f32 v28, v28, v29")
    e("v_mov_b32 v31, v30"); e("v_mov_b32 v29, v28"); e("v_permlane32_swap_b32 v30, v31"); e("v_permlane32_swap_b32 v28, v29"); e("v_add_f32 v30, v30, v31"); e("v_add_f32 v28, v28, v29")
    e("v_mov_b32 v31, v30"); e("v_mov_b32 v29, v28"); e("v_permlane16_swap_b32 v30, v31"); e("v_permlane16_swap_b32 v28, v29"); e("v_add_f32 v30, v30, v31"); e("v_add_f32 v28, v28, v29")
    e(f"v_add_f32 v{vXR}, v{vXR}, v30"); e(f"v_add_f32 v{vXR+1}, v{vXR+1}, v28")
    e(f"v_cvt_pk_bf16_f32 v28, v{vXR}, v{vXR+1}")
def own_loads(a0, a1, soff): return [f"buffer_load_dword v28, v{a0}, {sr(sW)}, {soff} offen sc1", f"buffer_load_dword v29, v{a1}, {sr(sW)}, {soff} offen sc1"]
def base_store(ob):
    e(f"s_lshl_b32 s{sT0}, s{sJ}, 6"); e(f"s_add_u32 s{sT0}, s{sT0}, s{sLG}"); e(f"s_add_u32 s{sT0}, s{sT0}, {ob}"); e(f"v_lshlrev_b32 v32, 2, v{vL}")
    pack_store16(28, lambda: lstore(f"buffer_store_dwordx4 v[28:31], v32, {sr(sW)}, s{sT0} offen"))
e(f"s_cmp_eq_u32 s{sLay}, 0"); e("s_cbranch_scc1 WLATE")
def t_():
    lab("WLATE")
    if WT[4]: wdma_addr(); wdma(WT[4])
    if "cs" not in SKIP: cs_store()
    e(f"s_cmp_lg_u32 s{sWV}, 3"); e("s_cbranch_scc1 NOFPC")
    for q in range(4): e(f"v_mov_b32 v{24+q}, -1")
    for q in range(2 if "fpc" not in SKIP else 0): e(f"v_accvgpr_read_b32 v{28+q}, a{250+q}"); lstore(f"buffer_store_dwordx4 v[24:27], v{28+q}, {sr(sW)}, 0 offen")
    if not FGE: e(f"s_add_u32 s{sT0}, s{sYg}, {oFG-oYG}"); rep_addr(28, 29); e("s_mov_b64 exec, s[44:45]"); e(f"buffer_store_dwordx4 v[24:27], v28, {sr(sW)}, s{sT0} offen sc1"); setexec(FULL)
    lab("NOFPC")
    for q in range(3): e(f"v_accvgpr_read_b32 v{2+q}, a{246+q}")
    for r_ in [SPARE + 4 * kk for kk in range(6)] + [25, 27, 37, 39]: e(f"v_mov_b32 v{r_}, 0")
    for x in fl0: e(x)
    e("s_waitcnt vmcnt(8)")
    for x in trs[:TRN]: e(x)
    wfirst(); e("s_branch WCHK")
near.append(t_)
for q in range(3): e(f"v_accvgpr_read_b32 v{2+q}, a{246+q}")
for kk in range(6): e(f"v_mov_b32 v{SPARE+4*kk}, 0")
TRN = int(OPT.get("trn", 10))
trs = [f"ds_read_b64_tr_b16 {vr(F+24*t+4*kk+2*h,2)}, v2 offset:{(32*kk+4*h)*64+32*t}" for kk in range(6) for t in range(2) for h in range(2)]
for x in trs[:TRN]: e(x)
def own0():
    e(f"s_cmp_lg_u32 s{sWV}, 1"); e("s_cbranch_scc1 NOOWN0")
    e("v_accvgpr_read_b32 v28, a244"); e("v_accvgpr_read_b32 v29, a245")
    late_check("none", own_loads(vC1, vC2, "0"), [28, 29], 30)
    owner_add()
    if OWP != 2: base_store(oBA)
    lab("NOOWN0")
OWP = int(OPT.get("owp", 0))
if not OWP: own0()
MLR = [24, 36]
for _ in range(int(OPT.get("od", 0))): e("s_nop 7")
for q in (25, 27, 37, 39): e(f"v_mov_b32 v{q}, 0")
def wfirst():
    for x in trs[TRN:]: e(x)
    e("v_accvgpr_read_b32 v5, a249"); rep_addr(18, 6); e("v_and_b32 v6, 0xffffff7f, v5")
ol = [f"buffer_load_dwordx4 {vr(SPARE+4*kk)}, v3, {sr(sW)}, s{sLG} offen offset:{512*kk} sc1" for kk in range(6)]
ml = [f"buffer_load_dwordx4 {vr(MLR[q])}, v4, {sr(sW)}, s{sLG} offen offset:{16*q} sc1" for q in range(2)]
fl0 = ["s_mov_b32 exec_lo, 0x00ff00ff", "s_mov_b32 exec_hi, 0x00ff00ff"] + ol + ["s_mov_b32 exec_lo, -1", "s_mov_b32 exec_hi, 0"] + ml + ["s_mov_b64 exec, -1"]
poll_sel([(ol, [SPARE + 4 * kk for kk in range(6)]), (ml, [25, 27, 37, 39])], 28, pid=7, first=lambda: (wfirst(), own0() if OWP else None), firstloads=fl0, wl="WCHK")
e("s_waitcnt lgkmcnt(0)")
stamp(8)
M_, U_, L_ = SPARE, SPARE + 1, SPARE + 2
mm_ = [24, 26, 36, 38]
co = [[], [f"v_max3_f32 v{M_}, v24, v26, v36", f"v_max_f32 v{M_}, v{M_}, v38"], [f"v_mov_b32 v{U_}, v{M_}"], [f"v_permlane16_swap_b32 v{M_}, v{U_}", f"v_max_f32 v{M_}, v{M_}, v{U_}"],
      [f"v_sub_f32 v24, v24, v{M_}", f"v_sub_f32 v26, v26, v{M_}"], [f"v_sub_f32 v36, v36, v{M_}", f"v_sub_f32 v38, v38, v{M_}"],
      ["v_exp_f32 v24, v24"], ["v_exp_f32 v26, v26"], ["v_exp_f32 v36, v36"], ["v_exp_f32 v38, v38"],
      [f"v_mul_f32 v{L_}, v24, v25", f"v_fmac_f32 v{L_}, v26, v27"], [f"v_fmac_f32 v{L_}, v36, v37", f"v_fmac_f32 v{L_}, v38, v39"]]
for kk in range(6):
    for t in range(2):
        c = "0" if kk == 0 else vr(28 + 4 * t)
        e(f"v_mfma_f32_16x16x32_bf16 {vr(28+4*t)}, {vr(SPARE+4*kk)}, {vr(F+24*t+4*kk)}, {c}")
        for x in co.pop(0): e(x)
e(f"v_mov_b32 v{U_}, v{L_}"); e(f"s_cmp_lg_u32 s{sWV}, 0"); e(f"v_permlane16_swap_b32 v{L_}, v{U_}"); e(f"v_add_f32 v{L_}, v{L_}, v{U_}"); e(f"v_rcp_f32 v{L_}, v{L_}")
for t in range(2): e(f"v_mul_f32 v{28+4*t}, v24, v{28+4*t}")
for q in range(1, 4):
    for t in range(2): e(f"v_fmac_f32 v{28+4*t}, v{mm_[q]}, v{28+4*t+q}")
e("v_permlane16_swap_b32 v28, v32"); e("v_add_f32 v28, v28, v32"); e(f"v_mul_f32 v28, v28, v{L_}")
e(f"ds_write_b32 v5, v28")
e("s_waitcnt lgkmcnt(0)"); e("s_barrier")
e("s_cbranch_scc1 WNOT0")
assert (ACC + YACC) % 256 == 0
e("ds_read2st64_b32 v[28:29], v6 offset0:0 offset1:1"); e("ds_read2st64_b32 v[30:31], v6 offset0:2 offset1:3")
e("s_waitcnt lgkmcnt(1)"); e("v_add_f32 v28, v28, v29"); e("s_waitcnt lgkmcnt(0)"); e("v_add_f32 v30, v30, v31"); e("v_add_f32 v28, v28, v30")
pack8q(28)
e("s_mov_b64 exec, s[46:47]")
e(f"buffer_store_dwordx4 v[28:31], v18, {sr(sW)}, s{sYg} offen sc1")
setexec(0x01010101)
lstore(f"buffer_store_dwordx4 v[28:31], v18, {sr(sW)}, s{sYl} offen")
setexec(FULL)
stamp(9); stamp(9, "c")
e(f"v_lshrrev_b32 v37, 5, v{vL}"); e("v_mul_u32_u24 v37, 2560, v37"); e(f"v_and_b32 v38, 31, v{vL}"); e("v_lshl_add_u32 v37, v38, 2, v37")
for k in range(1, 6): e(f"v_add_u32 v{F+k}, {5120*k}, v37")
e(f"s_lshl_b32 s{sT2}, s{sJ}, 7"); e(f"s_add_u32 s{sT2}, s{sT2}, s{sLG}"); e(f"s_add_u32 s{sT2}, s{sT2}, {oFP}")
e(f"s_add_u32 s96, s{sYg}, {oFG-oYG}"); e(f"s_add_u32 s97, s{sYl}, {oFL-oYL}")
e(f"s_cmp_lg_u32 s{sLay}, 0"); e("s_cbranch_scc1 NOLC")
if "lc" in SKIP: e("s_branch NOLC")
e(f"s_mul_i32 s{sT0}, s{sJ}, {154*16}"); e(f"s_add_u32 s{sT1}, s{sLG}, {LS+oO}")
for q in range(3): e(f"v_add_u32 v{F+8+q}, s{sT0}, v{vLin}"); e(f"v_min_u32 v{F+8+q}, {GB-oO-16}, v{F+8+q}"); e(f"s_add_u32 s{sT0}, s{sT0}, 1024")
for q in range(3): e(f"buffer_load_dwordx4 a[240:243], v{F+8+q}, {sr(sW)}, s{sT1} offen sc1")
for q in range(4): e(f"v_mov_b32 v{F+12+q}, -1")
e(f"s_add_u32 s{sT0}, s{sYg}, {LS}"); e(f"s_add_u32 s{sT3}, s96, {LS}")
e("s_waitcnt vmcnt(0)")
for q in range(3): lstore(f"buffer_store_dwordx4 {vr(F+12)}, v{F+8+q}, {sr(sW)}, s{sT1} offen")
e("s_mov_b64 exec, s[44:45]"); e(f"buffer_store_dwordx4 {vr(F+12)}, v18, {sr(sW)}, s{sT0} offen sc1")
setexec(0x01010101); e(f"buffer_store_dwordx4 {vr(F+12)}, v18, {sr(sW)}, s{sT3} offen sc1")
setexec(FULL)
lab("NOLC")
def fpsum():
    e("v_add_f32 v28, v28, v29"); e("v_add_f32 v30, v30, v31"); e("v_add_f32 v32, v32, v33"); e("v_add_f32 v28, v28, v30"); e("v_add_f32 v29, v28, v32"); e("v_add_f32 v28, v28, v32")
poll_nan([f"buffer_load_dword v{28+k}, v{37 if k==0 else F+k}, {sr(sW)}, s{sT2} offen sc1" for k in range(6)], fpsum, 28)
stamp(10)
e("v_permlane32_swap_b32 v28, v29"); e("v_add_f32 v28, v28, v29")
pack8q(28)
e("s_mov_b64 exec, s[48:49]")
e(f"buffer_store_dwordx4 v[28:31], v18, {sr(sW)}, s96 offen sc1")
setexec(0x01010101)
lstore(f"buffer_store_dwordx4 v[28:31], v18, {sr(sW)}, s97 offen")
setexec(FULL)
stamp(11)
e("s_branch NEXT")
flush_near()
lab("WNOT0")
WB = int(OPT.get("wb", 0))
if WB:
    e(f"s_cmp_lg_u32 s{sWV}, 2"); e("s_cbranch_scc1 NOWB"); e(f"s_cmp_lg_u32 s{sJ}, 0"); e("s_cbranch_scc1 NOWB"); e(f"s_cmp_eq_u32 s{sLay}, 0"); e("s_cbranch_scc1 NOWB")
    if WB > 1: e(f"s_sleep {WB}")
    e("buffer_wbl2 sc1"); e("s_waitcnt vmcnt(0)"); lab("NOWB")
e(f"s_cmp_lg_u32 s{sWV}, 1"); e("s_cbranch_scc1 NEXT")
if OWP == 2:
    e(f"s_cmp_eq_u32 s{sLay}, 0"); e("s_cbranch_scc1 NOBA1"); e(f"v_cvt_pk_bf16_f32 v28, v{vXR}, v{vXR+1}"); base_store(oBA); lab("NOBA1")
e(f"v_and_b32 v25, 15, v{vL}"); e(f"v_lshrrev_b32 v26, 4, v{vL}")
rowbase(37, 26, oYG, oYL, None, 38); e("v_add_u32 v39, 4, v26"); rowbase(38, 39, oYG, oYL, None, 28)
e(f"s_lshl_b32 s{sT0}, s{sJ}, 6"); e(f"s_add_u32 s{sT0}, s{sT0}, s{sLay}")
e("v_lshl_add_u32 v37, v25, 2, v37"); e("v_lshl_add_u32 v38, v25, 2, v38")
if GATE and ODLY: e(f"s_sleep {ODLY}")
poll(own_loads(37, 38, f"s{sT0}"), [28, 29], 30, slp=(4 if GATE else 0))
owner_add()
e(f"s_cmp_lg_u32 s{sLay}, 0"); e("s_cbranch_scc1 FINAL")
base_store(oBB)
e("s_branch NEXT")
lab("FINAL")
e(f"s_cmp_lg_u32 s{sG}, 0"); e("s_cbranch_scc1 DONE")
e(f"s_lshl_b32 s{sT0}, s{sJ}, 6"); e(f"v_lshlrev_b32 v37, 2, v{vL}")
e(f"s_add_u32 s{sT2}, s{sT0}, s{sLG}"); e(f"s_add_u32 s{sT2}, s{sT2}, {oFL}")
if int(OPT.get("otouch", 0)): setexec(0xffff); e(f"buffer_load_dword v29, v37, {sr(sO)}, s{sT0} offen")
gate(sT2, 4, 28); setexec(FULL)
poll(own_loads(vC1, vC2, f"s{sLay}"), [28, 29], 30)
owner_add()
setexec(0xffff)
e(f"buffer_store_dword v28, v37, {sr(sO)}, s{sT0} offen {OPT.get('ost', '').replace('+', ' ')}")
setexec(FULL)
stamp(12); stamp(12, "c")
e("s_branch DONE") if SPIN else e("s_endpgm")
flush_near()
lab("ROLEF")
e(f"v_and_b32 v25, 15, v{vL}"); e(f"v_lshrrev_b32 v26, 4, v{vL}"); e(f"v_bfe_u32 v27, v{vL}, 2, 2"); e(f"v_and_b32 v36, 3, v{vL}")
FA = SPARE
vCG, vCU = vXR, vXR + 1
sPass = sClr
e(f"s_mov_b32 s{sPass}, 1")
e(f"s_cmp_lg_u32 s{sLay}, 0"); e("s_cbranch_scc1 FW")
e(f"s_mov_b32 s{sPass}, 0")
FEA = int(OPT.get("fea", 1))
def fearly():
    if W2P == 0 and "w2" not in SKIP: w2dma()
    e(f"s_sub_u32 s96, s{sJ}, 20"); e("s_lshl_b32 s96, s96, 2"); e(f"s_add_u32 s96, s96, s{sWV}"); e(f"s_mul_i32 s96, s96, {43*16}")
    e(f"v_add_u32 v21, s96, v{vLin}"); e(f"v_min_u32 v21, {32768-16}, v21"); e(f"s_add_u32 s97, s{sLG}, {LS+oQ}")
    e(f"buffer_load_dwordx4 a[240:243], v21, {sr(sW)}, s97 offen sc1")
if FEA: fearly()
lab("FW")
e(f"s_mul_i32 s{sT0}, s{sWV}, 5120"); e(f"s_add_u32 s{sT0}, s{sT0}, {W1}")
e("v_lshl_add_u32 v37, v26, 3, v27"); e("v_lshlrev_b32 v37, 5, v37"); e("v_lshl_add_u32 v37, v36, 3, v37"); e(f"v_add_u32 v37, s{sT0}, v37")
for t in range(2):
    for kk in range(5):
        for h in range(2): e(f"ds_read_b64_tr_b16 {vr(F+20*t+4*kk+2*h,2)}, v37 offset:{(32*kk+4*h)*32+20480*t}")
e(f"s_mul_i32 s{sT0}, s{sWV}, 320"); e(f"s_add_u32 s{sT0}, s{sT0}, {W2}")
e(f"v_lshrrev_b32 v80, 2, v{vL}"); e("v_mul_u32_u24 v80, 1280, v80"); e("v_lshl_add_u32 v80, v36, 3, v80"); e(f"v_add_u32 v80, s{sT0}, v80")
e(f"s_lshl_b32 s{sT2}, s{sWV}, 2"); e(f"s_add_u32 s{sT2}, s{sT2}, {ACC+FACC}"); e(f"v_add_u32 v81, s{sT2}, v{vLin}")
e("v_lshl_add_u32 v82, v26, 2, v36"); e("v_lshlrev_b32 v82, 4, v82"); e(f"v_add_u32 v82, {ACC+FACC}, v82")
e("v_cmp_eq_u32 vcc, 12, v25")
e(f"v_mov_b32 v83, {ACC+FACC+512}"); e("v_mov_b32 v85, 0x3727c5ac")
e("v_lshlrev_b32 v84, 6, v25"); e("v_lshl_add_u32 v84, v26, 4, v84")
e("s_mov_b32 s64, 0x03ff03ff"); e("s_mov_b32 s65, 0x03ff03ff"); e("s_mov_b32 s66, 0x3acccccd"); MASKS[0x03FF03FF03FF03FF] = 64
for t in range(10): e(f"s_mov_b32 s{sMf+2*t}, {0x00010001 << t:#x}"); e(f"s_mov_b32 s{sMf+2*t+1}, {0x00010001 << t:#x}")
e("v_mov_b32 v38, 0x3f803f80"); e(f"v_cndmask_b32 v{FA}, 0, v38, vcc")
for q in range(1, 20): e(f"v_mov_b32 v{FA+q}, v{FA}")
e(f"s_mul_i32 s{sT0}, s{sWV}, {SCRW}")
e(f"v_mul_u32_u24 v6, 336, v25"); e("v_lshl_add_u32 v6, v26, 4, v6"); e(f"v_add_u32 v6, s{sT0}, v6")
e(f"v_mul_u32_u24 v37, 52, v{vL}"); e("v_lshrrev_b32 v37, 10, v37")
e(f"v_lshl_add_u32 v87, v37, 4, v{vLin}"); e(f"v_add_u32 v87, s{sT0}, v87")
e(f"v_mul_u32_u24 v27, 320, v37"); e(f"v_sub_u32 v27, v{vLin}, v27")
assert all((c * 52) >> 10 == c // 20 for c in range(64))
FG = [86, 18, 20]
for i in range(3):
    rowbase(FG[i], 37, oYG, oYL, oBA, 38); e(f"v_add_u32 v{FG[i]}, v{FG[i]}, v27")
    if i < 2: e("v_add_u32 v37, 3, v37")
e(f"s_mul_i32 s{sT0}, s{sWV}, 320"); e(f"s_add_u32 s{sT0}, s{sT0}, s{sLay}")
e(f"s_sub_u32 s{sT1}, s{sJ}, 20"); e(f"s_mul_i32 s{sT1}, s{sT1}, 2560"); e(f"s_mul_i32 s{sT3}, s{sWV}, 640"); e(f"s_add_u32 s{sT1}, s{sT1}, s{sT3}")
e(f"s_add_u32 s{sT1}, s{sT1}, s{sLG}"); e(f"s_add_u32 s{sT1}, s{sT1}, {oFP}")
e("s_waitcnt lgkmcnt(0)")
e(f"s_cmp_eq_u32 s{sPass}, 0"); e("s_cbranch_scc1 FW2")
def t_():
    lab("FW2")
    if "cs" not in SKIP: e(f"s_add_u32 s96, s{sLG}, {2*LS}"); lstore(f"buffer_store_dword v{vCS}, v{vQst}, {sr(sW)}, s96 offen")
    if not FEA: fearly()
    e("s_branch FMM")
tail.append(t_)
lab("FPOLL")
W2R = [f"a[{240+2*t}:{241+2*t}]" for t in range(6)] + ["v[108:109]", "v[110:111]", "v[2:3]", "v[4:5]"]
for t in range(10): e(f"ds_read_b64_tr_b16 {W2R[t]}, v80 offset:{32*t}")
e("s_waitcnt lgkmcnt(0)")
e(f"s_mul_i32 s{sT2}, s{sWV}, 320"); e(f"s_add_u32 s{sT2}, s{sT2}, s{sLG}"); e(f"s_add_u32 s{sT2}, s{sT2}, {oYL}")
gate(sT2, 20, 36)
setexec((1 << 60) - 1)
bounce([([f"buffer_load_dwordx4 {vr(T+4*i)}, v{FG[i]}, {sr(sW)}, s{sT0} offen sc1"], [T + 4 * i]) for i in range(3)], 36,
       [f"ds_write_b128 v87, {vr(T+4*i)} offset:{3*336*i}" for i in range(3)], [f"ds_read_b128 {vr(FA+4*kk)}, v6 offset:{64*kk}" for kk in range(5)])
stamp(8)
lab("FMM")
G_, R2, R3, HB = T + 12, T + 13, T + 14, 60
for kk in range(5):
    e(f"s_waitcnt lgkmcnt({4-kk})")
    e(f"v_mfma_f32_16x16x32_bf16 {vr(T+8)}, {vr(FA+4*kk)}, {vr(FA+4*kk)}, " + ("0" if kk == 0 else vr(T + 8)))
dp = lambda dst, sft, rm: f"v_add_f32_dpp v{dst}, v{G_}, v{G_} row_ror:{sft} row_mask:{rm:#x} bank_mask:0xf"
sh = [[f"v_mov_b32 v{G_}, 0", f"v_mov_b32 v{R2}, 0"], [f"v_mov_b32 v{R3}, 0", f"s_cmp_eq_u32 s{sPass}, 0"], [],
      [f"v_add_f32 v{T+8}, v{T+8}, v{T+9}", f"v_add_f32 v{T+10}, v{T+10}, v{T+11}"], [],
      [f"v_add_f32_dpp v{G_}, v{T+8}, v{T+10} quad_perm:[0,1,2,3] row_mask:0xf bank_mask:0x7"], ["s_nop 0", dp(G_, 8, 15)], ["s_nop 0", dp(G_, 4, 15)],
      ["s_nop 0", dp(G_, 2, 15)], []]
for t in range(2):
    for kk in range(5):
        e(f"v_mfma_f32_16x16x32_bf16 {vr(T+4*t)}, {vr(FA+4*kk)}, {vr(F+20*t+4*kk)}, " + ("0" if kk == 0 else vr(T + 4 * t)))
        for x in sh.pop(0): e(x)
e(f"v_add_f32 v{T}, v{T}, v{T+1}"); e(dp(R2, 1, 7)); e(dp(R3, 1, 8)); e(f"v_add_f32 v{T+2}, v{T+2}, v{T+3}"); e(f"v_add_f32 v{T}, v{T}, v{T+2}")
e(f"v_permlane32_swap_b32 v{T}, v{R2}")
e(f"v_add_f32 v{T+4}, v{T+4}, v{T+5}"); e(f"v_add_f32 v{T+6}, v{T+6}, v{T+7}"); e(f"v_add_f32 v{T+4}, v{T+4}, v{T+6}"); e(f"v_add_f32 v{T}, v{T}, v{R2}")
e(f"v_permlane32_swap_b32 v{T+4}, v{R3}"); e(f"v_add_f32 v{T+4}, v{T+4}, v{R3}")
e(f"v_permlane16_swap_b32 v{T}, v{T+4}"); e(f"v_add_f32 v{T}, v{T}, v{T+4}")
e(f"ds_write_b32 v81, v{T}")
e("s_waitcnt lgkmcnt(0)"); e("s_barrier")
e(f"ds_read_b128 {vr(T+4)}, v83 offset:256"); e(f"ds_read_b128 {vr(T)}, v83"); e(f"ds_read_b128 {vr(T+8)}, v82"); e(f"ds_read_b128 {vr(T+12)}, v82 offset:256")
e("s_cbranch_scc1 FCS")
def sum4(b): e(f"v_add_f32 v{b}, v{b}, v{b+1}"); e(f"v_add_f32 v{b+2}, v{b+2}, v{b+3}"); e(f"v_add_f32 v{b}, v{b}, v{b+2}")
e("s_waitcnt lgkmcnt(3)"); sum4(T + 4); e(f"v_mul_f32 v{T+4}, s66, v{T+4}")
e("s_waitcnt lgkmcnt(2)"); sum4(T); e(f"v_fma_f32 v{T}, v{T}, s66, v85")
e(f"v_fma_f32 v{T}, -v{T+4}, v{T+4}, v{T}"); e(f"v_add_f32 v{T+4}, 1.0, v{T+4}"); e(f"v_max_f32 v{T}, v{T}, v85")
e("s_waitcnt lgkmcnt(1)"); e(f"v_rsq_f32 v{T+1}, v{T}"); sum4(T + 8)
e(f"v_mul_f32 v{T+1}, 0xbfb8aa3b, v{T+1}"); e(f"v_fma_f32 v{T+8}, -v{T+4}, v{vCG}, v{T+8}"); e(f"v_mul_f32 v{T+9}, v{T+8}, v{T+1}"); e(f"v_exp_f32 v{T+9}, v{T+9}")
e("s_waitcnt lgkmcnt(0)"); e(f"v_add_f32 v{T+12}, v{T+12}, v{T+13}")
e(f"v_fma_f32 v{T+9}, v{T+9}, v{T}, v{T}"); e(f"v_rcp_f32 v{T+9}, v{T+9}")
e(f"v_add_f32 v{T+14}, v{T+14}, v{T+15}"); e(f"v_add_f32 v{T+12}, v{T+12}, v{T+14}"); e(f"v_mul_f32 v{T+9}, v{T+9}, v{T+8}")
e(f"v_fma_f32 v{T+12}, -v{T+4}, v{vCU}, v{T+12}"); e(f"v_mul_f32 v{T+12}, v{T+12}, v{T+9}")
for q in range(4): e(f"v_mov_b32_dpp v{T+4+q}, v{T+12} quad_perm:[{q},{q},{q},{q}] row_mask:0xf bank_mask:0xf")
e(f"v_cvt_pk_bf16_f32 v{T+4}, v{T+4}, v{T+5}"); e(f"v_cvt_pk_bf16_f32 v{T+5}, v{T+6}, v{T+7}")
def hm(t): return [f"v_cndmask_b32 v{HB+2*t+q}, 0, v{T+4+q}, {sp(sMf+2*t)}" for q in range(2)]
W2Q = ["a[240:243]", "a[244:247]", "a[248:251]", "v[108:111]", "v[2:5]"]
for x in hm(0) + hm(1) + hm(2): e(x)
for t in range(5):
    e(f"v_mfma_f32_16x16x32_bf16 {vr(T)}, {W2Q[t]}, {vr(HB+4*t)}, " + ("0" if t == 0 else vr(T)))
    for k in (2 * t + 3, 2 * t + 4):
        if k < 10:
            for x in hm(k): e(x)
setexec(0x03FF03FF03FF03FF)
lstore(f"buffer_store_dwordx4 {vr(T)}, v84, {sr(sW)}, s{sT1} offen")
setexec(FULL)
stamp(9)
def t_():
    lab("FCS")
    e("s_waitcnt lgkmcnt(0)"); sum4(T + 8); sum4(T + 12)
    e(f"v_mov_b32 v{vCG}, v{T+8}"); e(f"v_mov_b32 v{vCU}, v{T+12}")
    e(f"s_mov_b32 s{sPass}, 1"); e("s_waitcnt vmcnt(0)")
    for q in range(4): e(f"v_mov_b32 v{T+q}, -1")
    if "q1c" not in SKIP: lstore(f"buffer_store_dwordx4 {vr(T)}, v21, {sr(sW)}, s97 offen")
    e("s_barrier"); stamp(13); e("s_branch FPOLL")
tail.append(t_)
lab("NEXT")
e(f"s_cmp_lg_u32 s{sLay}, 0"); e("s_cbranch_scc1 DONE")
e(f"s_mov_b32 s{sLay}, {LS}"); e(f"s_add_u32 s{sLG}, s{sLG}, {LS}"); e(f"s_add_u32 s{sYg}, s{sYg}, {LS}"); e(f"s_add_u32 s{sYl}, s{sYl}, {LS}")
e("s_mov_b64 s[46:47], s[44:45]"); e("s_mov_b64 s[48:49], s[92:93]")
e("s_branch LOOP")
flush_near()
lab("DONE")
if SPIN:
    e("v_accvgpr_read_b32 v38, a253"); e("s_nop 1"); e("v_readfirstlane_b32 s96, v38")
    if SPM == "min":
        e("v_not_b32 v38, v38"); e("v_mov_b32 v39, 192"); e("s_mov_b64 exec, 1"); e("global_atomic_umax v39, v38, s[64:65] sc1"); e("s_waitcnt vmcnt(0)")
        lab("SPW"); e("s_sleep 20"); e("s_memrealtime s[98:99]"); e("s_waitcnt lgkmcnt(0)"); e("s_sub_u32 s98, s98, s96"); e(f"s_cmp_lt_u32 s98, {SPIN*100-1500}"); e("s_cbranch_scc1 SPW")
        e("global_load_dword v38, v39, s[64:65] sc1"); e("s_waitcnt vmcnt(0)"); e("v_not_b32 v38, v38"); e("s_nop 1"); e("v_readfirstlane_b32 s96, v38")
    lab("SPINL"); e("s_memrealtime s[98:99]"); e("s_waitcnt lgkmcnt(0)"); e("s_sub_u32 s98, s98, s96"); e(f"s_cmp_lt_u32 s98, {SPIN*100}"); e("s_cbranch_scc1 SPINL")
e("s_endpgm")
i = 0
while i < len(tail): tail[i](); flush_near(); i += 1
lab("CODE_END")
e("s_endpgm")

body = A.pad()
hdr = [f"; @launch grid=(256,1,1) block=(256,1,1) lds={LDSSZ}", '.amdgcn_target "amdgcn-amd-amdhsa--gfx950"', ".text",
       f".globl {NAME}_kernel", ".p2align 8", f".type {NAME}_kernel,@function", f"{NAME}_kernel:"]
ftr = ['.section .rodata,"a"', ".p2align 6", f".amdhsa_kernel {NAME}_kernel", "  .amdhsa_next_free_vgpr 512", "  .amdhsa_next_free_sgpr 102",
       "  .amdhsa_accum_offset 256", "  .amdhsa_group_segment_fixed_size 0", "  .amdhsa_kernarg_size 96", "  .amdhsa_user_sgpr_count 2",
       "  .amdhsa_user_sgpr_kernarg_segment_ptr 1", "  .amdhsa_system_sgpr_workgroup_id_x 1", ".end_amdhsa_kernel"]
src = "\n".join(hdr + body + ftr) + "\n"
import re
for m in re.finditer(r"buffer_\S+ .*offset:(\d+)", src): assert int(m.group(1)) < 4096, m.group(0)
for m in re.finditer(r"ds_\S+ .*offset:(\d+)", src): assert int(m.group(1)) < 65536, m.group(0)
open(OUT, "w").write(src)
```

```python
import os, sys
sys.path.insert(0, os.path.dirname(os.path.abspath(__file__)))
from asmlib import Asm
NAME = "interleave_layers__sliding_block_cached__glu_gated_swiglu__decode"
OPT = dict(a.split("=") for a in sys.argv[2:])
OUT = sys.argv[1] if len(sys.argv) > 1 else f"/code/{NAME}.s"
STAMP = int(OPT.get("stamp", 0))
NT = OPT.get("nt", "nt").replace("x", "")
NTW = OPT.get("ntw", "nt").replace("x", "")
SKIP = OPT.get("skip", "").split(",")
FORCESLOW = int(OPT.get("slow", 0))
SPIN = int(OPT.get("spin", 0))
A = Asm(); e = A.e; lab = A.lab
tail = []

RS = 416; SCRW = 16 * RS
SCR = 0; WQ = 4 * SCRW; ROLE = WQ + 30720
WO = ROLE; W1 = ROLE; W3 = ROLE + 20480; W2 = ROLE + 49152
MISC = ROLE + 61440; QB = MISC; ACC = MISC + 512
OACC = 0; YACC = 3072; FACC = 4096
PT = ACC + 5120; ML4 = PT + 1024
FLG = ML4 + 64
LDSSZ = FLG + 64
FDMA = OPT.get("fdma", "late")
OMASK = int(OPT.get("omask", 1))
WDMA = OPT.get("wdma", "mid")
PF = OPT.get("pf", "ow")
NTP = OPT.get("ntp", "x").replace("x", "")
NTR = OPT.get("ntr", "x").replace("x", "")
GB = 81920; oQ = 0; oO = 32768; oML = 45056; oYL = 45312; oFL = 46592; oBA = 47872; oBB = 49152; oGX = 50432
GOFF = 8 * GB; oYG = GOFF; oFG = GOFF + 81920; LS = 0xC8000
OOB = 0x7FFFFFF0
sK, sV, sW, sWQ, sRA, sRB, sRC, sX, sO = 8, 12, 16, 20, 24, 28, 32, 36, 40
sG, sJ, sHH, sS, sWV, sKV, sLay, sFast, sCnt = 68, 69, 70, 71, 72, 73, 74, 75, 76
sT0, sT1, sT2 = 77, 78, 79
sLG = 3
sClr = 4
sXcc = 5
sTL = 6
sT3 = 7
sYg, sYl = 80, 81
sMf = 44
def sr(b): return f"s[{b}:{b+3}]"
def sp(b): return f"s[{b}:{b+1}]"
def vr(b, n=4): return f"v[{b}:{b+n-1}]" if n > 1 else f"v{b}"
def ar(b, n=4): return f"a[{b}:{b+n-1}]"
def srd(d, lo, nbytes):
    e(f"s_mov_b32 s{d}, s{lo}"); e(f"s_and_b32 s{d+1}, s{lo+1}, 0xffff")
    e(f"s_mov_b32 s{d+2}, {nbytes}"); e(f"s_mov_b32 s{d+3}, 0x20000")
MASKS = {}
def setexec(mask):
    if mask in MASKS: e(f"s_mov_b64 exec, {sp(MASKS[mask])}"); return
    lo, hi = mask & 0xffffffff, mask >> 32
    if mask == (1 << 64) - 1: e("s_mov_b64 exec, -1")
    elif hi == 0 and lo <= 64: e(f"s_mov_b64 exec, {lo}")
    else: e(f"s_mov_b32 exec_lo, {lo:#x}"); e(f"s_mov_b32 exec_hi, {hi:#x}")
FULL = (1 << 64) - 1
ROWS9 = 0x01FF01FF01FF01FF
vL, vLin, vWr, vKrd, vVrd, vCS, vAq, vAq16, vQst, vQld, vQBw, vQBr, vIdx, vAcc, vTq1, vTq2, vSC, vPw = 0, 1, 2, 5, 6, 7, 8, 9, 10, 11, 12, 13, 14, 15, 16, 17, 18, 19
vC1, vC2, vXR = 20, 21, 22
T = 24
F = 40
SPARE = 88
def vblock(b):
    if b < 2: return ("a", 192 + 24 * b)
    if b == 8: return ("v", SPARE)
    return ("v", 112 + 24 * (b - 2))
def rg(f, b, n): return f"{f}[{b}:{b+n-1}]"

uid = [0]
def nid(): uid[0] += 1; return uid[0]
stamps = [0]
SPINAT = int(OPT.get("spinat", -1))
JIT = int(OPT.get("jit", 0))
def jitter(mask, prob):
    k = nid()
    e("s_cselect_b32 s98, 1, 0")
    e("s_memtime s[100:101]"); e("s_waitcnt lgkmcnt(0)"); e("s_mul_i32 s100, s100, 0x9e3779b1"); e("s_lshr_b32 s99, s100, 24"); e(f"s_cmp_ge_u32 s99, {prob}"); e(f"s_cbranch_scc1 JX{k}")
    e("s_lshr_b32 s99, s100, 12"); e(f"s_and_b32 s99, s99, {mask}")
    lab(f"JL{k}"); e("s_sleep 4"); e("s_sub_u32 s99, s99, 1"); e("s_cmp_ge_i32 s99, 0"); e(f"s_cbranch_scc1 JL{k}")
    lab(f"JX{k}"); e("s_cmp_eq_u32 s98, 1")
def stamp(i, val=None):
    if JIT and val is None: jitter(JIT, 24); return
    if SPIN and val is None and SPINAT % 16 == i:
        k = nid()
        e(f"s_cmp_lg_u32 s{sLay}, {LS*(SPINAT//16)}"); e(f"s_cbranch_scc1 NOSP{k}")
        e("s_memrealtime s[100:101]"); e("s_waitcnt lgkmcnt(0)"); e("v_accvgpr_write_b32 a253, s100"); lab(f"NOSP{k}")
    if not STAMP: return
    if STAMP == 3 and (val is not None or i != 7): return
    if val == "d":
        if STAMP != 6: return
        val = None
    elif STAMP == 6 and (val is not None or i not in (9, 10, 11)): return
    if STAMP == 5 and (val is not None or i not in (9, 11, 12, 13)): return
    if STAMP == 4 and val != "c": return
    if val == "c":
        if STAMP != 4: return
        val = None
    if STAMP == 2 and val is None and i not in (0, 14): return
    if STAMP == 1 and (val is not None or i == 14): return
    e("s_memrealtime s[100:101]"); e("v_accvgpr_write_b32 a254, v38"); e("v_accvgpr_write_b32 a255, v39")
    e(f"s_lshl_b32 s98, s2, 2"); e(f"s_add_u32 s98, s98, s{sWV}"); e("s_lshl_b32 s98, s98, 7")
    e(f"s_cmp_eq_u32 s{sLay}, 0"); e(f"s_cselect_b32 s99, 0, 64"); e(f"s_add_u32 s99, s99, {4*i}"); e("s_add_u32 s98, s98, s99"); e("s_add_u32 s98, s98, 0x40000000")
    e("s_waitcnt lgkmcnt(0)"); e(f"v_mov_b32 v38, {val or 's100'}"); e("v_mov_b32 v39, 0")
    e("s_mov_b64 s[100:101], exec"); e("s_mov_b64 exec, 1")
    A.vmem(f"buffer_store_dword v38, v39, {sr(sW)}, s98 offen", "stamp")
    e("s_mov_b64 exec, s[100:101]"); e("s_nop 1"); e("v_accvgpr_read_b32 v38, a254"); e("v_accvgpr_read_b32 v39, a255")
sWp = sK
def lstore(instr, counted=None):
    assert sr(sW) in instr and not counted
    k = nid()
    e(instr.replace(sr(sW), sr(sWp)))
    e(f"s_cmp_eq_u32 s{sWp+2}, 0"); e(f"s_cbranch_scc1 SLOW{k}")
    lab(f"BACK{k}")
    def t(): lab(f"SLOW{k}"); e(instr + " sc1"); e(f"s_branch BACK{k}")
    tail.append(t)
def check(regs_, tmp):
    r = list(regs_)
    if len(r) == 1: e(f"v_cmp_eq_u32 vcc, -1, v{r[0]}"); return
    cur = r.pop(0)
    while r:
        if len(r) >= 2: e(f"v_max3_u32 v{tmp}, v{cur}, v{r[0]}, v{r[1]}"); r = r[2:]
        else: e(f"v_max_u32 v{tmp}, v{cur}, v{r[0]}"); r = r[1:]
        cur = tmp
    e(f"v_cmp_eq_u32 vcc, -1, v{tmp}")
LIMIT = 0x8000
def poll(loads, regs_, tmp, pid=None, slp=0, first=None):
    k = nid()
    if pid is not None: stamp(pid, "s100")
    e(f"s_mov_b32 s{sCnt}, 1")
    if first:
        for l in loads: e(l)
        first(); e(f"s_branch POLLW{k}")
    lab(f"POLL{k}")
    for l in loads: e(l)
    lab(f"POLLW{k}")
    e("s_waitcnt vmcnt(0)")
    check(regs_, tmp)
    e(f"s_cbranch_vccnz AGAIN{k}")
    lab(f"POLLX{k}")
    def t():
        lab(f"AGAIN{k}")
        if slp: e(f"s_sleep {slp}")
        e(f"s_add_u32 s{sCnt}, s{sCnt}, 1"); e(f"s_cmp_lt_u32 s{sCnt}, {LIMIT}"); e(f"s_cbranch_scc1 POLL{k}"); e(f"s_branch POLLX{k}")
    near.append(t)
    if pid is not None: stamp(pid + 1, "s100"); stamp(pid + 2, f"s{sCnt}")
    A.drained()
SEL = int(OPT.get("sel", 1)); XF = " " + OPT.get("xf", "").replace("+", " "); XF1 = int(OPT.get("xf1", 0))
def poll_sel(groups, tmp, pid=None, first=None, firstloads=None, xf="", wl=None, w1=0):
    allr = [r for g in groups for r in g[1]]
    loads = firstloads or [l for g in groups for l in g[0]]
    if not SEL: return poll(loads, allr, tmp, pid=pid, first=first)
    k = nid()
    if pid is not None: stamp(pid, "s100")
    for l in loads: e(l + (xf if XF1 else ""))
    if first: first()
    if wl: lab(wl)
    if pid is not None and STAMP == 2: e(f"s_mov_b32 s{sCnt}, 1")
    e(f"s_waitcnt vmcnt({w1})")
    check(allr, tmp)
    e(f"s_cbranch_vccnz AGAIN{k}")
    lab(f"POLLX{k}")
    def t():
        lab(f"AGAIN{k}")
        e("s_mov_b64 s[94:95], exec"); e(f"s_mov_b32 s{sCnt}, 1")
        lab(f"AG2{k}")
        if int(OPT.get("osl", 0)): e(f"s_sleep {OPT['osl']}")
        for gi, (ls, rs) in enumerate(groups):
            if len(groups) > 1: check(rs, tmp)
            e("s_mov_b64 exec, vcc")
            if len(groups) > 1: e(f"s_cbranch_execz AG3{k}_{gi}")
            for l in ls: e(l + xf)
            lab(f"AG3{k}_{gi}"); e("s_mov_b64 exec, s[94:95]")
        e(f"s_add_u32 s{sCnt}, s{sCnt}, 1"); e(f"s_cmp_ge_u32 s{sCnt}, {LIMIT}")
        e("s_waitcnt vmcnt(0)")
        check(allr, tmp)
        e(f"s_cbranch_vccz POLLX{k}"); e(f"s_cbranch_scc0 AG2{k}"); e(f"s_branch POLLX{k}")
    near.append(t)
    if pid is not None: stamp(pid + 1, "s100"); stamp(pid + 2, f"s{sCnt}")
    A.drained()
near = []
def flush_near():
    while near: near.pop(0)()
GATE = int(OPT.get("gate", 1)); GDLY = int(OPT.get("gdly", 0)); ODLY = int(OPT.get("odly", 16))
def gate(sreg, nl, tmp):
    if not GATE: return
    setexec((1 << nl) - 1)
    poll([f"buffer_load_dword v{tmp}, v{vLin}, {sr(sW)}, s{sreg} offen sc1"], [tmp], tmp, slp=int(OPT.get("gsl", 0)))
    if GDLY: e(f"s_sleep {GDLY}")
def poll_nan(loads, body, res):
    k = nid()
    e(f"s_mov_b32 s{sCnt}, 1")
    lab(f"POLL{k}")
    for l in loads: e(l)
    e("s_waitcnt vmcnt(0)")
    body()
    e(f"v_cmp_u_f32 vcc, v{res}, v{res}"); e(f"s_cbranch_vccnz AGAIN{k}")
    lab(f"POLLX{k}")
    def t():
        lab(f"AGAIN{k}"); e(f"s_add_u32 s{sCnt}, s{sCnt}, 1"); e(f"s_cmp_lt_u32 s{sCnt}, {LIMIT}"); e(f"s_cbranch_scc1 POLL{k}"); e(f"s_branch POLLX{k}")
    near.append(t)
def late_check(tag, loads, regs_, tmp, pre=None, post=None):
    k = nid()
    A.wait(tag)
    check(regs_, tmp)
    e(f"s_cbranch_vccnz RETRY{k}")
    lab(f"OK{k}")
    def t():
        lab(f"RETRY{k}")
        if pre: pre()
        save = A.vm; poll(loads, regs_, tmp); A.vm = save
        if post: post()
        e(f"s_branch OK{k}")
    tail.append(t)

sTO = 82
sPo, sPw = 90, 91
vLin2 = vXR + 1
e("s_load_dwordx16 s[44:59], s[0:1], 0"); e("s_load_dwordx8 s[60:67], s[0:1], 64")
e("s_cmp_ge_u32 s2, 256"); e("s_cbranch_scc1 CODE_END")
e("s_memrealtime s[96:97]")
e("v_lshrrev_b32 v2, 6, v0"); e("v_and_b32 v24, 63, v0"); e(f"v_readfirstlane_b32 s{sWV}, v2")
e(f"s_and_b32 s{sG}, s2, 7"); e(f"s_lshr_b32 s{sJ}, s2, 3"); e(f"s_lshr_b32 s{sHH}, s{sJ}, 3"); e(f"s_and_b32 s{sS}, s{sJ}, 7")
e(f"v_lshlrev_b32 v{vLin}, 4, v24")
e(f"s_lshl_b32 s{sT0}, s{sHH}, 3"); e(f"s_add_u32 s{sT0}, s{sT0}, s{sG}")
e(f"s_mul_i32 s{sKV}, s{sT0}, 12582912"); e(f"s_lshl_b32 s{sT1}, s{sS}, 2"); e(f"s_add_u32 s{sT1}, s{sT1}, s{sWV}")
e(f"s_mul_i32 s{sT1}, s{sT1}, 6144"); e(f"s_add_u32 s{sKV}, s{sKV}, s{sT1}"); e(f"s_add_u32 s{sKV}, s{sKV}, 11010048")
e(f"v_add_u32 v{vLin2}, 4096, v{vLin}"); e(f"s_mov_b32 s{sK+2}, 402653184"); e(f"s_mov_b32 s{sK+3}, 0x20000")
e("s_getpc_b64 s[100:101]"); lab("PCREF")
e(f"s_sub_u32 s100, s100, PCREF-{NAME}_kernel"); e("s_subb_u32 s101, s101, 0")
e(f"s_lshl_b32 s{sT1}, s{sS}, 12"); e(f"v_lshl_add_u32 v25, v0, 4, s{sT1}")
e(f"v_cmp_gt_u32 vcc, CODE_END-{NAME}_kernel-16, v25"); e("s_and_saveexec_b64 s[98:99], vcc"); e("s_cbranch_execz NOCPF")
e(f"global_load_dwordx4 a[240:243], v25, s[100:101]")
lab("NOCPF"); e("s_mov_b64 exec, -1")
e(f"s_mul_i32 s{sT2}, s{sT0}, 384")
e(f"s_mov_b32 s{sLay}, 0"); e(f"s_mul_i32 s{sLG}, s{sG}, {GB}"); e(f"s_getreg_b32 s{sFast}, hwreg(HW_REG_XCC_ID, 0, 4)")
e(f"s_lshl_b32 s{sT0}, s{sJ}, 9"); e(f"s_add_u32 s{sT0}, s{sT0}, s{sLG}"); e(f"s_add_u32 s{sT0}, s{sT0}, {oO}"); e(f"v_add_u32 v{vC1}, s{sT0}, v{vLin}")
e(f"s_lshl_b32 s{sT0}, s{sG}, 2"); e(f"s_add_u32 s{sT0}, s{sT0}, s{sJ}"); e(f"s_mul_i32 s{sT0}, s{sT0}, 320"); e(f"s_add_u32 s{sT0}, s{sT0}, {oYG-512}"); e(f"v_add_u32 v25, s{sT0}, v{vLin}")
e("v_cmp_le_u32 vcc, 32, v0"); e(f"v_cndmask_b32 v{vC2}, v{vC1}, v25, vcc"); e(f"v_mov_b32 v25, {OOB}"); e(f"v_cndmask_b32 v{vC1}, v{vC1}, v25, vcc")
e(f"s_cmp_lt_u32 s{sJ}, 4"); e(f"s_cselect_b32 s{sT0}, 52, 32"); e(f"v_cmp_le_u32 vcc, s{sT0}, v0"); e(f"v_cndmask_b32 v{vC2}, v{vC2}, v25, vcc")
e(f"s_mov_b32 s{sW+2}, 1610612736"); e(f"s_mov_b32 s{sW+3}, 0x20000")
e("s_waitcnt lgkmcnt(0)")
e(f"s_mov_b32 s{sK}, s46"); e(f"s_and_b32 s{sK+1}, s47, 0xffff"); e(f"s_mov_b32 s{sW}, s66"); e(f"s_and_b32 s{sW+1}, s67, 0xffff")
if SPIN: e("v_mov_b32 v38, s96"); e("v_accvgpr_write_b32 a253, v38")
SPM = OPT.get("spm", "")
RW = int(OPT.get("rw", 16)); RF = (320 - 20 * RW) // 12
assert 20 * RW + 12 * RF == 320
NPW = -(-max(RW, RF) * 24 // 64)
pend = []
def q_tile(srdn, t, f, base, tag):
    so = sKV if t == 0 else sTO + t
    for i in range(6):
        pend.append((f"buffer_load_dwordx4 {rg(f, base+4*i, 4)}, v{vLin if i < 4 else vLin2}, {sr(srdn)}, s{so} offen offset:{1024*(i%4)} {NT}", tag))
def qK(t): q_tile(sK, t, "a", 24 * t, f"K{t}")
def qV(t): f, b = vblock(t + 1); q_tile(sV, t, f, b, f"V{t}")
def q_pfo():
    for n in range(9): pend.append((f"buffer_load_dwordx4 a[240:243], v{[vLin, vLin, vLin2, 108, 109][n//2]}, {sr(sWQ)}, s{sPo} offen offset:{1024*(n%4)} {NTP}", "pfo"))
def q_pfw():
    for n in range(NPW): pend.append((f"buffer_load_dwordx4 a[240:243], v{101+n}, {sr(sX)}, s{sPw} offen {NTP}", "pfw"))
nfill = [0]; BARN = int(OPT.get("barn", 6)); THR = int(OPT.get("thr", 0)); THRE = int(OPT.get("thre", 0)); THS = int(OPT.get("ths", 20)); THP = int(OPT.get("thp", 1))
hold = {"V7", "pfw", "pfo"}; LA = int(OPT.get("la", 12))
def ahead(tag, LA=LA):
    while tag in A.vm and pend and pend[0][1] not in hold and len(A.vm) - 1 - max(i for i, x in enumerate(A.vm) if x == tag) < LA: fill()
def fill(n=1):
    for _ in range(n):
        if pend and not (pend[0][1] in hold):
            if THR and nfill[0] >= THS and len(pend) > THRE:
                k = nid(); e(f"s_bitcmp{THP}_b32 s{sFast}, 0"); e(f"s_cbranch_scc1 TH{k}"); e(f"s_waitcnt vmcnt({THR-1})"); lab(f"TH{k}")
            x, tag = pend.pop(0); A.vmem(x, tag); nfill[0] += 1
            if BARN and nfill[0] > 12 and nfill[0] % BARN == 0 and len(pend) >= 3: e("s_barrier")
BARS = OPT.get("bar", "").split(",")
def upto(tag):
    while any(t == tag for _, t in pend): fill()
    if tag in BARS or "every" in BARS and tag not in ("K0", "K1", "V7"): e("s_barrier")
def Kld(t): upto(f"K{t}")
def Vld(t): upto(f"V{t}")
for it in OPT.get("order", "K0 K1 K2 K3 K4 K5 K6 K7 V0 V1 V2 V3 V4 V5 V6 V7").replace(",", " ").split():
    if it == "w":
        if "pfw" not in SKIP: q_pfw()
    elif it == "o":
        if "pfo" not in SKIP: q_pfo()
    elif it[0] == "K": qK(int(it[1]))
    else: qV(int(it[1]))
if JIT: jitter(255, 16)
fill(int(OPT.get("k0e", 2)))
e(f"s_or_b32 s{sT0}, s2, s{sWV}"); e("s_cbranch_scc1 NOTAG")
e(f"s_or_b32 s{sT0}, s96, 1"); e(f"v_mov_b32 v26, s{sT0}"); setexec(1); e(f"global_store_dword v{vLin}, v26, s[64:65] sc1"); setexec(FULL)
lab("NOTAG")
if STAMP == 1: e("s_memrealtime s[94:95]")
e(f"s_add_u32 s{sTO+1}, s{sKV}, 196608")
srd(sV, 48, 402653184); srd(sWQ, 50, 7864320); srd(sX, 44, 1280); srd(sO, 62, 1280)
srd(sRB, 58, 1966080); srd(sRC, 60, 1966080)
e(f"s_cmp_lt_u32 s{sJ}, 20"); e(f"s_cselect_b32 s{sRA}, s52, s56"); e(f"s_cselect_b32 s{sRA+1}, s53, s57"); e(f"s_cselect_b32 s{sRA+2}, s{sWQ+2}, s{sRB+2}")
e(f"s_and_b32 s{sRA+1}, s{sRA+1}, 0xffff"); e(f"s_mov_b32 s{sRA+3}, 0x20000")
TLBW = OPT.get("tlbw", "")
def tlb_touch():
    e(f"s_cmp_lg_u32 s{sWV}, 3"); e("s_cbranch_scc1 NOTLB")
    if "j" in TLBW: e(f"s_cmp_lg_u32 s{sS}, 0"); e("s_cbranch_scc1 NOTLB")
    e("v_mul_u32_u24 v26, 1376256, v24"); e("v_lshlrev_b32 v27, 20, v24")
    setexec(3)
    if "v" in TLBW: e(f"buffer_load_dword a243, v26, {sr(sV)}, s{sKV} offen nt"); e(f"buffer_load_dword a243, v26, {sr(sK)}, s{sKV} offen nt")
    if "w" in TLBW:
        e(f"global_load_dword a243, v27, s[56:57] nt"); e(f"buffer_load_dword a243, v27, {sr(sRB)}, 0 offen nt"); e(f"buffer_load_dword a243, v27, {sr(sRC)}, 0 offen nt")
        setexec(0xff); e(f"global_load_dword a243, v27, s[52:53] nt")
    setexec(FULL)
    lab("NOTLB")
if TLBW: tlb_touch()
if STAMP:
    e(f"s_lshl_b32 s98, s2, 2"); e(f"s_add_u32 s98, s98, s{sWV}"); e("s_lshl_b32 s98, s98, 7"); e("s_add_u32 s98, s98, 0x40000000")
    e("v_mov_b32 v38, s96"); e("v_mov_b32 v39, 0"); e("s_mov_b64 exec, 1")
    A.vmem(f"buffer_store_dword v38, v39, {sr(sW)}, s98 offen", "stamp")
    if STAMP == 1: e("s_waitcnt lgkmcnt(0)"); e("v_mov_b32 v37, s94"); A.vmem(f"buffer_store_dword v37, v39, {sr(sW)}, s98 offen offset:56", "stamp")
    e("s_mov_b64 exec, -1")
for t in range(2, 8): e(f"s_add_u32 s{sTO+t}, s{sTO+t-1}, 196608")
e(f"v_mov_b32 v{vL}, v24")
e(f"s_mul_i32 s{sT0}, s{sWV}, {SCRW}")
for r in range(3):
    e(f"v_add_u32 v25, {64*r}, v{vL}"); e("v_mul_u32_u24 v26, 171, v25"); e("v_lshrrev_b32 v26, 12, v26")
    e("v_mul_u32_u24 v27, 24, v26"); e("v_sub_u32 v27, v25, v27"); e("v_lshlrev_b32 v27, 4, v27")
    e(f"v_mul_u32_u24 v25, {RS}, v26"); e(f"v_add3_u32 v{vWr+r}, v25, v27, s{sT0}")
    e(f"v_mul_u32_u24 v25, 12288, v26"); e(f"v_add_u32 v{F+r}, v25, v27")
assert all((c * 171) >> 12 == c // 24 for c in range(192))
e(f"v_and_b32 v25, 15, v{vL}"); e(f"v_lshrrev_b32 v26, 4, v{vL}")
e(f"v_bfe_u32 v27, v{vL}, 2, 2"); e(f"v_and_b32 v28, 3, v{vL}")
e(f"s_mul_i32 s{sT1}, s{sS}, 160")
e(f"v_lshlrev_b32 v36, 4, v26"); e(f"v_lshlrev_b32 v37, 3, v26"); e(f"v_lshlrev_b32 v39, 2, v{vL}")
A.vmem(f"buffer_load_dwordx4 v[70:73], v36, {sr(sX)}, s{sT1} offen", "x")
A.vmem(f"buffer_load_dwordx4 v[74:77], v36, {sr(sX)}, s{sT1} offen offset:64", "x")
A.vmem(f"buffer_load_dwordx2 v[78:79], v37, {sr(sX)}, s{sT1} offen offset:128", "x")
A.vmem(f"buffer_load_dwordx4 v[80:83], v{vLin}, {sr(sX)}, 0 offen", "x")
A.vmem(f"buffer_load_dword v84, v39, {sr(sX)}, 0 offen offset:1024", "x")
e(f"s_lshl_b32 s{sT3}, s{sJ}, 6"); e(f"v_lshlrev_b32 v38, 2, v25")
A.vmem(f"buffer_load_dword v{vXR}, v38, {sr(sX)}, s{sT3} offen", "x")
e(f"s_mul_i32 s{sT1}, s{sS}, {80*12288}"); e(f"s_add_u32 s{sT2}, s{sT2}, s{sT1}")
e(f"s_mul_i32 s{sT1}, s{sWV}, {8*12288}"); e(f"s_add_u32 s{sT2}, s{sT2}, s{sT1}")
e(f"s_mul_i32 s{sT1}, s{sWV}, 3072"); e(f"s_add_u32 s{sT1}, s{sT1}, {WQ}")
for gi in range(3):
    if gi == 2: e(f"s_cmp_ge_u32 s{sWV}, 2"); e("s_cbranch_scc1 NOWQ3")
    for r in range(3):
        e(f"s_add_u32 m0, s{sT1}, {gi*4*3072 + r*1024}")
        if "wq" not in SKIP: A.vmem(f"buffer_load_dwordx4 v{F+r}, {sr(sWQ)}, s{sT2} offen {NTW} lds", "wq", counted=(gi < 2))
    if gi < 2: e(f"s_add_u32 s{sT2}, s{sT2}, {32*12288}")
lab("NOWQ3")
e(f"s_mul_i32 s{sT1}, s{sS}, 160")
srd(sWQ, 52, 7864320)
e(f"s_cmp_lt_u32 s{sWV}, 2"); e(f"s_cselect_b32 s{sX}, s56, s58"); e(f"s_cselect_b32 s{sX+1}, s57, s59"); e(f"s_and_b32 s{sX+1}, s{sX+1}, 0xffff"); e(f"s_mov_b32 s{sX+2}, 1966080")
fill(3)
e(f"v_mul_u32_u24 v29, {RS}, v25"); e(f"v_lshl_add_u32 v29, v26, 4, v29"); e(f"v_add_u32 v{vKrd}, s{sT0}, v29")
e(f"v_lshrrev_b32 v29, 2, v{vL}"); e(f"v_mul_u32_u24 v29, {RS}, v29"); e(f"v_lshl_add_u32 v29, v28, 3, v29"); e(f"v_add_u32 v{vVrd}, s{sT0}, v29")
e(f"s_mul_i32 s{sT2}, s{sWV}, 96"); e(f"s_add_u32 s{sT2}, s{sT2}, {WQ}")
e("v_lshl_add_u32 v29, v26, 3, v27"); e("v_mul_u32_u24 v29, 384, v29"); e("v_lshl_add_u32 v29, v28, 3, v29"); e(f"v_add_u32 v{vTq1}, s{sT2}, v29")
e("v_lshl_add_u32 v29, v26, 2, v27"); e("v_mul_u32_u24 v29, 384, v29"); e("v_lshl_add_u32 v29, v28, 3, v29"); e(f"v_add_u32 v{vTq2}, s{sT2}, v29")
REPL = int(OPT.get("repl", 1))
def rowbase(dst, m, og, ol, ob, tmp):
    e(f"s_mul_i32 s{sT3}, s{sG}, {10240 if REPL else 0}")
    if og == oYG: e(f"s_cmp_eq_u32 s{sLay}, 0"); e(f"s_cselect_b32 s{sT3}, 0, s{sT3}")
    e(f"s_add_u32 s{sT3}, s{sT3}, {og}")
    e(f"v_mul_u32_u24 v{dst}, 1280, v{m}"); e(f"v_add_u32 v{dst}, s{sT3}, v{dst}")
    e(f"s_mul_i32 s{sT3}, s{sG}, {GB}"); e(f"s_add_u32 s{sT3}, s{sT3}, {ol}"); e(f"v_mov_b32 v{tmp}, s{sT3}")
    e(f"v_cmp_eq_u32 vcc, s{sG}, v{m}"); e(f"v_cndmask_b32 v{dst}, v{dst}, v{tmp}, vcc")
    if ob is not None:
        e(f"v_add_u32 v{tmp}, {ob-ol}, v{tmp}"); e(f"v_cmp_le_u32 vcc, 8, v{m}"); e(f"v_cndmask_b32 v{dst}, v{dst}, v{tmp}, vcc")
fill()
e(f"v_mul_u32_u24 v31, 103, v{vL}"); e("v_lshrrev_b32 v31, 10, v31")
e(f"v_mul_u32_u24 v30, 10, v31"); e(f"v_sub_u32 v30, v{vL}, v30"); e(f"v_lshl_add_u32 v29, v30, 4, s{sT1}")
rowbase(vAq, 31, oFG, oFL, oBB, 30); e(f"v_add_u32 v{vAq}, v{vAq}, v29")
e("v_add_u32 v31, 6, v31"); rowbase(vAq16, 31, oFG, oFL, oBB, 30); e(f"v_add_u32 v{vAq16}, v{vAq16}, v29")
e(f"v_mov_b32 v30, {OOB}"); e(f"v_cmp_le_u32 vcc, 30, v{vL}"); e(f"v_cndmask_b32 v{vAq16}, v{vAq16}, v30, vcc")
assert all((c * 103) >> 10 == c // 10 for c in range(64))
e(f"s_lshl_b32 s{sT1}, s{sJ}, 10"); e(f"s_lshl_b32 s{sT2}, s{sWV}, 8"); e(f"s_add_u32 s{sT1}, s{sT1}, s{sT2}")
e(f"v_lshl_add_u32 v{vQst}, v{vL}, 2, s{sT1}")
e(f"s_lshl_b32 s{sT1}, s{sHH}, 13"); e(f"s_add_u32 s{sT1}, s{sT1}, s{sT2}")
e(f"v_lshlrev_b32 v29, 10, v26"); e(f"v_lshl_add_u32 v29, v25, 4, v29"); e(f"v_add_u32 v{vQld}, s{sT1}, v29")
fill()
e(f"s_mul_i32 s{sT1}, s{sWV}, 96"); e(f"s_add_u32 s{sT1}, s{sT1}, {QB}")
e(f"v_lshl_add_u32 v29, v27, 5, s{sT1}"); e("v_lshl_add_u32 v29, v28, 2, v29"); e("v_lshrrev_b32 v30, 1, v26"); e("v_lshl_add_u32 v29, v30, 4, v29")
e("v_and_b32 v30, 1, v26"); e("v_lshl_add_u32 v29, v30, 1, v29"); e(f"v_mov_b32 v30, {QB+384}")
e("v_cmp_le_u32 vcc, 12, v25"); e(f"v_cndmask_b32 v{vQBw}, v29, v30, vcc")
e(f"v_and_b32 v30, 1, v{vL}"); e(f"v_lshlrev_b32 v29, 5, v26"); e("v_lshl_add_u32 v29, v30, 4, v29"); e(f"v_add_u32 v{vQBr}, {QB}, v29")
e("v_mul_u32_u24 v30, 0xaaaa, v30"); e("v_and_b32 v29, 1, v27"); e("v_mul_u32_u24 v29, 0xaaaa, v29"); e("v_lshl_or_b32 v29, v29, 16, v30"); e(f"v_add_u32 v{vIdx}, 0x44444444, v29")
fill()
e(f"s_lshl_b32 s{sT1}, s{sWV}, 8"); e(f"s_add_u32 s{sT1}, s{sT1}, {PT}")
e(f"v_lshrrev_b32 v29, 5, v{vL}"); e(f"v_lshl_add_u32 v29, v29, 6, s{sT1}")
for bit, sh in ((3, 5), (1, 4), (2, 3), (4, 2), (0, 1)): e(f"v_bfe_u32 v30, v{vL}, {bit}, 1"); e(f"v_lshl_add_u32 v29, v30, {sh}, v29")
e(f"v_mov_b32 v{vPw}, v29")
e(f"v_bfe_u32 v29, v{vL}, 4, 1"); e(f"v_bfe_u32 v30, v{vL}, 2, 1"); e(f"v_lshl_add_u32 v29, v29, 5, s{sT1}"); e("v_lshl_add_u32 v29, v30, 4, v29"); e("v_accvgpr_write_b32 a252, v29")
e(f"s_mul_i32 s{sT1}, s{sWV}, 768"); e(f"s_add_u32 s{sT1}, s{sT1}, {ACC}"); e(f"v_lshl_add_u32 v29, v25, 2, s{sT1}")
e(f"v_bfe_u32 v30, v{vL}, 4, 1"); e("v_lshl_add_u32 v29, v30, 7, v29"); e(f"v_lshrrev_b32 v30, 5, v{vL}"); e(f"v_lshl_add_u32 v{vAcc}, v30, 6, v29")

def Krel(t):
    upto(f"K{t}"); ahead(f"K{t}"); A.wait(f"K{t}")
    if "rel" in SKIP: return
    for i in range(6): e(f"ds_write_b128 v{vWr+i%3}, {ar(24*t+4*i)} offset:{(i//3)*8*RS}")
    for ks in range(6): e(f"ds_read_b128 {ar(24*t+4*ks)}, v{vKrd} offset:{64*ks}")
def Vrel(t):
    upto(f"V{t}"); ahead(f"V{t}"); A.wait(f"V{t}")
    if "rel" in SKIP: return
    f, b = vblock(t + 1)
    for i in range(6): e(f"ds_write_b128 v{vWr+i%3}, {rg(f, b+4*i, 4)} offset:{(i//3)*8*RS}")
    f, b = vblock(t & ~1)
    for dt in range(12): e(f"ds_read_b64_tr_b16 {rg(f, b+4*dt+2*(t&1), 2)}, v{vVrd} offset:{32*dt}")
def wq_frags():
    for t in range(3):
        b = F + 10 * t
        for kk in range(2):
            for h in range(2): e(f"ds_read_b64_tr_b16 {vr(b+4*kk+2*h,2)}, v{vTq1} offset:{(32*kk+4*h)*384+32*t}")
        e(f"ds_read_b64_tr_b16 {vr(b+8,2)}, v{vTq2} offset:{64*384+32*t}")
def qstage(a, soff, tag=None, waits=False, fl=0):
    def mm(t, kk):
        n = 4 if kk < 2 else 2
        bb = vr(F + 10 * t + 4 * kk, n) if t < 3 else vr(a + 4 * kk, n)
        c = "0" if kk == 0 else vr(T + 4 * t)
        e(f"v_mfma_f32_16x16x{32 if kk<2 else 16}_bf16 {vr(T+4*t)}, {vr(a+4*kk,n)}, {bb}, {c}")
    def s4(t): return [f"v_add_f32 v{T+4*t}, v{T+4*t}, v{T+4*t+1}", f"v_add_f32 v{T+4*t+2}, v{T+4*t+2}, v{T+4*t+3}", f"v_add_f32 v{T+4*t}, v{T+4*t}, v{T+4*t+2}"]
    if waits: e("s_waitcnt lgkmcnt(2)")
    mm(0, 0); mm(2, 0)
    if waits: e("s_waitcnt lgkmcnt(0)")
    mm(0, 1); mm(2, 1); mm(0, 2); mm(2, 2)
    mm(1, 0); mm(3, 0); mm(1, 1); mm(3, 1); mm(1, 2); mm(3, 2)
    fill(fl)
    for x in s4(0) + s4(2): e(x)
    e(f"v_permlane32_swap_b32 v{T}, v{T+8}")
    x1, x3 = s4(1), s4(3)
    for x in x1[:2] + x3[:2] + [f"v_add_f32 v{T}, v{T}, v{T+8}"] + x1[2:] + x3[2:]: e(x)
    e(f"v_permlane32_swap_b32 v{T+4}, v{T+12}"); e(f"v_add_f32 v{T+4}, v{T+4}, v{T+12}")
    e(f"v_permlane16_swap_b32 v{T}, v{T+4}"); e(f"v_add_f32 v{T}, v{T}, v{T+4}")
    if tag and "qst" in SKIP: pass
    elif tag:
        for q in (1, 2, 3): e(f"v_mov_b32_dpp v{T+q}, v{T} quad_perm:[{q},{q},{q},{q}] row_mask:0xf bank_mask:0xf")
        setexec(0x1111111111111111); A.vmem(f"buffer_store_dwordx4 {vr(T)}, v{vQst}, {sr(sW)}, {soff} offen {'' if 'qplain' in SKIP else 'sc1'}", tag); setexec(FULL)
    else: lstore(f"buffer_store_dword v{T}, v{vQst}, {sr(sW)}, {soff} offen")
def xreduce(r0, r1, r2, r3):
    e(f"v_permlane32_swap_b32 v{r0}, v{r2}"); e(f"v_permlane32_swap_b32 v{r1}, v{r3}")
    e(f"v_add_f32 v{r0}, v{r0}, v{r2}"); e(f"v_add_f32 v{r1}, v{r1}, v{r3}")
    e(f"v_permlane16_swap_b32 v{r0}, v{r1}"); e(f"v_add_f32 v{r0}, v{r0}, v{r1}")
def qloads(b, s0, s1): return [f"buffer_load_dwordx4 {vr(b)}, v{vQld}, {sr(sW)}, {s0} offen sc1", f"buffer_load_dwordx4 {vr(b+4)}, v{vQld}, {sr(sW)}, {s1} offen sc1"]
def qsum(b):
    for q in range(4): e(f"v_add_f32 v{b+q}, v{b+q}, v{b+4+q}")
    xreduce(b, b + 1, b + 2, b + 3)
def rowred(op, v, tmp, steps):
    for sft in steps: e(f"v_{op}_f32_dpp v{v}, v{v}, v{v} row_ror:{sft} row_mask:0xf bank_mask:0xf")
def xrow(op, v, tmp, both=True):
    if both:
        e(f"v_mov_b32 v{tmp}, v{v}"); e(f"v_permlane32_swap_b32 v{v}, v{tmp}"); e(f"v_{op}_f32 v{v}, v{v}, v{tmp}")
    e(f"v_mov_b32 v{tmp}, v{v}"); e(f"v_permlane16_swap_b32 v{v}, v{tmp}"); e(f"v_{op}_f32 v{v}, v{v}, v{tmp}")
QF = 28; DQ = 40; PA = 72; X = 24; vM = 26
def att_zero():
    for t in range(8): e(f"v_mov_b32 v{DQ+4*t}, 0"); e(f"v_mov_b32 v{DQ+4*t+1}, 0")
    for q in range(16): e(f"v_mov_b32 v{PA+q}, 0")
def q_finish(b, mid=None):
    e(f"v_readlane_b32 s{sT0}, v{b}, 15")
    e(f"s_mov_b32 vcc_lo, 0x70007000"); e(f"s_mov_b32 vcc_hi, 0x70007000")
    e(f"v_fma_f32 v{b+1}, -s{sT0}, v{vCS}, v{b}")
    e(f"v_cvt_pk_bf16_f32 v{b+1}, v{b+1}, v{b+1}")
    e(f"ds_write_b16 v{vQBw}, v{b+1}")
    e(f"v_cndmask_b32 v{b+2}, 0, v{b}, vcc")
    e(f"v_add_f32_dpp v{b+2}, v{b+2}, v{b+2} quad_perm:[1,0,3,2] row_mask:0xf bank_mask:0xf")
    e(f"v_add_f32_dpp v{b+2}, v{b+2}, v{b+2} quad_perm:[2,3,0,1] row_mask:0xf bank_mask:0xf")
    e(f"v_mov_b32 v{b+3}, v{b+2}"); e(f"v_permlane32_swap_b32 v{b+2}, v{b+3}"); e(f"v_add_f32 v{b+2}, v{b+2}, v{b+3}")
    if mid: mid()
    else: e("s_waitcnt lgkmcnt(0)"); e("s_barrier")
    for ks in range(3): e(f"ds_read_b128 {vr(QF+4*ks)}, v{vQBr} offset:{128*ks}")
    e(f"v_mov_b32 v{b+3}, v{b+2}"); e(f"v_mov_b32 v{b+1}, s{sT0}"); e(f"v_subrev_f32 v{b+1}, 0x44200000, v{b+1}")
    e(f"v_permlane16_swap_b32 v{b+2}, v{b+3}"); e(f"v_add_f32 v{b+2}, v{b+2}, v{b+3}")
    e(f"v_mul_f32 v{b}, 0x3acccccd, v{b+1}")
    e(f"v_readlane_b32 s{sT0}, v{b+2}, 15")
    e(f"v_mul_f32 v{b}, v{b}, v{b}"); e(f"s_mov_b32 s{sT1}, 0x3acccccd")
    e(f"v_sub_f32 v{b+2}, s{sT0}, v{b+1}")
    e(f"v_fma_f32 v{b+2}, v{b+2}, s{sT1}, -v{b}"); e(f"v_max_f32 v{b+2}, 0, v{b+2}"); e(f"v_add_f32 v{b+2}, 0x3727c5ac, v{b+2}")
    e(f"v_rsq_f32 v{b+2}, v{b+2}"); e(f"v_mul_f32 v{vSC}, 0x3dd53b94, v{b+2}")
def qk_softmax(fl=0):
    def fold(t): e(f"v_add_f32_dpp v{X+t//4}, v{DQ+4*t}, v{DQ+4*t+1} quad_perm:[0,1,2,3] row_mask:{1<<(t%4):#x} bank_mask:0xf")
    def mm(t, ks): e(f"v_smfmac_f32_16x16x64_bf16 {vr(DQ+4*t)}, {vr(QF+4*ks)}, {ar(24*t+8*ks, 8)}, v{vIdx}")
    for ks in range(3):
        e(f"s_waitcnt lgkmcnt({2-ks})")
        for t in range(8): mm(t, ks)
        if ks != 1: fill(fl)
    S = lambda t: X + t // 4 if t % 4 == 0 else DQ + 4 * t
    for t in range(8):
        e(f"v_add_f32 v{S(t)}, v{DQ+4*t}, v{DQ+4*t+1}")
        if t == 2: e(f"v_max3_f32 v{vM}, v{S(0)}, v{S(1)}, v{S(2)}")
        if t in (4, 6): e(f"v_max3_f32 v{vM}, v{vM}, v{S(t-1)}, v{S(t)}")
    e(f"v_max_f32 v{vM}, v{vM}, v{S(7)}")
    mv = [f"v_mov_b32_dpp v{X+t//4}, v{S(t)} quad_perm:[0,1,2,3] row_mask:{1<<(t%4):#x} bank_mask:0xf" for t in (1, 5, 2, 6, 3, 7)] + ["v_accvgpr_read_b32 v27, a252", "s_nop 0"]
    for sft in (8, 4, 2, 1):
        e(mv.pop(0)); e(mv.pop(0)); e(f"v_max_f32_dpp v{vM}, v{vM}, v{vM} row_ror:{sft} row_mask:0xf bank_mask:0xf")
    fill(fl)
    e(f"v_mul_f32 v{vM}, v{vM}, v{vSC}")
    for q in range(2): e(f"v_fma_f32 v{X+q}, v{X+q}, v{vSC}, -v{vM}")
    for q in range(2): e(f"v_exp_f32 v{X+q}, v{X+q}")
    e(f"v_cvt_pk_bf16_f32 v28, v{X}, v{X+1}")
    e(f"ds_write_b16 v{vPw}, v28"); e(f"ds_write_b16_d16_hi v{vPw}, v28 offset:128")
    setexec(0xFF00FF0000FF00FF)
    for u in range(4): e(f"ds_read_b128 {vr(PA+4*u)}, v27 offset:{64*u}")
    setexec(FULL)
    e(f"v_add_f32 v27, v{X}, v{X+1}")
    z = [f"v_mov_b32 v{F+4*dp}, 0" for dp in range(6)] + [f"s_lshl_b32 s{sT1}, s{sWV}, 3", f"s_add_u32 s{sT1}, s{sT1}, {ML4}"]
    for sft in (8, 4, 2, 1):
        e(z.pop(0)); e(z.pop(0)); e(f"v_add_f32_dpp v27, v27, v27 row_ror:{sft} row_mask:0xf bank_mask:0xf")
    xrow("add", 27, 28)
    e(f"v_mov_b32 v28, s{sT1}"); e(f"ds_write_b64 v28, v[26:27]")
def pv_step(u, order=range(6)):
    f, b = vblock(2 * u)
    for dp in order: e(f"v_smfmac_f32_16x16x64_bf16 {vr(F+4*dp)}, {vr(PA+4*u)}, {rg(f, b+8*dp, 8)}, v{vIdx} abid:1")
def pv_post():
    for q in range(3): e(f"v_permlane16_swap_b32 v{F+8*q}, v{F+8*q+4}"); e(f"v_add_f32 v{F+8*q}, v{F+8*q}, v{F+8*q+4}"); e(f"ds_write_b32 v{vAcc}, v{F+8*q} offset:{OACC+256*q}")

WT = [int(x) for x in OPT.get("wt", "0,3,3,0,6").split(",")]
assert sum(WT) == 12
sDo, sDm = 66, 67
TT = OPT.get("tt", "x").replace("x", "")
ROT = int(OPT.get("rot", 0)); nwd = [0]
def wdma(n, tag=None):
    if "wo" in SKIP: return
    for _ in range(n):
        if ROT and nwd[0] == 6:
            e(f"s_bitcmp1_b32 s{sJ}, 0"); e(f"s_cselect_b32 s{sT1}, 12288, 0"); e(f"s_sub_u32 s{sDm}, s{sDm}, s{sT1}"); e(f"s_mul_i32 s{sT1}, s{sT1}, 20"); e(f"s_sub_u32 s{sDo}, s{sDo}, s{sT1}")
        nwd[0] += 1
        e(f"s_mov_b32 m0, s{sDm}"); e(f"s_add_u32 s{sDm}, s{sDm}, 1024")
        A.vmem(f"buffer_load_dwordx4 v39, {sr(sRA)}, s{sDo} offen {NTR} lds", tag, counted=tag is not None)
        e(f"s_add_u32 s{sDo}, s{sDo}, {16*1280}")
def wdma_addr():
    e(f"v_lshrrev_b32 v38, 2, v{vL}"); e("v_mul_u32_u24 v38, 1280, v38"); e(f"v_and_b32 v39, 3, v{vL}"); e("v_lshl_add_u32 v39, v39, 4, v38")
def role_dma():
    if "dma" in SKIP: return
    e(f"s_cmp_ge_u32 s{sJ}, 20"); e("s_cbranch_scc1 DMAF")
    e(f"s_lshl_b32 s{sDo}, s{sWV}, 3"); e(f"s_add_u32 s{sDo}, s{sDo}, s{sG}"); e(f"s_mul_i32 s{sDo}, s{sDo}, {192*1280}"); e(f"s_lshl_b32 s{sT1}, s{sJ}, 6"); e(f"s_add_u32 s{sDo}, s{sDo}, s{sT1}")
    e(f"s_mul_i32 s{sDm}, s{sWV}, 12288"); e(f"s_add_u32 s{sDm}, s{sDm}, {WO}")
    if ROT: e(f"s_bitcmp1_b32 s{sJ}, 0"); e(f"s_cselect_b32 s{sT1}, 6144, 0"); e(f"s_add_u32 s{sDm}, s{sDm}, s{sT1}"); e(f"s_mul_i32 s{sT1}, s{sT1}, 20"); e(f"s_add_u32 s{sDo}, s{sDo}, s{sT1}")
    if TT:
        e(f"v_mul_u32_u24 v38, {191*1280}, v{vL}"); e(f"s_mul_i32 s{sT1}, s{sG}, {192*1280}"); setexec(3)
        if "o" in TT: e(f"buffer_load_dword a243, v38, {sr(sRA)}, s{sDo} offen")
        if "2" in TT: e(f"buffer_load_dword a243, v38, {sr(sRC)}, s{sT1} offen")
        setexec(FULL)
    if WT[0]: wdma_addr(); wdma(WT[0])
    lab("DMAX")
    def t():
        lab("DMAF")
        e(f"s_sub_u32 s{sT1}, s{sJ}, 20"); e(f"s_and_b32 s{sDo}, s{sT1}, 3"); e(f"s_lshl_b32 s{sDo}, s{sDo}, 1"); e(f"s_and_b32 s{sT2}, s{sWV}, 1"); e(f"s_add_u32 s{sDo}, s{sDo}, s{sT2}")
        e(f"s_mul_i32 s{sDo}, s{sDo}, {80*3072}"); e(f"s_lshr_b32 s{sT1}, s{sT1}, 2"); e(f"s_lshl_b32 s{sT1}, s{sT1}, 7"); e(f"s_add_u32 s{sDo}, s{sDo}, s{sT1}")
        e(f"s_mul_i32 s{sT1}, s{sG}, 384"); e(f"s_add_u32 s{sDo}, s{sDo}, s{sT1}")
        e(f"s_mul_i32 s{sDm}, s{sWV}, 10240"); e(f"s_add_u32 s{sDm}, s{sDm}, {W1}")
        if TT:
            e(f"v_mul_u32_u24 v38, {79*3072}, v{vL}"); e(f"s_lshl_b32 s{sT1}, s{sWV}, 3"); e(f"s_add_u32 s{sT1}, s{sT1}, s{sG}"); e(f"s_mul_i32 s{sT1}, s{sT1}, 24"); e(f"s_add_u32 s{sT1}, s{sT1}, s{sJ}")
            e(f"s_sub_u32 s{sT1}, s{sT1}, 8"); e(f"s_mul_i32 s{sT1}, s{sT1}, 10240"); setexec(3)
            if "f" in TT: e(f"buffer_load_dword a243, v38, {sr(sX)}, s{sDo} offen nt")
            setexec(1)
            if "o" in TT: e(f"buffer_load_dword a243, v38, {sr(sWQ)}, s{sT1} offen")
            setexec(FULL)
        if FT[0]: fdma_addr(); fdma(0, FT[0])
        e("s_branch DMAX")
    tail.append(t)
FT = [int(x) for x in OPT.get("ft", "0,0,0,3,7").split(",")]
assert sum(FT) == 10
def fdma_addr():
    e(f"v_lshrrev_b32 v38, 3, v{vL}"); e("v_mul_u32_u24 v38, 3072, v38"); e(f"v_and_b32 v39, 7, v{vL}"); e("v_lshl_add_u32 v38, v39, 4, v38")
    e(f"v_bfe_u32 v39, v{vL}, 4, 1"); e("v_lshlrev_b32 v39, 5, v39"); e("v_xor_b32 v38, v38, v39"); e("v_xor_b32 v39, 64, v38")
def fdma(n0, n, tag=None):
    for k in range(n0, n0 + n):
        e(f"s_mov_b32 m0, s{sDm}"); e(f"s_add_u32 s{sDm}, s{sDm}, 1024")
        A.vmem(f"buffer_load_dwordx4 v{38+(k&1)}, {sr(sX)}, s{sDo} offen {NTW} lds", tag, counted=tag is not None)
        e(f"s_add_u32 s{sDo}, s{sDo}, {8*3072}")
CSL = int(OPT.get("csl", 1))
def cs_store():
    e(f"s_add_u32 s{sT0}, s{sLG}, {2*LS}"); lstore(f"buffer_store_dword v{vCS}, v{vQst}, {sr(sW)}, s{sT0} offen")
def addr_block():
    e(f"v_mov_b32 v109, v{vC1}")
    e(f"v_and_b32 v25, 15, v{vL}"); e(f"v_lshrrev_b32 v26, 4, v{vL}"); e("v_add_u32 v27, 4, v26")
    rowbase(vC1, 26, oFG, oFL, None, 28); rowbase(vC2, 27, oFG, oFL, None, 28)
    e(f"s_min_u32 s{sT3}, s{sJ}, 19"); e(f"s_lshl_b32 s{sT3}, s{sT3}, 6"); e(f"v_lshl_add_u32 v25, v25, 2, s{sT3}")
    e(f"v_add_u32 v{vC1}, v{vC1}, v25"); e(f"v_add_u32 v{vC2}, v{vC2}, v25")
    fill()
    e(f"v_and_b32 v25, 15, v{vL}"); e(f"v_bfe_u32 v27, v{vL}, 2, 2"); e(f"v_and_b32 v28, 3, v{vL}")
    e(f"s_mul_i32 s{sT3}, s{sWV}, 12288"); e(f"s_add_u32 s{sT3}, s{sT3}, {WO}")
    e("v_lshl_add_u32 v29, v26, 3, v27"); e("v_lshlrev_b32 v29, 6, v29"); e("v_lshl_add_u32 v29, v28, 3, v29"); e(f"v_add_u32 v29, s{sT3}, v29"); e("v_accvgpr_write_b32 a246, v29")
    e(f"s_mul_i32 s{sT3}, s{sWV}, 3072"); e(f"s_add_u32 s{sT3}, s{sT3}, {oO}")
    e(f"v_lshl_add_u32 v29, v25, 4, s{sT3}"); e("v_lshl_add_u32 v29, v26, 7, v29"); e("v_accvgpr_write_b32 a247, v29")
    e(f"s_lshl_b32 s{sT3}, s{sWV}, 6"); e(f"s_add_u32 s{sT3}, s{sT3}, {oML}"); e("v_and_b32 v29, 1, v26"); e(f"v_lshl_add_u32 v29, v29, 5, s{sT3}"); e("v_accvgpr_write_b32 a248, v29")
    e(f"s_lshl_b32 s{sT3}, s{sWV}, 8"); e(f"s_add_u32 s{sT3}, s{sT3}, {ACC+YACC}"); e(f"v_lshl_add_u32 v29, v{vL}, 2, s{sT3}"); e("v_accvgpr_write_b32 a249, v29")
    e(f"s_lshl_b32 s{sYl}, s{sJ}, 6"); e(f"s_mul_i32 s{sYg}, s{sG}, 1280"); e(f"s_add_u32 s{sYg}, s{sYg}, s{sYl}"); e(f"s_add_u32 s{sYg}, s{sYg}, {oYG}")
    e(f"s_add_u32 s{sYl}, s{sYl}, s{sLG}"); e(f"s_add_u32 s{sYl}, s{sYl}, {oYL}")
A.wait("x")
for q in range(5): e(f"v_lshlrev_b32 v{88+2*q}, 16, v{80+q}"); e(f"v_and_b32 v{89+2*q}, 0xffff0000, v{80+q}")
e("v_add_f32 v80, v88, v89")
for q in range(2, 10): e(f"v_add_f32 v80, v80, v{88+q}")
rowred("add", 80, None, (8, 4, 2, 1)); xrow("add", 80, 81)
e("v_mul_f32 v80, 0x3acccccd, v80")
for q in range(10): e(f"v_sub_f32 v{88+q}, v{88+q}, v80")
e("v_mul_f32 v82, v88, v88")
for q in range(1, 10): e(f"v_fmac_f32 v82, v{88+q}, v{88+q}")
fill()
rowred("add", 82, None, (8, 4, 2, 1)); xrow("add", 82, 81)
e("v_mul_f32 v82, 0x3acccccd, v82"); e("v_add_f32 v82, 0x3727c5ac, v82"); e("v_rsq_f32 v82, v82")
e("s_mov_b32 vcc_lo, 0xaaaaaaaa"); e("s_mov_b32 vcc_hi, 0xaaaaaaaa"); e("v_mov_b32 v85, 0x3f803f80")
for q in range(10):
    e(f"v_lshlrev_b32 v83, 16, v{70+q}"); e(f"v_and_b32 v84, 0xffff0000, v{70+q}"); e("v_sub_f32 v83, v83, v80"); e("v_sub_f32 v84, v84, v80")
    e("v_mul_f32 v83, v83, v82"); e("v_mul_f32 v84, v84, v82"); e("v_cvt_pk_bf16_f32 v83, v83, v84"); e(f"v_cndmask_b32 v{70+q}, v83, v85, vcc")
    if q == 5: fill()
ahead("wq", int(OPT.get("lax", 6))); A.wait("wq"); e("s_barrier"); wq_frags()
tagl = "global_load_dword v98, v100, s[64:65] sc1"
e("v_mov_b32 v100, 0"); e(f"s_cmp_lg_u32 s{sWV}, 0"); e("s_cbranch_scc1 NOTL"); setexec(1); e(tagl); setexec(FULL); lab("NOTL")
fill(2)
stamp(1)
e(f"s_mul_i32 s{sT2}, s{sWV}, 96"); e(f"s_add_u32 s{sT2}, s{sT2}, {ACC}"); e(f"v_min_u32 v36, 48, v{vL}"); e(f"v_lshl_add_u32 v36, v36, 1, s{sT2}")
e(f"v_mov_b32 v37, {ACC+512}"); e(f"v_cmp_le_u32 vcc, 48, v{vL}"); e("v_cndmask_b32 v36, v36, v37, vcc"); e(f"v_add_u32 v37, {ACC}, v{vLin}")
e("s_waitcnt lgkmcnt(0)")
for kk in range(3):
    for t in range(3):
        n = 4 if kk < 2 else 2
        e(f"v_mfma_f32_16x16x{32 if kk<2 else 16}_bf16 {vr(T+4*t)}, {vr(70+4*kk,n)}, {vr(F+10*t+4*kk,n)}, " + ("0" if kk == 0 else vr(T + 4 * t)))
fill()
e(f"v_mov_b32 v{vCS}, v{T+1}")
for t in (1, 2):
    e(f"v_mov_b32_dpp v{T}, v{T+4*t} quad_perm:[0,1,2,3] row_mask:{1<<t:#x} bank_mask:0xf"); e(f"v_mov_b32_dpp v{vCS}, v{T+4*t+1} quad_perm:[0,1,2,3] row_mask:{1<<t:#x} bank_mask:0xf")
e(f"v_cvt_pk_bf16_f32 v{T}, v{T}, v{T}"); e(f"ds_write_b16 v36, v{T}")
fill(2)
e("s_waitcnt lgkmcnt(0)"); e("s_barrier")
e(f"ds_read_b128 v[28:31], v37"); e(f"s_lshl_b32 s{sT2}, s{sJ}, 9"); e(f"s_add_u32 s{sT2}, s{sT2}, s{sLG}")
e(f"s_cmp_eq_u32 s{sWV}, 0"); e(f"s_cselect_b32 exec_lo, 0xffffff, 1"); e("s_mov_b32 exec_hi, 0"); e(f"s_cselect_b32 s{sT1}, 0, {OOB-0x10000000}"); e(f"v_add_u32 v37, s{sT1}, v{vLin}")
e("s_waitcnt lgkmcnt(0)")
if "qst" not in SKIP: A.vmem(f"buffer_store_dwordx4 v[28:31], v37, {sr(sW)}, s{sT2} offen sc1", "qst")
setexec(FULL)
for q in range(4): e(f"v_mov_b32 v{32+q}, -1")
if "clr" not in SKIP: A.vmem(f"buffer_store_dwordx4 v[32:35], v{vC2}, {sr(sW)}, 0 offen sc1", "qst")
Krel(0)
ahead("qst", int(OPT.get("laq", 9)))
e(f"s_getreg_b32 s{sXcc}, hwreg(HW_REG_XCC_ID, 0, 4)")
e(f"s_cmp_lg_u32 s{sWV}, 0"); e("s_cbranch_scc1 NOHDR")
save = list(A.vm); A.wait("qst"); A.vm = save
e("v_readfirstlane_b32 s96, v98"); e("s_cmp_eq_u32 s96, 0"); e("s_cbranch_scc1 TAGLOOP"); lab("TAGOK")
def t_():
    lab("TAGLOOP"); e(f"s_mov_b32 s{sCnt}, 0"); lab("TAGL2"); e("s_sleep 8"); e(tagl); e("s_waitcnt vmcnt(0)"); e("v_readfirstlane_b32 s96, v98"); e("s_cmp_lg_u32 s96, 0"); e("s_cbranch_scc1 TAGOK")
    e(f"s_add_u32 s{sCnt}, s{sCnt}, 1"); e(f"s_cmp_lt_u32 s{sCnt}, {LIMIT}"); e("s_cbranch_scc1 TAGL2"); e("s_branch TAGOK")
tail.append(t_)
e(f"v_mov_b32 v99, s{sXcc}"); setexec(1); e(f"buffer_store_dwordx2 v[98:99], v{vLin}, {sr(sW)}, s{sT2} offen offset:384 sc1"); setexec(FULL)
lab("NOHDR")
stamp(1, "s100")
Krel(1); Krel(2)
RT = int(OPT.get("rt", 8))
DT = int(OPT.get("dt", 7))
rdy = [f"buffer_load_dwordx2 v[98:99], v100, {sr(sW)}, 0 offen offset:384 sc1"]
e(f"v_lshlrev_b32 v100, 9, v{vL}"); e(f"v_add_u32 v100, s{sLG}, v100"); e(f"v_bfe_u32 v96, v{vL}, 2, 3"); e(f"v_mul_u32_u24 v96, {GB}, v96"); e(f"v_and_b32 v97, 3, v{vL}"); e("v_lshl_add_u32 v96, v97, 9, v96")
e(f"v_cmp_le_u32 vcc, 32, v{vL}"); e("v_cndmask_b32 v100, v100, v96, vcc"); e(f"s_cmp_eq_u32 s{sWV}, 0"); e(f"s_cselect_b32 s{sT0}, 0, {OOB-0x10000000}"); e(f"v_add_u32 v100, s{sT0}, v100")
def ld(t): Kld(t) if t < 8 else Vld(t - 8)
def rel(t): Krel(t) if t < 8 else Vrel(t - 8)
for t in range(5, RT + 2):
    ld(t)
    if t == DT: stamp(12); role_dma()
    if t == RT: A.vmem(rdy[0], "rdy"); stamp(2, "s100")
    if t == 7: addr_block()
    rel(t - 2)
ahead("rdy"); A.wait("rdy"); e(f"s_mov_b32 s{sCnt}, -1"); e(f"v_mov_b32 v97, {FLG}")
e(f"s_cmp_lg_u32 s{sWV}, 0"); e("s_cbranch_scc1 RDYX")
e("v_cmp_ne_u32 vcc, s96, v98"); e("s_cbranch_vccnz RDYLOOP"); lab("RDYOK")
e(f"v_cmp_ne_u32 vcc, s{sXcc}, v99"); e("s_nop 1"); e(f"v_mov_b32 v96, vcc_lo"); e("ds_write_b32 v97, v96")
lab("RDYX")
stamp(13, f"s{sCnt}")
def t_():
    lab("RDYLOOP")
    if SPM == "rdy": e("v_accvgpr_read_b32 v96, a253"); e("v_add_u32 v96, 2000, v96"); e("v_accvgpr_write_b32 a253, v96")
    e(f"s_mov_b32 s{sCnt}, 0"); lab("RDYL2"); e("s_sleep 8"); e(rdy[0]); e("s_waitcnt vmcnt(0)"); e("v_cmp_ne_u32 vcc, s96, v98"); e("s_cbranch_vccz RDYOK")
    e(f"s_add_u32 s{sCnt}, s{sCnt}, 1"); e(f"s_cmp_lt_u32 s{sCnt}, {LIMIT}"); e("s_cbranch_scc1 RDYL2"); e("s_branch RDYOK")
tail.append(t_)
fill(2)
e("s_waitcnt lgkmcnt(0)"); e("s_barrier"); e("ds_read_b32 v96, v97"); e("s_waitcnt lgkmcnt(0)"); e(f"v_readfirstlane_b32 s{sT0}, v96")
e(f"s_cmp_eq_u32 s{sT0}, 0"); e(f"s_cselect_b32 s{sWp+2}, s{sW+2}, 0")
assert not any(t[0] == "K" for _, t in pend) and DT <= RT + 1
if FORCESLOW: e(f"s_mov_b32 s{sWp+2}, 0")
for d_ in (sWp,): e(f"s_mov_b32 s{d_}, s{sW}"); e(f"s_mov_b32 s{d_+1}, s{sW+1}"); e(f"s_mov_b32 s{d_+3}, 0x20000")
stamp(2)
if "pre" not in SKIP:
    A.vmem(f"buffer_load_dwordx4 a[240:243], v109, {sr(sW)}, 0 offen sc1", "pre")
e(f"s_mul_i32 s{sT0}, s{sJ}, 432"); e(f"s_add_u32 s{sT0}, s{sT0}, s{sLG}"); e(f"s_add_u32 s{sT0}, s{sT0}, {oBB}"); e(f"s_cmp_eq_u32 s{sWV}, 3"); e(f"s_cselect_b32 s{sT0}, s{sT0}, {OOB-0x10000000}")
e(f"v_add_u32 v106, s{sT0}, v{vLin}"); e(f"v_mov_b32 v107, {OOB}"); e(f"v_cmp_le_u32 vcc, 27, v{vL}"); e("v_cndmask_b32 v106, v106, v107, vcc")
if "pre" not in SKIP: A.vmem(f"buffer_load_dwordx4 a[240:243], v106, {sr(sW)}, 0 offen sc1", "pre")
e(f"s_lshl_b32 s{sT0}, s{sJ}, 2"); e(f"s_add_u32 s{sT0}, s{sT0}, s{sWV}"); e(f"s_lshl_b32 s{sT1}, s{sT0}, 8"); e(f"s_add_u32 s{sT1}, s{sT1}, {LS}"); e(f"s_lshl_b32 s{sT0}, s{sT0}, 9"); e(f"s_sub_u32 s{sT0}, s{sT0}, 256")
e(f"v_lshlrev_b32 v24, 7, v{vL}"); e(f"v_add_u32 v25, s{sT0}, v24"); e(f"v_min_u32 v25, {oGX+6400-128}, v25"); e(f"v_add_u32 v24, s{sT1}, v24"); e(f"v_cmp_gt_u32 vcc, 2, v{vL}"); e("v_cndmask_b32 v24, v25, v24, vcc")
e(f"s_add_u32 s{sT0}, s{sLG}, {LS}"); setexec(63); A.vmem(f"buffer_load_dword a243, v24, {sr(sW)}, s{sT0} offen sc1", "pre"); setexec(FULL)
e(f"s_lshl_b32 s{sT0}, s{sHH}, 12"); e(f"s_mul_i32 s{sT1}, s{sWV}, 96"); e(f"s_add_u32 s{sT0}, s{sT0}, s{sT1}"); e(f"s_add_u32 s{sT0}, s{sT0}, s{sLG}")
e(f"v_lshrrev_b32 v24, 4, v{vL}"); e("v_lshlrev_b32 v24, 9, v24"); e(f"v_and_b32 v25, 15, v{vL}"); e("v_min_u32 v25, 11, v25"); e("v_lshl_add_u32 v24, v25, 3, v24")
for q in range(2):
    if "qg" not in SKIP: A.vmem(f"buffer_load_dwordx2 v[{64+2*q}:{65+2*q}], v24, {sr(sW)}, s{sT0} offen offset:{2048*q} sc1", "qg")
def pack_store16(d, instr_fn):
    for q in (1, 2, 3): e(f"v_mov_b32_dpp v{d+q}, v{d} quad_perm:[{q},{q},{q},{q}] row_mask:0xf bank_mask:0xf")
    setexec(0x1111); instr_fn(); setexec(FULL)
e(f"s_cmp_lg_u32 s{sWV}, 1"); e("s_cbranch_scc1 NOBASE0"); e(f"s_cmp_ge_u32 s{sJ}, 20"); e("s_cbranch_scc1 NOBASE0")
e(f"v_mov_b32 v28, v{vXR}"); e(f"s_lshl_b32 s{sT0}, s{sJ}, 6"); e(f"s_add_u32 s{sT0}, s{sT0}, s{sLG}"); e(f"s_add_u32 s{sT0}, s{sT0}, {oBA}"); e(f"v_lshlrev_b32 v27, 2, v{vL}")
pack_store16(28, lambda: lstore(f"buffer_store_dwordx4 v[28:31], v27, {sr(sW)}, s{sT0} offen"))
lab("NOBASE0")
stamp(3)
for t in range(RT, RT + 3): rel(t)
ahead("qg"); A.wait("qg")
for q in range(4): e(f"v_lshlrev_b32 v{T+2*q}, 16, v{64+q}"); e(f"v_and_b32 v{T+2*q+1}, 0xffff0000, v{64+q}")
qsum(T)
e(f"v_cvt_pk_bf16_f32 v{T}, v{T}, v{T}"); e(f"ds_write_b16 v{vQBw}, v{T}")
fill(); att_zero()
stamp(4)
fill(2); e("s_waitcnt lgkmcnt(0)"); e("s_barrier")
for ks in range(3): e(f"ds_read_b128 {vr(QF+4*ks)}, v{vQBr} offset:{128*ks}")
e(f"v_mov_b32 v{vSC}, 0x3dd53b94")
qk_softmax(fl=1)
stamp(5)
for t in range(RT + 3, 12): rel(t)
fill(2)
e("s_waitcnt lgkmcnt(0)"); pv_step(0); fill(); pv_step(1)
Vrel(4)
assert sum(1 for _, t in pend if t == "V7") == 6
for q in range(4): e(f"v_mov_b32 v{24+q}, -1")
lstore(f"buffer_store_dwordx4 v[24:27], v106, {sr(sW)}, 0 offen"); A.vm.append("gxc")
hold.clear(); Vld(7); Vrel(5)
e(f"v_and_b32 v{vXR+1}, 0xffff0000, v{vXR}"); e(f"v_lshlrev_b32 v{vXR}, 16, v{vXR}")
PT_ = [int(x) for x in OPT.get("pt", "7,3").split(",")]
PTF = int(OPT.get("ptf", 1))
def late_pf(w, k0, n):
    if "wo" in SKIP: return
    for k in range(k0, k0 + n):
        if k % 4 == 0 and k: e(f"s_add_u32 s{sPo}, s{sPo}, 4096")
        A.vmem(f"buffer_load_dwordx4 a[240:243], v{vLin}, {sr(sWQ)}, s{sPo} offen offset:{1024*(k%4)} {NTP}", "pfo")
for m_, r_ in ((0x0101010101010101, 82), (ROWS9, 84), ((1 << 60) - 1, 86), (0xFF00FF0000FF00FF, 88), (0x01010101, 92), (0x0F0F0F0F0F0F0F0F if REPL else 0x01010101 + (1 << 63), 44)):
    e(f"s_mov_b32 s{r_}, {m_ & 0xffffffff:#x}"); e(f"s_mov_b32 s{r_+1}, {m_ >> 32:#x}"); MASKS[m_] = r_
if not REPL: e("s_mov_b32 s45, 0")
e("s_mov_b64 s[46:47], s[92:93]"); e("s_mov_b64 s[48:49], s[44:45]")
FGE = int(OPT.get("fge", 1))
def rep_addr(d, t):
    e(f"v_and_b32 v{d}, 3, v{vL}"); e(f"v_lshrrev_b32 v{t}, 5, v{vL}"); e(f"v_lshl_add_u32 v{d}, v{t}, 2, v{d}"); e(f"v_mul_u32_u24 v{d}, 10240, v{d}")
    e(f"v_bfe_u32 v{t}, v{vL}, 3, 2"); e(f"v_lshl_add_u32 v{d}, v{t}, 4, v{d}")
def stream_tail(w):
    save = list(A.vm)
    pf = sum(PT_) and not (PTF and w)
    if pf and not PTF:
        e(f"s_lshl_b32 s{sPo}, s{sHH}, 3"); e(f"s_add_u32 s{sPo}, s{sPo}, s{sG}"); e(f"s_lshl_b32 s{sPo}, s{sPo}, 3"); e(f"s_add_u32 s{sPo}, s{sPo}, s{sS}")
        e(f"s_lshl_b32 s{sPo}, s{sPo}, 2"); e(f"s_add_u32 s{sPo}, s{sPo}, s{sWV}"); e(f"s_mul_i32 s{sPo}, s{sPo}, 7680")
    if pf and PTF:
        e(f"s_lshl_b32 s{sPo}, s{sWV}, 3"); e(f"s_add_u32 s{sPo}, s{sPo}, s{sG}"); e(f"s_mul_i32 s{sPo}, s{sPo}, 24"); e(f"s_add_u32 s{sPo}, s{sPo}, s{sJ}")
        e(f"s_sub_u32 s{sPo}, s{sPo}, 8"); e(f"s_mul_i32 s{sPo}, s{sPo}, 10240")
    if pf: late_pf(w, 0, PT_[0])
    if w and FGE:
        for q in range(4): e(f"v_mov_b32 v{24+q}, -1")
        rep_addr(28, 29); e(f"s_cmp_eq_u32 s{sWV}, 3"); e(f"s_cselect_b32 s{sT0}, 0, {OOB-0x10000000}"); e(f"v_add_u32 v28, s{sT0}, v28"); e(f"s_add_u32 s{sT0}, s{sYg}, {oFG-oYG}")
        e("s_mov_b64 exec, s[44:45]"); A.vmem(f"buffer_store_dwordx4 v[24:27], v28, {sr(sW)}, s{sT0} offen sc1", "fgc"); setexec(FULL)
    if w: wdma_addr(); wdma(WT[1], "wo")
    else: fdma_addr(); fdma(FT[0], FT[1], "f")
    e("s_waitcnt lgkmcnt(0)"); pv_step(2)
    Vrel(6)
    if pf: late_pf(w, PT_[0], PT_[1])
    if w: wdma(WT[2], "wo")
    if not w: fdma(sum(FT[:2]), FT[2], "f")
    x = len(A.vm) - 1 - max(i for i, t in enumerate(A.vm) if t == "V7")
    f_, b_ = vblock(8)
    for i in range(6):
        e(f"s_waitcnt vmcnt({5-i+x})"); e(f"ds_write_b128 v{vWr+i%3}, {rg(f_, b_+4*i, 4)} offset:{(i//3)*8*RS}")
    f_, b_ = vblock(6)
    for dt in range(12): e(f"ds_read_b64_tr_b16 {rg(f_, b_+4*dt+2, 2)}, v{vVrd} offset:{32*dt}")
    if w: wdma(WT[3], "wo")
    if not w: fdma(sum(FT[:3]), FT[3], "f")
    e("s_branch ATT_LAST")
    A.vm = save
e(f"s_cmp_ge_u32 s{sJ}, 20"); e("s_cbranch_scc1 TAILF")
stream_tail(True)
lab("TAILF")
stream_tail(False)
A.drained()
flush_near()

lab("LOOP")
if JIT: jitter(JIT, 40)
def cs_pull():
    e(f"s_add_u32 s{sT0}, s{sLG}, {2*LS}"); e(f"s_add_u32 s{sT1}, s{sT0}, 4096")
    for so in (sT0, sT1): e(f"buffer_load_dwordx4 a[240:243], v{vQld}, {sr(sW)}, s{so} offen sc1")
def loop_prep():
    wq_frags()
    e(f"v_and_b32 v25, 15, v{vL}"); e("v_cmp_eq_u32 vcc, 12, v25"); e("v_mov_b32 v36, 0x3f803f80"); e(f"v_cndmask_b32 v70, 0, v36, vcc")
    for q in range(1, 10): e(f"v_mov_b32 v{70+q}, v70")
    e(f"s_mul_i32 s{sT0}, s{sWV}, {SCRW}")
    e(f"v_mul_u32_u24 v96, 103, v{vL}"); e("v_lshrrev_b32 v96, 10, v96"); e(f"v_lshl_add_u32 v96, v96, 4, v{vLin}"); e(f"v_add_u32 v96, s{sT0}, v96")
    e(f"v_mul_u32_u24 v97, 176, v25"); e(f"v_add_u32 v97, s{sT0}, v97"); e(f"v_lshrrev_b32 v28, 4, v{vL}"); e("v_lshl_add_u32 v98, v28, 3, v97"); e("v_lshl_add_u32 v97, v28, 4, v97")
e(f"s_cmp_lt_u32 s{sJ}, 20"); e(f"s_cselect_b32 s{sXcc}, s{sWV}, 4")
e(f"s_add_u32 s96, s{sLG}, {LS}"); e("s_add_u32 s97, s96, 4096")
e(f"s_and_b32 s{sT0}, s{sXcc}, 3"); e("s_cbranch_scc1 LOOP2")
loop_prep()
lab("LOOP2")
e(f"s_add_u32 s{sT2}, s{sLG}, 4096")
e(f"s_mul_i32 s{sT0}, s{sS}, 160"); e(f"s_add_u32 s{sT0}, s{sT0}, s{sLG}"); e(f"s_sub_u32 s{sT0}, s{sT0}, {LS-oFL}")
gate(sT0, 10, 24)
setexec((1 << 60) - 1)
def bounce(groups, tmp, writes, reads, first=None, w1=0):
    k = nid(); allr = [r for g in groups for r in g[1]]
    for g in groups:
        for l in g[0]: e(l)
    if first: first()
    e(f"s_waitcnt vmcnt({w1})")
    lab(f"BW{k}")
    for x in writes: e(x)
    check(allr, tmp)
    setexec(ROWS9)
    for x in reads: e(x)
    setexec(FULL)
    e(f"s_cbranch_vccnz BR{k}")
    lab(f"BX{k}")
    def t():
        lab(f"BR{k}")
        e(f"s_cmp_ge_u32 s{sCnt}, {LIMIT}"); e(f"s_cbranch_scc1 BX{k}")
        lab(f"BL{k}")
        for gi, (ls, rs) in enumerate(groups):
            setexec((1 << 60) - 1); check(rs, tmp); e("s_mov_b64 exec, vcc"); e(f"s_cbranch_execz BS{k}_{gi}")
            for l in ls: e(l)
            lab(f"BS{k}_{gi}")
        setexec((1 << 60) - 1)
        e(f"s_add_u32 s{sCnt}, s{sCnt}, 1"); e(f"s_cmp_ge_u32 s{sCnt}, {LIMIT}")
        e("s_waitcnt vmcnt(0)")
        check(allr, tmp)
        e(f"s_cbranch_vccz BW{k}"); e(f"s_cbranch_scc0 BL{k}"); e(f"s_branch BW{k}")
    near.append(t)
assert GATE
bounce([([f"buffer_load_dwordx4 v[80:83], v{vAq}, {sr(sW)}, 0 offen sc1"], [80]), ([f"buffer_load_dwordx4 v[84:87], v{vAq16}, {sr(sW)}, 0 offen sc1"], [84])], 24,
       ["ds_write_b128 v96, v[80:83]", f"ds_write_b128 v96, v[84:87] offset:{6*176}"],
       ["ds_read_b128 v[70:73], v97", "ds_read_b128 v[74:77], v97 offset:64", "ds_read_b64 v[78:79], v98 offset:128"],
       first=lambda: [e(l) for l in qloads(88, "s96", "s97")], w1=2)
stamp(1)
e(f"s_cmp_lg_u32 s{sXcc}, 1"); e("s_cbranch_scc1 NOOWL")
e(f"buffer_load_dword a244, v{vC1}, {sr(sW)}, 0 offen sc1"); e(f"buffer_load_dword a245, v{vC2}, {sr(sW)}, 0 offen sc1")
lab("NOOWL")
qstage(70, f"s{sLG}", waits=True)
stamp(2)
att_zero()
e(f"s_waitcnt vmcnt({2 if STAMP == 1 else 1})"); qsum(88); e(f"v_mul_f32 v{vCS}, 0x3acccccd, v88")
for _ in range(int(OPT.get("qd", 0))): e("s_nop 7")
poll_nan(qloads(T, f"s{sLG}", f"s{sT2}"), lambda: qsum(T), T)
stamp(3)
q_finish(T)
stamp(4)
qk_softmax()
stamp(5)
for u in range(3):
    e(f"s_waitcnt lgkmcnt({4-u})"); pv_step(u)
e("s_waitcnt lgkmcnt(0)")
lab("ATT_LAST")
for dp in range(6):
    if dp % 2 == 0: e(f"s_waitcnt lgkmcnt({8-2*dp})")
    pv_step(3, [dp])
def pack8(v):
    e(f"v_mov_b32_dpp v{v+1}, v{v} row_shl:1 row_mask:0xf bank_mask:0xf"); e(f"v_cvt_pk_bf16_f32 v{v}, v{v}, v{v+1}")
    for q in (1, 2, 3): e(f"v_mov_b32_dpp v{v+q}, v{v} row_shl:{2*q} row_mask:0xf bank_mask:0xf")
def pack8q(v):
    e(f"v_mov_b32_dpp v{v+1}, v{v} row_shl:1 row_mask:0xf bank_mask:0xf"); e(f"v_cvt_pk_bf16_f32 v{v+4}, v{v}, v{v+1}")
    e(f"v_mov_b32_dpp v{v}, v{v+4} quad_perm:[0,0,0,0] row_mask:0xf bank_mask:0xf"); e(f"v_mov_b32_dpp v{v+1}, v{v+4} quad_perm:[2,2,2,2] row_mask:0xf bank_mask:0xf")
    e(f"v_mov_b32_dpp v{v+2}, v{v} row_shl:4 row_mask:0xf bank_mask:0xf"); e(f"v_mov_b32_dpp v{v+3}, v{v+1} row_shl:4 row_mask:0xf bank_mask:0xf")
e(f"s_lshl_b32 s{sT0}, s{sWV}, 8"); e(f"s_add_u32 s{sT0}, s{sT0}, {ACC+OACC}"); e(f"v_lshl_add_u32 v24, v{vL}, 2, s{sT0}")
pv_post()
e(f"v_and_b32 v25, 3, v{vL}"); e(f"v_lshlrev_b32 v25, 3, v25"); e(f"v_add_u32 v25, {ML4}, v25")
e("s_waitcnt lgkmcnt(0)"); e("s_barrier")
stamp(6)
e("ds_read_b64 v[32:33], v25"); e("ds_read2st64_b32 v[40:41], v24 offset0:0 offset1:3"); e("ds_read2st64_b32 v[42:43], v24 offset0:6 offset1:9")
e(f"s_mul_i32 s{sT0}, s{sHH}, 3072"); e(f"s_lshl_b32 s{sT1}, s{sS}, 4"); e(f"s_add_u32 s{sT0}, s{sT0}, s{sT1}"); e(f"s_lshl_b32 s{sT1}, s{sWV}, 10"); e(f"s_add_u32 s{sT0}, s{sT0}, s{sT1}")
e(f"s_add_u32 s{sT0}, s{sT0}, s{sLG}"); e(f"s_add_u32 s{sT0}, s{sT0}, {oO}")
e(f"s_lshl_b32 s{sT1}, s{sJ}, 3"); e(f"s_add_u32 s{sT1}, s{sT1}, s{sLG}"); e(f"s_add_u32 s{sT1}, s{sT1}, {oML}"); e(f"s_cmp_eq_u32 s{sWV}, 3")
e("s_waitcnt lgkmcnt(2)")
e("v_max_f32_dpp v34, v32, v32 quad_perm:[1,0,3,2] row_mask:0xf bank_mask:0xf"); e("v_max_f32_dpp v34, v34, v34 quad_perm:[2,3,0,1] row_mask:0xf bank_mask:0xf")
e("v_sub_f32 v32, v32, v34"); e("v_exp_f32 v32, v32")
e("s_cbranch_scc1 OML"); e("s_waitcnt lgkmcnt(0)")
e("v_mul_f32_dpp v28, v32, v40 quad_perm:[0,0,0,0] row_mask:0xf bank_mask:0xf"); e("v_mul_f32_dpp v29, v32, v41 quad_perm:[1,1,1,1] row_mask:0xf bank_mask:0xf")
e("v_mul_f32_dpp v30, v32, v42 quad_perm:[2,2,2,2] row_mask:0xf bank_mask:0xf"); e("v_fmac_f32_dpp v28, v32, v43 quad_perm:[3,3,3,3] row_mask:0xf bank_mask:0xf")
e("v_add_f32 v29, v29, v30"); e("v_add_f32 v28, v28, v29")
pack8(28)
setexec(0x0101010101010101)
lstore(f"buffer_store_dwordx4 v[28:31], v{vLin}, {sr(sW)}, s{sT0} offen")
setexec(FULL)
def t_():
    lab("OML")
    e("v_mul_f32 v35, v32, v33")
    e("v_add_f32_dpp v35, v35, v35 quad_perm:[1,0,3,2] row_mask:0xf bank_mask:0xf"); e("v_add_f32_dpp v35, v35, v35 quad_perm:[2,3,0,1] row_mask:0xf bank_mask:0xf")
    setexec(1); lstore(f"buffer_store_dwordx2 v[34:35], v{vLin}, {sr(sW)}, s{sT1} offen"); setexec(FULL)
    e("s_waitcnt lgkmcnt(0)"); e("s_branch ODONE")
near.append(t_)
lab("ODONE")
if STAMP == 3 and "land" in SKIP:
    e(f"s_cmp_ge_u32 s{sJ}, 20"); e("s_cbranch_scc1 LND"); wdma_addr(); wdma(WT[4]); lab("LND"); e("s_waitcnt vmcnt(0)")
stamp(7)
if STAMP == 3: e("s_endpgm")
e(f"s_cmp_ge_u32 s{sJ}, 20"); e("s_cbranch_scc1 ROLEF")
def owner_add():
    e("v_lshlrev_b32 v30, 16, v28"); e("v_and_b32 v28, 0xffff0000, v28"); e("v_lshlrev_b32 v31, 16, v29"); e("v_and_b32 v29, 0xffff0000, v29")
    e("v_add_f32 v30, v30, v31"); e("v_add_f32 v28, v28, v29")
    e("v_mov_b32 v31, v30"); e("v_mov_b32 v29, v28"); e("v_permlane32_swap_b32 v30, v31"); e("v_permlane32_swap_b32 v28, v29"); e("v_add_f32 v30, v30, v31"); e("v_add_f32 v28, v28, v29")
    e("v_mov_b32 v31, v30"); e("v_mov_b32 v29, v28"); e("v_permlane16_swap_b32 v30, v31"); e("v_permlane16_swap_b32 v28, v29"); e("v_add_f32 v30, v30, v31"); e("v_add_f32 v28, v28, v29")
    e(f"v_add_f32 v{vXR}, v{vXR}, v30"); e(f"v_add_f32 v{vXR+1}, v{vXR+1}, v28")
    e(f"v_cvt_pk_bf16_f32 v28, v{vXR}, v{vXR+1}")
def own_loads(a0, a1, soff): return [f"buffer_load_dword v28, v{a0}, {sr(sW)}, {soff} offen sc1", f"buffer_load_dword v29, v{a1}, {sr(sW)}, {soff} offen sc1"]
def base_store(ob):
    e(f"s_lshl_b32 s{sT0}, s{sJ}, 6"); e(f"s_add_u32 s{sT0}, s{sT0}, s{sLG}"); e(f"s_add_u32 s{sT0}, s{sT0}, {ob}"); e(f"v_lshlrev_b32 v32, 2, v{vL}")
    pack_store16(28, lambda: lstore(f"buffer_store_dwordx4 v[28:31], v32, {sr(sW)}, s{sT0} offen"))
e(f"s_cmp_eq_u32 s{sLay}, 0"); e("s_cbranch_scc1 WLATE")
def t_():
    lab("WLATE")
    if JIT: jitter(JIT, 40)
    if WT[4]: wdma_addr(); wdma(WT[4])
    if "cs" not in SKIP: cs_store()
    assert FGE
    for q in range(3): e(f"v_accvgpr_read_b32 v{2+q}, a{246+q}")
    for r_ in [SPARE + 4 * kk for kk in range(6)] + [25, 27, 37, 39]: e(f"v_mov_b32 v{r_}, 0")
    for x in fl0: e(x)
    e("s_waitcnt vmcnt(8)")
    for x in trs[:TRN]: e(x)
    e(f"s_lshl_b32 s{sT0}, s{sG}, 2"); e(f"s_add_u32 s{sT0}, s{sT0}, s{sWV}"); e(f"s_mul_i32 s{sT0}, s{sT0}, {48*1280}"); e(f"s_lshl_b32 s{sT1}, s{sJ}, 6"); e(f"s_add_u32 s{sT0}, s{sT0}, s{sT1}")
    e(f"v_min_u32 v35, 47, v{vL}"); e("v_mul_u32_u24 v35, 1280, v35"); e(f"v_add_u32 v35, s{sT0}, v35")
    wfirst(); e("s_branch WCHK")
near.append(t_)
for q in range(3): e(f"v_accvgpr_read_b32 v{2+q}, a{246+q}")
for kk in range(6): e(f"v_mov_b32 v{SPARE+4*kk}, 0")
TRN = int(OPT.get("trn", 10))
trs = [f"ds_read_b64_tr_b16 {vr(F+24*t+4*kk+2*h,2)}, v2 offset:{(32*kk+4*h)*64+32*t}" for kk in range(6) for t in range(2) for h in range(2)]
for x in trs[:TRN]: e(x)
def own0():
    e(f"s_cmp_lg_u32 s{sWV}, 1"); e("s_cbranch_scc1 NOOWN0")
    e("v_accvgpr_read_b32 v28, a244"); e("v_accvgpr_read_b32 v29, a245")
    late_check("none", own_loads(vC1, vC2, "0"), [28, 29], 30)
    owner_add()
    if OWP != 2: base_store(oBA)
    lab("NOOWN0")
OWP = int(OPT.get("owp", 0))
if not OWP: own0()
MLR = [24, 36]
for _ in range(int(OPT.get("od", 0))): e("s_nop 7")
for q in (25, 27, 37, 39): e(f"v_mov_b32 v{q}, 0")
def wfirst():
    for x in trs[TRN:]: e(x)
    e("v_accvgpr_read_b32 v5, a249"); rep_addr(18, 6); e("v_and_b32 v6, 0xffffff7f, v5")
ol = [f"buffer_load_dwordx4 {vr(SPARE+4*kk)}, v3, {sr(sW)}, s{sLG} offen offset:{512*kk} sc1" for kk in range(6)]
ml = [f"buffer_load_dwordx4 {vr(MLR[q])}, v4, {sr(sW)}, s{sLG} offen offset:{16*q} sc1" for q in range(2)]
fl0 = ["s_mov_b32 exec_lo, 0x00ff00ff", "s_mov_b32 exec_hi, 0x00ff00ff"] + ol + ["s_mov_b32 exec_lo, -1", "s_mov_b32 exec_hi, 0"] + ml + ["s_mov_b64 exec, -1"]
poll_sel([(ol, [SPARE + 4 * kk for kk in range(6)]), (ml, [25, 27, 37, 39])], 28, pid=7, first=lambda: (wfirst(), own0() if OWP else None), firstloads=fl0, wl="WCHK")
e("s_waitcnt lgkmcnt(0)")
stamp(8)
W2T = int(OPT.get("w2t", 0))
if W2T:
    e(f"s_cmp_lg_u32 s{sLay}, 0"); e("s_cbranch_scc1 NOW2T"); e(f"buffer_load_dword a243, v35, {sr(sRC)}, 0 offen"); lab("NOW2T")
M_, U_, L_ = SPARE, SPARE + 1, SPARE + 2
mm_ = [24, 26, 36, 38]
co = [[], [f"v_max3_f32 v{M_}, v24, v26, v36", f"v_max_f32 v{M_}, v{M_}, v38"], [f"v_mov_b32 v{U_}, v{M_}"], [f"v_permlane16_swap_b32 v{M_}, v{U_}", f"v_max_f32 v{M_}, v{M_}, v{U_}"],
      [f"v_sub_f32 v24, v24, v{M_}", f"v_sub_f32 v26, v26, v{M_}"], [f"v_sub_f32 v36, v36, v{M_}", f"v_sub_f32 v38, v38, v{M_}"],
      ["v_exp_f32 v24, v24"], ["v_exp_f32 v26, v26"], ["v_exp_f32 v36, v36"], ["v_exp_f32 v38, v38"],
      [f"v_mul_f32 v{L_}, v24, v25", f"v_fmac_f32 v{L_}, v26, v27"], [f"v_fmac_f32 v{L_}, v36, v37", f"v_fmac_f32 v{L_}, v38, v39"]]
for kk in range(6):
    for t in range(2):
        c = "0" if kk == 0 else vr(28 + 4 * t)
        e(f"v_mfma_f32_16x16x32_bf16 {vr(28+4*t)}, {vr(SPARE+4*kk)}, {vr(F+24*t+4*kk)}, {c}")
        for x in co.pop(0): e(x)
e(f"v_mov_b32 v{U_}, v{L_}"); e(f"s_cmp_lg_u32 s{sWV}, 0"); e(f"v_permlane16_swap_b32 v{L_}, v{U_}"); e(f"v_add_f32 v{L_}, v{L_}, v{U_}"); e(f"v_rcp_f32 v{L_}, v{L_}")
for t in range(2): e(f"v_mul_f32 v{28+4*t}, v24, v{28+4*t}")
for q in range(1, 4):
    for t in range(2): e(f"v_fmac_f32 v{28+4*t}, v{mm_[q]}, v{28+4*t+q}")
e("v_permlane16_swap_b32 v28, v32"); e("v_add_f32 v28, v28, v32"); e(f"v_mul_f32 v28, v28, v{L_}")
e(f"ds_write_b32 v5, v28")
e("s_waitcnt lgkmcnt(0)"); e("s_barrier")
e("s_cbranch_scc1 WNOT0")
assert (ACC + YACC) % 256 == 0
e("ds_read2st64_b32 v[28:29], v6 offset0:0 offset1:1"); e("ds_read2st64_b32 v[30:31], v6 offset0:2 offset1:3")
e("s_waitcnt lgkmcnt(1)"); e("v_add_f32 v28, v28, v29"); e("s_waitcnt lgkmcnt(0)"); e("v_add_f32 v30, v30, v31"); e("v_add_f32 v28, v28, v30")
pack8q(28)
e("s_mov_b64 exec, s[46:47]")
e(f"buffer_store_dwordx4 v[28:31], v18, {sr(sW)}, s{sYg} offen sc1")
setexec(0x01010101)
lstore(f"buffer_store_dwordx4 v[28:31], v18, {sr(sW)}, s{sYl} offen")
setexec(FULL)
stamp(9); stamp(9, "c")
e(f"v_add_u32 v{SPARE+23}, {W2-WO}, v2")
trs2 = [x.replace(", v2 offset", f", v{SPARE+23} offset") for x in trs]
e(f"s_cmp_lg_u32 s{sLay}, 0"); e("s_cbranch_scc1 W2OK")
wdma_addr(); e(f"s_mul_i32 s{sT0}, s{sG}, {192*1280}"); e(f"s_lshl_b32 s{sT1}, s{sJ}, 6"); e(f"s_add_u32 s{sT0}, s{sT0}, s{sT1}")
for n in range(12 if "w2" not in SKIP else 0):
    e(f"s_mov_b32 m0, {W2+1024*n}"); e(f"buffer_load_dwordx4 v39, {sr(sRC)}, s{sT0} offen lds"); e(f"s_add_u32 s{sT0}, s{sT0}, {16*1280}")
e("s_branch W2X")
lab("W2OK")
for x in trs2: e(x)
lab("W2X")
HD = SPARE + 12
for q in (0, 1, 4, 5): e(f"v_mov_b32 v{HD+q}, 0")
e(f"s_add_u32 s96, s{sYg}, {oFG-oYG}"); e(f"s_add_u32 s97, s{sYl}, {oFL-oYL}")
lab("STB")
stamp(4, "d")
e(f"s_mul_i32 s{sT0}, s{sWV}, 48"); e(f"v_min_u32 v6, 47, v{vL}"); e(f"v_add_u32 v6, s{sT0}, v6"); e("v_lshlrev_b32 v4, 4, v6"); e("v_add_u32 v5, 3072, v4"); e(f"v_add_u32 v{SPARE+20}, {6400}, v4")
e(f"v_cmp_le_u32 vcc, 48, v{vL}"); e("v_mov_b32 v24, 6144"); e("v_mov_b32 v25, 6160"); e("v_cndmask_b32 v4, v4, v24, vcc"); e("v_cndmask_b32 v5, v5, v25, vcc")
e("v_lshrrev_b32 v24, 4, v6"); e("v_lshlrev_b32 v24, 5, v24"); e("v_bfe_u32 v25, v6, 1, 1"); e("v_lshl_add_u32 v24, v25, 4, v24"); e("v_bfe_u32 v25, v6, 2, 2"); e("v_lshl_add_u32 v24, v25, 2, v24")
e("v_and_b32 v25, 1, v6"); e("v_lshl_add_u32 v24, v25, 1, v24"); e(f"v_add_u32 v24, {QB}, v24"); e(f"v_mov_b32 v25, {QB+384}"); e("v_cndmask_b32 v6, v24, v25, vcc")
e(f"v_mov_b32 v{SPARE+21}, 0x3727c5ac"); e(f"v_mov_b32 v{SPARE+22}, 0x3acccccd"); e(f"s_add_u32 s{sT2}, s{sLG}, {oGX}")
e("v_accvgpr_read_b32 v2, a250"); e("v_accvgpr_read_b32 v3, a251"); e(f"s_add_u32 s{sTL}, s{sLay}, s{sWV}")
def sum4(b): e(f"v_add_f32 v{b}, v{b}, v{b+1}"); e(f"v_add_f32 v{b+2}, v{b+2}, v{b+3}"); e(f"v_add_f32 v{b}, v{b}, v{b+2}")
gl = [f"buffer_load_dwordx4 {vr(T)}, v4, {sr(sW)}, s{sT2} offen sc1", f"buffer_load_dwordx4 {vr(T+4)}, v5, {sr(sW)}, s{sT2} offen sc1"]
def gsum():
    e(f"v_add_f32 v{T}, v{T}, v{T+1}"); e(f"v_add_f32 v{T+4}, v{T+4}, v{T+5}"); e(f"v_add_f32 v{T+2}, v{T+2}, v{T+3}"); e(f"v_add_f32 v{T+6}, v{T+6}, v{T+7}")
    e(f"v_add_f32 v{T+4}, v{T+4}, v{T+6}"); e(f"v_add_f32 v{T}, v{T}, v{T+2}")
e(f"s_mov_b32 s{sCnt}, 1"); e(f"s_cmp_eq_u32 s{sLay}, 0"); e("s_cbranch_scc1 GPF")
lab("GPO")
stamp(5, "d")
e(f"s_cmp_eq_u32 s{sWV}, 1"); e("s_cbranch_scc1 WOWN")
lab("GP1")
for l in gl: e(l)
e("s_waitcnt vmcnt(0)"); gsum(); e(f"v_cmp_u_f32 vcc, v{T}, v{T+4}"); e("s_cbranch_vccnz GA1")
lab("GPX")
def t_():
    lab("GA1"); e(f"s_add_u32 s{sCnt}, s{sCnt}, 1"); e(f"s_cmp_lt_u32 s{sCnt}, {LIMIT}"); e("s_cbranch_scc1 GP1"); e("s_branch GPX")
    cl = [f"buffer_load_dwordx4 {vr(T+8)}, v{SPARE+20}, {sr(sW)}, s{sT2} offen sc1", f"buffer_load_dwordx4 {vr(T+12)}, v{SPARE+20}, {sr(sW)}, s{sT2} offen offset:3072 sc1"]
    lab("GPF")
    e(f"s_cmp_lg_u32 s{sWV}, 0"); e("s_cbranch_scc1 GP0")
    for l in cl: e(l)
    e("s_waitcnt vmcnt(2)")
    for x in trs2: e(x)
    e("s_branch GPW")
    lab("GP0")
    for l in cl: e(l)
    lab("GPW")
    e(f"s_add_u32 s{sCnt}, s{sCnt}, 1"); e(f"s_cmp_ge_u32 s{sCnt}, {LIMIT}"); e("s_waitcnt vmcnt(0)")
    e(f"v_add_f32 v2, v{T+8}, v{T+9}"); e(f"v_add_f32 v3, v{T+12}, v{T+13}"); e(f"v_add_f32 v{T+10}, v{T+10}, v{T+11}"); e(f"v_add_f32 v{T+14}, v{T+14}, v{T+15}")
    e(f"v_add_f32 v2, v2, v{T+10}"); e(f"v_add_f32 v3, v3, v{T+14}"); e("v_cmp_u_f32 vcc, v2, v3"); e("s_cbranch_scc1 GPO")
    e("s_cbranch_vccnz GP0"); e("s_branch GPO")
near.append(t_)
stamp(10)
EPS, INV = SPARE + 21, SPARE + 22
e(f"v_readlane_b32 s{sT0}, v{T+4}, 48"); e(f"v_readlane_b32 s{sT1}, v{T}, 48"); e(f"s_cmp_lg_u32 s{sTL}, 1"); e("s_cbranch_scc0 OWL"); lab("OWB")
def t_():
    lab("OWL"); e(f"buffer_load_dword v34, v37, {sr(sW)}, 0 offen sc1"); e(f"buffer_load_dword v35, v38, {sr(sW)}, 0 offen sc1"); e("s_branch OWB")
near.append(t_)
e(f"v_mul_f32 v{T+1}, s{sT0}, v{INV}"); e(f"v_fma_f32 v{T+2}, s{sT1}, v{INV}, v{EPS}")
e(f"v_fma_f32 v{T+2}, -v{T+1}, v{T+1}, v{T+2}"); e(f"v_add_f32 v{T+1}, 1.0, v{T+1}"); e(f"v_max_f32 v{T+2}, v{T+2}, v{EPS}")
e(f"v_fma_f32 v{T}, -v{T+1}, v2, v{T}"); e(f"v_rsq_f32 v{T+3}, v{T+2}"); e(f"v_mul_f32 v{T+5}, 0xbfb8aa3b, v{T}"); e(f"v_mul_f32 v{T+5}, v{T+5}, v{T+3}"); e(f"v_exp_f32 v{T+5}, v{T+5}")
e(f"v_fma_f32 v{T+4}, -v{T+1}, v3, v{T+4}"); e(f"v_fma_f32 v{T+5}, v{T+5}, v{T+2}, v{T+2}"); e(f"v_rcp_f32 v{T+5}, v{T+5}"); e(f"v_mul_f32 v{T+4}, v{T+4}, v{T}")
e(f"v_mul_f32 v{T+4}, v{T+4}, v{T+5}"); e(f"v_cvt_pk_bf16_f32 v{T+4}, v{T+4}, v{T+4}"); e(f"ds_write_b16 v6, v{T+4}")
e("v_accvgpr_write_b32 a250, v2"); e("v_accvgpr_write_b32 a251, v3"); e(f"s_cmp_lg_u32 s{sWV}, 0")
e("s_waitcnt lgkmcnt(0)"); e("s_barrier")
e("s_cbranch_scc1 STBX")
for ks in range(3): e(f"ds_read_b128 {vr(SPARE+4*ks)}, v{vQBr} offset:{128*ks}")
for ks in range(3):
    e(f"s_waitcnt lgkmcnt({2-ks})")
    for t in range(2): e(f"v_smfmac_f32_16x16x64_bf16 {vr(HD+4*t)}, {vr(SPARE+4*ks)}, {vr(F+24*t+8*ks, 8)}, v{vIdx}")
e(f"v_add_f32 v28, v{HD}, v{HD+1}"); e(f"v_add_f32_dpp v28, v{HD+4}, v{HD+5} quad_perm:[0,1,2,3] row_mask:0xa bank_mask:0xf")
pack8q(28)
e("s_mov_b64 exec, s[48:49]")
e(f"buffer_store_dwordx4 v[28:31], v18, {sr(sW)}, s96 offen sc1")
setexec(0x01010101)
lstore(f"buffer_store_dwordx4 v[28:31], v18, {sr(sW)}, s97 offen")
setexec(FULL)
stamp(11)
e("s_branch NEXT")
flush_near()
lab("WNOT0")
if JIT: jitter(JIT, 40)
e(f"s_cmp_lg_u32 s{sLay}, 0"); e("s_cbranch_scc1 STB"); e(f"s_cmp_eq_u32 s{sWV}, 1"); e("s_cbranch_scc1 WPREP"); e(f"s_cmp_eq_u32 s{sWV}, 3"); e("s_cbranch_scc1 WLC")
for q in range(4): e(f"v_mov_b32 v{F+12+q}, -1")
e(f"s_add_u32 s{sT0}, s{sYg}, {LS}"); e(f"s_add_u32 s{sT3}, s{sT0}, {oFG-oYG}")
if int(OPT.get("gcd", 8)): e(f"s_sleep {OPT.get('gcd', 8)}")
e("s_mov_b64 exec, s[44:45]"); e(f"buffer_store_dwordx4 {vr(F+12)}, v18, {sr(sW)}, s{sT0} offen sc1")
setexec(0x01010101); e(f"buffer_store_dwordx4 {vr(F+12)}, v18, {sr(sW)}, s{sT3} offen sc1")
setexec(FULL)
e("s_branch WPREP")
lab("WLC")
LCW = int(OPT.get("lcw", 1))
if LCW:
    lo_ = oO if LCW == 1 else 0; ng = (oGX + 6400 - lo_) // 16; per = -(-ng // 20); ni = -(-per // 64)
    e(f"s_mul_i32 s{sT0}, s{sJ}, {per*16}"); e(f"s_add_u32 s{sT1}, s{sLG}, {LS+lo_}")
    for q in range(ni): e(f"v_add_u32 v{100+q}, s{sT0}, v{vLin}"); e(f"v_min_u32 v{100+q}, {ng*16-16}, v{100+q}"); e(f"s_add_u32 s{sT0}, s{sT0}, 1024")
    for q in range(4): e(f"v_mov_b32 v{104+q}, -1")
    loop_prep()
    if JIT: jitter(JIT, 60)
    for q in range(ni): lstore(f"buffer_store_dwordx4 v[104:107], v{100+q}, {sr(sW)}, s{sT1} offen")
    e("s_branch STB")
lab("WPREP")
e("s_nop 1"); loop_prep()
e("s_branch STB")
lab("WOWN")
e(f"v_and_b32 v25, 15, v{vL}"); e(f"v_lshrrev_b32 v26, 4, v{vL}")
rowbase(37, 26, oYG, oYL, None, 38); e("v_add_u32 v39, 4, v26"); rowbase(38, 39, oYG, oYL, None, 28)
e(f"s_lshl_b32 s{sT0}, s{sJ}, 6"); e(f"s_add_u32 s{sT0}, s{sT0}, s{sLay}"); e(f"v_lshl_add_u32 v25, v25, 2, s{sT0}")
e("v_add_u32 v37, v25, v37"); e("v_add_u32 v38, v25, v38")
e(f"s_cmp_eq_u32 s{sLay}, 0"); e("s_cbranch_scc1 GP1")
e(f"s_cmp_lg_u32 s{sG}, 0"); e("s_cbranch_scc1 GP1")
e(f"s_sleep {max(ODLY-3, 1)}")
poll(own_loads(37, 38, "0"), [28, 29], 30, slp=int(OPT.get("osp", 2)))
owner_add()
e("s_branch GP1")
lab("STBX")
e(f"s_cmp_lg_u32 s{sWV}, 1"); e("s_cbranch_scc1 NEXT"); e(f"s_cmp_lg_u32 s{sLay}, 0"); e("s_cbranch_scc1 FINAL")
e("s_waitcnt vmcnt(0)"); e("v_mov_b32 v28, v34"); e("v_mov_b32 v29, v35")
late_check("none", own_loads(37, 38, "0"), [28, 29], 30)
owner_add()
base_store(oBB)
stamp(6, "d")
e("s_branch NEXT")
lab("FINAL")
e(f"s_cmp_lg_u32 s{sG}, 0"); e("s_cbranch_scc1 DONE")
e(f"s_lshl_b32 s{sT0}, s{sJ}, 6"); e(f"v_lshlrev_b32 v37, 2, v{vL}")
e(f"s_add_u32 s{sT2}, s{sT0}, s{sLG}"); e(f"s_add_u32 s{sT2}, s{sT2}, {oFL}")
if int(OPT.get("otouch", 0)): setexec(0xffff); e(f"buffer_load_dword v29, v37, {sr(sO)}, s{sT0} offen")
gate(sT2, 4, 28); setexec(FULL)
poll(own_loads(vC1, vC2, f"s{sLay}"), [28, 29], 30)
owner_add()
setexec(0xffff)
e(f"buffer_store_dword v28, v37, {sr(sO)}, s{sT0} offen {OPT.get('ost', '').replace('+', ' ')}")
setexec(FULL)
stamp(12); stamp(12, "c")
e("s_branch DONE") if SPIN else e("s_endpgm")
flush_near()
lab("ROLEF")
e(f"v_and_b32 v25, 15, v{vL}"); e(f"v_lshrrev_b32 v26, 4, v{vL}"); e(f"v_bfe_u32 v27, v{vL}, 2, 2"); e(f"v_and_b32 v36, 3, v{vL}")
FA = SPARE
e(f"s_cmp_lg_u32 s{sLay}, 0"); e("s_cbranch_scc1 FW")
if FT[4]: fdma_addr(); fdma(sum(FT[:4]), FT[4])
e(f"s_sub_u32 s96, s{sJ}, 20"); e("s_lshl_b32 s96, s96, 2"); e(f"s_add_u32 s96, s96, s{sWV}")
if int(OPT.get("w2pf", 0)):
    e(f"s_mul_i32 s97, s{sG}, 48"); e("s_add_u32 s97, s97, s96"); e("s_mul_i32 s97, s97, 5120")
    for n in range(5):
        if n == 4: e("s_add_u32 s97, s97, 4096")
        e(f"buffer_load_dwordx4 a[240:243], v{vLin}, {sr(sRC)}, s97 offen offset:{1024*(n%4)}")
assert 48 * 74 * 16 == oGX + 6400 and LCW < 2
if LCW:
    e(f"s_mul_i32 s96, s96, {43*16}"); e(f"v_add_u32 v21, s96, v{vLin}"); e(f"v_min_u32 v21, {32768-16}, v21"); e(f"s_add_u32 s97, s{sLG}, {LS+oQ}")
else:
    e(f"s_mul_i32 s96, s96, {74*16}"); e(f"s_add_u32 s97, s{sLG}, {LS}"); e("s_add_u32 s97, s97, s96")
    e(f"buffer_load_dwordx4 a[240:243], v{vLin}, {sr(sW)}, s97 offen sc1"); setexec(0x3ff); e(f"buffer_load_dwordx4 a[240:243], v{vLin}, {sr(sW)}, s97 offen offset:1024 sc1"); setexec(FULL)
cs_store()
lab("FW")
e(f"s_lshl_b32 s{sT0}, s{sWV}, 5"); e(f"v_lshl_add_u32 v80, v36, 3, s{sT0}"); e("v_lshrrev_b32 v37, 1, v27"); e("v_and_b32 v38, 1, v26"); e("v_lshl_add_u32 v37, v38, 1, v37"); e("v_lshlrev_b32 v37, 5, v37")
e("v_xor_b32 v80, v80, v37"); e("v_lshl_add_u32 v37, v26, 3, v27"); e("v_lshl_add_u32 v80, v37, 7, v80"); e(f"v_add_u32 v80, {W1}, v80")
e(f"s_sub_u32 s{sT2}, s{sJ}, 20"); e(f"s_and_b32 s{sT3}, s{sT2}, 12"); e(f"s_add_u32 s{sT3}, s{sT3}, s{sWV}"); e(f"s_lshl_b32 s{sT1}, s{sT3}, 8")
e(f"v_lshl_add_u32 v83, v25, 4, s{sT1}"); e("v_mul_u32_u24 v37, 3072, v26"); e("v_add_u32 v84, v83, v37"); e("v_add_u32 v83, 6400, v83")
e(f"v_lshlrev_b32 v37, 4, v26"); e(f"v_add_u32 v37, {6144-32}, v37"); e(f"v_or_b32 v38, s{sT3}, v25"); e(f"v_mov_b32 v39, {OOB-0x10000000}"); e("v_cmp_eq_u32 vcc, 0, v38"); e("v_cndmask_b32 v37, v39, v37, vcc")
e("v_cmp_le_u32 vcc, 2, v26"); e("v_cndmask_b32 v84, v84, v37, vcc")
e(f"s_and_b32 s{sT2}, s{sT2}, 3"); e(f"s_lshl_b32 s{sT1}, s{sT2}, 2"); e(f"s_add_u32 s{sT1}, s{sT1}, s{sLG}"); e(f"s_add_u32 s{sT1}, s{sT1}, {oGX}"); e(f"s_mul_i32 s{sT2}, s{sT2}, 320")
e("v_cmp_eq_u32 vcc, 12, v25")
e("v_mov_b32 v38, 0x3f803f80"); e(f"v_cndmask_b32 v{FA}, 0, v38, vcc")
for q in range(1, 20): e(f"v_mov_b32 v{FA+q}, v{FA}")
e(f"s_mul_i32 s{sT0}, s{sWV}, {SCRW}")
e(f"v_mul_u32_u24 v6, 336, v25"); e("v_lshl_add_u32 v6, v26, 4, v6"); e(f"v_add_u32 v6, s{sT0}, v6")
e(f"v_mul_u32_u24 v37, 52, v{vL}"); e("v_lshrrev_b32 v37, 10, v37")
e(f"v_lshl_add_u32 v87, v37, 4, v{vLin}"); e(f"v_add_u32 v87, s{sT0}, v87")
e(f"v_mul_u32_u24 v27, 320, v37"); e(f"v_sub_u32 v27, v{vLin}, v27")
assert all((c * 52) >> 10 == c // 20 for c in range(64))
FG = [86, 18, 20]
for i in range(3):
    rowbase(FG[i], 37, oYG, oYL, oBA, 38); e(f"v_add_u32 v{FG[i]}, v{FG[i]}, v27")
    if i < 2: e("v_add_u32 v37, 3, v37")
e(f"s_add_u32 s{sT0}, s{sT2}, s{sLay}"); e(f"s_add_u32 s{sT2}, s{sT2}, s{sLG}"); e(f"s_add_u32 s{sT2}, s{sT2}, {oYL}")
e(f"s_cmp_lg_u32 s{sLay}, 0"); e("s_cbranch_scc1 FW1")
for q in range(4): e(f"v_mov_b32 v{T+q}, -1")
e("s_waitcnt vmcnt(0)")
if JIT: jitter(JIT, 40)
if LCW: lstore(f"buffer_store_dwordx4 {vr(T)}, v21, {sr(sW)}, s97 offen")
else: lstore(f"buffer_store_dwordx4 {vr(T)}, v{vLin}, {sr(sW)}, s97 offen"); setexec(0x3ff); lstore(f"buffer_store_dwordx4 {vr(T)}, v{vLin}, {sr(sW)}, s97 offen offset:1024"); setexec(FULL)
e("s_barrier"); stamp(13)
lab("FW1")
for t in range(2):
    for kk in range(5):
        for h in range(2): e(f"ds_read_b64_tr_b16 {vr(F+20*t+4*kk+2*h,2)}, v80 offset:{(32*kk+4*h)*128+20480*t}")
CD = [108, 2]
e(f"s_cmp_lg_u32 s{sLay}, 0"); e("s_cbranch_scc1 FW3")
e("s_waitcnt lgkmcnt(0)")
for kk in range(5):
    for t in range(2): e(f"v_mfma_f32_16x16x32_bf16 {vr(CD[t])}, {vr(FA+4*kk)}, {vr(F+20*t+4*kk)}, " + ("0" if kk == 0 else vr(CD[t])))
lab("FW3")
def cs_pub():
    e(f"s_cmp_eq_u32 s{sLay}, 0"); e("s_cbranch_scc1 CSP"); e("s_waitcnt vmcnt(0)"); lab("CSB")
    def t():
        lab("CSP"); setexec(0xFFFF << 48)
        lstore(f"buffer_store_dword v{CD[0]}, v83, {sr(sW)}, s{sT1} offen"); lstore(f"buffer_store_dword v{CD[1]}, v83, {sr(sW)}, s{sT1} offen offset:3072")
        setexec((1 << 60) - 1); e("s_branch CSB")
    near.append(t)
gate(sT2, 20, 36)
setexec((1 << 60) - 1)
bounce([([f"buffer_load_dwordx4 {vr(T+4*i)}, v{FG[i]}, {sr(sW)}, s{sT0} offen sc1"], [T + 4 * i]) for i in range(3)], 36,
       [f"ds_write_b128 v87, {vr(T+4*i)} offset:{3*336*i}" for i in range(3)], [f"ds_read_b128 {vr(FA+4*kk)}, v6 offset:{64*kk}" for kk in range(5)], first=cs_pub, w1=2)
stamp(8)
G_, R2, R3 = T + 12, T + 13, T + 14
for kk in range(5):
    e(f"s_waitcnt lgkmcnt({4-kk})")
    e(f"v_mfma_f32_16x16x32_bf16 {vr(T+8)}, {vr(FA+4*kk)}, {vr(FA+4*kk)}, " + ("0" if kk == 0 else vr(T + 8)))
dp = lambda dst, sft, rm: f"v_add_f32_dpp v{dst}, v{G_}, v{G_} row_ror:{sft} row_mask:{rm:#x} bank_mask:0xf"
sh = [[f"v_mov_b32 v{G_}, 0", f"v_mov_b32 v{R2}, 0"], [f"v_mov_b32 v{R3}, 0", "s_nop 0"], [],
      [f"v_add_f32 v{T+8}, v{T+8}, v{T+9}", f"v_add_f32 v{T+10}, v{T+10}, v{T+11}"], [],
      [f"v_add_f32_dpp v{G_}, v{T+8}, v{T+10} quad_perm:[0,1,2,3] row_mask:0xf bank_mask:0x7"], ["s_nop 0", dp(G_, 8, 15)], ["s_nop 0", dp(G_, 4, 15)],
      ["s_nop 0", dp(G_, 2, 15)], []]
for t in range(2):
    for kk in range(5):
        e(f"v_mfma_f32_16x16x32_bf16 {vr(T+4*t)}, {vr(FA+4*kk)}, {vr(F+20*t+4*kk)}, " + ("0" if kk == 0 else vr(T + 4 * t)))
        for x in sh.pop(0): e(x)
e(f"v_add_f32 v{T+1}, v{T}, v{T+1}"); e(dp(R2, 1, 7)); e(dp(R3, 1, 8)); e(f"v_add_f32 v{T+2}, v{T+2}, v{T+3}"); e(f"v_add_f32 v{T+1}, v{T+1}, v{T+2}")
e(f"v_permlane32_swap_b32 v{T+1}, v{R2}")
e(f"v_add_f32 v{T+5}, v{T+4}, v{T+5}"); e(f"v_add_f32 v{T+6}, v{T+6}, v{T+7}"); e(f"v_add_f32 v{T+5}, v{T+5}, v{T+6}"); e(f"v_add_f32 v{T+1}, v{T+1}, v{R2}")
e(f"v_permlane32_swap_b32 v{T+5}, v{R3}"); e(f"v_add_f32 v{T+5}, v{T+5}, v{R3}")
e(f"v_permlane16_swap_b32 v{T+1}, v{T+5}"); e(f"v_add_f32 v{T+1}, v{T+1}, v{T+5}")
lstore(f"buffer_store_dword v{T+1}, v84, {sr(sW)}, s{sT1} offen")
stamp(9)
lab("NEXT")
e(f"s_cmp_lg_u32 s{sLay}, 0"); e("s_cbranch_scc1 DONE")
e(f"s_mov_b32 s{sLay}, {LS}"); e(f"s_add_u32 s{sLG}, s{sLG}, {LS}"); e(f"s_add_u32 s{sYg}, s{sYg}, {LS}"); e(f"s_add_u32 s{sYl}, s{sYl}, {LS}")
e("s_mov_b64 s[46:47], s[44:45]"); e("s_mov_b64 s[48:49], s[92:93]")
e("s_branch LOOP")
flush_near()
lab("DONE")
if SPIN:
    e("v_accvgpr_read_b32 v38, a253"); e("s_nop 1"); e("v_readfirstlane_b32 s96, v38")
    if SPM == "min":
        e("v_not_b32 v38, v38"); e("v_mov_b32 v39, 192"); e("s_mov_b64 exec, 1"); e("global_atomic_umax v39, v38, s[64:65] sc1"); e("s_waitcnt vmcnt(0)")
        lab("SPW"); e("s_sleep 20"); e("s_memrealtime s[98:99]"); e("s_waitcnt lgkmcnt(0)"); e("s_sub_u32 s98, s98, s96"); e(f"s_cmp_lt_u32 s98, {SPIN*100-1500}"); e("s_cbranch_scc1 SPW")
        e("global_load_dword v38, v39, s[64:65] sc1"); e("s_waitcnt vmcnt(0)"); e("v_not_b32 v38, v38"); e("s_nop 1"); e("v_readfirstlane_b32 s96, v38")
    lab("SPINL"); e("s_memrealtime s[98:99]"); e("s_waitcnt lgkmcnt(0)"); e("s_sub_u32 s98, s98, s96"); e(f"s_cmp_lt_u32 s98, {SPIN*100}"); e("s_cbranch_scc1 SPINL")
e("s_endpgm")
i = 0
while i < len(tail): tail[i](); flush_near(); i += 1
lab("CODE_END")
e("s_endpgm")

body = A.pad()
hdr = [f"; @launch grid=(256,1,1) block=(256,1,1) lds={LDSSZ}", '.amdgcn_target "amdgcn-amd-amdhsa--gfx950"', ".text",
       f".globl {NAME}_kernel", ".p2align 8", f".type {NAME}_kernel,@function", f"{NAME}_kernel:"]
ftr = ['.section .rodata,"a"', ".p2align 6", f".amdhsa_kernel {NAME}_kernel", "  .amdhsa_next_free_vgpr 512", "  .amdhsa_next_free_sgpr 102",
       "  .amdhsa_accum_offset 256", "  .amdhsa_group_segment_fixed_size 0", "  .amdhsa_kernarg_size 96", "  .amdhsa_user_sgpr_count 2",
       "  .amdhsa_user_sgpr_kernarg_segment_ptr 1", "  .amdhsa_system_sgpr_workgroup_id_x 1", ".end_amdhsa_kernel"]
src = "\n".join(hdr + body + ftr) + "\n"
import re
for m in re.finditer(r"buffer_\S+ .*offset:(\d+)", src): assert int(m.group(1)) < 4096, m.group(0)
for m in re.finditer(r"ds_\S+ .*offset:(\d+)", src): assert int(m.group(1)) < 65536, m.group(0)
open(OUT, "w").write(src)
```

```python
import os, sys
sys.path.insert(0, os.path.dirname(os.path.abspath(__file__)))
from asmlib import Asm
NAME = "interleave_layers__sliding_block_cached__glu_gated_swiglu__decode"
OPT = dict(a.split("=") for a in sys.argv[2:])
OUT = sys.argv[1] if len(sys.argv) > 1 else f"/code/{NAME}.s"
STAMP = int(OPT.get("stamp", 0))
NT = OPT.get("nt", "nt").replace("x", "")
NTW = OPT.get("ntw", "nt").replace("x", "")
SKIP = OPT.get("skip", "").split(",")
RY0 = int(OPT.get("ry0", 0))
FORCESLOW = int(OPT.get("slow", 0))
SPIN = int(OPT.get("spin", 0))
A = Asm(); e = A.e; lab = A.lab
tail = []

RS = 416; SCRW = 16 * RS
SCR = 0; WQ = 4 * SCRW; ROLE = WQ + 30720
WO = ROLE; W1 = ROLE; W3 = ROLE + 20480; W2 = ROLE + 49152
MISC = ROLE + 61440; QB = MISC; ACC = MISC + 512
OACC = 0; YACC = 3072; FACC = 4096
PT = ACC + 5120; ML4 = PT + 1024
FLG = ML4 + 64
LDSSZ = FLG + 64
FDMA = OPT.get("fdma", "late")
OMASK = int(OPT.get("omask", 1))
WDMA = OPT.get("wdma", "mid")
PF = OPT.get("pf", "ow")
NTP = OPT.get("ntp", "x").replace("x", "")
NTR = OPT.get("ntr", "x").replace("x", "")
GB = 81920; oQ = 0; oO = 32768; oML = 45056; oYL = 45312; oFL = 46592; oBA = 47872; oBB = 49152; oGX = 50432
CSO = 7168
GOFF = 8 * GB; oYG = GOFF; oFG = GOFF + 81920; LS = 0xC8000
OOB = 0x7FFFFFF0
sK, sV, sW, sWQ, sRA, sRB, sRC, sX, sO = 8, 12, 16, 20, 24, 28, 32, 36, 40
sG, sJ, sHH, sS, sWV, sKV, sLay, sFast, sCnt = 68, 69, 70, 71, 72, 73, 74, 75, 76
sT0, sT1, sT2 = 77, 78, 79
sLG = 3
sClr = 4
sXcc = 5
sTL = 6
sT3 = 7
sYg, sYl = 80, 81
sMf = 44
def sr(b): return f"s[{b}:{b+3}]"
def sp(b): return f"s[{b}:{b+1}]"
def vr(b, n=4): return f"v[{b}:{b+n-1}]" if n > 1 else f"v{b}"
def ar(b, n=4): return f"a[{b}:{b+n-1}]"
def srd(d, lo, nbytes):
    e(f"s_mov_b32 s{d}, s{lo}"); e(f"s_and_b32 s{d+1}, s{lo+1}, 0xffff")
    e(f"s_mov_b32 s{d+2}, {nbytes}"); e(f"s_mov_b32 s{d+3}, 0x20000")
MASKS = {}
def setexec(mask):
    if mask in MASKS: e(f"s_mov_b64 exec, {sp(MASKS[mask])}"); return
    lo, hi = mask & 0xffffffff, mask >> 32
    if mask == (1 << 64) - 1: e("s_mov_b64 exec, -1")
    elif hi == 0 and lo <= 64: e(f"s_mov_b64 exec, {lo}")
    else: e(f"s_mov_b32 exec_lo, {lo:#x}"); e(f"s_mov_b32 exec_hi, {hi:#x}")
FULL = (1 << 64) - 1
ROWS9 = 0x01FF01FF01FF01FF
vL, vLin, vWr, vKrd, vVrd, vCS, vAq, vAq16, vQst, vQld, vQBw, vQBr, vIdx, vAcc, vTq1, vTq2, vSC, vPw = 0, 1, 2, 5, 6, 7, 8, 9, 10, 11, 12, 13, 14, 15, 16, 17, 18, 19
vC1, vC2, vXR = 20, 21, 22
T = 24
F = 40
SPARE = 88
def vblock(b):
    if b < 2: return ("a", 192 + 24 * b)
    if b == 8: return ("v", SPARE)
    return ("v", 112 + 24 * (b - 2))
def rg(f, b, n): return f"{f}[{b}:{b+n-1}]"

uid = [0]
def nid(): uid[0] += 1; return uid[0]
stamps = [0]
SPINAT = int(OPT.get("spinat", -1))
JIT = int(OPT.get("jit", 0))
def jitter(mask, prob):
    k = nid()
    e("s_cselect_b32 s98, 1, 0")
    e("s_memtime s[100:101]"); e("s_waitcnt lgkmcnt(0)"); e("s_mul_i32 s100, s100, 0x9e3779b1"); e("s_lshr_b32 s99, s100, 24"); e(f"s_cmp_ge_u32 s99, {prob}"); e(f"s_cbranch_scc1 JX{k}")
    e("s_lshr_b32 s99, s100, 12"); e(f"s_and_b32 s99, s99, {mask}")
    lab(f"JL{k}"); e("s_sleep 4"); e("s_sub_u32 s99, s99, 1"); e("s_cmp_ge_i32 s99, 0"); e(f"s_cbranch_scc1 JL{k}")
    lab(f"JX{k}"); e("s_cmp_eq_u32 s98, 1")
def stamp(i, val=None):
    if JIT and val is None: jitter(JIT, 24); return
    if SPIN and val is None and SPINAT % 16 == i:
        k = nid()
        e(f"s_cmp_lg_u32 s{sLay}, {LS*(SPINAT//16)}"); e(f"s_cbranch_scc1 NOSP{k}")
        e("s_memrealtime s[100:101]"); e("s_waitcnt lgkmcnt(0)"); e("v_accvgpr_write_b32 a253, s100"); lab(f"NOSP{k}")
    if not STAMP: return
    if STAMP == 3 and (val is not None or i != 7): return
    if val == "d":
        if STAMP != 6: return
        val = None
    elif STAMP == 6 and (val is not None or i not in (9, 10, 11)): return
    if STAMP == 5 and (val is not None or i not in (9, 11, 12, 13)): return
    if STAMP == 4 and val != "c": return
    if val == "c":
        if STAMP != 4: return
        val = None
    if STAMP == 2 and val is None and i not in (0, 14): return
    if STAMP == 1 and (val is not None or i == 14): return
    e("s_memrealtime s[100:101]"); e("v_accvgpr_write_b32 a254, v38"); e("v_accvgpr_write_b32 a255, v39")
    e(f"s_lshl_b32 s98, s2, 2"); e(f"s_add_u32 s98, s98, s{sWV}"); e("s_lshl_b32 s98, s98, 7")
    e(f"s_cmp_eq_u32 s{sLay}, 0"); e(f"s_cselect_b32 s99, 0, 64"); e(f"s_add_u32 s99, s99, {4*i}"); e("s_add_u32 s98, s98, s99"); e("s_add_u32 s98, s98, 0x40000000")
    e("s_waitcnt lgkmcnt(0)"); e(f"v_mov_b32 v38, {val or 's100'}"); e("v_mov_b32 v39, 0")
    e("s_mov_b64 s[100:101], exec"); e("s_mov_b64 exec, 1")
    A.vmem(f"buffer_store_dword v38, v39, {sr(sW)}, s98 offen", "stamp")
    e("s_mov_b64 exec, s[100:101]"); e("s_nop 1"); e("v_accvgpr_read_b32 v38, a254"); e("v_accvgpr_read_b32 v39, a255")
sWp = sK
def lstore(instr, counted=None):
    assert sr(sW) in instr and not counted
    k = nid()
    e(instr.replace(sr(sW), sr(sWp)))
    e(f"s_cmp_eq_u32 s{sWp+2}, 0"); e(f"s_cbranch_scc1 SLOW{k}")
    lab(f"BACK{k}")
    def t(): lab(f"SLOW{k}"); e(instr + " sc1"); e(f"s_branch BACK{k}")
    tail.append(t)
def check(regs_, tmp):
    r = list(regs_)
    if len(r) == 1: e(f"v_cmp_eq_u32 vcc, -1, v{r[0]}"); return
    cur = r.pop(0)
    while r:
        if len(r) >= 2: e(f"v_max3_u32 v{tmp}, v{cur}, v{r[0]}, v{r[1]}"); r = r[2:]
        else: e(f"v_max_u32 v{tmp}, v{cur}, v{r[0]}"); r = r[1:]
        cur = tmp
    e(f"v_cmp_eq_u32 vcc, -1, v{tmp}")
LIMIT = 0x8000
def poll(loads, regs_, tmp, pid=None, slp=0, first=None):
    k = nid()
    if pid is not None: stamp(pid, "s100")
    e(f"s_mov_b32 s{sCnt}, 1")
    if first:
        for l in loads: e(l)
        first(); e(f"s_branch POLLW{k}")
    lab(f"POLL{k}")
    for l in loads: e(l)
    lab(f"POLLW{k}")
    e("s_waitcnt vmcnt(0)")
    check(regs_, tmp)
    e(f"s_cbranch_vccnz AGAIN{k}")
    lab(f"POLLX{k}")
    def t():
        lab(f"AGAIN{k}")
        if slp: e(f"s_sleep {slp}")
        e(f"s_add_u32 s{sCnt}, s{sCnt}, 1"); e(f"s_cmp_lt_u32 s{sCnt}, {LIMIT}"); e(f"s_cbranch_scc1 POLL{k}"); e(f"s_branch POLLX{k}")
    near.append(t)
    if pid is not None: stamp(pid + 1, "s100"); stamp(pid + 2, f"s{sCnt}")
    A.drained()
SEL = int(OPT.get("sel", 1)); XF = " " + OPT.get("xf", "").replace("+", " "); XF1 = int(OPT.get("xf1", 0))
def poll_sel(groups, tmp, pid=None, first=None, firstloads=None, xf="", wl=None, w1=0):
    allr = [r for g in groups for r in g[1]]
    loads = firstloads or [l for g in groups for l in g[0]]
    if not SEL: return poll(loads, allr, tmp, pid=pid, first=first)
    k = nid()
    if pid is not None: stamp(pid, "s100")
    for l in loads: e(l + (xf if XF1 else ""))
    if first: first()
    if wl: lab(wl)
    if pid is not None and STAMP == 2: e(f"s_mov_b32 s{sCnt}, 1")
    e(f"s_waitcnt vmcnt({w1})")
    check(allr, tmp)
    e(f"s_cbranch_vccnz AGAIN{k}")
    lab(f"POLLX{k}")
    def t():
        lab(f"AGAIN{k}")
        e("s_mov_b64 s[94:95], exec"); e(f"s_mov_b32 s{sCnt}, 1")
        lab(f"AG2{k}")
        if int(OPT.get("osl", 0)): e(f"s_sleep {OPT['osl']}")
        for gi, (ls, rs) in enumerate(groups):
            if len(groups) > 1: check(rs, tmp)
            e("s_mov_b64 exec, vcc")
            if len(groups) > 1: e(f"s_cbranch_execz AG3{k}_{gi}")
            for l in ls: e(l + xf)
            lab(f"AG3{k}_{gi}"); e("s_mov_b64 exec, s[94:95]")
        e(f"s_add_u32 s{sCnt}, s{sCnt}, 1"); e(f"s_cmp_ge_u32 s{sCnt}, {LIMIT}")
        e("s_waitcnt vmcnt(0)")
        check(allr, tmp)
        e(f"s_cbranch_vccz POLLX{k}"); e(f"s_cbranch_scc0 AG2{k}"); e(f"s_branch POLLX{k}")
    near.append(t)
    if pid is not None: stamp(pid + 1, "s100"); stamp(pid + 2, f"s{sCnt}")
    A.drained()
near = []
def flush_near():
    while near: near.pop(0)()
GATE = int(OPT.get("gate", 1)); GDLY = int(OPT.get("gdly", 0)); ODLY = int(OPT.get("odly", 12))
def gate(sreg, nl, tmp):
    if not GATE: return
    setexec((1 << nl) - 1)
    poll([f"buffer_load_dword v{tmp}, v{vLin}, {sr(sW)}, s{sreg} offen sc1"], [tmp], tmp, slp=int(OPT.get("gsl", 0)))
    if GDLY: e(f"s_sleep {GDLY}")
def poll_nan(loads, body, res):
    k = nid()
    e(f"s_mov_b32 s{sCnt}, 1")
    lab(f"POLL{k}")
    for l in loads: e(l)
    e("s_waitcnt vmcnt(0)")
    body()
    e(f"v_cmp_u_f32 vcc, v{res}, v{res}"); e(f"s_cbranch_vccnz AGAIN{k}")
    lab(f"POLLX{k}")
    def t():
        lab(f"AGAIN{k}"); e(f"s_add_u32 s{sCnt}, s{sCnt}, 1"); e(f"s_cmp_lt_u32 s{sCnt}, {LIMIT}"); e(f"s_cbranch_scc1 POLL{k}"); e(f"s_branch POLLX{k}")
    near.append(t)
def late_check(tag, loads, regs_, tmp, pre=None, post=None):
    k = nid()
    A.wait(tag)
    check(regs_, tmp)
    e(f"s_cbranch_vccnz RETRY{k}")
    lab(f"OK{k}")
    def t():
        lab(f"RETRY{k}")
        if pre: pre()
        save = A.vm; poll(loads, regs_, tmp); A.vm = save
        if post: post()
        e(f"s_branch OK{k}")
    tail.append(t)

sTO = 82
sPo, sPw = 90, 91
vLin2 = vXR + 1
e("s_load_dwordx16 s[44:59], s[0:1], 0"); e("s_load_dwordx8 s[60:67], s[0:1], 64")
e("s_cmp_ge_u32 s2, 256"); e("s_cbranch_scc1 CODE_END")
e("s_memrealtime s[96:97]")
e("v_lshrrev_b32 v2, 6, v0"); e("v_and_b32 v24, 63, v0"); e(f"v_readfirstlane_b32 s{sWV}, v2")
e(f"s_and_b32 s{sG}, s2, 7"); e(f"s_lshr_b32 s{sJ}, s2, 3"); e(f"s_lshr_b32 s{sHH}, s{sJ}, 3"); e(f"s_and_b32 s{sS}, s{sJ}, 7")
e(f"v_lshlrev_b32 v{vLin}, 4, v24")
e(f"s_lshl_b32 s{sT0}, s{sHH}, 3"); e(f"s_add_u32 s{sT0}, s{sT0}, s{sG}")
e(f"s_mul_i32 s{sKV}, s{sT0}, 12582912"); e(f"s_lshl_b32 s{sT1}, s{sS}, 2"); e(f"s_add_u32 s{sT1}, s{sT1}, s{sWV}")
e(f"s_mul_i32 s{sT1}, s{sT1}, 6144"); e(f"s_add_u32 s{sKV}, s{sKV}, s{sT1}"); e(f"s_add_u32 s{sKV}, s{sKV}, 11010048")
e(f"v_add_u32 v{vLin2}, 4096, v{vLin}"); e(f"s_mov_b32 s{sK+2}, 402653184"); e(f"s_mov_b32 s{sK+3}, 0x20000")
e("s_getpc_b64 s[100:101]"); lab("PCREF")
e(f"s_sub_u32 s100, s100, PCREF-{NAME}_kernel"); e("s_subb_u32 s101, s101, 0")
e(f"s_lshl_b32 s{sT1}, s{sS}, 12"); e(f"v_lshl_add_u32 v25, v0, 4, s{sT1}")
e(f"v_cmp_gt_u32 vcc, CODE_END-{NAME}_kernel-16, v25"); e("s_and_saveexec_b64 s[98:99], vcc"); e("s_cbranch_execz NOCPF")
e(f"global_load_dwordx4 a[240:243], v25, s[100:101]")
lab("NOCPF"); e("s_mov_b64 exec, -1")
e(f"s_mul_i32 s{sT2}, s{sT0}, 384")
e(f"s_mov_b32 s{sLay}, 0"); e(f"s_mul_i32 s{sLG}, s{sG}, {GB}"); e(f"s_getreg_b32 s{sFast}, hwreg(HW_REG_XCC_ID, 0, 4)")
e(f"s_lshl_b32 s{sT0}, s{sJ}, 9"); e(f"s_add_u32 s{sT0}, s{sT0}, s{sLG}"); e(f"s_add_u32 s{sT0}, s{sT0}, {oO}"); e(f"v_add_u32 v{vC1}, s{sT0}, v{vLin}")
e(f"s_lshl_b32 s{sT0}, s{sG}, 2"); e(f"s_add_u32 s{sT0}, s{sT0}, s{sJ}"); e(f"s_mul_i32 s{sT0}, s{sT0}, {2560 if RY0 else 320}"); e(f"s_add_u32 s{sT0}, s{sT0}, {oYG-512}"); e(f"s_add_u32 s{sClr}, s{sT0}, 1024"); e(f"v_add_u32 v25, s{sT0}, v{vLin}")
e("v_cmp_le_u32 vcc, 32, v0"); e(f"v_cndmask_b32 v{vC2}, v{vC1}, v25, vcc"); e(f"v_mov_b32 v25, {OOB}"); e(f"v_cndmask_b32 v{vC1}, v{vC1}, v25, vcc")
e(f"s_cmp_lt_u32 s{sJ}, 4"); e(f"s_cselect_b32 s{sT0}, {64 if RY0 else 52}, 32"); e(f"v_cmp_le_u32 vcc, s{sT0}, v0"); e(f"v_cndmask_b32 v{vC2}, v{vC2}, v25, vcc")
e(f"s_mov_b32 s{sW+2}, 1610612736"); e(f"s_mov_b32 s{sW+3}, 0x20000")
e("s_waitcnt lgkmcnt(0)")
e(f"s_mov_b32 s{sK}, s46"); e(f"s_and_b32 s{sK+1}, s47, 0xffff"); e(f"s_mov_b32 s{sW}, s66"); e(f"s_and_b32 s{sW+1}, s67, 0xffff")
if SPIN: e("v_mov_b32 v38, s96"); e("v_accvgpr_write_b32 a253, v38")
SPM = OPT.get("spm", "")
RW = int(OPT.get("rw", 16)); RF = (320 - 20 * RW) // 12
assert 20 * RW + 12 * RF == 320
NPW = -(-max(RW, RF) * 24 // 64)
pend = []
def q_tile(srdn, t, f, base, tag):
    so = sKV if t == 0 else sTO + t
    for i in range(6):
        pend.append((f"buffer_load_dwordx4 {rg(f, base+4*i, 4)}, v{vLin if i < 4 else vLin2}, {sr(srdn)}, s{so} offen offset:{1024*(i%4)} {NT}", tag))
def qK(t): q_tile(sK, t, "a", 24 * t, f"K{t}")
def qV(t): f, b = vblock(t + 1); q_tile(sV, t, f, b, f"V{t}")
def q_pfo():
    for n in range(9): pend.append((f"buffer_load_dwordx4 a[240:243], v{[vLin, vLin, vLin2, 108, 109][n//2]}, {sr(sWQ)}, s{sPo} offen offset:{1024*(n%4)} {NTP}", "pfo"))
def q_pfw():
    for n in range(NPW): pend.append((f"buffer_load_dwordx4 a[240:243], v{101+n}, {sr(sX)}, s{sPw} offen {NTP}", "pfw"))
nfill = [0]; BARN = int(OPT.get("barn", 6)); THR = int(OPT.get("thr", 0)); THRE = int(OPT.get("thre", 0)); THS = int(OPT.get("ths", 20)); THP = int(OPT.get("thp", 1))
hold = {"V7", "pfw", "pfo"}; LA = int(OPT.get("la", 12))
def ahead(tag, LA=LA):
    while tag in A.vm and pend and pend[0][1] not in hold and len(A.vm) - 1 - max(i for i, x in enumerate(A.vm) if x == tag) < LA: fill()
def fill(n=1):
    for _ in range(n):
        if pend and not (pend[0][1] in hold):
            if THR and nfill[0] >= THS and len(pend) > THRE:
                k = nid(); e(f"s_bitcmp{THP}_b32 s{sFast}, 0"); e(f"s_cbranch_scc1 TH{k}"); e(f"s_waitcnt vmcnt({THR-1})"); lab(f"TH{k}")
            x, tag = pend.pop(0); A.vmem(x, tag); nfill[0] += 1
            if BARN and nfill[0] > 12 and nfill[0] % BARN == 0 and len(pend) >= 3: e("s_barrier")
BARS = OPT.get("bar", "").split(",")
def upto(tag):
    while any(t == tag for _, t in pend): fill()
    if tag in BARS or "every" in BARS and tag not in ("K0", "K1", "V7"): e("s_barrier")
def Kld(t): upto(f"K{t}")
def Vld(t): upto(f"V{t}")
for it in OPT.get("order", "K0 K1 K2 K3 K4 K5 K6 K7 V0 V1 V2 V3 V4 V5 V6 V7").replace(",", " ").split():
    if it == "w":
        if "pfw" not in SKIP: q_pfw()
    elif it == "o":
        if "pfo" not in SKIP: q_pfo()
    elif it[0] == "K": qK(int(it[1]))
    else: qV(int(it[1]))
if JIT: jitter(255, 16)
fill(int(OPT.get("k0e", 2)))
e(f"s_or_b32 s{sT0}, s2, s{sWV}"); e("s_cbranch_scc1 NOTAG")
e(f"s_or_b32 s{sT0}, s96, 1"); e(f"v_mov_b32 v26, s{sT0}"); setexec(1); e(f"global_store_dword v{vLin}, v26, s[64:65] sc1"); setexec(FULL)
lab("NOTAG")
if STAMP == 1: e("s_memrealtime s[94:95]")
e(f"s_add_u32 s{sTO+1}, s{sKV}, 196608")
srd(sV, 48, 402653184); srd(sWQ, 50, 7864320); srd(sX, 44, 1280); srd(sO, 62, 1280)
srd(sRB, 58, 1966080); srd(sRC, 60, 1966080)
e(f"s_cmp_lt_u32 s{sJ}, 20"); e(f"s_cselect_b32 s{sRA}, s52, s56"); e(f"s_cselect_b32 s{sRA+1}, s53, s57"); e(f"s_cselect_b32 s{sRA+2}, s{sWQ+2}, s{sRB+2}")
e(f"s_and_b32 s{sRA+1}, s{sRA+1}, 0xffff"); e(f"s_mov_b32 s{sRA+3}, 0x20000")
TLBW = OPT.get("tlbw", "")
def tlb_touch():
    e(f"s_cmp_lg_u32 s{sWV}, 3"); e("s_cbranch_scc1 NOTLB")
    if "j" in TLBW: e(f"s_cmp_lg_u32 s{sS}, 0"); e("s_cbranch_scc1 NOTLB")
    e("v_mul_u32_u24 v26, 1376256, v24"); e("v_lshlrev_b32 v27, 20, v24")
    setexec(3)
    if "v" in TLBW: e(f"buffer_load_dword a243, v26, {sr(sV)}, s{sKV} offen nt"); e(f"buffer_load_dword a243, v26, {sr(sK)}, s{sKV} offen nt")
    if "w" in TLBW:
        e(f"global_load_dword a243, v27, s[56:57] nt"); e(f"buffer_load_dword a243, v27, {sr(sRB)}, 0 offen nt"); e(f"buffer_load_dword a243, v27, {sr(sRC)}, 0 offen nt")
        setexec(0xff); e(f"global_load_dword a243, v27, s[52:53] nt")
    setexec(FULL)
    lab("NOTLB")
if TLBW: tlb_touch()
if STAMP:
    e(f"s_lshl_b32 s98, s2, 2"); e(f"s_add_u32 s98, s98, s{sWV}"); e("s_lshl_b32 s98, s98, 7"); e("s_add_u32 s98, s98, 0x40000000")
    e("v_mov_b32 v38, s96"); e("v_mov_b32 v39, 0"); e("s_mov_b64 exec, 1")
    A.vmem(f"buffer_store_dword v38, v39, {sr(sW)}, s98 offen", "stamp")
    if STAMP == 1: e("s_waitcnt lgkmcnt(0)"); e("v_mov_b32 v37, s94"); A.vmem(f"buffer_store_dword v37, v39, {sr(sW)}, s98 offen offset:56", "stamp")
    e("s_mov_b64 exec, -1")
for t in range(2, 8): e(f"s_add_u32 s{sTO+t}, s{sTO+t-1}, 196608")
e(f"v_mov_b32 v{vL}, v24")
e(f"s_mul_i32 s{sT0}, s{sWV}, {SCRW}")
for r in range(3):
    e(f"v_add_u32 v25, {64*r}, v{vL}"); e("v_mul_u32_u24 v26, 171, v25"); e("v_lshrrev_b32 v26, 12, v26")
    e("v_mul_u32_u24 v27, 24, v26"); e("v_sub_u32 v27, v25, v27"); e("v_lshlrev_b32 v27, 4, v27")
    e(f"v_mul_u32_u24 v25, {RS}, v26"); e(f"v_add3_u32 v{vWr+r}, v25, v27, s{sT0}")
    e(f"v_mul_u32_u24 v25, 12288, v26"); e(f"v_add_u32 v{F+r}, v25, v27")
assert all((c * 171) >> 12 == c // 24 for c in range(192))
e(f"v_and_b32 v25, 15, v{vL}"); e(f"v_lshrrev_b32 v26, 4, v{vL}")
e(f"v_bfe_u32 v27, v{vL}, 2, 2"); e(f"v_and_b32 v28, 3, v{vL}")
e(f"s_mul_i32 s{sT1}, s{sS}, 160")
e(f"v_lshlrev_b32 v36, 4, v26"); e(f"v_lshlrev_b32 v37, 3, v26"); e(f"v_lshlrev_b32 v39, 2, v{vL}")
A.vmem(f"buffer_load_dwordx4 v[70:73], v36, {sr(sX)}, s{sT1} offen", "x")
A.vmem(f"buffer_load_dwordx4 v[74:77], v36, {sr(sX)}, s{sT1} offen offset:64", "x")
A.vmem(f"buffer_load_dwordx2 v[78:79], v37, {sr(sX)}, s{sT1} offen offset:128", "x")
A.vmem(f"buffer_load_dwordx4 v[80:83], v{vLin}, {sr(sX)}, 0 offen", "x")
A.vmem(f"buffer_load_dword v84, v39, {sr(sX)}, 0 offen offset:1024", "x")
e(f"s_lshl_b32 s{sT3}, s{sJ}, 6"); e(f"v_lshlrev_b32 v38, 2, v25")
A.vmem(f"buffer_load_dword v{vXR}, v38, {sr(sX)}, s{sT3} offen", "x")
e(f"s_mul_i32 s{sT1}, s{sS}, {80*12288}"); e(f"s_add_u32 s{sT2}, s{sT2}, s{sT1}")
e(f"s_mul_i32 s{sT1}, s{sWV}, {8*12288}"); e(f"s_add_u32 s{sT2}, s{sT2}, s{sT1}")
e(f"s_mul_i32 s{sT1}, s{sWV}, 3072"); e(f"s_add_u32 s{sT1}, s{sT1}, {WQ}")
for gi in range(3):
    if gi == 2: e(f"s_cmp_ge_u32 s{sWV}, 2"); e("s_cbranch_scc1 NOWQ3")
    for r in range(3):
        e(f"s_add_u32 m0, s{sT1}, {gi*4*3072 + r*1024}")
        if "wq" not in SKIP: A.vmem(f"buffer_load_dwordx4 v{F+r}, {sr(sWQ)}, s{sT2} offen {NTW} lds", "wq", counted=(gi < 2))
    if gi < 2: e(f"s_add_u32 s{sT2}, s{sT2}, {32*12288}")
lab("NOWQ3")
e(f"s_mul_i32 s{sT1}, s{sS}, 160")
srd(sWQ, 52, 7864320)
e(f"s_cmp_lt_u32 s{sWV}, 2"); e(f"s_cselect_b32 s{sX}, s56, s58"); e(f"s_cselect_b32 s{sX+1}, s57, s59"); e(f"s_and_b32 s{sX+1}, s{sX+1}, 0xffff"); e(f"s_mov_b32 s{sX+2}, 1966080")
fill(3)
e(f"v_mul_u32_u24 v29, {RS}, v25"); e(f"v_lshl_add_u32 v29, v26, 4, v29"); e(f"v_add_u32 v{vKrd}, s{sT0}, v29")
e(f"v_lshrrev_b32 v29, 2, v{vL}"); e(f"v_mul_u32_u24 v29, {RS}, v29"); e(f"v_lshl_add_u32 v29, v28, 3, v29"); e(f"v_add_u32 v{vVrd}, s{sT0}, v29")
e(f"s_mul_i32 s{sT2}, s{sWV}, 96"); e(f"s_add_u32 s{sT2}, s{sT2}, {WQ}")
e("v_lshl_add_u32 v29, v26, 3, v27"); e("v_mul_u32_u24 v29, 384, v29"); e("v_lshl_add_u32 v29, v28, 3, v29"); e(f"v_add_u32 v{vTq1}, s{sT2}, v29")
e("v_lshl_add_u32 v29, v26, 2, v27"); e("v_mul_u32_u24 v29, 384, v29"); e("v_lshl_add_u32 v29, v28, 3, v29"); e(f"v_add_u32 v{vTq2}, s{sT2}, v29")
REPL = int(OPT.get("repl", 1))
SHB = OPT.get("shb", "fl")
def rowbase(dst, m, og, ol, ob, tmp):
    e(f"s_mul_i32 s{sT3}, s{sG}, {10240 if REPL else 0}")
    if og == oYG and not RY0: e(f"s_cmp_eq_u32 s{sLay}, 0"); e(f"s_cselect_b32 s{sT3}, 0, s{sT3}")
    e(f"s_add_u32 s{sT3}, s{sT3}, {og}")
    e(f"v_mul_u32_u24 v{dst}, 1280, v{m}"); e(f"v_add_u32 v{dst}, s{sT3}, v{dst}")
    e(f"s_mul_i32 s{sT3}, s{sG}, {GB}"); e(f"s_add_u32 s{sT3}, s{sT3}, {ol}"); e(f"v_mov_b32 v{tmp}, s{sT3}")
    e(f"v_cmp_eq_u32 vcc, s{sG}, v{m}"); e(f"v_cndmask_b32 v{dst}, v{dst}, v{tmp}, vcc")
    if ob is not None:
        e(f"v_add_u32 v{tmp}, {ob-ol}, v{tmp}"); e(f"v_cmp_le_u32 vcc, 8, v{m}"); e(f"v_cndmask_b32 v{dst}, v{dst}, v{tmp}, vcc")
fill()
if "l" in SHB: e(f"s_mul_i32 s{sT2}, s{sWV}, 23"); e(f"v_min_u32 v32, 22, v{vL}"); e(f"v_add_u32 v32, s{sT2}, v32"); e("v_min_u32 v32, 89, v32")
else: e(f"v_mov_b32 v32, v{vL}")
assert all((c * 103) >> 10 == c // 10 for c in range(90))
e(f"v_mul_u32_u24 v31, 103, v32"); e("v_lshrrev_b32 v31, 10, v31")
e(f"v_mul_u32_u24 v30, 10, v31"); e(f"v_sub_u32 v30, v32, v30"); e(f"v_lshl_add_u32 v29, v30, 4, s{sT1}")
rowbase(vAq, 31, oFG, oFL, oBB, 30); e(f"v_add_u32 v{vAq}, v{vAq}, v29")
if "l" in SHB: e("v_add_u32 v33, v31, v32"); e("v_lshlrev_b32 v33, 4, v33"); e("v_add_u32 v33, 4096, v33")
e("v_add_u32 v31, 6, v31"); rowbase(vAq16, 31, oFG, oFL, oBB, 30); e(f"v_add_u32 v{vAq16}, v{vAq16}, v29")
e(f"v_mov_b32 v30, {OOB}"); e(f"v_cmp_le_u32 vcc, 30, v{vL}"); e(f"v_cndmask_b32 v{vAq16}, v{vAq16}, v30, vcc")
if "l" in SHB: e(f"v_mov_b32 v{vAq16}, v33")
e(f"s_lshl_b32 s{sT1}, s{sJ}, 10"); e(f"s_lshl_b32 s{sT2}, s{sWV}, 8"); e(f"s_add_u32 s{sT1}, s{sT1}, s{sT2}")
e(f"v_lshl_add_u32 v{vQst}, v{vL}, 2, s{sT1}")
e(f"s_lshl_b32 s{sT1}, s{sHH}, 13"); e(f"s_add_u32 s{sT1}, s{sT1}, s{sT2}")
e(f"v_lshlrev_b32 v29, 10, v26"); e(f"v_lshl_add_u32 v29, v25, 4, v29"); e(f"v_add_u32 v{vQld}, s{sT1}, v29")
fill()
e(f"s_mul_i32 s{sT1}, s{sWV}, 96"); e(f"s_add_u32 s{sT1}, s{sT1}, {QB}")
e(f"v_lshl_add_u32 v29, v27, 5, s{sT1}"); e("v_lshl_add_u32 v29, v28, 2, v29"); e("v_lshrrev_b32 v30, 1, v26"); e("v_lshl_add_u32 v29, v30, 4, v29")
e("v_and_b32 v30, 1, v26"); e("v_lshl_add_u32 v29, v30, 1, v29"); e(f"v_mov_b32 v30, {QB+384}")
e("v_cmp_le_u32 vcc, 12, v25"); e(f"v_cndmask_b32 v{vQBw}, v29, v30, vcc")
e(f"v_and_b32 v30, 1, v{vL}"); e(f"v_lshlrev_b32 v29, 5, v26"); e("v_lshl_add_u32 v29, v30, 4, v29"); e(f"v_add_u32 v{vQBr}, {QB}, v29")
e("v_mul_u32_u24 v30, 0xaaaa, v30"); e("v_and_b32 v29, 1, v27"); e("v_mul_u32_u24 v29, 0xaaaa, v29"); e("v_lshl_or_b32 v29, v29, 16, v30"); e(f"v_add_u32 v{vIdx}, 0x44444444, v29")
fill()
e(f"s_lshl_b32 s{sT1}, s{sWV}, 8"); e(f"s_add_u32 s{sT1}, s{sT1}, {PT}")
e(f"v_lshrrev_b32 v29, 5, v{vL}"); e(f"v_lshl_add_u32 v29, v29, 6, s{sT1}")
for bit, sh in ((3, 5), (1, 4), (2, 3), (4, 2), (0, 1)): e(f"v_bfe_u32 v30, v{vL}, {bit}, 1"); e(f"v_lshl_add_u32 v29, v30, {sh}, v29")
e(f"v_mov_b32 v{vPw}, v29")
e(f"v_bfe_u32 v29, v{vL}, 4, 1"); e(f"v_bfe_u32 v30, v{vL}, 2, 1"); e(f"v_lshl_add_u32 v29, v29, 5, s{sT1}"); e("v_lshl_add_u32 v29, v30, 4, v29"); e("v_accvgpr_write_b32 a252, v29")
e(f"s_mul_i32 s{sT1}, s{sWV}, 768"); e(f"s_add_u32 s{sT1}, s{sT1}, {ACC}"); e(f"v_lshl_add_u32 v29, v25, 2, s{sT1}")
e(f"v_bfe_u32 v30, v{vL}, 4, 1"); e("v_lshl_add_u32 v29, v30, 7, v29"); e(f"v_lshrrev_b32 v30, 5, v{vL}"); e(f"v_lshl_add_u32 v{vAcc}, v30, 6, v29")

def Krel(t):
    upto(f"K{t}"); ahead(f"K{t}"); A.wait(f"K{t}")
    if "rel" in SKIP: return
    for i in range(6): e(f"ds_write_b128 v{vWr+i%3}, {ar(24*t+4*i)} offset:{(i//3)*8*RS}")
    for ks in range(6): e(f"ds_read_b128 {ar(24*t+4*ks)}, v{vKrd} offset:{64*ks}")
def Vrel(t):
    upto(f"V{t}"); ahead(f"V{t}"); A.wait(f"V{t}")
    if "rel" in SKIP: return
    f, b = vblock(t + 1)
    for i in range(6): e(f"ds_write_b128 v{vWr+i%3}, {rg(f, b+4*i, 4)} offset:{(i//3)*8*RS}")
    f, b = vblock(t & ~1)
    for dt in range(12): e(f"ds_read_b64_tr_b16 {rg(f, b+4*dt+2*(t&1), 2)}, v{vVrd} offset:{32*dt}")
def wq_frags():
    for t in range(3):
        b = F + 10 * t
        for kk in range(2):
            for h in range(2): e(f"ds_read_b64_tr_b16 {vr(b+4*kk+2*h,2)}, v{vTq1} offset:{(32*kk+4*h)*384+32*t}")
        e(f"ds_read_b64_tr_b16 {vr(b+8,2)}, v{vTq2} offset:{64*384+32*t}")
def qstage(a, soff, tag=None, waits=False, fl=0):
    def mm(t, kk):
        n = 4 if kk < 2 else 2
        bb = vr(F + 10 * t + 4 * kk, n) if t < 3 else vr(a + 4 * kk, n)
        c = "0" if kk == 0 else vr(T + 4 * t)
        e(f"v_mfma_f32_16x16x{32 if kk<2 else 16}_bf16 {vr(T+4*t)}, {vr(a+4*kk,n)}, {bb}, {c}")
    def s4(t): return [f"v_add_f32 v{T+4*t}, v{T+4*t}, v{T+4*t+1}", f"v_add_f32 v{T+4*t+2}, v{T+4*t+2}, v{T+4*t+3}", f"v_add_f32 v{T+4*t}, v{T+4*t}, v{T+4*t+2}"]
    if waits: e("s_waitcnt lgkmcnt(2)")
    mm(0, 0); mm(2, 0)
    if waits: e("s_waitcnt lgkmcnt(0)")
    mm(0, 1); mm(2, 1); mm(0, 2); mm(2, 2)
    mm(1, 0); mm(3, 0); mm(1, 1); mm(3, 1); mm(1, 2); mm(3, 2)
    fill(fl)
    for x in s4(0) + s4(2): e(x)
    e(f"v_permlane32_swap_b32 v{T}, v{T+8}")
    x1, x3 = s4(1), s4(3)
    for x in x1[:2] + x3[:2] + [f"v_add_f32 v{T}, v{T}, v{T+8}"] + x1[2:] + x3[2:]: e(x)
    e(f"v_permlane32_swap_b32 v{T+4}, v{T+12}"); e(f"v_add_f32 v{T+4}, v{T+4}, v{T+12}")
    e(f"v_permlane16_swap_b32 v{T}, v{T+4}"); e(f"v_add_f32 v{T}, v{T}, v{T+4}")
    if tag and "qst" in SKIP: pass
    elif tag:
        for q in (1, 2, 3): e(f"v_mov_b32_dpp v{T+q}, v{T} quad_perm:[{q},{q},{q},{q}] row_mask:0xf bank_mask:0xf")
        setexec(0x1111111111111111); A.vmem(f"buffer_store_dwordx4 {vr(T)}, v{vQst}, {sr(sW)}, {soff} offen {'' if 'qplain' in SKIP else 'sc1'}", tag); setexec(FULL)
    else: lstore(f"buffer_store_dword v{T}, v{vQst}, {sr(sW)}, {soff} offen")
def xreduce(r0, r1, r2, r3):
    e(f"v_permlane32_swap_b32 v{r0}, v{r2}"); e(f"v_permlane32_swap_b32 v{r1}, v{r3}")
    e(f"v_add_f32 v{r0}, v{r0}, v{r2}"); e(f"v_add_f32 v{r1}, v{r1}, v{r3}")
    e(f"v_permlane16_swap_b32 v{r0}, v{r1}"); e(f"v_add_f32 v{r0}, v{r0}, v{r1}")
def qloads(b, s0, s1): return [f"buffer_load_dwordx4 {vr(b)}, v{vQld}, {sr(sW)}, {s0} offen sc1", f"buffer_load_dwordx4 {vr(b+4)}, v{vQld}, {sr(sW)}, {s1} offen sc1"]
def qsum(b):
    for q in range(4): e(f"v_add_f32 v{b+q}, v{b+q}, v{b+4+q}")
    xreduce(b, b + 1, b + 2, b + 3)
def rowred(op, v, tmp, steps):
    for sft in steps: e(f"v_{op}_f32_dpp v{v}, v{v}, v{v} row_ror:{sft} row_mask:0xf bank_mask:0xf")
def xrow(op, v, tmp, both=True):
    if both:
        e(f"v_mov_b32 v{tmp}, v{v}"); e(f"v_permlane32_swap_b32 v{v}, v{tmp}"); e(f"v_{op}_f32 v{v}, v{v}, v{tmp}")
    e(f"v_mov_b32 v{tmp}, v{v}"); e(f"v_permlane16_swap_b32 v{v}, v{tmp}"); e(f"v_{op}_f32 v{v}, v{v}, v{tmp}")
QF = 28; DQ = 40; PA = 72; X = 24; vM = 26
def att_zero():
    for t in range(8): e(f"v_mov_b32 v{DQ+4*t}, 0"); e(f"v_mov_b32 v{DQ+4*t+1}, 0")
    for q in range(16): e(f"v_mov_b32 v{PA+q}, 0")
def q_finish(b, mid=None):
    e(f"v_readlane_b32 s{sT0}, v{b}, 15")
    e(f"s_mov_b32 vcc_lo, 0x70007000"); e(f"s_mov_b32 vcc_hi, 0x70007000")
    e(f"v_fma_f32 v{b+1}, -s{sT0}, v{vCS}, v{b}")
    e(f"v_cvt_pk_bf16_f32 v{b+1}, v{b+1}, v{b+1}")
    e(f"ds_write_b16 v{vQBw}, v{b+1}")
    e(f"v_cndmask_b32 v{b+2}, 0, v{b}, vcc")
    e(f"v_add_f32_dpp v{b+2}, v{b+2}, v{b+2} quad_perm:[1,0,3,2] row_mask:0xf bank_mask:0xf")
    e(f"v_add_f32_dpp v{b+2}, v{b+2}, v{b+2} quad_perm:[2,3,0,1] row_mask:0xf bank_mask:0xf")
    e(f"v_mov_b32 v{b+3}, v{b+2}"); e(f"v_permlane32_swap_b32 v{b+2}, v{b+3}"); e(f"v_add_f32 v{b+2}, v{b+2}, v{b+3}")
    if mid: mid()
    else: e("s_waitcnt lgkmcnt(0)"); e("s_barrier")
    for ks in range(3): e(f"ds_read_b128 {vr(QF+4*ks)}, v{vQBr} offset:{128*ks}")
    e(f"v_mov_b32 v{b+3}, v{b+2}"); e(f"v_mov_b32 v{b+1}, s{sT0}"); e(f"v_subrev_f32 v{b+1}, 0x44200000, v{b+1}")
    e(f"v_permlane16_swap_b32 v{b+2}, v{b+3}"); e(f"v_add_f32 v{b+2}, v{b+2}, v{b+3}")
    e(f"v_mul_f32 v{b}, 0x3acccccd, v{b+1}")
    e(f"v_readlane_b32 s{sT0}, v{b+2}, 15")
    e(f"v_mul_f32 v{b}, v{b}, v{b}"); e(f"s_mov_b32 s{sT1}, 0x3acccccd")
    e(f"v_sub_f32 v{b+2}, s{sT0}, v{b+1}")
    e(f"v_fma_f32 v{b+2}, v{b+2}, s{sT1}, -v{b}"); e(f"v_max_f32 v{b+2}, 0, v{b+2}"); e(f"v_add_f32 v{b+2}, 0x3727c5ac, v{b+2}")
    e(f"v_rsq_f32 v{b+2}, v{b+2}"); e(f"v_mul_f32 v{vSC}, 0x3dd53b94, v{b+2}")
def qk_softmax(fl=0):
    def fold(t): e(f"v_add_f32_dpp v{X+t//4}, v{DQ+4*t}, v{DQ+4*t+1} quad_perm:[0,1,2,3] row_mask:{1<<(t%4):#x} bank_mask:0xf")
    def mm(t, ks): e(f"v_smfmac_f32_16x16x64_bf16 {vr(DQ+4*t)}, {vr(QF+4*ks)}, {ar(24*t+8*ks, 8)}, v{vIdx}")
    for ks in range(3):
        e(f"s_waitcnt lgkmcnt({2-ks})")
        for t in range(8): mm(t, ks)
        if ks != 1: fill(fl)
    S = lambda t: X + t // 4 if t % 4 == 0 else DQ + 4 * t
    for t in range(8):
        e(f"v_add_f32 v{S(t)}, v{DQ+4*t}, v{DQ+4*t+1}")
        if t == 2: e(f"v_max3_f32 v{vM}, v{S(0)}, v{S(1)}, v{S(2)}")
        if t in (4, 6): e(f"v_max3_f32 v{vM}, v{vM}, v{S(t-1)}, v{S(t)}")
    e(f"v_max_f32 v{vM}, v{vM}, v{S(7)}")
    mv = [f"v_mov_b32_dpp v{X+t//4}, v{S(t)} quad_perm:[0,1,2,3] row_mask:{1<<(t%4):#x} bank_mask:0xf" for t in (1, 5, 2, 6, 3, 7)] + ["v_accvgpr_read_b32 v27, a252", "s_nop 0"]
    for sft in (8, 4, 2, 1):
        e(mv.pop(0)); e(mv.pop(0)); e(f"v_max_f32_dpp v{vM}, v{vM}, v{vM} row_ror:{sft} row_mask:0xf bank_mask:0xf")
    fill(fl)
    e(f"v_mul_f32 v{vM}, v{vM}, v{vSC}")
    for q in range(2): e(f"v_fma_f32 v{X+q}, v{X+q}, v{vSC}, -v{vM}")
    for q in range(2): e(f"v_exp_f32 v{X+q}, v{X+q}")
    e(f"v_cvt_pk_bf16_f32 v28, v{X}, v{X+1}")
    e(f"ds_write_b16 v{vPw}, v28"); e(f"ds_write_b16_d16_hi v{vPw}, v28 offset:128")
    setexec(0xFF00FF0000FF00FF)
    for u in range(4): e(f"ds_read_b128 {vr(PA+4*u)}, v27 offset:{64*u}")
    setexec(FULL)
    e(f"v_add_f32 v27, v{X}, v{X+1}")
    z = [f"v_mov_b32 v{F+4*dp}, 0" for dp in range(6)] + [f"s_lshl_b32 s{sT1}, s{sWV}, 3", f"s_add_u32 s{sT1}, s{sT1}, {ML4}"]
    for sft in (8, 4, 2, 1):
        e(z.pop(0)); e(z.pop(0)); e(f"v_add_f32_dpp v27, v27, v27 row_ror:{sft} row_mask:0xf bank_mask:0xf")
    xrow("add", 27, 28)
    e(f"v_mov_b32 v28, s{sT1}"); e(f"ds_write_b64 v28, v[26:27]")
def pv_step(u, order=range(6)):
    f, b = vblock(2 * u)
    for dp in order: e(f"v_smfmac_f32_16x16x64_bf16 {vr(F+4*dp)}, {vr(PA+4*u)}, {rg(f, b+8*dp, 8)}, v{vIdx} abid:1")
def pv_post():
    for q in range(3): e(f"v_permlane16_swap_b32 v{F+8*q}, v{F+8*q+4}"); e(f"v_add_f32 v{F+8*q}, v{F+8*q}, v{F+8*q+4}"); e(f"ds_write_b32 v{vAcc}, v{F+8*q} offset:{OACC+256*q}")

WT = [int(x) for x in OPT.get("wt", "0,3,3,0,6").split(",")]
assert sum(WT) == 12
sDo, sDm = 66, 67
TT = OPT.get("tt", "x").replace("x", "")
ROT = int(OPT.get("rot", 0)); nwd = [0]
def wdma(n, tag=None):
    if "wo" in SKIP: return
    for _ in range(n):
        if ROT and nwd[0] == 6:
            e(f"s_bitcmp1_b32 s{sJ}, 0"); e(f"s_cselect_b32 s{sT1}, 12288, 0"); e(f"s_sub_u32 s{sDm}, s{sDm}, s{sT1}"); e(f"s_mul_i32 s{sT1}, s{sT1}, 20"); e(f"s_sub_u32 s{sDo}, s{sDo}, s{sT1}")
        nwd[0] += 1
        e(f"s_mov_b32 m0, s{sDm}"); e(f"s_add_u32 s{sDm}, s{sDm}, 1024")
        A.vmem(f"buffer_load_dwordx4 v39, {sr(sRA)}, s{sDo} offen {NTR} lds", tag, counted=tag is not None)
        e(f"s_add_u32 s{sDo}, s{sDo}, {16*1280}")
def wdma_addr():
    e(f"v_lshrrev_b32 v38, 2, v{vL}"); e("v_mul_u32_u24 v38, 1280, v38"); e(f"v_and_b32 v39, 3, v{vL}"); e("v_lshl_add_u32 v39, v39, 4, v38")
def role_dma():
    if "dma" in SKIP: return
    e(f"s_cmp_ge_u32 s{sJ}, 20"); e("s_cbranch_scc1 DMAF")
    e(f"s_lshl_b32 s{sDo}, s{sWV}, 3"); e(f"s_add_u32 s{sDo}, s{sDo}, s{sG}"); e(f"s_mul_i32 s{sDo}, s{sDo}, {192*1280}"); e(f"s_lshl_b32 s{sT1}, s{sJ}, 6"); e(f"s_add_u32 s{sDo}, s{sDo}, s{sT1}")
    e(f"s_mul_i32 s{sDm}, s{sWV}, 12288"); e(f"s_add_u32 s{sDm}, s{sDm}, {WO}")
    if ROT: e(f"s_bitcmp1_b32 s{sJ}, 0"); e(f"s_cselect_b32 s{sT1}, 6144, 0"); e(f"s_add_u32 s{sDm}, s{sDm}, s{sT1}"); e(f"s_mul_i32 s{sT1}, s{sT1}, 20"); e(f"s_add_u32 s{sDo}, s{sDo}, s{sT1}")
    if TT:
        e(f"v_mul_u32_u24 v38, {191*1280}, v{vL}"); e(f"s_mul_i32 s{sT1}, s{sG}, {192*1280}"); setexec(3)
        if "o" in TT: e(f"buffer_load_dword a243, v38, {sr(sRA)}, s{sDo} offen")
        if "2" in TT: e(f"buffer_load_dword a243, v38, {sr(sRC)}, s{sT1} offen")
        setexec(FULL)
    if WT[0]: wdma_addr(); wdma(WT[0])
    lab("DMAX")
    def t():
        lab("DMAF")
        e(f"s_sub_u32 s{sT1}, s{sJ}, 20"); e(f"s_and_b32 s{sDo}, s{sT1}, 3"); e(f"s_lshl_b32 s{sDo}, s{sDo}, 1"); e(f"s_and_b32 s{sT2}, s{sWV}, 1"); e(f"s_add_u32 s{sDo}, s{sDo}, s{sT2}")
        e(f"s_mul_i32 s{sDo}, s{sDo}, {80*3072}"); e(f"s_lshr_b32 s{sT1}, s{sT1}, 2"); e(f"s_lshl_b32 s{sT1}, s{sT1}, 7"); e(f"s_add_u32 s{sDo}, s{sDo}, s{sT1}")
        e(f"s_mul_i32 s{sT1}, s{sG}, 384"); e(f"s_add_u32 s{sDo}, s{sDo}, s{sT1}")
        e(f"s_mul_i32 s{sDm}, s{sWV}, 10240"); e(f"s_add_u32 s{sDm}, s{sDm}, {W1}")
        if TT:
            e(f"v_mul_u32_u24 v38, {79*3072}, v{vL}"); e(f"s_lshl_b32 s{sT1}, s{sWV}, 3"); e(f"s_add_u32 s{sT1}, s{sT1}, s{sG}"); e(f"s_mul_i32 s{sT1}, s{sT1}, 24"); e(f"s_add_u32 s{sT1}, s{sT1}, s{sJ}")
            e(f"s_sub_u32 s{sT1}, s{sT1}, 8"); e(f"s_mul_i32 s{sT1}, s{sT1}, 10240"); setexec(3)
            if "f" in TT: e(f"buffer_load_dword a243, v38, {sr(sX)}, s{sDo} offen nt")
            setexec(1)
            if "o" in TT: e(f"buffer_load_dword a243, v38, {sr(sWQ)}, s{sT1} offen")
            setexec(FULL)
        if FT[0]: fdma_addr(); fdma(0, FT[0])
        e("s_branch DMAX")
    tail.append(t)
FT = [int(x) for x in OPT.get("ft", "0,0,0,3,7").split(",")]
assert sum(FT) == 10
def fdma_addr():
    e(f"v_lshrrev_b32 v38, 3, v{vL}"); e("v_mul_u32_u24 v38, 3072, v38"); e(f"v_and_b32 v39, 7, v{vL}"); e("v_lshl_add_u32 v38, v39, 4, v38")
    e(f"v_bfe_u32 v39, v{vL}, 4, 1"); e("v_lshlrev_b32 v39, 5, v39"); e("v_xor_b32 v38, v38, v39"); e("v_xor_b32 v39, 64, v38")
def fdma(n0, n, tag=None):
    for k in range(n0, n0 + n):
        e(f"s_mov_b32 m0, s{sDm}"); e(f"s_add_u32 s{sDm}, s{sDm}, 1024")
        A.vmem(f"buffer_load_dwordx4 v{38+(k&1)}, {sr(sX)}, s{sDo} offen {NTW} lds", tag, counted=tag is not None)
        e(f"s_add_u32 s{sDo}, s{sDo}, {8*3072}")
CSL = int(OPT.get("csl", 1))
def cs_store():
    e(f"s_add_u32 s{sT0}, s{sLG}, {2*LS}"); lstore(f"buffer_store_dword v{vCS}, v{vQst}, {sr(sW)}, s{sT0} offen")
def addr_block():
    e(f"v_mov_b32 v109, v{vC1}")
    e(f"v_and_b32 v25, 15, v{vL}"); e(f"v_lshrrev_b32 v26, 4, v{vL}"); e("v_add_u32 v27, 4, v26")
    rowbase(vC1, 26, oFG, oFL, None, 28); rowbase(vC2, 27, oFG, oFL, None, 28)
    e(f"s_min_u32 s{sT3}, s{sJ}, 19"); e(f"s_lshl_b32 s{sT3}, s{sT3}, 6"); e(f"v_lshl_add_u32 v25, v25, 2, s{sT3}")
    e(f"v_add_u32 v{vC1}, v{vC1}, v25"); e(f"v_add_u32 v{vC2}, v{vC2}, v25")
    fill()
    e(f"v_and_b32 v25, 15, v{vL}"); e(f"v_bfe_u32 v27, v{vL}, 2, 2"); e(f"v_and_b32 v28, 3, v{vL}")
    e(f"s_mul_i32 s{sT3}, s{sWV}, 12288"); e(f"s_add_u32 s{sT3}, s{sT3}, {WO}")
    e("v_lshl_add_u32 v29, v26, 3, v27"); e("v_lshlrev_b32 v29, 6, v29"); e("v_lshl_add_u32 v29, v28, 3, v29"); e(f"v_add_u32 v29, s{sT3}, v29"); e("v_accvgpr_write_b32 a246, v29")
    e(f"s_mul_i32 s{sT3}, s{sWV}, 3072"); e(f"s_add_u32 s{sT3}, s{sT3}, {oO}")
    e(f"v_lshl_add_u32 v29, v25, 4, s{sT3}"); e("v_lshl_add_u32 v29, v26, 7, v29"); e("v_accvgpr_write_b32 a247, v29")
    e(f"s_lshl_b32 s{sT3}, s{sWV}, 6"); e(f"s_add_u32 s{sT3}, s{sT3}, {oML}"); e("v_and_b32 v29, 1, v26"); e(f"v_lshl_add_u32 v29, v29, 5, s{sT3}"); e("v_accvgpr_write_b32 a248, v29")
    e(f"s_lshl_b32 s{sT3}, s{sWV}, 8"); e(f"s_add_u32 s{sT3}, s{sT3}, {ACC+YACC}"); e(f"v_lshl_add_u32 v29, v{vL}, 2, s{sT3}"); e("v_accvgpr_write_b32 a249, v29")
    e(f"s_lshl_b32 s{sYl}, s{sJ}, 6"); e(f"s_mul_i32 s{sYg}, s{sG}, 1280"); e(f"s_add_u32 s{sYg}, s{sYg}, s{sYl}"); e(f"s_add_u32 s{sYg}, s{sYg}, {oYG}")
    e(f"s_add_u32 s{sYl}, s{sYl}, s{sLG}"); e(f"s_add_u32 s{sYl}, s{sYl}, {oYL}")
A.wait("x")
for q in range(5): e(f"v_lshlrev_b32 v{88+2*q}, 16, v{80+q}"); e(f"v_and_b32 v{89+2*q}, 0xffff0000, v{80+q}")
e("v_add_f32 v80, v88, v89")
for q in range(2, 10): e(f"v_add_f32 v80, v80, v{88+q}")
rowred("add", 80, None, (8, 4, 2, 1)); xrow("add", 80, 81)
e("v_mul_f32 v80, 0x3acccccd, v80")
for q in range(10): e(f"v_sub_f32 v{88+q}, v{88+q}, v80")
e("v_mul_f32 v82, v88, v88")
for q in range(1, 10): e(f"v_fmac_f32 v82, v{88+q}, v{88+q}")
fill()
rowred("add", 82, None, (8, 4, 2, 1)); xrow("add", 82, 81)
e("v_mul_f32 v82, 0x3acccccd, v82"); e("v_add_f32 v82, 0x3727c5ac, v82"); e("v_rsq_f32 v82, v82")
e("s_mov_b32 vcc_lo, 0xaaaaaaaa"); e("s_mov_b32 vcc_hi, 0xaaaaaaaa"); e("v_mov_b32 v85, 0x3f803f80")
for q in range(10):
    e(f"v_lshlrev_b32 v83, 16, v{70+q}"); e(f"v_and_b32 v84, 0xffff0000, v{70+q}"); e("v_sub_f32 v83, v83, v80"); e("v_sub_f32 v84, v84, v80")
    e("v_mul_f32 v83, v83, v82"); e("v_mul_f32 v84, v84, v82"); e("v_cvt_pk_bf16_f32 v83, v83, v84"); e(f"v_cndmask_b32 v{70+q}, v83, v85, vcc")
    if q == 5: fill()
ahead("wq", int(OPT.get("lax", 6))); A.wait("wq"); e("s_barrier"); wq_frags()
tagl = "global_load_dword v98, v100, s[64:65] sc1"
e("v_mov_b32 v100, 0"); e(f"s_cmp_lg_u32 s{sWV}, 0"); e("s_cbranch_scc1 NOTL"); setexec(1); e(tagl); setexec(FULL); lab("NOTL")
fill(2)
stamp(1)
e(f"s_mul_i32 s{sT2}, s{sWV}, 96"); e(f"s_add_u32 s{sT2}, s{sT2}, {ACC}"); e(f"v_min_u32 v36, 48, v{vL}"); e(f"v_lshl_add_u32 v36, v36, 1, s{sT2}")
e(f"v_mov_b32 v37, {ACC+512}"); e(f"v_cmp_le_u32 vcc, 48, v{vL}"); e("v_cndmask_b32 v36, v36, v37, vcc"); e(f"v_add_u32 v37, {ACC}, v{vLin}")
e("s_waitcnt lgkmcnt(0)")
for kk in range(3):
    for t in range(3):
        n = 4 if kk < 2 else 2
        e(f"v_mfma_f32_16x16x{32 if kk<2 else 16}_bf16 {vr(T+4*t)}, {vr(70+4*kk,n)}, {vr(F+10*t+4*kk,n)}, " + ("0" if kk == 0 else vr(T + 4 * t)))
fill()
e(f"v_mov_b32 v{vCS}, v{T+1}")
for t in (1, 2):
    e(f"v_mov_b32_dpp v{T}, v{T+4*t} quad_perm:[0,1,2,3] row_mask:{1<<t:#x} bank_mask:0xf"); e(f"v_mov_b32_dpp v{vCS}, v{T+4*t+1} quad_perm:[0,1,2,3] row_mask:{1<<t:#x} bank_mask:0xf")
e(f"v_cvt_pk_bf16_f32 v{T}, v{T}, v{T}"); e(f"ds_write_b16 v36, v{T}")
fill(2)
e("s_waitcnt lgkmcnt(0)"); e("s_barrier")
e(f"ds_read_b128 v[28:31], v37"); e(f"s_lshl_b32 s{sT2}, s{sJ}, 9"); e(f"s_add_u32 s{sT2}, s{sT2}, s{sLG}")
e(f"s_cmp_eq_u32 s{sWV}, 0"); e(f"s_cselect_b32 exec_lo, 0xffffff, 1"); e("s_mov_b32 exec_hi, 0"); e(f"s_cselect_b32 s{sT1}, 0, {OOB-0x10000000}"); e(f"v_add_u32 v37, s{sT1}, v{vLin}")
e("s_waitcnt lgkmcnt(0)")
if "qst" not in SKIP: A.vmem(f"buffer_store_dwordx4 v[28:31], v37, {sr(sW)}, s{sT2} offen sc1", "qst")
setexec(FULL)
for q in range(4): e(f"v_mov_b32 v{32+q}, -1")
if RY0:
    e(f"s_lshr_b32 s{sT1}, s{sJ}, 2"); e(f"s_or_b32 s{sT1}, s{sT1}, s{sWV}"); e("s_cbranch_scc1 NOYC")
    for q in range(2): e(f"buffer_store_dwordx4 v[32:35], v{vLin}, {sr(sW)}, s{sClr} offen offset:{1024*q} sc1")
    lab("NOYC")
if "clr" not in SKIP: A.vmem(f"buffer_store_dwordx4 v[32:35], v{vC2}, {sr(sW)}, 0 offen sc1", "qst")
Krel(0)
ahead("qst", int(OPT.get("laq", 9)))
e(f"s_getreg_b32 s{sXcc}, hwreg(HW_REG_XCC_ID, 0, 4)")
e(f"s_cmp_lg_u32 s{sWV}, 0"); e("s_cbranch_scc1 NOHDR")
save = list(A.vm); A.wait("qst"); A.vm = save
e("v_readfirstlane_b32 s96, v98"); e("s_cmp_eq_u32 s96, 0"); e("s_cbranch_scc1 TAGLOOP"); lab("TAGOK")
def t_():
    lab("TAGLOOP"); e(f"s_mov_b32 s{sCnt}, 0"); lab("TAGL2"); e("s_sleep 8"); e(tagl); e("s_waitcnt vmcnt(0)"); e("v_readfirstlane_b32 s96, v98"); e("s_cmp_lg_u32 s96, 0"); e("s_cbranch_scc1 TAGOK")
    e(f"s_add_u32 s{sCnt}, s{sCnt}, 1"); e(f"s_cmp_lt_u32 s{sCnt}, {LIMIT}"); e("s_cbranch_scc1 TAGL2"); e("s_branch TAGOK")
tail.append(t_)
e(f"v_mov_b32 v99, s{sXcc}"); setexec(1); e(f"buffer_store_dwordx2 v[98:99], v{vLin}, {sr(sW)}, s{sT2} offen offset:384 sc1"); setexec(FULL)
lab("NOHDR")
stamp(1, "s100")
Krel(1); Krel(2)
RT = int(OPT.get("rt", 8))
DT = int(OPT.get("dt", 7))
rdy = [f"buffer_load_dwordx2 v[98:99], v100, {sr(sW)}, 0 offen offset:384 sc1"]
e(f"v_lshlrev_b32 v100, 9, v{vL}"); e(f"v_add_u32 v100, s{sLG}, v100"); e(f"v_bfe_u32 v96, v{vL}, 2, 3"); e(f"v_mul_u32_u24 v96, {GB}, v96"); e(f"v_and_b32 v97, 3, v{vL}"); e("v_lshl_add_u32 v96, v97, 9, v96")
e(f"v_cmp_le_u32 vcc, 32, v{vL}"); e("v_cndmask_b32 v100, v100, v96, vcc"); e(f"s_cmp_eq_u32 s{sWV}, 0"); e(f"s_cselect_b32 s{sT0}, 0, {OOB-0x10000000}"); e(f"v_add_u32 v100, s{sT0}, v100")
def ld(t): Kld(t) if t < 8 else Vld(t - 8)
def rel(t): Krel(t) if t < 8 else Vrel(t - 8)
for t in range(5, RT + 2):
    ld(t)
    if t == DT: stamp(12); role_dma()
    if t == RT: A.vmem(rdy[0], "rdy"); stamp(2, "s100")
    if t == 7: addr_block()
    rel(t - 2)
ahead("rdy"); A.wait("rdy"); e(f"s_mov_b32 s{sCnt}, -1"); e(f"v_mov_b32 v97, {FLG}")
e(f"s_cmp_lg_u32 s{sWV}, 0"); e("s_cbranch_scc1 RDYX")
e("v_cmp_ne_u32 vcc, s96, v98"); e("s_cbranch_vccnz RDYLOOP"); lab("RDYOK")
e(f"v_cmp_ne_u32 vcc, s{sXcc}, v99"); e("s_nop 1"); e(f"v_mov_b32 v96, vcc_lo"); e("ds_write_b32 v97, v96")
lab("RDYX")
stamp(13, f"s{sCnt}")
def t_():
    lab("RDYLOOP")
    if SPM == "rdy": e("v_accvgpr_read_b32 v96, a253"); e("v_add_u32 v96, 2000, v96"); e("v_accvgpr_write_b32 a253, v96")
    e(f"s_mov_b32 s{sCnt}, 0"); lab("RDYL2"); e("s_sleep 8"); e(rdy[0]); e("s_waitcnt vmcnt(0)"); e("v_cmp_ne_u32 vcc, s96, v98"); e("s_cbranch_vccz RDYOK")
    e(f"s_add_u32 s{sCnt}, s{sCnt}, 1"); e(f"s_cmp_lt_u32 s{sCnt}, {LIMIT}"); e("s_cbranch_scc1 RDYL2"); e("s_branch RDYOK")
tail.append(t_)
fill(2)
e("s_waitcnt lgkmcnt(0)"); e("s_barrier"); e("ds_read_b32 v96, v97"); e("s_waitcnt lgkmcnt(0)"); e(f"v_readfirstlane_b32 s{sT0}, v96")
e(f"s_cmp_eq_u32 s{sT0}, 0"); e(f"s_cselect_b32 s{sWp+2}, s{sW+2}, 0")
assert not any(t[0] == "K" for _, t in pend) and DT <= RT + 1
if FORCESLOW: e(f"s_mov_b32 s{sWp+2}, 0")
for d_ in (sWp,): e(f"s_mov_b32 s{d_}, s{sW}"); e(f"s_mov_b32 s{d_+1}, s{sW+1}"); e(f"s_mov_b32 s{d_+3}, 0x20000")
stamp(2)
if "pre" not in SKIP:
    A.vmem(f"buffer_load_dwordx4 a[240:243], v109, {sr(sW)}, 0 offen sc1", "pre")
e(f"s_mul_i32 s{sT0}, s{sJ}, 464"); e(f"s_add_u32 s{sT0}, s{sT0}, s{sLG}"); e(f"s_add_u32 s{sT0}, s{sT0}, {oBB}"); e(f"s_cmp_eq_u32 s{sWV}, 3"); e(f"s_cselect_b32 s{sT0}, s{sT0}, {OOB-0x10000000}")
e(f"v_add_u32 v106, s{sT0}, v{vLin}"); e(f"v_mov_b32 v107, {OOB}"); e(f"v_cmp_le_u32 vcc, 29, v{vL}"); e("v_cndmask_b32 v106, v106, v107, vcc")
if "pre" not in SKIP: A.vmem(f"buffer_load_dwordx4 a[240:243], v106, {sr(sW)}, 0 offen sc1", "pre")
e(f"s_lshl_b32 s{sT0}, s{sJ}, 2"); e(f"s_add_u32 s{sT0}, s{sT0}, s{sWV}"); e(f"s_lshl_b32 s{sT1}, s{sT0}, 8"); e(f"s_add_u32 s{sT1}, s{sT1}, {LS}"); e(f"s_lshl_b32 s{sT0}, s{sT0}, 9"); e(f"s_sub_u32 s{sT0}, s{sT0}, 256")
e(f"v_lshlrev_b32 v24, 7, v{vL}"); e(f"v_add_u32 v25, s{sT0}, v24"); e(f"v_min_u32 v25, {oGX+CSO-128}, v25"); e(f"v_add_u32 v24, s{sT1}, v24"); e(f"v_cmp_gt_u32 vcc, 2, v{vL}"); e("v_cndmask_b32 v24, v25, v24, vcc")
e(f"s_add_u32 s{sT0}, s{sLG}, {LS}"); setexec(63); A.vmem(f"buffer_load_dword a243, v24, {sr(sW)}, s{sT0} offen sc1", "pre"); setexec(FULL)
e(f"s_lshl_b32 s{sT0}, s{sHH}, 12"); e(f"s_mul_i32 s{sT1}, s{sWV}, 96"); e(f"s_add_u32 s{sT0}, s{sT0}, s{sT1}"); e(f"s_add_u32 s{sT0}, s{sT0}, s{sLG}")
e(f"v_lshrrev_b32 v24, 4, v{vL}"); e("v_lshlrev_b32 v24, 9, v24"); e(f"v_and_b32 v25, 15, v{vL}"); e("v_min_u32 v25, 11, v25"); e("v_lshl_add_u32 v24, v25, 3, v24")
for q in range(2):
    if "qg" not in SKIP: A.vmem(f"buffer_load_dwordx2 v[{64+2*q}:{65+2*q}], v24, {sr(sW)}, s{sT0} offen offset:{2048*q} sc1", "qg")
def pack_store16(d, instr_fn):
    for q in (1, 2, 3): e(f"v_mov_b32_dpp v{d+q}, v{d} quad_perm:[{q},{q},{q},{q}] row_mask:0xf bank_mask:0xf")
    setexec(0x1111); instr_fn(); setexec(FULL)
if "b0" in SKIP: e("s_branch NOBASE0")
e(f"s_cmp_lg_u32 s{sWV}, 1"); e("s_cbranch_scc1 NOBASE0"); e(f"s_cmp_ge_u32 s{sJ}, 20"); e("s_cbranch_scc1 NOBASE0")
e(f"v_mov_b32 v28, v{vXR}"); e(f"s_lshl_b32 s{sT0}, s{sJ}, 6"); e(f"s_add_u32 s{sT0}, s{sT0}, s{sLG}"); e(f"s_add_u32 s{sT0}, s{sT0}, {oBA}"); e(f"v_lshlrev_b32 v27, 2, v{vL}")
pack_store16(28, lambda: lstore(f"buffer_store_dwordx4 v[28:31], v27, {sr(sW)}, s{sT0} offen"))
lab("NOBASE0")
stamp(3)
for t in range(RT, RT + 3): rel(t)
ahead("qg"); A.wait("qg")
for q in range(4): e(f"v_lshlrev_b32 v{T+2*q}, 16, v{64+q}"); e(f"v_and_b32 v{T+2*q+1}, 0xffff0000, v{64+q}")
qsum(T)
e(f"v_cvt_pk_bf16_f32 v{T}, v{T}, v{T}"); e(f"ds_write_b16 v{vQBw}, v{T}")
fill(); att_zero()
stamp(4)
fill(2); e("s_waitcnt lgkmcnt(0)"); e("s_barrier")
for ks in range(3): e(f"ds_read_b128 {vr(QF+4*ks)}, v{vQBr} offset:{128*ks}")
e(f"v_mov_b32 v{vSC}, 0x3dd53b94")
qk_softmax(fl=1)
stamp(5)
for t in range(RT + 3, 12): rel(t)
fill(2)
e("s_waitcnt lgkmcnt(0)"); pv_step(0); fill(); pv_step(1)
Vrel(4)
assert sum(1 for _, t in pend if t == "V7") == 6
for q in range(4): e(f"v_mov_b32 v{24+q}, -1")
if "gxc" not in SKIP: lstore(f"buffer_store_dwordx4 v[24:27], v106, {sr(sW)}, 0 offen"); A.vm.append("gxc")
hold.clear(); Vld(7); Vrel(5)
e(f"v_and_b32 v{vXR+1}, 0xffff0000, v{vXR}"); e(f"v_lshlrev_b32 v{vXR}, 16, v{vXR}")
PT_ = [int(x) for x in OPT.get("pt", "7,3").split(",")]
PTF = int(OPT.get("ptf", 1))
def late_pf(w, k0, n):
    if "wo" in SKIP: return
    for k in range(k0, k0 + n):
        if k % 4 == 0 and k: e(f"s_add_u32 s{sPo}, s{sPo}, 4096")
        A.vmem(f"buffer_load_dwordx4 a[240:243], v{vLin}, {sr(sWQ)}, s{sPo} offen offset:{1024*(k%4)} {NTP}", "pfo")
for m_, r_ in ((0x0101010101010101, 82), (ROWS9, 84), ((1 << 45) - 1, 86), ((1 << 23) - 1, 50), (0xFF00FF0000FF00FF, 88), (0x01010101, 92), (0x0F0F0F0F0F0F0F0F if REPL else 0x01010101 + (1 << 63), 44)):
    e(f"s_mov_b32 s{r_}, {m_ & 0xffffffff:#x}"); e(f"s_mov_b32 s{r_+1}, {m_ >> 32:#x}"); MASKS[m_] = r_
if not REPL: e("s_mov_b32 s45, 0")
e(f"s_mov_b64 s[46:47], s[{'44:45' if RY0 else '92:93'}]"); e("s_mov_b64 s[48:49], s[44:45]")
FGE = int(OPT.get("fge", 1))
def rep_addr(d, t):
    e(f"v_and_b32 v{d}, 3, v{vL}"); e(f"v_lshrrev_b32 v{t}, 5, v{vL}"); e(f"v_lshl_add_u32 v{d}, v{t}, 2, v{d}"); e(f"v_mul_u32_u24 v{d}, 10240, v{d}")
    e(f"v_bfe_u32 v{t}, v{vL}, 3, 2"); e(f"v_lshl_add_u32 v{d}, v{t}, 4, v{d}")
def stream_tail(w):
    save = list(A.vm)
    pf = sum(PT_) and not (PTF and w)
    if pf and not PTF:
        e(f"s_lshl_b32 s{sPo}, s{sHH}, 3"); e(f"s_add_u32 s{sPo}, s{sPo}, s{sG}"); e(f"s_lshl_b32 s{sPo}, s{sPo}, 3"); e(f"s_add_u32 s{sPo}, s{sPo}, s{sS}")
        e(f"s_lshl_b32 s{sPo}, s{sPo}, 2"); e(f"s_add_u32 s{sPo}, s{sPo}, s{sWV}"); e(f"s_mul_i32 s{sPo}, s{sPo}, 7680")
    if pf and PTF:
        e(f"s_lshl_b32 s{sPo}, s{sWV}, 3"); e(f"s_add_u32 s{sPo}, s{sPo}, s{sG}"); e(f"s_mul_i32 s{sPo}, s{sPo}, 24"); e(f"s_add_u32 s{sPo}, s{sPo}, s{sJ}")
        e(f"s_sub_u32 s{sPo}, s{sPo}, 8"); e(f"s_mul_i32 s{sPo}, s{sPo}, 10240")
    if pf: late_pf(w, 0, PT_[0])
    if w and FGE and "fgc" not in SKIP:
        for q in range(4): e(f"v_mov_b32 v{24+q}, -1")
        rep_addr(28, 29); e(f"s_cmp_eq_u32 s{sWV}, 3"); e(f"s_cselect_b32 s{sT0}, 0, {OOB-0x10000000}"); e(f"v_add_u32 v28, s{sT0}, v28"); e(f"s_add_u32 s{sT0}, s{sYg}, {oFG-oYG}")
        e("s_mov_b64 exec, s[44:45]"); A.vmem(f"buffer_store_dwordx4 v[24:27], v28, {sr(sW)}, s{sT0} offen sc1", "fgc"); setexec(FULL)
    if w: wdma_addr(); wdma(WT[1], "wo")
    else: fdma_addr(); fdma(FT[0], FT[1], "f")
    e("s_waitcnt lgkmcnt(0)"); pv_step(2)
    Vrel(6)
    if pf: late_pf(w, PT_[0], PT_[1])
    if w: wdma(WT[2], "wo")
    if not w: fdma(sum(FT[:2]), FT[2], "f")
    x = len(A.vm) - 1 - max(i for i, t in enumerate(A.vm) if t == "V7")
    f_, b_ = vblock(8)
    for i in range(6):
        e(f"s_waitcnt vmcnt({5-i+x})"); e(f"ds_write_b128 v{vWr+i%3}, {rg(f_, b_+4*i, 4)} offset:{(i//3)*8*RS}")
    f_, b_ = vblock(6)
    for dt in range(12): e(f"ds_read_b64_tr_b16 {rg(f_, b_+4*dt+2, 2)}, v{vVrd} offset:{32*dt}")
    if w: wdma(WT[3], "wo")
    if not w: fdma(sum(FT[:3]), FT[3], "f")
    e("s_branch ATT_LAST")
    A.vm = save
e(f"s_cmp_ge_u32 s{sJ}, 20"); e("s_cbranch_scc1 TAILF")
stream_tail(True)
lab("TAILF")
stream_tail(False)
A.drained()
flush_near()

lab("LOOP")
if JIT: jitter(JIT, 40)
def cs_pull():
    e(f"s_add_u32 s{sT0}, s{sLG}, {2*LS}"); e(f"s_add_u32 s{sT1}, s{sT0}, 4096")
    for so in (sT0, sT1): e(f"buffer_load_dwordx4 a[240:243], v{vQld}, {sr(sW)}, s{so} offen sc1")
def loop_prep():
    wq_frags()
    e(f"v_and_b32 v25, 15, v{vL}"); e("v_cmp_eq_u32 vcc, 12, v25"); e("v_mov_b32 v36, 0x3f803f80"); e(f"v_cndmask_b32 v70, 0, v36, vcc")
    for q in range(1, 10): e(f"v_mov_b32 v{70+q}, v70")
    e(f"s_mul_i32 s{sT0}, s{sWV}, {SCRW}" if "l" not in SHB else f"s_mov_b32 s{sT0}, 4096")
    e(f"v_mul_u32_u24 v96, 103, v{vL}"); e("v_lshrrev_b32 v96, 10, v96"); e(f"v_lshl_add_u32 v96, v96, 4, v{vLin}"); e(f"v_add_u32 v96, s{sT0}, v96")
    e(f"v_mul_u32_u24 v97, 176, v25"); e(f"v_add_u32 v97, s{sT0}, v97"); e(f"v_lshrrev_b32 v28, 4, v{vL}"); e("v_lshl_add_u32 v98, v28, 3, v97"); e("v_lshl_add_u32 v97, v28, 4, v97")
e(f"s_cmp_lt_u32 s{sJ}, 20"); e(f"s_cselect_b32 s{sXcc}, s{sWV}, 4")
e(f"s_add_u32 s96, s{sLG}, {LS}"); e("s_add_u32 s97, s96, 4096")
e(f"s_and_b32 s{sT0}, s{sXcc}, 3"); e("s_cbranch_scc1 LOOP2")
loop_prep()
lab("LOOP2")
e(f"s_add_u32 s{sT2}, s{sLG}, 4096")
e(f"s_mul_i32 s{sT0}, s{sS}, 160"); e(f"s_add_u32 s{sT0}, s{sT0}, s{sLG}"); e(f"s_sub_u32 s{sT0}, s{sT0}, {LS-oFL}")
gate(sT0, 10, 24)
setexec((1 << (23 if "l" in SHB else 60)) - 1)
def sbounce(load, reg, write, reads, first=None, w1=0):
    k = nid()
    e(load)
    if first: first()
    e(f"s_waitcnt vmcnt({w1})")
    lab(f"BW{k}")
    e(write); e(f"v_cmp_eq_u32 vcc, -1, v{reg}"); e(f"s_cbranch_vccnz BR{k}")
    lab(f"BX{k}")
    setexec(ROWS9); e("s_waitcnt lgkmcnt(0)"); e("s_barrier")
    for x in reads: e(x)
    setexec(FULL)
    def t():
        lab(f"BR{k}")
        e(f"s_cmp_ge_u32 s{sCnt}, {LIMIT}"); e(f"s_cbranch_scc1 BX{k}")
        e("s_mov_b64 exec, vcc"); e(load); e(f"s_add_u32 s{sCnt}, s{sCnt}, 1"); e("s_waitcnt vmcnt(0)"); e(f"s_branch BW{k}")
    near.append(t)
def bounce(groups, tmp, writes, reads, first=None, w1=0):
    k = nid(); allr = [r for g in groups for r in g[1]]
    for g in groups:
        for l in g[0]: e(l)
    if first: first()
    e(f"s_waitcnt vmcnt({w1})")
    lab(f"BW{k}")
    for x in writes: e(x)
    check(allr, tmp)
    setexec(ROWS9)
    for x in reads: e(x)
    setexec(FULL)
    e(f"s_cbranch_vccnz BR{k}")
    lab(f"BX{k}")
    def t():
        lab(f"BR{k}")
        e(f"s_cmp_ge_u32 s{sCnt}, {LIMIT}"); e(f"s_cbranch_scc1 BX{k}")
        lab(f"BL{k}")
        for gi, (ls, rs) in enumerate(groups):
            setexec((1 << 60) - 1); check(rs, tmp); e("s_mov_b64 exec, vcc"); e(f"s_cbranch_execz BS{k}_{gi}")
            for l in ls: e(l)
            lab(f"BS{k}_{gi}")
        setexec((1 << 60) - 1)
        e(f"s_add_u32 s{sCnt}, s{sCnt}, 1"); e(f"s_cmp_ge_u32 s{sCnt}, {LIMIT}")
        e("s_waitcnt vmcnt(0)")
        check(allr, tmp)
        e(f"s_cbranch_vccz BW{k}"); e(f"s_cbranch_scc0 BL{k}"); e(f"s_branch BW{k}")
    near.append(t)
assert GATE
if "l" in SHB: sbounce(f"buffer_load_dwordx4 v[80:83], v{vAq}, {sr(sW)}, 0 offen sc1", 80, f"ds_write_b128 v{vAq16}, v[80:83]",
       ["ds_read_b128 v[70:73], v97", "ds_read_b128 v[74:77], v97 offset:64", "ds_read_b64 v[78:79], v98 offset:128"],
       first=lambda: (setexec(FULL), [e(l) for l in qloads(88, "s96", "s97")], setexec((1 << 23) - 1)), w1=2)
else: bounce([([f"buffer_load_dwordx4 v[80:83], v{vAq}, {sr(sW)}, 0 offen sc1"], [80]), ([f"buffer_load_dwordx4 v[84:87], v{vAq16}, {sr(sW)}, 0 offen sc1"], [84])], 24,
       ["ds_write_b128 v96, v[80:83]", f"ds_write_b128 v96, v[84:87] offset:{6*176}"],
       ["ds_read_b128 v[70:73], v97", "ds_read_b128 v[74:77], v97 offset:64", "ds_read_b64 v[78:79], v98 offset:128"],
       first=lambda: [e(l) for l in qloads(88, "s96", "s97")], w1=2)
stamp(1)
e(f"s_cmp_lg_u32 s{sXcc}, 1"); e("s_cbranch_scc1 NOOWL")
e(f"buffer_load_dword a244, v{vC1}, {sr(sW)}, 0 offen sc1"); e(f"buffer_load_dword a245, v{vC2}, {sr(sW)}, 0 offen sc1")
lab("NOOWL")
qstage(70, f"s{sLG}", waits=True)
stamp(2)
att_zero()
e(f"s_waitcnt vmcnt({2 if STAMP == 1 else 1})"); qsum(88); e(f"v_mul_f32 v{vCS}, 0x3acccccd, v88")
for _ in range(int(OPT.get("qd", 0))): e("s_nop 7")
poll_nan(qloads(T, f"s{sLG}", f"s{sT2}"), lambda: qsum(T), T)
stamp(3)
q_finish(T)
stamp(4)
qk_softmax()
stamp(5)
for u in range(3):
    e(f"s_waitcnt lgkmcnt({4-u})"); pv_step(u)
e("s_waitcnt lgkmcnt(0)")
lab("ATT_LAST")
for dp in range(6):
    if dp % 2 == 0: e(f"s_waitcnt lgkmcnt({8-2*dp})")
    pv_step(3, [dp])
def pack8(v):
    e(f"v_mov_b32_dpp v{v+1}, v{v} row_shl:1 row_mask:0xf bank_mask:0xf"); e(f"v_cvt_pk_bf16_f32 v{v}, v{v}, v{v+1}")
    for q in (1, 2, 3): e(f"v_mov_b32_dpp v{v+q}, v{v} row_shl:{2*q} row_mask:0xf bank_mask:0xf")
def pack8q(v):
    e(f"v_mov_b32_dpp v{v+1}, v{v} row_shl:1 row_mask:0xf bank_mask:0xf"); e(f"v_cvt_pk_bf16_f32 v{v+4}, v{v}, v{v+1}")
    e(f"v_mov_b32_dpp v{v}, v{v+4} quad_perm:[0,0,0,0] row_mask:0xf bank_mask:0xf"); e(f"v_mov_b32_dpp v{v+1}, v{v+4} quad_perm:[2,2,2,2] row_mask:0xf bank_mask:0xf")
    e(f"v_mov_b32_dpp v{v+2}, v{v} row_shl:4 row_mask:0xf bank_mask:0xf"); e(f"v_mov_b32_dpp v{v+3}, v{v+1} row_shl:4 row_mask:0xf bank_mask:0xf")
e(f"s_lshl_b32 s{sT0}, s{sWV}, 8"); e(f"s_add_u32 s{sT0}, s{sT0}, {ACC+OACC}"); e(f"v_lshl_add_u32 v24, v{vL}, 2, s{sT0}")
pv_post()
e(f"v_and_b32 v25, 3, v{vL}"); e(f"v_lshlrev_b32 v25, 3, v25"); e(f"v_add_u32 v25, {ML4}, v25")
e("s_waitcnt lgkmcnt(0)"); e("s_barrier")
stamp(6)
e("ds_read_b64 v[32:33], v25"); e("ds_read2st64_b32 v[40:41], v24 offset0:0 offset1:3"); e("ds_read2st64_b32 v[42:43], v24 offset0:6 offset1:9")
e(f"s_mul_i32 s{sT0}, s{sHH}, 3072"); e(f"s_lshl_b32 s{sT1}, s{sS}, 4"); e(f"s_add_u32 s{sT0}, s{sT0}, s{sT1}"); e(f"s_lshl_b32 s{sT1}, s{sWV}, 10"); e(f"s_add_u32 s{sT0}, s{sT0}, s{sT1}")
e(f"s_add_u32 s{sT0}, s{sT0}, s{sLG}"); e(f"s_add_u32 s{sT0}, s{sT0}, {oO}")
e(f"s_lshl_b32 s{sT1}, s{sJ}, 3"); e(f"s_add_u32 s{sT1}, s{sT1}, s{sLG}"); e(f"s_add_u32 s{sT1}, s{sT1}, {oML}"); e(f"s_cmp_eq_u32 s{sWV}, 3")
e("s_waitcnt lgkmcnt(2)")
e("v_max_f32_dpp v34, v32, v32 quad_perm:[1,0,3,2] row_mask:0xf bank_mask:0xf"); e("v_max_f32_dpp v34, v34, v34 quad_perm:[2,3,0,1] row_mask:0xf bank_mask:0xf")
e("v_sub_f32 v32, v32, v34"); e("v_exp_f32 v32, v32")
e("s_cbranch_scc1 OML"); e("s_waitcnt lgkmcnt(0)")
e("v_mul_f32_dpp v28, v32, v40 quad_perm:[0,0,0,0] row_mask:0xf bank_mask:0xf"); e("v_mul_f32_dpp v29, v32, v41 quad_perm:[1,1,1,1] row_mask:0xf bank_mask:0xf")
e("v_mul_f32_dpp v30, v32, v42 quad_perm:[2,2,2,2] row_mask:0xf bank_mask:0xf"); e("v_fmac_f32_dpp v28, v32, v43 quad_perm:[3,3,3,3] row_mask:0xf bank_mask:0xf")
e("v_add_f32 v29, v29, v30"); e("v_add_f32 v28, v28, v29")
pack8(28)
setexec(0x0101010101010101)
lstore(f"buffer_store_dwordx4 v[28:31], v{vLin}, {sr(sW)}, s{sT0} offen")
setexec(FULL)
def t_():
    lab("OML")
    e("v_mul_f32 v35, v32, v33")
    e("v_add_f32_dpp v35, v35, v35 quad_perm:[1,0,3,2] row_mask:0xf bank_mask:0xf"); e("v_add_f32_dpp v35, v35, v35 quad_perm:[2,3,0,1] row_mask:0xf bank_mask:0xf")
    setexec(1); lstore(f"buffer_store_dwordx2 v[34:35], v{vLin}, {sr(sW)}, s{sT1} offen"); setexec(FULL)
    e("s_waitcnt lgkmcnt(0)"); e("s_branch ODONE")
near.append(t_)
lab("ODONE")
if STAMP == 3 and "land" in SKIP:
    e(f"s_cmp_ge_u32 s{sJ}, 20"); e("s_cbranch_scc1 LND"); wdma_addr(); wdma(WT[4]); lab("LND"); e("s_waitcnt vmcnt(0)")
stamp(7)
if STAMP == 3: e("s_endpgm")
e(f"s_cmp_ge_u32 s{sJ}, 20"); e("s_cbranch_scc1 ROLEF")
def owner_add():
    e("v_lshlrev_b32 v30, 16, v28"); e("v_and_b32 v28, 0xffff0000, v28"); e("v_lshlrev_b32 v31, 16, v29"); e("v_and_b32 v29, 0xffff0000, v29")
    e("v_add_f32 v30, v30, v31"); e("v_add_f32 v28, v28, v29")
    e("v_mov_b32 v31, v30"); e("v_mov_b32 v29, v28"); e("v_permlane32_swap_b32 v30, v31"); e("v_permlane32_swap_b32 v28, v29"); e("v_add_f32 v30, v30, v31"); e("v_add_f32 v28, v28, v29")
    e("v_mov_b32 v31, v30"); e("v_mov_b32 v29, v28"); e("v_permlane16_swap_b32 v30, v31"); e("v_permlane16_swap_b32 v28, v29"); e("v_add_f32 v30, v30, v31"); e("v_add_f32 v28, v28, v29")
    e(f"v_add_f32 v{vXR}, v{vXR}, v30"); e(f"v_add_f32 v{vXR+1}, v{vXR+1}, v28")
    e(f"v_cvt_pk_bf16_f32 v28, v{vXR}, v{vXR+1}")
def own_loads(a0, a1, soff): return [f"buffer_load_dword v28, v{a0}, {sr(sW)}, {soff} offen sc1", f"buffer_load_dword v29, v{a1}, {sr(sW)}, {soff} offen sc1"]
def base_store(ob):
    e(f"s_lshl_b32 s{sT0}, s{sJ}, 6"); e(f"s_add_u32 s{sT0}, s{sT0}, s{sLG}"); e(f"s_add_u32 s{sT0}, s{sT0}, {ob}"); e(f"v_lshlrev_b32 v32, 2, v{vL}")
    pack_store16(28, lambda: lstore(f"buffer_store_dwordx4 v[28:31], v32, {sr(sW)}, s{sT0} offen"))
e(f"s_cmp_eq_u32 s{sLay}, 0"); e("s_cbranch_scc1 WLATE")
def t_():
    lab("WLATE")
    if JIT: jitter(JIT, 40)
    if WT[4]: wdma_addr(); wdma(WT[4])
    if "cs" not in SKIP: cs_store()
    assert FGE
    for q in range(3): e(f"v_accvgpr_read_b32 v{2+q}, a{246+q}")
    for r_ in [SPARE + 4 * kk for kk in range(6)] + [25, 27, 37, 39]: e(f"v_mov_b32 v{r_}, 0")
    for x in fl0: e(x)
    e("s_waitcnt vmcnt(8)")
    for x in trs[:TRN]: e(x)
    e(f"s_lshl_b32 s{sT0}, s{sG}, 2"); e(f"s_add_u32 s{sT0}, s{sT0}, s{sWV}"); e(f"s_mul_i32 s{sT0}, s{sT0}, {48*1280}"); e(f"s_lshl_b32 s{sT1}, s{sJ}, 6"); e(f"s_add_u32 s{sT0}, s{sT0}, s{sT1}")
    e(f"v_min_u32 v35, 47, v{vL}"); e("v_mul_u32_u24 v35, 1280, v35"); e(f"v_add_u32 v35, s{sT0}, v35")
    wfirst(); e("s_branch WCHK")
near.append(t_)
for q in range(3): e(f"v_accvgpr_read_b32 v{2+q}, a{246+q}")
for kk in range(6): e(f"v_mov_b32 v{SPARE+4*kk}, 0")
TRN = int(OPT.get("trn", 10))
trs = [f"ds_read_b64_tr_b16 {vr(F+24*t+4*kk+2*h,2)}, v2 offset:{(32*kk+4*h)*64+32*t}" for kk in range(6) for t in range(2) for h in range(2)]
for x in trs[:TRN]: e(x)
def own0():
    e(f"s_cmp_lg_u32 s{sWV}, 1"); e("s_cbranch_scc1 NOOWN0")
    e("v_accvgpr_read_b32 v28, a244"); e("v_accvgpr_read_b32 v29, a245")
    late_check("none", own_loads(vC1, vC2, "0"), [28, 29], 30)
    owner_add()
    if OWP != 2: base_store(oBA)
    lab("NOOWN0")
OWP = int(OPT.get("owp", 0))
if not OWP: own0()
MLR = [24, 36]
for _ in range(int(OPT.get("od", 0))): e("s_nop 7")
for q in (25, 27, 37, 39): e(f"v_mov_b32 v{q}, 0")
def wfirst():
    for x in trs[TRN:]: e(x)
    e("v_accvgpr_read_b32 v5, a249"); rep_addr(18, 6); e("v_and_b32 v6, 0xffffff7f, v5")
ol = [f"buffer_load_dwordx4 {vr(SPARE+4*kk)}, v3, {sr(sW)}, s{sLG} offen offset:{512*kk} sc1" for kk in range(6)]
ml = [f"buffer_load_dwordx4 {vr(MLR[q])}, v4, {sr(sW)}, s{sLG} offen offset:{16*q} sc1" for q in range(2)]
fl0 = ["s_mov_b32 exec_lo, 0x00ff00ff", "s_mov_b32 exec_hi, 0x00ff00ff"] + ol + ["s_mov_b32 exec_lo, -1", "s_mov_b32 exec_hi, 0"] + ml + ["s_mov_b64 exec, -1"]
poll_sel([(ol, [SPARE + 4 * kk for kk in range(6)]), (ml, [25, 27, 37, 39])], 28, pid=7, first=lambda: (wfirst(), own0() if OWP else None), firstloads=fl0, wl="WCHK")
e("s_waitcnt lgkmcnt(0)")
stamp(8)
W2T = int(OPT.get("w2t", 0))
if W2T:
    e(f"s_cmp_lg_u32 s{sLay}, 0"); e("s_cbranch_scc1 NOW2T"); e(f"buffer_load_dword a243, v35, {sr(sRC)}, 0 offen"); lab("NOW2T")
M_, U_, L_ = SPARE, SPARE + 1, SPARE + 2
mm_ = [24, 26, 36, 38]
co = [[], [f"v_max3_f32 v{M_}, v24, v26, v36", f"v_max_f32 v{M_}, v{M_}, v38"], [f"v_mov_b32 v{U_}, v{M_}"], [f"v_permlane16_swap_b32 v{M_}, v{U_}", f"v_max_f32 v{M_}, v{M_}, v{U_}"],
      [f"v_sub_f32 v24, v24, v{M_}", f"v_sub_f32 v26, v26, v{M_}"], [f"v_sub_f32 v36, v36, v{M_}", f"v_sub_f32 v38, v38, v{M_}"],
      ["v_exp_f32 v24, v24"], ["v_exp_f32 v26, v26"], ["v_exp_f32 v36, v36"], ["v_exp_f32 v38, v38"],
      [f"v_mul_f32 v{L_}, v24, v25", f"v_fmac_f32 v{L_}, v26, v27"], [f"v_fmac_f32 v{L_}, v36, v37", f"v_fmac_f32 v{L_}, v38, v39"]]
for kk in range(6):
    for t in range(2):
        c = "0" if kk == 0 else vr(28 + 4 * t)
        e(f"v_mfma_f32_16x16x32_bf16 {vr(28+4*t)}, {vr(SPARE+4*kk)}, {vr(F+24*t+4*kk)}, {c}")
        for x in co.pop(0): e(x)
e(f"v_mov_b32 v{U_}, v{L_}"); e(f"s_cmp_lg_u32 s{sWV}, 0"); e(f"v_permlane16_swap_b32 v{L_}, v{U_}"); e(f"v_add_f32 v{L_}, v{L_}, v{U_}"); e(f"v_rcp_f32 v{L_}, v{L_}")
for t in range(2): e(f"v_mul_f32 v{28+4*t}, v24, v{28+4*t}")
for q in range(1, 4):
    for t in range(2): e(f"v_fmac_f32 v{28+4*t}, v{mm_[q]}, v{28+4*t+q}")
e("v_permlane16_swap_b32 v28, v32"); e("v_add_f32 v28, v28, v32"); e(f"v_mul_f32 v28, v28, v{L_}")
e(f"ds_write_b32 v5, v28")
e("s_waitcnt lgkmcnt(0)"); e("s_barrier")
e("s_cbranch_scc1 WNOT0")
assert (ACC + YACC) % 256 == 0
e("ds_read2st64_b32 v[28:29], v6 offset0:0 offset1:1"); e("ds_read2st64_b32 v[30:31], v6 offset0:2 offset1:3")
e("s_waitcnt lgkmcnt(1)"); e("v_add_f32 v28, v28, v29"); e("s_waitcnt lgkmcnt(0)"); e("v_add_f32 v30, v30, v31"); e("v_add_f32 v28, v28, v30")
pack8q(28)
e("s_mov_b64 exec, s[46:47]")
e(f"buffer_store_dwordx4 v[28:31], v18, {sr(sW)}, s{sYg} offen sc1")
setexec(0x01010101)
lstore(f"buffer_store_dwordx4 v[28:31], v18, {sr(sW)}, s{sYl} offen")
setexec(FULL)
stamp(9); stamp(9, "c")
e(f"v_add_u32 v{SPARE+23}, {W2-WO}, v2")
trs2 = [x.replace(", v2 offset", f", v{SPARE+23} offset") for x in trs]
e(f"s_cmp_lg_u32 s{sLay}, 0"); e("s_cbranch_scc1 W2OK")
wdma_addr(); e(f"s_mul_i32 s{sT0}, s{sG}, {192*1280}"); e(f"s_lshl_b32 s{sT1}, s{sJ}, 6"); e(f"s_add_u32 s{sT0}, s{sT0}, s{sT1}")
for n in range(12 if "w2" not in SKIP else 0):
    e(f"s_mov_b32 m0, {W2+1024*n}"); e(f"buffer_load_dwordx4 v39, {sr(sRC)}, s{sT0} offen lds"); e(f"s_add_u32 s{sT0}, s{sT0}, {16*1280}")
e("s_branch W2X")
lab("W2OK")
for x in trs2: e(x)
lab("W2X")
HD = SPARE + 12
for q in (0, 1, 4, 5): e(f"v_mov_b32 v{HD+q}, 0")
e(f"s_add_u32 s96, s{sYg}, {oFG-oYG}"); e(f"s_add_u32 s97, s{sYl}, {oFL-oYL}")
lab("STB")
stamp(4, "d")
e(f"s_mul_i32 s{sT0}, s{sWV}, 48"); e(f"v_min_u32 v6, 47, v{vL}"); e(f"v_add_u32 v6, s{sT0}, v6"); e("v_lshlrev_b32 v4, 4, v6"); e(f"v_add_u32 v{SPARE+20}, {CSO}, v4"); e("v_lshlrev_b32 v4, 2, v6")
e(f"v_cmp_le_u32 vcc, 48, v{vL}"); e("v_mov_b32 v24, 768"); e("v_cndmask_b32 v4, v4, v24, vcc"); e("v_add_u32 v5, 3584, v4")
e("v_lshrrev_b32 v24, 4, v6"); e("v_lshlrev_b32 v24, 5, v24"); e("v_bfe_u32 v25, v6, 1, 1"); e("v_lshl_add_u32 v24, v25, 4, v24"); e("v_bfe_u32 v25, v6, 2, 2"); e("v_lshl_add_u32 v24, v25, 2, v24")
e("v_and_b32 v25, 1, v6"); e("v_lshl_add_u32 v24, v25, 1, v24"); e(f"v_add_u32 v24, {QB}, v24"); e(f"v_mov_b32 v25, {QB+384}"); e("v_cndmask_b32 v6, v24, v25, vcc")
e(f"v_mov_b32 v{SPARE+21}, 0x3727c5ac"); e(f"v_mov_b32 v{SPARE+22}, 0x3acccccd"); e(f"s_add_u32 s{sT2}, s{sLG}, {oGX}")
e("v_accvgpr_read_b32 v2, a250"); e("v_accvgpr_read_b32 v3, a251"); e(f"s_add_u32 s{sTL}, s{sLay}, s{sWV}")
def sum4(b): e(f"v_add_f32 v{b}, v{b}, v{b+1}"); e(f"v_add_f32 v{b+2}, v{b+2}, v{b+3}"); e(f"v_add_f32 v{b}, v{b}, v{b+2}")
gl = [f"buffer_load_dword v{T+4*k+q}, v{4+k}, {sr(sW)}, s{sT2} offen offset:{896*q} sc1" for q in range(4) for k in range(2)]
def gsum():
    e(f"v_add_f32 v{T}, v{T}, v{T+1}"); e(f"v_add_f32 v{T+4}, v{T+4}, v{T+5}"); e(f"v_add_f32 v{T+2}, v{T+2}, v{T+3}"); e(f"v_add_f32 v{T+6}, v{T+6}, v{T+7}")
    e(f"v_add_f32 v{T+4}, v{T+4}, v{T+6}"); e(f"v_add_f32 v{T}, v{T}, v{T+2}")
e(f"s_mov_b32 s{sCnt}, 1"); e(f"s_cmp_eq_u32 s{sLay}, 0"); e("s_cbranch_scc1 GPF")
lab("GPO")
stamp(5, "d")
e(f"s_cmp_eq_u32 s{sWV}, 1"); e("s_cbranch_scc1 WOWN")
lab("GP1")
for l in gl: e(l)
e("s_waitcnt vmcnt(0)"); gsum(); e(f"v_cmp_u_f32 vcc, v{T}, v{T+4}"); e("s_cbranch_vccnz GA1")
lab("GPX")
def t_():
    lab("GA1"); e(f"s_add_u32 s{sCnt}, s{sCnt}, 1"); e(f"s_cmp_lt_u32 s{sCnt}, {LIMIT}"); e("s_cbranch_scc1 GP1"); e("s_branch GPX")
    cl = [f"buffer_load_dwordx4 {vr(T+8)}, v{SPARE+20}, {sr(sW)}, s{sT2} offen sc1", f"buffer_load_dwordx4 {vr(T+12)}, v{SPARE+20}, {sr(sW)}, s{sT2} offen offset:3072 sc1"]
    lab("GPF")
    e(f"s_cmp_lg_u32 s{sWV}, 0"); e("s_cbranch_scc1 GP0")
    for l in cl: e(l)
    e("s_waitcnt vmcnt(2)")
    for x in trs2: e(x)
    e("s_branch GPW")
    lab("GP0")
    for l in cl: e(l)
    lab("GPW")
    e(f"s_add_u32 s{sCnt}, s{sCnt}, 1"); e(f"s_cmp_ge_u32 s{sCnt}, {LIMIT}"); e("s_waitcnt vmcnt(0)")
    e(f"v_add_f32 v2, v{T+8}, v{T+9}"); e(f"v_add_f32 v3, v{T+12}, v{T+13}"); e(f"v_add_f32 v{T+10}, v{T+10}, v{T+11}"); e(f"v_add_f32 v{T+14}, v{T+14}, v{T+15}")
    e(f"v_add_f32 v2, v2, v{T+10}"); e(f"v_add_f32 v3, v3, v{T+14}"); e("v_cmp_u_f32 vcc, v2, v3"); e("s_cbranch_scc1 GPO")
    e("s_cbranch_vccnz GP0"); e("s_branch GPO")
near.append(t_)
stamp(10)
EPS, INV = SPARE + 21, SPARE + 22
e(f"v_readlane_b32 s{sT0}, v{T+4}, 48"); e(f"v_readlane_b32 s{sT1}, v{T}, 48"); e(f"s_cmp_lg_u32 s{sTL}, 1"); e("s_cbranch_scc0 OWL"); lab("OWB")
def t_():
    lab("OWL"); e(f"buffer_load_dword v34, v37, {sr(sW)}, 0 offen sc1"); e(f"buffer_load_dword v35, v38, {sr(sW)}, 0 offen sc1"); e("s_branch OWB")
near.append(t_)
e(f"v_mul_f32 v{T+1}, s{sT0}, v{INV}"); e(f"v_fma_f32 v{T+2}, s{sT1}, v{INV}, v{EPS}")
e(f"v_fma_f32 v{T+2}, -v{T+1}, v{T+1}, v{T+2}"); e(f"v_add_f32 v{T+1}, 1.0, v{T+1}"); e(f"v_max_f32 v{T+2}, v{T+2}, v{EPS}")
e(f"v_fma_f32 v{T}, -v{T+1}, v2, v{T}"); e(f"v_rsq_f32 v{T+3}, v{T+2}"); e(f"v_mul_f32 v{T+5}, 0xbfb8aa3b, v{T}"); e(f"v_mul_f32 v{T+5}, v{T+5}, v{T+3}"); e(f"v_exp_f32 v{T+5}, v{T+5}")
e(f"v_fma_f32 v{T+4}, -v{T+1}, v3, v{T+4}"); e(f"v_fma_f32 v{T+5}, v{T+5}, v{T+2}, v{T+2}"); e(f"v_rcp_f32 v{T+5}, v{T+5}"); e(f"v_mul_f32 v{T+4}, v{T+4}, v{T}")
e(f"v_mul_f32 v{T+4}, v{T+4}, v{T+5}"); e(f"v_cvt_pk_bf16_f32 v{T+4}, v{T+4}, v{T+4}"); e(f"ds_write_b16 v6, v{T+4}")
e("v_accvgpr_write_b32 a250, v2"); e("v_accvgpr_write_b32 a251, v3"); e(f"s_cmp_lg_u32 s{sWV}, 0")
e("s_waitcnt lgkmcnt(0)"); e("s_barrier")
e("s_cbranch_scc1 STBX")
for ks in range(3): e(f"ds_read_b128 {vr(SPARE+4*ks)}, v{vQBr} offset:{128*ks}")
for ks in range(3):
    e(f"s_waitcnt lgkmcnt({2-ks})")
    for t in range(2): e(f"v_smfmac_f32_16x16x64_bf16 {vr(HD+4*t)}, {vr(SPARE+4*ks)}, {vr(F+24*t+8*ks, 8)}, v{vIdx}")
e(f"v_add_f32 v28, v{HD}, v{HD+1}"); e(f"v_add_f32_dpp v28, v{HD+4}, v{HD+5} quad_perm:[0,1,2,3] row_mask:0xa bank_mask:0xf")
pack8q(28)
e("s_mov_b64 exec, s[48:49]")
e(f"buffer_store_dwordx4 v[28:31], v18, {sr(sW)}, s96 offen sc1")
setexec(0x01010101)
lstore(f"buffer_store_dwordx4 v[28:31], v18, {sr(sW)}, s97 offen")
setexec(FULL)
stamp(11)
e("s_branch NEXT")
flush_near()
lab("WNOT0")
if JIT: jitter(JIT, 40)
e(f"s_cmp_lg_u32 s{sLay}, 0"); e("s_cbranch_scc1 STB"); e(f"s_cmp_eq_u32 s{sWV}, 1"); e("s_cbranch_scc1 WPREP"); e(f"s_cmp_eq_u32 s{sWV}, 3"); e("s_cbranch_scc1 WLC")
for q in range(4): e(f"v_mov_b32 v{F+12+q}, -1")
e(f"s_add_u32 s{sT0}, s{sYg}, {LS}"); e(f"s_add_u32 s{sT3}, s{sT0}, {oFG-oYG}")
if int(OPT.get("gcd", 8)): e(f"s_sleep {OPT.get('gcd', 8)}")
e("s_mov_b64 exec, s[44:45]"); e(f"buffer_store_dwordx4 {vr(F+12)}, v18, {sr(sW)}, s{sT0} offen sc1")
setexec(0x01010101); e(f"buffer_store_dwordx4 {vr(F+12)}, v18, {sr(sW)}, s{sT3} offen sc1")
setexec(FULL)
e("s_branch WPREP")
lab("WLC")
LCW = int(OPT.get("lcw", 1))
if LCW:
    lo_ = oO if LCW == 1 else 0; ng = (oGX + CSO - lo_) // 16; per = -(-ng // 20); ni = -(-per // 64)
    e(f"s_mul_i32 s{sT0}, s{sJ}, {per*16}"); e(f"s_add_u32 s{sT1}, s{sLG}, {LS+lo_}")
    for q in range(ni): e(f"v_add_u32 v{100+q}, s{sT0}, v{vLin}"); e(f"v_min_u32 v{100+q}, {ng*16-16}, v{100+q}"); e(f"s_add_u32 s{sT0}, s{sT0}, 1024")
    for q in range(4): e(f"v_mov_b32 v{104+q}, -1")
    loop_prep()
    if JIT: jitter(JIT, 60)
    for q in range(ni): lstore(f"buffer_store_dwordx4 v[104:107], v{100+q}, {sr(sW)}, s{sT1} offen")
    e("s_branch STB")
lab("WPREP")
e("s_nop 1"); loop_prep()
e("s_branch STB")
lab("WOWN")
e(f"v_and_b32 v25, 15, v{vL}"); e(f"v_lshrrev_b32 v26, 4, v{vL}")
rowbase(37, 26, oYG, oYL, None, 38); e("v_add_u32 v39, 4, v26"); rowbase(38, 39, oYG, oYL, None, 28)
e(f"s_lshl_b32 s{sT0}, s{sJ}, 6"); e(f"s_add_u32 s{sT0}, s{sT0}, s{sLay}"); e(f"v_lshl_add_u32 v25, v25, 2, s{sT0}")
e("v_add_u32 v37, v25, v37"); e("v_add_u32 v38, v25, v38")
e(f"s_cmp_eq_u32 s{sLay}, 0"); e("s_cbranch_scc1 GP1")
if not int(OPT.get("oall", 1)): e(f"s_cmp_lg_u32 s{sG}, 0"); e("s_cbranch_scc1 GP1")
e(f"s_sleep {max(ODLY-3, 1)}")
poll(own_loads(37, 38, "0"), [28, 29], 30, slp=int(OPT.get("osp", 2)))
owner_add()
e("s_branch GP1")
lab("STBX")
e(f"s_cmp_lg_u32 s{sWV}, 1"); e("s_cbranch_scc1 NEXT"); e(f"s_cmp_lg_u32 s{sLay}, 0"); e("s_cbranch_scc1 FINAL")
e("s_waitcnt vmcnt(0)"); e("v_mov_b32 v28, v34"); e("v_mov_b32 v29, v35")
late_check("none", own_loads(37, 38, "0"), [28, 29], 30)
owner_add()
base_store(oBB)
stamp(6, "d")
e("s_branch NEXT")
lab("FINAL")
e(f"s_cmp_lg_u32 s{sG}, 0"); e("s_cbranch_scc1 DONE")
e(f"s_lshl_b32 s{sT0}, s{sJ}, 6"); e(f"v_lshlrev_b32 v37, 2, v{vL}")
e(f"s_add_u32 s{sT2}, s{sT0}, s{sLG}"); e(f"s_add_u32 s{sT2}, s{sT2}, {oFL}")
if int(OPT.get("otouch", 0)): setexec(0xffff); e(f"buffer_load_dword v29, v37, {sr(sO)}, s{sT0} offen")
gate(sT2, 4, 28); setexec(FULL)
poll(own_loads(vC1, vC2, f"s{sLay}"), [28, 29], 30)
owner_add()
setexec(0xffff)
e(f"buffer_store_dword v28, v37, {sr(sO)}, s{sT0} offen {OPT.get('ost', '').replace('+', ' ')}")
setexec(FULL)
stamp(12); stamp(12, "c")
e("s_branch DONE") if SPIN else e("s_endpgm")
flush_near()
lab("ROLEF")
e(f"v_and_b32 v25, 15, v{vL}"); e(f"v_lshrrev_b32 v26, 4, v{vL}"); e(f"v_bfe_u32 v27, v{vL}, 2, 2"); e(f"v_and_b32 v36, 3, v{vL}")
FA = SPARE
e(f"s_cmp_lg_u32 s{sLay}, 0"); e("s_cbranch_scc1 FW")
WG_ = int(OPT.get("fg", -1))
if WG_ >= 0:
    e(f"v_lshlrev_b32 v37, 3, v{vL}"); e(f"s_add_u32 s{sT0}, s{sLG}, {oML}"); e(f"s_mov_b32 s{sCnt}, 0"); e("s_mov_b32 exec_lo, -1"); e("s_mov_b32 exec_hi, 0")
    lab("W2G"); e(f"buffer_load_dword v38, v37, {sr(sW)}, s{sT0} offen sc1"); e(f"s_add_u32 s{sCnt}, s{sCnt}, 1"); e("s_waitcnt vmcnt(0)")
    e("v_cmp_eq_u32 vcc, -1, v38"); e(f"s_bcnt1_i32_b64 s{sT1}, vcc"); e(f"s_cmp_ge_u32 s{sCnt}, 64"); e("s_cbranch_scc1 W2GX"); e(f"s_cmp_gt_u32 s{sT1}, {WG_}"); e("s_cbranch_scc1 W2G")
    lab("W2GX"); setexec(FULL)
if FT[4]: fdma_addr(); fdma(sum(FT[:4]), FT[4])
e(f"s_sub_u32 s96, s{sJ}, 20"); e("s_lshl_b32 s96, s96, 2"); e(f"s_add_u32 s96, s96, s{sWV}")
if int(OPT.get("w2pf", 0)):
    e(f"s_mul_i32 s97, s{sG}, 48"); e("s_add_u32 s97, s97, s96"); e("s_mul_i32 s97, s97, 5120")
    for n in range(5):
        if n == 4: e("s_add_u32 s97, s97, 4096")
        e(f"buffer_load_dwordx4 a[240:243], v{vLin}, {sr(sRC)}, s97 offen offset:{1024*(n%4)}")
assert LCW == 1 and 128 * 4 * 128 >= oGX + CSO
if LCW:
    e(f"s_mul_i32 s96, s96, {43*16}"); e(f"v_add_u32 v21, s96, v{vLin}"); e(f"v_min_u32 v21, {32768-16}, v21"); e(f"s_add_u32 s97, s{sLG}, {LS+oQ}")
else:
    e(f"s_mul_i32 s96, s96, {74*16}"); e(f"s_add_u32 s97, s{sLG}, {LS}"); e("s_add_u32 s97, s97, s96")
    e(f"buffer_load_dwordx4 a[240:243], v{vLin}, {sr(sW)}, s97 offen sc1"); setexec(0x3ff); e(f"buffer_load_dwordx4 a[240:243], v{vLin}, {sr(sW)}, s97 offen offset:1024 sc1"); setexec(FULL)
cs_store()
lab("FW")
e(f"s_lshl_b32 s{sT0}, s{sWV}, 5"); e(f"v_lshl_add_u32 v80, v36, 3, s{sT0}"); e("v_lshrrev_b32 v37, 1, v27"); e("v_and_b32 v38, 1, v26"); e("v_lshl_add_u32 v37, v38, 1, v37"); e("v_lshlrev_b32 v37, 5, v37")
e("v_xor_b32 v80, v80, v37"); e("v_lshl_add_u32 v37, v26, 3, v27"); e("v_lshl_add_u32 v80, v37, 7, v80"); e(f"v_add_u32 v80, {W1}, v80")
e(f"s_sub_u32 s{sT2}, s{sJ}, 20"); e(f"s_and_b32 s{sT3}, s{sT2}, 12"); e(f"s_add_u32 s{sT3}, s{sT3}, s{sWV}"); e(f"s_lshl_b32 s{sT1}, s{sT3}, 8")
e(f"v_lshl_add_u32 v83, v25, 4, s{sT1}"); e("v_lshrrev_b32 v84, 2, v83"); e("v_mov_b32 v37, 768"); e("v_cmp_le_u32 vcc, 2, v26"); e("v_cndmask_b32 v84, v84, v37, vcc")
e("v_and_b32 v37, 1, v26"); e("v_mul_u32_u24 v37, 3584, v37"); e("v_add_u32 v84, v84, v37")
e(f"s_cmp_eq_u32 s{sT3}, 0"); e("s_mov_b32 s52, -1"); e("s_cselect_b32 s53, 0x10001, 0")
e(f"s_and_b32 s{sT2}, s{sT2}, 3"); e(f"s_mul_i32 s{sT1}, s{sT2}, 892"); e(f"s_sub_u32 s{sT1}, {CSO}, s{sT1}"); e(f"v_add_u32 v83, s{sT1}, v83")
e(f"s_mul_i32 s{sT1}, s{sT2}, 896"); e(f"s_add_u32 s{sT1}, s{sT1}, s{sLG}"); e(f"s_add_u32 s{sT1}, s{sT1}, {oGX}"); e(f"s_mul_i32 s{sT2}, s{sT2}, 320")
e("v_cmp_eq_u32 vcc, 12, v25")
e("v_mov_b32 v38, 0x3f803f80"); e(f"v_cndmask_b32 v{FA}, 0, v38, vcc")
for q in range(1, 20): e(f"v_mov_b32 v{FA+q}, v{FA}")
FG = [86, 18, 20]
if "f" in SHB:
    e(f"v_mul_u32_u24 v6, 336, v25"); e("v_lshl_add_u32 v6, v26, 4, v6")
    e(f"s_mul_i32 s{sT0}, s{sWV}, 45"); e(f"v_min_u32 v27, 44, v{vL}"); e(f"v_add_u32 v27, s{sT0}, v27"); e("v_mul_u32_u24 v37, 205, v27"); e("v_lshrrev_b32 v37, 12, v37")
    e("v_add_u32 v87, v37, v27"); e("v_lshlrev_b32 v87, 4, v87"); e("v_mul_u32_u24 v38, 20, v37"); e("v_sub_u32 v27, v27, v38"); e("v_lshlrev_b32 v27, 4, v27")
    assert all((c * 205) >> 12 == c // 20 for c in range(180))
    rowbase(86, 37, oYG, oYL, oBA, 38); e("v_add_u32 v86, v86, v27")
else:
    e(f"s_mul_i32 s{sT0}, s{sWV}, {SCRW}")
    e(f"v_mul_u32_u24 v6, 336, v25"); e("v_lshl_add_u32 v6, v26, 4, v6"); e(f"v_add_u32 v6, s{sT0}, v6")
    e(f"v_mul_u32_u24 v37, 52, v{vL}"); e("v_lshrrev_b32 v37, 10, v37")
    e(f"v_lshl_add_u32 v87, v37, 4, v{vLin}"); e(f"v_add_u32 v87, s{sT0}, v87")
    e(f"v_mul_u32_u24 v27, 320, v37"); e(f"v_sub_u32 v27, v{vLin}, v27")
    for i in range(3):
        rowbase(FG[i], 37, oYG, oYL, oBA, 38); e(f"v_add_u32 v{FG[i]}, v{FG[i]}, v27")
        if i < 2: e("v_add_u32 v37, 3, v37")
e(f"s_add_u32 s{sT0}, s{sT2}, s{sLay}"); e(f"s_add_u32 s{sT2}, s{sT2}, s{sLG}"); e(f"s_add_u32 s{sT2}, s{sT2}, {oYL}")
e(f"s_cmp_lg_u32 s{sLay}, 0"); e("s_cbranch_scc1 FW1")
for q in range(4): e(f"v_mov_b32 v{T+q}, -1")
e("s_waitcnt vmcnt(0)")
if JIT: jitter(JIT, 40)
if LCW: lstore(f"buffer_store_dwordx4 {vr(T)}, v21, {sr(sW)}, s97 offen")
else: lstore(f"buffer_store_dwordx4 {vr(T)}, v{vLin}, {sr(sW)}, s97 offen"); setexec(0x3ff); lstore(f"buffer_store_dwordx4 {vr(T)}, v{vLin}, {sr(sW)}, s97 offen offset:1024"); setexec(FULL)
e("s_barrier"); stamp(13)
lab("FW1")
for t in range(2):
    for kk in range(5):
        for h in range(2): e(f"ds_read_b64_tr_b16 {vr(F+20*t+4*kk+2*h,2)}, v80 offset:{(32*kk+4*h)*128+20480*t}")
CD = [108, 2]
e(f"s_cmp_lg_u32 s{sLay}, 0"); e("s_cbranch_scc1 FW3")
e("s_waitcnt lgkmcnt(0)")
for kk in range(5):
    for t in range(2): e(f"v_mfma_f32_16x16x32_bf16 {vr(CD[t])}, {vr(FA+4*kk)}, {vr(F+20*t+4*kk)}, " + ("0" if kk == 0 else vr(CD[t])))
lab("FW3")
def cs_pub():
    e(f"s_cmp_eq_u32 s{sLay}, 0"); e("s_cbranch_scc1 CSP"); e("s_waitcnt vmcnt(0)"); lab("CSB")
    def t():
        lab("CSP"); setexec(0xFFFF << 48)
        lstore(f"buffer_store_dword v{CD[0]}, v83, {sr(sW)}, s{sT1} offen"); lstore(f"buffer_store_dword v{CD[1]}, v83, {sr(sW)}, s{sT1} offen offset:3072")
        setexec((1 << (45 if "f" in SHB else 60)) - 1); e("s_branch CSB")
    near.append(t)
gate(sT2, 20, 36)
setexec((1 << (45 if "f" in SHB else 60)) - 1)
if "f" in SHB: sbounce(f"buffer_load_dwordx4 {vr(T)}, v86, {sr(sW)}, s{sT0} offen sc1", T, f"ds_write_b128 v87, {vr(T)}", [f"ds_read_b128 {vr(FA+4*kk)}, v6 offset:{64*kk}" for kk in range(5)], first=cs_pub, w1=2)
else: bounce([([f"buffer_load_dwordx4 {vr(T+4*i)}, v{FG[i]}, {sr(sW)}, s{sT0} offen sc1"], [T + 4 * i]) for i in range(3)], 36,
       [f"ds_write_b128 v87, {vr(T+4*i)} offset:{3*336*i}" for i in range(3)], [f"ds_read_b128 {vr(FA+4*kk)}, v6 offset:{64*kk}" for kk in range(5)], first=cs_pub, w1=2)
stamp(8)
G_, R2, R3 = T + 12, T + 13, T + 14
for kk in range(5):
    e(f"s_waitcnt lgkmcnt({4-kk})")
    e(f"v_mfma_f32_16x16x32_bf16 {vr(T+8)}, {vr(FA+4*kk)}, {vr(FA+4*kk)}, " + ("0" if kk == 0 else vr(T + 8)))
dp = lambda dst, sft, rm: f"v_add_f32_dpp v{dst}, v{G_}, v{G_} row_ror:{sft} row_mask:{rm:#x} bank_mask:0xf"
sh = [[f"v_mov_b32 v{G_}, 0", f"v_mov_b32 v{R2}, 0"], [f"v_mov_b32 v{R3}, 0", "s_nop 0"], [],
      [f"v_add_f32 v{T+8}, v{T+8}, v{T+9}", f"v_add_f32 v{T+10}, v{T+10}, v{T+11}"], [],
      [f"v_add_f32_dpp v{G_}, v{T+8}, v{T+10} quad_perm:[0,1,2,3] row_mask:0xf bank_mask:0x7"], ["s_nop 0", dp(G_, 8, 15)], ["s_nop 0", dp(G_, 4, 15)],
      ["s_nop 0", dp(G_, 2, 15)], []]
for t in range(2):
    for kk in range(5):
        e(f"v_mfma_f32_16x16x32_bf16 {vr(T+4*t)}, {vr(FA+4*kk)}, {vr(F+20*t+4*kk)}, " + ("0" if kk == 0 else vr(T + 4 * t)))
        for x in sh.pop(0): e(x)
e(f"v_add_f32 v{T+1}, v{T}, v{T+1}"); e(dp(R2, 1, 7)); e(dp(R3, 1, 8)); e(f"v_add_f32 v{T+2}, v{T+2}, v{T+3}"); e(f"v_add_f32 v{T+1}, v{T+1}, v{T+2}")
e(f"v_permlane32_swap_b32 v{T+1}, v{R2}")
e(f"v_add_f32 v{T+5}, v{T+4}, v{T+5}"); e(f"v_add_f32 v{T+6}, v{T+6}, v{T+7}"); e(f"v_add_f32 v{T+5}, v{T+5}, v{T+6}"); e(f"v_add_f32 v{T+1}, v{T+1}, v{R2}")
e(f"v_permlane32_swap_b32 v{T+5}, v{R3}"); e(f"v_add_f32 v{T+5}, v{T+5}, v{R3}")
e(f"v_permlane16_swap_b32 v{T+1}, v{T+5}"); e("s_mov_b64 exec, s[52:53]"); e(f"v_add_f32 v{T+1}, v{T+1}, v{T+5}")
lstore(f"buffer_store_dword v{T+1}, v84, {sr(sW)}, s{sT1} offen"); setexec(FULL)
stamp(9)
lab("NEXT")
e(f"s_cmp_lg_u32 s{sLay}, 0"); e("s_cbranch_scc1 DONE")
e(f"s_mov_b32 s{sLay}, {LS}"); e(f"s_add_u32 s{sLG}, s{sLG}, {LS}"); e(f"s_add_u32 s{sYg}, s{sYg}, {LS}"); e(f"s_add_u32 s{sYl}, s{sYl}, {LS}")
e("s_mov_b64 s[46:47], s[44:45]"); e("s_mov_b64 s[48:49], s[92:93]")
e("s_branch LOOP")
flush_near()
lab("DONE")
if SPIN:
    e("v_accvgpr_read_b32 v38, a253"); e("s_nop 1"); e("v_readfirstlane_b32 s96, v38")
    if SPM == "min":
        e("v_not_b32 v38, v38"); e("v_mov_b32 v39, 192"); e("s_mov_b64 exec, 1"); e("global_atomic_umax v39, v38, s[64:65] sc1"); e("s_waitcnt vmcnt(0)")
        lab("SPW"); e("s_sleep 20"); e("s_memrealtime s[98:99]"); e("s_waitcnt lgkmcnt(0)"); e("s_sub_u32 s98, s98, s96"); e(f"s_cmp_lt_u32 s98, {SPIN*100-1500}"); e("s_cbranch_scc1 SPW")
        e("global_load_dword v38, v39, s[64:65] sc1"); e("s_waitcnt vmcnt(0)"); e("v_not_b32 v38, v38"); e("s_nop 1"); e("v_readfirstlane_b32 s96, v38")
    lab("SPINL"); e("s_memrealtime s[98:99]"); e("s_waitcnt lgkmcnt(0)"); e("s_sub_u32 s98, s98, s96"); e(f"s_cmp_lt_u32 s98, {SPIN*100}"); e("s_cbranch_scc1 SPINL")
e("s_endpgm")
i = 0
while i < len(tail): tail[i](); flush_near(); i += 1
lab("CODE_END")
e("s_endpgm")

body = A.pad()
hdr = [f"; @launch grid=(256,1,1) block=(256,1,1) lds={LDSSZ}", '.amdgcn_target "amdgcn-amd-amdhsa--gfx950"', ".text",
       f".globl {NAME}_kernel", ".p2align 8", f".type {NAME}_kernel,@function", f"{NAME}_kernel:"]
ftr = ['.section .rodata,"a"', ".p2align 6", f".amdhsa_kernel {NAME}_kernel", "  .amdhsa_next_free_vgpr 512", "  .amdhsa_next_free_sgpr 102",
       "  .amdhsa_accum_offset 256", "  .amdhsa_group_segment_fixed_size 0", "  .amdhsa_kernarg_size 96", "  .amdhsa_user_sgpr_count 2",
       "  .amdhsa_user_sgpr_kernarg_segment_ptr 1", "  .amdhsa_system_sgpr_workgroup_id_x 1", ".end_amdhsa_kernel"]
src = "\n".join(hdr + body + ftr) + "\n"
import re
for m in re.finditer(r"buffer_\S+ .*offset:(\d+)", src): assert int(m.group(1)) < 4096, m.group(0)
for m in re.finditer(r"ds_\S+ .*offset:(\d+)", src): assert int(m.group(1)) < 65536, m.group(0)
open(OUT, "w").write(src)
```

```python
import os, sys
sys.path.insert(0, os.path.dirname(os.path.abspath(__file__)))
from asmlib import Asm
NAME = "interleave_layers__sliding_block_cached__glu_gated_swiglu__decode"
OPT = dict(a.split("=") for a in sys.argv[2:])
OUT = sys.argv[1] if len(sys.argv) > 1 else f"/code/{NAME}.s"
STAMP = int(OPT.get("stamp", 0))
NT = OPT.get("nt", "nt").replace("x", "")
NTW = OPT.get("ntw", "nt").replace("x", "")
SKIP = OPT.get("skip", "").split(",")
RY0 = int(OPT.get("ry0", 0))
FORCESLOW = int(OPT.get("slow", 0))
SPIN = int(OPT.get("spin", 0))
A = Asm(); e = A.e; lab = A.lab
tail = []

RS = 416; SCRW = 16 * RS
SCR = 0; WQ = 4 * SCRW; ROLE = WQ + 30720
WO = ROLE; W1 = ROLE; W3 = ROLE + 20480; W2 = ROLE + 49152
MISC = ROLE + 61440; QB = MISC; ACC = MISC + 512
OACC = 0; YACC = 3072; FACC = 4096
PT = ACC + 5120; ML4 = PT + 1024
FLG = ML4 + 64
LDSSZ = FLG + 64
FDMA = OPT.get("fdma", "late")
OMASK = int(OPT.get("omask", 1))
WDMA = OPT.get("wdma", "mid")
PF = OPT.get("pf", "ow")
NTP = OPT.get("ntp", "x").replace("x", "")
NTR = OPT.get("ntr", "x").replace("x", "")
GB = 81920; oQ = 0; oO = 32768; oML = 45056; oYL = 45312; oFL = 46592; oBA = 47872; oBB = 49152; oGX = 50432
CSO = 7168
GOFF = 8 * GB; oYG = GOFF; oFG = GOFF + 81920; LS = 0xC8000
OOB = 0x7FFFFFF0
sK, sV, sW, sWQ, sRA, sRB, sRC, sX, sO = 8, 12, 16, 20, 24, 28, 32, 36, 40
sG, sJ, sHH, sS, sWV, sKV, sLay, sFast, sCnt = 68, 69, 70, 71, 72, 73, 74, 75, 76
sT0, sT1, sT2 = 77, 78, 79
sLG = 3
sClr = 4
sXcc = 5
sTL = 6
sT3 = 7
sYg, sYl = 80, 81
sMf = 44
def sr(b): return f"s[{b}:{b+3}]"
def sp(b): return f"s[{b}:{b+1}]"
def vr(b, n=4): return f"v[{b}:{b+n-1}]" if n > 1 else f"v{b}"
def ar(b, n=4): return f"a[{b}:{b+n-1}]"
def srd(d, lo, nbytes):
    e(f"s_mov_b32 s{d}, s{lo}"); e(f"s_and_b32 s{d+1}, s{lo+1}, 0xffff")
    e(f"s_mov_b32 s{d+2}, {nbytes}"); e(f"s_mov_b32 s{d+3}, 0x20000")
MASKS = {}
def setexec(mask):
    if mask in MASKS: e(f"s_mov_b64 exec, {sp(MASKS[mask])}"); return
    lo, hi = mask & 0xffffffff, mask >> 32
    if mask == (1 << 64) - 1: e("s_mov_b64 exec, -1")
    elif hi == 0 and lo <= 64: e(f"s_mov_b64 exec, {lo}")
    else: e(f"s_mov_b32 exec_lo, {lo:#x}"); e(f"s_mov_b32 exec_hi, {hi:#x}")
FULL = (1 << 64) - 1
ROWS9 = 0x01FF01FF01FF01FF
vL, vLin, vWr, vKrd, vVrd, vCS, vAq, vAq16, vQst, vQld, vQBw, vQBr, vIdx, vAcc, vTq1, vTq2, vSC, vPw = 0, 1, 2, 5, 6, 7, 8, 9, 10, 11, 12, 13, 14, 15, 16, 17, 18, 19
vC1, vC2, vXR = 20, 21, 22
T = 24
F = 40
SPARE = 88
def vblock(b):
    if b < 2: return ("a", 192 + 24 * b)
    if b == 8: return ("v", SPARE)
    return ("v", 112 + 24 * (b - 2))
def rg(f, b, n): return f"{f}[{b}:{b+n-1}]"

uid = [0]
def nid(): uid[0] += 1; return uid[0]
stamps = [0]
SPINAT = int(OPT.get("spinat", -1))
JIT = int(OPT.get("jit", 0))
def jitter(mask, prob):
    k = nid()
    e("s_cselect_b32 s98, 1, 0")
    e("s_memtime s[100:101]"); e("s_waitcnt lgkmcnt(0)"); e("s_mul_i32 s100, s100, 0x9e3779b1"); e("s_lshr_b32 s99, s100, 24"); e(f"s_cmp_ge_u32 s99, {prob}"); e(f"s_cbranch_scc1 JX{k}")
    e("s_lshr_b32 s99, s100, 12"); e(f"s_and_b32 s99, s99, {mask}")
    lab(f"JL{k}"); e("s_sleep 4"); e("s_sub_u32 s99, s99, 1"); e("s_cmp_ge_i32 s99, 0"); e(f"s_cbranch_scc1 JL{k}")
    lab(f"JX{k}"); e("s_cmp_eq_u32 s98, 1")
def stamp(i, val=None):
    if JIT and val is None: jitter(JIT, 24); return
    if SPIN and val is None and SPINAT % 16 == i:
        k = nid()
        e(f"s_cmp_lg_u32 s{sLay}, {LS*(SPINAT//16)}"); e(f"s_cbranch_scc1 NOSP{k}")
        e("s_memrealtime s[100:101]"); e("s_waitcnt lgkmcnt(0)"); e("v_accvgpr_write_b32 a253, s100"); lab(f"NOSP{k}")
    if not STAMP: return
    if STAMP == 3 and (val is not None or i != 7): return
    if val == "d":
        if STAMP != 6: return
        val = None
    elif STAMP == 6 and (val is not None or i not in (9, 10, 11)): return
    if STAMP == 5 and (val is not None or i not in (9, 11, 12, 13)): return
    if STAMP == 4 and val != "c": return
    if val == "c":
        if STAMP != 4: return
        val = None
    if STAMP == 2 and val is None and i not in (0, 14): return
    if STAMP == 1 and (val is not None or i == 14): return
    e("s_memrealtime s[100:101]"); e("v_accvgpr_write_b32 a254, v38"); e("v_accvgpr_write_b32 a255, v39")
    e(f"s_lshl_b32 s98, s2, 2"); e(f"s_add_u32 s98, s98, s{sWV}"); e("s_lshl_b32 s98, s98, 7")
    e(f"s_cmp_eq_u32 s{sLay}, 0"); e(f"s_cselect_b32 s99, 0, 64"); e(f"s_add_u32 s99, s99, {4*i}"); e("s_add_u32 s98, s98, s99"); e("s_add_u32 s98, s98, 0x40000000")
    e("s_waitcnt lgkmcnt(0)"); e(f"v_mov_b32 v38, {val or 's100'}"); e("v_mov_b32 v39, 0")
    e("s_mov_b64 s[100:101], exec"); e("s_mov_b64 exec, 1")
    A.vmem(f"buffer_store_dword v38, v39, {sr(sW)}, s98 offen", "stamp")
    e("s_mov_b64 exec, s[100:101]"); e("s_nop 1"); e("v_accvgpr_read_b32 v38, a254"); e("v_accvgpr_read_b32 v39, a255")
sWp = sK
def lstore(instr, counted=None):
    assert sr(sW) in instr and not counted
    k = nid()
    e(instr.replace(sr(sW), sr(sWp)))
    e(f"s_cmp_eq_u32 s{sWp+2}, 0"); e(f"s_cbranch_scc1 SLOW{k}")
    lab(f"BACK{k}")
    def t(): lab(f"SLOW{k}"); e(instr + " sc1"); e(f"s_branch BACK{k}")
    tail.append(t)
def check(regs_, tmp):
    r = list(regs_)
    if len(r) == 1: e(f"v_cmp_eq_u32 vcc, -1, v{r[0]}"); return
    cur = r.pop(0)
    while r:
        if len(r) >= 2: e(f"v_max3_u32 v{tmp}, v{cur}, v{r[0]}, v{r[1]}"); r = r[2:]
        else: e(f"v_max_u32 v{tmp}, v{cur}, v{r[0]}"); r = r[1:]
        cur = tmp
    e(f"v_cmp_eq_u32 vcc, -1, v{tmp}")
LIMIT = 0x8000
def poll(loads, regs_, tmp, pid=None, slp=0, first=None):
    k = nid()
    if pid is not None: stamp(pid, "s100")
    e(f"s_mov_b32 s{sCnt}, 1")
    if first:
        for l in loads: e(l)
        first(); e(f"s_branch POLLW{k}")
    lab(f"POLL{k}")
    for l in loads: e(l)
    lab(f"POLLW{k}")
    e("s_waitcnt vmcnt(0)")
    check(regs_, tmp)
    e(f"s_cbranch_vccnz AGAIN{k}")
    lab(f"POLLX{k}")
    def t():
        lab(f"AGAIN{k}")
        if slp: e(f"s_sleep {slp}")
        e(f"s_add_u32 s{sCnt}, s{sCnt}, 1"); e(f"s_cmp_lt_u32 s{sCnt}, {LIMIT}"); e(f"s_cbranch_scc1 POLL{k}"); e(f"s_branch POLLX{k}")
    near.append(t)
    if pid is not None: stamp(pid + 1, "s100"); stamp(pid + 2, f"s{sCnt}")
    A.drained()
SEL = int(OPT.get("sel", 1)); XF = " " + OPT.get("xf", "").replace("+", " "); XF1 = int(OPT.get("xf1", 0))
def poll_sel(groups, tmp, pid=None, first=None, firstloads=None, xf="", wl=None, w1=0):
    allr = [r for g in groups for r in g[1]]
    loads = firstloads or [l for g in groups for l in g[0]]
    if not SEL: return poll(loads, allr, tmp, pid=pid, first=first)
    k = nid()
    if pid is not None: stamp(pid, "s100")
    for l in loads: e(l + (xf if XF1 else ""))
    if first: first()
    if wl: lab(wl)
    if pid is not None and STAMP == 2: e(f"s_mov_b32 s{sCnt}, 1")
    e(f"s_waitcnt vmcnt({w1})")
    check(allr, tmp)
    e(f"s_cbranch_vccnz AGAIN{k}")
    lab(f"POLLX{k}")
    def t():
        lab(f"AGAIN{k}")
        e("s_mov_b64 s[94:95], exec"); e(f"s_mov_b32 s{sCnt}, 1")
        lab(f"AG2{k}")
        if int(OPT.get("osl", 0)): e(f"s_sleep {OPT['osl']}")
        for gi, (ls, rs) in enumerate(groups):
            if len(groups) > 1: check(rs, tmp)
            e("s_mov_b64 exec, vcc")
            if len(groups) > 1: e(f"s_cbranch_execz AG3{k}_{gi}")
            for l in ls: e(l + xf)
            lab(f"AG3{k}_{gi}"); e("s_mov_b64 exec, s[94:95]")
        e(f"s_add_u32 s{sCnt}, s{sCnt}, 1"); e(f"s_cmp_ge_u32 s{sCnt}, {LIMIT}")
        e("s_waitcnt vmcnt(0)")
        check(allr, tmp)
        e(f"s_cbranch_vccz POLLX{k}"); e(f"s_cbranch_scc0 AG2{k}"); e(f"s_branch POLLX{k}")
    near.append(t)
    if pid is not None: stamp(pid + 1, "s100"); stamp(pid + 2, f"s{sCnt}")
    A.drained()
near = []
def flush_near():
    while near: near.pop(0)()
GATE = int(OPT.get("gate", 1)); GDLY = int(OPT.get("gdly", 0)); ODLY = int(OPT.get("odly", 12))
def gate(sreg, nl, tmp):
    if not GATE: return
    setexec((1 << nl) - 1)
    poll([f"buffer_load_dword v{tmp}, v{vLin}, {sr(sW)}, s{sreg} offen sc1"], [tmp], tmp, slp=int(OPT.get("gsl", 0)))
    if GDLY: e(f"s_sleep {GDLY}")
def poll_nan(loads, body, res):
    k = nid()
    e(f"s_mov_b32 s{sCnt}, 1")
    lab(f"POLL{k}")
    for l in loads: e(l)
    e("s_waitcnt vmcnt(0)")
    body()
    e(f"v_cmp_u_f32 vcc, v{res}, v{res}"); e(f"s_cbranch_vccnz AGAIN{k}")
    lab(f"POLLX{k}")
    def t():
        lab(f"AGAIN{k}"); e(f"s_add_u32 s{sCnt}, s{sCnt}, 1"); e(f"s_cmp_lt_u32 s{sCnt}, {LIMIT}"); e(f"s_cbranch_scc1 POLL{k}"); e(f"s_branch POLLX{k}")
    near.append(t)
def late_check(tag, loads, regs_, tmp, pre=None, post=None):
    k = nid()
    A.wait(tag)
    check(regs_, tmp)
    e(f"s_cbranch_vccnz RETRY{k}")
    lab(f"OK{k}")
    def t():
        lab(f"RETRY{k}")
        if pre: pre()
        save = A.vm; poll(loads, regs_, tmp); A.vm = save
        if post: post()
        e(f"s_branch OK{k}")
    tail.append(t)

sTO = 82
sPo, sPw = 90, 91
vLin2 = vXR + 1
e("s_load_dwordx16 s[44:59], s[0:1], 0"); e("s_load_dwordx8 s[60:67], s[0:1], 64")
e("s_cmp_ge_u32 s2, 256"); e("s_cbranch_scc1 CODE_END")
e("s_memrealtime s[96:97]")
e("v_lshrrev_b32 v2, 6, v0"); e("v_and_b32 v24, 63, v0"); e(f"v_readfirstlane_b32 s{sWV}, v2")
e(f"s_and_b32 s{sG}, s2, 7"); e(f"s_lshr_b32 s{sJ}, s2, 3"); e(f"s_lshr_b32 s{sHH}, s{sJ}, 3"); e(f"s_and_b32 s{sS}, s{sJ}, 7")
e(f"v_lshlrev_b32 v{vLin}, 4, v24")
e(f"s_lshl_b32 s{sT0}, s{sHH}, 3"); e(f"s_add_u32 s{sT0}, s{sT0}, s{sG}")
e(f"s_mul_i32 s{sKV}, s{sT0}, 12582912"); e(f"s_lshl_b32 s{sT1}, s{sS}, 2"); e(f"s_add_u32 s{sT1}, s{sT1}, s{sWV}")
e(f"s_mul_i32 s{sT1}, s{sT1}, 6144"); e(f"s_add_u32 s{sKV}, s{sKV}, s{sT1}"); e(f"s_add_u32 s{sKV}, s{sKV}, 11010048")
e(f"v_add_u32 v{vLin2}, 4096, v{vLin}"); e(f"s_mov_b32 s{sK+2}, 402653184"); e(f"s_mov_b32 s{sK+3}, 0x20000")
e("s_getpc_b64 s[100:101]"); lab("PCREF")
e(f"s_sub_u32 s100, s100, PCREF-{NAME}_kernel"); e("s_subb_u32 s101, s101, 0")
e(f"s_lshl_b32 s{sT1}, s{sS}, 12"); e(f"v_lshl_add_u32 v25, v0, 4, s{sT1}")
e(f"v_cmp_gt_u32 vcc, CODE_END-{NAME}_kernel-16, v25"); e("s_and_saveexec_b64 s[98:99], vcc"); e("s_cbranch_execz NOCPF")
e(f"global_load_dwordx4 a[240:243], v25, s[100:101]")
lab("NOCPF"); e("s_mov_b64 exec, -1")
e(f"s_mul_i32 s{sT2}, s{sT0}, 384")
e(f"s_mov_b32 s{sLay}, 0"); e(f"s_mul_i32 s{sLG}, s{sG}, {GB}"); e(f"s_getreg_b32 s{sFast}, hwreg(HW_REG_XCC_ID, 0, 4)")
e(f"s_lshl_b32 s{sT0}, s{sJ}, 9"); e(f"s_add_u32 s{sT0}, s{sT0}, s{sLG}"); e(f"s_add_u32 s{sT0}, s{sT0}, {oO}"); e(f"v_add_u32 v{vC1}, s{sT0}, v{vLin}")
e(f"s_lshl_b32 s{sT0}, s{sG}, 2"); e(f"s_add_u32 s{sT0}, s{sT0}, s{sJ}"); e(f"s_mul_i32 s{sT0}, s{sT0}, {2560 if RY0 else 320}"); e(f"s_add_u32 s{sT0}, s{sT0}, {oYG-512}"); e(f"s_add_u32 s{sClr}, s{sT0}, 1024"); e(f"v_add_u32 v25, s{sT0}, v{vLin}")
e("v_cmp_le_u32 vcc, 32, v0"); e(f"v_cndmask_b32 v{vC2}, v{vC1}, v25, vcc"); e(f"v_mov_b32 v25, {OOB}"); e(f"v_cndmask_b32 v{vC1}, v{vC1}, v25, vcc")
e(f"s_cmp_lt_u32 s{sJ}, 4"); e(f"s_cselect_b32 s{sT0}, {64 if RY0 else 52}, 32"); e(f"v_cmp_le_u32 vcc, s{sT0}, v0"); e(f"v_cndmask_b32 v{vC2}, v{vC2}, v25, vcc")
e(f"s_mov_b32 s{sW+2}, 1610612736"); e(f"s_mov_b32 s{sW+3}, 0x20000")
e("s_waitcnt lgkmcnt(0)")
e(f"s_mov_b32 s{sK}, s46"); e(f"s_and_b32 s{sK+1}, s47, 0xffff"); e(f"s_mov_b32 s{sW}, s66"); e(f"s_and_b32 s{sW+1}, s67, 0xffff")
if SPIN: e("v_mov_b32 v38, s96"); e("v_accvgpr_write_b32 a253, v38")
SPM = OPT.get("spm", "")
RW = int(OPT.get("rw", 16)); RF = (320 - 20 * RW) // 12
assert 20 * RW + 12 * RF == 320
NPW = -(-max(RW, RF) * 24 // 64)
pend = []
def q_tile(srdn, t, f, base, tag):
    so = sKV if t == 0 else sTO + t
    for i in range(6):
        pend.append((f"buffer_load_dwordx4 {rg(f, base+4*i, 4)}, v{vLin if i < 4 else vLin2}, {sr(srdn)}, s{so} offen offset:{1024*(i%4)} {NT}", tag))
def qK(t): q_tile(sK, t, "a", 24 * t, f"K{t}")
def qV(t): f, b = vblock(t + 1); q_tile(sV, t, f, b, f"V{t}")
def q_pfo():
    for n in range(9): pend.append((f"buffer_load_dwordx4 a[240:243], v{[vLin, vLin, vLin2, 108, 109][n//2]}, {sr(sWQ)}, s{sPo} offen offset:{1024*(n%4)} {NTP}", "pfo"))
def q_pfw():
    for n in range(NPW): pend.append((f"buffer_load_dwordx4 a[240:243], v{101+n}, {sr(sX)}, s{sPw} offen {NTP}", "pfw"))
nfill = [0]; BARN = int(OPT.get("barn", 6)); THR = int(OPT.get("thr", 0)); THRE = int(OPT.get("thre", 0)); THS = int(OPT.get("ths", 20)); THP = int(OPT.get("thp", 1))
hold = {"V7", "pfw", "pfo"}; LA = int(OPT.get("la", 12))
def ahead(tag, LA=LA):
    while tag in A.vm and pend and pend[0][1] not in hold and len(A.vm) - 1 - max(i for i, x in enumerate(A.vm) if x == tag) < LA: fill()
def fill(n=1):
    for _ in range(n):
        if pend and not (pend[0][1] in hold):
            if THR and nfill[0] >= THS and len(pend) > THRE:
                k = nid(); e(f"s_bitcmp{THP}_b32 s{sFast}, 0"); e(f"s_cbranch_scc1 TH{k}"); e(f"s_waitcnt vmcnt({THR-1})"); lab(f"TH{k}")
            x, tag = pend.pop(0); A.vmem(x, tag); nfill[0] += 1
            if BARN and nfill[0] > 12 and nfill[0] % BARN == 0 and len(pend) >= 3: e("s_barrier")
BARS = OPT.get("bar", "").split(",")
def upto(tag):
    while any(t == tag for _, t in pend): fill()
    if tag in BARS or "every" in BARS and tag not in ("K0", "K1", "V7"): e("s_barrier")
def Kld(t): upto(f"K{t}")
def Vld(t): upto(f"V{t}")
for it in OPT.get("order", "K0 K1 K2 K3 K4 K5 K6 K7 V0 V1 V2 V3 V4 V5 V6 V7").replace(",", " ").split():
    if it == "w":
        if "pfw" not in SKIP: q_pfw()
    elif it == "o":
        if "pfo" not in SKIP: q_pfo()
    elif it[0] == "K": qK(int(it[1]))
    else: qV(int(it[1]))
if JIT: jitter(255, 16)
fill(int(OPT.get("k0e", 2)))
e(f"s_or_b32 s{sT0}, s2, s{sWV}"); e("s_cbranch_scc1 NOTAG")
e(f"s_or_b32 s{sT0}, s96, 1"); e(f"v_mov_b32 v26, s{sT0}"); setexec(1); e(f"global_store_dword v{vLin}, v26, s[64:65] sc1"); setexec(FULL)
lab("NOTAG")
if STAMP == 1: e("s_memrealtime s[94:95]")
e(f"s_add_u32 s{sTO+1}, s{sKV}, 196608")
srd(sV, 48, 402653184); srd(sWQ, 50, 7864320); srd(sX, 44, 1280); srd(sO, 62, 1280)
srd(sRB, 58, 1966080); srd(sRC, 60, 1966080)
e(f"s_cmp_lt_u32 s{sJ}, 20"); e(f"s_cselect_b32 s{sRA}, s52, s56"); e(f"s_cselect_b32 s{sRA+1}, s53, s57"); e(f"s_cselect_b32 s{sRA+2}, s{sWQ+2}, s{sRB+2}")
e(f"s_and_b32 s{sRA+1}, s{sRA+1}, 0xffff"); e(f"s_mov_b32 s{sRA+3}, 0x20000")
TLBW = OPT.get("tlbw", "")
def tlb_touch():
    e(f"s_cmp_lg_u32 s{sWV}, 3"); e("s_cbranch_scc1 NOTLB")
    if "j" in TLBW: e(f"s_cmp_lg_u32 s{sS}, 0"); e("s_cbranch_scc1 NOTLB")
    e("v_mul_u32_u24 v26, 1376256, v24"); e("v_lshlrev_b32 v27, 20, v24")
    setexec(3)
    if "v" in TLBW: e(f"buffer_load_dword a243, v26, {sr(sV)}, s{sKV} offen nt"); e(f"buffer_load_dword a243, v26, {sr(sK)}, s{sKV} offen nt")
    if "w" in TLBW:
        e(f"global_load_dword a243, v27, s[56:57] nt"); e(f"buffer_load_dword a243, v27, {sr(sRB)}, 0 offen nt"); e(f"buffer_load_dword a243, v27, {sr(sRC)}, 0 offen nt")
        setexec(0xff); e(f"global_load_dword a243, v27, s[52:53] nt")
    setexec(FULL)
    lab("NOTLB")
if TLBW: tlb_touch()
if STAMP:
    e(f"s_lshl_b32 s98, s2, 2"); e(f"s_add_u32 s98, s98, s{sWV}"); e("s_lshl_b32 s98, s98, 7"); e("s_add_u32 s98, s98, 0x40000000")
    e("v_mov_b32 v38, s96"); e("v_mov_b32 v39, 0"); e("s_mov_b64 exec, 1")
    A.vmem(f"buffer_store_dword v38, v39, {sr(sW)}, s98 offen", "stamp")
    if STAMP == 1: e("s_waitcnt lgkmcnt(0)"); e("v_mov_b32 v37, s94"); A.vmem(f"buffer_store_dword v37, v39, {sr(sW)}, s98 offen offset:56", "stamp")
    e("s_mov_b64 exec, -1")
for t in range(2, 8): e(f"s_add_u32 s{sTO+t}, s{sTO+t-1}, 196608")
e(f"v_mov_b32 v{vL}, v24")
e(f"s_mul_i32 s{sT0}, s{sWV}, {SCRW}")
for r in range(3):
    e(f"v_add_u32 v25, {64*r}, v{vL}"); e("v_mul_u32_u24 v26, 171, v25"); e("v_lshrrev_b32 v26, 12, v26")
    e("v_mul_u32_u24 v27, 24, v26"); e("v_sub_u32 v27, v25, v27"); e("v_lshlrev_b32 v27, 4, v27")
    e(f"v_mul_u32_u24 v25, {RS}, v26"); e(f"v_add3_u32 v{vWr+r}, v25, v27, s{sT0}")
    e(f"v_mul_u32_u24 v25, 12288, v26"); e(f"v_add_u32 v{F+r}, v25, v27")
assert all((c * 171) >> 12 == c // 24 for c in range(192))
e(f"v_and_b32 v25, 15, v{vL}"); e(f"v_lshrrev_b32 v26, 4, v{vL}")
e(f"v_bfe_u32 v27, v{vL}, 2, 2"); e(f"v_and_b32 v28, 3, v{vL}")
e(f"s_mul_i32 s{sT1}, s{sS}, 160")
e(f"v_lshlrev_b32 v36, 4, v26"); e(f"v_lshlrev_b32 v37, 3, v26"); e(f"v_lshlrev_b32 v39, 2, v{vL}")
A.vmem(f"buffer_load_dwordx4 v[70:73], v36, {sr(sX)}, s{sT1} offen", "x")
A.vmem(f"buffer_load_dwordx4 v[74:77], v36, {sr(sX)}, s{sT1} offen offset:64", "x")
A.vmem(f"buffer_load_dwordx2 v[78:79], v37, {sr(sX)}, s{sT1} offen offset:128", "x")
A.vmem(f"buffer_load_dwordx4 v[80:83], v{vLin}, {sr(sX)}, 0 offen", "x")
A.vmem(f"buffer_load_dword v84, v39, {sr(sX)}, 0 offen offset:1024", "x")
e(f"s_lshl_b32 s{sT3}, s{sJ}, 6"); e(f"v_lshlrev_b32 v38, 2, v25")
A.vmem(f"buffer_load_dword v{vXR}, v38, {sr(sX)}, s{sT3} offen", "x")
e(f"s_mul_i32 s{sT1}, s{sS}, {80*12288}"); e(f"s_add_u32 s{sT2}, s{sT2}, s{sT1}")
e(f"s_mul_i32 s{sT1}, s{sWV}, {8*12288}"); e(f"s_add_u32 s{sT2}, s{sT2}, s{sT1}")
e(f"s_mul_i32 s{sT1}, s{sWV}, 3072"); e(f"s_add_u32 s{sT1}, s{sT1}, {WQ}")
for gi in range(3):
    if gi == 2: e(f"s_cmp_ge_u32 s{sWV}, 2"); e("s_cbranch_scc1 NOWQ3")
    for r in range(3):
        e(f"s_add_u32 m0, s{sT1}, {gi*4*3072 + r*1024}")
        if "wq" not in SKIP: A.vmem(f"buffer_load_dwordx4 v{F+r}, {sr(sWQ)}, s{sT2} offen {NTW} lds", "wq", counted=(gi < 2))
    if gi < 2: e(f"s_add_u32 s{sT2}, s{sT2}, {32*12288}")
lab("NOWQ3")
e(f"s_mul_i32 s{sT1}, s{sS}, 160")
srd(sWQ, 52, 7864320)
e(f"s_cmp_lt_u32 s{sWV}, 2"); e(f"s_cselect_b32 s{sX}, s56, s58"); e(f"s_cselect_b32 s{sX+1}, s57, s59"); e(f"s_and_b32 s{sX+1}, s{sX+1}, 0xffff"); e(f"s_mov_b32 s{sX+2}, 1966080")
fill(3)
e(f"v_mul_u32_u24 v29, {RS}, v25"); e(f"v_lshl_add_u32 v29, v26, 4, v29"); e(f"v_add_u32 v{vKrd}, s{sT0}, v29")
e(f"v_lshrrev_b32 v29, 2, v{vL}"); e(f"v_mul_u32_u24 v29, {RS}, v29"); e(f"v_lshl_add_u32 v29, v28, 3, v29"); e(f"v_add_u32 v{vVrd}, s{sT0}, v29")
e(f"s_mul_i32 s{sT2}, s{sWV}, 96"); e(f"s_add_u32 s{sT2}, s{sT2}, {WQ}")
e("v_lshl_add_u32 v29, v26, 3, v27"); e("v_mul_u32_u24 v29, 384, v29"); e("v_lshl_add_u32 v29, v28, 3, v29"); e(f"v_add_u32 v{vTq1}, s{sT2}, v29")
e("v_lshl_add_u32 v29, v26, 2, v27"); e("v_mul_u32_u24 v29, 384, v29"); e("v_lshl_add_u32 v29, v28, 3, v29"); e(f"v_add_u32 v{vTq2}, s{sT2}, v29")
REPL = int(OPT.get("repl", 1))
SHB = OPT.get("shb", "fl")
def rowbase(dst, m, og, ol, ob, tmp):
    e(f"s_mul_i32 s{sT3}, s{sG}, {10240 if REPL else 0}")
    if og == oYG and not RY0: e(f"s_cmp_eq_u32 s{sLay}, 0"); e(f"s_cselect_b32 s{sT3}, 0, s{sT3}")
    e(f"s_add_u32 s{sT3}, s{sT3}, {og}")
    e(f"v_mul_u32_u24 v{dst}, 1280, v{m}"); e(f"v_add_u32 v{dst}, s{sT3}, v{dst}")
    e(f"s_mul_i32 s{sT3}, s{sG}, {GB}"); e(f"s_add_u32 s{sT3}, s{sT3}, {ol}"); e(f"v_mov_b32 v{tmp}, s{sT3}")
    e(f"v_cmp_eq_u32 vcc, s{sG}, v{m}"); e(f"v_cndmask_b32 v{dst}, v{dst}, v{tmp}, vcc")
    if ob is not None:
        e(f"v_add_u32 v{tmp}, {ob-ol}, v{tmp}"); e(f"v_cmp_le_u32 vcc, 8, v{m}"); e(f"v_cndmask_b32 v{dst}, v{dst}, v{tmp}, vcc")
fill()
if "l" in SHB: e(f"s_mul_i32 s{sT2}, s{sWV}, 23"); e(f"v_min_u32 v32, 22, v{vL}"); e(f"v_add_u32 v32, s{sT2}, v32"); e("v_min_u32 v32, 89, v32")
else: e(f"v_mov_b32 v32, v{vL}")
assert all((c * 103) >> 10 == c // 10 for c in range(90))
e(f"v_mul_u32_u24 v31, 103, v32"); e("v_lshrrev_b32 v31, 10, v31")
e(f"v_mul_u32_u24 v30, 10, v31"); e(f"v_sub_u32 v30, v32, v30"); e(f"v_lshl_add_u32 v29, v30, 4, s{sT1}")
rowbase(vAq, 31, oFG, oFL, oBB, 30); e(f"v_add_u32 v{vAq}, v{vAq}, v29")
if "l" in SHB: e("v_add_u32 v33, v31, v32"); e("v_lshlrev_b32 v33, 4, v33"); e("v_add_u32 v33, 4096, v33")
e("v_add_u32 v31, 6, v31"); rowbase(vAq16, 31, oFG, oFL, oBB, 30); e(f"v_add_u32 v{vAq16}, v{vAq16}, v29")
e(f"v_mov_b32 v30, {OOB}"); e(f"v_cmp_le_u32 vcc, 30, v{vL}"); e(f"v_cndmask_b32 v{vAq16}, v{vAq16}, v30, vcc")
if "l" in SHB: e(f"v_mov_b32 v{vAq16}, v33")
e(f"s_lshl_b32 s{sT1}, s{sJ}, 10"); e(f"s_lshl_b32 s{sT2}, s{sWV}, 8"); e(f"s_add_u32 s{sT1}, s{sT1}, s{sT2}")
e(f"v_lshl_add_u32 v{vQst}, v{vL}, 2, s{sT1}")
e(f"s_lshl_b32 s{sT1}, s{sHH}, 13"); e(f"s_add_u32 s{sT1}, s{sT1}, s{sT2}")
e(f"v_lshlrev_b32 v29, 10, v26"); e(f"v_lshl_add_u32 v29, v25, 4, v29"); e(f"v_add_u32 v{vQld}, s{sT1}, v29")
fill()
e(f"s_mul_i32 s{sT1}, s{sWV}, 96"); e(f"s_add_u32 s{sT1}, s{sT1}, {QB}")
e(f"v_lshl_add_u32 v29, v27, 5, s{sT1}"); e("v_lshl_add_u32 v29, v28, 2, v29"); e("v_lshrrev_b32 v30, 1, v26"); e("v_lshl_add_u32 v29, v30, 4, v29")
e("v_and_b32 v30, 1, v26"); e("v_lshl_add_u32 v29, v30, 1, v29"); e(f"v_mov_b32 v30, {QB+384}")
e("v_cmp_le_u32 vcc, 12, v25"); e(f"v_cndmask_b32 v{vQBw}, v29, v30, vcc")
e(f"v_and_b32 v30, 1, v{vL}"); e(f"v_lshlrev_b32 v29, 5, v26"); e("v_lshl_add_u32 v29, v30, 4, v29"); e(f"v_add_u32 v{vQBr}, {QB}, v29")
e("v_mul_u32_u24 v30, 0xaaaa, v30"); e("v_and_b32 v29, 1, v27"); e("v_mul_u32_u24 v29, 0xaaaa, v29"); e("v_lshl_or_b32 v29, v29, 16, v30"); e(f"v_add_u32 v{vIdx}, 0x44444444, v29")
fill()
e(f"s_lshl_b32 s{sT1}, s{sWV}, 8"); e(f"s_add_u32 s{sT1}, s{sT1}, {PT}")
e(f"v_lshrrev_b32 v29, 5, v{vL}"); e(f"v_lshl_add_u32 v29, v29, 6, s{sT1}")
for bit, sh in ((3, 5), (1, 4), (2, 3), (4, 2), (0, 1)): e(f"v_bfe_u32 v30, v{vL}, {bit}, 1"); e(f"v_lshl_add_u32 v29, v30, {sh}, v29")
e(f"v_mov_b32 v{vPw}, v29")
e(f"v_bfe_u32 v29, v{vL}, 4, 1"); e(f"v_bfe_u32 v30, v{vL}, 2, 1"); e(f"v_lshl_add_u32 v29, v29, 5, s{sT1}"); e("v_lshl_add_u32 v29, v30, 4, v29"); e("v_accvgpr_write_b32 a252, v29")
e(f"s_mul_i32 s{sT1}, s{sWV}, 768"); e(f"s_add_u32 s{sT1}, s{sT1}, {ACC}"); e(f"v_lshl_add_u32 v29, v25, 2, s{sT1}")
e(f"v_bfe_u32 v30, v{vL}, 4, 1"); e("v_lshl_add_u32 v29, v30, 7, v29"); e(f"v_lshrrev_b32 v30, 5, v{vL}"); e(f"v_lshl_add_u32 v{vAcc}, v30, 6, v29")

def Krel(t):
    upto(f"K{t}"); ahead(f"K{t}"); A.wait(f"K{t}")
    if "rel" in SKIP: return
    for i in range(6): e(f"ds_write_b128 v{vWr+i%3}, {ar(24*t+4*i)} offset:{(i//3)*8*RS}")
    for ks in range(6): e(f"ds_read_b128 {ar(24*t+4*ks)}, v{vKrd} offset:{64*ks}")
def Vrel(t):
    upto(f"V{t}"); ahead(f"V{t}"); A.wait(f"V{t}")
    if "rel" in SKIP: return
    f, b = vblock(t + 1)
    for i in range(6): e(f"ds_write_b128 v{vWr+i%3}, {rg(f, b+4*i, 4)} offset:{(i//3)*8*RS}")
    f, b = vblock(t & ~1)
    for dt in range(12): e(f"ds_read_b64_tr_b16 {rg(f, b+4*dt+2*(t&1), 2)}, v{vVrd} offset:{32*dt}")
def wq_frags():
    for t in range(3):
        b = F + 10 * t
        for kk in range(2):
            for h in range(2): e(f"ds_read_b64_tr_b16 {vr(b+4*kk+2*h,2)}, v{vTq1} offset:{(32*kk+4*h)*384+32*t}")
        e(f"ds_read_b64_tr_b16 {vr(b+8,2)}, v{vTq2} offset:{64*384+32*t}")
def qstage(a, soff, tag=None, waits=False, fl=0):
    def mm(t, kk):
        n = 4 if kk < 2 else 2
        bb = vr(F + 10 * t + 4 * kk, n) if t < 3 else vr(a + 4 * kk, n)
        c = "0" if kk == 0 else vr(T + 4 * t)
        e(f"v_mfma_f32_16x16x{32 if kk<2 else 16}_bf16 {vr(T+4*t)}, {vr(a+4*kk,n)}, {bb}, {c}")
    def s4(t): return [f"v_add_f32 v{T+4*t}, v{T+4*t}, v{T+4*t+1}", f"v_add_f32 v{T+4*t+2}, v{T+4*t+2}, v{T+4*t+3}", f"v_add_f32 v{T+4*t}, v{T+4*t}, v{T+4*t+2}"]
    if waits: e("s_waitcnt lgkmcnt(2)")
    mm(0, 0); mm(2, 0)
    if waits: e("s_waitcnt lgkmcnt(0)")
    mm(0, 1); mm(2, 1); mm(0, 2); mm(2, 2)
    mm(1, 0); mm(3, 0); mm(1, 1); mm(3, 1); mm(1, 2); mm(3, 2)
    fill(fl)
    for x in s4(0) + s4(2): e(x)
    e(f"v_permlane32_swap_b32 v{T}, v{T+8}")
    x1, x3 = s4(1), s4(3)
    for x in x1[:2] + x3[:2] + [f"v_add_f32 v{T}, v{T}, v{T+8}"] + x1[2:] + x3[2:]: e(x)
    e(f"v_permlane32_swap_b32 v{T+4}, v{T+12}"); e(f"v_add_f32 v{T+4}, v{T+4}, v{T+12}")
    e(f"v_permlane16_swap_b32 v{T}, v{T+4}"); e(f"v_add_f32 v{T}, v{T}, v{T+4}")
    if tag and "qst" in SKIP: pass
    elif tag:
        for q in (1, 2, 3): e(f"v_mov_b32_dpp v{T+q}, v{T} quad_perm:[{q},{q},{q},{q}] row_mask:0xf bank_mask:0xf")
        setexec(0x1111111111111111); A.vmem(f"buffer_store_dwordx4 {vr(T)}, v{vQst}, {sr(sW)}, {soff} offen {'' if 'qplain' in SKIP else 'sc1'}", tag); setexec(FULL)
    else: lstore(f"buffer_store_dword v{T}, v{vQst}, {sr(sW)}, {soff} offen")
def xreduce(r0, r1, r2, r3):
    e(f"v_permlane32_swap_b32 v{r0}, v{r2}"); e(f"v_permlane32_swap_b32 v{r1}, v{r3}")
    e(f"v_add_f32 v{r0}, v{r0}, v{r2}"); e(f"v_add_f32 v{r1}, v{r1}, v{r3}")
    e(f"v_permlane16_swap_b32 v{r0}, v{r1}"); e(f"v_add_f32 v{r0}, v{r0}, v{r1}")
def qloads(b, s0, s1): return [f"buffer_load_dwordx4 {vr(b)}, v{vQld}, {sr(sW)}, {s0} offen sc1", f"buffer_load_dwordx4 {vr(b+4)}, v{vQld}, {sr(sW)}, {s1} offen sc1"]
def qsum(b):
    for q in range(4): e(f"v_add_f32 v{b+q}, v{b+q}, v{b+4+q}")
    xreduce(b, b + 1, b + 2, b + 3)
def rowred(op, v, tmp, steps):
    for sft in steps: e(f"v_{op}_f32_dpp v{v}, v{v}, v{v} row_ror:{sft} row_mask:0xf bank_mask:0xf")
def xrow(op, v, tmp, both=True):
    if both:
        e(f"v_mov_b32 v{tmp}, v{v}"); e(f"v_permlane32_swap_b32 v{v}, v{tmp}"); e(f"v_{op}_f32 v{v}, v{v}, v{tmp}")
    e(f"v_mov_b32 v{tmp}, v{v}"); e(f"v_permlane16_swap_b32 v{v}, v{tmp}"); e(f"v_{op}_f32 v{v}, v{v}, v{tmp}")
QF = 28; DQ = 40; PA = 72; X = 24; vM = 26
def att_zero():
    for t in range(8): e(f"v_mov_b32 v{DQ+4*t}, 0"); e(f"v_mov_b32 v{DQ+4*t+1}, 0")
    for q in range(16): e(f"v_mov_b32 v{PA+q}, 0")
def q_finish(b, mid=None):
    e(f"v_readlane_b32 s{sT0}, v{b}, 15")
    e(f"s_mov_b32 vcc_lo, 0x70007000"); e(f"s_mov_b32 vcc_hi, 0x70007000")
    e(f"v_fma_f32 v{b+1}, -s{sT0}, v{vCS}, v{b}")
    e(f"v_cvt_pk_bf16_f32 v{b+1}, v{b+1}, v{b+1}")
    e(f"ds_write_b16 v{vQBw}, v{b+1}")
    e(f"v_cndmask_b32 v{b+2}, 0, v{b}, vcc")
    e(f"v_add_f32_dpp v{b+2}, v{b+2}, v{b+2} quad_perm:[1,0,3,2] row_mask:0xf bank_mask:0xf")
    e(f"v_add_f32_dpp v{b+2}, v{b+2}, v{b+2} quad_perm:[2,3,0,1] row_mask:0xf bank_mask:0xf")
    e(f"v_mov_b32 v{b+3}, v{b+2}"); e(f"v_permlane32_swap_b32 v{b+2}, v{b+3}"); e(f"v_add_f32 v{b+2}, v{b+2}, v{b+3}")
    if mid: mid()
    else: e("s_waitcnt lgkmcnt(0)"); e("s_barrier")
    for ks in range(3): e(f"ds_read_b128 {vr(QF+4*ks)}, v{vQBr} offset:{128*ks}")
    e(f"v_mov_b32 v{b+3}, v{b+2}"); e(f"v_mov_b32 v{b+1}, s{sT0}"); e(f"v_subrev_f32 v{b+1}, 0x44200000, v{b+1}")
    e(f"v_permlane16_swap_b32 v{b+2}, v{b+3}"); e(f"v_add_f32 v{b+2}, v{b+2}, v{b+3}")
    e(f"v_mul_f32 v{b}, 0x3acccccd, v{b+1}")
    e(f"v_readlane_b32 s{sT0}, v{b+2}, 15")
    e(f"v_mul_f32 v{b}, v{b}, v{b}"); e(f"s_mov_b32 s{sT1}, 0x3acccccd")
    e(f"v_sub_f32 v{b+2}, s{sT0}, v{b+1}")
    e(f"v_fma_f32 v{b+2}, v{b+2}, s{sT1}, -v{b}"); e(f"v_max_f32 v{b+2}, 0, v{b+2}"); e(f"v_add_f32 v{b+2}, 0x3727c5ac, v{b+2}")
    e(f"v_rsq_f32 v{b+2}, v{b+2}"); e(f"v_mul_f32 v{vSC}, 0x3dd53b94, v{b+2}")
def qk_softmax(fl=0):
    def fold(t): e(f"v_add_f32_dpp v{X+t//4}, v{DQ+4*t}, v{DQ+4*t+1} quad_perm:[0,1,2,3] row_mask:{1<<(t%4):#x} bank_mask:0xf")
    def mm(t, ks): e(f"v_smfmac_f32_16x16x64_bf16 {vr(DQ+4*t)}, {vr(QF+4*ks)}, {ar(24*t+8*ks, 8)}, v{vIdx}")
    for ks in range(3):
        e(f"s_waitcnt lgkmcnt({2-ks})")
        for t in range(8): mm(t, ks)
        if ks != 1: fill(fl)
    S = lambda t: X + t // 4 if t % 4 == 0 else DQ + 4 * t
    for t in range(8):
        e(f"v_add_f32 v{S(t)}, v{DQ+4*t}, v{DQ+4*t+1}")
        if t == 2: e(f"v_max3_f32 v{vM}, v{S(0)}, v{S(1)}, v{S(2)}")
        if t in (4, 6): e(f"v_max3_f32 v{vM}, v{vM}, v{S(t-1)}, v{S(t)}")
    e(f"v_max_f32 v{vM}, v{vM}, v{S(7)}")
    mv = [f"v_mov_b32_dpp v{X+t//4}, v{S(t)} quad_perm:[0,1,2,3] row_mask:{1<<(t%4):#x} bank_mask:0xf" for t in (1, 5, 2, 6, 3, 7)] + ["v_accvgpr_read_b32 v27, a252", "s_nop 0"]
    for sft in (8, 4, 2, 1):
        e(mv.pop(0)); e(mv.pop(0)); e(f"v_max_f32_dpp v{vM}, v{vM}, v{vM} row_ror:{sft} row_mask:0xf bank_mask:0xf")
    fill(fl)
    e(f"v_mul_f32 v{vM}, v{vM}, v{vSC}")
    for q in range(2): e(f"v_fma_f32 v{X+q}, v{X+q}, v{vSC}, -v{vM}")
    for q in range(2): e(f"v_exp_f32 v{X+q}, v{X+q}")
    e(f"v_cvt_pk_bf16_f32 v28, v{X}, v{X+1}")
    e(f"ds_write_b16 v{vPw}, v28"); e(f"ds_write_b16_d16_hi v{vPw}, v28 offset:128")
    setexec(0xFF00FF0000FF00FF)
    for u in range(4): e(f"ds_read_b128 {vr(PA+4*u)}, v27 offset:{64*u}")
    setexec(FULL)
    e(f"v_add_f32 v27, v{X}, v{X+1}")
    z = [f"v_mov_b32 v{F+4*dp}, 0" for dp in range(6)] + [f"s_lshl_b32 s{sT1}, s{sWV}, 3", f"s_add_u32 s{sT1}, s{sT1}, {ML4}"]
    for sft in (8, 4, 2, 1):
        e(z.pop(0)); e(z.pop(0)); e(f"v_add_f32_dpp v27, v27, v27 row_ror:{sft} row_mask:0xf bank_mask:0xf")
    xrow("add", 27, 28)
    e(f"v_mov_b32 v28, s{sT1}"); e(f"ds_write_b64 v28, v[26:27]")
def pv_step(u, order=range(6)):
    f, b = vblock(2 * u)
    for dp in order: e(f"v_smfmac_f32_16x16x64_bf16 {vr(F+4*dp)}, {vr(PA+4*u)}, {rg(f, b+8*dp, 8)}, v{vIdx} abid:1")
def pv_post():
    for q in range(3): e(f"v_permlane16_swap_b32 v{F+8*q}, v{F+8*q+4}"); e(f"v_add_f32 v{F+8*q}, v{F+8*q}, v{F+8*q+4}"); e(f"ds_write_b32 v{vAcc}, v{F+8*q} offset:{OACC+256*q}")

WT = [int(x) for x in OPT.get("wt", "0,3,3,0,6").split(",")]
assert sum(WT) == 12
sDo, sDm = 66, 67
TT = OPT.get("tt", "x").replace("x", "")
ROT = int(OPT.get("rot", 0)); nwd = [0]
def wdma(n, tag=None):
    if "wo" in SKIP: return
    for _ in range(n):
        if ROT and nwd[0] == 6:
            e(f"s_bitcmp1_b32 s{sJ}, 0"); e(f"s_cselect_b32 s{sT1}, 12288, 0"); e(f"s_sub_u32 s{sDm}, s{sDm}, s{sT1}"); e(f"s_mul_i32 s{sT1}, s{sT1}, 20"); e(f"s_sub_u32 s{sDo}, s{sDo}, s{sT1}")
        nwd[0] += 1
        e(f"s_mov_b32 m0, s{sDm}"); e(f"s_add_u32 s{sDm}, s{sDm}, 1024")
        A.vmem(f"buffer_load_dwordx4 v39, {sr(sRA)}, s{sDo} offen {NTR} lds", tag, counted=tag is not None)
        e(f"s_add_u32 s{sDo}, s{sDo}, {(8 if WFL else 16)*1280}")
WFL = int(OPT.get("wfl", 0))
def wdma_addr(fl=True):
    if WFL and fl:
        e(f"v_lshrrev_b32 v38, 3, v{vL}"); e("v_mul_u32_u24 v38, 1280, v38"); e(f"v_and_b32 v39, 7, v{vL}"); e("v_lshl_add_u32 v39, v39, 4, v38"); return
    e(f"v_lshrrev_b32 v38, 2, v{vL}"); e("v_mul_u32_u24 v38, 1280, v38"); e(f"v_and_b32 v39, 3, v{vL}"); e("v_lshl_add_u32 v39, v39, 4, v38")
def role_dma():
    if "dma" in SKIP: return
    e(f"s_cmp_ge_u32 s{sJ}, 20"); e("s_cbranch_scc1 DMAF")
    e(f"s_lshl_b32 s{sDo}, s{sWV}, 3"); e(f"s_add_u32 s{sDo}, s{sDo}, s{sG}"); e(f"s_mul_i32 s{sDo}, s{sDo}, {192*1280}"); e(f"s_lshl_b32 s{sT1}, s{sJ}, 6"); e(f"s_add_u32 s{sDo}, s{sDo}, s{sT1}")
    if WFL: e(f"s_and_b32 s{sT1}, s{sJ}, 1"); e(f"s_mul_i32 s{sT1}, s{sT1}, {96*1280-64}"); e(f"s_add_u32 s{sDo}, s{sDo}, s{sT1}")
    e(f"s_mul_i32 s{sDm}, s{sWV}, 12288"); e(f"s_add_u32 s{sDm}, s{sDm}, {WO}")
    if ROT: e(f"s_bitcmp1_b32 s{sJ}, 0"); e(f"s_cselect_b32 s{sT1}, 6144, 0"); e(f"s_add_u32 s{sDm}, s{sDm}, s{sT1}"); e(f"s_mul_i32 s{sT1}, s{sT1}, 20"); e(f"s_add_u32 s{sDo}, s{sDo}, s{sT1}")
    if TT:
        e(f"v_mul_u32_u24 v38, {191*1280}, v{vL}"); e(f"s_mul_i32 s{sT1}, s{sG}, {192*1280}"); setexec(3)
        if "o" in TT: e(f"buffer_load_dword a243, v38, {sr(sRA)}, s{sDo} offen")
        if "2" in TT: e(f"buffer_load_dword a243, v38, {sr(sRC)}, s{sT1} offen")
        setexec(FULL)
    if WT[0]: wdma_addr(); wdma(WT[0])
    lab("DMAX")
    def t():
        lab("DMAF")
        e(f"s_sub_u32 s{sT1}, s{sJ}, 20"); e(f"s_and_b32 s{sDo}, s{sT1}, 3"); e(f"s_lshl_b32 s{sDo}, s{sDo}, 1"); e(f"s_and_b32 s{sT2}, s{sWV}, 1"); e(f"s_add_u32 s{sDo}, s{sDo}, s{sT2}")
        e(f"s_mul_i32 s{sDo}, s{sDo}, {80*3072}"); e(f"s_lshr_b32 s{sT1}, s{sT1}, 2"); e(f"s_lshl_b32 s{sT1}, s{sT1}, 7"); e(f"s_add_u32 s{sDo}, s{sDo}, s{sT1}")
        e(f"s_mul_i32 s{sT1}, s{sG}, 384"); e(f"s_add_u32 s{sDo}, s{sDo}, s{sT1}")
        e(f"s_mul_i32 s{sDm}, s{sWV}, 10240"); e(f"s_add_u32 s{sDm}, s{sDm}, {W1}")
        if TT:
            e(f"v_mul_u32_u24 v38, {79*3072}, v{vL}"); e(f"s_lshl_b32 s{sT1}, s{sWV}, 3"); e(f"s_add_u32 s{sT1}, s{sT1}, s{sG}"); e(f"s_mul_i32 s{sT1}, s{sT1}, 24"); e(f"s_add_u32 s{sT1}, s{sT1}, s{sJ}")
            e(f"s_sub_u32 s{sT1}, s{sT1}, 8"); e(f"s_mul_i32 s{sT1}, s{sT1}, 10240"); setexec(3)
            if "f" in TT: e(f"buffer_load_dword a243, v38, {sr(sX)}, s{sDo} offen nt")
            setexec(1)
            if "o" in TT: e(f"buffer_load_dword a243, v38, {sr(sWQ)}, s{sT1} offen")
            setexec(FULL)
        if FT[0]: fdma_addr(); fdma(0, FT[0])
        e("s_branch DMAX")
    tail.append(t)
FT = [int(x) for x in OPT.get("ft", "0,0,0,0,10").split(",")]
assert sum(FT) == 10
def fdma_addr():
    e(f"v_lshrrev_b32 v38, 3, v{vL}"); e("v_mul_u32_u24 v38, 3072, v38"); e(f"v_and_b32 v39, 7, v{vL}"); e("v_lshl_add_u32 v38, v39, 4, v38")
    e(f"v_bfe_u32 v39, v{vL}, 4, 1"); e("v_lshlrev_b32 v39, 5, v39"); e("v_xor_b32 v38, v38, v39"); e("v_xor_b32 v39, 64, v38")
def fdma(n0, n, tag=None):
    for k in range(n0, n0 + n):
        e(f"s_mov_b32 m0, s{sDm}"); e(f"s_add_u32 s{sDm}, s{sDm}, 1024")
        A.vmem(f"buffer_load_dwordx4 v{38+(k&1)}, {sr(sX)}, s{sDo} offen {NTW} lds", tag, counted=tag is not None)
        e(f"s_add_u32 s{sDo}, s{sDo}, {8*3072}")
CSL = int(OPT.get("csl", 1))
def cs_store():
    e(f"s_add_u32 s{sT0}, s{sLG}, {2*LS}"); lstore(f"buffer_store_dword v{vCS}, v{vQst}, {sr(sW)}, s{sT0} offen")
def addr_block():
    e(f"v_mov_b32 v109, v{vC1}")
    e(f"v_and_b32 v25, 15, v{vL}"); e(f"v_lshrrev_b32 v26, 4, v{vL}"); e("v_add_u32 v27, 4, v26")
    rowbase(vC1, 26, oFG, oFL, None, 28); rowbase(vC2, 27, oFG, oFL, None, 28)
    e(f"s_min_u32 s{sT3}, s{sJ}, 19"); e(f"s_lshl_b32 s{sT3}, s{sT3}, 6"); e(f"v_lshl_add_u32 v25, v25, 2, s{sT3}")
    e(f"v_add_u32 v{vC1}, v{vC1}, v25"); e(f"v_add_u32 v{vC2}, v{vC2}, v25")
    fill()
    e(f"v_and_b32 v25, 15, v{vL}"); e(f"v_bfe_u32 v27, v{vL}, 2, 2"); e(f"v_and_b32 v28, 3, v{vL}")
    e(f"s_mul_i32 s{sT3}, s{sWV}, 12288"); e(f"s_add_u32 s{sT3}, s{sT3}, {WO}")
    e("v_lshl_add_u32 v29, v26, 3, v27"); e("v_lshlrev_b32 v29, 6, v29"); e("v_lshl_add_u32 v29, v28, 3, v29"); e(f"v_add_u32 v29, s{sT3}, v29"); e("v_accvgpr_write_b32 a246, v29")
    e(f"s_mul_i32 s{sT3}, s{sWV}, 3072"); e(f"s_add_u32 s{sT3}, s{sT3}, {oO}")
    e(f"v_lshl_add_u32 v29, v25, 4, s{sT3}"); e("v_lshl_add_u32 v29, v26, 7, v29"); e("v_accvgpr_write_b32 a247, v29")
    e(f"s_lshl_b32 s{sT3}, s{sWV}, 6"); e(f"s_add_u32 s{sT3}, s{sT3}, {oML}"); e("v_and_b32 v29, 1, v26"); e(f"v_lshl_add_u32 v29, v29, 5, s{sT3}"); e("v_accvgpr_write_b32 a248, v29")
    e(f"s_lshl_b32 s{sT3}, s{sWV}, 8"); e(f"s_add_u32 s{sT3}, s{sT3}, {ACC+YACC}"); e(f"v_lshl_add_u32 v29, v{vL}, 2, s{sT3}"); e("v_accvgpr_write_b32 a249, v29")
    e(f"s_lshl_b32 s{sYl}, s{sJ}, 6"); e(f"s_mul_i32 s{sYg}, s{sG}, 1280"); e(f"s_add_u32 s{sYg}, s{sYg}, s{sYl}"); e(f"s_add_u32 s{sYg}, s{sYg}, {oYG}")
    e(f"s_add_u32 s{sYl}, s{sYl}, s{sLG}"); e(f"s_add_u32 s{sYl}, s{sYl}, {oYL}")
A.wait("x")
for q in range(5): e(f"v_lshlrev_b32 v{88+2*q}, 16, v{80+q}"); e(f"v_and_b32 v{89+2*q}, 0xffff0000, v{80+q}")
e("v_add_f32 v80, v88, v89")
for q in range(2, 10): e(f"v_add_f32 v80, v80, v{88+q}")
rowred("add", 80, None, (8, 4, 2, 1)); xrow("add", 80, 81)
e("v_mul_f32 v80, 0x3acccccd, v80")
for q in range(10): e(f"v_sub_f32 v{88+q}, v{88+q}, v80")
e("v_mul_f32 v82, v88, v88")
for q in range(1, 10): e(f"v_fmac_f32 v82, v{88+q}, v{88+q}")
fill()
rowred("add", 82, None, (8, 4, 2, 1)); xrow("add", 82, 81)
e("v_mul_f32 v82, 0x3acccccd, v82"); e("v_add_f32 v82, 0x3727c5ac, v82"); e("v_rsq_f32 v82, v82")
e("s_mov_b32 vcc_lo, 0xaaaaaaaa"); e("s_mov_b32 vcc_hi, 0xaaaaaaaa"); e("v_mov_b32 v85, 0x3f803f80")
for q in range(10):
    e(f"v_lshlrev_b32 v83, 16, v{70+q}"); e(f"v_and_b32 v84, 0xffff0000, v{70+q}"); e("v_sub_f32 v83, v83, v80"); e("v_sub_f32 v84, v84, v80")
    e("v_mul_f32 v83, v83, v82"); e("v_mul_f32 v84, v84, v82"); e("v_cvt_pk_bf16_f32 v83, v83, v84"); e(f"v_cndmask_b32 v{70+q}, v83, v85, vcc")
    if q == 5: fill()
ahead("wq", int(OPT.get("lax", 6))); A.wait("wq"); e("s_barrier"); wq_frags()
tagl = "global_load_dword v98, v100, s[64:65] sc1"
e("v_mov_b32 v100, 0"); e(f"s_cmp_lg_u32 s{sWV}, 0"); e("s_cbranch_scc1 NOTL"); setexec(1); e(tagl); setexec(FULL); lab("NOTL")
fill(2)
stamp(1)
e(f"s_mul_i32 s{sT2}, s{sWV}, 96"); e(f"s_add_u32 s{sT2}, s{sT2}, {ACC}"); e(f"v_min_u32 v36, 48, v{vL}"); e(f"v_lshl_add_u32 v36, v36, 1, s{sT2}")
e(f"v_mov_b32 v37, {ACC+512}"); e(f"v_cmp_le_u32 vcc, 48, v{vL}"); e("v_cndmask_b32 v36, v36, v37, vcc"); e(f"v_add_u32 v37, {ACC}, v{vLin}")
e("s_waitcnt lgkmcnt(0)")
for kk in range(3):
    for t in range(3):
        n = 4 if kk < 2 else 2
        e(f"v_mfma_f32_16x16x{32 if kk<2 else 16}_bf16 {vr(T+4*t)}, {vr(70+4*kk,n)}, {vr(F+10*t+4*kk,n)}, " + ("0" if kk == 0 else vr(T + 4 * t)))
fill()
e(f"v_mov_b32 v{vCS}, v{T+1}")
for t in (1, 2):
    e(f"v_mov_b32_dpp v{T}, v{T+4*t} quad_perm:[0,1,2,3] row_mask:{1<<t:#x} bank_mask:0xf"); e(f"v_mov_b32_dpp v{vCS}, v{T+4*t+1} quad_perm:[0,1,2,3] row_mask:{1<<t:#x} bank_mask:0xf")
e(f"v_cvt_pk_bf16_f32 v{T}, v{T}, v{T}"); e(f"ds_write_b16 v36, v{T}")
fill(2)
e("s_waitcnt lgkmcnt(0)"); e("s_barrier")
e(f"ds_read_b128 v[28:31], v37"); e(f"s_lshl_b32 s{sT2}, s{sJ}, 9"); e(f"s_add_u32 s{sT2}, s{sT2}, s{sLG}")
e(f"s_cmp_eq_u32 s{sWV}, 0"); e(f"s_cselect_b32 exec_lo, 0xffffff, 1"); e("s_mov_b32 exec_hi, 0"); e(f"s_cselect_b32 s{sT1}, 0, {OOB-0x10000000}"); e(f"v_add_u32 v37, s{sT1}, v{vLin}")
e("s_waitcnt lgkmcnt(0)")
if "qst" not in SKIP: A.vmem(f"buffer_store_dwordx4 v[28:31], v37, {sr(sW)}, s{sT2} offen sc1", "qst")
setexec(FULL)
for q in range(4): e(f"v_mov_b32 v{32+q}, -1")
if RY0:
    e(f"s_lshr_b32 s{sT1}, s{sJ}, 2"); e(f"s_or_b32 s{sT1}, s{sT1}, s{sWV}"); e("s_cbranch_scc1 NOYC")
    for q in range(2): e(f"buffer_store_dwordx4 v[32:35], v{vLin}, {sr(sW)}, s{sClr} offen offset:{1024*q} sc1")
    lab("NOYC")
if "clr" not in SKIP: A.vmem(f"buffer_store_dwordx4 v[32:35], v{vC2}, {sr(sW)}, 0 offen sc1", "qst")
Krel(0)
ahead("qst", int(OPT.get("laq", 9)))
e(f"s_getreg_b32 s{sXcc}, hwreg(HW_REG_XCC_ID, 0, 4)")
e(f"s_cmp_lg_u32 s{sWV}, 0"); e("s_cbranch_scc1 NOHDR")
save = list(A.vm); A.wait("qst"); A.vm = save
e("v_readfirstlane_b32 s96, v98"); e("s_cmp_eq_u32 s96, 0"); e("s_cbranch_scc1 TAGLOOP"); lab("TAGOK")
def t_():
    lab("TAGLOOP"); e(f"s_mov_b32 s{sCnt}, 0"); lab("TAGL2"); e("s_sleep 8"); e(tagl); e("s_waitcnt vmcnt(0)"); e("v_readfirstlane_b32 s96, v98"); e("s_cmp_lg_u32 s96, 0"); e("s_cbranch_scc1 TAGOK")
    e(f"s_add_u32 s{sCnt}, s{sCnt}, 1"); e(f"s_cmp_lt_u32 s{sCnt}, {LIMIT}"); e("s_cbranch_scc1 TAGL2"); e("s_branch TAGOK")
tail.append(t_)
e(f"v_mov_b32 v99, s{sXcc}"); setexec(1); e(f"buffer_store_dwordx2 v[98:99], v{vLin}, {sr(sW)}, s{sT2} offen offset:384 sc1"); setexec(FULL)
lab("NOHDR")
stamp(1, "s100")
Krel(1); Krel(2)
RT = int(OPT.get("rt", 9))
DT = int(OPT.get("dt", 7))
rdy = [f"buffer_load_dwordx2 v[98:99], v100, {sr(sW)}, 0 offen offset:384 sc1"]
e(f"v_lshlrev_b32 v100, 9, v{vL}"); e(f"v_add_u32 v100, s{sLG}, v100"); e(f"v_bfe_u32 v96, v{vL}, 2, 3"); e(f"v_mul_u32_u24 v96, {GB}, v96"); e(f"v_and_b32 v97, 3, v{vL}"); e("v_lshl_add_u32 v96, v97, 9, v96")
e(f"v_cmp_le_u32 vcc, 32, v{vL}"); e("v_cndmask_b32 v100, v100, v96, vcc"); e(f"s_cmp_eq_u32 s{sWV}, 0"); e(f"s_cselect_b32 s{sT0}, 0, {OOB-0x10000000}"); e(f"v_add_u32 v100, s{sT0}, v100")
def ld(t): Kld(t) if t < 8 else Vld(t - 8)
def rel(t): Krel(t) if t < 8 else Vrel(t - 8)
for t in range(5, RT + 2):
    ld(t)
    if t == DT: stamp(12); role_dma()
    if t == RT: A.vmem(rdy[0], "rdy"); stamp(2, "s100")
    if t == 7: addr_block()
    rel(t - 2)
ahead("rdy"); A.wait("rdy"); e(f"s_mov_b32 s{sCnt}, -1"); e(f"v_mov_b32 v97, {FLG}")
e(f"s_cmp_lg_u32 s{sWV}, 0"); e("s_cbranch_scc1 RDYX")
e("v_cmp_ne_u32 vcc, s96, v98"); e("s_cbranch_vccnz RDYLOOP"); lab("RDYOK")
e(f"v_cmp_ne_u32 vcc, s{sXcc}, v99"); e("s_nop 1"); e(f"v_mov_b32 v96, vcc_lo"); e("ds_write_b32 v97, v96")
lab("RDYX")
stamp(13, f"s{sCnt}")
def t_():
    lab("RDYLOOP")
    if SPM == "rdy": e("v_accvgpr_read_b32 v96, a253"); e("v_add_u32 v96, 2000, v96"); e("v_accvgpr_write_b32 a253, v96")
    e(f"s_mov_b32 s{sCnt}, 0"); lab("RDYL2"); e("s_sleep 8"); e(rdy[0]); e("s_waitcnt vmcnt(0)"); e("v_cmp_ne_u32 vcc, s96, v98"); e("s_cbranch_vccz RDYOK")
    e(f"s_add_u32 s{sCnt}, s{sCnt}, 1"); e(f"s_cmp_lt_u32 s{sCnt}, {LIMIT}"); e("s_cbranch_scc1 RDYL2"); e("s_branch RDYOK")
tail.append(t_)
fill(2)
e("s_waitcnt lgkmcnt(0)"); e("s_barrier"); e("ds_read_b32 v96, v97"); e("s_waitcnt lgkmcnt(0)"); e(f"v_readfirstlane_b32 s{sT0}, v96")
e(f"s_cmp_eq_u32 s{sT0}, 0"); e(f"s_cselect_b32 s{sWp+2}, s{sW+2}, 0")
assert not any(t[0] == "K" for _, t in pend) and DT <= RT + 1
if FORCESLOW: e(f"s_mov_b32 s{sWp+2}, 0")
for d_ in (sWp,): e(f"s_mov_b32 s{d_}, s{sW}"); e(f"s_mov_b32 s{d_+1}, s{sW+1}"); e(f"s_mov_b32 s{d_+3}, 0x20000")
stamp(2)
if "pre" not in SKIP:
    A.vmem(f"buffer_load_dwordx4 a[240:243], v109, {sr(sW)}, 0 offen sc1", "pre")
e(f"s_mul_i32 s{sT0}, s{sJ}, 464"); e(f"s_add_u32 s{sT0}, s{sT0}, s{sLG}"); e(f"s_add_u32 s{sT0}, s{sT0}, {oBB}"); e(f"s_cmp_eq_u32 s{sWV}, 3"); e(f"s_cselect_b32 s{sT0}, s{sT0}, {OOB-0x10000000}")
e(f"v_add_u32 v106, s{sT0}, v{vLin}"); e(f"v_mov_b32 v107, {OOB}"); e(f"v_cmp_le_u32 vcc, 29, v{vL}"); e("v_cndmask_b32 v106, v106, v107, vcc")
if "pre" not in SKIP: A.vmem(f"buffer_load_dwordx4 a[240:243], v106, {sr(sW)}, 0 offen sc1", "pre")
e(f"s_lshl_b32 s{sT0}, s{sJ}, 2"); e(f"s_add_u32 s{sT0}, s{sT0}, s{sWV}"); e(f"s_lshl_b32 s{sT1}, s{sT0}, 8"); e(f"s_add_u32 s{sT1}, s{sT1}, {LS}"); e(f"s_lshl_b32 s{sT0}, s{sT0}, 9"); e(f"s_sub_u32 s{sT0}, s{sT0}, 256")
e(f"v_lshlrev_b32 v24, 7, v{vL}"); e(f"v_add_u32 v25, s{sT0}, v24"); e(f"v_min_u32 v25, {oGX+CSO-128}, v25"); e(f"v_add_u32 v24, s{sT1}, v24"); e(f"v_cmp_gt_u32 vcc, 2, v{vL}"); e("v_cndmask_b32 v24, v25, v24, vcc")
e(f"s_add_u32 s{sT0}, s{sLG}, {LS}"); setexec(63); A.vmem(f"buffer_load_dword a243, v24, {sr(sW)}, s{sT0} offen sc1", "pre"); setexec(FULL)
e(f"s_lshl_b32 s{sT0}, s{sHH}, 12"); e(f"s_mul_i32 s{sT1}, s{sWV}, 96"); e(f"s_add_u32 s{sT0}, s{sT0}, s{sT1}"); e(f"s_add_u32 s{sT0}, s{sT0}, s{sLG}")
e(f"v_lshrrev_b32 v24, 4, v{vL}"); e("v_lshlrev_b32 v24, 9, v24"); e(f"v_and_b32 v25, 15, v{vL}"); e("v_min_u32 v25, 11, v25"); e("v_lshl_add_u32 v24, v25, 3, v24")
for q in range(2):
    if "qg" not in SKIP: A.vmem(f"buffer_load_dwordx2 v[{64+2*q}:{65+2*q}], v24, {sr(sW)}, s{sT0} offen offset:{2048*q} sc1", "qg")
def pack_store16(d, instr_fn):
    for q in (1, 2, 3): e(f"v_mov_b32_dpp v{d+q}, v{d} quad_perm:[{q},{q},{q},{q}] row_mask:0xf bank_mask:0xf")
    setexec(0x1111); instr_fn(); setexec(FULL)
if "b0" in SKIP: e("s_branch NOBASE0")
e(f"s_cmp_lg_u32 s{sWV}, 1"); e("s_cbranch_scc1 NOBASE0"); e(f"s_cmp_ge_u32 s{sJ}, 20"); e("s_cbranch_scc1 NOBASE0")
e(f"v_mov_b32 v28, v{vXR}"); e(f"s_lshl_b32 s{sT0}, s{sJ}, 6"); e(f"s_add_u32 s{sT0}, s{sT0}, s{sLG}"); e(f"s_add_u32 s{sT0}, s{sT0}, {oBA}"); e(f"v_lshlrev_b32 v27, 2, v{vL}")
pack_store16(28, lambda: lstore(f"buffer_store_dwordx4 v[28:31], v27, {sr(sW)}, s{sT0} offen"))
lab("NOBASE0")
stamp(3)
for t in range(RT, RT + 3): rel(t)
ahead("qg"); A.wait("qg")
for q in range(4): e(f"v_lshlrev_b32 v{T+2*q}, 16, v{64+q}"); e(f"v_and_b32 v{T+2*q+1}, 0xffff0000, v{64+q}")
qsum(T)
e(f"v_cvt_pk_bf16_f32 v{T}, v{T}, v{T}"); e(f"ds_write_b16 v{vQBw}, v{T}")
fill(); att_zero()
stamp(4)
fill(2); e("s_waitcnt lgkmcnt(0)"); e("s_barrier")
for ks in range(3): e(f"ds_read_b128 {vr(QF+4*ks)}, v{vQBr} offset:{128*ks}")
e(f"v_mov_b32 v{vSC}, 0x3dd53b94")
qk_softmax(fl=1)
stamp(5)
for t in range(RT + 3, 12): rel(t)
fill(2)
e("s_waitcnt lgkmcnt(0)"); pv_step(0); fill(); pv_step(1)
Vrel(4)
assert sum(1 for _, t in pend if t == "V7") == 6
for q in range(4): e(f"v_mov_b32 v{24+q}, -1")
if "gxc" not in SKIP: lstore(f"buffer_store_dwordx4 v[24:27], v106, {sr(sW)}, 0 offen"); A.vm.append("gxc")
hold.clear(); Vld(7); Vrel(5)
e(f"v_and_b32 v{vXR+1}, 0xffff0000, v{vXR}"); e(f"v_lshlrev_b32 v{vXR}, 16, v{vXR}")
PT_ = [int(x) for x in OPT.get("pt", "7,3").split(",")]
PTF = int(OPT.get("ptf", 1))
def late_pf(w, k0, n):
    if "wo" in SKIP: return
    for k in range(k0, k0 + n):
        if k % 4 == 0 and k: e(f"s_add_u32 s{sPo}, s{sPo}, 4096")
        A.vmem(f"buffer_load_dwordx4 a[240:243], v{vLin}, {sr(sWQ)}, s{sPo} offen offset:{1024*(k%4)} {NTP}", "pfo")
for m_, r_ in ((0x0101010101010101, 82), (ROWS9, 84), ((1 << 45) - 1, 86), ((1 << 23) - 1, 50), (0xFF00FF0000FF00FF, 88), (0x01010101, 92), (0x0F0F0F0F0F0F0F0F if REPL else 0x01010101 + (1 << 63), 44)):
    e(f"s_mov_b32 s{r_}, {m_ & 0xffffffff:#x}"); e(f"s_mov_b32 s{r_+1}, {m_ >> 32:#x}"); MASKS[m_] = r_
if not REPL: e("s_mov_b32 s45, 0")
e(f"s_mov_b64 s[46:47], s[{'44:45' if RY0 else '92:93'}]"); e("s_mov_b64 s[48:49], s[44:45]")
FGE = int(OPT.get("fge", 1))
def rep_addr(d, t):
    e(f"v_and_b32 v{d}, 3, v{vL}"); e(f"v_lshrrev_b32 v{t}, 5, v{vL}"); e(f"v_lshl_add_u32 v{d}, v{t}, 2, v{d}"); e(f"v_mul_u32_u24 v{d}, 10240, v{d}")
    e(f"v_bfe_u32 v{t}, v{vL}, 3, 2"); e(f"v_lshl_add_u32 v{d}, v{t}, 4, v{d}")
def stream_tail(w):
    save = list(A.vm)
    pf = sum(PT_) and not (PTF and w)
    if pf and not PTF:
        e(f"s_lshl_b32 s{sPo}, s{sHH}, 3"); e(f"s_add_u32 s{sPo}, s{sPo}, s{sG}"); e(f"s_lshl_b32 s{sPo}, s{sPo}, 3"); e(f"s_add_u32 s{sPo}, s{sPo}, s{sS}")
        e(f"s_lshl_b32 s{sPo}, s{sPo}, 2"); e(f"s_add_u32 s{sPo}, s{sPo}, s{sWV}"); e(f"s_mul_i32 s{sPo}, s{sPo}, 7680")
    if pf and PTF:
        e(f"s_lshl_b32 s{sPo}, s{sWV}, 3"); e(f"s_add_u32 s{sPo}, s{sPo}, s{sG}"); e(f"s_add_u32 s{sPo}, s{sPo}, 1"); e(f"s_mul_i32 s{sPo}, s{sPo}, {192*1280}")
        e(f"s_sub_u32 s{sT1}, 32, s{sJ}"); e(f"s_mul_i32 s{sT1}, s{sT1}, {1024*sum(PT_)}"); e(f"s_sub_u32 s{sPo}, s{sPo}, s{sT1}")
    if pf: late_pf(w, 0, PT_[0])
    if w and FGE and "fgc" not in SKIP:
        for q in range(4): e(f"v_mov_b32 v{24+q}, -1")
        rep_addr(28, 29); e(f"s_cmp_eq_u32 s{sWV}, 3"); e(f"s_cselect_b32 s{sT0}, 0, {OOB-0x10000000}"); e(f"v_add_u32 v28, s{sT0}, v28"); e(f"s_add_u32 s{sT0}, s{sYg}, {oFG-oYG}")
        e("s_mov_b64 exec, s[44:45]"); A.vmem(f"buffer_store_dwordx4 v[24:27], v28, {sr(sW)}, s{sT0} offen sc1", "fgc"); setexec(FULL)
    if w: wdma_addr(); wdma(WT[1], "wo")
    else: fdma_addr(); fdma(FT[0], FT[1], "f")
    e("s_waitcnt lgkmcnt(0)"); pv_step(2)
    Vrel(6)
    if pf: late_pf(w, PT_[0], PT_[1])
    if w: wdma(WT[2], "wo")
    if not w: fdma(sum(FT[:2]), FT[2], "f")
    x = len(A.vm) - 1 - max(i for i, t in enumerate(A.vm) if t == "V7")
    f_, b_ = vblock(8)
    for i in range(6):
        e(f"s_waitcnt vmcnt({5-i+x})"); e(f"ds_write_b128 v{vWr+i%3}, {rg(f_, b_+4*i, 4)} offset:{(i//3)*8*RS}")
    f_, b_ = vblock(6)
    for dt in range(12): e(f"ds_read_b64_tr_b16 {rg(f_, b_+4*dt+2, 2)}, v{vVrd} offset:{32*dt}")
    if w: wdma(WT[3], "wo")
    if not w: fdma(sum(FT[:3]), FT[3], "f")
    e("s_branch ATT_LAST")
    A.vm = save
e(f"s_cmp_ge_u32 s{sJ}, 20"); e("s_cbranch_scc1 TAILF")
stream_tail(True)
lab("TAILF")
stream_tail(False)
A.drained()
flush_near()

lab("LOOP")
if JIT: jitter(JIT, 40)
def cs_pull():
    e(f"s_add_u32 s{sT0}, s{sLG}, {2*LS}"); e(f"s_add_u32 s{sT1}, s{sT0}, 4096")
    for so in (sT0, sT1): e(f"buffer_load_dwordx4 a[240:243], v{vQld}, {sr(sW)}, s{so} offen sc1")
def loop_prep():
    wq_frags()
    e(f"v_and_b32 v25, 15, v{vL}"); e("v_cmp_eq_u32 vcc, 12, v25"); e("v_mov_b32 v36, 0x3f803f80"); e(f"v_cndmask_b32 v70, 0, v36, vcc")
    for q in range(1, 10): e(f"v_mov_b32 v{70+q}, v70")
    e(f"s_mul_i32 s{sT0}, s{sWV}, {SCRW}" if "l" not in SHB else f"s_mov_b32 s{sT0}, 4096")
    e(f"v_mul_u32_u24 v96, 103, v{vL}"); e("v_lshrrev_b32 v96, 10, v96"); e(f"v_lshl_add_u32 v96, v96, 4, v{vLin}"); e(f"v_add_u32 v96, s{sT0}, v96")
    e(f"v_mul_u32_u24 v97, 176, v25"); e(f"v_add_u32 v97, s{sT0}, v97"); e(f"v_lshrrev_b32 v28, 4, v{vL}"); e("v_lshl_add_u32 v98, v28, 3, v97"); e("v_lshl_add_u32 v97, v28, 4, v97")
e(f"s_cmp_lt_u32 s{sJ}, 20"); e(f"s_cselect_b32 s{sXcc}, s{sWV}, 4")
e(f"s_add_u32 s96, s{sLG}, {LS}"); e("s_add_u32 s97, s96, 4096")
e(f"s_and_b32 s{sT0}, s{sXcc}, 3"); e("s_cbranch_scc1 LOOP2")
loop_prep()
lab("LOOP2")
e(f"s_add_u32 s{sT2}, s{sLG}, 4096")
e(f"s_mul_i32 s{sT0}, s{sS}, 160"); e(f"s_add_u32 s{sT0}, s{sT0}, s{sLG}"); e(f"s_sub_u32 s{sT0}, s{sT0}, {LS-oFL}")
gate(sT0, 10, 24)
setexec((1 << (23 if "l" in SHB else 60)) - 1)
def sbounce(load, reg, write, reads, first=None, w1=0):
    k = nid()
    e(load)
    if first: first()
    e(f"s_waitcnt vmcnt({w1})")
    lab(f"BW{k}")
    e(write); e(f"v_cmp_eq_u32 vcc, -1, v{reg}"); e(f"s_cbranch_vccnz BR{k}")
    lab(f"BX{k}")
    setexec(ROWS9); e("s_waitcnt lgkmcnt(0)"); e("s_barrier")
    for x in reads: e(x)
    setexec(FULL)
    def t():
        lab(f"BR{k}")
        e(f"s_cmp_ge_u32 s{sCnt}, {LIMIT}"); e(f"s_cbranch_scc1 BX{k}")
        e("s_mov_b64 exec, vcc"); e(load); e(f"s_add_u32 s{sCnt}, s{sCnt}, 1"); e("s_waitcnt vmcnt(0)"); e(f"s_branch BW{k}")
    near.append(t)
def bounce(groups, tmp, writes, reads, first=None, w1=0):
    k = nid(); allr = [r for g in groups for r in g[1]]
    for g in groups:
        for l in g[0]: e(l)
    if first: first()
    e(f"s_waitcnt vmcnt({w1})")
    lab(f"BW{k}")
    for x in writes: e(x)
    check(allr, tmp)
    setexec(ROWS9)
    for x in reads: e(x)
    setexec(FULL)
    e(f"s_cbranch_vccnz BR{k}")
    lab(f"BX{k}")
    def t():
        lab(f"BR{k}")
        e(f"s_cmp_ge_u32 s{sCnt}, {LIMIT}"); e(f"s_cbranch_scc1 BX{k}")
        lab(f"BL{k}")
        for gi, (ls, rs) in enumerate(groups):
            setexec((1 << 60) - 1); check(rs, tmp); e("s_mov_b64 exec, vcc"); e(f"s_cbranch_execz BS{k}_{gi}")
            for l in ls: e(l)
            lab(f"BS{k}_{gi}")
        setexec((1 << 60) - 1)
        e(f"s_add_u32 s{sCnt}, s{sCnt}, 1"); e(f"s_cmp_ge_u32 s{sCnt}, {LIMIT}")
        e("s_waitcnt vmcnt(0)")
        check(allr, tmp)
        e(f"s_cbranch_vccz BW{k}"); e(f"s_cbranch_scc0 BL{k}"); e(f"s_branch BW{k}")
    near.append(t)
assert GATE
if "l" in SHB: sbounce(f"buffer_load_dwordx4 v[80:83], v{vAq}, {sr(sW)}, 0 offen sc1", 80, f"ds_write_b128 v{vAq16}, v[80:83]",
       ["ds_read_b128 v[70:73], v97", "ds_read_b128 v[74:77], v97 offset:64", "ds_read_b64 v[78:79], v98 offset:128"],
       first=lambda: (setexec(FULL), [e(l) for l in qloads(88, "s96", "s97")], setexec((1 << 23) - 1)), w1=2)
else: bounce([([f"buffer_load_dwordx4 v[80:83], v{vAq}, {sr(sW)}, 0 offen sc1"], [80]), ([f"buffer_load_dwordx4 v[84:87], v{vAq16}, {sr(sW)}, 0 offen sc1"], [84])], 24,
       ["ds_write_b128 v96, v[80:83]", f"ds_write_b128 v96, v[84:87] offset:{6*176}"],
       ["ds_read_b128 v[70:73], v97", "ds_read_b128 v[74:77], v97 offset:64", "ds_read_b64 v[78:79], v98 offset:128"],
       first=lambda: [e(l) for l in qloads(88, "s96", "s97")], w1=2)
stamp(1)
e(f"s_cmp_lg_u32 s{sXcc}, 1"); e("s_cbranch_scc1 NOOWL")
e(f"buffer_load_dword a244, v{vC1}, {sr(sW)}, 0 offen sc1"); e(f"buffer_load_dword a245, v{vC2}, {sr(sW)}, 0 offen sc1")
lab("NOOWL")
qstage(70, f"s{sLG}", waits=True)
stamp(2)
att_zero()
e(f"s_waitcnt vmcnt({2 if STAMP == 1 else 1})"); qsum(88); e(f"v_mul_f32 v{vCS}, 0x3acccccd, v88")
for _ in range(int(OPT.get("qd", 0))): e("s_nop 7")
poll_nan(qloads(T, f"s{sLG}", f"s{sT2}"), lambda: qsum(T), T)
stamp(3)
q_finish(T)
stamp(4)
qk_softmax()
stamp(5)
for u in range(3):
    e(f"s_waitcnt lgkmcnt({4-u})"); pv_step(u)
e("s_waitcnt lgkmcnt(0)")
lab("ATT_LAST")
for dp in range(6):
    if dp % 2 == 0: e(f"s_waitcnt lgkmcnt({8-2*dp})")
    pv_step(3, [dp])
def pack8(v):
    e(f"v_mov_b32_dpp v{v+1}, v{v} row_shl:1 row_mask:0xf bank_mask:0xf"); e(f"v_cvt_pk_bf16_f32 v{v}, v{v}, v{v+1}")
    for q in (1, 2, 3): e(f"v_mov_b32_dpp v{v+q}, v{v} row_shl:{2*q} row_mask:0xf bank_mask:0xf")
def pack8q(v):
    e(f"v_mov_b32_dpp v{v+1}, v{v} row_shl:1 row_mask:0xf bank_mask:0xf"); e(f"v_cvt_pk_bf16_f32 v{v+4}, v{v}, v{v+1}")
    e(f"v_mov_b32_dpp v{v}, v{v+4} quad_perm:[0,0,0,0] row_mask:0xf bank_mask:0xf"); e(f"v_mov_b32_dpp v{v+1}, v{v+4} quad_perm:[2,2,2,2] row_mask:0xf bank_mask:0xf")
    e(f"v_mov_b32_dpp v{v+2}, v{v} row_shl:4 row_mask:0xf bank_mask:0xf"); e(f"v_mov_b32_dpp v{v+3}, v{v+1} row_shl:4 row_mask:0xf bank_mask:0xf")
e(f"s_lshl_b32 s{sT0}, s{sWV}, 8"); e(f"s_add_u32 s{sT0}, s{sT0}, {ACC+OACC}"); e(f"v_lshl_add_u32 v24, v{vL}, 2, s{sT0}")
pv_post()
e(f"v_and_b32 v25, 3, v{vL}"); e(f"v_lshlrev_b32 v25, 3, v25"); e(f"v_add_u32 v25, {ML4}, v25")
e("s_waitcnt lgkmcnt(0)"); e("s_barrier")
stamp(6)
e("ds_read_b64 v[32:33], v25"); e("ds_read2st64_b32 v[40:41], v24 offset0:0 offset1:3"); e("ds_read2st64_b32 v[42:43], v24 offset0:6 offset1:9")
e(f"s_mul_i32 s{sT0}, s{sHH}, 3072"); e(f"s_lshl_b32 s{sT1}, s{sS}, 4"); e(f"s_add_u32 s{sT0}, s{sT0}, s{sT1}"); e(f"s_lshl_b32 s{sT1}, s{sWV}, 10"); e(f"s_add_u32 s{sT0}, s{sT0}, s{sT1}")
e(f"s_add_u32 s{sT0}, s{sT0}, s{sLG}"); e(f"s_add_u32 s{sT0}, s{sT0}, {oO}")
e(f"s_lshl_b32 s{sT1}, s{sJ}, 3"); e(f"s_add_u32 s{sT1}, s{sT1}, s{sLG}"); e(f"s_add_u32 s{sT1}, s{sT1}, {oML}"); e(f"s_cmp_eq_u32 s{sWV}, 3")
e("s_waitcnt lgkmcnt(2)")
e("v_max_f32_dpp v34, v32, v32 quad_perm:[1,0,3,2] row_mask:0xf bank_mask:0xf"); e("v_max_f32_dpp v34, v34, v34 quad_perm:[2,3,0,1] row_mask:0xf bank_mask:0xf")
e("v_sub_f32 v32, v32, v34"); e("v_exp_f32 v32, v32")
e("s_cbranch_scc1 OML"); e("s_waitcnt lgkmcnt(0)")
e("v_mul_f32_dpp v28, v32, v40 quad_perm:[0,0,0,0] row_mask:0xf bank_mask:0xf"); e("v_mul_f32_dpp v29, v32, v41 quad_perm:[1,1,1,1] row_mask:0xf bank_mask:0xf")
e("v_mul_f32_dpp v30, v32, v42 quad_perm:[2,2,2,2] row_mask:0xf bank_mask:0xf"); e("v_fmac_f32_dpp v28, v32, v43 quad_perm:[3,3,3,3] row_mask:0xf bank_mask:0xf")
e("v_add_f32 v29, v29, v30"); e("v_add_f32 v28, v28, v29")
pack8(28)
setexec(0x0101010101010101)
lstore(f"buffer_store_dwordx4 v[28:31], v{vLin}, {sr(sW)}, s{sT0} offen")
setexec(FULL)
def t_():
    lab("OML")
    e("v_mul_f32 v35, v32, v33")
    e("v_add_f32_dpp v35, v35, v35 quad_perm:[1,0,3,2] row_mask:0xf bank_mask:0xf"); e("v_add_f32_dpp v35, v35, v35 quad_perm:[2,3,0,1] row_mask:0xf bank_mask:0xf")
    setexec(1); lstore(f"buffer_store_dwordx2 v[34:35], v{vLin}, {sr(sW)}, s{sT1} offen"); setexec(FULL)
    e("s_waitcnt lgkmcnt(0)"); e("s_branch ODONE")
near.append(t_)
lab("ODONE")
if STAMP == 3 and "land" in SKIP:
    e(f"s_cmp_ge_u32 s{sJ}, 20"); e("s_cbranch_scc1 LND"); wdma_addr(); wdma(WT[4]); lab("LND"); e("s_waitcnt vmcnt(0)")
stamp(7)
if STAMP == 3: e("s_endpgm")
e(f"s_cmp_ge_u32 s{sJ}, 20"); e("s_cbranch_scc1 ROLEF")
def owner_add():
    e("v_lshlrev_b32 v30, 16, v28"); e("v_and_b32 v28, 0xffff0000, v28"); e("v_lshlrev_b32 v31, 16, v29"); e("v_and_b32 v29, 0xffff0000, v29")
    e("v_add_f32 v30, v30, v31"); e("v_add_f32 v28, v28, v29")
    e("v_mov_b32 v31, v30"); e("v_mov_b32 v29, v28"); e("v_permlane32_swap_b32 v30, v31"); e("v_permlane32_swap_b32 v28, v29"); e("v_add_f32 v30, v30, v31"); e("v_add_f32 v28, v28, v29")
    e("v_mov_b32 v31, v30"); e("v_mov_b32 v29, v28"); e("v_permlane16_swap_b32 v30, v31"); e("v_permlane16_swap_b32 v28, v29"); e("v_add_f32 v30, v30, v31"); e("v_add_f32 v28, v28, v29")
    e(f"v_add_f32 v{vXR}, v{vXR}, v30"); e(f"v_add_f32 v{vXR+1}, v{vXR+1}, v28")
    e(f"v_cvt_pk_bf16_f32 v28, v{vXR}, v{vXR+1}")
def own_loads(a0, a1, soff): return [f"buffer_load_dword v28, v{a0}, {sr(sW)}, {soff} offen sc1", f"buffer_load_dword v29, v{a1}, {sr(sW)}, {soff} offen sc1"]
def base_store(ob):
    e(f"s_lshl_b32 s{sT0}, s{sJ}, 6"); e(f"s_add_u32 s{sT0}, s{sT0}, s{sLG}"); e(f"s_add_u32 s{sT0}, s{sT0}, {ob}"); e(f"v_lshlrev_b32 v32, 2, v{vL}")
    pack_store16(28, lambda: lstore(f"buffer_store_dwordx4 v[28:31], v32, {sr(sW)}, s{sT0} offen"))
e(f"s_cmp_eq_u32 s{sLay}, 0"); e("s_cbranch_scc1 WLATE")
def t_():
    lab("WLATE")
    if JIT: jitter(JIT, 40)
    if WT[4]: wdma_addr(); wdma(WT[4])
    if "cs" not in SKIP: cs_store()
    assert FGE
    for q in range(3): e(f"v_accvgpr_read_b32 v{2+q}, a{246+q}")
    for r_ in [SPARE + 4 * kk for kk in range(6)] + [25, 27, 37, 39]: e(f"v_mov_b32 v{r_}, 0")
    for x in fl0: e(x)
    e("s_waitcnt vmcnt(8)")
    for x in trs[:TRN]: e(x)
    e(f"s_lshl_b32 s{sT0}, s{sG}, 2"); e(f"s_add_u32 s{sT0}, s{sT0}, s{sWV}"); e(f"s_mul_i32 s{sT0}, s{sT0}, {48*1280}"); e(f"s_lshl_b32 s{sT1}, s{sJ}, 6"); e(f"s_add_u32 s{sT0}, s{sT0}, s{sT1}")
    e(f"v_min_u32 v35, 47, v{vL}"); e("v_mul_u32_u24 v35, 1280, v35"); e(f"v_add_u32 v35, s{sT0}, v35")
    wfirst(); e("s_branch WCHK")
near.append(t_)
for q in range(3): e(f"v_accvgpr_read_b32 v{2+q}, a{246+q}")
for kk in range(6): e(f"v_mov_b32 v{SPARE+4*kk}, 0")
TRN = int(OPT.get("trn", 10))
trs = [f"ds_read_b64_tr_b16 {vr(F+24*t+4*kk+2*h,2)}, v2 offset:{(32*kk+4*h)*64+32*t}" for kk in range(6) for t in range(2) for h in range(2)]
for x in trs[:TRN]: e(x)
def own0():
    e(f"s_cmp_lg_u32 s{sWV}, 1"); e("s_cbranch_scc1 NOOWN0")
    e("v_accvgpr_read_b32 v28, a244"); e("v_accvgpr_read_b32 v29, a245")
    late_check("none", own_loads(vC1, vC2, "0"), [28, 29], 30)
    owner_add()
    if OWP != 2: base_store(oBA)
    lab("NOOWN0")
OWP = int(OPT.get("owp", 0))
if not OWP: own0()
MLR = [24, 36]
for _ in range(int(OPT.get("od", 0))): e("s_nop 7")
for q in (25, 27, 37, 39): e(f"v_mov_b32 v{q}, 0")
def wfirst():
    for x in trs[TRN:]: e(x)
    e("v_accvgpr_read_b32 v5, a249"); rep_addr(18, 6); e("v_and_b32 v6, 0xffffff7f, v5")
ol = [f"buffer_load_dwordx4 {vr(SPARE+4*kk)}, v3, {sr(sW)}, s{sLG} offen offset:{512*kk} sc1" for kk in range(6)]
ml = [f"buffer_load_dwordx4 {vr(MLR[q])}, v4, {sr(sW)}, s{sLG} offen offset:{16*q} sc1" for q in range(2)]
fl0 = ["s_mov_b32 exec_lo, 0x00ff00ff", "s_mov_b32 exec_hi, 0x00ff00ff"] + ol + ["s_mov_b32 exec_lo, -1", "s_mov_b32 exec_hi, 0"] + ml + ["s_mov_b64 exec, -1"]
poll_sel([(ol, [SPARE + 4 * kk for kk in range(6)]), (ml, [25, 27, 37, 39])], 28, pid=7, first=lambda: (wfirst(), own0() if OWP else None), firstloads=fl0, wl="WCHK")
e("s_waitcnt lgkmcnt(0)")
stamp(8)
W2T = int(OPT.get("w2t", 0))
if W2T:
    e(f"s_cmp_lg_u32 s{sLay}, 0"); e("s_cbranch_scc1 NOW2T"); e(f"buffer_load_dword a243, v35, {sr(sRC)}, 0 offen"); lab("NOW2T")
M_, U_, L_ = SPARE, SPARE + 1, SPARE + 2
mm_ = [24, 26, 36, 38]
co = [[], [f"v_max3_f32 v{M_}, v24, v26, v36", f"v_max_f32 v{M_}, v{M_}, v38"], [f"v_mov_b32 v{U_}, v{M_}"], [f"v_permlane16_swap_b32 v{M_}, v{U_}", f"v_max_f32 v{M_}, v{M_}, v{U_}"],
      [f"v_sub_f32 v24, v24, v{M_}", f"v_sub_f32 v26, v26, v{M_}"], [f"v_sub_f32 v36, v36, v{M_}", f"v_sub_f32 v38, v38, v{M_}"],
      ["v_exp_f32 v24, v24"], ["v_exp_f32 v26, v26"], ["v_exp_f32 v36, v36"], ["v_exp_f32 v38, v38"],
      [f"v_mul_f32 v{L_}, v24, v25", f"v_fmac_f32 v{L_}, v26, v27"], [f"v_fmac_f32 v{L_}, v36, v37", f"v_fmac_f32 v{L_}, v38, v39"]]
for kk in range(6):
    for t in range(2):
        c = "0" if kk == 0 else vr(28 + 4 * t)
        e(f"v_mfma_f32_16x16x32_bf16 {vr(28+4*t)}, {vr(SPARE+4*kk)}, {vr(F+24*t+4*kk)}, {c}")
        for x in co.pop(0): e(x)
e(f"v_mov_b32 v{U_}, v{L_}"); e(f"s_cmp_lg_u32 s{sWV}, 0"); e(f"v_permlane16_swap_b32 v{L_}, v{U_}"); e(f"v_add_f32 v{L_}, v{L_}, v{U_}"); e(f"v_rcp_f32 v{L_}, v{L_}")
for t in range(2): e(f"v_mul_f32 v{28+4*t}, v24, v{28+4*t}")
for q in range(1, 4):
    for t in range(2): e(f"v_fmac_f32 v{28+4*t}, v{mm_[q]}, v{28+4*t+q}")
e("v_permlane16_swap_b32 v28, v32"); e("v_add_f32 v28, v28, v32"); e(f"v_mul_f32 v28, v28, v{L_}")
e(f"ds_write_b32 v5, v28")
e("s_waitcnt lgkmcnt(0)"); e("s_barrier")
e("s_cbranch_scc1 WNOT0")
assert (ACC + YACC) % 256 == 0
e("ds_read2st64_b32 v[28:29], v6 offset0:0 offset1:1"); e("ds_read2st64_b32 v[30:31], v6 offset0:2 offset1:3")
e("s_waitcnt lgkmcnt(1)"); e("v_add_f32 v28, v28, v29"); e("s_waitcnt lgkmcnt(0)"); e("v_add_f32 v30, v30, v31"); e("v_add_f32 v28, v28, v30")
pack8q(28)
e("s_mov_b64 exec, s[46:47]")
e(f"buffer_store_dwordx4 v[28:31], v18, {sr(sW)}, s{sYg} offen sc1")
setexec(0x01010101)
lstore(f"buffer_store_dwordx4 v[28:31], v18, {sr(sW)}, s{sYl} offen")
setexec(FULL)
stamp(9); stamp(9, "c")
e(f"v_add_u32 v{SPARE+23}, {W2-WO}, v2")
trs2 = [x.replace(", v2 offset", f", v{SPARE+23} offset") for x in trs]
e(f"s_cmp_lg_u32 s{sLay}, 0"); e("s_cbranch_scc1 W2OK")
wdma_addr(False); e(f"s_mul_i32 s{sT0}, s{sG}, {192*1280}"); e(f"s_lshl_b32 s{sT1}, s{sJ}, 6"); e(f"s_add_u32 s{sT0}, s{sT0}, s{sT1}")
for n in range(12 if "w2" not in SKIP else 0):
    e(f"s_mov_b32 m0, {W2+1024*n}"); e(f"buffer_load_dwordx4 v39, {sr(sRC)}, s{sT0} offen lds"); e(f"s_add_u32 s{sT0}, s{sT0}, {16*1280}")
e("s_branch W2X")
lab("W2OK")
for x in trs2: e(x)
lab("W2X")
HD = SPARE + 12
for q in (0, 1, 4, 5): e(f"v_mov_b32 v{HD+q}, 0")
e(f"s_add_u32 s96, s{sYg}, {oFG-oYG}"); e(f"s_add_u32 s97, s{sYl}, {oFL-oYL}")
lab("STB")
stamp(4, "d")
e(f"s_mul_i32 s{sT0}, s{sWV}, 48"); e(f"v_min_u32 v6, 47, v{vL}"); e(f"v_add_u32 v6, s{sT0}, v6"); e("v_lshlrev_b32 v4, 4, v6"); e(f"v_add_u32 v{SPARE+20}, {CSO}, v4"); e("v_lshlrev_b32 v4, 2, v6")
e(f"v_cmp_le_u32 vcc, 48, v{vL}"); e("v_mov_b32 v24, 768"); e("v_cndmask_b32 v4, v4, v24, vcc"); e("v_add_u32 v5, 3584, v4")
e("v_lshrrev_b32 v24, 4, v6"); e("v_lshlrev_b32 v24, 5, v24"); e("v_bfe_u32 v25, v6, 1, 1"); e("v_lshl_add_u32 v24, v25, 4, v24"); e("v_bfe_u32 v25, v6, 2, 2"); e("v_lshl_add_u32 v24, v25, 2, v24")
e("v_and_b32 v25, 1, v6"); e("v_lshl_add_u32 v24, v25, 1, v24"); e(f"v_add_u32 v24, {QB}, v24"); e(f"v_mov_b32 v25, {QB+384}"); e("v_cndmask_b32 v6, v24, v25, vcc")
e(f"v_mov_b32 v{SPARE+21}, 0x3727c5ac"); e(f"v_mov_b32 v{SPARE+22}, 0x3acccccd"); e(f"s_add_u32 s{sT2}, s{sLG}, {oGX}")
e("v_accvgpr_read_b32 v2, a250"); e("v_accvgpr_read_b32 v3, a251"); e(f"s_add_u32 s{sTL}, s{sLay}, s{sWV}")
def sum4(b): e(f"v_add_f32 v{b}, v{b}, v{b+1}"); e(f"v_add_f32 v{b+2}, v{b+2}, v{b+3}"); e(f"v_add_f32 v{b}, v{b}, v{b+2}")
gl = [f"buffer_load_dword v{T+4*k+q}, v{4+k}, {sr(sW)}, s{sT2} offen offset:{896*q} sc1" for q in range(4) for k in range(2)]
def gsum():
    e(f"v_add_f32 v{T}, v{T}, v{T+1}"); e(f"v_add_f32 v{T+4}, v{T+4}, v{T+5}"); e(f"v_add_f32 v{T+2}, v{T+2}, v{T+3}"); e(f"v_add_f32 v{T+6}, v{T+6}, v{T+7}")
    e(f"v_add_f32 v{T+4}, v{T+4}, v{T+6}"); e(f"v_add_f32 v{T}, v{T}, v{T+2}")
e(f"s_mov_b32 s{sCnt}, 1"); e(f"s_cmp_eq_u32 s{sLay}, 0"); e("s_cbranch_scc1 GPF")
lab("GPO")
stamp(5, "d")
e(f"s_cmp_eq_u32 s{sWV}, 1"); e("s_cbranch_scc1 WOWN")
lab("GP1")
for l in gl: e(l)
e("s_waitcnt vmcnt(0)"); gsum(); e(f"v_cmp_u_f32 vcc, v{T}, v{T+4}"); e("s_cbranch_vccnz GA1")
lab("GPX")
def t_():
    lab("GA1"); e(f"s_add_u32 s{sCnt}, s{sCnt}, 1"); e(f"s_cmp_lt_u32 s{sCnt}, {LIMIT}"); e("s_cbranch_scc1 GP1"); e("s_branch GPX")
    cl = [f"buffer_load_dwordx4 {vr(T+8)}, v{SPARE+20}, {sr(sW)}, s{sT2} offen sc1", f"buffer_load_dwordx4 {vr(T+12)}, v{SPARE+20}, {sr(sW)}, s{sT2} offen offset:3072 sc1"]
    lab("GPF")
    e(f"s_cmp_lg_u32 s{sWV}, 0"); e("s_cbranch_scc1 GP0")
    for l in cl: e(l)
    e("s_waitcnt vmcnt(2)")
    for x in trs2: e(x)
    e("s_branch GPW")
    lab("GP0")
    for l in cl: e(l)
    lab("GPW")
    e(f"s_add_u32 s{sCnt}, s{sCnt}, 1"); e(f"s_cmp_ge_u32 s{sCnt}, {LIMIT}"); e("s_waitcnt vmcnt(0)")
    e(f"v_add_f32 v2, v{T+8}, v{T+9}"); e(f"v_add_f32 v3, v{T+12}, v{T+13}"); e(f"v_add_f32 v{T+10}, v{T+10}, v{T+11}"); e(f"v_add_f32 v{T+14}, v{T+14}, v{T+15}")
    e(f"v_add_f32 v2, v2, v{T+10}"); e(f"v_add_f32 v3, v3, v{T+14}"); e("v_cmp_u_f32 vcc, v2, v3"); e("s_cbranch_scc1 GPO")
    e("s_cbranch_vccnz GP0"); e("s_branch GPO")
near.append(t_)
stamp(10)
EPS, INV = SPARE + 21, SPARE + 22
e(f"v_readlane_b32 s{sT0}, v{T+4}, 48"); e(f"v_readlane_b32 s{sT1}, v{T}, 48"); e(f"s_cmp_lg_u32 s{sTL}, 1"); e("s_cbranch_scc0 OWL"); lab("OWB")
def t_():
    lab("OWL"); e(f"buffer_load_dword v34, v37, {sr(sW)}, 0 offen sc1"); e(f"buffer_load_dword v35, v38, {sr(sW)}, 0 offen sc1"); e("s_branch OWB")
near.append(t_)
e(f"v_mul_f32 v{T+1}, s{sT0}, v{INV}"); e(f"v_fma_f32 v{T+2}, s{sT1}, v{INV}, v{EPS}")
e(f"v_fma_f32 v{T+2}, -v{T+1}, v{T+1}, v{T+2}"); e(f"v_add_f32 v{T+1}, 1.0, v{T+1}"); e(f"v_max_f32 v{T+2}, v{T+2}, v{EPS}")
e(f"v_fma_f32 v{T}, -v{T+1}, v2, v{T}"); e(f"v_rsq_f32 v{T+3}, v{T+2}"); e(f"v_mul_f32 v{T+5}, 0xbfb8aa3b, v{T}"); e(f"v_mul_f32 v{T+5}, v{T+5}, v{T+3}"); e(f"v_exp_f32 v{T+5}, v{T+5}")
e(f"v_fma_f32 v{T+4}, -v{T+1}, v3, v{T+4}"); e(f"v_fma_f32 v{T+5}, v{T+5}, v{T+2}, v{T+2}"); e(f"v_rcp_f32 v{T+5}, v{T+5}"); e(f"v_mul_f32 v{T+4}, v{T+4}, v{T}")
e(f"v_mul_f32 v{T+4}, v{T+4}, v{T+5}"); e(f"v_cvt_pk_bf16_f32 v{T+4}, v{T+4}, v{T+4}"); e(f"ds_write_b16 v6, v{T+4}")
e("v_accvgpr_write_b32 a250, v2"); e("v_accvgpr_write_b32 a251, v3"); e(f"s_cmp_lg_u32 s{sWV}, 0")
e("s_waitcnt lgkmcnt(0)"); e("s_barrier")
e("s_cbranch_scc1 STBX")
for ks in range(3): e(f"ds_read_b128 {vr(SPARE+4*ks)}, v{vQBr} offset:{128*ks}")
for ks in range(3):
    e(f"s_waitcnt lgkmcnt({2-ks})")
    for t in range(2): e(f"v_smfmac_f32_16x16x64_bf16 {vr(HD+4*t)}, {vr(SPARE+4*ks)}, {vr(F+24*t+8*ks, 8)}, v{vIdx}")
e(f"v_add_f32 v28, v{HD}, v{HD+1}"); e(f"v_add_f32_dpp v28, v{HD+4}, v{HD+5} quad_perm:[0,1,2,3] row_mask:0xa bank_mask:0xf")
pack8q(28)
e("s_mov_b64 exec, s[48:49]")
e(f"buffer_store_dwordx4 v[28:31], v18, {sr(sW)}, s96 offen sc1")
setexec(0x01010101)
lstore(f"buffer_store_dwordx4 v[28:31], v18, {sr(sW)}, s97 offen")
setexec(FULL)
stamp(11)
e("s_branch NEXT")
flush_near()
lab("WNOT0")
if JIT: jitter(JIT, 40)
e(f"s_cmp_lg_u32 s{sLay}, 0"); e("s_cbranch_scc1 STB"); e(f"s_cmp_eq_u32 s{sWV}, 1"); e("s_cbranch_scc1 WPREP"); e(f"s_cmp_eq_u32 s{sWV}, 3"); e("s_cbranch_scc1 WLC")
for q in range(4): e(f"v_mov_b32 v{F+12+q}, -1")
e(f"s_add_u32 s{sT0}, s{sYg}, {LS}"); e(f"s_add_u32 s{sT3}, s{sT0}, {oFG-oYG}")
if int(OPT.get("gcd", 8)): e(f"s_sleep {OPT.get('gcd', 8)}")
e("s_mov_b64 exec, s[44:45]"); e(f"buffer_store_dwordx4 {vr(F+12)}, v18, {sr(sW)}, s{sT0} offen sc1")
setexec(0x01010101); e(f"buffer_store_dwordx4 {vr(F+12)}, v18, {sr(sW)}, s{sT3} offen sc1")
setexec(FULL)
e("s_branch WPREP")
lab("WLC")
LCW = int(OPT.get("lcw", 1))
if LCW:
    lo_ = oO if LCW == 1 else 0; ng = (oGX + CSO - lo_) // 16; per = -(-ng // 20); ni = -(-per // 64)
    e(f"s_mul_i32 s{sT0}, s{sJ}, {per*16}"); e(f"s_add_u32 s{sT1}, s{sLG}, {LS+lo_}")
    for q in range(ni): e(f"v_add_u32 v{100+q}, s{sT0}, v{vLin}"); e(f"v_min_u32 v{100+q}, {ng*16-16}, v{100+q}"); e(f"s_add_u32 s{sT0}, s{sT0}, 1024")
    for q in range(4): e(f"v_mov_b32 v{104+q}, -1")
    loop_prep()
    if JIT: jitter(JIT, 60)
    for q in range(ni): lstore(f"buffer_store_dwordx4 v[104:107], v{100+q}, {sr(sW)}, s{sT1} offen")
    e("s_branch STB")
lab("WPREP")
e("s_nop 1"); loop_prep()
e("s_branch STB")
lab("WOWN")
e(f"v_and_b32 v25, 15, v{vL}"); e(f"v_lshrrev_b32 v26, 4, v{vL}")
rowbase(37, 26, oYG, oYL, None, 38); e("v_add_u32 v39, 4, v26"); rowbase(38, 39, oYG, oYL, None, 28)
e(f"s_lshl_b32 s{sT0}, s{sJ}, 6"); e(f"s_add_u32 s{sT0}, s{sT0}, s{sLay}"); e(f"v_lshl_add_u32 v25, v25, 2, s{sT0}")
e("v_add_u32 v37, v25, v37"); e("v_add_u32 v38, v25, v38")
e(f"s_cmp_eq_u32 s{sLay}, 0"); e("s_cbranch_scc1 GP1")
if not int(OPT.get("oall", 1)): e(f"s_cmp_lg_u32 s{sG}, 0"); e("s_cbranch_scc1 GP1")
e(f"s_sleep {max(ODLY-3, 1)}")
poll(own_loads(37, 38, "0"), [28, 29], 30, slp=int(OPT.get("osp", 2)))
owner_add()
e("s_branch GP1")
lab("STBX")
e(f"s_cmp_lg_u32 s{sWV}, 1"); e("s_cbranch_scc1 NEXT"); e(f"s_cmp_lg_u32 s{sLay}, 0"); e("s_cbranch_scc1 FINAL")
e("s_waitcnt vmcnt(0)"); e("v_mov_b32 v28, v34"); e("v_mov_b32 v29, v35")
late_check("none", own_loads(37, 38, "0"), [28, 29], 30)
owner_add()
base_store(oBB)
stamp(6, "d")
e("s_branch NEXT")
lab("FINAL")
e(f"s_cmp_lg_u32 s{sG}, 0"); e("s_cbranch_scc1 DONE")
e(f"s_lshl_b32 s{sT0}, s{sJ}, 6"); e(f"v_lshlrev_b32 v37, 2, v{vL}")
e(f"s_add_u32 s{sT2}, s{sT0}, s{sLG}"); e(f"s_add_u32 s{sT2}, s{sT2}, {oFL}")
if int(OPT.get("otouch", 0)): setexec(0xffff); e(f"buffer_load_dword v29, v37, {sr(sO)}, s{sT0} offen")
gate(sT2, 4, 28); setexec(FULL)
poll(own_loads(vC1, vC2, f"s{sLay}"), [28, 29], 30)
owner_add()
setexec(0xffff)
e(f"buffer_store_dword v28, v37, {sr(sO)}, s{sT0} offen {OPT.get('ost', '').replace('+', ' ')}")
setexec(FULL)
stamp(12); stamp(12, "c")
e("s_branch DONE") if SPIN else e("s_endpgm")
flush_near()
lab("ROLEF")
e(f"v_and_b32 v25, 15, v{vL}"); e(f"v_lshrrev_b32 v26, 4, v{vL}"); e(f"v_bfe_u32 v27, v{vL}, 2, 2"); e(f"v_and_b32 v36, 3, v{vL}")
FA = SPARE
e(f"s_cmp_lg_u32 s{sLay}, 0"); e("s_cbranch_scc1 FW")
WG_ = int(OPT.get("fg", -1))
if WG_ >= 0:
    e(f"v_lshlrev_b32 v37, 3, v{vL}"); e(f"s_add_u32 s{sT0}, s{sLG}, {oML}"); e(f"s_mov_b32 s{sCnt}, 0"); e("s_mov_b32 exec_lo, -1"); e("s_mov_b32 exec_hi, 0")
    lab("W2G"); e(f"buffer_load_dword v38, v37, {sr(sW)}, s{sT0} offen sc1"); e(f"s_add_u32 s{sCnt}, s{sCnt}, 1"); e("s_waitcnt vmcnt(0)")
    e("v_cmp_eq_u32 vcc, -1, v38"); e(f"s_bcnt1_i32_b64 s{sT1}, vcc"); e(f"s_cmp_ge_u32 s{sCnt}, 64"); e("s_cbranch_scc1 W2GX"); e(f"s_cmp_gt_u32 s{sT1}, {WG_}"); e("s_cbranch_scc1 W2G")
    lab("W2GX"); setexec(FULL)
if FT[4]: fdma_addr(); fdma(sum(FT[:4]), FT[4])
e(f"s_sub_u32 s96, s{sJ}, 20"); e("s_lshl_b32 s96, s96, 2"); e(f"s_add_u32 s96, s96, s{sWV}")
if int(OPT.get("w2pf", 0)):
    e(f"s_mul_i32 s97, s{sG}, 48"); e("s_add_u32 s97, s97, s96"); e("s_mul_i32 s97, s97, 5120")
    for n in range(5):
        if n == 4: e("s_add_u32 s97, s97, 4096")
        e(f"buffer_load_dwordx4 a[240:243], v{vLin}, {sr(sRC)}, s97 offen offset:{1024*(n%4)}")
assert LCW == 1 and 128 * 4 * 128 >= oGX + CSO
if LCW:
    e(f"s_mul_i32 s96, s96, {43*16}"); e(f"v_add_u32 v21, s96, v{vLin}"); e(f"v_min_u32 v21, {32768-16}, v21"); e(f"s_add_u32 s97, s{sLG}, {LS+oQ}")
else:
    e(f"s_mul_i32 s96, s96, {74*16}"); e(f"s_add_u32 s97, s{sLG}, {LS}"); e("s_add_u32 s97, s97, s96")
    e(f"buffer_load_dwordx4 a[240:243], v{vLin}, {sr(sW)}, s97 offen sc1"); setexec(0x3ff); e(f"buffer_load_dwordx4 a[240:243], v{vLin}, {sr(sW)}, s97 offen offset:1024 sc1"); setexec(FULL)
cs_store()
lab("FW")
e(f"s_lshl_b32 s{sT0}, s{sWV}, 5"); e(f"v_lshl_add_u32 v80, v36, 3, s{sT0}"); e("v_lshrrev_b32 v37, 1, v27"); e("v_and_b32 v38, 1, v26"); e("v_lshl_add_u32 v37, v38, 1, v37"); e("v_lshlrev_b32 v37, 5, v37")
e("v_xor_b32 v80, v80, v37"); e("v_lshl_add_u32 v37, v26, 3, v27"); e("v_lshl_add_u32 v80, v37, 7, v80"); e(f"v_add_u32 v80, {W1}, v80")
e(f"s_sub_u32 s{sT2}, s{sJ}, 20"); e(f"s_and_b32 s{sT3}, s{sT2}, 12"); e(f"s_add_u32 s{sT3}, s{sT3}, s{sWV}"); e(f"s_lshl_b32 s{sT1}, s{sT3}, 8")
e(f"v_lshl_add_u32 v83, v25, 4, s{sT1}"); e("v_lshrrev_b32 v84, 2, v83"); e("v_mov_b32 v37, 768"); e("v_cmp_le_u32 vcc, 2, v26"); e("v_cndmask_b32 v84, v84, v37, vcc")
e("v_and_b32 v37, 1, v26"); e("v_mul_u32_u24 v37, 3584, v37"); e("v_add_u32 v84, v84, v37")
e(f"s_cmp_eq_u32 s{sT3}, 0"); e("s_mov_b32 s52, -1"); e("s_cselect_b32 s53, 0x10001, 0")
e(f"s_and_b32 s{sT2}, s{sT2}, 3"); e(f"s_mul_i32 s{sT1}, s{sT2}, 892"); e(f"s_sub_u32 s{sT1}, {CSO}, s{sT1}"); e(f"v_add_u32 v83, s{sT1}, v83")
e(f"s_mul_i32 s{sT1}, s{sT2}, 896"); e(f"s_add_u32 s{sT1}, s{sT1}, s{sLG}"); e(f"s_add_u32 s{sT1}, s{sT1}, {oGX}"); e(f"s_mul_i32 s{sT2}, s{sT2}, 320")
e("v_cmp_eq_u32 vcc, 12, v25")
e("v_mov_b32 v38, 0x3f803f80"); e(f"v_cndmask_b32 v{FA}, 0, v38, vcc")
for q in range(1, 20): e(f"v_mov_b32 v{FA+q}, v{FA}")
FG = [86, 18, 20]
if "f" in SHB:
    e(f"v_mul_u32_u24 v6, 336, v25"); e("v_lshl_add_u32 v6, v26, 4, v6")
    e(f"s_mul_i32 s{sT0}, s{sWV}, 45"); e(f"v_min_u32 v27, 44, v{vL}"); e(f"v_add_u32 v27, s{sT0}, v27"); e("v_mul_u32_u24 v37, 205, v27"); e("v_lshrrev_b32 v37, 12, v37")
    e("v_add_u32 v87, v37, v27"); e("v_lshlrev_b32 v87, 4, v87"); e("v_mul_u32_u24 v38, 20, v37"); e("v_sub_u32 v27, v27, v38"); e("v_lshlrev_b32 v27, 4, v27")
    assert all((c * 205) >> 12 == c // 20 for c in range(180))
    rowbase(86, 37, oYG, oYL, oBA, 38); e("v_add_u32 v86, v86, v27")
else:
    e(f"s_mul_i32 s{sT0}, s{sWV}, {SCRW}")
    e(f"v_mul_u32_u24 v6, 336, v25"); e("v_lshl_add_u32 v6, v26, 4, v6"); e(f"v_add_u32 v6, s{sT0}, v6")
    e(f"v_mul_u32_u24 v37, 52, v{vL}"); e("v_lshrrev_b32 v37, 10, v37")
    e(f"v_lshl_add_u32 v87, v37, 4, v{vLin}"); e(f"v_add_u32 v87, s{sT0}, v87")
    e(f"v_mul_u32_u24 v27, 320, v37"); e(f"v_sub_u32 v27, v{vLin}, v27")
    for i in range(3):
        rowbase(FG[i], 37, oYG, oYL, oBA, 38); e(f"v_add_u32 v{FG[i]}, v{FG[i]}, v27")
        if i < 2: e("v_add_u32 v37, 3, v37")
e(f"s_add_u32 s{sT0}, s{sT2}, s{sLay}"); e(f"s_add_u32 s{sT2}, s{sT2}, s{sLG}"); e(f"s_add_u32 s{sT2}, s{sT2}, {oYL}")
e(f"s_cmp_lg_u32 s{sLay}, 0"); e("s_cbranch_scc1 FW1")
for q in range(4): e(f"v_mov_b32 v{T+q}, -1")
e("s_waitcnt vmcnt(0)")
if JIT: jitter(JIT, 40)
if LCW: lstore(f"buffer_store_dwordx4 {vr(T)}, v21, {sr(sW)}, s97 offen")
else: lstore(f"buffer_store_dwordx4 {vr(T)}, v{vLin}, {sr(sW)}, s97 offen"); setexec(0x3ff); lstore(f"buffer_store_dwordx4 {vr(T)}, v{vLin}, {sr(sW)}, s97 offen offset:1024"); setexec(FULL)
e("s_barrier"); stamp(13)
lab("FW1")
for t in range(2):
    for kk in range(5):
        for h in range(2): e(f"ds_read_b64_tr_b16 {vr(F+20*t+4*kk+2*h,2)}, v80 offset:{(32*kk+4*h)*128+20480*t}")
CD = [108, 2]
e(f"s_cmp_lg_u32 s{sLay}, 0"); e("s_cbranch_scc1 FW3")
e("s_waitcnt lgkmcnt(0)")
for kk in range(5):
    for t in range(2): e(f"v_mfma_f32_16x16x32_bf16 {vr(CD[t])}, {vr(FA+4*kk)}, {vr(F+20*t+4*kk)}, " + ("0" if kk == 0 else vr(CD[t])))
lab("FW3")
def cs_pub():
    e(f"s_cmp_eq_u32 s{sLay}, 0"); e("s_cbranch_scc1 CSP"); e("s_waitcnt vmcnt(0)"); lab("CSB")
    def t():
        lab("CSP"); setexec(0xFFFF << 48)
        lstore(f"buffer_store_dword v{CD[0]}, v83, {sr(sW)}, s{sT1} offen"); lstore(f"buffer_store_dword v{CD[1]}, v83, {sr(sW)}, s{sT1} offen offset:3072")
        setexec((1 << (45 if "f" in SHB else 60)) - 1); e("s_branch CSB")
    near.append(t)
gate(sT2, 20, 36)
setexec((1 << (45 if "f" in SHB else 60)) - 1)
if "f" in SHB: sbounce(f"buffer_load_dwordx4 {vr(T)}, v86, {sr(sW)}, s{sT0} offen sc1", T, f"ds_write_b128 v87, {vr(T)}", [f"ds_read_b128 {vr(FA+4*kk)}, v6 offset:{64*kk}" for kk in range(5)], first=cs_pub, w1=2)
else: bounce([([f"buffer_load_dwordx4 {vr(T+4*i)}, v{FG[i]}, {sr(sW)}, s{sT0} offen sc1"], [T + 4 * i]) for i in range(3)], 36,
       [f"ds_write_b128 v87, {vr(T+4*i)} offset:{3*336*i}" for i in range(3)], [f"ds_read_b128 {vr(FA+4*kk)}, v6 offset:{64*kk}" for kk in range(5)], first=cs_pub, w1=2)
stamp(8)
G_, R2, R3 = T + 12, T + 13, T + 14
for kk in range(5):
    e(f"s_waitcnt lgkmcnt({4-kk})")
    e(f"v_mfma_f32_16x16x32_bf16 {vr(T+8)}, {vr(FA+4*kk)}, {vr(FA+4*kk)}, " + ("0" if kk == 0 else vr(T + 8)))
dp = lambda dst, sft, rm: f"v_add_f32_dpp v{dst}, v{G_}, v{G_} row_ror:{sft} row_mask:{rm:#x} bank_mask:0xf"
sh = [[f"v_mov_b32 v{G_}, 0", f"v_mov_b32 v{R2}, 0"], [f"v_mov_b32 v{R3}, 0", "s_nop 0"], [],
      [f"v_add_f32 v{T+8}, v{T+8}, v{T+9}", f"v_add_f32 v{T+10}, v{T+10}, v{T+11}"], [],
      [f"v_add_f32_dpp v{G_}, v{T+8}, v{T+10} quad_perm:[0,1,2,3] row_mask:0xf bank_mask:0x7"], ["s_nop 0", dp(G_, 8, 15)], ["s_nop 0", dp(G_, 4, 15)],
      ["s_nop 0", dp(G_, 2, 15)], []]
for t in range(2):
    for kk in range(5):
        e(f"v_mfma_f32_16x16x32_bf16 {vr(T+4*t)}, {vr(FA+4*kk)}, {vr(F+20*t+4*kk)}, " + ("0" if kk == 0 else vr(T + 4 * t)))
        for x in sh.pop(0): e(x)
e(f"v_add_f32 v{T+1}, v{T}, v{T+1}"); e(dp(R2, 1, 7)); e(dp(R3, 1, 8)); e(f"v_add_f32 v{T+2}, v{T+2}, v{T+3}"); e(f"v_add_f32 v{T+1}, v{T+1}, v{T+2}")
e(f"v_permlane32_swap_b32 v{T+1}, v{R2}")
e(f"v_add_f32 v{T+5}, v{T+4}, v{T+5}"); e(f"v_add_f32 v{T+6}, v{T+6}, v{T+7}"); e(f"v_add_f32 v{T+5}, v{T+5}, v{T+6}"); e(f"v_add_f32 v{T+1}, v{T+1}, v{R2}")
e(f"v_permlane32_swap_b32 v{T+5}, v{R3}"); e(f"v_add_f32 v{T+5}, v{T+5}, v{R3}")
e(f"v_permlane16_swap_b32 v{T+1}, v{T+5}"); e("s_mov_b64 exec, s[52:53]"); e(f"v_add_f32 v{T+1}, v{T+1}, v{T+5}")
lstore(f"buffer_store_dword v{T+1}, v84, {sr(sW)}, s{sT1} offen"); setexec(FULL)
stamp(9)
lab("NEXT")
e(f"s_cmp_lg_u32 s{sLay}, 0"); e("s_cbranch_scc1 DONE")
e(f"s_mov_b32 s{sLay}, {LS}"); e(f"s_add_u32 s{sLG}, s{sLG}, {LS}"); e(f"s_add_u32 s{sYg}, s{sYg}, {LS}"); e(f"s_add_u32 s{sYl}, s{sYl}, {LS}")
e("s_mov_b64 s[46:47], s[44:45]"); e("s_mov_b64 s[48:49], s[92:93]")
e("s_branch LOOP")
flush_near()
lab("DONE")
if SPIN:
    e("v_accvgpr_read_b32 v38, a253"); e("s_nop 1"); e("v_readfirstlane_b32 s96, v38")
    if SPM == "min":
        e("v_not_b32 v38, v38"); e("v_mov_b32 v39, 192"); e("s_mov_b64 exec, 1"); e("global_atomic_umax v39, v38, s[64:65] sc1"); e("s_waitcnt vmcnt(0)")
        lab("SPW"); e("s_sleep 20"); e("s_memrealtime s[98:99]"); e("s_waitcnt lgkmcnt(0)"); e("s_sub_u32 s98, s98, s96"); e(f"s_cmp_lt_u32 s98, {SPIN*100-1500}"); e("s_cbranch_scc1 SPW")
        e("global_load_dword v38, v39, s[64:65] sc1"); e("s_waitcnt vmcnt(0)"); e("v_not_b32 v38, v38"); e("s_nop 1"); e("v_readfirstlane_b32 s96, v38")
    lab("SPINL"); e("s_memrealtime s[98:99]"); e("s_waitcnt lgkmcnt(0)"); e("s_sub_u32 s98, s98, s96"); e(f"s_cmp_lt_u32 s98, {SPIN*100}"); e("s_cbranch_scc1 SPINL")
e("s_endpgm")
i = 0
while i < len(tail): tail[i](); flush_near(); i += 1
lab("CODE_END")
e("s_endpgm")

body = A.pad()
hdr = [f"; @launch grid=(256,1,1) block=(256,1,1) lds={LDSSZ}", '.amdgcn_target "amdgcn-amd-amdhsa--gfx950"', ".text",
       f".globl {NAME}_kernel", ".p2align 8", f".type {NAME}_kernel,@function", f"{NAME}_kernel:"]
ftr = ['.section .rodata,"a"', ".p2align 6", f".amdhsa_kernel {NAME}_kernel", "  .amdhsa_next_free_vgpr 512", "  .amdhsa_next_free_sgpr 102",
       "  .amdhsa_accum_offset 256", "  .amdhsa_group_segment_fixed_size 0", "  .amdhsa_kernarg_size 96", "  .amdhsa_user_sgpr_count 2",
       "  .amdhsa_user_sgpr_kernarg_segment_ptr 1", "  .amdhsa_system_sgpr_workgroup_id_x 1", ".end_amdhsa_kernel"]
src = "\n".join(hdr + body + ftr) + "\n"
import re
for m in re.finditer(r"buffer_\S+ .*offset:(\d+)", src): assert int(m.group(1)) < 4096, m.group(0)
for m in re.finditer(r"ds_\S+ .*offset:(\d+)", src): assert int(m.group(1)) < 65536, m.group(0)
open(OUT, "w").write(src)
```

```python
import os, sys
sys.path.insert(0, os.path.dirname(os.path.abspath(__file__)))
from asmlib import Asm
NAME = "interleave_layers__sliding_block_cached__glu_gated_swiglu__decode"
OPT = dict(a.split("=") for a in sys.argv[2:])
OUT = sys.argv[1] if len(sys.argv) > 1 else f"/code/{NAME}.s"
STAMP = int(OPT.get("stamp", 0))
NT = OPT.get("nt", "nt").replace("x", "")
NTW = OPT.get("ntw", "nt").replace("x", "")
SKIP = OPT.get("skip", "").split(",")
RY0 = int(OPT.get("ry0", 0))
FORCESLOW = int(OPT.get("slow", 0))
SPIN = int(OPT.get("spin", 0))
A = Asm(); e = A.e; lab = A.lab
tail = []

RS = 416; SCRW = 16 * RS
SCR = 0; WQ = 4 * SCRW; ROLE = WQ + 30720
WO = ROLE; W1 = ROLE; W3 = ROLE + 20480; W2 = ROLE + 49152
MISC = ROLE + 61440; QB = MISC; ACC = MISC + 512
OACC = 0; YACC = 3072; FACC = 4096
PT = ACC + 5120; ML4 = PT + 1024
FLG = ML4 + 64
LDSSZ = FLG + 64
FDMA = OPT.get("fdma", "late")
OMASK = int(OPT.get("omask", 1))
WDMA = OPT.get("wdma", "mid")
PF = OPT.get("pf", "ow")
NTP = OPT.get("ntp", "x").replace("x", "")
NTR = OPT.get("ntr", "x").replace("x", "")
GB = 81920; oQ = 0; oO = 32768; oML = 45056; oYL = 45312; oFL = 46592; oBA = 47872; oBB = 49152; oGX = 50432
CSO = 7168
GOFF = 8 * GB; oYG = GOFF; oFG = GOFF + 81920; LS = 0xC8000
OOB = 0x7FFFFFF0
sK, sV, sW, sWQ, sRA, sRB, sRC, sX, sO = 8, 12, 16, 20, 24, 28, 32, 36, 40
sG, sJ, sHH, sS, sWV, sKV, sLay, sFast, sCnt = 68, 69, 70, 71, 72, 73, 74, 75, 76
sT0, sT1, sT2 = 77, 78, 79
sLG = 3
sClr = 4
sXcc = 5
sTL = 6
sT3 = 7
sYg, sYl = 80, 81
sMf = 44
def sr(b): return f"s[{b}:{b+3}]"
def sp(b): return f"s[{b}:{b+1}]"
def vr(b, n=4): return f"v[{b}:{b+n-1}]" if n > 1 else f"v{b}"
def ar(b, n=4): return f"a[{b}:{b+n-1}]"
def srd(d, lo, nbytes):
    e(f"s_mov_b32 s{d}, s{lo}"); e(f"s_and_b32 s{d+1}, s{lo+1}, 0xffff")
    e(f"s_mov_b32 s{d+2}, {nbytes}"); e(f"s_mov_b32 s{d+3}, 0x20000")
MASKS = {}
def setexec(mask):
    if mask in MASKS: e(f"s_mov_b64 exec, {sp(MASKS[mask])}"); return
    lo, hi = mask & 0xffffffff, mask >> 32
    if mask == (1 << 64) - 1: e("s_mov_b64 exec, -1")
    elif hi == 0 and lo <= 64: e(f"s_mov_b64 exec, {lo}")
    else: e(f"s_mov_b32 exec_lo, {lo:#x}"); e(f"s_mov_b32 exec_hi, {hi:#x}")
FULL = (1 << 64) - 1
ROWS9 = 0x01FF01FF01FF01FF
vL, vLin, vWr, vKrd, vVrd, vCS, vAq, vAq16, vQst, vQld, vQBw, vQBr, vIdx, vAcc, vTq1, vTq2, vSC, vPw = 0, 1, 2, 5, 6, 7, 8, 9, 10, 11, 12, 13, 14, 15, 16, 17, 18, 19
vC1, vC2, vXR = 20, 21, 22
T = 24
F = 40
SPARE = 88
def vblock(b):
    if b < 2: return ("a", 192 + 24 * b)
    if b == 8: return ("v", SPARE)
    return ("v", 112 + 24 * (b - 2))
def rg(f, b, n): return f"{f}[{b}:{b+n-1}]"

uid = [0]
def nid(): uid[0] += 1; return uid[0]
stamps = [0]
SPINAT = int(OPT.get("spinat", -1))
DA, DB, DC = int(OPT.get("da", -1)), int(OPT.get("db", -1)), int(OPT.get("dc", 0))
JIT = int(OPT.get("jit", 0))
def jitter(mask, prob):
    k = nid()
    e("s_cselect_b32 s98, 1, 0")
    e("s_memtime s[100:101]"); e("s_waitcnt lgkmcnt(0)"); e("s_mul_i32 s100, s100, 0x9e3779b1"); e("s_lshr_b32 s99, s100, 24"); e(f"s_cmp_ge_u32 s99, {prob}"); e(f"s_cbranch_scc1 JX{k}")
    e("s_lshr_b32 s99, s100, 12"); e(f"s_and_b32 s99, s99, {mask}")
    lab(f"JL{k}"); e("s_sleep 4"); e("s_sub_u32 s99, s99, 1"); e("s_cmp_ge_i32 s99, 0"); e(f"s_cbranch_scc1 JL{k}")
    lab(f"JX{k}"); e("s_cmp_eq_u32 s98, 1")
def stamp(i, val=None):
    if JIT and val is None: jitter(JIT, 24); return
    if DA >= 0 and val is None and i in (DA % 16, DB % 16):
        for which, idx in (("a", DA), ("b", DB)):
            if idx % 16 != i: continue
            k = nid()
            e("s_cselect_b32 s98, 1, 0"); e(f"s_cmp_lg_u32 s{sLay}, {LS*(idx//16)}"); e(f"s_cbranch_scc1 ND{k}")
            e("s_memrealtime s[100:101]"); e("s_waitcnt lgkmcnt(0)")
            if which == "a": e("s_mov_b32 s54, s100")
            else:
                e("s_sub_u32 s100, s100, s54")
                if DC: e(f"s_sub_u32 s100, {DC}, s100"); e("s_max_i32 s100, s100, 0")
                e("s_min_u32 s100, s100, 1000"); e("s_mul_i32 s55, s100, 10")
            lab(f"ND{k}"); e("s_cmp_eq_u32 s98, 1")
    if SPIN and val is None and SPINAT % 16 == i:
        k = nid()
        e(f"s_cmp_lg_u32 s{sLay}, {LS*(SPINAT//16)}"); e(f"s_cbranch_scc1 NOSP{k}")
        e("s_memrealtime s[100:101]"); e("s_waitcnt lgkmcnt(0)"); e("v_accvgpr_write_b32 a253, s100"); lab(f"NOSP{k}")
    if not STAMP: return
    if STAMP == 3 and (val is not None or i != 7): return
    if val == "d":
        if STAMP != 6: return
        val = None
    elif STAMP == 6 and (val is not None or i not in (9, 10, 11)): return
    if STAMP == 5 and (val is not None or i not in (9, 11, 12, 13)): return
    if STAMP == 4 and val != "c": return
    if val == "c":
        if STAMP != 4: return
        val = None
    if STAMP == 2 and val is None and i not in (0, 14): return
    if STAMP == 1 and (val is not None or i == 14): return
    e("s_memrealtime s[100:101]"); e("v_accvgpr_write_b32 a254, v38"); e("v_accvgpr_write_b32 a255, v39")
    e(f"s_lshl_b32 s98, s2, 2"); e(f"s_add_u32 s98, s98, s{sWV}"); e("s_lshl_b32 s98, s98, 7")
    e(f"s_cmp_eq_u32 s{sLay}, 0"); e(f"s_cselect_b32 s99, 0, 64"); e(f"s_add_u32 s99, s99, {4*i}"); e("s_add_u32 s98, s98, s99"); e("s_add_u32 s98, s98, 0x40000000")
    e("s_waitcnt lgkmcnt(0)"); e(f"v_mov_b32 v38, {val or 's100'}"); e("v_mov_b32 v39, 0")
    e("s_mov_b64 s[100:101], exec"); e("s_mov_b64 exec, 1")
    A.vmem(f"buffer_store_dword v38, v39, {sr(sW)}, s98 offen", "stamp")
    e("s_mov_b64 exec, s[100:101]"); e("s_nop 1"); e("v_accvgpr_read_b32 v38, a254"); e("v_accvgpr_read_b32 v39, a255")
sWp = sK
def lstore(instr, counted=None):
    assert sr(sW) in instr and not counted
    k = nid()
    e(instr.replace(sr(sW), sr(sWp)))
    e(f"s_cmp_eq_u32 s{sWp+2}, 0"); e(f"s_cbranch_scc1 SLOW{k}")
    lab(f"BACK{k}")
    def t(): lab(f"SLOW{k}"); e(instr + " sc1"); e(f"s_branch BACK{k}")
    tail.append(t)
def check(regs_, tmp):
    r = list(regs_)
    if len(r) == 1: e(f"v_cmp_eq_u32 vcc, -1, v{r[0]}"); return
    cur = r.pop(0)
    while r:
        if len(r) >= 2: e(f"v_max3_u32 v{tmp}, v{cur}, v{r[0]}, v{r[1]}"); r = r[2:]
        else: e(f"v_max_u32 v{tmp}, v{cur}, v{r[0]}"); r = r[1:]
        cur = tmp
    e(f"v_cmp_eq_u32 vcc, -1, v{tmp}")
LIMIT = 0x8000
def poll(loads, regs_, tmp, pid=None, slp=0, first=None):
    k = nid()
    if pid is not None: stamp(pid, "s100")
    e(f"s_mov_b32 s{sCnt}, 1")
    if first:
        for l in loads: e(l)
        first(); e(f"s_branch POLLW{k}")
    lab(f"POLL{k}")
    for l in loads: e(l)
    lab(f"POLLW{k}")
    e("s_waitcnt vmcnt(0)")
    check(regs_, tmp)
    e(f"s_cbranch_vccnz AGAIN{k}")
    lab(f"POLLX{k}")
    def t():
        lab(f"AGAIN{k}")
        if slp: e(f"s_sleep {slp}")
        e(f"s_add_u32 s{sCnt}, s{sCnt}, 1"); e(f"s_cmp_lt_u32 s{sCnt}, {LIMIT}"); e(f"s_cbranch_scc1 POLL{k}"); e(f"s_branch POLLX{k}")
    near.append(t)
    if pid is not None: stamp(pid + 1, "s100"); stamp(pid + 2, f"s{sCnt}")
    A.drained()
SEL = int(OPT.get("sel", 1)); XF = " " + OPT.get("xf", "").replace("+", " "); XF1 = int(OPT.get("xf1", 0))
def poll_sel(groups, tmp, pid=None, first=None, firstloads=None, xf="", wl=None, w1=0):
    allr = [r for g in groups for r in g[1]]
    loads = firstloads or [l for g in groups for l in g[0]]
    if not SEL: return poll(loads, allr, tmp, pid=pid, first=first)
    k = nid()
    if pid is not None: stamp(pid, "s100")
    for l in loads: e(l + (xf if XF1 else ""))
    if first: first()
    if wl: lab(wl)
    if pid is not None and STAMP == 2: e(f"s_mov_b32 s{sCnt}, 1")
    e(f"s_waitcnt vmcnt({w1})")
    check(allr, tmp)
    e(f"s_cbranch_vccnz AGAIN{k}")
    lab(f"POLLX{k}")
    def t():
        lab(f"AGAIN{k}")
        e("s_mov_b64 s[94:95], exec"); e(f"s_mov_b32 s{sCnt}, 1")
        lab(f"AG2{k}")
        if int(OPT.get("osl", 0)): e(f"s_sleep {OPT['osl']}")
        for gi, (ls, rs) in enumerate(groups):
            if len(groups) > 1: check(rs, tmp)
            e("s_mov_b64 exec, vcc")
            if len(groups) > 1: e(f"s_cbranch_execz AG3{k}_{gi}")
            for l in ls: e(l + xf)
            lab(f"AG3{k}_{gi}"); e("s_mov_b64 exec, s[94:95]")
        e(f"s_add_u32 s{sCnt}, s{sCnt}, 1"); e(f"s_cmp_ge_u32 s{sCnt}, {LIMIT}")
        e("s_waitcnt vmcnt(0)")
        check(allr, tmp)
        e(f"s_cbranch_vccz POLLX{k}"); e(f"s_cbranch_scc0 AG2{k}"); e(f"s_branch POLLX{k}")
    near.append(t)
    if pid is not None: stamp(pid + 1, "s100"); stamp(pid + 2, f"s{sCnt}")
    A.drained()
near = []
def flush_near():
    while near: near.pop(0)()
GATE = int(OPT.get("gate", 1)); GDLY = int(OPT.get("gdly", 0)); ODLY = int(OPT.get("odly", 12))
def gate(sreg, nl, tmp):
    if not GATE: return
    setexec((1 << nl) - 1)
    poll([f"buffer_load_dword v{tmp}, v{vLin}, {sr(sW)}, s{sreg} offen sc1"], [tmp], tmp, slp=int(OPT.get("gsl", 0)))
    if GDLY: e(f"s_sleep {GDLY}")
def poll_nan(loads, body, res):
    k = nid()
    e(f"s_mov_b32 s{sCnt}, 1")
    lab(f"POLL{k}")
    for l in loads: e(l)
    e("s_waitcnt vmcnt(0)")
    body()
    e(f"v_cmp_u_f32 vcc, v{res}, v{res}"); e(f"s_cbranch_vccnz AGAIN{k}")
    lab(f"POLLX{k}")
    def t():
        lab(f"AGAIN{k}"); e(f"s_add_u32 s{sCnt}, s{sCnt}, 1"); e(f"s_cmp_lt_u32 s{sCnt}, {LIMIT}"); e(f"s_cbranch_scc1 POLL{k}"); e(f"s_branch POLLX{k}")
    near.append(t)
def late_check(tag, loads, regs_, tmp, pre=None, post=None):
    k = nid()
    A.wait(tag)
    check(regs_, tmp)
    e(f"s_cbranch_vccnz RETRY{k}")
    lab(f"OK{k}")
    def t():
        lab(f"RETRY{k}")
        if pre: pre()
        save = A.vm; poll(loads, regs_, tmp); A.vm = save
        if post: post()
        e(f"s_branch OK{k}")
    tail.append(t)

sTO = 82
sPo, sPw = 90, 91
vLin2 = vXR + 1
e("s_load_dwordx16 s[44:59], s[0:1], 0"); e("s_load_dwordx8 s[60:67], s[0:1], 64")
e("s_cmp_ge_u32 s2, 256"); e("s_cbranch_scc1 CODE_END")
e("s_memrealtime s[96:97]")
e("v_lshrrev_b32 v2, 6, v0"); e("v_and_b32 v24, 63, v0"); e(f"v_readfirstlane_b32 s{sWV}, v2")
e(f"s_and_b32 s{sG}, s2, 7"); e(f"s_lshr_b32 s{sJ}, s2, 3"); e(f"s_lshr_b32 s{sHH}, s{sJ}, 3"); e(f"s_and_b32 s{sS}, s{sJ}, 7")
e(f"v_lshlrev_b32 v{vLin}, 4, v24")
e(f"s_lshl_b32 s{sT0}, s{sHH}, 3"); e(f"s_add_u32 s{sT0}, s{sT0}, s{sG}")
e(f"s_mul_i32 s{sKV}, s{sT0}, 12582912"); e(f"s_lshl_b32 s{sT1}, s{sS}, 2"); e(f"s_add_u32 s{sT1}, s{sT1}, s{sWV}")
e(f"s_mul_i32 s{sT1}, s{sT1}, 6144"); e(f"s_add_u32 s{sKV}, s{sKV}, s{sT1}"); e(f"s_add_u32 s{sKV}, s{sKV}, 11010048")
e(f"v_add_u32 v{vLin2}, 4096, v{vLin}"); e(f"s_mov_b32 s{sK+2}, 402653184"); e(f"s_mov_b32 s{sK+3}, 0x20000")
e("s_getpc_b64 s[100:101]"); lab("PCREF")
e(f"s_sub_u32 s100, s100, PCREF-{NAME}_kernel"); e("s_subb_u32 s101, s101, 0")
e(f"s_lshl_b32 s{sT1}, s{sS}, 12"); e(f"v_lshl_add_u32 v25, v0, 4, s{sT1}")
e(f"v_cmp_gt_u32 vcc, CODE_END-{NAME}_kernel-16, v25"); e("s_and_saveexec_b64 s[98:99], vcc"); e("s_cbranch_execz NOCPF")
e(f"global_load_dwordx4 a[240:243], v25, s[100:101]")
lab("NOCPF"); e("s_mov_b64 exec, -1")
e(f"s_mul_i32 s{sT2}, s{sT0}, 384")
e(f"s_mov_b32 s{sLay}, 0"); e(f"s_mul_i32 s{sLG}, s{sG}, {GB}"); e(f"s_getreg_b32 s{sFast}, hwreg(HW_REG_XCC_ID, 0, 4)")
e(f"s_lshl_b32 s{sT0}, s{sJ}, 9"); e(f"s_add_u32 s{sT0}, s{sT0}, s{sLG}"); e(f"s_add_u32 s{sT0}, s{sT0}, {oO}"); e(f"v_add_u32 v{vC1}, s{sT0}, v{vLin}")
e(f"s_lshl_b32 s{sT0}, s{sG}, 2"); e(f"s_add_u32 s{sT0}, s{sT0}, s{sJ}"); e(f"s_mul_i32 s{sT0}, s{sT0}, {2560 if RY0 else 320}"); e(f"s_add_u32 s{sT0}, s{sT0}, {oYG-512}"); e(f"s_add_u32 s{sClr}, s{sT0}, 1024"); e(f"v_add_u32 v25, s{sT0}, v{vLin}")
e("v_cmp_le_u32 vcc, 32, v0"); e(f"v_cndmask_b32 v{vC2}, v{vC1}, v25, vcc"); e(f"v_mov_b32 v25, {OOB}"); e(f"v_cndmask_b32 v{vC1}, v{vC1}, v25, vcc")
e(f"s_cmp_lt_u32 s{sJ}, 4"); e(f"s_cselect_b32 s{sT0}, {64 if RY0 else 52}, 32"); e(f"v_cmp_le_u32 vcc, s{sT0}, v0"); e(f"v_cndmask_b32 v{vC2}, v{vC2}, v25, vcc")
e(f"s_mov_b32 s{sW+2}, 1610612736"); e(f"s_mov_b32 s{sW+3}, 0x20000")
e("s_waitcnt lgkmcnt(0)")
e(f"s_mov_b32 s{sK}, s46"); e(f"s_and_b32 s{sK+1}, s47, 0xffff"); e(f"s_mov_b32 s{sW}, s66"); e(f"s_and_b32 s{sW+1}, s67, 0xffff")
if SPIN: e("v_mov_b32 v38, s96"); e("v_accvgpr_write_b32 a253, v38")
SPM = OPT.get("spm", "")
if DA >= 0: e("s_mov_b32 s54, s96"); e("s_mov_b32 s55, 0")
RW = int(OPT.get("rw", 16)); RF = (320 - 20 * RW) // 12
assert 20 * RW + 12 * RF == 320
NPW = -(-max(RW, RF) * 24 // 64)
pend = []
def q_tile(srdn, t, f, base, tag):
    so = sKV if t == 0 else sTO + t
    for i in range(6):
        pend.append((f"buffer_load_dwordx4 {rg(f, base+4*i, 4)}, v{vLin if i < 4 else vLin2}, {sr(srdn)}, s{so} offen offset:{1024*(i%4)} {NT}", tag))
def qK(t): q_tile(sK, t, "a", 24 * t, f"K{t}")
def qV(t): f, b = vblock(t + 1); q_tile(sV, t, f, b, f"V{t}")
def q_pfo():
    for n in range(9): pend.append((f"buffer_load_dwordx4 a[240:243], v{[vLin, vLin, vLin2, 108, 109][n//2]}, {sr(sWQ)}, s{sPo} offen offset:{1024*(n%4)} {NTP}", "pfo"))
def q_pfw():
    for n in range(NPW): pend.append((f"buffer_load_dwordx4 a[240:243], v{101+n}, {sr(sX)}, s{sPw} offen {NTP}", "pfw"))
nfill = [0]; BARN = int(OPT.get("barn", 6)); THR = int(OPT.get("thr", 0)); THRE = int(OPT.get("thre", 0)); THS = int(OPT.get("ths", 20)); THP = int(OPT.get("thp", 1))
hold = {"V7", "pfw", "pfo"}; LA = int(OPT.get("la", 12))
def ahead(tag, LA=LA):
    while tag in A.vm and pend and pend[0][1] not in hold and len(A.vm) - 1 - max(i for i, x in enumerate(A.vm) if x == tag) < LA: fill()
def fill(n=1):
    for _ in range(n):
        if pend and not (pend[0][1] in hold):
            if THR and nfill[0] >= THS and len(pend) > THRE:
                k = nid(); e(f"s_bitcmp{THP}_b32 s{sFast}, 0"); e(f"s_cbranch_scc1 TH{k}"); e(f"s_waitcnt vmcnt({THR-1})"); lab(f"TH{k}")
            x, tag = pend.pop(0); A.vmem(x, tag); nfill[0] += 1
            if BARN and nfill[0] > 12 and nfill[0] % BARN == 0 and len(pend) >= 3: e("s_barrier")
BARS = OPT.get("bar", "").split(",")
def upto(tag):
    while any(t == tag for _, t in pend): fill()
    if tag in BARS or "every" in BARS and tag not in ("K0", "K1", "V7"): e("s_barrier")
def Kld(t): upto(f"K{t}")
def Vld(t): upto(f"V{t}")
for it in OPT.get("order", "K0 K1 K2 K3 K4 K5 K6 K7 V0 V1 V2 V3 V4 V5 V6 V7").replace(",", " ").split():
    if it == "w":
        if "pfw" not in SKIP: q_pfw()
    elif it == "o":
        if "pfo" not in SKIP: q_pfo()
    elif it[0] == "K": qK(int(it[1]))
    else: qV(int(it[1]))
if JIT: jitter(255, 16)
fill(int(OPT.get("k0e", 2)))
e(f"s_or_b32 s{sT0}, s2, s{sWV}"); e("s_cbranch_scc1 NOTAG")
e(f"s_or_b32 s{sT0}, s96, 1"); e(f"v_mov_b32 v26, s{sT0}"); setexec(1); e(f"global_store_dword v{vLin}, v26, s[64:65] sc1"); setexec(FULL)
lab("NOTAG")
if STAMP == 1: e("s_memrealtime s[94:95]")
e(f"s_add_u32 s{sTO+1}, s{sKV}, 196608")
srd(sV, 48, 402653184); srd(sWQ, 50, 7864320); srd(sX, 44, 1280); srd(sO, 62, 1280)
srd(sRB, 58, 1966080); srd(sRC, 60, 1966080)
e(f"s_cmp_lt_u32 s{sJ}, 20"); e(f"s_cselect_b32 s{sRA}, s52, s56"); e(f"s_cselect_b32 s{sRA+1}, s53, s57"); e(f"s_cselect_b32 s{sRA+2}, s{sWQ+2}, s{sRB+2}")
e(f"s_and_b32 s{sRA+1}, s{sRA+1}, 0xffff"); e(f"s_mov_b32 s{sRA+3}, 0x20000")
TLBW = OPT.get("tlbw", "")
def tlb_touch():
    e(f"s_cmp_lg_u32 s{sWV}, 3"); e("s_cbranch_scc1 NOTLB")
    if "j" in TLBW: e(f"s_cmp_lg_u32 s{sS}, 0"); e("s_cbranch_scc1 NOTLB")
    e("v_mul_u32_u24 v26, 1376256, v24"); e("v_lshlrev_b32 v27, 20, v24")
    setexec(3)
    if "v" in TLBW: e(f"buffer_load_dword a243, v26, {sr(sV)}, s{sKV} offen nt"); e(f"buffer_load_dword a243, v26, {sr(sK)}, s{sKV} offen nt")
    if "w" in TLBW:
        e(f"global_load_dword a243, v27, s[56:57] nt"); e(f"buffer_load_dword a243, v27, {sr(sRB)}, 0 offen nt"); e(f"buffer_load_dword a243, v27, {sr(sRC)}, 0 offen nt")
        setexec(0xff); e(f"global_load_dword a243, v27, s[52:53] nt")
    setexec(FULL)
    lab("NOTLB")
if TLBW: tlb_touch()
if STAMP:
    e(f"s_lshl_b32 s98, s2, 2"); e(f"s_add_u32 s98, s98, s{sWV}"); e("s_lshl_b32 s98, s98, 7"); e("s_add_u32 s98, s98, 0x40000000")
    e("v_mov_b32 v38, s96"); e("v_mov_b32 v39, 0"); e("s_mov_b64 exec, 1")
    A.vmem(f"buffer_store_dword v38, v39, {sr(sW)}, s98 offen", "stamp")
    if STAMP == 1: e("s_waitcnt lgkmcnt(0)"); e("v_mov_b32 v37, s94"); A.vmem(f"buffer_store_dword v37, v39, {sr(sW)}, s98 offen offset:56", "stamp")
    e("s_mov_b64 exec, -1")
for t in range(2, 8): e(f"s_add_u32 s{sTO+t}, s{sTO+t-1}, 196608")
e(f"v_mov_b32 v{vL}, v24")
e(f"s_mul_i32 s{sT0}, s{sWV}, {SCRW}")
for r in range(3):
    e(f"v_add_u32 v25, {64*r}, v{vL}"); e("v_mul_u32_u24 v26, 171, v25"); e("v_lshrrev_b32 v26, 12, v26")
    e("v_mul_u32_u24 v27, 24, v26"); e("v_sub_u32 v27, v25, v27"); e("v_lshlrev_b32 v27, 4, v27")
    e(f"v_mul_u32_u24 v25, {RS}, v26"); e(f"v_add3_u32 v{vWr+r}, v25, v27, s{sT0}")
    e(f"v_mul_u32_u24 v25, 12288, v26"); e(f"v_add_u32 v{F+r}, v25, v27")
assert all((c * 171) >> 12 == c // 24 for c in range(192))
e(f"v_and_b32 v25, 15, v{vL}"); e(f"v_lshrrev_b32 v26, 4, v{vL}")
e(f"v_bfe_u32 v27, v{vL}, 2, 2"); e(f"v_and_b32 v28, 3, v{vL}")
e(f"s_mul_i32 s{sT1}, s{sS}, 160")
e(f"v_lshlrev_b32 v36, 4, v26"); e(f"v_lshlrev_b32 v37, 3, v26"); e(f"v_lshlrev_b32 v39, 2, v{vL}")
A.vmem(f"buffer_load_dwordx4 v[70:73], v36, {sr(sX)}, s{sT1} offen", "x")
A.vmem(f"buffer_load_dwordx4 v[74:77], v36, {sr(sX)}, s{sT1} offen offset:64", "x")
A.vmem(f"buffer_load_dwordx2 v[78:79], v37, {sr(sX)}, s{sT1} offen offset:128", "x")
A.vmem(f"buffer_load_dwordx4 v[80:83], v{vLin}, {sr(sX)}, 0 offen", "x")
A.vmem(f"buffer_load_dword v84, v39, {sr(sX)}, 0 offen offset:1024", "x")
e(f"s_lshl_b32 s{sT3}, s{sJ}, 6"); e(f"v_lshlrev_b32 v38, 2, v25")
A.vmem(f"buffer_load_dword v{vXR}, v38, {sr(sX)}, s{sT3} offen", "x")
e(f"s_mul_i32 s{sT1}, s{sS}, {80*12288}"); e(f"s_add_u32 s{sT2}, s{sT2}, s{sT1}")
e(f"s_mul_i32 s{sT1}, s{sWV}, {8*12288}"); e(f"s_add_u32 s{sT2}, s{sT2}, s{sT1}")
e(f"s_mul_i32 s{sT1}, s{sWV}, 3072"); e(f"s_add_u32 s{sT1}, s{sT1}, {WQ}")
for gi in range(3):
    if gi == 2: e(f"s_cmp_ge_u32 s{sWV}, 2"); e("s_cbranch_scc1 NOWQ3")
    for r in range(3):
        e(f"s_add_u32 m0, s{sT1}, {gi*4*3072 + r*1024}")
        if "wq" not in SKIP: A.vmem(f"buffer_load_dwordx4 v{F+r}, {sr(sWQ)}, s{sT2} offen {NTW} lds", "wq", counted=(gi < 2))
    if gi < 2: e(f"s_add_u32 s{sT2}, s{sT2}, {32*12288}")
lab("NOWQ3")
e(f"s_mul_i32 s{sT1}, s{sS}, 160")
srd(sWQ, 52, 7864320)
e(f"s_cmp_lt_u32 s{sWV}, 2"); e(f"s_cselect_b32 s{sX}, s56, s58"); e(f"s_cselect_b32 s{sX+1}, s57, s59"); e(f"s_and_b32 s{sX+1}, s{sX+1}, 0xffff"); e(f"s_mov_b32 s{sX+2}, 1966080")
fill(3)
e(f"v_mul_u32_u24 v29, {RS}, v25"); e(f"v_lshl_add_u32 v29, v26, 4, v29"); e(f"v_add_u32 v{vKrd}, s{sT0}, v29")
e(f"v_lshrrev_b32 v29, 2, v{vL}"); e(f"v_mul_u32_u24 v29, {RS}, v29"); e(f"v_lshl_add_u32 v29, v28, 3, v29"); e(f"v_add_u32 v{vVrd}, s{sT0}, v29")
e(f"s_mul_i32 s{sT2}, s{sWV}, 96"); e(f"s_add_u32 s{sT2}, s{sT2}, {WQ}")
e("v_lshl_add_u32 v29, v26, 3, v27"); e("v_mul_u32_u24 v29, 384, v29"); e("v_lshl_add_u32 v29, v28, 3, v29"); e(f"v_add_u32 v{vTq1}, s{sT2}, v29")
e("v_lshl_add_u32 v29, v26, 2, v27"); e("v_mul_u32_u24 v29, 384, v29"); e("v_lshl_add_u32 v29, v28, 3, v29"); e(f"v_add_u32 v{vTq2}, s{sT2}, v29")
REPL = int(OPT.get("repl", 1))
SHB = OPT.get("shb", "fl")
def rowbase(dst, m, og, ol, ob, tmp):
    e(f"s_mul_i32 s{sT3}, s{sG}, {10240 if REPL else 0}")
    if og == oYG and not RY0: e(f"s_cmp_eq_u32 s{sLay}, 0"); e(f"s_cselect_b32 s{sT3}, 0, s{sT3}")
    e(f"s_add_u32 s{sT3}, s{sT3}, {og}")
    e(f"v_mul_u32_u24 v{dst}, 1280, v{m}"); e(f"v_add_u32 v{dst}, s{sT3}, v{dst}")
    e(f"s_mul_i32 s{sT3}, s{sG}, {GB}"); e(f"s_add_u32 s{sT3}, s{sT3}, {ol}"); e(f"v_mov_b32 v{tmp}, s{sT3}")
    e(f"v_cmp_eq_u32 vcc, s{sG}, v{m}"); e(f"v_cndmask_b32 v{dst}, v{dst}, v{tmp}, vcc")
    if ob is not None:
        e(f"v_add_u32 v{tmp}, {ob-ol}, v{tmp}"); e(f"v_cmp_le_u32 vcc, 8, v{m}"); e(f"v_cndmask_b32 v{dst}, v{dst}, v{tmp}, vcc")
fill()
if "l" in SHB: e(f"s_mul_i32 s{sT2}, s{sWV}, 23"); e(f"v_min_u32 v32, 22, v{vL}"); e(f"v_add_u32 v32, s{sT2}, v32"); e("v_min_u32 v32, 89, v32")
else: e(f"v_mov_b32 v32, v{vL}")
assert all((c * 103) >> 10 == c // 10 for c in range(90))
e(f"v_mul_u32_u24 v31, 103, v32"); e("v_lshrrev_b32 v31, 10, v31")
e(f"v_mul_u32_u24 v30, 10, v31"); e(f"v_sub_u32 v30, v32, v30"); e(f"v_lshl_add_u32 v29, v30, 4, s{sT1}")
rowbase(vAq, 31, oFG, oFL, oBB, 30); e(f"v_add_u32 v{vAq}, v{vAq}, v29")
if "l" in SHB: e("v_add_u32 v33, v31, v32"); e("v_lshlrev_b32 v33, 4, v33"); e("v_add_u32 v33, 4096, v33")
e("v_add_u32 v31, 6, v31"); rowbase(vAq16, 31, oFG, oFL, oBB, 30); e(f"v_add_u32 v{vAq16}, v{vAq16}, v29")
e(f"v_mov_b32 v30, {OOB}"); e(f"v_cmp_le_u32 vcc, 30, v{vL}"); e(f"v_cndmask_b32 v{vAq16}, v{vAq16}, v30, vcc")
if "l" in SHB: e(f"v_mov_b32 v{vAq16}, v33")
e(f"s_lshl_b32 s{sT1}, s{sJ}, 10"); e(f"s_lshl_b32 s{sT2}, s{sWV}, 8"); e(f"s_add_u32 s{sT1}, s{sT1}, s{sT2}")
e(f"v_lshl_add_u32 v{vQst}, v{vL}, 2, s{sT1}")
e(f"s_lshl_b32 s{sT1}, s{sHH}, 13"); e(f"s_add_u32 s{sT1}, s{sT1}, s{sT2}")
e(f"v_lshlrev_b32 v29, 10, v26"); e(f"v_lshl_add_u32 v29, v25, 4, v29"); e(f"v_add_u32 v{vQld}, s{sT1}, v29")
fill()
e(f"s_mul_i32 s{sT1}, s{sWV}, 96"); e(f"s_add_u32 s{sT1}, s{sT1}, {QB}")
e(f"v_lshl_add_u32 v29, v27, 5, s{sT1}"); e("v_lshl_add_u32 v29, v28, 2, v29"); e("v_lshrrev_b32 v30, 1, v26"); e("v_lshl_add_u32 v29, v30, 4, v29")
e("v_and_b32 v30, 1, v26"); e("v_lshl_add_u32 v29, v30, 1, v29"); e(f"v_mov_b32 v30, {QB+384}")
e("v_cmp_le_u32 vcc, 12, v25"); e(f"v_cndmask_b32 v{vQBw}, v29, v30, vcc")
e(f"v_and_b32 v30, 1, v{vL}"); e(f"v_lshlrev_b32 v29, 5, v26"); e("v_lshl_add_u32 v29, v30, 4, v29"); e(f"v_add_u32 v{vQBr}, {QB}, v29")
e("v_mul_u32_u24 v30, 0xaaaa, v30"); e("v_and_b32 v29, 1, v27"); e("v_mul_u32_u24 v29, 0xaaaa, v29"); e("v_lshl_or_b32 v29, v29, 16, v30"); e(f"v_add_u32 v{vIdx}, 0x44444444, v29")
fill()
e(f"s_lshl_b32 s{sT1}, s{sWV}, 8"); e(f"s_add_u32 s{sT1}, s{sT1}, {PT}")
e(f"v_lshrrev_b32 v29, 5, v{vL}"); e(f"v_lshl_add_u32 v29, v29, 6, s{sT1}")
for bit, sh in ((3, 5), (1, 4), (2, 3), (4, 2), (0, 1)): e(f"v_bfe_u32 v30, v{vL}, {bit}, 1"); e(f"v_lshl_add_u32 v29, v30, {sh}, v29")
e(f"v_mov_b32 v{vPw}, v29")
e(f"v_bfe_u32 v29, v{vL}, 4, 1"); e(f"v_bfe_u32 v30, v{vL}, 2, 1"); e(f"v_lshl_add_u32 v29, v29, 5, s{sT1}"); e("v_lshl_add_u32 v29, v30, 4, v29"); e("v_accvgpr_write_b32 a252, v29")
e(f"s_mul_i32 s{sT1}, s{sWV}, 768"); e(f"s_add_u32 s{sT1}, s{sT1}, {ACC}"); e(f"v_lshl_add_u32 v29, v25, 2, s{sT1}")
e(f"v_bfe_u32 v30, v{vL}, 4, 1"); e("v_lshl_add_u32 v29, v30, 7, v29"); e(f"v_lshrrev_b32 v30, 5, v{vL}"); e(f"v_lshl_add_u32 v{vAcc}, v30, 6, v29")

def Krel(t):
    upto(f"K{t}"); ahead(f"K{t}"); A.wait(f"K{t}")
    if "rel" in SKIP: return
    for i in range(6): e(f"ds_write_b128 v{vWr+i%3}, {ar(24*t+4*i)} offset:{(i//3)*8*RS}")
    for ks in range(6): e(f"ds_read_b128 {ar(24*t+4*ks)}, v{vKrd} offset:{64*ks}")
def Vrel(t):
    upto(f"V{t}"); ahead(f"V{t}"); A.wait(f"V{t}")
    if "rel" in SKIP: return
    f, b = vblock(t + 1)
    for i in range(6): e(f"ds_write_b128 v{vWr+i%3}, {rg(f, b+4*i, 4)} offset:{(i//3)*8*RS}")
    f, b = vblock(t & ~1)
    for dt in range(12): e(f"ds_read_b64_tr_b16 {rg(f, b+4*dt+2*(t&1), 2)}, v{vVrd} offset:{32*dt}")
def wq_frags():
    for t in range(3):
        b = F + 10 * t
        for kk in range(2):
            for h in range(2): e(f"ds_read_b64_tr_b16 {vr(b+4*kk+2*h,2)}, v{vTq1} offset:{(32*kk+4*h)*384+32*t}")
        e(f"ds_read_b64_tr_b16 {vr(b+8,2)}, v{vTq2} offset:{64*384+32*t}")
def qstage(a, soff, tag=None, waits=False, fl=0):
    def mm(t, kk):
        n = 4 if kk < 2 else 2
        bb = vr(F + 10 * t + 4 * kk, n) if t < 3 else vr(a + 4 * kk, n)
        c = "0" if kk == 0 else vr(T + 4 * t)
        e(f"v_mfma_f32_16x16x{32 if kk<2 else 16}_bf16 {vr(T+4*t)}, {vr(a+4*kk,n)}, {bb}, {c}")
    def s4(t): return [f"v_add_f32 v{T+4*t}, v{T+4*t}, v{T+4*t+1}", f"v_add_f32 v{T+4*t+2}, v{T+4*t+2}, v{T+4*t+3}", f"v_add_f32 v{T+4*t}, v{T+4*t}, v{T+4*t+2}"]
    if waits: e("s_waitcnt lgkmcnt(2)")
    mm(0, 0); mm(2, 0)
    if waits: e("s_waitcnt lgkmcnt(0)")
    mm(0, 1); mm(2, 1); mm(0, 2); mm(2, 2)
    mm(1, 0); mm(3, 0); mm(1, 1); mm(3, 1); mm(1, 2); mm(3, 2)
    fill(fl)
    for x in s4(0) + s4(2): e(x)
    e(f"v_permlane32_swap_b32 v{T}, v{T+8}")
    x1, x3 = s4(1), s4(3)
    for x in x1[:2] + x3[:2] + [f"v_add_f32 v{T}, v{T}, v{T+8}"] + x1[2:] + x3[2:]: e(x)
    e(f"v_permlane32_swap_b32 v{T+4}, v{T+12}"); e(f"v_add_f32 v{T+4}, v{T+4}, v{T+12}")
    e(f"v_permlane16_swap_b32 v{T}, v{T+4}"); e(f"v_add_f32 v{T}, v{T}, v{T+4}")
    if tag and "qst" in SKIP: pass
    elif tag:
        for q in (1, 2, 3): e(f"v_mov_b32_dpp v{T+q}, v{T} quad_perm:[{q},{q},{q},{q}] row_mask:0xf bank_mask:0xf")
        setexec(0x1111111111111111); A.vmem(f"buffer_store_dwordx4 {vr(T)}, v{vQst}, {sr(sW)}, {soff} offen {'' if 'qplain' in SKIP else 'sc1'}", tag); setexec(FULL)
    else: lstore(f"buffer_store_dword v{T}, v{vQst}, {sr(sW)}, {soff} offen")
def xreduce(r0, r1, r2, r3):
    e(f"v_permlane32_swap_b32 v{r0}, v{r2}"); e(f"v_permlane32_swap_b32 v{r1}, v{r3}")
    e(f"v_add_f32 v{r0}, v{r0}, v{r2}"); e(f"v_add_f32 v{r1}, v{r1}, v{r3}")
    e(f"v_permlane16_swap_b32 v{r0}, v{r1}"); e(f"v_add_f32 v{r0}, v{r0}, v{r1}")
def qloads(b, s0, s1): return [f"buffer_load_dwordx4 {vr(b)}, v{vQld}, {sr(sW)}, {s0} offen sc1", f"buffer_load_dwordx4 {vr(b+4)}, v{vQld}, {sr(sW)}, {s1} offen sc1"]
def qsum(b):
    for q in range(4): e(f"v_add_f32 v{b+q}, v{b+q}, v{b+4+q}")
    xreduce(b, b + 1, b + 2, b + 3)
def rowred(op, v, tmp, steps):
    for sft in steps: e(f"v_{op}_f32_dpp v{v}, v{v}, v{v} row_ror:{sft} row_mask:0xf bank_mask:0xf")
def xrow(op, v, tmp, both=True):
    if both:
        e(f"v_mov_b32 v{tmp}, v{v}"); e(f"v_permlane32_swap_b32 v{v}, v{tmp}"); e(f"v_{op}_f32 v{v}, v{v}, v{tmp}")
    e(f"v_mov_b32 v{tmp}, v{v}"); e(f"v_permlane16_swap_b32 v{v}, v{tmp}"); e(f"v_{op}_f32 v{v}, v{v}, v{tmp}")
QF = 28; DQ = 40; PA = 72; X = 24; vM = 26
def att_zero():
    for t in range(8): e(f"v_mov_b32 v{DQ+4*t}, 0"); e(f"v_mov_b32 v{DQ+4*t+1}, 0")
    for q in range(16): e(f"v_mov_b32 v{PA+q}, 0")
def q_finish(b, mid=None):
    e(f"v_readlane_b32 s{sT0}, v{b}, 15")
    e(f"s_mov_b32 vcc_lo, 0x70007000"); e(f"s_mov_b32 vcc_hi, 0x70007000")
    e(f"v_fma_f32 v{b+1}, -s{sT0}, v{vCS}, v{b}")
    e(f"v_cvt_pk_bf16_f32 v{b+1}, v{b+1}, v{b+1}")
    e(f"ds_write_b16 v{vQBw}, v{b+1}")
    e(f"v_cndmask_b32 v{b+2}, 0, v{b}, vcc")
    e(f"v_add_f32_dpp v{b+2}, v{b+2}, v{b+2} quad_perm:[1,0,3,2] row_mask:0xf bank_mask:0xf")
    e(f"v_add_f32_dpp v{b+2}, v{b+2}, v{b+2} quad_perm:[2,3,0,1] row_mask:0xf bank_mask:0xf")
    e(f"v_mov_b32 v{b+3}, v{b+2}"); e(f"v_permlane32_swap_b32 v{b+2}, v{b+3}"); e(f"v_add_f32 v{b+2}, v{b+2}, v{b+3}")
    if mid: mid()
    else: e("s_waitcnt lgkmcnt(0)"); e("s_barrier")
    for ks in range(3): e(f"ds_read_b128 {vr(QF+4*ks)}, v{vQBr} offset:{128*ks}")
    e(f"v_mov_b32 v{b+3}, v{b+2}"); e(f"v_mov_b32 v{b+1}, s{sT0}"); e(f"v_subrev_f32 v{b+1}, 0x44200000, v{b+1}")
    e(f"v_permlane16_swap_b32 v{b+2}, v{b+3}"); e(f"v_add_f32 v{b+2}, v{b+2}, v{b+3}")
    e(f"v_mul_f32 v{b}, 0x3acccccd, v{b+1}")
    e(f"v_readlane_b32 s{sT0}, v{b+2}, 15")
    e(f"v_mul_f32 v{b}, v{b}, v{b}"); e(f"s_mov_b32 s{sT1}, 0x3acccccd")
    e(f"v_sub_f32 v{b+2}, s{sT0}, v{b+1}")
    e(f"v_fma_f32 v{b+2}, v{b+2}, s{sT1}, -v{b}"); e(f"v_max_f32 v{b+2}, 0, v{b+2}"); e(f"v_add_f32 v{b+2}, 0x3727c5ac, v{b+2}")
    e(f"v_rsq_f32 v{b+2}, v{b+2}"); e(f"v_mul_f32 v{vSC}, 0x3dd53b94, v{b+2}")
def qk_softmax(fl=0):
    def fold(t): e(f"v_add_f32_dpp v{X+t//4}, v{DQ+4*t}, v{DQ+4*t+1} quad_perm:[0,1,2,3] row_mask:{1<<(t%4):#x} bank_mask:0xf")
    def mm(t, ks): e(f"v_smfmac_f32_16x16x64_bf16 {vr(DQ+4*t)}, {vr(QF+4*ks)}, {ar(24*t+8*ks, 8)}, v{vIdx}")
    for ks in range(3):
        e(f"s_waitcnt lgkmcnt({2-ks})")
        for t in range(8): mm(t, ks)
        if ks != 1: fill(fl)
    S = lambda t: X + t // 4 if t % 4 == 0 else DQ + 4 * t
    for t in range(8):
        e(f"v_add_f32 v{S(t)}, v{DQ+4*t}, v{DQ+4*t+1}")
        if t == 2: e(f"v_max3_f32 v{vM}, v{S(0)}, v{S(1)}, v{S(2)}")
        if t in (4, 6): e(f"v_max3_f32 v{vM}, v{vM}, v{S(t-1)}, v{S(t)}")
    e(f"v_max_f32 v{vM}, v{vM}, v{S(7)}")
    mv = [f"v_mov_b32_dpp v{X+t//4}, v{S(t)} quad_perm:[0,1,2,3] row_mask:{1<<(t%4):#x} bank_mask:0xf" for t in (1, 5, 2, 6, 3, 7)] + ["v_accvgpr_read_b32 v27, a252", "s_nop 0"]
    for sft in (8, 4, 2, 1):
        e(mv.pop(0)); e(mv.pop(0)); e(f"v_max_f32_dpp v{vM}, v{vM}, v{vM} row_ror:{sft} row_mask:0xf bank_mask:0xf")
    fill(fl)
    e(f"v_mul_f32 v{vM}, v{vM}, v{vSC}")
    for q in range(2): e(f"v_fma_f32 v{X+q}, v{X+q}, v{vSC}, -v{vM}")
    for q in range(2): e(f"v_exp_f32 v{X+q}, v{X+q}")
    e(f"v_cvt_pk_bf16_f32 v28, v{X}, v{X+1}")
    e(f"ds_write_b16 v{vPw}, v28"); e(f"ds_write_b16_d16_hi v{vPw}, v28 offset:128")
    setexec(0xFF00FF0000FF00FF)
    for u in range(4): e(f"ds_read_b128 {vr(PA+4*u)}, v27 offset:{64*u}")
    setexec(FULL)
    e(f"v_add_f32 v27, v{X}, v{X+1}")
    z = [f"v_mov_b32 v{F+4*dp}, 0" for dp in range(6)] + [f"s_lshl_b32 s{sT1}, s{sWV}, 3", f"s_add_u32 s{sT1}, s{sT1}, {ML4}"]
    for sft in (8, 4, 2, 1):
        e(z.pop(0)); e(z.pop(0)); e(f"v_add_f32_dpp v27, v27, v27 row_ror:{sft} row_mask:0xf bank_mask:0xf")
    xrow("add", 27, 28)
    e(f"v_mov_b32 v28, s{sT1}"); e(f"ds_write_b64 v28, v[26:27]")
def pv_step(u, order=range(6)):
    f, b = vblock(2 * u)
    for dp in order: e(f"v_smfmac_f32_16x16x64_bf16 {vr(F+4*dp)}, {vr(PA+4*u)}, {rg(f, b+8*dp, 8)}, v{vIdx} abid:1")
def pv_post():
    for q in range(3): e(f"v_permlane16_swap_b32 v{F+8*q}, v{F+8*q+4}"); e(f"v_add_f32 v{F+8*q}, v{F+8*q}, v{F+8*q+4}"); e(f"ds_write_b32 v{vAcc}, v{F+8*q} offset:{OACC+256*q}")

WT = [int(x) for x in OPT.get("wt", "0,3,3,0,6").split(",")]
assert sum(WT) == 12
sDo, sDm = 66, 67
TT = OPT.get("tt", "x").replace("x", "")
ROT = int(OPT.get("rot", 0)); nwd = [0]
def wdma(n, tag=None):
    if "wo" in SKIP: return
    for _ in range(n):
        if ROT and nwd[0] == 6:
            e(f"s_bitcmp1_b32 s{sJ}, 0"); e(f"s_cselect_b32 s{sT1}, 12288, 0"); e(f"s_sub_u32 s{sDm}, s{sDm}, s{sT1}"); e(f"s_mul_i32 s{sT1}, s{sT1}, 20"); e(f"s_sub_u32 s{sDo}, s{sDo}, s{sT1}")
        nwd[0] += 1
        e(f"s_mov_b32 m0, s{sDm}"); e(f"s_add_u32 s{sDm}, s{sDm}, 1024")
        A.vmem(f"buffer_load_dwordx4 v39, {sr(sRA)}, s{sDo} offen {NTR} lds", tag, counted=tag is not None)
        e(f"s_add_u32 s{sDo}, s{sDo}, {(8 if WFL else 16)*1280}")
WFL = int(OPT.get("wfl", 0))
def wdma_addr(fl=True):
    if WFL and fl:
        e(f"v_lshrrev_b32 v38, 3, v{vL}"); e("v_mul_u32_u24 v38, 1280, v38"); e(f"v_and_b32 v39, 7, v{vL}"); e("v_lshl_add_u32 v39, v39, 4, v38"); return
    e(f"v_lshrrev_b32 v38, 2, v{vL}"); e("v_mul_u32_u24 v38, 1280, v38"); e(f"v_and_b32 v39, 3, v{vL}"); e("v_lshl_add_u32 v39, v39, 4, v38")
def role_dma():
    if "dma" in SKIP: return
    e(f"s_cmp_ge_u32 s{sJ}, 20"); e("s_cbranch_scc1 DMAF")
    e(f"s_lshl_b32 s{sDo}, s{sWV}, 3"); e(f"s_add_u32 s{sDo}, s{sDo}, s{sG}"); e(f"s_mul_i32 s{sDo}, s{sDo}, {192*1280}"); e(f"s_lshl_b32 s{sT1}, s{sJ}, 6"); e(f"s_add_u32 s{sDo}, s{sDo}, s{sT1}")
    if WFL: e(f"s_and_b32 s{sT1}, s{sJ}, 1"); e(f"s_mul_i32 s{sT1}, s{sT1}, {96*1280-64}"); e(f"s_add_u32 s{sDo}, s{sDo}, s{sT1}")
    e(f"s_mul_i32 s{sDm}, s{sWV}, 12288"); e(f"s_add_u32 s{sDm}, s{sDm}, {WO}")
    if ROT: e(f"s_bitcmp1_b32 s{sJ}, 0"); e(f"s_cselect_b32 s{sT1}, 6144, 0"); e(f"s_add_u32 s{sDm}, s{sDm}, s{sT1}"); e(f"s_mul_i32 s{sT1}, s{sT1}, 20"); e(f"s_add_u32 s{sDo}, s{sDo}, s{sT1}")
    if TT:
        e(f"v_mul_u32_u24 v38, {191*1280}, v{vL}"); e(f"s_mul_i32 s{sT1}, s{sG}, {192*1280}"); setexec(3)
        if "o" in TT: e(f"buffer_load_dword a243, v38, {sr(sRA)}, s{sDo} offen")
        if "2" in TT: e(f"buffer_load_dword a243, v38, {sr(sRC)}, s{sT1} offen")
        setexec(FULL)
    if WT[0]: wdma_addr(); wdma(WT[0])
    lab("DMAX")
    def t():
        lab("DMAF")
        e(f"s_sub_u32 s{sT1}, s{sJ}, 20"); e(f"s_and_b32 s{sDo}, s{sT1}, 3"); e(f"s_lshl_b32 s{sDo}, s{sDo}, 1"); e(f"s_and_b32 s{sT2}, s{sWV}, 1"); e(f"s_add_u32 s{sDo}, s{sDo}, s{sT2}")
        e(f"s_mul_i32 s{sDo}, s{sDo}, {80*3072}"); e(f"s_lshr_b32 s{sT1}, s{sT1}, 2"); e(f"s_lshl_b32 s{sT1}, s{sT1}, 7"); e(f"s_add_u32 s{sDo}, s{sDo}, s{sT1}")
        e(f"s_mul_i32 s{sT1}, s{sG}, 384"); e(f"s_add_u32 s{sDo}, s{sDo}, s{sT1}")
        e(f"s_mul_i32 s{sDm}, s{sWV}, 10240"); e(f"s_add_u32 s{sDm}, s{sDm}, {W1}")
        if TT:
            e(f"v_mul_u32_u24 v38, {79*3072}, v{vL}"); e(f"s_lshl_b32 s{sT1}, s{sWV}, 3"); e(f"s_add_u32 s{sT1}, s{sT1}, s{sG}"); e(f"s_mul_i32 s{sT1}, s{sT1}, 24"); e(f"s_add_u32 s{sT1}, s{sT1}, s{sJ}")
            e(f"s_sub_u32 s{sT1}, s{sT1}, 8"); e(f"s_mul_i32 s{sT1}, s{sT1}, 10240"); setexec(3)
            if "f" in TT: e(f"buffer_load_dword a243, v38, {sr(sX)}, s{sDo} offen nt")
            setexec(1)
            if "o" in TT: e(f"buffer_load_dword a243, v38, {sr(sWQ)}, s{sT1} offen")
            setexec(FULL)
        if FT[0]: fdma_addr(); fdma(0, FT[0])
        e("s_branch DMAX")
    tail.append(t)
FT = [int(x) for x in OPT.get("ft", "0,0,0,0,10").split(",")]
assert sum(FT) == 10
def fdma_addr():
    e(f"v_lshrrev_b32 v38, 3, v{vL}"); e("v_mul_u32_u24 v38, 3072, v38"); e(f"v_and_b32 v39, 7, v{vL}"); e("v_lshl_add_u32 v38, v39, 4, v38")
    e(f"v_bfe_u32 v39, v{vL}, 4, 1"); e("v_lshlrev_b32 v39, 5, v39"); e("v_xor_b32 v38, v38, v39"); e("v_xor_b32 v39, 64, v38")
def fdma(n0, n, tag=None):
    for k in range(n0, n0 + n):
        e(f"s_mov_b32 m0, s{sDm}"); e(f"s_add_u32 s{sDm}, s{sDm}, 1024")
        A.vmem(f"buffer_load_dwordx4 v{38+(k&1)}, {sr(sX)}, s{sDo} offen {NTW} lds", tag, counted=tag is not None)
        e(f"s_add_u32 s{sDo}, s{sDo}, {8*3072}")
CSL = int(OPT.get("csl", 1))
def cs_store():
    e(f"s_add_u32 s{sT0}, s{sLG}, {2*LS}"); lstore(f"buffer_store_dword v{vCS}, v{vQst}, {sr(sW)}, s{sT0} offen")
def addr_block():
    e(f"v_mov_b32 v109, v{vC1}")
    e(f"v_and_b32 v25, 15, v{vL}"); e(f"v_lshrrev_b32 v26, 4, v{vL}"); e("v_add_u32 v27, 4, v26")
    rowbase(vC1, 26, oFG, oFL, None, 28); rowbase(vC2, 27, oFG, oFL, None, 28)
    e(f"s_min_u32 s{sT3}, s{sJ}, 19"); e(f"s_lshl_b32 s{sT3}, s{sT3}, 6"); e(f"v_lshl_add_u32 v25, v25, 2, s{sT3}")
    e(f"v_add_u32 v{vC1}, v{vC1}, v25"); e(f"v_add_u32 v{vC2}, v{vC2}, v25")
    fill()
    e(f"v_and_b32 v25, 15, v{vL}"); e(f"v_bfe_u32 v27, v{vL}, 2, 2"); e(f"v_and_b32 v28, 3, v{vL}")
    e(f"s_mul_i32 s{sT3}, s{sWV}, 12288"); e(f"s_add_u32 s{sT3}, s{sT3}, {WO}")
    e("v_lshl_add_u32 v29, v26, 3, v27"); e("v_lshlrev_b32 v29, 6, v29"); e("v_lshl_add_u32 v29, v28, 3, v29"); e(f"v_add_u32 v29, s{sT3}, v29"); e("v_accvgpr_write_b32 a246, v29")
    e(f"s_mul_i32 s{sT3}, s{sWV}, 3072"); e(f"s_add_u32 s{sT3}, s{sT3}, {oO}")
    e(f"v_lshl_add_u32 v29, v25, 4, s{sT3}"); e("v_lshl_add_u32 v29, v26, 7, v29"); e("v_accvgpr_write_b32 a247, v29")
    e(f"s_lshl_b32 s{sT3}, s{sWV}, 6"); e(f"s_add_u32 s{sT3}, s{sT3}, {oML}"); e("v_and_b32 v29, 1, v26"); e(f"v_lshl_add_u32 v29, v29, 5, s{sT3}"); e("v_accvgpr_write_b32 a248, v29")
    e(f"s_lshl_b32 s{sT3}, s{sWV}, 8"); e(f"s_add_u32 s{sT3}, s{sT3}, {ACC+YACC}"); e(f"v_lshl_add_u32 v29, v{vL}, 2, s{sT3}"); e("v_accvgpr_write_b32 a249, v29")
    e(f"s_lshl_b32 s{sYl}, s{sJ}, 6"); e(f"s_mul_i32 s{sYg}, s{sG}, 1280"); e(f"s_add_u32 s{sYg}, s{sYg}, s{sYl}"); e(f"s_add_u32 s{sYg}, s{sYg}, {oYG}")
    e(f"s_add_u32 s{sYl}, s{sYl}, s{sLG}"); e(f"s_add_u32 s{sYl}, s{sYl}, {oYL}")
A.wait("x")
for q in range(5): e(f"v_lshlrev_b32 v{88+2*q}, 16, v{80+q}"); e(f"v_and_b32 v{89+2*q}, 0xffff0000, v{80+q}")
e("v_add_f32 v80, v88, v89")
for q in range(2, 10): e(f"v_add_f32 v80, v80, v{88+q}")
rowred("add", 80, None, (8, 4, 2, 1)); xrow("add", 80, 81)
e("v_mul_f32 v80, 0x3acccccd, v80")
for q in range(10): e(f"v_sub_f32 v{88+q}, v{88+q}, v80")
e("v_mul_f32 v82, v88, v88")
for q in range(1, 10): e(f"v_fmac_f32 v82, v{88+q}, v{88+q}")
fill()
rowred("add", 82, None, (8, 4, 2, 1)); xrow("add", 82, 81)
e("v_mul_f32 v82, 0x3acccccd, v82"); e("v_add_f32 v82, 0x3727c5ac, v82"); e("v_rsq_f32 v82, v82")
e("s_mov_b32 vcc_lo, 0xaaaaaaaa"); e("s_mov_b32 vcc_hi, 0xaaaaaaaa"); e("v_mov_b32 v85, 0x3f803f80")
for q in range(10):
    e(f"v_lshlrev_b32 v83, 16, v{70+q}"); e(f"v_and_b32 v84, 0xffff0000, v{70+q}"); e("v_sub_f32 v83, v83, v80"); e("v_sub_f32 v84, v84, v80")
    e("v_mul_f32 v83, v83, v82"); e("v_mul_f32 v84, v84, v82"); e("v_cvt_pk_bf16_f32 v83, v83, v84"); e(f"v_cndmask_b32 v{70+q}, v83, v85, vcc")
    if q == 5: fill()
ahead("wq", int(OPT.get("lax", 6))); A.wait("wq"); e("s_barrier"); wq_frags()
tagl = "global_load_dword v98, v100, s[64:65] sc1"
e("v_mov_b32 v100, 0"); e(f"s_cmp_lg_u32 s{sWV}, 0"); e("s_cbranch_scc1 NOTL"); setexec(1); e(tagl); setexec(FULL); lab("NOTL")
fill(2)
stamp(1)
e(f"s_mul_i32 s{sT2}, s{sWV}, 96"); e(f"s_add_u32 s{sT2}, s{sT2}, {ACC}"); e(f"v_min_u32 v36, 48, v{vL}"); e(f"v_lshl_add_u32 v36, v36, 1, s{sT2}")
e(f"v_mov_b32 v37, {ACC+512}"); e(f"v_cmp_le_u32 vcc, 48, v{vL}"); e("v_cndmask_b32 v36, v36, v37, vcc"); e(f"v_add_u32 v37, {ACC}, v{vLin}")
e("s_waitcnt lgkmcnt(0)")
for kk in range(3):
    for t in range(3):
        n = 4 if kk < 2 else 2
        e(f"v_mfma_f32_16x16x{32 if kk<2 else 16}_bf16 {vr(T+4*t)}, {vr(70+4*kk,n)}, {vr(F+10*t+4*kk,n)}, " + ("0" if kk == 0 else vr(T + 4 * t)))
fill()
e(f"v_mov_b32 v{vCS}, v{T+1}")
for t in (1, 2):
    e(f"v_mov_b32_dpp v{T}, v{T+4*t} quad_perm:[0,1,2,3] row_mask:{1<<t:#x} bank_mask:0xf"); e(f"v_mov_b32_dpp v{vCS}, v{T+4*t+1} quad_perm:[0,1,2,3] row_mask:{1<<t:#x} bank_mask:0xf")
e(f"v_cvt_pk_bf16_f32 v{T}, v{T}, v{T}"); e(f"ds_write_b16 v36, v{T}")
fill(2)
e("s_waitcnt lgkmcnt(0)"); e("s_barrier")
e(f"ds_read_b128 v[28:31], v37"); e(f"s_lshl_b32 s{sT2}, s{sJ}, 9"); e(f"s_add_u32 s{sT2}, s{sT2}, s{sLG}")
e(f"s_cmp_eq_u32 s{sWV}, 0"); e(f"s_cselect_b32 exec_lo, 0xffffff, 1"); e("s_mov_b32 exec_hi, 0"); e(f"s_cselect_b32 s{sT1}, 0, {OOB-0x10000000}"); e(f"v_add_u32 v37, s{sT1}, v{vLin}")
e("s_waitcnt lgkmcnt(0)")
if "qst" not in SKIP: A.vmem(f"buffer_store_dwordx4 v[28:31], v37, {sr(sW)}, s{sT2} offen sc1", "qst")
setexec(FULL)
for q in range(4): e(f"v_mov_b32 v{32+q}, -1")
if RY0:
    e(f"s_lshr_b32 s{sT1}, s{sJ}, 2"); e(f"s_or_b32 s{sT1}, s{sT1}, s{sWV}"); e("s_cbranch_scc1 NOYC")
    for q in range(2): e(f"buffer_store_dwordx4 v[32:35], v{vLin}, {sr(sW)}, s{sClr} offen offset:{1024*q} sc1")
    lab("NOYC")
if "clr" not in SKIP: A.vmem(f"buffer_store_dwordx4 v[32:35], v{vC2}, {sr(sW)}, 0 offen sc1", "qst")
Krel(0)
ahead("qst", int(OPT.get("laq", 9)))
e(f"s_getreg_b32 s{sXcc}, hwreg(HW_REG_XCC_ID, 0, 4)")
e(f"s_cmp_lg_u32 s{sWV}, 0"); e("s_cbranch_scc1 NOHDR")
save = list(A.vm); A.wait("qst"); A.vm = save
e("v_readfirstlane_b32 s96, v98"); e("s_cmp_eq_u32 s96, 0"); e("s_cbranch_scc1 TAGLOOP"); lab("TAGOK")
def t_():
    lab("TAGLOOP"); e(f"s_mov_b32 s{sCnt}, 0"); lab("TAGL2"); e("s_sleep 8"); e(tagl); e("s_waitcnt vmcnt(0)"); e("v_readfirstlane_b32 s96, v98"); e("s_cmp_lg_u32 s96, 0"); e("s_cbranch_scc1 TAGOK")
    e(f"s_add_u32 s{sCnt}, s{sCnt}, 1"); e(f"s_cmp_lt_u32 s{sCnt}, {LIMIT}"); e("s_cbranch_scc1 TAGL2"); e("s_branch TAGOK")
tail.append(t_)
e(f"v_mov_b32 v99, s{sXcc}"); setexec(1); e(f"buffer_store_dwordx2 v[98:99], v{vLin}, {sr(sW)}, s{sT2} offen offset:384 sc1"); setexec(FULL)
lab("NOHDR")
stamp(1, "s100")
Krel(1); Krel(2)
RT = int(OPT.get("rt", 9))
DT = int(OPT.get("dt", 7))
rdy = [f"buffer_load_dwordx2 v[98:99], v100, {sr(sW)}, 0 offen offset:384 sc1"]
e(f"v_lshlrev_b32 v100, 9, v{vL}"); e(f"v_add_u32 v100, s{sLG}, v100"); e(f"v_bfe_u32 v96, v{vL}, 2, 3"); e(f"v_mul_u32_u24 v96, {GB}, v96"); e(f"v_and_b32 v97, 3, v{vL}"); e("v_lshl_add_u32 v96, v97, 9, v96")
e(f"v_cmp_le_u32 vcc, 32, v{vL}"); e("v_cndmask_b32 v100, v100, v96, vcc"); e(f"s_cmp_eq_u32 s{sWV}, 0"); e(f"s_cselect_b32 s{sT0}, 0, {OOB-0x10000000}"); e(f"v_add_u32 v100, s{sT0}, v100")
def ld(t): Kld(t) if t < 8 else Vld(t - 8)
def rel(t): Krel(t) if t < 8 else Vrel(t - 8)
for t in range(5, RT + 2):
    ld(t)
    if t == DT: stamp(12); role_dma()
    if t == RT: A.vmem(rdy[0], "rdy"); stamp(2, "s100")
    if t == 7: addr_block()
    rel(t - 2)
ahead("rdy"); A.wait("rdy"); e(f"s_mov_b32 s{sCnt}, -1"); e(f"v_mov_b32 v97, {FLG}")
e(f"s_cmp_lg_u32 s{sWV}, 0"); e("s_cbranch_scc1 RDYX")
e("v_cmp_ne_u32 vcc, s96, v98"); e("s_cbranch_vccnz RDYLOOP"); lab("RDYOK")
e(f"v_cmp_ne_u32 vcc, s{sXcc}, v99"); e("s_nop 1"); e(f"v_mov_b32 v96, vcc_lo"); e("ds_write_b32 v97, v96")
lab("RDYX")
stamp(13, f"s{sCnt}")
def t_():
    lab("RDYLOOP")
    if SPM == "rdy": e("v_accvgpr_read_b32 v96, a253"); e("v_add_u32 v96, 2000, v96"); e("v_accvgpr_write_b32 a253, v96")
    e(f"s_mov_b32 s{sCnt}, 0"); lab("RDYL2"); e("s_sleep 8"); e(rdy[0]); e("s_waitcnt vmcnt(0)"); e("v_cmp_ne_u32 vcc, s96, v98"); e("s_cbranch_vccz RDYOK")
    e(f"s_add_u32 s{sCnt}, s{sCnt}, 1"); e(f"s_cmp_lt_u32 s{sCnt}, {LIMIT}"); e("s_cbranch_scc1 RDYL2"); e("s_branch RDYOK")
tail.append(t_)
fill(2)
e("s_waitcnt lgkmcnt(0)"); e("s_barrier"); e("ds_read_b32 v96, v97"); e("s_waitcnt lgkmcnt(0)"); e(f"v_readfirstlane_b32 s{sT0}, v96")
e(f"s_cmp_eq_u32 s{sT0}, 0"); e(f"s_cselect_b32 s{sWp+2}, s{sW+2}, 0")
assert not any(t[0] == "K" for _, t in pend) and DT <= RT + 1
if FORCESLOW: e(f"s_mov_b32 s{sWp+2}, 0")
for d_ in (sWp,): e(f"s_mov_b32 s{d_}, s{sW}"); e(f"s_mov_b32 s{d_+1}, s{sW+1}"); e(f"s_mov_b32 s{d_+3}, 0x20000")
stamp(2)
if "pre" not in SKIP:
    A.vmem(f"buffer_load_dwordx4 a[240:243], v109, {sr(sW)}, 0 offen sc1", "pre")
e(f"s_mul_i32 s{sT0}, s{sJ}, 464"); e(f"s_add_u32 s{sT0}, s{sT0}, s{sLG}"); e(f"s_add_u32 s{sT0}, s{sT0}, {oBB}"); e(f"s_cmp_eq_u32 s{sWV}, 3"); e(f"s_cselect_b32 s{sT0}, s{sT0}, {OOB-0x10000000}")
e(f"v_add_u32 v106, s{sT0}, v{vLin}"); e(f"v_mov_b32 v107, {OOB}"); e(f"v_cmp_le_u32 vcc, 29, v{vL}"); e("v_cndmask_b32 v106, v106, v107, vcc")
if "pre" not in SKIP: A.vmem(f"buffer_load_dwordx4 a[240:243], v106, {sr(sW)}, 0 offen sc1", "pre")
e(f"s_lshl_b32 s{sT0}, s{sJ}, 2"); e(f"s_add_u32 s{sT0}, s{sT0}, s{sWV}"); e(f"s_lshl_b32 s{sT1}, s{sT0}, 8"); e(f"s_add_u32 s{sT1}, s{sT1}, {LS}"); e(f"s_lshl_b32 s{sT0}, s{sT0}, 9"); e(f"s_sub_u32 s{sT0}, s{sT0}, 256")
e(f"v_lshlrev_b32 v24, 7, v{vL}"); e(f"v_add_u32 v25, s{sT0}, v24"); e(f"v_min_u32 v25, {oGX+CSO-128}, v25"); e(f"v_add_u32 v24, s{sT1}, v24"); e(f"v_cmp_gt_u32 vcc, 2, v{vL}"); e("v_cndmask_b32 v24, v25, v24, vcc")
e(f"s_add_u32 s{sT0}, s{sLG}, {LS}"); setexec(63); A.vmem(f"buffer_load_dword a243, v24, {sr(sW)}, s{sT0} offen sc1", "pre"); setexec(FULL)
e(f"s_lshl_b32 s{sT0}, s{sHH}, 12"); e(f"s_mul_i32 s{sT1}, s{sWV}, 96"); e(f"s_add_u32 s{sT0}, s{sT0}, s{sT1}"); e(f"s_add_u32 s{sT0}, s{sT0}, s{sLG}")
e(f"v_lshrrev_b32 v24, 4, v{vL}"); e("v_lshlrev_b32 v24, 9, v24"); e(f"v_and_b32 v25, 15, v{vL}"); e("v_min_u32 v25, 11, v25"); e("v_lshl_add_u32 v24, v25, 3, v24")
for q in range(2):
    if "qg" not in SKIP: A.vmem(f"buffer_load_dwordx2 v[{64+2*q}:{65+2*q}], v24, {sr(sW)}, s{sT0} offen offset:{2048*q} sc1", "qg")
def pack_store16(d, instr_fn):
    for q in (1, 2, 3): e(f"v_mov_b32_dpp v{d+q}, v{d} quad_perm:[{q},{q},{q},{q}] row_mask:0xf bank_mask:0xf")
    setexec(0x1111); instr_fn(); setexec(FULL)
if "b0" in SKIP: e("s_branch NOBASE0")
e(f"s_cmp_lg_u32 s{sWV}, 1"); e("s_cbranch_scc1 NOBASE0"); e(f"s_cmp_ge_u32 s{sJ}, 20"); e("s_cbranch_scc1 NOBASE0")
e(f"v_mov_b32 v28, v{vXR}"); e(f"s_lshl_b32 s{sT0}, s{sJ}, 6"); e(f"s_add_u32 s{sT0}, s{sT0}, s{sLG}"); e(f"s_add_u32 s{sT0}, s{sT0}, {oBA}"); e(f"v_lshlrev_b32 v27, 2, v{vL}")
pack_store16(28, lambda: lstore(f"buffer_store_dwordx4 v[28:31], v27, {sr(sW)}, s{sT0} offen"))
lab("NOBASE0")
stamp(3)
for t in range(RT, RT + 3): rel(t)
ahead("qg"); A.wait("qg")
for q in range(4): e(f"v_lshlrev_b32 v{T+2*q}, 16, v{64+q}"); e(f"v_and_b32 v{T+2*q+1}, 0xffff0000, v{64+q}")
qsum(T)
e(f"v_cvt_pk_bf16_f32 v{T}, v{T}, v{T}"); e(f"ds_write_b16 v{vQBw}, v{T}")
fill(); att_zero()
stamp(4)
fill(2); e("s_waitcnt lgkmcnt(0)"); e("s_barrier")
for ks in range(3): e(f"ds_read_b128 {vr(QF+4*ks)}, v{vQBr} offset:{128*ks}")
e(f"v_mov_b32 v{vSC}, 0x3dd53b94")
qk_softmax(fl=1)
stamp(5)
for t in range(RT + 3, 12): rel(t)
fill(2)
e("s_waitcnt lgkmcnt(0)"); pv_step(0); fill(); pv_step(1)
Vrel(4)
assert sum(1 for _, t in pend if t == "V7") == 6
for q in range(4): e(f"v_mov_b32 v{24+q}, -1")
if "gxc" not in SKIP: lstore(f"buffer_store_dwordx4 v[24:27], v106, {sr(sW)}, 0 offen"); A.vm.append("gxc")
hold.clear(); Vld(7); Vrel(5)
e(f"v_and_b32 v{vXR+1}, 0xffff0000, v{vXR}"); e(f"v_lshlrev_b32 v{vXR}, 16, v{vXR}")
PT_ = [int(x) for x in OPT.get("pt", "7,3").split(",")]
PTF = int(OPT.get("ptf", 1))
def late_pf(w, k0, n):
    if "wo" in SKIP: return
    for k in range(k0, k0 + n):
        if k % 4 == 0 and k: e(f"s_add_u32 s{sPo}, s{sPo}, 4096")
        A.vmem(f"buffer_load_dwordx4 a[240:243], v{vLin}, {sr(sWQ)}, s{sPo} offen offset:{1024*(k%4)} {NTP}", "pfo")
for m_, r_ in ((0x0101010101010101, 82), (ROWS9, 84), ((1 << 45) - 1, 86), ((1 << 23) - 1, 50), (0xFF00FF0000FF00FF, 88), (0x01010101, 92), (0x0F0F0F0F0F0F0F0F if REPL else 0x01010101 + (1 << 63), 44)):
    e(f"s_mov_b32 s{r_}, {m_ & 0xffffffff:#x}"); e(f"s_mov_b32 s{r_+1}, {m_ >> 32:#x}"); MASKS[m_] = r_
if not REPL: e("s_mov_b32 s45, 0")
e(f"s_mov_b64 s[46:47], s[{'44:45' if RY0 else '92:93'}]"); e("s_mov_b64 s[48:49], s[44:45]")
FGE = int(OPT.get("fge", 1))
def rep_addr(d, t):
    e(f"v_and_b32 v{d}, 3, v{vL}"); e(f"v_lshrrev_b32 v{t}, 5, v{vL}"); e(f"v_lshl_add_u32 v{d}, v{t}, 2, v{d}"); e(f"v_mul_u32_u24 v{d}, 10240, v{d}")
    e(f"v_bfe_u32 v{t}, v{vL}, 3, 2"); e(f"v_lshl_add_u32 v{d}, v{t}, 4, v{d}")
def stream_tail(w):
    save = list(A.vm)
    pf = sum(PT_) and not (PTF and w)
    if pf and not PTF:
        e(f"s_lshl_b32 s{sPo}, s{sHH}, 3"); e(f"s_add_u32 s{sPo}, s{sPo}, s{sG}"); e(f"s_lshl_b32 s{sPo}, s{sPo}, 3"); e(f"s_add_u32 s{sPo}, s{sPo}, s{sS}")
        e(f"s_lshl_b32 s{sPo}, s{sPo}, 2"); e(f"s_add_u32 s{sPo}, s{sPo}, s{sWV}"); e(f"s_mul_i32 s{sPo}, s{sPo}, 7680")
    if pf and PTF:
        e(f"s_lshl_b32 s{sPo}, s{sWV}, 3"); e(f"s_add_u32 s{sPo}, s{sPo}, s{sG}"); e(f"s_add_u32 s{sPo}, s{sPo}, 1"); e(f"s_mul_i32 s{sPo}, s{sPo}, {192*1280}")
        e(f"s_sub_u32 s{sT1}, 32, s{sJ}"); e(f"s_mul_i32 s{sT1}, s{sT1}, {1024*sum(PT_)}"); e(f"s_sub_u32 s{sPo}, s{sPo}, s{sT1}")
    if pf: late_pf(w, 0, PT_[0])
    if w and FGE and "fgc" not in SKIP:
        for q in range(4): e(f"v_mov_b32 v{24+q}, -1")
        rep_addr(28, 29); e(f"s_cmp_eq_u32 s{sWV}, 3"); e(f"s_cselect_b32 s{sT0}, 0, {OOB-0x10000000}"); e(f"v_add_u32 v28, s{sT0}, v28"); e(f"s_add_u32 s{sT0}, s{sYg}, {oFG-oYG}")
        e("s_mov_b64 exec, s[44:45]"); A.vmem(f"buffer_store_dwordx4 v[24:27], v28, {sr(sW)}, s{sT0} offen sc1", "fgc"); setexec(FULL)
    if w: wdma_addr(); wdma(WT[1], "wo")
    else: fdma_addr(); fdma(FT[0], FT[1], "f")
    e("s_waitcnt lgkmcnt(0)"); pv_step(2)
    Vrel(6)
    if pf: late_pf(w, PT_[0], PT_[1])
    if w: wdma(WT[2], "wo")
    if not w: fdma(sum(FT[:2]), FT[2], "f")
    x = len(A.vm) - 1 - max(i for i, t in enumerate(A.vm) if t == "V7")
    f_, b_ = vblock(8)
    for i in range(6):
        e(f"s_waitcnt vmcnt({5-i+x})"); e(f"ds_write_b128 v{vWr+i%3}, {rg(f_, b_+4*i, 4)} offset:{(i//3)*8*RS}")
    f_, b_ = vblock(6)
    for dt in range(12): e(f"ds_read_b64_tr_b16 {rg(f_, b_+4*dt+2, 2)}, v{vVrd} offset:{32*dt}")
    if w: wdma(WT[3], "wo")
    if not w: fdma(sum(FT[:3]), FT[3], "f")
    e("s_branch ATT_LAST")
    A.vm = save
e(f"s_cmp_ge_u32 s{sJ}, 20"); e("s_cbranch_scc1 TAILF")
stream_tail(True)
lab("TAILF")
stream_tail(False)
A.drained()
flush_near()

lab("LOOP")
if JIT: jitter(JIT, 40)
def cs_pull():
    e(f"s_add_u32 s{sT0}, s{sLG}, {2*LS}"); e(f"s_add_u32 s{sT1}, s{sT0}, 4096")
    for so in (sT0, sT1): e(f"buffer_load_dwordx4 a[240:243], v{vQld}, {sr(sW)}, s{so} offen sc1")
def loop_prep():
    wq_frags()
    e(f"v_and_b32 v25, 15, v{vL}"); e("v_cmp_eq_u32 vcc, 12, v25"); e("v_mov_b32 v36, 0x3f803f80"); e(f"v_cndmask_b32 v70, 0, v36, vcc")
    for q in range(1, 10): e(f"v_mov_b32 v{70+q}, v70")
    e(f"s_mul_i32 s{sT0}, s{sWV}, {SCRW}" if "l" not in SHB else f"s_mov_b32 s{sT0}, 4096")
    e(f"v_mul_u32_u24 v96, 103, v{vL}"); e("v_lshrrev_b32 v96, 10, v96"); e(f"v_lshl_add_u32 v96, v96, 4, v{vLin}"); e(f"v_add_u32 v96, s{sT0}, v96")
    e(f"v_mul_u32_u24 v97, 176, v25"); e(f"v_add_u32 v97, s{sT0}, v97"); e(f"v_lshrrev_b32 v28, 4, v{vL}"); e("v_lshl_add_u32 v98, v28, 3, v97"); e("v_lshl_add_u32 v97, v28, 4, v97")
e(f"s_cmp_lt_u32 s{sJ}, 20"); e(f"s_cselect_b32 s{sXcc}, s{sWV}, 4")
e(f"s_add_u32 s96, s{sLG}, {LS}"); e("s_add_u32 s97, s96, 4096")
e(f"s_and_b32 s{sT0}, s{sXcc}, 3"); e("s_cbranch_scc1 LOOP2")
loop_prep()
lab("LOOP2")
e(f"s_add_u32 s{sT2}, s{sLG}, 4096")
e(f"s_mul_i32 s{sT0}, s{sS}, 160"); e(f"s_add_u32 s{sT0}, s{sT0}, s{sLG}"); e(f"s_sub_u32 s{sT0}, s{sT0}, {LS-oFL}")
gate(sT0, 10, 24)
setexec((1 << (23 if "l" in SHB else 60)) - 1)
def sbounce(load, reg, write, reads, first=None, w1=0):
    k = nid()
    e(load)
    if first: first()
    e(f"s_waitcnt vmcnt({w1})")
    lab(f"BW{k}")
    e(write); e(f"v_cmp_eq_u32 vcc, -1, v{reg}"); e(f"s_cbranch_vccnz BR{k}")
    lab(f"BX{k}")
    setexec(ROWS9); e("s_waitcnt lgkmcnt(0)"); e("s_barrier")
    for x in reads: e(x)
    setexec(FULL)
    def t():
        lab(f"BR{k}")
        e(f"s_cmp_ge_u32 s{sCnt}, {LIMIT}"); e(f"s_cbranch_scc1 BX{k}")
        e("s_mov_b64 exec, vcc"); e(load); e(f"s_add_u32 s{sCnt}, s{sCnt}, 1"); e("s_waitcnt vmcnt(0)"); e(f"s_branch BW{k}")
    near.append(t)
def bounce(groups, tmp, writes, reads, first=None, w1=0):
    k = nid(); allr = [r for g in groups for r in g[1]]
    for g in groups:
        for l in g[0]: e(l)
    if first: first()
    e(f"s_waitcnt vmcnt({w1})")
    lab(f"BW{k}")
    for x in writes: e(x)
    check(allr, tmp)
    setexec(ROWS9)
    for x in reads: e(x)
    setexec(FULL)
    e(f"s_cbranch_vccnz BR{k}")
    lab(f"BX{k}")
    def t():
        lab(f"BR{k}")
        e(f"s_cmp_ge_u32 s{sCnt}, {LIMIT}"); e(f"s_cbranch_scc1 BX{k}")
        lab(f"BL{k}")
        for gi, (ls, rs) in enumerate(groups):
            setexec((1 << 60) - 1); check(rs, tmp); e("s_mov_b64 exec, vcc"); e(f"s_cbranch_execz BS{k}_{gi}")
            for l in ls: e(l)
            lab(f"BS{k}_{gi}")
        setexec((1 << 60) - 1)
        e(f"s_add_u32 s{sCnt}, s{sCnt}, 1"); e(f"s_cmp_ge_u32 s{sCnt}, {LIMIT}")
        e("s_waitcnt vmcnt(0)")
        check(allr, tmp)
        e(f"s_cbranch_vccz BW{k}"); e(f"s_cbranch_scc0 BL{k}"); e(f"s_branch BW{k}")
    near.append(t)
assert GATE
if "l" in SHB: sbounce(f"buffer_load_dwordx4 v[80:83], v{vAq}, {sr(sW)}, 0 offen sc1", 80, f"ds_write_b128 v{vAq16}, v[80:83]",
       ["ds_read_b128 v[70:73], v97", "ds_read_b128 v[74:77], v97 offset:64", "ds_read_b64 v[78:79], v98 offset:128"],
       first=lambda: (setexec(FULL), [e(l) for l in qloads(88, "s96", "s97")], setexec((1 << 23) - 1)), w1=2)
else: bounce([([f"buffer_load_dwordx4 v[80:83], v{vAq}, {sr(sW)}, 0 offen sc1"], [80]), ([f"buffer_load_dwordx4 v[84:87], v{vAq16}, {sr(sW)}, 0 offen sc1"], [84])], 24,
       ["ds_write_b128 v96, v[80:83]", f"ds_write_b128 v96, v[84:87] offset:{6*176}"],
       ["ds_read_b128 v[70:73], v97", "ds_read_b128 v[74:77], v97 offset:64", "ds_read_b64 v[78:79], v98 offset:128"],
       first=lambda: [e(l) for l in qloads(88, "s96", "s97")], w1=2)
stamp(1)
e(f"s_cmp_lg_u32 s{sXcc}, 1"); e("s_cbranch_scc1 NOOWL")
e(f"buffer_load_dword a244, v{vC1}, {sr(sW)}, 0 offen sc1"); e(f"buffer_load_dword a245, v{vC2}, {sr(sW)}, 0 offen sc1")
lab("NOOWL")
qstage(70, f"s{sLG}", waits=True)
stamp(2)
att_zero()
e(f"s_waitcnt vmcnt({2 if STAMP == 1 else 1})"); qsum(88); e(f"v_mul_f32 v{vCS}, 0x3acccccd, v88")
for _ in range(int(OPT.get("qd", 0))): e("s_nop 7")
poll_nan(qloads(T, f"s{sLG}", f"s{sT2}"), lambda: qsum(T), T)
stamp(3)
q_finish(T)
stamp(4)
qk_softmax()
stamp(5)
for u in range(3):
    e(f"s_waitcnt lgkmcnt({4-u})"); pv_step(u)
e("s_waitcnt lgkmcnt(0)")
lab("ATT_LAST")
for dp in range(6):
    if dp % 2 == 0: e(f"s_waitcnt lgkmcnt({8-2*dp})")
    pv_step(3, [dp])
def pack8(v):
    e(f"v_mov_b32_dpp v{v+1}, v{v} row_shl:1 row_mask:0xf bank_mask:0xf"); e(f"v_cvt_pk_bf16_f32 v{v}, v{v}, v{v+1}")
    for q in (1, 2, 3): e(f"v_mov_b32_dpp v{v+q}, v{v} row_shl:{2*q} row_mask:0xf bank_mask:0xf")
def pack8q(v):
    e(f"v_mov_b32_dpp v{v+1}, v{v} row_shl:1 row_mask:0xf bank_mask:0xf"); e(f"v_cvt_pk_bf16_f32 v{v+4}, v{v}, v{v+1}")
    e(f"v_mov_b32_dpp v{v}, v{v+4} quad_perm:[0,0,0,0] row_mask:0xf bank_mask:0xf"); e(f"v_mov_b32_dpp v{v+1}, v{v+4} quad_perm:[2,2,2,2] row_mask:0xf bank_mask:0xf")
    e(f"v_mov_b32_dpp v{v+2}, v{v} row_shl:4 row_mask:0xf bank_mask:0xf"); e(f"v_mov_b32_dpp v{v+3}, v{v+1} row_shl:4 row_mask:0xf bank_mask:0xf")
e(f"s_lshl_b32 s{sT0}, s{sWV}, 8"); e(f"s_add_u32 s{sT0}, s{sT0}, {ACC+OACC}"); e(f"v_lshl_add_u32 v24, v{vL}, 2, s{sT0}")
pv_post()
e(f"v_and_b32 v25, 3, v{vL}"); e(f"v_lshlrev_b32 v25, 3, v25"); e(f"v_add_u32 v25, {ML4}, v25")
e("s_waitcnt lgkmcnt(0)"); e("s_barrier")
stamp(6)
e("ds_read_b64 v[32:33], v25"); e("ds_read2st64_b32 v[40:41], v24 offset0:0 offset1:3"); e("ds_read2st64_b32 v[42:43], v24 offset0:6 offset1:9")
e(f"s_mul_i32 s{sT0}, s{sHH}, 3072"); e(f"s_lshl_b32 s{sT1}, s{sS}, 4"); e(f"s_add_u32 s{sT0}, s{sT0}, s{sT1}"); e(f"s_lshl_b32 s{sT1}, s{sWV}, 10"); e(f"s_add_u32 s{sT0}, s{sT0}, s{sT1}")
e(f"s_add_u32 s{sT0}, s{sT0}, s{sLG}"); e(f"s_add_u32 s{sT0}, s{sT0}, {oO}")
e(f"s_lshl_b32 s{sT1}, s{sJ}, 3"); e(f"s_add_u32 s{sT1}, s{sT1}, s{sLG}"); e(f"s_add_u32 s{sT1}, s{sT1}, {oML}"); e(f"s_cmp_eq_u32 s{sWV}, 3")
e("s_waitcnt lgkmcnt(2)")
e("v_max_f32_dpp v34, v32, v32 quad_perm:[1,0,3,2] row_mask:0xf bank_mask:0xf"); e("v_max_f32_dpp v34, v34, v34 quad_perm:[2,3,0,1] row_mask:0xf bank_mask:0xf")
e("v_sub_f32 v32, v32, v34"); e("v_exp_f32 v32, v32")
e("s_cbranch_scc1 OML"); e("s_waitcnt lgkmcnt(0)")
e("v_mul_f32_dpp v28, v32, v40 quad_perm:[0,0,0,0] row_mask:0xf bank_mask:0xf"); e("v_mul_f32_dpp v29, v32, v41 quad_perm:[1,1,1,1] row_mask:0xf bank_mask:0xf")
e("v_mul_f32_dpp v30, v32, v42 quad_perm:[2,2,2,2] row_mask:0xf bank_mask:0xf"); e("v_fmac_f32_dpp v28, v32, v43 quad_perm:[3,3,3,3] row_mask:0xf bank_mask:0xf")
e("v_add_f32 v29, v29, v30"); e("v_add_f32 v28, v28, v29")
pack8(28)
setexec(0x0101010101010101)
lstore(f"buffer_store_dwordx4 v[28:31], v{vLin}, {sr(sW)}, s{sT0} offen")
setexec(FULL)
def t_():
    lab("OML")
    e("v_mul_f32 v35, v32, v33")
    e("v_add_f32_dpp v35, v35, v35 quad_perm:[1,0,3,2] row_mask:0xf bank_mask:0xf"); e("v_add_f32_dpp v35, v35, v35 quad_perm:[2,3,0,1] row_mask:0xf bank_mask:0xf")
    setexec(1); lstore(f"buffer_store_dwordx2 v[34:35], v{vLin}, {sr(sW)}, s{sT1} offen"); setexec(FULL)
    e("s_waitcnt lgkmcnt(0)"); e("s_branch ODONE")
near.append(t_)
lab("ODONE")
if STAMP == 3 and "land" in SKIP:
    e(f"s_cmp_ge_u32 s{sJ}, 20"); e("s_cbranch_scc1 LND"); wdma_addr(); wdma(WT[4]); lab("LND"); e("s_waitcnt vmcnt(0)")
stamp(7)
if STAMP == 3: e("s_endpgm")
e(f"s_cmp_ge_u32 s{sJ}, 20"); e("s_cbranch_scc1 ROLEF")
def owner_add():
    e("v_lshlrev_b32 v30, 16, v28"); e("v_and_b32 v28, 0xffff0000, v28"); e("v_lshlrev_b32 v31, 16, v29"); e("v_and_b32 v29, 0xffff0000, v29")
    e("v_add_f32 v30, v30, v31"); e("v_add_f32 v28, v28, v29")
    e("v_mov_b32 v31, v30"); e("v_mov_b32 v29, v28"); e("v_permlane32_swap_b32 v30, v31"); e("v_permlane32_swap_b32 v28, v29"); e("v_add_f32 v30, v30, v31"); e("v_add_f32 v28, v28, v29")
    e("v_mov_b32 v31, v30"); e("v_mov_b32 v29, v28"); e("v_permlane16_swap_b32 v30, v31"); e("v_permlane16_swap_b32 v28, v29"); e("v_add_f32 v30, v30, v31"); e("v_add_f32 v28, v28, v29")
    e(f"v_add_f32 v{vXR}, v{vXR}, v30"); e(f"v_add_f32 v{vXR+1}, v{vXR+1}, v28")
    e(f"v_cvt_pk_bf16_f32 v28, v{vXR}, v{vXR+1}")
def own_loads(a0, a1, soff): return [f"buffer_load_dword v28, v{a0}, {sr(sW)}, {soff} offen sc1", f"buffer_load_dword v29, v{a1}, {sr(sW)}, {soff} offen sc1"]
def base_store(ob):
    e(f"s_lshl_b32 s{sT0}, s{sJ}, 6"); e(f"s_add_u32 s{sT0}, s{sT0}, s{sLG}"); e(f"s_add_u32 s{sT0}, s{sT0}, {ob}"); e(f"v_lshlrev_b32 v32, 2, v{vL}")
    pack_store16(28, lambda: lstore(f"buffer_store_dwordx4 v[28:31], v32, {sr(sW)}, s{sT0} offen"))
e(f"s_cmp_eq_u32 s{sLay}, 0"); e("s_cbranch_scc1 WLATE")
def t_():
    lab("WLATE")
    if JIT: jitter(JIT, 40)
    if WT[4]: wdma_addr(); wdma(WT[4])
    if "cs" not in SKIP: cs_store()
    assert FGE
    for q in range(3): e(f"v_accvgpr_read_b32 v{2+q}, a{246+q}")
    for r_ in [SPARE + 4 * kk for kk in range(6)] + [25, 27, 37, 39]: e(f"v_mov_b32 v{r_}, 0")
    for x in fl0: e(x)
    e("s_waitcnt vmcnt(8)")
    for x in trs[:TRN]: e(x)
    e(f"s_lshl_b32 s{sT0}, s{sG}, 2"); e(f"s_add_u32 s{sT0}, s{sT0}, s{sWV}"); e(f"s_mul_i32 s{sT0}, s{sT0}, {48*1280}"); e(f"s_lshl_b32 s{sT1}, s{sJ}, 6"); e(f"s_add_u32 s{sT0}, s{sT0}, s{sT1}")
    e(f"v_min_u32 v35, 47, v{vL}"); e("v_mul_u32_u24 v35, 1280, v35"); e(f"v_add_u32 v35, s{sT0}, v35")
    wfirst(); e("s_branch WCHK")
near.append(t_)
for q in range(3): e(f"v_accvgpr_read_b32 v{2+q}, a{246+q}")
for kk in range(6): e(f"v_mov_b32 v{SPARE+4*kk}, 0")
TRN = int(OPT.get("trn", 10))
trs = [f"ds_read_b64_tr_b16 {vr(F+24*t+4*kk+2*h,2)}, v2 offset:{(32*kk+4*h)*64+32*t}" for kk in range(6) for t in range(2) for h in range(2)]
for x in trs[:TRN]: e(x)
def own0():
    e(f"s_cmp_lg_u32 s{sWV}, 1"); e("s_cbranch_scc1 NOOWN0")
    e("v_accvgpr_read_b32 v28, a244"); e("v_accvgpr_read_b32 v29, a245")
    late_check("none", own_loads(vC1, vC2, "0"), [28, 29], 30)
    owner_add()
    if OWP != 2: base_store(oBA)
    lab("NOOWN0")
OWP = int(OPT.get("owp", 0))
if not OWP: own0()
MLR = [24, 36]
for _ in range(int(OPT.get("od", 0))): e("s_nop 7")
for q in (25, 27, 37, 39): e(f"v_mov_b32 v{q}, 0")
def wfirst():
    for x in trs[TRN:]: e(x)
    e("v_accvgpr_read_b32 v5, a249"); rep_addr(18, 6); e("v_and_b32 v6, 0xffffff7f, v5")
ol = [f"buffer_load_dwordx4 {vr(SPARE+4*kk)}, v3, {sr(sW)}, s{sLG} offen offset:{512*kk} sc1" for kk in range(6)]
ml = [f"buffer_load_dwordx4 {vr(MLR[q])}, v4, {sr(sW)}, s{sLG} offen offset:{16*q} sc1" for q in range(2)]
fl0 = ["s_mov_b32 exec_lo, 0x00ff00ff", "s_mov_b32 exec_hi, 0x00ff00ff"] + ol + ["s_mov_b32 exec_lo, -1", "s_mov_b32 exec_hi, 0"] + ml + ["s_mov_b64 exec, -1"]
poll_sel([(ol, [SPARE + 4 * kk for kk in range(6)]), (ml, [25, 27, 37, 39])], 28, pid=7, first=lambda: (wfirst(), own0() if OWP else None), firstloads=fl0, wl="WCHK")
e("s_waitcnt lgkmcnt(0)")
stamp(8)
W2T = int(OPT.get("w2t", 0))
if W2T:
    e(f"s_cmp_lg_u32 s{sLay}, 0"); e("s_cbranch_scc1 NOW2T"); e(f"buffer_load_dword a243, v35, {sr(sRC)}, 0 offen"); lab("NOW2T")
M_, U_, L_ = SPARE, SPARE + 1, SPARE + 2
mm_ = [24, 26, 36, 38]
co = [[], [f"v_max3_f32 v{M_}, v24, v26, v36", f"v_max_f32 v{M_}, v{M_}, v38"], [f"v_mov_b32 v{U_}, v{M_}"], [f"v_permlane16_swap_b32 v{M_}, v{U_}", f"v_max_f32 v{M_}, v{M_}, v{U_}"],
      [f"v_sub_f32 v24, v24, v{M_}", f"v_sub_f32 v26, v26, v{M_}"], [f"v_sub_f32 v36, v36, v{M_}", f"v_sub_f32 v38, v38, v{M_}"],
      ["v_exp_f32 v24, v24"], ["v_exp_f32 v26, v26"], ["v_exp_f32 v36, v36"], ["v_exp_f32 v38, v38"],
      [f"v_mul_f32 v{L_}, v24, v25", f"v_fmac_f32 v{L_}, v26, v27"], [f"v_fmac_f32 v{L_}, v36, v37", f"v_fmac_f32 v{L_}, v38, v39"]]
for kk in range(6):
    for t in range(2):
        c = "0" if kk == 0 else vr(28 + 4 * t)
        e(f"v_mfma_f32_16x16x32_bf16 {vr(28+4*t)}, {vr(SPARE+4*kk)}, {vr(F+24*t+4*kk)}, {c}")
        for x in co.pop(0): e(x)
e(f"v_mov_b32 v{U_}, v{L_}"); e(f"s_cmp_lg_u32 s{sWV}, 0"); e(f"v_permlane16_swap_b32 v{L_}, v{U_}"); e(f"v_add_f32 v{L_}, v{L_}, v{U_}"); e(f"v_rcp_f32 v{L_}, v{L_}")
for t in range(2): e(f"v_mul_f32 v{28+4*t}, v24, v{28+4*t}")
for q in range(1, 4):
    for t in range(2): e(f"v_fmac_f32 v{28+4*t}, v{mm_[q]}, v{28+4*t+q}")
e("v_permlane16_swap_b32 v28, v32"); e("v_add_f32 v28, v28, v32"); e(f"v_mul_f32 v28, v28, v{L_}")
e(f"ds_write_b32 v5, v28")
e("s_waitcnt lgkmcnt(0)"); e("s_barrier")
e("s_cbranch_scc1 WNOT0")
assert (ACC + YACC) % 256 == 0
e("ds_read2st64_b32 v[28:29], v6 offset0:0 offset1:1"); e("ds_read2st64_b32 v[30:31], v6 offset0:2 offset1:3")
e("s_waitcnt lgkmcnt(1)"); e("v_add_f32 v28, v28, v29"); e("s_waitcnt lgkmcnt(0)"); e("v_add_f32 v30, v30, v31"); e("v_add_f32 v28, v28, v30")
pack8q(28)
e("s_mov_b64 exec, s[46:47]")
e(f"buffer_store_dwordx4 v[28:31], v18, {sr(sW)}, s{sYg} offen sc1")
setexec(0x01010101)
lstore(f"buffer_store_dwordx4 v[28:31], v18, {sr(sW)}, s{sYl} offen")
setexec(FULL)
stamp(9); stamp(9, "c")
e(f"v_add_u32 v{SPARE+23}, {W2-WO}, v2")
trs2 = [x.replace(", v2 offset", f", v{SPARE+23} offset") for x in trs]
e(f"s_cmp_lg_u32 s{sLay}, 0"); e("s_cbranch_scc1 W2OK")
wdma_addr(False); e(f"s_mul_i32 s{sT0}, s{sG}, {192*1280}"); e(f"s_lshl_b32 s{sT1}, s{sJ}, 6"); e(f"s_add_u32 s{sT0}, s{sT0}, s{sT1}")
for n in range(12 if "w2" not in SKIP else 0):
    e(f"s_mov_b32 m0, {W2+1024*n}"); e(f"buffer_load_dwordx4 v39, {sr(sRC)}, s{sT0} offen lds"); e(f"s_add_u32 s{sT0}, s{sT0}, {16*1280}")
e("s_branch W2X")
lab("W2OK")
for x in trs2: e(x)
lab("W2X")
HD = SPARE + 12
for q in (0, 1, 4, 5): e(f"v_mov_b32 v{HD+q}, 0")
e(f"s_add_u32 s96, s{sYg}, {oFG-oYG}"); e(f"s_add_u32 s97, s{sYl}, {oFL-oYL}")
lab("STB")
stamp(4, "d")
e(f"s_mul_i32 s{sT0}, s{sWV}, 48"); e(f"v_min_u32 v6, 47, v{vL}"); e(f"v_add_u32 v6, s{sT0}, v6"); e("v_lshlrev_b32 v4, 4, v6"); e(f"v_add_u32 v{SPARE+20}, {CSO}, v4"); e("v_lshlrev_b32 v4, 2, v6")
e(f"v_cmp_le_u32 vcc, 48, v{vL}"); e("v_mov_b32 v24, 768"); e("v_cndmask_b32 v4, v4, v24, vcc"); e("v_add_u32 v5, 3584, v4")
e("v_lshrrev_b32 v24, 4, v6"); e("v_lshlrev_b32 v24, 5, v24"); e("v_bfe_u32 v25, v6, 1, 1"); e("v_lshl_add_u32 v24, v25, 4, v24"); e("v_bfe_u32 v25, v6, 2, 2"); e("v_lshl_add_u32 v24, v25, 2, v24")
e("v_and_b32 v25, 1, v6"); e("v_lshl_add_u32 v24, v25, 1, v24"); e(f"v_add_u32 v24, {QB}, v24"); e(f"v_mov_b32 v25, {QB+384}"); e("v_cndmask_b32 v6, v24, v25, vcc")
e(f"v_mov_b32 v{SPARE+21}, 0x3727c5ac"); e(f"v_mov_b32 v{SPARE+22}, 0x3acccccd"); e(f"s_add_u32 s{sT2}, s{sLG}, {oGX}")
e("v_accvgpr_read_b32 v2, a250"); e("v_accvgpr_read_b32 v3, a251"); e(f"s_add_u32 s{sTL}, s{sLay}, s{sWV}")
def sum4(b): e(f"v_add_f32 v{b}, v{b}, v{b+1}"); e(f"v_add_f32 v{b+2}, v{b+2}, v{b+3}"); e(f"v_add_f32 v{b}, v{b}, v{b+2}")
gl = [f"buffer_load_dword v{T+4*k+q}, v{4+k}, {sr(sW)}, s{sT2} offen offset:{896*q} sc1" for q in range(4) for k in range(2)]
def gsum():
    e(f"v_add_f32 v{T}, v{T}, v{T+1}"); e(f"v_add_f32 v{T+4}, v{T+4}, v{T+5}"); e(f"v_add_f32 v{T+2}, v{T+2}, v{T+3}"); e(f"v_add_f32 v{T+6}, v{T+6}, v{T+7}")
    e(f"v_add_f32 v{T+4}, v{T+4}, v{T+6}"); e(f"v_add_f32 v{T}, v{T}, v{T+2}")
e(f"s_mov_b32 s{sCnt}, 1"); e(f"s_cmp_eq_u32 s{sLay}, 0"); e("s_cbranch_scc1 GPF")
lab("GPO")
stamp(5, "d")
e(f"s_cmp_eq_u32 s{sWV}, 1"); e("s_cbranch_scc1 WOWN")
lab("GP1")
for l in gl: e(l)
e("s_waitcnt vmcnt(0)"); gsum(); e(f"v_cmp_u_f32 vcc, v{T}, v{T+4}"); e("s_cbranch_vccnz GA1")
lab("GPX")
def t_():
    lab("GA1"); e(f"s_add_u32 s{sCnt}, s{sCnt}, 1"); e(f"s_cmp_lt_u32 s{sCnt}, {LIMIT}"); e("s_cbranch_scc1 GP1"); e("s_branch GPX")
    cl = [f"buffer_load_dwordx4 {vr(T+8)}, v{SPARE+20}, {sr(sW)}, s{sT2} offen sc1", f"buffer_load_dwordx4 {vr(T+12)}, v{SPARE+20}, {sr(sW)}, s{sT2} offen offset:3072 sc1"]
    lab("GPF")
    e(f"s_cmp_lg_u32 s{sWV}, 0"); e("s_cbranch_scc1 GP0")
    for l in cl: e(l)
    e("s_waitcnt vmcnt(2)")
    for x in trs2: e(x)
    e("s_branch GPW")
    lab("GP0")
    for l in cl: e(l)
    lab("GPW")
    e(f"s_add_u32 s{sCnt}, s{sCnt}, 1"); e(f"s_cmp_ge_u32 s{sCnt}, {LIMIT}"); e("s_waitcnt vmcnt(0)")
    e(f"v_add_f32 v2, v{T+8}, v{T+9}"); e(f"v_add_f32 v3, v{T+12}, v{T+13}"); e(f"v_add_f32 v{T+10}, v{T+10}, v{T+11}"); e(f"v_add_f32 v{T+14}, v{T+14}, v{T+15}")
    e(f"v_add_f32 v2, v2, v{T+10}"); e(f"v_add_f32 v3, v3, v{T+14}"); e("v_cmp_u_f32 vcc, v2, v3"); e("s_cbranch_scc1 GPO")
    e("s_cbranch_vccnz GP0"); e("s_branch GPO")
near.append(t_)
stamp(10)
EPS, INV = SPARE + 21, SPARE + 22
e(f"v_readlane_b32 s{sT0}, v{T+4}, 48"); e(f"v_readlane_b32 s{sT1}, v{T}, 48"); e(f"s_cmp_lg_u32 s{sTL}, 1"); e("s_cbranch_scc0 OWL"); lab("OWB")
def t_():
    lab("OWL"); e(f"buffer_load_dword v34, v37, {sr(sW)}, 0 offen sc1"); e(f"buffer_load_dword v35, v38, {sr(sW)}, 0 offen sc1"); e("s_branch OWB")
near.append(t_)
e(f"v_mul_f32 v{T+1}, s{sT0}, v{INV}"); e(f"v_fma_f32 v{T+2}, s{sT1}, v{INV}, v{EPS}")
e(f"v_fma_f32 v{T+2}, -v{T+1}, v{T+1}, v{T+2}"); e(f"v_add_f32 v{T+1}, 1.0, v{T+1}"); e(f"v_max_f32 v{T+2}, v{T+2}, v{EPS}")
e(f"v_fma_f32 v{T}, -v{T+1}, v2, v{T}"); e(f"v_rsq_f32 v{T+3}, v{T+2}"); e(f"v_mul_f32 v{T+5}, 0xbfb8aa3b, v{T}"); e(f"v_mul_f32 v{T+5}, v{T+5}, v{T+3}"); e(f"v_exp_f32 v{T+5}, v{T+5}")
e(f"v_fma_f32 v{T+4}, -v{T+1}, v3, v{T+4}"); e(f"v_fma_f32 v{T+5}, v{T+5}, v{T+2}, v{T+2}"); e(f"v_rcp_f32 v{T+5}, v{T+5}"); e(f"v_mul_f32 v{T+4}, v{T+4}, v{T}")
e(f"v_mul_f32 v{T+4}, v{T+4}, v{T+5}"); e(f"v_cvt_pk_bf16_f32 v{T+4}, v{T+4}, v{T+4}"); e(f"ds_write_b16 v6, v{T+4}")
e("v_accvgpr_write_b32 a250, v2"); e("v_accvgpr_write_b32 a251, v3"); e(f"s_cmp_lg_u32 s{sWV}, 0")
e("s_waitcnt lgkmcnt(0)"); e("s_barrier")
e("s_cbranch_scc1 STBX")
for ks in range(3): e(f"ds_read_b128 {vr(SPARE+4*ks)}, v{vQBr} offset:{128*ks}")
for ks in range(3):
    e(f"s_waitcnt lgkmcnt({2-ks})")
    for t in range(2): e(f"v_smfmac_f32_16x16x64_bf16 {vr(HD+4*t)}, {vr(SPARE+4*ks)}, {vr(F+24*t+8*ks, 8)}, v{vIdx}")
e(f"v_add_f32 v28, v{HD}, v{HD+1}"); e(f"v_add_f32_dpp v28, v{HD+4}, v{HD+5} quad_perm:[0,1,2,3] row_mask:0xa bank_mask:0xf")
pack8q(28)
e("s_mov_b64 exec, s[48:49]")
e(f"buffer_store_dwordx4 v[28:31], v18, {sr(sW)}, s96 offen sc1")
setexec(0x01010101)
lstore(f"buffer_store_dwordx4 v[28:31], v18, {sr(sW)}, s97 offen")
setexec(FULL)
stamp(11)
e("s_branch NEXT")
flush_near()
lab("WNOT0")
if JIT: jitter(JIT, 40)
e(f"s_cmp_lg_u32 s{sLay}, 0"); e("s_cbranch_scc1 STB"); e(f"s_cmp_eq_u32 s{sWV}, 1"); e("s_cbranch_scc1 WPREP"); e(f"s_cmp_eq_u32 s{sWV}, 3"); e("s_cbranch_scc1 WLC")
for q in range(4): e(f"v_mov_b32 v{F+12+q}, -1")
e(f"s_add_u32 s{sT0}, s{sYg}, {LS}"); e(f"s_add_u32 s{sT3}, s{sT0}, {oFG-oYG}")
if int(OPT.get("gcd", 8)): e(f"s_sleep {OPT.get('gcd', 8)}")
e("s_mov_b64 exec, s[44:45]"); e(f"buffer_store_dwordx4 {vr(F+12)}, v18, {sr(sW)}, s{sT0} offen sc1")
setexec(0x01010101); e(f"buffer_store_dwordx4 {vr(F+12)}, v18, {sr(sW)}, s{sT3} offen sc1")
setexec(FULL)
e("s_branch WPREP")
lab("WLC")
LCW = int(OPT.get("lcw", 1))
if LCW:
    lo_ = oO if LCW == 1 else 0; ng = (oGX + CSO - lo_) // 16; per = -(-ng // 20); ni = -(-per // 64)
    e(f"s_mul_i32 s{sT0}, s{sJ}, {per*16}"); e(f"s_add_u32 s{sT1}, s{sLG}, {LS+lo_}")
    for q in range(ni): e(f"v_add_u32 v{100+q}, s{sT0}, v{vLin}"); e(f"v_min_u32 v{100+q}, {ng*16-16}, v{100+q}"); e(f"s_add_u32 s{sT0}, s{sT0}, 1024")
    for q in range(4): e(f"v_mov_b32 v{104+q}, -1")
    loop_prep()
    if JIT: jitter(JIT, 60)
    for q in range(ni): lstore(f"buffer_store_dwordx4 v[104:107], v{100+q}, {sr(sW)}, s{sT1} offen")
    e("s_branch STB")
lab("WPREP")
e("s_nop 1"); loop_prep()
e("s_branch STB")
lab("WOWN")
e(f"v_and_b32 v25, 15, v{vL}"); e(f"v_lshrrev_b32 v26, 4, v{vL}")
rowbase(37, 26, oYG, oYL, None, 38); e("v_add_u32 v39, 4, v26"); rowbase(38, 39, oYG, oYL, None, 28)
e(f"s_lshl_b32 s{sT0}, s{sJ}, 6"); e(f"s_add_u32 s{sT0}, s{sT0}, s{sLay}"); e(f"v_lshl_add_u32 v25, v25, 2, s{sT0}")
e("v_add_u32 v37, v25, v37"); e("v_add_u32 v38, v25, v38")
e(f"s_cmp_eq_u32 s{sLay}, 0"); e("s_cbranch_scc1 GP1")
if not int(OPT.get("oall", 1)): e(f"s_cmp_lg_u32 s{sG}, 0"); e("s_cbranch_scc1 GP1")
e(f"s_sleep {max(ODLY-3, 1)}")
poll(own_loads(37, 38, "0"), [28, 29], 30, slp=int(OPT.get("osp", 2)))
owner_add()
e("s_branch GP1")
lab("STBX")
e(f"s_cmp_lg_u32 s{sWV}, 1"); e("s_cbranch_scc1 NEXT"); e(f"s_cmp_lg_u32 s{sLay}, 0"); e("s_cbranch_scc1 FINAL")
e("s_waitcnt vmcnt(0)"); e("v_mov_b32 v28, v34"); e("v_mov_b32 v29, v35")
late_check("none", own_loads(37, 38, "0"), [28, 29], 30)
owner_add()
base_store(oBB)
stamp(6, "d")
e("s_branch NEXT")
lab("FINAL")
e(f"s_cmp_lg_u32 s{sG}, 0"); e("s_cbranch_scc1 DONE")
e(f"s_lshl_b32 s{sT0}, s{sJ}, 6"); e(f"v_lshlrev_b32 v37, 2, v{vL}")
e(f"s_add_u32 s{sT2}, s{sT0}, s{sLG}"); e(f"s_add_u32 s{sT2}, s{sT2}, {oFL}")
if int(OPT.get("otouch", 0)): setexec(0xffff); e(f"buffer_load_dword v29, v37, {sr(sO)}, s{sT0} offen")
gate(sT2, 4, 28); setexec(FULL)
poll(own_loads(vC1, vC2, f"s{sLay}"), [28, 29], 30)
owner_add()
setexec(0xffff)
e(f"buffer_store_dword v28, v37, {sr(sO)}, s{sT0} offen {OPT.get('ost', '').replace('+', ' ')}")
setexec(FULL)
stamp(12); stamp(12, "c")
e("s_branch DONE") if SPIN else e("s_endpgm")
flush_near()
lab("ROLEF")
e(f"v_and_b32 v25, 15, v{vL}"); e(f"v_lshrrev_b32 v26, 4, v{vL}"); e(f"v_bfe_u32 v27, v{vL}, 2, 2"); e(f"v_and_b32 v36, 3, v{vL}")
FA = SPARE
e(f"s_cmp_lg_u32 s{sLay}, 0"); e("s_cbranch_scc1 FW")
WG_ = int(OPT.get("fg", -1))
if WG_ >= 0:
    e(f"v_lshlrev_b32 v37, 3, v{vL}"); e(f"s_add_u32 s{sT0}, s{sLG}, {oML}"); e(f"s_mov_b32 s{sCnt}, 0"); e("s_mov_b32 exec_lo, -1"); e("s_mov_b32 exec_hi, 0")
    lab("W2G"); e(f"buffer_load_dword v38, v37, {sr(sW)}, s{sT0} offen sc1"); e(f"s_add_u32 s{sCnt}, s{sCnt}, 1"); e("s_waitcnt vmcnt(0)")
    e("v_cmp_eq_u32 vcc, -1, v38"); e(f"s_bcnt1_i32_b64 s{sT1}, vcc"); e(f"s_cmp_ge_u32 s{sCnt}, 64"); e("s_cbranch_scc1 W2GX"); e(f"s_cmp_gt_u32 s{sT1}, {WG_}"); e("s_cbranch_scc1 W2G")
    lab("W2GX"); setexec(FULL)
if FT[4]: fdma_addr(); fdma(sum(FT[:4]), FT[4])
e(f"s_sub_u32 s96, s{sJ}, 20"); e("s_lshl_b32 s96, s96, 2"); e(f"s_add_u32 s96, s96, s{sWV}")
if int(OPT.get("w2pf", 0)):
    e(f"s_mul_i32 s97, s{sG}, 48"); e("s_add_u32 s97, s97, s96"); e("s_mul_i32 s97, s97, 5120")
    for n in range(5):
        if n == 4: e("s_add_u32 s97, s97, 4096")
        e(f"buffer_load_dwordx4 a[240:243], v{vLin}, {sr(sRC)}, s97 offen offset:{1024*(n%4)}")
assert LCW == 1 and 128 * 4 * 128 >= oGX + CSO
if LCW:
    e(f"s_mul_i32 s96, s96, {43*16}"); e(f"v_add_u32 v21, s96, v{vLin}"); e(f"v_min_u32 v21, {32768-16}, v21"); e(f"s_add_u32 s97, s{sLG}, {LS+oQ}")
else:
    e(f"s_mul_i32 s96, s96, {74*16}"); e(f"s_add_u32 s97, s{sLG}, {LS}"); e("s_add_u32 s97, s97, s96")
    e(f"buffer_load_dwordx4 a[240:243], v{vLin}, {sr(sW)}, s97 offen sc1"); setexec(0x3ff); e(f"buffer_load_dwordx4 a[240:243], v{vLin}, {sr(sW)}, s97 offen offset:1024 sc1"); setexec(FULL)
cs_store()
lab("FW")
e(f"s_lshl_b32 s{sT0}, s{sWV}, 5"); e(f"v_lshl_add_u32 v80, v36, 3, s{sT0}"); e("v_lshrrev_b32 v37, 1, v27"); e("v_and_b32 v38, 1, v26"); e("v_lshl_add_u32 v37, v38, 1, v37"); e("v_lshlrev_b32 v37, 5, v37")
e("v_xor_b32 v80, v80, v37"); e("v_lshl_add_u32 v37, v26, 3, v27"); e("v_lshl_add_u32 v80, v37, 7, v80"); e(f"v_add_u32 v80, {W1}, v80")
e(f"s_sub_u32 s{sT2}, s{sJ}, 20"); e(f"s_and_b32 s{sT3}, s{sT2}, 12"); e(f"s_add_u32 s{sT3}, s{sT3}, s{sWV}"); e(f"s_lshl_b32 s{sT1}, s{sT3}, 8")
e(f"v_lshl_add_u32 v83, v25, 4, s{sT1}"); e("v_lshrrev_b32 v84, 2, v83"); e("v_mov_b32 v37, 768"); e("v_cmp_le_u32 vcc, 2, v26"); e("v_cndmask_b32 v84, v84, v37, vcc")
e("v_and_b32 v37, 1, v26"); e("v_mul_u32_u24 v37, 3584, v37"); e("v_add_u32 v84, v84, v37")
e(f"s_cmp_eq_u32 s{sT3}, 0"); e("s_mov_b32 s52, -1"); e("s_cselect_b32 s53, 0x10001, 0")
e(f"s_and_b32 s{sT2}, s{sT2}, 3"); e(f"s_mul_i32 s{sT1}, s{sT2}, 892"); e(f"s_sub_u32 s{sT1}, {CSO}, s{sT1}"); e(f"v_add_u32 v83, s{sT1}, v83")
e(f"s_mul_i32 s{sT1}, s{sT2}, 896"); e(f"s_add_u32 s{sT1}, s{sT1}, s{sLG}"); e(f"s_add_u32 s{sT1}, s{sT1}, {oGX}"); e(f"s_mul_i32 s{sT2}, s{sT2}, 320")
e("v_cmp_eq_u32 vcc, 12, v25")
e("v_mov_b32 v38, 0x3f803f80"); e(f"v_cndmask_b32 v{FA}, 0, v38, vcc")
for q in range(1, 20): e(f"v_mov_b32 v{FA+q}, v{FA}")
FG = [86, 18, 20]
if "f" in SHB:
    e(f"v_mul_u32_u24 v6, 336, v25"); e("v_lshl_add_u32 v6, v26, 4, v6")
    e(f"s_mul_i32 s{sT0}, s{sWV}, 45"); e(f"v_min_u32 v27, 44, v{vL}"); e(f"v_add_u32 v27, s{sT0}, v27"); e("v_mul_u32_u24 v37, 205, v27"); e("v_lshrrev_b32 v37, 12, v37")
    e("v_add_u32 v87, v37, v27"); e("v_lshlrev_b32 v87, 4, v87"); e("v_mul_u32_u24 v38, 20, v37"); e("v_sub_u32 v27, v27, v38"); e("v_lshlrev_b32 v27, 4, v27")
    assert all((c * 205) >> 12 == c // 20 for c in range(180))
    rowbase(86, 37, oYG, oYL, oBA, 38); e("v_add_u32 v86, v86, v27")
else:
    e(f"s_mul_i32 s{sT0}, s{sWV}, {SCRW}")
    e(f"v_mul_u32_u24 v6, 336, v25"); e("v_lshl_add_u32 v6, v26, 4, v6"); e(f"v_add_u32 v6, s{sT0}, v6")
    e(f"v_mul_u32_u24 v37, 52, v{vL}"); e("v_lshrrev_b32 v37, 10, v37")
    e(f"v_lshl_add_u32 v87, v37, 4, v{vLin}"); e(f"v_add_u32 v87, s{sT0}, v87")
    e(f"v_mul_u32_u24 v27, 320, v37"); e(f"v_sub_u32 v27, v{vLin}, v27")
    for i in range(3):
        rowbase(FG[i], 37, oYG, oYL, oBA, 38); e(f"v_add_u32 v{FG[i]}, v{FG[i]}, v27")
        if i < 2: e("v_add_u32 v37, 3, v37")
e(f"s_add_u32 s{sT0}, s{sT2}, s{sLay}"); e(f"s_add_u32 s{sT2}, s{sT2}, s{sLG}"); e(f"s_add_u32 s{sT2}, s{sT2}, {oYL}")
e(f"s_cmp_lg_u32 s{sLay}, 0"); e("s_cbranch_scc1 FW1")
for q in range(4): e(f"v_mov_b32 v{T+q}, -1")
e("s_waitcnt vmcnt(0)")
if JIT: jitter(JIT, 40)
if LCW: lstore(f"buffer_store_dwordx4 {vr(T)}, v21, {sr(sW)}, s97 offen")
else: lstore(f"buffer_store_dwordx4 {vr(T)}, v{vLin}, {sr(sW)}, s97 offen"); setexec(0x3ff); lstore(f"buffer_store_dwordx4 {vr(T)}, v{vLin}, {sr(sW)}, s97 offen offset:1024"); setexec(FULL)
e("s_barrier"); stamp(13)
lab("FW1")
for t in range(2):
    for kk in range(5):
        for h in range(2): e(f"ds_read_b64_tr_b16 {vr(F+20*t+4*kk+2*h,2)}, v80 offset:{(32*kk+4*h)*128+20480*t}")
CD = [108, 2]
e(f"s_cmp_lg_u32 s{sLay}, 0"); e("s_cbranch_scc1 FW3")
e("s_waitcnt lgkmcnt(0)")
for kk in range(5):
    for t in range(2): e(f"v_mfma_f32_16x16x32_bf16 {vr(CD[t])}, {vr(FA+4*kk)}, {vr(F+20*t+4*kk)}, " + ("0" if kk == 0 else vr(CD[t])))
lab("FW3")
def cs_pub():
    e(f"s_cmp_eq_u32 s{sLay}, 0"); e("s_cbranch_scc1 CSP"); e("s_waitcnt vmcnt(0)"); lab("CSB")
    def t():
        lab("CSP"); setexec(0xFFFF << 48)
        lstore(f"buffer_store_dword v{CD[0]}, v83, {sr(sW)}, s{sT1} offen"); lstore(f"buffer_store_dword v{CD[1]}, v83, {sr(sW)}, s{sT1} offen offset:3072")
        setexec((1 << (45 if "f" in SHB else 60)) - 1); e("s_branch CSB")
    near.append(t)
gate(sT2, 20, 36)
setexec((1 << (45 if "f" in SHB else 60)) - 1)
if "f" in SHB: sbounce(f"buffer_load_dwordx4 {vr(T)}, v86, {sr(sW)}, s{sT0} offen sc1", T, f"ds_write_b128 v87, {vr(T)}", [f"ds_read_b128 {vr(FA+4*kk)}, v6 offset:{64*kk}" for kk in range(5)], first=cs_pub, w1=2)
else: bounce([([f"buffer_load_dwordx4 {vr(T+4*i)}, v{FG[i]}, {sr(sW)}, s{sT0} offen sc1"], [T + 4 * i]) for i in range(3)], 36,
       [f"ds_write_b128 v87, {vr(T+4*i)} offset:{3*336*i}" for i in range(3)], [f"ds_read_b128 {vr(FA+4*kk)}, v6 offset:{64*kk}" for kk in range(5)], first=cs_pub, w1=2)
stamp(8)
G_, R2, R3 = T + 12, T + 13, T + 14
for kk in range(5):
    e(f"s_waitcnt lgkmcnt({4-kk})")
    e(f"v_mfma_f32_16x16x32_bf16 {vr(T+8)}, {vr(FA+4*kk)}, {vr(FA+4*kk)}, " + ("0" if kk == 0 else vr(T + 8)))
dp = lambda dst, sft, rm: f"v_add_f32_dpp v{dst}, v{G_}, v{G_} row_ror:{sft} row_mask:{rm:#x} bank_mask:0xf"
sh = [[f"v_mov_b32 v{G_}, 0", f"v_mov_b32 v{R2}, 0"], [f"v_mov_b32 v{R3}, 0", "s_nop 0"], [],
      [f"v_add_f32 v{T+8}, v{T+8}, v{T+9}", f"v_add_f32 v{T+10}, v{T+10}, v{T+11}"], [],
      [f"v_add_f32_dpp v{G_}, v{T+8}, v{T+10} quad_perm:[0,1,2,3] row_mask:0xf bank_mask:0x7"], ["s_nop 0", dp(G_, 8, 15)], ["s_nop 0", dp(G_, 4, 15)],
      ["s_nop 0", dp(G_, 2, 15)], []]
for t in range(2):
    for kk in range(5):
        e(f"v_mfma_f32_16x16x32_bf16 {vr(T+4*t)}, {vr(FA+4*kk)}, {vr(F+20*t+4*kk)}, " + ("0" if kk == 0 else vr(T + 4 * t)))
        for x in sh.pop(0): e(x)
e(f"v_add_f32 v{T+1}, v{T}, v{T+1}"); e(dp(R2, 1, 7)); e(dp(R3, 1, 8)); e(f"v_add_f32 v{T+2}, v{T+2}, v{T+3}"); e(f"v_add_f32 v{T+1}, v{T+1}, v{T+2}")
e(f"v_permlane32_swap_b32 v{T+1}, v{R2}")
e(f"v_add_f32 v{T+5}, v{T+4}, v{T+5}"); e(f"v_add_f32 v{T+6}, v{T+6}, v{T+7}"); e(f"v_add_f32 v{T+5}, v{T+5}, v{T+6}"); e(f"v_add_f32 v{T+1}, v{T+1}, v{R2}")
e(f"v_permlane32_swap_b32 v{T+5}, v{R3}"); e(f"v_add_f32 v{T+5}, v{T+5}, v{R3}")
e(f"v_permlane16_swap_b32 v{T+1}, v{T+5}"); e("s_mov_b64 exec, s[52:53]"); e(f"v_add_f32 v{T+1}, v{T+1}, v{T+5}")
lstore(f"buffer_store_dword v{T+1}, v84, {sr(sW)}, s{sT1} offen"); setexec(FULL)
stamp(9)
lab("NEXT")
e(f"s_cmp_lg_u32 s{sLay}, 0"); e("s_cbranch_scc1 DONE")
e(f"s_mov_b32 s{sLay}, {LS}"); e(f"s_add_u32 s{sLG}, s{sLG}, {LS}"); e(f"s_add_u32 s{sYg}, s{sYg}, {LS}"); e(f"s_add_u32 s{sYl}, s{sYl}, {LS}")
e("s_mov_b64 s[46:47], s[44:45]"); e("s_mov_b64 s[48:49], s[92:93]")
e("s_branch LOOP")
flush_near()
lab("DONE")
if SPIN:
    e("v_accvgpr_read_b32 v38, a253"); e("s_nop 1"); e("v_readfirstlane_b32 s96, v38")
    if SPM == "min":
        e("v_not_b32 v38, v38"); e("v_mov_b32 v39, 192"); e("s_mov_b64 exec, 1"); e("global_atomic_umax v39, v38, s[64:65] sc1"); e("s_waitcnt vmcnt(0)")
        lab("SPW"); e("s_sleep 20"); e("s_memrealtime s[98:99]"); e("s_waitcnt lgkmcnt(0)"); e("s_sub_u32 s98, s98, s96"); e(f"s_cmp_lt_u32 s98, {SPIN*100-1500}"); e("s_cbranch_scc1 SPW")
        e("global_load_dword v38, v39, s[64:65] sc1"); e("s_waitcnt vmcnt(0)"); e("v_not_b32 v38, v38"); e("s_nop 1"); e("v_readfirstlane_b32 s96, v38")
    e(f"s_add_u32 s55, s55, {SPIN*100}") if DA >= 0 else e(f"s_mov_b32 s55, {SPIN*100}")
    lab("SPINL"); e("s_memrealtime s[98:99]"); e("s_waitcnt lgkmcnt(0)"); e("s_sub_u32 s98, s98, s96"); e(f"s_cmp_lt_u32 s98, s55"); e("s_cbranch_scc1 SPINL")
e("s_endpgm")
i = 0
while i < len(tail): tail[i](); flush_near(); i += 1
lab("CODE_END")
e("s_endpgm")

body = A.pad()
hdr = [f"; @launch grid=(256,1,1) block=(256,1,1) lds={LDSSZ}", '.amdgcn_target "amdgcn-amd-amdhsa--gfx950"', ".text",
       f".globl {NAME}_kernel", ".p2align 8", f".type {NAME}_kernel,@function", f"{NAME}_kernel:"]
ftr = ['.section .rodata,"a"', ".p2align 6", f".amdhsa_kernel {NAME}_kernel", "  .amdhsa_next_free_vgpr 512", "  .amdhsa_next_free_sgpr 102",
       "  .amdhsa_accum_offset 256", "  .amdhsa_group_segment_fixed_size 0", "  .amdhsa_kernarg_size 96", "  .amdhsa_user_sgpr_count 2",
       "  .amdhsa_user_sgpr_kernarg_segment_ptr 1", "  .amdhsa_system_sgpr_workgroup_id_x 1", ".end_amdhsa_kernel"]
src = "\n".join(hdr + body + ftr) + "\n"
import re
for m in re.finditer(r"buffer_\S+ .*offset:(\d+)", src): assert int(m.group(1)) < 4096, m.group(0)
for m in re.finditer(r"ds_\S+ .*offset:(\d+)", src): assert int(m.group(1)) < 65536, m.group(0)
open(OUT, "w").write(src)
```

```python
import os, sys
sys.path.insert(0, os.path.dirname(os.path.abspath(__file__)))
from asmlib import Asm
NAME = "interleave_layers__sliding_block_cached__glu_gated_swiglu__decode"
OPT = dict(a.split("=") for a in sys.argv[2:])
OUT = sys.argv[1] if len(sys.argv) > 1 else f"/code/{NAME}.s"
STAMP = int(OPT.get("stamp", 0))
NT = OPT.get("nt", "nt").replace("x", "")
NTW = OPT.get("ntw", "nt").replace("x", "")
SKIP = OPT.get("skip", "").split(",")
RY0 = int(OPT.get("ry0", 0))
GX2 = int(OPT.get("gx2", 1))
FORCESLOW = int(OPT.get("slow", 0))
SPIN = int(OPT.get("spin", 0))
A = Asm(); e = A.e; lab = A.lab
tail = []

RS = 416; SCRW = 16 * RS
SCR = 0; WQ = 4 * SCRW; ROLE = WQ + 30720
WO = ROLE; W1 = ROLE; W3 = ROLE + 20480; W2 = ROLE + 49152
MISC = ROLE + 61440; QB = MISC; ACC = MISC + 512
OACC = 0; YACC = 3072; FACC = 4096
PT = ACC + 5120; ML4 = PT + 1024
FLG = ML4 + 64
LDSSZ = FLG + 64
FDMA = OPT.get("fdma", "late")
OMASK = int(OPT.get("omask", 1))
WDMA = OPT.get("wdma", "mid")
PF = OPT.get("pf", "ow")
NTP = OPT.get("ntp", "x").replace("x", "")
NTR = OPT.get("ntr", "x").replace("x", "")
GB = 81920; oQ = 0; oO = 32768; oML = 45056; oYL = 45312; oFL = 46592; oBA = 47872; oBB = 49152; oGX = 50432
CSO = 7168
GOFF = 8 * GB; oYG = GOFF; oFG = GOFF + 81920; LS = 0xC8000
OOB = 0x7FFFFFF0
sK, sV, sW, sWQ, sRA, sRB, sRC, sX, sO = 8, 12, 16, 20, 24, 28, 32, 36, 40
sG, sJ, sHH, sS, sWV, sKV, sLay, sFast, sCnt = 68, 69, 70, 71, 72, 73, 74, 75, 76
sT0, sT1, sT2 = 77, 78, 79
sLG = 3
sClr = 4
sXcc = 5
sTL = 6
sT3 = 7
sYg, sYl = 80, 81
sMf = 44
def sr(b): return f"s[{b}:{b+3}]"
def sp(b): return f"s[{b}:{b+1}]"
def vr(b, n=4): return f"v[{b}:{b+n-1}]" if n > 1 else f"v{b}"
def ar(b, n=4): return f"a[{b}:{b+n-1}]"
def srd(d, lo, nbytes):
    e(f"s_mov_b32 s{d}, s{lo}"); e(f"s_and_b32 s{d+1}, s{lo+1}, 0xffff")
    e(f"s_mov_b32 s{d+2}, {nbytes}"); e(f"s_mov_b32 s{d+3}, 0x20000")
MASKS = {}
def setexec(mask):
    if mask in MASKS: e(f"s_mov_b64 exec, {sp(MASKS[mask])}"); return
    lo, hi = mask & 0xffffffff, mask >> 32
    if mask == (1 << 64) - 1: e("s_mov_b64 exec, -1")
    elif hi == 0 and lo <= 64: e(f"s_mov_b64 exec, {lo}")
    else: e(f"s_mov_b32 exec_lo, {lo:#x}"); e(f"s_mov_b32 exec_hi, {hi:#x}")
FULL = (1 << 64) - 1
ROWS9 = 0x01FF01FF01FF01FF
vL, vLin, vWr, vKrd, vVrd, vCS, vAq, vAq16, vQst, vQld, vQBw, vQBr, vIdx, vAcc, vTq1, vTq2, vSC, vPw = 0, 1, 2, 5, 6, 7, 8, 9, 10, 11, 12, 13, 14, 15, 16, 17, 18, 19
vC1, vC2, vXR = 20, 21, 22
T = 24
F = 40
SPARE = 88
def vblock(b):
    if b < 2: return ("a", 192 + 24 * b)
    if b == 8: return ("v", SPARE)
    return ("v", 112 + 24 * (b - 2))
def rg(f, b, n): return f"{f}[{b}:{b+n-1}]"

uid = [0]
def nid(): uid[0] += 1; return uid[0]
stamps = [0]
SPINAT = int(OPT.get("spinat", -1))
DA, DB, DC = int(OPT.get("da", -1)), int(OPT.get("db", -1)), int(OPT.get("dc", 0))
JIT = int(OPT.get("jit", 0))
def jitter(mask, prob):
    k = nid()
    e("s_cselect_b32 s98, 1, 0")
    e("s_memtime s[100:101]"); e("s_waitcnt lgkmcnt(0)"); e("s_mul_i32 s100, s100, 0x9e3779b1"); e("s_lshr_b32 s99, s100, 24"); e(f"s_cmp_ge_u32 s99, {prob}"); e(f"s_cbranch_scc1 JX{k}")
    e("s_lshr_b32 s99, s100, 12"); e(f"s_and_b32 s99, s99, {mask}")
    lab(f"JL{k}"); e("s_sleep 4"); e("s_sub_u32 s99, s99, 1"); e("s_cmp_ge_i32 s99, 0"); e(f"s_cbranch_scc1 JL{k}")
    lab(f"JX{k}"); e("s_cmp_eq_u32 s98, 1")
def stamp(i, val=None):
    if JIT and val is None: jitter(JIT, 24); return
    if DA >= 0 and val is None and i in (DA % 16, DB % 16):
        for which, idx in (("a", DA), ("b", DB)):
            if idx % 16 != i: continue
            k = nid()
            e("s_cselect_b32 s98, 1, 0"); e(f"s_cmp_lg_u32 s{sLay}, {LS*(idx//16)}"); e(f"s_cbranch_scc1 ND{k}")
            e("s_memrealtime s[100:101]"); e("s_waitcnt lgkmcnt(0)")
            if which == "a": e("s_mov_b32 s54, s100")
            else:
                e("s_sub_u32 s100, s100, s54")
                if DC: e(f"s_sub_u32 s100, {DC}, s100"); e("s_max_i32 s100, s100, 0")
                e("s_min_u32 s100, s100, 1000"); e("s_mul_i32 s55, s100, 10")
            lab(f"ND{k}"); e("s_cmp_eq_u32 s98, 1")
    if SPIN and val is None and SPINAT % 16 == i:
        k = nid()
        e(f"s_cmp_lg_u32 s{sLay}, {LS*(SPINAT//16)}"); e(f"s_cbranch_scc1 NOSP{k}")
        e("s_memrealtime s[100:101]"); e("s_waitcnt lgkmcnt(0)"); e("v_accvgpr_write_b32 a253, s100"); lab(f"NOSP{k}")
    if not STAMP: return
    if STAMP == 3 and (val is not None or i != 7): return
    if val == "d":
        if STAMP != 6: return
        val = None
    elif STAMP == 6 and (val is not None or i not in (9, 10, 11)): return
    if STAMP == 5 and (val is not None or i not in (9, 11, 12, 13)): return
    if STAMP == 4 and val != "c": return
    if val == "c":
        if STAMP != 4: return
        val = None
    if STAMP == 2 and val is None and i not in (0, 14): return
    if STAMP == 1 and (val is not None or i == 14): return
    e("s_memrealtime s[100:101]"); e("v_accvgpr_write_b32 a254, v38"); e("v_accvgpr_write_b32 a255, v39")
    e(f"s_lshl_b32 s98, s2, 2"); e(f"s_add_u32 s98, s98, s{sWV}"); e("s_lshl_b32 s98, s98, 7")
    e(f"s_cmp_eq_u32 s{sLay}, 0"); e(f"s_cselect_b32 s99, 0, 64"); e(f"s_add_u32 s99, s99, {4*i}"); e("s_add_u32 s98, s98, s99"); e("s_add_u32 s98, s98, 0x40000000")
    e("s_waitcnt lgkmcnt(0)"); e(f"v_mov_b32 v38, {val or 's100'}"); e("v_mov_b32 v39, 0")
    e("s_mov_b64 s[100:101], exec"); e("s_mov_b64 exec, 1")
    A.vmem(f"buffer_store_dword v38, v39, {sr(sW)}, s98 offen", "stamp")
    e("s_mov_b64 exec, s[100:101]"); e("s_nop 1"); e("v_accvgpr_read_b32 v38, a254"); e("v_accvgpr_read_b32 v39, a255")
sWp = sK
def lstore(instr, counted=None):
    assert sr(sW) in instr and not counted
    k = nid()
    e(instr.replace(sr(sW), sr(sWp)))
    e(f"s_cmp_eq_u32 s{sWp+2}, 0"); e(f"s_cbranch_scc1 SLOW{k}")
    lab(f"BACK{k}")
    def t(): lab(f"SLOW{k}"); e(instr + " sc1"); e(f"s_branch BACK{k}")
    tail.append(t)
def check(regs_, tmp):
    r = list(regs_)
    if len(r) == 1: e(f"v_cmp_eq_u32 vcc, -1, v{r[0]}"); return
    cur = r.pop(0)
    while r:
        if len(r) >= 2: e(f"v_max3_u32 v{tmp}, v{cur}, v{r[0]}, v{r[1]}"); r = r[2:]
        else: e(f"v_max_u32 v{tmp}, v{cur}, v{r[0]}"); r = r[1:]
        cur = tmp
    e(f"v_cmp_eq_u32 vcc, -1, v{tmp}")
LIMIT = 0x8000
def poll(loads, regs_, tmp, pid=None, slp=0, first=None):
    k = nid()
    if pid is not None: stamp(pid, "s100")
    e(f"s_mov_b32 s{sCnt}, 1")
    if first:
        for l in loads: e(l)
        first(); e(f"s_branch POLLW{k}")
    lab(f"POLL{k}")
    for l in loads: e(l)
    lab(f"POLLW{k}")
    e("s_waitcnt vmcnt(0)")
    check(regs_, tmp)
    e(f"s_cbranch_vccnz AGAIN{k}")
    lab(f"POLLX{k}")
    def t():
        lab(f"AGAIN{k}")
        if slp: e(f"s_sleep {slp}")
        e(f"s_add_u32 s{sCnt}, s{sCnt}, 1"); e(f"s_cmp_lt_u32 s{sCnt}, {LIMIT}"); e(f"s_cbranch_scc1 POLL{k}"); e(f"s_branch POLLX{k}")
    near.append(t)
    if pid is not None: stamp(pid + 1, "s100"); stamp(pid + 2, f"s{sCnt}")
    A.drained()
SEL = int(OPT.get("sel", 1)); XF = " " + OPT.get("xf", "").replace("+", " "); XF1 = int(OPT.get("xf1", 0))
def poll_sel(groups, tmp, pid=None, first=None, firstloads=None, xf="", wl=None, w1=0):
    allr = [r for g in groups for r in g[1]]
    loads = firstloads or [l for g in groups for l in g[0]]
    if not SEL: return poll(loads, allr, tmp, pid=pid, first=first)
    k = nid()
    if pid is not None: stamp(pid, "s100")
    for l in loads: e(l + (xf if XF1 else ""))
    if first: first()
    if wl: lab(wl)
    if pid is not None and STAMP == 2: e(f"s_mov_b32 s{sCnt}, 1")
    e(f"s_waitcnt vmcnt({w1})")
    check(allr, tmp)
    e(f"s_cbranch_vccnz AGAIN{k}")
    lab(f"POLLX{k}")
    def t():
        lab(f"AGAIN{k}")
        e("s_mov_b64 s[94:95], exec"); e(f"s_mov_b32 s{sCnt}, 1")
        lab(f"AG2{k}")
        if int(OPT.get("osl", 0)): e(f"s_sleep {OPT['osl']}")
        for gi, (ls, rs) in enumerate(groups):
            if len(groups) > 1: check(rs, tmp)
            e("s_mov_b64 exec, vcc")
            if len(groups) > 1: e(f"s_cbranch_execz AG3{k}_{gi}")
            for l in ls: e(l + xf)
            lab(f"AG3{k}_{gi}"); e("s_mov_b64 exec, s[94:95]")
        e(f"s_add_u32 s{sCnt}, s{sCnt}, 1"); e(f"s_cmp_ge_u32 s{sCnt}, {LIMIT}")
        e("s_waitcnt vmcnt(0)")
        check(allr, tmp)
        e(f"s_cbranch_vccz POLLX{k}"); e(f"s_cbranch_scc0 AG2{k}"); e(f"s_branch POLLX{k}")
    near.append(t)
    if pid is not None: stamp(pid + 1, "s100"); stamp(pid + 2, f"s{sCnt}")
    A.drained()
near = []
def flush_near():
    while near: near.pop(0)()
GATE = int(OPT.get("gate", 1)); GDLY = int(OPT.get("gdly", 0)); ODLY = int(OPT.get("odly", 12))
def gate(sreg, nl, tmp, first=None):
    if not GATE: return
    setexec((1 << nl) - 1)
    poll([f"buffer_load_dword v{tmp}, v{vLin}, {sr(sW)}, s{sreg} offen sc1"], [tmp], tmp, slp=int(OPT.get("gsl", 0)),
         first=(lambda: (setexec(FULL), first(), setexec((1 << nl) - 1))) if first else None)
    if GDLY: e(f"s_sleep {GDLY}")
def poll_nan(loads, body, res):
    k = nid()
    e(f"s_mov_b32 s{sCnt}, 1")
    lab(f"POLL{k}")
    for l in loads: e(l)
    e("s_waitcnt vmcnt(0)")
    body()
    e(f"v_cmp_u_f32 vcc, v{res}, v{res}"); e(f"s_cbranch_vccnz AGAIN{k}")
    lab(f"POLLX{k}")
    def t():
        lab(f"AGAIN{k}"); e(f"s_add_u32 s{sCnt}, s{sCnt}, 1"); e(f"s_cmp_lt_u32 s{sCnt}, {LIMIT}"); e(f"s_cbranch_scc1 POLL{k}"); e(f"s_branch POLLX{k}")
    near.append(t)
def late_check(tag, loads, regs_, tmp, pre=None, post=None):
    k = nid()
    A.wait(tag)
    check(regs_, tmp)
    e(f"s_cbranch_vccnz RETRY{k}")
    lab(f"OK{k}")
    def t():
        lab(f"RETRY{k}")
        if pre: pre()
        save = A.vm; poll(loads, regs_, tmp); A.vm = save
        if post: post()
        e(f"s_branch OK{k}")
    tail.append(t)

sTO = 82
sPo, sPw = 90, 91
vLin2 = vXR + 1
e("s_load_dwordx16 s[44:59], s[0:1], 0"); e("s_load_dwordx8 s[60:67], s[0:1], 64")
e("s_cmp_ge_u32 s2, 256"); e("s_cbranch_scc1 CODE_END")
e("s_memrealtime s[96:97]")
e("v_lshrrev_b32 v2, 6, v0"); e("v_and_b32 v24, 63, v0"); e(f"v_readfirstlane_b32 s{sWV}, v2")
e(f"s_and_b32 s{sG}, s2, 7"); e(f"s_lshr_b32 s{sJ}, s2, 3"); e(f"s_lshr_b32 s{sHH}, s{sJ}, 3"); e(f"s_and_b32 s{sS}, s{sJ}, 7")
e(f"v_lshlrev_b32 v{vLin}, 4, v24")
e(f"s_lshl_b32 s{sT0}, s{sHH}, 3"); e(f"s_add_u32 s{sT0}, s{sT0}, s{sG}")
e(f"s_mul_i32 s{sKV}, s{sT0}, 12582912"); e(f"s_lshl_b32 s{sT1}, s{sS}, 2"); e(f"s_add_u32 s{sT1}, s{sT1}, s{sWV}")
e(f"s_mul_i32 s{sT1}, s{sT1}, 6144"); e(f"s_add_u32 s{sKV}, s{sKV}, s{sT1}"); e(f"s_add_u32 s{sKV}, s{sKV}, 11010048")
e(f"v_add_u32 v{vLin2}, 4096, v{vLin}"); e(f"s_mov_b32 s{sK+2}, 402653184"); e(f"s_mov_b32 s{sK+3}, 0x20000")
e("s_getpc_b64 s[100:101]"); lab("PCREF")
e(f"s_sub_u32 s100, s100, PCREF-{NAME}_kernel"); e("s_subb_u32 s101, s101, 0")
e(f"s_lshl_b32 s{sT1}, s{sS}, 12"); e(f"v_lshl_add_u32 v25, v0, 4, s{sT1}")
e(f"v_cmp_gt_u32 vcc, CODE_END-{NAME}_kernel-16, v25"); e("s_and_saveexec_b64 s[98:99], vcc"); e("s_cbranch_execz NOCPF")
e(f"global_load_dwordx4 a[240:243], v25, s[100:101]")
lab("NOCPF"); e("s_mov_b64 exec, -1")
e(f"s_mul_i32 s{sT2}, s{sT0}, 384")
e(f"s_mov_b32 s{sLay}, 0"); e(f"s_mul_i32 s{sLG}, s{sG}, {GB}"); e(f"s_getreg_b32 s{sFast}, hwreg(HW_REG_XCC_ID, 0, 4)")
e(f"s_lshl_b32 s{sT0}, s{sJ}, 9"); e(f"s_add_u32 s{sT0}, s{sT0}, s{sLG}"); e(f"s_add_u32 s{sT0}, s{sT0}, {oO}"); e(f"v_add_u32 v{vC1}, s{sT0}, v{vLin}")
e(f"s_lshl_b32 s{sT0}, s{sG}, 2"); e(f"s_add_u32 s{sT0}, s{sT0}, s{sJ}"); e(f"s_mul_i32 s{sT0}, s{sT0}, {2560 if RY0 else 320}"); e(f"s_add_u32 s{sT0}, s{sT0}, {oYG-512}"); e(f"s_add_u32 s{sClr}, s{sT0}, 1024"); e(f"v_add_u32 v25, s{sT0}, v{vLin}")
e("v_cmp_le_u32 vcc, 32, v0"); e(f"v_cndmask_b32 v{vC2}, v{vC1}, v25, vcc"); e(f"v_mov_b32 v25, {OOB}"); e(f"v_cndmask_b32 v{vC1}, v{vC1}, v25, vcc")
e(f"s_cmp_lt_u32 s{sJ}, 4"); e(f"s_cselect_b32 s{sT0}, {64 if RY0 else 52}, 32"); e(f"v_cmp_le_u32 vcc, s{sT0}, v0"); e(f"v_cndmask_b32 v{vC2}, v{vC2}, v25, vcc")
e(f"s_mov_b32 s{sW+2}, 1610612736"); e(f"s_mov_b32 s{sW+3}, 0x20000")
e("s_waitcnt lgkmcnt(0)")
e(f"s_mov_b32 s{sK}, s46"); e(f"s_and_b32 s{sK+1}, s47, 0xffff"); e(f"s_mov_b32 s{sW}, s66"); e(f"s_and_b32 s{sW+1}, s67, 0xffff")
if SPIN: e("v_mov_b32 v38, s96"); e("v_accvgpr_write_b32 a253, v38")
SPM = OPT.get("spm", "")
if DA >= 0: e("s_mov_b32 s54, s96"); e("s_mov_b32 s55, 0")
RW = int(OPT.get("rw", 16)); RF = (320 - 20 * RW) // 12
assert 20 * RW + 12 * RF == 320
NPW = -(-max(RW, RF) * 24 // 64)
pend = []
def q_tile(srdn, t, f, base, tag):
    so = sKV if t == 0 else sTO + t
    for i in range(6):
        pend.append((f"buffer_load_dwordx4 {rg(f, base+4*i, 4)}, v{vLin if i < 4 else vLin2}, {sr(srdn)}, s{so} offen offset:{1024*(i%4)} {NT}", tag))
def qK(t): q_tile(sK, t, "a", 24 * t, f"K{t}")
def qV(t): f, b = vblock(t + 1); q_tile(sV, t, f, b, f"V{t}")
def q_pfo():
    for n in range(9): pend.append((f"buffer_load_dwordx4 a[240:243], v{[vLin, vLin, vLin2, 108, 109][n//2]}, {sr(sWQ)}, s{sPo} offen offset:{1024*(n%4)} {NTP}", "pfo"))
def q_pfw():
    for n in range(NPW): pend.append((f"buffer_load_dwordx4 a[240:243], v{101+n}, {sr(sX)}, s{sPw} offen {NTP}", "pfw"))
nfill = [0]; BARN = int(OPT.get("barn", 6)); THR = int(OPT.get("thr", 0)); THRE = int(OPT.get("thre", 0)); THS = int(OPT.get("ths", 20)); THP = int(OPT.get("thp", 1))
hold = {"V7", "pfw", "pfo"}; LA = int(OPT.get("la", 12))
def ahead(tag, LA=LA):
    while tag in A.vm and pend and pend[0][1] not in hold and len(A.vm) - 1 - max(i for i, x in enumerate(A.vm) if x == tag) < LA: fill()
def fill(n=1):
    for _ in range(n):
        if pend and not (pend[0][1] in hold):
            if THR and nfill[0] >= THS and len(pend) > THRE:
                k = nid(); e(f"s_bitcmp{THP}_b32 s{sFast}, 0"); e(f"s_cbranch_scc1 TH{k}"); e(f"s_waitcnt vmcnt({THR-1})"); lab(f"TH{k}")
            x, tag = pend.pop(0); A.vmem(x, tag); nfill[0] += 1
            if BARN and nfill[0] > 12 and nfill[0] % BARN == 0 and len(pend) >= 3: e("s_barrier")
BARS = OPT.get("bar", "").split(",")
def upto(tag):
    while any(t == tag for _, t in pend): fill()
    if tag in BARS or "every" in BARS and tag not in ("K0", "K1", "V7"): e("s_barrier")
def Kld(t): upto(f"K{t}")
def Vld(t): upto(f"V{t}")
for it in OPT.get("order", "K0 K1 K2 K3 K4 K5 K6 K7 V0 V1 V2 V3 V4 V5 V6 V7").replace(",", " ").split():
    if it == "w":
        if "pfw" not in SKIP: q_pfw()
    elif it == "o":
        if "pfo" not in SKIP: q_pfo()
    elif it[0] == "K": qK(int(it[1]))
    else: qV(int(it[1]))
if JIT: jitter(255, 16)
fill(int(OPT.get("k0e", 2)))
e(f"s_or_b32 s{sT0}, s2, s{sWV}"); e("s_cbranch_scc1 NOTAG")
e(f"s_or_b32 s{sT0}, s96, 1"); e(f"v_mov_b32 v26, s{sT0}"); setexec(1); e(f"global_store_dword v{vLin}, v26, s[64:65] sc1"); setexec(FULL)
lab("NOTAG")
if STAMP == 1: e("s_memrealtime s[94:95]")
e(f"s_add_u32 s{sTO+1}, s{sKV}, 196608")
srd(sV, 48, 402653184); srd(sWQ, 50, 7864320); srd(sX, 44, 1280); srd(sO, 62, 1280)
srd(sRB, 58, 1966080); srd(sRC, 60, 1966080)
e(f"s_cmp_lt_u32 s{sJ}, 20"); e(f"s_cselect_b32 s{sRA}, s52, s56"); e(f"s_cselect_b32 s{sRA+1}, s53, s57"); e(f"s_cselect_b32 s{sRA+2}, s{sWQ+2}, s{sRB+2}")
e(f"s_and_b32 s{sRA+1}, s{sRA+1}, 0xffff"); e(f"s_mov_b32 s{sRA+3}, 0x20000")
TLBW = OPT.get("tlbw", "")
def tlb_touch():
    e(f"s_cmp_lg_u32 s{sWV}, 3"); e("s_cbranch_scc1 NOTLB")
    if "j" in TLBW: e(f"s_cmp_lg_u32 s{sS}, 0"); e("s_cbranch_scc1 NOTLB")
    e("v_mul_u32_u24 v26, 1376256, v24"); e("v_lshlrev_b32 v27, 20, v24")
    setexec(3)
    if "v" in TLBW: e(f"buffer_load_dword a243, v26, {sr(sV)}, s{sKV} offen nt"); e(f"buffer_load_dword a243, v26, {sr(sK)}, s{sKV} offen nt")
    if "w" in TLBW:
        e(f"global_load_dword a243, v27, s[56:57] nt"); e(f"buffer_load_dword a243, v27, {sr(sRB)}, 0 offen nt"); e(f"buffer_load_dword a243, v27, {sr(sRC)}, 0 offen nt")
        setexec(0xff); e(f"global_load_dword a243, v27, s[52:53] nt")
    setexec(FULL)
    lab("NOTLB")
if TLBW: tlb_touch()
if STAMP:
    e(f"s_lshl_b32 s98, s2, 2"); e(f"s_add_u32 s98, s98, s{sWV}"); e("s_lshl_b32 s98, s98, 7"); e("s_add_u32 s98, s98, 0x40000000")
    e("v_mov_b32 v38, s96"); e("v_mov_b32 v39, 0"); e("s_mov_b64 exec, 1")
    A.vmem(f"buffer_store_dword v38, v39, {sr(sW)}, s98 offen", "stamp")
    if STAMP == 1: e("s_waitcnt lgkmcnt(0)"); e("v_mov_b32 v37, s94"); A.vmem(f"buffer_store_dword v37, v39, {sr(sW)}, s98 offen offset:56", "stamp")
    e("s_mov_b64 exec, -1")
for t in range(2, 8): e(f"s_add_u32 s{sTO+t}, s{sTO+t-1}, 196608")
e(f"v_mov_b32 v{vL}, v24")
e(f"s_mul_i32 s{sT0}, s{sWV}, {SCRW}")
for r in range(3):
    e(f"v_add_u32 v25, {64*r}, v{vL}"); e("v_mul_u32_u24 v26, 171, v25"); e("v_lshrrev_b32 v26, 12, v26")
    e("v_mul_u32_u24 v27, 24, v26"); e("v_sub_u32 v27, v25, v27"); e("v_lshlrev_b32 v27, 4, v27")
    e(f"v_mul_u32_u24 v25, {RS}, v26"); e(f"v_add3_u32 v{vWr+r}, v25, v27, s{sT0}")
    e(f"v_mul_u32_u24 v25, 12288, v26"); e(f"v_add_u32 v{F+r}, v25, v27")
assert all((c * 171) >> 12 == c // 24 for c in range(192))
e(f"v_and_b32 v25, 15, v{vL}"); e(f"v_lshrrev_b32 v26, 4, v{vL}")
e(f"v_bfe_u32 v27, v{vL}, 2, 2"); e(f"v_and_b32 v28, 3, v{vL}")
e(f"s_mul_i32 s{sT1}, s{sS}, 160")
e(f"v_lshlrev_b32 v36, 4, v26"); e(f"v_lshlrev_b32 v37, 3, v26"); e(f"v_lshlrev_b32 v39, 2, v{vL}")
A.vmem(f"buffer_load_dwordx4 v[70:73], v36, {sr(sX)}, s{sT1} offen", "x")
A.vmem(f"buffer_load_dwordx4 v[74:77], v36, {sr(sX)}, s{sT1} offen offset:64", "x")
A.vmem(f"buffer_load_dwordx2 v[78:79], v37, {sr(sX)}, s{sT1} offen offset:128", "x")
A.vmem(f"buffer_load_dwordx4 v[80:83], v{vLin}, {sr(sX)}, 0 offen", "x")
A.vmem(f"buffer_load_dword v84, v39, {sr(sX)}, 0 offen offset:1024", "x")
e(f"s_lshl_b32 s{sT3}, s{sJ}, 6"); e(f"v_lshlrev_b32 v38, 2, v25")
A.vmem(f"buffer_load_dword v{vXR}, v38, {sr(sX)}, s{sT3} offen", "x")
e(f"s_mul_i32 s{sT1}, s{sS}, {80*12288}"); e(f"s_add_u32 s{sT2}, s{sT2}, s{sT1}")
e(f"s_mul_i32 s{sT1}, s{sWV}, {8*12288}"); e(f"s_add_u32 s{sT2}, s{sT2}, s{sT1}")
e(f"s_mul_i32 s{sT1}, s{sWV}, 3072"); e(f"s_add_u32 s{sT1}, s{sT1}, {WQ}")
for gi in range(3):
    if gi == 2: e(f"s_cmp_ge_u32 s{sWV}, 2"); e("s_cbranch_scc1 NOWQ3")
    for r in range(3):
        e(f"s_add_u32 m0, s{sT1}, {gi*4*3072 + r*1024}")
        if "wq" not in SKIP: A.vmem(f"buffer_load_dwordx4 v{F+r}, {sr(sWQ)}, s{sT2} offen {NTW} lds", "wq", counted=(gi < 2))
    if gi < 2: e(f"s_add_u32 s{sT2}, s{sT2}, {32*12288}")
lab("NOWQ3")
e(f"s_mul_i32 s{sT1}, s{sS}, 160")
srd(sWQ, 52, 7864320)
e(f"s_cmp_lt_u32 s{sWV}, 2"); e(f"s_cselect_b32 s{sX}, s56, s58"); e(f"s_cselect_b32 s{sX+1}, s57, s59"); e(f"s_and_b32 s{sX+1}, s{sX+1}, 0xffff"); e(f"s_mov_b32 s{sX+2}, 1966080")
fill(3)
e(f"v_mul_u32_u24 v29, {RS}, v25"); e(f"v_lshl_add_u32 v29, v26, 4, v29"); e(f"v_add_u32 v{vKrd}, s{sT0}, v29")
e(f"v_lshrrev_b32 v29, 2, v{vL}"); e(f"v_mul_u32_u24 v29, {RS}, v29"); e(f"v_lshl_add_u32 v29, v28, 3, v29"); e(f"v_add_u32 v{vVrd}, s{sT0}, v29")
e(f"s_mul_i32 s{sT2}, s{sWV}, 96"); e(f"s_add_u32 s{sT2}, s{sT2}, {WQ}")
e("v_lshl_add_u32 v29, v26, 3, v27"); e("v_mul_u32_u24 v29, 384, v29"); e("v_lshl_add_u32 v29, v28, 3, v29"); e(f"v_add_u32 v{vTq1}, s{sT2}, v29")
e("v_lshl_add_u32 v29, v26, 2, v27"); e("v_mul_u32_u24 v29, 384, v29"); e("v_lshl_add_u32 v29, v28, 3, v29"); e(f"v_add_u32 v{vTq2}, s{sT2}, v29")
REPL = int(OPT.get("repl", 1))
SHB = OPT.get("shb", "fl")
def rowbase(dst, m, og, ol, ob, tmp):
    e(f"s_mul_i32 s{sT3}, s{sG}, {10240 if REPL else 0}")
    if og == oYG and not RY0: e(f"s_cmp_eq_u32 s{sLay}, 0"); e(f"s_cselect_b32 s{sT3}, 0, s{sT3}")
    e(f"s_add_u32 s{sT3}, s{sT3}, {og}")
    e(f"v_mul_u32_u24 v{dst}, 1280, v{m}"); e(f"v_add_u32 v{dst}, s{sT3}, v{dst}")
    e(f"s_mul_i32 s{sT3}, s{sG}, {GB}"); e(f"s_add_u32 s{sT3}, s{sT3}, {ol}"); e(f"v_mov_b32 v{tmp}, s{sT3}")
    e(f"v_cmp_eq_u32 vcc, s{sG}, v{m}"); e(f"v_cndmask_b32 v{dst}, v{dst}, v{tmp}, vcc")
    if ob is not None:
        e(f"v_add_u32 v{tmp}, {ob-ol}, v{tmp}"); e(f"v_cmp_le_u32 vcc, 8, v{m}"); e(f"v_cndmask_b32 v{dst}, v{dst}, v{tmp}, vcc")
fill()
if "l" in SHB: e(f"s_mul_i32 s{sT2}, s{sWV}, 23"); e(f"v_min_u32 v32, 22, v{vL}"); e(f"v_add_u32 v32, s{sT2}, v32"); e("v_min_u32 v32, 89, v32")
else: e(f"v_mov_b32 v32, v{vL}")
assert all((c * 103) >> 10 == c // 10 for c in range(90))
e(f"v_mul_u32_u24 v31, 103, v32"); e("v_lshrrev_b32 v31, 10, v31")
e(f"v_mul_u32_u24 v30, 10, v31"); e(f"v_sub_u32 v30, v32, v30"); e(f"v_lshl_add_u32 v29, v30, 4, s{sT1}")
rowbase(vAq, 31, oFG, oFL, oBB, 30); e(f"v_add_u32 v{vAq}, v{vAq}, v29")
if "l" in SHB: e("v_add_u32 v33, v31, v32"); e("v_lshlrev_b32 v33, 4, v33"); e("v_add_u32 v33, 4096, v33")
e("v_add_u32 v31, 6, v31"); rowbase(vAq16, 31, oFG, oFL, oBB, 30); e(f"v_add_u32 v{vAq16}, v{vAq16}, v29")
e(f"v_mov_b32 v30, {OOB}"); e(f"v_cmp_le_u32 vcc, 30, v{vL}"); e(f"v_cndmask_b32 v{vAq16}, v{vAq16}, v30, vcc")
if "l" in SHB: e(f"v_mov_b32 v{vAq16}, v33")
e(f"s_lshl_b32 s{sT1}, s{sJ}, 10"); e(f"s_lshl_b32 s{sT2}, s{sWV}, 8"); e(f"s_add_u32 s{sT1}, s{sT1}, s{sT2}")
e(f"v_lshl_add_u32 v{vQst}, v{vL}, 2, s{sT1}")
e(f"s_lshl_b32 s{sT1}, s{sHH}, 13"); e(f"s_add_u32 s{sT1}, s{sT1}, s{sT2}")
e(f"v_lshlrev_b32 v29, 10, v26"); e(f"v_lshl_add_u32 v29, v25, 4, v29"); e(f"v_add_u32 v{vQld}, s{sT1}, v29")
fill()
e(f"s_mul_i32 s{sT1}, s{sWV}, 96"); e(f"s_add_u32 s{sT1}, s{sT1}, {QB}")
e(f"v_lshl_add_u32 v29, v27, 5, s{sT1}"); e("v_lshl_add_u32 v29, v28, 2, v29"); e("v_lshrrev_b32 v30, 1, v26"); e("v_lshl_add_u32 v29, v30, 4, v29")
e("v_and_b32 v30, 1, v26"); e("v_lshl_add_u32 v29, v30, 1, v29"); e(f"v_mov_b32 v30, {QB+384}")
e("v_cmp_le_u32 vcc, 12, v25"); e(f"v_cndmask_b32 v{vQBw}, v29, v30, vcc")
e(f"v_and_b32 v30, 1, v{vL}"); e(f"v_lshlrev_b32 v29, 5, v26"); e("v_lshl_add_u32 v29, v30, 4, v29"); e(f"v_add_u32 v{vQBr}, {QB}, v29")
e("v_mul_u32_u24 v30, 0xaaaa, v30"); e("v_and_b32 v29, 1, v27"); e("v_mul_u32_u24 v29, 0xaaaa, v29"); e("v_lshl_or_b32 v29, v29, 16, v30"); e(f"v_add_u32 v{vIdx}, 0x44444444, v29")
fill()
e(f"s_lshl_b32 s{sT1}, s{sWV}, 8"); e(f"s_add_u32 s{sT1}, s{sT1}, {PT}")
e(f"v_lshrrev_b32 v29, 5, v{vL}"); e(f"v_lshl_add_u32 v29, v29, 6, s{sT1}")
for bit, sh in ((3, 5), (1, 4), (2, 3), (4, 2), (0, 1)): e(f"v_bfe_u32 v30, v{vL}, {bit}, 1"); e(f"v_lshl_add_u32 v29, v30, {sh}, v29")
e(f"v_mov_b32 v{vPw}, v29")
e(f"v_bfe_u32 v29, v{vL}, 4, 1"); e(f"v_bfe_u32 v30, v{vL}, 2, 1"); e(f"v_lshl_add_u32 v29, v29, 5, s{sT1}"); e("v_lshl_add_u32 v29, v30, 4, v29"); e("v_accvgpr_write_b32 a252, v29")
e(f"s_mul_i32 s{sT1}, s{sWV}, 768"); e(f"s_add_u32 s{sT1}, s{sT1}, {ACC}"); e(f"v_lshl_add_u32 v29, v25, 2, s{sT1}")
e(f"v_bfe_u32 v30, v{vL}, 4, 1"); e("v_lshl_add_u32 v29, v30, 7, v29"); e(f"v_lshrrev_b32 v30, 5, v{vL}"); e(f"v_lshl_add_u32 v{vAcc}, v30, 6, v29")

def Krel(t):
    upto(f"K{t}"); ahead(f"K{t}"); A.wait(f"K{t}")
    if "rel" in SKIP: return
    for i in range(6): e(f"ds_write_b128 v{vWr+i%3}, {ar(24*t+4*i)} offset:{(i//3)*8*RS}")
    for ks in range(6): e(f"ds_read_b128 {ar(24*t+4*ks)}, v{vKrd} offset:{64*ks}")
def Vrel(t):
    upto(f"V{t}"); ahead(f"V{t}"); A.wait(f"V{t}")
    if "rel" in SKIP: return
    f, b = vblock(t + 1)
    for i in range(6): e(f"ds_write_b128 v{vWr+i%3}, {rg(f, b+4*i, 4)} offset:{(i//3)*8*RS}")
    f, b = vblock(t & ~1)
    for dt in range(12): e(f"ds_read_b64_tr_b16 {rg(f, b+4*dt+2*(t&1), 2)}, v{vVrd} offset:{32*dt}")
def wq_frags():
    for t in range(3):
        b = F + 10 * t
        for kk in range(2):
            for h in range(2): e(f"ds_read_b64_tr_b16 {vr(b+4*kk+2*h,2)}, v{vTq1} offset:{(32*kk+4*h)*384+32*t}")
        e(f"ds_read_b64_tr_b16 {vr(b+8,2)}, v{vTq2} offset:{64*384+32*t}")
def qstage(a, soff, tag=None, waits=False, fl=0):
    def mm(t, kk):
        n = 4 if kk < 2 else 2
        bb = vr(F + 10 * t + 4 * kk, n) if t < 3 else vr(a + 4 * kk, n)
        c = "0" if kk == 0 else vr(T + 4 * t)
        e(f"v_mfma_f32_16x16x{32 if kk<2 else 16}_bf16 {vr(T+4*t)}, {vr(a+4*kk,n)}, {bb}, {c}")
    def s4(t): return [f"v_add_f32 v{T+4*t}, v{T+4*t}, v{T+4*t+1}", f"v_add_f32 v{T+4*t+2}, v{T+4*t+2}, v{T+4*t+3}", f"v_add_f32 v{T+4*t}, v{T+4*t}, v{T+4*t+2}"]
    if waits: e("s_waitcnt lgkmcnt(2)")
    mm(0, 0); mm(2, 0)
    if waits: e("s_waitcnt lgkmcnt(0)")
    mm(0, 1); mm(2, 1); mm(0, 2); mm(2, 2)
    mm(1, 0); mm(3, 0); mm(1, 1); mm(3, 1); mm(1, 2); mm(3, 2)
    fill(fl)
    for x in s4(0) + s4(2): e(x)
    e(f"v_permlane32_swap_b32 v{T}, v{T+8}")
    x1, x3 = s4(1), s4(3)
    for x in x1[:2] + x3[:2] + [f"v_add_f32 v{T}, v{T}, v{T+8}"] + x1[2:] + x3[2:]: e(x)
    e(f"v_permlane32_swap_b32 v{T+4}, v{T+12}"); e(f"v_add_f32 v{T+4}, v{T+4}, v{T+12}")
    e(f"v_permlane16_swap_b32 v{T}, v{T+4}"); e(f"v_add_f32 v{T}, v{T}, v{T+4}")
    if tag and "qst" in SKIP: pass
    elif tag:
        for q in (1, 2, 3): e(f"v_mov_b32_dpp v{T+q}, v{T} quad_perm:[{q},{q},{q},{q}] row_mask:0xf bank_mask:0xf")
        setexec(0x1111111111111111); A.vmem(f"buffer_store_dwordx4 {vr(T)}, v{vQst}, {sr(sW)}, {soff} offen {'' if 'qplain' in SKIP else 'sc1'}", tag); setexec(FULL)
    else: lstore(f"buffer_store_dword v{T}, v{vQst}, {sr(sW)}, {soff} offen")
def xreduce(r0, r1, r2, r3):
    e(f"v_permlane32_swap_b32 v{r0}, v{r2}"); e(f"v_permlane32_swap_b32 v{r1}, v{r3}")
    e(f"v_add_f32 v{r0}, v{r0}, v{r2}"); e(f"v_add_f32 v{r1}, v{r1}, v{r3}")
    e(f"v_permlane16_swap_b32 v{r0}, v{r1}"); e(f"v_add_f32 v{r0}, v{r0}, v{r1}")
def qloads(b, s0, s1): return [f"buffer_load_dwordx4 {vr(b)}, v{vQld}, {sr(sW)}, {s0} offen sc1", f"buffer_load_dwordx4 {vr(b+4)}, v{vQld}, {sr(sW)}, {s1} offen sc1"]
def qsum(b):
    for q in range(4): e(f"v_add_f32 v{b+q}, v{b+q}, v{b+4+q}")
    xreduce(b, b + 1, b + 2, b + 3)
def rowred(op, v, tmp, steps):
    for sft in steps: e(f"v_{op}_f32_dpp v{v}, v{v}, v{v} row_ror:{sft} row_mask:0xf bank_mask:0xf")
def xrow(op, v, tmp, both=True):
    if both:
        e(f"v_mov_b32 v{tmp}, v{v}"); e(f"v_permlane32_swap_b32 v{v}, v{tmp}"); e(f"v_{op}_f32 v{v}, v{v}, v{tmp}")
    e(f"v_mov_b32 v{tmp}, v{v}"); e(f"v_permlane16_swap_b32 v{v}, v{tmp}"); e(f"v_{op}_f32 v{v}, v{v}, v{tmp}")
QF = 28; DQ = 40; PA = 72; X = 24; vM = 26
def att_zero():
    for t in range(8): e(f"v_mov_b32 v{DQ+4*t}, 0"); e(f"v_mov_b32 v{DQ+4*t+1}, 0")
    for q in range(16): e(f"v_mov_b32 v{PA+q}, 0")
def q_finish(b, mid=None):
    e(f"v_readlane_b32 s{sT0}, v{b}, 15")
    e(f"s_mov_b32 vcc_lo, 0x70007000"); e(f"s_mov_b32 vcc_hi, 0x70007000")
    e(f"v_fma_f32 v{b+1}, -s{sT0}, v{vCS}, v{b}")
    e(f"v_cvt_pk_bf16_f32 v{b+1}, v{b+1}, v{b+1}")
    e(f"ds_write_b16 v{vQBw}, v{b+1}")
    e(f"v_cndmask_b32 v{b+2}, 0, v{b}, vcc")
    e(f"v_add_f32_dpp v{b+2}, v{b+2}, v{b+2} quad_perm:[1,0,3,2] row_mask:0xf bank_mask:0xf")
    e(f"v_add_f32_dpp v{b+2}, v{b+2}, v{b+2} quad_perm:[2,3,0,1] row_mask:0xf bank_mask:0xf")
    e(f"v_mov_b32 v{b+3}, v{b+2}"); e(f"v_permlane32_swap_b32 v{b+2}, v{b+3}"); e(f"v_add_f32 v{b+2}, v{b+2}, v{b+3}")
    if mid: mid()
    else: e("s_waitcnt lgkmcnt(0)"); e("s_barrier")
    for ks in range(3): e(f"ds_read_b128 {vr(QF+4*ks)}, v{vQBr} offset:{128*ks}")
    e(f"v_mov_b32 v{b+3}, v{b+2}"); e(f"v_mov_b32 v{b+1}, s{sT0}"); e(f"v_subrev_f32 v{b+1}, 0x44200000, v{b+1}")
    e(f"v_permlane16_swap_b32 v{b+2}, v{b+3}"); e(f"v_add_f32 v{b+2}, v{b+2}, v{b+3}")
    e(f"v_mul_f32 v{b}, 0x3acccccd, v{b+1}")
    e(f"v_readlane_b32 s{sT0}, v{b+2}, 15")
    e(f"v_mul_f32 v{b}, v{b}, v{b}"); e(f"s_mov_b32 s{sT1}, 0x3acccccd")
    e(f"v_sub_f32 v{b+2}, s{sT0}, v{b+1}")
    e(f"v_fma_f32 v{b+2}, v{b+2}, s{sT1}, -v{b}"); e(f"v_max_f32 v{b+2}, 0, v{b+2}"); e(f"v_add_f32 v{b+2}, 0x3727c5ac, v{b+2}")
    e(f"v_rsq_f32 v{b+2}, v{b+2}"); e(f"v_mul_f32 v{vSC}, 0x3dd53b94, v{b+2}")
def qk_softmax(fl=0):
    def fold(t): e(f"v_add_f32_dpp v{X+t//4}, v{DQ+4*t}, v{DQ+4*t+1} quad_perm:[0,1,2,3] row_mask:{1<<(t%4):#x} bank_mask:0xf")
    def mm(t, ks): e(f"v_smfmac_f32_16x16x64_bf16 {vr(DQ+4*t)}, {vr(QF+4*ks)}, {ar(24*t+8*ks, 8)}, v{vIdx}")
    for ks in range(3):
        e(f"s_waitcnt lgkmcnt({2-ks})")
        for t in range(8): mm(t, ks)
        if ks != 1: fill(fl)
    S = lambda t: X + t // 4 if t % 4 == 0 else DQ + 4 * t
    for t in range(8):
        e(f"v_add_f32 v{S(t)}, v{DQ+4*t}, v{DQ+4*t+1}")
        if t == 2: e(f"v_max3_f32 v{vM}, v{S(0)}, v{S(1)}, v{S(2)}")
        if t in (4, 6): e(f"v_max3_f32 v{vM}, v{vM}, v{S(t-1)}, v{S(t)}")
    e(f"v_max_f32 v{vM}, v{vM}, v{S(7)}")
    mv = [f"v_mov_b32_dpp v{X+t//4}, v{S(t)} quad_perm:[0,1,2,3] row_mask:{1<<(t%4):#x} bank_mask:0xf" for t in (1, 5, 2, 6, 3, 7)] + ["v_accvgpr_read_b32 v27, a252", "s_nop 0"]
    for sft in (8, 4, 2, 1):
        e(mv.pop(0)); e(mv.pop(0)); e(f"v_max_f32_dpp v{vM}, v{vM}, v{vM} row_ror:{sft} row_mask:0xf bank_mask:0xf")
    fill(fl)
    e(f"v_mul_f32 v{vM}, v{vM}, v{vSC}")
    for q in range(2): e(f"v_fma_f32 v{X+q}, v{X+q}, v{vSC}, -v{vM}")
    for q in range(2): e(f"v_exp_f32 v{X+q}, v{X+q}")
    e(f"v_cvt_pk_bf16_f32 v28, v{X}, v{X+1}")
    e(f"ds_write_b16 v{vPw}, v28"); e(f"ds_write_b16_d16_hi v{vPw}, v28 offset:128")
    setexec(0xFF00FF0000FF00FF)
    for u in range(4): e(f"ds_read_b128 {vr(PA+4*u)}, v27 offset:{64*u}")
    setexec(FULL)
    e(f"v_add_f32 v27, v{X}, v{X+1}")
    z = [f"v_mov_b32 v{F+4*dp}, 0" for dp in range(6)] + [f"s_lshl_b32 s{sT1}, s{sWV}, 3", f"s_add_u32 s{sT1}, s{sT1}, {ML4}"]
    for sft in (8, 4, 2, 1):
        e(z.pop(0)); e(z.pop(0)); e(f"v_add_f32_dpp v27, v27, v27 row_ror:{sft} row_mask:0xf bank_mask:0xf")
    xrow("add", 27, 28)
    e(f"v_mov_b32 v28, s{sT1}"); e(f"ds_write_b64 v28, v[26:27]")
def pv_step(u, order=range(6)):
    f, b = vblock(2 * u)
    for dp in order: e(f"v_smfmac_f32_16x16x64_bf16 {vr(F+4*dp)}, {vr(PA+4*u)}, {rg(f, b+8*dp, 8)}, v{vIdx} abid:1")
def pv_post():
    for q in range(3): e(f"v_permlane16_swap_b32 v{F+8*q}, v{F+8*q+4}"); e(f"v_add_f32 v{F+8*q}, v{F+8*q}, v{F+8*q+4}"); e(f"ds_write_b32 v{vAcc}, v{F+8*q} offset:{OACC+256*q}")

WT = [int(x) for x in OPT.get("wt", "0,3,3,0,6").split(",")]
assert sum(WT) == 12
sDo, sDm = 66, 67
TT = OPT.get("tt", "x").replace("x", "")
ROT = int(OPT.get("rot", 0)); nwd = [0]
def wdma(n, tag=None):
    if "wo" in SKIP: return
    for _ in range(n):
        if ROT and nwd[0] == 6:
            e(f"s_bitcmp1_b32 s{sJ}, 0"); e(f"s_cselect_b32 s{sT1}, 12288, 0"); e(f"s_sub_u32 s{sDm}, s{sDm}, s{sT1}"); e(f"s_mul_i32 s{sT1}, s{sT1}, 20"); e(f"s_sub_u32 s{sDo}, s{sDo}, s{sT1}")
        nwd[0] += 1
        e(f"s_mov_b32 m0, s{sDm}"); e(f"s_add_u32 s{sDm}, s{sDm}, 1024")
        A.vmem(f"buffer_load_dwordx4 v39, {sr(sRA)}, s{sDo} offen {NTR} lds", tag, counted=tag is not None)
        e(f"s_add_u32 s{sDo}, s{sDo}, {(8 if WFL else 16)*1280}")
WFL = int(OPT.get("wfl", 0))
def wdma_addr(fl=True):
    if WFL and fl:
        e(f"v_lshrrev_b32 v38, 3, v{vL}"); e("v_mul_u32_u24 v38, 1280, v38"); e(f"v_and_b32 v39, 7, v{vL}"); e("v_lshl_add_u32 v39, v39, 4, v38"); return
    e(f"v_lshrrev_b32 v38, 2, v{vL}"); e("v_mul_u32_u24 v38, 1280, v38"); e(f"v_and_b32 v39, 3, v{vL}"); e("v_lshl_add_u32 v39, v39, 4, v38")
def role_dma():
    if "dma" in SKIP: return
    e(f"s_cmp_ge_u32 s{sJ}, 20"); e("s_cbranch_scc1 DMAF")
    e(f"s_lshl_b32 s{sDo}, s{sWV}, 3"); e(f"s_add_u32 s{sDo}, s{sDo}, s{sG}"); e(f"s_mul_i32 s{sDo}, s{sDo}, {192*1280}"); e(f"s_lshl_b32 s{sT1}, s{sJ}, 6"); e(f"s_add_u32 s{sDo}, s{sDo}, s{sT1}")
    if WFL: e(f"s_and_b32 s{sT1}, s{sJ}, 1"); e(f"s_mul_i32 s{sT1}, s{sT1}, {96*1280-64}"); e(f"s_add_u32 s{sDo}, s{sDo}, s{sT1}")
    e(f"s_mul_i32 s{sDm}, s{sWV}, 12288"); e(f"s_add_u32 s{sDm}, s{sDm}, {WO}")
    if ROT: e(f"s_bitcmp1_b32 s{sJ}, 0"); e(f"s_cselect_b32 s{sT1}, 6144, 0"); e(f"s_add_u32 s{sDm}, s{sDm}, s{sT1}"); e(f"s_mul_i32 s{sT1}, s{sT1}, 20"); e(f"s_add_u32 s{sDo}, s{sDo}, s{sT1}")
    if TT:
        e(f"v_mul_u32_u24 v38, {191*1280}, v{vL}"); e(f"s_mul_i32 s{sT1}, s{sG}, {192*1280}"); setexec(3)
        if "o" in TT: e(f"buffer_load_dword a243, v38, {sr(sRA)}, s{sDo} offen")
        if "2" in TT: e(f"buffer_load_dword a243, v38, {sr(sRC)}, s{sT1} offen")
        setexec(FULL)
    if WT[0]: wdma_addr(); wdma(WT[0])
    lab("DMAX")
    def t():
        lab("DMAF")
        e(f"s_sub_u32 s{sT1}, s{sJ}, 20"); e(f"s_and_b32 s{sDo}, s{sT1}, 3"); e(f"s_lshl_b32 s{sDo}, s{sDo}, 1"); e(f"s_and_b32 s{sT2}, s{sWV}, 1"); e(f"s_add_u32 s{sDo}, s{sDo}, s{sT2}")
        e(f"s_mul_i32 s{sDo}, s{sDo}, {80*3072}"); e(f"s_lshr_b32 s{sT1}, s{sT1}, 2"); e(f"s_lshl_b32 s{sT1}, s{sT1}, 7"); e(f"s_add_u32 s{sDo}, s{sDo}, s{sT1}")
        e(f"s_mul_i32 s{sT1}, s{sG}, 384"); e(f"s_add_u32 s{sDo}, s{sDo}, s{sT1}")
        e(f"s_mul_i32 s{sDm}, s{sWV}, 10240"); e(f"s_add_u32 s{sDm}, s{sDm}, {W1}")
        if TT:
            e(f"v_mul_u32_u24 v38, {79*3072}, v{vL}"); e(f"s_lshl_b32 s{sT1}, s{sWV}, 3"); e(f"s_add_u32 s{sT1}, s{sT1}, s{sG}"); e(f"s_mul_i32 s{sT1}, s{sT1}, 24"); e(f"s_add_u32 s{sT1}, s{sT1}, s{sJ}")
            e(f"s_sub_u32 s{sT1}, s{sT1}, 8"); e(f"s_mul_i32 s{sT1}, s{sT1}, 10240"); setexec(3)
            if "f" in TT: e(f"buffer_load_dword a243, v38, {sr(sX)}, s{sDo} offen nt")
            setexec(1)
            if "o" in TT: e(f"buffer_load_dword a243, v38, {sr(sWQ)}, s{sT1} offen")
            setexec(FULL)
        if FT[0]: fdma_addr(); fdma(0, FT[0])
        e("s_branch DMAX")
    tail.append(t)
FT = [int(x) for x in OPT.get("ft", "0,0,0,0,10").split(",")]
assert sum(FT) == 10
def fdma_addr():
    e(f"v_lshrrev_b32 v38, 3, v{vL}"); e("v_mul_u32_u24 v38, 3072, v38"); e(f"v_and_b32 v39, 7, v{vL}"); e("v_lshl_add_u32 v38, v39, 4, v38")
    e(f"v_bfe_u32 v39, v{vL}, 4, 1"); e("v_lshlrev_b32 v39, 5, v39"); e("v_xor_b32 v38, v38, v39"); e("v_xor_b32 v39, 64, v38")
def fdma(n0, n, tag=None):
    for k in range(n0, n0 + n):
        e(f"s_mov_b32 m0, s{sDm}"); e(f"s_add_u32 s{sDm}, s{sDm}, 1024")
        A.vmem(f"buffer_load_dwordx4 v{38+(k&1)}, {sr(sX)}, s{sDo} offen {NTW} lds", tag, counted=tag is not None)
        e(f"s_add_u32 s{sDo}, s{sDo}, {8*3072}")
CSL = int(OPT.get("csl", 1))
def cs_store():
    e(f"s_add_u32 s{sT0}, s{sLG}, {2*LS}"); lstore(f"buffer_store_dword v{vCS}, v{vQst}, {sr(sW)}, s{sT0} offen")
def addr_block():
    e(f"v_mov_b32 v109, v{vC1}")
    e(f"v_and_b32 v25, 15, v{vL}"); e(f"v_lshrrev_b32 v26, 4, v{vL}"); e("v_add_u32 v27, 4, v26")
    rowbase(vC1, 26, oFG, oFL, None, 28); rowbase(vC2, 27, oFG, oFL, None, 28)
    e(f"s_min_u32 s{sT3}, s{sJ}, 19"); e(f"s_lshl_b32 s{sT3}, s{sT3}, 6"); e(f"v_lshl_add_u32 v25, v25, 2, s{sT3}")
    e(f"v_add_u32 v{vC1}, v{vC1}, v25"); e(f"v_add_u32 v{vC2}, v{vC2}, v25")
    fill()
    e(f"v_and_b32 v25, 15, v{vL}"); e(f"v_bfe_u32 v27, v{vL}, 2, 2"); e(f"v_and_b32 v28, 3, v{vL}")
    e(f"s_mul_i32 s{sT3}, s{sWV}, 12288"); e(f"s_add_u32 s{sT3}, s{sT3}, {WO}")
    e("v_lshl_add_u32 v29, v26, 3, v27"); e("v_lshlrev_b32 v29, 6, v29"); e("v_lshl_add_u32 v29, v28, 3, v29"); e(f"v_add_u32 v29, s{sT3}, v29"); e("v_accvgpr_write_b32 a246, v29")
    e(f"s_mul_i32 s{sT3}, s{sWV}, 3072"); e(f"s_add_u32 s{sT3}, s{sT3}, {oO}")
    e(f"v_add_u32 v29, s{sT3}, v{vLin}"); e("v_accvgpr_write_b32 a247, v29")
    e(f"s_lshl_b32 s{sT3}, s{sWV}, 6"); e(f"s_add_u32 s{sT3}, s{sT3}, {oML}"); e("v_xor_b32 v29, v26, v27"); e("v_and_b32 v29, 1, v29"); e("v_lshl_add_u32 v29, v29, 2, v28")
    e(f"v_lshl_add_u32 v29, v29, 3, s{sT3}"); e("v_accvgpr_write_b32 a248, v29")
    e(f"s_lshl_b32 s{sT3}, s{sWV}, 8"); e(f"s_add_u32 s{sT3}, s{sT3}, {ACC+YACC}"); e(f"v_lshl_add_u32 v29, v{vL}, 2, s{sT3}"); e("v_accvgpr_write_b32 a249, v29")
    e(f"s_lshl_b32 s{sYl}, s{sJ}, 6"); e(f"s_mul_i32 s{sYg}, s{sG}, 1280"); e(f"s_add_u32 s{sYg}, s{sYg}, s{sYl}"); e(f"s_add_u32 s{sYg}, s{sYg}, {oYG}")
    e(f"s_add_u32 s{sYl}, s{sYl}, s{sLG}"); e(f"s_add_u32 s{sYl}, s{sYl}, {oYL}")
A.wait("x")
for q in range(5): e(f"v_lshlrev_b32 v{88+2*q}, 16, v{80+q}"); e(f"v_and_b32 v{89+2*q}, 0xffff0000, v{80+q}")
e("v_add_f32 v80, v88, v89")
for q in range(2, 10): e(f"v_add_f32 v80, v80, v{88+q}")
rowred("add", 80, None, (8, 4, 2, 1)); xrow("add", 80, 81)
e("v_mul_f32 v80, 0x3acccccd, v80")
for q in range(10): e(f"v_sub_f32 v{88+q}, v{88+q}, v80")
e("v_mul_f32 v82, v88, v88")
for q in range(1, 10): e(f"v_fmac_f32 v82, v{88+q}, v{88+q}")
fill()
rowred("add", 82, None, (8, 4, 2, 1)); xrow("add", 82, 81)
e("v_mul_f32 v82, 0x3acccccd, v82"); e("v_add_f32 v82, 0x3727c5ac, v82"); e("v_rsq_f32 v82, v82")
e("s_mov_b32 vcc_lo, 0xaaaaaaaa"); e("s_mov_b32 vcc_hi, 0xaaaaaaaa"); e("v_mov_b32 v85, 0x3f803f80")
for q in range(10):
    e(f"v_lshlrev_b32 v83, 16, v{70+q}"); e(f"v_and_b32 v84, 0xffff0000, v{70+q}"); e("v_sub_f32 v83, v83, v80"); e("v_sub_f32 v84, v84, v80")
    e("v_mul_f32 v83, v83, v82"); e("v_mul_f32 v84, v84, v82"); e("v_cvt_pk_bf16_f32 v83, v83, v84"); e(f"v_cndmask_b32 v{70+q}, v83, v85, vcc")
    if q == 5: fill()
ahead("wq", int(OPT.get("lax", 6))); A.wait("wq"); e("s_barrier"); wq_frags()
tagl = "global_load_dword v98, v100, s[64:65] sc1"
e("v_mov_b32 v100, 0"); e(f"s_cmp_lg_u32 s{sWV}, 0"); e("s_cbranch_scc1 NOTL"); setexec(1); e(tagl); setexec(FULL); lab("NOTL")
fill(2)
stamp(1)
e(f"s_mul_i32 s{sT2}, s{sWV}, 96"); e(f"s_add_u32 s{sT2}, s{sT2}, {ACC}"); e(f"v_min_u32 v36, 48, v{vL}"); e(f"v_lshl_add_u32 v36, v36, 1, s{sT2}")
e(f"v_mov_b32 v37, {ACC+512}"); e(f"v_cmp_le_u32 vcc, 48, v{vL}"); e("v_cndmask_b32 v36, v36, v37, vcc"); e(f"v_add_u32 v37, {ACC}, v{vLin}")
e("s_waitcnt lgkmcnt(0)")
for kk in range(3):
    for t in range(3):
        n = 4 if kk < 2 else 2
        e(f"v_mfma_f32_16x16x{32 if kk<2 else 16}_bf16 {vr(T+4*t)}, {vr(70+4*kk,n)}, {vr(F+10*t+4*kk,n)}, " + ("0" if kk == 0 else vr(T + 4 * t)))
fill()
e(f"v_mov_b32 v{vCS}, v{T+1}")
for t in (1, 2):
    e(f"v_mov_b32_dpp v{T}, v{T+4*t} quad_perm:[0,1,2,3] row_mask:{1<<t:#x} bank_mask:0xf"); e(f"v_mov_b32_dpp v{vCS}, v{T+4*t+1} quad_perm:[0,1,2,3] row_mask:{1<<t:#x} bank_mask:0xf")
e(f"v_cvt_pk_bf16_f32 v{T}, v{T}, v{T}"); e(f"ds_write_b16 v36, v{T}")
fill(2)
e("s_waitcnt lgkmcnt(0)"); e("s_barrier")
e(f"ds_read_b128 v[28:31], v37"); e(f"s_lshl_b32 s{sT2}, s{sJ}, 9"); e(f"s_add_u32 s{sT2}, s{sT2}, s{sLG}")
e(f"s_cmp_eq_u32 s{sWV}, 0"); e(f"s_cselect_b32 exec_lo, 0xffffff, 1"); e("s_mov_b32 exec_hi, 0"); e(f"s_cselect_b32 s{sT1}, 0, {OOB-0x10000000}"); e(f"v_add_u32 v37, s{sT1}, v{vLin}")
e("s_waitcnt lgkmcnt(0)")
if "qst" not in SKIP: A.vmem(f"buffer_store_dwordx4 v[28:31], v37, {sr(sW)}, s{sT2} offen sc1", "qst")
setexec(FULL)
for q in range(4): e(f"v_mov_b32 v{32+q}, -1")
if RY0:
    e(f"s_lshr_b32 s{sT1}, s{sJ}, 2"); e(f"s_or_b32 s{sT1}, s{sT1}, s{sWV}"); e("s_cbranch_scc1 NOYC")
    for q in range(2): e(f"buffer_store_dwordx4 v[32:35], v{vLin}, {sr(sW)}, s{sClr} offen offset:{1024*q} sc1")
    lab("NOYC")
if "clr" not in SKIP: A.vmem(f"buffer_store_dwordx4 v[32:35], v{vC2}, {sr(sW)}, 0 offen sc1", "qst")
Krel(0)
ahead("qst", int(OPT.get("laq", 9)))
e(f"s_getreg_b32 s{sXcc}, hwreg(HW_REG_XCC_ID, 0, 4)")
e(f"s_cmp_lg_u32 s{sWV}, 0"); e("s_cbranch_scc1 NOHDR")
save = list(A.vm); A.wait("qst"); A.vm = save
e("v_readfirstlane_b32 s96, v98"); e("s_cmp_eq_u32 s96, 0"); e("s_cbranch_scc1 TAGLOOP"); lab("TAGOK")
def t_():
    lab("TAGLOOP"); e(f"s_mov_b32 s{sCnt}, 0"); lab("TAGL2"); e("s_sleep 8"); e(tagl); e("s_waitcnt vmcnt(0)"); e("v_readfirstlane_b32 s96, v98"); e("s_cmp_lg_u32 s96, 0"); e("s_cbranch_scc1 TAGOK")
    e(f"s_add_u32 s{sCnt}, s{sCnt}, 1"); e(f"s_cmp_lt_u32 s{sCnt}, {LIMIT}"); e("s_cbranch_scc1 TAGL2"); e("s_branch TAGOK")
tail.append(t_)
e(f"v_mov_b32 v99, s{sXcc}"); setexec(1); e(f"buffer_store_dwordx2 v[98:99], v{vLin}, {sr(sW)}, s{sT2} offen offset:384 sc1"); setexec(FULL)
lab("NOHDR")
stamp(1, "s100")
Krel(1); Krel(2)
RT = int(OPT.get("rt", 9))
DT = int(OPT.get("dt", 7))
rdy = [f"buffer_load_dwordx2 v[98:99], v100, {sr(sW)}, 0 offen offset:384 sc1"]
e(f"v_lshlrev_b32 v100, 9, v{vL}"); e(f"v_add_u32 v100, s{sLG}, v100"); e(f"v_bfe_u32 v96, v{vL}, 2, 3"); e(f"v_mul_u32_u24 v96, {GB}, v96"); e(f"v_and_b32 v97, 3, v{vL}"); e("v_lshl_add_u32 v96, v97, 9, v96")
e(f"v_cmp_le_u32 vcc, 32, v{vL}"); e("v_cndmask_b32 v100, v100, v96, vcc"); e(f"s_cmp_eq_u32 s{sWV}, 0"); e(f"s_cselect_b32 s{sT0}, 0, {OOB-0x10000000}"); e(f"v_add_u32 v100, s{sT0}, v100")
def ld(t): Kld(t) if t < 8 else Vld(t - 8)
def rel(t): Krel(t) if t < 8 else Vrel(t - 8)
for t in range(5, RT + 2):
    ld(t)
    if t == DT: stamp(12); role_dma()
    if t == RT: A.vmem(rdy[0], "rdy"); stamp(2, "s100")
    if t == 7: addr_block()
    rel(t - 2)
ahead("rdy"); A.wait("rdy"); e(f"s_mov_b32 s{sCnt}, -1"); e(f"v_mov_b32 v97, {FLG}")
e(f"s_cmp_lg_u32 s{sWV}, 0"); e("s_cbranch_scc1 RDYX")
e("v_cmp_ne_u32 vcc, s96, v98"); e("s_cbranch_vccnz RDYLOOP"); lab("RDYOK")
e(f"v_cmp_ne_u32 vcc, s{sXcc}, v99"); e("s_nop 1"); e(f"v_mov_b32 v96, vcc_lo"); e("ds_write_b32 v97, v96")
lab("RDYX")
stamp(13, f"s{sCnt}")
def t_():
    lab("RDYLOOP")
    if SPM == "rdy": e("v_accvgpr_read_b32 v96, a253"); e("v_add_u32 v96, 2000, v96"); e("v_accvgpr_write_b32 a253, v96")
    e(f"s_mov_b32 s{sCnt}, 0"); lab("RDYL2"); e("s_sleep 8"); e(rdy[0]); e("s_waitcnt vmcnt(0)"); e("v_cmp_ne_u32 vcc, s96, v98"); e("s_cbranch_vccz RDYOK")
    e(f"s_add_u32 s{sCnt}, s{sCnt}, 1"); e(f"s_cmp_lt_u32 s{sCnt}, {LIMIT}"); e("s_cbranch_scc1 RDYL2"); e("s_branch RDYOK")
tail.append(t_)
fill(2)
e("s_waitcnt lgkmcnt(0)"); e("s_barrier"); e("ds_read_b32 v96, v97"); e("s_waitcnt lgkmcnt(0)"); e(f"v_readfirstlane_b32 s{sT0}, v96")
e(f"s_cmp_eq_u32 s{sT0}, 0"); e(f"s_cselect_b32 s{sWp+2}, s{sW+2}, 0")
assert not any(t[0] == "K" for _, t in pend) and DT <= RT + 1
if FORCESLOW: e(f"s_mov_b32 s{sWp+2}, 0")
for d_ in (sWp,): e(f"s_mov_b32 s{d_}, s{sW}"); e(f"s_mov_b32 s{d_+1}, s{sW+1}"); e(f"s_mov_b32 s{d_+3}, 0x20000")
stamp(2)
if "pre" not in SKIP:
    A.vmem(f"buffer_load_dwordx4 a[240:243], v109, {sr(sW)}, 0 offen sc1", "pre")
e(f"s_mul_i32 s{sT0}, s{sJ}, 464"); e(f"s_add_u32 s{sT0}, s{sT0}, s{sLG}"); e(f"s_add_u32 s{sT0}, s{sT0}, {oBB}"); e(f"s_cmp_eq_u32 s{sWV}, 3"); e(f"s_cselect_b32 s{sT0}, s{sT0}, {OOB-0x10000000}")
e(f"v_add_u32 v106, s{sT0}, v{vLin}"); e(f"v_mov_b32 v107, {OOB}"); e(f"v_cmp_le_u32 vcc, 29, v{vL}"); e("v_cndmask_b32 v106, v106, v107, vcc")
if "pre" not in SKIP: A.vmem(f"buffer_load_dwordx4 a[240:243], v106, {sr(sW)}, 0 offen sc1", "pre")
e(f"s_lshl_b32 s{sT0}, s{sJ}, 2"); e(f"s_add_u32 s{sT0}, s{sT0}, s{sWV}"); e(f"s_lshl_b32 s{sT1}, s{sT0}, 8"); e(f"s_add_u32 s{sT1}, s{sT1}, {LS}"); e(f"s_lshl_b32 s{sT0}, s{sT0}, 9"); e(f"s_sub_u32 s{sT0}, s{sT0}, 256")
e(f"v_lshlrev_b32 v24, 7, v{vL}"); e(f"v_add_u32 v25, s{sT0}, v24"); e(f"v_min_u32 v25, {oGX+CSO-128}, v25"); e(f"v_add_u32 v24, s{sT1}, v24"); e(f"v_cmp_gt_u32 vcc, 2, v{vL}"); e("v_cndmask_b32 v24, v25, v24, vcc")
e(f"s_add_u32 s{sT0}, s{sLG}, {LS}"); setexec(63); A.vmem(f"buffer_load_dword a243, v24, {sr(sW)}, s{sT0} offen sc1", "pre"); setexec(FULL)
e(f"s_lshl_b32 s{sT0}, s{sHH}, 12"); e(f"s_mul_i32 s{sT1}, s{sWV}, 96"); e(f"s_add_u32 s{sT0}, s{sT0}, s{sT1}"); e(f"s_add_u32 s{sT0}, s{sT0}, s{sLG}")
e(f"v_lshrrev_b32 v24, 4, v{vL}"); e("v_lshlrev_b32 v24, 9, v24"); e(f"v_and_b32 v25, 15, v{vL}"); e("v_min_u32 v25, 11, v25"); e("v_lshl_add_u32 v24, v25, 3, v24")
for q in range(2):
    if "qg" not in SKIP: A.vmem(f"buffer_load_dwordx2 v[{64+2*q}:{65+2*q}], v24, {sr(sW)}, s{sT0} offen offset:{2048*q} sc1", "qg")
def pack_store16(d, instr_fn):
    for q in (1, 2, 3): e(f"v_mov_b32_dpp v{d+q}, v{d} quad_perm:[{q},{q},{q},{q}] row_mask:0xf bank_mask:0xf")
    setexec(0x1111); instr_fn(); setexec(FULL)
if "b0" in SKIP: e("s_branch NOBASE0")
e(f"s_cmp_lg_u32 s{sWV}, 1"); e("s_cbranch_scc1 NOBASE0"); e(f"s_cmp_ge_u32 s{sJ}, 20"); e("s_cbranch_scc1 NOBASE0")
e(f"v_mov_b32 v28, v{vXR}"); e(f"s_lshl_b32 s{sT0}, s{sJ}, 6"); e(f"s_add_u32 s{sT0}, s{sT0}, s{sLG}"); e(f"s_add_u32 s{sT0}, s{sT0}, {oBA}"); e(f"v_lshlrev_b32 v27, 2, v{vL}")
pack_store16(28, lambda: lstore(f"buffer_store_dwordx4 v[28:31], v27, {sr(sW)}, s{sT0} offen"))
lab("NOBASE0")
stamp(3)
for t in range(RT, RT + 3): rel(t)
ahead("qg"); A.wait("qg")
for q in range(4): e(f"v_lshlrev_b32 v{T+2*q}, 16, v{64+q}"); e(f"v_and_b32 v{T+2*q+1}, 0xffff0000, v{64+q}")
qsum(T)
e(f"v_cvt_pk_bf16_f32 v{T}, v{T}, v{T}"); e(f"ds_write_b16 v{vQBw}, v{T}")
fill(); att_zero()
stamp(4)
fill(2); e("s_waitcnt lgkmcnt(0)"); e("s_barrier")
for ks in range(3): e(f"ds_read_b128 {vr(QF+4*ks)}, v{vQBr} offset:{128*ks}")
e(f"v_mov_b32 v{vSC}, 0x3dd53b94")
qk_softmax(fl=1)
stamp(5)
for t in range(RT + 3, 12): rel(t)
fill(2)
e("s_waitcnt lgkmcnt(0)"); pv_step(0); fill(); pv_step(1)
Vrel(4)
assert sum(1 for _, t in pend if t == "V7") == 6
for q in range(4): e(f"v_mov_b32 v{24+q}, -1")
if "gxc" not in SKIP: lstore(f"buffer_store_dwordx4 v[24:27], v106, {sr(sW)}, 0 offen"); A.vm.append("gxc")
hold.clear(); Vld(7); Vrel(5)
e(f"v_and_b32 v{vXR+1}, 0xffff0000, v{vXR}"); e(f"v_lshlrev_b32 v{vXR}, 16, v{vXR}")
PT_ = [int(x) for x in OPT.get("pt", "7,3").split(",")]
PTF = int(OPT.get("ptf", 1))
def late_pf(w, k0, n):
    if "wo" in SKIP: return
    for k in range(k0, k0 + n):
        if k % 4 == 0 and k: e(f"s_add_u32 s{sPo}, s{sPo}, 4096")
        A.vmem(f"buffer_load_dwordx4 a[240:243], v{vLin}, {sr(sWQ)}, s{sPo} offen offset:{1024*(k%4)} {NTP}", "pfo")
for m_, r_ in ((0x0005000500050005, 82), (ROWS9, 84), ((1 << 45) - 1, 86), ((1 << 23) - 1, 50), (0xFF00FF0000FF00FF, 88), (0x01010101, 92), (0x0F0F0F0F0F0F0F0F if REPL else 0x01010101 + (1 << 63), 44)):
    e(f"s_mov_b32 s{r_}, {m_ & 0xffffffff:#x}"); e(f"s_mov_b32 s{r_+1}, {m_ >> 32:#x}"); MASKS[m_] = r_
if not REPL: e("s_mov_b32 s45, 0")
e(f"s_mov_b64 s[46:47], s[{'44:45' if RY0 else '92:93'}]"); e("s_mov_b64 s[48:49], s[44:45]")
FGE = int(OPT.get("fge", 1))
def rep_addr(d, t):
    e(f"v_and_b32 v{d}, 3, v{vL}"); e(f"v_lshrrev_b32 v{t}, 5, v{vL}"); e(f"v_lshl_add_u32 v{d}, v{t}, 2, v{d}"); e(f"v_mul_u32_u24 v{d}, 10240, v{d}")
    e(f"v_bfe_u32 v{t}, v{vL}, 3, 2"); e(f"v_lshl_add_u32 v{d}, v{t}, 4, v{d}")
def stream_tail(w):
    save = list(A.vm)
    pf = sum(PT_) and not (PTF and w)
    if pf and not PTF:
        e(f"s_lshl_b32 s{sPo}, s{sHH}, 3"); e(f"s_add_u32 s{sPo}, s{sPo}, s{sG}"); e(f"s_lshl_b32 s{sPo}, s{sPo}, 3"); e(f"s_add_u32 s{sPo}, s{sPo}, s{sS}")
        e(f"s_lshl_b32 s{sPo}, s{sPo}, 2"); e(f"s_add_u32 s{sPo}, s{sPo}, s{sWV}"); e(f"s_mul_i32 s{sPo}, s{sPo}, 7680")
    if pf and PTF:
        e(f"s_lshl_b32 s{sPo}, s{sWV}, 3"); e(f"s_add_u32 s{sPo}, s{sPo}, s{sG}"); e(f"s_add_u32 s{sPo}, s{sPo}, 1"); e(f"s_mul_i32 s{sPo}, s{sPo}, {192*1280}")
        e(f"s_sub_u32 s{sT1}, 32, s{sJ}"); e(f"s_mul_i32 s{sT1}, s{sT1}, {1024*sum(PT_)}"); e(f"s_sub_u32 s{sPo}, s{sPo}, s{sT1}")
    if pf: late_pf(w, 0, PT_[0])
    if w and FGE and "fgc" not in SKIP:
        for q in range(4): e(f"v_mov_b32 v{24+q}, -1")
        rep_addr(28, 29); e(f"s_cmp_eq_u32 s{sWV}, 3"); e(f"s_cselect_b32 s{sT0}, 0, {OOB-0x10000000}"); e(f"v_add_u32 v28, s{sT0}, v28"); e(f"s_add_u32 s{sT0}, s{sYg}, {oFG-oYG}")
        e("s_mov_b64 exec, s[44:45]"); A.vmem(f"buffer_store_dwordx4 v[24:27], v28, {sr(sW)}, s{sT0} offen sc1", "fgc"); setexec(FULL)
    if w: wdma_addr(); wdma(WT[1], "wo")
    else: fdma_addr(); fdma(FT[0], FT[1], "f")
    e("s_waitcnt lgkmcnt(0)"); pv_step(2)
    Vrel(6)
    if pf: late_pf(w, PT_[0], PT_[1])
    if w: wdma(WT[2], "wo")
    if not w: fdma(sum(FT[:2]), FT[2], "f")
    x = len(A.vm) - 1 - max(i for i, t in enumerate(A.vm) if t == "V7")
    f_, b_ = vblock(8)
    for i in range(6):
        e(f"s_waitcnt vmcnt({5-i+x})"); e(f"ds_write_b128 v{vWr+i%3}, {rg(f_, b_+4*i, 4)} offset:{(i//3)*8*RS}")
    f_, b_ = vblock(6)
    for dt in range(12): e(f"ds_read_b64_tr_b16 {rg(f_, b_+4*dt+2, 2)}, v{vVrd} offset:{32*dt}")
    if w: wdma(WT[3], "wo")
    if not w: fdma(sum(FT[:3]), FT[3], "f")
    e("s_branch ATT_LAST")
    A.vm = save
e(f"s_cmp_ge_u32 s{sJ}, 20"); e("s_cbranch_scc1 TAILF")
stream_tail(True)
lab("TAILF")
stream_tail(False)
A.drained()
flush_near()

lab("LOOP")
if JIT: jitter(JIT, 40)
def cs_pull():
    e(f"s_add_u32 s{sT0}, s{sLG}, {2*LS}"); e(f"s_add_u32 s{sT1}, s{sT0}, 4096")
    for so in (sT0, sT1): e(f"buffer_load_dwordx4 a[240:243], v{vQld}, {sr(sW)}, s{so} offen sc1")
def loop_prep():
    wq_frags()
    e(f"v_and_b32 v25, 15, v{vL}"); e("v_cmp_eq_u32 vcc, 12, v25"); e("v_mov_b32 v36, 0x3f803f80"); e(f"v_cndmask_b32 v70, 0, v36, vcc")
    for q in range(1, 10): e(f"v_mov_b32 v{70+q}, v70")
    e(f"s_mul_i32 s{sT0}, s{sWV}, {SCRW}" if "l" not in SHB else f"s_mov_b32 s{sT0}, 4096")
    e(f"v_mul_u32_u24 v96, 103, v{vL}"); e("v_lshrrev_b32 v96, 10, v96"); e(f"v_lshl_add_u32 v96, v96, 4, v{vLin}"); e(f"v_add_u32 v96, s{sT0}, v96")
    e(f"v_mul_u32_u24 v97, 176, v25"); e(f"v_add_u32 v97, s{sT0}, v97"); e(f"v_lshrrev_b32 v28, 4, v{vL}"); e("v_lshl_add_u32 v98, v28, 3, v97"); e("v_lshl_add_u32 v97, v28, 4, v97")
e(f"s_cmp_lt_u32 s{sJ}, 20"); e(f"s_cselect_b32 s{sXcc}, s{sWV}, 4")
e(f"s_add_u32 s96, s{sLG}, {LS}"); e("s_add_u32 s97, s96, 4096")
e(f"s_and_b32 s{sT0}, s{sXcc}, 3"); e("s_cbranch_scc1 LOOP2")
loop_prep()
lab("LOOP2")
e(f"s_add_u32 s{sT2}, s{sLG}, 4096")
e(f"s_mul_i32 s{sT0}, s{sS}, 160"); e(f"s_add_u32 s{sT0}, s{sT0}, s{sLG}"); e(f"s_sub_u32 s{sT0}, s{sT0}, {LS-oFL}")
gate(sT0, 10, 24)
setexec((1 << (23 if "l" in SHB else 60)) - 1)
CSA = int(OPT.get("csa", 1))
def sbounce(load, reg, write, reads, first=None, w1=0):
    k = nid()
    e(load)
    if first: first()
    e(f"s_waitcnt vmcnt({w1})")
    lab(f"BW{k}")
    e(write); e(f"v_cmp_eq_u32 vcc, -1, v{reg}"); e(f"s_cbranch_vccnz BR{k}")
    lab(f"BX{k}")
    setexec(ROWS9); e("s_waitcnt lgkmcnt(0)"); e("s_barrier")
    for x in reads: e(x)
    setexec(FULL)
    def t():
        lab(f"BR{k}")
        e(f"s_cmp_ge_u32 s{sCnt}, {LIMIT}"); e(f"s_cbranch_scc1 BX{k}")
        e("s_mov_b64 exec, vcc"); e(load); e(f"s_add_u32 s{sCnt}, s{sCnt}, 1"); e("s_waitcnt vmcnt(0)"); e(f"s_branch BW{k}")
    near.append(t)
def bounce(groups, tmp, writes, reads, first=None, w1=0):
    k = nid(); allr = [r for g in groups for r in g[1]]
    for g in groups:
        for l in g[0]: e(l)
    if first: first()
    e(f"s_waitcnt vmcnt({w1})")
    lab(f"BW{k}")
    for x in writes: e(x)
    check(allr, tmp)
    setexec(ROWS9)
    for x in reads: e(x)
    setexec(FULL)
    e(f"s_cbranch_vccnz BR{k}")
    lab(f"BX{k}")
    def t():
        lab(f"BR{k}")
        e(f"s_cmp_ge_u32 s{sCnt}, {LIMIT}"); e(f"s_cbranch_scc1 BX{k}")
        lab(f"BL{k}")
        for gi, (ls, rs) in enumerate(groups):
            setexec((1 << 60) - 1); check(rs, tmp); e("s_mov_b64 exec, vcc"); e(f"s_cbranch_execz BS{k}_{gi}")
            for l in ls: e(l)
            lab(f"BS{k}_{gi}")
        setexec((1 << 60) - 1)
        e(f"s_add_u32 s{sCnt}, s{sCnt}, 1"); e(f"s_cmp_ge_u32 s{sCnt}, {LIMIT}")
        e("s_waitcnt vmcnt(0)")
        check(allr, tmp)
        e(f"s_cbranch_vccz BW{k}"); e(f"s_cbranch_scc0 BL{k}"); e(f"s_branch BW{k}")
    near.append(t)
assert GATE
if "l" in SHB: sbounce(f"buffer_load_dwordx4 v[80:83], v{vAq}, {sr(sW)}, 0 offen sc1", 80, f"ds_write_b128 v{vAq16}, v[80:83]",
       ["ds_read_b128 v[70:73], v97", "ds_read_b128 v[74:77], v97 offset:64", "ds_read_b64 v[78:79], v98 offset:128"],
       first=(lambda: (setexec(FULL), [e(l) for l in qloads(88, "s96", "s97")], setexec((1 << 23) - 1))) if not CSA else None, w1=2 if not CSA else 0)
else: bounce([([f"buffer_load_dwordx4 v[80:83], v{vAq}, {sr(sW)}, 0 offen sc1"], [80]), ([f"buffer_load_dwordx4 v[84:87], v{vAq16}, {sr(sW)}, 0 offen sc1"], [84])], 24,
       ["ds_write_b128 v96, v[80:83]", f"ds_write_b128 v96, v[84:87] offset:{6*176}"],
       ["ds_read_b128 v[70:73], v97", "ds_read_b128 v[74:77], v97 offset:64", "ds_read_b64 v[78:79], v98 offset:128"],
       first=lambda: [e(l) for l in qloads(88, "s96", "s97")], w1=2)
stamp(1)
e(f"s_cmp_lg_u32 s{sXcc}, 1"); e("s_cbranch_scc1 NOOWL")
e(f"buffer_load_dword a244, v{vC1}, {sr(sW)}, 0 offen sc1"); e(f"buffer_load_dword a245, v{vC2}, {sr(sW)}, 0 offen sc1")
lab("NOOWL")
if CSA:
    for l in qloads(88, "s96", "s97"): e(l)
qstage(70, f"s{sLG}", waits=True)
stamp(2)
att_zero()
e(f"s_waitcnt vmcnt({2 if STAMP == 1 else 1})"); qsum(88); e(f"v_mul_f32 v{vCS}, 0x3acccccd, v88")
for _ in range(int(OPT.get("qd", 0))): e("s_nop 7")
poll_nan(qloads(T, f"s{sLG}", f"s{sT2}"), lambda: qsum(T), T)
stamp(3)
q_finish(T)
stamp(4)
qk_softmax()
stamp(5)
for u in range(3):
    e(f"s_waitcnt lgkmcnt({4-u})"); pv_step(u)
e("s_waitcnt lgkmcnt(0)")
lab("ATT_LAST")
for dp in range(6):
    if dp % 2 == 0: e(f"s_waitcnt lgkmcnt({8-2*dp})")
    pv_step(3, [dp])
def pack8(v):
    e(f"v_mov_b32_dpp v{v+1}, v{v} row_shl:1 row_mask:0xf bank_mask:0xf"); e(f"v_cvt_pk_bf16_f32 v{v}, v{v}, v{v+1}")
    for q in (1, 2, 3): e(f"v_mov_b32_dpp v{v+q}, v{v} row_shl:{2*q} row_mask:0xf bank_mask:0xf")
def pack8q(v):
    e(f"v_mov_b32_dpp v{v+1}, v{v} row_shl:1 row_mask:0xf bank_mask:0xf"); e(f"v_cvt_pk_bf16_f32 v{v+4}, v{v}, v{v+1}")
    e(f"v_mov_b32_dpp v{v}, v{v+4} quad_perm:[0,0,0,0] row_mask:0xf bank_mask:0xf"); e(f"v_mov_b32_dpp v{v+1}, v{v+4} quad_perm:[2,2,2,2] row_mask:0xf bank_mask:0xf")
    e(f"v_mov_b32_dpp v{v+2}, v{v} row_shl:4 row_mask:0xf bank_mask:0xf"); e(f"v_mov_b32_dpp v{v+3}, v{v+1} row_shl:4 row_mask:0xf bank_mask:0xf")
e(f"s_lshl_b32 s{sT0}, s{sWV}, 8"); e(f"s_add_u32 s{sT0}, s{sT0}, {ACC+OACC}"); e(f"v_lshl_add_u32 v24, v{vL}, 2, s{sT0}")
pv_post()
e(f"v_and_b32 v25, 3, v{vL}"); e(f"v_mad_u32_u24 v26, v25, 48, v{vLin}"); e(f"v_lshlrev_b32 v25, 3, v25"); e(f"v_add_u32 v25, {ML4}, v25")
e("s_waitcnt lgkmcnt(0)"); e("s_barrier")
stamp(6)
e("ds_read_b64 v[32:33], v25"); e("ds_read2st64_b32 v[40:41], v24 offset0:0 offset1:3"); e("ds_read2st64_b32 v[42:43], v24 offset0:6 offset1:9")
e(f"s_mul_i32 s{sT0}, s{sHH}, 3072"); e(f"s_lshl_b32 s{sT1}, s{sS}, 4"); e(f"s_add_u32 s{sT0}, s{sT0}, s{sT1}"); e(f"s_lshl_b32 s{sT1}, s{sWV}, 10"); e(f"s_add_u32 s{sT0}, s{sT0}, s{sT1}")
e(f"s_add_u32 s{sT0}, s{sT0}, s{sLG}"); e(f"s_add_u32 s{sT0}, s{sT0}, {oO}")
e(f"s_lshl_b32 s{sT1}, s{sJ}, 3"); e(f"s_add_u32 s{sT1}, s{sT1}, s{sLG}"); e(f"s_add_u32 s{sT1}, s{sT1}, {oML}"); e(f"s_cmp_eq_u32 s{sWV}, 3")
e("s_waitcnt lgkmcnt(2)")
e("v_max_f32_dpp v34, v32, v32 quad_perm:[1,0,3,2] row_mask:0xf bank_mask:0xf"); e("v_max_f32_dpp v34, v34, v34 quad_perm:[2,3,0,1] row_mask:0xf bank_mask:0xf")
e("v_sub_f32 v32, v32, v34"); e("v_exp_f32 v32, v32")
e("s_cbranch_scc1 OML"); e("s_waitcnt lgkmcnt(0)")
e("v_mul_f32_dpp v28, v32, v40 quad_perm:[0,0,0,0] row_mask:0xf bank_mask:0xf"); e("v_mul_f32_dpp v29, v32, v41 quad_perm:[1,1,1,1] row_mask:0xf bank_mask:0xf")
e("v_mul_f32_dpp v30, v32, v42 quad_perm:[2,2,2,2] row_mask:0xf bank_mask:0xf"); e("v_fmac_f32_dpp v28, v32, v43 quad_perm:[3,3,3,3] row_mask:0xf bank_mask:0xf")
e("v_add_f32 v29, v29, v30"); e("v_add_f32 v28, v28, v29")
e("v_mov_b32_dpp v29, v28 row_shl:1 row_mask:0xf bank_mask:0xf"); e("v_cvt_pk_bf16_f32 v28, v28, v29")
for q in (1, 2, 3): e(f"v_mov_b32_dpp v{28+q}, v28 row_shl:{4*q} row_mask:0xf bank_mask:0xf")
setexec(0x0005000500050005)
lstore(f"buffer_store_dwordx4 v[28:31], v26, {sr(sW)}, s{sT0} offen")
setexec(FULL)
def t_():
    lab("OML")
    e("v_mul_f32 v35, v32, v33")
    e("v_add_f32_dpp v35, v35, v35 quad_perm:[1,0,3,2] row_mask:0xf bank_mask:0xf"); e("v_add_f32_dpp v35, v35, v35 quad_perm:[2,3,0,1] row_mask:0xf bank_mask:0xf")
    setexec(1); lstore(f"buffer_store_dwordx2 v[34:35], v{vLin}, {sr(sW)}, s{sT1} offen"); setexec(FULL)
    e("s_waitcnt lgkmcnt(0)"); e("s_branch ODONE")
near.append(t_)
lab("ODONE")
if STAMP == 3 and "land" in SKIP:
    e(f"s_cmp_ge_u32 s{sJ}, 20"); e("s_cbranch_scc1 LND"); wdma_addr(); wdma(WT[4]); lab("LND"); e("s_waitcnt vmcnt(0)")
stamp(7)
if STAMP == 3: e("s_endpgm")
e(f"s_cmp_ge_u32 s{sJ}, 20"); e("s_cbranch_scc1 ROLEF")
def owner_add():
    e("v_lshlrev_b32 v30, 16, v28"); e("v_and_b32 v28, 0xffff0000, v28"); e("v_lshlrev_b32 v31, 16, v29"); e("v_and_b32 v29, 0xffff0000, v29")
    e("v_add_f32 v30, v30, v31"); e("v_add_f32 v28, v28, v29")
    e("v_mov_b32 v31, v30"); e("v_mov_b32 v29, v28"); e("v_permlane32_swap_b32 v30, v31"); e("v_permlane32_swap_b32 v28, v29"); e("v_add_f32 v30, v30, v31"); e("v_add_f32 v28, v28, v29")
    e("v_mov_b32 v31, v30"); e("v_mov_b32 v29, v28"); e("v_permlane16_swap_b32 v30, v31"); e("v_permlane16_swap_b32 v28, v29"); e("v_add_f32 v30, v30, v31"); e("v_add_f32 v28, v28, v29")
    e(f"v_add_f32 v{vXR}, v{vXR}, v30"); e(f"v_add_f32 v{vXR+1}, v{vXR+1}, v28")
    e(f"v_cvt_pk_bf16_f32 v28, v{vXR}, v{vXR+1}")
def own_loads(a0, a1, soff): return [f"buffer_load_dword v28, v{a0}, {sr(sW)}, {soff} offen sc1", f"buffer_load_dword v29, v{a1}, {sr(sW)}, {soff} offen sc1"]
def base_store(ob):
    e(f"s_lshl_b32 s{sT0}, s{sJ}, 6"); e(f"s_add_u32 s{sT0}, s{sT0}, s{sLG}"); e(f"s_add_u32 s{sT0}, s{sT0}, {ob}"); e(f"v_lshlrev_b32 v32, 2, v{vL}")
    pack_store16(28, lambda: lstore(f"buffer_store_dwordx4 v[28:31], v32, {sr(sW)}, s{sT0} offen"))
e(f"s_cmp_eq_u32 s{sLay}, 0"); e("s_cbranch_scc1 WLATE")
def t_():
    lab("WLATE")
    if JIT: jitter(JIT, 40)
    if WT[4]: wdma_addr(); wdma(WT[4])
    assert FGE
    for q in range(3): e(f"v_accvgpr_read_b32 v{2+q}, a{246+q}")
    for x in fl0: e(x)
    cs_store()
    wrest()
    ne = 4 * ((12 - WT[4]) // 2)
    e(f"s_waitcnt vmcnt({5 + WT[4]})")
    for x in trs[:ne]: e(x)
    e("s_waitcnt vmcnt(5)")
    for x in trs[ne:]: e(x)
    e("s_branch WCHK")
near.append(t_)
for q in range(3): e(f"v_accvgpr_read_b32 v{2+q}, a{246+q}")
TRN = int(OPT.get("trn", 10))
trs = [f"ds_read_b64_tr_b16 {vr(F+24*t+4*kk+2*h,2)}, v2 offset:{(32*kk+4*h)*64+32*t}" for kk in range(6) for t in range(2) for h in range(2)]
for x in trs[:TRN]: e(x)
def own0():
    e(f"s_cmp_lg_u32 s{sWV}, 1"); e("s_cbranch_scc1 NOOWN0")
    e("v_accvgpr_read_b32 v28, a244"); e("v_accvgpr_read_b32 v29, a245")
    late_check("none", own_loads(vC1, vC2, "0"), [28, 29], 30)
    owner_add()
    if OWP != 2: base_store(oBA)
    lab("NOOWN0")
OWP = int(OPT.get("owp", 0))
if not OWP: own0()
IX, M_, L_, U_ = 26, 27, 36, 37
def wrest():
    e("v_accvgpr_read_b32 v5, a249"); rep_addr(18, 6); e("v_and_b32 v6, 0xffffff7f, v5")
    e(f"v_bfe_u32 v{IX}, v{vL}, 3, 1"); e(f"v_mul_u32_u24 v{IX}, 0xaaaa, v{IX}"); e(f"v_add_u32 v{IX}, 0x4444, v{IX}")
    for q in range(8): e(f"v_mov_b32 v{28+q}, 0")
def wfirst():
    for x in trs[TRN:]: e(x)
    if OWP: own0()
    wrest()
assert OWP in (0, 2)
fl0 = [f"buffer_load_dwordx2 v[24:25], v4, {sr(sW)}, s{sLG} offen sc1"] + [f"buffer_load_dwordx4 {vr(SPARE+4*kk)}, v3, {sr(sW)}, s{sLG} offen offset:{1024*kk} sc1" for kk in range(3)]
poll_sel([(fl0, [SPARE, SPARE + 4, SPARE + 8, 25])], 38, pid=7, first=wfirst, wl="WCHK")
e("s_waitcnt lgkmcnt(0)")
stamp(8)
dq = lambda op, d, a, ctl: f"v_{op}_f32_dpp v{d}, v{a}, v{a} {ctl} row_mask:0xf bank_mask:0xf"
co = [[dq("max", M_, 24, "quad_perm:[1,0,3,2]")], [], [dq("max", M_, M_, "quad_perm:[2,3,0,1]")], [], [dq("max", M_, M_, "row_ror:4"), f"v_sub_f32 v24, v24, v{M_}", "v_exp_f32 v24, v24"], []]
for kk in range(3):
    for t in range(2):
        for x in co.pop(0): e(x)
        e(f"v_smfmac_f32_16x16x64_bf16 {vr(28+4*t)}, {vr(SPARE+4*kk)}, {vr(F+24*t+8*kk, 8)}, v{IX}")
e(f"v_mul_f32 v{L_}, v24, v25"); e(f"s_cmp_lg_u32 s{sWV}, 0"); e(dq("add", L_, L_, "quad_perm:[1,0,3,2]"))
e(dq("add", L_, L_, "quad_perm:[2,3,0,1]"))
bc = lambda q: f"row_newbcast:{q} row_mask:0xf bank_mask:0xf"
e(f"v_mul_f32_dpp v28, v24, v28 {bc(0)}"); e(f"v_mul_f32_dpp v30, v24, v30 {bc(2)}"); e(dq("add", L_, L_, "row_ror:4"))
e(f"v_mul_f32_dpp v32, v24, v32 {bc(0)}"); e(f"v_mul_f32_dpp v34, v24, v34 {bc(2)}"); e(f"v_rcp_f32 v{L_}, v{L_}")
e(f"v_fmac_f32_dpp v28, v24, v29 {bc(1)}"); e(f"v_fmac_f32_dpp v30, v24, v31 {bc(3)}"); e(f"v_fmac_f32_dpp v32, v24, v33 {bc(1)}"); e(f"v_fmac_f32_dpp v34, v24, v35 {bc(3)}")
e("v_add_f32 v28, v28, v30"); e("v_add_f32 v32, v32, v34")
e("v_permlane16_swap_b32 v28, v32"); e(f"v_add_f32 v{U_}, v28, v32"); e("v_add_f32 v28, v28, v32")
e(f"v_permlane32_swap_b32 v28, v{U_}"); e(f"v_add_f32 v28, v28, v{U_}"); e(f"v_mul_f32 v28, v28, v{L_}")
e(f"ds_write_b32 v5, v28")
e("s_waitcnt lgkmcnt(0)"); e("s_barrier")
e("s_cbranch_scc1 WNOT0")
assert (ACC + YACC) % 256 == 0
e("ds_read2st64_b32 v[28:29], v6 offset0:0 offset1:1"); e("ds_read2st64_b32 v[30:31], v6 offset0:2 offset1:3")
e("s_waitcnt lgkmcnt(1)"); e("v_add_f32 v28, v28, v29"); e("s_waitcnt lgkmcnt(0)"); e("v_add_f32 v30, v30, v31"); e("v_add_f32 v28, v28, v30")
pack8q(28)
e("s_mov_b64 exec, s[46:47]")
e(f"buffer_store_dwordx4 v[28:31], v18, {sr(sW)}, s{sYg} offen sc1")
setexec(0x01010101)
lstore(f"buffer_store_dwordx4 v[28:31], v18, {sr(sW)}, s{sYl} offen")
setexec(FULL)
stamp(9); stamp(9, "c")
e(f"v_add_u32 v{SPARE+23}, {W2-WO}, v2")
trs2 = [x.replace(", v2 offset", f", v{SPARE+23} offset") for x in trs]
e(f"s_cmp_lg_u32 s{sLay}, 0"); e("s_cbranch_scc1 W2OK")
wdma_addr(False); e(f"s_mul_i32 s{sT0}, s{sG}, {192*1280}"); e(f"s_lshl_b32 s{sT1}, s{sJ}, 6"); e(f"s_add_u32 s{sT0}, s{sT0}, s{sT1}")
for n in range(12 if "w2" not in SKIP else 0):
    e(f"s_mov_b32 m0, {W2+1024*n}"); e(f"buffer_load_dwordx4 v39, {sr(sRC)}, s{sT0} offen lds"); e(f"s_add_u32 s{sT0}, s{sT0}, {16*1280}")
e("s_branch W2X")
lab("W2OK")
for x in trs2: e(x)
lab("W2X")
HD = SPARE + 12
for q in (0, 1, 4, 5): e(f"v_mov_b32 v{HD+q}, 0")
e(f"s_add_u32 s96, s{sYg}, {oFG-oYG}"); e(f"s_add_u32 s97, s{sYl}, {oFL-oYL}")
lab("STB")
stamp(4, "d")
e(f"s_mul_i32 s{sT0}, s{sWV}, 48"); e(f"v_min_u32 v6, 47, v{vL}"); e(f"v_add_u32 v6, s{sT0}, v6"); e("v_lshlrev_b32 v4, 4, v6"); e(f"v_add_u32 v{SPARE+20}, {CSO}, v4"); e(f"v_lshlrev_b32 v4, {3 if GX2 else 2}, v6")
e(f"v_cmp_le_u32 vcc, 48, v{vL}"); e(f"v_mov_b32 v24, {1536 if GX2 else 768}"); e("v_cndmask_b32 v4, v4, v24, vcc"); e("v_add_u32 v5, 3584, v4")
e("v_lshrrev_b32 v24, 4, v6"); e("v_lshlrev_b32 v24, 5, v24"); e("v_bfe_u32 v25, v6, 1, 1"); e("v_lshl_add_u32 v24, v25, 4, v24"); e("v_bfe_u32 v25, v6, 2, 2"); e("v_lshl_add_u32 v24, v25, 2, v24")
e("v_and_b32 v25, 1, v6"); e("v_lshl_add_u32 v24, v25, 1, v24"); e(f"v_add_u32 v24, {QB}, v24"); e(f"v_mov_b32 v25, {QB+384}"); e("v_cndmask_b32 v6, v24, v25, vcc")
e(f"v_mov_b32 v{SPARE+21}, 0x3727c5ac"); e(f"v_mov_b32 v{SPARE+22}, 0x3acccccd"); e(f"s_add_u32 s{sT2}, s{sLG}, {oGX}")
e("v_accvgpr_read_b32 v2, a250"); e("v_accvgpr_read_b32 v3, a251"); e(f"s_add_u32 s{sTL}, s{sLay}, s{sWV}")
def sum4(b): e(f"v_add_f32 v{b}, v{b}, v{b+1}"); e(f"v_add_f32 v{b+2}, v{b+2}, v{b+3}"); e(f"v_add_f32 v{b}, v{b}, v{b+2}")
gl = [f"buffer_load_dword v{T+4*k+q}, v{4+k}, {sr(sW)}, s{sT2} offen offset:{896*q} sc1" for q in range(4) for k in range(2)]
if GX2: gl = [f"buffer_load_dwordx2 {vr(T+8+2*q,2)}, v{4+q//2}, {sr(sW)}, s{sT2} offen offset:{1792*(q%2)} sc1" for q in range(4)]
def gsum():
    if GX2:
        e(f"v_add_f32 v{T}, v{T+8}, v{T+10}"); e(f"v_add_f32 v{T+4}, v{T+9}, v{T+11}"); e(f"v_add_f32 v{T+2}, v{T+8+4}, v{T+8+6}"); e(f"v_add_f32 v{T+6}, v{T+8+5}, v{T+8+7}")
        e(f"v_add_f32 v{T+4}, v{T+4}, v{T+6}"); e(f"v_add_f32 v{T}, v{T}, v{T+2}"); return
    e(f"v_add_f32 v{T}, v{T}, v{T+1}"); e(f"v_add_f32 v{T+4}, v{T+4}, v{T+5}"); e(f"v_add_f32 v{T+2}, v{T+2}, v{T+3}"); e(f"v_add_f32 v{T+6}, v{T+6}, v{T+7}")
    e(f"v_add_f32 v{T+4}, v{T+4}, v{T+6}"); e(f"v_add_f32 v{T}, v{T}, v{T+2}")
e(f"s_mov_b32 s{sCnt}, 1"); e(f"s_cmp_eq_u32 s{sLay}, 0"); e("s_cbranch_scc1 GPF")
lab("GPO")
stamp(5, "d")
e(f"s_cmp_eq_u32 s{sWV}, 1"); e("s_cbranch_scc1 WOWN")
lab("GP1")
for l in gl: e(l)
e("s_waitcnt vmcnt(0)"); gsum(); e(f"v_cmp_u_f32 vcc, v{T}, v{T+4}"); e("s_cbranch_vccnz GA1")
lab("GPX")
def t_():
    lab("GA1"); e(f"s_add_u32 s{sCnt}, s{sCnt}, 1"); e(f"s_cmp_lt_u32 s{sCnt}, {LIMIT}"); e("s_cbranch_scc1 GP1"); e("s_branch GPX")
    cl = [f"buffer_load_dwordx4 {vr(T+8)}, v{SPARE+20}, {sr(sW)}, s{sT2} offen sc1", f"buffer_load_dwordx4 {vr(T+12)}, v{SPARE+20}, {sr(sW)}, s{sT2} offen offset:3072 sc1"]
    lab("GPF")
    e(f"s_cmp_lg_u32 s{sWV}, 0"); e("s_cbranch_scc1 GP0")
    for l in cl: e(l)
    e("s_waitcnt vmcnt(2)")
    for x in trs2: e(x)
    e("s_branch GPW")
    lab("GP0")
    for l in cl: e(l)
    lab("GPW")
    e(f"s_add_u32 s{sCnt}, s{sCnt}, 1"); e(f"s_cmp_ge_u32 s{sCnt}, {LIMIT}"); e("s_waitcnt vmcnt(0)")
    e(f"v_add_f32 v2, v{T+8}, v{T+9}"); e(f"v_add_f32 v3, v{T+12}, v{T+13}"); e(f"v_add_f32 v{T+10}, v{T+10}, v{T+11}"); e(f"v_add_f32 v{T+14}, v{T+14}, v{T+15}")
    e(f"v_add_f32 v2, v2, v{T+10}"); e(f"v_add_f32 v3, v3, v{T+14}"); e("v_cmp_u_f32 vcc, v2, v3"); e("s_cbranch_scc1 GPO")
    e("s_cbranch_vccnz GP0"); e("s_branch GPO")
near.append(t_)
stamp(10)
EPS, INV = SPARE + 21, SPARE + 22
e(f"v_readlane_b32 s{sT0}, v{T+4}, 48"); e(f"v_readlane_b32 s{sT1}, v{T}, 48"); e(f"s_cmp_lg_u32 s{sTL}, 1"); e("s_cbranch_scc0 OWL"); lab("OWB")
def t_():
    lab("OWL"); e(f"buffer_load_dword v34, v100, {sr(sW)}, 0 offen sc1"); e(f"buffer_load_dword v35, v101, {sr(sW)}, 0 offen sc1"); e("s_branch OWB")
near.append(t_)
e(f"v_mul_f32 v{T+1}, s{sT0}, v{INV}"); e(f"v_fma_f32 v{T+2}, s{sT1}, v{INV}, v{EPS}")
e(f"v_fma_f32 v{T+2}, -v{T+1}, v{T+1}, v{T+2}"); e(f"v_add_f32 v{T+1}, 1.0, v{T+1}"); e(f"v_max_f32 v{T+2}, v{T+2}, v{EPS}")
e(f"v_fma_f32 v{T}, -v{T+1}, v2, v{T}"); e(f"v_rsq_f32 v{T+3}, v{T+2}"); e(f"v_mul_f32 v{T+5}, 0xbfb8aa3b, v{T}"); e(f"v_mul_f32 v{T+5}, v{T+5}, v{T+3}"); e(f"v_exp_f32 v{T+5}, v{T+5}")
e(f"v_fma_f32 v{T+4}, -v{T+1}, v3, v{T+4}"); e(f"v_fma_f32 v{T+5}, v{T+5}, v{T+2}, v{T+2}"); e(f"v_rcp_f32 v{T+5}, v{T+5}"); e(f"v_mul_f32 v{T+4}, v{T+4}, v{T}")
e(f"v_mul_f32 v{T+4}, v{T+4}, v{T+5}"); e(f"v_cvt_pk_bf16_f32 v{T+4}, v{T+4}, v{T+4}"); e(f"ds_write_b16 v6, v{T+4}")
e("v_accvgpr_write_b32 a250, v2"); e("v_accvgpr_write_b32 a251, v3"); e(f"s_cmp_lg_u32 s{sWV}, 0")
e("s_waitcnt lgkmcnt(0)"); e("s_barrier")
e("s_cbranch_scc1 STBX")
for ks in range(3): e(f"ds_read_b128 {vr(SPARE+4*ks)}, v{vQBr} offset:{128*ks}")
for ks in range(3):
    e(f"s_waitcnt lgkmcnt({2-ks})")
    for t in range(2): e(f"v_smfmac_f32_16x16x64_bf16 {vr(HD+4*t)}, {vr(SPARE+4*ks)}, {vr(F+24*t+8*ks, 8)}, v{vIdx}")
e(f"v_add_f32 v28, v{HD}, v{HD+1}"); e(f"v_add_f32_dpp v28, v{HD+4}, v{HD+5} quad_perm:[0,1,2,3] row_mask:0xa bank_mask:0xf")
pack8q(28)
e("s_mov_b64 exec, s[48:49]")
e(f"buffer_store_dwordx4 v[28:31], v18, {sr(sW)}, s96 offen sc1")
setexec(0x01010101)
lstore(f"buffer_store_dwordx4 v[28:31], v18, {sr(sW)}, s97 offen")
setexec(FULL)
stamp(11)
e("s_branch NEXT")
flush_near()
lab("WNOT0")
if JIT: jitter(JIT, 40)
if OWP == 2:
    e(f"s_cmp_eq_u32 s{sLay}, 0"); e("s_cbranch_scc1 NOBA1"); e(f"s_cmp_lg_u32 s{sWV}, 1"); e("s_cbranch_scc1 STB"); e(f"v_cvt_pk_bf16_f32 v28, v{vXR}, v{vXR+1}"); base_store(oBA); lab("NOBA1")
e(f"s_cmp_lg_u32 s{sLay}, 0"); e("s_cbranch_scc1 STB"); e(f"s_cmp_eq_u32 s{sWV}, 1"); e("s_cbranch_scc1 WPREP"); e(f"s_cmp_eq_u32 s{sWV}, 3"); e("s_cbranch_scc1 WLC")
for q in range(4): e(f"v_mov_b32 v{F+12+q}, -1")
e(f"s_add_u32 s{sT0}, s{sYg}, {LS}"); e(f"s_add_u32 s{sT3}, s{sT0}, {oFG-oYG}")
if int(OPT.get("gcd", 8)): e(f"s_sleep {OPT.get('gcd', 8)}")
e("s_mov_b64 exec, s[44:45]"); e(f"buffer_store_dwordx4 {vr(F+12)}, v18, {sr(sW)}, s{sT0} offen sc1")
setexec(0x01010101); e(f"buffer_store_dwordx4 {vr(F+12)}, v18, {sr(sW)}, s{sT3} offen sc1")
setexec(FULL)
e("s_branch WPREP")
lab("WLC")
LCW = int(OPT.get("lcw", 1))
if LCW:
    lo_ = oO if LCW == 1 else 0; ng = (oGX + CSO - lo_) // 16; per = -(-ng // 20); ni = -(-per // 64)
    e(f"s_mul_i32 s{sT0}, s{sJ}, {per*16}"); e(f"s_add_u32 s{sT1}, s{sLG}, {LS+lo_}")
    for q in range(ni): e(f"v_add_u32 v{100+q}, s{sT0}, v{vLin}"); e(f"v_min_u32 v{100+q}, {ng*16-16}, v{100+q}"); e(f"s_add_u32 s{sT0}, s{sT0}, 1024")
    for q in range(4): e(f"v_mov_b32 v{104+q}, -1")
    loop_prep()
    if JIT: jitter(JIT, 60)
    for q in range(ni): lstore(f"buffer_store_dwordx4 v[104:107], v{100+q}, {sr(sW)}, s{sT1} offen")
    e("s_branch STB")
lab("WPREP")
e("s_nop 1"); loop_prep()
e("s_branch STB")
lab("WOWN")
e(f"v_and_b32 v25, 15, v{vL}"); e(f"v_lshrrev_b32 v26, 4, v{vL}")
rowbase(37, 26, oYG, oYL, None, 38); e("v_add_u32 v39, 4, v26"); rowbase(38, 39, oYG, oYL, None, 28)
e(f"s_lshl_b32 s{sT0}, s{sJ}, 6"); e(f"s_add_u32 s{sT0}, s{sT0}, s{sLay}"); e(f"v_lshl_add_u32 v25, v25, 2, s{sT0}")
e("v_add_u32 v100, v25, v37"); e("v_add_u32 v101, v25, v38")
e(f"s_cmp_eq_u32 s{sLay}, 0"); e("s_cbranch_scc1 GP1")
if not int(OPT.get("oall", 1)): e(f"s_cmp_lg_u32 s{sG}, 0"); e("s_cbranch_scc1 GP1")
e(f"s_sleep {max(ODLY-3, 1)}")
poll(own_loads(100, 101, "0"), [28, 29], 30, slp=int(OPT.get("osp", 2)))
owner_add()
e("s_branch GP1")
lab("STBX")
e(f"s_cmp_lg_u32 s{sWV}, 1"); e("s_cbranch_scc1 NEXT"); e(f"s_cmp_lg_u32 s{sLay}, 0"); e("s_cbranch_scc1 FINAL")
e("s_waitcnt vmcnt(0)"); e("v_mov_b32 v28, v34"); e("v_mov_b32 v29, v35")
late_check("none", own_loads(100, 101, "0"), [28, 29], 30)
owner_add()
base_store(oBB)
stamp(6, "d")
e("s_branch NEXT")
lab("FINAL")
e(f"s_cmp_lg_u32 s{sG}, 0"); e("s_cbranch_scc1 DONE")
e(f"s_lshl_b32 s{sT0}, s{sJ}, 6"); e(f"v_lshlrev_b32 v37, 2, v{vL}")
e(f"s_add_u32 s{sT2}, s{sT0}, s{sLG}"); e(f"s_add_u32 s{sT2}, s{sT2}, {oFL}")
if int(OPT.get("otouch", 0)): setexec(0xffff); e(f"buffer_load_dword v29, v37, {sr(sO)}, s{sT0} offen")
gate(sT2, 4, 28); setexec(FULL)
poll(own_loads(vC1, vC2, f"s{sLay}"), [28, 29], 30)
owner_add()
setexec(0xffff)
e(f"buffer_store_dword v28, v37, {sr(sO)}, s{sT0} offen {OPT.get('ost', '').replace('+', ' ')}")
setexec(FULL)
stamp(12); stamp(12, "c")
e("s_branch DONE") if SPIN else e("s_endpgm")
flush_near()
lab("ROLEF")
e(f"v_and_b32 v25, 15, v{vL}"); e(f"v_lshrrev_b32 v26, 4, v{vL}"); e(f"v_bfe_u32 v27, v{vL}, 2, 2"); e(f"v_and_b32 v36, 3, v{vL}")
FA = SPARE
FBLK = r'''WG_ = int(OPT.get("fg", -1))
if WG_ >= 0:
    # keep this traffic out of the way of workgroups that still stream: start when at most WG_ of the group are missing
    e(f"v_lshlrev_b32 v37, 3, v{vL}"); e(f"s_add_u32 s{sT0}, s{sLG}, {oML}"); e(f"s_mov_b32 s{sCnt}, 0"); e("s_mov_b32 exec_lo, -1"); e("s_mov_b32 exec_hi, 0")
    lab("W2G"); e(f"buffer_load_dword v38, v37, {sr(sW)}, s{sT0} offen sc1"); e(f"s_add_u32 s{sCnt}, s{sCnt}, 1"); e("s_waitcnt vmcnt(0)")
    e("v_cmp_eq_u32 vcc, -1, v38"); e(f"s_bcnt1_i32_b64 s{sT1}, vcc"); e(f"s_cmp_ge_u32 s{sCnt}, 64"); e("s_cbranch_scc1 W2GX"); e(f"s_cmp_gt_u32 s{sT1}, {WG_}"); e("s_cbranch_scc1 W2G")
    lab("W2GX"); setexec(FULL)
if FT[4]: fdma_addr(); fdma(sum(FT[:4]), FT[4])
'''
e(f"s_cmp_lg_u32 s{sLay}, 0"); e("s_cbranch_scc1 FW")
e(f"s_sub_u32 s96, s{sJ}, 20"); e("s_lshl_b32 s96, s96, 2"); e(f"s_add_u32 s96, s96, s{sWV}")
if int(OPT.get("w2pf", 0)):
    e(f"s_mul_i32 s97, s{sG}, 48"); e("s_add_u32 s97, s97, s96"); e("s_mul_i32 s97, s97, 5120")
    for n in range(5):
        if n == 4: e("s_add_u32 s97, s97, 4096")
        e(f"buffer_load_dwordx4 a[240:243], v{vLin}, {sr(sRC)}, s97 offen offset:{1024*(n%4)}")
assert LCW == 1 and 128 * 4 * 128 >= oGX + CSO
if LCW:
    e(f"s_mul_i32 s96, s96, {43*16}"); e(f"v_add_u32 v21, s96, v{vLin}"); e(f"v_min_u32 v21, {32768-16}, v21"); e(f"s_add_u32 s97, s{sLG}, {LS+oQ}")
else:
    e(f"s_mul_i32 s96, s96, {74*16}"); e(f"s_add_u32 s97, s{sLG}, {LS}"); e("s_add_u32 s97, s97, s96")
    e(f"buffer_load_dwordx4 a[240:243], v{vLin}, {sr(sW)}, s97 offen sc1"); setexec(0x3ff); e(f"buffer_load_dwordx4 a[240:243], v{vLin}, {sr(sW)}, s97 offen offset:1024 sc1"); setexec(FULL)
for q in range(4): e(f"v_mov_b32 v{T+4+q}, -1")
FSE = int(OPT.get("fse", 1))
if not FSE: exec(FBLK)
lstore(f"buffer_store_dwordx4 {vr(T+4)}, v21, {sr(sW)}, s97 offen")
cs_store()
if FSE: exec(FBLK)
lab("FW")
e(f"s_lshl_b32 s{sT0}, s{sWV}, 5"); e(f"v_lshl_add_u32 v80, v36, 3, s{sT0}"); e("v_lshrrev_b32 v37, 1, v27"); e("v_and_b32 v38, 1, v26"); e("v_lshl_add_u32 v37, v38, 1, v37"); e("v_lshlrev_b32 v37, 5, v37")
e("v_xor_b32 v80, v80, v37"); e("v_lshl_add_u32 v37, v26, 3, v27"); e("v_lshl_add_u32 v80, v37, 7, v80"); e(f"v_add_u32 v80, {W1}, v80")
e(f"s_sub_u32 s{sT2}, s{sJ}, 20"); e(f"s_and_b32 s{sT3}, s{sT2}, 12"); e(f"s_add_u32 s{sT3}, s{sT3}, s{sWV}"); e(f"s_lshl_b32 s{sT1}, s{sT3}, 8")
e(f"v_lshl_add_u32 v83, v25, 4, s{sT1}"); e(f"v_lshrrev_b32 v84, {1 if GX2 else 2}, v83"); e(f"v_mov_b32 v37, {1536 if GX2 else 768}"); e("v_cmp_le_u32 vcc, 2, v26"); e("v_cndmask_b32 v84, v84, v37, vcc")
e("v_and_b32 v37, 1, v26"); e(f"v_mul_u32_u24 v37, {4 if GX2 else 3584}, v37"); e("v_add_u32 v84, v84, v37")
e(f"s_cmp_eq_u32 s{sT3}, 0"); e("s_mov_b32 s52, -1"); e("s_cselect_b32 s53, 0x10001, 0")
e(f"s_and_b32 s{sT2}, s{sT2}, 3"); e(f"s_mul_i32 s{sT1}, s{sT2}, {1788 if GX2 else 892}"); e(f"s_sub_u32 s{sT1}, {CSO}, s{sT1}"); e(f"v_add_u32 v83, s{sT1}, v83")
e(f"s_mul_i32 s{sT1}, s{sT2}, {1792 if GX2 else 896}"); e(f"s_add_u32 s{sT1}, s{sT1}, s{sLG}"); e(f"s_add_u32 s{sT1}, s{sT1}, {oGX}"); e(f"s_mul_i32 s{sT2}, s{sT2}, 320")
e("v_cmp_eq_u32 vcc, 12, v25")
e("v_mov_b32 v38, 0x3f803f80"); e(f"v_cndmask_b32 v{FA}, 0, v38, vcc")
for q in range(1, 20): e(f"v_mov_b32 v{FA+q}, v{FA}")
FG = [86, 18, 20]
if "f" in SHB:
    e(f"v_mul_u32_u24 v6, 336, v25"); e("v_lshl_add_u32 v6, v26, 4, v6")
    e(f"s_mul_i32 s{sT0}, s{sWV}, 45"); e(f"v_min_u32 v27, 44, v{vL}"); e(f"v_add_u32 v27, s{sT0}, v27"); e("v_mul_u32_u24 v37, 205, v27"); e("v_lshrrev_b32 v37, 12, v37")
    e("v_add_u32 v87, v37, v27"); e("v_lshlrev_b32 v87, 4, v87"); e("v_mul_u32_u24 v38, 20, v37"); e("v_sub_u32 v27, v27, v38"); e("v_lshlrev_b32 v27, 4, v27")
    assert all((c * 205) >> 12 == c // 20 for c in range(180))
    rowbase(86, 37, oYG, oYL, oBA, 38); e("v_add_u32 v86, v86, v27")
else:
    e(f"s_mul_i32 s{sT0}, s{sWV}, {SCRW}")
    e(f"v_mul_u32_u24 v6, 336, v25"); e("v_lshl_add_u32 v6, v26, 4, v6"); e(f"v_add_u32 v6, s{sT0}, v6")
    e(f"v_mul_u32_u24 v37, 52, v{vL}"); e("v_lshrrev_b32 v37, 10, v37")
    e(f"v_lshl_add_u32 v87, v37, 4, v{vLin}"); e(f"v_add_u32 v87, s{sT0}, v87")
    e(f"v_mul_u32_u24 v27, 320, v37"); e(f"v_sub_u32 v27, v{vLin}, v27")
    for i in range(3):
        rowbase(FG[i], 37, oYG, oYL, oBA, 38); e(f"v_add_u32 v{FG[i]}, v{FG[i]}, v27")
        if i < 2: e("v_add_u32 v37, 3, v37")
e(f"s_add_u32 s{sT0}, s{sT2}, s{sLay}"); e(f"s_add_u32 s{sT2}, s{sT2}, s{sLG}"); e(f"s_add_u32 s{sT2}, s{sT2}, {oYL}")
e(f"s_cmp_lg_u32 s{sLay}, 0"); e("s_cbranch_scc1 FW1")
e("s_waitcnt vmcnt(0)")
if JIT: jitter(JIT, 40)
e("s_barrier"); stamp(13)
lab("FW1")
CD = [108, 2]
def fprep():
    for t in range(2):
        for kk in range(5):
            for h in range(2): e(f"ds_read_b64_tr_b16 {vr(F+20*t+4*kk+2*h,2)}, v80 offset:{(32*kk+4*h)*128+20480*t}")
def cs_mm():
    e("s_waitcnt lgkmcnt(0)")
    for kk in range(5):
        for t in range(2): e(f"v_mfma_f32_16x16x32_bf16 {vr(CD[t])}, {vr(FA+4*kk)}, {vr(F+20*t+4*kk)}, " + ("0" if kk == 0 else vr(CD[t])))
def cs_pub():
    e(f"s_cmp_eq_u32 s{sLay}, 0"); e("s_cbranch_scc1 CSP"); e("s_waitcnt vmcnt(0)"); lab("CSB")
    def t():
        lab("CSP"); setexec(FULL); cs_mm(); setexec(0xFFFF << 48)
        lstore(f"buffer_store_dword v{CD[0]}, v83, {sr(sW)}, s{sT1} offen"); lstore(f"buffer_store_dword v{CD[1]}, v83, {sr(sW)}, s{sT1} offen offset:3072")
        setexec((1 << (45 if "f" in SHB else 60)) - 1); e("s_branch CSB")
    near.append(t)
gate(sT2, 20, 36, first=fprep)
setexec((1 << (45 if "f" in SHB else 60)) - 1)
if "f" in SHB: sbounce(f"buffer_load_dwordx4 {vr(T)}, v86, {sr(sW)}, s{sT0} offen sc1", T, f"ds_write_b128 v87, {vr(T)}", [f"ds_read_b128 {vr(FA+4*kk)}, v6 offset:{64*kk}" for kk in range(5)], first=cs_pub, w1=2)
else: bounce([([f"buffer_load_dwordx4 {vr(T+4*i)}, v{FG[i]}, {sr(sW)}, s{sT0} offen sc1"], [T + 4 * i]) for i in range(3)], 36,
       [f"ds_write_b128 v87, {vr(T+4*i)} offset:{3*336*i}" for i in range(3)], [f"ds_read_b128 {vr(FA+4*kk)}, v6 offset:{64*kk}" for kk in range(5)], first=cs_pub, w1=2)
stamp(8)
G_, R2, R3 = T + 12, T + 13, T + 14
for kk in range(5):
    e(f"s_waitcnt lgkmcnt({4-kk})")
    e(f"v_mfma_f32_16x16x32_bf16 {vr(T+8)}, {vr(FA+4*kk)}, {vr(FA+4*kk)}, " + ("0" if kk == 0 else vr(T + 8)))
dp = lambda dst, sft, rm: f"v_add_f32_dpp v{dst}, v{G_}, v{G_} row_ror:{sft} row_mask:{rm:#x} bank_mask:0xf"
sh = [[f"v_mov_b32 v{G_}, 0", f"v_mov_b32 v{R2}, 0"], [f"v_mov_b32 v{R3}, 0", "s_nop 0"], [],
      [f"v_add_f32 v{T+8}, v{T+8}, v{T+9}", f"v_add_f32 v{T+10}, v{T+10}, v{T+11}"], [],
      [f"v_add_f32_dpp v{G_}, v{T+8}, v{T+10} quad_perm:[0,1,2,3] row_mask:0xf bank_mask:0x7"], ["s_nop 0", dp(G_, 8, 15)], ["s_nop 0", dp(G_, 4, 15)],
      ["s_nop 0", dp(G_, 2, 15)], []]
for t in range(2):
    for kk in range(5):
        e(f"v_mfma_f32_16x16x32_bf16 {vr(T+4*t)}, {vr(FA+4*kk)}, {vr(F+20*t+4*kk)}, " + ("0" if kk == 0 else vr(T + 4 * t)))
        for x in sh.pop(0): e(x)
e(f"v_add_f32 v{T+1}, v{T}, v{T+1}"); e(dp(R2, 1, 7)); e(dp(R3, 1, 8)); e(f"v_add_f32 v{T+2}, v{T+2}, v{T+3}"); e(f"v_add_f32 v{T+1}, v{T+1}, v{T+2}")
e(f"v_permlane32_swap_b32 v{T+1}, v{R2}")
e(f"v_add_f32 v{T+5}, v{T+4}, v{T+5}"); e(f"v_add_f32 v{T+6}, v{T+6}, v{T+7}"); e(f"v_add_f32 v{T+5}, v{T+5}, v{T+6}"); e(f"v_add_f32 v{T+1}, v{T+1}, v{R2}")
e(f"v_permlane32_swap_b32 v{T+5}, v{R3}"); e(f"v_add_f32 v{T+5}, v{T+5}, v{R3}")
e(f"v_permlane16_swap_b32 v{T+1}, v{T+5}"); e("s_mov_b64 exec, s[52:53]"); e(f"v_add_f32 v{T+1}, v{T+1}, v{T+5}")
lstore(f"buffer_store_dword v{T+1}, v84, {sr(sW)}, s{sT1} offen"); setexec(FULL)
stamp(9)
lab("NEXT")
e(f"s_cmp_lg_u32 s{sLay}, 0"); e("s_cbranch_scc1 DONE")
e(f"s_mov_b32 s{sLay}, {LS}"); e(f"s_add_u32 s{sLG}, s{sLG}, {LS}"); e(f"s_add_u32 s{sYg}, s{sYg}, {LS}"); e(f"s_add_u32 s{sYl}, s{sYl}, {LS}")
e("s_mov_b64 s[46:47], s[44:45]"); e("s_mov_b64 s[48:49], s[92:93]")
e("s_branch LOOP")
flush_near()
lab("DONE")
if SPIN:
    e("v_accvgpr_read_b32 v38, a253"); e("s_nop 1"); e("v_readfirstlane_b32 s96, v38")
    if SPM == "min":
        e("v_not_b32 v38, v38"); e("v_mov_b32 v39, 192"); e("s_mov_b64 exec, 1"); e("global_atomic_umax v39, v38, s[64:65] sc1"); e("s_waitcnt vmcnt(0)")
        lab("SPW"); e("s_sleep 20"); e("s_memrealtime s[98:99]"); e("s_waitcnt lgkmcnt(0)"); e("s_sub_u32 s98, s98, s96"); e(f"s_cmp_lt_u32 s98, {SPIN*100-1500}"); e("s_cbranch_scc1 SPW")
        e("global_load_dword v38, v39, s[64:65] sc1"); e("s_waitcnt vmcnt(0)"); e("v_not_b32 v38, v38"); e("s_nop 1"); e("v_readfirstlane_b32 s96, v38")
    e(f"s_add_u32 s55, s55, {SPIN*100}") if DA >= 0 else e(f"s_mov_b32 s55, {SPIN*100}")
    lab("SPINL"); e("s_memrealtime s[98:99]"); e("s_waitcnt lgkmcnt(0)"); e("s_sub_u32 s98, s98, s96"); e(f"s_cmp_lt_u32 s98, s55"); e("s_cbranch_scc1 SPINL")
e("s_endpgm")
i = 0
while i < len(tail): tail[i](); flush_near(); i += 1
lab("CODE_END")
e("s_endpgm")

body = A.pad()
hdr = [f"; @launch grid=(256,1,1) block=(256,1,1) lds={LDSSZ}", '.amdgcn_target "amdgcn-amd-amdhsa--gfx950"', ".text",
       f".globl {NAME}_kernel", ".p2align 8", f".type {NAME}_kernel,@function", f"{NAME}_kernel:"]
ftr = ['.section .rodata,"a"', ".p2align 6", f".amdhsa_kernel {NAME}_kernel", "  .amdhsa_next_free_vgpr 512", "  .amdhsa_next_free_sgpr 102",
       "  .amdhsa_accum_offset 256", "  .amdhsa_group_segment_fixed_size 0", "  .amdhsa_kernarg_size 96", "  .amdhsa_user_sgpr_count 2",
       "  .amdhsa_user_sgpr_kernarg_segment_ptr 1", "  .amdhsa_system_sgpr_workgroup_id_x 1", ".end_amdhsa_kernel"]
src = "\n".join(hdr + body + ftr) + "\n"
import re
for m in re.finditer(r"buffer_\S+ .*offset:(\d+)", src): assert int(m.group(1)) < 4096, m.group(0)
for m in re.finditer(r"ds_\S+ .*offset:(\d+)", src): assert int(m.group(1)) < 65536, m.group(0)
open(OUT, "w").write(src)
```

```python
import os, sys
sys.path.insert(0, os.path.dirname(os.path.abspath(__file__)))
from asmlib import Asm
NAME = "interleave_layers__sliding_block_cached__glu_gated_swiglu__decode"
OPT = dict(a.split("=") for a in sys.argv[2:])
OUT = sys.argv[1] if len(sys.argv) > 1 else f"/code/{NAME}.s"
STAMP = int(OPT.get("stamp", 0))
NT = OPT.get("nt", "nt").replace("x", "")
NTW = OPT.get("ntw", "nt").replace("x", "")
SKIP = OPT.get("skip", "").split(",")
FORCESLOW = int(OPT.get("slow", 0))
SPIN = int(OPT.get("spin", 0))
A = Asm(); e = A.e; lab = A.lab
tail = []

RS = 416; SCRW = 16 * RS
SCR = 0; WQ = 4 * SCRW; ROLE = WQ + 30720
WO = ROLE; W1 = ROLE; W3 = ROLE + 20480; W2 = ROLE + 40960
MISC = ROLE + 61440; QB = MISC; ACC = MISC + 512
OACC = 0; YACC = 3072; FACC = 4096
PT = ACC + 5120; ML4 = PT + 1024
FLG = ML4 + 64
LDSSZ = FLG + 64
FDMA = OPT.get("fdma", "late")
OMASK = int(OPT.get("omask", 1))
WDMA = OPT.get("wdma", "mid")
PF = OPT.get("pf", "ow")
NTP = OPT.get("ntp", "x").replace("x", "")
NTR = OPT.get("ntr", "x").replace("x", "")
GB = 81920; oQ = 0; oO = 32768; oML = 45056; oYL = 45312; oFL = 46592; oBA = 47872; oBB = 49152; oFP = 51200
GOFF = 8 * GB; oYG = GOFF; oFG = GOFF + 81920; LS = 0xC8000
OOB = 0x7FFFFFF0
sK, sV, sW, sWQ, sRA, sRB, sRC, sX, sO = 8, 12, 16, 20, 24, 28, 32, 36, 40
sG, sJ, sHH, sS, sWV, sKV, sLay, sFast, sCnt = 68, 69, 70, 71, 72, 73, 74, 75, 76
sT0, sT1, sT2 = 77, 78, 79
sLG = 3
sClr = 4
sXcc = 5
sTL = 6
sT3 = 7
sYg, sYl = 80, 81
sMf = 44
def sr(b): return f"s[{b}:{b+3}]"
def sp(b): return f"s[{b}:{b+1}]"
def vr(b, n=4): return f"v[{b}:{b+n-1}]" if n > 1 else f"v{b}"
def ar(b, n=4): return f"a[{b}:{b+n-1}]"
def srd(d, lo, nbytes):
    e(f"s_mov_b32 s{d}, s{lo}"); e(f"s_and_b32 s{d+1}, s{lo+1}, 0xffff")
    e(f"s_mov_b32 s{d+2}, {nbytes}"); e(f"s_mov_b32 s{d+3}, 0x20000")
MASKS = {}
def setexec(mask):
    if mask in MASKS: e(f"s_mov_b64 exec, {sp(MASKS[mask])}"); return
    lo, hi = mask & 0xffffffff, mask >> 32
    if mask == (1 << 64) - 1: e("s_mov_b64 exec, -1")
    elif hi == 0 and lo <= 64: e(f"s_mov_b64 exec, {lo}")
    else: e(f"s_mov_b32 exec_lo, {lo:#x}"); e(f"s_mov_b32 exec_hi, {hi:#x}")
FULL = (1 << 64) - 1
ROWS9 = 0x01FF01FF01FF01FF
vL, vLin, vWr, vKrd, vVrd, vCS, vAq, vAq16, vQst, vQld, vQBw, vQBr, vIdx, vAcc, vTq1, vTq2, vSC, vPw = 0, 1, 2, 5, 6, 7, 8, 9, 10, 11, 12, 13, 14, 15, 16, 17, 18, 19
vC1, vC2, vXR = 20, 21, 22
T = 24
F = 40
SPARE = 88
def vblock(b):
    if b < 2: return ("a", 192 + 24 * b)
    if b == 8: return ("v", SPARE)
    return ("v", 112 + 24 * (b - 2))
def rg(f, b, n): return f"{f}[{b}:{b+n-1}]"

uid = [0]
def nid(): uid[0] += 1; return uid[0]
stamps = [0]
SPINAT = int(OPT.get("spinat", -1))
DA, DB, DC = int(OPT.get("da", -1)), int(OPT.get("db", -1)), int(OPT.get("dc", 0))
JIT = int(OPT.get("jit", 0))
def jitter(mask, prob):
    k = nid()
    e("s_cselect_b32 s98, 1, 0")
    e("s_memtime s[100:101]"); e("s_waitcnt lgkmcnt(0)"); e("s_mul_i32 s100, s100, 0x9e3779b1"); e("s_lshr_b32 s99, s100, 24"); e(f"s_cmp_ge_u32 s99, {prob}"); e(f"s_cbranch_scc1 JX{k}")
    e("s_lshr_b32 s99, s100, 12"); e(f"s_and_b32 s99, s99, {mask}")
    lab(f"JL{k}"); e("s_sleep 4"); e("s_sub_u32 s99, s99, 1"); e("s_cmp_ge_i32 s99, 0"); e(f"s_cbranch_scc1 JL{k}")
    lab(f"JX{k}"); e("s_cmp_eq_u32 s98, 1")
def stamp(i, val=None):
    if JIT and val is None: jitter(JIT, 24); return
    if DA >= 0 and val is None and i in (DA % 16, DB % 16):
        for which, idx in (("a", DA), ("b", DB)):
            if idx % 16 != i: continue
            k = nid()
            e("s_cselect_b32 s98, 1, 0"); e(f"s_cmp_lg_u32 s{sLay}, {LS*(idx//16)}"); e(f"s_cbranch_scc1 ND{k}")
            e("s_memrealtime s[100:101]"); e("s_waitcnt lgkmcnt(0)")
            if which == "a": e("s_mov_b32 s90, s100")
            else:
                e("s_sub_u32 s100, s100, s90")
                if DC: e(f"s_sub_u32 s100, {DC}, s100"); e("s_max_i32 s100, s100, 0")
                e("s_min_u32 s100, s100, 1000"); e("s_mul_i32 s91, s100, 10")
            lab(f"ND{k}"); e("s_cmp_eq_u32 s98, 1")
    if SPIN and val is None and SPINAT % 16 == i:
        k = nid()
        e(f"s_cmp_lg_u32 s{sLay}, {LS*(SPINAT//16)}"); e(f"s_cbranch_scc1 NOSP{k}")
        e("s_memrealtime s[100:101]"); e("s_waitcnt lgkmcnt(0)"); e("v_accvgpr_write_b32 a253, s100"); lab(f"NOSP{k}")
    if not STAMP: return
    if STAMP == 3 and (val is not None or i != 7): return
    if STAMP == 5 and (val is not None or i not in (9, 11, 12, 13)): return
    if STAMP == 4 and val != "c": return
    if val == "c":
        if STAMP != 4: return
        val = None
    if STAMP == 2 and val is None and i not in (0, 14): return
    if STAMP == 1 and (val is not None or i == 14): return
    e("s_memrealtime s[100:101]"); e("v_accvgpr_write_b32 a254, v38"); e("v_accvgpr_write_b32 a255, v39")
    e(f"s_lshl_b32 s98, s2, 2"); e(f"s_add_u32 s98, s98, s{sWV}"); e("s_lshl_b32 s98, s98, 7")
    e(f"s_cmp_eq_u32 s{sLay}, 0"); e(f"s_cselect_b32 s99, 0, 64"); e(f"s_add_u32 s99, s99, {4*i}"); e("s_add_u32 s98, s98, s99"); e("s_add_u32 s98, s98, 0x40000000")
    e("s_waitcnt lgkmcnt(0)"); e(f"v_mov_b32 v38, {val or 's100'}"); e("v_mov_b32 v39, 0")
    e("s_mov_b64 s[100:101], exec"); e("s_mov_b64 exec, 1")
    A.vmem(f"buffer_store_dword v38, v39, {sr(sW)}, s98 offen", "stamp")
    e("s_mov_b64 exec, s[100:101]"); e("s_nop 1"); e("v_accvgpr_read_b32 v38, a254"); e("v_accvgpr_read_b32 v39, a255")
sWp = sK
def lstore(instr, counted=None):
    assert sr(sW) in instr and not counted
    k = nid()
    e(instr.replace(sr(sW), sr(sWp)))
    e(f"s_cmp_eq_u32 s{sWp+2}, 0"); e(f"s_cbranch_scc1 SLOW{k}")
    lab(f"BACK{k}")
    def t(): lab(f"SLOW{k}"); e(instr + " sc1"); e(f"s_branch BACK{k}")
    tail.append(t)
def check(regs_, tmp):
    r = list(regs_)
    if len(r) == 1: e(f"v_cmp_eq_u32 vcc, -1, v{r[0]}"); return
    cur = r.pop(0)
    while r:
        if len(r) >= 2: e(f"v_max3_u32 v{tmp}, v{cur}, v{r[0]}, v{r[1]}"); r = r[2:]
        else: e(f"v_max_u32 v{tmp}, v{cur}, v{r[0]}"); r = r[1:]
        cur = tmp
    e(f"v_cmp_eq_u32 vcc, -1, v{tmp}")
LIMIT = 0x8000
def poll(loads, regs_, tmp, pid=None, slp=0, first=None):
    k = nid()
    if pid is not None: stamp(pid, "s100")
    e(f"s_mov_b32 s{sCnt}, 1")
    if first:
        for l in loads: e(l)
        first(); e(f"s_branch POLLW{k}")
    lab(f"POLL{k}")
    for l in loads: e(l)
    lab(f"POLLW{k}")
    e("s_waitcnt vmcnt(0)")
    check(regs_, tmp)
    e(f"s_cbranch_vccnz AGAIN{k}")
    lab(f"POLLX{k}")
    def t():
        lab(f"AGAIN{k}")
        if slp: e(f"s_sleep {slp}")
        e(f"s_add_u32 s{sCnt}, s{sCnt}, 1"); e(f"s_cmp_lt_u32 s{sCnt}, {LIMIT}"); e(f"s_cbranch_scc1 POLL{k}"); e(f"s_branch POLLX{k}")
    near.append(t)
    if pid is not None: stamp(pid + 1, "s100"); stamp(pid + 2, f"s{sCnt}")
    A.drained()
SEL = int(OPT.get("sel", 1)); XF = " " + OPT.get("xf", "").replace("+", " "); XF1 = int(OPT.get("xf1", 0))
def poll_sel(groups, tmp, pid=None, first=None, firstloads=None, xf="", wl=None, w1=0):
    allr = [r for g in groups for r in g[1]]
    loads = firstloads or [l for g in groups for l in g[0]]
    if not SEL: return poll(loads, allr, tmp, pid=pid, first=first)
    k = nid()
    if pid is not None: stamp(pid, "s100")
    for l in loads: e(l + (xf if XF1 else ""))
    if first: first()
    if wl: lab(wl)
    if pid is not None and STAMP == 2: e(f"s_mov_b32 s{sCnt}, 1")
    e(f"s_waitcnt vmcnt({w1})")
    check(allr, tmp)
    e(f"s_cbranch_vccnz AGAIN{k}")
    lab(f"POLLX{k}")
    def t():
        lab(f"AGAIN{k}")
        e("s_mov_b64 s[94:95], exec"); e(f"s_mov_b32 s{sCnt}, 1")
        lab(f"AG2{k}")
        if int(OPT.get("osl", 0)): e(f"s_sleep {OPT['osl']}")
        for gi, (ls, rs) in enumerate(groups):
            if len(groups) > 1: check(rs, tmp)
            e("s_mov_b64 exec, vcc")
            if len(groups) > 1: e(f"s_cbranch_execz AG3{k}_{gi}")
            for l in ls: e(l + xf)
            lab(f"AG3{k}_{gi}"); e("s_mov_b64 exec, s[94:95]")
        e(f"s_add_u32 s{sCnt}, s{sCnt}, 1"); e(f"s_cmp_ge_u32 s{sCnt}, {LIMIT}")
        e("s_waitcnt vmcnt(0)")
        check(allr, tmp)
        e(f"s_cbranch_vccz POLLX{k}"); e(f"s_cbranch_scc0 AG2{k}"); e(f"s_branch POLLX{k}")
    near.append(t)
    if pid is not None: stamp(pid + 1, "s100"); stamp(pid + 2, f"s{sCnt}")
    A.drained()
near = []
def flush_near():
    while near: near.pop(0)()
GATE = int(OPT.get("gate", 1)); GDLY = int(OPT.get("gdly", 0)); ODLY = int(OPT.get("odly", 16))
def gate(sreg, nl, tmp):
    if not GATE: return
    setexec((1 << nl) - 1)
    poll([f"buffer_load_dword v{tmp}, v{vLin}, {sr(sW)}, s{sreg} offen sc1"], [tmp], tmp, slp=int(OPT.get("gsl", 0)))
    if GDLY: e(f"s_sleep {GDLY}")
def poll_nan(loads, body, res):
    k = nid()
    e(f"s_mov_b32 s{sCnt}, 1")
    lab(f"POLL{k}")
    for l in loads: e(l)
    e("s_waitcnt vmcnt(0)")
    body()
    e(f"v_cmp_u_f32 vcc, v{res}, v{res}"); e(f"s_cbranch_vccnz AGAIN{k}")
    lab(f"POLLX{k}")
    def t():
        lab(f"AGAIN{k}"); e(f"s_add_u32 s{sCnt}, s{sCnt}, 1"); e(f"s_cmp_lt_u32 s{sCnt}, {LIMIT}"); e(f"s_cbranch_scc1 POLL{k}"); e(f"s_branch POLLX{k}")
    near.append(t)
def late_check(tag, loads, regs_, tmp, pre=None, post=None):
    k = nid()
    A.wait(tag)
    check(regs_, tmp)
    e(f"s_cbranch_vccnz RETRY{k}")
    lab(f"OK{k}")
    def t():
        lab(f"RETRY{k}")
        if pre: pre()
        save = A.vm; poll(loads, regs_, tmp); A.vm = save
        if post: post()
        e(f"s_branch OK{k}")
    tail.append(t)

sTO = 82
sPo, sPw = 90, 91
vLin2 = vXR + 1
e("s_load_dwordx16 s[44:59], s[0:1], 0"); e("s_load_dwordx8 s[60:67], s[0:1], 64")
e("s_cmp_ge_u32 s2, 256"); e("s_cbranch_scc1 CODE_END")
e("s_memrealtime s[96:97]")
e("v_lshrrev_b32 v2, 6, v0"); e("v_and_b32 v24, 63, v0"); e(f"v_readfirstlane_b32 s{sWV}, v2")
e(f"s_and_b32 s{sG}, s2, 7"); e(f"s_lshr_b32 s{sJ}, s2, 3"); e(f"s_lshr_b32 s{sHH}, s{sJ}, 3"); e(f"s_and_b32 s{sS}, s{sJ}, 7")
e(f"v_lshlrev_b32 v{vLin}, 4, v24")
e(f"s_lshl_b32 s{sT0}, s{sHH}, 3"); e(f"s_add_u32 s{sT0}, s{sT0}, s{sG}")
e(f"s_mul_i32 s{sKV}, s{sT0}, 12582912"); e(f"s_lshl_b32 s{sT1}, s{sS}, 2"); e(f"s_add_u32 s{sT1}, s{sT1}, s{sWV}")
e(f"s_mul_i32 s{sT1}, s{sT1}, 6144"); e(f"s_add_u32 s{sKV}, s{sKV}, s{sT1}"); e(f"s_add_u32 s{sKV}, s{sKV}, 11010048")
e(f"v_add_u32 v{vLin2}, 4096, v{vLin}"); e(f"s_mov_b32 s{sK+2}, 402653184"); e(f"s_mov_b32 s{sK+3}, 0x20000")
e("s_getpc_b64 s[100:101]"); lab("PCREF")
e(f"s_sub_u32 s100, s100, PCREF-{NAME}_kernel"); e("s_subb_u32 s101, s101, 0")
e(f"s_lshl_b32 s{sT1}, s{sS}, 12"); e(f"v_lshl_add_u32 v25, v0, 4, s{sT1}")
e(f"v_cmp_gt_u32 vcc, CODE_END-{NAME}_kernel-16, v25"); e("s_and_saveexec_b64 s[98:99], vcc"); e("s_cbranch_execz NOCPF")
e(f"global_load_dwordx4 a[240:243], v25, s[100:101]")
lab("NOCPF"); e("s_mov_b64 exec, -1")
e(f"s_mul_i32 s{sT2}, s{sT0}, 384")
e(f"s_mov_b32 s{sLay}, 0"); e(f"s_mul_i32 s{sLG}, s{sG}, {GB}"); e(f"s_getreg_b32 s{sFast}, hwreg(HW_REG_XCC_ID, 0, 4)")
e(f"s_lshl_b32 s{sT0}, s{sJ}, 9"); e(f"s_add_u32 s{sT0}, s{sT0}, s{sLG}"); e(f"s_add_u32 s{sT0}, s{sT0}, {oO}"); e(f"v_add_u32 v{vC1}, s{sT0}, v{vLin}")
e(f"s_lshl_b32 s{sT0}, s{sG}, 2"); e(f"s_add_u32 s{sT0}, s{sT0}, s{sJ}"); e(f"s_mul_i32 s{sT0}, s{sT0}, 320"); e(f"s_add_u32 s{sT0}, s{sT0}, {oYG-512}"); e(f"v_add_u32 v25, s{sT0}, v{vLin}")
e("v_cmp_le_u32 vcc, 32, v0"); e(f"v_cndmask_b32 v{vC2}, v{vC1}, v25, vcc"); e(f"v_mov_b32 v25, {OOB}"); e(f"v_cndmask_b32 v{vC1}, v{vC1}, v25, vcc")
e(f"s_cmp_lt_u32 s{sJ}, 4"); e(f"s_cselect_b32 s{sT0}, 52, 32"); e(f"v_cmp_le_u32 vcc, s{sT0}, v0"); e(f"v_cndmask_b32 v{vC2}, v{vC2}, v25, vcc")
e(f"s_mov_b32 s{sW+2}, 1610612736"); e(f"s_mov_b32 s{sW+3}, 0x20000")
e("s_waitcnt lgkmcnt(0)")
e(f"s_mov_b32 s{sK}, s46"); e(f"s_and_b32 s{sK+1}, s47, 0xffff"); e(f"s_mov_b32 s{sW}, s66"); e(f"s_and_b32 s{sW+1}, s67, 0xffff")
if SPIN: e("v_mov_b32 v38, s96"); e("v_accvgpr_write_b32 a253, v38")
SPM = OPT.get("spm", "")
RW = int(OPT.get("rw", 16)); RF = (320 - 20 * RW) // 12
assert 20 * RW + 12 * RF == 320
NPW = -(-max(RW, RF) * 24 // 64)
pend = []
def q_tile(srdn, t, f, base, tag):
    so = sKV if t == 0 else sTO + t
    for i in range(6):
        pend.append((f"buffer_load_dwordx4 {rg(f, base+4*i, 4)}, v{vLin if i < 4 else vLin2}, {sr(srdn)}, s{so} offen offset:{1024*(i%4)} {NT}", tag))
def qK(t): q_tile(sK, t, "a", 24 * t, f"K{t}")
def qV(t): f, b = vblock(t + 1); q_tile(sV, t, f, b, f"V{t}")
def q_pfo():
    for n in range(9): pend.append((f"buffer_load_dwordx4 a[240:243], v{[vLin, vLin, vLin2, 108, 109][n//2]}, {sr(sWQ)}, s{sPo} offen offset:{1024*(n%4)} {NTP}", "pfo"))
def q_pfw():
    for n in range(NPW): pend.append((f"buffer_load_dwordx4 a[240:243], v{101+n}, {sr(sX)}, s{sPw} offen {NTP}", "pfw"))
nfill = [0]; BARN = int(OPT.get("barn", 6)); THR = int(OPT.get("thr", 0)); THRE = int(OPT.get("thre", 0)); THS = int(OPT.get("ths", 20)); THP = int(OPT.get("thp", 1))
hold = {"V7", "pfw", "pfo"}; LA = int(OPT.get("la", 12))
def ahead(tag, LA=LA):
    while tag in A.vm and pend and pend[0][1] not in hold and len(A.vm) - 1 - max(i for i, x in enumerate(A.vm) if x == tag) < LA: fill()
def fill(n=1):
    for _ in range(n):
        if pend and not (pend[0][1] in hold):
            if THR and nfill[0] >= THS and len(pend) > THRE:
                k = nid(); e(f"s_bitcmp{THP}_b32 s{sFast}, 0"); e(f"s_cbranch_scc1 TH{k}"); e(f"s_waitcnt vmcnt({THR-1})"); lab(f"TH{k}")
            x, tag = pend.pop(0); A.vmem(x, tag); nfill[0] += 1
            if BARN and nfill[0] > 12 and nfill[0] % BARN == 0 and len(pend) >= 3: e("s_barrier")
BARS = OPT.get("bar", "").split(",")
def upto(tag):
    while any(t == tag for _, t in pend): fill()
    if tag in BARS or "every" in BARS and tag not in ("K0", "K1", "V7"): e("s_barrier")
def Kld(t): upto(f"K{t}")
def Vld(t): upto(f"V{t}")
for it in OPT.get("order", "K0 K1 K2 K3 w K4 K5 K6 K7 V0 V1 V2 V3 V4 V5 V6 V7").replace(",", " ").split():
    if it == "w":
        if "pfw" not in SKIP: q_pfw()
    elif it == "o":
        if "pfo" not in SKIP: q_pfo()
    elif it[0] == "K": qK(int(it[1]))
    else: qV(int(it[1]))
if JIT: jitter(255, 16)
fill(int(OPT.get("k0e", 2)))
e(f"s_or_b32 s{sT0}, s2, s{sWV}"); e("s_cbranch_scc1 NOTAG")
e(f"s_or_b32 s{sT0}, s96, 1"); e(f"v_mov_b32 v26, s{sT0}"); setexec(1); e(f"global_store_dword v{vLin}, v26, s[64:65] sc1"); setexec(FULL)
lab("NOTAG")
if STAMP == 1: e("s_memrealtime s[94:95]")
e(f"s_add_u32 s{sTO+1}, s{sKV}, 196608")
srd(sV, 48, 402653184); srd(sWQ, 50, 7864320); srd(sX, 44, 1280); srd(sO, 62, 1280)
srd(sRB, 58, 1966080); srd(sRC, 60, 1966080)
e(f"s_cmp_lt_u32 s{sJ}, 20"); e(f"s_cselect_b32 s{sRA}, s52, s56"); e(f"s_cselect_b32 s{sRA+1}, s53, s57"); e(f"s_cselect_b32 s{sRA+2}, s{sWQ+2}, s{sRB+2}")
e(f"s_and_b32 s{sRA+1}, s{sRA+1}, 0xffff"); e(f"s_mov_b32 s{sRA+3}, 0x20000")
TLBW = OPT.get("tlbw", "")
def tlb_touch():
    e(f"s_cmp_lg_u32 s{sWV}, 3"); e("s_cbranch_scc1 NOTLB")
    if "j" in TLBW: e(f"s_cmp_lg_u32 s{sS}, 0"); e("s_cbranch_scc1 NOTLB")
    e("v_mul_u32_u24 v26, 1376256, v24"); e("v_lshlrev_b32 v27, 20, v24")
    setexec(3)
    if "v" in TLBW: e(f"buffer_load_dword a243, v26, {sr(sV)}, s{sKV} offen nt"); e(f"buffer_load_dword a243, v26, {sr(sK)}, s{sKV} offen nt")
    if "w" in TLBW:
        e(f"global_load_dword a243, v27, s[56:57] nt"); e(f"buffer_load_dword a243, v27, {sr(sRB)}, 0 offen nt"); e(f"buffer_load_dword a243, v27, {sr(sRC)}, 0 offen nt")
        setexec(0xff); e(f"global_load_dword a243, v27, s[52:53] nt")
    setexec(FULL)
    lab("NOTLB")
if TLBW: tlb_touch()
if STAMP:
    e(f"s_lshl_b32 s98, s2, 2"); e(f"s_add_u32 s98, s98, s{sWV}"); e("s_lshl_b32 s98, s98, 7"); e("s_add_u32 s98, s98, 0x40000000")
    e("v_mov_b32 v38, s96"); e("v_mov_b32 v39, 0"); e("s_mov_b64 exec, 1")
    A.vmem(f"buffer_store_dword v38, v39, {sr(sW)}, s98 offen", "stamp")
    if STAMP == 1: e("s_waitcnt lgkmcnt(0)"); e("v_mov_b32 v37, s94"); A.vmem(f"buffer_store_dword v37, v39, {sr(sW)}, s98 offen offset:56", "stamp")
    e("s_mov_b64 exec, -1")
for t in range(2, 8): e(f"s_add_u32 s{sTO+t}, s{sTO+t-1}, 196608")
e(f"v_mov_b32 v{vL}, v24")
e(f"s_mul_i32 s{sT0}, s{sWV}, {SCRW}")
for r in range(3):
    e(f"v_add_u32 v25, {64*r}, v{vL}"); e("v_mul_u32_u24 v26, 171, v25"); e("v_lshrrev_b32 v26, 12, v26")
    e("v_mul_u32_u24 v27, 24, v26"); e("v_sub_u32 v27, v25, v27"); e("v_lshlrev_b32 v27, 4, v27")
    e(f"v_mul_u32_u24 v25, {RS}, v26"); e(f"v_add3_u32 v{vWr+r}, v25, v27, s{sT0}")
    e(f"v_mul_u32_u24 v25, 12288, v26"); e(f"v_add_u32 v{F+r}, v25, v27")
    e(f"v_mul_u32_u24 v25, 3072, v26"); e(f"v_add_u32 v{101+r}, v25, v27")
assert all((c * 171) >> 12 == c // 24 for c in range(192))
e(f"v_and_b32 v25, 15, v{vL}"); e(f"v_lshrrev_b32 v26, 4, v{vL}")
e(f"v_bfe_u32 v27, v{vL}, 2, 2"); e(f"v_and_b32 v28, 3, v{vL}")
e(f"s_mul_i32 s{sT1}, s{sS}, 160")
e(f"v_lshlrev_b32 v36, 4, v26"); e(f"v_lshlrev_b32 v37, 3, v26"); e(f"v_lshlrev_b32 v39, 2, v{vL}")
A.vmem(f"buffer_load_dwordx4 v[70:73], v36, {sr(sX)}, s{sT1} offen", "x")
A.vmem(f"buffer_load_dwordx4 v[74:77], v36, {sr(sX)}, s{sT1} offen offset:64", "x")
A.vmem(f"buffer_load_dwordx2 v[78:79], v37, {sr(sX)}, s{sT1} offen offset:128", "x")
A.vmem(f"buffer_load_dwordx4 v[80:83], v{vLin}, {sr(sX)}, 0 offen", "x")
A.vmem(f"buffer_load_dword v84, v39, {sr(sX)}, 0 offen offset:1024", "x")
e(f"s_lshl_b32 s{sT3}, s{sJ}, 6"); e(f"v_lshlrev_b32 v38, 2, v25")
A.vmem(f"buffer_load_dword v{vXR}, v38, {sr(sX)}, s{sT3} offen", "x")
e(f"s_mul_i32 s{sT1}, s{sS}, {80*12288}"); e(f"s_add_u32 s{sT2}, s{sT2}, s{sT1}")
e(f"s_mul_i32 s{sT1}, s{sWV}, {8*12288}"); e(f"s_add_u32 s{sT2}, s{sT2}, s{sT1}")
e(f"s_mul_i32 s{sT1}, s{sWV}, 3072"); e(f"s_add_u32 s{sT1}, s{sT1}, {WQ}")
for gi in range(3):
    if gi == 2: e(f"s_cmp_ge_u32 s{sWV}, 2"); e("s_cbranch_scc1 NOWQ3")
    for r in range(3):
        e(f"s_add_u32 m0, s{sT1}, {gi*4*3072 + r*1024}")
        if "wq" not in SKIP: A.vmem(f"buffer_load_dwordx4 v{F+r}, {sr(sWQ)}, s{sT2} offen {NTW} lds", "wq", counted=(gi < 2))
    if gi < 2: e(f"s_add_u32 s{sT2}, s{sT2}, {32*12288}")
lab("NOWQ3")
e(f"s_mul_i32 s{sT1}, s{sS}, 160")
srd(sWQ, 52, 7864320)
e(f"s_cmp_lt_u32 s{sWV}, 2"); e(f"s_cselect_b32 s{sX}, s56, s58"); e(f"s_cselect_b32 s{sX+1}, s57, s59"); e(f"s_and_b32 s{sX+1}, s{sX+1}, 0xffff"); e(f"s_mov_b32 s{sX+2}, 1966080")
e(f"s_lshl_b32 s{sPo}, s{sHH}, 3"); e(f"s_add_u32 s{sPo}, s{sPo}, s{sG}"); e(f"s_lshl_b32 s{sPo}, s{sPo}, 3"); e(f"s_add_u32 s{sPo}, s{sPo}, s{sS}")
e(f"s_mul_i32 s{sPo}, s{sPo}, 30720"); e(f"s_mul_i32 s{sT2}, s{sWV}, 6144"); e(f"s_add_u32 s{sPo}, s{sPo}, s{sT2}")
e(f"s_cmp_eq_u32 s{sWV}, 3"); e(f"s_cselect_b32 s{sT2}, 3072, 0"); e(f"s_add_u32 s{sPo}, s{sPo}, s{sT2}")
e(f"s_cmp_lt_u32 s{sWV}, 2"); e(f"s_cselect_b32 s{sT2}, {OOB-0x10000000}, 0"); e(f"v_add_u32 v108, s{sT2}, v{vLin2}"); e(f"v_add_u32 v109, 4096, v108")
e(f"s_and_b32 s{sPw}, s{sWV}, 1"); e(f"s_lshl_b32 s{sT2}, s{sJ}, 1"); e(f"s_add_u32 s{sPw}, s{sPw}, s{sT2}")
e(f"s_mul_i32 s{sT2}, s{sPw}, {RF}"); e(f"s_add_u32 s{sT2}, s{sT2}, {40*(RW-RF)}"); e(f"s_mul_i32 s{sPw}, s{sPw}, {RW}")
e(f"s_cmp_lt_u32 s{sJ}, 20"); e(f"s_cselect_b32 s{sPw}, s{sPw}, s{sT2}"); e(f"s_mov_b32 s{sT3}, {RW*3072}"); e(f"s_cselect_b32 s{sT3}, s{sT3}, {RF*3072}")
e(f"s_mul_i32 s{sPw}, s{sPw}, 3072"); e(f"s_mul_i32 s{sT2}, s{sG}, 384"); e(f"s_add_u32 s{sPw}, s{sPw}, s{sT2}")
e(f"v_mov_b32 v29, {OOB-0x10000000}")
for n in range(3, NPW): e(f"v_add_u32 v{101+n}, {8*3072}, v{98+n}")
for n in range(NPW): e(f"v_cmp_gt_u32 vcc, s{sT3}, v{101+n}"); e(f"v_cndmask_b32 v{101+n}, v29, v{101+n}, vcc")
hold -= {"pfw", "pfo"}
fill(3)
e(f"v_mul_u32_u24 v29, {RS}, v25"); e(f"v_lshl_add_u32 v29, v26, 4, v29"); e(f"v_add_u32 v{vKrd}, s{sT0}, v29")
e(f"v_lshrrev_b32 v29, 2, v{vL}"); e(f"v_mul_u32_u24 v29, {RS}, v29"); e(f"v_lshl_add_u32 v29, v28, 3, v29"); e(f"v_add_u32 v{vVrd}, s{sT0}, v29")
e(f"s_mul_i32 s{sT2}, s{sWV}, 96"); e(f"s_add_u32 s{sT2}, s{sT2}, {WQ}")
e("v_lshl_add_u32 v29, v26, 3, v27"); e("v_mul_u32_u24 v29, 384, v29"); e("v_lshl_add_u32 v29, v28, 3, v29"); e(f"v_add_u32 v{vTq1}, s{sT2}, v29")
e("v_lshl_add_u32 v29, v26, 2, v27"); e("v_mul_u32_u24 v29, 384, v29"); e("v_lshl_add_u32 v29, v28, 3, v29"); e(f"v_add_u32 v{vTq2}, s{sT2}, v29")
REPL = int(OPT.get("repl", 1))
def rowbase(dst, m, og, ol, ob, tmp):
    e(f"s_mul_i32 s{sT3}, s{sG}, {10240 if REPL else 0}")
    if og == oYG: e(f"s_cmp_eq_u32 s{sLay}, 0"); e(f"s_cselect_b32 s{sT3}, 0, s{sT3}")
    e(f"s_add_u32 s{sT3}, s{sT3}, {og}")
    e(f"v_mul_u32_u24 v{dst}, 1280, v{m}"); e(f"v_add_u32 v{dst}, s{sT3}, v{dst}")
    e(f"s_mul_i32 s{sT3}, s{sG}, {GB}"); e(f"s_add_u32 s{sT3}, s{sT3}, {ol}"); e(f"v_mov_b32 v{tmp}, s{sT3}")
    e(f"v_cmp_eq_u32 vcc, s{sG}, v{m}"); e(f"v_cndmask_b32 v{dst}, v{dst}, v{tmp}, vcc")
    if ob is not None:
        e(f"v_add_u32 v{tmp}, {ob-ol}, v{tmp}"); e(f"v_cmp_le_u32 vcc, 8, v{m}"); e(f"v_cndmask_b32 v{dst}, v{dst}, v{tmp}, vcc")
fill()
e(f"v_mul_u32_u24 v31, 103, v{vL}"); e("v_lshrrev_b32 v31, 10, v31")
e(f"v_mul_u32_u24 v30, 10, v31"); e(f"v_sub_u32 v30, v{vL}, v30"); e(f"v_lshl_add_u32 v29, v30, 4, s{sT1}")
rowbase(vAq, 31, oFG, oFL, oBB, 30); e(f"v_add_u32 v{vAq}, v{vAq}, v29")
e("v_add_u32 v31, 6, v31"); rowbase(vAq16, 31, oFG, oFL, oBB, 30); e(f"v_add_u32 v{vAq16}, v{vAq16}, v29")
e(f"v_mov_b32 v30, {OOB}"); e(f"v_cmp_le_u32 vcc, 30, v{vL}"); e(f"v_cndmask_b32 v{vAq16}, v{vAq16}, v30, vcc")
assert all((c * 103) >> 10 == c // 10 for c in range(64))
e(f"s_lshl_b32 s{sT1}, s{sJ}, 10"); e(f"s_lshl_b32 s{sT2}, s{sWV}, 8"); e(f"s_add_u32 s{sT1}, s{sT1}, s{sT2}")
e(f"v_lshl_add_u32 v{vQst}, v{vL}, 2, s{sT1}")
e(f"s_lshl_b32 s{sT1}, s{sHH}, 13"); e(f"s_add_u32 s{sT1}, s{sT1}, s{sT2}")
e(f"v_lshlrev_b32 v29, 10, v26"); e(f"v_lshl_add_u32 v29, v25, 4, v29"); e(f"v_add_u32 v{vQld}, s{sT1}, v29")
fill()
e(f"s_mul_i32 s{sT1}, s{sWV}, 96"); e(f"s_add_u32 s{sT1}, s{sT1}, {QB}")
e(f"v_lshl_add_u32 v29, v27, 5, s{sT1}"); e("v_lshl_add_u32 v29, v28, 2, v29"); e("v_lshrrev_b32 v30, 1, v26"); e("v_lshl_add_u32 v29, v30, 4, v29")
e("v_and_b32 v30, 1, v26"); e("v_lshl_add_u32 v29, v30, 1, v29"); e(f"v_mov_b32 v30, {QB+384}")
e("v_cmp_le_u32 vcc, 12, v25"); e(f"v_cndmask_b32 v{vQBw}, v29, v30, vcc")
e(f"v_and_b32 v30, 1, v{vL}"); e(f"v_lshlrev_b32 v29, 5, v26"); e("v_lshl_add_u32 v29, v30, 4, v29"); e(f"v_add_u32 v{vQBr}, {QB}, v29")
e("v_mul_u32_u24 v30, 0xaaaa, v30"); e("v_and_b32 v29, 1, v27"); e("v_mul_u32_u24 v29, 0xaaaa, v29"); e("v_lshl_or_b32 v29, v29, 16, v30"); e(f"v_add_u32 v{vIdx}, 0x44444444, v29")
fill()
e(f"s_lshl_b32 s{sT1}, s{sWV}, 8"); e(f"s_add_u32 s{sT1}, s{sT1}, {PT}")
e(f"v_lshrrev_b32 v29, 5, v{vL}"); e(f"v_lshl_add_u32 v29, v29, 6, s{sT1}")
for bit, sh in ((3, 5), (1, 4), (2, 3), (4, 2), (0, 1)): e(f"v_bfe_u32 v30, v{vL}, {bit}, 1"); e(f"v_lshl_add_u32 v29, v30, {sh}, v29")
e(f"v_mov_b32 v{vPw}, v29")
e(f"v_bfe_u32 v29, v{vL}, 4, 1"); e(f"v_bfe_u32 v30, v{vL}, 2, 1"); e(f"v_lshl_add_u32 v29, v29, 5, s{sT1}"); e("v_lshl_add_u32 v29, v30, 4, v29"); e("v_accvgpr_write_b32 a252, v29")
e(f"s_mul_i32 s{sT1}, s{sWV}, 768"); e(f"s_add_u32 s{sT1}, s{sT1}, {ACC}"); e(f"v_lshl_add_u32 v29, v25, 2, s{sT1}")
e(f"v_bfe_u32 v30, v{vL}, 4, 1"); e("v_lshl_add_u32 v29, v30, 7, v29"); e(f"v_lshrrev_b32 v30, 5, v{vL}"); e(f"v_lshl_add_u32 v{vAcc}, v30, 6, v29")

def Krel(t):
    upto(f"K{t}"); ahead(f"K{t}"); A.wait(f"K{t}")
    if "rel" in SKIP: return
    for i in range(6): e(f"ds_write_b128 v{vWr+i%3}, {ar(24*t+4*i)} offset:{(i//3)*8*RS}")
    for ks in range(6): e(f"ds_read_b128 {ar(24*t+4*ks)}, v{vKrd} offset:{64*ks}")
def Vrel(t):
    upto(f"V{t}"); ahead(f"V{t}"); A.wait(f"V{t}")
    if "rel" in SKIP: return
    f, b = vblock(t + 1)
    for i in range(6): e(f"ds_write_b128 v{vWr+i%3}, {rg(f, b+4*i, 4)} offset:{(i//3)*8*RS}")
    f, b = vblock(t & ~1)
    for dt in range(12): e(f"ds_read_b64_tr_b16 {rg(f, b+4*dt+2*(t&1), 2)}, v{vVrd} offset:{32*dt}")
def wq_frags():
    for t in range(3):
        b = F + 10 * t
        for kk in range(2):
            for h in range(2): e(f"ds_read_b64_tr_b16 {vr(b+4*kk+2*h,2)}, v{vTq1} offset:{(32*kk+4*h)*384+32*t}")
        e(f"ds_read_b64_tr_b16 {vr(b+8,2)}, v{vTq2} offset:{64*384+32*t}")
def qstage(a, soff, tag=None, waits=False, fl=0):
    def mm(t, kk):
        n = 4 if kk < 2 else 2
        bb = vr(F + 10 * t + 4 * kk, n) if t < 3 else vr(a + 4 * kk, n)
        c = "0" if kk == 0 else vr(T + 4 * t)
        e(f"v_mfma_f32_16x16x{32 if kk<2 else 16}_bf16 {vr(T+4*t)}, {vr(a+4*kk,n)}, {bb}, {c}")
    def s4(t): return [f"v_add_f32 v{T+4*t}, v{T+4*t}, v{T+4*t+1}", f"v_add_f32 v{T+4*t+2}, v{T+4*t+2}, v{T+4*t+3}", f"v_add_f32 v{T+4*t}, v{T+4*t}, v{T+4*t+2}"]
    if waits: e("s_waitcnt lgkmcnt(2)")
    mm(0, 0); mm(2, 0)
    if waits: e("s_waitcnt lgkmcnt(0)")
    mm(0, 1); mm(2, 1); mm(0, 2); mm(2, 2)
    mm(1, 0); mm(3, 0); mm(1, 1); mm(3, 1); mm(1, 2); mm(3, 2)
    fill(fl)
    for x in s4(0) + s4(2): e(x)
    e(f"v_permlane32_swap_b32 v{T}, v{T+8}")
    x1, x3 = s4(1), s4(3)
    for x in x1[:2] + x3[:2] + [f"v_add_f32 v{T}, v{T}, v{T+8}"] + x1[2:] + x3[2:]: e(x)
    e(f"v_permlane32_swap_b32 v{T+4}, v{T+12}"); e(f"v_add_f32 v{T+4}, v{T+4}, v{T+12}")
    e(f"v_permlane16_swap_b32 v{T}, v{T+4}"); e(f"v_add_f32 v{T}, v{T}, v{T+4}")
    if tag and "qst" in SKIP: pass
    elif tag:
        for q in (1, 2, 3): e(f"v_mov_b32_dpp v{T+q}, v{T} quad_perm:[{q},{q},{q},{q}] row_mask:0xf bank_mask:0xf")
        setexec(0x1111111111111111); A.vmem(f"buffer_store_dwordx4 {vr(T)}, v{vQst}, {sr(sW)}, {soff} offen {'' if 'qplain' in SKIP else 'sc1'}", tag); setexec(FULL)
    else: lstore(f"buffer_store_dword v{T}, v{vQst}, {sr(sW)}, {soff} offen")
def xreduce(r0, r1, r2, r3):
    e(f"v_permlane32_swap_b32 v{r0}, v{r2}"); e(f"v_permlane32_swap_b32 v{r1}, v{r3}")
    e(f"v_add_f32 v{r0}, v{r0}, v{r2}"); e(f"v_add_f32 v{r1}, v{r1}, v{r3}")
    e(f"v_permlane16_swap_b32 v{r0}, v{r1}"); e(f"v_add_f32 v{r0}, v{r0}, v{r1}")
def qloads(b, s0, s1): return [f"buffer_load_dwordx4 {vr(b)}, v{vQld}, {sr(sW)}, {s0} offen sc1", f"buffer_load_dwordx4 {vr(b+4)}, v{vQld}, {sr(sW)}, {s1} offen sc1"]
def qsum(b):
    for q in range(4): e(f"v_add_f32 v{b+q}, v{b+q}, v{b+4+q}")
    xreduce(b, b + 1, b + 2, b + 3)
def rowred(op, v, tmp, steps):
    for sft in steps: e(f"v_{op}_f32_dpp v{v}, v{v}, v{v} row_ror:{sft} row_mask:0xf bank_mask:0xf")
def xrow(op, v, tmp, both=True):
    if both:
        e(f"v_mov_b32 v{tmp}, v{v}"); e(f"v_permlane32_swap_b32 v{v}, v{tmp}"); e(f"v_{op}_f32 v{v}, v{v}, v{tmp}")
    e(f"v_mov_b32 v{tmp}, v{v}"); e(f"v_permlane16_swap_b32 v{v}, v{tmp}"); e(f"v_{op}_f32 v{v}, v{v}, v{tmp}")
QF = 28; DQ = 40; PA = 72; X = 24; vM = 26
def att_zero():
    for t in range(8): e(f"v_mov_b32 v{DQ+4*t}, 0"); e(f"v_mov_b32 v{DQ+4*t+1}, 0")
    for q in range(16): e(f"v_mov_b32 v{PA+q}, 0")
def q_finish(b, mid=None):
    e(f"v_readlane_b32 s{sT0}, v{b}, 15")
    e(f"s_mov_b32 vcc_lo, 0x70007000"); e(f"s_mov_b32 vcc_hi, 0x70007000")
    e(f"v_fma_f32 v{b+1}, -s{sT0}, v{vCS}, v{b}")
    e(f"v_cvt_pk_bf16_f32 v{b+1}, v{b+1}, v{b+1}")
    e(f"ds_write_b16 v{vQBw}, v{b+1}")
    e(f"v_cndmask_b32 v{b+2}, 0, v{b}, vcc")
    e(f"v_add_f32_dpp v{b+2}, v{b+2}, v{b+2} quad_perm:[1,0,3,2] row_mask:0xf bank_mask:0xf")
    e(f"v_add_f32_dpp v{b+2}, v{b+2}, v{b+2} quad_perm:[2,3,0,1] row_mask:0xf bank_mask:0xf")
    e(f"v_mov_b32 v{b+3}, v{b+2}"); e(f"v_permlane32_swap_b32 v{b+2}, v{b+3}"); e(f"v_add_f32 v{b+2}, v{b+2}, v{b+3}")
    if mid: mid()
    else: e("s_waitcnt lgkmcnt(0)"); e("s_barrier")
    for ks in range(3): e(f"ds_read_b128 {vr(QF+4*ks)}, v{vQBr} offset:{128*ks}")
    e(f"v_mov_b32 v{b+3}, v{b+2}"); e(f"v_mov_b32 v{b+1}, s{sT0}"); e(f"v_subrev_f32 v{b+1}, 0x44200000, v{b+1}")
    e(f"v_permlane16_swap_b32 v{b+2}, v{b+3}"); e(f"v_add_f32 v{b+2}, v{b+2}, v{b+3}")
    e(f"v_mul_f32 v{b}, 0x3acccccd, v{b+1}")
    e(f"v_readlane_b32 s{sT0}, v{b+2}, 15")
    e(f"v_mul_f32 v{b}, v{b}, v{b}"); e(f"s_mov_b32 s{sT1}, 0x3acccccd")
    e(f"v_sub_f32 v{b+2}, s{sT0}, v{b+1}")
    e(f"v_fma_f32 v{b+2}, v{b+2}, s{sT1}, -v{b}"); e(f"v_max_f32 v{b+2}, 0, v{b+2}"); e(f"v_add_f32 v{b+2}, 0x3727c5ac, v{b+2}")
    e(f"v_rsq_f32 v{b+2}, v{b+2}"); e(f"v_mul_f32 v{vSC}, 0x3dd53b94, v{b+2}")
def qk_softmax(fl=0):
    def fold(t): e(f"v_add_f32_dpp v{X+t//4}, v{DQ+4*t}, v{DQ+4*t+1} quad_perm:[0,1,2,3] row_mask:{1<<(t%4):#x} bank_mask:0xf")
    def mm(t, ks): e(f"v_smfmac_f32_16x16x64_bf16 {vr(DQ+4*t)}, {vr(QF+4*ks)}, {ar(24*t+8*ks, 8)}, v{vIdx}")
    for ks in range(3):
        e(f"s_waitcnt lgkmcnt({2-ks})")
        for t in range(8): mm(t, ks)
        if ks != 1: fill(fl)
    S = lambda t: X + t // 4 if t % 4 == 0 else DQ + 4 * t
    for t in range(8):
        e(f"v_add_f32 v{S(t)}, v{DQ+4*t}, v{DQ+4*t+1}")
        if t == 2: e(f"v_max3_f32 v{vM}, v{S(0)}, v{S(1)}, v{S(2)}")
        if t in (4, 6): e(f"v_max3_f32 v{vM}, v{vM}, v{S(t-1)}, v{S(t)}")
    e(f"v_max_f32 v{vM}, v{vM}, v{S(7)}")
    mv = [f"v_mov_b32_dpp v{X+t//4}, v{S(t)} quad_perm:[0,1,2,3] row_mask:{1<<(t%4):#x} bank_mask:0xf" for t in (1, 5, 2, 6, 3, 7)] + ["v_accvgpr_read_b32 v27, a252", "s_nop 0"]
    for sft in (8, 4, 2, 1):
        e(mv.pop(0)); e(mv.pop(0)); e(f"v_max_f32_dpp v{vM}, v{vM}, v{vM} row_ror:{sft} row_mask:0xf bank_mask:0xf")
    fill(fl)
    e(f"v_mul_f32 v{vM}, v{vM}, v{vSC}")
    for q in range(2): e(f"v_fma_f32 v{X+q}, v{X+q}, v{vSC}, -v{vM}")
    for q in range(2): e(f"v_exp_f32 v{X+q}, v{X+q}")
    e(f"v_cvt_pk_bf16_f32 v28, v{X}, v{X+1}")
    e(f"ds_write_b16 v{vPw}, v28"); e(f"ds_write_b16_d16_hi v{vPw}, v28 offset:128")
    setexec(0xFF00FF0000FF00FF)
    for u in range(4): e(f"ds_read_b128 {vr(PA+4*u)}, v27 offset:{64*u}")
    setexec(FULL)
    e(f"v_add_f32 v27, v{X}, v{X+1}")
    z = [f"v_mov_b32 v{F+4*dp}, 0" for dp in range(6)] + [f"s_lshl_b32 s{sT1}, s{sWV}, 3", f"s_add_u32 s{sT1}, s{sT1}, {ML4}"]
    for sft in (8, 4, 2, 1):
        e(z.pop(0)); e(z.pop(0)); e(f"v_add_f32_dpp v27, v27, v27 row_ror:{sft} row_mask:0xf bank_mask:0xf")
    xrow("add", 27, 28)
    e(f"v_mov_b32 v28, s{sT1}"); e(f"ds_write_b64 v28, v[26:27]")
def pv_step(u, order=range(6)):
    f, b = vblock(2 * u)
    for dp in order: e(f"v_smfmac_f32_16x16x64_bf16 {vr(F+4*dp)}, {vr(PA+4*u)}, {rg(f, b+8*dp, 8)}, v{vIdx} abid:1")
def pv_post():
    for q in range(3): e(f"v_permlane16_swap_b32 v{F+8*q}, v{F+8*q+4}"); e(f"v_add_f32 v{F+8*q}, v{F+8*q}, v{F+8*q+4}"); e(f"ds_write_b32 v{vAcc}, v{F+8*q} offset:{OACC+256*q}")

WT = [int(x) for x in OPT.get("wt", "2,3,3,0,4").split(",")]
assert sum(WT) == 12
sDo, sDm = 66, 67
ROT = int(OPT.get("rot", 0)); nwd = [0]
def wdma(n, tag=None):
    if "wo" in SKIP: return
    for _ in range(n):
        if ROT and nwd[0] == 6:
            e(f"s_bitcmp1_b32 s{sJ}, 0"); e(f"s_cselect_b32 s{sT1}, 12288, 0"); e(f"s_sub_u32 s{sDm}, s{sDm}, s{sT1}"); e(f"s_mul_i32 s{sT1}, s{sT1}, 20"); e(f"s_sub_u32 s{sDo}, s{sDo}, s{sT1}")
        nwd[0] += 1
        e(f"s_mov_b32 m0, s{sDm}"); e(f"s_add_u32 s{sDm}, s{sDm}, 1024")
        A.vmem(f"buffer_load_dwordx4 v39, {sr(sRA)}, s{sDo} offen {NTR} lds", tag, counted=tag is not None)
        e(f"s_add_u32 s{sDo}, s{sDo}, {16*1280}")
def wdma_addr():
    e(f"v_lshrrev_b32 v38, 2, v{vL}"); e("v_mul_u32_u24 v38, 1280, v38"); e(f"v_and_b32 v39, 3, v{vL}"); e("v_lshl_add_u32 v39, v39, 4, v38")
def role_dma():
    if "dma" in SKIP: return
    e(f"s_cmp_ge_u32 s{sJ}, 20"); e("s_cbranch_scc1 DMAF")
    e(f"s_lshl_b32 s{sDo}, s{sWV}, 3"); e(f"s_add_u32 s{sDo}, s{sDo}, s{sG}"); e(f"s_mul_i32 s{sDo}, s{sDo}, {192*1280}"); e(f"s_lshl_b32 s{sT1}, s{sJ}, 6"); e(f"s_add_u32 s{sDo}, s{sDo}, s{sT1}")
    e(f"s_mul_i32 s{sDm}, s{sWV}, 12288"); e(f"s_add_u32 s{sDm}, s{sDm}, {WO}")
    if ROT: e(f"s_bitcmp1_b32 s{sJ}, 0"); e(f"s_cselect_b32 s{sT1}, 6144, 0"); e(f"s_add_u32 s{sDm}, s{sDm}, s{sT1}"); e(f"s_mul_i32 s{sT1}, s{sT1}, 20"); e(f"s_add_u32 s{sDo}, s{sDo}, s{sT1}")
    if WT[0]: wdma_addr(); wdma(WT[0])
    lab("DMAX")
    def t():
        lab("DMAF"); fdma(); e("s_branch DMAX")
    tail.append(t)
def fdma():
    if True:
        e(f"v_lshrrev_b32 v38, 1, v{vL}"); e("v_mul_u32_u24 v38, 3072, v38"); e(f"v_and_b32 v39, 1, v{vL}"); e("v_lshl_add_u32 v38, v39, 4, v38")
        e(f"s_mul_i32 s{sT2}, s{sG}, 12"); e(f"s_add_u32 s{sT2}, s{sT2}, s{sJ}"); e(f"s_sub_u32 s{sT2}, s{sT2}, 20")
        e(f"s_mul_i32 s{sT0}, s{sWV}, {160*3072}"); e(f"s_lshl_b32 s{sT1}, s{sT2}, 5"); e(f"s_add_u32 s{sT0}, s{sT0}, s{sT1}")
        e(f"s_mul_i32 s{sT1}, s{sWV}, 5120")
        for n in range(5):
            e(f"s_add_u32 m0, s{sT1}, {W1+1024*n}"); e(f"buffer_load_dwordx4 v38, {sr(sRA)}, s{sT0} offen {NTR} lds")
            e(f"s_add_u32 m0, s{sT1}, {W3+1024*n}"); e(f"buffer_load_dwordx4 v38, {sr(sRB)}, s{sT0} offen {NTR} lds")
            if n < 4: e(f"s_add_u32 s{sT0}, s{sT0}, {32*3072}")
W2P = int(OPT.get("w2p", 0))
def w2dma(tag=None):
    e(f"s_mul_i32 s{sT2}, s{sG}, 12"); e(f"s_add_u32 s{sT2}, s{sT2}, s{sJ}"); e(f"s_sub_u32 s{sT2}, s{sT2}, 20"); e(f"s_mul_i32 s97, s{sWV}, 5120")
    e(f"s_mul_i32 s96, s{sT2}, 20480"); e(f"s_add_u32 s96, s96, s97")
    for n in range(5):
        e(f"s_add_u32 m0, s97, {W2+1024*n}"); A.vmem(f"buffer_load_dwordx4 v{vLin}, {sr(sRC)}, s96 offen {NTW} lds", tag, counted=tag is not None)
        if n < 4: e(f"s_add_u32 s96, s96, 1024")
CSL = int(OPT.get("csl", 1))
def cs_store():
    e(f"s_add_u32 s{sT0}, s{sLG}, {2*LS}"); lstore(f"buffer_store_dword v{vCS}, v{vQst}, {sr(sW)}, s{sT0} offen")
def addr_block():
    e(f"v_mov_b32 v109, v{vC1}")
    e(f"v_and_b32 v25, 15, v{vL}"); e(f"v_lshrrev_b32 v26, 4, v{vL}"); e("v_add_u32 v27, 4, v26")
    rowbase(vC1, 26, oFG, oFL, None, 28); rowbase(vC2, 27, oFG, oFL, None, 28)
    e(f"s_min_u32 s{sT3}, s{sJ}, 19"); e(f"s_lshl_b32 s{sT3}, s{sT3}, 6"); e(f"v_lshl_add_u32 v25, v25, 2, s{sT3}")
    e(f"v_add_u32 v{vC1}, v{vC1}, v25"); e(f"v_add_u32 v{vC2}, v{vC2}, v25")
    fill()
    e(f"v_and_b32 v25, 15, v{vL}"); e(f"v_bfe_u32 v27, v{vL}, 2, 2"); e(f"v_and_b32 v28, 3, v{vL}")
    e(f"s_mul_i32 s{sT3}, s{sWV}, 12288"); e(f"s_add_u32 s{sT3}, s{sT3}, {WO}")
    e("v_lshl_add_u32 v29, v26, 3, v27"); e("v_lshlrev_b32 v29, 6, v29"); e("v_lshl_add_u32 v29, v28, 3, v29"); e(f"v_add_u32 v29, s{sT3}, v29"); e("v_accvgpr_write_b32 a246, v29")
    e(f"s_mul_i32 s{sT3}, s{sWV}, 3072"); e(f"s_add_u32 s{sT3}, s{sT3}, {oO}")
    e(f"v_lshl_add_u32 v29, v25, 4, s{sT3}"); e("v_lshl_add_u32 v29, v26, 7, v29"); e("v_accvgpr_write_b32 a247, v29")
    e(f"s_lshl_b32 s{sT3}, s{sWV}, 6"); e(f"s_add_u32 s{sT3}, s{sT3}, {oML}"); e("v_and_b32 v29, 1, v26"); e(f"v_lshl_add_u32 v29, v29, 5, s{sT3}"); e("v_accvgpr_write_b32 a248, v29")
    e(f"s_lshl_b32 s{sT3}, s{sWV}, 8"); e(f"s_add_u32 s{sT3}, s{sT3}, {ACC+YACC}"); e(f"v_lshl_add_u32 v29, v{vL}, 2, s{sT3}"); e("v_accvgpr_write_b32 a249, v29")
    e(f"s_lshl_b32 s{sYl}, s{sJ}, 6"); e(f"s_mul_i32 s{sYg}, s{sG}, 1280"); e(f"s_add_u32 s{sYg}, s{sYg}, s{sYl}"); e(f"s_add_u32 s{sYg}, s{sYg}, {oYG}")
    e(f"s_add_u32 s{sYl}, s{sYl}, s{sLG}"); e(f"s_add_u32 s{sYl}, s{sYl}, {oYL}")
A.wait("x")
for q in range(5): e(f"v_lshlrev_b32 v{88+2*q}, 16, v{80+q}"); e(f"v_and_b32 v{89+2*q}, 0xffff0000, v{80+q}")
e("v_add_f32 v80, v88, v89")
for q in range(2, 10): e(f"v_add_f32 v80, v80, v{88+q}")
rowred("add", 80, None, (8, 4, 2, 1)); xrow("add", 80, 81)
e("v_mul_f32 v80, 0x3acccccd, v80")
for q in range(10): e(f"v_sub_f32 v{88+q}, v{88+q}, v80")
e("v_mul_f32 v82, v88, v88")
for q in range(1, 10): e(f"v_fmac_f32 v82, v{88+q}, v{88+q}")
fill()
rowred("add", 82, None, (8, 4, 2, 1)); xrow("add", 82, 81)
e("v_mul_f32 v82, 0x3acccccd, v82"); e("v_add_f32 v82, 0x3727c5ac, v82"); e("v_rsq_f32 v82, v82")
e("s_mov_b32 vcc_lo, 0xaaaaaaaa"); e("s_mov_b32 vcc_hi, 0xaaaaaaaa"); e("v_mov_b32 v85, 0x3f803f80")
for q in range(10):
    e(f"v_lshlrev_b32 v83, 16, v{70+q}"); e(f"v_and_b32 v84, 0xffff0000, v{70+q}"); e("v_sub_f32 v83, v83, v80"); e("v_sub_f32 v84, v84, v80")
    e("v_mul_f32 v83, v83, v82"); e("v_mul_f32 v84, v84, v82"); e("v_cvt_pk_bf16_f32 v83, v83, v84"); e(f"v_cndmask_b32 v{70+q}, v83, v85, vcc")
    if q == 5: fill()
ahead("wq", int(OPT.get("lax", 6))); A.wait("wq"); e("s_barrier"); wq_frags()
tagl = "global_load_dword v98, v100, s[64:65] sc1"
e("v_mov_b32 v100, 0"); e(f"s_cmp_lg_u32 s{sWV}, 0"); e("s_cbranch_scc1 NOTL"); setexec(1); e(tagl); setexec(FULL); lab("NOTL")
fill(2)
stamp(1)
e(f"s_mul_i32 s{sT2}, s{sWV}, 96"); e(f"s_add_u32 s{sT2}, s{sT2}, {ACC}"); e(f"v_min_u32 v36, 48, v{vL}"); e(f"v_lshl_add_u32 v36, v36, 1, s{sT2}")
e(f"v_mov_b32 v37, {ACC+512}"); e(f"v_cmp_le_u32 vcc, 48, v{vL}"); e("v_cndmask_b32 v36, v36, v37, vcc"); e(f"v_add_u32 v37, {ACC}, v{vLin}")
e("s_waitcnt lgkmcnt(0)")
for kk in range(3):
    for t in range(3):
        n = 4 if kk < 2 else 2
        e(f"v_mfma_f32_16x16x{32 if kk<2 else 16}_bf16 {vr(T+4*t)}, {vr(70+4*kk,n)}, {vr(F+10*t+4*kk,n)}, " + ("0" if kk == 0 else vr(T + 4 * t)))
fill()
e(f"v_mov_b32 v{vCS}, v{T+1}")
for t in (1, 2):
    e(f"v_mov_b32_dpp v{T}, v{T+4*t} quad_perm:[0,1,2,3] row_mask:{1<<t:#x} bank_mask:0xf"); e(f"v_mov_b32_dpp v{vCS}, v{T+4*t+1} quad_perm:[0,1,2,3] row_mask:{1<<t:#x} bank_mask:0xf")
e(f"v_cvt_pk_bf16_f32 v{T}, v{T}, v{T}"); e(f"ds_write_b16 v36, v{T}")
fill(2)
e("s_waitcnt lgkmcnt(0)"); e("s_barrier")
e(f"ds_read_b128 v[28:31], v37"); e(f"s_lshl_b32 s{sT2}, s{sJ}, 9"); e(f"s_add_u32 s{sT2}, s{sT2}, s{sLG}")
e(f"s_cmp_eq_u32 s{sWV}, 0"); e(f"s_cselect_b32 exec_lo, 0xffffff, 1"); e("s_mov_b32 exec_hi, 0"); e(f"s_cselect_b32 s{sT1}, 0, {OOB-0x10000000}"); e(f"v_add_u32 v37, s{sT1}, v{vLin}")
e("s_waitcnt lgkmcnt(0)")
if "qst" not in SKIP: A.vmem(f"buffer_store_dwordx4 v[28:31], v37, {sr(sW)}, s{sT2} offen sc1", "qst")
setexec(FULL)
for q in range(4): e(f"v_mov_b32 v{32+q}, -1")
if "clr" not in SKIP: A.vmem(f"buffer_store_dwordx4 v[32:35], v{vC2}, {sr(sW)}, 0 offen sc1", "qst")
Krel(0)
ahead("qst", int(OPT.get("laq", 9)))
e(f"s_getreg_b32 s{sXcc}, hwreg(HW_REG_XCC_ID, 0, 4)")
e(f"s_cmp_lg_u32 s{sWV}, 0"); e("s_cbranch_scc1 NOHDR")
save = list(A.vm); A.wait("qst"); A.vm = save
e("v_readfirstlane_b32 s96, v98"); e("s_cmp_eq_u32 s96, 0"); e("s_cbranch_scc1 TAGLOOP"); lab("TAGOK")
def t_():
    lab("TAGLOOP"); e(f"s_mov_b32 s{sCnt}, 0"); lab("TAGL2"); e("s_sleep 8"); e(tagl); e("s_waitcnt vmcnt(0)"); e("v_readfirstlane_b32 s96, v98"); e("s_cmp_lg_u32 s96, 0"); e("s_cbranch_scc1 TAGOK")
    e(f"s_add_u32 s{sCnt}, s{sCnt}, 1"); e(f"s_cmp_lt_u32 s{sCnt}, {LIMIT}"); e("s_cbranch_scc1 TAGL2"); e("s_branch TAGOK")
tail.append(t_)
e(f"v_mov_b32 v99, s{sXcc}"); setexec(1); e(f"buffer_store_dwordx2 v[98:99], v{vLin}, {sr(sW)}, s{sT2} offen offset:384 sc1"); setexec(FULL)
lab("NOHDR")
stamp(1, "s100")
Krel(1); Krel(2)
RT = int(OPT.get("rt", 8))
DT = int(OPT.get("dt", 7))
rdy = [f"buffer_load_dwordx2 v[98:99], v100, {sr(sW)}, 0 offen offset:384 sc1"]
e(f"v_lshlrev_b32 v100, 9, v{vL}"); e(f"v_add_u32 v100, s{sLG}, v100"); e(f"v_bfe_u32 v96, v{vL}, 2, 3"); e(f"v_mul_u32_u24 v96, {GB}, v96"); e(f"v_and_b32 v97, 3, v{vL}"); e("v_lshl_add_u32 v96, v97, 9, v96")
e(f"v_cmp_le_u32 vcc, 32, v{vL}"); e("v_cndmask_b32 v100, v100, v96, vcc"); e(f"s_cmp_eq_u32 s{sWV}, 0"); e(f"s_cselect_b32 s{sT0}, 0, {OOB-0x10000000}"); e(f"v_add_u32 v100, s{sT0}, v100")
def ld(t): Kld(t) if t < 8 else Vld(t - 8)
def rel(t): Krel(t) if t < 8 else Vrel(t - 8)
for t in range(5, RT + 2):
    ld(t)
    if t == DT: stamp(12); role_dma()
    if t == RT: A.vmem(rdy[0], "rdy"); stamp(2, "s100")
    if t == 7: addr_block()
    rel(t - 2)
ahead("rdy"); A.wait("rdy"); e(f"s_mov_b32 s{sCnt}, -1"); e(f"v_mov_b32 v97, {FLG}")
e(f"s_cmp_lg_u32 s{sWV}, 0"); e("s_cbranch_scc1 RDYX")
e("v_cmp_ne_u32 vcc, s96, v98"); e("s_cbranch_vccnz RDYLOOP"); lab("RDYOK")
e(f"v_cmp_ne_u32 vcc, s{sXcc}, v99"); e("s_nop 1"); e(f"v_mov_b32 v96, vcc_lo"); e("ds_write_b32 v97, v96")
lab("RDYX")
stamp(13, f"s{sCnt}")
def t_():
    lab("RDYLOOP")
    if SPM == "rdy": e("v_accvgpr_read_b32 v96, a253"); e("v_add_u32 v96, 2000, v96"); e("v_accvgpr_write_b32 a253, v96")
    e(f"s_mov_b32 s{sCnt}, 0"); lab("RDYL2"); e("s_sleep 8"); e(rdy[0]); e("s_waitcnt vmcnt(0)"); e("v_cmp_ne_u32 vcc, s96, v98"); e("s_cbranch_vccz RDYOK")
    e(f"s_add_u32 s{sCnt}, s{sCnt}, 1"); e(f"s_cmp_lt_u32 s{sCnt}, {LIMIT}"); e("s_cbranch_scc1 RDYL2"); e("s_branch RDYOK")
tail.append(t_)
fill(2)
e("s_waitcnt lgkmcnt(0)"); e("s_barrier"); e("ds_read_b32 v96, v97"); e("s_waitcnt lgkmcnt(0)"); e(f"v_readfirstlane_b32 s{sT0}, v96")
e(f"s_cmp_eq_u32 s{sT0}, 0"); e(f"s_cselect_b32 s{sWp+2}, s{sW+2}, 0")
assert not any(t[0] == "K" for _, t in pend) and DT <= RT + 1
if FORCESLOW: e(f"s_mov_b32 s{sWp+2}, 0")
for d_ in (sWp,): e(f"s_mov_b32 s{d_}, s{sW}"); e(f"s_mov_b32 s{d_+1}, s{sW+1}"); e(f"s_mov_b32 s{d_+3}, 0x20000")
stamp(2)
if "pre" not in SKIP:
    A.vmem(f"buffer_load_dwordx4 a[240:243], v109, {sr(sW)}, 0 offen sc1", "pre")
def fp_addr(d):
    e(f"v_lshrrev_b32 v{d}, 3, v{vL}"); e(f"v_mul_u32_u24 v{d}, 2560, v{d}"); e(f"v_and_b32 v{d+1}, 7, v{vL}"); e(f"v_lshl_add_u32 v{d}, v{d+1}, 4, v{d}")
    e(f"s_lshl_b32 s{sT0}, s{sJ}, 7"); e(f"s_add_u32 s{sT0}, s{sT0}, s{sLG}"); e(f"s_add_u32 s{sT0}, s{sT0}, {oFP}")
    e(f"s_cmp_lt_u32 s{sJ}, 20"); e(f"s_cselect_b32 s{sT0}, s{sT0}, {OOB-0x10000000}"); e(f"s_cmp_eq_u32 s{sWV}, 3"); e(f"s_cselect_b32 s{sT0}, s{sT0}, {OOB-0x10000000}")
    e(f"v_add_u32 v{d}, s{sT0}, v{d}"); e(f"v_add_u32 v{d+1}, {8*2560}, v{d}"); e(f"v_mov_b32 v{d+2}, {OOB}"); e(f"v_cmp_le_u32 vcc, 32, v{vL}")
    e(f"s_lshl_b32 s{sT1}, s{sJ}, 6"); e(f"s_sub_u32 s{sT1}, s{sT0}, s{sT1}"); e(f"s_sub_u32 s{sT1}, s{sT1}, {oFP-oBB+512}"); e(f"v_add_u32 v24, s{sT1}, v{vLin}"); e(f"v_cndmask_b32 v{d+1}, v{d+1}, v24, vcc")
    e(f"v_cmp_le_u32 vcc, 36, v{vL}"); e(f"v_cndmask_b32 v{d+1}, v{d+1}, v{d+2}, vcc")
fp_addr(106)
for q in range(2):
    if "pre" not in SKIP: A.vmem(f"buffer_load_dwordx4 a[240:243], v{106+q}, {sr(sW)}, 0 offen sc1", "pre")
    e(f"v_accvgpr_write_b32 a{250+q}, v{106+q}")
e(f"s_lshl_b32 s{sT0}, s{sHH}, 12"); e(f"s_mul_i32 s{sT1}, s{sWV}, 96"); e(f"s_add_u32 s{sT0}, s{sT0}, s{sT1}"); e(f"s_add_u32 s{sT0}, s{sT0}, s{sLG}")
e(f"v_lshrrev_b32 v24, 4, v{vL}"); e("v_lshlrev_b32 v24, 9, v24"); e(f"v_and_b32 v25, 15, v{vL}"); e("v_min_u32 v25, 11, v25"); e("v_lshl_add_u32 v24, v25, 3, v24")
for q in range(2):
    if "qg" not in SKIP: A.vmem(f"buffer_load_dwordx2 v[{64+2*q}:{65+2*q}], v24, {sr(sW)}, s{sT0} offen offset:{2048*q} sc1", "qg")
def pack_store16(d, instr_fn):
    for q in (1, 2, 3): e(f"v_mov_b32_dpp v{d+q}, v{d} quad_perm:[{q},{q},{q},{q}] row_mask:0xf bank_mask:0xf")
    setexec(0x1111); instr_fn(); setexec(FULL)
e(f"s_cmp_lg_u32 s{sWV}, 1"); e("s_cbranch_scc1 NOBASE0"); e(f"s_cmp_ge_u32 s{sJ}, 20"); e("s_cbranch_scc1 NOBASE0")
e(f"v_mov_b32 v28, v{vXR}"); e(f"s_lshl_b32 s{sT0}, s{sJ}, 6"); e(f"s_add_u32 s{sT0}, s{sT0}, s{sLG}"); e(f"s_add_u32 s{sT0}, s{sT0}, {oBA}"); e(f"v_lshlrev_b32 v27, 2, v{vL}")
pack_store16(28, lambda: lstore(f"buffer_store_dwordx4 v[28:31], v27, {sr(sW)}, s{sT0} offen"))
lab("NOBASE0")
stamp(3)
for t in range(RT, RT + 3): rel(t)
ahead("qg"); A.wait("qg")
for q in range(4): e(f"v_lshlrev_b32 v{T+2*q}, 16, v{64+q}"); e(f"v_and_b32 v{T+2*q+1}, 0xffff0000, v{64+q}")
qsum(T)
e(f"v_cvt_pk_bf16_f32 v{T}, v{T}, v{T}"); e(f"ds_write_b16 v{vQBw}, v{T}")
fill(); att_zero()
stamp(4)
fill(2); e("s_waitcnt lgkmcnt(0)"); e("s_barrier")
for ks in range(3): e(f"ds_read_b128 {vr(QF+4*ks)}, v{vQBr} offset:{128*ks}")
e(f"v_mov_b32 v{vSC}, 0x3dd53b94")
qk_softmax(fl=1)
stamp(5)
hold.clear()
for t in range(RT + 3, 12): rel(t)
fill(2)
e("s_waitcnt lgkmcnt(0)"); pv_step(0); fill(); pv_step(1)
Vrel(4); Vld(7); Vrel(5)
e(f"v_and_b32 v{vXR+1}, 0xffff0000, v{vXR}"); e(f"v_lshlrev_b32 v{vXR}, 16, v{vXR}")
PT_ = [int(x) for x in OPT.get("pt", "7,3").split(",")]
PTF = int(OPT.get("ptf", 1))
def late_pf(w, k0, n):
    if "wo" in SKIP: return
    for k in range(k0, k0 + n):
        if k % 4 == 0 and k: e(f"s_add_u32 s{sPo}, s{sPo}, 4096")
        A.vmem(f"buffer_load_dwordx4 a[240:243], v{vLin}, {sr(sWQ)}, s{sPo} offen offset:{1024*(k%4)} {NTP}", "pfo")
for m_, r_ in ((0x0101010101010101, 82), (ROWS9, 84), ((1 << 60) - 1, 86), (0xFF00FF0000FF00FF, 88), (0x01010101, 92), (0x0F0F0F0F0F0F0F0F if REPL else 0x01010101 + (1 << 63), 44)):
    e(f"s_mov_b32 s{r_}, {m_ & 0xffffffff:#x}"); e(f"s_mov_b32 s{r_+1}, {m_ >> 32:#x}"); MASKS[m_] = r_
if not REPL: e("s_mov_b32 s45, 0")
e("s_mov_b64 s[46:47], s[92:93]"); e("s_mov_b64 s[48:49], s[44:45]")
FGE = int(OPT.get("fge", 1))
def rep_addr(d, t):
    e(f"v_and_b32 v{d}, 3, v{vL}"); e(f"v_lshrrev_b32 v{t}, 5, v{vL}"); e(f"v_lshl_add_u32 v{d}, v{t}, 2, v{d}"); e(f"v_mul_u32_u24 v{d}, 10240, v{d}")
    e(f"v_bfe_u32 v{t}, v{vL}, 3, 2"); e(f"v_lshl_add_u32 v{d}, v{t}, 4, v{d}")
def stream_tail(w):
    save = list(A.vm)
    pf = sum(PT_) and not (PTF and w)
    if pf and not PTF:
        e(f"s_lshl_b32 s{sPo}, s{sHH}, 3"); e(f"s_add_u32 s{sPo}, s{sPo}, s{sG}"); e(f"s_lshl_b32 s{sPo}, s{sPo}, 3"); e(f"s_add_u32 s{sPo}, s{sPo}, s{sS}")
        e(f"s_lshl_b32 s{sPo}, s{sPo}, 2"); e(f"s_add_u32 s{sPo}, s{sPo}, s{sWV}"); e(f"s_mul_i32 s{sPo}, s{sPo}, 7680")
    if pf and PTF:
        e(f"s_lshl_b32 s{sPo}, s{sWV}, 3"); e(f"s_add_u32 s{sPo}, s{sPo}, s{sG}"); e(f"s_mul_i32 s{sPo}, s{sPo}, 24"); e(f"s_add_u32 s{sPo}, s{sPo}, s{sJ}")
        e(f"s_sub_u32 s{sPo}, s{sPo}, 8"); e(f"s_mul_i32 s{sPo}, s{sPo}, 10240")
    if pf: late_pf(w, 0, PT_[0])
    if w and FGE:
        for q in range(4): e(f"v_mov_b32 v{24+q}, -1")
        rep_addr(28, 29); e(f"s_cmp_eq_u32 s{sWV}, 3"); e(f"s_cselect_b32 s{sT0}, 0, {OOB-0x10000000}"); e(f"v_add_u32 v28, s{sT0}, v28"); e(f"s_add_u32 s{sT0}, s{sYg}, {oFG-oYG}")
        e("s_mov_b64 exec, s[44:45]"); A.vmem(f"buffer_store_dwordx4 v[24:27], v28, {sr(sW)}, s{sT0} offen sc1", "fgc"); setexec(FULL)
    if w: wdma_addr(); wdma(WT[1], "wo")
    e("s_waitcnt lgkmcnt(0)"); pv_step(2)
    Vrel(6)
    if pf: late_pf(w, PT_[0], PT_[1])
    if w: wdma(WT[2], "wo")
    if not w and W2P == 1: w2dma("w2")
    x = len(A.vm) - 6
    f_, b_ = vblock(8)
    for i in range(6):
        e(f"s_waitcnt vmcnt({5-i+x})"); e(f"ds_write_b128 v{vWr+i%3}, {rg(f_, b_+4*i, 4)} offset:{(i//3)*8*RS}")
    f_, b_ = vblock(6)
    for dt in range(12): e(f"ds_read_b64_tr_b16 {rg(f_, b_+4*dt+2, 2)}, v{vVrd} offset:{32*dt}")
    if w: wdma(WT[3], "wo")
    if not w and W2P == 2: w2dma("w2")
    e("s_branch ATT_LAST")
    A.vm = save
e(f"s_cmp_ge_u32 s{sJ}, 20"); e("s_cbranch_scc1 TAILF")
stream_tail(True)
lab("TAILF")
stream_tail(False)
A.drained()
flush_near()

lab("LOOP")
if JIT: jitter(JIT, 40)
e(f"s_cmp_lt_u32 s{sJ}, 20"); e(f"s_cselect_b32 s{sXcc}, s{sWV}, 4")
e(f"s_add_u32 s96, s{sLG}, {LS}"); e("s_add_u32 s97, s96, 4096")
if int(OPT.get("cspl", 1)):
    for l in qloads(88, "s96", "s97"): e(l)
wq_frags()
e(f"v_and_b32 v25, 15, v{vL}"); e("v_cmp_eq_u32 vcc, 12, v25"); e("v_mov_b32 v36, 0x3f803f80"); e(f"v_cndmask_b32 v70, 0, v36, vcc")
for q in range(1, 10): e(f"v_mov_b32 v{70+q}, v70")
e(f"s_add_u32 s{sT2}, s{sLG}, 4096")
e(f"s_mul_i32 s{sT0}, s{sWV}, {SCRW}")
e(f"v_mul_u32_u24 v26, 103, v{vL}"); e("v_lshrrev_b32 v26, 10, v26"); e(f"v_lshl_add_u32 v26, v26, 4, v{vLin}"); e(f"v_add_u32 v26, s{sT0}, v26")
e(f"v_mul_u32_u24 v27, 176, v25"); e(f"v_add_u32 v27, s{sT0}, v27"); e(f"v_lshrrev_b32 v28, 4, v{vL}"); e("v_lshl_add_u32 v29, v28, 3, v27"); e("v_lshl_add_u32 v27, v28, 4, v27")
e(f"s_mul_i32 s{sT0}, s{sS}, 160"); e(f"s_add_u32 s{sT0}, s{sT0}, s{sLG}"); e(f"s_sub_u32 s{sT0}, s{sT0}, {LS-oFL}")
e("s_waitcnt lgkmcnt(0)")
gate(sT0, 10, 24)
setexec((1 << 60) - 1)
def bounce(groups, tmp, writes, reads, first=None, w1=0):
    k = nid(); allr = [r for g in groups for r in g[1]]
    for g in groups:
        for l in g[0]: e(l)
    if first: first()
    e(f"s_waitcnt vmcnt({w1})")
    lab(f"BW{k}")
    for x in writes: e(x)
    check(allr, tmp)
    setexec(ROWS9)
    for x in reads: e(x)
    setexec(FULL)
    e(f"s_cbranch_vccnz BR{k}")
    lab(f"BX{k}")
    def t():
        lab(f"BR{k}")
        e(f"s_cmp_ge_u32 s{sCnt}, {LIMIT}"); e(f"s_cbranch_scc1 BX{k}")
        lab(f"BL{k}")
        for gi, (ls, rs) in enumerate(groups):
            setexec((1 << 60) - 1); check(rs, tmp); e("s_mov_b64 exec, vcc"); e(f"s_cbranch_execz BS{k}_{gi}")
            for l in ls: e(l)
            lab(f"BS{k}_{gi}")
        setexec((1 << 60) - 1)
        e(f"s_add_u32 s{sCnt}, s{sCnt}, 1"); e(f"s_cmp_ge_u32 s{sCnt}, {LIMIT}")
        e("s_waitcnt vmcnt(0)")
        check(allr, tmp)
        e(f"s_cbranch_vccz BW{k}"); e(f"s_cbranch_scc0 BL{k}"); e(f"s_branch BW{k}")
    near.append(t)
assert GATE
bounce([([f"buffer_load_dwordx4 v[80:83], v{vAq}, {sr(sW)}, 0 offen sc1"], [80]), ([f"buffer_load_dwordx4 v[84:87], v{vAq16}, {sr(sW)}, 0 offen sc1"], [84])], 24,
       ["ds_write_b128 v26, v[80:83]", f"ds_write_b128 v26, v[84:87] offset:{6*176}"],
       ["ds_read_b128 v[70:73], v27", "ds_read_b128 v[74:77], v27 offset:64", "ds_read_b64 v[78:79], v29 offset:128"],
       first=lambda: [e(l) for l in qloads(88, "s96", "s97")], w1=2)
stamp(1)
e(f"s_cmp_lg_u32 s{sXcc}, 1"); e("s_cbranch_scc1 NOOWL")
e(f"buffer_load_dword a244, v{vC1}, {sr(sW)}, 0 offen sc1"); e(f"buffer_load_dword a245, v{vC2}, {sr(sW)}, 0 offen sc1")
lab("NOOWL")
qstage(70, f"s{sLG}", waits=True)
stamp(2)
att_zero()
e(f"s_waitcnt vmcnt({2 if STAMP == 1 else 1})"); qsum(88); e(f"v_mul_f32 v{vCS}, 0x3acccccd, v88")
for _ in range(int(OPT.get("qd", 0))): e("s_nop 7")
poll_nan(qloads(T, f"s{sLG}", f"s{sT2}"), lambda: qsum(T), T)
stamp(3)
q_finish(T)
stamp(4)
qk_softmax()
stamp(5)
for u in range(3):
    e(f"s_waitcnt lgkmcnt({4-u})"); pv_step(u)
e("s_waitcnt lgkmcnt(0)")
lab("ATT_LAST")
for dp in range(6):
    if dp % 2 == 0: e(f"s_waitcnt lgkmcnt({8-2*dp})")
    pv_step(3, [dp])
def pack8(v):
    e(f"v_mov_b32_dpp v{v+1}, v{v} row_shl:1 row_mask:0xf bank_mask:0xf"); e(f"v_cvt_pk_bf16_f32 v{v}, v{v}, v{v+1}")
    for q in (1, 2, 3): e(f"v_mov_b32_dpp v{v+q}, v{v} row_shl:{2*q} row_mask:0xf bank_mask:0xf")
def pack8q(v):
    e(f"v_mov_b32_dpp v{v+1}, v{v} row_shl:1 row_mask:0xf bank_mask:0xf"); e(f"v_cvt_pk_bf16_f32 v{v+4}, v{v}, v{v+1}")
    e(f"v_mov_b32_dpp v{v}, v{v+4} quad_perm:[0,0,0,0] row_mask:0xf bank_mask:0xf"); e(f"v_mov_b32_dpp v{v+1}, v{v+4} quad_perm:[2,2,2,2] row_mask:0xf bank_mask:0xf")
    e(f"v_mov_b32_dpp v{v+2}, v{v} row_shl:4 row_mask:0xf bank_mask:0xf"); e(f"v_mov_b32_dpp v{v+3}, v{v+1} row_shl:4 row_mask:0xf bank_mask:0xf")
e(f"s_lshl_b32 s{sT0}, s{sWV}, 8"); e(f"s_add_u32 s{sT0}, s{sT0}, {ACC+OACC}"); e(f"v_lshl_add_u32 v24, v{vL}, 2, s{sT0}")
pv_post()
e(f"v_and_b32 v25, 3, v{vL}"); e(f"v_lshlrev_b32 v25, 3, v25"); e(f"v_add_u32 v25, {ML4}, v25")
e("s_waitcnt lgkmcnt(0)"); e("s_barrier")
stamp(6)
e("ds_read_b64 v[32:33], v25"); e("ds_read2st64_b32 v[40:41], v24 offset0:0 offset1:3"); e("ds_read2st64_b32 v[42:43], v24 offset0:6 offset1:9")
e(f"s_mul_i32 s{sT0}, s{sHH}, 3072"); e(f"s_lshl_b32 s{sT1}, s{sS}, 4"); e(f"s_add_u32 s{sT0}, s{sT0}, s{sT1}"); e(f"s_lshl_b32 s{sT1}, s{sWV}, 10"); e(f"s_add_u32 s{sT0}, s{sT0}, s{sT1}")
e(f"s_add_u32 s{sT0}, s{sT0}, s{sLG}"); e(f"s_add_u32 s{sT0}, s{sT0}, {oO}")
e(f"s_lshl_b32 s{sT1}, s{sJ}, 3"); e(f"s_add_u32 s{sT1}, s{sT1}, s{sLG}"); e(f"s_add_u32 s{sT1}, s{sT1}, {oML}"); e(f"s_cmp_eq_u32 s{sWV}, 3")
e("s_waitcnt lgkmcnt(2)")
e("v_max_f32_dpp v34, v32, v32 quad_perm:[1,0,3,2] row_mask:0xf bank_mask:0xf"); e("v_max_f32_dpp v34, v34, v34 quad_perm:[2,3,0,1] row_mask:0xf bank_mask:0xf")
e("v_sub_f32 v32, v32, v34"); e("v_exp_f32 v32, v32")
e("s_cbranch_scc1 OML"); e("s_waitcnt lgkmcnt(0)")
e("v_mul_f32_dpp v28, v32, v40 quad_perm:[0,0,0,0] row_mask:0xf bank_mask:0xf"); e("v_mul_f32_dpp v29, v32, v41 quad_perm:[1,1,1,1] row_mask:0xf bank_mask:0xf")
e("v_mul_f32_dpp v30, v32, v42 quad_perm:[2,2,2,2] row_mask:0xf bank_mask:0xf"); e("v_fmac_f32_dpp v28, v32, v43 quad_perm:[3,3,3,3] row_mask:0xf bank_mask:0xf")
e("v_add_f32 v29, v29, v30"); e("v_add_f32 v28, v28, v29")
pack8(28)
setexec(0x0101010101010101)
lstore(f"buffer_store_dwordx4 v[28:31], v{vLin}, {sr(sW)}, s{sT0} offen")
setexec(FULL)
def t_():
    lab("OML")
    e("v_mul_f32 v35, v32, v33")
    e("v_add_f32_dpp v35, v35, v35 quad_perm:[1,0,3,2] row_mask:0xf bank_mask:0xf"); e("v_add_f32_dpp v35, v35, v35 quad_perm:[2,3,0,1] row_mask:0xf bank_mask:0xf")
    setexec(1); lstore(f"buffer_store_dwordx2 v[34:35], v{vLin}, {sr(sW)}, s{sT1} offen"); setexec(FULL)
    e("s_waitcnt lgkmcnt(0)"); e("s_branch ODONE")
near.append(t_)
lab("ODONE")
if DA >= 0: e("v_accvgpr_read_b32 v38, a253"); e("s_nop 1"); e("v_readfirstlane_b32 s90, v38"); e("s_mov_b32 s91, 0")
if STAMP == 3 and "land" in SKIP:
    e(f"s_cmp_ge_u32 s{sJ}, 20"); e("s_cbranch_scc1 LND"); wdma_addr(); wdma(WT[4]); lab("LND"); e("s_waitcnt vmcnt(0)")
stamp(7)
if STAMP == 3: e("s_endpgm")
e(f"s_cmp_ge_u32 s{sJ}, 20"); e("s_cbranch_scc1 ROLEF")
def owner_add():
    e("v_lshlrev_b32 v30, 16, v28"); e("v_and_b32 v28, 0xffff0000, v28"); e("v_lshlrev_b32 v31, 16, v29"); e("v_and_b32 v29, 0xffff0000, v29")
    e("v_add_f32 v30, v30, v31"); e("v_add_f32 v28, v28, v29")
    e("v_mov_b32 v31, v30"); e("v_mov_b32 v29, v28"); e("v_permlane32_swap_b32 v30, v31"); e("v_permlane32_swap_b32 v28, v29"); e("v_add_f32 v30, v30, v31"); e("v_add_f32 v28, v28, v29")
    e("v_mov_b32 v31, v30"); e("v_mov_b32 v29, v28"); e("v_permlane16_swap_b32 v30, v31"); e("v_permlane16_swap_b32 v28, v29"); e("v_add_f32 v30, v30, v31"); e("v_add_f32 v28, v28, v29")
    e(f"v_add_f32 v{vXR}, v{vXR}, v30"); e(f"v_add_f32 v{vXR+1}, v{vXR+1}, v28")
    e(f"v_cvt_pk_bf16_f32 v28, v{vXR}, v{vXR+1}")
def own_loads(a0, a1, soff): return [f"buffer_load_dword v28, v{a0}, {sr(sW)}, {soff} offen sc1", f"buffer_load_dword v29, v{a1}, {sr(sW)}, {soff} offen sc1"]
def base_store(ob):
    e(f"s_lshl_b32 s{sT0}, s{sJ}, 6"); e(f"s_add_u32 s{sT0}, s{sT0}, s{sLG}"); e(f"s_add_u32 s{sT0}, s{sT0}, {ob}"); e(f"v_lshlrev_b32 v32, 2, v{vL}")
    pack_store16(28, lambda: lstore(f"buffer_store_dwordx4 v[28:31], v32, {sr(sW)}, s{sT0} offen"))
e(f"s_cmp_eq_u32 s{sLay}, 0"); e("s_cbranch_scc1 WLATE")
def t_():
    lab("WLATE")
    if JIT: jitter(JIT, 40)
    if WT[4]: wdma_addr(); wdma(WT[4])
    if "cs" not in SKIP: cs_store()
    e(f"s_cmp_lg_u32 s{sWV}, 3"); e("s_cbranch_scc1 NOFPC")
    for q in range(4): e(f"v_mov_b32 v{24+q}, -1")
    for q in range(2 if "fpc" not in SKIP else 0): e(f"v_accvgpr_read_b32 v{28+q}, a{250+q}"); lstore(f"buffer_store_dwordx4 v[24:27], v{28+q}, {sr(sW)}, 0 offen")
    if not FGE: e(f"s_add_u32 s{sT0}, s{sYg}, {oFG-oYG}"); rep_addr(28, 29); e("s_mov_b64 exec, s[44:45]"); e(f"buffer_store_dwordx4 v[24:27], v28, {sr(sW)}, s{sT0} offen sc1"); setexec(FULL)
    lab("NOFPC")
    for q in range(3): e(f"v_accvgpr_read_b32 v{2+q}, a{246+q}")
    for r_ in [SPARE + 4 * kk for kk in range(6)] + [25, 27, 37, 39]: e(f"v_mov_b32 v{r_}, 0")
    for x in fl0: e(x)
    e("s_waitcnt vmcnt(8)")
    for x in trs[:TRN]: e(x)
    wfirst(); e("s_branch WCHK")
near.append(t_)
for q in range(3): e(f"v_accvgpr_read_b32 v{2+q}, a{246+q}")
for kk in range(6): e(f"v_mov_b32 v{SPARE+4*kk}, 0")
TRN = int(OPT.get("trn", 10))
trs = [f"ds_read_b64_tr_b16 {vr(F+24*t+4*kk+2*h,2)}, v2 offset:{(32*kk+4*h)*64+32*t}" for kk in range(6) for t in range(2) for h in range(2)]
for x in trs[:TRN]: e(x)
def own0():
    e(f"s_cmp_lg_u32 s{sWV}, 1"); e("s_cbranch_scc1 NOOWN0")
    e("v_accvgpr_read_b32 v28, a244"); e("v_accvgpr_read_b32 v29, a245")
    late_check("none", own_loads(vC1, vC2, "0"), [28, 29], 30)
    owner_add()
    if OWP != 2: base_store(oBA)
    lab("NOOWN0")
OWP = int(OPT.get("owp", 0))
if not OWP: own0()
MLR = [24, 36]
for _ in range(int(OPT.get("od", 0))): e("s_nop 7")
for q in (25, 27, 37, 39): e(f"v_mov_b32 v{q}, 0")
def wfirst():
    for x in trs[TRN:]: e(x)
    e("v_accvgpr_read_b32 v5, a249"); rep_addr(18, 6); e("v_and_b32 v6, 0xffffff7f, v5")
ol = [f"buffer_load_dwordx4 {vr(SPARE+4*kk)}, v3, {sr(sW)}, s{sLG} offen offset:{512*kk} sc1" for kk in range(6)]
ml = [f"buffer_load_dwordx4 {vr(MLR[q])}, v4, {sr(sW)}, s{sLG} offen offset:{16*q} sc1" for q in range(2)]
fl0 = ["s_mov_b32 exec_lo, 0x00ff00ff", "s_mov_b32 exec_hi, 0x00ff00ff"] + ol + ["s_mov_b32 exec_lo, -1", "s_mov_b32 exec_hi, 0"] + ml + ["s_mov_b64 exec, -1"]
poll_sel([(ol, [SPARE + 4 * kk for kk in range(6)]), (ml, [25, 27, 37, 39])], 28, pid=7, first=lambda: (wfirst(), own0() if OWP else None), firstloads=fl0, wl="WCHK")
e("s_waitcnt lgkmcnt(0)")
stamp(8)
M_, U_, L_ = SPARE, SPARE + 1, SPARE + 2
mm_ = [24, 26, 36, 38]
co = [[], [f"v_max3_f32 v{M_}, v24, v26, v36", f"v_max_f32 v{M_}, v{M_}, v38"], [f"v_mov_b32 v{U_}, v{M_}"], [f"v_permlane16_swap_b32 v{M_}, v{U_}", f"v_max_f32 v{M_}, v{M_}, v{U_}"],
      [f"v_sub_f32 v24, v24, v{M_}", f"v_sub_f32 v26, v26, v{M_}"], [f"v_sub_f32 v36, v36, v{M_}", f"v_sub_f32 v38, v38, v{M_}"],
      ["v_exp_f32 v24, v24"], ["v_exp_f32 v26, v26"], ["v_exp_f32 v36, v36"], ["v_exp_f32 v38, v38"],
      [f"v_mul_f32 v{L_}, v24, v25", f"v_fmac_f32 v{L_}, v26, v27"], [f"v_fmac_f32 v{L_}, v36, v37", f"v_fmac_f32 v{L_}, v38, v39"]]
for kk in range(6):
    for t in range(2):
        c = "0" if kk == 0 else vr(28 + 4 * t)
        e(f"v_mfma_f32_16x16x32_bf16 {vr(28+4*t)}, {vr(SPARE+4*kk)}, {vr(F+24*t+4*kk)}, {c}")
        for x in co.pop(0): e(x)
e(f"v_mov_b32 v{U_}, v{L_}"); e(f"s_cmp_lg_u32 s{sWV}, 0"); e(f"v_permlane16_swap_b32 v{L_}, v{U_}"); e(f"v_add_f32 v{L_}, v{L_}, v{U_}"); e(f"v_rcp_f32 v{L_}, v{L_}")
for t in range(2): e(f"v_mul_f32 v{28+4*t}, v24, v{28+4*t}")
for q in range(1, 4):
    for t in range(2): e(f"v_fmac_f32 v{28+4*t}, v{mm_[q]}, v{28+4*t+q}")
e("v_permlane16_swap_b32 v28, v32"); e("v_add_f32 v28, v28, v32"); e(f"v_mul_f32 v28, v28, v{L_}")
e(f"ds_write_b32 v5, v28")
e("s_waitcnt lgkmcnt(0)"); e("s_barrier")
e("s_cbranch_scc1 WNOT0")
assert (ACC + YACC) % 256 == 0
e("ds_read2st64_b32 v[28:29], v6 offset0:0 offset1:1"); e("ds_read2st64_b32 v[30:31], v6 offset0:2 offset1:3")
e("s_waitcnt lgkmcnt(1)"); e("v_add_f32 v28, v28, v29"); e("s_waitcnt lgkmcnt(0)"); e("v_add_f32 v30, v30, v31"); e("v_add_f32 v28, v28, v30")
pack8q(28)
e("s_mov_b64 exec, s[46:47]")
e(f"buffer_store_dwordx4 v[28:31], v18, {sr(sW)}, s{sYg} offen sc1")
setexec(0x01010101)
lstore(f"buffer_store_dwordx4 v[28:31], v18, {sr(sW)}, s{sYl} offen")
setexec(FULL)
stamp(9); stamp(9, "c")
e(f"v_lshrrev_b32 v37, 5, v{vL}"); e("v_mul_u32_u24 v37, 2560, v37"); e(f"v_and_b32 v38, 31, v{vL}"); e("v_lshl_add_u32 v37, v38, 2, v37")
for k in range(1, 6): e(f"v_add_u32 v{F+k}, {5120*k}, v37")
e(f"s_lshl_b32 s{sT2}, s{sJ}, 7"); e(f"s_add_u32 s{sT2}, s{sT2}, s{sLG}"); e(f"s_add_u32 s{sT2}, s{sT2}, {oFP}")
e(f"s_add_u32 s96, s{sYg}, {oFG-oYG}"); e(f"s_add_u32 s97, s{sYl}, {oFL-oYL}")
e(f"s_cmp_lg_u32 s{sLay}, 0"); e("s_cbranch_scc1 NOLC")
if "lc" in SKIP: e("s_branch NOLC")
e(f"s_mul_i32 s{sT0}, s{sJ}, {154*16}"); e(f"s_add_u32 s{sT1}, s{sLG}, {LS+oO}")
for q in range(3): e(f"v_add_u32 v{F+8+q}, s{sT0}, v{vLin}"); e(f"v_min_u32 v{F+8+q}, {GB-oO-16}, v{F+8+q}"); e(f"s_add_u32 s{sT0}, s{sT0}, 1024")
for q in range(3): e(f"buffer_load_dwordx4 a[240:243], v{F+8+q}, {sr(sW)}, s{sT1} offen sc1")
for q in range(4): e(f"v_mov_b32 v{F+12+q}, -1")
e(f"s_add_u32 s{sT0}, s{sYg}, {LS}"); e(f"s_add_u32 s{sT3}, s96, {LS}")
e("s_waitcnt vmcnt(0)")
if JIT: jitter(JIT, 60)
for q in range(3): lstore(f"buffer_store_dwordx4 {vr(F+12)}, v{F+8+q}, {sr(sW)}, s{sT1} offen")
e("s_mov_b64 exec, s[44:45]"); e(f"buffer_store_dwordx4 {vr(F+12)}, v18, {sr(sW)}, s{sT0} offen sc1")
setexec(0x01010101); e(f"buffer_store_dwordx4 {vr(F+12)}, v18, {sr(sW)}, s{sT3} offen sc1")
setexec(FULL)
lab("NOLC")
def fpsum():
    e("v_add_f32 v28, v28, v29"); e("v_add_f32 v30, v30, v31"); e("v_add_f32 v32, v32, v33"); e("v_add_f32 v28, v28, v30"); e("v_add_f32 v29, v28, v32"); e("v_add_f32 v28, v28, v32")
poll_nan([f"buffer_load_dword v{28+k}, v{37 if k==0 else F+k}, {sr(sW)}, s{sT2} offen sc1" for k in range(6)], fpsum, 28)
stamp(10)
e("v_permlane32_swap_b32 v28, v29"); e("v_add_f32 v28, v28, v29")
pack8q(28)
e("s_mov_b64 exec, s[48:49]")
e(f"buffer_store_dwordx4 v[28:31], v18, {sr(sW)}, s96 offen sc1")
setexec(0x01010101)
lstore(f"buffer_store_dwordx4 v[28:31], v18, {sr(sW)}, s97 offen")
setexec(FULL)
stamp(11)
e("s_branch NEXT")
flush_near()
lab("WNOT0")
if JIT: jitter(JIT, 40)
WB = int(OPT.get("wb", 0))
if WB:
    e(f"s_cmp_lg_u32 s{sWV}, 2"); e("s_cbranch_scc1 NOWB"); e(f"s_cmp_lg_u32 s{sJ}, 0"); e("s_cbranch_scc1 NOWB"); e(f"s_cmp_eq_u32 s{sLay}, 0"); e("s_cbranch_scc1 NOWB")
    if WB > 1: e(f"s_sleep {WB}")
    e("buffer_wbl2 sc1"); e("s_waitcnt vmcnt(0)"); lab("NOWB")
e(f"s_cmp_lg_u32 s{sWV}, 1"); e("s_cbranch_scc1 NEXT")
if OWP == 2:
    e(f"s_cmp_eq_u32 s{sLay}, 0"); e("s_cbranch_scc1 NOBA1"); e(f"v_cvt_pk_bf16_f32 v28, v{vXR}, v{vXR+1}"); base_store(oBA); lab("NOBA1")
e(f"v_and_b32 v25, 15, v{vL}"); e(f"v_lshrrev_b32 v26, 4, v{vL}")
rowbase(37, 26, oYG, oYL, None, 38); e("v_add_u32 v39, 4, v26"); rowbase(38, 39, oYG, oYL, None, 28)
e(f"s_lshl_b32 s{sT0}, s{sJ}, 6"); e(f"s_add_u32 s{sT0}, s{sT0}, s{sLay}")
e("v_lshl_add_u32 v37, v25, 2, v37"); e("v_lshl_add_u32 v38, v25, 2, v38")
if GATE and ODLY: e(f"s_sleep {ODLY}")
poll(own_loads(37, 38, f"s{sT0}"), [28, 29], 30, slp=(4 if GATE else 0))
owner_add()
e(f"s_cmp_lg_u32 s{sLay}, 0"); e("s_cbranch_scc1 FINAL")
base_store(oBB)
e("s_branch NEXT")
lab("FINAL")
e(f"s_cmp_lg_u32 s{sG}, 0"); e("s_cbranch_scc1 DONE")
e(f"s_lshl_b32 s{sT0}, s{sJ}, 6"); e(f"v_lshlrev_b32 v37, 2, v{vL}")
e(f"s_add_u32 s{sT2}, s{sT0}, s{sLG}"); e(f"s_add_u32 s{sT2}, s{sT2}, {oFL}")
if int(OPT.get("otouch", 0)): setexec(0xffff); e(f"buffer_load_dword v29, v37, {sr(sO)}, s{sT0} offen")
gate(sT2, 4, 28); setexec(FULL)
poll(own_loads(vC1, vC2, f"s{sLay}"), [28, 29], 30)
owner_add()
setexec(0xffff)
e(f"buffer_store_dword v28, v37, {sr(sO)}, s{sT0} offen {OPT.get('ost', '').replace('+', ' ')}")
setexec(FULL)
stamp(12); stamp(12, "c")
e("s_branch DONE") if SPIN else e("s_endpgm")
flush_near()
lab("ROLEF")
e(f"v_and_b32 v25, 15, v{vL}"); e(f"v_lshrrev_b32 v26, 4, v{vL}"); e(f"v_bfe_u32 v27, v{vL}, 2, 2"); e(f"v_and_b32 v36, 3, v{vL}")
FA = SPARE
vCG, vCU = vXR, vXR + 1
sPass = sClr
e(f"s_mov_b32 s{sPass}, 1")
e(f"s_cmp_lg_u32 s{sLay}, 0"); e("s_cbranch_scc1 FW")
e(f"s_mov_b32 s{sPass}, 0")
FEA = int(OPT.get("fea", 1))
def fearly():
    if W2P == 0 and "w2" not in SKIP: w2dma()
    e(f"s_sub_u32 s96, s{sJ}, 20"); e("s_lshl_b32 s96, s96, 2"); e(f"s_add_u32 s96, s96, s{sWV}"); e(f"s_mul_i32 s96, s96, {43*16}")
    e(f"v_add_u32 v21, s96, v{vLin}"); e(f"v_min_u32 v21, {32768-16}, v21"); e(f"s_add_u32 s97, s{sLG}, {LS+oQ}")
    e(f"buffer_load_dwordx4 a[240:243], v21, {sr(sW)}, s97 offen sc1")
WG_ = int(OPT.get("w2g", -1))
if WG_ >= 0:
    e(f"v_lshlrev_b32 v37, 3, v{vL}"); e(f"s_add_u32 s{sT0}, s{sLG}, {oML}"); e(f"s_mov_b32 s{sCnt}, 0"); e("s_mov_b32 exec_lo, -1"); e("s_mov_b32 exec_hi, 0")
    lab("W2G"); e(f"buffer_load_dword v38, v37, {sr(sW)}, s{sT0} offen sc1"); e(f"s_add_u32 s{sCnt}, s{sCnt}, 1"); e("s_waitcnt vmcnt(0)")
    e("v_cmp_eq_u32 vcc, -1, v38"); e(f"s_bcnt1_i32_b64 s{sT1}, vcc"); e(f"s_cmp_ge_u32 s{sCnt}, 64"); e("s_cbranch_scc1 W2X"); e(f"s_cmp_gt_u32 s{sT1}, {WG_}"); e("s_cbranch_scc1 W2G")
    lab("W2X"); setexec(FULL)
if FEA: fearly()
lab("FW")
e(f"s_mul_i32 s{sT0}, s{sWV}, 5120"); e(f"s_add_u32 s{sT0}, s{sT0}, {W1}")
e("v_lshl_add_u32 v37, v26, 3, v27"); e("v_lshlrev_b32 v37, 5, v37"); e("v_lshl_add_u32 v37, v36, 3, v37"); e(f"v_add_u32 v37, s{sT0}, v37")
for t in range(2):
    for kk in range(5):
        for h in range(2): e(f"ds_read_b64_tr_b16 {vr(F+20*t+4*kk+2*h,2)}, v37 offset:{(32*kk+4*h)*32+20480*t}")
e(f"s_mul_i32 s{sT0}, s{sWV}, 320"); e(f"s_add_u32 s{sT0}, s{sT0}, {W2}")
e(f"v_lshrrev_b32 v80, 2, v{vL}"); e("v_mul_u32_u24 v80, 1280, v80"); e("v_lshl_add_u32 v80, v36, 3, v80"); e(f"v_add_u32 v80, s{sT0}, v80")
e(f"s_lshl_b32 s{sT2}, s{sWV}, 2"); e(f"s_add_u32 s{sT2}, s{sT2}, {ACC+FACC}"); e(f"v_add_u32 v81, s{sT2}, v{vLin}")
e("v_lshl_add_u32 v82, v26, 2, v36"); e("v_lshlrev_b32 v82, 4, v82"); e(f"v_add_u32 v82, {ACC+FACC}, v82")
e("v_cmp_eq_u32 vcc, 12, v25")
e(f"v_mov_b32 v83, {ACC+FACC+512}"); e("v_mov_b32 v85, 0x3727c5ac")
e("v_lshlrev_b32 v84, 6, v25"); e("v_lshl_add_u32 v84, v26, 4, v84")
e("s_mov_b32 s64, 0x03ff03ff"); e("s_mov_b32 s65, 0x03ff03ff"); e("s_mov_b32 s66, 0x3acccccd"); MASKS[0x03FF03FF03FF03FF] = 64
for t in range(10): e(f"s_mov_b32 s{sMf+2*t}, {0x00010001 << t:#x}"); e(f"s_mov_b32 s{sMf+2*t+1}, {0x00010001 << t:#x}")
e("v_mov_b32 v38, 0x3f803f80"); e(f"v_cndmask_b32 v{FA}, 0, v38, vcc")
for q in range(1, 20): e(f"v_mov_b32 v{FA+q}, v{FA}")
e(f"s_mul_i32 s{sT0}, s{sWV}, {SCRW}")
e(f"v_mul_u32_u24 v6, 336, v25"); e("v_lshl_add_u32 v6, v26, 4, v6"); e(f"v_add_u32 v6, s{sT0}, v6")
e(f"v_mul_u32_u24 v37, 52, v{vL}"); e("v_lshrrev_b32 v37, 10, v37")
e(f"v_lshl_add_u32 v87, v37, 4, v{vLin}"); e(f"v_add_u32 v87, s{sT0}, v87")
e(f"v_mul_u32_u24 v27, 320, v37"); e(f"v_sub_u32 v27, v{vLin}, v27")
assert all((c * 52) >> 10 == c // 20 for c in range(64))
FG = [86, 18, 20]
for i in range(3):
    rowbase(FG[i], 37, oYG, oYL, oBA, 38); e(f"v_add_u32 v{FG[i]}, v{FG[i]}, v27")
    if i < 2: e("v_add_u32 v37, 3, v37")
e(f"s_mul_i32 s{sT0}, s{sWV}, 320"); e(f"s_add_u32 s{sT0}, s{sT0}, s{sLay}")
e(f"s_sub_u32 s{sT1}, s{sJ}, 20"); e(f"s_mul_i32 s{sT1}, s{sT1}, 2560"); e(f"s_mul_i32 s{sT3}, s{sWV}, 640"); e(f"s_add_u32 s{sT1}, s{sT1}, s{sT3}")
e(f"s_add_u32 s{sT1}, s{sT1}, s{sLG}"); e(f"s_add_u32 s{sT1}, s{sT1}, {oFP}")
e("s_waitcnt lgkmcnt(0)")
e(f"s_cmp_eq_u32 s{sPass}, 0"); e("s_cbranch_scc1 FW2")
def t_():
    lab("FW2")
    if "cs" not in SKIP: e(f"s_add_u32 s96, s{sLG}, {2*LS}"); lstore(f"buffer_store_dword v{vCS}, v{vQst}, {sr(sW)}, s96 offen")
    if not FEA: fearly()
    e("s_branch FMM")
tail.append(t_)
lab("FPOLL")
W2R = [f"a[{240+2*t}:{241+2*t}]" for t in range(6)] + ["v[108:109]", "v[110:111]", "v[2:3]", "v[4:5]"]
for t in range(10): e(f"ds_read_b64_tr_b16 {W2R[t]}, v80 offset:{32*t}")
e("s_waitcnt lgkmcnt(0)")
e(f"s_mul_i32 s{sT2}, s{sWV}, 320"); e(f"s_add_u32 s{sT2}, s{sT2}, s{sLG}"); e(f"s_add_u32 s{sT2}, s{sT2}, {oYL}")
gate(sT2, 20, 36)
setexec((1 << 60) - 1)
bounce([([f"buffer_load_dwordx4 {vr(T+4*i)}, v{FG[i]}, {sr(sW)}, s{sT0} offen sc1"], [T + 4 * i]) for i in range(3)], 36,
       [f"ds_write_b128 v87, {vr(T+4*i)} offset:{3*336*i}" for i in range(3)], [f"ds_read_b128 {vr(FA+4*kk)}, v6 offset:{64*kk}" for kk in range(5)])
stamp(8)
lab("FMM")
G_, R2, R3, HB = T + 12, T + 13, T + 14, 60
for kk in range(5):
    e(f"s_waitcnt lgkmcnt({4-kk})")
    e(f"v_mfma_f32_16x16x32_bf16 {vr(T+8)}, {vr(FA+4*kk)}, {vr(FA+4*kk)}, " + ("0" if kk == 0 else vr(T + 8)))
dp = lambda dst, sft, rm: f"v_add_f32_dpp v{dst}, v{G_}, v{G_} row_ror:{sft} row_mask:{rm:#x} bank_mask:0xf"
sh = [[f"v_mov_b32 v{G_}, 0", f"v_mov_b32 v{R2}, 0"], [f"v_mov_b32 v{R3}, 0", f"s_cmp_eq_u32 s{sPass}, 0"], [],
      [f"v_add_f32 v{T+8}, v{T+8}, v{T+9}", f"v_add_f32 v{T+10}, v{T+10}, v{T+11}"], [],
      [f"v_add_f32_dpp v{G_}, v{T+8}, v{T+10} quad_perm:[0,1,2,3] row_mask:0xf bank_mask:0x7"], ["s_nop 0", dp(G_, 8, 15)], ["s_nop 0", dp(G_, 4, 15)],
      ["s_nop 0", dp(G_, 2, 15)], []]
for t in range(2):
    for kk in range(5):
        e(f"v_mfma_f32_16x16x32_bf16 {vr(T+4*t)}, {vr(FA+4*kk)}, {vr(F+20*t+4*kk)}, " + ("0" if kk == 0 else vr(T + 4 * t)))
        for x in sh.pop(0): e(x)
e(f"v_add_f32 v{T}, v{T}, v{T+1}"); e(dp(R2, 1, 7)); e(dp(R3, 1, 8)); e(f"v_add_f32 v{T+2}, v{T+2}, v{T+3}"); e(f"v_add_f32 v{T}, v{T}, v{T+2}")
e(f"v_permlane32_swap_b32 v{T}, v{R2}")
e(f"v_add_f32 v{T+4}, v{T+4}, v{T+5}"); e(f"v_add_f32 v{T+6}, v{T+6}, v{T+7}"); e(f"v_add_f32 v{T+4}, v{T+4}, v{T+6}"); e(f"v_add_f32 v{T}, v{T}, v{R2}")
e(f"v_permlane32_swap_b32 v{T+4}, v{R3}"); e(f"v_add_f32 v{T+4}, v{T+4}, v{R3}")
e(f"v_permlane16_swap_b32 v{T}, v{T+4}"); e(f"v_add_f32 v{T}, v{T}, v{T+4}")
e(f"ds_write_b32 v81, v{T}")
e("s_waitcnt lgkmcnt(0)"); e("s_barrier")
e(f"ds_read_b128 {vr(T+4)}, v83 offset:256"); e(f"ds_read_b128 {vr(T)}, v83"); e(f"ds_read_b128 {vr(T+8)}, v82"); e(f"ds_read_b128 {vr(T+12)}, v82 offset:256")
e("s_cbranch_scc1 FCS")
def sum4(b): e(f"v_add_f32 v{b}, v{b}, v{b+1}"); e(f"v_add_f32 v{b+2}, v{b+2}, v{b+3}"); e(f"v_add_f32 v{b}, v{b}, v{b+2}")
e("s_waitcnt lgkmcnt(3)"); sum4(T + 4); e(f"v_mul_f32 v{T+4}, s66, v{T+4}")
e("s_waitcnt lgkmcnt(2)"); sum4(T); e(f"v_fma_f32 v{T}, v{T}, s66, v85")
e(f"v_fma_f32 v{T}, -v{T+4}, v{T+4}, v{T}"); e(f"v_add_f32 v{T+4}, 1.0, v{T+4}"); e(f"v_max_f32 v{T}, v{T}, v85")
e("s_waitcnt lgkmcnt(1)"); e(f"v_rsq_f32 v{T+1}, v{T}"); sum4(T + 8)
e(f"v_mul_f32 v{T+1}, 0xbfb8aa3b, v{T+1}"); e(f"v_fma_f32 v{T+8}, -v{T+4}, v{vCG}, v{T+8}"); e(f"v_mul_f32 v{T+9}, v{T+8}, v{T+1}"); e(f"v_exp_f32 v{T+9}, v{T+9}")
e("s_waitcnt lgkmcnt(0)"); e(f"v_add_f32 v{T+12}, v{T+12}, v{T+13}")
e(f"v_fma_f32 v{T+9}, v{T+9}, v{T}, v{T}"); e(f"v_rcp_f32 v{T+9}, v{T+9}")
e(f"v_add_f32 v{T+14}, v{T+14}, v{T+15}"); e(f"v_add_f32 v{T+12}, v{T+12}, v{T+14}"); e(f"v_mul_f32 v{T+9}, v{T+9}, v{T+8}")
e(f"v_fma_f32 v{T+12}, -v{T+4}, v{vCU}, v{T+12}"); e(f"v_mul_f32 v{T+12}, v{T+12}, v{T+9}")
for q in range(4): e(f"v_mov_b32_dpp v{T+4+q}, v{T+12} quad_perm:[{q},{q},{q},{q}] row_mask:0xf bank_mask:0xf")
e(f"v_cvt_pk_bf16_f32 v{T+4}, v{T+4}, v{T+5}"); e(f"v_cvt_pk_bf16_f32 v{T+5}, v{T+6}, v{T+7}")
def hm(t): return [f"v_cndmask_b32 v{HB+2*t+q}, 0, v{T+4+q}, {sp(sMf+2*t)}" for q in range(2)]
W2Q = ["a[240:243]", "a[244:247]", "a[248:251]", "v[108:111]", "v[2:5]"]
for x in hm(0) + hm(1) + hm(2): e(x)
for t in range(5):
    e(f"v_mfma_f32_16x16x32_bf16 {vr(T)}, {W2Q[t]}, {vr(HB+4*t)}, " + ("0" if t == 0 else vr(T)))
    for k in (2 * t + 3, 2 * t + 4):
        if k < 10:
            for x in hm(k): e(x)
setexec(0x03FF03FF03FF03FF)
lstore(f"buffer_store_dwordx4 {vr(T)}, v84, {sr(sW)}, s{sT1} offen")
setexec(FULL)
stamp(9)
def t_():
    lab("FCS")
    if JIT: jitter(JIT, 40)
    e("s_waitcnt lgkmcnt(0)"); sum4(T + 8); sum4(T + 12)
    e(f"v_mov_b32 v{vCG}, v{T+8}"); e(f"v_mov_b32 v{vCU}, v{T+12}")
    e(f"s_mov_b32 s{sPass}, 1"); e("s_waitcnt vmcnt(0)")
    for q in range(4): e(f"v_mov_b32 v{T+q}, -1")
    if "q1c" not in SKIP: lstore(f"buffer_store_dwordx4 {vr(T)}, v21, {sr(sW)}, s97 offen")
    e("s_barrier"); stamp(13); e("s_branch FPOLL")
tail.append(t_)
lab("NEXT")
e(f"s_cmp_lg_u32 s{sLay}, 0"); e("s_cbranch_scc1 DONE")
e(f"s_mov_b32 s{sLay}, {LS}"); e(f"s_add_u32 s{sLG}, s{sLG}, {LS}"); e(f"s_add_u32 s{sYg}, s{sYg}, {LS}"); e(f"s_add_u32 s{sYl}, s{sYl}, {LS}")
e("s_mov_b64 s[46:47], s[44:45]"); e("s_mov_b64 s[48:49], s[92:93]")
e("s_branch LOOP")
flush_near()
lab("DONE")
if SPIN:
    e("v_accvgpr_read_b32 v38, a253"); e("s_nop 1"); e("v_readfirstlane_b32 s96, v38")
    if SPM == "min":
        e("v_not_b32 v38, v38"); e("v_mov_b32 v39, 192"); e("s_mov_b64 exec, 1"); e("global_atomic_umax v39, v38, s[64:65] sc1"); e("s_waitcnt vmcnt(0)")
        lab("SPW"); e("s_sleep 20"); e("s_memrealtime s[98:99]"); e("s_waitcnt lgkmcnt(0)"); e("s_sub_u32 s98, s98, s96"); e(f"s_cmp_lt_u32 s98, {SPIN*100-1500}"); e("s_cbranch_scc1 SPW")
        e("global_load_dword v38, v39, s[64:65] sc1"); e("s_waitcnt vmcnt(0)"); e("v_not_b32 v38, v38"); e("s_nop 1"); e("v_readfirstlane_b32 s96, v38")
    e(f"s_add_u32 s91, s91, {SPIN*100}") if DA >= 0 else e(f"s_mov_b32 s91, {SPIN*100}")
    lab("SPINL"); e("s_memrealtime s[98:99]"); e("s_waitcnt lgkmcnt(0)"); e("s_sub_u32 s98, s98, s96"); e(f"s_cmp_lt_u32 s98, s91"); e("s_cbranch_scc1 SPINL")
e("s_endpgm")
i = 0
while i < len(tail): tail[i](); flush_near(); i += 1
lab("CODE_END")
e("s_endpgm")

body = A.pad()
hdr = [f"; @launch grid=(256,1,1) block=(256,1,1) lds={LDSSZ}", '.amdgcn_target "amdgcn-amd-amdhsa--gfx950"', ".text",
       f".globl {NAME}_kernel", ".p2align 8", f".type {NAME}_kernel,@function", f"{NAME}_kernel:"]
ftr = ['.section .rodata,"a"', ".p2align 6", f".amdhsa_kernel {NAME}_kernel", "  .amdhsa_next_free_vgpr 512", "  .amdhsa_next_free_sgpr 102",
       "  .amdhsa_accum_offset 256", "  .amdhsa_group_segment_fixed_size 0", "  .amdhsa_kernarg_size 96", "  .amdhsa_user_sgpr_count 2",
       "  .amdhsa_user_sgpr_kernarg_segment_ptr 1", "  .amdhsa_system_sgpr_workgroup_id_x 1", ".end_amdhsa_kernel"]
src = "\n".join(hdr + body + ftr) + "\n"
import re
for m in re.finditer(r"buffer_\S+ .*offset:(\d+)", src): assert int(m.group(1)) < 4096, m.group(0)
for m in re.finditer(r"ds_\S+ .*offset:(\d+)", src): assert int(m.group(1)) < 65536, m.group(0)
open(OUT, "w").write(src)
```

```python
import os, sys
sys.path.insert(0, os.path.dirname(os.path.abspath(__file__)))
from asmlib import Asm
NAME = "interleave_layers__sliding_block_cached__glu_gated_swiglu__decode"
OPT = dict(a.split("=") for a in sys.argv[2:])
OUT = sys.argv[1] if len(sys.argv) > 1 else f"/code/{NAME}.s"
STAMP = int(OPT.get("stamp", 0))
NT = OPT.get("nt", "nt").replace("x", "")
NTW = OPT.get("ntw", "nt").replace("x", "")
SKIP = OPT.get("skip", "").split(",")
RY0 = int(OPT.get("ry0", 0))
GX2 = int(OPT.get("gx2", 1))
FORCESLOW = int(OPT.get("slow", 0))
SPIN = int(OPT.get("spin", 0))
A = Asm(); e = A.e; lab = A.lab
tail = []

RS = 416; SCRW = 16 * RS
SCR = 0; WQ = 4 * SCRW; ROLE = WQ + 30720
WO = ROLE; W1 = ROLE; W3 = ROLE + 20480; W2 = ROLE + 49152
MISC = ROLE + 61440; QB = MISC; ACC = MISC + 512
OACC = 0; YACC = 3072; FACC = 4096
PT = ACC + 5120; ML4 = PT + 1024
FLG = ML4 + 64
LDSSZ = FLG + 64
FDMA = OPT.get("fdma", "late")
OMASK = int(OPT.get("omask", 1))
WDMA = OPT.get("wdma", "mid")
PF = OPT.get("pf", "ow")
NTP = OPT.get("ntp", "x").replace("x", "")
NTR = OPT.get("ntr", "x").replace("x", "")
GB = 81920; oQ = 0; oO = 32768; oML = 45056; oYL = 45312; oFL = 46592; oBA = 47872; oBB = 49152; oGX = 50432
CSO = 7168
GOFF = 8 * GB; oYG = GOFF; oFG = GOFF + 81920; LS = 0xC8000
OOB = 0x7FFFFFF0
sK, sV, sW, sWQ, sRA, sRB, sRC, sX, sO = 8, 12, 16, 20, 24, 28, 32, 36, 40
sG, sJ, sHH, sS, sWV, sKV, sLay, sFast, sCnt = 68, 69, 70, 71, 72, 73, 74, 75, 76
sT0, sT1, sT2 = 77, 78, 79
sLG = 3
sClr = 4
sXcc = 5
sTL = 6
sT3 = 7
sYg, sYl = 80, 81
sMf = 44
def sr(b): return f"s[{b}:{b+3}]"
def sp(b): return f"s[{b}:{b+1}]"
def vr(b, n=4): return f"v[{b}:{b+n-1}]" if n > 1 else f"v{b}"
def ar(b, n=4): return f"a[{b}:{b+n-1}]"
def srd(d, lo, nbytes):
    e(f"s_mov_b32 s{d}, s{lo}"); e(f"s_and_b32 s{d+1}, s{lo+1}, 0xffff")
    e(f"s_mov_b32 s{d+2}, {nbytes}"); e(f"s_mov_b32 s{d+3}, 0x20000")
MASKS = {}
def setexec(mask):
    if mask in MASKS: e(f"s_mov_b64 exec, {sp(MASKS[mask])}"); return
    lo, hi = mask & 0xffffffff, mask >> 32
    if mask == (1 << 64) - 1: e("s_mov_b64 exec, -1")
    elif hi == 0 and lo <= 64: e(f"s_mov_b64 exec, {lo}")
    else: e(f"s_mov_b32 exec_lo, {lo:#x}"); e(f"s_mov_b32 exec_hi, {hi:#x}")
FULL = (1 << 64) - 1
ROWS9 = 0x01FF01FF01FF01FF
vL, vLin, vWr, vKrd, vVrd, vCS, vAq, vAq16, vQst, vQld, vQBw, vQBr, vIdx, vAcc, vTq1, vTq2, vSC, vPw = 0, 1, 2, 5, 6, 7, 8, 9, 10, 11, 12, 13, 14, 15, 16, 17, 18, 19
vC1, vC2, vXR = 20, 21, 22
T = 24
F = 40
SPARE = 88
def vblock(b):
    if b < 2: return ("a", 192 + 24 * b)
    if b == 8: return ("v", SPARE)
    return ("v", 112 + 24 * (b - 2))
def rg(f, b, n): return f"{f}[{b}:{b+n-1}]"

uid = [0]
def nid(): uid[0] += 1; return uid[0]
stamps = [0]
SPINAT = int(OPT.get("spinat", -1))
DA, DB, DC = int(OPT.get("da", -1)), int(OPT.get("db", -1)), int(OPT.get("dc", 0))
JIT = int(OPT.get("jit", 0))
def jitter(mask, prob):
    k = nid()
    e("s_cselect_b32 s98, 1, 0")
    e("s_memtime s[100:101]"); e("s_waitcnt lgkmcnt(0)"); e("s_mul_i32 s100, s100, 0x9e3779b1"); e("s_lshr_b32 s99, s100, 24"); e(f"s_cmp_ge_u32 s99, {prob}"); e(f"s_cbranch_scc1 JX{k}")
    e("s_lshr_b32 s99, s100, 12"); e(f"s_and_b32 s99, s99, {mask}")
    lab(f"JL{k}"); e("s_sleep 4"); e("s_sub_u32 s99, s99, 1"); e("s_cmp_ge_i32 s99, 0"); e(f"s_cbranch_scc1 JL{k}")
    lab(f"JX{k}"); e("s_cmp_eq_u32 s98, 1")
def stamp(i, val=None):
    if JIT and val is None: jitter(JIT, 24); return
    if DA >= 0 and val is None and i in (DA % 16, DB % 16):
        for which, idx in (("a", DA), ("b", DB)):
            if idx % 16 != i: continue
            k = nid()
            e("s_cselect_b32 s98, 1, 0"); e(f"s_cmp_lg_u32 s{sLay}, {LS*(idx//16)}"); e(f"s_cbranch_scc1 ND{k}")
            e("s_memrealtime s[100:101]"); e("s_waitcnt lgkmcnt(0)")
            if which == "a": e("s_mov_b32 s54, s100")
            else:
                e("s_sub_u32 s100, s100, s54")
                if DC > 0: e(f"s_sub_u32 s100, {DC}, s100"); e("s_max_i32 s100, s100, 0")
                if DC < 0: e(f"s_sub_u32 s100, s100, {-DC}"); e("s_max_i32 s100, s100, 0")
                e("s_min_u32 s100, s100, 1000"); e("s_mul_i32 s55, s100, 10")
            lab(f"ND{k}"); e("s_cmp_eq_u32 s98, 1")
    if SPIN and val is None and SPINAT % 16 == i:
        k = nid()
        e(f"s_cmp_lg_u32 s{sLay}, {LS*(SPINAT//16)}"); e(f"s_cbranch_scc1 NOSP{k}")
        e("s_memrealtime s[100:101]"); e("s_waitcnt lgkmcnt(0)"); e("v_accvgpr_write_b32 a253, s100"); lab(f"NOSP{k}")
    if not STAMP: return
    if STAMP == 3 and (val is not None or i != 7): return
    if val == "d":
        if STAMP != 6: return
        val = None
    elif STAMP == 6 and (val is not None or i not in (9, 10, 11)): return
    if STAMP == 5 and (val is not None or i not in (9, 11, 12, 13)): return
    if STAMP == 4 and val != "c": return
    if val == "c":
        if STAMP != 4: return
        val = None
    if STAMP == 2 and val is None and i not in (0, 14): return
    if STAMP == 1 and (val is not None or i == 14): return
    e("s_memrealtime s[100:101]"); e("v_accvgpr_write_b32 a254, v38"); e("v_accvgpr_write_b32 a255, v39")
    e(f"s_lshl_b32 s98, s2, 2"); e(f"s_add_u32 s98, s98, s{sWV}"); e("s_lshl_b32 s98, s98, 7")
    e(f"s_cmp_eq_u32 s{sLay}, 0"); e(f"s_cselect_b32 s99, 0, 64"); e(f"s_add_u32 s99, s99, {4*i}"); e("s_add_u32 s98, s98, s99"); e("s_add_u32 s98, s98, 0x40000000")
    e("s_waitcnt lgkmcnt(0)"); e(f"v_mov_b32 v38, {val or 's100'}"); e("v_mov_b32 v39, 0")
    e("s_mov_b64 s[100:101], exec"); e("s_mov_b64 exec, 1")
    A.vmem(f"buffer_store_dword v38, v39, {sr(sW)}, s98 offen", "stamp")
    e("s_mov_b64 exec, s[100:101]"); e("s_nop 1"); e("v_accvgpr_read_b32 v38, a254"); e("v_accvgpr_read_b32 v39, a255")
sWp = sK
def lstore(instr, counted=None):
    assert sr(sW) in instr and not counted
    k = nid()
    e(instr.replace(sr(sW), sr(sWp)))
    e(f"s_cmp_eq_u32 s{sWp+2}, 0"); e(f"s_cbranch_scc1 SLOW{k}")
    lab(f"BACK{k}")
    def t(): lab(f"SLOW{k}"); e(instr + " sc1"); e(f"s_branch BACK{k}")
    tail.append(t)
def check(regs_, tmp):
    r = list(regs_)
    if len(r) == 1: e(f"v_cmp_eq_u32 vcc, -1, v{r[0]}"); return
    cur = r.pop(0)
    while r:
        if len(r) >= 2: e(f"v_max3_u32 v{tmp}, v{cur}, v{r[0]}, v{r[1]}"); r = r[2:]
        else: e(f"v_max_u32 v{tmp}, v{cur}, v{r[0]}"); r = r[1:]
        cur = tmp
    e(f"v_cmp_eq_u32 vcc, -1, v{tmp}")
LIMIT = 0x8000
def poll(loads, regs_, tmp, pid=None, slp=0, first=None):
    k = nid()
    if pid is not None: stamp(pid, "s100")
    e(f"s_mov_b32 s{sCnt}, 1")
    if first:
        for l in loads: e(l)
        first(); e(f"s_branch POLLW{k}")
    lab(f"POLL{k}")
    for l in loads: e(l)
    lab(f"POLLW{k}")
    e("s_waitcnt vmcnt(0)")
    check(regs_, tmp)
    e(f"s_cbranch_vccnz AGAIN{k}")
    lab(f"POLLX{k}")
    def t():
        lab(f"AGAIN{k}")
        if slp: e(f"s_sleep {slp}")
        e(f"s_add_u32 s{sCnt}, s{sCnt}, 1"); e(f"s_cmp_lt_u32 s{sCnt}, {LIMIT}"); e(f"s_cbranch_scc1 POLL{k}"); e(f"s_branch POLLX{k}")
    near.append(t)
    if pid is not None: stamp(pid + 1, "s100"); stamp(pid + 2, f"s{sCnt}")
    A.drained()
SEL = int(OPT.get("sel", 1)); XF = " " + OPT.get("xf", "").replace("+", " "); XF1 = int(OPT.get("xf1", 0))
def poll_sel(groups, tmp, pid=None, first=None, firstloads=None, xf="", wl=None, w1=0):
    allr = [r for g in groups for r in g[1]]
    loads = firstloads or [l for g in groups for l in g[0]]
    if not SEL: return poll(loads, allr, tmp, pid=pid, first=first)
    k = nid()
    if pid is not None: stamp(pid, "s100")
    for l in loads: e(l + (xf if XF1 else ""))
    if first: first()
    if wl: lab(wl)
    if pid is not None and STAMP == 2: e(f"s_mov_b32 s{sCnt}, 1")
    e(f"s_waitcnt vmcnt({w1})")
    check(allr, tmp)
    e(f"s_cbranch_vccnz AGAIN{k}")
    lab(f"POLLX{k}")
    def t():
        lab(f"AGAIN{k}")
        e("s_mov_b64 s[94:95], exec"); e(f"s_mov_b32 s{sCnt}, 1")
        lab(f"AG2{k}")
        if int(OPT.get("osl", 0)): e(f"s_sleep {OPT['osl']}")
        for gi, (ls, rs) in enumerate(groups):
            if len(groups) > 1: check(rs, tmp)
            e("s_mov_b64 exec, vcc")
            if len(groups) > 1: e(f"s_cbranch_execz AG3{k}_{gi}")
            for l in ls: e(l + xf)
            lab(f"AG3{k}_{gi}"); e("s_mov_b64 exec, s[94:95]")
        e(f"s_add_u32 s{sCnt}, s{sCnt}, 1"); e(f"s_cmp_ge_u32 s{sCnt}, {LIMIT}")
        e("s_waitcnt vmcnt(0)")
        check(allr, tmp)
        e(f"s_cbranch_vccz POLLX{k}"); e(f"s_cbranch_scc0 AG2{k}"); e(f"s_branch POLLX{k}")
    near.append(t)
    if pid is not None: stamp(pid + 1, "s100"); stamp(pid + 2, f"s{sCnt}")
    A.drained()
near = []
def flush_near():
    while near: near.pop(0)()
GATE = int(OPT.get("gate", 1)); GDLY = int(OPT.get("gdly", 0)); ODLY = int(OPT.get("odly", 12))
def gate(sreg, nl, tmp, first=None):
    if not GATE: return
    setexec((1 << nl) - 1)
    poll([f"buffer_load_dword v{tmp}, v{vLin}, {sr(sW)}, s{sreg} offen sc1"], [tmp], tmp, slp=int(OPT.get("gsl", 0)),
         first=(lambda: (setexec(FULL), first(), setexec((1 << nl) - 1))) if first else None)
    if GDLY: e(f"s_sleep {GDLY}")
def poll_nan(loads, body, res):
    k = nid()
    e(f"s_mov_b32 s{sCnt}, 1")
    lab(f"POLL{k}")
    for l in loads: e(l)
    e("s_waitcnt vmcnt(0)")
    body()
    e(f"v_cmp_u_f32 vcc, v{res}, v{res}"); e(f"s_cbranch_vccnz AGAIN{k}")
    lab(f"POLLX{k}")
    def t():
        lab(f"AGAIN{k}"); e(f"s_add_u32 s{sCnt}, s{sCnt}, 1"); e(f"s_cmp_lt_u32 s{sCnt}, {LIMIT}"); e(f"s_cbranch_scc1 POLL{k}"); e(f"s_branch POLLX{k}")
    near.append(t)
def late_check(tag, loads, regs_, tmp, pre=None, post=None):
    k = nid()
    A.wait(tag)
    check(regs_, tmp)
    e(f"s_cbranch_vccnz RETRY{k}")
    lab(f"OK{k}")
    def t():
        lab(f"RETRY{k}")
        if pre: pre()
        save = A.vm; poll(loads, regs_, tmp); A.vm = save
        if post: post()
        e(f"s_branch OK{k}")
    tail.append(t)

sTO = 82
sPo, sPw = 90, 91
vLin2 = vXR + 1
HMAP = OPT.get("hmap", "x")
def head_of(d, k):
    if HMAP == "y": e(f"s_lshl_b32 s{d}, s{k}, 3"); e(f"s_add_u32 s{d}, s{d}, s{sG}")
    elif HMAP == "x": e(f"s_lshl_b32 s{d}, s{sG}, 2"); e(f"s_add_u32 s{d}, s{d}, s{k}")
    else:
        e(f"s_lshr_b32 s{d}, s{sG}, 2"); e(f"s_mul_i32 s{d}, s{d}, 3"); e(f"s_add_u32 s{d}, s{d}, s{k}"); e(f"s_lshl_b32 s{d}, s{d}, 2"); e(f"s_add_u32 s{d}, s{d}, s{sG}")
e("s_load_dwordx16 s[44:59], s[0:1], 0"); e("s_load_dwordx8 s[60:67], s[0:1], 64")
e("s_cmp_ge_u32 s2, 256"); e("s_cbranch_scc1 CODE_END")
e("s_memrealtime s[96:97]")
e("v_lshrrev_b32 v2, 6, v0"); e("v_and_b32 v24, 63, v0"); e(f"v_readfirstlane_b32 s{sWV}, v2")
e(f"s_and_b32 s{sG}, s2, 7"); e(f"s_lshr_b32 s{sJ}, s2, 3"); e(f"s_lshr_b32 s{sHH}, s{sJ}, 3"); e(f"s_and_b32 s{sS}, s{sJ}, 7")
e(f"v_lshlrev_b32 v{vLin}, 4, v24")
head_of(sT0, sHH)
e(f"s_mul_i32 s{sKV}, s{sT0}, 12582912"); e(f"s_lshl_b32 s{sT1}, s{sS}, 2"); e(f"s_add_u32 s{sT1}, s{sT1}, s{sWV}")
e(f"s_mul_i32 s{sT1}, s{sT1}, 6144"); e(f"s_add_u32 s{sKV}, s{sKV}, s{sT1}"); e(f"s_add_u32 s{sKV}, s{sKV}, 11010048")
e(f"v_add_u32 v{vLin2}, 4096, v{vLin}"); e(f"s_mov_b32 s{sK+2}, 402653184"); e(f"s_mov_b32 s{sK+3}, 0x20000")
e("s_getpc_b64 s[100:101]"); lab("PCREF")
e(f"s_sub_u32 s100, s100, PCREF-{NAME}_kernel"); e("s_subb_u32 s101, s101, 0")
e(f"s_lshl_b32 s{sT1}, s{sS}, 12"); e(f"v_lshl_add_u32 v25, v0, 4, s{sT1}")
e(f"v_cmp_gt_u32 vcc, CODE_END-{NAME}_kernel-16, v25"); e("s_and_saveexec_b64 s[98:99], vcc"); e("s_cbranch_execz NOCPF")
e(f"global_load_dwordx4 a[240:243], v25, s[100:101]")
lab("NOCPF"); e("s_mov_b64 exec, -1")
e(f"s_mul_i32 s{sT2}, s{sT0}, 384")
e(f"s_mov_b32 s{sLay}, 0"); e(f"s_mul_i32 s{sLG}, s{sG}, {GB}"); e(f"s_getreg_b32 s{sFast}, hwreg(HW_REG_XCC_ID, 0, 4)")
e(f"s_lshl_b32 s{sT0}, s{sJ}, 9"); e(f"s_add_u32 s{sT0}, s{sT0}, s{sLG}"); e(f"s_add_u32 s{sT0}, s{sT0}, {oO}"); e(f"v_add_u32 v{vC1}, s{sT0}, v{vLin}")
e(f"s_lshl_b32 s{sT0}, s{sG}, 2"); e(f"s_add_u32 s{sT0}, s{sT0}, s{sJ}"); e(f"s_mul_i32 s{sT0}, s{sT0}, {2560 if RY0 else 320}"); e(f"s_add_u32 s{sT0}, s{sT0}, {oYG-512}"); e(f"s_add_u32 s{sClr}, s{sT0}, 1024"); e(f"v_add_u32 v25, s{sT0}, v{vLin}")
e("v_cmp_le_u32 vcc, 32, v0"); e(f"v_cndmask_b32 v{vC2}, v{vC1}, v25, vcc"); e(f"v_mov_b32 v25, {OOB}"); e(f"v_cndmask_b32 v{vC1}, v{vC1}, v25, vcc")
e(f"s_cmp_lt_u32 s{sJ}, 4"); e(f"s_cselect_b32 s{sT0}, {64 if RY0 else 52}, 32"); e(f"v_cmp_le_u32 vcc, s{sT0}, v0"); e(f"v_cndmask_b32 v{vC2}, v{vC2}, v25, vcc")
e(f"s_mov_b32 s{sW+2}, 1610612736"); e(f"s_mov_b32 s{sW+3}, 0x20000")
e("s_waitcnt lgkmcnt(0)")
e(f"s_mov_b32 s{sK}, s46"); e(f"s_and_b32 s{sK+1}, s47, 0xffff"); e(f"s_mov_b32 s{sW}, s66"); e(f"s_and_b32 s{sW+1}, s67, 0xffff")
if SPIN: e("v_mov_b32 v38, s96"); e("v_accvgpr_write_b32 a253, v38")
SPM = OPT.get("spm", "")
if DA >= 0: e("s_mov_b32 s54, s96"); e("s_mov_b32 s55, 0")
RW = int(OPT.get("rw", 16)); RF = (320 - 20 * RW) // 12
assert 20 * RW + 12 * RF == 320
NPW = -(-max(RW, RF) * 24 // 64)
pend = []
def q_tile(srdn, t, f, base, tag):
    so = sKV if t == 0 else sTO + t
    for i in range(6):
        pend.append((f"buffer_load_dwordx4 {rg(f, base+4*i, 4)}, v{vLin if i < 4 else vLin2}, {sr(srdn)}, s{so} offen offset:{1024*(i%4)} {NT}", tag))
def qK(t): q_tile(sK, t, "a", 24 * t, f"K{t}")
def qV(t): f, b = vblock(t + 1); q_tile(sV, t, f, b, f"V{t}")
def q_pfo():
    for n in range(9): pend.append((f"buffer_load_dwordx4 a[240:243], v{[vLin, vLin, vLin2, 108, 109][n//2]}, {sr(sWQ)}, s{sPo} offen offset:{1024*(n%4)} {NTP}", "pfo"))
def q_pfw():
    for n in range(NPW): pend.append((f"buffer_load_dwordx4 a[240:243], v{101+n}, {sr(sX)}, s{sPw} offen {NTP}", "pfw"))
nfill = [0]; BARN = int(OPT.get("barn", 6)); THR = int(OPT.get("thr", 0)); THRE = int(OPT.get("thre", 0)); THS = int(OPT.get("ths", 20)); THP = int(OPT.get("thp", 1))
hold = {"V7", "pfw", "pfo"}; LA = int(OPT.get("la", 12))
def ahead(tag, LA=LA):
    while tag in A.vm and pend and pend[0][1] not in hold and len(A.vm) - 1 - max(i for i, x in enumerate(A.vm) if x == tag) < LA: fill()
def fill(n=1):
    for _ in range(n):
        if pend and not (pend[0][1] in hold):
            if THR and nfill[0] >= THS and len(pend) > THRE:
                k = nid(); e(f"s_bitcmp{THP}_b32 s{sFast}, 0"); e(f"s_cbranch_scc1 TH{k}"); e(f"s_waitcnt vmcnt({THR-1})"); lab(f"TH{k}")
            x, tag = pend.pop(0); A.vmem(x, tag); nfill[0] += 1
            if BARN and nfill[0] > 12 and nfill[0] % BARN == 0 and len(pend) >= 3: e("s_barrier")
BARS = OPT.get("bar", "").split(",")
def upto(tag):
    while any(t == tag for _, t in pend): fill()
    if tag in BARS or "every" in BARS and tag not in ("K0", "K1", "V7"): e("s_barrier")
def Kld(t): upto(f"K{t}")
def Vld(t): upto(f"V{t}")
for it in OPT.get("order", "K0 K1 K2 K3 K4 K5 K6 K7 V0 V1 V2 V3 V4 V5 V6 V7").replace(",", " ").split():
    if it == "w":
        if "pfw" not in SKIP: q_pfw()
    elif it == "o":
        if "pfo" not in SKIP: q_pfo()
    elif it[0] == "K": qK(int(it[1]))
    else: qV(int(it[1]))
if JIT: jitter(255, 16)
fill(int(OPT.get("k0e", 2)))
e(f"s_or_b32 s{sT0}, s2, s{sWV}"); e("s_cbranch_scc1 NOTAG")
e(f"s_or_b32 s{sT0}, s96, 1"); e(f"v_mov_b32 v26, s{sT0}"); setexec(1); e(f"global_store_dword v{vLin}, v26, s[64:65] sc1"); setexec(FULL)
lab("NOTAG")
if STAMP == 1: e("s_memrealtime s[94:95]")
e(f"s_add_u32 s{sTO+1}, s{sKV}, 196608")
srd(sV, 48, 402653184); srd(sWQ, 50, 7864320); srd(sX, 44, 1280); srd(sO, 62, 1280)
srd(sRB, 58, 1966080); srd(sRC, 60, 1966080)
e(f"s_cmp_lt_u32 s{sJ}, 20"); e(f"s_cselect_b32 s{sRA}, s52, s56"); e(f"s_cselect_b32 s{sRA+1}, s53, s57"); e(f"s_cselect_b32 s{sRA+2}, s{sWQ+2}, s{sRB+2}")
e(f"s_and_b32 s{sRA+1}, s{sRA+1}, 0xffff"); e(f"s_mov_b32 s{sRA+3}, 0x20000")
TLBW = OPT.get("tlbw", "")
def tlb_touch():
    e(f"s_cmp_lg_u32 s{sWV}, 3"); e("s_cbranch_scc1 NOTLB")
    if "j" in TLBW: e(f"s_cmp_lg_u32 s{sS}, 0"); e("s_cbranch_scc1 NOTLB")
    e("v_mul_u32_u24 v26, 1376256, v24"); e("v_lshlrev_b32 v27, 20, v24")
    setexec(3)
    if "v" in TLBW: e(f"buffer_load_dword a243, v26, {sr(sV)}, s{sKV} offen nt"); e(f"buffer_load_dword a243, v26, {sr(sK)}, s{sKV} offen nt")
    if "w" in TLBW:
        e(f"global_load_dword a243, v27, s[56:57] nt"); e(f"buffer_load_dword a243, v27, {sr(sRB)}, 0 offen nt"); e(f"buffer_load_dword a243, v27, {sr(sRC)}, 0 offen nt")
        setexec(0xff); e(f"global_load_dword a243, v27, s[52:53] nt")
    setexec(FULL)
    lab("NOTLB")
if TLBW: tlb_touch()
if STAMP:
    e(f"s_lshl_b32 s98, s2, 2"); e(f"s_add_u32 s98, s98, s{sWV}"); e("s_lshl_b32 s98, s98, 7"); e("s_add_u32 s98, s98, 0x40000000")
    e("v_mov_b32 v38, s96"); e("v_mov_b32 v39, 0"); e("s_mov_b64 exec, 1")
    A.vmem(f"buffer_store_dword v38, v39, {sr(sW)}, s98 offen", "stamp")
    if STAMP == 1: e("s_waitcnt lgkmcnt(0)"); e("v_mov_b32 v37, s94"); A.vmem(f"buffer_store_dword v37, v39, {sr(sW)}, s98 offen offset:56", "stamp")
    e("s_mov_b64 exec, -1")
for t in range(2, 8): e(f"s_add_u32 s{sTO+t}, s{sTO+t-1}, 196608")
e(f"v_mov_b32 v{vL}, v24")
e(f"s_mul_i32 s{sT0}, s{sWV}, {SCRW}")
for r in range(3):
    e(f"v_add_u32 v25, {64*r}, v{vL}"); e("v_mul_u32_u24 v26, 171, v25"); e("v_lshrrev_b32 v26, 12, v26")
    e("v_mul_u32_u24 v27, 24, v26"); e("v_sub_u32 v27, v25, v27"); e("v_lshlrev_b32 v27, 4, v27")
    e(f"v_mul_u32_u24 v25, {RS}, v26"); e(f"v_add3_u32 v{vWr+r}, v25, v27, s{sT0}")
    e(f"v_mul_u32_u24 v25, 12288, v26"); e(f"v_add_u32 v{F+r}, v25, v27")
assert all((c * 171) >> 12 == c // 24 for c in range(192))
e(f"v_and_b32 v25, 15, v{vL}"); e(f"v_lshrrev_b32 v26, 4, v{vL}")
e(f"v_bfe_u32 v27, v{vL}, 2, 2"); e(f"v_and_b32 v28, 3, v{vL}")
e(f"s_mul_i32 s{sT1}, s{sS}, 160")
e(f"v_lshlrev_b32 v36, 4, v26"); e(f"v_lshlrev_b32 v37, 3, v26"); e(f"v_lshlrev_b32 v39, 2, v{vL}")
A.vmem(f"buffer_load_dwordx4 v[70:73], v36, {sr(sX)}, s{sT1} offen", "x")
A.vmem(f"buffer_load_dwordx4 v[74:77], v36, {sr(sX)}, s{sT1} offen offset:64", "x")
A.vmem(f"buffer_load_dwordx2 v[78:79], v37, {sr(sX)}, s{sT1} offen offset:128", "x")
A.vmem(f"buffer_load_dwordx4 v[80:83], v{vLin}, {sr(sX)}, 0 offen", "x")
A.vmem(f"buffer_load_dword v84, v39, {sr(sX)}, 0 offen offset:1024", "x")
e(f"s_lshl_b32 s{sT3}, s{sJ}, 6"); e(f"v_lshlrev_b32 v38, 2, v25")
A.vmem(f"buffer_load_dword v{vXR}, v38, {sr(sX)}, s{sT3} offen", "x")
e(f"s_mul_i32 s{sT1}, s{sS}, {80*12288}"); e(f"s_add_u32 s{sT2}, s{sT2}, s{sT1}")
e(f"s_mul_i32 s{sT1}, s{sWV}, {8*12288}"); e(f"s_add_u32 s{sT2}, s{sT2}, s{sT1}")
e(f"s_mul_i32 s{sT1}, s{sWV}, 3072"); e(f"s_add_u32 s{sT1}, s{sT1}, {WQ}")
for gi in range(3):
    if gi == 2: e(f"s_cmp_ge_u32 s{sWV}, 2"); e("s_cbranch_scc1 NOWQ3")
    for r in range(3):
        e(f"s_add_u32 m0, s{sT1}, {gi*4*3072 + r*1024}")
        if "wq" not in SKIP: A.vmem(f"buffer_load_dwordx4 v{F+r}, {sr(sWQ)}, s{sT2} offen {NTW} lds", "wq", counted=(gi < 2))
    if gi < 2: e(f"s_add_u32 s{sT2}, s{sT2}, {32*12288}")
lab("NOWQ3")
e(f"s_mul_i32 s{sT1}, s{sS}, 160")
srd(sWQ, 52, 7864320)
e(f"s_cmp_lt_u32 s{sWV}, 2"); e(f"s_cselect_b32 s{sX}, s56, s58"); e(f"s_cselect_b32 s{sX+1}, s57, s59"); e(f"s_and_b32 s{sX+1}, s{sX+1}, 0xffff"); e(f"s_mov_b32 s{sX+2}, 1966080")
fill(3)
e(f"v_mul_u32_u24 v29, {RS}, v25"); e(f"v_lshl_add_u32 v29, v26, 4, v29"); e(f"v_add_u32 v{vKrd}, s{sT0}, v29")
e(f"v_lshrrev_b32 v29, 2, v{vL}"); e(f"v_mul_u32_u24 v29, {RS}, v29"); e(f"v_lshl_add_u32 v29, v28, 3, v29"); e(f"v_add_u32 v{vVrd}, s{sT0}, v29")
e(f"s_mul_i32 s{sT2}, s{sWV}, 96"); e(f"s_add_u32 s{sT2}, s{sT2}, {WQ}")
e("v_lshl_add_u32 v29, v26, 3, v27"); e("v_mul_u32_u24 v29, 384, v29"); e("v_lshl_add_u32 v29, v28, 3, v29"); e(f"v_add_u32 v{vTq1}, s{sT2}, v29")
e("v_lshl_add_u32 v29, v26, 2, v27"); e("v_mul_u32_u24 v29, 384, v29"); e("v_lshl_add_u32 v29, v28, 3, v29"); e(f"v_add_u32 v{vTq2}, s{sT2}, v29")
REPL = int(OPT.get("repl", 1))
SHB = OPT.get("shb", "fl")
def rowbase(dst, m, og, ol, ob, tmp):
    e(f"s_mul_i32 s{sT3}, s{sG}, {10240 if REPL else 0}")
    if og == oYG and not RY0: e(f"s_cmp_eq_u32 s{sLay}, 0"); e(f"s_cselect_b32 s{sT3}, 0, s{sT3}")
    e(f"s_add_u32 s{sT3}, s{sT3}, {og}")
    e(f"v_mul_u32_u24 v{dst}, 1280, v{m}"); e(f"v_add_u32 v{dst}, s{sT3}, v{dst}")
    e(f"s_mul_i32 s{sT3}, s{sG}, {GB}"); e(f"s_add_u32 s{sT3}, s{sT3}, {ol}"); e(f"v_mov_b32 v{tmp}, s{sT3}")
    e(f"v_cmp_eq_u32 vcc, s{sG}, v{m}"); e(f"v_cndmask_b32 v{dst}, v{dst}, v{tmp}, vcc")
    if ob is not None:
        e(f"v_add_u32 v{tmp}, {ob-ol}, v{tmp}"); e(f"v_cmp_le_u32 vcc, 8, v{m}"); e(f"v_cndmask_b32 v{dst}, v{dst}, v{tmp}, vcc")
fill()
if "l" in SHB: e(f"s_mul_i32 s{sT2}, s{sWV}, 23"); e(f"v_min_u32 v32, 22, v{vL}"); e(f"v_add_u32 v32, s{sT2}, v32"); e("v_min_u32 v32, 89, v32")
else: e(f"v_mov_b32 v32, v{vL}")
assert all((c * 103) >> 10 == c // 10 for c in range(90))
e(f"v_mul_u32_u24 v31, 103, v32"); e("v_lshrrev_b32 v31, 10, v31")
e(f"v_mul_u32_u24 v30, 10, v31"); e(f"v_sub_u32 v30, v32, v30"); e(f"v_lshl_add_u32 v29, v30, 4, s{sT1}")
rowbase(vAq, 31, oFG, oFL, oBB, 30); e(f"v_add_u32 v{vAq}, v{vAq}, v29")
if "l" in SHB: e("v_add_u32 v33, v31, v32"); e("v_lshlrev_b32 v33, 4, v33"); e("v_add_u32 v33, 4096, v33")
e("v_add_u32 v31, 6, v31"); rowbase(vAq16, 31, oFG, oFL, oBB, 30); e(f"v_add_u32 v{vAq16}, v{vAq16}, v29")
e(f"v_mov_b32 v30, {OOB}"); e(f"v_cmp_le_u32 vcc, 30, v{vL}"); e(f"v_cndmask_b32 v{vAq16}, v{vAq16}, v30, vcc")
if "l" in SHB: e(f"v_mov_b32 v{vAq16}, v33")
e(f"s_lshl_b32 s{sT1}, s{sJ}, 10"); e(f"s_lshl_b32 s{sT2}, s{sWV}, 8"); e(f"s_add_u32 s{sT1}, s{sT1}, s{sT2}")
e(f"v_lshl_add_u32 v{vQst}, v{vL}, 2, s{sT1}")
e(f"s_lshl_b32 s{sT1}, s{sHH}, 13"); e(f"s_add_u32 s{sT1}, s{sT1}, s{sT2}")
e(f"v_lshlrev_b32 v29, 10, v26"); e(f"v_lshl_add_u32 v29, v25, 4, v29"); e(f"v_add_u32 v{vQld}, s{sT1}, v29")
fill()
e(f"s_mul_i32 s{sT1}, s{sWV}, 96"); e(f"s_add_u32 s{sT1}, s{sT1}, {QB}")
e(f"v_lshl_add_u32 v29, v27, 5, s{sT1}"); e("v_lshl_add_u32 v29, v28, 2, v29"); e("v_lshrrev_b32 v30, 1, v26"); e("v_lshl_add_u32 v29, v30, 4, v29")
e("v_and_b32 v30, 1, v26"); e("v_lshl_add_u32 v29, v30, 1, v29"); e(f"v_mov_b32 v30, {QB+384}")
e("v_cmp_le_u32 vcc, 12, v25"); e(f"v_cndmask_b32 v{vQBw}, v29, v30, vcc")
e(f"v_and_b32 v30, 1, v{vL}"); e(f"v_lshlrev_b32 v29, 5, v26"); e("v_lshl_add_u32 v29, v30, 4, v29"); e(f"v_add_u32 v{vQBr}, {QB}, v29")
e("v_mul_u32_u24 v30, 0xaaaa, v30"); e("v_and_b32 v29, 1, v27"); e("v_mul_u32_u24 v29, 0xaaaa, v29"); e("v_lshl_or_b32 v29, v29, 16, v30"); e(f"v_add_u32 v{vIdx}, 0x44444444, v29")
fill()
e(f"s_lshl_b32 s{sT1}, s{sWV}, 8"); e(f"s_add_u32 s{sT1}, s{sT1}, {PT}")
e(f"v_lshrrev_b32 v29, 5, v{vL}"); e(f"v_lshl_add_u32 v29, v29, 6, s{sT1}")
for bit, sh in ((3, 5), (1, 4), (2, 3), (4, 2), (0, 1)): e(f"v_bfe_u32 v30, v{vL}, {bit}, 1"); e(f"v_lshl_add_u32 v29, v30, {sh}, v29")
e(f"v_mov_b32 v{vPw}, v29")
e(f"v_bfe_u32 v29, v{vL}, 4, 1"); e(f"v_bfe_u32 v30, v{vL}, 2, 1"); e(f"v_lshl_add_u32 v29, v29, 5, s{sT1}"); e("v_lshl_add_u32 v29, v30, 4, v29"); e("v_accvgpr_write_b32 a252, v29")
e(f"s_mul_i32 s{sT1}, s{sWV}, 768"); e(f"s_add_u32 s{sT1}, s{sT1}, {ACC}"); e(f"v_lshl_add_u32 v29, v25, 2, s{sT1}")
e(f"v_bfe_u32 v30, v{vL}, 4, 1"); e("v_lshl_add_u32 v29, v30, 7, v29"); e(f"v_lshrrev_b32 v30, 5, v{vL}"); e(f"v_lshl_add_u32 v{vAcc}, v30, 6, v29")

def Krel(t):
    upto(f"K{t}"); ahead(f"K{t}"); A.wait(f"K{t}")
    if "rel" in SKIP: return
    for i in range(6): e(f"ds_write_b128 v{vWr+i%3}, {ar(24*t+4*i)} offset:{(i//3)*8*RS}")
    for ks in range(6): e(f"ds_read_b128 {ar(24*t+4*ks)}, v{vKrd} offset:{64*ks}")
def Vrel(t):
    upto(f"V{t}"); ahead(f"V{t}"); A.wait(f"V{t}")
    if "rel" in SKIP: return
    f, b = vblock(t + 1)
    for i in range(6): e(f"ds_write_b128 v{vWr+i%3}, {rg(f, b+4*i, 4)} offset:{(i//3)*8*RS}")
    f, b = vblock(t & ~1)
    for dt in range(12): e(f"ds_read_b64_tr_b16 {rg(f, b+4*dt+2*(t&1), 2)}, v{vVrd} offset:{32*dt}")
def wq_frags():
    for t in range(3):
        b = F + 10 * t
        for kk in range(2):
            for h in range(2): e(f"ds_read_b64_tr_b16 {vr(b+4*kk+2*h,2)}, v{vTq1} offset:{(32*kk+4*h)*384+32*t}")
        e(f"ds_read_b64_tr_b16 {vr(b+8,2)}, v{vTq2} offset:{64*384+32*t}")
def qstage(a, soff, tag=None, waits=False, fl=0):
    def mm(t, kk):
        n = 4 if kk < 2 else 2
        bb = vr(F + 10 * t + 4 * kk, n) if t < 3 else vr(a + 4 * kk, n)
        c = "0" if kk == 0 else vr(T + 4 * t)
        e(f"v_mfma_f32_16x16x{32 if kk<2 else 16}_bf16 {vr(T+4*t)}, {vr(a+4*kk,n)}, {bb}, {c}")
    def s4(t): return [f"v_add_f32 v{T+4*t}, v{T+4*t}, v{T+4*t+1}", f"v_add_f32 v{T+4*t+2}, v{T+4*t+2}, v{T+4*t+3}", f"v_add_f32 v{T+4*t}, v{T+4*t}, v{T+4*t+2}"]
    if waits: e("s_waitcnt lgkmcnt(2)")
    mm(0, 0); mm(2, 0)
    if waits: e("s_waitcnt lgkmcnt(0)")
    mm(0, 1); mm(2, 1); mm(0, 2); mm(2, 2)
    mm(1, 0); mm(3, 0); mm(1, 1); mm(3, 1); mm(1, 2); mm(3, 2)
    fill(fl)
    for x in s4(0) + s4(2): e(x)
    e(f"v_permlane32_swap_b32 v{T}, v{T+8}")
    x1, x3 = s4(1), s4(3)
    for x in x1[:2] + x3[:2] + [f"v_add_f32 v{T}, v{T}, v{T+8}"] + x1[2:] + x3[2:]: e(x)
    e(f"v_permlane32_swap_b32 v{T+4}, v{T+12}"); e(f"v_add_f32 v{T+4}, v{T+4}, v{T+12}")
    e(f"v_permlane16_swap_b32 v{T}, v{T+4}"); e(f"v_add_f32 v{T}, v{T}, v{T+4}")
    if tag and "qst" in SKIP: pass
    elif tag:
        for q in (1, 2, 3): e(f"v_mov_b32_dpp v{T+q}, v{T} quad_perm:[{q},{q},{q},{q}] row_mask:0xf bank_mask:0xf")
        setexec(0x1111111111111111); A.vmem(f"buffer_store_dwordx4 {vr(T)}, v{vQst}, {sr(sW)}, {soff} offen {'' if 'qplain' in SKIP else 'sc1'}", tag); setexec(FULL)
    else: lstore(f"buffer_store_dword v{T}, v{vQst}, {sr(sW)}, {soff} offen")
def xreduce(r0, r1, r2, r3):
    e(f"v_permlane32_swap_b32 v{r0}, v{r2}"); e(f"v_permlane32_swap_b32 v{r1}, v{r3}")
    e(f"v_add_f32 v{r0}, v{r0}, v{r2}"); e(f"v_add_f32 v{r1}, v{r1}, v{r3}")
    e(f"v_permlane16_swap_b32 v{r0}, v{r1}"); e(f"v_add_f32 v{r0}, v{r0}, v{r1}")
def qloads(b, s0, s1): return [f"buffer_load_dwordx4 {vr(b)}, v{vQld}, {sr(sW)}, {s0} offen sc1", f"buffer_load_dwordx4 {vr(b+4)}, v{vQld}, {sr(sW)}, {s1} offen sc1"]
def qsum(b):
    for q in range(4): e(f"v_add_f32 v{b+q}, v{b+q}, v{b+4+q}")
    xreduce(b, b + 1, b + 2, b + 3)
def rowred(op, v, tmp, steps):
    for sft in steps: e(f"v_{op}_f32_dpp v{v}, v{v}, v{v} row_ror:{sft} row_mask:0xf bank_mask:0xf")
def xrow(op, v, tmp, both=True):
    if both:
        e(f"v_mov_b32 v{tmp}, v{v}"); e(f"v_permlane32_swap_b32 v{v}, v{tmp}"); e(f"v_{op}_f32 v{v}, v{v}, v{tmp}")
    e(f"v_mov_b32 v{tmp}, v{v}"); e(f"v_permlane16_swap_b32 v{v}, v{tmp}"); e(f"v_{op}_f32 v{v}, v{v}, v{tmp}")
QF = 28; DQ = 40; PA = 72; X = 24; vM = 26
def att_zero():
    for t in range(8): e(f"v_mov_b32 v{DQ+4*t}, 0"); e(f"v_mov_b32 v{DQ+4*t+1}, 0")
    for q in range(16): e(f"v_mov_b32 v{PA+q}, 0")
def q_finish(b, mid=None):
    e(f"v_readlane_b32 s{sT0}, v{b}, 15")
    e(f"s_mov_b32 vcc_lo, 0x70007000"); e(f"s_mov_b32 vcc_hi, 0x70007000")
    e(f"v_fma_f32 v{b+1}, -s{sT0}, v{vCS}, v{b}")
    e(f"v_cvt_pk_bf16_f32 v{b+1}, v{b+1}, v{b+1}")
    e(f"ds_write_b16 v{vQBw}, v{b+1}")
    e(f"v_cndmask_b32 v{b+2}, 0, v{b}, vcc")
    e(f"v_add_f32_dpp v{b+2}, v{b+2}, v{b+2} quad_perm:[1,0,3,2] row_mask:0xf bank_mask:0xf")
    e(f"v_add_f32_dpp v{b+2}, v{b+2}, v{b+2} quad_perm:[2,3,0,1] row_mask:0xf bank_mask:0xf")
    e(f"v_mov_b32 v{b+3}, v{b+2}"); e(f"v_permlane32_swap_b32 v{b+2}, v{b+3}"); e(f"v_add_f32 v{b+2}, v{b+2}, v{b+3}")
    if mid: mid()
    else: e("s_waitcnt lgkmcnt(0)"); e("s_barrier")
    for ks in range(3): e(f"ds_read_b128 {vr(QF+4*ks)}, v{vQBr} offset:{128*ks}")
    e(f"v_mov_b32 v{b+3}, v{b+2}"); e(f"v_mov_b32 v{b+1}, s{sT0}"); e(f"v_subrev_f32 v{b+1}, 0x44200000, v{b+1}")
    e(f"v_permlane16_swap_b32 v{b+2}, v{b+3}"); e(f"v_add_f32 v{b+2}, v{b+2}, v{b+3}")
    e(f"v_mul_f32 v{b}, 0x3acccccd, v{b+1}")
    e(f"v_readlane_b32 s{sT0}, v{b+2}, 15")
    e(f"v_mul_f32 v{b}, v{b}, v{b}"); e(f"s_mov_b32 s{sT1}, 0x3acccccd")
    e(f"v_sub_f32 v{b+2}, s{sT0}, v{b+1}")
    e(f"v_fma_f32 v{b+2}, v{b+2}, s{sT1}, -v{b}"); e(f"v_max_f32 v{b+2}, 0, v{b+2}"); e(f"v_add_f32 v{b+2}, 0x3727c5ac, v{b+2}")
    e(f"v_rsq_f32 v{b+2}, v{b+2}"); e(f"v_mul_f32 v{vSC}, 0x3dd53b94, v{b+2}")
def qk_softmax(fl=0):
    def fold(t): e(f"v_add_f32_dpp v{X+t//4}, v{DQ+4*t}, v{DQ+4*t+1} quad_perm:[0,1,2,3] row_mask:{1<<(t%4):#x} bank_mask:0xf")
    def mm(t, ks): e(f"v_smfmac_f32_16x16x64_bf16 {vr(DQ+4*t)}, {vr(QF+4*ks)}, {ar(24*t+8*ks, 8)}, v{vIdx}")
    for ks in range(3):
        e(f"s_waitcnt lgkmcnt({2-ks})")
        for t in range(8): mm(t, ks)
        if ks != 1: fill(fl)
    S = lambda t: X + t // 4 if t % 4 == 0 else DQ + 4 * t
    for t in range(8):
        e(f"v_add_f32 v{S(t)}, v{DQ+4*t}, v{DQ+4*t+1}")
        if t == 2: e(f"v_max3_f32 v{vM}, v{S(0)}, v{S(1)}, v{S(2)}")
        if t in (4, 6): e(f"v_max3_f32 v{vM}, v{vM}, v{S(t-1)}, v{S(t)}")
    e(f"v_max_f32 v{vM}, v{vM}, v{S(7)}")
    mv = [f"v_mov_b32_dpp v{X+t//4}, v{S(t)} quad_perm:[0,1,2,3] row_mask:{1<<(t%4):#x} bank_mask:0xf" for t in (1, 5, 2, 6, 3, 7)] + ["v_accvgpr_read_b32 v27, a252", "s_nop 0"]
    for sft in (8, 4, 2, 1):
        e(mv.pop(0)); e(mv.pop(0)); e(f"v_max_f32_dpp v{vM}, v{vM}, v{vM} row_ror:{sft} row_mask:0xf bank_mask:0xf")
    fill(fl)
    e(f"v_mul_f32 v{vM}, v{vM}, v{vSC}")
    for q in range(2): e(f"v_fma_f32 v{X+q}, v{X+q}, v{vSC}, -v{vM}")
    for q in range(2): e(f"v_exp_f32 v{X+q}, v{X+q}")
    e(f"v_cvt_pk_bf16_f32 v28, v{X}, v{X+1}")
    e(f"ds_write_b16 v{vPw}, v28"); e(f"ds_write_b16_d16_hi v{vPw}, v28 offset:128")
    setexec(0xFF00FF0000FF00FF)
    for u in range(4): e(f"ds_read_b128 {vr(PA+4*u)}, v27 offset:{64*u}")
    setexec(FULL)
    e(f"v_add_f32 v27, v{X}, v{X+1}")
    z = [f"v_mov_b32 v{F+4*dp}, 0" for dp in range(6)] + [f"s_lshl_b32 s{sT1}, s{sWV}, 3", f"s_add_u32 s{sT1}, s{sT1}, {ML4}"]
    for sft in (8, 4, 2, 1):
        e(z.pop(0)); e(z.pop(0)); e(f"v_add_f32_dpp v27, v27, v27 row_ror:{sft} row_mask:0xf bank_mask:0xf")
    xrow("add", 27, 28)
    e(f"v_mov_b32 v28, s{sT1}"); e(f"ds_write_b64 v28, v[26:27]")
def pv_step(u, order=range(6)):
    f, b = vblock(2 * u)
    for dp in order: e(f"v_smfmac_f32_16x16x64_bf16 {vr(F+4*dp)}, {vr(PA+4*u)}, {rg(f, b+8*dp, 8)}, v{vIdx} abid:1")
def pv_post():
    for q in range(3): e(f"v_permlane16_swap_b32 v{F+8*q}, v{F+8*q+4}"); e(f"v_add_f32 v{F+8*q}, v{F+8*q}, v{F+8*q+4}"); e(f"ds_write_b32 v{vAcc}, v{F+8*q} offset:{OACC+256*q}")

WT = [int(x) for x in OPT.get("wt", "0,3,3,0,6").split(",")]
assert sum(WT) == 12
sDo, sDm = 66, 67
TT = OPT.get("tt", "x").replace("x", "")
ROT = int(OPT.get("rot", 0)); nwd = [0]
def wdma(n, tag=None):
    if "wo" in SKIP: return
    for _ in range(n):
        if ROT and nwd[0] == 6:
            e(f"s_bitcmp1_b32 s{sJ}, 0"); e(f"s_cselect_b32 s{sT1}, 12288, 0"); e(f"s_sub_u32 s{sDm}, s{sDm}, s{sT1}"); e(f"s_mul_i32 s{sT1}, s{sT1}, 20"); e(f"s_sub_u32 s{sDo}, s{sDo}, s{sT1}")
        nwd[0] += 1
        e(f"s_mov_b32 m0, s{sDm}"); e(f"s_add_u32 s{sDm}, s{sDm}, 1024")
        A.vmem(f"buffer_load_dwordx4 v39, {sr(sRA)}, s{sDo} offen {NTR} lds", tag, counted=tag is not None)
        e(f"s_add_u32 s{sDo}, s{sDo}, {(8 if WFL else 16)*1280}")
WFL = int(OPT.get("wfl", 0))
def wdma_addr(fl=True):
    if WFL and fl:
        e(f"v_lshrrev_b32 v38, 3, v{vL}"); e("v_mul_u32_u24 v38, 1280, v38"); e(f"v_and_b32 v39, 7, v{vL}"); e("v_lshl_add_u32 v39, v39, 4, v38"); return
    e(f"v_lshrrev_b32 v38, 2, v{vL}"); e("v_mul_u32_u24 v38, 1280, v38"); e(f"v_and_b32 v39, 3, v{vL}"); e("v_lshl_add_u32 v39, v39, 4, v38")
def role_dma():
    if "dma" in SKIP: return
    e(f"s_cmp_ge_u32 s{sJ}, 20"); e("s_cbranch_scc1 DMAF")
    head_of(sDo, sWV); e(f"s_mul_i32 s{sDo}, s{sDo}, {192*1280}"); e(f"s_lshl_b32 s{sT1}, s{sJ}, 6"); e(f"s_add_u32 s{sDo}, s{sDo}, s{sT1}")
    if WFL: e(f"s_and_b32 s{sT1}, s{sJ}, 1"); e(f"s_mul_i32 s{sT1}, s{sT1}, {96*1280-64}"); e(f"s_add_u32 s{sDo}, s{sDo}, s{sT1}")
    e(f"s_mul_i32 s{sDm}, s{sWV}, 12288"); e(f"s_add_u32 s{sDm}, s{sDm}, {WO}")
    if ROT: e(f"s_bitcmp1_b32 s{sJ}, 0"); e(f"s_cselect_b32 s{sT1}, 6144, 0"); e(f"s_add_u32 s{sDm}, s{sDm}, s{sT1}"); e(f"s_mul_i32 s{sT1}, s{sT1}, 20"); e(f"s_add_u32 s{sDo}, s{sDo}, s{sT1}")
    if TT:
        e(f"v_mul_u32_u24 v38, {191*1280}, v{vL}"); e(f"s_mul_i32 s{sT1}, s{sG}, {192*1280}"); setexec(3)
        if "o" in TT: e(f"buffer_load_dword a243, v38, {sr(sRA)}, s{sDo} offen")
        if "2" in TT: e(f"buffer_load_dword a243, v38, {sr(sRC)}, s{sT1} offen")
        setexec(FULL)
    if WT[0]: wdma_addr(); wdma(WT[0])
    lab("DMAX")
    def t():
        lab("DMAF")
        e(f"s_sub_u32 s{sT1}, s{sJ}, 20"); e(f"s_and_b32 s{sDo}, s{sT1}, 3"); e(f"s_lshl_b32 s{sDo}, s{sDo}, 1"); e(f"s_and_b32 s{sT2}, s{sWV}, 1"); e(f"s_add_u32 s{sDo}, s{sDo}, s{sT2}")
        e(f"s_mul_i32 s{sDo}, s{sDo}, {80*3072}"); e(f"s_lshr_b32 s{sT1}, s{sT1}, 2"); e(f"s_lshl_b32 s{sT1}, s{sT1}, 7"); e(f"s_add_u32 s{sDo}, s{sDo}, s{sT1}")
        e(f"s_mul_i32 s{sT1}, s{sG}, 384"); e(f"s_add_u32 s{sDo}, s{sDo}, s{sT1}")
        e(f"s_mul_i32 s{sDm}, s{sWV}, 10240"); e(f"s_add_u32 s{sDm}, s{sDm}, {W1}")
        if TT:
            e(f"v_mul_u32_u24 v38, {79*3072}, v{vL}"); e(f"s_lshl_b32 s{sT1}, s{sWV}, 3"); e(f"s_add_u32 s{sT1}, s{sT1}, s{sG}"); e(f"s_mul_i32 s{sT1}, s{sT1}, 24"); e(f"s_add_u32 s{sT1}, s{sT1}, s{sJ}")
            e(f"s_sub_u32 s{sT1}, s{sT1}, 8"); e(f"s_mul_i32 s{sT1}, s{sT1}, 10240"); setexec(3)
            if "f" in TT: e(f"buffer_load_dword a243, v38, {sr(sX)}, s{sDo} offen nt")
            setexec(1)
            if "o" in TT: e(f"buffer_load_dword a243, v38, {sr(sWQ)}, s{sT1} offen")
            setexec(FULL)
        if FT[0]: fdma_addr(); fdma(0, FT[0])
        e("s_branch DMAX")
    tail.append(t)
FT = [int(x) for x in OPT.get("ft", "0,0,0,2,8").split(",")]
assert sum(FT) == 10
def fdma_addr():
    e(f"v_lshrrev_b32 v38, 3, v{vL}"); e("v_mul_u32_u24 v38, 3072, v38"); e(f"v_and_b32 v39, 7, v{vL}"); e("v_lshl_add_u32 v38, v39, 4, v38")
    e(f"v_bfe_u32 v39, v{vL}, 4, 1"); e("v_lshlrev_b32 v39, 5, v39"); e("v_xor_b32 v38, v38, v39"); e("v_xor_b32 v39, 64, v38")
def fdma(n0, n, tag=None):
    for k in range(n0, n0 + n):
        e(f"s_mov_b32 m0, s{sDm}"); e(f"s_add_u32 s{sDm}, s{sDm}, 1024")
        A.vmem(f"buffer_load_dwordx4 v{38+(k&1)}, {sr(sX)}, s{sDo} offen {NTW} lds", tag, counted=tag is not None)
        e(f"s_add_u32 s{sDo}, s{sDo}, {8*3072}")
CSL = int(OPT.get("csl", 1))
def cs_store():
    e(f"s_add_u32 s{sT0}, s{sLG}, {2*LS}"); lstore(f"buffer_store_dword v{vCS}, v{vQst}, {sr(sW)}, s{sT0} offen")
def addr_block():
    e(f"v_mov_b32 v109, v{vC1}")
    e(f"v_and_b32 v25, 15, v{vL}"); e(f"v_lshrrev_b32 v26, 4, v{vL}"); e("v_add_u32 v27, 4, v26")
    rowbase(vC1, 26, oFG, oFL, None, 28); rowbase(vC2, 27, oFG, oFL, None, 28)
    e(f"s_min_u32 s{sT3}, s{sJ}, 19"); e(f"s_lshl_b32 s{sT3}, s{sT3}, 6"); e(f"v_lshl_add_u32 v25, v25, 2, s{sT3}")
    e(f"v_add_u32 v{vC1}, v{vC1}, v25"); e(f"v_add_u32 v{vC2}, v{vC2}, v25")
    fill()
    e(f"v_and_b32 v25, 15, v{vL}"); e(f"v_bfe_u32 v27, v{vL}, 2, 2"); e(f"v_and_b32 v28, 3, v{vL}")
    e(f"s_mul_i32 s{sT3}, s{sWV}, 12288"); e(f"s_add_u32 s{sT3}, s{sT3}, {WO}")
    e("v_lshl_add_u32 v29, v26, 3, v27"); e("v_lshlrev_b32 v29, 6, v29"); e("v_lshl_add_u32 v29, v28, 3, v29"); e(f"v_add_u32 v29, s{sT3}, v29"); e("v_accvgpr_write_b32 a246, v29")
    e(f"s_mul_i32 s{sT3}, s{sWV}, 3072"); e(f"s_add_u32 s{sT3}, s{sT3}, {oO}")
    e(f"v_add_u32 v29, s{sT3}, v{vLin}"); e("v_accvgpr_write_b32 a247, v29")
    e(f"s_lshl_b32 s{sT3}, s{sWV}, 6"); e(f"s_add_u32 s{sT3}, s{sT3}, {oML}"); e("v_xor_b32 v29, v26, v27"); e("v_and_b32 v29, 1, v29"); e("v_lshl_add_u32 v29, v29, 2, v28")
    e(f"v_lshl_add_u32 v29, v29, 3, s{sT3}"); e("v_accvgpr_write_b32 a248, v29")
    e(f"s_lshl_b32 s{sT3}, s{sWV}, 8"); e(f"s_add_u32 s{sT3}, s{sT3}, {ACC+YACC}"); e(f"v_lshl_add_u32 v29, v{vL}, 2, s{sT3}"); e("v_accvgpr_write_b32 a249, v29")
    e(f"s_lshl_b32 s{sYl}, s{sJ}, 6"); e(f"s_mul_i32 s{sYg}, s{sG}, 1280"); e(f"s_add_u32 s{sYg}, s{sYg}, s{sYl}"); e(f"s_add_u32 s{sYg}, s{sYg}, {oYG}")
    e(f"s_add_u32 s{sYl}, s{sYl}, s{sLG}"); e(f"s_add_u32 s{sYl}, s{sYl}, {oYL}")
A.wait("x")
for q in range(5): e(f"v_lshlrev_b32 v{88+2*q}, 16, v{80+q}"); e(f"v_and_b32 v{89+2*q}, 0xffff0000, v{80+q}")
e("v_add_f32 v80, v88, v89")
for q in range(2, 10): e(f"v_add_f32 v80, v80, v{88+q}")
rowred("add", 80, None, (8, 4, 2, 1)); xrow("add", 80, 81)
e("v_mul_f32 v80, 0x3acccccd, v80")
for q in range(10): e(f"v_sub_f32 v{88+q}, v{88+q}, v80")
e("v_mul_f32 v82, v88, v88")
for q in range(1, 10): e(f"v_fmac_f32 v82, v{88+q}, v{88+q}")
fill()
rowred("add", 82, None, (8, 4, 2, 1)); xrow("add", 82, 81)
e("v_mul_f32 v82, 0x3acccccd, v82"); e("v_add_f32 v82, 0x3727c5ac, v82"); e("v_rsq_f32 v82, v82")
e("s_mov_b32 vcc_lo, 0xaaaaaaaa"); e("s_mov_b32 vcc_hi, 0xaaaaaaaa"); e("v_mov_b32 v85, 0x3f803f80")
for q in range(10):
    e(f"v_lshlrev_b32 v83, 16, v{70+q}"); e(f"v_and_b32 v84, 0xffff0000, v{70+q}"); e("v_sub_f32 v83, v83, v80"); e("v_sub_f32 v84, v84, v80")
    e("v_mul_f32 v83, v83, v82"); e("v_mul_f32 v84, v84, v82"); e("v_cvt_pk_bf16_f32 v83, v83, v84"); e(f"v_cndmask_b32 v{70+q}, v83, v85, vcc")
    if q == 5: fill()
ahead("wq", int(OPT.get("lax", 6))); A.wait("wq"); e("s_barrier"); wq_frags()
tagl = "global_load_dword v98, v100, s[64:65] sc1"
e("v_mov_b32 v100, 0"); e(f"s_cmp_lg_u32 s{sWV}, 0"); e("s_cbranch_scc1 NOTL"); setexec(1); e(tagl); setexec(FULL); lab("NOTL")
fill(2)
stamp(1)
e(f"s_mul_i32 s{sT2}, s{sWV}, 96"); e(f"s_add_u32 s{sT2}, s{sT2}, {ACC}"); e(f"v_min_u32 v36, 48, v{vL}"); e(f"v_lshl_add_u32 v36, v36, 1, s{sT2}")
e(f"v_mov_b32 v37, {ACC+512}"); e(f"v_cmp_le_u32 vcc, 48, v{vL}"); e("v_cndmask_b32 v36, v36, v37, vcc"); e(f"v_add_u32 v37, {ACC}, v{vLin}")
e("s_waitcnt lgkmcnt(0)")
for kk in range(3):
    for t in range(3):
        n = 4 if kk < 2 else 2
        e(f"v_mfma_f32_16x16x{32 if kk<2 else 16}_bf16 {vr(T+4*t)}, {vr(70+4*kk,n)}, {vr(F+10*t+4*kk,n)}, " + ("0" if kk == 0 else vr(T + 4 * t)))
fill()
e(f"v_mov_b32 v{vCS}, v{T+1}")
for t in (1, 2):
    e(f"v_mov_b32_dpp v{T}, v{T+4*t} quad_perm:[0,1,2,3] row_mask:{1<<t:#x} bank_mask:0xf"); e(f"v_mov_b32_dpp v{vCS}, v{T+4*t+1} quad_perm:[0,1,2,3] row_mask:{1<<t:#x} bank_mask:0xf")
e(f"v_cvt_pk_bf16_f32 v{T}, v{T}, v{T}"); e(f"ds_write_b16 v36, v{T}")
fill(2)
e("s_waitcnt lgkmcnt(0)"); e("s_barrier")
e(f"ds_read_b128 v[28:31], v37"); e(f"s_lshl_b32 s{sT2}, s{sJ}, 9"); e(f"s_add_u32 s{sT2}, s{sT2}, s{sLG}")
e(f"s_cmp_eq_u32 s{sWV}, 0"); e(f"s_cselect_b32 exec_lo, 0xffffff, 1"); e("s_mov_b32 exec_hi, 0"); e(f"s_cselect_b32 s{sT1}, 0, {OOB-0x10000000}"); e(f"v_add_u32 v37, s{sT1}, v{vLin}")
e("s_waitcnt lgkmcnt(0)")
if "qst" not in SKIP: A.vmem(f"buffer_store_dwordx4 v[28:31], v37, {sr(sW)}, s{sT2} offen sc1", "qst")
setexec(FULL)
for q in range(4): e(f"v_mov_b32 v{32+q}, -1")
if RY0:
    e(f"s_lshr_b32 s{sT1}, s{sJ}, 2"); e(f"s_or_b32 s{sT1}, s{sT1}, s{sWV}"); e("s_cbranch_scc1 NOYC")
    for q in range(2): e(f"buffer_store_dwordx4 v[32:35], v{vLin}, {sr(sW)}, s{sClr} offen offset:{1024*q} sc1")
    lab("NOYC")
if "clr" not in SKIP: A.vmem(f"buffer_store_dwordx4 v[32:35], v{vC2}, {sr(sW)}, 0 offen sc1", "qst")
Krel(0)
ahead("qst", int(OPT.get("laq", 9)))
e(f"s_getreg_b32 s{sXcc}, hwreg(HW_REG_XCC_ID, 0, 4)")
e(f"s_cmp_lg_u32 s{sWV}, 0"); e("s_cbranch_scc1 NOHDR")
save = list(A.vm); A.wait("qst"); A.vm = save
e("v_readfirstlane_b32 s96, v98"); e("s_cmp_eq_u32 s96, 0"); e("s_cbranch_scc1 TAGLOOP"); lab("TAGOK")
if SPM == "skmax": e("s_sub_u32 s55, s54, s96"); e("s_add_u32 s55, s55, 300"); e("s_min_u32 s55, s55, 900"); e("s_mul_i32 s55, s55, 10")
if SPM == "skmin": e("s_sub_u32 s55, s96, s54"); e("s_add_u32 s55, s55, 300"); e("s_min_u32 s55, s55, 900"); e("s_mul_i32 s55, s55, 10")
if SPM == "tag": e("s_mov_b32 s54, s96")
def t_():
    lab("TAGLOOP"); e(f"s_mov_b32 s{sCnt}, 0"); lab("TAGL2"); e("s_sleep 8"); e(tagl); e("s_waitcnt vmcnt(0)"); e("v_readfirstlane_b32 s96, v98"); e("s_cmp_lg_u32 s96, 0"); e("s_cbranch_scc1 TAGOK")
    e(f"s_add_u32 s{sCnt}, s{sCnt}, 1"); e(f"s_cmp_lt_u32 s{sCnt}, {LIMIT}"); e("s_cbranch_scc1 TAGL2"); e("s_branch TAGOK")
tail.append(t_)
e(f"v_mov_b32 v99, s{sXcc}"); setexec(1); e(f"buffer_store_dwordx2 v[98:99], v{vLin}, {sr(sW)}, s{sT2} offen offset:384 sc1"); setexec(FULL)
lab("NOHDR")
stamp(1, "s100")
Krel(1); Krel(2)
RT = int(OPT.get("rt", 9))
DT = int(OPT.get("dt", 7))
rdy = [f"buffer_load_dwordx2 v[98:99], v100, {sr(sW)}, 0 offen offset:384 sc1"]
e(f"v_lshlrev_b32 v100, 9, v{vL}"); e(f"v_add_u32 v100, s{sLG}, v100"); e(f"v_bfe_u32 v96, v{vL}, 2, 3"); e(f"v_mul_u32_u24 v96, {GB}, v96"); e(f"v_and_b32 v97, 3, v{vL}"); e("v_lshl_add_u32 v96, v97, 9, v96")
e(f"v_cmp_le_u32 vcc, 32, v{vL}"); e("v_cndmask_b32 v100, v100, v96, vcc"); e(f"s_cmp_eq_u32 s{sWV}, 0"); e(f"s_cselect_b32 s{sT0}, 0, {OOB-0x10000000}"); e(f"v_add_u32 v100, s{sT0}, v100")
def ld(t): Kld(t) if t < 8 else Vld(t - 8)
def rel(t): Krel(t) if t < 8 else Vrel(t - 8)
for t in range(5, RT + 2):
    ld(t)
    if t == DT: stamp(12); role_dma()
    if t == RT: A.vmem(rdy[0], "rdy"); stamp(2, "s100")
    if t == 7: addr_block()
    rel(t - 2)
ahead("rdy"); A.wait("rdy"); e(f"s_mov_b32 s{sCnt}, -1"); e(f"v_mov_b32 v97, {FLG}")
e(f"s_cmp_lg_u32 s{sWV}, 0"); e("s_cbranch_scc1 RDYX")
e("v_cmp_ne_u32 vcc, s96, v98"); e("s_cbranch_vccnz RDYLOOP"); lab("RDYOK")
e(f"v_cmp_ne_u32 vcc, s{sXcc}, v99"); e("s_nop 1"); e(f"v_mov_b32 v96, vcc_lo"); e("ds_write_b32 v97, v96")
lab("RDYX")
stamp(13, f"s{sCnt}")
def t_():
    lab("RDYLOOP")
    if SPM == "rdy": e("v_accvgpr_read_b32 v96, a253"); e("v_add_u32 v96, 2000, v96"); e("v_accvgpr_write_b32 a253, v96")
    e(f"s_mov_b32 s{sCnt}, 0"); lab("RDYL2"); e("s_sleep 8"); e(rdy[0]); e("s_waitcnt vmcnt(0)"); e("v_cmp_ne_u32 vcc, s96, v98"); e("s_cbranch_vccz RDYOK")
    e(f"s_add_u32 s{sCnt}, s{sCnt}, 1"); e(f"s_cmp_lt_u32 s{sCnt}, {LIMIT}"); e("s_cbranch_scc1 RDYL2"); e("s_branch RDYOK")
tail.append(t_)
fill(2)
e("s_waitcnt lgkmcnt(0)"); e("s_barrier"); e("ds_read_b32 v96, v97"); e("s_waitcnt lgkmcnt(0)"); e(f"v_readfirstlane_b32 s{sT0}, v96")
e(f"s_cmp_eq_u32 s{sT0}, 0"); e(f"s_cselect_b32 s{sWp+2}, s{sW+2}, 0")
assert not any(t[0] == "K" for _, t in pend) and DT <= RT + 1
if FORCESLOW: e(f"s_mov_b32 s{sWp+2}, 0")
for d_ in (sWp,): e(f"s_mov_b32 s{d_}, s{sW}"); e(f"s_mov_b32 s{d_+1}, s{sW+1}"); e(f"s_mov_b32 s{d_+3}, 0x20000")
stamp(2)
if "pre" not in SKIP:
    A.vmem(f"buffer_load_dwordx4 a[240:243], v109, {sr(sW)}, 0 offen sc1", "pre")
e(f"s_mul_i32 s{sT0}, s{sJ}, 464"); e(f"s_add_u32 s{sT0}, s{sT0}, s{sLG}"); e(f"s_add_u32 s{sT0}, s{sT0}, {oBB}"); e(f"s_cmp_eq_u32 s{sWV}, 3"); e(f"s_cselect_b32 s{sT0}, s{sT0}, {OOB-0x10000000}")
e(f"v_add_u32 v106, s{sT0}, v{vLin}"); e(f"v_mov_b32 v107, {OOB}"); e(f"v_cmp_le_u32 vcc, 29, v{vL}"); e("v_cndmask_b32 v106, v106, v107, vcc")
if "pre" not in SKIP: A.vmem(f"buffer_load_dwordx4 a[240:243], v106, {sr(sW)}, 0 offen sc1", "pre")
e(f"s_lshl_b32 s{sT0}, s{sJ}, 2"); e(f"s_add_u32 s{sT0}, s{sT0}, s{sWV}"); e(f"s_lshl_b32 s{sT1}, s{sT0}, 8"); e(f"s_add_u32 s{sT1}, s{sT1}, {LS}"); e(f"s_lshl_b32 s{sT0}, s{sT0}, 9"); e(f"s_sub_u32 s{sT0}, s{sT0}, 256")
e(f"v_lshlrev_b32 v24, 7, v{vL}"); e(f"v_add_u32 v25, s{sT0}, v24"); e(f"v_min_u32 v25, {oGX+CSO-128}, v25"); e(f"v_add_u32 v24, s{sT1}, v24"); e(f"v_cmp_gt_u32 vcc, 2, v{vL}"); e("v_cndmask_b32 v24, v25, v24, vcc")
e(f"s_add_u32 s{sT0}, s{sLG}, {LS}"); setexec(63); A.vmem(f"buffer_load_dword a243, v24, {sr(sW)}, s{sT0} offen sc1", "pre"); setexec(FULL)
e(f"s_lshl_b32 s{sT0}, s{sHH}, 12"); e(f"s_mul_i32 s{sT1}, s{sWV}, 96"); e(f"s_add_u32 s{sT0}, s{sT0}, s{sT1}"); e(f"s_add_u32 s{sT0}, s{sT0}, s{sLG}")
e(f"v_lshrrev_b32 v24, 4, v{vL}"); e("v_lshlrev_b32 v24, 9, v24"); e(f"v_and_b32 v25, 15, v{vL}"); e("v_min_u32 v25, 11, v25"); e("v_lshl_add_u32 v24, v25, 3, v24")
for q in range(2):
    if "qg" not in SKIP: A.vmem(f"buffer_load_dwordx2 v[{64+2*q}:{65+2*q}], v24, {sr(sW)}, s{sT0} offen offset:{2048*q} sc1", "qg")
def pack_store16(d, instr_fn):
    for q in (1, 2, 3): e(f"v_mov_b32_dpp v{d+q}, v{d} quad_perm:[{q},{q},{q},{q}] row_mask:0xf bank_mask:0xf")
    setexec(0x1111); instr_fn(); setexec(FULL)
if "b0" in SKIP: e("s_branch NOBASE0")
e(f"s_cmp_lg_u32 s{sWV}, 1"); e("s_cbranch_scc1 NOBASE0"); e(f"s_cmp_ge_u32 s{sJ}, 20"); e("s_cbranch_scc1 NOBASE0")
e(f"v_mov_b32 v28, v{vXR}"); e(f"s_lshl_b32 s{sT0}, s{sJ}, 6"); e(f"s_add_u32 s{sT0}, s{sT0}, s{sLG}"); e(f"s_add_u32 s{sT0}, s{sT0}, {oBA}"); e(f"v_lshlrev_b32 v27, 2, v{vL}")
pack_store16(28, lambda: lstore(f"buffer_store_dwordx4 v[28:31], v27, {sr(sW)}, s{sT0} offen"))
lab("NOBASE0")
stamp(3)
for t in range(RT, RT + 3): rel(t)
ahead("qg"); A.wait("qg")
for q in range(4): e(f"v_lshlrev_b32 v{T+2*q}, 16, v{64+q}"); e(f"v_and_b32 v{T+2*q+1}, 0xffff0000, v{64+q}")
qsum(T)
e(f"v_cvt_pk_bf16_f32 v{T}, v{T}, v{T}"); e(f"ds_write_b16 v{vQBw}, v{T}")
fill(); att_zero()
stamp(4)
fill(2); e("s_waitcnt lgkmcnt(0)"); e("s_barrier")
for ks in range(3): e(f"ds_read_b128 {vr(QF+4*ks)}, v{vQBr} offset:{128*ks}")
e(f"v_mov_b32 v{vSC}, 0x3dd53b94")
qk_softmax(fl=1)
stamp(5)
for t in range(RT + 3, 12): rel(t)
fill(2)
e("s_waitcnt lgkmcnt(0)"); pv_step(0); fill(); pv_step(1)
Vrel(4)
assert sum(1 for _, t in pend if t == "V7") == 6
for q in range(4): e(f"v_mov_b32 v{24+q}, -1")
if "gxc" not in SKIP: lstore(f"buffer_store_dwordx4 v[24:27], v106, {sr(sW)}, 0 offen"); A.vm.append("gxc")
hold.clear(); Vld(7); Vrel(5)
e(f"v_and_b32 v{vXR+1}, 0xffff0000, v{vXR}"); e(f"v_lshlrev_b32 v{vXR}, 16, v{vXR}")
PT_ = [int(x) for x in OPT.get("pt", "7,3").split(",")]
PTF = int(OPT.get("ptf", 1))
def late_pf(w, k0, n):
    if "wo" in SKIP: return
    for k in range(k0, k0 + n):
        if k % 4 == 0 and k: e(f"s_add_u32 s{sPo}, s{sPo}, 4096")
        A.vmem(f"buffer_load_dwordx4 a[240:243], v{vLin}, {sr(sWQ)}, s{sPo} offen offset:{1024*(k%4)} {NTP}", "pfo")
for m_, r_ in ((0x0005000500050005, 82), (ROWS9, 84), ((1 << 45) - 1, 86), ((1 << 23) - 1, 50), (0xFF00FF0000FF00FF, 88), (0x01010101, 92), (0x0F0F0F0F0F0F0F0F if REPL else 0x01010101 + (1 << 63), 44)):
    e(f"s_mov_b32 s{r_}, {m_ & 0xffffffff:#x}"); e(f"s_mov_b32 s{r_+1}, {m_ >> 32:#x}"); MASKS[m_] = r_
if not REPL: e("s_mov_b32 s45, 0")
e(f"s_mov_b64 s[46:47], s[{'44:45' if RY0 else '92:93'}]"); e("s_mov_b64 s[48:49], s[44:45]")
FGE = int(OPT.get("fge", 1))
def rep_addr(d, t):
    e(f"v_and_b32 v{d}, 3, v{vL}"); e(f"v_lshrrev_b32 v{t}, 5, v{vL}"); e(f"v_lshl_add_u32 v{d}, v{t}, 2, v{d}"); e(f"v_mul_u32_u24 v{d}, 10240, v{d}")
    e(f"v_bfe_u32 v{t}, v{vL}, 3, 2"); e(f"v_lshl_add_u32 v{d}, v{t}, 4, v{d}")
def stream_tail(w):
    save = list(A.vm)
    pf = sum(PT_) and not (PTF and w)
    if pf and not PTF:
        e(f"s_lshl_b32 s{sPo}, s{sHH}, 3"); e(f"s_add_u32 s{sPo}, s{sPo}, s{sG}"); e(f"s_lshl_b32 s{sPo}, s{sPo}, 3"); e(f"s_add_u32 s{sPo}, s{sPo}, s{sS}")
        e(f"s_lshl_b32 s{sPo}, s{sPo}, 2"); e(f"s_add_u32 s{sPo}, s{sPo}, s{sWV}"); e(f"s_mul_i32 s{sPo}, s{sPo}, 7680")
    if pf and PTF:
        head_of(sPo, sWV); e(f"s_add_u32 s{sPo}, s{sPo}, 1"); e(f"s_mul_i32 s{sPo}, s{sPo}, {192*1280}")
        e(f"s_sub_u32 s{sT1}, 32, s{sJ}"); e(f"s_mul_i32 s{sT1}, s{sT1}, {1024*sum(PT_)}"); e(f"s_sub_u32 s{sPo}, s{sPo}, s{sT1}")
    if pf: late_pf(w, 0, PT_[0])
    if w and FGE and "fgc" not in SKIP:
        for q in range(4): e(f"v_mov_b32 v{24+q}, -1")
        rep_addr(28, 29); e(f"s_cmp_eq_u32 s{sWV}, 3"); e(f"s_cselect_b32 s{sT0}, 0, {OOB-0x10000000}"); e(f"v_add_u32 v28, s{sT0}, v28"); e(f"s_add_u32 s{sT0}, s{sYg}, {oFG-oYG}")
        e("s_mov_b64 exec, s[44:45]"); A.vmem(f"buffer_store_dwordx4 v[24:27], v28, {sr(sW)}, s{sT0} offen sc1", "fgc"); setexec(FULL)
    if w: wdma_addr(); wdma(WT[1], "wo")
    else: fdma_addr(); fdma(FT[0], FT[1], "f")
    e("s_waitcnt lgkmcnt(0)"); pv_step(2)
    Vrel(6)
    if pf: late_pf(w, PT_[0], PT_[1])
    if w: wdma(WT[2], "wo")
    if not w: fdma(sum(FT[:2]), FT[2], "f")
    x = len(A.vm) - 1 - max(i for i, t in enumerate(A.vm) if t == "V7")
    f_, b_ = vblock(8)
    for i in range(6):
        e(f"s_waitcnt vmcnt({5-i+x})"); e(f"ds_write_b128 v{vWr+i%3}, {rg(f_, b_+4*i, 4)} offset:{(i//3)*8*RS}")
    f_, b_ = vblock(6)
    for dt in range(12): e(f"ds_read_b64_tr_b16 {rg(f_, b_+4*dt+2, 2)}, v{vVrd} offset:{32*dt}")
    if w: wdma(WT[3], "wo")
    if not w: fdma(sum(FT[:3]), FT[3], "f")
    e("s_branch ATT_LAST")
    A.vm = save
e(f"s_cmp_ge_u32 s{sJ}, 20"); e("s_cbranch_scc1 TAILF")
stream_tail(True)
lab("TAILF")
stream_tail(False)
A.drained()
flush_near()

lab("LOOP")
if JIT: jitter(JIT, 40)
def cs_pull():
    e(f"s_add_u32 s{sT0}, s{sLG}, {2*LS}"); e(f"s_add_u32 s{sT1}, s{sT0}, 4096")
    for so in (sT0, sT1): e(f"buffer_load_dwordx4 a[240:243], v{vQld}, {sr(sW)}, s{so} offen sc1")
def loop_prep():
    wq_frags()
    e(f"v_and_b32 v25, 15, v{vL}"); e("v_cmp_eq_u32 vcc, 12, v25"); e("v_mov_b32 v36, 0x3f803f80"); e(f"v_cndmask_b32 v70, 0, v36, vcc")
    for q in range(1, 10): e(f"v_mov_b32 v{70+q}, v70")
    e(f"s_mul_i32 s{sT0}, s{sWV}, {SCRW}" if "l" not in SHB else f"s_mov_b32 s{sT0}, 4096")
    e(f"v_mul_u32_u24 v96, 103, v{vL}"); e("v_lshrrev_b32 v96, 10, v96"); e(f"v_lshl_add_u32 v96, v96, 4, v{vLin}"); e(f"v_add_u32 v96, s{sT0}, v96")
    e(f"v_mul_u32_u24 v97, 176, v25"); e(f"v_add_u32 v97, s{sT0}, v97"); e(f"v_lshrrev_b32 v28, 4, v{vL}"); e("v_lshl_add_u32 v98, v28, 3, v97"); e("v_lshl_add_u32 v97, v28, 4, v97")
e(f"s_cmp_lt_u32 s{sJ}, 20"); e(f"s_cselect_b32 s{sXcc}, s{sWV}, 4")
e(f"s_add_u32 s96, s{sLG}, {LS}"); e("s_add_u32 s97, s96, 4096")
e(f"s_and_b32 s{sT0}, s{sXcc}, 3"); e("s_cbranch_scc1 LOOP2")
loop_prep()
lab("LOOP2")
e(f"s_add_u32 s{sT2}, s{sLG}, 4096")
e(f"s_mul_i32 s{sT0}, s{sS}, 160"); e(f"s_add_u32 s{sT0}, s{sT0}, s{sLG}"); e(f"s_sub_u32 s{sT0}, s{sT0}, {LS-oFL}")
gate(sT0, 10, 24)
setexec((1 << (23 if "l" in SHB else 60)) - 1)
CSA = int(OPT.get("csa", 1))
def sbounce(load, reg, write, reads, first=None, w1=0):
    k = nid()
    e(load)
    if first: first()
    e(f"s_waitcnt vmcnt({w1})")
    lab(f"BW{k}")
    e(write); e(f"v_cmp_eq_u32 vcc, -1, v{reg}"); e(f"s_cbranch_vccnz BR{k}")
    lab(f"BX{k}")
    setexec(ROWS9); e("s_waitcnt lgkmcnt(0)"); e("s_barrier")
    for x in reads: e(x)
    setexec(FULL)
    def t():
        lab(f"BR{k}")
        e(f"s_cmp_ge_u32 s{sCnt}, {LIMIT}"); e(f"s_cbranch_scc1 BX{k}")
        e("s_mov_b64 exec, vcc"); e(load); e(f"s_add_u32 s{sCnt}, s{sCnt}, 1"); e("s_waitcnt vmcnt(0)"); e(f"s_branch BW{k}")
    near.append(t)
def bounce(groups, tmp, writes, reads, first=None, w1=0):
    k = nid(); allr = [r for g in groups for r in g[1]]
    for g in groups:
        for l in g[0]: e(l)
    if first: first()
    e(f"s_waitcnt vmcnt({w1})")
    lab(f"BW{k}")
    for x in writes: e(x)
    check(allr, tmp)
    setexec(ROWS9)
    for x in reads: e(x)
    setexec(FULL)
    e(f"s_cbranch_vccnz BR{k}")
    lab(f"BX{k}")
    def t():
        lab(f"BR{k}")
        e(f"s_cmp_ge_u32 s{sCnt}, {LIMIT}"); e(f"s_cbranch_scc1 BX{k}")
        lab(f"BL{k}")
        for gi, (ls, rs) in enumerate(groups):
            setexec((1 << 60) - 1); check(rs, tmp); e("s_mov_b64 exec, vcc"); e(f"s_cbranch_execz BS{k}_{gi}")
            for l in ls: e(l)
            lab(f"BS{k}_{gi}")
        setexec((1 << 60) - 1)
        e(f"s_add_u32 s{sCnt}, s{sCnt}, 1"); e(f"s_cmp_ge_u32 s{sCnt}, {LIMIT}")
        e("s_waitcnt vmcnt(0)")
        check(allr, tmp)
        e(f"s_cbranch_vccz BW{k}"); e(f"s_cbranch_scc0 BL{k}"); e(f"s_branch BW{k}")
    near.append(t)
assert GATE
if "l" in SHB: sbounce(f"buffer_load_dwordx4 v[80:83], v{vAq}, {sr(sW)}, 0 offen sc1", 80, f"ds_write_b128 v{vAq16}, v[80:83]",
       ["ds_read_b128 v[70:73], v97", "ds_read_b128 v[74:77], v97 offset:64", "ds_read_b64 v[78:79], v98 offset:128"],
       first=(lambda: (setexec(FULL), [e(l) for l in qloads(88, "s96", "s97")], setexec((1 << 23) - 1))) if not CSA else None, w1=2 if not CSA else 0)
else: bounce([([f"buffer_load_dwordx4 v[80:83], v{vAq}, {sr(sW)}, 0 offen sc1"], [80]), ([f"buffer_load_dwordx4 v[84:87], v{vAq16}, {sr(sW)}, 0 offen sc1"], [84])], 24,
       ["ds_write_b128 v96, v[80:83]", f"ds_write_b128 v96, v[84:87] offset:{6*176}"],
       ["ds_read_b128 v[70:73], v97", "ds_read_b128 v[74:77], v97 offset:64", "ds_read_b64 v[78:79], v98 offset:128"],
       first=lambda: [e(l) for l in qloads(88, "s96", "s97")], w1=2)
stamp(1)
e(f"s_cmp_lg_u32 s{sXcc}, 1"); e("s_cbranch_scc1 NOOWL")
e(f"buffer_load_dword a244, v{vC1}, {sr(sW)}, 0 offen sc1"); e(f"buffer_load_dword a245, v{vC2}, {sr(sW)}, 0 offen sc1")
lab("NOOWL")
if CSA:
    for l in qloads(88, "s96", "s97"): e(l)
qstage(70, f"s{sLG}", waits=True)
stamp(2)
att_zero()
e(f"s_waitcnt vmcnt({2 if STAMP == 1 else 1})"); qsum(88); e(f"v_mul_f32 v{vCS}, 0x3acccccd, v88")
for _ in range(int(OPT.get("qd", 0))): e("s_nop 7")
poll_nan(qloads(T, f"s{sLG}", f"s{sT2}"), lambda: qsum(T), T)
stamp(3)
q_finish(T)
stamp(4)
qk_softmax()
stamp(5)
for u in range(3):
    e(f"s_waitcnt lgkmcnt({4-u})"); pv_step(u)
e("s_waitcnt lgkmcnt(0)")
lab("ATT_LAST")
for dp in range(6):
    if dp % 2 == 0: e(f"s_waitcnt lgkmcnt({8-2*dp})")
    pv_step(3, [dp])
def pack8(v):
    e(f"v_mov_b32_dpp v{v+1}, v{v} row_shl:1 row_mask:0xf bank_mask:0xf"); e(f"v_cvt_pk_bf16_f32 v{v}, v{v}, v{v+1}")
    for q in (1, 2, 3): e(f"v_mov_b32_dpp v{v+q}, v{v} row_shl:{2*q} row_mask:0xf bank_mask:0xf")
def pack8q(v):
    e(f"v_mov_b32_dpp v{v+1}, v{v} row_shl:1 row_mask:0xf bank_mask:0xf"); e(f"v_cvt_pk_bf16_f32 v{v+4}, v{v}, v{v+1}")
    e(f"v_mov_b32_dpp v{v}, v{v+4} quad_perm:[0,0,0,0] row_mask:0xf bank_mask:0xf"); e(f"v_mov_b32_dpp v{v+1}, v{v+4} quad_perm:[2,2,2,2] row_mask:0xf bank_mask:0xf")
    e(f"v_mov_b32_dpp v{v+2}, v{v} row_shl:4 row_mask:0xf bank_mask:0xf"); e(f"v_mov_b32_dpp v{v+3}, v{v+1} row_shl:4 row_mask:0xf bank_mask:0xf")
e(f"s_lshl_b32 s{sT0}, s{sWV}, 8"); e(f"s_add_u32 s{sT0}, s{sT0}, {ACC+OACC}"); e(f"v_lshl_add_u32 v24, v{vL}, 2, s{sT0}")
pv_post()
e(f"v_and_b32 v25, 3, v{vL}"); e(f"v_mad_u32_u24 v26, v25, 48, v{vLin}"); e(f"v_lshlrev_b32 v25, 3, v25"); e(f"v_add_u32 v25, {ML4}, v25")
e("s_waitcnt lgkmcnt(0)"); e("s_barrier")
stamp(6)
e("ds_read_b64 v[32:33], v25"); e("ds_read2st64_b32 v[40:41], v24 offset0:0 offset1:3"); e("ds_read2st64_b32 v[42:43], v24 offset0:6 offset1:9")
e(f"s_mul_i32 s{sT0}, s{sHH}, 3072"); e(f"s_lshl_b32 s{sT1}, s{sS}, 4"); e(f"s_add_u32 s{sT0}, s{sT0}, s{sT1}"); e(f"s_lshl_b32 s{sT1}, s{sWV}, 10"); e(f"s_add_u32 s{sT0}, s{sT0}, s{sT1}")
e(f"s_add_u32 s{sT0}, s{sT0}, s{sLG}"); e(f"s_add_u32 s{sT0}, s{sT0}, {oO}")
e(f"s_lshl_b32 s{sT1}, s{sJ}, 3"); e(f"s_add_u32 s{sT1}, s{sT1}, s{sLG}"); e(f"s_add_u32 s{sT1}, s{sT1}, {oML}"); e(f"s_cmp_eq_u32 s{sWV}, 3")
e("s_waitcnt lgkmcnt(2)")
e("v_max_f32_dpp v34, v32, v32 quad_perm:[1,0,3,2] row_mask:0xf bank_mask:0xf"); e("v_max_f32_dpp v34, v34, v34 quad_perm:[2,3,0,1] row_mask:0xf bank_mask:0xf")
e("v_sub_f32 v32, v32, v34"); e("v_exp_f32 v32, v32")
e("s_cbranch_scc1 OML"); e("s_waitcnt lgkmcnt(0)")
e("v_mul_f32_dpp v28, v32, v40 quad_perm:[0,0,0,0] row_mask:0xf bank_mask:0xf"); e("v_mul_f32_dpp v29, v32, v41 quad_perm:[1,1,1,1] row_mask:0xf bank_mask:0xf")
e("v_mul_f32_dpp v30, v32, v42 quad_perm:[2,2,2,2] row_mask:0xf bank_mask:0xf"); e("v_fmac_f32_dpp v28, v32, v43 quad_perm:[3,3,3,3] row_mask:0xf bank_mask:0xf")
e("v_add_f32 v29, v29, v30"); e("v_add_f32 v28, v28, v29")
e("v_mov_b32_dpp v29, v28 row_shl:1 row_mask:0xf bank_mask:0xf"); e("v_cvt_pk_bf16_f32 v28, v28, v29")
for q in (1, 2, 3): e(f"v_mov_b32_dpp v{28+q}, v28 row_shl:{4*q} row_mask:0xf bank_mask:0xf")
setexec(0x0005000500050005)
lstore(f"buffer_store_dwordx4 v[28:31], v26, {sr(sW)}, s{sT0} offen")
setexec(FULL)
def t_():
    lab("OML")
    e("v_mul_f32 v35, v32, v33")
    e("v_add_f32_dpp v35, v35, v35 quad_perm:[1,0,3,2] row_mask:0xf bank_mask:0xf"); e("v_add_f32_dpp v35, v35, v35 quad_perm:[2,3,0,1] row_mask:0xf bank_mask:0xf")
    setexec(1); lstore(f"buffer_store_dwordx2 v[34:35], v{vLin}, {sr(sW)}, s{sT1} offen"); setexec(FULL)
    e("s_waitcnt lgkmcnt(0)"); e("s_branch ODONE")
near.append(t_)
lab("ODONE")
if STAMP == 3 and "land" in SKIP:
    e(f"s_cmp_ge_u32 s{sJ}, 20"); e("s_cbranch_scc1 LND"); wdma_addr(); wdma(WT[4]); lab("LND"); e("s_waitcnt vmcnt(0)")
stamp(7)
if STAMP == 3: e("s_endpgm")
e(f"s_cmp_ge_u32 s{sJ}, 20"); e("s_cbranch_scc1 ROLEF")
def owner_add():
    e("v_lshlrev_b32 v30, 16, v28"); e("v_and_b32 v28, 0xffff0000, v28"); e("v_lshlrev_b32 v31, 16, v29"); e("v_and_b32 v29, 0xffff0000, v29")
    e("v_add_f32 v30, v30, v31"); e("v_add_f32 v28, v28, v29")
    e("v_mov_b32 v31, v30"); e("v_mov_b32 v29, v28"); e("v_permlane32_swap_b32 v30, v31"); e("v_permlane32_swap_b32 v28, v29"); e("v_add_f32 v30, v30, v31"); e("v_add_f32 v28, v28, v29")
    e("v_mov_b32 v31, v30"); e("v_mov_b32 v29, v28"); e("v_permlane16_swap_b32 v30, v31"); e("v_permlane16_swap_b32 v28, v29"); e("v_add_f32 v30, v30, v31"); e("v_add_f32 v28, v28, v29")
    e(f"v_add_f32 v{vXR}, v{vXR}, v30"); e(f"v_add_f32 v{vXR+1}, v{vXR+1}, v28")
    e(f"v_cvt_pk_bf16_f32 v28, v{vXR}, v{vXR+1}")
def own_loads(a0, a1, soff): return [f"buffer_load_dword v28, v{a0}, {sr(sW)}, {soff} offen sc1", f"buffer_load_dword v29, v{a1}, {sr(sW)}, {soff} offen sc1"]
def base_store(ob):
    e(f"s_lshl_b32 s{sT0}, s{sJ}, 6"); e(f"s_add_u32 s{sT0}, s{sT0}, s{sLG}"); e(f"s_add_u32 s{sT0}, s{sT0}, {ob}"); e(f"v_lshlrev_b32 v32, 2, v{vL}")
    pack_store16(28, lambda: lstore(f"buffer_store_dwordx4 v[28:31], v32, {sr(sW)}, s{sT0} offen"))
e(f"s_cmp_eq_u32 s{sLay}, 0"); e("s_cbranch_scc1 WLATE")
def t_():
    lab("WLATE")
    if JIT: jitter(JIT, 40)
    if WT[4]: wdma_addr(); wdma(WT[4])
    assert FGE
    for q in range(3): e(f"v_accvgpr_read_b32 v{2+q}, a{246+q}")
    for x in fl0: e(x)
    cs_store()
    wrest()
    ne = 4 * ((12 - WT[4]) // 2)
    e(f"s_waitcnt vmcnt({5 + WT[4]})")
    for x in trs[:ne]: e(x)
    e("s_waitcnt vmcnt(5)")
    for x in trs[ne:]: e(x)
    e("s_branch WCHK")
near.append(t_)
for q in range(3): e(f"v_accvgpr_read_b32 v{2+q}, a{246+q}")
TRN = int(OPT.get("trn", 10))
trs = [f"ds_read_b64_tr_b16 {vr(F+24*t+4*kk+2*h,2)}, v2 offset:{(32*kk+4*h)*64+32*t}" for kk in range(6) for t in range(2) for h in range(2)]
for x in trs[:TRN]: e(x)
def own0():
    e(f"s_cmp_lg_u32 s{sWV}, 1"); e("s_cbranch_scc1 NOOWN0")
    e("v_accvgpr_read_b32 v28, a244"); e("v_accvgpr_read_b32 v29, a245")
    late_check("none", own_loads(vC1, vC2, "0"), [28, 29], 30)
    owner_add()
    if OWP != 2: base_store(oBA)
    lab("NOOWN0")
OWP = int(OPT.get("owp", 0))
if not OWP: own0()
IX, M_, L_, U_ = 26, 27, 36, 37
def wrest():
    e("v_accvgpr_read_b32 v5, a249"); rep_addr(18, 6); e("v_and_b32 v6, 0xffffff7f, v5")
    e(f"v_bfe_u32 v{IX}, v{vL}, 3, 1"); e(f"v_mul_u32_u24 v{IX}, 0xaaaa, v{IX}"); e(f"v_add_u32 v{IX}, 0x4444, v{IX}")
    for q in range(8): e(f"v_mov_b32 v{28+q}, 0")
def wfirst():
    for x in trs[TRN:]: e(x)
    if OWP: own0()
    wrest()
assert OWP in (0, 2)
fl0 = [f"buffer_load_dwordx2 v[24:25], v4, {sr(sW)}, s{sLG} offen sc1"] + [f"buffer_load_dwordx4 {vr(SPARE+4*kk)}, v3, {sr(sW)}, s{sLG} offen offset:{1024*kk} sc1" for kk in range(3)]
poll_sel([(fl0, [SPARE, SPARE + 4, SPARE + 8, 25])], 38, pid=7, first=wfirst, wl="WCHK")
e("s_waitcnt lgkmcnt(0)")
stamp(8)
dq = lambda op, d, a, ctl: f"v_{op}_f32_dpp v{d}, v{a}, v{a} {ctl} row_mask:0xf bank_mask:0xf"
co = [[dq("max", M_, 24, "quad_perm:[1,0,3,2]")], [], [dq("max", M_, M_, "quad_perm:[2,3,0,1]")], [], [dq("max", M_, M_, "row_ror:4"), f"v_sub_f32 v24, v24, v{M_}", "v_exp_f32 v24, v24"], []]
for kk in range(3):
    for t in range(2):
        for x in co.pop(0): e(x)
        e(f"v_smfmac_f32_16x16x64_bf16 {vr(28+4*t)}, {vr(SPARE+4*kk)}, {vr(F+24*t+8*kk, 8)}, v{IX}")
e(f"v_mul_f32 v{L_}, v24, v25"); e(f"s_cmp_lg_u32 s{sWV}, 0"); e(dq("add", L_, L_, "quad_perm:[1,0,3,2]"))
e(dq("add", L_, L_, "quad_perm:[2,3,0,1]"))
bc = lambda q: f"row_newbcast:{q} row_mask:0xf bank_mask:0xf"
e(f"v_mul_f32_dpp v28, v24, v28 {bc(0)}"); e(f"v_mul_f32_dpp v30, v24, v30 {bc(2)}"); e(dq("add", L_, L_, "row_ror:4"))
e(f"v_mul_f32_dpp v32, v24, v32 {bc(0)}"); e(f"v_mul_f32_dpp v34, v24, v34 {bc(2)}"); e(f"v_rcp_f32 v{L_}, v{L_}")
e(f"v_fmac_f32_dpp v28, v24, v29 {bc(1)}"); e(f"v_fmac_f32_dpp v30, v24, v31 {bc(3)}"); e(f"v_fmac_f32_dpp v32, v24, v33 {bc(1)}"); e(f"v_fmac_f32_dpp v34, v24, v35 {bc(3)}")
e("v_add_f32 v28, v28, v30"); e("v_add_f32 v32, v32, v34")
e("v_permlane16_swap_b32 v28, v32"); e(f"v_add_f32 v{U_}, v28, v32"); e("v_add_f32 v28, v28, v32")
e(f"v_permlane32_swap_b32 v28, v{U_}"); e(f"v_add_f32 v28, v28, v{U_}"); e(f"v_mul_f32 v28, v28, v{L_}")
e(f"ds_write_b32 v5, v28")
e("s_waitcnt lgkmcnt(0)"); e("s_barrier")
e("s_cbranch_scc1 WNOT0")
assert (ACC + YACC) % 256 == 0
e("ds_read2st64_b32 v[28:29], v6 offset0:0 offset1:1"); e("ds_read2st64_b32 v[30:31], v6 offset0:2 offset1:3")
e("s_waitcnt lgkmcnt(1)"); e("v_add_f32 v28, v28, v29"); e("s_waitcnt lgkmcnt(0)"); e("v_add_f32 v30, v30, v31"); e("v_add_f32 v28, v28, v30")
pack8q(28)
e("s_mov_b64 exec, s[46:47]")
e(f"buffer_store_dwordx4 v[28:31], v18, {sr(sW)}, s{sYg} offen sc1")
setexec(0x01010101)
lstore(f"buffer_store_dwordx4 v[28:31], v18, {sr(sW)}, s{sYl} offen")
setexec(FULL)
stamp(9); stamp(9, "c")
e(f"v_add_u32 v{SPARE+23}, {W2-WO}, v2")
trs2 = [x.replace(", v2 offset", f", v{SPARE+23} offset") for x in trs]
e(f"s_cmp_lg_u32 s{sLay}, 0"); e("s_cbranch_scc1 W2OK")
wdma_addr(False); e(f"s_mul_i32 s{sT0}, s{sG}, {192*1280}"); e(f"s_lshl_b32 s{sT1}, s{sJ}, 6"); e(f"s_add_u32 s{sT0}, s{sT0}, s{sT1}")
for n in range(12 if "w2" not in SKIP else 0):
    e(f"s_mov_b32 m0, {W2+1024*n}"); e(f"buffer_load_dwordx4 v39, {sr(sRC)}, s{sT0} offen lds"); e(f"s_add_u32 s{sT0}, s{sT0}, {16*1280}")
e("s_branch W2X")
lab("W2OK")
for x in trs2: e(x)
lab("W2X")
HD = SPARE + 12
for q in (0, 1, 4, 5): e(f"v_mov_b32 v{HD+q}, 0")
e(f"s_add_u32 s96, s{sYg}, {oFG-oYG}"); e(f"s_add_u32 s97, s{sYl}, {oFL-oYL}")
lab("STB")
stamp(4, "d")
e(f"s_mul_i32 s{sT0}, s{sWV}, 48"); e(f"v_min_u32 v6, 47, v{vL}"); e(f"v_add_u32 v6, s{sT0}, v6"); e("v_lshlrev_b32 v4, 4, v6"); e(f"v_add_u32 v{SPARE+20}, {CSO}, v4"); e(f"v_lshlrev_b32 v4, {3 if GX2 else 2}, v6")
e(f"v_cmp_le_u32 vcc, 48, v{vL}"); e(f"v_mov_b32 v24, {1536 if GX2 else 768}"); e("v_cndmask_b32 v4, v4, v24, vcc"); e("v_add_u32 v5, 3584, v4")
e("v_lshrrev_b32 v24, 4, v6"); e("v_lshlrev_b32 v24, 5, v24"); e("v_bfe_u32 v25, v6, 1, 1"); e("v_lshl_add_u32 v24, v25, 4, v24"); e("v_bfe_u32 v25, v6, 2, 2"); e("v_lshl_add_u32 v24, v25, 2, v24")
e("v_and_b32 v25, 1, v6"); e("v_lshl_add_u32 v24, v25, 1, v24"); e(f"v_add_u32 v24, {QB}, v24"); e(f"v_mov_b32 v25, {QB+384}"); e("v_cndmask_b32 v6, v24, v25, vcc")
e(f"v_mov_b32 v{SPARE+21}, 0x3727c5ac"); e(f"v_mov_b32 v{SPARE+22}, 0x3acccccd"); e(f"s_add_u32 s{sT2}, s{sLG}, {oGX}")
e("v_accvgpr_read_b32 v2, a250"); e("v_accvgpr_read_b32 v3, a251"); e(f"s_add_u32 s{sTL}, s{sLay}, s{sWV}")
def sum4(b): e(f"v_add_f32 v{b}, v{b}, v{b+1}"); e(f"v_add_f32 v{b+2}, v{b+2}, v{b+3}"); e(f"v_add_f32 v{b}, v{b}, v{b+2}")
gl = [f"buffer_load_dword v{T+4*k+q}, v{4+k}, {sr(sW)}, s{sT2} offen offset:{896*q} sc1" for q in range(4) for k in range(2)]
if GX2: gl = [f"buffer_load_dwordx2 {vr(T+8+2*q,2)}, v{4+q//2}, {sr(sW)}, s{sT2} offen offset:{1792*(q%2)} sc1" for q in range(4)]
def gsum():
    if GX2:
        e(f"v_add_f32 v{T}, v{T+8}, v{T+10}"); e(f"v_add_f32 v{T+4}, v{T+9}, v{T+11}"); e(f"v_add_f32 v{T+2}, v{T+8+4}, v{T+8+6}"); e(f"v_add_f32 v{T+6}, v{T+8+5}, v{T+8+7}")
        e(f"v_add_f32 v{T+4}, v{T+4}, v{T+6}"); e(f"v_add_f32 v{T}, v{T}, v{T+2}"); return
    e(f"v_add_f32 v{T}, v{T}, v{T+1}"); e(f"v_add_f32 v{T+4}, v{T+4}, v{T+5}"); e(f"v_add_f32 v{T+2}, v{T+2}, v{T+3}"); e(f"v_add_f32 v{T+6}, v{T+6}, v{T+7}")
    e(f"v_add_f32 v{T+4}, v{T+4}, v{T+6}"); e(f"v_add_f32 v{T}, v{T}, v{T+2}")
e(f"s_mov_b32 s{sCnt}, 1"); e(f"s_cmp_eq_u32 s{sLay}, 0"); e("s_cbranch_scc1 GPF")
lab("GPO")
stamp(5, "d")
e(f"s_cmp_eq_u32 s{sWV}, 1"); e("s_cbranch_scc1 WOWN")
lab("GP1")
for l in gl: e(l)
e("s_waitcnt vmcnt(0)"); gsum(); e(f"v_cmp_u_f32 vcc, v{T}, v{T+4}"); e("s_cbranch_vccnz GA1")
lab("GPX")
def t_():
    lab("GA1"); e(f"s_add_u32 s{sCnt}, s{sCnt}, 1"); e(f"s_cmp_lt_u32 s{sCnt}, {LIMIT}"); e("s_cbranch_scc1 GP1"); e("s_branch GPX")
    cl = [f"buffer_load_dwordx4 {vr(T+8)}, v{SPARE+20}, {sr(sW)}, s{sT2} offen sc1", f"buffer_load_dwordx4 {vr(T+12)}, v{SPARE+20}, {sr(sW)}, s{sT2} offen offset:3072 sc1"]
    lab("GPF")
    e(f"s_cmp_lg_u32 s{sWV}, 0"); e("s_cbranch_scc1 GP0")
    for l in cl: e(l)
    e("s_waitcnt vmcnt(2)")
    for x in trs2: e(x)
    e("s_branch GPW")
    lab("GP0")
    for l in cl: e(l)
    lab("GPW")
    e(f"s_add_u32 s{sCnt}, s{sCnt}, 1"); e(f"s_cmp_ge_u32 s{sCnt}, {LIMIT}"); e("s_waitcnt vmcnt(0)")
    e(f"v_add_f32 v2, v{T+8}, v{T+9}"); e(f"v_add_f32 v3, v{T+12}, v{T+13}"); e(f"v_add_f32 v{T+10}, v{T+10}, v{T+11}"); e(f"v_add_f32 v{T+14}, v{T+14}, v{T+15}")
    e(f"v_add_f32 v2, v2, v{T+10}"); e(f"v_add_f32 v3, v3, v{T+14}"); e("v_cmp_u_f32 vcc, v2, v3"); e("s_cbranch_scc1 GPO")
    e("s_cbranch_vccnz GP0"); e("s_branch GPO")
near.append(t_)
stamp(10)
EPS, INV = SPARE + 21, SPARE + 22
e(f"v_readlane_b32 s{sT0}, v{T+4}, 48"); e(f"v_readlane_b32 s{sT1}, v{T}, 48"); e(f"s_cmp_lg_u32 s{sTL}, 1"); e("s_cbranch_scc0 OWL"); lab("OWB")
def t_():
    lab("OWL"); e(f"buffer_load_dword v34, v100, {sr(sW)}, 0 offen sc1"); e(f"buffer_load_dword v35, v101, {sr(sW)}, 0 offen sc1"); e("s_branch OWB")
near.append(t_)
e(f"v_mul_f32 v{T+1}, s{sT0}, v{INV}"); e(f"v_fma_f32 v{T+2}, s{sT1}, v{INV}, v{EPS}")
e(f"v_fma_f32 v{T+2}, -v{T+1}, v{T+1}, v{T+2}"); e(f"v_add_f32 v{T+1}, 1.0, v{T+1}"); e(f"v_max_f32 v{T+2}, v{T+2}, v{EPS}")
e(f"v_fma_f32 v{T}, -v{T+1}, v2, v{T}"); e(f"v_rsq_f32 v{T+3}, v{T+2}"); e(f"v_mul_f32 v{T+5}, 0xbfb8aa3b, v{T}"); e(f"v_mul_f32 v{T+5}, v{T+5}, v{T+3}"); e(f"v_exp_f32 v{T+5}, v{T+5}")
e(f"v_fma_f32 v{T+4}, -v{T+1}, v3, v{T+4}"); e(f"v_fma_f32 v{T+5}, v{T+5}, v{T+2}, v{T+2}"); e(f"v_rcp_f32 v{T+5}, v{T+5}"); e(f"v_mul_f32 v{T+4}, v{T+4}, v{T}")
e(f"v_mul_f32 v{T+4}, v{T+4}, v{T+5}"); e(f"v_cvt_pk_bf16_f32 v{T+4}, v{T+4}, v{T+4}"); e(f"ds_write_b16 v6, v{T+4}")
e("v_accvgpr_write_b32 a250, v2"); e("v_accvgpr_write_b32 a251, v3"); e(f"s_cmp_lg_u32 s{sWV}, 0")
e("s_waitcnt lgkmcnt(0)"); e("s_barrier")
e("s_cbranch_scc1 STBX")
for ks in range(3): e(f"ds_read_b128 {vr(SPARE+4*ks)}, v{vQBr} offset:{128*ks}")
for ks in range(3):
    e(f"s_waitcnt lgkmcnt({2-ks})")
    for t in range(2): e(f"v_smfmac_f32_16x16x64_bf16 {vr(HD+4*t)}, {vr(SPARE+4*ks)}, {vr(F+24*t+8*ks, 8)}, v{vIdx}")
e(f"v_add_f32 v28, v{HD}, v{HD+1}"); e(f"v_add_f32_dpp v28, v{HD+4}, v{HD+5} quad_perm:[0,1,2,3] row_mask:0xa bank_mask:0xf")
pack8q(28)
e("s_mov_b64 exec, s[48:49]")
e(f"buffer_store_dwordx4 v[28:31], v18, {sr(sW)}, s96 offen sc1")
setexec(0x01010101)
lstore(f"buffer_store_dwordx4 v[28:31], v18, {sr(sW)}, s97 offen")
setexec(FULL)
stamp(11)
e("s_branch NEXT")
flush_near()
lab("WNOT0")
if JIT: jitter(JIT, 40)
if OWP == 2:
    e(f"s_cmp_eq_u32 s{sLay}, 0"); e("s_cbranch_scc1 NOBA1"); e(f"s_cmp_lg_u32 s{sWV}, 1"); e("s_cbranch_scc1 STB"); e(f"v_cvt_pk_bf16_f32 v28, v{vXR}, v{vXR+1}"); base_store(oBA); lab("NOBA1")
e(f"s_cmp_lg_u32 s{sLay}, 0"); e("s_cbranch_scc1 STB"); e(f"s_cmp_eq_u32 s{sWV}, 1"); e("s_cbranch_scc1 WPREP"); e(f"s_cmp_eq_u32 s{sWV}, 3"); e("s_cbranch_scc1 WLC")
for q in range(4): e(f"v_mov_b32 v{F+12+q}, -1")
e(f"s_add_u32 s{sT0}, s{sYg}, {LS}"); e(f"s_add_u32 s{sT3}, s{sT0}, {oFG-oYG}")
if int(OPT.get("gcd", 8)): e(f"s_sleep {OPT.get('gcd', 8)}")
e("s_mov_b64 exec, s[44:45]"); e(f"buffer_store_dwordx4 {vr(F+12)}, v18, {sr(sW)}, s{sT0} offen sc1")
setexec(0x01010101); e(f"buffer_store_dwordx4 {vr(F+12)}, v18, {sr(sW)}, s{sT3} offen sc1")
setexec(FULL)
e("s_branch WPREP")
lab("WLC")
LCW = int(OPT.get("lcw", 1))
if LCW:
    lo_ = oO if LCW == 1 else 0; ng = (oGX + CSO - lo_) // 16; per = -(-ng // 20); ni = -(-per // 64)
    e(f"s_mul_i32 s{sT0}, s{sJ}, {per*16}"); e(f"s_add_u32 s{sT1}, s{sLG}, {LS+lo_}")
    for q in range(ni): e(f"v_add_u32 v{100+q}, s{sT0}, v{vLin}"); e(f"v_min_u32 v{100+q}, {ng*16-16}, v{100+q}"); e(f"s_add_u32 s{sT0}, s{sT0}, 1024")
    for q in range(4): e(f"v_mov_b32 v{104+q}, -1")
    loop_prep()
    if JIT: jitter(JIT, 60)
    for q in range(ni): lstore(f"buffer_store_dwordx4 v[104:107], v{100+q}, {sr(sW)}, s{sT1} offen")
    e("s_branch STB")
lab("WPREP")
e("s_nop 1"); loop_prep()
e("s_branch STB")
lab("WOWN")
e(f"v_and_b32 v25, 15, v{vL}"); e(f"v_lshrrev_b32 v26, 4, v{vL}")
rowbase(37, 26, oYG, oYL, None, 38); e("v_add_u32 v39, 4, v26"); rowbase(38, 39, oYG, oYL, None, 28)
e(f"s_lshl_b32 s{sT0}, s{sJ}, 6"); e(f"s_add_u32 s{sT0}, s{sT0}, s{sLay}"); e(f"v_lshl_add_u32 v25, v25, 2, s{sT0}")
e("v_add_u32 v100, v25, v37"); e("v_add_u32 v101, v25, v38")
e(f"s_cmp_eq_u32 s{sLay}, 0"); e("s_cbranch_scc1 GP1")
if not int(OPT.get("oall", 1)): e(f"s_cmp_lg_u32 s{sG}, 0"); e("s_cbranch_scc1 GP1")
e(f"s_sleep {max(ODLY-3, 1)}")
poll(own_loads(100, 101, "0"), [28, 29], 30, slp=int(OPT.get("osp", 2)))
owner_add()
e("s_branch GP1")
lab("STBX")
e(f"s_cmp_lg_u32 s{sWV}, 1"); e("s_cbranch_scc1 NEXT"); e(f"s_cmp_lg_u32 s{sLay}, 0"); e("s_cbranch_scc1 FINAL")
e("s_waitcnt vmcnt(0)"); e("v_mov_b32 v28, v34"); e("v_mov_b32 v29, v35")
late_check("none", own_loads(100, 101, "0"), [28, 29], 30)
owner_add()
base_store(oBB)
stamp(6, "d")
e("s_branch NEXT")
lab("FINAL")
e(f"s_cmp_lg_u32 s{sG}, 0"); e("s_cbranch_scc1 DONE")
e(f"s_lshl_b32 s{sT0}, s{sJ}, 6"); e(f"v_lshlrev_b32 v37, 2, v{vL}")
e(f"s_add_u32 s{sT2}, s{sT0}, s{sLG}"); e(f"s_add_u32 s{sT2}, s{sT2}, {oFL}")
if int(OPT.get("otouch", 0)): setexec(0xffff); e(f"buffer_load_dword v29, v37, {sr(sO)}, s{sT0} offen")
gate(sT2, 4, 28); setexec(FULL)
poll(own_loads(vC1, vC2, f"s{sLay}"), [28, 29], 30)
owner_add()
setexec(0xffff)
e(f"buffer_store_dword v28, v37, {sr(sO)}, s{sT0} offen {OPT.get('ost', '').replace('+', ' ')}")
setexec(FULL)
stamp(12); stamp(12, "c")
e("s_branch DONE") if SPIN else e("s_endpgm")
flush_near()
lab("ROLEF")
e(f"v_and_b32 v25, 15, v{vL}"); e(f"v_lshrrev_b32 v26, 4, v{vL}"); e(f"v_bfe_u32 v27, v{vL}, 2, 2"); e(f"v_and_b32 v36, 3, v{vL}")
FA = SPARE
FBLK = r'''WG_ = int(OPT.get("fg", -1))
if WG_ >= 0:
    # keep this traffic out of the way of workgroups that still stream: start when at most WG_ of the group are missing
    e(f"v_lshlrev_b32 v37, 3, v{vL}"); e(f"s_add_u32 s{sT0}, s{sLG}, {oML}"); e(f"s_mov_b32 s{sCnt}, 0"); e("s_mov_b32 exec_lo, -1"); e("s_mov_b32 exec_hi, 0")
    lab("W2G"); e(f"buffer_load_dword v38, v37, {sr(sW)}, s{sT0} offen sc1"); e(f"s_add_u32 s{sCnt}, s{sCnt}, 1"); e("s_waitcnt vmcnt(0)")
    e("v_cmp_eq_u32 vcc, -1, v38"); e(f"s_bcnt1_i32_b64 s{sT1}, vcc"); e(f"s_cmp_ge_u32 s{sCnt}, 64"); e("s_cbranch_scc1 W2GX"); e(f"s_cmp_gt_u32 s{sT1}, {WG_}"); e("s_cbranch_scc1 W2G")
    lab("W2GX"); setexec(FULL)
if FT[4]: fdma_addr(); fdma(sum(FT[:4]), FT[4])
'''
e(f"s_cmp_lg_u32 s{sLay}, 0"); e("s_cbranch_scc1 FW")
e(f"s_sub_u32 s96, s{sJ}, 20"); e("s_lshl_b32 s96, s96, 2"); e(f"s_add_u32 s96, s96, s{sWV}")
if int(OPT.get("w2pf", 0)):
    e(f"s_mul_i32 s97, s{sG}, 48"); e("s_add_u32 s97, s97, s96"); e("s_mul_i32 s97, s97, 5120")
    for n in range(5):
        if n == 4: e("s_add_u32 s97, s97, 4096")
        e(f"buffer_load_dwordx4 a[240:243], v{vLin}, {sr(sRC)}, s97 offen offset:{1024*(n%4)}")
assert LCW == 1 and 128 * 4 * 128 >= oGX + CSO
if LCW:
    e(f"s_mul_i32 s96, s96, {43*16}"); e(f"v_add_u32 v21, s96, v{vLin}"); e(f"v_min_u32 v21, {32768-16}, v21"); e(f"s_add_u32 s97, s{sLG}, {LS+oQ}")
else:
    e(f"s_mul_i32 s96, s96, {74*16}"); e(f"s_add_u32 s97, s{sLG}, {LS}"); e("s_add_u32 s97, s97, s96")
    e(f"buffer_load_dwordx4 a[240:243], v{vLin}, {sr(sW)}, s97 offen sc1"); setexec(0x3ff); e(f"buffer_load_dwordx4 a[240:243], v{vLin}, {sr(sW)}, s97 offen offset:1024 sc1"); setexec(FULL)
for q in range(4): e(f"v_mov_b32 v{T+4+q}, -1")
FSE = int(OPT.get("fse", 1))
if not FSE: exec(FBLK)
lstore(f"buffer_store_dwordx4 {vr(T+4)}, v21, {sr(sW)}, s97 offen")
cs_store()
if FSE: exec(FBLK)
lab("FW")
e(f"s_lshl_b32 s{sT0}, s{sWV}, 5"); e(f"v_lshl_add_u32 v80, v36, 3, s{sT0}"); e("v_lshrrev_b32 v37, 1, v27"); e("v_and_b32 v38, 1, v26"); e("v_lshl_add_u32 v37, v38, 1, v37"); e("v_lshlrev_b32 v37, 5, v37")
e("v_xor_b32 v80, v80, v37"); e("v_lshl_add_u32 v37, v26, 3, v27"); e("v_lshl_add_u32 v80, v37, 7, v80"); e(f"v_add_u32 v80, {W1}, v80")
e(f"s_sub_u32 s{sT2}, s{sJ}, 20"); e(f"s_and_b32 s{sT3}, s{sT2}, 12"); e(f"s_add_u32 s{sT3}, s{sT3}, s{sWV}"); e(f"s_lshl_b32 s{sT1}, s{sT3}, 8")
e(f"v_lshl_add_u32 v83, v25, 4, s{sT1}"); e(f"v_lshrrev_b32 v84, {1 if GX2 else 2}, v83"); e(f"v_mov_b32 v37, {1536 if GX2 else 768}"); e("v_cmp_le_u32 vcc, 2, v26"); e("v_cndmask_b32 v84, v84, v37, vcc")
e("v_and_b32 v37, 1, v26"); e(f"v_mul_u32_u24 v37, {4 if GX2 else 3584}, v37"); e("v_add_u32 v84, v84, v37")
e(f"s_cmp_eq_u32 s{sT3}, 0"); e("s_mov_b32 s52, -1"); e("s_cselect_b32 s53, 0x10001, 0")
e(f"s_and_b32 s{sT2}, s{sT2}, 3"); e(f"s_mul_i32 s{sT1}, s{sT2}, {1788 if GX2 else 892}"); e(f"s_sub_u32 s{sT1}, {CSO}, s{sT1}"); e(f"v_add_u32 v83, s{sT1}, v83")
e(f"s_mul_i32 s{sT1}, s{sT2}, {1792 if GX2 else 896}"); e(f"s_add_u32 s{sT1}, s{sT1}, s{sLG}"); e(f"s_add_u32 s{sT1}, s{sT1}, {oGX}"); e(f"s_mul_i32 s{sT2}, s{sT2}, 320")
e("v_cmp_eq_u32 vcc, 12, v25")
e("v_mov_b32 v38, 0x3f803f80"); e(f"v_cndmask_b32 v{FA}, 0, v38, vcc")
for q in range(1, 20): e(f"v_mov_b32 v{FA+q}, v{FA}")
FG = [86, 18, 20]
if "f" in SHB:
    e(f"v_mul_u32_u24 v6, 336, v25"); e("v_lshl_add_u32 v6, v26, 4, v6")
    e(f"s_mul_i32 s{sT0}, s{sWV}, 45"); e(f"v_min_u32 v27, 44, v{vL}"); e(f"v_add_u32 v27, s{sT0}, v27"); e("v_mul_u32_u24 v37, 205, v27"); e("v_lshrrev_b32 v37, 12, v37")
    e("v_add_u32 v87, v37, v27"); e("v_lshlrev_b32 v87, 4, v87"); e("v_mul_u32_u24 v38, 20, v37"); e("v_sub_u32 v27, v27, v38"); e("v_lshlrev_b32 v27, 4, v27")
    assert all((c * 205) >> 12 == c // 20 for c in range(180))
    rowbase(86, 37, oYG, oYL, oBA, 38); e("v_add_u32 v86, v86, v27")
else:
    e(f"s_mul_i32 s{sT0}, s{sWV}, {SCRW}")
    e(f"v_mul_u32_u24 v6, 336, v25"); e("v_lshl_add_u32 v6, v26, 4, v6"); e(f"v_add_u32 v6, s{sT0}, v6")
    e(f"v_mul_u32_u24 v37, 52, v{vL}"); e("v_lshrrev_b32 v37, 10, v37")
    e(f"v_lshl_add_u32 v87, v37, 4, v{vLin}"); e(f"v_add_u32 v87, s{sT0}, v87")
    e(f"v_mul_u32_u24 v27, 320, v37"); e(f"v_sub_u32 v27, v{vLin}, v27")
    for i in range(3):
        rowbase(FG[i], 37, oYG, oYL, oBA, 38); e(f"v_add_u32 v{FG[i]}, v{FG[i]}, v27")
        if i < 2: e("v_add_u32 v37, 3, v37")
e(f"s_add_u32 s{sT0}, s{sT2}, s{sLay}"); e(f"s_add_u32 s{sT2}, s{sT2}, s{sLG}"); e(f"s_add_u32 s{sT2}, s{sT2}, {oYL}")
e(f"s_cmp_lg_u32 s{sLay}, 0"); e("s_cbranch_scc1 FW1")
e("s_waitcnt vmcnt(0)")
if JIT: jitter(JIT, 40)
e("s_barrier"); stamp(13)
lab("FW1")
CD = [108, 2]
def fprep():
    for t in range(2):
        for kk in range(5):
            for h in range(2): e(f"ds_read_b64_tr_b16 {vr(F+20*t+4*kk+2*h,2)}, v80 offset:{(32*kk+4*h)*128+20480*t}")
def cs_mm():
    e("s_waitcnt lgkmcnt(0)")
    for kk in range(5):
        for t in range(2): e(f"v_mfma_f32_16x16x32_bf16 {vr(CD[t])}, {vr(FA+4*kk)}, {vr(F+20*t+4*kk)}, " + ("0" if kk == 0 else vr(CD[t])))
def cs_pub():
    e(f"s_cmp_eq_u32 s{sLay}, 0"); e("s_cbranch_scc1 CSP"); e("s_waitcnt vmcnt(0)"); lab("CSB")
    def t():
        lab("CSP"); setexec(FULL); cs_mm(); setexec(0xFFFF << 48)
        lstore(f"buffer_store_dword v{CD[0]}, v83, {sr(sW)}, s{sT1} offen"); lstore(f"buffer_store_dword v{CD[1]}, v83, {sr(sW)}, s{sT1} offen offset:3072")
        setexec((1 << (45 if "f" in SHB else 60)) - 1); e("s_branch CSB")
    near.append(t)
gate(sT2, 20, 36, first=fprep)
setexec((1 << (45 if "f" in SHB else 60)) - 1)
if "f" in SHB: sbounce(f"buffer_load_dwordx4 {vr(T)}, v86, {sr(sW)}, s{sT0} offen sc1", T, f"ds_write_b128 v87, {vr(T)}", [f"ds_read_b128 {vr(FA+4*kk)}, v6 offset:{64*kk}" for kk in range(5)], first=cs_pub, w1=2)
else: bounce([([f"buffer_load_dwordx4 {vr(T+4*i)}, v{FG[i]}, {sr(sW)}, s{sT0} offen sc1"], [T + 4 * i]) for i in range(3)], 36,
       [f"ds_write_b128 v87, {vr(T+4*i)} offset:{3*336*i}" for i in range(3)], [f"ds_read_b128 {vr(FA+4*kk)}, v6 offset:{64*kk}" for kk in range(5)], first=cs_pub, w1=2)
stamp(8)
G_, R2, R3 = T + 12, T + 13, T + 14
for kk in range(5):
    e(f"s_waitcnt lgkmcnt({4-kk})")
    e(f"v_mfma_f32_16x16x32_bf16 {vr(T+8)}, {vr(FA+4*kk)}, {vr(FA+4*kk)}, " + ("0" if kk == 0 else vr(T + 8)))
dp = lambda dst, sft, rm: f"v_add_f32_dpp v{dst}, v{G_}, v{G_} row_ror:{sft} row_mask:{rm:#x} bank_mask:0xf"
sh = [[f"v_mov_b32 v{G_}, 0", f"v_mov_b32 v{R2}, 0"], [f"v_mov_b32 v{R3}, 0", "s_nop 0"], [],
      [f"v_add_f32 v{T+8}, v{T+8}, v{T+9}", f"v_add_f32 v{T+10}, v{T+10}, v{T+11}"], [],
      [f"v_add_f32_dpp v{G_}, v{T+8}, v{T+10} quad_perm:[0,1,2,3] row_mask:0xf bank_mask:0x7"], ["s_nop 0", dp(G_, 8, 15)], ["s_nop 0", dp(G_, 4, 15)],
      ["s_nop 0", dp(G_, 2, 15)], []]
for t in range(2):
    for kk in range(5):
        e(f"v_mfma_f32_16x16x32_bf16 {vr(T+4*t)}, {vr(FA+4*kk)}, {vr(F+20*t+4*kk)}, " + ("0" if kk == 0 else vr(T + 4 * t)))
        for x in sh.pop(0): e(x)
e(f"v_add_f32 v{T+1}, v{T}, v{T+1}"); e(dp(R2, 1, 7)); e(dp(R3, 1, 8)); e(f"v_add_f32 v{T+2}, v{T+2}, v{T+3}"); e(f"v_add_f32 v{T+1}, v{T+1}, v{T+2}")
e(f"v_permlane32_swap_b32 v{T+1}, v{R2}")
e(f"v_add_f32 v{T+5}, v{T+4}, v{T+5}"); e(f"v_add_f32 v{T+6}, v{T+6}, v{T+7}"); e(f"v_add_f32 v{T+5}, v{T+5}, v{T+6}"); e(f"v_add_f32 v{T+1}, v{T+1}, v{R2}")
e(f"v_permlane32_swap_b32 v{T+5}, v{R3}"); e(f"v_add_f32 v{T+5}, v{T+5}, v{R3}")
e(f"v_permlane16_swap_b32 v{T+1}, v{T+5}"); e("s_mov_b64 exec, s[52:53]"); e(f"v_add_f32 v{T+1}, v{T+1}, v{T+5}")
lstore(f"buffer_store_dword v{T+1}, v84, {sr(sW)}, s{sT1} offen"); setexec(FULL)
stamp(9)
lab("NEXT")
e(f"s_cmp_lg_u32 s{sLay}, 0"); e("s_cbranch_scc1 DONE")
e(f"s_mov_b32 s{sLay}, {LS}"); e(f"s_add_u32 s{sLG}, s{sLG}, {LS}"); e(f"s_add_u32 s{sYg}, s{sYg}, {LS}"); e(f"s_add_u32 s{sYl}, s{sYl}, {LS}")
e("s_mov_b64 s[46:47], s[44:45]"); e("s_mov_b64 s[48:49], s[92:93]")
e("s_branch LOOP")
flush_near()
lab("DONE")
if SPIN:
    e("v_accvgpr_read_b32 v38, a253"); e("s_nop 1"); e("v_readfirstlane_b32 s96, v38")
    if SPM == "min":
        e("v_not_b32 v38, v38"); e("v_mov_b32 v39, 192"); e("s_mov_b64 exec, 1"); e("global_atomic_umax v39, v38, s[64:65] sc1"); e("s_waitcnt vmcnt(0)")
        lab("SPW"); e("s_sleep 20"); e("s_memrealtime s[98:99]"); e("s_waitcnt lgkmcnt(0)"); e("s_sub_u32 s98, s98, s96"); e(f"s_cmp_lt_u32 s98, {SPIN*100-1500}"); e("s_cbranch_scc1 SPW")
        e("global_load_dword v38, v39, s[64:65] sc1"); e("s_waitcnt vmcnt(0)"); e("v_not_b32 v38, v38"); e("s_nop 1"); e("v_readfirstlane_b32 s96, v38")
    e(f"s_add_u32 s55, s55, {SPIN*100}") if DA >= 0 else e(f"s_mov_b32 s55, {SPIN*100}")
    lab("SPINL"); e("s_memrealtime s[98:99]"); e("s_waitcnt lgkmcnt(0)"); e("s_sub_u32 s98, s98, s96"); e(f"s_cmp_lt_u32 s98, s55"); e("s_cbranch_scc1 SPINL")
e("s_endpgm")
i = 0
while i < len(tail): tail[i](); flush_near(); i += 1
lab("CODE_END")
e("s_endpgm")

body = A.pad()
hdr = [f"; @launch grid=(256,1,1) block=(256,1,1) lds={LDSSZ}", '.amdgcn_target "amdgcn-amd-amdhsa--gfx950"', ".text",
       f".globl {NAME}_kernel", ".p2align 8", f".type {NAME}_kernel,@function", f"{NAME}_kernel:"]
ftr = ['.section .rodata,"a"', ".p2align 6", f".amdhsa_kernel {NAME}_kernel", "  .amdhsa_next_free_vgpr 512", "  .amdhsa_next_free_sgpr 102",
       "  .amdhsa_accum_offset 256", "  .amdhsa_group_segment_fixed_size 0", "  .amdhsa_kernarg_size 96", "  .amdhsa_user_sgpr_count 2",
       "  .amdhsa_user_sgpr_kernarg_segment_ptr 1", "  .amdhsa_system_sgpr_workgroup_id_x 1", ".end_amdhsa_kernel"]
src = "\n".join(hdr + body + ftr) + "\n"
import re
for m in re.finditer(r"buffer_\S+ .*offset:(\d+)", src): assert int(m.group(1)) < 4096, m.group(0)
for m in re.finditer(r"ds_\S+ .*offset:(\d+)", src): assert int(m.group(1)) < 65536, m.group(0)
open(OUT, "w").write(src)
```

```python
import os, sys
sys.path.insert(0, os.path.dirname(os.path.abspath(__file__)))
from asmlib import Asm
NAME = "interleave_layers__sliding_block_cached__glu_gated_swiglu__decode"
OPT = dict(a.split("=") for a in sys.argv[2:])
OUT = sys.argv[1] if len(sys.argv) > 1 else f"/code/{NAME}.s"
STAMP = int(OPT.get("stamp", 0))
NT = OPT.get("nt", "nt").replace("x", "")
NTW = OPT.get("ntw", "nt").replace("x", "")
SKIP = OPT.get("skip", "").split(",")
RY0 = int(OPT.get("ry0", 0))
GX2 = int(OPT.get("gx2", 1))
FORCESLOW = int(OPT.get("slow", 0))
SPIN = int(OPT.get("spin", 0))
A = Asm(); e = A.e; lab = A.lab
tail = []

RS = 416; SCRW = 16 * RS
SCR = 0; WQ = 4 * SCRW; ROLE = WQ + 30720
WO = ROLE; W1 = ROLE; W3 = ROLE + 20480; W2 = ROLE + 49152
MISC = ROLE + 61440; QB = MISC; ACC = MISC + 512
OACC = 0; YACC = 3072; FACC = 4096
PT = ACC + 5120; ML4 = PT + 1024
FLG = ML4 + 64
LDSSZ = FLG + 64
FDMA = OPT.get("fdma", "late")
OMASK = int(OPT.get("omask", 1))
WDMA = OPT.get("wdma", "mid")
PF = OPT.get("pf", "ow")
NTP = OPT.get("ntp", "x").replace("x", "")
NTR = OPT.get("ntr", "x").replace("x", "")
GB = 81920; oQ = 0; oO = 32768; oML = 45056; oYL = 45312; oFL = 46592; oBA = 47872; oBB = 49152; oGX = 50432
CSO = 7168
GOFF = 8 * GB; oYG = GOFF; oFG = GOFF + 81920; LS = 0xC8000
OOB = 0x7FFFFFF0
sK, sV, sW, sWQ, sRA, sRB, sRC, sX, sO = 8, 12, 16, 20, 24, 28, 32, 36, 40
sG, sJ, sHH, sS, sWV, sKV, sLay, sFast, sCnt = 68, 69, 70, 71, 72, 73, 74, 75, 76
sT0, sT1, sT2 = 77, 78, 79
sLG = 3
sClr = 4
sXcc = 5
sTL = 6
sT3 = 7
sYg, sYl = 80, 81
sMf = 44
def sr(b): return f"s[{b}:{b+3}]"
def sp(b): return f"s[{b}:{b+1}]"
def vr(b, n=4): return f"v[{b}:{b+n-1}]" if n > 1 else f"v{b}"
def ar(b, n=4): return f"a[{b}:{b+n-1}]"
def srd(d, lo, nbytes):
    e(f"s_mov_b32 s{d}, s{lo}"); e(f"s_and_b32 s{d+1}, s{lo+1}, 0xffff")
    e(f"s_mov_b32 s{d+2}, {nbytes}"); e(f"s_mov_b32 s{d+3}, 0x20000")
MASKS = {}
def setexec(mask):
    if mask in MASKS: e(f"s_mov_b64 exec, {sp(MASKS[mask])}"); return
    lo, hi = mask & 0xffffffff, mask >> 32
    if mask == (1 << 64) - 1: e("s_mov_b64 exec, -1")
    elif hi == 0 and lo <= 64: e(f"s_mov_b64 exec, {lo}")
    else: e(f"s_mov_b32 exec_lo, {lo:#x}"); e(f"s_mov_b32 exec_hi, {hi:#x}")
FULL = (1 << 64) - 1
ROWS9 = 0x01FF01FF01FF01FF
vL, vLin, vWr, vKrd, vVrd, vCS, vAq, vAq16, vQst, vQld, vQBw, vQBr, vIdx, vAcc, vTq1, vTq2, vSC, vPw = 0, 1, 2, 5, 6, 7, 8, 9, 10, 11, 12, 13, 14, 15, 16, 17, 18, 19
vC1, vC2, vXR = 20, 21, 22
T = 24
F = 40
SPARE = 88
def vblock(b):
    if b < 2: return ("a", 192 + 24 * b)
    if b == 8: return ("v", SPARE)
    return ("v", 112 + 24 * (b - 2))
def rg(f, b, n): return f"{f}[{b}:{b+n-1}]"

uid = [0]
def nid(): uid[0] += 1; return uid[0]
stamps = [0]
SPINAT = int(OPT.get("spinat", -1))
DA, DB, DC = int(OPT.get("da", -1)), int(OPT.get("db", -1)), int(OPT.get("dc", 0))
JIT = int(OPT.get("jit", 0))
def jitter(mask, prob):
    k = nid()
    e("s_cselect_b32 s98, 1, 0")
    e("s_memtime s[100:101]"); e("s_waitcnt lgkmcnt(0)"); e("s_mul_i32 s100, s100, 0x9e3779b1"); e("s_lshr_b32 s99, s100, 24"); e(f"s_cmp_ge_u32 s99, {prob}"); e(f"s_cbranch_scc1 JX{k}")
    e("s_lshr_b32 s99, s100, 12"); e(f"s_and_b32 s99, s99, {mask}")
    lab(f"JL{k}"); e("s_sleep 4"); e("s_sub_u32 s99, s99, 1"); e("s_cmp_ge_i32 s99, 0"); e(f"s_cbranch_scc1 JL{k}")
    lab(f"JX{k}"); e("s_cmp_eq_u32 s98, 1")
def stamp(i, val=None):
    if JIT and val is None: jitter(JIT, 24); return
    if DA >= 0 and val is None and i in (DA % 16, DB % 16):
        for which, idx in (("a", DA), ("b", DB)):
            if idx % 16 != i: continue
            k = nid()
            e("s_cselect_b32 s98, 1, 0"); e(f"s_cmp_lg_u32 s{sLay}, {LS*(idx//16)}"); e(f"s_cbranch_scc1 ND{k}")
            e("s_memrealtime s[100:101]"); e("s_waitcnt lgkmcnt(0)")
            if which == "a": e("s_mov_b32 s54, s100")
            else:
                e("s_sub_u32 s100, s100, s54")
                if DC > 0: e(f"s_sub_u32 s100, {DC}, s100"); e("s_max_i32 s100, s100, 0")
                if DC < 0: e(f"s_sub_u32 s100, s100, {-DC}"); e("s_max_i32 s100, s100, 0")
                e("s_min_u32 s100, s100, 1000"); e("s_mul_i32 s55, s100, 10")
            lab(f"ND{k}"); e("s_cmp_eq_u32 s98, 1")
    if SPIN and val is None and SPINAT % 16 == i:
        k = nid()
        e(f"s_cmp_lg_u32 s{sLay}, {LS*(SPINAT//16)}"); e(f"s_cbranch_scc1 NOSP{k}")
        e("s_memrealtime s[100:101]"); e("s_waitcnt lgkmcnt(0)"); e("v_accvgpr_write_b32 a253, s100"); lab(f"NOSP{k}")
    if not STAMP: return
    if STAMP == 3 and (val is not None or i != 7): return
    if val == "d":
        if STAMP != 6: return
        val = None
    elif STAMP == 6 and (val is not None or i not in (9, 10, 11)): return
    if STAMP == 5 and (val is not None or i not in (9, 11, 12, 13)): return
    if STAMP == 4 and val != "c": return
    if val == "c":
        if STAMP != 4: return
        val = None
    if STAMP == 2 and val is None and i not in (0, 14): return
    if STAMP == 1 and (val is not None or i == 14): return
    e("s_memrealtime s[100:101]"); e("v_accvgpr_write_b32 a254, v38"); e("v_accvgpr_write_b32 a255, v39")
    e(f"s_lshl_b32 s98, s2, 2"); e(f"s_add_u32 s98, s98, s{sWV}"); e("s_lshl_b32 s98, s98, 7")
    e(f"s_cmp_eq_u32 s{sLay}, 0"); e(f"s_cselect_b32 s99, 0, 64"); e(f"s_add_u32 s99, s99, {4*i}"); e("s_add_u32 s98, s98, s99"); e("s_add_u32 s98, s98, 0x40000000")
    e("s_waitcnt lgkmcnt(0)"); e(f"v_mov_b32 v38, {val or 's100'}"); e("v_mov_b32 v39, 0")
    e("s_mov_b64 s[100:101], exec"); e("s_mov_b64 exec, 1")
    A.vmem(f"buffer_store_dword v38, v39, {sr(sW)}, s98 offen", "stamp")
    e("s_mov_b64 exec, s[100:101]"); e("s_nop 1"); e("v_accvgpr_read_b32 v38, a254"); e("v_accvgpr_read_b32 v39, a255")
sWp = sK
def lstore(instr, counted=None):
    assert sr(sW) in instr and not counted
    k = nid()
    e(instr.replace(sr(sW), sr(sWp)))
    e(f"s_cmp_eq_u32 s{sWp+2}, 0"); e(f"s_cbranch_scc1 SLOW{k}")
    lab(f"BACK{k}")
    def t(): lab(f"SLOW{k}"); e(instr + " sc1"); e(f"s_branch BACK{k}")
    tail.append(t)
def check(regs_, tmp):
    r = list(regs_)
    if len(r) == 1: e(f"v_cmp_eq_u32 vcc, -1, v{r[0]}"); return
    cur = r.pop(0)
    while r:
        if len(r) >= 2: e(f"v_max3_u32 v{tmp}, v{cur}, v{r[0]}, v{r[1]}"); r = r[2:]
        else: e(f"v_max_u32 v{tmp}, v{cur}, v{r[0]}"); r = r[1:]
        cur = tmp
    e(f"v_cmp_eq_u32 vcc, -1, v{tmp}")
LIMIT = 0x8000
def poll(loads, regs_, tmp, pid=None, slp=0, first=None):
    k = nid()
    if pid is not None: stamp(pid, "s100")
    e(f"s_mov_b32 s{sCnt}, 1")
    if first:
        for l in loads: e(l)
        first(); e(f"s_branch POLLW{k}")
    lab(f"POLL{k}")
    for l in loads: e(l)
    lab(f"POLLW{k}")
    e("s_waitcnt vmcnt(0)")
    check(regs_, tmp)
    e(f"s_cbranch_vccnz AGAIN{k}")
    lab(f"POLLX{k}")
    def t():
        lab(f"AGAIN{k}")
        if slp: e(f"s_sleep {slp}")
        e(f"s_add_u32 s{sCnt}, s{sCnt}, 1"); e(f"s_cmp_lt_u32 s{sCnt}, {LIMIT}"); e(f"s_cbranch_scc1 POLL{k}"); e(f"s_branch POLLX{k}")
    near.append(t)
    if pid is not None: stamp(pid + 1, "s100"); stamp(pid + 2, f"s{sCnt}")
    A.drained()
SEL = int(OPT.get("sel", 1)); XF = " " + OPT.get("xf", "").replace("+", " "); XF1 = int(OPT.get("xf1", 0))
def poll_sel(groups, tmp, pid=None, first=None, firstloads=None, xf="", wl=None, w1=0):
    allr = [r for g in groups for r in g[1]]
    loads = firstloads or [l for g in groups for l in g[0]]
    if not SEL: return poll(loads, allr, tmp, pid=pid, first=first)
    k = nid()
    if pid is not None: stamp(pid, "s100")
    for l in loads: e(l + (xf if XF1 else ""))
    if first: first()
    if wl: lab(wl)
    if pid is not None and STAMP == 2: e(f"s_mov_b32 s{sCnt}, 1")
    e(f"s_waitcnt vmcnt({w1})")
    check(allr, tmp)
    e(f"s_cbranch_vccnz AGAIN{k}")
    lab(f"POLLX{k}")
    def t():
        lab(f"AGAIN{k}")
        e("s_mov_b64 s[94:95], exec"); e(f"s_mov_b32 s{sCnt}, 1")
        lab(f"AG2{k}")
        if int(OPT.get("osl", 0)): e(f"s_sleep {OPT['osl']}")
        for gi, (ls, rs) in enumerate(groups):
            if len(groups) > 1: check(rs, tmp)
            e("s_mov_b64 exec, vcc")
            if len(groups) > 1: e(f"s_cbranch_execz AG3{k}_{gi}")
            for l in ls: e(l + xf)
            lab(f"AG3{k}_{gi}"); e("s_mov_b64 exec, s[94:95]")
        e(f"s_add_u32 s{sCnt}, s{sCnt}, 1"); e(f"s_cmp_ge_u32 s{sCnt}, {LIMIT}")
        e("s_waitcnt vmcnt(0)")
        check(allr, tmp)
        e(f"s_cbranch_vccz POLLX{k}"); e(f"s_cbranch_scc0 AG2{k}"); e(f"s_branch POLLX{k}")
    near.append(t)
    if pid is not None: stamp(pid + 1, "s100"); stamp(pid + 2, f"s{sCnt}")
    A.drained()
near = []
def flush_near():
    while near: near.pop(0)()
GATE = int(OPT.get("gate", 1)); GDLY = int(OPT.get("gdly", 0)); ODLY = int(OPT.get("odly", 12))
def gate(sreg, nl, tmp, first=None):
    if not GATE: return
    setexec((1 << nl) - 1)
    poll([f"buffer_load_dword v{tmp}, v{vLin}, {sr(sW)}, s{sreg} offen sc1"], [tmp], tmp, slp=int(OPT.get("gsl", 0)),
         first=(lambda: (setexec(FULL), first(), setexec((1 << nl) - 1))) if first else None)
    if GDLY: e(f"s_sleep {GDLY}")
def poll_nan(loads, body, res):
    k = nid()
    e(f"s_mov_b32 s{sCnt}, 1")
    lab(f"POLL{k}")
    for l in loads: e(l)
    e("s_waitcnt vmcnt(0)")
    body()
    e(f"v_cmp_u_f32 vcc, v{res}, v{res}"); e(f"s_cbranch_vccnz AGAIN{k}")
    lab(f"POLLX{k}")
    def t():
        lab(f"AGAIN{k}"); e(f"s_add_u32 s{sCnt}, s{sCnt}, 1"); e(f"s_cmp_lt_u32 s{sCnt}, {LIMIT}"); e(f"s_cbranch_scc1 POLL{k}"); e(f"s_branch POLLX{k}")
    near.append(t)
def late_check(tag, loads, regs_, tmp, pre=None, post=None):
    k = nid()
    A.wait(tag)
    check(regs_, tmp)
    e(f"s_cbranch_vccnz RETRY{k}")
    lab(f"OK{k}")
    def t():
        lab(f"RETRY{k}")
        if pre: pre()
        save = A.vm; poll(loads, regs_, tmp); A.vm = save
        if post: post()
        e(f"s_branch OK{k}")
    tail.append(t)

sTO = 82
sPo, sPw = 90, 91
vLin2 = vXR + 1
HMAP = OPT.get("hmap", "x")
def head_of(d, k):
    if HMAP == "y": e(f"s_lshl_b32 s{d}, s{k}, 3"); e(f"s_add_u32 s{d}, s{d}, s{sG}")
    elif HMAP == "x": e(f"s_lshl_b32 s{d}, s{sG}, 2"); e(f"s_add_u32 s{d}, s{d}, s{k}")
    else:
        e(f"s_lshr_b32 s{d}, s{sG}, 2"); e(f"s_mul_i32 s{d}, s{d}, 3"); e(f"s_add_u32 s{d}, s{d}, s{k}"); e(f"s_lshl_b32 s{d}, s{d}, 2"); e(f"s_add_u32 s{d}, s{d}, s{sG}")
e("s_load_dwordx16 s[44:59], s[0:1], 0"); e("s_load_dwordx8 s[60:67], s[0:1], 64")
e("s_cmp_ge_u32 s2, 256"); e("s_cbranch_scc1 CODE_END")
e("s_memrealtime s[96:97]")
e("v_lshrrev_b32 v2, 6, v0"); e("v_and_b32 v24, 63, v0"); e(f"v_readfirstlane_b32 s{sWV}, v2")
e(f"s_and_b32 s{sG}, s2, 7"); e(f"s_lshr_b32 s{sJ}, s2, 3"); e(f"s_lshr_b32 s{sHH}, s{sJ}, 3"); e(f"s_and_b32 s{sS}, s{sJ}, 7")
e(f"v_lshlrev_b32 v{vLin}, 4, v24")
head_of(sT0, sHH)
e(f"s_mul_i32 s{sKV}, s{sT0}, 12582912"); e(f"s_lshl_b32 s{sT1}, s{sS}, 2"); e(f"s_add_u32 s{sT1}, s{sT1}, s{sWV}")
e(f"s_mul_i32 s{sT1}, s{sT1}, 6144"); e(f"s_add_u32 s{sKV}, s{sKV}, s{sT1}"); e(f"s_add_u32 s{sKV}, s{sKV}, 11010048")
e(f"v_add_u32 v{vLin2}, 4096, v{vLin}"); e(f"s_mov_b32 s{sK+2}, 402653184"); e(f"s_mov_b32 s{sK+3}, 0x20000")
e("s_getpc_b64 s[100:101]"); lab("PCREF")
e(f"s_sub_u32 s100, s100, PCREF-{NAME}_kernel"); e("s_subb_u32 s101, s101, 0")
e(f"s_lshl_b32 s{sT1}, s{sS}, 12"); e(f"v_lshl_add_u32 v25, v0, 4, s{sT1}")
e(f"v_cmp_gt_u32 vcc, CODE_END-{NAME}_kernel-16, v25"); e("s_and_saveexec_b64 s[98:99], vcc"); e("s_cbranch_execz NOCPF")
e(f"global_load_dwordx4 a[240:243], v25, s[100:101]")
lab("NOCPF"); e("s_mov_b64 exec, -1")
e(f"s_mul_i32 s{sT2}, s{sT0}, 384")
e(f"s_mov_b32 s{sLay}, 0"); e(f"s_mul_i32 s{sLG}, s{sG}, {GB}"); e(f"s_getreg_b32 s{sFast}, hwreg(HW_REG_XCC_ID, 0, 4)")
CLA = r'''# ---- clears (all ones) of the hand-off slots
e(f"s_lshl_b32 s{sT0}, s{sJ}, 9"); e(f"s_add_u32 s{sT0}, s{sT0}, s{sLG}"); e(f"s_add_u32 s{sT0}, s{sT0}, {oO}"); e(f"v_add_u32 v{vC1}, s{sT0}, v{vLin}")
e(f"s_lshl_b32 s{sT0}, s{sG}, 2"); e(f"s_add_u32 s{sT0}, s{sT0}, s{sJ}"); e(f"s_mul_i32 s{sT0}, s{sT0}, {2560 if RY0 else 320}"); e(f"s_add_u32 s{sT0}, s{sT0}, {oYG-512}"); e(f"s_add_u32 s{sClr}, s{sT0}, 1024"); e(f"v_add_u32 v25, s{sT0}, v{vLin}")
e("v_cmp_le_u32 vcc, 32, v0"); e(f"v_cndmask_b32 v{vC2}, v{vC1}, v25, vcc"); e(f"v_mov_b32 v25, {OOB}"); e(f"v_cndmask_b32 v{vC1}, v{vC1}, v25, vcc")
e(f"s_cmp_lt_u32 s{sJ}, 4"); e(f"s_cselect_b32 s{sT0}, {64 if RY0 else 52}, 32"); e(f"v_cmp_le_u32 vcc, s{sT0}, v0"); e(f"v_cndmask_b32 v{vC2}, v{vC2}, v25, vcc")
'''
PRE = int(OPT.get("pre", 1))
if not PRE: exec(CLA)
e(f"s_mov_b32 s{sW+2}, 1610612736"); e(f"s_mov_b32 s{sW+3}, 0x20000")
e("s_waitcnt lgkmcnt(0)")
e(f"s_mov_b32 s{sK}, s46"); e(f"s_and_b32 s{sK+1}, s47, 0xffff"); e(f"s_mov_b32 s{sW}, s66"); e(f"s_and_b32 s{sW+1}, s67, 0xffff")
if SPIN: e("v_mov_b32 v38, s96"); e("v_accvgpr_write_b32 a253, v38")
SPM = OPT.get("spm", "")
if DA >= 0: e("s_mov_b32 s54, s96"); e("s_mov_b32 s55, 0")
RW = int(OPT.get("rw", 16)); RF = (320 - 20 * RW) // 12
assert 20 * RW + 12 * RF == 320
NPW = -(-max(RW, RF) * 24 // 64)
pend = []
def q_tile(srdn, t, f, base, tag):
    so = sKV if t == 0 else sTO + t
    for i in range(6):
        pend.append((f"buffer_load_dwordx4 {rg(f, base+4*i, 4)}, v{vLin if i < 4 else vLin2}, {sr(srdn)}, s{so} offen offset:{1024*(i%4)} {NT}", tag))
def qK(t): q_tile(sK, t, "a", 24 * t, f"K{t}")
def qV(t): f, b = vblock(t + 1); q_tile(sV, t, f, b, f"V{t}")
def q_pfo():
    for n in range(9): pend.append((f"buffer_load_dwordx4 a[240:243], v{[vLin, vLin, vLin2, 108, 109][n//2]}, {sr(sWQ)}, s{sPo} offen offset:{1024*(n%4)} {NTP}", "pfo"))
def q_pfw():
    for n in range(NPW): pend.append((f"buffer_load_dwordx4 a[240:243], v{101+n}, {sr(sX)}, s{sPw} offen {NTP}", "pfw"))
nfill = [0]; BARN = int(OPT.get("barn", 6)); THR = int(OPT.get("thr", 0)); THRE = int(OPT.get("thre", 0)); THS = int(OPT.get("ths", 20)); THP = int(OPT.get("thp", 1))
hold = {"V7", "pfw", "pfo"}; LA = int(OPT.get("la", 12))
def ahead(tag, LA=LA):
    while tag in A.vm and pend and pend[0][1] not in hold and len(A.vm) - 1 - max(i for i, x in enumerate(A.vm) if x == tag) < LA: fill()
def fill(n=1):
    for _ in range(n):
        if pend and not (pend[0][1] in hold):
            if THR and nfill[0] >= THS and len(pend) > THRE:
                k = nid(); e(f"s_bitcmp{THP}_b32 s{sFast}, 0"); e(f"s_cbranch_scc1 TH{k}"); e(f"s_waitcnt vmcnt({THR-1})"); lab(f"TH{k}")
            x, tag = pend.pop(0); A.vmem(x, tag); nfill[0] += 1
            if BARN and nfill[0] > 12 and nfill[0] % BARN == 0 and len(pend) >= 3: e("s_barrier")
BARS = OPT.get("bar", "").split(",")
def upto(tag):
    while any(t == tag for _, t in pend): fill()
    if tag in BARS or "every" in BARS and tag not in ("K0", "K1", "V7"): e("s_barrier")
def Kld(t): upto(f"K{t}")
def Vld(t): upto(f"V{t}")
for it in OPT.get("order", "K0 K1 K2 K3 K4 K5 K6 K7 V0 V1 V2 V3 V4 V5 V6 V7").replace(",", " ").split():
    if it == "w":
        if "pfw" not in SKIP: q_pfw()
    elif it == "o":
        if "pfo" not in SKIP: q_pfo()
    elif it[0] == "K": qK(int(it[1]))
    else: qV(int(it[1]))
if JIT: jitter(255, 16)
fill(int(OPT.get("k0e", 2)))
if DA >= 0: stamp(14)
e(f"s_or_b32 s{sT0}, s2, s{sWV}"); e("s_cbranch_scc1 NOTAG")
e(f"s_or_b32 s{sT0}, s96, 1"); e(f"v_mov_b32 v26, s{sT0}"); setexec(1); e(f"global_store_dword v{vLin}, v26, s[64:65] sc1"); setexec(FULL)
lab("NOTAG")
if STAMP == 1: e("s_memrealtime s[94:95]")
e(f"s_add_u32 s{sTO+1}, s{sKV}, 196608")
srd(sV, 48, 402653184); srd(sWQ, 50, 7864320); srd(sX, 44, 1280); srd(sO, 62, 1280)
srd(sRB, 58, 1966080); srd(sRC, 60, 1966080)
e(f"s_cmp_lt_u32 s{sJ}, 20"); e(f"s_cselect_b32 s{sRA}, s52, s56"); e(f"s_cselect_b32 s{sRA+1}, s53, s57"); e(f"s_cselect_b32 s{sRA+2}, s{sWQ+2}, s{sRB+2}")
e(f"s_and_b32 s{sRA+1}, s{sRA+1}, 0xffff"); e(f"s_mov_b32 s{sRA+3}, 0x20000")
TLBW = OPT.get("tlbw", "")
def tlb_touch():
    e(f"s_cmp_lg_u32 s{sWV}, 3"); e("s_cbranch_scc1 NOTLB")
    if "j" in TLBW: e(f"s_cmp_lg_u32 s{sS}, 0"); e("s_cbranch_scc1 NOTLB")
    e("v_mul_u32_u24 v26, 1376256, v24"); e("v_lshlrev_b32 v27, 20, v24")
    setexec(3)
    if "v" in TLBW: e(f"buffer_load_dword a243, v26, {sr(sV)}, s{sKV} offen nt"); e(f"buffer_load_dword a243, v26, {sr(sK)}, s{sKV} offen nt")
    if "w" in TLBW:
        e(f"global_load_dword a243, v27, s[56:57] nt"); e(f"buffer_load_dword a243, v27, {sr(sRB)}, 0 offen nt"); e(f"buffer_load_dword a243, v27, {sr(sRC)}, 0 offen nt")
        setexec(0xff); e(f"global_load_dword a243, v27, s[52:53] nt")
    setexec(FULL)
    lab("NOTLB")
if TLBW: tlb_touch()
if STAMP:
    e(f"s_lshl_b32 s98, s2, 2"); e(f"s_add_u32 s98, s98, s{sWV}"); e("s_lshl_b32 s98, s98, 7"); e("s_add_u32 s98, s98, 0x40000000")
    e("v_mov_b32 v38, s96"); e("v_mov_b32 v39, 0"); e("s_mov_b64 exec, 1")
    A.vmem(f"buffer_store_dword v38, v39, {sr(sW)}, s98 offen", "stamp")
    if STAMP == 1: e("s_waitcnt lgkmcnt(0)"); e("v_mov_b32 v37, s94"); A.vmem(f"buffer_store_dword v37, v39, {sr(sW)}, s98 offen offset:56", "stamp")
    e("s_mov_b64 exec, -1")
for t in range(2, 8): e(f"s_add_u32 s{sTO+t}, s{sTO+t-1}, 196608")
if PRE: e("v_mov_b32 v109, v0")
e(f"v_mov_b32 v{vL}, v24")
e(f"s_mul_i32 s{sT0}, s{sWV}, {SCRW}")
for r in range(3):
    e(f"v_add_u32 v25, {64*r}, v{vL}"); e("v_mul_u32_u24 v26, 171, v25"); e("v_lshrrev_b32 v26, 12, v26")
    e("v_mul_u32_u24 v27, 24, v26"); e("v_sub_u32 v27, v25, v27"); e("v_lshlrev_b32 v27, 4, v27")
    e(f"v_mul_u32_u24 v25, {RS}, v26"); e(f"v_add3_u32 v{vWr+r}, v25, v27, s{sT0}")
    e(f"v_mul_u32_u24 v25, 12288, v26"); e(f"v_add_u32 v{F+r}, v25, v27")
assert all((c * 171) >> 12 == c // 24 for c in range(192))
e(f"v_and_b32 v25, 15, v{vL}"); e(f"v_lshrrev_b32 v26, 4, v{vL}")
e(f"v_bfe_u32 v27, v{vL}, 2, 2"); e(f"v_and_b32 v28, 3, v{vL}")
e(f"s_mul_i32 s{sT1}, s{sS}, 160")
e(f"v_lshlrev_b32 v36, 4, v26"); e(f"v_lshlrev_b32 v37, 3, v26"); e(f"v_lshlrev_b32 v39, 2, v{vL}")
A.vmem(f"buffer_load_dwordx4 v[70:73], v36, {sr(sX)}, s{sT1} offen", "x")
A.vmem(f"buffer_load_dwordx4 v[74:77], v36, {sr(sX)}, s{sT1} offen offset:64", "x")
A.vmem(f"buffer_load_dwordx2 v[78:79], v37, {sr(sX)}, s{sT1} offen offset:128", "x")
A.vmem(f"buffer_load_dwordx4 v[80:83], v{vLin}, {sr(sX)}, 0 offen", "x")
A.vmem(f"buffer_load_dword v84, v39, {sr(sX)}, 0 offen offset:1024", "x")
e(f"s_lshl_b32 s{sT3}, s{sJ}, 6"); e(f"v_lshlrev_b32 v38, 2, v25")
A.vmem(f"buffer_load_dword v{vXR}, v38, {sr(sX)}, s{sT3} offen", "x")
e(f"s_mul_i32 s{sT1}, s{sS}, {80*12288}"); e(f"s_add_u32 s{sT2}, s{sT2}, s{sT1}")
e(f"s_mul_i32 s{sT1}, s{sWV}, {8*12288}"); e(f"s_add_u32 s{sT2}, s{sT2}, s{sT1}")
e(f"s_mul_i32 s{sT1}, s{sWV}, 3072"); e(f"s_add_u32 s{sT1}, s{sT1}, {WQ}")
for gi in range(3):
    if gi == 2: e(f"s_cmp_ge_u32 s{sWV}, 2"); e("s_cbranch_scc1 NOWQ3")
    for r in range(3):
        e(f"s_add_u32 m0, s{sT1}, {gi*4*3072 + r*1024}")
        if "wq" not in SKIP: A.vmem(f"buffer_load_dwordx4 v{F+r}, {sr(sWQ)}, s{sT2} offen {NTW} lds", "wq", counted=(gi < 2))
    if gi < 2: e(f"s_add_u32 s{sT2}, s{sT2}, {32*12288}")
lab("NOWQ3")
if PRE: exec(CLA.replace(", v0", ", v109").replace("v25", "v29").replace("sT0", "sT3"))
if DB == 10: stamp(10)
e(f"s_mul_i32 s{sT1}, s{sS}, 160")
srd(sWQ, 52, 7864320)
e(f"s_cmp_lt_u32 s{sWV}, 2"); e(f"s_cselect_b32 s{sX}, s56, s58"); e(f"s_cselect_b32 s{sX+1}, s57, s59"); e(f"s_and_b32 s{sX+1}, s{sX+1}, 0xffff"); e(f"s_mov_b32 s{sX+2}, 1966080")
fill(3)
e(f"v_mul_u32_u24 v29, {RS}, v25"); e(f"v_lshl_add_u32 v29, v26, 4, v29"); e(f"v_add_u32 v{vKrd}, s{sT0}, v29")
e(f"v_lshrrev_b32 v29, 2, v{vL}"); e(f"v_mul_u32_u24 v29, {RS}, v29"); e(f"v_lshl_add_u32 v29, v28, 3, v29"); e(f"v_add_u32 v{vVrd}, s{sT0}, v29")
e(f"s_mul_i32 s{sT2}, s{sWV}, 96"); e(f"s_add_u32 s{sT2}, s{sT2}, {WQ}")
e("v_lshl_add_u32 v29, v26, 3, v27"); e("v_mul_u32_u24 v29, 384, v29"); e("v_lshl_add_u32 v29, v28, 3, v29"); e(f"v_add_u32 v{vTq1}, s{sT2}, v29")
e("v_lshl_add_u32 v29, v26, 2, v27"); e("v_mul_u32_u24 v29, 384, v29"); e("v_lshl_add_u32 v29, v28, 3, v29"); e(f"v_add_u32 v{vTq2}, s{sT2}, v29")
REPL = int(OPT.get("repl", 1))
SHB = OPT.get("shb", "fl")
def rowbase(dst, m, og, ol, ob, tmp):
    e(f"s_mul_i32 s{sT3}, s{sG}, {10240 if REPL else 0}")
    if og == oYG and not RY0: e(f"s_cmp_eq_u32 s{sLay}, 0"); e(f"s_cselect_b32 s{sT3}, 0, s{sT3}")
    e(f"s_add_u32 s{sT3}, s{sT3}, {og}")
    e(f"v_mul_u32_u24 v{dst}, 1280, v{m}"); e(f"v_add_u32 v{dst}, s{sT3}, v{dst}")
    e(f"s_mul_i32 s{sT3}, s{sG}, {GB}"); e(f"s_add_u32 s{sT3}, s{sT3}, {ol}"); e(f"v_mov_b32 v{tmp}, s{sT3}")
    e(f"v_cmp_eq_u32 vcc, s{sG}, v{m}"); e(f"v_cndmask_b32 v{dst}, v{dst}, v{tmp}, vcc")
    if ob is not None:
        e(f"v_add_u32 v{tmp}, {ob-ol}, v{tmp}"); e(f"v_cmp_le_u32 vcc, 8, v{m}"); e(f"v_cndmask_b32 v{dst}, v{dst}, v{tmp}, vcc")
fill()
if "l" in SHB: e(f"s_mul_i32 s{sT2}, s{sWV}, 23"); e(f"v_min_u32 v32, 22, v{vL}"); e(f"v_add_u32 v32, s{sT2}, v32"); e("v_min_u32 v32, 89, v32")
else: e(f"v_mov_b32 v32, v{vL}")
assert all((c * 103) >> 10 == c // 10 for c in range(90))
e(f"v_mul_u32_u24 v31, 103, v32"); e("v_lshrrev_b32 v31, 10, v31")
e(f"v_mul_u32_u24 v30, 10, v31"); e(f"v_sub_u32 v30, v32, v30"); e(f"v_lshl_add_u32 v29, v30, 4, s{sT1}")
rowbase(vAq, 31, oFG, oFL, oBB, 30); e(f"v_add_u32 v{vAq}, v{vAq}, v29")
if "l" in SHB: e("v_add_u32 v33, v31, v32"); e("v_lshlrev_b32 v33, 4, v33"); e("v_add_u32 v33, 4096, v33")
e("v_add_u32 v31, 6, v31"); rowbase(vAq16, 31, oFG, oFL, oBB, 30); e(f"v_add_u32 v{vAq16}, v{vAq16}, v29")
e(f"v_mov_b32 v30, {OOB}"); e(f"v_cmp_le_u32 vcc, 30, v{vL}"); e(f"v_cndmask_b32 v{vAq16}, v{vAq16}, v30, vcc")
if "l" in SHB: e(f"v_mov_b32 v{vAq16}, v33")
e(f"s_lshl_b32 s{sT1}, s{sJ}, 10"); e(f"s_lshl_b32 s{sT2}, s{sWV}, 8"); e(f"s_add_u32 s{sT1}, s{sT1}, s{sT2}")
e(f"v_lshl_add_u32 v{vQst}, v{vL}, 2, s{sT1}")
e(f"s_lshl_b32 s{sT1}, s{sHH}, 13"); e(f"s_add_u32 s{sT1}, s{sT1}, s{sT2}")
e(f"v_lshlrev_b32 v29, 10, v26"); e(f"v_lshl_add_u32 v29, v25, 4, v29"); e(f"v_add_u32 v{vQld}, s{sT1}, v29")
fill()
e(f"s_mul_i32 s{sT1}, s{sWV}, 96"); e(f"s_add_u32 s{sT1}, s{sT1}, {QB}")
e(f"v_lshl_add_u32 v29, v27, 5, s{sT1}"); e("v_lshl_add_u32 v29, v28, 2, v29"); e("v_lshrrev_b32 v30, 1, v26"); e("v_lshl_add_u32 v29, v30, 4, v29")
e("v_and_b32 v30, 1, v26"); e("v_lshl_add_u32 v29, v30, 1, v29"); e(f"v_mov_b32 v30, {QB+384}")
e("v_cmp_le_u32 vcc, 12, v25"); e(f"v_cndmask_b32 v{vQBw}, v29, v30, vcc")
e(f"v_and_b32 v30, 1, v{vL}"); e(f"v_lshlrev_b32 v29, 5, v26"); e("v_lshl_add_u32 v29, v30, 4, v29"); e(f"v_add_u32 v{vQBr}, {QB}, v29")
e("v_mul_u32_u24 v30, 0xaaaa, v30"); e("v_and_b32 v29, 1, v27"); e("v_mul_u32_u24 v29, 0xaaaa, v29"); e("v_lshl_or_b32 v29, v29, 16, v30"); e(f"v_add_u32 v{vIdx}, 0x44444444, v29")
fill()
e(f"s_lshl_b32 s{sT1}, s{sWV}, 8"); e(f"s_add_u32 s{sT1}, s{sT1}, {PT}")
e(f"v_lshrrev_b32 v29, 5, v{vL}"); e(f"v_lshl_add_u32 v29, v29, 6, s{sT1}")
for bit, sh in ((3, 5), (1, 4), (2, 3), (4, 2), (0, 1)): e(f"v_bfe_u32 v30, v{vL}, {bit}, 1"); e(f"v_lshl_add_u32 v29, v30, {sh}, v29")
e(f"v_mov_b32 v{vPw}, v29")
e(f"v_bfe_u32 v29, v{vL}, 4, 1"); e(f"v_bfe_u32 v30, v{vL}, 2, 1"); e(f"v_lshl_add_u32 v29, v29, 5, s{sT1}"); e("v_lshl_add_u32 v29, v30, 4, v29"); e("v_accvgpr_write_b32 a252, v29")
e(f"s_mul_i32 s{sT1}, s{sWV}, 768"); e(f"s_add_u32 s{sT1}, s{sT1}, {ACC}"); e(f"v_lshl_add_u32 v29, v25, 2, s{sT1}")
e(f"v_bfe_u32 v30, v{vL}, 4, 1"); e("v_lshl_add_u32 v29, v30, 7, v29"); e(f"v_lshrrev_b32 v30, 5, v{vL}"); e(f"v_lshl_add_u32 v{vAcc}, v30, 6, v29")

def Krel(t):
    upto(f"K{t}"); ahead(f"K{t}"); A.wait(f"K{t}")
    if "rel" in SKIP: return
    for i in range(6): e(f"ds_write_b128 v{vWr+i%3}, {ar(24*t+4*i)} offset:{(i//3)*8*RS}")
    for ks in range(6): e(f"ds_read_b128 {ar(24*t+4*ks)}, v{vKrd} offset:{64*ks}")
def Vrel(t):
    upto(f"V{t}"); ahead(f"V{t}"); A.wait(f"V{t}")
    if "rel" in SKIP: return
    f, b = vblock(t + 1)
    for i in range(6): e(f"ds_write_b128 v{vWr+i%3}, {rg(f, b+4*i, 4)} offset:{(i//3)*8*RS}")
    f, b = vblock(t & ~1)
    for dt in range(12): e(f"ds_read_b64_tr_b16 {rg(f, b+4*dt+2*(t&1), 2)}, v{vVrd} offset:{32*dt}")
def wq_frags():
    for t in range(3):
        b = F + 10 * t
        for kk in range(2):
            for h in range(2): e(f"ds_read_b64_tr_b16 {vr(b+4*kk+2*h,2)}, v{vTq1} offset:{(32*kk+4*h)*384+32*t}")
        e(f"ds_read_b64_tr_b16 {vr(b+8,2)}, v{vTq2} offset:{64*384+32*t}")
def qstage(a, soff, tag=None, waits=False, fl=0):
    def mm(t, kk):
        n = 4 if kk < 2 else 2
        bb = vr(F + 10 * t + 4 * kk, n) if t < 3 else vr(a + 4 * kk, n)
        c = "0" if kk == 0 else vr(T + 4 * t)
        e(f"v_mfma_f32_16x16x{32 if kk<2 else 16}_bf16 {vr(T+4*t)}, {vr(a+4*kk,n)}, {bb}, {c}")
    def s4(t): return [f"v_add_f32 v{T+4*t}, v{T+4*t}, v{T+4*t+1}", f"v_add_f32 v{T+4*t+2}, v{T+4*t+2}, v{T+4*t+3}", f"v_add_f32 v{T+4*t}, v{T+4*t}, v{T+4*t+2}"]
    if waits: e("s_waitcnt lgkmcnt(2)")
    mm(0, 0); mm(2, 0)
    if waits: e("s_waitcnt lgkmcnt(0)")
    mm(0, 1); mm(2, 1); mm(0, 2); mm(2, 2)
    mm(1, 0); mm(3, 0); mm(1, 1); mm(3, 1); mm(1, 2); mm(3, 2)
    fill(fl)
    for x in s4(0) + s4(2): e(x)
    e(f"v_permlane32_swap_b32 v{T}, v{T+8}")
    x1, x3 = s4(1), s4(3)
    for x in x1[:2] + x3[:2] + [f"v_add_f32 v{T}, v{T}, v{T+8}"] + x1[2:] + x3[2:]: e(x)
    e(f"v_permlane32_swap_b32 v{T+4}, v{T+12}"); e(f"v_add_f32 v{T+4}, v{T+4}, v{T+12}")
    e(f"v_permlane16_swap_b32 v{T}, v{T+4}"); e(f"v_add_f32 v{T}, v{T}, v{T+4}")
    if tag and "qst" in SKIP: pass
    elif tag:
        for q in (1, 2, 3): e(f"v_mov_b32_dpp v{T+q}, v{T} quad_perm:[{q},{q},{q},{q}] row_mask:0xf bank_mask:0xf")
        setexec(0x1111111111111111); A.vmem(f"buffer_store_dwordx4 {vr(T)}, v{vQst}, {sr(sW)}, {soff} offen {'' if 'qplain' in SKIP else 'sc1'}", tag); setexec(FULL)
    else: lstore(f"buffer_store_dword v{T}, v{vQst}, {sr(sW)}, {soff} offen")
def xreduce(r0, r1, r2, r3):
    e(f"v_permlane32_swap_b32 v{r0}, v{r2}"); e(f"v_permlane32_swap_b32 v{r1}, v{r3}")
    e(f"v_add_f32 v{r0}, v{r0}, v{r2}"); e(f"v_add_f32 v{r1}, v{r1}, v{r3}")
    e(f"v_permlane16_swap_b32 v{r0}, v{r1}"); e(f"v_add_f32 v{r0}, v{r0}, v{r1}")
def qloads(b, s0, s1): return [f"buffer_load_dwordx4 {vr(b)}, v{vQld}, {sr(sW)}, {s0} offen sc1", f"buffer_load_dwordx4 {vr(b+4)}, v{vQld}, {sr(sW)}, {s1} offen sc1"]
def qsum(b):
    for q in range(4): e(f"v_add_f32 v{b+q}, v{b+q}, v{b+4+q}")
    xreduce(b, b + 1, b + 2, b + 3)
def rowred(op, v, tmp, steps):
    for sft in steps: e(f"v_{op}_f32_dpp v{v}, v{v}, v{v} row_ror:{sft} row_mask:0xf bank_mask:0xf")
def xrow(op, v, tmp, both=True):
    if both:
        e(f"v_mov_b32 v{tmp}, v{v}"); e(f"v_permlane32_swap_b32 v{v}, v{tmp}"); e(f"v_{op}_f32 v{v}, v{v}, v{tmp}")
    e(f"v_mov_b32 v{tmp}, v{v}"); e(f"v_permlane16_swap_b32 v{v}, v{tmp}"); e(f"v_{op}_f32 v{v}, v{v}, v{tmp}")
QF = 28; DQ = 40; PA = 72; X = 24; vM = 26
def att_zero():
    for t in range(8): e(f"v_mov_b32 v{DQ+4*t}, 0"); e(f"v_mov_b32 v{DQ+4*t+1}, 0")
    for q in range(16): e(f"v_mov_b32 v{PA+q}, 0")
def q_finish(b, mid=None):
    e(f"v_readlane_b32 s{sT0}, v{b}, 15")
    e(f"s_mov_b32 vcc_lo, 0x70007000"); e(f"s_mov_b32 vcc_hi, 0x70007000")
    e(f"v_fma_f32 v{b+1}, -s{sT0}, v{vCS}, v{b}")
    e(f"v_cvt_pk_bf16_f32 v{b+1}, v{b+1}, v{b+1}")
    e(f"ds_write_b16 v{vQBw}, v{b+1}")
    e(f"v_cndmask_b32 v{b+2}, 0, v{b}, vcc")
    e(f"v_add_f32_dpp v{b+2}, v{b+2}, v{b+2} quad_perm:[1,0,3,2] row_mask:0xf bank_mask:0xf")
    e(f"v_add_f32_dpp v{b+2}, v{b+2}, v{b+2} quad_perm:[2,3,0,1] row_mask:0xf bank_mask:0xf")
    e(f"v_mov_b32 v{b+3}, v{b+2}"); e(f"v_permlane32_swap_b32 v{b+2}, v{b+3}"); e(f"v_add_f32 v{b+2}, v{b+2}, v{b+3}")
    if mid: mid()
    else: e("s_waitcnt lgkmcnt(0)"); e("s_barrier")
    for ks in range(3): e(f"ds_read_b128 {vr(QF+4*ks)}, v{vQBr} offset:{128*ks}")
    e(f"v_mov_b32 v{b+3}, v{b+2}"); e(f"v_mov_b32 v{b+1}, s{sT0}"); e(f"v_subrev_f32 v{b+1}, 0x44200000, v{b+1}")
    e(f"v_permlane16_swap_b32 v{b+2}, v{b+3}"); e(f"v_add_f32 v{b+2}, v{b+2}, v{b+3}")
    e(f"v_mul_f32 v{b}, 0x3acccccd, v{b+1}")
    e(f"v_readlane_b32 s{sT0}, v{b+2}, 15")
    e(f"v_mul_f32 v{b}, v{b}, v{b}"); e(f"s_mov_b32 s{sT1}, 0x3acccccd")
    e(f"v_sub_f32 v{b+2}, s{sT0}, v{b+1}")
    e(f"v_fma_f32 v{b+2}, v{b+2}, s{sT1}, -v{b}"); e(f"v_max_f32 v{b+2}, 0, v{b+2}"); e(f"v_add_f32 v{b+2}, 0x3727c5ac, v{b+2}")
    e(f"v_rsq_f32 v{b+2}, v{b+2}"); e(f"v_mul_f32 v{vSC}, 0x3dd53b94, v{b+2}")
def qk_softmax(fl=0):
    def fold(t): e(f"v_add_f32_dpp v{X+t//4}, v{DQ+4*t}, v{DQ+4*t+1} quad_perm:[0,1,2,3] row_mask:{1<<(t%4):#x} bank_mask:0xf")
    def mm(t, ks): e(f"v_smfmac_f32_16x16x64_bf16 {vr(DQ+4*t)}, {vr(QF+4*ks)}, {ar(24*t+8*ks, 8)}, v{vIdx}")
    for ks in range(3):
        e(f"s_waitcnt lgkmcnt({2-ks})")
        for t in range(8): mm(t, ks)
        if ks != 1: fill(fl)
    S = lambda t: X + t // 4 if t % 4 == 0 else DQ + 4 * t
    for t in range(8):
        e(f"v_add_f32 v{S(t)}, v{DQ+4*t}, v{DQ+4*t+1}")
        if t == 2: e(f"v_max3_f32 v{vM}, v{S(0)}, v{S(1)}, v{S(2)}")
        if t in (4, 6): e(f"v_max3_f32 v{vM}, v{vM}, v{S(t-1)}, v{S(t)}")
    e(f"v_max_f32 v{vM}, v{vM}, v{S(7)}")
    mv = [f"v_mov_b32_dpp v{X+t//4}, v{S(t)} quad_perm:[0,1,2,3] row_mask:{1<<(t%4):#x} bank_mask:0xf" for t in (1, 5, 2, 6, 3, 7)] + ["v_accvgpr_read_b32 v27, a252", "s_nop 0"]
    for sft in (8, 4, 2, 1):
        e(mv.pop(0)); e(mv.pop(0)); e(f"v_max_f32_dpp v{vM}, v{vM}, v{vM} row_ror:{sft} row_mask:0xf bank_mask:0xf")
    fill(fl)
    e(f"v_mul_f32 v{vM}, v{vM}, v{vSC}")
    for q in range(2): e(f"v_fma_f32 v{X+q}, v{X+q}, v{vSC}, -v{vM}")
    for q in range(2): e(f"v_exp_f32 v{X+q}, v{X+q}")
    e(f"v_cvt_pk_bf16_f32 v28, v{X}, v{X+1}")
    e(f"ds_write_b16 v{vPw}, v28"); e(f"ds_write_b16_d16_hi v{vPw}, v28 offset:128")
    setexec(0xFF00FF0000FF00FF)
    for u in range(4): e(f"ds_read_b128 {vr(PA+4*u)}, v27 offset:{64*u}")
    setexec(FULL)
    e(f"v_add_f32 v27, v{X}, v{X+1}")
    z = [f"v_mov_b32 v{F+4*dp}, 0" for dp in range(6)] + [f"s_lshl_b32 s{sT1}, s{sWV}, 3", f"s_add_u32 s{sT1}, s{sT1}, {ML4}"]
    for sft in (8, 4, 2, 1):
        e(z.pop(0)); e(z.pop(0)); e(f"v_add_f32_dpp v27, v27, v27 row_ror:{sft} row_mask:0xf bank_mask:0xf")
    xrow("add", 27, 28)
    e(f"v_mov_b32 v28, s{sT1}"); e(f"ds_write_b64 v28, v[26:27]")
def pv_step(u, order=range(6)):
    f, b = vblock(2 * u)
    for dp in order: e(f"v_smfmac_f32_16x16x64_bf16 {vr(F+4*dp)}, {vr(PA+4*u)}, {rg(f, b+8*dp, 8)}, v{vIdx} abid:1")
def pv_post():
    for q in range(3): e(f"v_permlane16_swap_b32 v{F+8*q}, v{F+8*q+4}"); e(f"v_add_f32 v{F+8*q}, v{F+8*q}, v{F+8*q+4}"); e(f"ds_write_b32 v{vAcc}, v{F+8*q} offset:{OACC+256*q}")

WT = [int(x) for x in OPT.get("wt", "0,3,3,0,6").split(",")]
assert sum(WT) == 12
sDo, sDm = 66, 67
TT = OPT.get("tt", "x").replace("x", "")
ROT = int(OPT.get("rot", 0)); nwd = [0]
def wdma(n, tag=None):
    if "wo" in SKIP: return
    for _ in range(n):
        if ROT and nwd[0] == 6:
            e(f"s_bitcmp1_b32 s{sJ}, 0"); e(f"s_cselect_b32 s{sT1}, 12288, 0"); e(f"s_sub_u32 s{sDm}, s{sDm}, s{sT1}"); e(f"s_mul_i32 s{sT1}, s{sT1}, 20"); e(f"s_sub_u32 s{sDo}, s{sDo}, s{sT1}")
        nwd[0] += 1
        e(f"s_mov_b32 m0, s{sDm}"); e(f"s_add_u32 s{sDm}, s{sDm}, 1024")
        A.vmem(f"buffer_load_dwordx4 v39, {sr(sRA)}, s{sDo} offen {NTR} lds", tag, counted=tag is not None)
        e(f"s_add_u32 s{sDo}, s{sDo}, {(8 if WFL else 16)*1280}")
WFL = int(OPT.get("wfl", 0))
def wdma_addr(fl=True):
    if WFL and fl:
        e(f"v_lshrrev_b32 v38, 3, v{vL}"); e("v_mul_u32_u24 v38, 1280, v38"); e(f"v_and_b32 v39, 7, v{vL}"); e("v_lshl_add_u32 v39, v39, 4, v38"); return
    e(f"v_lshrrev_b32 v38, 2, v{vL}"); e("v_mul_u32_u24 v38, 1280, v38"); e(f"v_and_b32 v39, 3, v{vL}"); e("v_lshl_add_u32 v39, v39, 4, v38")
def role_dma():
    if "dma" in SKIP: return
    e(f"s_cmp_ge_u32 s{sJ}, 20"); e("s_cbranch_scc1 DMAF")
    head_of(sDo, sWV); e(f"s_mul_i32 s{sDo}, s{sDo}, {192*1280}"); e(f"s_lshl_b32 s{sT1}, s{sJ}, 6"); e(f"s_add_u32 s{sDo}, s{sDo}, s{sT1}")
    if WFL: e(f"s_and_b32 s{sT1}, s{sJ}, 1"); e(f"s_mul_i32 s{sT1}, s{sT1}, {96*1280-64}"); e(f"s_add_u32 s{sDo}, s{sDo}, s{sT1}")
    e(f"s_mul_i32 s{sDm}, s{sWV}, 12288"); e(f"s_add_u32 s{sDm}, s{sDm}, {WO}")
    if ROT: e(f"s_bitcmp1_b32 s{sJ}, 0"); e(f"s_cselect_b32 s{sT1}, 6144, 0"); e(f"s_add_u32 s{sDm}, s{sDm}, s{sT1}"); e(f"s_mul_i32 s{sT1}, s{sT1}, 20"); e(f"s_add_u32 s{sDo}, s{sDo}, s{sT1}")
    if TT:
        e(f"v_mul_u32_u24 v38, {191*1280}, v{vL}"); e(f"s_mul_i32 s{sT1}, s{sG}, {192*1280}"); setexec(3)
        if "o" in TT: e(f"buffer_load_dword a243, v38, {sr(sRA)}, s{sDo} offen")
        if "2" in TT: e(f"buffer_load_dword a243, v38, {sr(sRC)}, s{sT1} offen")
        setexec(FULL)
    if WT[0]: wdma_addr(); wdma(WT[0])
    lab("DMAX")
    def t():
        lab("DMAF")
        e(f"s_sub_u32 s{sT1}, s{sJ}, 20"); e(f"s_and_b32 s{sDo}, s{sT1}, 3"); e(f"s_lshl_b32 s{sDo}, s{sDo}, 1"); e(f"s_and_b32 s{sT2}, s{sWV}, 1"); e(f"s_add_u32 s{sDo}, s{sDo}, s{sT2}")
        e(f"s_mul_i32 s{sDo}, s{sDo}, {80*3072}"); e(f"s_lshr_b32 s{sT1}, s{sT1}, 2"); e(f"s_lshl_b32 s{sT1}, s{sT1}, 7"); e(f"s_add_u32 s{sDo}, s{sDo}, s{sT1}")
        e(f"s_mul_i32 s{sT1}, s{sG}, 384"); e(f"s_add_u32 s{sDo}, s{sDo}, s{sT1}")
        e(f"s_mul_i32 s{sDm}, s{sWV}, 10240"); e(f"s_add_u32 s{sDm}, s{sDm}, {W1}")
        if TT:
            e(f"v_mul_u32_u24 v38, {79*3072}, v{vL}"); e(f"s_lshl_b32 s{sT1}, s{sWV}, 3"); e(f"s_add_u32 s{sT1}, s{sT1}, s{sG}"); e(f"s_mul_i32 s{sT1}, s{sT1}, 24"); e(f"s_add_u32 s{sT1}, s{sT1}, s{sJ}")
            e(f"s_sub_u32 s{sT1}, s{sT1}, 8"); e(f"s_mul_i32 s{sT1}, s{sT1}, 10240"); setexec(3)
            if "f" in TT: e(f"buffer_load_dword a243, v38, {sr(sX)}, s{sDo} offen nt")
            setexec(1)
            if "o" in TT: e(f"buffer_load_dword a243, v38, {sr(sWQ)}, s{sT1} offen")
            setexec(FULL)
        if FT[0]: fdma_addr(); fdma(0, FT[0])
        e("s_branch DMAX")
    tail.append(t)
FT = [int(x) for x in OPT.get("ft", "0,0,0,2,8").split(",")]
assert sum(FT) == 10
def fdma_addr():
    e(f"v_lshrrev_b32 v38, 3, v{vL}"); e("v_mul_u32_u24 v38, 3072, v38"); e(f"v_and_b32 v39, 7, v{vL}"); e("v_lshl_add_u32 v38, v39, 4, v38")
    e(f"v_bfe_u32 v39, v{vL}, 4, 1"); e("v_lshlrev_b32 v39, 5, v39"); e("v_xor_b32 v38, v38, v39"); e("v_xor_b32 v39, 64, v38")
def fdma(n0, n, tag=None):
    for k in range(n0, n0 + n):
        e(f"s_mov_b32 m0, s{sDm}"); e(f"s_add_u32 s{sDm}, s{sDm}, 1024")
        A.vmem(f"buffer_load_dwordx4 v{38+(k&1)}, {sr(sX)}, s{sDo} offen {NTW} lds", tag, counted=tag is not None)
        e(f"s_add_u32 s{sDo}, s{sDo}, {8*3072}")
CSL = int(OPT.get("csl", 1))
def cs_store():
    e(f"s_add_u32 s{sT0}, s{sLG}, {2*LS}"); lstore(f"buffer_store_dword v{vCS}, v{vQst}, {sr(sW)}, s{sT0} offen")
def addr_block():
    e(f"v_mov_b32 v109, v{vC1}")
    e(f"v_and_b32 v25, 15, v{vL}"); e(f"v_lshrrev_b32 v26, 4, v{vL}"); e("v_add_u32 v27, 4, v26")
    rowbase(vC1, 26, oFG, oFL, None, 28); rowbase(vC2, 27, oFG, oFL, None, 28)
    e(f"s_min_u32 s{sT3}, s{sJ}, 19"); e(f"s_lshl_b32 s{sT3}, s{sT3}, 6"); e(f"v_lshl_add_u32 v25, v25, 2, s{sT3}")
    e(f"v_add_u32 v{vC1}, v{vC1}, v25"); e(f"v_add_u32 v{vC2}, v{vC2}, v25")
    fill()
    e(f"v_and_b32 v25, 15, v{vL}"); e(f"v_bfe_u32 v27, v{vL}, 2, 2"); e(f"v_and_b32 v28, 3, v{vL}")
    e(f"s_mul_i32 s{sT3}, s{sWV}, 12288"); e(f"s_add_u32 s{sT3}, s{sT3}, {WO}")
    e("v_lshl_add_u32 v29, v26, 3, v27"); e("v_lshlrev_b32 v29, 6, v29"); e("v_lshl_add_u32 v29, v28, 3, v29"); e(f"v_add_u32 v29, s{sT3}, v29"); e("v_accvgpr_write_b32 a246, v29")
    e(f"s_mul_i32 s{sT3}, s{sWV}, 3072"); e(f"s_add_u32 s{sT3}, s{sT3}, {oO}")
    e(f"v_add_u32 v29, s{sT3}, v{vLin}"); e("v_accvgpr_write_b32 a247, v29")
    e(f"s_lshl_b32 s{sT3}, s{sWV}, 6"); e(f"s_add_u32 s{sT3}, s{sT3}, {oML}"); e("v_xor_b32 v29, v26, v27"); e("v_and_b32 v29, 1, v29"); e("v_lshl_add_u32 v29, v29, 2, v28")
    e(f"v_lshl_add_u32 v29, v29, 3, s{sT3}"); e("v_accvgpr_write_b32 a248, v29")
    e(f"s_lshl_b32 s{sT3}, s{sWV}, 8"); e(f"s_add_u32 s{sT3}, s{sT3}, {ACC+YACC}"); e(f"v_lshl_add_u32 v29, v{vL}, 2, s{sT3}"); e("v_accvgpr_write_b32 a249, v29")
    e(f"s_lshl_b32 s{sYl}, s{sJ}, 6"); e(f"s_mul_i32 s{sYg}, s{sG}, 1280"); e(f"s_add_u32 s{sYg}, s{sYg}, s{sYl}"); e(f"s_add_u32 s{sYg}, s{sYg}, {oYG}")
    e(f"s_add_u32 s{sYl}, s{sYl}, s{sLG}"); e(f"s_add_u32 s{sYl}, s{sYl}, {oYL}")
A.wait("x")
for q in range(5): e(f"v_lshlrev_b32 v{88+2*q}, 16, v{80+q}"); e(f"v_and_b32 v{89+2*q}, 0xffff0000, v{80+q}")
e("v_add_f32 v80, v88, v89")
for q in range(2, 10): e(f"v_add_f32 v80, v80, v{88+q}")
rowred("add", 80, None, (8, 4, 2, 1)); xrow("add", 80, 81)
e("v_mul_f32 v80, 0x3acccccd, v80")
for q in range(10): e(f"v_sub_f32 v{88+q}, v{88+q}, v80")
e("v_mul_f32 v82, v88, v88")
for q in range(1, 10): e(f"v_fmac_f32 v82, v{88+q}, v{88+q}")
fill()
rowred("add", 82, None, (8, 4, 2, 1)); xrow("add", 82, 81)
e("v_mul_f32 v82, 0x3acccccd, v82"); e("v_add_f32 v82, 0x3727c5ac, v82"); e("v_rsq_f32 v82, v82")
e("s_mov_b32 vcc_lo, 0xaaaaaaaa"); e("s_mov_b32 vcc_hi, 0xaaaaaaaa"); e("v_mov_b32 v85, 0x3f803f80")
for q in range(10):
    e(f"v_lshlrev_b32 v83, 16, v{70+q}"); e(f"v_and_b32 v84, 0xffff0000, v{70+q}"); e("v_sub_f32 v83, v83, v80"); e("v_sub_f32 v84, v84, v80")
    e("v_mul_f32 v83, v83, v82"); e("v_mul_f32 v84, v84, v82"); e("v_cvt_pk_bf16_f32 v83, v83, v84"); e(f"v_cndmask_b32 v{70+q}, v83, v85, vcc")
    if q == 5: fill()
ahead("wq", int(OPT.get("lax", 6))); A.wait("wq"); e("s_barrier"); wq_frags()
tagl = "global_load_dword v98, v100, s[64:65] sc1"
e("v_mov_b32 v100, 0"); e(f"s_cmp_lg_u32 s{sWV}, 0"); e("s_cbranch_scc1 NOTL"); setexec(1); e(tagl); setexec(FULL); lab("NOTL")
fill(2)
stamp(1)
e(f"s_mul_i32 s{sT2}, s{sWV}, 96"); e(f"s_add_u32 s{sT2}, s{sT2}, {ACC}"); e(f"v_min_u32 v36, 48, v{vL}"); e(f"v_lshl_add_u32 v36, v36, 1, s{sT2}")
e(f"v_mov_b32 v37, {ACC+512}"); e(f"v_cmp_le_u32 vcc, 48, v{vL}"); e("v_cndmask_b32 v36, v36, v37, vcc"); e(f"v_add_u32 v37, {ACC}, v{vLin}")
e("s_waitcnt lgkmcnt(0)")
for kk in range(3):
    for t in range(3):
        n = 4 if kk < 2 else 2
        e(f"v_mfma_f32_16x16x{32 if kk<2 else 16}_bf16 {vr(T+4*t)}, {vr(70+4*kk,n)}, {vr(F+10*t+4*kk,n)}, " + ("0" if kk == 0 else vr(T + 4 * t)))
fill()
e(f"v_mov_b32 v{vCS}, v{T+1}")
for t in (1, 2):
    e(f"v_mov_b32_dpp v{T}, v{T+4*t} quad_perm:[0,1,2,3] row_mask:{1<<t:#x} bank_mask:0xf"); e(f"v_mov_b32_dpp v{vCS}, v{T+4*t+1} quad_perm:[0,1,2,3] row_mask:{1<<t:#x} bank_mask:0xf")
e(f"v_cvt_pk_bf16_f32 v{T}, v{T}, v{T}"); e(f"ds_write_b16 v36, v{T}")
fill(2)
e("s_waitcnt lgkmcnt(0)"); e("s_barrier")
e(f"ds_read_b128 v[28:31], v37"); e(f"s_lshl_b32 s{sT2}, s{sJ}, 9"); e(f"s_add_u32 s{sT2}, s{sT2}, s{sLG}")
e(f"s_cmp_eq_u32 s{sWV}, 0"); e(f"s_cselect_b32 exec_lo, 0xffffff, 1"); e("s_mov_b32 exec_hi, 0"); e(f"s_cselect_b32 s{sT1}, 0, {OOB-0x10000000}"); e(f"v_add_u32 v37, s{sT1}, v{vLin}")
e("s_waitcnt lgkmcnt(0)")
if "qst" not in SKIP: A.vmem(f"buffer_store_dwordx4 v[28:31], v37, {sr(sW)}, s{sT2} offen sc1", "qst")
setexec(FULL)
for q in range(4): e(f"v_mov_b32 v{32+q}, -1")
if RY0:
    e(f"s_lshr_b32 s{sT1}, s{sJ}, 2"); e(f"s_or_b32 s{sT1}, s{sT1}, s{sWV}"); e("s_cbranch_scc1 NOYC")
    for q in range(2): e(f"buffer_store_dwordx4 v[32:35], v{vLin}, {sr(sW)}, s{sClr} offen offset:{1024*q} sc1")
    lab("NOYC")
if "clr" not in SKIP: A.vmem(f"buffer_store_dwordx4 v[32:35], v{vC2}, {sr(sW)}, 0 offen sc1", "qst")
Krel(0)
ahead("qst", int(OPT.get("laq", 9)))
e(f"s_getreg_b32 s{sXcc}, hwreg(HW_REG_XCC_ID, 0, 4)")
e(f"s_cmp_lg_u32 s{sWV}, 0"); e("s_cbranch_scc1 NOHDR")
save = list(A.vm); A.wait("qst"); A.vm = save
e("v_readfirstlane_b32 s96, v98"); e("s_cmp_eq_u32 s96, 0"); e("s_cbranch_scc1 TAGLOOP"); lab("TAGOK")
if SPM == "skmax": e("s_sub_u32 s55, s54, s96"); e("s_add_u32 s55, s55, 300"); e("s_min_u32 s55, s55, 900"); e("s_mul_i32 s55, s55, 10")
if SPM == "skmin": e("s_sub_u32 s55, s96, s54"); e("s_add_u32 s55, s55, 300"); e("s_min_u32 s55, s55, 900"); e("s_mul_i32 s55, s55, 10")
if SPM == "tag": e("s_mov_b32 s54, s96")
def t_():
    lab("TAGLOOP"); e(f"s_mov_b32 s{sCnt}, 0"); lab("TAGL2"); e("s_sleep 8"); e(tagl); e("s_waitcnt vmcnt(0)"); e("v_readfirstlane_b32 s96, v98"); e("s_cmp_lg_u32 s96, 0"); e("s_cbranch_scc1 TAGOK")
    e(f"s_add_u32 s{sCnt}, s{sCnt}, 1"); e(f"s_cmp_lt_u32 s{sCnt}, {LIMIT}"); e("s_cbranch_scc1 TAGL2"); e("s_branch TAGOK")
tail.append(t_)
e(f"v_mov_b32 v99, s{sXcc}"); setexec(1); e(f"buffer_store_dwordx2 v[98:99], v{vLin}, {sr(sW)}, s{sT2} offen offset:384 sc1"); setexec(FULL)
lab("NOHDR")
stamp(1, "s100")
Krel(1); Krel(2)
RT = int(OPT.get("rt", 9))
DT = int(OPT.get("dt", 7))
rdy = [f"buffer_load_dwordx2 v[98:99], v100, {sr(sW)}, 0 offen offset:384 sc1"]
e(f"v_lshlrev_b32 v100, 9, v{vL}"); e(f"v_add_u32 v100, s{sLG}, v100"); e(f"v_bfe_u32 v96, v{vL}, 2, 3"); e(f"v_mul_u32_u24 v96, {GB}, v96"); e(f"v_and_b32 v97, 3, v{vL}"); e("v_lshl_add_u32 v96, v97, 9, v96")
e(f"v_cmp_le_u32 vcc, 32, v{vL}"); e("v_cndmask_b32 v100, v100, v96, vcc"); e(f"s_cmp_eq_u32 s{sWV}, 0"); e(f"s_cselect_b32 s{sT0}, 0, {OOB-0x10000000}"); e(f"v_add_u32 v100, s{sT0}, v100")
def ld(t): Kld(t) if t < 8 else Vld(t - 8)
def rel(t): Krel(t) if t < 8 else Vrel(t - 8)
for t in range(5, RT + 2):
    ld(t)
    if t == DT: stamp(12); role_dma()
    if t == RT: A.vmem(rdy[0], "rdy"); stamp(2, "s100")
    if t == 7: addr_block()
    rel(t - 2)
ahead("rdy"); A.wait("rdy"); e(f"s_mov_b32 s{sCnt}, -1"); e(f"v_mov_b32 v97, {FLG}")
e(f"s_cmp_lg_u32 s{sWV}, 0"); e("s_cbranch_scc1 RDYX")
e("v_cmp_ne_u32 vcc, s96, v98"); e("s_cbranch_vccnz RDYLOOP"); lab("RDYOK")
e(f"v_cmp_ne_u32 vcc, s{sXcc}, v99"); e("s_nop 1"); e(f"v_mov_b32 v96, vcc_lo"); e("ds_write_b32 v97, v96")
lab("RDYX")
stamp(13, f"s{sCnt}")
def t_():
    lab("RDYLOOP")
    if SPM == "rdy": e("v_accvgpr_read_b32 v96, a253"); e("v_add_u32 v96, 2000, v96"); e("v_accvgpr_write_b32 a253, v96")
    e(f"s_mov_b32 s{sCnt}, 0"); lab("RDYL2"); e("s_sleep 8"); e(rdy[0]); e("s_waitcnt vmcnt(0)"); e("v_cmp_ne_u32 vcc, s96, v98"); e("s_cbranch_vccz RDYOK")
    e(f"s_add_u32 s{sCnt}, s{sCnt}, 1"); e(f"s_cmp_lt_u32 s{sCnt}, {LIMIT}"); e("s_cbranch_scc1 RDYL2"); e("s_branch RDYOK")
tail.append(t_)
fill(2)
e("s_waitcnt lgkmcnt(0)"); e("s_barrier"); e("ds_read_b32 v96, v97"); e("s_waitcnt lgkmcnt(0)"); e(f"v_readfirstlane_b32 s{sT0}, v96")
e(f"s_cmp_eq_u32 s{sT0}, 0"); e(f"s_cselect_b32 s{sWp+2}, s{sW+2}, 0")
assert not any(t[0] == "K" for _, t in pend) and DT <= RT + 1
if FORCESLOW: e(f"s_mov_b32 s{sWp+2}, 0")
for d_ in (sWp,): e(f"s_mov_b32 s{d_}, s{sW}"); e(f"s_mov_b32 s{d_+1}, s{sW+1}"); e(f"s_mov_b32 s{d_+3}, 0x20000")
stamp(2)
if "pre" not in SKIP:
    A.vmem(f"buffer_load_dwordx4 a[240:243], v109, {sr(sW)}, 0 offen sc1", "pre")
e(f"s_mul_i32 s{sT0}, s{sJ}, 464"); e(f"s_add_u32 s{sT0}, s{sT0}, s{sLG}"); e(f"s_add_u32 s{sT0}, s{sT0}, {oBB}"); e(f"s_cmp_eq_u32 s{sWV}, 3"); e(f"s_cselect_b32 s{sT0}, s{sT0}, {OOB-0x10000000}")
e(f"v_add_u32 v106, s{sT0}, v{vLin}"); e(f"v_mov_b32 v107, {OOB}"); e(f"v_cmp_le_u32 vcc, 29, v{vL}"); e("v_cndmask_b32 v106, v106, v107, vcc")
if "pre" not in SKIP: A.vmem(f"buffer_load_dwordx4 a[240:243], v106, {sr(sW)}, 0 offen sc1", "pre")
e(f"s_lshl_b32 s{sT0}, s{sJ}, 2"); e(f"s_add_u32 s{sT0}, s{sT0}, s{sWV}"); e(f"s_lshl_b32 s{sT1}, s{sT0}, 8"); e(f"s_add_u32 s{sT1}, s{sT1}, {LS}"); e(f"s_lshl_b32 s{sT0}, s{sT0}, 9"); e(f"s_sub_u32 s{sT0}, s{sT0}, 256")
e(f"v_lshlrev_b32 v24, 7, v{vL}"); e(f"v_add_u32 v25, s{sT0}, v24"); e(f"v_min_u32 v25, {oGX+CSO-128}, v25"); e(f"v_add_u32 v24, s{sT1}, v24"); e(f"v_cmp_gt_u32 vcc, 2, v{vL}"); e("v_cndmask_b32 v24, v25, v24, vcc")
e(f"s_add_u32 s{sT0}, s{sLG}, {LS}"); setexec(63); A.vmem(f"buffer_load_dword a243, v24, {sr(sW)}, s{sT0} offen sc1", "pre"); setexec(FULL)
e(f"s_lshl_b32 s{sT0}, s{sHH}, 12"); e(f"s_mul_i32 s{sT1}, s{sWV}, 96"); e(f"s_add_u32 s{sT0}, s{sT0}, s{sT1}"); e(f"s_add_u32 s{sT0}, s{sT0}, s{sLG}")
e(f"v_lshrrev_b32 v24, 4, v{vL}"); e("v_lshlrev_b32 v24, 9, v24"); e(f"v_and_b32 v25, 15, v{vL}"); e("v_min_u32 v25, 11, v25"); e("v_lshl_add_u32 v24, v25, 3, v24")
for q in range(2):
    if "qg" not in SKIP: A.vmem(f"buffer_load_dwordx2 v[{64+2*q}:{65+2*q}], v24, {sr(sW)}, s{sT0} offen offset:{2048*q} sc1", "qg")
def pack_store16(d, instr_fn):
    for q in (1, 2, 3): e(f"v_mov_b32_dpp v{d+q}, v{d} quad_perm:[{q},{q},{q},{q}] row_mask:0xf bank_mask:0xf")
    setexec(0x1111); instr_fn(); setexec(FULL)
if "b0" in SKIP: e("s_branch NOBASE0")
e(f"s_cmp_lg_u32 s{sWV}, 1"); e("s_cbranch_scc1 NOBASE0"); e(f"s_cmp_ge_u32 s{sJ}, 20"); e("s_cbranch_scc1 NOBASE0")
e(f"v_mov_b32 v28, v{vXR}"); e(f"s_lshl_b32 s{sT0}, s{sJ}, 6"); e(f"s_add_u32 s{sT0}, s{sT0}, s{sLG}"); e(f"s_add_u32 s{sT0}, s{sT0}, {oBA}"); e(f"v_lshlrev_b32 v27, 2, v{vL}")
pack_store16(28, lambda: lstore(f"buffer_store_dwordx4 v[28:31], v27, {sr(sW)}, s{sT0} offen"))
lab("NOBASE0")
stamp(3)
for t in range(RT, RT + 3): rel(t)
ahead("qg"); A.wait("qg")
for q in range(4): e(f"v_lshlrev_b32 v{T+2*q}, 16, v{64+q}"); e(f"v_and_b32 v{T+2*q+1}, 0xffff0000, v{64+q}")
qsum(T)
e(f"v_cvt_pk_bf16_f32 v{T}, v{T}, v{T}"); e(f"ds_write_b16 v{vQBw}, v{T}")
fill(); att_zero()
stamp(4)
fill(2); e("s_waitcnt lgkmcnt(0)"); e("s_barrier")
for ks in range(3): e(f"ds_read_b128 {vr(QF+4*ks)}, v{vQBr} offset:{128*ks}")
e(f"v_mov_b32 v{vSC}, 0x3dd53b94")
qk_softmax(fl=1)
stamp(5)
for t in range(RT + 3, 12): rel(t)
fill(2)
e("s_waitcnt lgkmcnt(0)"); pv_step(0); fill(); pv_step(1)
Vrel(4)
assert sum(1 for _, t in pend if t == "V7") == 6
for q in range(4): e(f"v_mov_b32 v{24+q}, -1")
if "gxc" not in SKIP: lstore(f"buffer_store_dwordx4 v[24:27], v106, {sr(sW)}, 0 offen"); A.vm.append("gxc")
hold.clear(); Vld(7); Vrel(5)
e(f"v_and_b32 v{vXR+1}, 0xffff0000, v{vXR}"); e(f"v_lshlrev_b32 v{vXR}, 16, v{vXR}")
PT_ = [int(x) for x in OPT.get("pt", "7,3").split(",")]
PTF = int(OPT.get("ptf", 1))
def late_pf(w, k0, n):
    if "wo" in SKIP: return
    for k in range(k0, k0 + n):
        if k % 4 == 0 and k: e(f"s_add_u32 s{sPo}, s{sPo}, 4096")
        A.vmem(f"buffer_load_dwordx4 a[240:243], v{vLin}, {sr(sWQ)}, s{sPo} offen offset:{1024*(k%4)} {NTP}", "pfo")
for m_, r_ in ((0x0005000500050005, 82), (ROWS9, 84), ((1 << 45) - 1, 86), ((1 << 23) - 1, 50), (0xFF00FF0000FF00FF, 88), (0x01010101, 92), (0x0F0F0F0F0F0F0F0F if REPL else 0x01010101 + (1 << 63), 44)):
    e(f"s_mov_b32 s{r_}, {m_ & 0xffffffff:#x}"); e(f"s_mov_b32 s{r_+1}, {m_ >> 32:#x}"); MASKS[m_] = r_
if not REPL: e("s_mov_b32 s45, 0")
e(f"s_mov_b64 s[46:47], s[{'44:45' if RY0 else '92:93'}]"); e("s_mov_b64 s[48:49], s[44:45]")
FGE = int(OPT.get("fge", 1))
def rep_addr(d, t):
    e(f"v_and_b32 v{d}, 3, v{vL}"); e(f"v_lshrrev_b32 v{t}, 5, v{vL}"); e(f"v_lshl_add_u32 v{d}, v{t}, 2, v{d}"); e(f"v_mul_u32_u24 v{d}, 10240, v{d}")
    e(f"v_bfe_u32 v{t}, v{vL}, 3, 2"); e(f"v_lshl_add_u32 v{d}, v{t}, 4, v{d}")
def stream_tail(w):
    save = list(A.vm)
    pf = sum(PT_) and not (PTF and w)
    if pf and not PTF:
        e(f"s_lshl_b32 s{sPo}, s{sHH}, 3"); e(f"s_add_u32 s{sPo}, s{sPo}, s{sG}"); e(f"s_lshl_b32 s{sPo}, s{sPo}, 3"); e(f"s_add_u32 s{sPo}, s{sPo}, s{sS}")
        e(f"s_lshl_b32 s{sPo}, s{sPo}, 2"); e(f"s_add_u32 s{sPo}, s{sPo}, s{sWV}"); e(f"s_mul_i32 s{sPo}, s{sPo}, 7680")
    if pf and PTF:
        head_of(sPo, sWV); e(f"s_add_u32 s{sPo}, s{sPo}, 1"); e(f"s_mul_i32 s{sPo}, s{sPo}, {192*1280}")
        e(f"s_sub_u32 s{sT1}, 32, s{sJ}"); e(f"s_mul_i32 s{sT1}, s{sT1}, {1024*sum(PT_)}"); e(f"s_sub_u32 s{sPo}, s{sPo}, s{sT1}")
    if pf: late_pf(w, 0, PT_[0])
    if w and FGE and "fgc" not in SKIP:
        for q in range(4): e(f"v_mov_b32 v{24+q}, -1")
        rep_addr(28, 29); e(f"s_cmp_eq_u32 s{sWV}, 3"); e(f"s_cselect_b32 s{sT0}, 0, {OOB-0x10000000}"); e(f"v_add_u32 v28, s{sT0}, v28"); e(f"s_add_u32 s{sT0}, s{sYg}, {oFG-oYG}")
        e("s_mov_b64 exec, s[44:45]"); A.vmem(f"buffer_store_dwordx4 v[24:27], v28, {sr(sW)}, s{sT0} offen sc1", "fgc"); setexec(FULL)
    if w: wdma_addr(); wdma(WT[1], "wo")
    else: fdma_addr(); fdma(FT[0], FT[1], "f")
    e("s_waitcnt lgkmcnt(0)"); pv_step(2)
    Vrel(6)
    if pf: late_pf(w, PT_[0], PT_[1])
    if w: wdma(WT[2], "wo")
    if not w: fdma(sum(FT[:2]), FT[2], "f")
    x = len(A.vm) - 1 - max(i for i, t in enumerate(A.vm) if t == "V7")
    f_, b_ = vblock(8)
    for i in range(6):
        e(f"s_waitcnt vmcnt({5-i+x})"); e(f"ds_write_b128 v{vWr+i%3}, {rg(f_, b_+4*i, 4)} offset:{(i//3)*8*RS}")
    f_, b_ = vblock(6)
    for dt in range(12): e(f"ds_read_b64_tr_b16 {rg(f_, b_+4*dt+2, 2)}, v{vVrd} offset:{32*dt}")
    if w: wdma(WT[3], "wo")
    if not w: fdma(sum(FT[:3]), FT[3], "f")
    e("s_branch ATT_LAST")
    A.vm = save
e(f"s_cmp_ge_u32 s{sJ}, 20"); e("s_cbranch_scc1 TAILF")
stream_tail(True)
lab("TAILF")
stream_tail(False)
A.drained()
flush_near()

lab("LOOP")
if JIT: jitter(JIT, 40)
def cs_pull():
    e(f"s_add_u32 s{sT0}, s{sLG}, {2*LS}"); e(f"s_add_u32 s{sT1}, s{sT0}, 4096")
    for so in (sT0, sT1): e(f"buffer_load_dwordx4 a[240:243], v{vQld}, {sr(sW)}, s{so} offen sc1")
def loop_prep():
    wq_frags()
    e(f"v_and_b32 v25, 15, v{vL}"); e("v_cmp_eq_u32 vcc, 12, v25"); e("v_mov_b32 v36, 0x3f803f80"); e(f"v_cndmask_b32 v70, 0, v36, vcc")
    for q in range(1, 10): e(f"v_mov_b32 v{70+q}, v70")
    e(f"s_mul_i32 s{sT0}, s{sWV}, {SCRW}" if "l" not in SHB else f"s_mov_b32 s{sT0}, 4096")
    e(f"v_mul_u32_u24 v96, 103, v{vL}"); e("v_lshrrev_b32 v96, 10, v96"); e(f"v_lshl_add_u32 v96, v96, 4, v{vLin}"); e(f"v_add_u32 v96, s{sT0}, v96")
    e(f"v_mul_u32_u24 v97, 176, v25"); e(f"v_add_u32 v97, s{sT0}, v97"); e(f"v_lshrrev_b32 v28, 4, v{vL}"); e("v_lshl_add_u32 v98, v28, 3, v97"); e("v_lshl_add_u32 v97, v28, 4, v97")
e(f"s_cmp_lt_u32 s{sJ}, 20"); e(f"s_cselect_b32 s{sXcc}, s{sWV}, 4")
e(f"s_add_u32 s96, s{sLG}, {LS}"); e("s_add_u32 s97, s96, 4096")
e(f"s_and_b32 s{sT0}, s{sXcc}, 3"); e("s_cbranch_scc1 LOOP2")
loop_prep()
lab("LOOP2")
e(f"s_add_u32 s{sT2}, s{sLG}, 4096")
e(f"s_mul_i32 s{sT0}, s{sS}, 160"); e(f"s_add_u32 s{sT0}, s{sT0}, s{sLG}"); e(f"s_sub_u32 s{sT0}, s{sT0}, {LS-oFL}")
gate(sT0, 10, 24)
setexec((1 << (23 if "l" in SHB else 60)) - 1)
CSA = int(OPT.get("csa", 1))
def sbounce(load, reg, write, reads, first=None, w1=0):
    k = nid()
    e(load)
    if first: first()
    e(f"s_waitcnt vmcnt({w1})")
    lab(f"BW{k}")
    e(write); e(f"v_cmp_eq_u32 vcc, -1, v{reg}"); e(f"s_cbranch_vccnz BR{k}")
    lab(f"BX{k}")
    setexec(ROWS9); e("s_waitcnt lgkmcnt(0)"); e("s_barrier")
    for x in reads: e(x)
    setexec(FULL)
    def t():
        lab(f"BR{k}")
        e(f"s_cmp_ge_u32 s{sCnt}, {LIMIT}"); e(f"s_cbranch_scc1 BX{k}")
        e("s_mov_b64 exec, vcc"); e(load); e(f"s_add_u32 s{sCnt}, s{sCnt}, 1"); e("s_waitcnt vmcnt(0)"); e(f"s_branch BW{k}")
    near.append(t)
def bounce(groups, tmp, writes, reads, first=None, w1=0):
    k = nid(); allr = [r for g in groups for r in g[1]]
    for g in groups:
        for l in g[0]: e(l)
    if first: first()
    e(f"s_waitcnt vmcnt({w1})")
    lab(f"BW{k}")
    for x in writes: e(x)
    check(allr, tmp)
    setexec(ROWS9)
    for x in reads: e(x)
    setexec(FULL)
    e(f"s_cbranch_vccnz BR{k}")
    lab(f"BX{k}")
    def t():
        lab(f"BR{k}")
        e(f"s_cmp_ge_u32 s{sCnt}, {LIMIT}"); e(f"s_cbranch_scc1 BX{k}")
        lab(f"BL{k}")
        for gi, (ls, rs) in enumerate(groups):
            setexec((1 << 60) - 1); check(rs, tmp); e("s_mov_b64 exec, vcc"); e(f"s_cbranch_execz BS{k}_{gi}")
            for l in ls: e(l)
            lab(f"BS{k}_{gi}")
        setexec((1 << 60) - 1)
        e(f"s_add_u32 s{sCnt}, s{sCnt}, 1"); e(f"s_cmp_ge_u32 s{sCnt}, {LIMIT}")
        e("s_waitcnt vmcnt(0)")
        check(allr, tmp)
        e(f"s_cbranch_vccz BW{k}"); e(f"s_cbranch_scc0 BL{k}"); e(f"s_branch BW{k}")
    near.append(t)
assert GATE
if "l" in SHB: sbounce(f"buffer_load_dwordx4 v[80:83], v{vAq}, {sr(sW)}, 0 offen sc1", 80, f"ds_write_b128 v{vAq16}, v[80:83]",
       ["ds_read_b128 v[70:73], v97", "ds_read_b128 v[74:77], v97 offset:64", "ds_read_b64 v[78:79], v98 offset:128"],
       first=(lambda: (setexec(FULL), [e(l) for l in qloads(88, "s96", "s97")], setexec((1 << 23) - 1))) if not CSA else None, w1=2 if not CSA else 0)
else: bounce([([f"buffer_load_dwordx4 v[80:83], v{vAq}, {sr(sW)}, 0 offen sc1"], [80]), ([f"buffer_load_dwordx4 v[84:87], v{vAq16}, {sr(sW)}, 0 offen sc1"], [84])], 24,
       ["ds_write_b128 v96, v[80:83]", f"ds_write_b128 v96, v[84:87] offset:{6*176}"],
       ["ds_read_b128 v[70:73], v97", "ds_read_b128 v[74:77], v97 offset:64", "ds_read_b64 v[78:79], v98 offset:128"],
       first=lambda: [e(l) for l in qloads(88, "s96", "s97")], w1=2)
stamp(1)
e(f"s_cmp_lg_u32 s{sXcc}, 1"); e("s_cbranch_scc1 NOOWL")
e(f"buffer_load_dword a244, v{vC1}, {sr(sW)}, 0 offen sc1"); e(f"buffer_load_dword a245, v{vC2}, {sr(sW)}, 0 offen sc1")
lab("NOOWL")
if CSA:
    for l in qloads(88, "s96", "s97"): e(l)
qstage(70, f"s{sLG}", waits=True)
stamp(2)
att_zero()
e(f"s_waitcnt vmcnt({2 if STAMP == 1 else 1})"); qsum(88); e(f"v_mul_f32 v{vCS}, 0x3acccccd, v88")
for _ in range(int(OPT.get("qd", 0))): e("s_nop 7")
poll_nan(qloads(T, f"s{sLG}", f"s{sT2}"), lambda: qsum(T), T)
stamp(3)
q_finish(T)
stamp(4)
qk_softmax()
stamp(5)
for u in range(3):
    e(f"s_waitcnt lgkmcnt({4-u})"); pv_step(u)
e("s_waitcnt lgkmcnt(0)")
lab("ATT_LAST")
for dp in range(6):
    if dp % 2 == 0: e(f"s_waitcnt lgkmcnt({8-2*dp})")
    pv_step(3, [dp])
def pack8(v):
    e(f"v_mov_b32_dpp v{v+1}, v{v} row_shl:1 row_mask:0xf bank_mask:0xf"); e(f"v_cvt_pk_bf16_f32 v{v}, v{v}, v{v+1}")
    for q in (1, 2, 3): e(f"v_mov_b32_dpp v{v+q}, v{v} row_shl:{2*q} row_mask:0xf bank_mask:0xf")
def pack8q(v):
    e(f"v_mov_b32_dpp v{v+1}, v{v} row_shl:1 row_mask:0xf bank_mask:0xf"); e(f"v_cvt_pk_bf16_f32 v{v+4}, v{v}, v{v+1}")
    e(f"v_mov_b32_dpp v{v}, v{v+4} quad_perm:[0,0,0,0] row_mask:0xf bank_mask:0xf"); e(f"v_mov_b32_dpp v{v+1}, v{v+4} quad_perm:[2,2,2,2] row_mask:0xf bank_mask:0xf")
    e(f"v_mov_b32_dpp v{v+2}, v{v} row_shl:4 row_mask:0xf bank_mask:0xf"); e(f"v_mov_b32_dpp v{v+3}, v{v+1} row_shl:4 row_mask:0xf bank_mask:0xf")
e(f"s_lshl_b32 s{sT0}, s{sWV}, 8"); e(f"s_add_u32 s{sT0}, s{sT0}, {ACC+OACC}"); e(f"v_lshl_add_u32 v24, v{vL}, 2, s{sT0}")
pv_post()
e(f"v_and_b32 v25, 3, v{vL}"); e(f"v_mad_u32_u24 v26, v25, 48, v{vLin}"); e(f"v_lshlrev_b32 v25, 3, v25"); e(f"v_add_u32 v25, {ML4}, v25")
e("s_waitcnt lgkmcnt(0)"); e("s_barrier")
stamp(6)
e("ds_read_b64 v[32:33], v25"); e("ds_read2st64_b32 v[40:41], v24 offset0:0 offset1:3"); e("ds_read2st64_b32 v[42:43], v24 offset0:6 offset1:9")
e(f"s_mul_i32 s{sT0}, s{sHH}, 3072"); e(f"s_lshl_b32 s{sT1}, s{sS}, 4"); e(f"s_add_u32 s{sT0}, s{sT0}, s{sT1}"); e(f"s_lshl_b32 s{sT1}, s{sWV}, 10"); e(f"s_add_u32 s{sT0}, s{sT0}, s{sT1}")
e(f"s_add_u32 s{sT0}, s{sT0}, s{sLG}"); e(f"s_add_u32 s{sT0}, s{sT0}, {oO}")
e(f"s_lshl_b32 s{sT1}, s{sJ}, 3"); e(f"s_add_u32 s{sT1}, s{sT1}, s{sLG}"); e(f"s_add_u32 s{sT1}, s{sT1}, {oML}"); e(f"s_cmp_eq_u32 s{sWV}, 3")
e("s_waitcnt lgkmcnt(2)")
e("v_max_f32_dpp v34, v32, v32 quad_perm:[1,0,3,2] row_mask:0xf bank_mask:0xf"); e("v_max_f32_dpp v34, v34, v34 quad_perm:[2,3,0,1] row_mask:0xf bank_mask:0xf")
e("v_sub_f32 v32, v32, v34"); e("v_exp_f32 v32, v32")
e("s_cbranch_scc1 OML"); e("s_waitcnt lgkmcnt(0)")
e("v_mul_f32_dpp v28, v32, v40 quad_perm:[0,0,0,0] row_mask:0xf bank_mask:0xf"); e("v_mul_f32_dpp v29, v32, v41 quad_perm:[1,1,1,1] row_mask:0xf bank_mask:0xf")
e("v_mul_f32_dpp v30, v32, v42 quad_perm:[2,2,2,2] row_mask:0xf bank_mask:0xf"); e("v_fmac_f32_dpp v28, v32, v43 quad_perm:[3,3,3,3] row_mask:0xf bank_mask:0xf")
e("v_add_f32 v29, v29, v30"); e("v_add_f32 v28, v28, v29")
e("v_mov_b32_dpp v29, v28 row_shl:1 row_mask:0xf bank_mask:0xf"); e("v_cvt_pk_bf16_f32 v28, v28, v29")
for q in (1, 2, 3): e(f"v_mov_b32_dpp v{28+q}, v28 row_shl:{4*q} row_mask:0xf bank_mask:0xf")
setexec(0x0005000500050005)
lstore(f"buffer_store_dwordx4 v[28:31], v26, {sr(sW)}, s{sT0} offen")
setexec(FULL)
def t_():
    lab("OML")
    e("v_mul_f32 v35, v32, v33")
    e("v_add_f32_dpp v35, v35, v35 quad_perm:[1,0,3,2] row_mask:0xf bank_mask:0xf"); e("v_add_f32_dpp v35, v35, v35 quad_perm:[2,3,0,1] row_mask:0xf bank_mask:0xf")
    setexec(1); lstore(f"buffer_store_dwordx2 v[34:35], v{vLin}, {sr(sW)}, s{sT1} offen"); setexec(FULL)
    e("s_waitcnt lgkmcnt(0)"); e("s_branch ODONE")
near.append(t_)
lab("ODONE")
if STAMP == 3 and "land" in SKIP:
    e(f"s_cmp_ge_u32 s{sJ}, 20"); e("s_cbranch_scc1 LND"); wdma_addr(); wdma(WT[4]); lab("LND"); e("s_waitcnt vmcnt(0)")
stamp(7)
if STAMP == 3: e("s_endpgm")
e(f"s_cmp_ge_u32 s{sJ}, 20"); e("s_cbranch_scc1 ROLEF")
def owner_add():
    e("v_lshlrev_b32 v30, 16, v28"); e("v_and_b32 v28, 0xffff0000, v28"); e("v_lshlrev_b32 v31, 16, v29"); e("v_and_b32 v29, 0xffff0000, v29")
    e("v_add_f32 v30, v30, v31"); e("v_add_f32 v28, v28, v29")
    e("v_mov_b32 v31, v30"); e("v_mov_b32 v29, v28"); e("v_permlane32_swap_b32 v30, v31"); e("v_permlane32_swap_b32 v28, v29"); e("v_add_f32 v30, v30, v31"); e("v_add_f32 v28, v28, v29")
    e("v_mov_b32 v31, v30"); e("v_mov_b32 v29, v28"); e("v_permlane16_swap_b32 v30, v31"); e("v_permlane16_swap_b32 v28, v29"); e("v_add_f32 v30, v30, v31"); e("v_add_f32 v28, v28, v29")
    e(f"v_add_f32 v{vXR}, v{vXR}, v30"); e(f"v_add_f32 v{vXR+1}, v{vXR+1}, v28")
    e(f"v_cvt_pk_bf16_f32 v28, v{vXR}, v{vXR+1}")
def own_loads(a0, a1, soff): return [f"buffer_load_dword v28, v{a0}, {sr(sW)}, {soff} offen sc1", f"buffer_load_dword v29, v{a1}, {sr(sW)}, {soff} offen sc1"]
def base_store(ob):
    e(f"s_lshl_b32 s{sT0}, s{sJ}, 6"); e(f"s_add_u32 s{sT0}, s{sT0}, s{sLG}"); e(f"s_add_u32 s{sT0}, s{sT0}, {ob}"); e(f"v_lshlrev_b32 v32, 2, v{vL}")
    pack_store16(28, lambda: lstore(f"buffer_store_dwordx4 v[28:31], v32, {sr(sW)}, s{sT0} offen"))
e(f"s_cmp_eq_u32 s{sLay}, 0"); e("s_cbranch_scc1 WLATE")
def t_():
    lab("WLATE")
    if JIT: jitter(JIT, 40)
    if WT[4]: wdma_addr(); wdma(WT[4])
    assert FGE
    for q in range(3): e(f"v_accvgpr_read_b32 v{2+q}, a{246+q}")
    for x in fl0: e(x)
    cs_store()
    wrest()
    ne = 4 * ((12 - WT[4]) // 2)
    e(f"s_waitcnt vmcnt({5 + WT[4]})")
    for x in trs[:ne]: e(x)
    e("s_waitcnt vmcnt(5)")
    for x in trs[ne:]: e(x)
    e("s_branch WCHK")
near.append(t_)
for q in range(3): e(f"v_accvgpr_read_b32 v{2+q}, a{246+q}")
TRN = int(OPT.get("trn", 10))
trs = [f"ds_read_b64_tr_b16 {vr(F+24*t+4*kk+2*h,2)}, v2 offset:{(32*kk+4*h)*64+32*t}" for kk in range(6) for t in range(2) for h in range(2)]
for x in trs[:TRN]: e(x)
def own0():
    e(f"s_cmp_lg_u32 s{sWV}, 1"); e("s_cbranch_scc1 NOOWN0")
    e("v_accvgpr_read_b32 v28, a244"); e("v_accvgpr_read_b32 v29, a245")
    late_check("none", own_loads(vC1, vC2, "0"), [28, 29], 30)
    owner_add()
    if OWP != 2: base_store(oBA)
    lab("NOOWN0")
OWP = int(OPT.get("owp", 0))
if not OWP: own0()
IX, M_, L_, U_ = 26, 27, 36, 37
def wrest():
    e("v_accvgpr_read_b32 v5, a249"); rep_addr(18, 6); e("v_and_b32 v6, 0xffffff7f, v5")
    e(f"v_bfe_u32 v{IX}, v{vL}, 3, 1"); e(f"v_mul_u32_u24 v{IX}, 0xaaaa, v{IX}"); e(f"v_add_u32 v{IX}, 0x4444, v{IX}")
    for q in range(8): e(f"v_mov_b32 v{28+q}, 0")
def wfirst():
    for x in trs[TRN:]: e(x)
    if OWP: own0()
    wrest()
assert OWP in (0, 2)
fl0 = [f"buffer_load_dwordx2 v[24:25], v4, {sr(sW)}, s{sLG} offen sc1"] + [f"buffer_load_dwordx4 {vr(SPARE+4*kk)}, v3, {sr(sW)}, s{sLG} offen offset:{1024*kk} sc1" for kk in range(3)]
poll_sel([(fl0, [SPARE, SPARE + 4, SPARE + 8, 25])], 38, pid=7, first=wfirst, wl="WCHK")
e("s_waitcnt lgkmcnt(0)")
stamp(8)
dq = lambda op, d, a, ctl: f"v_{op}_f32_dpp v{d}, v{a}, v{a} {ctl} row_mask:0xf bank_mask:0xf"
co = [[dq("max", M_, 24, "quad_perm:[1,0,3,2]")], [], [dq("max", M_, M_, "quad_perm:[2,3,0,1]")], [], [dq("max", M_, M_, "row_ror:4"), f"v_sub_f32 v24, v24, v{M_}", "v_exp_f32 v24, v24"], []]
for kk in range(3):
    for t in range(2):
        for x in co.pop(0): e(x)
        e(f"v_smfmac_f32_16x16x64_bf16 {vr(28+4*t)}, {vr(SPARE+4*kk)}, {vr(F+24*t+8*kk, 8)}, v{IX}")
e(f"v_mul_f32 v{L_}, v24, v25"); e(f"s_cmp_lg_u32 s{sWV}, 0"); e(dq("add", L_, L_, "quad_perm:[1,0,3,2]"))
e(dq("add", L_, L_, "quad_perm:[2,3,0,1]"))
bc = lambda q: f"row_newbcast:{q} row_mask:0xf bank_mask:0xf"
e(f"v_mul_f32_dpp v28, v24, v28 {bc(0)}"); e(f"v_mul_f32_dpp v30, v24, v30 {bc(2)}"); e(dq("add", L_, L_, "row_ror:4"))
e(f"v_mul_f32_dpp v32, v24, v32 {bc(0)}"); e(f"v_mul_f32_dpp v34, v24, v34 {bc(2)}"); e(f"v_rcp_f32 v{L_}, v{L_}")
e(f"v_fmac_f32_dpp v28, v24, v29 {bc(1)}"); e(f"v_fmac_f32_dpp v30, v24, v31 {bc(3)}"); e(f"v_fmac_f32_dpp v32, v24, v33 {bc(1)}"); e(f"v_fmac_f32_dpp v34, v24, v35 {bc(3)}")
e("v_add_f32 v28, v28, v30"); e("v_add_f32 v32, v32, v34")
e("v_permlane16_swap_b32 v28, v32"); e(f"v_add_f32 v{U_}, v28, v32"); e("v_add_f32 v28, v28, v32")
e(f"v_permlane32_swap_b32 v28, v{U_}"); e(f"v_add_f32 v28, v28, v{U_}"); e(f"v_mul_f32 v28, v28, v{L_}")
e(f"ds_write_b32 v5, v28")
e("s_waitcnt lgkmcnt(0)"); e("s_barrier")
e("s_cbranch_scc1 WNOT0")
assert (ACC + YACC) % 256 == 0
e("ds_read2st64_b32 v[28:29], v6 offset0:0 offset1:1"); e("ds_read2st64_b32 v[30:31], v6 offset0:2 offset1:3")
e("s_waitcnt lgkmcnt(1)"); e("v_add_f32 v28, v28, v29"); e("s_waitcnt lgkmcnt(0)"); e("v_add_f32 v30, v30, v31"); e("v_add_f32 v28, v28, v30")
pack8q(28)
e("s_mov_b64 exec, s[46:47]")
e(f"buffer_store_dwordx4 v[28:31], v18, {sr(sW)}, s{sYg} offen sc1")
setexec(0x01010101)
lstore(f"buffer_store_dwordx4 v[28:31], v18, {sr(sW)}, s{sYl} offen")
setexec(FULL)
stamp(9); stamp(9, "c")
e(f"v_add_u32 v{SPARE+23}, {W2-WO}, v2")
trs2 = [x.replace(", v2 offset", f", v{SPARE+23} offset") for x in trs]
e(f"s_cmp_lg_u32 s{sLay}, 0"); e("s_cbranch_scc1 W2OK")
wdma_addr(False); e(f"s_mul_i32 s{sT0}, s{sG}, {192*1280}"); e(f"s_lshl_b32 s{sT1}, s{sJ}, 6"); e(f"s_add_u32 s{sT0}, s{sT0}, s{sT1}")
for n in range(12 if "w2" not in SKIP else 0):
    e(f"s_mov_b32 m0, {W2+1024*n}"); e(f"buffer_load_dwordx4 v39, {sr(sRC)}, s{sT0} offen lds"); e(f"s_add_u32 s{sT0}, s{sT0}, {16*1280}")
e("s_branch W2X")
lab("W2OK")
for x in trs2: e(x)
lab("W2X")
HD = SPARE + 12
for q in (0, 1, 4, 5): e(f"v_mov_b32 v{HD+q}, 0")
e(f"s_add_u32 s96, s{sYg}, {oFG-oYG}"); e(f"s_add_u32 s97, s{sYl}, {oFL-oYL}")
lab("STB")
stamp(4, "d")
e(f"s_mul_i32 s{sT0}, s{sWV}, 48"); e(f"v_min_u32 v6, 47, v{vL}"); e(f"v_add_u32 v6, s{sT0}, v6"); e("v_lshlrev_b32 v4, 4, v6"); e(f"v_add_u32 v{SPARE+20}, {CSO}, v4"); e(f"v_lshlrev_b32 v4, {3 if GX2 else 2}, v6")
e(f"v_cmp_le_u32 vcc, 48, v{vL}"); e(f"v_mov_b32 v24, {1536 if GX2 else 768}"); e("v_cndmask_b32 v4, v4, v24, vcc"); e("v_add_u32 v5, 3584, v4")
e("v_lshrrev_b32 v24, 4, v6"); e("v_lshlrev_b32 v24, 5, v24"); e("v_bfe_u32 v25, v6, 1, 1"); e("v_lshl_add_u32 v24, v25, 4, v24"); e("v_bfe_u32 v25, v6, 2, 2"); e("v_lshl_add_u32 v24, v25, 2, v24")
e("v_and_b32 v25, 1, v6"); e("v_lshl_add_u32 v24, v25, 1, v24"); e(f"v_add_u32 v24, {QB}, v24"); e(f"v_mov_b32 v25, {QB+384}"); e("v_cndmask_b32 v6, v24, v25, vcc")
e(f"v_mov_b32 v{SPARE+21}, 0x3727c5ac"); e(f"v_mov_b32 v{SPARE+22}, 0x3acccccd"); e(f"s_add_u32 s{sT2}, s{sLG}, {oGX}")
e("v_accvgpr_read_b32 v2, a250"); e("v_accvgpr_read_b32 v3, a251"); e(f"s_add_u32 s{sTL}, s{sLay}, s{sWV}")
def sum4(b): e(f"v_add_f32 v{b}, v{b}, v{b+1}"); e(f"v_add_f32 v{b+2}, v{b+2}, v{b+3}"); e(f"v_add_f32 v{b}, v{b}, v{b+2}")
gl = [f"buffer_load_dword v{T+4*k+q}, v{4+k}, {sr(sW)}, s{sT2} offen offset:{896*q} sc1" for q in range(4) for k in range(2)]
if GX2: gl = [f"buffer_load_dwordx2 {vr(T+8+2*q,2)}, v{4+q//2}, {sr(sW)}, s{sT2} offen offset:{1792*(q%2)} sc1" for q in range(4)]
def gsum():
    if GX2:
        e(f"v_add_f32 v{T}, v{T+8}, v{T+10}"); e(f"v_add_f32 v{T+4}, v{T+9}, v{T+11}"); e(f"v_add_f32 v{T+2}, v{T+8+4}, v{T+8+6}"); e(f"v_add_f32 v{T+6}, v{T+8+5}, v{T+8+7}")
        e(f"v_add_f32 v{T+4}, v{T+4}, v{T+6}"); e(f"v_add_f32 v{T}, v{T}, v{T+2}"); return
    e(f"v_add_f32 v{T}, v{T}, v{T+1}"); e(f"v_add_f32 v{T+4}, v{T+4}, v{T+5}"); e(f"v_add_f32 v{T+2}, v{T+2}, v{T+3}"); e(f"v_add_f32 v{T+6}, v{T+6}, v{T+7}")
    e(f"v_add_f32 v{T+4}, v{T+4}, v{T+6}"); e(f"v_add_f32 v{T}, v{T}, v{T+2}")
e(f"s_mov_b32 s{sCnt}, 1"); e(f"s_cmp_eq_u32 s{sLay}, 0"); e("s_cbranch_scc1 GPF")
lab("GPO")
stamp(5, "d")
e(f"s_cmp_eq_u32 s{sWV}, 1"); e("s_cbranch_scc1 WOWN")
lab("GP1")
for l in gl: e(l)
e("s_waitcnt vmcnt(0)"); gsum(); e(f"v_cmp_u_f32 vcc, v{T}, v{T+4}"); e("s_cbranch_vccnz GA1")
lab("GPX")
def t_():
    lab("GA1"); e(f"s_add_u32 s{sCnt}, s{sCnt}, 1"); e(f"s_cmp_lt_u32 s{sCnt}, {LIMIT}"); e("s_cbranch_scc1 GP1"); e("s_branch GPX")
    cl = [f"buffer_load_dwordx4 {vr(T+8)}, v{SPARE+20}, {sr(sW)}, s{sT2} offen sc1", f"buffer_load_dwordx4 {vr(T+12)}, v{SPARE+20}, {sr(sW)}, s{sT2} offen offset:3072 sc1"]
    lab("GPF")
    e(f"s_cmp_lg_u32 s{sWV}, 0"); e("s_cbranch_scc1 GP0")
    for l in cl: e(l)
    e("s_waitcnt vmcnt(2)")
    for x in trs2: e(x)
    e("s_branch GPW")
    lab("GP0")
    for l in cl: e(l)
    lab("GPW")
    e(f"s_add_u32 s{sCnt}, s{sCnt}, 1"); e(f"s_cmp_ge_u32 s{sCnt}, {LIMIT}"); e("s_waitcnt vmcnt(0)")
    e(f"v_add_f32 v2, v{T+8}, v{T+9}"); e(f"v_add_f32 v3, v{T+12}, v{T+13}"); e(f"v_add_f32 v{T+10}, v{T+10}, v{T+11}"); e(f"v_add_f32 v{T+14}, v{T+14}, v{T+15}")
    e(f"v_add_f32 v2, v2, v{T+10}"); e(f"v_add_f32 v3, v3, v{T+14}"); e("v_cmp_u_f32 vcc, v2, v3"); e("s_cbranch_scc1 GPO")
    e("s_cbranch_vccnz GP0"); e("s_branch GPO")
near.append(t_)
stamp(10)
EPS, INV = SPARE + 21, SPARE + 22
e(f"v_readlane_b32 s{sT0}, v{T+4}, 48"); e(f"v_readlane_b32 s{sT1}, v{T}, 48"); e(f"s_cmp_lg_u32 s{sTL}, 1"); e("s_cbranch_scc0 OWL"); lab("OWB")
def t_():
    lab("OWL"); e(f"buffer_load_dword v34, v100, {sr(sW)}, 0 offen sc1"); e(f"buffer_load_dword v35, v101, {sr(sW)}, 0 offen sc1"); e("s_branch OWB")
near.append(t_)
e(f"v_mul_f32 v{T+1}, s{sT0}, v{INV}"); e(f"v_fma_f32 v{T+2}, s{sT1}, v{INV}, v{EPS}")
e(f"v_fma_f32 v{T+2}, -v{T+1}, v{T+1}, v{T+2}"); e(f"v_add_f32 v{T+1}, 1.0, v{T+1}"); e(f"v_max_f32 v{T+2}, v{T+2}, v{EPS}")
e(f"v_fma_f32 v{T}, -v{T+1}, v2, v{T}"); e(f"v_rsq_f32 v{T+3}, v{T+2}"); e(f"v_mul_f32 v{T+5}, 0xbfb8aa3b, v{T}"); e(f"v_mul_f32 v{T+5}, v{T+5}, v{T+3}"); e(f"v_exp_f32 v{T+5}, v{T+5}")
e(f"v_fma_f32 v{T+4}, -v{T+1}, v3, v{T+4}"); e(f"v_fma_f32 v{T+5}, v{T+5}, v{T+2}, v{T+2}"); e(f"v_rcp_f32 v{T+5}, v{T+5}"); e(f"v_mul_f32 v{T+4}, v{T+4}, v{T}")
e(f"v_mul_f32 v{T+4}, v{T+4}, v{T+5}"); e(f"v_cvt_pk_bf16_f32 v{T+4}, v{T+4}, v{T+4}"); e(f"ds_write_b16 v6, v{T+4}")
e("v_accvgpr_write_b32 a250, v2"); e("v_accvgpr_write_b32 a251, v3"); e(f"s_cmp_lg_u32 s{sWV}, 0")
e("s_waitcnt lgkmcnt(0)"); e("s_barrier")
e("s_cbranch_scc1 STBX")
for ks in range(3): e(f"ds_read_b128 {vr(SPARE+4*ks)}, v{vQBr} offset:{128*ks}")
for ks in range(3):
    e(f"s_waitcnt lgkmcnt({2-ks})")
    for t in range(2): e(f"v_smfmac_f32_16x16x64_bf16 {vr(HD+4*t)}, {vr(SPARE+4*ks)}, {vr(F+24*t+8*ks, 8)}, v{vIdx}")
e(f"v_add_f32 v28, v{HD}, v{HD+1}"); e(f"v_add_f32_dpp v28, v{HD+4}, v{HD+5} quad_perm:[0,1,2,3] row_mask:0xa bank_mask:0xf")
pack8q(28)
e("s_mov_b64 exec, s[48:49]")
e(f"buffer_store_dwordx4 v[28:31], v18, {sr(sW)}, s96 offen sc1")
setexec(0x01010101)
lstore(f"buffer_store_dwordx4 v[28:31], v18, {sr(sW)}, s97 offen")
setexec(FULL)
stamp(11)
e("s_branch NEXT")
flush_near()
lab("WNOT0")
if JIT: jitter(JIT, 40)
if OWP == 2:
    e(f"s_cmp_eq_u32 s{sLay}, 0"); e("s_cbranch_scc1 NOBA1"); e(f"s_cmp_lg_u32 s{sWV}, 1"); e("s_cbranch_scc1 STB"); e(f"v_cvt_pk_bf16_f32 v28, v{vXR}, v{vXR+1}"); base_store(oBA); lab("NOBA1")
e(f"s_cmp_lg_u32 s{sLay}, 0"); e("s_cbranch_scc1 STB"); e(f"s_cmp_eq_u32 s{sWV}, 1"); e("s_cbranch_scc1 WPREP"); e(f"s_cmp_eq_u32 s{sWV}, 3"); e("s_cbranch_scc1 WLC")
for q in range(4): e(f"v_mov_b32 v{F+12+q}, -1")
e(f"s_add_u32 s{sT0}, s{sYg}, {LS}"); e(f"s_add_u32 s{sT3}, s{sT0}, {oFG-oYG}")
if int(OPT.get("gcd", 8)): e(f"s_sleep {OPT.get('gcd', 8)}")
e("s_mov_b64 exec, s[44:45]"); e(f"buffer_store_dwordx4 {vr(F+12)}, v18, {sr(sW)}, s{sT0} offen sc1")
setexec(0x01010101); e(f"buffer_store_dwordx4 {vr(F+12)}, v18, {sr(sW)}, s{sT3} offen sc1")
setexec(FULL)
e("s_branch WPREP")
lab("WLC")
LCW = int(OPT.get("lcw", 1))
if LCW:
    lo_ = oO if LCW == 1 else 0; ng = (oGX + CSO - lo_) // 16; per = -(-ng // 20); ni = -(-per // 64)
    e(f"s_mul_i32 s{sT0}, s{sJ}, {per*16}"); e(f"s_add_u32 s{sT1}, s{sLG}, {LS+lo_}")
    for q in range(ni): e(f"v_add_u32 v{100+q}, s{sT0}, v{vLin}"); e(f"v_min_u32 v{100+q}, {ng*16-16}, v{100+q}"); e(f"s_add_u32 s{sT0}, s{sT0}, 1024")
    for q in range(4): e(f"v_mov_b32 v{104+q}, -1")
    loop_prep()
    if JIT: jitter(JIT, 60)
    for q in range(ni): lstore(f"buffer_store_dwordx4 v[104:107], v{100+q}, {sr(sW)}, s{sT1} offen")
    e("s_branch STB")
lab("WPREP")
e("s_nop 1"); loop_prep()
e("s_branch STB")
lab("WOWN")
e(f"v_and_b32 v25, 15, v{vL}"); e(f"v_lshrrev_b32 v26, 4, v{vL}")
rowbase(37, 26, oYG, oYL, None, 38); e("v_add_u32 v39, 4, v26"); rowbase(38, 39, oYG, oYL, None, 28)
e(f"s_lshl_b32 s{sT0}, s{sJ}, 6"); e(f"s_add_u32 s{sT0}, s{sT0}, s{sLay}"); e(f"v_lshl_add_u32 v25, v25, 2, s{sT0}")
e("v_add_u32 v100, v25, v37"); e("v_add_u32 v101, v25, v38")
e(f"s_cmp_eq_u32 s{sLay}, 0"); e("s_cbranch_scc1 GP1")
if not int(OPT.get("oall", 1)): e(f"s_cmp_lg_u32 s{sG}, 0"); e("s_cbranch_scc1 GP1")
e(f"s_sleep {max(ODLY-3, 1)}")
poll(own_loads(100, 101, "0"), [28, 29], 30, slp=int(OPT.get("osp", 2)))
owner_add()
e("s_branch GP1")
lab("STBX")
e(f"s_cmp_lg_u32 s{sWV}, 1"); e("s_cbranch_scc1 NEXT"); e(f"s_cmp_lg_u32 s{sLay}, 0"); e("s_cbranch_scc1 FINAL")
e("s_waitcnt vmcnt(0)"); e("v_mov_b32 v28, v34"); e("v_mov_b32 v29, v35")
late_check("none", own_loads(100, 101, "0"), [28, 29], 30)
owner_add()
base_store(oBB)
stamp(6, "d")
e("s_branch NEXT")
lab("FINAL")
e(f"s_cmp_lg_u32 s{sG}, 0"); e("s_cbranch_scc1 DONE")
e(f"s_lshl_b32 s{sT0}, s{sJ}, 6"); e(f"v_lshlrev_b32 v37, 2, v{vL}")
e(f"s_add_u32 s{sT2}, s{sT0}, s{sLG}"); e(f"s_add_u32 s{sT2}, s{sT2}, {oFL}")
if int(OPT.get("otouch", 0)): setexec(0xffff); e(f"buffer_load_dword v29, v37, {sr(sO)}, s{sT0} offen")
gate(sT2, 4, 28); setexec(FULL)
poll(own_loads(vC1, vC2, f"s{sLay}"), [28, 29], 30)
owner_add()
setexec(0xffff)
e(f"buffer_store_dword v28, v37, {sr(sO)}, s{sT0} offen {OPT.get('ost', '').replace('+', ' ')}")
setexec(FULL)
stamp(12); stamp(12, "c")
e("s_branch DONE") if SPIN else e("s_endpgm")
flush_near()
lab("ROLEF")
e(f"v_and_b32 v25, 15, v{vL}"); e(f"v_lshrrev_b32 v26, 4, v{vL}"); e(f"v_bfe_u32 v27, v{vL}, 2, 2"); e(f"v_and_b32 v36, 3, v{vL}")
FA = SPARE
FBLK = r'''WG_ = int(OPT.get("fg", -1))
if WG_ >= 0:
    # keep this traffic out of the way of workgroups that still stream: start when at most WG_ of the group are missing
    e(f"v_lshlrev_b32 v37, 3, v{vL}"); e(f"s_add_u32 s{sT0}, s{sLG}, {oML}"); e(f"s_mov_b32 s{sCnt}, 0"); e("s_mov_b32 exec_lo, -1"); e("s_mov_b32 exec_hi, 0")
    lab("W2G"); e(f"buffer_load_dword v38, v37, {sr(sW)}, s{sT0} offen sc1"); e(f"s_add_u32 s{sCnt}, s{sCnt}, 1"); e("s_waitcnt vmcnt(0)")
    e("v_cmp_eq_u32 vcc, -1, v38"); e(f"s_bcnt1_i32_b64 s{sT1}, vcc"); e(f"s_cmp_ge_u32 s{sCnt}, 64"); e("s_cbranch_scc1 W2GX"); e(f"s_cmp_gt_u32 s{sT1}, {WG_}"); e("s_cbranch_scc1 W2G")
    lab("W2GX"); setexec(FULL)
if FT[4]: fdma_addr(); fdma(sum(FT[:4]), FT[4])
'''
e(f"s_cmp_lg_u32 s{sLay}, 0"); e("s_cbranch_scc1 FW")
e(f"s_sub_u32 s96, s{sJ}, 20"); e("s_lshl_b32 s96, s96, 2"); e(f"s_add_u32 s96, s96, s{sWV}")
if int(OPT.get("w2pf", 0)):
    e(f"s_mul_i32 s97, s{sG}, 48"); e("s_add_u32 s97, s97, s96"); e("s_mul_i32 s97, s97, 5120")
    for n in range(5):
        if n == 4: e("s_add_u32 s97, s97, 4096")
        e(f"buffer_load_dwordx4 a[240:243], v{vLin}, {sr(sRC)}, s97 offen offset:{1024*(n%4)}")
assert LCW == 1 and 128 * 4 * 128 >= oGX + CSO
if LCW:
    e(f"s_mul_i32 s96, s96, {43*16}"); e(f"v_add_u32 v21, s96, v{vLin}"); e(f"v_min_u32 v21, {32768-16}, v21"); e(f"s_add_u32 s97, s{sLG}, {LS+oQ}")
else:
    e(f"s_mul_i32 s96, s96, {74*16}"); e(f"s_add_u32 s97, s{sLG}, {LS}"); e("s_add_u32 s97, s97, s96")
    e(f"buffer_load_dwordx4 a[240:243], v{vLin}, {sr(sW)}, s97 offen sc1"); setexec(0x3ff); e(f"buffer_load_dwordx4 a[240:243], v{vLin}, {sr(sW)}, s97 offen offset:1024 sc1"); setexec(FULL)
for q in range(4): e(f"v_mov_b32 v{T+4+q}, -1")
FSE = int(OPT.get("fse", 1))
if not FSE: exec(FBLK)
lstore(f"buffer_store_dwordx4 {vr(T+4)}, v21, {sr(sW)}, s97 offen")
cs_store()
if FSE: exec(FBLK)
lab("FW")
e(f"s_lshl_b32 s{sT0}, s{sWV}, 5"); e(f"v_lshl_add_u32 v80, v36, 3, s{sT0}"); e("v_lshrrev_b32 v37, 1, v27"); e("v_and_b32 v38, 1, v26"); e("v_lshl_add_u32 v37, v38, 1, v37"); e("v_lshlrev_b32 v37, 5, v37")
e("v_xor_b32 v80, v80, v37"); e("v_lshl_add_u32 v37, v26, 3, v27"); e("v_lshl_add_u32 v80, v37, 7, v80"); e(f"v_add_u32 v80, {W1}, v80")
e(f"s_sub_u32 s{sT2}, s{sJ}, 20"); e(f"s_and_b32 s{sT3}, s{sT2}, 12"); e(f"s_add_u32 s{sT3}, s{sT3}, s{sWV}"); e(f"s_lshl_b32 s{sT1}, s{sT3}, 8")
e(f"v_lshl_add_u32 v83, v25, 4, s{sT1}"); e(f"v_lshrrev_b32 v84, {1 if GX2 else 2}, v83"); e(f"v_mov_b32 v37, {1536 if GX2 else 768}"); e("v_cmp_le_u32 vcc, 2, v26"); e("v_cndmask_b32 v84, v84, v37, vcc")
e("v_and_b32 v37, 1, v26"); e(f"v_mul_u32_u24 v37, {4 if GX2 else 3584}, v37"); e("v_add_u32 v84, v84, v37")
e(f"s_cmp_eq_u32 s{sT3}, 0"); e("s_mov_b32 s52, -1"); e("s_cselect_b32 s53, 0x10001, 0")
e(f"s_and_b32 s{sT2}, s{sT2}, 3"); e(f"s_mul_i32 s{sT1}, s{sT2}, {1788 if GX2 else 892}"); e(f"s_sub_u32 s{sT1}, {CSO}, s{sT1}"); e(f"v_add_u32 v83, s{sT1}, v83")
e(f"s_mul_i32 s{sT1}, s{sT2}, {1792 if GX2 else 896}"); e(f"s_add_u32 s{sT1}, s{sT1}, s{sLG}"); e(f"s_add_u32 s{sT1}, s{sT1}, {oGX}"); e(f"s_mul_i32 s{sT2}, s{sT2}, 320")
e("v_cmp_eq_u32 vcc, 12, v25")
e("v_mov_b32 v38, 0x3f803f80"); e(f"v_cndmask_b32 v{FA}, 0, v38, vcc")
for q in range(1, 20): e(f"v_mov_b32 v{FA+q}, v{FA}")
FG = [86, 18, 20]
if "f" in SHB:
    e(f"v_mul_u32_u24 v6, 336, v25"); e("v_lshl_add_u32 v6, v26, 4, v6")
    e(f"s_mul_i32 s{sT0}, s{sWV}, 45"); e(f"v_min_u32 v27, 44, v{vL}"); e(f"v_add_u32 v27, s{sT0}, v27"); e("v_mul_u32_u24 v37, 205, v27"); e("v_lshrrev_b32 v37, 12, v37")
    e("v_add_u32 v87, v37, v27"); e("v_lshlrev_b32 v87, 4, v87"); e("v_mul_u32_u24 v38, 20, v37"); e("v_sub_u32 v27, v27, v38"); e("v_lshlrev_b32 v27, 4, v27")
    assert all((c * 205) >> 12 == c // 20 for c in range(180))
    rowbase(86, 37, oYG, oYL, oBA, 38); e("v_add_u32 v86, v86, v27")
else:
    e(f"s_mul_i32 s{sT0}, s{sWV}, {SCRW}")
    e(f"v_mul_u32_u24 v6, 336, v25"); e("v_lshl_add_u32 v6, v26, 4, v6"); e(f"v_add_u32 v6, s{sT0}, v6")
    e(f"v_mul_u32_u24 v37, 52, v{vL}"); e("v_lshrrev_b32 v37, 10, v37")
    e(f"v_lshl_add_u32 v87, v37, 4, v{vLin}"); e(f"v_add_u32 v87, s{sT0}, v87")
    e(f"v_mul_u32_u24 v27, 320, v37"); e(f"v_sub_u32 v27, v{vLin}, v27")
    for i in range(3):
        rowbase(FG[i], 37, oYG, oYL, oBA, 38); e(f"v_add_u32 v{FG[i]}, v{FG[i]}, v27")
        if i < 2: e("v_add_u32 v37, 3, v37")
e(f"s_add_u32 s{sT0}, s{sT2}, s{sLay}"); e(f"s_add_u32 s{sT2}, s{sT2}, s{sLG}"); e(f"s_add_u32 s{sT2}, s{sT2}, {oYL}")
e(f"s_cmp_lg_u32 s{sLay}, 0"); e("s_cbranch_scc1 FW1")
e("s_waitcnt vmcnt(0)")
if JIT: jitter(JIT, 40)
e("s_barrier"); stamp(13)
lab("FW1")
CD = [108, 2]
def fprep():
    for t in range(2):
        for kk in range(5):
            for h in range(2): e(f"ds_read_b64_tr_b16 {vr(F+20*t+4*kk+2*h,2)}, v80 offset:{(32*kk+4*h)*128+20480*t}")
def cs_mm():
    e("s_waitcnt lgkmcnt(0)")
    for kk in range(5):
        for t in range(2): e(f"v_mfma_f32_16x16x32_bf16 {vr(CD[t])}, {vr(FA+4*kk)}, {vr(F+20*t+4*kk)}, " + ("0" if kk == 0 else vr(CD[t])))
def cs_pub():
    e(f"s_cmp_eq_u32 s{sLay}, 0"); e("s_cbranch_scc1 CSP"); e("s_waitcnt vmcnt(0)"); lab("CSB")
    def t():
        lab("CSP"); setexec(FULL); cs_mm(); setexec(0xFFFF << 48)
        lstore(f"buffer_store_dword v{CD[0]}, v83, {sr(sW)}, s{sT1} offen"); lstore(f"buffer_store_dword v{CD[1]}, v83, {sr(sW)}, s{sT1} offen offset:3072")
        setexec((1 << (45 if "f" in SHB else 60)) - 1); e("s_branch CSB")
    near.append(t)
gate(sT2, 20, 36, first=fprep)
setexec((1 << (45 if "f" in SHB else 60)) - 1)
if "f" in SHB: sbounce(f"buffer_load_dwordx4 {vr(T)}, v86, {sr(sW)}, s{sT0} offen sc1", T, f"ds_write_b128 v87, {vr(T)}", [f"ds_read_b128 {vr(FA+4*kk)}, v6 offset:{64*kk}" for kk in range(5)], first=cs_pub, w1=2)
else: bounce([([f"buffer_load_dwordx4 {vr(T+4*i)}, v{FG[i]}, {sr(sW)}, s{sT0} offen sc1"], [T + 4 * i]) for i in range(3)], 36,
       [f"ds_write_b128 v87, {vr(T+4*i)} offset:{3*336*i}" for i in range(3)], [f"ds_read_b128 {vr(FA+4*kk)}, v6 offset:{64*kk}" for kk in range(5)], first=cs_pub, w1=2)
stamp(8)
G_, R2, R3 = T + 12, T + 13, T + 14
for kk in range(5):
    e(f"s_waitcnt lgkmcnt({4-kk})")
    e(f"v_mfma_f32_16x16x32_bf16 {vr(T+8)}, {vr(FA+4*kk)}, {vr(FA+4*kk)}, " + ("0" if kk == 0 else vr(T + 8)))
dp = lambda dst, sft, rm: f"v_add_f32_dpp v{dst}, v{G_}, v{G_} row_ror:{sft} row_mask:{rm:#x} bank_mask:0xf"
sh = [[f"v_mov_b32 v{G_}, 0", f"v_mov_b32 v{R2}, 0"], [f"v_mov_b32 v{R3}, 0", "s_nop 0"], [],
      [f"v_add_f32 v{T+8}, v{T+8}, v{T+9}", f"v_add_f32 v{T+10}, v{T+10}, v{T+11}"], [],
      [f"v_add_f32_dpp v{G_}, v{T+8}, v{T+10} quad_perm:[0,1,2,3] row_mask:0xf bank_mask:0x7"], ["s_nop 0", dp(G_, 8, 15)], ["s_nop 0", dp(G_, 4, 15)],
      ["s_nop 0", dp(G_, 2, 15)], []]
for t in range(2):
    for kk in range(5):
        e(f"v_mfma_f32_16x16x32_bf16 {vr(T+4*t)}, {vr(FA+4*kk)}, {vr(F+20*t+4*kk)}, " + ("0" if kk == 0 else vr(T + 4 * t)))
        for x in sh.pop(0): e(x)
e(f"v_add_f32 v{T+1}, v{T}, v{T+1}"); e(dp(R2, 1, 7)); e(dp(R3, 1, 8)); e(f"v_add_f32 v{T+2}, v{T+2}, v{T+3}"); e(f"v_add_f32 v{T+1}, v{T+1}, v{T+2}")
e(f"v_permlane32_swap_b32 v{T+1}, v{R2}")
e(f"v_add_f32 v{T+5}, v{T+4}, v{T+5}"); e(f"v_add_f32 v{T+6}, v{T+6}, v{T+7}"); e(f"v_add_f32 v{T+5}, v{T+5}, v{T+6}"); e(f"v_add_f32 v{T+1}, v{T+1}, v{R2}")
e(f"v_permlane32_swap_b32 v{T+5}, v{R3}"); e(f"v_add_f32 v{T+5}, v{T+5}, v{R3}")
e(f"v_permlane16_swap_b32 v{T+1}, v{T+5}"); e("s_mov_b64 exec, s[52:53]"); e(f"v_add_f32 v{T+1}, v{T+1}, v{T+5}")
lstore(f"buffer_store_dword v{T+1}, v84, {sr(sW)}, s{sT1} offen"); setexec(FULL)
stamp(9)
lab("NEXT")
e(f"s_cmp_lg_u32 s{sLay}, 0"); e("s_cbranch_scc1 DONE")
e(f"s_mov_b32 s{sLay}, {LS}"); e(f"s_add_u32 s{sLG}, s{sLG}, {LS}"); e(f"s_add_u32 s{sYg}, s{sYg}, {LS}"); e(f"s_add_u32 s{sYl}, s{sYl}, {LS}")
e("s_mov_b64 s[46:47], s[44:45]"); e("s_mov_b64 s[48:49], s[92:93]")
e("s_branch LOOP")
flush_near()
lab("DONE")
if SPIN:
    e("v_accvgpr_read_b32 v38, a253"); e("s_nop 1"); e("v_readfirstlane_b32 s96, v38")
    if SPM == "min":
        e("v_not_b32 v38, v38"); e("v_mov_b32 v39, 192"); e("s_mov_b64 exec, 1"); e("global_atomic_umax v39, v38, s[64:65] sc1"); e("s_waitcnt vmcnt(0)")
        lab("SPW"); e("s_sleep 20"); e("s_memrealtime s[98:99]"); e("s_waitcnt lgkmcnt(0)"); e("s_sub_u32 s98, s98, s96"); e(f"s_cmp_lt_u32 s98, {SPIN*100-1500}"); e("s_cbranch_scc1 SPW")
        e("global_load_dword v38, v39, s[64:65] sc1"); e("s_waitcnt vmcnt(0)"); e("v_not_b32 v38, v38"); e("s_nop 1"); e("v_readfirstlane_b32 s96, v38")
    e(f"s_add_u32 s55, s55, {SPIN*100}") if DA >= 0 else e(f"s_mov_b32 s55, {SPIN*100}")
    lab("SPINL"); e("s_memrealtime s[98:99]"); e("s_waitcnt lgkmcnt(0)"); e("s_sub_u32 s98, s98, s96"); e(f"s_cmp_lt_u32 s98, s55"); e("s_cbranch_scc1 SPINL")
e("s_endpgm")
i = 0
while i < len(tail): tail[i](); flush_near(); i += 1
lab("CODE_END")
e("s_endpgm")

body = A.pad()
hdr = [f"; @launch grid=(256,1,1) block=(256,1,1) lds={LDSSZ}", '.amdgcn_target "amdgcn-amd-amdhsa--gfx950"', ".text",
       f".globl {NAME}_kernel", ".p2align 8", f".type {NAME}_kernel,@function", f"{NAME}_kernel:"]
ftr = ['.section .rodata,"a"', ".p2align 6", f".amdhsa_kernel {NAME}_kernel", "  .amdhsa_next_free_vgpr 512", "  .amdhsa_next_free_sgpr 102",
       "  .amdhsa_accum_offset 256", "  .amdhsa_group_segment_fixed_size 0", "  .amdhsa_kernarg_size 96", "  .amdhsa_user_sgpr_count 2",
       "  .amdhsa_user_sgpr_kernarg_segment_ptr 1", "  .amdhsa_system_sgpr_workgroup_id_x 1", ".end_amdhsa_kernel"]
src = "\n".join(hdr + body + ftr) + "\n"
import re
for m in re.finditer(r"buffer_\S+ .*offset:(\d+)", src): assert int(m.group(1)) < 4096, m.group(0)
for m in re.finditer(r"ds_\S+ .*offset:(\d+)", src): assert int(m.group(1)) < 65536, m.group(0)
open(OUT, "w").write(src)
```
